```python
import torch

def _softmax(x, axis=-1):
    return torch.softmax(x, dim=axis)
def _gelu(x):
    return torch.nn.functional.gelu(x, approximate="tanh")
def _silu(x):
    return torch.nn.functional.silu(x)
def _sigmoid(x):
    return torch.sigmoid(x)
def _layernorm(x, axis=-1, eps=1e-5):
    m = x.mean(dim=axis, keepdim=True)
    v = x.var(dim=axis, keepdim=True, unbiased=False)
    return (x - m) / torch.sqrt(v + eps)
def _scatter_add(tgt, idx, src, axis=0):
    return tgt.clone().index_add_(axis, idx, src)
def _segment_sum(src, seg, n):
    out = torch.zeros((n,) + src.shape[1:], dtype=src.dtype)
    return out.index_add_(0, seg, src)
def _pad(x, pw):
    flat = tuple(v for pair in reversed(pw) for v in pair)
    return torch.nn.functional.pad(x, flat)

kernel_name = 'recurrent_scan__compressed_kv_cla__glu_gated_geglu__prompt'

def setup_inputs():

    _w = (lambda a: (lambda t: t.to(torch.bfloat16) if t.is_floating_point() else t)(torch.as_tensor(a)))
    def _A_setup():
        B, H, Sq, Sk, D, M = 1, 32, 2048, 2048, 128, 512
        Dc = 4 * D
        return {
            "x": _w((lambda *s: torch.randn(*s, dtype=torch.bfloat16) * 0.05)(B, Sq, M)),
            "c_kv": _w((lambda *s: torch.randn(*s, dtype=torch.bfloat16) * 1.6)(B, Sk, Dc)),
            "w_q": _w((lambda *s: torch.randn(*s, dtype=torch.bfloat16) * 1.6)(M, H, D) * (M ** -0.5)),
            "w_uk": _w((lambda *s: torch.randn(*s, dtype=torch.bfloat16) * 1.6)(Dc, H, D) * (Dc ** -0.5)),
            "w_uv": _w((lambda *s: torch.randn(*s, dtype=torch.bfloat16) * 1.6)(Dc, H, D) * (Dc ** -0.5)),
            "w_o": _w((lambda *s: torch.randn(*s, dtype=torch.bfloat16) * 1.6)(H, D, M) * ((H * D) ** -0.5)),
        }
    _A_in = _A_setup()

    def _B_setup():
        B, S, Dm, Df = 1, 2048, 512, 1792
        return {
            "x": _w((lambda *s: torch.randn(*s, dtype=torch.bfloat16) * 0.05)(B, S, Dm)),
            "w_gate": _w((lambda *s: torch.randn(*s, dtype=torch.bfloat16) * 0.2)(Dm, Df) * (Dm ** -0.5)),
            "w_up": _w((lambda *s: torch.randn(*s, dtype=torch.bfloat16) * 0.2)(Dm, Df) * (Dm ** -0.5)),
            "w_down": _w((lambda *s: torch.randn(*s, dtype=torch.bfloat16) * 0.2)(Df, Dm) * (Df ** -0.5)),
        }
    _B_in = _B_setup()

    return {
        "A_x": _A_in["x"],
        "A_c_kv": _A_in["c_kv"],
        "A_w_q": _A_in["w_q"],
        "A_w_uk": _A_in["w_uk"],
        "A_w_uv": _A_in["w_uv"],
        "A_w_o": _A_in["w_o"],
        "B_x": _B_in["x"],
        "B_w_gate": _B_in["w_gate"],
        "B_w_up": _B_in["w_up"],
        "B_w_down": _B_in["w_down"],
    }

def reference(A_x, A_c_kv, A_w_q, A_w_uk, A_w_uv, A_w_o, B_x, B_w_gate, B_w_up, B_w_down):
    def _A_ref(x, c_kv, w_q, w_uk, w_uv, w_o):
        B, Sq, M = x.shape[0], x.shape[1], x.shape[2]
        Sk = c_kv.shape[1]
        H, D = w_q.shape[1], w_q.shape[2]
        q = torch.einsum("bqm,mhd->bhqd", x, w_q)
        k = torch.einsum("bkc,chd->bhkd", c_kv, w_uk)
        v = torch.einsum("bkc,chd->bhkd", c_kv, w_uv)
        scores = torch.einsum("bhqd,bhkd->bhqk", q, k) * (D ** -0.5)
        off = Sk - Sq
        qi = torch.arange(Sq)[:, None]
        kj = torch.arange(Sk)[None, :]
        cmask = kj <= (qi + off)
        scores = torch.where(cmask[None, None], scores, -1e9)
        p = _softmax(scores, axis=-1)
        ctx = torch.einsum("bhqk,bhkd->bhqd", p, v)
        return torch.einsum("bhqd,hdm->bqm", ctx, w_o)

    def _B_ref(x, w_gate, w_up, w_down):
        g = torch.einsum("bsd,df->bsf", x, w_gate)
        u = torch.einsum("bsd,df->bsf", x, w_up)
        h = _gelu(g) * u
        return torch.einsum("bsf,fd->bsd", h, w_down)

    x = A_x
    xn = _layernorm(x, axis=-1)
    s = _A_ref(xn, A_c_kv, A_w_q, A_w_uk, A_w_uv, A_w_o)
    g = _silu(_B_ref(xn, B_w_gate, B_w_up, B_w_down))
    return x + s * g
```

```python
import re, sys

def regs(tok):
    tok = tok.strip()
    m = re.fullmatch(r"(-|abs\(|\|)?([vas])(\d+)\)?\|?", tok)
    if m: return [(m.group(2), int(m.group(3)))]
    m = re.fullmatch(r"([vas])\[(\d+):(\d+)\]", tok)
    if m: return [(m.group(1), i) for i in range(int(m.group(2)), int(m.group(3)) + 1)]
    if tok in ("vcc",): return [("s", 106), ("s", 107)]
    if tok == "m0": return [("s", 124)]
    if tok == "exec": return [("s", 126), ("s", 127)]
    return []

TRANS = ("v_exp_f32", "v_log_f32", "v_rcp_f32", "v_rsq_f32", "v_sqrt_f32")
class I: pass
def parse(line):
    line = line.split(";")[0].strip()
    if not line or line.endswith(":") or line.startswith("."): return None
    p = line.split(None, 1)
    op = p[0]; rest = p[1] if len(p) > 1 else ""
    ops = [x.strip() for x in re.split(r",(?![^\[]*\])", rest)] if rest else []
    mods = ""
    if ops:
        q = ops[-1].split(None, 1)
        ops[-1] = q[0]; mods = q[1] if len(q) > 1 else ""
    i = I(); i.op = op; i.ops = ops; i.mods = mods; i.line = line
    i.w = []; i.r = []; i.cls = "other"; i.srcc = []; i.ab = []
    R = lambda k: regs(ops[k]) if k < len(ops) else []
    if op.startswith("v_mfma"):
        i.cls = "mfma"; i.w = R(0); i.ab = R(1) + R(2); i.srcc = R(3); i.r = i.ab + i.srcc
        i.passes = 4 if "16x16x32" in op else 8
    elif op.startswith("ds_read"):
        i.cls = "dsr"; i.w = R(0); i.r = R(1)
    elif op.startswith("ds_write"):
        i.cls = "dsw"; i.r = R(0) + R(1) + R(2)
    elif op.startswith("ds_bpermute") or op.startswith("ds_swizzle"):
        i.cls = "dsr"; i.w = R(0); i.r = R(1) + R(2)
    elif op.startswith("buffer_load"):
        if "lds" in mods.split():
            i.cls = "dma"; i.r = R(0) + R(1) + R(2) + [("s", 124)]
        else:
            i.cls = "vml"; i.w = R(0); i.r = R(1) + R(2) + R(3)
    elif op.startswith("global_load"):
        i.cls = "vml"; i.w = R(0); i.r = R(1) + R(2)
    elif op.startswith("buffer_store"):
        i.cls = "vms"; i.r = R(0) + R(1) + R(2) + R(3); i.data = R(0)
    elif op.startswith("buffer_atomic"):
        i.cls = "vms"; i.r = R(0) + R(1) + R(2) + R(3); i.data = R(0)
        if "sc0" in mods.split(): i.cls = "vml"; i.w = R(0)
    elif op.startswith("buffer_inv") or op.startswith("buffer_wbl2"):
        i.cls = "vms"; i.data = []
    elif op.startswith("s_load") or op.startswith("s_memtime") or op.startswith("s_memrealtime"):
        i.cls = "smem"; i.w = R(0); i.r = R(1)
    elif op.startswith("v_cmp"):
        i.cls = "valu"; i.w = R(0); i.r = R(1) + R(2)
    elif op.startswith("v_readfirstlane") or op.startswith("v_readlane"):
        i.cls = "valu"; i.w = R(0); i.r = R(1) + R(2); i.rl = True
    elif op.startswith("v_permlane"):
        i.cls = "valu"; i.w = R(0) + R(1); i.r = R(0) + R(1); i.pl = True
    elif op.startswith("v_"):
        i.cls = "valu"; i.w = R(0)
        for k in range(1, len(ops)): i.r += R(k)
        if op.startswith("v_fmac") or op.startswith("v_writelane"): i.r += R(0)
        if op.startswith("v_cndmask") and len(ops) == 3: i.r += regs("vcc")
        if "dpp" in op or "quad_perm" in mods or "row_" in mods: i.dpp = True; i.r += R(0)
    elif op.startswith("s_"):
        i.cls = "salu"
        if op.startswith("s_cmp") or op.startswith("s_cbranch") or op in ("s_branch", "s_barrier", "s_nop", "s_waitcnt", "s_endpgm", "s_setprio", "s_sleep"):
            for k in range(len(ops)): i.r += R(k)
        else:
            i.w = R(0)
            for k in range(1, len(ops)): i.r += R(k)
            if "saveexec" in op: i.w += regs("exec")
    return i

def check(lines, name=""):
    errs = 0
    hist = []
    pos = 0
    lg = []; vm = []
    def err(msg, a, b):
        nonlocal errs
        errs += 1
        print(f"[{name}] HAZARD {msg}\n    first : {a.line}\n    second: {b.line}")
    for ln in lines:
        i = parse(ln)
        if i is None: continue
        rs, ws = set(i.r), set(i.w)
        for q, nm in ((lg, "lgkm"), (vm, "vm")):
            for o in q:
                if set(o.w) & (rs | ws): err(f"pending {nm} result touched", o, i)
        for (o, p) in hist:
            d = pos - p - 1
            ow = set(o.w)
            if o.cls == "valu":
                vw = {r for r in ow if r[0] in "va"}; sw = {r for r in ow if r[0] == "s"}
                if i.cls == "mfma" and vw & rs and d < 2: err("valu->mfma needs 2", o, i)
                if getattr(i, "dpp", False) and vw & rs and d < 2: err("valu->dpp needs 2", o, i)
                if getattr(i, "pl", False) and vw & rs and d < 2: err("valu->permlane needs 2", o, i)
                if getattr(i, "rl", False) and vw & rs and d < 1: err("valu->readlane needs 1", o, i)
                if o.op.startswith(TRANS) and i.cls in ("valu",) and not i.op.startswith(TRANS) and vw & rs and d < 1: err("trans->valu needs 1", o, i)
                if sw & rs:
                    if i.cls in ("vml", "vms", "dma") and d < 5: err("valu sgpr->vmem needs 5", o, i)
                    if i.cls == "valu" and d < 2: err("valu sgpr->valu needs 2", o, i)
                    if getattr(i, "rl", False) and d < 4: err("valu sgpr->lane select needs 4", o, i)
            if o.cls == "salu" and ("s", 124) in ow and i.cls == "dma" and d < 1: err("m0->dma needs 1", o, i)
            if o.cls == "mfma":
                n_ab = 8 if o.passes == 4 else 12
                if i.cls == "mfma":
                    if ow & set(i.ab) and d < n_ab: err("mfma D->mfma A/B", o, i)
                    sc = set(i.srcc)
                    if ow & sc and not (ow == sc and o.passes == i.passes) and d < (6 if o.passes == 4 else 10): err("mfma D->partial C", o, i)
                    if ow & ws and not (ow & sc) and d < n_ab: err("mfma D WAW mfma (be careful)", o, i)
                elif i.cls in ("valu", "vml", "vms", "dsr", "dsw", "dma"):
                    if ow & (rs | ws) and d < n_ab: err("mfma D->valu/mem", o, i)
                if i.cls == "valu" and set(o.srcc) & ws and d < (3 if o.passes == 4 else 7): err("mfma C read->valu write WAR", o, i)
            if o.cls == "vms" and len(getattr(o, "data", [])) >= 3 and set(o.data) & ws and d < 2: err("wide store data WAR", o, i)
            if o.cls == "dsw" and False: pass
        if i.op == "s_waitcnt":
            m = re.search(r"vmcnt\((\d+)\)", i.line)
            if m:
                n = int(m.group(1)); vm[:] = vm[len(vm) - n:] if n and n < len(vm) else ([] if n == 0 else vm)
            m = re.search(r"lgkmcnt\((\d+)\)", i.line)
            if m:
                n = int(m.group(1))
                if any(o.cls == "smem" for o in lg) and n > 0: pass
                else: lg[:] = lg[len(lg) - n:] if n and n < len(lg) else ([] if n == 0 else lg)
        if i.cls in ("dsr", "dsw", "smem"): lg.append(i)
        if i.cls in ("vml", "vms", "dma"): vm.append(i)
        hist.append((i, pos))
        step = 1
        if i.op == "s_nop": step = int(i.ops[0], 0) + 1
        pos += step
        hist = [(o, p) for (o, p) in hist if pos - p < 24]
    return errs
```

```python
import re

class Filler:
    __slots__ = ("fn", "cost", "kind", "earliest", "deadline")
    def __init__(self, fn, cost=4, kind="valu", earliest=0, deadline=10**9):
        self.fn = fn; self.cost = cost; self.kind = kind
        self.earliest = earliest; self.deadline = deadline

class E:
    def __init__(self):
        self.L = []
        self.lgkm = []
        self.vm = []
    def __call__(self, s):
        for ln in s.strip("\n").split("\n"):
            ln = ln.strip()
            if ln: self.L.append(ln if ln.endswith(":") or ln.startswith(".") or ln.startswith(";") else "    " + ln)
    def c(self, s): self.L.append("    ; " + s)
    def label(self, s): self.L.append(s + ":")
    def ds(self, s, tag=None):
        self(s); self.lgkm.append(tag)
    def vmem(self, s, tag=None):
        self(s); self.vm.append(tag)
    @staticmethod
    def _cnt(q, tags):
        last = -1
        for i, t in enumerate(q):
            if t in tags: last = i
        return None if last < 0 else len(q) - 1 - last
    def need(self, lg=(), vm=()):
        parts = []
        n = self._cnt(self.vm, set(vm)) if vm else None
        if n is not None:
            n = min(n, 63)
            parts.append(f"vmcnt({n})"); self.vm = self.vm[len(self.vm) - n:] if n else []
        n = self._cnt(self.lgkm, set(lg)) if lg else None
        if n is not None:
            n = min(n, 15)
            parts.append(f"lgkmcnt({n})"); self.lgkm = self.lgkm[len(self.lgkm) - n:] if n else []
        if parts: self("s_waitcnt " + " ".join(parts))
        return bool(parts)
    def wait_all(self, lg=True, vm=True):
        p = []
        if vm: p.append("vmcnt(0)"); self.vm = []
        if lg: p.append("lgkmcnt(0)"); self.lgkm = []
        self("s_waitcnt " + " ".join(p))
    def text(self): return "\n".join(self.L) + "\n"

    def schedule(self, mfmas, streams, budget=8, flush=True):
        pos = [0] * len(streams)
        def head(k):
            return streams[k][pos[k]] if pos[k] < len(streams[k]) else None
        def dl(k):
            return min((f.deadline for f in streams[k][pos[k]:]), default=10**9)
        debt = 0
        for i, m in enumerate(mfmas):
            for k in range(len(streams)):
                while dl(k) <= i:
                    f = head(k)
                    assert f.earliest <= i, (f.earliest, i, k)
                    f.fn(); pos[k] += 1
            m()
            left = budget
            salu_free = 1
            if i + 1 < len(mfmas) and hasattr(mfmas[i+1], "pre") and not any(dl(k) <= i + 1 for k in range(len(streams))):
                if mfmas[i+1].pre(): salu_free = 0
            for kinds in (("mem", "salu"), ("valu", "salu")):
                progress = True
                while progress:
                    progress = False
                    for k in range(len(streams)):
                        f = head(k)
                        if f is None or f.earliest > i or f.kind not in kinds: continue
                        cost = f.cost
                        if f.kind == "salu" and salu_free and left == budget: cost = 0
                        if cost > left: continue
                        if f.kind == "salu" and cost == 0: salu_free = 0
                        f.fn(); pos[k] += 1; left -= cost; progress = True
                        break
        rest = [streams[k][pos[k]:] for k in range(len(streams))]
        if flush:
            for r in rest:
                for f in r: f.fn()
            return None
        return rest
```

```python
import sys, math, os
from emit import E, Filler
import check as chk

NAME = "recurrent_scan__compressed_kv_cla__glu_gated_geglu__prompt"
MB = 1 << 20
WS_XN, WS_H, WS_CTX, WS_K, WS_V, WS_END = 0, 2*MB, 16*MB, 32*MB, 48*MB, 64*MB

S_X, S_CKV, S_WQ, S_WUK, S_WUV, S_WO, S_WG, S_WU, S_WD, S_OUT, S_DBG, S_WS = [8 + 4*i for i in range(12)]
def srd(n): return f"s[{n}:{n+3}]"
S_WAVE, S_HEAD, S_BLK, S_ROT = 56, 57, 58, 59
S_T0, S_T1, S_T2, S_T3, S_T4, S_T5 = 60, 61, 62, 63, 64, 65
S_WL, S_WA = 66, 67
S_OFF0, S_OFF1, S_OFFA = 68, 69, 70
S_AROW = 71
S_ST = 72
S_COL = (73, 74, 75, 76)

def mf(d, a, b, c):
    return f"v_mfma_f32_16x16x32_bf16 {d}, {a}, {b}, {c}"
def vr(n, k=4): return f"v[{n}:{n+k-1}]"
def ar(n, k=4): return f"a[{n}:{n+k-1}]"

def kernel_head(e, name, nwg):
    e(f".globl {name}\n.p2align 8\n.type {name},@function")
    e.label(name)
    e(f"s_cmp_ge_u32 s2, {nwg}")
    e(f"s_cbranch_scc1 L_{name}_end")
    e("s_load_dwordx16 s[76:91], s[0:1], 0")
    e("s_load_dwordx8 s[92:99], s[0:1], 64")
    e("s_load_dwordx2 s[100:101], s[0:1], 96")
    e("v_and_b32 v1, 63, v0")
    e("v_lshrrev_b32 v2, 6, v0")
    e("s_nop 0")
    e(f"v_readfirstlane_b32 s{S_WAVE}, v2")
    if STAMPS:
        e(("s_memtime" if os.environ.get("STAMPS") == "2" else "s_memrealtime") + " s[4:5]")
        e("v_mov_b32 v2, -1")
    e("s_waitcnt lgkmcnt(0)")
    if STAMPS: e("v_writelane_b32 v2, s4, 0")
    sizes = {S_X: (76, 2*MB), S_CKV: (78, 2*MB), S_WQ: (80, 4*MB), S_WUK: (82, 4*MB), S_WUV: (84, 4*MB), S_WO: (86, 4*MB),
             S_WG: (90, 512*3584), S_WU: (92, 512*3584), S_WD: (94, 1792*1024), S_OUT: (96, 2*MB), S_DBG: (98, 256), S_WS: (100, 256*MB if STAMPS else WS_END)}
    for s, (p, n) in sizes.items():
        e(f"s_mov_b32 s{s}, s{p}\ns_mov_b32 s{s+1}, s{p+1}\ns_mov_b32 s{s+2}, {n}\ns_mov_b32 s{s+3}, 0x20000")
    e(f"""s_and_b32 s{S_T0}, s2, 7
    s_lshl_b32 s{S_T0}, s{S_T0}, 2
    s_lshr_b32 s{S_T1}, s2, 3
    s_and_b32 s{S_T1}, s{S_T1}, 3
    s_add_u32 s{S_HEAD}, s{S_T0}, s{S_T1}
    s_lshr_b32 s{S_BLK}, s2, 5
    s_lshl_b32 s{S_T1}, s{S_T1}, 1
    s_add_u32 s{S_ROT}, s{S_BLK}, s{S_T1}
    s_and_b32 s{S_ROT}, s{S_ROT}, 7
    s_lshl_b32 s{S_WL}, s{S_WAVE}, 10
    s_lshl_b32 s{S_WA}, s{S_WAVE}, 13
    s_add_u32 s{S_WA}, s{S_WA}, 65536""")

STAMPS = bool(os.environ.get("STAMPS"))
V_STAMP = 2
def stamp(e, idx):
    if not STAMPS: return
    e(("s_memtime" if os.environ.get("STAMPS") == "2" else "s_memrealtime") + " s[4:5]")
    e.wait_all(vm=False)
    e(f"v_writelane_b32 v{V_STAMP}, s4, {idx}")
def stamp_flush(e, k):
    if not STAMPS: return
    e(f"""s_lshl_b32 s4, s2, 2
    s_add_u32 s4, s4, s{S_WAVE}
    s_lshl_b32 s4, s4, 7
    s_add_u32 s4, s4, {128*MB + k*256*4*128}
    v_lshlrev_b32 v0, 2, v{V_LANE}
    v_cmp_gt_u32 vcc, 32, v{V_LANE}
    s_and_saveexec_b64 s[6:7], vcc
    buffer_store_dword v{V_STAMP}, v0, {srd(S_WS)}, s4 offen
    s_waitcnt vmcnt(0)""")

def kernel_tail(e, name):
    e.label(f"L_{name}_end")
    e("s_endpgm")

def descriptor(name, nfv=512, acc=256):
    return f""".amdhsa_kernel {name}
  .amdhsa_next_free_vgpr {nfv}
  .amdhsa_next_free_sgpr 102
  .amdhsa_accum_offset {acc}
  .amdhsa_group_segment_fixed_size 0
  .amdhsa_kernarg_size 104
  .amdhsa_user_sgpr_count 2
  .amdhsa_user_sgpr_kernarg_segment_ptr 1
  .amdhsa_system_sgpr_workgroup_id_x 1
.end_amdhsa_kernel
"""

V_LANE = 1
V_L16 = 3
V_TR = (4, 5, 6, 7)
V_WOFF = (8, 9)
V_WOFG = (10, 11)
V_AOFF = (12, 13)
V_ARD = (14, 15)
V_TMP = list(range(16, 32))
V_WF = 32
V_PK = 64
V_ACC = 128
def acc(db, rb): return V_ACC + (db*4 + rb)*4
def actf(ks, rb): return (ks*4 + rb)*4

def setup_proj_addrs(e, natural=True):
    t0, t1, t2, t3, t4 = V_TMP[:5]
    e(f"v_lshlrev_b32 v{V_L16}, 4, v{V_LANE}")
    e(f"""v_lshrrev_b32 v{t0}, 2, v{V_LANE}
    v_lshlrev_b32 v{t0}, 7, v{t0}
    v_and_b32 v{t1}, 3, v{V_LANE}
    v_lshlrev_b32 v{t1}, 3, v{t1}
    v_add_u32 v{t0}, v{t0}, v{t1}
    v_bfe_u32 v{t1}, v{V_LANE}, 3, 2
    v_lshlrev_b32 v{t1}, 5, v{t1}
    v_add_u32 v{V_TR[0]}, v{t0}, v{t1}""")
    for c in (1, 2, 3):
        e(f"v_xor_b32 v{V_TR[c]}, {c*32}, v{V_TR[0]}")
    e(f"""v_lshrrev_b32 v{t0}, 3, v{V_LANE}
    v_and_b32 v{t1}, 7, v{V_LANE}
    v_and_b32 v{t2}, 6, v{t0}
    v_xor_b32 v{t1}, v{t1}, v{t2}
    v_lshlrev_b32 v{t1}, 4, v{t1}
    s_lshl_b32 s{S_T0}, s{S_WAVE}, 3
    v_add_u32 v{t2}, s{S_T0}, v{t0}""")
    e(f"""v_bfe_u32 v{t3}, v{t2}, 2, 2
    v_lshlrev_b32 v{t3}, 3, v{t3}
    v_lshrrev_b32 v{t4}, 4, v{t2}
    v_lshl_add_u32 v{t3}, v{t4}, 2, v{t3}
    v_and_b32 v{t4}, 3, v{t2}
    v_add_u32 v{t3}, v{t3}, v{t4}""")
    e(f"""v_lshl_add_u32 v{V_WOFF[0]}, v{t3}, 13, v{t1}
    v_add_u32 v{V_WOFF[1]}, {32*8192}, v{V_WOFF[0]}
    v_mul_u32_u24 v{t3}, 3584, v{t3}
    v_add_u32 v{V_WOFG[0]}, v{t3}, v{t1}
    v_add_u32 v{V_WOFG[1]}, {32*3584}, v{V_WOFG[0]}""")
    e(f"""v_and_b32 v{t1}, 7, v{V_LANE}
    v_lshrrev_b32 v{t2}, 1, v{t0}
    v_xor_b32 v{t1}, v{t1}, v{t2}
    v_lshlrev_b32 v{t1}, 4, v{t1}
    v_lshl_add_u32 v{V_AOFF[0]}, v{t0}, 10, v{t1}
    v_xor_b32 v{V_AOFF[1]}, 64, v{V_AOFF[0]}
    v_add_u32 v{V_AOFF[1]}, 8192, v{V_AOFF[1]}""")
    e(f"""v_and_b32 v{t0}, 15, v{V_LANE}
    v_lshrrev_b32 v{t1}, 4, v{V_LANE}
    v_lshrrev_b32 v{t2}, 1, v{t0}
    v_xor_b32 v{t1}, v{t1}, v{t2}
    v_lshlrev_b32 v{t1}, 4, v{t1}
    v_lshl_add_u32 v{t0}, v{t0}, 7, v{t1}
    v_add_u32 v{V_ARD[0]}, s{S_WA}, v{t0}
    v_xor_b32 v{V_ARD[1]}, 64, v{V_ARD[0]}""")

class DmaQ:
    def __init__(self, e):
        self.e = e; self.ops = []; self.n = 0
    def add(self, pre, ins, tag):
        self.ops.append((pre, ins, tag)); return len(self.ops) - 1
    def prime(self):
        self.e(self.ops[0][0]); self.e("s_nop 0")
    def issue(self, idx):
        assert idx == self.n, (idx, self.n)
        pre, ins, tag = self.ops[idx]
        self.e.vmem(ins, tag)
        self.n += 1
        if self.n < len(self.ops): self.e(self.ops[self.n][0])

def w_stage_ops(dq, p, gs, s):
    slot = gs % 4
    ids = []
    for n, (ksub, sub) in enumerate(((0, 0), (0, 1), (1, 0), (1, 1))):
        pre = f"s_add_u32 m0, s{S_WL}, {slot*16384 + ksub*8192 + sub*4096}"
        if n == 0:
            pre += f"""
            s_add_u32 s{S_OFF0}, s{S_ROT}, {s}
            s_and_b32 s{S_OFF0}, s{S_OFF0}, 7
            s_mul_i32 s{S_OFF0}, s{S_OFF0}, {64*p['pitch']}
            s_add_u32 s{S_OFF0}, s{S_OFF0}, s{p['col']}
            s_add_u32 s{S_OFF1}, s{S_OFF0}, {p['sub1']}"""
        voff = (V_WOFF if p['pitch'] == 8192 else V_WOFG)[ksub]
        ins = f"buffer_load_dwordx4 v{voff}, {srd(p['srd'][sub])}, s{(S_OFF0, S_OFF1)[sub]} offen lds"
        ids.append(dq.add(pre, ins, ("W", gs)))
    return ids

def a_stage_ops(dq, s):
    slot = s % 2
    ids = []
    for q in range(8):
        pre = f"s_add_u32 m0, s{S_WA}, {slot*32768 + q*1024}"
        if q == 0:
            pre += f"""
            s_add_u32 s{S_OFFA}, s{S_ROT}, {s}
            s_and_b32 s{S_OFFA}, s{S_OFFA}, 7
            s_lshl_b32 s{S_OFFA}, s{S_OFFA}, 7
            s_add_u32 s{S_OFFA}, s{S_OFFA}, s{S_AROW}"""
        elif q % 2 == 0:
            pre += f"\ns_add_u32 s{S_OFFA}, s{S_OFFA}, 16384"
        ins = f"buffer_load_dwordx4 v{V_AOFF[q & 1]}, {srd(S_CKV)}, s{S_OFFA} offen lds"
        ids.append(dq.add(pre, ins, ("A", s)))
    return ids

def layernorm(e, lds_base):
    e.c("---- layernorm ----")
    e.need(vm=["X"])
    X = (72, 80)
    SUM = (88, 89); TMP = (90, 91)
    for r in range(2):
        for j in range(4):
            e(f"v_lshlrev_b32 v{X[r]+2*j}, 16, v{64+4*r+j}")
            e(f"v_and_b32 v{X[r]+2*j+1}, 0xffff0000, v{64+4*r+j}")
    def reduce(dst_s):
        for mod in ("quad_perm:[1,0,3,2] row_mask:0xf bank_mask:0xf", "quad_perm:[2,3,0,1] row_mask:0xf bank_mask:0xf",
                    "row_half_mirror row_mask:0xf bank_mask:0xf", "row_mirror row_mask:0xf bank_mask:0xf",
                    "row_bcast:15 row_mask:0xa bank_mask:0xf", "row_bcast:31 row_mask:0xc bank_mask:0xf"):
            e("s_nop 0")
            for r in range(2):
                e(f"v_add_f32_dpp v{SUM[r]}, v{SUM[r]}, v{SUM[r]} {mod}")
        e("s_nop 0")
        for r in range(2):
            e(f"v_readlane_b32 s{dst_s[r]}, v{SUM[r]}, 63")
        e("s_nop 1")
    for r in range(2):
        e(f"v_add_f32 v{SUM[r]}, v{X[r]}, v{X[r]+1}")
    for j in range(2, 8):
        for r in range(2):
            e(f"v_add_f32 v{SUM[r]}, v{SUM[r]}, v{X[r]+j}")
    reduce((S_T0, S_T1))
    MEAN = (92, 93)
    for r in range(2):
        e(f"v_mov_b32 v{MEAN[r]}, s{(S_T0, S_T1)[r]}")
    for r in range(2):
        e(f"v_mul_f32 v{MEAN[r]}, 0x3b000000, v{MEAN[r]}")
    for j in range(8):
        for r in range(2):
            e(f"v_sub_f32 v{TMP[r]}, v{X[r]+j}, v{MEAN[r]}")
        for r in range(2):
            if j == 0: e(f"v_mul_f32 v{SUM[r]}, v{TMP[r]}, v{TMP[r]}")
            else: e(f"v_fmac_f32 v{SUM[r]}, v{TMP[r]}, v{TMP[r]}")
    reduce((S_T0, S_T1))
    VAR = (94, 95)
    def rnd(v):
        e(f"v_cvt_pk_bf16_f32 v{v}, v{v}, v{v}")
        e(f"v_lshlrev_b32 v{v}, 16, v{v}")
    for r in range(2):
        e(f"v_mov_b32 v{VAR[r]}, s{(S_T0, S_T1)[r]}")
    for r in range(2):
        e(f"v_mul_f32 v{VAR[r]}, 0x3b000000, v{VAR[r]}")
        rnd(VAR[r]); rnd(MEAN[r])
        e(f"v_add_f32 v{VAR[r]}, 0x3727c5ac, v{VAR[r]}")
        rnd(VAR[r])
        e(f"v_sqrt_f32 v{VAR[r]}, v{VAR[r]}")
        e("s_nop 0")
        rnd(VAR[r])
        e(f"v_rcp_f32 v{VAR[r]}, v{VAR[r]}")
        e("s_nop 0")
    for r in range(2):
        for j in range(8):
            e(f"v_sub_f32 v{X[r]+j}, v{X[r]+j}, v{MEAN[r]}")
        for j in range(4):
            e(f"v_cvt_pk_bf16_f32 v{64+4*r+j}, v{X[r]+2*j}, v{X[r]+2*j+1}")
        for j in range(4):
            e(f"v_lshlrev_b32 v{X[r]+2*j}, 16, v{64+4*r+j}")
            e(f"v_and_b32 v{X[r]+2*j+1}, 0xffff0000, v{64+4*r+j}")
        for j in range(8):
            e(f"v_mul_f32 v{X[r]+j}, v{X[r]+j}, v{VAR[r]}")
        for j in range(4):
            e(f"v_cvt_pk_bf16_f32 v{64+4*r+j}, v{X[r]+2*j}, v{X[r]+2*j+1}")
    t0, t1, t2 = V_TMP[:3]
    e(f"s_lshl_b32 s{S_T0}, s{S_WAVE}, 5")
    e(f"s_add_u32 s{S_T0}, s{S_T0}, {lds_base}")
    e(f"v_lshlrev_b32 v{t0}, 7, v{V_LANE}")
    e(f"v_add_u32 v{t0}, s{S_T0}, v{t0}")
    e.ds(f"ds_write_b128 v{t0}, v[64:67]")
    e.ds(f"ds_write_b128 v{t0}, v[68:71] offset:16")
    e.wait_all(vm=False)
    e("s_barrier")
    e(f"s_lshl_b32 s{S_T0}, s{S_WAVE}, 11")
    e(f"s_add_u32 s{S_T0}, s{S_T0}, {lds_base}")
    e(f"v_add_u32 v{t0}, s{S_T0}, v{V_L16}")
    e.ds(f"ds_read_b128 v[64:67], v{t0}", "LN")
    e.ds(f"ds_read_b128 v[68:71], v{t0} offset:1024", "LN")
    e(f"""v_lshrrev_b32 v{t1}, 3, v{V_LANE}
    v_lshlrev_b32 v{t1}, 8, v{t1}
    v_and_b32 v{t2}, 7, v{V_LANE}
    v_lshl_add_u32 v{t1}, v{t2}, 4, v{t1}
    s_lshr_b32 s{S_T0}, s2, 1
    s_lshl_b32 s{S_T0}, s{S_T0}, 14
    s_and_b32 s{S_T1}, s2, 1
    s_lshl_b32 s{S_T1}, s{S_T1}, 7
    s_add_u32 s{S_T0}, s{S_T0}, s{S_T1}
    s_lshl_b32 s{S_T1}, s{S_WAVE}, 12
    s_add_u32 s{S_T0}, s{S_T0}, s{S_T1}
    s_add_u32 s{S_T0}, s{S_T0}, {WS_XN}""")
    e.need(lg=["LN"])
    e.vmem(f"buffer_store_dwordx4 v[64:67], v{t1}, {srd(S_WS)}, s{S_T0} offen sc1", "XNST")
    e.vmem(f"buffer_store_dwordx4 v[68:71], v{t1}, {srd(S_WS)}, s{S_T0} offen offset:2048 sc1", "XNST")

def run_passes(e, passes, dq, pre_issue, extra_streams=(), tail_hook=None):
    NS = 8 * len(passes)
    mfmas = []
    rd = []
    BAR = 42
    def stage_gate(gs):
        def fn():
            tags = [("W", gs)]
            if passes[gs // 8]['act'] == 'lds': tags.append(("A", gs % 8))
            e.need(vm=tags)
            e("s_barrier")
            if gs % 2 == 0: stamp(e, 2 + gs // 2)
        return fn
    def trread(gs, ksub, db, rr):
        slot = gs % 4
        sub, c = db // 4, db % 4
        off = slot*16384 + ksub*8192 + sub*4096 + rr*2048
        d = V_WF + db*4 + rr*2
        return lambda: e.ds(f"ds_read_b64_tr_b16 v[{d}:{d+1}], v{V_TR[c]} offset:{off}", ("F", gs, ksub, db))
    def actread(s, ksub, rb):
        off = (s % 2)*32768 + rb*2048
        return lambda: e.ds(f"ds_read_b128 {ar(actf(2*s+ksub, rb))}, v{V_ARD[ksub]} offset:{off}", ("AF", s, ksub))
    AHEAD = 5
    for gs in range(NS):
        p = passes[gs // 8]; s = gs % 8
        base = gs * 64
        if gs > 0:
            rd.append(Filler(stage_gate(gs), 8, "mem", base - 64 + BAR, base - 64 + BAR + 1))
        pend_act = []
        if p['act'] == 'lds':
            pend_act = [Filler(actread(s, ksub, rb), 4, "mem", base - 64 + BAR, base - 2 + 32*ksub) for ksub in range(2) for rb in range(4)]
        for ksub in range(2):
            for db in range(8):
                f = gs*16 + ksub*8 + db
                for rr in range(2):
                    rd.append(Filler(trread(gs, ksub, db, rr), 4, "mem", max(4*(f - AHEAD), base - 64 + BAR), 4*(f - 1)))
                for _ in range(2):
                    if pend_act: rd.append(pend_act.pop(0))
                for rb in range(4):
                    def m(gs=gs, s=s, ksub=ksub, db=db, rb=rb, p=p):
                        lg = [("F", gs, ksub, db)]
                        if p['act'] == 'lds': lg.append(("AF", s, ksub))
                        e.need(lg=lg, vm=[("XN", 2*s+ksub)] if p['act'] == 'glob' else ())
                        w = vr(V_WF + db*4); a = ar(actf(2*s+ksub, rb)); d = vr(acc(db, rb))
                        c = "0" if (s == 0 and ksub == 0) else d
                        e(mf(d, a, w, c) if p['swap'] else mf(d, w, a, c))
                    mfmas.append(m)
    k = 0
    stamp(e, 1)
    e.need(vm=[("W", 0), ("A", 0)]); e("s_barrier")
    stamp(e, 2)
    while k < len(rd) and rd[k].earliest < 0:
        rd[k].fn(); k += 1
    rd = rd[k:]
    streams = [rd, dq.fillers] + list(extra_streams)
    tails = []
    for n, p in enumerate(passes):
        for st in p['epi'](512*n, n == len(passes) - 1):
            streams.append(st)
    rest = e.schedule(mfmas, streams, flush=False)
    e("s_nop 7")
    for r in rest:
        for f in r: f.fn()

def gen_k1(e):
    name = "k1_kernel"
    kernel_head(e, name, 256)
    e(f"v_lshlrev_b32 v{V_L16}, 4, v{V_LANE}")
    e(f"s_lshl_b32 s{S_T0}, s2, 13\ns_lshl_b32 s{S_T1}, s{S_WAVE}, 11\ns_add_u32 s{S_T0}, s{S_T0}, s{S_T1}")
    e.vmem(f"buffer_load_dwordx4 v[64:67], v{V_L16}, {srd(S_X)}, s{S_T0} offen", "X")
    e.vmem(f"buffer_load_dwordx4 v[68:71], v{V_L16}, {srd(S_X)}, s{S_T0} offen offset:1024", "X")
    setup_proj_addrs(e)
    e(f"""s_lshl_b32 s{S_COL[0]}, s{S_HEAD}, 8
    s_lshl_b32 s{S_T0}, s{S_BLK}, 2
    s_add_u32 s{S_T0}, s{S_T0}, s{S_WAVE}
    s_lshl_b32 s{S_AROW}, s{S_T0}, 16
    s_lshl_b32 s{S_ST}, s{S_HEAD}, 19
    s_lshl_b32 s{S_T0}, s{S_T0}, 14
    s_add_u32 s{S_ST}, s{S_ST}, s{S_T0}""")
    pk = dict(srd=(S_WUK, S_WUK), pitch=8192, col=S_COL[0], sub1=128, swap=False, act='lds')
    pv = dict(srd=(S_WUV, S_WUV), pitch=8192, col=S_COL[0], sub1=128, swap=True, act='ready')
    passes = [pk, pv]
    dq = DmaQ(e)
    fill = []
    pro = []
    pro += w_stage_ops(dq, pk, 0, 0); pro += a_stage_ops(dq, 0)
    pro += w_stage_ops(dq, pk, 1, 1); pro += a_stage_ops(dq, 1)
    pro += w_stage_ops(dq, pk, 2, 2)
    for gs in range(0, 16):
        if gs + 2 < 8:
            for n, i in enumerate(a_stage_ops(dq, gs + 2)):
                def fn(i=i, gs=gs):
                    e.need(lg=[("AF", gs, 0), ("AF", gs, 1)]); dq.issue(i)
                fill.append(Filler(fn, 8, "mem", gs*64 + 6 + 4*n, gs*64 + 41))
        if gs + 3 < 16:
            for n, i in enumerate(w_stage_ops(dq, passes[(gs+3)//8], gs + 3, (gs+3) % 8)):
                fill.append(Filler(lambda i=i: dq.issue(i), 8, "mem", gs*64 + 44 + 4*n, gs*64 + 64 + 5))
    dq.fillers = fill
    stamp(e, 12)
    dq.prime()
    for n, i in enumerate(pro):
        dq.issue(i); e("s_nop 0")
        if n == 11: stamp(e, 13)
    stamp(e, 14)
    e.need(vm=["X"])
    stamp(e, 15)
    layernorm(e, 131072)
    def epi_k(base, last):
        cv = []; st = []
        for db in range(8):
            for rb in range(4):
                for hh in range(2):
                    d = V_PK + (rb*4 + db//2)*4 + (db & 1)*2 + hh
                    s = acc(db, rb) + 2*hh
                    cv.append(Filler(lambda d=d, s=s: e(f"v_cvt_pk_bf16_f32 v{d}, v{s}, v{s+1}"), 4, "valu", base + 480 + 4*db + 3 + 6, base + 512 + 4*db + rb))
        for n in range(16):
            rb, dg = n // 4, n % 4
            def fn(rb=rb, dg=dg):
                if dg == 0: e(f"s_add_u32 s{S_T2}, s{S_ST}, {WS_K + rb*4096}")
                e.vmem(f"buffer_store_dwordx4 {vr(V_PK + (rb*4+dg)*4)}, v{V_L16}, {srd(S_WS)}, s{S_T2} offen offset:{dg*1024} sc1", "KST")
            st.append(Filler(fn, 8, "mem", base + 512 + 34 + 27*n, base + 512 + 484))
        return [cv, st]
    def epi_v(base, last):
        cv = []
        for db in range(8):
            for rb in range(4):
                for hh in range(2):
                    d = V_PK + ((rb//2)*8 + db)*4 + (rb & 1)*2 + hh
                    s = acc(db, rb) + 2*hh
                    cv.append(Filler(lambda d=d, s=s: e(f"v_cvt_pk_bf16_f32 v{d}, v{s}, v{s+1}"), 4, "valu", base + 480 + 4*db + 3 + 6))
            for kg in range(2):
                def fn(kg=kg, db=db):
                    e(f"s_add_u32 s{S_T2}, s{S_ST}, {WS_V + kg*8192 + (db//4)*4096}")
                    e.vmem(f"buffer_store_dwordx4 {vr(V_PK + (kg*8+db)*4)}, v{V_L16}, {srd(S_WS)}, s{S_T2} offen offset:{(db%4)*1024} sc1", "VST")
                cv.append(Filler(fn, 8, "mem", base + 480 + 4*db + 3 + 6))
        return [cv]
    pk['epi'] = epi_k; pv['epi'] = epi_v
    run_passes(e, passes, dq, 0)
    stamp(e, 10)
    e.wait_all()
    stamp(e, 11)
    stamp_flush(e, 0)
    kernel_tail(e, name)
    return name


S_XNB = 77
S_HS  = 78
S_HSRD = 80
S_ASRD, S_BSRD = 84, 88
S_SRCA, S_SRCB = 92, 93
S_N, S_EVT, S_TRANS, S_N0 = 94, 95, 96, 97
S_LA, S_LB = 98, 99
S_CTXLO, S_CTXHI = 78, 79
S_FLAG = 100
S_VMAXB = 101
V_RD = 4
V_TD, V_TN, V_TRI = 16, 20, 24
V_P = (32, 48)
V_S = (64, 96)
V_O = 128
A_Q, A_FB, A_QS, A_L, A_ONE = 0, (64, 96), 128, 192, 208
QSCALE = 0x3e0293ee
NEGINF = 0xff800000
def Sreg(buf, kb2, qb): return V_S[buf] + (kb2*4 + qb)*4
def Preg(buf, qb): return V_P[buf] + qb*4
def Oreg(db, qb): return V_O + (db*4 + qb)*4

def att_dma(e, which, j):
    sr, src, ld = ((S_ASRD, S_SRCA, S_LA), (S_BSRD, S_SRCB, S_LB))[which]
    t = S_T4 if j >= 4 else src
    e.vmem(f"buffer_load_dwordx4 v{V_L16}, {srd(sr)}, s{t} offen offset:{(j%4)*1024} lds", "KV")
    if j == 3:
        e(f"s_add_u32 m0, s{ld}, 4096")
        e(f"s_add_u32 s{S_T4}, s{src}, 4096")

def sm_half(e, buf, kb2):
    ex = []; cv = []
    for p in range(8):
        qb, hh = p // 2, p % 2
        r = Sreg(buf, kb2, qb) + 2*hh
        ex.append(lambda r=r: e(f"v_exp_f32 v{r}, v{r}"))
        ex.append(lambda r=r: e(f"v_exp_f32 v{r+1}, v{r+1}"))
        d = Preg(buf, qb) + 2*kb2 + hh
        cv.append(lambda r=r, d=d: e(f"v_cvt_pk_bf16_f32 v{d}, v{r}, v{r+1}"))
    return ex, cv

def qk_mfmas(e, buf, half):
    out = []
    for kb2 in range(2):
        kb = half*2 + kb2
        for dg in range(4):
            for qb in range(4):
                d = vr(Sreg(buf, kb2, qb))
                c = d if dg else ("0" if kb < qb else vr(V_TD) if kb == qb else vr(V_TN))
                out.append(lambda d=d, c=c, kb2=kb2, dg=dg, qb=qb: e(mf(d, ar(A_FB[0] + (kb2*4+dg)*4), ar(A_Q + (qb*4+dg)*4), c)))
    return out
def pv_mfmas(e, buf):
    out = []
    for db in range(8):
        for qb in range(4):
            d = vr(Oreg(db, qb))
            out.append(lambda d=d, db=db, qb=qb: e(mf(d, ar(A_FB[1] + db*4), vr(Preg(buf, qb)), d)))
    for qb in range(4):
        d = ar(A_L + qb*4)
        out.append(lambda d=d, qb=qb: e(mf(d, ar(A_ONE), vr(Preg(buf, qb)), d)))
    return out
def frag_reads(e, fb, off):
    return [lambda j=j: e.ds(f"ds_read_b128 {ar(A_FB[fb] + j*4)}, v{V_RD} offset:{off + j*1024}", "FR") for j in range(8)]

def section(e, mfmas, reads, ex, cv, carry, dmas=(), pre=()):
    e.need(lg=["FR"])
    for i, m in enumerate(mfmas):
        m()
        q, g = i // 4, i % 4
        if i == 0:
            for f in pre: f()
        if q < 8:
            if g == 0:
                if reads: reads[q]()
                if q == 0:
                    if carry: carry()
                elif cv: cv[q-1]()
            elif g == 1 and ex: ex[2*q]()
            elif g == 2 and dmas: dmas[q]()
            elif g == 3 and ex: ex[2*q+1]()
        elif i == 32 and cv:
            cv[7]()
    return cv[7] if (cv and len(mfmas) == 32) else None

def att_reinit(e, zero_o=True):
    if zero_o:
        for r in range(128): e(f"v_mov_b32 v{V_O + r}, 0")
    for r in range(16): e(f"v_accvgpr_write_b32 a{A_L + r}, 0")
    for r in range(16): e(f"v_mov_b32 v{Sreg(1, 1, 0) + r}, {NEGINF:#x}")
    for qb in range(4):
        e(f"v_mov_b32 v{Preg(1, qb)}, 0"); e(f"v_mov_b32 v{Preg(1, qb) + 1}, 0")

def att_prep_dma(e):
    e(f"""s_cmp_le_u32 s{S_N}, 15
    s_cselect_b32 s{S_ASRD+2}, {WS_END}, 0
    s_cselect_b32 s{S_T5}, {WS_END}, 0
    s_add_u32 s{S_T3}, s{S_N}, 2
    s_cmp_ge_u32 s{S_T3}, s{S_N0}
    s_cselect_b32 s{S_BSRD+2}, s{S_T5}, 0
    s_mov_b32 m0, s{S_LA}""")
def att_adv_a(e):
    e(f"s_add_u32 s{S_SRCA}, s{S_SRCA}, 16384")
    e(f"s_xor_b32 s{S_LA}, s{S_LA}, 32768")
    e(f"s_mov_b32 m0, s{S_LB}")
def att_adv_b(e):
    e(f"s_sub_u32 s{S_VMAXB}, s{S_VMAXB}, 16384")
    e(f"s_min_u32 s{S_SRCB}, s{S_VMAXB}, s{S_T2}")
    e(f"s_xor_b32 s{S_LB}, s{S_LB}, 32768")

def drain(e, with_bdma):
    ex, cv = sm_half(e, 1, 1)
    rd = frag_reads(e, 1, 16384)
    for f in rd: f()
    for p in range(8):
        ex[2*p](); ex[2*p+1]()
        if with_bdma: att_dma(e, 1, p)
        else: e("s_nop 0")
        cv[p]()
    if with_bdma: att_adv_b(e)
    e.need(lg=["FR"])
    e("s_nop 1")
    for m in pv_mfmas(e, 1): m()
    e("s_nop 7")

def check_l(e, regs):
    for r in regs:
        e(f"v_cmp_nle_f32 vcc, v{r}, v{V_TRI}")
        e(f"s_or_b32 s{S_FLAG}, s{S_FLAG}, vcc_lo\ns_or_b32 s{S_FLAG}, s{S_FLAG}, vcc_hi")
        e(f"v_cmp_nge_f32 vcc, v{r}, v{V_TRI+1}")
        e(f"s_or_b32 s{S_FLAG}, s{S_FLAG}, vcc_lo\ns_or_b32 s{S_FLAG}, s{S_FLAG}, vcc_hi")

def norm_store(e, dbs, lregs, sbase):
    for qb in range(4):
        e(f"s_add_u32 s{S_T0}, s{sbase}, {qb*131072}")
        for dg in sorted({d // 2 for d in dbs}):
            o0, o1 = Oreg(2*dg, qb), Oreg(2*dg+1, qb)
            for r in range(4):
                e(f"v_mul_f32 v{o0+r}, v{o0+r}, v{lregs[qb]}")
                e(f"v_mul_f32 v{o1+r}, v{o1+r}, v{lregs[qb]}")
            e(f"v_cvt_pk_bf16_f32 v{o0}, v{o0}, v{o0+1}")
            e(f"v_cvt_pk_bf16_f32 v{o0+1}, v{o0+2}, v{o0+3}")
            e(f"v_cvt_pk_bf16_f32 v{o0+2}, v{o1}, v{o1+1}")
            e(f"v_cvt_pk_bf16_f32 v{o0+3}, v{o1+2}, v{o1+3}")
            e.vmem(f"buffer_store_dwordx4 {vr(o0)}, v{V_L16}, {srd(S_WS)}, s{S_T0} offen offset:{dg*1024} sc1", "CST")

def gen_k2(e):
    name = "k2_kernel"
    kernel_head(e, name, 256)
    setup_proj_addrs(e)
    i, h, w = S_BLK, S_HEAD, S_WAVE
    e(f"""s_sub_u32 s{S_T0}, 15, s{i}
    s_cmp_lt_u32 s{w}, 2
    s_cselect_b32 s{S_T1}, s{S_T0}, s{i}
    s_lshl_b32 s{S_T1}, s{S_T1}, 3
    s_and_b32 s{S_T2}, s{w}, 1
    s_lshl_b32 s{S_T2}, s{S_T2}, 2
    s_add_u32 s{S_T1}, s{S_T1}, s{S_T2}
    s_lshl_b32 s{S_XNB}, s{S_T1}, 14
    s_mul_i32 s{S_ST}, s{S_T1}, {56*1024}
    s_lshl_b32 s{S_T3}, s{h}, 11
    s_add_u32 s{S_ST}, s{S_ST}, s{S_T3}
    s_add_u32 s{S_ST}, s{S_ST}, {WS_H}
    s_lshl_b32 s{S_CTXLO}, s{S_T1}, 17
    s_lshl_b32 s{S_T3}, s{h}, 12
    s_add_u32 s{S_T3}, s{S_T3}, {WS_CTX}
    s_add_u32 s{S_CTXLO}, s{S_CTXLO}, s{S_T3}""")
    e(f"""s_lshr_b32 s{S_T1}, s{w}, 1
    s_xor_b32 s{S_T1}, s{S_T1}, s{w}
    s_and_b32 s{S_T1}, s{S_T1}, 1
    s_lshl_b32 s{S_T1}, s{S_T1}, 2
    s_lshl_b32 s{S_T0}, s{S_T0}, 3
    s_add_u32 s{S_T1}, s{S_T1}, s{S_T0}
    s_lshl_b32 s{S_CTXHI}, s{S_T1}, 17
    s_add_u32 s{S_CTXHI}, s{S_CTXHI}, s{S_T3}
    s_lshl_b32 s{S_COL[0]}, s{h}, 7
    s_lshl_b32 s{S_COL[1]}, s{h}, 8
    s_cmp_lt_u32 s{h}, 28
    s_cselect_b32 s{S_WG+2}, {512*3584}, 0
    s_cselect_b32 s{S_WU+2}, {512*3584}, 0
    s_cselect_b32 s{S_HSRD+2}, {WS_END}, 0""")
    for sr in (S_HSRD, S_ASRD, S_BSRD):
        e(f"s_mov_b32 s{sr}, s{S_WS}\ns_mov_b32 s{sr+1}, s{S_WS+1}\ns_mov_b32 s{sr+3}, 0x20000")
    e(f"s_mov_b32 s{S_ASRD+2}, {WS_END}\ns_mov_b32 s{S_BSRD+2}, 0")
    e(f"""s_lshl_b32 s{S_T0}, s{h}, 19
    s_cmp_lt_u32 s{w}, 2
    s_mov_b32 s{S_T1}, {WS_V - 8192}
    s_cselect_b32 s{S_T1}, {WS_K}, s{S_T1}
    s_add_u32 s{S_T1}, s{S_T1}, s{S_T0}
    s_and_b32 s{S_T2}, s{w}, 1
    s_lshl_b32 s{S_T2}, s{S_T2}, 13
    s_add_u32 s{S_SRCA}, s{S_T1}, s{S_T2}
    s_lshl_b32 s{S_LB}, s{w}, 13
    s_add_u32 s{S_LA}, s{S_LB}, 65536
    s_lshl_b32 s{S_N0}, s{i}, 1
    s_add_u32 s{S_N0}, s{S_N0}, 2
    s_mov_b32 s{S_FLAG}, 0""")
    pg = dict(srd=(S_WG, S_WU), pitch=3584, col=S_COL[0], sub1=0, swap=False, act='glob')
    pq = dict(srd=(S_WQ, S_WQ), pitch=8192, col=S_COL[1], sub1=128, swap=False, act='ready')
    passes = [pg, pq]
    dq = DmaQ(e)
    def xn_ops(s):
        ops = []
        for rb in range(4):
            for ksub in range(2):
                def fn(rb=rb, ksub=ksub, s=s):
                    if rb == 0 and ksub == 0:
                        e(f"""s_add_u32 s{S_OFFA}, s{S_ROT}, {s}
                        s_and_b32 s{S_OFFA}, s{S_OFFA}, 7
                        s_lshl_b32 s{S_OFFA}, s{S_OFFA}, 11
                        s_add_u32 s{S_OFFA}, s{S_OFFA}, s{S_XNB}""")
                    elif ksub == 0:
                        e(f"s_add_u32 s{S_OFFA}, s{S_OFFA}, 16384")
                    e.vmem(f"buffer_load_dwordx4 {ar(actf(2*s+ksub, rb))}, v{V_L16}, {srd(S_WS)}, s{S_OFFA} offen offset:{ksub*1024}", ("XN", 2*s+ksub))
                ops.append(fn)
        return ops
    fill = []
    pro = []
    w0 = w_stage_ops(dq, pg, 0, 0); w1 = w_stage_ops(dq, pg, 1, 1); w2 = w_stage_ops(dq, pg, 2, 2)
    for gs in range(16):
        if gs + 2 < 8:
            for n, fn in enumerate(xn_ops(gs + 2)):
                fill.append(Filler(fn, 8, "mem", gs*64 + 6 + 4*n, gs*64 + 41))
        if gs + 3 < 16:
            for n, k in enumerate(w_stage_ops(dq, passes[(gs+3)//8], gs + 3, (gs+3) % 8)):
                fill.append(Filler(lambda k=k: dq.issue(k), 8, "mem", gs*64 + 44 + 4*n, gs*64 + 64 + 5))
    for st in range(2):
        for j in range(8):
            def fn(st=st, j=j):
                if j == 0:
                    e(f"s_mov_b32 m0, s{S_LA}")
                    if st == 0:
                        e(f"s_mov_b32 s{S_T5}, s{S_SRCA}\ns_cmp_eq_u32 s{S_WAVE}, 2\ns_cselect_b32 s{S_T3}, 8192, 0\ns_add_u32 s{S_SRCA}, s{S_SRCA}, s{S_T3}")
                    else: e("s_nop 0")
                att_dma(e, 0, j)
                if j == 7:
                    if st == 0: e(f"s_mov_b32 s{S_SRCA}, s{S_T5}")
                    e(f"s_add_u32 s{S_SRCA}, s{S_SRCA}, 16384\ns_xor_b32 s{S_LA}, s{S_LA}, 32768")
            fill.append(Filler(fn, 8, "mem", (13+st)*64 + 8 + 6*j))
    dq.fillers = fill
    dq.prime()
    for k in w0: dq.issue(k); e("s_nop 0")
    for fn in xn_ops(0): fn()
    for k in w1: dq.issue(k); e("s_nop 0")
    for fn in xn_ops(1): fn()
    for k in w2: dq.issue(k); e("s_nop 0")
    C0 = -2.0 * math.sqrt(2.0 / math.pi) * math.log2(math.e)
    import struct
    fb = lambda x: struct.unpack("<I", struct.pack("<f", x))[0]
    V_C1 = V_TMP[15]
    e(f"v_mov_b32 v{V_C1}, {fb(C0*0.044715):#x}")
    def epi_g(base, last):
        cv = []; ge = []
        def gp(c, rb, hh, up): return V_PK + 32*up + (rb*2 + c//2)*4 + (c & 1)*2 + hh
        for db in range(8):
            for rb in range(4):
                for hh in range(2):
                    d = gp(db % 4, rb, hh, db // 4); s = acc(db, rb) + 2*hh
                    cv.append(Filler(lambda d=d, s=s: e(f"v_cvt_pk_bf16_f32 v{d}, v{s}, v{s+1}"), 4, "valu", base + 480 + 4*db + 3 + 6, base + 512 + 4*db + rb))
        st0 = base + 512 + 33
        T = V_TMP
        def V(txt, cost=4): ge.append(Filler(lambda: e(txt), cost, "valu", st0))
        for rb in range(4):
            for fg in range(2):
                for c in (2*fg, 2*fg+1):
                    for hh in range(2):
                        G, U = gp(c, rb, hh, 0), gp(c, rb, hh, 1)
                        g0, g1, u0, u1, t0, t1 = T[0:6]
                        V(f"v_lshlrev_b32 v{g0}, 16, v{G}"); V(f"v_and_b32 v{g1}, 0xffff0000, v{G}")
                        V(f"v_mul_f32 v{t0}, v{g0}, v{g0}"); V(f"v_mul_f32 v{t1}, v{g1}, v{g1}")
                        V(f"v_fmaak_f32 v{t0}, v{t0}, v{V_C1}, {fb(C0):#x}"); V(f"v_fmaak_f32 v{t1}, v{t1}, v{V_C1}, {fb(C0):#x}")
                        V(f"v_mul_f32 v{t0}, v{g0}, v{t0}"); V(f"v_mul_f32 v{t1}, v{g1}, v{t1}")
                        V(f"v_exp_f32 v{t0}, v{t0}", 8); V(f"v_exp_f32 v{t1}, v{t1}", 8)
                        V(f"v_lshlrev_b32 v{u0}, 16, v{U}"); V(f"v_and_b32 v{u1}, 0xffff0000, v{U}")
                        V(f"v_add_f32 v{t0}, 1.0, v{t0}"); V(f"v_add_f32 v{t1}, 1.0, v{t1}")
                        V(f"v_rcp_f32 v{t0}, v{t0}", 8); V(f"v_rcp_f32 v{t1}, v{t1}", 8)
                        V(f"v_mul_f32 v{g0}, v{g0}, v{u0}"); V(f"v_mul_f32 v{g1}, v{g1}, v{u1}")
                        V(f"v_mul_f32 v{g0}, v{g0}, v{t0}"); V(f"v_mul_f32 v{g1}, v{g1}, v{t1}")
                        V(f"v_cvt_pk_bf16_f32 v{G}, v{g0}, v{g1}")
                def fn(rb=rb, fg=fg):
                    if fg == 0: e(f"s_add_u32 s{S_T2}, s{S_ST}, {rb*56*1024}")
                    e.vmem(f"buffer_store_dwordx4 {vr(V_PK + (rb*2+fg)*4)}, v{V_L16}, {srd(S_HSRD)}, s{S_T2} offen offset:{fg*1024} sc1", "HST")
                ge.append(Filler(fn, 8, "mem", st0))
        return [cv, ge]
    def epi_q(base, last):
        out = []
        for dg in range(4):
            for qb in range(4):
                o0, o1 = acc(2*dg, qb), acc(2*dg+1, qb)
                ear = base + 480 + 4*(2*dg+1) + 3 + 6
                for r in range(4):
                    out.append(Filler(lambda r=r, o0=o0: e(f"v_mul_f32 v{o0+r}, {QSCALE:#x}, v{o0+r}"), 4, "valu", ear))
                    out.append(Filler(lambda r=r, o1=o1: e(f"v_mul_f32 v{o1+r}, {QSCALE:#x}, v{o1+r}"), 4, "valu", ear))
                for d, s in ((o0, o0), (o0+1, o0+2), (o0+2, o1), (o0+3, o1+2)):
                    out.append(Filler(lambda d=d, s=s: e(f"v_cvt_pk_bf16_f32 v{d}, v{s}, v{s+1}"), 4, "valu", ear))
        return [out]
    pg['epi'] = epi_g; pq['epi'] = epi_q
    run_passes(e, passes, dq, 0)
    stamp(e, 10)
    e(f"s_cmp_ge_u32 s{w}, 2")
    e("s_cbranch_scc1 L_k2_noqw")
    e(f"s_lshl_b32 s{S_T0}, s{w}, 14\ns_add_u32 s{S_T0}, s{S_T0}, 131072")
    e(f"v_add_u32 v{V_TMP[0]}, s{S_T0}, v{V_L16}")
    for qb in range(4):
        for dg in range(4):
            e.ds(f"ds_write_b128 v{V_TMP[0]}, {vr(acc(2*dg, qb))} offset:{(qb*4+dg)*1024}")
    e.label("L_k2_noqw")
    for qb in range(4):
        for dg in range(4):
            for r in range(4):
                e(f"v_accvgpr_write_b32 a{A_Q + (qb*4+dg)*4 + r}, v{acc(2*dg, qb) + r}")
    e(f"v_mov_b32 v{V_TMP[0]}, 0x3f803f80")
    for r in range(4): e(f"v_accvgpr_write_b32 a{A_ONE + r}, v{V_TMP[0]}")
    e(f"v_add_u32 v{V_RD}, 65536, v{V_L16}")
    for r in range(8): e(f"v_mov_b32 v{V_TD + r}, 0")
    e(f"v_mov_b32 v{V_TRI}, 0x5f800000")
    e(f"v_mov_b32 v{V_TRI+1}, 0x1f800000")
    e.wait_all(vm=False)
    att_reinit(e)
    e(f"""s_lshl_b32 s{S_TRANS}, s{i}, 1
    s_add_u32 s{S_TRANS}, s{S_TRANS}, s{w}
    s_sub_u32 s{S_TRANS}, s{S_TRANS}, 1
    s_sub_u32 s{S_EVT}, s{S_TRANS}, 1
    s_cmp_eq_u32 s{i}, 7
    s_cselect_b32 s{S_T0}, 16, 99
    s_cmp_eq_u32 s{w}, 0
    s_cselect_b32 s{S_T0}, s{S_T0}, 99
    s_cmp_lt_u32 s{w}, 2
    s_cselect_b32 s{S_EVT}, s{S_T0}, s{S_EVT}
    s_cselect_b32 s{S_TRANS}, 99, s{S_TRANS}
    s_mov_b32 s{S_N}, 0""")
    e(f"""s_lshl_b32 s{S_T0}, s{h}, 19
    s_cmp_lt_u32 s{w}, 2
    s_mov_b32 s{S_T1}, {WS_V}
    s_cselect_b32 s{S_T1}, {WS_K}, s{S_T1}
    s_add_u32 s{S_T1}, s{S_T1}, s{S_T0}
    s_add_u32 s{S_T2}, s{S_T1}, {63*8192}
    s_cmp_eq_u32 s{w}, 1
    s_cselect_b32 s{S_T0}, 8192, 0
    s_cmp_eq_u32 s{w}, 2
    s_cselect_b32 s{S_T0}, {3*8192}, s{S_T0}
    s_add_u32 s{S_VMAXB}, s{S_T1}, s{S_T0}
    s_add_u32 s{S_VMAXB}, s{S_VMAXB}, {64*8192}
    s_min_u32 s{S_SRCB}, s{S_VMAXB}, s{S_T2}
    s_xor_b32 s{S_LB}, s{S_LB}, 32768
    s_mov_b32 m0, s{S_LB}""")
    e.need(vm=["KV"])
    e("s_barrier")
    e(f"s_cmp_lt_u32 s{w}, 2")
    e("s_cbranch_scc1 L_k2_noqr")
    e(f"s_sub_u32 s{S_T0}, 3, s{w}\ns_lshl_b32 s{S_T0}, s{S_T0}, 14\ns_add_u32 s{S_T0}, s{S_T0}, 131072")
    e(f"v_add_u32 v{V_TMP[12]}, s{S_T0}, v{V_L16}")
    for j in range(16):
        e.ds(f"ds_read_b128 {ar(A_QS + j*4)}, v{V_TMP[12]} offset:{j*1024}", "FR")
    e.label("L_k2_noqr")
    for f in frag_reads(e, 0, 0): f()
    stamp(e, 11)
    e(".p2align 6")
    e.label("L_k2_loop")
    loop_start = len(e.L)
    e(f"s_cmp_eq_u32 s{S_N}, s{S_EVT}")
    e("s_cbranch_scc1 L_k2_event")
    e.label("L_k2_body")
    e.lgkm = ["FR"]
    ex, cv = sm_half(e, 1, 1)
    bd = [lambda j=j: (att_dma(e, 1, j), att_adv_b(e) if j == 7 else None) for j in range(8)]
    carry = section(e, qk_mfmas(e, 0, 0), frag_reads(e, 1, 16384), ex, cv, None, bd)
    ex, cv = sm_half(e, 0, 0)
    carry = section(e, pv_mfmas(e, 1), frag_reads(e, 0, 8192), ex, cv, carry)
    ex, cv = sm_half(e, 0, 1)
    carry = section(e, qk_mfmas(e, 1, 1), frag_reads(e, 1, 24576), ex, cv, carry)
    att_prep_dma(e)
    e(f"v_xor_b32 v{V_RD}, 32768, v{V_RD}")
    e.wait_all()
    e("s_barrier")
    ex, cv = sm_half(e, 1, 0)
    ad = [lambda j=j: (att_dma(e, 0, j), att_adv_a(e) if j == 7 else None) for j in range(8)]
    carry = section(e, pv_mfmas(e, 0), frag_reads(e, 0, 0), ex, cv, carry, ad)
    assert carry is None
    e.label("L_k2_next")
    e(f"s_add_u32 s{S_N}, s{S_N}, 1")
    e(f"s_cmp_lt_u32 s{S_N}, 17")
    e("s_cbranch_scc1 L_k2_loop")
    loop_end = len(e.L)
    e.loop = (loop_start, loop_end)
    e("s_branch L_k2_final")
    e.label("L_k2_event")
    e(f"s_cmp_eq_u32 s{S_N}, s{S_TRANS}")
    e("s_cbranch_scc1 L_k2_trans")
    e(f"s_cmp_gt_u32 s{S_N}, s{S_TRANS}")
    e("s_cbranch_scc1 L_k2_unset")
    t0, t1, t2 = V_TMP[12:15]
    e(f"""v_lshrrev_b32 v{t0}, 4, v{V_LANE}
    v_lshlrev_b32 v{t0}, 2, v{t0}
    v_and_b32 v{t1}, 15, v{V_LANE}
    v_sub_u32 v{t0}, v{t1}, v{t0}
    v_mov_b32 v{t2}, {NEGINF:#x}""")
    for r in range(4):
        e(f"v_cmp_gt_i32 vcc, {r}, v{t0}")
        e(f"v_mov_b32 v{V_TN + r}, v{t2}")
        e("s_nop 0")
        e(f"v_cndmask_b32 v{V_TD + r}, 0, v{t2}, vcc")
    e(f"s_mov_b32 s{S_EVT}, s{S_TRANS}")
    e("s_nop 0")
    e("s_branch L_k2_body")
    e.label("L_k2_unset")
    for r in range(8): e(f"v_mov_b32 v{V_TD + r}, 0")
    e(f"s_mov_b32 s{S_EVT}, 99")
    e("s_nop 0")
    e("s_branch L_k2_body")
    e.label("L_k2_trans")
    e.lgkm = ["FR"]; e.vm = ["KV"]*8
    drain(e, True)
    LR = V_TMP[10:14]
    for qb in range(4): e(f"v_accvgpr_read_b32 v{LR[qb]}, a{A_L + qb*4}")
    check_l(e, LR)
    for qb in range(4): e(f"v_rcp_f32 v{LR[qb]}, v{LR[qb]}")
    norm_store(e, list(range(8)), LR, S_CTXLO)
    att_prep_dma(e)
    e(f"v_xor_b32 v{V_RD}, {32768 + 65536}, v{V_RD}")
    e.need(vm=["KV"])
    e("s_barrier")
    for f in frag_reads(e, 0, 0): f()
    for j in range(8):
        att_dma(e, 0, j)
        for r in range(8): e(f"v_accvgpr_mov_b32 a{A_Q + j*8 + r}, a{A_QS + j*8 + r}")
    att_adv_a(e)
    att_reinit(e)
    e(f"s_add_u32 s{S_EVT}, s{S_TRANS}, 2")
    e("s_branch L_k2_next")
    e.label("L_k2_final")
    e.lgkm = ["FR"]; e.vm = ["KV"]*8
    stamp(e, 12)
    drain(e, False)
    for qb in range(4): e(f"v_accvgpr_read_b32 v{LR[qb]}, a{A_L + qb*4}")
    e.wait_all()
    e("s_barrier")
    tw, trd, tl, tlr = V_TMP[0:4]
    e(f"""s_lshl_b32 s{S_T0}, s{w}, 14
    v_add_u32 v{tw}, s{S_T0}, v{V_L16}
    s_sub_u32 s{S_T1}, 3, s{w}
    s_lshl_b32 s{S_T0}, s{S_T1}, 14
    v_add_u32 v{trd}, s{S_T0}, v{V_L16}
    s_add_u32 s{S_T0}, s{S_WL}, 131072
    v_add_u32 v{tl}, s{S_T0}, v{V_L16}
    s_lshl_b32 s{S_T0}, s{S_T1}, 10
    s_add_u32 s{S_T0}, s{S_T0}, 131072
    v_add_u32 v{tlr}, s{S_T0}, v{V_L16}""")
    e.ds(f"ds_write_b128 v{tl}, {vr(LR[0])}")
    e(f"s_cmp_ge_u32 s{w}, 2")
    e("s_cbranch_scc1 L_k2_mergeB")
    for role in range(2):
        keep = list(range(4)) if role == 0 else list(range(4, 8))
        send = list(range(4, 8)) if role == 0 else list(range(4))
        if role == 1: e.label("L_k2_mergeB")
        for n in range(16):
            e.ds(f"ds_write_b128 v{tw}, {vr(V_O + send[0]*16 + n*4)} offset:{n*1024}")
        e.wait_all(vm=False)
        e("s_barrier")
        e.ds(f"ds_read_b128 {vr(V_TMP[4])}, v{tlr}", "ML")
        for n in range(16):
            e.ds(f"ds_read_b128 {vr(V_S[0] + n*4)}, v{trd} offset:{n*1024}", ("MO", n))
        e.need(lg=["ML"])
        for qb in range(4): e(f"v_add_f32 v{LR[qb]}, v{LR[qb]}, v{V_TMP[4] + qb}")
        check_l(e, LR)
        for qb in range(4): e(f"v_rcp_f32 v{LR[qb]}, v{LR[qb]}")
        for n in range(16):
            e.need(lg=[("MO", n)])
            for r in range(4):
                o = V_O + keep[0]*16 + n*4 + r
                e(f"v_add_f32 v{o}, v{o}, v{V_S[0] + n*4 + r}")
        norm_store(e, keep, LR, S_CTXHI)
        if role == 0: e("s_branch L_k2_done")
    e.label("L_k2_done")
    stamp(e, 13)
    e.wait_all()
    stamp(e, 14)
    stamp_flush(e, 1)
    kernel_tail(e, name)
    return name


def gen_k3(e):
    name = "k3_kernel"
    kernel_head(e, name, 256)
    qt, mt, w = S_HEAD, S_BLK, S_WAVE
    V_WO4 = (8, 9, 10, 11)
    V_XO = 12
    V_X = 16
    V_WFR = 32
    V_BF = 64
    V_AS, V_AD = 128, 192
    t0, t1, t2 = 24, 25, 26
    S_LW, S_AH, S_AC, S_WOFFD, S_WOFFO = 77, 78, 79, 80, 81
    e(f"v_lshlrev_b32 v{V_L16}, 4, v{V_LANE}")
    e(f"s_lshl_b32 s{S_LW}, s{w}, 14")
    e(f"""v_lshrrev_b32 v{t0}, 2, v{V_LANE}
    v_lshlrev_b32 v{t0}, 7, v{t0}
    v_and_b32 v{t1}, 3, v{V_LANE}
    v_lshlrev_b32 v{t1}, 3, v{t1}
    v_add_u32 v{t0}, v{t0}, v{t1}
    v_bfe_u32 v{t1}, v{V_LANE}, 3, 2
    v_lshlrev_b32 v{t1}, 5, v{t1}
    v_add3_u32 v{V_TR[0]}, v{t0}, v{t1}, s{S_LW}""")
    for c in (1, 2, 3):
        e(f"v_xor_b32 v{V_TR[c]}, {c*32}, v{V_TR[0]}")
    e(f"""v_lshrrev_b32 v{t0}, 3, v{V_LANE}
    v_and_b32 v{t1}, 7, v{V_LANE}
    v_and_b32 v{t2}, 6, v{t0}
    v_xor_b32 v{t1}, v{t1}, v{t2}
    v_lshlrev_b32 v{t1}, 4, v{t1}
    v_lshl_add_u32 v{V_WO4[0]}, v{t0}, 10, v{t1}""")
    for q in (1, 2, 3):
        e(f"v_add_u32 v{V_WO4[q]}, {q*8192}, v{V_WO4[0]}")
    e(f"""s_mul_i32 s{S_AH}, s{qt}, {4*56*1024}
    s_mul_i32 s{S_T0}, s{w}, {14*1024}
    s_add_u32 s{S_AH}, s{S_AH}, s{S_T0}
    s_add_u32 s{S_AH}, s{S_AH}, {WS_H}
    s_lshl_b32 s{S_AC}, s{qt}, 19
    s_lshl_b32 s{S_T0}, s{w}, 15
    s_add_u32 s{S_AC}, s{S_AC}, s{S_T0}
    s_add_u32 s{S_AC}, s{S_AC}, {WS_CTX}
    s_lshl_b32 s{S_T1}, s{mt}, 7
    s_mul_i32 s{S_WOFFD}, s{w}, {14*32768}
    s_add_u32 s{S_WOFFD}, s{S_WOFFD}, s{S_T1}
    s_lshl_b32 s{S_WOFFO}, s{w}, 20
    s_add_u32 s{S_WOFFO}, s{S_WOFFO}, s{S_T1}""")
    e(f"""v_and_b32 v{t0}, 15, v{V_LANE}
    v_lshlrev_b32 v{t0}, 10, v{t0}
    v_lshrrev_b32 v{t1}, 4, v{V_LANE}
    v_lshl_add_u32 v{V_XO}, v{t1}, 3, v{t0}
    s_lshl_b32 s{S_ST}, s{qt}, 16
    s_lshl_b32 s{S_T0}, s{w}, 14
    s_add_u32 s{S_ST}, s{S_ST}, s{S_T0}
    s_add_u32 s{S_ST}, s{S_ST}, s{S_T1}""")
    NS = 46
    def loads(n):
        down = n < 14
        ks = n if down else n - 14
        slot = n % 4
        ops = []
        def wop(q):
            def fn():
                e(f"s_add_u32 m0, s{S_LW}, {slot*4096 + q*1024}")
                if q == 0: e(f"s_add_u32 s{S_OFF0}, s{S_WOFFD if down else S_WOFFO}, {ks*32768}")
                else: e("s_nop 0")
                e.vmem(f"buffer_load_dwordx4 v{V_WO4[q]}, {srd(S_WD if down else S_WO)}, s{S_OFF0} offen lds", ("L", n))
            return fn
        def bop(qb):
            def fn():
                e(f"s_add_u32 s{S_OFF1}, s{S_AH if down else S_AC}, {ks*1024 + qb*(56*1024 if down else 131072)}")
                e.vmem(f"buffer_load_dwordx4 {vr(V_BF + slot*16 + qb*4)}, v{V_L16}, {srd(S_WS)}, s{S_OFF1} offen", ("L", n))
            return fn
        for q in range(4):
            ops.append(wop(q)); ops.append(bop(q))
        return ops
    def trs(n):
        slot = n % 4
        ops = []
        for mb in range(4):
            for rr in range(2):
                d = V_WFR + (n % 2)*16 + mb*4 + rr*2
                ops.append(lambda d=d, mb=mb, rr=rr: e.ds(f"ds_read_b64_tr_b16 v[{d}:{d+1}], v{V_TR[mb]} offset:{slot*4096 + rr*2048}", ("F", n)))
        return ops
    for n in range(3):
        for f in loads(n): f()
    for mb in range(4):
        e.vmem(f"buffer_load_dwordx2 v[{V_X+2*mb}:{V_X+2*mb+1}], v{V_XO}, {srd(S_X)}, s{S_ST} offen offset:{mb*32}", "X")
    stamp(e, 1)
    e.need(vm=[("L", 0)])
    for f in trs(0): f()
    e(f"s_add_u32 s{S_T0}, s{S_LW}, 65536")
    e(f"v_add_u32 v{t0}, s{S_T0}, v{V_L16}")
    e(f"v_add_u32 v{t1}, s{S_LW}, v{V_L16}")
    dw = [lambda j=j: e.ds(f"ds_write_b128 v{t0}, {vr(V_AD + j*4)} offset:{((j%4)*4 + j//4)*1024}", "DW") for j in range(16)]
    for n in range(NS):
        down = n < 14
        A = V_AD if down else V_AS
        first = n in (0, 14)
        ld = loads(n + 3) if n + 3 < NS else []
        tr = trs(n + 1) if n + 1 < NS else []
        e.need(lg=[("F", n)])
        k = 0
        for mb in range(4):
            for qb in range(4):
                d = vr(A + (mb*4 + qb)*4)
                e(mf(d, vr(V_WFR + (n % 2)*16 + mb*4), vr(V_BF + (n % 4)*16 + qb*4), "0" if first else d))
                if k < 8:
                    if ld: ld[k]()
                    if n >= 15 and dw and k % 4 == 0: dw.pop(0)()
                else:
                    if k == 8 and tr: e.need(vm=[("L", n + 1)])
                    if tr: tr[k - 8]()
                k += 1
        if n == 13: stamp(e, 2)
    stamp(e, 3)
    e("s_nop 7")
    for j in range(16):
        e.ds(f"ds_write_b128 v{t1}, {vr(V_AS + j*4)} offset:{((j%4)*4 + j//4)*1024}", "SW")
    e.wait_all(vm=False)
    e("s_barrier")
    e(f"s_lshl_b32 s{S_T0}, s{w}, 12")
    e(f"v_add_u32 v{t0}, s{S_T0}, v{V_L16}")
    e(f"v_add_u32 v{t1}, 65536, v{t0}")
    for part, (a, base) in enumerate(((t1, V_AD), (t0, V_AS))):
        for sw in range(4):
            for mb in range(4):
                e.ds(f"ds_read_b128 {vr(base + (sw*4+mb)*4)}, v{a} offset:{sw*16384 + mb*1024}", ("R", part, sw))
    for part, base in enumerate((V_AD, V_AS)):
        e.need(lg=[("R", part, 1)])
        for r in range(16): e(f"v_add_f32 v{base+r}, v{base+r}, v{base+16+r}")
        e.need(lg=[("R", part, 3)])
        for r in range(16): e(f"v_add_f32 v{base+32+r}, v{base+32+r}, v{base+48+r}")
        for r in range(16): e(f"v_add_f32 v{base+r}, v{base+r}, v{base+32+r}")
    def rnd(base):
        for j in range(8): e(f"v_cvt_pk_bf16_f32 v{64+j}, v{base+2*j}, v{base+2*j+1}")
        for j in range(8):
            e(f"v_lshlrev_b32 v{base+2*j}, 16, v{64+j}")
            e(f"v_and_b32 v{base+2*j+1}, 0xffff0000, v{64+j}")
    rnd(V_AD); rnd(V_AS)
    T = 80
    for r in range(16): e(f"v_mul_f32 v{T+r}, 0xbfb8aa3b, v{V_AD+r}")
    for r in range(16): e(f"v_exp_f32 v{T+r}, v{T+r}")
    for r in range(16): e(f"v_add_f32 v{T+r}, 1.0, v{T+r}")
    for r in range(16): e(f"v_rcp_f32 v{T+r}, v{T+r}")
    for r in range(16): e(f"v_mul_f32 v{V_AD+r}, v{V_AD+r}, v{T+r}")
    rnd(V_AD)
    for r in range(16): e(f"v_mul_f32 v{V_AS+r}, v{V_AS+r}, v{V_AD+r}")
    rnd(V_AS)
    e.need(vm=["X"])
    for j in range(8):
        e(f"v_lshlrev_b32 v{T+2*j}, 16, v{V_X+j}")
        e(f"v_and_b32 v{T+2*j+1}, 0xffff0000, v{V_X+j}")
    for r in range(16): e(f"v_add_f32 v{V_AS+r}, v{V_AS+r}, v{T+r}")
    for j in range(8): e(f"v_cvt_pk_bf16_f32 v{64+j}, v{V_AS+2*j}, v{V_AS+2*j+1}")
    for mb in range(4):
        e.vmem(f"buffer_store_dwordx2 v[{64+2*mb}:{65+2*mb}], v{V_XO}, {srd(S_OUT)}, s{S_ST} offen offset:{mb*32}", "OUT")
    stamp(e, 4)
    e.wait_all()
    stamp(e, 5)
    stamp_flush(e, 2)
    kernel_tail(e, name)
    return name

HEADER = open("cdna_kernels/" + NAME + ".s.ref").read().split("; Override launch geometry")[0]

def build(kernels):
    out = [HEADER.rstrip("\n")]
    bodies = []; descs = []
    for fn, grid, block, lds, nfv, accoff in kernels:
        e = E(); name = fn(e)
        n = chk.check(e.L, name)
        if hasattr(e, "loop"):
            a, b = e.loop
            n += chk.check(e.L[a:b] + e.L[a:b], name + ":loop")
        if n: print(f"{name}: {n} hazards", file=sys.stderr)
        out.append(f"; @launch kernel={name} grid=({grid},1,1) block=({block},1,1) lds={lds}")
        bodies.append(e.text()); descs.append(descriptor(name, nfv, accoff))
    out.append('.amdgcn_target "amdgcn-amd-amdhsa--gfx950"\n.text')
    out += bodies
    out.append('.section .rodata,"a"')
    for d in descs: out.append(".p2align 6\n" + d)
    return "\n".join(out)

if __name__ == "__main__":
    ks = [(gen_k1, 256, 256, 163840, 512, 256), (gen_k2, 256, 256, 163840, 512, 256), (gen_k3, 256, 256, 131072, 256, 256)]
    open(sys.argv[1] if len(sys.argv) > 1 else "out.s", "w").write(build(ks))
```

```python
import sys, math, os, struct
from emit import E, Filler
import check as chk

NAME = "recurrent_scan__compressed_kv_cla__glu_gated_geglu__prompt"
KN = NAME + "_kernel"
MB = 1 << 20
OPT = eval(os.environ.get("OPT", "{}"))
STAMPS = os.environ.get("STAMPS")
WS_XN, WS_H, WS_WDF, WS_WOF, WS_CTX, WS_K, WS_V, WS_END = 0, 2*MB, 9*MB, 12*MB, 16*MB, 32*MB, 48*MB, 64*MB
fb = lambda x: struct.unpack("<I", struct.pack("<f", x))[0]

S_X, S_CKV, S_WQ, S_WUK, S_WUV, S_WO, S_WG, S_WU, S_WD, S_OUT, S_DBG, S_WS = [8 + 4*i for i in range(12)]
S_HSRD, S_ASRD, S_BSRD = 56, 60, 64
S_WAVE, S_HEAD, S_BLK, S_ROT = 68, 69, 70, 71
S_T0, S_T1, S_T2, S_T3, S_T4, S_T5 = 72, 73, 74, 75, 76, 77
S_WL, S_WA = 78, 79
S_OFF0, S_OFFA, S_AROW, S_KVST, S_XNB, S_HST = 80, 81, 82, 83, 84, 85
S_CTXLO, S_CTXHI = 86, 87
S_SRCA, S_SRCB, S_LA, S_LB, S_VMAXB, S_VCLB = 88, 89, 90, 91, 92, 93
S_N, S_EVT, S_TRANS, S_N0 = 94, 95, 96, 97
S_QT, S_QTHI, S_RET, S_CNT = 98, 99, 100, 101
S_FL = 6
def srd(n): return f"s[{n}:{n+3}]"
def mf(d, a, b, c): return f"v_mfma_f32_16x16x32_bf16 {d}, {a}, {b}, {c}"
def vr(n, k=4): return f"v[{n}:{n+k-1}]"
def ar(n, k=4): return f"a[{n}:{n+k-1}]"

V_LANE, V_STAMP, V_L16 = 1, 2, 3
V_TR = (4, 5, 6, 7)
V_WOFF = (8, 9, 10, 11)
V_AOFF = (12, 13)
V_WOFG = (12, 13)
V_ARD = (14, 15)
V_TMP = list(range(16, 32))
V_POLL = 0
V_WF, V_PK, V_ACC = 32, 64, 128
def acc(db, rb): return V_ACC + (db*4 + rb)*4
def actf(ks, rb): return (ks*4 + rb)*4
V_RD = 4
V_TD, V_TN, V_LIM = 16, 20, 24
V_P, V_S, V_O = (32, 48), (64, 96), 128
A_Q, A_FB, A_QS, A_L, A_ONE = 0, (64, 96), 128, 192, 208
QSCALE = fb(math.log2(math.e) / math.sqrt(128.0))
NEGINF = 0xff800000
def Sreg(buf, kb2, qb): return V_S[buf] + (kb2*4 + qb)*4
def Preg(buf, qb): return V_P[buf] + qb*4
def Oreg(db, qb): return V_O + (db*4 + qb)*4
SC = " sc1"

def stamp(e, idx):
    if not STAMPS: return
    e(("s_memtime" if STAMPS == "2" else "s_memrealtime") + " s[4:5]")
    e.wait_all(vm=False)
    e(f"v_writelane_b32 v{V_STAMP}, s4, {idx}")
def stamp_flush(e):
    if not STAMPS: return
    e(f"""s_lshl_b32 s4, s2, 2
    s_add_u32 s4, s4, s{S_WAVE}
    s_lshl_b32 s4, s4, 7
    s_add_u32 s4, s4, {128*MB}
    v_lshlrev_b32 v0, 2, v{V_LANE}
    v_cmp_gt_u32 vcc, 32, v{V_LANE}
    s_and_saveexec_b64 s[6:7], vcc
    buffer_store_dword v{V_STAMP}, v0, {srd(S_WS)}, s4 offen
    s_waitcnt vmcnt(0)""")

WS_EP = 11*MB
WS_FX, WS_FK, WS_FB, WS_FC = WS_EP + 4096, WS_EP + 8192, WS_EP + 12288, WS_EP + 16384
S_TAG = 3
def signal(e, soff_lines, tmp):
    e(soff_lines)
    e(f"""v_mov_b32 v{tmp}, s{S_TAG}
    v_add_u32 v{tmp+1}, s{S_WL}, v{V_LANE}
    v_min_u32 v{tmp+1}, 1, v{tmp+1}
    v_lshlrev_b32 v{tmp+1}, 30, v{tmp+1}""")
    e.vmem(f"buffer_store_dword v{tmp}, v{tmp+1}, {srd(S_WS)}, s{S_CNT} offen sc1", "SIG")
def sig_lin(base):
    return f"""s_lshr_b32 s{S_CNT}, s2, 3
    s_lshl_b32 s{S_CNT}, s{S_CNT}, 7
    s_and_b32 s{S_FL}, s2, 7
    s_lshl_b32 s{S_FL}, s{S_FL}, 2
    s_add_u32 s{S_CNT}, s{S_CNT}, s{S_FL}
    s_add_u32 s{S_CNT}, s{S_CNT}, {base}"""
SIG_KV = f"""s_and_b32 s{S_CNT}, s2, 31
    s_lshl_b32 s{S_CNT}, s{S_CNT}, 7
    s_lshl_b32 s{S_FL}, s{S_BLK}, 2
    s_add_u32 s{S_CNT}, s{S_CNT}, s{S_FL}
    s_add_u32 s{S_CNT}, s{S_CNT}, {WS_FK}"""
class Poll:
    def __init__(self, e, name, voff):
        self.e, self.name, self.voff = e, name, voff
    @property
    def ld(self): return f"buffer_load_dword v{V_POLL}, v{self.voff}, {srd(S_WS)}, 0 offen sc1"
    def issue(self): self.e.vmem(self.ld, ("POLL", self.name))
    def test(self): return f"v_cmp_eq_u32 vcc, s{S_TAG}, v{V_POLL}\ns_cmp_eq_u64 vcc, exec"
    def check(self):
        e = self.e
        e.need(vm=[("POLL", self.name)])
        e(self.test())
        e(f"s_cbranch_scc0 L_spin_{self.name}")
        e.label(f"L_ok_{self.name}")
    def spin(self):
        e = self.e
        e.label(f"L_spin_{self.name}")
        e(f"s_mov_b32 s{S_CNT}, 0x40000")
        e.label(f"L_spinl_{self.name}")
        e("s_sleep 2")
        e(self.ld)
        e("s_waitcnt vmcnt(0)")
        e(self.test())
        e(f"s_cbranch_scc1 L_ok_{self.name}")
        e(f"s_sub_u32 s{S_CNT}, s{S_CNT}, 1")
        e(f"s_cmp_lg_u32 s{S_CNT}, 0")
        e(f"s_cbranch_scc1 L_spinl_{self.name}")
        e(f"s_branch L_ok_{self.name}")
def poll32_addr(e, v, base):
    e(f"""s_lshr_b32 s{S_T0}, s{S_HEAD}, 1
    s_sub_u32 s{S_T1}, 15, s{S_T0}
    s_min_u32 s{S_T0}, s{S_T0}, s{S_T1}
    s_lshl_b32 s{S_T0}, s{S_T0}, 9
    s_add_u32 s{S_T0}, s{S_T0}, {base}
    v_bfe_u32 v{v}, v{V_LANE}, 3, 2
    v_lshlrev_b32 v{v}, 5, v{v}
    v_and_or_b32 v{v}, v{V_LANE}, 7, v{v}
    v_lshlrev_b32 v{v}, 2, v{v}
    v_add_u32 v{v}, s{S_T0}, v{v}""")

def kernel_head(e):
    e(f".globl {KN}\n.p2align 8\n.type {KN},@function")
    e.label(KN)
    e("s_cmp_ge_u32 s2, 256")
    e("s_cbranch_scc1 L_end")
    e("s_load_dwordx16 s[76:91], s[0:1], 0")
    e("s_load_dwordx8 s[92:99], s[0:1], 64")
    e("s_load_dwordx2 s[100:101], s[0:1], 96")
    if STAMPS: e(("s_memtime" if STAMPS == "2" else "s_memrealtime") + " s[4:5]")
    e(f"v_and_b32 v{V_LANE}, 63, v0")
    e("v_lshrrev_b32 v2, 6, v0")
    e(f"v_lshlrev_b32 v{V_L16}, 4, v{V_LANE}")
    e(f"v_readfirstlane_b32 s{S_WAVE}, v2")
    e(f"""s_and_b32 s{S_T0}, s2, 7
    s_lshl_b32 s{S_T0}, s{S_T0}, 2
    s_lshr_b32 s{S_T1}, s2, 3
    s_and_b32 s{S_T1}, s{S_T1}, 3
    s_add_u32 s{S_HEAD}, s{S_T0}, s{S_T1}
    s_lshr_b32 s{S_BLK}, s2, 5
    s_lshl_b32 s{S_T1}, s{S_T1}, 1
    s_add_u32 s{S_ROT}, s{S_BLK}, s{S_T1}
    s_and_b32 s{S_ROT}, s{S_ROT}, {OPT.get('rotmask', 7)}""")
    if STAMPS: e("v_mov_b32 v2, -1")
    setup_addrs(e)
    e("s_waitcnt lgkmcnt(0)")
    if STAMPS: e("v_writelane_b32 v2, s4, 0")
    sizes = {S_X: (76, 2*MB), S_CKV: (78, 2*MB), S_WUK: (82, 4*MB), S_WS: (100, 256*MB if STAMPS else WS_END), S_WQ: (80, 4*MB), S_WUV: (84, 4*MB), S_WO: (86, 4*MB),
             S_WG: (90, 512*3584), S_WU: (92, 512*3584), S_WD: (94, 1792*1024), S_OUT: (96, 2*MB), S_DBG: (98, 256),
             S_HSRD: (100, WS_END), S_ASRD: (100, WS_END), S_BSRD: (100, WS_END)}
    for s, (p, n) in sizes.items():
        e(f"s_mov_b64 s[{s}:{s+1}], s[{p}:{p+1}]\ns_mov_b32 s{s+2}, {n}\ns_mov_b32 s{s+3}, 0x20000")
        if s == S_X:
            e(f"s_lshl_b32 s{S_T0}, s2, 13\ns_lshl_b32 s{S_T1}, s{S_WAVE}, 11\ns_add_u32 s{S_T0}, s{S_T0}, s{S_T1}")
            e.vmem(f"buffer_load_dwordx4 v[64:67], v{V_L16}, {srd(S_X)}, s{S_T0} offen", "X")
            e.vmem(f"buffer_load_dwordx4 v[68:71], v{V_L16}, {srd(S_X)}, s{S_T0} offen offset:1024", "X")
    e(f"s_add_u32 s{S_FL}, s100, {WS_EP}\ns_addc_u32 s{S_FL+1}, s101, 0\ns_load_dword s{S_TAG}, s[{S_FL}:{S_FL+1}], 0")
    e(f"""s_lshl_b32 s{S_WL}, s{S_WAVE}, 10
    s_lshl_b32 s{S_WA}, s{S_WAVE}, 13
    s_add_u32 s{S_WA}, s{S_WA}, 65536
    v_add_u32 v{V_ARD[0]}, s{S_WA}, v{V_ARD[0]}
    v_xor_b32 v{V_ARD[1]}, 64, v{V_ARD[0]}""")

V_KPERM = 31
V_UOFF = 30
def setup_addrs(e):
    t0, t1, t2, t3, t4 = V_TMP[:5]
    e(f"""v_lshrrev_b32 v{t0}, 2, v{V_LANE}
    v_lshlrev_b32 v{t0}, 7, v{t0}
    v_and_b32 v{t1}, 3, v{V_LANE}
    v_lshlrev_b32 v{t1}, 3, v{t1}
    v_add_u32 v{t0}, v{t0}, v{t1}
    v_bfe_u32 v{t1}, v{V_LANE}, 3, 2
    v_lshlrev_b32 v{t1}, 5, v{t1}
    v_add_u32 v{V_TR[0]}, v{t0}, v{t1}""")
    for c in (1, 2, 3): e(f"v_xor_b32 v{V_TR[c]}, {c*32}, v{V_TR[0]}")
    e(f"""v_lshrrev_b32 v{t0}, 3, v{V_LANE}
    v_and_b32 v{t1}, 7, v{V_LANE}
    v_and_b32 v{t2}, 6, v{t0}
    v_xor_b32 v{t1}, v{t1}, v{t2}
    v_lshlrev_b32 v{V_UOFF}, 4, v{t1}
    s_lshl_b32 s{S_T0}, s{S_WAVE}, 3
    v_add_u32 v{t2}, s{S_T0}, v{t0}
    v_bfe_u32 v{t3}, v{t2}, 2, 2
    v_lshlrev_b32 v{t3}, 3, v{t3}
    v_lshrrev_b32 v{t4}, 4, v{t2}
    v_lshl_add_u32 v{t3}, v{t4}, 2, v{t3}
    v_and_b32 v{t4}, 3, v{t2}
    v_add_u32 v{V_KPERM}, v{t3}, v{t4}
    v_lshl_add_u32 v{V_WOFF[0]}, v{V_KPERM}, 13, v{V_UOFF}
    v_add_u32 v{V_WOFF[1]}, 128, v{V_WOFF[0]}
    v_add_u32 v{V_WOFF[2]}, {32*8192}, v{V_WOFF[0]}
    v_add_u32 v{V_WOFF[3]}, {32*8192 + 128}, v{V_WOFF[0]}
    v_and_b32 v{t1}, 7, v{V_LANE}
    v_lshrrev_b32 v{t2}, 1, v{t0}
    v_xor_b32 v{t1}, v{t1}, v{t2}
    v_lshlrev_b32 v{t1}, 4, v{t1}
    v_lshl_add_u32 v{V_AOFF[0]}, v{t0}, 10, v{t1}
    v_xor_b32 v{V_AOFF[1]}, 64, v{V_AOFF[0]}
    v_add_u32 v{V_AOFF[1]}, 8192, v{V_AOFF[1]}
    v_and_b32 v{t0}, 15, v{V_LANE}
    v_lshrrev_b32 v{t1}, 4, v{V_LANE}
    v_lshrrev_b32 v{t2}, 1, v{t0}
    v_xor_b32 v{t1}, v{t1}, v{t2}
    v_lshlrev_b32 v{t1}, 4, v{t1}
    v_lshl_add_u32 v{V_ARD[0]}, v{t0}, 7, v{t1}""")

def scalar_setup(e):
    i, h, w = S_BLK, S_HEAD, S_WAVE
    e(f"""s_lshl_b32 s{S_T0}, s{i}, 2
    s_add_u32 s{S_T0}, s{S_T0}, s{w}
    s_lshl_b32 s{S_AROW}, s{S_T0}, 16
    s_lshl_b32 s{S_KVST}, s{h}, 19
    s_lshl_b32 s{S_T0}, s{S_T0}, 14
    s_add_u32 s{S_KVST}, s{S_KVST}, s{S_T0}""")
def scalar_setup2(e):
    i, h, w = S_BLK, S_HEAD, S_WAVE
    a, b, c, d = S_N, S_EVT, S_TRANS, S_RET
    return f"""s_sub_u32 s{a}, 15, s{i}
    s_cmp_lt_u32 s{w}, 2 ! s_cselect_b32 s{b}, s{a}, s{i}
    s_lshl_b32 s{b}, s{b}, 1
    s_and_b32 s{c}, s{w}, 1
    s_add_u32 s{S_QT}, s{b}, s{c}
    s_lshl_b32 s{S_XNB}, s{S_QT}, 16
    s_mul_i32 s{S_HST}, s{S_QT}, {56*4096}
    s_lshl_b32 s{d}, s{h}, 13
    s_add_u32 s{S_HST}, s{S_HST}, s{d}
    s_add_u32 s{S_HST}, s{S_HST}, {WS_H}
    s_lshl_b32 s{d}, s{h}, 14
    s_add_u32 s{d}, s{d}, {WS_CTX}
    s_lshl_b32 s{S_CTXLO}, s{S_QT}, 19
    s_add_u32 s{S_CTXLO}, s{S_CTXLO}, s{d}
    s_lshr_b32 s{b}, s{w}, 1
    s_xor_b32 s{b}, s{b}, s{w}
    s_and_b32 s{b}, s{b}, 1
    s_lshl_b32 s{a}, s{a}, 1
    s_add_u32 s{S_QTHI}, s{a}, s{b}
    s_lshl_b32 s{S_CTXHI}, s{S_QTHI}, 19
    s_add_u32 s{S_CTXHI}, s{S_CTXHI}, s{d}
    s_cmp_lt_u32 s{h}, 28 ! s_cselect_b32 s{S_WG+2}, {512*3584}, 0
    s_mov_b32 s{S_WU+2}, s{S_WG+2}
    s_cmp_lt_u32 s{h}, 28 ! s_cselect_b32 s{S_HSRD+2}, {WS_END}, 0
    s_lshl_b32 s{a}, s{h}, 19
    s_mov_b32 s{b}, {WS_V}
    s_cmp_lt_u32 s{w}, 2 ! s_cselect_b32 s{b}, {WS_K}, s{b}
    s_add_u32 s{b}, s{b}, s{a}
    s_add_u32 s{S_VCLB}, s{b}, {63*8192}
    s_cmp_eq_u32 s{w}, 1 ! s_cselect_b32 s{a}, 8192, 0
    s_add_u32 s{S_SRCA}, s{b}, s{a}
    s_cmp_eq_u32 s{w}, 2 ! s_cselect_b32 s{a}, {3*8192}, s{a}
    s_add_u32 s{S_VMAXB}, s{b}, s{a}
    s_add_u32 s{S_VMAXB}, s{S_VMAXB}, {64*8192}
    s_min_u32 s{S_SRCB}, s{S_VMAXB}, s{S_VCLB}
    s_lshl_b32 s{S_LB}, s{w}, 13
    s_add_u32 s{S_LA}, s{S_LB}, 65536
    s_xor_b32 s{S_LB}, s{S_LB}, 32768
    s_lshl_b32 s{S_N0}, s{i}, 1
    s_add_u32 s{S_N0}, s{S_N0}, 2""".split("\n")

def layernorm_lines():
    L = []; e = L.append
    X = (72, 80); SUM = (88, 89); TMP = (90, 91); MEAN = (92, 93); VAR = (94, 95)
    SS = (S_T0, S_T1)
    for r in range(2):
        for j in range(4):
            e(f"v_lshlrev_b32 v{X[r]+2*j}, 16, v{64+4*r+j}")
            e(f"v_and_b32 v{X[r]+2*j+1}, 0xffff0000, v{64+4*r+j}")
    def reduce():
        for mod in ("quad_perm:[1,0,3,2] row_mask:0xf bank_mask:0xf", "quad_perm:[2,3,0,1] row_mask:0xf bank_mask:0xf",
                    "row_half_mirror row_mask:0xf bank_mask:0xf", "row_mirror row_mask:0xf bank_mask:0xf",
                    "row_bcast:15 row_mask:0xa bank_mask:0xf", "row_bcast:31 row_mask:0xc bank_mask:0xf"):
            e("s_nop 0")
            for r in range(2): e(f"v_add_f32_dpp v{SUM[r]}, v{SUM[r]}, v{SUM[r]} {mod}")
        e("s_nop 0")
        for r in range(2): e(f"v_readlane_b32 s{SS[r]}, v{SUM[r]}, 63")
        e("s_nop 1")
    for r in range(2): e(f"v_add_f32 v{SUM[r]}, v{X[r]}, v{X[r]+1}")
    for j in range(2, 8):
        for r in range(2): e(f"v_add_f32 v{SUM[r]}, v{SUM[r]}, v{X[r]+j}")
    reduce()
    for r in range(2): e(f"v_mov_b32 v{MEAN[r]}, s{SS[r]}")
    for r in range(2): e(f"v_mul_f32 v{MEAN[r]}, 0x3b000000, v{MEAN[r]}")
    for j in range(8):
        for r in range(2): e(f"v_sub_f32 v{TMP[r]}, v{X[r]+j}, v{MEAN[r]}")
        for r in range(2): e(f"v_mul_f32 v{SUM[r]}, v{TMP[r]}, v{TMP[r]}" if j == 0 else f"v_fmac_f32 v{SUM[r]}, v{TMP[r]}, v{TMP[r]}")
    reduce()
    def both(fmt):
        for r in range(2): e(fmt.format(v=VAR[r], m=MEAN[r], s=SS[r]))
    def rnd(x):
        both("v_cvt_pk_bf16_f32 v{%s}, v{%s}, v{%s}" % (x, x, x)); both("v_lshlrev_b32 v{%s}, 16, v{%s}" % (x, x))
    both("v_mov_b32 v{v}, s{s}"); both("v_mul_f32 v{v}, 0x3b000000, v{v}")
    rnd("v"); both("v_add_f32 v{v}, 0x3727c5ac, v{v}"); rnd("v")
    both("v_sqrt_f32 v{v}, v{v}"); rnd("m"); rnd("v"); both("v_rcp_f32 v{v}, v{v}")
    for r in range(2):
        for j in range(8): e(f"v_sub_f32 v{X[r]+j}, v{X[r]+j}, v{MEAN[r]}")
        for j in range(4): e(f"v_cvt_pk_bf16_f32 v{64+4*r+j}, v{X[r]+2*j}, v{X[r]+2*j+1}")
        for j in range(4):
            e(f"v_lshlrev_b32 v{X[r]+2*j}, 16, v{64+4*r+j}")
            e(f"v_and_b32 v{X[r]+2*j+1}, 0xffff0000, v{64+4*r+j}")
        for j in range(8): e(f"v_mul_f32 v{X[r]+j}, v{X[r]+j}, v{VAR[r]}")
        for j in range(4): e(f"v_cvt_pk_bf16_f32 v{64+4*r+j}, v{X[r]+2*j}, v{X[r]+2*j+1}")
    return L

class MemQ:
    def __init__(self, e): self.e = e; self.items = []
    def add(self, kind, lo, hi, *a): self.items.append([kind, lo, hi, a])
    def fillers(self):
        e = self.e; out = []
        dm = [k for k, it in enumerate(self.items) if it[0] == 'd']
        nxt = {dm[j]: dm[j+1] for j in range(len(dm) - 1)}
        self.first_m0 = self.items[dm[0]][3][0]
        for k, (kind, lo, hi, a) in enumerate(self.items):
            if kind == 's': out.append(Filler(lambda a=a: e(a[0].replace(" ! ", "\n")), 4, "salu", lo, hi))
            elif kind == 'l': out.append(Filler(lambda a=a: e.vmem(a[0], a[1]), 4, "mem", lo, hi))
            elif kind == 'f': out.append(Filler(a[0], a[1], a[2], lo, hi))
            else:
                def fn(k=k, a=a):
                    if len(a) > 3: e.need(lg=a[3])
                    e.vmem(a[1], a[2])
                    if k in nxt: e(self.items[nxt[k]][3][0])
                out.append(Filler(fn, 8, "mem", lo, hi))
        return out

def body(e):
    i, h, w = S_BLK, S_HEAD, S_WAVE
    kernel_head(e)
    scalar_setup(e)
    pk = dict(srd=(S_WUK, S_WUK), pitch=8192, swap=False, act='lds')
    pv = dict(srd=(S_WUV, S_WUV), pitch=8192, swap=True, act='ready')
    pg = dict(srd=(S_WG, S_WU), pitch=3584, swap=False, act='glob')
    pq = dict(srd=(S_WQ, S_WQ), pitch=8192, swap=False, act='ready')
    passes = [pk, pv, pg, pq]
    NS = 32; BAR = 42; INF = 10**9
    mq = MemQ(e)
    def w_stage(gs, lo, step, hi):
        p = passes[gs // 8]; s = gs % 8; slot = gs % 4
        if p['pitch'] == 8192:
            if s == 0:
                for t in (f"s_lshl_b32 s{S_OFF0}, s{S_ROT}, 19", f"s_lshl_b32 s{S_T5}, s{h}, 8", f"s_add_u32 s{S_OFF0}, s{S_OFF0}, s{S_T5}"): mq.add('s', lo - 8, hi, t)
            else:
                for t in (f"s_add_u32 s{S_OFF0}, s{S_OFF0}, {1<<19}", f"s_and_b32 s{S_OFF0}, s{S_OFF0}, {4*MB-1}"): mq.add('s', lo - 8, hi, t)
        else:
            for t in (f"s_add_u32 s{S_OFF0}, s{S_ROT}, {s}", f"s_and_b32 s{S_OFF0}, s{S_OFF0}, 7", f"s_mul_i32 s{S_OFF0}, s{S_OFF0}, {64*3584}",
                      f"s_lshl_b32 s{S_T5}, s{h}, 7", f"s_add_u32 s{S_OFF0}, s{S_OFF0}, s{S_T5}"): mq.add('s', lo - 8, hi, t)
        for n, (ksub, sub) in enumerate(((0, 0), (0, 1), (1, 0), (1, 1))):
            voff = V_WOFF[ksub*2 + sub] if p['pitch'] == 8192 else V_WOFG[ksub]
            mq.add('d', lo + step*n, hi, f"s_add_u32 m0, s{S_WL}, {slot*16384 + ksub*8192 + sub*4096}",
                   f"buffer_load_dwordx4 v{voff}, {srd(p['srd'][sub])}, s{S_OFF0} offen lds", ("W", gs))
    def a_stage(s, lo, step, hi):
        for t in (f"s_add_u32 s{S_OFFA}, s{S_ROT}, {s}", f"s_and_b32 s{S_OFFA}, s{S_OFFA}, 7", f"s_lshl_b32 s{S_OFFA}, s{S_OFFA}, 7", f"s_add_u32 s{S_OFFA}, s{S_OFFA}, s{S_AROW}"):
            mq.add('s', lo - 6, hi, t)
        for q in range(8):
            if q and q % 2 == 0: mq.add('s', lo + step*q - 2, hi, f"s_add_u32 s{S_OFFA}, s{S_OFFA}, 16384")
            mq.add('d', lo + step*q, hi, f"s_add_u32 m0, s{S_WA}, {(s % 2)*32768 + q*1024}",
                   f"buffer_load_dwordx4 v{V_AOFF[q & 1]}, {srd(S_CKV)}, s{S_OFFA} offen lds", ("A", s), [("AF", s-2, 0), ("AF", s-2, 1)])
    def xn_stage(s, lo, step, hi):
        for t in (f"s_add_u32 s{S_OFFA}, s{S_ROT}, {s}", f"s_and_b32 s{S_OFFA}, s{S_OFFA}, 7", f"s_lshl_b32 s{S_OFFA}, s{S_OFFA}, 13", f"s_add_u32 s{S_OFFA}, s{S_OFFA}, s{S_XNB}"):
            mq.add('s', lo - 6, hi, t)
        for ksub in range(2):
            if ksub: mq.add('s', lo + step*4 - 2, hi, f"s_add_u32 s{S_OFFA}, s{S_OFFA}, 4096")
            for rb in range(4):
                mq.add('l', lo + step*(ksub*4 + rb), hi, f"buffer_load_dwordx4 {ar(actf(2*s+ksub, rb))}, v{V_L16}, {srd(S_WS)}, s{S_OFFA} offen offset:{rb*1024}{SC}", ("XN", 2*s+ksub))
    P = -10**6
    w_stage(0, P, 0, INF); a_stage(0, P, 0, INF)
    n_pro0 = len(mq.items)
    w_stage(1, P, 0, INF); a_stage(1, P, 0, INF); w_stage(2, P, 0, INF)
    V_PO = V_TMP[13]
    poll_xn = Poll(e, "xn", V_PO); poll_kv = Poll(e, "kv", V_PO); poll_b = Poll(e, "b", V_TMP[15]); poll_c = Poll(e, "c", V_TMP[15])
    V_RT = V_TMP[8]; V_RTA = V_TMP[9:13]
    RTS = OPT.get("rts", 20)
    E0 = OPT.get("e0", 0)
    V_PFO, V_PFD = V_TMP[5], V_TMP[1]
    for t in (f"s_lshl_b32 s{S_T2}, s2, 2", f"s_add_u32 s{S_T2}, s{S_T2}, s{w}", f"s_lshr_b32 s{S_T3}, s{S_T2}, 3", f"s_and_b32 s{S_T4}, s{S_T2}, 7",
              f"s_cmp_lt_u32 s{S_T2}, 448 ! s_cselect_b32 s{S_WD+2}, {1792*1024}, 0", f"s_cmp_lt_u32 s{S_T2}, 448 ! s_cselect_b32 s{S_BSRD+2}, {WS_END}, 0",
              ):
        mq.add('s', P, INF, t)
    mq.add('f', P, INF, lambda: e(f"v_lshrrev_b32 v{V_RT}, 3, v{V_LANE}\nv_lshl_add_u32 v{V_RT}, v{V_RT}, 10, v{V_UOFF}"), 4, "valu")
    n_pro1 = len(mq.items)
    RTL = OPT.get("rtl", 17)
    S_RL = S_RET
    def rt_loads(E0, half):
        for q in range(2*half, 2*half + 2):
            mq.add('s', E0, INF, f"s_add_u32 s{S_RL}, s{S_RL}, 8192" if q else f"s_lshl_b32 s{S_RL}, s{S_T4}, 7 ! s_lshl_b32 s{S_T5}, s{S_T3}, 3 ! s_add_u32 s{S_RL}, s{S_RL}, s{S_T5}")
            for t, sr in enumerate((S_WO, S_WD)):
                mq.add('d', E0 + 6 + 16*(q % 2) + 8*t, E0 + 41, f"s_add_u32 m0, s{S_WA}, {65536 + t*4096 + q*1024}", f"buffer_load_dwordx4 v{V_RT}, {srd(sr)}, s{S_RL} offen lds", "RT")
    for gs in range(NS):
        b = gs * 64
        if gs + 2 < 8: a_stage(gs + 2, b + 6, 4, b + 41)
        if gs == 6:
            for t in (f"s_lshl_b32 s{S_T1}, s{i}, 6", f"s_lshl_b32 s{S_T0}, s{w}, 4", f"s_add_u32 s{S_T1}, s{S_T1}, s{S_T0}", f"s_mul_i32 s{S_T0}, s{S_T1}, 3584",
                      f"s_lshl_b32 s{S_T5}, s{h}, 7", f"s_add_u32 s{S_T0}, s{S_T0}, s{S_T5}", f"s_lshl_b32 s{S_T1}, s{S_T1}, 13", f"s_lshl_b32 s{S_T5}, s{h}, 8", f"s_add_u32 s{S_T1}, s{S_T1}, s{S_T5}"):
                mq.add('s', b - 8, INF, t)
            for t in (f"v_lshrrev_b32 v{V_PFO}, 2, v{V_LANE}", f"v_and_b32 v{V_PO}, 1, v{V_LANE}", f"v_lshlrev_b32 v{V_PO}, 6, v{V_PO}", f"v_mul_u32_u24 v{V_TMP[0]}, 3584, v{V_PFO}",
                      f"v_add_u32 v{V_TMP[0]}, v{V_TMP[0]}, v{V_PO}", f"v_and_b32 v{V_PO}, 3, v{V_LANE}", f"v_lshlrev_b32 v{V_PO}, 6, v{V_PO}", f"v_lshl_add_u32 v{V_PFO}, v{V_PFO}, 13, v{V_PO}"):
                mq.add('f', b - 8, INF, lambda t=t: e(t), 4, "valu")
        if gs in (7, 8) and OPT.get("pfw", 1):
            mq.add('l', b + 8, b + 41, f"buffer_load_dword v{V_PFD}, v{V_TMP[0]}, {srd((S_WG, S_WU)[gs - 7])}, s{S_T0} offen", "PF")
        if gs == OPT.get("pfq", -1):
            mq.add('l', b + 8, b + 41, f"buffer_load_dword v{V_PFD}, v{V_PFO}, {srd(S_WQ)}, s{S_T1} offen", "PF")
        if gs in (RTL, RTL + 1): rt_loads(b, gs - RTL)
        if gs == 8:
            mq.add('f', b + 4, b + 30, lambda: e(f"v_and_b32 v{V_PO}, 7, v{V_LANE}\nv_lshlrev_b32 v{V_PO}, 2, v{V_PO}"), 8, "valu")
            mq.add('s', b + 4, b + 30, f"s_lshl_b32 s{S_T5}, s{S_QT}, 7")
            mq.add('s', b + 4, b + 30, f"s_add_u32 s{S_T5}, s{S_T5}, {WS_FX}")
            mq.add('f', b + 6, b + 30, lambda: e(f"v_add_u32 v{V_PO}, s{S_T5}, v{V_PO}\nv_mul_u32_u24 v{V_WOFG[0]}, 3584, v{V_KPERM}"), 8, "valu")
            mq.add('f', b + 8, b + 30, lambda: e(f"v_add_u32 v{V_WOFG[0]}, v{V_WOFG[0]}, v{V_UOFF}\nv_add_u32 v{V_WOFG[1]}, {32*3584}, v{V_WOFG[0]}"), 8, "valu")
            mq.add('f', b + 30, b + 36, poll_xn.issue, 4, "mem")
        if gs == 9: mq.add('f', b + 2, b + 6, poll_xn.check, 8, "valu")
        if 9 <= gs <= 16: xn_stage(gs - 9, b + 8, 4, b + 41)
        if gs == 27:
            mq.add('s', b + 4, b + 30, f"s_and_b32 s{S_T5}, s2, 31")
            mq.add('s', b + 4, b + 30, f"s_lshl_b32 s{S_T5}, s{S_T5}, 7")
            mq.add('s', b + 4, b + 30, f"s_add_u32 s{S_T5}, s{S_T5}, {WS_FK}")
            mq.add('f', b + 4, b + 30, lambda: e(f"v_and_b32 v{V_PO}, 7, v{V_LANE}\nv_lshlrev_b32 v{V_PO}, 2, v{V_PO}"), 8, "valu")
            mq.add('f', b + 6, b + 30, lambda: e(f"v_add_u32 v{V_PO}, s{S_T5}, v{V_PO}"), 4, "valu")
        if gs == 28: mq.add('f', b + 30, b + 36, poll_kv.issue, 4, "mem")
        if gs + 3 < NS: w_stage(gs + 3, b + 44, 4, b + 64 + 5)
    b = 29*64
    mq.add('f', b + 8, b + 12, poll_kv.check, 8, "valu")
    for st in range(2):
        for j in range(8):
            if j == 4: mq.add('s', b, INF, f"s_add_u32 s{S_T4}, s{S_SRCA}, 4096")
            mq.add('d', b + 14 + st*64 + 6*j, INF, f"s_add_u32 m0, s{S_LA}, {st*32768 + (j//4)*4096}",
                   f"buffer_load_dwordx4 v{V_L16}, {srd(S_ASRD)}, s{S_T4 if j >= 4 else S_SRCA} offen offset:{(j%4)*1024}{SC} lds", "KV")
        if st == 0:
            mq.add('s', b, INF, f"s_cmp_eq_u32 s{w}, 2 ! s_cselect_b32 s{S_T4}, 1, 2")
            mq.add('s', b, INF, f"s_lshl_b32 s{S_T4}, s{S_T4}, 13")
            mq.add('s', b, INF, f"s_add_u32 s{S_SRCA}, s{S_SRCA}, s{S_T4}")
        else: mq.add('s', b, INF, f"s_add_u32 s{S_SRCA}, s{S_SRCA}, 16384")
    mfill = mq.fillers()
    e(mq.first_m0)
    for f in mfill[:n_pro0]:
        f.fn()
        if f.cost == 8: e("s_nop 0")
    if OPT.get("pfcode", 1):
        e(f"""s_getpc_b64 s[4:5]
        s_lshr_b32 s{S_T0}, s2, 3
        s_lshl_b32 s{S_T0}, s{S_T0}, 2
        s_add_u32 s{S_T0}, s{S_T0}, s{w}
        s_lshl_b32 s{S_T0}, s{S_T0}, 9
        v_and_b32 v{V_TMP[0]}, 7, v{V_LANE}
        v_lshlrev_b32 v{V_TMP[0]}, 6, v{V_TMP[0]}
        v_add_u32 v{V_TMP[0]}, s{S_T0}, v{V_TMP[0]}
        v_min_u32 v{V_TMP[0]}, L_end-L_pcref, v{V_TMP[0]}""")
        e.label("L_pcref")
        e.vmem(f"global_load_dword v{V_TMP[1]}, v{V_TMP[0]}, s[4:5]", "PF")
    e.need(vm=["X"])
    ln = layernorm_lines()
    rest = mfill[n_pro0:n_pro1]
    per = len(ln) // 17
    while ln or rest:
        for t in ln[:per]: e(t)
        ln = ln[per:]
        while rest:
            f = rest.pop(0); f.fn()
            if f.cost == 8: break
    mfill = mfill[n_pro1:]
    t0, t1, t2 = V_TMP[2:5]
    e(f"""s_lshl_b32 s{S_T0}, s{w}, 5
    s_add_u32 s{S_T0}, s{S_T0}, 49152
    v_lshlrev_b32 v{t0}, 7, v{V_LANE}
    v_add_u32 v{t0}, s{S_T0}, v{t0}""")
    e.ds(f"ds_write_b128 v{t0}, v[64:67]"); e.ds(f"ds_write_b128 v{t0}, v[68:71] offset:16")
    e(f"""s_lshl_b32 s{S_T0}, s{w}, 11
    s_add_u32 s{S_T0}, s{S_T0}, 49152
    v_add_u32 v{t0}, s{S_T0}, v{V_L16}
    v_lshrrev_b32 v{t1}, 5, v{V_LANE}
    v_lshlrev_b32 v{t1}, 12, v{t1}
    v_bfe_u32 v{t2}, v{V_LANE}, 3, 2
    v_lshl_add_u32 v{t1}, v{t2}, 8, v{t1}
    v_and_b32 v{t2}, 7, v{V_LANE}
    v_lshl_add_u32 v{t1}, v{t2}, 4, v{t1}
    s_lshr_b32 s{S_T0}, s2, 3
    s_lshl_b32 s{S_T0}, s{S_T0}, 16
    s_bfe_u32 s{S_T1}, s2, 0x20001
    s_lshl_b32 s{S_T1}, s{S_T1}, 10
    s_add_u32 s{S_T0}, s{S_T0}, s{S_T1}
    s_and_b32 s{S_T1}, s2, 1
    s_lshl_b32 s{S_T1}, s{S_T1}, 7
    s_add_u32 s{S_T0}, s{S_T0}, s{S_T1}
    s_lshl_b32 s{S_T1}, s{w}, 14
    s_add_u32 s{S_T0}, s{S_T0}, s{S_T1}
    s_add_u32 s{S_T1}, s{S_T0}, 8192""")
    misc = []
    misc.append(Filler(lambda: (e.ds(f"ds_read_b128 v[64:67], v{t0}", "LN"), e.ds(f"ds_read_b128 v[68:71], v{t0} offset:1024", "LN")), 8, "mem", 2))
    misc.append(Filler(lambda: (e.need(lg=["LN"]), e.vmem(f"buffer_store_dwordx4 v[64:67], v{t1}, {srd(S_WS)}, s{S_T0} offen{SC}", "XNST")), 8, "mem", 14, 40))
    misc.append(Filler(lambda: e.vmem(f"buffer_store_dwordx4 v[68:71], v{t1}, {srd(S_WS)}, s{S_T1} offen{SC}", "XNST"), 8, "mem", 16, 40))
    for t in scalar_setup2(e): misc.append(Filler(lambda t=t: e(t.replace(" ! ", "\n")), 4, "salu", 70, 7*64))
    b = RTS*64
    S_RA, S_RB = S_N, S_EVT
    def rt_addr():
        e(f"s_add_u32 s{S_RA}, s{S_WA}, 65536")
        for c in range(2): e(f"v_add_u32 v{V_RTA[c]}, s{S_RA}, v{V_TR[c]}")
    rts = [Filler(rt_addr, 8, "valu", 7*64 + 50), Filler(lambda: [e(f"v_add_u32 v{V_RTA[c]}, s{S_RA}, v{V_TR[c]}") for c in (2, 3)], 8, "valu", 7*64 + 50)]
    for t in (f"s_lshl_b32 s{S_RA}, s{S_T4}, 19", f"s_lshl_b32 s{S_T3}, s{S_T3}, 12", f"s_add_u32 s{S_RA}, s{S_RA}, s{S_T3}", f"s_add_u32 s{S_RA}, s{S_RA}, {WS_WOF}",
              f"s_mul_i32 s{S_RB}, s{S_T4}, {56*4096}", f"s_add_u32 s{S_RB}, s{S_RB}, s{S_T3}", f"s_add_u32 s{S_RB}, s{S_RB}, {WS_WDF}"):
        rts.append(Filler(lambda t=t: e(t), 4, "salu", 7*64 + 50))
    RG = OPT.get("rtgap", 20)
    for n in range(8):
        t, c = n // 4, n % 4
        d0 = V_TMP[0] + (n % 2)*4
        def fr(t=t, c=c, d0=d0, n=n):
            e.need(vm=["RT", "PF"])
            for rr in range(2):
                e.ds(f"ds_read_b64_tr_b16 v[{d0+rr*2}:{d0+rr*2+1}], v{V_RTA[c]} offset:{t*4096 + rr*2048}", ("RTF", n))
        def fs(t=t, c=c, d0=d0, n=n):
            e.need(lg=[("RTF", n)])
            e.vmem(f"buffer_store_dwordx4 {vr(d0)}, v{V_L16}, {srd((S_WS, S_BSRD)[t])}, s{(S_RA, S_RB)[t]} offen offset:{c*1024}{SC}", "RTST")
        rts.append(Filler(fr, 8, "mem", b + RG*n)); rts.append(Filler(fs, 8, "mem", b + RG*n + 12, 23*64))
    mfmas = []; rd = []
    sig_at = {3: (["XNST"], sig_lin(WS_FX)), 24: (["KST", "VST", "RTST"], SIG_KV)}
    def stage_gate(gs):
        def fn():
            tags = [("W", gs)]
            if gs < 8: tags.append(("A", gs))
            if gs in sig_at: tags += sig_at[gs][0]
            e.need(vm=tags)
            e("s_barrier")
            if gs in sig_at: signal(e, sig_at[gs][1], V_TMP[6])
            if gs % 8 == 0: stamp(e, 2 + gs // 8)
            if OPT.get("fine") is not None and 0 <= gs - OPT["fine"] < 18: stamp(e, 14 + gs - OPT["fine"])
        return fn
    def trread(gs, ksub, db, rr):
        off = (gs % 4)*16384 + ksub*8192 + (db // 4)*4096 + rr*2048
        d = V_WF + db*4 + rr*2
        return lambda: e.ds(f"ds_read_b64_tr_b16 v[{d}:{d+1}], v{V_TR[db % 4]} offset:{off}", ("F", gs, ksub, db))
    def actread(s, ksub, rb):
        return lambda: e.ds(f"ds_read_b128 {ar(actf(2*s+ksub, rb))}, v{V_ARD[ksub]} offset:{(s % 2)*32768 + rb*2048}", ("AF", s, ksub))
    AHEAD = 5
    for gs in range(NS):
        p = passes[gs // 8]; s = gs % 8; base = gs * 64
        if gs > 0: rd.append(Filler(stage_gate(gs), 8, "mem", base - 64 + BAR, base - 64 + BAR + 1))
        pend = [Filler(actread(s, ksub, rb), 4, "mem", base - 64 + BAR, base - 2 + 32*ksub) for ksub in range(2) for rb in range(4)] if p['act'] == 'lds' else []
        for ksub in range(2):
            for db in range(8):
                f = gs*16 + ksub*8 + db
                for rr in range(2):
                    rd.append(Filler(trread(gs, ksub, db, rr), 4, "mem", max(4*(f - AHEAD) + rr*OPT.get("trsplit", 0), base - 64 + BAR), 4*(f - 1)))
                for _ in range(2):
                    if pend: rd.append(pend.pop(0))
                for rb in range(4):
                    def m(gs=gs, s=s, ksub=ksub, db=db, rb=rb, p=p):
                        lg = [("F", gs, ksub, db)]
                        if p['act'] == 'lds': lg.append(("AF", s, ksub))
                        e.need(lg=lg, vm=[("XN", 2*s+ksub)] if p['act'] == 'glob' else ())
                        wv = vr(V_WF + db*4); a = ar(actf(2*s+ksub, rb)); d = vr(acc(db, rb))
                        c = "0" if (s == 0 and ksub == 0) else d
                        e(mf(d, a, wv, c) if p['swap'] else mf(d, wv, a, c))
                    mfmas.append(m)
    def cvts(base, dst):
        out = []
        for db in range(8):
            for rb in range(4):
                for hh in range(2):
                    d = dst(db, rb, hh); s = acc(db, rb) + 2*hh
                    out.append(Filler(lambda d=d, s=s: e(f"v_cvt_pk_bf16_f32 v{d}, v{s}, v{s+1}"), 4, "valu", base + 480 + 4*db + 9, base + 512 + 4*db + rb))
        return out
    def gp(c, rb, hh, up): return V_PK + 32*up + ((c//2)*4 + rb)*4 + (c & 1)*2 + hh
    cv = cvts(0, lambda db, rb, hh: V_PK + (rb*4 + db//2)*4 + (db & 1)*2 + hh)
    cv += cvts(512, lambda db, rb, hh: V_PK + ((rb//2)*8 + db)*4 + (rb & 1)*2 + hh)
    cv += cvts(1024, lambda db, rb, hh: gp(db % 4, rb, hh, db // 4))
    st = []
    for base, reg, tag, gap in ((512, WS_K, "KST", 27), (1024, WS_V, "VST", OPT.get("vgap", 22))):
        for n in range(16):
            if n % 4 == 0: st.append(Filler(lambda n=n, reg=reg: e(f"s_add_u32 s{S_T2}, s{S_KVST}, {reg + (n//4)*4096}"), 4, "salu", base + 30 + gap*n))
            st.append(Filler(lambda n=n, tag=tag: e.vmem(f"buffer_store_dwordx4 {vr(V_PK + n*4)}, v{V_L16}, {srd(S_WS)}, s{S_T2} offen offset:{(n%4)*1024}{SC}", tag), 4, "mem", base + 34 + gap*n, base + 484))
    C0 = -2.0 * math.sqrt(2.0 / math.pi) * math.log2(math.e)
    V_C1 = V_TMP[6]
    st0 = 1536 + 33
    def V(txt, cost=4): st.append(Filler(lambda: e(txt), cost, "valu", st0))
    V(f"v_mov_b32 v{V_C1}, {fb(C0*0.044715):#x}")
    for fg in range(2):
        for rb in range(4):
            for c in (2*fg, 2*fg+1):
                for hh in range(2):
                    G, U = gp(c, rb, hh, 0), gp(c, rb, hh, 1)
                    g0, g1, u0, u1, a0, a1 = V_TMP[0:6]
                    V(f"v_lshlrev_b32 v{g0}, 16, v{G}"); V(f"v_and_b32 v{g1}, 0xffff0000, v{G}")
                    V(f"v_mul_f32 v{a0}, v{g0}, v{g0}"); V(f"v_mul_f32 v{a1}, v{g1}, v{g1}")
                    V(f"v_fmaak_f32 v{a0}, v{a0}, v{V_C1}, {fb(C0):#x}"); V(f"v_fmaak_f32 v{a1}, v{a1}, v{V_C1}, {fb(C0):#x}")
                    V(f"v_mul_f32 v{a0}, v{g0}, v{a0}"); V(f"v_mul_f32 v{a1}, v{g1}, v{a1}")
                    V(f"v_exp_f32 v{a0}, v{a0}", 8); V(f"v_exp_f32 v{a1}, v{a1}", 8)
                    V(f"v_lshlrev_b32 v{u0}, 16, v{U}"); V(f"v_and_b32 v{u1}, 0xffff0000, v{U}")
                    V(f"v_add_f32 v{a0}, 1.0, v{a0}"); V(f"v_add_f32 v{a1}, 1.0, v{a1}")
                    V(f"v_rcp_f32 v{a0}, v{a0}", 8); V(f"v_rcp_f32 v{a1}, v{a1}", 8)
                    V(f"v_mul_f32 v{g0}, v{g0}, v{u0}"); V(f"v_mul_f32 v{g1}, v{g1}, v{u1}")
                    V(f"v_mul_f32 v{g0}, v{g0}, v{a0}"); V(f"v_mul_f32 v{g1}, v{g1}, v{a1}")
                    V(f"v_cvt_pk_bf16_f32 v{G}, v{g0}, v{g1}")
            if rb == 0: st.append(Filler(lambda fg=fg: e(f"s_add_u32 s{S_T2}, s{S_HST}, {fg*4096}"), 4, "salu", st0))
            st.append(Filler(lambda rb=rb, fg=fg: e.vmem(f"buffer_store_dwordx4 {vr(V_PK + (fg*4+rb)*4)}, v{V_L16}, {srd(S_HSRD)}, s{S_T2} offen offset:{rb*1024}{SC}", "HST"), 4, "mem", st0))
    qe = []
    for dg in range(4):
        for qb in range(4):
            o0, o1 = acc(2*dg, qb), acc(2*dg+1, qb)
            ear = 1536 + 480 + 4*(2*dg+1) + 9
            for r in range(4):
                qe.append(Filler(lambda r=r, o0=o0: e(f"v_mul_f32 v{o0+r}, {QSCALE:#x}, v{o0+r}"), 4, "valu", ear))
                qe.append(Filler(lambda r=r, o1=o1: e(f"v_mul_f32 v{o1+r}, {QSCALE:#x}, v{o1+r}"), 4, "valu", ear))
            for d, s in ((o0, o0), (o0+1, o0+2), (o0+2, o1), (o0+3, o1+2)):
                qe.append(Filler(lambda d=d, s=s: e(f"v_cvt_pk_bf16_f32 v{d}, v{s}, v{s+1}"), 4, "valu", ear))
    stamp(e, 1)
    e.need(vm=[("W", 0), ("A", 0)]); e.wait_all(vm=False); e("s_barrier")
    e(f"s_mul_i32 s{S_TAG}, s{S_TAG}, 0x9e3779b1\ns_add_u32 s{S_TAG}, s{S_TAG}, 0x7f4a7c15")
    stamp(e, 2)
    k = 0
    while rd[k].earliest < 0: rd[k].fn(); k += 1
    rest = e.schedule(mfmas, [rd[k:], mfill, cv, misc, rts, st, qe], flush=False)
    e("s_nop 7")
    e.c(f"left over fillers: {[len(r) for r in rest]}")
    for r in rest:
        for f in r: f.fn()
    stamp(e, 6)
    attention(e, poll_b, poll_c)
    phase_d(e, poll_b, poll_c)
    stamp_flush(e)
    e("s_branch L_end")
    for p in (poll_xn, poll_kv, poll_b, poll_c): p.spin()
    slow_path(e)
    e.label("L_end")
    e("s_endpgm")

def att_dma(e, which, j):
    sr, src, ld = ((S_ASRD, S_SRCA, S_LA), (S_BSRD, S_SRCB, S_LB))[which]
    e.vmem(f"buffer_load_dwordx4 v{V_L16}, {srd(sr)}, s{S_T4 if j >= 4 else src} offen offset:{(j%4)*1024}{SC} lds", "KV")
    if j == 3:
        e(f"s_add_u32 m0, s{ld}, 4096"); e(f"s_add_u32 s{S_T4}, s{src}, 4096")
def sm_half(e, buf, kb2):
    ex = []; cv = []
    for p in range(8):
        qb, hh = p // 2, p % 2
        r = Sreg(buf, kb2, qb) + 2*hh
        ex.append(lambda r=r: e(f"v_exp_f32 v{r}, v{r}")); ex.append(lambda r=r: e(f"v_exp_f32 v{r+1}, v{r+1}"))
        d = Preg(buf, qb) + 2*kb2 + hh
        cv.append(lambda r=r, d=d: e(f"v_cvt_pk_bf16_f32 v{d}, v{r}, v{r+1}"))
    return ex, cv
def qk_mfmas(e, buf, half):
    out = []
    for kb2 in range(2):
        kb = half*2 + kb2
        for dg in range(4):
            for qb in range(4):
                d = vr(Sreg(buf, kb2, qb))
                c = d if dg else ("0" if kb < qb else vr(V_TD) if kb == qb else vr(V_TN))
                def m(d=d, c=c, kb2=kb2, dg=dg, qb=qb):
                    e.need(lg=[("FR", 0, kb2*4+dg)])
                    e(mf(d, ar(A_FB[0] + (kb2*4+dg)*4), ar(A_Q + (qb*4+dg)*4), c))
                out.append(m)
    return out
def pv_mfmas(e, buf):
    out = []
    for db in range(8):
        for qb in range(4):
            d = vr(Oreg(db, qb))
            def m(d=d, db=db, qb=qb):
                e.need(lg=[("FR", 1, db)])
                e(mf(d, ar(A_FB[1] + db*4), vr(Preg(buf, qb)), d))
            out.append(m)
    for qb in range(4):
        d = ar(A_L + qb*4)
        out.append(lambda d=d, qb=qb: e(mf(d, ar(A_ONE), vr(Preg(buf, qb)), d)))
    return out
def frag_reads(e, fb_, off):
    return [lambda j=j: e.ds(f"ds_read_b128 {ar(A_FB[fb_] + j*4)}, v{V_RD} offset:{off + j*1024}", ("FR", fb_, (j // 4)*4)) for j in range(8)]
def section(e, mfmas, reads, ex, cv, carry, dmas=()):
    for i, m in enumerate(mfmas):
        m()
        q, g = i // 4, i % 4
        if q < 8:
            if g == 0:
                if reads: reads[q]()
                if q == 0:
                    if carry: carry()
                elif cv: cv[q-1]()
            elif g == 1 and ex: ex[2*q]()
            elif g == 2 and dmas: dmas[q]()
            elif g == 3 and ex: ex[2*q+1]()
        elif i == 32 and cv: cv[7]()
    return cv[7] if (cv and len(mfmas) == 32) else None
def att_reinit(e):
    for r in range(128): e(f"v_mov_b32 v{V_O + r}, 0")
    for r in range(16): e(f"v_accvgpr_write_b32 a{A_L + r}, 0")
    for r in range(16): e(f"v_mov_b32 v{Sreg(1, 1, 0) + r}, {NEGINF:#x}")
    for qb in range(4):
        e(f"v_mov_b32 v{Preg(1, qb)}, 0"); e(f"v_mov_b32 v{Preg(1, qb) + 1}, 0")
def att_prep_dma(e):
    e(f"""s_cmp_le_u32 s{S_N}, 15
    s_cselect_b32 s{S_ASRD+2}, {WS_END}, 0
    s_add_u32 s{S_T3}, s{S_N}, 2
    s_cmp_ge_u32 s{S_T3}, s{S_N0}
    s_cselect_b32 s{S_BSRD+2}, s{S_ASRD+2}, 0
    s_mov_b32 m0, s{S_LA}""")
def att_adv_a(e):
    e(f"s_add_u32 s{S_SRCA}, s{S_SRCA}, 16384\ns_xor_b32 s{S_LA}, s{S_LA}, 32768\ns_mov_b32 m0, s{S_LB}")
def att_adv_b(e):
    e(f"s_sub_u32 s{S_VMAXB}, s{S_VMAXB}, 16384\ns_min_u32 s{S_SRCB}, s{S_VMAXB}, s{S_VCLB}\ns_xor_b32 s{S_LB}, s{S_LB}, 32768")
def drain(e, with_bdma):
    ex, cv = sm_half(e, 1, 1)
    for f in frag_reads(e, 1, 16384): f()
    for p in range(8):
        ex[2*p](); ex[2*p+1]()
        if with_bdma: att_dma(e, 1, p)
        else: e("s_nop 0")
        cv[p]()
    if with_bdma: att_adv_b(e)
    e("s_nop 1")
    for m in pv_mfmas(e, 1): m()
    e("s_nop 7")
LR = V_TMP[10:14]
def check_l(e, ret, qt):
    e(f"v_max3_f32 v{V_LIM}, v{LR[0]}, v{LR[1]}, v{LR[2]}")
    e(f"v_min3_f32 v{V_LIM+1}, v{LR[0]}, v{LR[1]}, v{LR[2]}")
    e(f"v_add_f32 v{V_LIM}, v{V_LIM}, v{LR[0]}\nv_add_f32 v{V_LIM}, v{V_LIM}, v{LR[1]}\nv_add_f32 v{V_LIM}, v{V_LIM}, v{LR[2]}\nv_add_f32 v{V_LIM}, v{V_LIM}, v{LR[3]}")
    e(f"v_min_f32 v{V_LIM+1}, v{V_LIM+1}, v{LR[3]}")
    e(f"v_cmp_nge_f32 vcc, {OPT.get('lhi', 0x5f800000):#x}, v{V_LIM}")
    e(f"s_mov_b64 s[{S_FL}:{S_FL+1}], vcc")
    e(f"v_cmp_nle_f32 vcc, 0x1f800000, v{V_LIM+1}")
    e(f"s_or_b64 vcc, vcc, s[{S_FL}:{S_FL+1}]")
    e(f"s_mov_b32 s{S_RET}, {ret}")
    e(f"s_mov_b32 s{S_CNT}, s{qt}")
    e("s_cbranch_vccnz L_slow")
def norm_store(e, dbs, sbase):
    for dg in sorted({d // 2 for d in dbs}):
        e(f"s_add_u32 s{S_T0}, s{sbase}, {dg*4096}")
        for qb in range(4):
            o0, o1 = Oreg(2*dg, qb), Oreg(2*dg+1, qb)
            for r in range(4):
                e(f"v_mul_f32 v{o0+r}, v{o0+r}, v{LR[qb]}"); e(f"v_mul_f32 v{o1+r}, v{o1+r}, v{LR[qb]}")
            e(f"v_cvt_pk_bf16_f32 v{o0}, v{o0}, v{o0+1}\nv_cvt_pk_bf16_f32 v{o0+1}, v{o0+2}, v{o0+3}")
            e(f"v_cvt_pk_bf16_f32 v{o0+2}, v{o1}, v{o1+1}\nv_cvt_pk_bf16_f32 v{o0+3}, v{o1+2}, v{o1+3}")
            e.vmem(f"buffer_store_dwordx4 {vr(o0)}, v{V_L16}, {srd(S_WS)}, s{S_T0} offen offset:{qb*1024}{SC}", "CST")

def attention(e, poll_b, poll_c):
    i, h, w = S_BLK, S_HEAD, S_WAVE
    e(f"s_cmp_ge_u32 s{w}, 2")
    e("s_cbranch_scc1 L_noqw")
    e(f"s_lshl_b32 s{S_T0}, s{w}, 14\ns_add_u32 s{S_T0}, s{S_T0}, 131072")
    e(f"v_add_u32 v{V_TMP[14]}, s{S_T0}, v{V_L16}")
    for qb in range(4):
        for dg in range(4):
            e.ds(f"ds_write_b128 v{V_TMP[14]}, {vr(acc(2*dg, qb))} offset:{(qb*4+dg)*1024}")
    e.label("L_noqw")
    for qb in range(4):
        for dg in range(4):
            for r in range(4): e(f"v_accvgpr_write_b32 a{A_Q + (qb*4+dg)*4 + r}, v{acc(2*dg, qb) + r}")
    e(f"v_mov_b32 v{V_TMP[15]}, 0x3f803f80")
    for r in range(4): e(f"v_accvgpr_write_b32 a{A_ONE + r}, v{V_TMP[15]}")
    e(f"v_add_u32 v{V_RD}, 65536, v{V_L16}")
    for r in range(8): e(f"v_mov_b32 v{V_TD + r}, 0")
    e(f"""s_lshl_b32 s{S_TRANS}, s{i}, 1
    s_add_u32 s{S_TRANS}, s{S_TRANS}, s{w}
    s_sub_u32 s{S_TRANS}, s{S_TRANS}, 1
    s_sub_u32 s{S_EVT}, s{S_TRANS}, 1
    s_cmp_eq_u32 s{i}, 7
    s_cselect_b32 s{S_T0}, 16, 99
    s_cmp_eq_u32 s{w}, 0
    s_cselect_b32 s{S_T0}, s{S_T0}, 99
    s_cmp_lt_u32 s{w}, 2
    s_cselect_b32 s{S_EVT}, s{S_T0}, s{S_EVT}
    s_cselect_b32 s{S_TRANS}, 99, s{S_TRANS}
    s_mov_b32 s{S_N}, 0
    s_mov_b32 s{S_BSRD+2}, 0
    s_mov_b32 m0, s{S_LB}""")
    e.wait_all(vm=False)
    att_reinit(e)
    e.need(vm=["KV"])
    e("s_barrier")
    e(f"s_cmp_lt_u32 s{w}, 2")
    e("s_cbranch_scc1 L_noqr")
    e(f"s_sub_u32 s{S_T0}, 3, s{w}\ns_lshl_b32 s{S_T0}, s{S_T0}, 14\ns_add_u32 s{S_T0}, s{S_T0}, 131072")
    e(f"v_add_u32 v{V_TMP[14]}, s{S_T0}, v{V_L16}")
    for j in range(16): e.ds(f"ds_read_b128 {ar(A_QS + j*4)}, v{V_TMP[14]} offset:{j*1024}", "QS")
    e.label("L_noqr")
    for f in frag_reads(e, 0, 0): f()
    stamp(e, 7)
    top = [("FR", 0, 0)]*4 + [("FR", 0, 4)]*4
    e(".p2align 6")
    e.label("L_loop")
    loop_start = len(e.L)
    e(f"s_cmp_eq_u32 s{S_N}, s{S_EVT}")
    e("s_cbranch_scc1 L_event")
    e.label("L_body")
    e.lgkm = list(top)
    ex, cv = sm_half(e, 1, 1)
    bd = [lambda j=j: (att_dma(e, 1, j), att_adv_b(e) if j == 7 else None) for j in range(8)]
    carry = section(e, qk_mfmas(e, 0, 0), frag_reads(e, 1, 16384), ex, cv, None, bd)
    ex, cv = sm_half(e, 0, 0)
    carry = section(e, pv_mfmas(e, 1), frag_reads(e, 0, 8192), ex, cv, carry)
    ex, cv = sm_half(e, 0, 1)
    pd = [(lambda: None)]*6 + [lambda: att_prep_dma(e), lambda: e(f"v_xor_b32 v{V_RD}, 32768, v{V_RD}")]
    carry = section(e, qk_mfmas(e, 1, 1), frag_reads(e, 1, 24576), ex, cv, carry, pd)
    e.wait_all()
    e("s_barrier")
    ex, cv = sm_half(e, 1, 0)
    ad = [lambda j=j: (att_dma(e, 0, j), att_adv_a(e) if j == 7 else None) for j in range(8)]
    carry = section(e, pv_mfmas(e, 0), frag_reads(e, 0, 0), ex, cv, carry, ad)
    assert carry is None and e.lgkm == top, e.lgkm
    e.label("L_next")
    e(f"s_add_u32 s{S_N}, s{S_N}, 1")
    e(f"s_cmp_eq_u32 s{S_N}, 1")
    e("s_cbranch_scc1 L_sigb")
    e(f"s_cmp_lt_u32 s{S_N}, 17")
    e("s_cbranch_scc1 L_loop")
    e.loop = (loop_start, len(e.L))
    e("s_branch L_final")
    e.label("L_sigb")
    signal(e, sig_lin(WS_FB), V_TMP[14])
    e("s_branch L_loop")
    e.label("L_event")
    e(f"s_cmp_eq_u32 s{S_N}, s{S_TRANS}")
    e("s_cbranch_scc1 L_trans")
    e(f"s_cmp_gt_u32 s{S_N}, s{S_TRANS}")
    e("s_cbranch_scc1 L_unset")
    t0, t1, t2 = V_TMP[10:13]
    e(f"""v_lshrrev_b32 v{t0}, 4, v{V_LANE}
    v_lshlrev_b32 v{t0}, 2, v{t0}
    v_and_b32 v{t1}, 15, v{V_LANE}
    v_sub_u32 v{t0}, v{t1}, v{t0}
    v_mov_b32 v{t2}, {NEGINF:#x}""")
    for r in range(4):
        e(f"v_cmp_gt_i32 vcc, {r}, v{t0}\nv_mov_b32 v{V_TN + r}, v{t2}\ns_nop 0\nv_cndmask_b32 v{V_TD + r}, 0, v{t2}, vcc")
    e(f"s_mov_b32 s{S_EVT}, s{S_TRANS}\ns_nop 0\ns_branch L_body")
    e.label("L_unset")
    for r in range(8): e(f"v_mov_b32 v{V_TD + r}, 0")
    e(f"s_mov_b32 s{S_EVT}, 99\ns_nop 0\ns_branch L_body")
    e.label("L_trans")
    e.lgkm = list(top); e.vm = ["KV"]*8
    drain(e, True)
    for qb in range(4): e(f"v_accvgpr_read_b32 v{LR[qb]}, a{A_L + qb*4}")
    check_l(e, 0, S_QT)
    e.label("L_ret0")
    for qb in range(4): e(f"v_rcp_f32 v{LR[qb]}, v{LR[qb]}")
    norm_store(e, list(range(8)), S_CTXLO)
    att_prep_dma(e)
    e(f"v_xor_b32 v{V_RD}, {32768 + 65536}, v{V_RD}")
    e.need(vm=["KV"])
    e("s_barrier")
    for f in frag_reads(e, 0, 0): f()
    for j in range(8):
        att_dma(e, 0, j)
        for r in range(8): e(f"v_accvgpr_mov_b32 a{A_Q + j*8 + r}, a{A_QS + j*8 + r}")
    att_adv_a(e)
    att_reinit(e)
    e(f"s_add_u32 s{S_EVT}, s{S_TRANS}, 2")
    e("s_branch L_next")
    e.label("L_final")
    e.lgkm = list(top); e.vm = ["KV"]*8
    stamp(e, 8)
    poll32_addr(e, poll_b.voff, WS_FB)
    poll_b.issue()
    drain(e, False)
    for qb in range(4): e(f"v_accvgpr_read_b32 v{LR[qb]}, a{A_L + qb*4}")
    poll_b.check()
    e.wait_all()
    e("s_barrier")
    tw, trd, tl, tlr = V_TMP[0:4]
    e(f"""s_lshl_b32 s{S_T0}, s{w}, 14
    v_add_u32 v{tw}, s{S_T0}, v{V_L16}
    s_sub_u32 s{S_T1}, 3, s{w}
    s_lshl_b32 s{S_T0}, s{S_T1}, 14
    v_add_u32 v{trd}, s{S_T0}, v{V_L16}
    s_add_u32 s{S_T0}, s{S_WL}, 131072
    v_add_u32 v{tl}, s{S_T0}, v{V_L16}
    s_lshl_b32 s{S_T0}, s{S_T1}, 10
    s_add_u32 s{S_T0}, s{S_T0}, 131072
    v_add_u32 v{tlr}, s{S_T0}, v{V_L16}""")
    e.ds(f"ds_write_b128 v{tl}, {vr(LR[0])}")
    e(f"s_cmp_ge_u32 s{w}, 2")
    e("s_cbranch_scc1 L_mergeB")
    for role in range(2):
        keep = list(range(4)) if role == 0 else list(range(4, 8))
        send = list(range(4, 8)) if role == 0 else list(range(4))
        if role == 1: e.label("L_mergeB"); e.vm = []
        for n in range(16): e.ds(f"ds_write_b128 v{tw}, {vr(V_O + send[0]*16 + n*4)} offset:{n*1024}")
        e.wait_all(vm=False)
        e("s_barrier")
        e.ds(f"ds_read_b128 {vr(V_TMP[4])}, v{tlr}", "ML")
        for n in range(16): e.ds(f"ds_read_b128 {vr(V_S[0] + n*4)}, v{trd} offset:{n*1024}", ("MO", n))
        e.need(lg=["ML"])
        for qb in range(4): e(f"v_add_f32 v{LR[qb]}, v{LR[qb]}, v{V_TMP[4] + qb}")
        for n in range(16):
            e.need(lg=[("MO", n)])
            for r in range(4):
                o = V_O + keep[0]*16 + n*4 + r
                e(f"v_add_f32 v{o}, v{o}, v{V_S[0] + n*4 + r}")
        check_l(e, 1 + role, S_QTHI)
        e.label(f"L_ret{1 + role}")
        for qb in range(4): e(f"v_rcp_f32 v{LR[qb]}, v{LR[qb]}")
        norm_store(e, keep, S_CTXHI)
        if role == 0: e("s_branch L_attdone")
    e.label("L_attdone")
    stamp(e, 9)

def slow_path(e):
    M = V_P[1]; AL = V_P[1] + 4; T = V_P[1] + 8; QI = V_P[1] + 12; NI = V_P[1] + 13
    u, nu, ko, vo = S_T0, S_T1, S_T3, S_T5
    e.label("L_slow")
    e.lgkm = []; e.vm = []
    e("s_waitcnt vmcnt(0) lgkmcnt(0)")
    e(f"""s_lshl_b32 s{nu}, s{S_CNT}, 1
    s_add_u32 s{nu}, s{nu}, 2
    s_lshl_b32 s{ko}, s{S_HEAD}, 19
    s_add_u32 s{vo}, s{ko}, {WS_V}
    s_add_u32 s{ko}, s{ko}, {WS_K}
    s_lshl_b32 s{S_CNT}, s{S_CNT}, 6
    v_lshrrev_b32 v{T}, 4, v{V_LANE}
    v_lshlrev_b32 v{T}, 2, v{T}
    v_and_b32 v{QI}, 15, v{V_LANE}
    v_sub_u32 v{QI}, v{QI}, v{T}
    v_add_u32 v{QI}, s{S_CNT}, v{QI}
    v_mov_b32 v{NI}, {NEGINF:#x}
    s_mov_b32 s{u}, 0""")
    for r in range(128): e(f"v_mov_b32 v{V_O + r}, 0")
    for qb in range(4): e(f"v_mov_b32 v{M+qb}, v{NI}\nv_mov_b32 v{LR[qb]}, 0")
    e.label("L_slowl")
    for t, so in ((0, ko), (1, vo)):
        for j in range(8):
            if j == 4: e(f"s_add_u32 s{so}, s{so}, 4096")
            e.vmem(f"buffer_load_dwordx4 {ar(A_FB[t] + j*4)}, v{V_L16}, {srd(S_WS)}, s{so} offen offset:{(j%4)*1024}{SC}", "SL")
        e(f"s_add_u32 s{so}, s{so}, 4096")
    e.wait_all()
    for kb2 in range(2):
        for dg in range(4):
            for qb in range(4):
                d = vr(Sreg(0, kb2, qb))
                e(mf(d, ar(A_FB[0] + (kb2*4+dg)*4), ar(A_Q + (qb*4+dg)*4), d if dg else "0"))
    e("s_nop 7")
    for kb2 in range(2):
        for qb in range(4):
            for r in range(4):
                s = Sreg(0, kb2, qb) + r
                e(f"v_cmp_gt_i32 vcc, {16*kb2 + r - 16*qb}, v{QI}\ns_nop 1\nv_cndmask_b32 v{s}, v{s}, v{NI}, vcc")
    e(f"v_subrev_u32 v{QI}, 32, v{QI}")
    for qb in range(4):
        a, b = Sreg(0, 0, qb), Sreg(0, 1, qb)
        e(f"""v_max3_f32 v{T}, v{a}, v{a+1}, v{a+2}
        v_max3_f32 v{T}, v{T}, v{a+3}, v{b}
        v_max3_f32 v{T}, v{T}, v{b+1}, v{b+2}
        v_max3_f32 v{T}, v{T}, v{b+3}, v{M+qb}
        v_mov_b32 v{T+1}, v{T}
        s_nop 1
        v_permlane32_swap_b32 v{T}, v{T+1}
        v_max_f32 v{T}, v{T}, v{T+1}
        v_mov_b32 v{T+1}, v{T}
        s_nop 1
        v_permlane16_swap_b32 v{T}, v{T+1}
        v_max_f32 v{T}, v{T}, v{T+1}
        v_sub_f32 v{AL+qb}, v{M+qb}, v{T}
        v_mov_b32 v{M+qb}, v{T}
        v_exp_f32 v{AL+qb}, v{AL+qb}""")
        for s in list(range(a, a+4)) + list(range(b, b+4)):
            e(f"v_sub_f32 v{s}, v{s}, v{T}")
        for s in list(range(a, a+4)) + list(range(b, b+4)):
            e(f"v_exp_f32 v{s}, v{s}")
        e(f"v_mul_f32 v{LR[qb]}, v{LR[qb]}, v{AL+qb}")
        for s in list(range(a, a+4)) + list(range(b, b+4)):
            e(f"v_add_f32 v{LR[qb]}, v{LR[qb]}, v{s}")
        p = Preg(0, qb)
        e(f"v_cvt_pk_bf16_f32 v{p}, v{a}, v{a+1}\nv_cvt_pk_bf16_f32 v{p+1}, v{a+2}, v{a+3}\nv_cvt_pk_bf16_f32 v{p+2}, v{b}, v{b+1}\nv_cvt_pk_bf16_f32 v{p+3}, v{b+2}, v{b+3}")
        for db in range(8):
            for r in range(4): e(f"v_mul_f32 v{Oreg(db, qb)+r}, v{Oreg(db, qb)+r}, v{AL+qb}")
    e("s_nop 1")
    for db in range(8):
        for qb in range(4):
            d = vr(Oreg(db, qb))
            e(mf(d, ar(A_FB[1] + db*4), vr(Preg(0, qb)), d))
    e(f"s_add_u32 s{u}, s{u}, 1\ns_cmp_lt_u32 s{u}, s{nu}\ns_nop 7\ns_cbranch_scc1 L_slowl")
    for qb in range(4):
        e(f"""v_mov_b32 v{T}, v{LR[qb]}
        s_nop 1
        v_permlane32_swap_b32 v{LR[qb]}, v{T}
        v_add_f32 v{LR[qb]}, v{LR[qb]}, v{T}
        v_mov_b32 v{T}, v{LR[qb]}
        s_nop 1
        v_permlane16_swap_b32 v{LR[qb]}, v{T}
        v_add_f32 v{LR[qb]}, v{LR[qb]}, v{T}""")
    e(f"s_cmp_eq_u32 s{S_RET}, 0\ns_cbranch_scc1 L_ret0\ns_cmp_eq_u32 s{S_RET}, 1\ns_cbranch_scc1 L_ret1\ns_branch L_ret2")

def phase_d(e, poll_b, poll_c):
    qt, mt, w = S_HEAD, S_BLK, S_WAVE
    V_XO, V_X = 12, 16
    V_AS, V_AD = 128, 192
    t0, t1 = 24, 25
    S_AH, S_AC, S_WDo, S_WOo, S_XO = S_OFF0, S_OFFA, S_AROW, S_KVST, S_XNB
    DEP = OPT.get("ddepth", 4); RING = 8
    e.vm = ["CST"]*8
    e(f"""s_mul_i32 s{S_AH}, s{qt}, {56*4096}
    s_mul_i32 s{S_T0}, s{w}, {14*4096}
    s_add_u32 s{S_AH}, s{S_AH}, s{S_T0}
    s_add_u32 s{S_AH}, s{S_AH}, {WS_H}
    s_mul_i32 s{S_WDo}, s{mt}, {56*4096}
    s_add_u32 s{S_WDo}, s{S_WDo}, s{S_T0}
    s_add_u32 s{S_WDo}, s{S_WDo}, {WS_WDF}
    s_lshl_b32 s{S_T0}, s{w}, 17
    s_lshl_b32 s{S_AC}, s{qt}, 19
    s_add_u32 s{S_AC}, s{S_AC}, s{S_T0}
    s_add_u32 s{S_AC}, s{S_AC}, {WS_CTX}
    s_lshl_b32 s{S_WOo}, s{mt}, 19
    s_add_u32 s{S_WOo}, s{S_WOo}, s{S_T0}
    s_add_u32 s{S_WOo}, s{S_WOo}, {WS_WOF}""")
    NS = 46
    def loads(n):
        down = n < 14; slot = n % RING; ops = []
        for t, so in enumerate((S_WDo, S_AH) if down else (S_WOo, S_AC)):
            for q in range(4):
                def fn(t=t, q=q, so=so):
                    e.vmem(f"buffer_load_dwordx4 {ar(slot*32 + t*16 + q*4)}, v{V_L16}, {srd(S_WS)}, s{so} offen offset:{q*1024}{SC}", ("L", n))
                    if q == 3: e(f"s_add_u32 s{so}, s{so}, 4096")
                ops.append(fn)
        return ops
    for n in range(DEP):
        for f in loads(n): f()
    e(f"""v_and_b32 v{t0}, 15, v{V_LANE}
    v_lshlrev_b32 v{t0}, 10, v{t0}
    v_lshrrev_b32 v{t1}, 4, v{V_LANE}
    v_lshl_add_u32 v{V_XO}, v{t1}, 3, v{t0}
    s_lshl_b32 s{S_XO}, s{qt}, 16
    s_lshl_b32 s{S_T0}, s{w}, 14
    s_add_u32 s{S_XO}, s{S_XO}, s{S_T0}
    s_lshl_b32 s{S_T1}, s{mt}, 7
    s_add_u32 s{S_XO}, s{S_XO}, s{S_T1}
    s_add_u32 s{S_T1}, s{S_T0}, 65536
    v_add_u32 v{t0}, s{S_T1}, v{V_L16}
    v_add_u32 v{t1}, s{S_T0}, v{V_L16}
    v_add_u32 v{poll_c.voff}, {WS_FC - WS_FB}, v{poll_c.voff}""")
    e.need(vm=["CST"])
    e("s_barrier")
    signal(e, sig_lin(WS_FC), 26)
    for mb in range(4):
        e.vmem(f"buffer_load_dwordx2 v[{V_X+2*mb}:{V_X+2*mb+1}], v{V_XO}, {srd(S_X)}, s{S_XO} offen offset:{mb*32}", "X")
    dw = [lambda j=j: e.ds(f"ds_write_b128 v{t0}, {vr(V_AD + j*4)} offset:{((j%4)*4 + j//4)*1024}", "DW") for j in range(16)]
    for n in range(NS):
        A = V_AD if n < 14 else V_AS
        first = n in (0, 14)
        if n + DEP == 13: poll_c.issue()
        if n + DEP == 14: stamp(e, 10); poll_c.check(); stamp(e, 11)
        ld = loads(n + DEP) if n + DEP < NS else []
        e.need(vm=[("L", n)])
        k = 0
        for mb in range(4):
            for qb in range(4):
                d = vr(A + (mb*4 + qb)*4)
                e(mf(d, ar((n % RING)*32 + mb*4), ar((n % RING)*32 + 16 + qb*4), "0" if first else d))
                if k % 2 == 0 and ld: ld[k // 2]()
                if n >= 15 and dw and k % 8 == 1: dw.pop(0)()
                k += 1
    stamp(e, 12)
    e("s_nop 7")
    for j in range(16): e.ds(f"ds_write_b128 v{t1}, {vr(V_AS + j*4)} offset:{((j%4)*4 + j//4)*1024}", "SW")
    e.wait_all(vm=False)
    e("s_barrier")
    e(f"s_lshl_b32 s{S_T0}, s{w}, 12")
    e(f"v_add_u32 v{t0}, s{S_T0}, v{V_L16}")
    e(f"v_add_u32 v{t1}, 65536, v{t0}")
    for part, (a, base) in enumerate(((t1, V_AD), (t0, V_AS))):
        for sw in range(4):
            for mb in range(4):
                e.ds(f"ds_read_b128 {vr(base + (sw*4+mb)*4)}, v{a} offset:{sw*16384 + mb*1024}", ("R", part, sw))
    def rnd(base):
        for j in range(8): e(f"v_cvt_pk_bf16_f32 v{64+j}, v{base+2*j}, v{base+2*j+1}")
        for j in range(8):
            e(f"v_lshlrev_b32 v{base+2*j}, 16, v{64+j}"); e(f"v_and_b32 v{base+2*j+1}, 0xffff0000, v{64+j}")
    T = 80
    for part, base in enumerate((V_AD, V_AS)):
        e.need(lg=[("R", part, 1)])
        for r in range(16): e(f"v_add_f32 v{base+r}, v{base+r}, v{base+16+r}")
        e.need(lg=[("R", part, 3)])
        for r in range(16): e(f"v_add_f32 v{base+32+r}, v{base+32+r}, v{base+48+r}")
        for r in range(16): e(f"v_add_f32 v{base+r}, v{base+r}, v{base+32+r}")
        rnd(base)
        if part == 0:
            for r in range(16): e(f"v_mul_f32 v{T+r}, 0xbfb8aa3b, v{V_AD+r}")
            for r in range(16): e(f"v_exp_f32 v{T+r}, v{T+r}")
            for r in range(16): e(f"v_add_f32 v{T+r}, 1.0, v{T+r}")
            for r in range(16): e(f"v_rcp_f32 v{T+r}, v{T+r}")
            for r in range(16): e(f"v_mul_f32 v{V_AD+r}, v{V_AD+r}, v{T+r}")
            rnd(V_AD)
    for r in range(16): e(f"v_mul_f32 v{V_AS+r}, v{V_AS+r}, v{V_AD+r}")
    rnd(V_AS)
    e.need(vm=["X"])
    for j in range(8):
        e(f"v_lshlrev_b32 v{T+2*j}, 16, v{V_X+j}"); e(f"v_and_b32 v{T+2*j+1}, 0xffff0000, v{V_X+j}")
    for r in range(16): e(f"v_add_f32 v{V_AS+r}, v{V_AS+r}, v{T+r}")
    for j in range(8): e(f"v_cvt_pk_bf16_f32 v{64+j}, v{V_AS+2*j}, v{V_AS+2*j+1}")
    for mb in range(4):
        e.vmem(f"buffer_store_dwordx2 v[{64+2*mb}:{65+2*mb}], v{V_XO}, {srd(S_OUT)}, s{S_XO} offen offset:{mb*32}", "OUT")
    e("s_cmp_lg_u32 s2, 0")
    e("s_cbranch_scc1 L_nobump")
    signal(e, f"s_mov_b32 s{S_CNT}, {WS_EP}", 26)
    e.label("L_nobump")
    stamp(e, 13)

HEADER = open("cdna_kernels/" + NAME + ".s.ref").read().split("; Override launch geometry")[0]
def build():
    e = E(); body(e)
    n = chk.check(e.L, "all")
    a, b = e.loop
    n += chk.check(e.L[a:b] + e.L[a:b], "loop")
    if n: print(f"{n} hazards", file=sys.stderr)
    return "\n".join([HEADER.rstrip("\n"), "; @launch grid=(256,1,1) block=(256,1,1) lds=163840",
        '.amdgcn_target "amdgcn-amd-amdhsa--gfx950"\n.text', e.text(), '.section .rodata,"a"\n.p2align 6',
        f""".amdhsa_kernel {KN}
  .amdhsa_next_free_vgpr 512
  .amdhsa_next_free_sgpr 102
  .amdhsa_accum_offset 256
  .amdhsa_group_segment_fixed_size 0
  .amdhsa_kernarg_size 104
  .amdhsa_user_sgpr_count 2
  .amdhsa_user_sgpr_kernarg_segment_ptr 1
  .amdhsa_system_sgpr_workgroup_id_x 1
.end_amdhsa_kernel
"""])
if __name__ == "__main__":
    open(sys.argv[1], "w").write(build())
```

```python
import sys, math, os, struct
from emit import E, Filler
import check as chk

NAME = "recurrent_scan__compressed_kv_cla__glu_gated_geglu__prompt"
KN = NAME + "_kernel"
MB = 1 << 20
OPT = eval(os.environ.get("OPT", "{}"))
STAMPS = os.environ.get("STAMPS")
WS_XN, WS_H, WS_WDF, WS_WOF, WS_CTX, WS_K, WS_V, WS_END = 0, 2*MB, 9*MB, 12*MB, 16*MB, 32*MB, 48*MB, 64*MB
fb = lambda x: struct.unpack("<I", struct.pack("<f", x))[0]

S_X, S_CKV, S_WQ, S_WUK, S_WUV, S_WO, S_WG, S_WU, S_WD, S_OUT, S_DBG, S_WS = [8 + 4*i for i in range(12)]
S_HSRD, S_ASRD, S_BSRD = 56, 60, 64
S_WAVE, S_HEAD, S_BLK, S_ROT = 68, 69, 70, 71
S_T0, S_T1, S_T2, S_T3, S_T4, S_T5 = 72, 73, 74, 75, 76, 77
S_WL, S_WA = 78, 79
S_OFF0, S_OFFA, S_AROW, S_KVST, S_XNB, S_HST = 80, 81, 82, 83, 84, 85
S_CTXLO, S_CTXHI = 86, 87
S_SRCA, S_SRCB, S_LA, S_LB, S_VMAXB, S_VCLB = 88, 89, 90, 91, 92, 93
S_N, S_EVT, S_TRANS, S_N0 = 94, 95, 96, 97
S_QT, S_QTHI, S_RET, S_CNT = 98, 99, 100, 101
S_ROTB, S_DW, S_DH, S_DINC = 48, 49, 50, 51
S_GSRD = S_CKV
S_DSRD = S_HSRD
S_FL = 6
def srd(n): return f"s[{n}:{n+3}]"
def mf(d, a, b, c): return f"v_mfma_f32_16x16x32_bf16 {d}, {a}, {b}, {c}"
def vr(n, k=4): return f"v[{n}:{n+k-1}]"
def ar(n, k=4): return f"a[{n}:{n+k-1}]"

V_LANE, V_STAMP, V_L16 = 1, 2, 3
V_TR = (4, 5, 6, 7)
V_WOFF = (8, 9, 10, 11)
V_AOFF = (12, 13)
V_WOFG = (12, 13)
V_ARD = (14, 15)
V_TMP = list(range(16, 32))
V_POLL = 0
V_WF, V_PK, V_ACC = 32, 64, 128
def acc(db, rb): return V_ACC + (db*4 + rb)*4
def actf(ks, rb): return (ks*4 + rb)*4
V_RD = 4
V_TD, V_TN, V_LIM = 16, 20, 24
V_P, V_S, V_O = (32, 48), (64, 96), 128
A_Q, A_FB, A_DACC, A_L, A_ONE, A_DOP = 0, (64, 96), 128, 192, 208, 224
QSCALE = fb(math.log2(math.e) / math.sqrt(128.0))
NEGINF = 0xff800000
def Sreg(buf, kb2, qb): return V_S[buf] + (kb2*4 + qb)*4
def Preg(buf, qb): return V_P[buf] + qb*4
def Oreg(db, qb): return V_O + (db*4 + qb)*4
SC = " sc1"

def stamp(e, idx):
    if not STAMPS: return
    e(("s_memtime" if STAMPS == "2" else "s_memrealtime") + " s[4:5]")
    e.wait_all(vm=False)
    e(f"v_writelane_b32 v{V_STAMP}, s4, {idx}")
def stamp_flush(e):
    if not STAMPS: return
    if OPT.get("dbgst"):
        e(f"""s_load_dwordx2 s[8:9], s[0:1], 88
        s_mov_b32 s10, 256
        s_mov_b32 s11, 0x20000
        v_readlane_b32 s4, v{V_STAMP}, 0
        s_not_b32 s4, s4
        s_nop 3
        v_writelane_b32 v{V_STAMP}, s4, 14
        v_lshlrev_b32 v0, 2, v{V_LANE}
        v_cmp_gt_u32 vcc, 15, v{V_LANE}
        s_and_saveexec_b64 s[6:7], vcc
        s_waitcnt lgkmcnt(0)
        buffer_atomic_umax v{V_STAMP}, v0, s[8:11], 0 offen
        s_waitcnt vmcnt(0)""")
        return
    e(f"""s_lshl_b32 s4, s2, 2
    s_add_u32 s4, s4, s{S_WAVE}
    s_lshl_b32 s4, s4, 7
    s_add_u32 s4, s4, {64*MB}
    v_lshlrev_b32 v0, 2, v{V_LANE}
    v_cmp_gt_u32 vcc, 32, v{V_LANE}
    s_and_saveexec_b64 s[6:7], vcc
    buffer_store_dword v{V_STAMP}, v0, {srd(S_WS)}, s4 offen
    s_waitcnt vmcnt(0)""")

WS_EP = 11*MB
WS_FX, WS_FK, WS_FB, WS_FC = WS_EP + 4096, WS_EP + 8192, WS_EP + 12288, WS_EP + 16384
S_TAG = 3
def signal(e, soff_lines, tmp):
    e(soff_lines)
    e(f"""v_mov_b32 v{tmp}, s{S_TAG}
    v_add_u32 v{tmp+1}, s{S_WL}, v{V_LANE}
    v_min_u32 v{tmp+1}, 1, v{tmp+1}
    v_lshlrev_b32 v{tmp+1}, 30, v{tmp+1}""")
    e.vmem(f"buffer_store_dword v{tmp}, v{tmp+1}, {srd(S_WS)}, s{S_CNT} offen sc1", "SIG")
def sig_lin(base):
    return f"""s_lshr_b32 s{S_CNT}, s2, 3
    s_lshl_b32 s{S_CNT}, s{S_CNT}, 7
    s_and_b32 s{S_FL}, s2, 7
    s_lshl_b32 s{S_FL}, s{S_FL}, 2
    s_add_u32 s{S_CNT}, s{S_CNT}, s{S_FL}
    s_add_u32 s{S_CNT}, s{S_CNT}, {base}"""
SIG_KV = f"""s_and_b32 s{S_CNT}, s2, 31
    s_lshl_b32 s{S_CNT}, s{S_CNT}, 7
    s_lshl_b32 s{S_FL}, s{S_BLK}, 2
    s_add_u32 s{S_CNT}, s{S_CNT}, s{S_FL}
    s_add_u32 s{S_CNT}, s{S_CNT}, {WS_FK}"""
class Poll:
    def __init__(self, e, name, voff):
        self.e, self.name, self.voff = e, name, voff
    @property
    def ld(self): return f"buffer_load_dword v{V_POLL}, v{self.voff}, {srd(S_WS)}, 0 offen sc1"
    def issue(self): self.e.vmem(self.ld, ("POLL", self.name))
    def test(self): return f"v_cmp_eq_u32 vcc, s{S_TAG}, v{V_POLL}\ns_cmp_eq_u64 vcc, exec"
    def check(self):
        e = self.e
        e.need(vm=[("POLL", self.name)])
        e(self.test())
        e(f"s_cbranch_scc0 L_spin_{self.name}")
        e.label(f"L_ok_{self.name}")
    def spin(self):
        e = self.e
        e.label(f"L_spin_{self.name}")
        e(f"s_mov_b32 s{S_CNT}, 0x40000")
        e.label(f"L_spinl_{self.name}")
        e("s_sleep 2")
        e(self.ld)
        e("s_waitcnt vmcnt(0)")
        e(self.test())
        e(f"s_cbranch_scc1 L_ok_{self.name}")
        e(f"s_sub_u32 s{S_CNT}, s{S_CNT}, 1")
        e(f"s_cmp_lg_u32 s{S_CNT}, 0")
        e(f"s_cbranch_scc1 L_spinl_{self.name}")
        e(f"s_branch L_ok_{self.name}")
def poll32_addr(e, v, base):
    e(f"""s_lshr_b32 s{S_T0}, s{S_HEAD}, 1
    s_sub_u32 s{S_T1}, 15, s{S_T0}
    s_min_u32 s{S_T0}, s{S_T0}, s{S_T1}
    s_lshl_b32 s{S_T0}, s{S_T0}, 9
    s_add_u32 s{S_T0}, s{S_T0}, {base}
    v_bfe_u32 v{v}, v{V_LANE}, 3, 2
    v_lshlrev_b32 v{v}, 5, v{v}
    v_and_or_b32 v{v}, v{V_LANE}, 7, v{v}
    v_lshlrev_b32 v{v}, 2, v{v}
    v_add_u32 v{v}, s{S_T0}, v{v}""")

def kernel_head(e):
    e(f".globl {KN}\n.p2align 8\n.type {KN},@function")
    e.label(KN)
    e("s_cmp_ge_u32 s2, 256")
    e("s_cbranch_scc1 L_end")
    e("s_load_dwordx16 s[76:91], s[0:1], 0")
    e("s_load_dwordx8 s[92:99], s[0:1], 64")
    e("s_load_dwordx2 s[100:101], s[0:1], 96")
    if STAMPS: e(("s_memtime" if STAMPS == "2" else "s_memrealtime") + " s[4:5]")
    e(f"v_and_b32 v{V_LANE}, 63, v0")
    e("v_lshrrev_b32 v2, 6, v0")
    e(f"v_lshlrev_b32 v{V_L16}, 4, v{V_LANE}")
    e(f"v_readfirstlane_b32 s{S_WAVE}, v2")
    e(f"""s_and_b32 s{S_T0}, s2, 7
    s_lshl_b32 s{S_T0}, s{S_T0}, 2
    s_lshr_b32 s{S_T1}, s2, 3
    s_and_b32 s{S_T1}, s{S_T1}, 3
    s_add_u32 s{S_HEAD}, s{S_T0}, s{S_T1}
    s_lshr_b32 s{S_BLK}, s2, 5
    s_mul_i32 s{S_T0}, s{S_T1}, {OPT.get('rota', 4)}
    s_add_u32 s{S_ROT}, s{S_BLK}, s{S_T0}
    s_and_b32 s{S_ROT}, s{S_ROT}, 7
    s_mul_i32 s{S_T0}, s{S_T1}, {OPT.get('rotb', 0)}
    s_add_u32 s{S_ROTB}, s{S_BLK}, s{S_T0}
    s_and_b32 s{S_ROTB}, s{S_ROTB}, 3""")
    if STAMPS: e("v_mov_b32 v2, -1")
    setup_addrs(e)
    e("s_waitcnt lgkmcnt(0)")
    if STAMPS: e("v_writelane_b32 v2, s4, 0")
    if OPT.get("wsoff"): e(f"s_add_u32 s100, s100, {OPT['wsoff']*MB}\ns_addc_u32 s101, s101, 0")
    sizes = {S_X: (76, 2*MB), S_CKV: (78, 2*MB), S_WUK: (82, 4*MB), S_WS: (100, 65*MB if STAMPS else WS_END), S_WQ: (80, 4*MB), S_WUV: (84, 4*MB), S_WO: (86, 4*MB),
             S_WG: (90, 512*3584), S_WU: (92, 512*3584), S_WD: (94, 1792*1024), S_OUT: (96, 2*MB),
             S_HSRD: (100, WS_END), S_ASRD: (100, WS_END), S_BSRD: (100, WS_END)}
    for s, (p, n) in sizes.items():
        e(f"s_mov_b64 s[{s}:{s+1}], s[{p}:{p+1}]\ns_mov_b32 s{s+2}, {n}\ns_mov_b32 s{s+3}, 0x20000")
        if s == S_X:
            e(f"s_lshl_b32 s{S_T0}, s2, 13\ns_lshl_b32 s{S_T1}, s{S_WAVE}, 11\ns_add_u32 s{S_T0}, s{S_T0}, s{S_T1}")
            e.vmem(f"buffer_load_dwordx4 v[64:67], v{V_L16}, {srd(S_X)}, s{S_T0} offen", "X")
            e.vmem(f"buffer_load_dwordx4 v[68:71], v{V_L16}, {srd(S_X)}, s{S_T0} offen offset:1024", "X")
    e(f"s_add_u32 s{S_FL}, s100, {WS_EP}\ns_addc_u32 s{S_FL+1}, s101, 0\ns_load_dword s{S_TAG}, s[{S_FL}:{S_FL+1}], 0")
    e(f"""s_lshl_b32 s{S_WL}, s{S_WAVE}, 10
    s_lshl_b32 s{S_WA}, s{S_WAVE}, 13
    s_add_u32 s{S_WA}, s{S_WA}, 65536
    v_add_u32 v{V_ARD[0]}, s{S_WA}, v{V_ARD[0]}
    v_xor_b32 v{V_ARD[1]}, 64, v{V_ARD[0]}""")

V_KPERM = 31
V_UOFF = 30
def setup_addrs(e):
    t0, t1, t2, t3, t4 = V_TMP[:5]
    e(f"""v_lshrrev_b32 v{t0}, 2, v{V_LANE}
    v_lshlrev_b32 v{t0}, 7, v{t0}
    v_and_b32 v{t1}, 3, v{V_LANE}
    v_lshlrev_b32 v{t1}, 3, v{t1}
    v_add_u32 v{t0}, v{t0}, v{t1}
    v_bfe_u32 v{t1}, v{V_LANE}, 3, 2
    v_lshlrev_b32 v{t1}, 5, v{t1}
    v_add_u32 v{V_TR[0]}, v{t0}, v{t1}""")
    for c in (1, 2, 3): e(f"v_xor_b32 v{V_TR[c]}, {c*32}, v{V_TR[0]}")
    e(f"""v_lshrrev_b32 v{t0}, 3, v{V_LANE}
    v_and_b32 v{t1}, 7, v{V_LANE}
    v_and_b32 v{t2}, 6, v{t0}
    v_xor_b32 v{t1}, v{t1}, v{t2}
    v_lshlrev_b32 v{V_UOFF}, 4, v{t1}
    s_lshl_b32 s{S_T0}, s{S_WAVE}, 3
    v_add_u32 v{t2}, s{S_T0}, v{t0}
    v_bfe_u32 v{t3}, v{t2}, 2, 2
    v_lshlrev_b32 v{t3}, 3, v{t3}
    v_lshrrev_b32 v{t4}, 4, v{t2}
    v_lshl_add_u32 v{t3}, v{t4}, 2, v{t3}
    v_and_b32 v{t4}, 3, v{t2}
    v_add_u32 v{V_KPERM}, v{t3}, v{t4}
    v_lshl_add_u32 v{V_WOFF[0]}, v{V_KPERM}, 13, v{V_UOFF}
    v_add_u32 v{V_WOFF[1]}, 128, v{V_WOFF[0]}
    v_add_u32 v{V_WOFF[2]}, {32*8192}, v{V_WOFF[0]}
    v_add_u32 v{V_WOFF[3]}, {32*8192 + 128}, v{V_WOFF[0]}
    v_and_b32 v{t1}, 7, v{V_LANE}
    v_lshrrev_b32 v{t2}, 1, v{t0}
    v_xor_b32 v{t1}, v{t1}, v{t2}
    v_lshlrev_b32 v{t1}, 4, v{t1}
    v_lshl_add_u32 v{V_AOFF[0]}, v{t0}, 10, v{t1}
    v_xor_b32 v{V_AOFF[1]}, 64, v{V_AOFF[0]}
    v_add_u32 v{V_AOFF[1]}, 8192, v{V_AOFF[1]}
    v_and_b32 v{t0}, 15, v{V_LANE}
    v_lshrrev_b32 v{t1}, 4, v{V_LANE}
    v_lshrrev_b32 v{t2}, 1, v{t0}
    v_xor_b32 v{t1}, v{t1}, v{t2}
    v_lshlrev_b32 v{t1}, 4, v{t1}
    v_lshl_add_u32 v{V_ARD[0]}, v{t0}, 7, v{t1}""")

def scalar_setup(e):
    i, h, w = S_BLK, S_HEAD, S_WAVE
    e(f"""s_lshl_b32 s{S_T0}, s{i}, 2
    s_add_u32 s{S_T0}, s{S_T0}, s{w}
    s_lshl_b32 s{S_AROW}, s{S_T0}, 16
    s_lshl_b32 s{S_KVST}, s{h}, 19
    s_lshl_b32 s{S_T0}, s{S_T0}, 14
    s_add_u32 s{S_KVST}, s{S_KVST}, s{S_T0}""")
def scalar_setup2(e):
    i, h, w = S_BLK, S_HEAD, S_WAVE
    a, b, c, d = S_N, S_EVT, S_TRANS, S_RET
    return f"""s_sub_u32 s{a}, 15, s{i}
    s_cmp_lt_u32 s{w}, 2 ! s_cselect_b32 s{b}, s{a}, s{i}
    s_lshl_b32 s{b}, s{b}, 1
    s_and_b32 s{c}, s{w}, 1
    s_add_u32 s{S_QT}, s{b}, s{c}
    s_lshl_b32 s{S_XNB}, s{S_QT}, 16
    s_mul_i32 s{S_HST}, s{S_QT}, {56*4096}
    s_lshl_b32 s{d}, s{h}, 13
    s_add_u32 s{S_HST}, s{S_HST}, s{d}
    s_add_u32 s{S_HST}, s{S_HST}, {WS_H}
    s_lshl_b32 s{d}, s{h}, 14
    s_add_u32 s{d}, s{d}, {WS_CTX}
    s_lshl_b32 s{S_CTXLO}, s{S_QT}, 19
    s_add_u32 s{S_CTXLO}, s{S_CTXLO}, s{d}
    s_lshr_b32 s{b}, s{w}, 1
    s_xor_b32 s{b}, s{b}, s{w}
    s_and_b32 s{b}, s{b}, 1
    s_lshl_b32 s{a}, s{a}, 1
    s_add_u32 s{S_QTHI}, s{a}, s{b}
    s_lshl_b32 s{S_CTXHI}, s{S_QTHI}, 19
    s_add_u32 s{S_CTXHI}, s{S_CTXHI}, s{d}
    s_cmp_lt_u32 s{h}, 28 ! s_cselect_b32 s{S_WG+2}, {512*3584}, 0
    s_mov_b32 s{S_WU+2}, s{S_WG+2}
    s_cmp_lt_u32 s{h}, 28 ! s_cselect_b32 s{S_HSRD+2}, {WS_END}, 0
    s_lshl_b32 s{a}, s{h}, 19
    s_mov_b32 s{b}, {WS_V}
    s_cmp_lt_u32 s{w}, 2 ! s_cselect_b32 s{b}, {WS_K}, s{b}
    s_add_u32 s{b}, s{b}, s{a}
    s_add_u32 s{S_VCLB}, s{b}, {63*8192}
    s_cmp_eq_u32 s{w}, 1 ! s_cselect_b32 s{a}, 8192, 0
    s_add_u32 s{S_SRCA}, s{b}, s{a}
    s_cmp_eq_u32 s{w}, 2 ! s_cselect_b32 s{a}, {3*8192}, s{a}
    s_add_u32 s{S_VMAXB}, s{b}, s{a}
    s_add_u32 s{S_VMAXB}, s{S_VMAXB}, {64*8192}
    s_min_u32 s{S_SRCB}, s{S_VMAXB}, s{S_VCLB}
    s_lshl_b32 s{S_LB}, s{w}, 13
    s_add_u32 s{S_LA}, s{S_LB}, 65536
    s_xor_b32 s{S_LB}, s{S_LB}, 32768
    s_lshl_b32 s{S_N0}, s{i}, 1
    s_add_u32 s{S_N0}, s{S_N0}, 2
    s_mul_i32 s{a}, s{w}, {14*4096}
    s_mul_i32 s{S_DH}, s{h}, {56*4096}
    s_add_u32 s{S_DH}, s{S_DH}, s{a}
    s_add_u32 s{S_DH}, s{S_DH}, {WS_H}
    s_mul_i32 s{S_DW}, s{i}, {56*4096}
    s_add_u32 s{S_DW}, s{S_DW}, s{a}
    s_add_u32 s{S_DW}, s{S_DW}, {WS_WDF}
    s_mov_b32 s{S_DINC}, 0""".split("\n")

def layernorm_lines():
    L = []; e = L.append
    X = (72, 80); SUM = (88, 89); TMP = (90, 91); MEAN = (92, 93); VAR = (94, 95)
    SS = (S_T0, S_T1)
    for r in range(2):
        for j in range(4):
            e(f"v_lshlrev_b32 v{X[r]+2*j}, 16, v{64+4*r+j}")
            e(f"v_and_b32 v{X[r]+2*j+1}, 0xffff0000, v{64+4*r+j}")
    def reduce():
        for mod in ("quad_perm:[1,0,3,2] row_mask:0xf bank_mask:0xf", "quad_perm:[2,3,0,1] row_mask:0xf bank_mask:0xf",
                    "row_half_mirror row_mask:0xf bank_mask:0xf", "row_mirror row_mask:0xf bank_mask:0xf",
                    "row_bcast:15 row_mask:0xa bank_mask:0xf", "row_bcast:31 row_mask:0xc bank_mask:0xf"):
            e("s_nop 0")
            for r in range(2): e(f"v_add_f32_dpp v{SUM[r]}, v{SUM[r]}, v{SUM[r]} {mod}")
        e("s_nop 0")
        for r in range(2): e(f"v_readlane_b32 s{SS[r]}, v{SUM[r]}, 63")
        e("s_nop 1")
    for r in range(2): e(f"v_add_f32 v{SUM[r]}, v{X[r]}, v{X[r]+1}")
    for j in range(2, 8):
        for r in range(2): e(f"v_add_f32 v{SUM[r]}, v{SUM[r]}, v{X[r]+j}")
    reduce()
    for r in range(2): e(f"v_mov_b32 v{MEAN[r]}, s{SS[r]}")
    for r in range(2): e(f"v_mul_f32 v{MEAN[r]}, 0x3b000000, v{MEAN[r]}")
    for j in range(8):
        for r in range(2): e(f"v_sub_f32 v{TMP[r]}, v{X[r]+j}, v{MEAN[r]}")
        for r in range(2): e(f"v_mul_f32 v{SUM[r]}, v{TMP[r]}, v{TMP[r]}" if j == 0 else f"v_fmac_f32 v{SUM[r]}, v{TMP[r]}, v{TMP[r]}")
    reduce()
    def both(fmt):
        for r in range(2): e(fmt.format(v=VAR[r], m=MEAN[r], s=SS[r]))
    def rnd(x):
        both("v_cvt_pk_bf16_f32 v{%s}, v{%s}, v{%s}" % (x, x, x)); both("v_lshlrev_b32 v{%s}, 16, v{%s}" % (x, x))
    both("v_mov_b32 v{v}, s{s}"); both("v_mul_f32 v{v}, 0x3b000000, v{v}")
    rnd("v"); both("v_add_f32 v{v}, 0x3727c5ac, v{v}"); rnd("v")
    both("v_sqrt_f32 v{v}, v{v}"); rnd("m"); rnd("v"); both("v_rcp_f32 v{v}, v{v}")
    for r in range(2):
        for j in range(8): e(f"v_sub_f32 v{X[r]+j}, v{X[r]+j}, v{MEAN[r]}")
        for j in range(4): e(f"v_cvt_pk_bf16_f32 v{64+4*r+j}, v{X[r]+2*j}, v{X[r]+2*j+1}")
        for j in range(4):
            e(f"v_lshlrev_b32 v{X[r]+2*j}, 16, v{64+4*r+j}")
            e(f"v_and_b32 v{X[r]+2*j+1}, 0xffff0000, v{64+4*r+j}")
        for j in range(8): e(f"v_mul_f32 v{X[r]+j}, v{X[r]+j}, v{VAR[r]}")
        for j in range(4): e(f"v_cvt_pk_bf16_f32 v{64+4*r+j}, v{X[r]+2*j}, v{X[r]+2*j+1}")
    return L

class MemQ:
    def __init__(self, e): self.e = e; self.items = []
    def add(self, kind, lo, hi, *a): self.items.append([kind, lo, hi, a])
    def fillers(self):
        e = self.e; out = []
        dm = [k for k, it in enumerate(self.items) if it[0] == 'd']
        nxt = {dm[j]: dm[j+1] for j in range(len(dm) - 1)}
        self.first_m0 = self.items[dm[0]][3][0]
        for k, (kind, lo, hi, a) in enumerate(self.items):
            if kind == 's': out.append(Filler(lambda a=a: e(a[0].replace(" ! ", "\n")), 4, "salu", lo, hi))
            elif kind == 'l': out.append(Filler(lambda a=a: e.vmem(a[0], a[1]), 4, "mem", lo, hi))
            elif kind == 'f': out.append(Filler(a[0], a[1], a[2], lo, hi))
            else:
                def fn(k=k, a=a):
                    if len(a) > 3: e.need(lg=a[3])
                    e.vmem(a[1], a[2])
                    if k in nxt: e(self.items[nxt[k]][3][0])
                out.append(Filler(fn, 8, "mem", lo, hi))
        return out


def body(e):
    i, h, w = S_BLK, S_HEAD, S_WAVE
    kernel_head(e)
    scalar_setup(e)
    NS = 32; BAR = 42; INF = 10**9; P = -10**6
    mq = MemQ(e)
    def S(lo, hi, *lines):
        for t in lines: mq.add('s', lo, hi, t)
    def VV(lo, hi, *lines):
        for t in lines: mq.add('f', lo, hi, lambda t=t: e(t), 4, "valu")
    V_GOFF, V_TRG = V_AOFF[0], V_ARD
    def w_stage(gs, lo, step, hi):
        slot = gs % 4
        if gs < 16:
            s = gs % 8
            if s == 0: S(lo - 8, hi, f"s_lshl_b32 s{S_OFF0}, s{S_ROT}, 19", f"s_lshl_b32 s{S_T5}, s{h}, 8", f"s_add_u32 s{S_OFF0}, s{S_OFF0}, s{S_T5}")
            else: S(lo - 8, hi, f"s_add_u32 s{S_OFF0}, s{S_OFF0}, {1<<19}", f"s_and_b32 s{S_OFF0}, s{S_OFF0}, {4*MB-1}")
            for n in range(4):
                mq.add('d', lo + step*n, hi, f"s_add_u32 m0, s{S_WL}, {slot*16384 + n*4096}",
                       f"buffer_load_dwordx4 v{V_WOFF[n]}, {srd(S_WUK if gs < 8 else S_WUV)}, s{S_OFF0} offen lds", ("W", gs))
        else:
            s = gs % 4; hf = (gs // 4) % 2; isg = gs < 24
            pitch = 3584 if isg else 8192
            S(lo - 10, hi, f"s_add_u32 s{S_OFF0}, s{S_ROTB}, {s}", f"s_and_b32 s{S_OFF0}, s{S_OFF0}, 3", f"s_mul_i32 s{S_OFF0}, s{S_OFF0}, {128*pitch}",
              f"s_lshl_b32 s{S_T5}, s{h}, {7 if isg else 8}", f"s_add_u32 s{S_OFF0}, s{S_OFF0}, s{S_T5}")
            if hf: S(lo - 10, hi, f"s_add_u32 s{S_OFF0}, s{S_OFF0}, {64 if isg else 128}")
            for n in range(4):
                if n: S(lo + step*n - 2, hi, f"s_add_u32 s{S_OFF0}, s{S_OFF0}, {32*pitch}")
                mq.add('d', lo + step*n, hi, f"s_add_u32 m0, s{S_WL}, {slot*16384 + n*4096}",
                       f"buffer_load_dwordx4 v{V_GOFF if isg else V_WOFF[0]}, {srd(S_GSRD if isg else S_WQ)}, s{S_OFF0} offen lds", ("W", gs))
    def a_stage(s, lo, step, hi):
        S(lo - 6, hi, f"s_add_u32 s{S_OFFA}, s{S_ROT}, {s}", f"s_and_b32 s{S_OFFA}, s{S_OFFA}, 7", f"s_lshl_b32 s{S_OFFA}, s{S_OFFA}, 7", f"s_add_u32 s{S_OFFA}, s{S_OFFA}, s{S_AROW}")
        for q in range(8):
            if q and q % 2 == 0: S(lo + step*q - 2, hi, f"s_add_u32 s{S_OFFA}, s{S_OFFA}, 16384")
            mq.add('d', lo + step*q, hi, f"s_add_u32 m0, s{S_WA}, {(s % 2)*32768 + q*1024}",
                   f"buffer_load_dwordx4 v{V_AOFF[q & 1]}, {srd(S_CKV)}, s{S_OFFA} offen lds", ("A", s), [("AF", s-2, 0), ("AF", s-2, 1)])
    def xn_stage(s, lo, step, hi):
        if s % 2 == 0: S(lo - 6, hi, f"s_add_u32 s{S_OFFA}, s{S_ROTB}, {s//2}", f"s_and_b32 s{S_OFFA}, s{S_OFFA}, 3", f"s_lshl_b32 s{S_OFFA}, s{S_OFFA}, 14", f"s_add_u32 s{S_OFFA}, s{S_OFFA}, s{S_XNB}")
        for ksub in range(2):
            if ksub or s % 2: S(lo + step*4*ksub - 2, hi, f"s_add_u32 s{S_OFFA}, s{S_OFFA}, 4096")
            for rb in range(4):
                mq.add('l', lo + step*(ksub*4 + rb), hi, f"buffer_load_dwordx4 {ar(actf(2*s+ksub, rb))}, v{V_L16}, {srd(S_WS)}, s{S_OFFA} offen offset:{rb*1024}{SC}", ("XN", 2*s+ksub))
    V_PO = V_TMP[13]
    poll_xn = Poll(e, "xn", V_PO); poll_kv = Poll(e, "kv", V_PO); poll_b = Poll(e, "b", V_TMP[15]); poll_c = Poll(e, "c", V_TMP[15])
    V_RT = V_TMP[8]; V_RTA = V_TMP[9:13]; V_PFD = V_TMP[1]
    RTL, RTS, RG = OPT.get("rtl", 17), OPT.get("rts", 19), OPT.get("rtgap", 24)
    S_RL = S_RET
    PRO = OPT.get("pro", 1)
    w_stage(0, P, 0, INF); a_stage(0, P, 0, INF)
    n_pro0 = len(mq.items)
    S(P, INF, f"s_lshl_b32 s{S_T2}, s2, 2", f"s_add_u32 s{S_T2}, s{S_T2}, s{w}", f"s_lshr_b32 s{S_T3}, s{S_T2}, 3", f"s_and_b32 s{S_T4}, s{S_T2}, 7",
      f"s_cmp_lt_u32 s{S_T2}, 448 ! s_cselect_b32 s{S_WD+2}, {1792*1024}, 0", f"s_cmp_lt_u32 s{S_T2}, 448 ! s_cselect_b32 s{S_BSRD+2}, {WS_END}, 0")
    VV(P, INF, f"v_lshrrev_b32 v{V_RT}, 3, v{V_LANE}", f"v_lshl_add_u32 v{V_RT}, v{V_RT}, 10, v{V_UOFF}")
    w_stage(1, P, 0, INF)
    if PRO >= 2: a_stage(1, P, 0, INF)
    if PRO >= 3: w_stage(2, P, 0, INF)
    n_pro1 = len(mq.items)
    if PRO < 2: a_stage(1, 0, 1, 30)
    if PRO < 3: w_stage(2, 10, 1, 36)
    def rt_loads(E0, half):
        for q in range(2*half, 2*half + 2):
            S(E0, INF, f"s_add_u32 s{S_RL}, s{S_RL}, 8192" if q else f"s_lshl_b32 s{S_RL}, s{S_T4}, 7 ! s_lshl_b32 s{S_T5}, s{S_T3}, 3 ! s_add_u32 s{S_RL}, s{S_RL}, s{S_T5}")
            for t, sr in enumerate((S_WO, S_WD)):
                mq.add('d', E0 + ((4 + 14*(q % 2) + 7*t) if RTL > 5 else 36), E0 + (33 if RTL > 5 else 60), f"s_add_u32 m0, s{S_WA}, {65536 + t*4096 + q*1024}", f"buffer_load_dwordx4 v{V_RT}, {srd(sr)}, s{S_RL} offen lds", "RT")
    for gs in range(NS):
        b = gs * 64
        if gs + 2 < 8: a_stage(gs + 2, b + (6 if gs or PRO >= 3 else 22), (4 if gs or PRO >= 3 else 2), b + 41)
        if gs == 6:
            S(b - 8, INF, f"s_lshl_b32 s{S_T1}, s{i}, 6", f"s_lshl_b32 s{S_T0}, s{w}, 4", f"s_add_u32 s{S_T1}, s{S_T1}, s{S_T0}", f"s_mul_i32 s{S_T0}, s{S_T1}, 3584",
              f"s_lshl_b32 s{S_T5}, s{h}, 7", f"s_add_u32 s{S_T0}, s{S_T0}, s{S_T5}")
            VV(b - 8, INF, f"v_lshrrev_b32 v{V_TMP[0]}, 2, v{V_LANE}", f"v_and_b32 v{V_PO}, 1, v{V_LANE}", f"v_lshlrev_b32 v{V_PO}, 6, v{V_PO}",
               f"v_mul_u32_u24 v{V_TMP[0]}, 3584, v{V_TMP[0]}", f"v_add_u32 v{V_TMP[0]}, v{V_TMP[0]}, v{V_PO}")
        if gs == 6 and OPT.get("pfq"):
            S(b, INF, f"s_lshl_b32 s{S_T1}, s{S_T1}, 13", f"s_lshl_b32 s{S_T5}, s{h}, 8", f"s_add_u32 s{S_T1}, s{S_T1}, s{S_T5}")
            VV(b, INF, f"v_lshrrev_b32 v{V_TMP[5]}, 2, v{V_LANE}", f"v_and_b32 v{V_PO}, 3, v{V_LANE}", f"v_lshlrev_b32 v{V_PO}, 6, v{V_PO}", f"v_lshl_add_u32 v{V_TMP[5]}, v{V_TMP[5]}, 13, v{V_PO}")
        if gs == OPT.get("pfq"): mq.add('l', b + 20, b + 41, f"buffer_load_dword v{V_PFD}, v{V_TMP[5]}, {srd(S_WQ)}, s{S_T1} offen", "PF")
        if gs in (7, 8): mq.add('l', b + 8, b + 41, f"buffer_load_dword v{V_PFD}, v{V_TMP[0]}, {srd((S_WG, S_WU)[gs - 7])}, s{S_T0} offen", "PF")
        if gs == 8:
            t0, t1 = V_TMP[2:4]
            S(b + 4, b + 30, f"s_lshl_b32 s{S_T5}, s{S_QT}, 7", f"s_add_u32 s{S_T5}, s{S_T5}, {WS_FX}")
            VV(b + 4, b + 30, f"v_and_b32 v{V_PO}, 7, v{V_LANE}", f"v_lshlrev_b32 v{V_PO}, 2, v{V_PO}", f"v_add_u32 v{V_PO}, s{S_T5}, v{V_PO}")
            mq.add('f', b + 28, b + 36, poll_xn.issue, 4, "mem")
        if gs == 9: mq.add('f', b + 2, b + 6, poll_xn.check, 8, "valu")
        if 9 <= gs <= 16: xn_stage(gs - 9, b + 8, 4, b + 41)
        if gs == 10:
            t0, t1 = V_TMP[2:4]
            S(b + 20, INF, f"s_cmp_lt_u32 s{w}, 2 ! s_cselect_b64 s[{S_GSRD}:{S_GSRD+1}], s[{S_WG}:{S_WG+1}], s[{S_WU}:{S_WU+1}]", f"s_mov_b32 s{S_GSRD+2}, s{S_WG+2}",
              f"s_and_b32 s{S_T5}, s{w}, 1", f"s_lshl_b32 s{S_T5}, s{S_T5}, 2")
            VV(b + 20, INF, f"v_lshrrev_b32 v{t0}, 4, v{V_LANE}", f"v_lshlrev_b32 v{t0}, 3, v{t0}", f"v_bfe_u32 v{t1}, v{V_LANE}, 2, 2", f"v_add3_u32 v{t0}, v{t0}, v{t1}, s{S_T5}",
               f"v_mul_u32_u24 v{t0}, 3584, v{t0}", f"v_bfe_u32 v{t1}, v{V_LANE}, 4, 1", f"v_lshlrev_b32 v{t1}, 5, v{t1}", f"v_and_b32 v{V_GOFF}, 3, v{V_LANE}",
               f"v_lshlrev_b32 v{V_GOFF}, 4, v{V_GOFF}", f"v_xor_b32 v{V_GOFF}, v{V_GOFF}, v{t1}", f"v_add_u32 v{V_GOFF}, v{V_GOFF}, v{t0}",
               f"v_lshrrev_b32 v{t0}, 2, v{V_LANE}", f"v_lshlrev_b32 v{t0}, 6, v{t0}", f"v_add_u32 v{t0}, v{t0}, v{t1}", f"v_and_b32 v{t1}, 3, v{V_LANE}",
               f"v_lshl_add_u32 v{V_TRG[0]}, v{t1}, 3, v{t0}", f"v_xor_b32 v{V_TRG[1]}, 32, v{V_TRG[0]}")
        if gs in (RTL, RTL + 1): rt_loads(b, gs - RTL)
        if gs == 27:
            S(b + 4, b + 30, f"s_and_b32 s{S_T5}, s2, 31", f"s_lshl_b32 s{S_T5}, s{S_T5}, 7", f"s_add_u32 s{S_T5}, s{S_T5}, {WS_FK}")
            VV(b + 4, b + 30, f"v_and_b32 v{V_PO}, 7, v{V_LANE}", f"v_lshlrev_b32 v{V_PO}, 2, v{V_PO}", f"v_add_u32 v{V_PO}, s{S_T5}, v{V_PO}")
        if gs == 28: mq.add('f', b + 26, b + 33, poll_kv.issue, 4, "mem")
        if gs + 3 < NS: w_stage(gs + 3, b + 44, 4, b + 64 + 5)
    b = 29*64
    mq.add('f', b + 8, b + 12, poll_kv.check, 8, "valu")
    for st in range(2):
        for j in range(8):
            if j == 4: S(b, INF, f"s_add_u32 s{S_T4}, s{S_SRCA}, 4096")
            mq.add('d', b + 14 + st*64 + 6*j, INF, f"s_add_u32 m0, s{S_LA}, {st*32768 + (j//4)*4096}",
                   f"buffer_load_dwordx4 v{V_L16}, {srd(S_ASRD)}, s{S_T4 if j >= 4 else S_SRCA} offen offset:{(j%4)*1024}{SC} lds", ("KV", st))
        if st == 0: S(b, INF, f"s_cmp_eq_u32 s{w}, 2 ! s_cselect_b32 s{S_T4}, 1, 2", f"s_lshl_b32 s{S_T4}, s{S_T4}, 13", f"s_add_u32 s{S_SRCA}, s{S_SRCA}, s{S_T4}")
        else: S(b, INF, f"s_add_u32 s{S_SRCA}, s{S_SRCA}, 16384")
    mfill = mq.fillers()
    e(mq.first_m0)
    for f in mfill[:n_pro0]:
        f.fn()
        if f.cost == 8: e("s_nop 0")
    if OPT.get("pfcode", 1):
        e(f"""s_getpc_b64 s[4:5]
        s_lshr_b32 s{S_T0}, s2, 3
        s_lshl_b32 s{S_T0}, s{S_T0}, 2
        s_add_u32 s{S_T0}, s{S_T0}, s{w}
        s_lshl_b32 s{S_T0}, s{S_T0}, 9
        v_and_b32 v{V_TMP[0]}, 7, v{V_LANE}
        v_lshlrev_b32 v{V_TMP[0]}, 6, v{V_TMP[0]}
        v_add_u32 v{V_TMP[0]}, s{S_T0}, v{V_TMP[0]}
        v_min_u32 v{V_TMP[0]}, L_end-L_pcref, v{V_TMP[0]}""")
        e.label("L_pcref")
        e.vmem(f"global_load_dword v{V_TMP[1]}, v{V_TMP[0]}, s[4:5]", "PF")
    if OPT.get("tlb", 1):
        a, b, c = S_N, S_EVT, S_TRANS
        e(f"""s_lshr_b32 s{a}, s2, 3
        s_and_b32 s{b}, s{a}, 7
        s_add_u32 s{b}, s{b}, 2
        s_cmp_eq_u32 s{w}, 2
        s_cselect_b32 s{b}, 10, s{b}
        s_and_b32 s{c}, s{w}, 1
        s_lshr_b32 s{S_T0}, s{w}, 1
        s_cmp_eq_u32 s{c}, s{S_T0}
        s_cselect_b32 s{b}, 12, s{b}
        s_lshl_b32 s{S_T1}, s{b}, 3
        s_load_dwordx2 s[{S_ASRD}:{S_ASRD+1}], s[0:1], s{S_T1}
        s_cmp_lt_u32 s{b}, 6
        s_mov_b32 s{S_ASRD+2}, {1792*1024}
        s_cselect_b32 s{S_ASRD+2}, {4*MB}, s{S_ASRD+2}
        s_lshr_b32 s{S_T1}, s{a}, 3
        s_lshl_b32 s{a}, s{a}, 1
        s_add_u32 s{a}, s{a}, s{c}
        s_cmp_eq_u32 s{b}, 12
        s_cselect_b32 s{S_ASRD+2}, {WS_END}, s{S_ASRD+2}
        s_cselect_b32 s{a}, s{a}, s{S_T1}
        s_lshl_b32 s{a}, s{a}, 20
        v_mov_b32 v{V_TMP[5]}, s{a}
        s_waitcnt lgkmcnt(0)""")
        e.vmem(f"buffer_load_dword v{V_TMP[1]}, v{V_TMP[5]}, {srd(S_ASRD)}, 0 offen sc1", "PF")
        e(f"s_mov_b64 s[{S_ASRD}:{S_ASRD+1}], s[{S_WS}:{S_WS+1}]\ns_mov_b32 s{S_ASRD+2}, {WS_END}")
    e.need(vm=["X"])
    ln = layernorm_lines()
    rest = mfill[n_pro0:n_pro1]
    per = len(ln) // (sum(f.cost == 8 for f in rest) + 1) + 1
    while ln or rest:
        for t in ln[:per]: e(t)
        ln = ln[per:]
        while rest:
            f = rest.pop(0); f.fn()
            if f.cost == 8: break
    mfill = mfill[n_pro1:]
    t0, t1, t2 = V_TMP[2:5]
    e(f"""s_lshl_b32 s{S_T0}, s{w}, 5
    s_add_u32 s{S_T0}, s{S_T0}, 49152
    v_lshlrev_b32 v{t0}, 7, v{V_LANE}
    v_add_u32 v{t0}, s{S_T0}, v{t0}""")
    e.ds(f"ds_write_b128 v{t0}, v[64:67]"); e.ds(f"ds_write_b128 v{t0}, v[68:71] offset:16")
    e(f"""s_lshl_b32 s{S_T0}, s{w}, 11
    s_add_u32 s{S_T0}, s{S_T0}, 49152
    v_add_u32 v{t0}, s{S_T0}, v{V_L16}
    v_lshrrev_b32 v{t1}, 5, v{V_LANE}
    v_lshlrev_b32 v{t1}, 12, v{t1}
    v_bfe_u32 v{t2}, v{V_LANE}, 3, 2
    v_lshl_add_u32 v{t1}, v{t2}, 8, v{t1}
    v_and_b32 v{t2}, 7, v{V_LANE}
    v_lshl_add_u32 v{t1}, v{t2}, 4, v{t1}
    s_lshr_b32 s{S_T0}, s2, 3
    s_lshl_b32 s{S_T0}, s{S_T0}, 16
    s_bfe_u32 s{S_T1}, s2, 0x20001
    s_lshl_b32 s{S_T1}, s{S_T1}, 10
    s_add_u32 s{S_T0}, s{S_T0}, s{S_T1}
    s_and_b32 s{S_T1}, s2, 1
    s_lshl_b32 s{S_T1}, s{S_T1}, 7
    s_add_u32 s{S_T0}, s{S_T0}, s{S_T1}
    s_lshl_b32 s{S_T1}, s{w}, 14
    s_add_u32 s{S_T0}, s{S_T0}, s{S_T1}
    s_add_u32 s{S_T1}, s{S_T0}, 8192""")
    misc = []
    misc.append(Filler(lambda: (e.ds(f"ds_read_b128 v[64:67], v{t0}", "LN"), e.ds(f"ds_read_b128 v[68:71], v{t0} offset:1024", "LN")), 8, "mem", 2, 30))
    misc.append(Filler(lambda: (e.need(lg=["LN"]), e.vmem(f"buffer_store_dwordx4 v[64:67], v{t1}, {srd(S_WS)}, s{S_T0} offen{SC}", "XNST")), 8, "mem", 14, 40))
    misc.append(Filler(lambda: e.vmem(f"buffer_store_dwordx4 v[68:71], v{t1}, {srd(S_WS)}, s{S_T1} offen{SC}", "XNST"), 8, "mem", 16, 41))
    for t in scalar_setup2(e): misc.append(Filler(lambda t=t: e(t.replace(" ! ", "\n")), 4, "salu", 44, 150))
    S_RA, S_RB = S_N, S_EVT
    rts = [Filler(lambda: e(f"s_add_u32 s{S_RA}, s{S_WA}, 65536"), 4, "salu", 150)]
    for c in range(4): rts.append(Filler(lambda c=c: e(f"v_add_u32 v{V_RTA[c]}, s{S_RA}, v{V_TR[c]}"), 4, "valu", 150))
    for t in (f"s_lshl_b32 s{S_RA}, s{S_T4}, 19", f"s_lshl_b32 s{S_T3}, s{S_T3}, 12", f"s_add_u32 s{S_RA}, s{S_RA}, s{S_T3}", f"s_add_u32 s{S_RA}, s{S_RA}, {WS_WOF}",
              f"s_mul_i32 s{S_RB}, s{S_T4}, {56*4096}", f"s_add_u32 s{S_RB}, s{S_RB}, s{S_T3}", f"s_add_u32 s{S_RB}, s{S_RB}, {WS_WDF}"):
        rts.append(Filler(lambda t=t: e(t), 4, "salu", 150, 185))
    SIGKV = OPT.get("sigkv", 25)
    for n in range(8):
        t, c = n // 4, n % 4
        d0 = V_PK + (n % 2)*4
        def fr(t=t, c=c, d0=d0, n=n):
            e.need(vm=["RT"])
            for rr in range(2): e.ds(f"ds_read_b64_tr_b16 v[{d0+rr*2}:{d0+rr*2+1}], v{V_RTA[c]} offset:{t*4096 + rr*2048}", ("RTF", n))
        def fs(t=t, c=c, d0=d0, n=n):
            e.need(lg=[("RTF", n)])
            e.vmem(f"buffer_store_dwordx4 {vr(d0)}, v{V_L16}, {srd((S_WS, S_BSRD)[t])}, s{(S_RA, S_RB)[t]} offen offset:{c*1024}{SC}", "RTST")
        rts.append(Filler(fr, 8, "mem", RTS*64 + 40 + RG*n)); rts.append(Filler(fs, 4, "mem", RTS*64 + 40 + RG*n + 12, (SIGKV - 1)*64 if RTS > 8 else 486))
    mfmas = []; rd = []
    sig_at = {3: (["XNST"], sig_lin(WS_FX)), SIGKV: (["KST", "VST", "RTST"], SIG_KV)}
    def stage_gate(gs):
        def fn():
            tags = [("W", gs)]
            if gs < 8: tags.append(("A", gs))
            if gs in sig_at: tags += sig_at[gs][0]
            f3 = OPT.get("fine3")
            if f3 is not None and 0 <= gs - f3 < 6: stamp(e, 14 + 3*(gs - f3))
            e.need(vm=tags)
            if f3 is not None and 0 <= gs - f3 < 6: stamp(e, 15 + 3*(gs - f3))
            e("s_barrier")
            if f3 is not None and 0 <= gs - f3 < 6: stamp(e, 16 + 3*(gs - f3))
            if gs in sig_at: signal(e, sig_at[gs][1], V_TMP[6])
            if gs % 8 == 0: stamp(e, 2 + gs // 8)
            if OPT.get("fine") is not None and 0 <= gs - OPT["fine"] < 18: stamp(e, 14 + gs - OPT["fine"])
        return fn
    def actread(s, ksub, rb):
        return lambda: e.ds(f"ds_read_b128 {ar(actf(2*s+ksub, rb))}, v{V_ARD[ksub]} offset:{(s % 2)*32768 + rb*2048}", ("AF", s, ksub))
    AHEAD = 5
    for gs in range(NS):
        base = gs * 64
        if gs > 0: rd.append(Filler(stage_gate(gs), 8, "mem", base - 64 + BAR, base - 64 + BAR + 1))
        pend = [Filler(actread(gs, ksub, rb), 4, "mem", base - 64 + BAR, base - 2 + 32*ksub) for ksub in range(2) for rb in range(4)] if gs < 8 else []
        for j in range(16):
            f = gs*16 + j
            if gs < 16: kslot = 2*(gs % 8) + j // 8; db = j % 8; first = (gs % 8 == 0 and j < 8)
            else: kslot = 4*(gs % 4) + j // 4; db = 4*((gs // 4) % 2) + j % 4; first = (gs % 4 == 0 and j < 4)
            for rr in range(2):
                if 16 <= gs < 24: ad, off = V_TRG[j % 2], (j // 4)*4096 + ((j % 4) // 2)*2048 + rr*1024
                else: ad, off = V_TR[j % 4], (j // 4)*4096 + rr*2048
                d = V_WF + (j % 8)*4 + rr*2
                rd.append(Filler(lambda d=d, ad=ad, off=off + (gs % 4)*16384, f=f: e.ds(f"ds_read_b64_tr_b16 v[{d}:{d+1}], v{ad} offset:{off}", ("F", f)),
                                 4, "mem", max(4*(f - AHEAD) + rr*OPT.get("trsplit", 0), base - 64 + BAR), 4*(f - 1)))
            for _ in range(2):
                if pend: rd.append(pend.pop(0))
            for rb in range(4):
                def m(gs=gs, j=j, f=f, kslot=kslot, db=db, rb=rb, first=first):
                    e.need(lg=[("F", f)] + ([("AF", gs, j // 8)] if gs < 8 else []), vm=[("XN", kslot)] if 16 <= gs < 20 else ())
                    wv = vr(V_WF + (j % 8)*4); a = ar(actf(kslot, rb)); d = vr(acc(db, rb))
                    e(mf(d, a, wv, "0" if first else d) if 8 <= gs < 16 else mf(d, wv, a, "0" if first else d))
                mfmas.append(m)
    def cvts(base, dst, dl):
        out = []
        for db in range(8):
            for rb in range(4):
                for hh in range(2):
                    d = dst(db, rb, hh); s = acc(db, rb) + 2*hh
                    out.append(Filler(lambda d=d, s=s: e(f"v_cvt_pk_bf16_f32 v{d}, v{s}, v{s+1}"), 4, "valu", base + 480 + 4*db + 9, dl(db, rb)))
        return out
    cv = cvts(0, lambda db, rb, hh: V_PK + (rb*4 + db//2)*4 + (db & 1)*2 + hh, lambda db, rb: 512 + 4*db + rb)
    cv += cvts(512, lambda db, rb, hh: V_PK + ((rb//2)*8 + db)*4 + (rb & 1)*2 + hh, lambda db, rb: 1024 + 4*db + rb if db < 4 else 1024 + 48)
    st = []
    for base, reg, tag, gap, dl in ((512 + 34, WS_K, "KST", OPT.get("kgap", 27), 512 + 484), (1024 + 50, WS_V, "VST", OPT.get("vgap", 28), (SIGKV - 1)*64 + 20)):
        for n in range(16):
            if n % 4 == 0: st.append(Filler(lambda n=n, reg=reg: e(f"s_add_u32 s{S_T2}, s{S_KVST}, {reg + (n//4)*4096}"), 4, "salu", base - 4 + gap*n))
            st.append(Filler(lambda n=n, tag=tag: e.vmem(f"buffer_store_dwordx4 {vr(V_PK + n*4)}, v{V_L16}, {srd(S_WS)}, s{S_T2} offen offset:{(n%4)*1024}{SC}", tag), 4, "mem", base + gap*n, dl))
    C0 = -2.0 * math.sqrt(2.0 / math.pi) * math.log2(math.e)
    V_C1 = V_TMP[4]; V_QW = V_TMP[5]
    ge = [Filler(lambda: e(f"v_mov_b32 v{V_C1}, {fb(C0*0.044715):#x}"), 4, "valu", 1100)]
    for hf in range(2):
        lo = 1024 + 256*(hf + 1) + 6; dl = lo + 250
        def V(txt, cost=4): ge.append(Filler(lambda: e(txt), cost, "valu", lo, dl))
        ge.append(Filler(lambda hf=hf: e(f"s_add_u32 s{S_T0}, s{S_HST}, {hf*4096}"), 4, "salu", lo, dl))
        for rb in range(4):
            for c in range(2):
                G, U = acc(4*hf + c, rb), acc(4*hf + 2 + c, rb); T = V_TMP[0:4]
                for r in range(4): V(f"v_mul_f32 v{T[r]}, v{G+r}, v{G+r}")
                for r in range(4): V(f"v_fmaak_f32 v{T[r]}, v{T[r]}, v{V_C1}, {fb(C0):#x}")
                for r in range(4): V(f"v_mul_f32 v{T[r]}, v{G+r}, v{T[r]}")
                for r in range(4):
                    V(f"v_exp_f32 v{T[r]}, v{T[r]}", 8)
                    if r % 2: V(f"v_mul_f32 v{G+r-1}, v{G+r-1}, v{U+r-1}"); V(f"v_mul_f32 v{G+r}, v{G+r}, v{U+r}")
                for r in range(4): V(f"v_add_f32 v{T[r]}, 1.0, v{T[r]}")
                for r in range(4): V(f"v_rcp_f32 v{T[r]}, v{T[r]}", 8)
                for r in range(4): V(f"v_mul_f32 v{G+r}, v{G+r}, v{T[r]}")
                D = acc(4*hf + 2, rb) + 2*c
                V(f"v_cvt_pk_bf16_f32 v{D}, v{G}, v{G+1}"); V(f"v_cvt_pk_bf16_f32 v{D+1}, v{G+2}, v{G+3}")
            ge.append(Filler(lambda rb=rb, hf=hf: e.vmem(f"buffer_store_dwordx4 {vr(acc(4*hf + 2, rb))}, v{V_L16}, {srd(S_HSRD)}, s{S_T0} offen offset:{rb*1024}{SC}", "HST"), 4, "mem", lo, dl))
    ge.append(Filler(lambda: e(f"s_lshl_b32 s{S_T0}, s{w}, 14"), 4, "salu", 1792))
    ge.append(Filler(lambda: e(f"s_add_u32 s{S_T0}, s{S_T0}, 131072"), 4, "salu", 1792))
    ge.append(Filler(lambda: e(f"v_add_u32 v{V_QW}, s{S_T0}, v{V_L16}"), 4, "valu", 1792))
    late = []
    for hf in range(2):
        for dg in (2*hf, 2*hf + 1):
            lo = 1536 + 256*hf + 240 + 8*(dg % 2) + 7 + 6
            def V(txt, cost=4, kind="valu", lo=lo): ge.append(Filler(lambda: e(txt), cost, kind, lo))
            for qb in range(4):
                o0, o1 = acc(2*dg, qb), acc(2*dg+1, qb)
                for r in range(4): V(f"v_mul_f32 v{o0+r}, {QSCALE:#x}, v{o0+r}"); V(f"v_mul_f32 v{o1+r}, {QSCALE:#x}, v{o1+r}")
                for d, s_ in ((o0, o0), (o0+1, o0+2), (o0+2, o1), (o0+3, o1+2)): V(f"v_cvt_pk_bf16_f32 v{d}, v{s_}, v{s_+1}")
                for r in range(4): V(f"v_mov_b32 v{o1+r}, 0")
                ge.append(Filler(lambda o0=o0, qb=qb, dg=dg: e.ds(f"ds_write_b128 v{V_QW}, {vr(o0)} offset:{(qb*4+dg)*1024}", "QW"), 4, "mem", lo))
        for dg in (2*hf, 2*hf + 1):
            for qb in range(4):
                o0 = acc(2*dg, qb)
                for r in range(4): ge.append(Filler(lambda r=r, o0=o0, qb=qb, dg=dg: e(f"v_accvgpr_write_b32 a{A_Q + (qb*4+dg)*4 + r}, v{o0+r}"), 4, "valu", 29*64 + 4))
        ge.append(Filler(lambda: e.need(lg=["QW"]), 4, "salu", 29*64 + 4))
        for dg in (2*hf, 2*hf + 1):
            for qb in range(4):
                for r in range(4): ge.append(Filler(lambda r=r, qb=qb, dg=dg: e(f"v_mov_b32 v{acc(2*dg, qb) + r}, 0"), 4, "valu", 29*64 + 4))
        if hf == 0:
            for r in range(16): ge.append(Filler(lambda r=r: e(f"v_mov_b32 v{Sreg(1, 1, 0) + r}, {NEGINF:#x}"), 4, "valu", 29*64 + 4))
            for r in range(64): ge.append(Filler(lambda r=r: e(f"v_accvgpr_write_b32 a{A_DACC + r}, 0"), 4, "valu", 31*64 + 4))
    stamp(e, 1)
    e.need(vm=[("W", 0), ("A", 0)]); e.wait_all(vm=False); e("s_barrier")
    e(f"s_mul_i32 s{S_TAG}, s{S_TAG}, 0x9e3779b1\ns_add_u32 s{S_TAG}, s{S_TAG}, 0x7f4a7c15")
    stamp(e, 2)
    k = 0
    while rd[k].earliest < 0: rd[k].fn(); k += 1
    rest = e.schedule(mfmas, [rd[k:], mfill, cv, misc, rts, st, ge], flush=False)
    e("s_nop 7")
    e.c(f"left over fillers: {[len(r) for r in rest]}")
    for r in rest:
        for f in r: f.fn()
    stamp(e, 6)
    attention(e, poll_b, poll_c)
    phase_d(e, poll_c)
    stamp_flush(e)
    e("s_branch L_end")
    e.cold()
    for p in (poll_xn, poll_kv, poll_b, poll_c): p.spin()
    slow_path(e)
    e.label("L_end")
    e("s_endpgm")

A_Z = 212
S_FIRST = 20
def att_dma(e, which, j):
    sr, src, ld = ((S_ASRD, S_SRCA, S_LA), (S_BSRD, S_SRCB, S_LB))[which]
    e.vmem(f"buffer_load_dwordx4 v{V_L16}, {srd(sr)}, s{S_T4 if j >= 4 else src} offen offset:{(j%4)*1024}{SC} lds", "KV")
    if j == 3: e(f"s_add_u32 m0, s{ld}, 4096"); e(f"s_add_u32 s{S_T4}, s{src}, 4096")
    if j == 7:
        if which == 0: e(f"s_mov_b32 m0, s{S_LB}\ns_add_u32 s{S_SRCA}, s{S_SRCA}, 16384")
        else: e(f"s_sub_u32 s{S_VMAXB}, s{S_VMAXB}, 16384\ns_min_u32 s{S_SRCB}, s{S_VMAXB}, s{S_VCLB}")
def d_load(e, j):
    so = S_DW if j < 4 else S_DH
    e.vmem(f"buffer_load_dwordx4 {ar(A_DOP + j*4)}, v{V_L16}, {srd(S_DSRD)}, s{so} offen offset:{(j%4)*1024}{SC}", "KV")
    if j % 4 == 3: e(f"s_add_u32 s{so}, s{so}, s{S_DINC}")
class M:
    def __init__(self, txt, tag=None): self.txt, self.tag = txt, tag
def d_mfmas():
    return [M(mf(ar(A_DACC + (mb*4+qb)*4), ar(A_DOP + mb*4), ar(A_DOP + 16 + qb*4), ar(A_DACC + (mb*4+qb)*4))) for mb in range(4) for qb in range(4)]
def sm_half(e, buf, kb2):
    ex = []; cv = []
    for p in range(8):
        qb, hh = p // 2, p % 2
        r = Sreg(buf, kb2, qb) + 2*hh
        ex.append(lambda r=r: e(f"v_exp_f32 v{r}, v{r}")); ex.append(lambda r=r: e(f"v_exp_f32 v{r+1}, v{r+1}"))
        d = Preg(buf, qb) + 2*kb2 + hh
        cv.append(lambda r=r, d=d: e(f"v_cvt_pk_bf16_f32 v{d}, v{r}, v{r+1}"))
    return ex, cv
def qk_mfmas(buf, half):
    out = []
    for kb2 in range(2):
        kb = half*2 + kb2
        for dg in range(4):
            for qb in range(4):
                d = vr(Sreg(buf, kb2, qb))
                c = d if dg else ("0" if kb < qb else vr(V_TD) if kb == qb else vr(V_TN))
                out.append(M(mf(d, ar(A_FB[0] + (kb2*4+dg)*4), ar(A_Q + (qb*4+dg)*4), c), ("FR", 0, kb2*4)))
    return out
def pv_mfmas(buf, zero=False, order=range(8)):
    o = []
    for db in order:
        for qb in range(4):
            d = vr(Oreg(db, qb))
            o.append(M(mf(d, ar(A_Z), ar(A_Z), "0")) if zero else M(mf(d, ar(A_FB[1] + db*4), vr(Preg(buf, qb)), d), ("FR", 1, (db // 4)*4)))
    s_ = []
    for qb in range(4):
        d = ar(A_L + qb*4)
        s_.append(M(mf(d, ar(A_Z), ar(A_Z), "0")) if zero else M(mf(d, ar(A_ONE), vr(Preg(buf, qb)), d)))
    return o, s_
def frag_reads(e, fb_, off, order=range(8)):
    return [lambda j=j: e.ds(f"ds_read_b128 {ar(A_FB[fb_] + j*4)}, v{V_RD} offset:{off + j*1024}", ("FR", fb_, (j // 4)*4)) for j in order]
NOP = lambda: None
def run(e, mfmas, gaps, nxt=None):
    if mfmas[0].tag: e.need(lg=[mfmas[0].tag])
    for i, m in enumerate(mfmas):
        e(m.txt)
        t = mfmas[i+1].tag if i + 1 < len(mfmas) else nxt
        if t: e.need(lg=[t])
        for f in gaps.get(i, ()): f()
def section(e, mfmas, reads, ex, cv, carry, g2, nxt=None, tail=None):
    gaps = {}
    for q in range(8):
        gaps[4*q] = [reads[q], (carry or NOP) if q == 0 else cv[q-1]]
        gaps[4*q+1] = [ex[2*q]]; gaps[4*q+2] = [g2[q]]; gaps[4*q+3] = [ex[2*q+1]]
    if len(mfmas) > 32: gaps[32] = [cv[7]]
    for k, f in (tail or {}).items(): gaps.setdefault(k, []).insert(0, f)
    run(e, mfmas, gaps, nxt)
    return cv[7] if len(mfmas) == 32 else None
PREP = [f"s_cmp_le_u32 s{S_N}, 15\ns_cselect_b32 s{S_ASRD+2}, {WS_END}, 0\ns_cselect_b32 s{S_T0}, 32768, s{S_T1}", f"s_add_u32 s{S_T3}, s{S_N}, 2\ns_xor_b32 s{S_LB}, s{S_LB}, s{S_T0}",
        f"s_cmp_ge_u32 s{S_T3}, s{S_N0}\ns_cselect_b32 s{S_BSRD+2}, s{S_ASRD+2}, 0", f"s_xor_b32 s{S_LA}, s{S_LA}, s{S_T0}\ns_mov_b32 m0, s{S_LA}"]
PREP0 = f"s_mov_b32 s{S_T1}, 0x30000"
LR = V_TMP[10:14]
def check_lines(ret, qt):
    return [f"v_min3_f32 v{V_LIM+1}, v{LR[0]}, v{LR[1]}, v{LR[2]}\nv_add_f32 v{V_LIM}, v{LR[0]}, v{LR[1]}",
            f"v_add_f32 v{V_LIM}, v{V_LIM}, v{LR[2]}\nv_min_f32 v{V_LIM+1}, v{V_LIM+1}, v{LR[3]}",
            f"s_mov_b32 s{S_RET}, {ret}\nv_add_f32 v{V_LIM}, v{V_LIM}, v{LR[3]}\nv_cmp_nle_f32 vcc, 0x17800000, v{V_LIM+1}",
            f"s_mov_b64 s[{S_FL}:{S_FL+1}], vcc\ns_mov_b32 s{S_CNT}, s{qt}\nv_cmp_nge_f32 vcc, {OPT.get('lhi', 0x67800000):#x}, v{V_LIM}",
            f"s_or_b64 vcc, vcc, s[{S_FL}:{S_FL+1}]\n" + ("s_nop 0" if OPT.get("noslow") else "s_cbranch_vccnz L_slow")]
def norm_items(e, dbs, sbase):
    it = []
    for dg in sorted({d // 2 for d in dbs}):
        it.append((lambda dg=dg: e(f"s_add_u32 s{S_T0}, s{sbase}, {dg*4096}"), 0, 2*dg+1))
        for qb in range(4):
            o0, o1 = Oreg(2*dg, qb), Oreg(2*dg+1, qb)
            for r in range(4):
                for o in (o0, o1): it.append((lambda o=o, r=r, qb=qb: e(f"v_mul_f32 v{o+r}, v{o+r}, v{LR[qb]}"), 4, 2*dg+1))
            for d, s_ in ((o0, o0), (o0+1, o0+2), (o0+2, o1), (o0+3, o1+2)): it.append((lambda d=d, s_=s_: e(f"v_cvt_pk_bf16_f32 v{d}, v{s_}, v{s_+1}"), 4, 2*dg+1))
            it.append((lambda o0=o0, qb=qb: e.vmem(f"buffer_store_dwordx4 {vr(o0)}, v{V_L16}, {srd(S_WS)}, s{S_T0} offen offset:{qb*1024}{SC}", "CST"), 8, 2*dg+1))
    return it
def emit_items(items, extra=()):
    extra = list(extra)
    for f, c, _ in items:
        f()
        if c == 8:
            for _ in range(2):
                if extra: extra.pop(0)()
    for f in extra: f()
def sm_tail(e, order=range(8)):
    ex, cv = sm_half(e, 1, 1)
    for f in frag_reads(e, 1, 16384, order): f()
    for p in range(8):
        ex[2*p](); ex[2*p+1]()
        if p: cv[p-1]()
    e("s_nop 0"); cv[7]()

S_WOo, S_AC = S_OFF0, S_OFFA
WSLOT = [14, 15, 13, 12, 4, 5, 6, 7, 0, 1, 2, 3, 8, 9, 10, 11]
def wo_load(e, n, q):
    e.vmem(f"buffer_load_dwordx4 {ar(WSLOT[n % 16]*16 + q*4)}, v{V_L16}, {srd(S_WS)}, s{S_WOo} offen offset:{q*1024}{SC}", ("WO", n))
    if q == 3: e(f"s_add_u32 s{S_WOo}, s{S_WOo}, 4096")

def attention(e, poll_b, poll_c):
    i, h, w = S_BLK, S_HEAD, S_WAVE
    V_TRI = 8
    S_D1, S_D2, S_M = S_EVT, S_FIRST, S_FIRST + 1
    e(f"v_add_u32 v{V_RD}, 65536, v{V_L16}")
    e.need(vm=[("KV", 0)], lg=["QW"])
    e("s_barrier")
    for f in frag_reads(e, 0, 0): f()
    t0, t1, t2 = V_TMP[10:13]
    e(f"""v_mov_b32 v{V_TMP[15]}, 0x3f803f80
    v_lshrrev_b32 v{t0}, 4, v{V_LANE}
    v_lshlrev_b32 v{t0}, 2, v{t0}
    v_and_b32 v{t1}, 15, v{V_LANE}
    v_sub_u32 v{t0}, v{t1}, v{t0}
    v_mov_b32 v{t2}, {NEGINF:#x}""")
    for r in range(4):
        e(f"v_cmp_gt_i32 vcc, {r}, v{t0}\nv_accvgpr_write_b32 a{A_Z + r}, 0\nv_accvgpr_write_b32 a{A_ONE + r}, v{V_TMP[15]}\nv_cndmask_b32 v{V_TRI + r}, 0, v{t2}, vcc")
    for r in range(16): e(f"v_accvgpr_write_b32 a{A_L + r}, 0")
    for qb in range(4): e(f"v_mov_b32 v{Preg(1, qb)}, 0\nv_mov_b32 v{Preg(1, qb) + 1}, 0")
    e(f"""s_lshl_b32 s{S_TRANS}, s{i}, 1
    s_add_u32 s{S_TRANS}, s{S_TRANS}, s{w}
    s_sub_u32 s{S_TRANS}, s{S_TRANS}, 1
    s_sub_u32 s{S_D1}, s{S_TRANS}, 1
    s_add_u32 s{S_D2}, s{S_TRANS}, 1
    s_cmp_eq_u32 s{i}, 7
    s_cselect_b32 s{S_T0}, 16, 99
    s_cmp_eq_u32 s{w}, 0
    s_cselect_b32 s{S_T0}, s{S_T0}, 99
    s_cmp_lt_u32 s{w}, 2
    s_cselect_b32 s{S_D1}, s{S_T0}, s{S_D1}
    s_cselect_b32 s{S_D2}, 99, s{S_D2}
    s_cselect_b32 s{S_TRANS}, 17, s{S_TRANS}
    s_mov_b32 s{S_T2}, 1
    s_mov_b32 s{S_N}, -1
    s_mov_b32 s{S_BSRD+2}, 0
    s_mov_b32 s{S_DSRD+2}, 0
    s_xor_b32 s{S_LA}, s{S_LA}, 32768
    s_add_u32 m0, s{S_LB}, 4096
    s_mov_b32 s{S_T4}, s{S_SRCB}""")
    MS = [f"s_add_u32 s{S_N}, s{S_N}, 1", f"s_cmp_eq_u32 s{S_N}, s{S_D1}\ns_cselect_b32 s{S_M}, -1, 0", f"s_cmp_eq_u32 s{S_N}, s{S_D2}\ns_cselect_b32 s{S_M}, -1, s{S_M}",
          f"v_and_b32 v{V_TD}, s{S_M}, v{V_TRI}\nv_and_b32 v{V_TD+1}, s{S_M}, v{V_TRI+1}", f"v_and_b32 v{V_TD+2}, s{S_M}, v{V_TRI+2}\nv_and_b32 v{V_TD+3}, s{S_M}, v{V_TRI+3}",
          f"s_and_b32 s{S_M}, s{S_M}, {NEGINF:#x}\nv_mov_b32 v{V_TN}, s{S_M}\nv_mov_b32 v{V_TN+1}, s{S_M}", f"v_mov_b32 v{V_TN+2}, s{S_M}\nv_mov_b32 v{V_TN+3}, s{S_M}"]
    for t in MS: e(t)
    V_SIG, V_TAGV = 12, 13
    e(sig_lin(WS_FB))
    e(f"""v_mov_b32 v{V_TAGV}, s{S_TAG}
    v_add_u32 v{V_SIG}, s{S_WL}, v{V_LANE}
    v_min_u32 v{V_SIG}, 1, v{V_SIG}
    v_lshlrev_b32 v{V_SIG}, 30, v{V_SIG}
    v_add_u32 v{V_SIG}, s{S_CNT}, v{V_SIG}""")
    poll32_addr(e, poll_b.voff, WS_FB)
    S_PSRD, S_PF, V_PF = S_WUV, S_FIRST + 2, 14
    NPF = OPT.get("npf", 0); PF0 = OPT.get("pf0", 17 - NPF)
    e(f"""s_mov_b64 s[{S_PSRD}:{S_PSRD+1}], s[{S_WS}:{S_WS+1}]
    s_lshl_b32 s{S_PF}, s{i}, 19
    s_lshl_b32 s{S_T0}, s{w}, 17
    s_add_u32 s{S_PF}, s{S_PF}, s{S_T0}
    s_and_b32 s{S_T0}, s{h}, 3
    s_lshl_b32 s{S_T0}, s{S_T0}, 13
    s_add_u32 s{S_PF}, s{S_PF}, s{S_T0}
    s_add_u32 s{S_PF}, s{S_PF}, {WS_WOF - PF0*32768}
    v_lshlrev_b32 v{V_PF}, 7, v{V_LANE}""")
    PFL = [lambda: e(f"s_sub_u32 s{S_T0}, s{S_N}, {PF0 + 1}\ns_cmp_lt_u32 s{S_T0}, {NPF}\ns_cselect_b32 s{S_PSRD+2}, {WS_END}, 0"),
           lambda: (e.vmem(f"buffer_load_dword v{V_PF+1}, v{V_PF}, {srd(S_PSRD)}, s{S_PF} offen sc1", "KV"), e(f"s_add_u32 s{S_PF}, s{S_PF}, 32768"))] if NPF else []
    stamp(e, 7)
    e.need(lg=[("FR", 0, 0)])
    e("s_nop 0")
    top = [("FR", 0, 4)]*4
    e(".p2align 6")
    e.label("L_body")
    loop_start = len(e.L)
    e.lgkm = list(top)
    A = [lambda j=j: att_dma(e, 0, j) for j in range(8)]; B = [lambda j=j: att_dma(e, 1, j) for j in range(8)]; D = [lambda j=j: d_load(e, j) for j in range(8)]
    T = lambda t: (lambda: e(t))
    ex, cv = sm_half(e, 1, 1)
    carry = section(e, qk_mfmas(0, 0), frag_reads(e, 1, 16384), ex, cv, None, B[4:] + D[:4], nxt=("FR", 1, 0))
    ex, cv = sm_half(e, 0, 0)
    o, s_ = pv_mfmas(1)
    section(e, o + s_, frag_reads(e, 0, 8192), ex, cv, carry, D[4:] + [T(t) for t in PREP], nxt=("FR", 0, 0), tail={1: T(PREP0)})
    ex, cv = sm_half(e, 0, 1)
    r = frag_reads(e, 1, 24576)
    carry = section(e, qk_mfmas(1, 1), r[0::2] + [NOP]*4, ex, cv, None, r[1::2] + [T(f"v_xor_b32 v{V_RD}, 32768, v{V_RD}"), NOP, NOP, NOP],
                    tail={31: lambda: e.wait_all()})
    if not OPT.get("nobar"): e("s_barrier")
    def itstamp():
        if OPT.get("itst"):
            e(f"s_memtime s[4:5]\nv_subrev_u32 v5, 14, v{V_LANE}\nv_cmp_eq_u32 vcc, s{S_N}, v5\ns_waitcnt lgkmcnt(0)\nv_mov_b32 v5, s4\nv_cndmask_b32 v{V_STAMP}, v{V_STAMP}, v5, vcc")
    itstamp()
    dg_ = {0: [A[0], carry], 4: [A[1]], 8: [A[2]], 12: [A[3]]}
    for k, t in zip((1, 2, 3, 5, 6, 7, 9), MS): dg_[k] = [T(t)]
    for k, f in zip((10, 14), PFL): dg_[k] = [f]
    run(e, d_mfmas(), dg_)
    ex, cv = sm_half(e, 1, 0)
    o, s_ = pv_mfmas(0)
    section(e, o + s_, frag_reads(e, 0, 0), ex, cv, None, A[4:] + B[:4], nxt=("FR", 0, 0), tail={34: T(f"s_cmp_eq_u32 s{S_N}, s{S_T2}")})
    assert e.lgkm == top, e.lgkm
    e("s_cbranch_scc0 L_body")
    e.loop = (loop_start, len(e.L))
    e.label("L_special")
    e(f"s_cmp_gt_u32 s{S_N}, 3\ns_mov_b32 s{S_T2}, s{S_TRANS}\ns_cbranch_scc1 L_late")
    e(f"buffer_store_dword v{V_TAGV}, v{V_SIG}, {srd(S_WS)}, 0 offen sc1")
    e(poll_b.test())
    e(f"""v_mov_b32 v{V_SIG}, 0x40000000
    s_cselect_b32 s{S_T0}, 99, 3
    s_cmp_eq_u32 s{S_N}, s{S_T0}
    s_cbranch_scc1 L_spin_b""")
    e.label("L_ok_b")
    e(poll_b.ld)
    e(f"""s_add_u32 s{S_T0}, s{S_N}, 1
    s_cmp_eq_u32 s{S_N}, 3
    s_cselect_b32 s{S_DSRD+2}, {WS_END}, 0
    s_cselect_b32 s{S_DINC}, 4096, 0
    s_cselect_b32 s{S_T2}, s{S_TRANS}, s{S_T0}""")
    e.label("L_late")
    e(f"s_cmp_eq_u32 s{S_N}, s{S_TRANS}\ns_cbranch_scc0 L_body")
    e(f"s_cmp_eq_u32 s{S_N}, 17\ns_cbranch_scc0 L_trans")
    def cold():
        e.label("L_trans")
        e.lgkm = list(top); e.vm = ["KV"]*13
        qaddr = f"s_sub_u32 s{S_T0}, 3, s{w}\ns_lshl_b32 s{S_T0}, s{S_T0}, 14\ns_add_u32 s{S_T0}, s{S_T0}, 131072\nv_add_u32 v{V_TMP[14]}, s{S_T0}, v{V_L16}"
        qr = lambda: [lambda j=j: e.ds(f"ds_read_b128 {ar(A_Q + j*4)}, v{V_TMP[14]} offset:{j*1024}", "QS") for j in range(16)]
        rcp = [f"v_rcp_f32 v{LR[qb]}, v{LR[qb]}" for qb in range(4)]
        sm_tail(e)
        e(qaddr)
        o, s_ = pv_mfmas(1)
        gaps = {k: [f] for k, f in enumerate(B[4:] + D)}
        gaps[12] = [T(f"v_accvgpr_read_b32 v{LR[0]}, a{A_L}\nv_accvgpr_read_b32 v{LR[1]}, a{A_L+4}")]
        gaps[13] = [T(f"v_accvgpr_read_b32 v{LR[2]}, a{A_L+8}\nv_accvgpr_read_b32 v{LR[3]}, a{A_L+12}")]
        for k, t in enumerate(check_lines(0, S_QT) + rcp): gaps[14 + k] = [T(t)]
        items = norm_items(e, range(8), S_CTXLO)
        for k in range(23, 36):
            left = 8; gaps[k] = []
            while items and items[0][1] <= left and 4 + 4*items[0][2] + 3 + 5 <= k:
                f, c, _ = items.pop(0); gaps[k].append(f); left -= c
        run(e, s_ + o, gaps)
        emit_items(items)
        e.label("L_tjoin")
        e(PREP0)
        for t in PREP: e(t)
        e(f"v_xor_b32 v{V_RD}, {32768 + 65536}, v{V_RD}")
        e.need(vm=["KV"])
        e("s_barrier")
        itstamp()
        o, s_ = pv_mfmas(1, zero=True)
        gaps = {}
        for k, f in enumerate(A + B[:4]): gaps[4*k] = [f]
        for k, f in enumerate(qr() + frag_reads(e, 0, 0)): gaps.setdefault(1 + 4*(k // 2), []).append(f)
        init = MS + [f"v_mov_b32 v{Sreg(1, 1, 0) + 2*r}, {NEGINF:#x}\nv_mov_b32 v{Sreg(1, 1, 0) + 2*r + 1}, {NEGINF:#x}" for r in range(8)]
        init += [f"v_mov_b32 v{Preg(1, qb)}, 0\nv_mov_b32 v{Preg(1, qb) + 1}, 0" for qb in range(4)]
        for k, f in enumerate([T(t) for t in init] + PFL): gaps[2 + 4*(k // 2) + k % 2] = [f]
        gaps[50] = [T(f"s_mov_b32 s{S_TRANS}, 17")]
        run(e, d_mfmas() + o + s_, gaps, nxt=("FR", 0, 0))
        assert e.lgkm == top, e.lgkm
        e("s_branch L_special")
        e.label("L_ret0")
        e.lgkm = []; e.vm = []
        for t in rcp: e(t)
        emit_items(norm_items(e, range(8), S_CTXLO))
        e("s_branch L_tjoin")
    e.cold = cold
    e.label("L_final")
    stamp(e, 8)
    tw, trd, tl, tlr = V_TMP[0:4]
    e(f"""s_lshl_b32 s{S_T0}, s{w}, 17
    s_lshl_b32 s{S_AC}, s{h}, 19
    s_add_u32 s{S_AC}, s{S_AC}, s{S_T0}
    s_add_u32 s{S_AC}, s{S_AC}, {WS_CTX}
    s_lshl_b32 s{S_WOo}, s{i}, 19
    s_add_u32 s{S_WOo}, s{S_WOo}, s{S_T0}
    s_add_u32 s{S_WOo}, s{S_WOo}, {WS_WOF}
    s_and_b32 s{S_T0}, s{w}, 1
    s_lshl_b32 s{S_T0}, s{S_T0}, 14
    s_lshr_b32 s{S_T1}, s{w}, 1
    s_lshl_b32 s{S_T1}, s{S_T1}, 16
    s_add_u32 s{S_T0}, s{S_T0}, s{S_T1}
    v_add_u32 v{tw}, s{S_T0}, v{V_L16}
    v_xor_b32 v{trd}, {65536 + 16384}, v{tw}
    s_add_u32 s{S_T0}, s{S_WL}, {144*1024}
    v_add_u32 v{tl}, s{S_T0}, v{V_L16}
    v_xor_b32 v{tlr}, 3072, v{tl}
    s_cmp_ge_u32 s{w}, 2
    s_cbranch_scc1 L_mergeB""")
    for role in range(2):
        keep = list(range(4)) if role == 0 else list(range(4, 8))
        send = list(range(4, 8)) if role == 0 else list(range(4))
        if role == 1: e.label("L_mergeB")
        e.lgkm = list(top); e.vm = ["KV"]*13
        sm_tail(e, send + keep)
        e("s_nop 0")
        o, s_ = pv_mfmas(1, order=send + keep)
        gaps = {k: [lambda k=k: wo_load(e, k // 4, k % 4)] for k in range(8)}
        gaps[9] = [T(f"v_accvgpr_read_b32 v{LR[0]}, a{A_L}\nv_accvgpr_read_b32 v{LR[1]}, a{A_L+4}")]
        gaps[10] = [T(f"v_accvgpr_read_b32 v{LR[2]}, a{A_L+8}\nv_accvgpr_read_b32 v{LR[3]}, a{A_L+12}")]
        gaps[11] = [lambda: e.ds(f"ds_write_b128 v{tl}, {vr(LR[0])}")]
        for n in range(16): gaps[12 + n + n // 2] = [lambda n=n: e.ds(f"ds_write_b128 v{tw}, {vr(V_O + send[0]*16 + n*4)} offset:{n*1024}")]
        if OPT.get("fst"): stamp(e, 14)
        run(e, s_ + o, gaps)
        if OPT.get("fst"): stamp(e, 15)
        e.wait_all(vm=False)
        e("s_barrier")
        if OPT.get("fst"): stamp(e, 16)
        e.ds(f"ds_read_b128 {vr(V_TMP[4])}, v{tlr}", "ML")
        for n in range(16):
            e.ds(f"ds_read_b128 {vr(V_S[0] + n*4)}, v{trd} offset:{n*1024}", ("MO", n // 4))
            if n % 2: wo_load(e, 2 + n // 8, (n // 2) % 4)
        e.need(lg=["ML"])
        for qb in range(4): e(f"v_add_f32 v{LR[qb]}, v{LR[qb]}, v{V_TMP[4] + qb}")
        for t in check_lines(1 + role, S_QTHI): e(t)
        for n in range(16):
            e.need(lg=[("MO", n // 4)])
            for r in range(4):
                o = V_O + keep[0]*16 + n*4 + r
                e(f"v_add_f32 v{o}, v{o}, v{V_S[0] + n*4 + r}")
        e.label(f"L_ret{1 + role}")
        if OPT.get("fst"): stamp(e, 17)
        for qb in range(4): e(f"v_rcp_f32 v{LR[qb]}, v{LR[qb]}")
        e(f"v_add_u32 v{tw}, 32768, v{tw}")
        emit_items(norm_items(e, keep, S_CTXHI))
        if role == 0: e("s_branch L_attdone")
    e.label("L_attdone")
    stamp(e, 9)

def slow_path(e):
    M = V_P[1]; AL = V_P[1] + 4; T = V_P[1] + 8; QI = V_P[1] + 12; NI = V_P[1] + 13
    u, nu, ko, vo = S_T0, S_T1, S_T3, S_T5
    e.label("L_slow")
    e.lgkm = []; e.vm = []
    e("s_waitcnt vmcnt(0) lgkmcnt(0)")
    e(f"""s_lshl_b32 s{nu}, s{S_CNT}, 1
    s_add_u32 s{nu}, s{nu}, 2
    s_lshl_b32 s{ko}, s{S_HEAD}, 19
    s_add_u32 s{vo}, s{ko}, {WS_V}
    s_add_u32 s{ko}, s{ko}, {WS_K}
    s_lshl_b32 s{S_CNT}, s{S_CNT}, 6
    v_lshrrev_b32 v{T}, 4, v{V_LANE}
    v_lshlrev_b32 v{T}, 2, v{T}
    v_and_b32 v{QI}, 15, v{V_LANE}
    v_sub_u32 v{QI}, v{QI}, v{T}
    v_add_u32 v{QI}, s{S_CNT}, v{QI}
    v_mov_b32 v{NI}, {NEGINF:#x}
    s_mov_b32 s{u}, 0""")
    for r in range(128): e(f"v_mov_b32 v{V_O + r}, 0")
    for qb in range(4): e(f"v_mov_b32 v{M+qb}, v{NI}\nv_mov_b32 v{LR[qb]}, 0")
    e.label("L_slowl")
    for t, so in ((0, ko), (1, vo)):
        for j in range(8):
            if j == 4: e(f"s_add_u32 s{so}, s{so}, 4096")
            e.vmem(f"buffer_load_dwordx4 {ar(A_FB[t] + j*4)}, v{V_L16}, {srd(S_WS)}, s{so} offen offset:{(j%4)*1024}{SC}", "SL")
        e(f"s_add_u32 s{so}, s{so}, 4096")
    e.wait_all()
    for kb2 in range(2):
        for dg in range(4):
            for qb in range(4):
                d = vr(Sreg(0, kb2, qb))
                e(mf(d, ar(A_FB[0] + (kb2*4+dg)*4), ar(A_Q + (qb*4+dg)*4), d if dg else "0"))
    e("s_nop 7")
    for kb2 in range(2):
        for qb in range(4):
            for r in range(4):
                s = Sreg(0, kb2, qb) + r
                e(f"v_cmp_gt_i32 vcc, {16*kb2 + r - 16*qb}, v{QI}\ns_nop 1\nv_cndmask_b32 v{s}, v{s}, v{NI}, vcc")
    e(f"v_subrev_u32 v{QI}, 32, v{QI}")
    for qb in range(4):
        a, b = Sreg(0, 0, qb), Sreg(0, 1, qb)
        e(f"""v_max3_f32 v{T}, v{a}, v{a+1}, v{a+2}
        v_max3_f32 v{T}, v{T}, v{a+3}, v{b}
        v_max3_f32 v{T}, v{T}, v{b+1}, v{b+2}
        v_max3_f32 v{T}, v{T}, v{b+3}, v{M+qb}
        v_mov_b32 v{T+1}, v{T}
        s_nop 1
        v_permlane32_swap_b32 v{T}, v{T+1}
        v_max_f32 v{T}, v{T}, v{T+1}
        v_mov_b32 v{T+1}, v{T}
        s_nop 1
        v_permlane16_swap_b32 v{T}, v{T+1}
        v_max_f32 v{T}, v{T}, v{T+1}
        v_sub_f32 v{AL+qb}, v{M+qb}, v{T}
        v_mov_b32 v{M+qb}, v{T}
        v_exp_f32 v{AL+qb}, v{AL+qb}""")
        for s in list(range(a, a+4)) + list(range(b, b+4)):
            e(f"v_sub_f32 v{s}, v{s}, v{T}")
        for s in list(range(a, a+4)) + list(range(b, b+4)):
            e(f"v_exp_f32 v{s}, v{s}")
        e(f"v_mul_f32 v{LR[qb]}, v{LR[qb]}, v{AL+qb}")
        for s in list(range(a, a+4)) + list(range(b, b+4)):
            e(f"v_add_f32 v{LR[qb]}, v{LR[qb]}, v{s}")
        p = Preg(0, qb)
        e(f"v_cvt_pk_bf16_f32 v{p}, v{a}, v{a+1}\nv_cvt_pk_bf16_f32 v{p+1}, v{a+2}, v{a+3}\nv_cvt_pk_bf16_f32 v{p+2}, v{b}, v{b+1}\nv_cvt_pk_bf16_f32 v{p+3}, v{b+2}, v{b+3}")
        for db in range(8):
            for r in range(4): e(f"v_mul_f32 v{Oreg(db, qb)+r}, v{Oreg(db, qb)+r}, v{AL+qb}")
    e("s_nop 1")
    for db in range(8):
        for qb in range(4):
            d = vr(Oreg(db, qb))
            e(mf(d, ar(A_FB[1] + db*4), vr(Preg(0, qb)), d))
    e(f"s_add_u32 s{u}, s{u}, 1\ns_cmp_lt_u32 s{u}, s{nu}\ns_nop 7\ns_cbranch_scc1 L_slowl")
    for qb in range(4):
        e(f"""v_mov_b32 v{T}, v{LR[qb]}
        s_nop 1
        v_permlane32_swap_b32 v{LR[qb]}, v{T}
        v_add_f32 v{LR[qb]}, v{LR[qb]}, v{T}
        v_mov_b32 v{T}, v{LR[qb]}
        s_nop 1
        v_permlane16_swap_b32 v{LR[qb]}, v{T}
        v_add_f32 v{LR[qb]}, v{LR[qb]}, v{T}""")
    e(f"s_cmp_eq_u32 s{S_RET}, 0\ns_cbranch_scc1 L_ret0\ns_cmp_eq_u32 s{S_RET}, 1\ns_cbranch_scc1 L_ret1\ns_branch L_ret2")


def phase_d(e, poll_c):
    qt, mt, w = S_HEAD, S_BLK, S_WAVE
    V_XO, V_X, V_G = 4, 8, 17
    V_CR, NCR = 32, 6
    V_AS, V_AD = 128, 192
    t0, t1 = 24, 25
    S_XO = S_XNB
    for j in range(16):
        e.ds(f"ds_write_b128 v{V_TMP[0]}, {ar(A_DACC + j*4)} offset:{((j%4)*4 + j//4)*1024}", "DW")
        if j < OPT.get("wpre", 12): wo_load(e, 4 + j // 4, j % 4)
    e(f"""v_and_b32 v{t0}, 15, v{V_LANE}
    v_lshlrev_b32 v{t0}, 10, v{t0}
    v_lshrrev_b32 v{t1}, 4, v{V_LANE}
    v_lshl_add_u32 v{V_XO}, v{t1}, 3, v{t0}
    s_lshl_b32 s{S_XO}, s{qt}, 16
    s_lshl_b32 s{S_T0}, s{w}, 14
    s_add_u32 s{S_XO}, s{S_XO}, s{S_T0}
    s_lshl_b32 s{S_T1}, s{mt}, 7
    s_add_u32 s{S_XO}, s{S_XO}, s{S_T1}
    v_subrev_u32 v{t1}, 32768, v{V_TMP[0]}
    s_lshl_b32 s{S_T0}, s{w}, 12
    v_add_u32 v{t0}, s{S_T0}, v{V_L16}
    v_add_u32 v{V_G}, 65536, v{t0}
    v_add_u32 v{poll_c.voff}, {WS_FC - WS_FB}, v{poll_c.voff}""")
    if OPT.get("fst"): stamp(e, 18)
    e.need(vm=["CST"]); e.wait_all(vm=False)
    if OPT.get("fst"): stamp(e, 19)
    e("s_barrier")
    if OPT.get("fst"): stamp(e, 20)
    signal(e, sig_lin(WS_FC), 26)
    for sw in range(4):
        for mb in range(4): e.ds(f"ds_read_b128 {vr(V_AD + (sw*4+mb)*4)}, v{V_G if sw >= 2 else t0} offset:{32768 + (sw % 2)*16384 + mb*1024}", ("R", sw))
    for mb in range(4):
        e.vmem(f"buffer_load_dwordx2 v[{V_X+2*mb}:{V_X+2*mb+1}], v{V_XO}, {srd(S_X)}, s{S_XO} offen offset:{mb*32}", "X")
    wl = [lambda n=n, q=q: wo_load(e, n, q) for n in range(4, 16) for q in range(4)][OPT.get("wpre", 12):]
    cnt = [0]
    def V(t):
        e(t); cnt[0] += 1
        if cnt[0] % 6 == 0 and wl: wl.pop(0)()
    def rnd(base, pk):
        for j in range(8): V(f"v_cvt_pk_bf16_f32 v{pk+j}, v{base+2*j}, v{base+2*j+1}")
        for j in range(8): V(f"v_lshlrev_b32 v{base+2*j}, 16, v{pk+j}"); V(f"v_and_b32 v{base+2*j+1}, 0xffff0000, v{pk+j}")
    def red(base, tag):
        e.need(lg=[(tag, 1)])
        for r in range(16): V(f"v_add_f32 v{base+r}, v{base+r}, v{base+16+r}")
        e.need(lg=[(tag, 3)])
        for r in range(16): V(f"v_add_f32 v{base+32+r}, v{base+32+r}, v{base+48+r}")
        for r in range(16): V(f"v_add_f32 v{base+r}, v{base+r}, v{base+32+r}")
    T = V_AD + 16; PK = V_AD + 32
    red(V_AD, "R"); rnd(V_AD, PK)
    for r in range(16): V(f"v_mul_f32 v{T+r}, 0xbfb8aa3b, v{V_AD+r}")
    for r in range(16): V(f"v_exp_f32 v{T+r}, v{T+r}")
    for r in range(16): V(f"v_add_f32 v{T+r}, 1.0, v{T+r}")
    for r in range(16): V(f"v_rcp_f32 v{T+r}, v{T+r}")
    for r in range(16): V(f"v_mul_f32 v{V_AD+r}, v{V_AD+r}, v{T+r}")
    rnd(V_AD, PK)
    while len(wl) > 8: wl.pop(0)()
    poll_c.issue()
    while wl: wl.pop(0)()
    stamp(e, 10); poll_c.check(); stamp(e, 11)
    def c_load(n, q):
        e.vmem(f"buffer_load_dwordx4 {vr(V_CR + (n % NCR)*16 + q*4)}, v{V_L16}, {srd(S_WS)}, s{S_AC} offen offset:{q*1024}{SC}", ("C", n))
        if q == 3: e(f"s_add_u32 s{S_AC}, s{S_AC}, 4096")
    for n in range(NCR - 1):
        for q in range(4): c_load(n, q)
    for n in range(32):
        ld = []
        if n + NCR - 1 < 32: ld += [lambda q=q: c_load(n + NCR - 1, q) for q in range(4)]
        if n >= 1 and n + 15 < 32: ld += [lambda q=q: wo_load(e, n + 15, q) for q in range(4)]
        e.need(vm=[("C", n), ("WO", n)])
        for k in range(16):
            mb, qb = k // 4, k % 4
            d = vr(V_AS + k*4)
            e(mf(d, ar(WSLOT[n % 16]*16 + mb*4), vr(V_CR + (n % NCR)*16 + qb*4), d if n else "0"))
            if k % 2 == 0 and ld: ld.pop(0)()
    stamp(e, 12)
    e("s_nop 7")
    for j in range(16): e.ds(f"ds_write_b128 v{t1}, {vr(V_AS + j*4)} offset:{((j%4)*4 + j//4)*1024}", "SW")
    e.need(vm=["X"])
    for j in range(8): e(f"v_lshlrev_b32 v{T+2*j}, 16, v{V_X+j}"); e(f"v_and_b32 v{T+2*j+1}, 0xffff0000, v{V_X+j}")
    e.wait_all(vm=False)
    e("s_barrier")
    for sw in range(4):
        for mb in range(4): e.ds(f"ds_read_b128 {vr(V_AS + (sw*4+mb)*4)}, v{V_G if sw >= 2 else t0} offset:{(sw % 2)*16384 + mb*1024}", ("RS", sw))
    red(V_AS, "RS"); rnd(V_AS, PK)
    for r in range(16): e(f"v_mul_f32 v{V_AS+r}, v{V_AS+r}, v{V_AD+r}")
    rnd(V_AS, PK)
    for r in range(16): e(f"v_add_f32 v{V_AS+r}, v{V_AS+r}, v{T+r}")
    for j in range(8): e(f"v_cvt_pk_bf16_f32 v{PK+j}, v{V_AS+2*j}, v{V_AS+2*j+1}")
    for mb in range(4):
        e.vmem(f"buffer_store_dwordx2 v[{PK+2*mb}:{PK+2*mb+1}], v{V_XO}, {srd(S_OUT)}, s{S_XO} offen offset:{mb*32}", "OUT")
    e("s_cmp_lg_u32 s2, 0")
    e("s_cbranch_scc1 L_nobump")
    signal(e, f"s_mov_b32 s{S_CNT}, {WS_EP}", 26)
    e.label("L_nobump")
    stamp(e, 13)

HEADER = open("cdna_kernels/" + NAME + ".s.ref").read().split("; Override launch geometry")[0]
def build():
    e = E(); body(e)
    n = chk.check(e.L, "all")
    a, b = e.loop
    n += chk.check(e.L[a:b] + e.L[a:b], "loop")
    if n: print(f"{n} hazards", file=sys.stderr)
    return "\n".join([HEADER.rstrip("\n"), "; @launch grid=(256,1,1) block=(256,1,1) lds=163840",
        '.amdgcn_target "amdgcn-amd-amdhsa--gfx950"\n.text', e.text(), '.section .rodata,"a"\n.p2align 6',
        f""".amdhsa_kernel {KN}
  .amdhsa_next_free_vgpr 512
  .amdhsa_next_free_sgpr 102
  .amdhsa_accum_offset 256
  .amdhsa_group_segment_fixed_size 0
  .amdhsa_kernarg_size 104
  .amdhsa_user_sgpr_count 2
  .amdhsa_user_sgpr_kernarg_segment_ptr 1
  .amdhsa_system_sgpr_workgroup_id_x 1
.end_amdhsa_kernel
"""])
if __name__ == "__main__":
    open(sys.argv[1], "w").write(build())
```

```python
import sys, math, os, struct
from emit import E, Filler
import check as chk

NAME = "recurrent_scan__compressed_kv_cla__glu_gated_geglu__prompt"
KN = NAME + "_kernel"
MB = 1 << 20
OPT = eval(os.environ.get("OPT", "{}"))
STAMPS = os.environ.get("STAMPS")
POLLALL = OPT.get("pollall", 0)
WS_XN, WS_H, WS_WDF, WS_WOF, WS_CTX, WS_K, WS_V, WS_END = 0, 2*MB, 9*MB, 12*MB, 16*MB, 32*MB, 48*MB, 64*MB
fb = lambda x: struct.unpack("<I", struct.pack("<f", x))[0]

S_X, S_CKV, S_WQ, S_WUK, S_WUV, S_WO, S_WG, S_WU, S_WD, S_OUT, S_DBG, S_WS = [8 + 4*i for i in range(12)]
S_HSRD, S_ASRD, S_BSRD = 56, 60, 64
S_WAVE, S_HEAD, S_BLK, S_ROT = 68, 69, 70, 71
S_T0, S_T1, S_T2, S_T3, S_T4, S_T5 = 72, 73, 74, 75, 76, 77
S_WL, S_WA = 78, 79
S_OFF0, S_OFFA, S_AROW, S_KVST, S_XNB, S_HST = 80, 81, 82, 83, 84, 85
S_CTXLO, S_CTXHI = 86, 87
S_SRCA, S_SRCB, S_LA, S_LB, S_VMAXB, S_VCLB = 88, 89, 90, 91, 92, 93
S_N, S_EVT, S_TRANS, S_N0 = 94, 95, 96, 97
S_QT, S_QTHI, S_RET, S_CNT = 98, 99, 100, 101
S_ROTB, S_DW, S_DH, S_DINC = 48, 49, 50, 51
S_GSRD = S_CKV
S_DSRD = S_HSRD
S_FL = 6
def srd(n): return f"s[{n}:{n+3}]"
def mf(d, a, b, c): return f"v_mfma_f32_16x16x32_bf16 {d}, {a}, {b}, {c}"
def vr(n, k=4): return f"v[{n}:{n+k-1}]"
def ar(n, k=4): return f"a[{n}:{n+k-1}]"

V_LANE, V_STAMP, V_L16 = 1, 2, 3
V_TR = (4, 5, 6, 7)
V_WOFF = (8, 9, 10, 11)
V_AOFF = (12, 13)
V_WOFG = (12, 13)
V_ARD = (14, 15)
V_TMP = list(range(16, 32))
V_POLL = 0
V_WF, V_PK, V_ACC = 32, 64, 128
def acc(db, rb): return V_ACC + (db*4 + rb)*4
def actf(ks, rb): return (ks*4 + rb)*4
V_RD = 4
V_TD, V_TN, V_LIM = 16, 20, 24
V_P, V_S, V_O = (32, 48), (64, 96), 128
A_Q, A_FB, A_DACC, A_L, A_ONE, A_DOP = 0, (64, 96), 128, 192, 208, 224
QSCALE = fb(math.log2(math.e) / math.sqrt(128.0))
NEGINF = 0xff800000
def Sreg(buf, kb2, qb): return V_S[buf] + (kb2*4 + qb)*4
def Preg(buf, qb): return V_P[buf] + qb*4
def Oreg(db, qb): return V_O + (db*4 + qb)*4
SC = " sc1"

def stamp(e, idx):
    if not STAMPS: return
    e(("s_memtime" if STAMPS == "2" else "s_memrealtime") + " s[4:5]")
    e.wait_all(vm=False)
    e(f"v_writelane_b32 v{V_STAMP}, s4, {idx}")
def stamp_flush(e):
    if not STAMPS: return
    if OPT.get("dbgst"):
        e(f"""s_load_dwordx2 s[8:9], s[0:1], 88
        s_mov_b32 s10, 256
        s_mov_b32 s11, 0x20000
        v_readlane_b32 s4, v{V_STAMP}, 0
        s_not_b32 s4, s4
        s_nop 3
        v_writelane_b32 v{V_STAMP}, s4, 14
        v_lshlrev_b32 v0, 2, v{V_LANE}
        v_cmp_gt_u32 vcc, 15, v{V_LANE}
        s_and_saveexec_b64 s[6:7], vcc
        s_waitcnt lgkmcnt(0)
        buffer_atomic_umax v{V_STAMP}, v0, s[8:11], 0 offen
        s_waitcnt vmcnt(0)""")
        return
    e(f"""s_lshl_b32 s4, s2, 2
    s_add_u32 s4, s4, s{S_WAVE}
    s_lshl_b32 s4, s4, 7
    s_add_u32 s4, s4, {64*MB}
    v_lshlrev_b32 v0, 2, v{V_LANE}
    v_cmp_gt_u32 vcc, 32, v{V_LANE}
    s_and_saveexec_b64 s[6:7], vcc
    buffer_store_dword v{V_STAMP}, v0, {srd(S_WS)}, s4 offen
    s_waitcnt vmcnt(0)""")

WS_EP = 11*MB
WS_FX, WS_FK, WS_FB, WS_FC = WS_EP + 4096, WS_EP + 8192, WS_EP + 12288, WS_EP + 16384
S_TAG = 3
def signal(e, soff_lines, tmp):
    e(soff_lines)
    e(f"""v_mov_b32 v{tmp}, s{S_TAG}
    v_add_u32 v{tmp+1}, s{S_WL}, v{V_LANE}
    v_min_u32 v{tmp+1}, 1, v{tmp+1}
    v_lshlrev_b32 v{tmp+1}, 30, v{tmp+1}""")
    e.vmem(f"buffer_store_dword v{tmp}, v{tmp+1}, {srd(S_WS)}, s{S_CNT} offen sc1", "SIG")
def sig_lin(base):
    return f"""s_lshr_b32 s{S_CNT}, s2, 3
    s_lshl_b32 s{S_CNT}, s{S_CNT}, 7
    s_and_b32 s{S_FL}, s2, 7
    s_lshl_b32 s{S_FL}, s{S_FL}, 2
    s_add_u32 s{S_CNT}, s{S_CNT}, s{S_FL}
    s_add_u32 s{S_CNT}, s{S_CNT}, {base}"""
SIG_KV = f"""s_and_b32 s{S_CNT}, s2, 31
    s_lshl_b32 s{S_CNT}, s{S_CNT}, 7
    s_lshl_b32 s{S_FL}, s{S_BLK}, 2
    s_add_u32 s{S_CNT}, s{S_CNT}, s{S_FL}
    s_add_u32 s{S_CNT}, s{S_CNT}, {WS_FK}"""
class Poll:
    def __init__(self, e, name, voff):
        self.e, self.name, self.voff = e, name, voff
    @property
    def ld(self):
        if self.name == "b" and POLLALL: return f"buffer_load_dwordx4 a[216:219], v{self.voff}, {srd(S_WS)}, 0 offen sc1"
        return f"buffer_load_dword v{V_POLL}, v{self.voff}, {srd(S_WS)}, 0 offen sc1"
    def issue(self): self.e.vmem(self.ld, ("POLL", self.name))
    def test(self):
        if self.name == "b" and POLLALL:
            return f"""v_accvgpr_read_b32 v5, a216
            v_accvgpr_read_b32 v6, a217
            v_accvgpr_read_b32 v7, a218
            v_accvgpr_read_b32 v{V_POLL}, a219
            v_xor_b32 v5, v5, v{V_POLL}
            v_xor_b32 v6, v6, v{V_POLL}
            v_xor_b32 v7, v7, v{V_POLL}
            v_or3_b32 v5, v5, v6, v7
            v_xor_b32 v{V_POLL}, s{S_TAG}, v{V_POLL}
            v_or_b32 v5, v5, v{V_POLL}
            v_cmp_eq_u32 vcc, 0, v5
            s_cmp_eq_u64 vcc, exec"""
        return f"v_cmp_eq_u32 vcc, s{S_TAG}, v{V_POLL}\ns_cmp_eq_u64 vcc, exec"
    def check(self):
        e = self.e
        e.need(vm=[("POLL", self.name)])
        e(self.test())
        e(f"s_cbranch_scc0 L_spin_{self.name}")
        e.label(f"L_ok_{self.name}")
    def spin(self):
        e = self.e
        e.label(f"L_spin_{self.name}")
        e(f"s_mov_b32 s{S_CNT}, 0x40000")
        e.label(f"L_spinl_{self.name}")
        e("s_sleep 2")
        e(self.ld)
        e("s_waitcnt vmcnt(0)")
        e(self.test())
        e(f"s_cbranch_scc1 L_ok_{self.name}")
        e(f"s_sub_u32 s{S_CNT}, s{S_CNT}, 1")
        e(f"s_cmp_lg_u32 s{S_CNT}, 0")
        e(f"s_cbranch_scc1 L_spinl_{self.name}")
        e(f"s_branch L_ok_{self.name}")
def poll32_addr(e, v, base):
    e(f"""s_lshr_b32 s{S_T0}, s{S_HEAD}, 1
    s_sub_u32 s{S_T1}, 15, s{S_T0}
    s_min_u32 s{S_T0}, s{S_T0}, s{S_T1}
    s_lshl_b32 s{S_T0}, s{S_T0}, 9
    s_add_u32 s{S_T0}, s{S_T0}, {base}
    v_bfe_u32 v{v}, v{V_LANE}, 3, 2
    v_lshlrev_b32 v{v}, 5, v{v}
    v_and_or_b32 v{v}, v{V_LANE}, 7, v{v}
    v_lshlrev_b32 v{v}, 2, v{v}
    v_add_u32 v{v}, s{S_T0}, v{v}""")

def kernel_head(e):
    e(f".globl {KN}\n.p2align 8\n.type {KN},@function")
    e.label(KN)
    e("s_cmp_ge_u32 s2, 256")
    e("s_cbranch_scc1 L_end")
    e("s_load_dwordx16 s[76:91], s[0:1], 0")
    e("s_load_dwordx8 s[92:99], s[0:1], 64")
    e("s_load_dwordx2 s[100:101], s[0:1], 96")
    if STAMPS: e(("s_memtime" if STAMPS == "2" else "s_memrealtime") + " s[4:5]")
    e(f"v_and_b32 v{V_LANE}, 63, v0")
    e("v_lshrrev_b32 v2, 6, v0")
    e(f"v_lshlrev_b32 v{V_L16}, 4, v{V_LANE}")
    e(f"v_readfirstlane_b32 s{S_WAVE}, v2")
    e(f"""s_and_b32 s{S_T0}, s2, 7
    s_lshl_b32 s{S_T0}, s{S_T0}, 2
    s_lshr_b32 s{S_T1}, s2, 3
    s_and_b32 s{S_T1}, s{S_T1}, 3
    s_add_u32 s{S_HEAD}, s{S_T0}, s{S_T1}
    s_lshr_b32 s{S_BLK}, s2, 5
    s_mul_i32 s{S_T0}, s{S_T1}, {OPT.get('rota', 4)}
    s_add_u32 s{S_ROT}, s{S_BLK}, s{S_T0}
    s_and_b32 s{S_ROT}, s{S_ROT}, 7
    s_mul_i32 s{S_T0}, s{S_T1}, {OPT.get('rotb', 0)}
    s_add_u32 s{S_ROTB}, s{S_BLK}, s{S_T0}
    s_and_b32 s{S_ROTB}, s{S_ROTB}, 3""")
    if STAMPS: e("v_mov_b32 v2, -1")
    setup_addrs(e)
    e("s_waitcnt lgkmcnt(0)")
    if STAMPS: e("v_writelane_b32 v2, s4, 0")
    if OPT.get("wsoff"): e(f"s_add_u32 s100, s100, {OPT['wsoff']*MB}\ns_addc_u32 s101, s101, 0")
    sizes = {S_X: (76, 2*MB), S_CKV: (78, 2*MB), S_WUK: (82, 4*MB), S_WS: (100, 65*MB if STAMPS else WS_END), S_WQ: (80, 4*MB), S_WUV: (84, 4*MB), S_WO: (86, 4*MB),
             S_WG: (90, 512*3584), S_WU: (92, 512*3584), S_WD: (94, 1792*1024), S_OUT: (96, 2*MB),
             S_HSRD: (100, WS_END), S_ASRD: (100, WS_END), S_BSRD: (100, WS_END)}
    for s, (p, n) in sizes.items():
        e(f"s_mov_b64 s[{s}:{s+1}], s[{p}:{p+1}]\ns_mov_b32 s{s+2}, {n}\ns_mov_b32 s{s+3}, 0x20000")
        if s == S_X:
            e(f"s_lshl_b32 s{S_T0}, s2, 13\ns_lshl_b32 s{S_T1}, s{S_WAVE}, 11\ns_add_u32 s{S_T0}, s{S_T0}, s{S_T1}")
            e.vmem(f"buffer_load_dwordx4 v[64:67], v{V_L16}, {srd(S_X)}, s{S_T0} offen", "X")
            e.vmem(f"buffer_load_dwordx4 v[68:71], v{V_L16}, {srd(S_X)}, s{S_T0} offen offset:1024", "X")
    e(f"s_add_u32 s{S_FL}, s100, {WS_EP}\ns_addc_u32 s{S_FL+1}, s101, 0\ns_load_dword s{S_TAG}, s[{S_FL}:{S_FL+1}], 0")
    e(f"""s_lshl_b32 s{S_WL}, s{S_WAVE}, 10
    s_lshl_b32 s{S_WA}, s{S_WAVE}, 13
    s_add_u32 s{S_WA}, s{S_WA}, 65536
    v_add_u32 v{V_ARD[0]}, s{S_WA}, v{V_ARD[0]}
    v_xor_b32 v{V_ARD[1]}, 64, v{V_ARD[0]}""")

V_CPF = 31
V_KPERM = 31
V_UOFF = 30
def setup_addrs(e):
    t0, t1, t2, t3, t4 = V_TMP[:5]
    e(f"""v_lshrrev_b32 v{t0}, 2, v{V_LANE}
    v_lshlrev_b32 v{t0}, 7, v{t0}
    v_and_b32 v{t1}, 3, v{V_LANE}
    v_lshlrev_b32 v{t1}, 3, v{t1}
    v_add_u32 v{t0}, v{t0}, v{t1}
    v_bfe_u32 v{t1}, v{V_LANE}, 3, 2
    v_lshlrev_b32 v{t1}, 5, v{t1}
    v_add_u32 v{V_TR[0]}, v{t0}, v{t1}""")
    for c in (1, 2, 3): e(f"v_xor_b32 v{V_TR[c]}, {c*32}, v{V_TR[0]}")
    e(f"""v_lshrrev_b32 v{t0}, 3, v{V_LANE}
    v_and_b32 v{t1}, 7, v{V_LANE}
    v_and_b32 v{t2}, 6, v{t0}
    v_xor_b32 v{t1}, v{t1}, v{t2}
    v_lshlrev_b32 v{V_UOFF}, 4, v{t1}
    s_lshl_b32 s{S_T0}, s{S_WAVE}, 3
    v_add_u32 v{t2}, s{S_T0}, v{t0}
    v_bfe_u32 v{t3}, v{t2}, 2, 2
    v_lshlrev_b32 v{t3}, 3, v{t3}
    v_lshrrev_b32 v{t4}, 4, v{t2}
    v_lshl_add_u32 v{t3}, v{t4}, 2, v{t3}
    v_and_b32 v{t4}, 3, v{t2}
    v_add_u32 v{V_KPERM}, v{t3}, v{t4}
    v_lshl_add_u32 v{V_WOFF[0]}, v{V_KPERM}, 13, v{V_UOFF}
    v_add_u32 v{V_WOFF[1]}, 128, v{V_WOFF[0]}
    v_add_u32 v{V_WOFF[2]}, {32*8192}, v{V_WOFF[0]}
    v_add_u32 v{V_WOFF[3]}, {32*8192 + 128}, v{V_WOFF[0]}
    v_and_b32 v{t1}, 7, v{V_LANE}
    v_lshrrev_b32 v{t2}, 1, v{t0}
    v_xor_b32 v{t1}, v{t1}, v{t2}
    v_lshlrev_b32 v{t1}, 4, v{t1}
    v_lshl_add_u32 v{V_AOFF[0]}, v{t0}, 10, v{t1}
    v_xor_b32 v{V_AOFF[1]}, 64, v{V_AOFF[0]}
    v_add_u32 v{V_AOFF[1]}, 8192, v{V_AOFF[1]}
    v_and_b32 v{t0}, 15, v{V_LANE}
    v_lshrrev_b32 v{t1}, 4, v{V_LANE}
    v_lshrrev_b32 v{t2}, 1, v{t0}
    v_xor_b32 v{t1}, v{t1}, v{t2}
    v_lshlrev_b32 v{t1}, 4, v{t1}
    v_lshl_add_u32 v{V_ARD[0]}, v{t0}, 7, v{t1}""")

def scalar_setup(e):
    i, h, w = S_BLK, S_HEAD, S_WAVE
    e(f"""s_lshl_b32 s{S_T0}, s{i}, 2
    s_add_u32 s{S_T0}, s{S_T0}, s{w}
    s_lshl_b32 s{S_AROW}, s{S_T0}, 16
    s_lshl_b32 s{S_KVST}, s{h}, 19
    s_lshl_b32 s{S_T0}, s{S_T0}, 14
    s_add_u32 s{S_KVST}, s{S_KVST}, s{S_T0}""")
def scalar_setup2(e):
    i, h, w = S_BLK, S_HEAD, S_WAVE
    a, b, c, d = S_N, S_EVT, S_TRANS, S_RET
    return f"""s_sub_u32 s{a}, 15, s{i}
    s_cmp_lt_u32 s{w}, 2 ! s_cselect_b32 s{b}, s{a}, s{i}
    s_lshl_b32 s{b}, s{b}, 1
    s_and_b32 s{c}, s{w}, 1
    s_add_u32 s{S_QT}, s{b}, s{c}
    s_lshl_b32 s{S_XNB}, s{S_QT}, 16
    s_mul_i32 s{S_HST}, s{S_QT}, {56*4096}
    s_add_u32 s{S_HST}, s{S_HST}, {WS_H}
    s_lshl_b32 s{d}, s{h}, 14
    s_add_u32 s{d}, s{d}, {WS_CTX}
    s_lshl_b32 s{S_CTXLO}, s{S_QT}, 19
    s_add_u32 s{S_CTXLO}, s{S_CTXLO}, s{d}
    s_lshr_b32 s{b}, s{w}, 1
    s_xor_b32 s{b}, s{b}, s{w}
    s_and_b32 s{b}, s{b}, 1
    s_lshl_b32 s{a}, s{a}, 1
    s_add_u32 s{S_QTHI}, s{a}, s{b}
    s_lshl_b32 s{S_CTXHI}, s{S_QTHI}, 19
    s_add_u32 s{S_CTXHI}, s{S_CTXHI}, s{d}
    s_cmp_lt_u32 s{h}, 28 ! s_cselect_b32 s{S_WG+2}, {512*3584}, 0
    s_mov_b32 s{S_WU+2}, s{S_WG+2}
    s_cmp_lt_u32 s{h}, 28 ! s_cselect_b32 s{S_HSRD+2}, {WS_END}, 0
    s_lshl_b32 s{a}, s{h}, 19
    s_mov_b32 s{b}, {WS_V}
    s_cmp_lt_u32 s{w}, 2 ! s_cselect_b32 s{b}, {WS_K}, s{b}
    s_add_u32 s{b}, s{b}, s{a}
    s_add_u32 s{S_VCLB}, s{b}, {63*8192}
    s_cmp_eq_u32 s{w}, 1 ! s_cselect_b32 s{a}, 8192, 0
    s_add_u32 s{S_SRCA}, s{b}, s{a}
    s_cmp_eq_u32 s{w}, 2 ! s_cselect_b32 s{a}, {3*8192}, s{a}
    s_add_u32 s{S_VMAXB}, s{b}, s{a}
    s_add_u32 s{S_VMAXB}, s{S_VMAXB}, {64*8192}
    s_min_u32 s{S_SRCB}, s{S_VMAXB}, s{S_VCLB}
    s_lshl_b32 s{S_LB}, s{w}, 13
    s_add_u32 s{S_LA}, s{S_LB}, 65536
    s_xor_b32 s{S_LB}, s{S_LB}, 32768
    s_lshl_b32 s{S_N0}, s{i}, 1
    s_add_u32 s{S_N0}, s{S_N0}, 2
    s_mul_i32 s{a}, s{w}, {14*4096}
    s_mul_i32 s{S_DH}, s{h}, {56*4096}
    s_add_u32 s{S_DH}, s{S_DH}, s{a}
    s_add_u32 s{S_DH}, s{S_DH}, {WS_H}
    s_mul_i32 s{S_DW}, s{i}, {56*4096}
    s_add_u32 s{S_DW}, s{S_DW}, s{a}
    s_add_u32 s{S_DW}, s{S_DW}, {WS_WDF}
    s_mov_b32 s{S_DINC}, 0""".split("\n")

def layernorm_lines():
    L = []; e = L.append
    X = (72, 80); SUM = (88, 89); TMP = (90, 91); MEAN = (92, 93); VAR = (94, 95)
    SS = (S_T0, S_T1)
    for r in range(2):
        for j in range(4):
            e(f"v_lshlrev_b32 v{X[r]+2*j}, 16, v{64+4*r+j}")
            e(f"v_and_b32 v{X[r]+2*j+1}, 0xffff0000, v{64+4*r+j}")
    def reduce():
        for mod in ("quad_perm:[1,0,3,2] row_mask:0xf bank_mask:0xf", "quad_perm:[2,3,0,1] row_mask:0xf bank_mask:0xf",
                    "row_half_mirror row_mask:0xf bank_mask:0xf", "row_mirror row_mask:0xf bank_mask:0xf",
                    "row_bcast:15 row_mask:0xa bank_mask:0xf", "row_bcast:31 row_mask:0xc bank_mask:0xf"):
            e("s_nop 0")
            for r in range(2): e(f"v_add_f32_dpp v{SUM[r]}, v{SUM[r]}, v{SUM[r]} {mod}")
        e("s_nop 0")
        for r in range(2): e(f"v_readlane_b32 s{SS[r]}, v{SUM[r]}, 63")
        e("s_nop 1")
    for r in range(2): e(f"v_add_f32 v{SUM[r]}, v{X[r]}, v{X[r]+1}")
    for j in range(2, 8):
        for r in range(2): e(f"v_add_f32 v{SUM[r]}, v{SUM[r]}, v{X[r]+j}")
    reduce()
    for r in range(2): e(f"v_mov_b32 v{MEAN[r]}, s{SS[r]}")
    for r in range(2): e(f"v_mul_f32 v{MEAN[r]}, 0x3b000000, v{MEAN[r]}")
    for j in range(8):
        for r in range(2): e(f"v_sub_f32 v{TMP[r]}, v{X[r]+j}, v{MEAN[r]}")
        for r in range(2): e(f"v_mul_f32 v{SUM[r]}, v{TMP[r]}, v{TMP[r]}" if j == 0 else f"v_fmac_f32 v{SUM[r]}, v{TMP[r]}, v{TMP[r]}")
    reduce()
    def both(fmt):
        for r in range(2): e(fmt.format(v=VAR[r], m=MEAN[r], s=SS[r]))
    def rnd(x):
        both("v_cvt_pk_bf16_f32 v{%s}, v{%s}, v{%s}" % (x, x, x)); both("v_lshlrev_b32 v{%s}, 16, v{%s}" % (x, x))
    both("v_mov_b32 v{v}, s{s}"); both("v_mul_f32 v{v}, 0x3b000000, v{v}")
    rnd("v"); both("v_add_f32 v{v}, 0x3727c5ac, v{v}"); rnd("v")
    both("v_sqrt_f32 v{v}, v{v}"); rnd("m"); rnd("v"); both("v_rcp_f32 v{v}, v{v}")
    for r in range(2):
        for j in range(8): e(f"v_sub_f32 v{X[r]+j}, v{X[r]+j}, v{MEAN[r]}")
        for j in range(4): e(f"v_cvt_pk_bf16_f32 v{64+4*r+j}, v{X[r]+2*j}, v{X[r]+2*j+1}")
        for j in range(4):
            e(f"v_lshlrev_b32 v{X[r]+2*j}, 16, v{64+4*r+j}")
            e(f"v_and_b32 v{X[r]+2*j+1}, 0xffff0000, v{64+4*r+j}")
        for j in range(8): e(f"v_mul_f32 v{X[r]+j}, v{X[r]+j}, v{VAR[r]}")
        for j in range(4): e(f"v_cvt_pk_bf16_f32 v{64+4*r+j}, v{X[r]+2*j}, v{X[r]+2*j+1}")
    return L

class MemQ:
    def __init__(self, e): self.e = e; self.items = []
    def add(self, kind, lo, hi, *a): self.items.append([kind, lo, hi, a])
    def fillers(self):
        e = self.e; out = []
        dm = [k for k, it in enumerate(self.items) if it[0] == 'd']
        nxt = {dm[j]: dm[j+1] for j in range(len(dm) - 1)}
        self.first_m0 = self.items[dm[0]][3][0]
        for k, (kind, lo, hi, a) in enumerate(self.items):
            if kind == 's': out.append(Filler(lambda a=a: e(a[0].replace(" ! ", "\n")), 4, "salu", lo, hi))
            elif kind == 'l': out.append(Filler(lambda a=a: e.vmem(a[0], a[1]), 4, "mem", lo, hi))
            elif kind == 'f': out.append(Filler(a[0], a[1], a[2], lo, hi))
            else:
                def fn(k=k, a=a):
                    if len(a) > 3: e.need(lg=a[3])
                    e.vmem(a[1], a[2])
                    if k in nxt: e(self.items[nxt[k]][3][0])
                out.append(Filler(fn, 8, "mem", lo, hi))
        return out


def body(e):
    i, h, w = S_BLK, S_HEAD, S_WAVE
    kernel_head(e)
    scalar_setup(e)
    NS = 32; BAR = 42; INF = 10**9; P = -10**6
    mq = MemQ(e)
    def S(lo, hi, *lines):
        for t in lines: mq.add('s', lo, hi, t)
    def VV(lo, hi, *lines):
        for t in lines: mq.add('f', lo, hi, lambda t=t: e(t), 4, "valu")
    V_GOFF, V_TRG = V_AOFF[0], V_ARD
    def w_stage(gs, lo, step, hi):
        slot = gs % 4
        if gs < 16:
            s = gs % 8
            if s == 0: S(lo - 8, hi, f"s_lshl_b32 s{S_OFF0}, s{S_ROT}, 19", f"s_lshl_b32 s{S_T5}, s{h}, 8", f"s_add_u32 s{S_OFF0}, s{S_OFF0}, s{S_T5}")
            else: S(lo - 8, hi, f"s_add_u32 s{S_OFF0}, s{S_OFF0}, {1<<19}", f"s_and_b32 s{S_OFF0}, s{S_OFF0}, {4*MB-1}")
            for n in range(4):
                mq.add('d', lo + step*n, hi, f"s_add_u32 m0, s{S_WL}, {slot*16384 + n*4096}",
                       f"buffer_load_dwordx4 v{V_WOFF[n]}, {srd(S_WUK if gs < 8 else S_WUV)}, s{S_OFF0} offen lds", ("W", gs))
        else:
            s = gs % 4; hf = (gs // 4) % 2; isg = gs < 24
            pitch = 3584 if isg else 8192
            S(lo - 10, hi, f"s_add_u32 s{S_OFF0}, s{S_ROTB}, {s}", f"s_and_b32 s{S_OFF0}, s{S_OFF0}, 3", f"s_mul_i32 s{S_OFF0}, s{S_OFF0}, {128*pitch}",
              f"s_lshl_b32 s{S_T5}, s{h}, {6 if isg else 8}", f"s_{'sub' if isg and hf else 'add'}_u32 s{S_OFF0}, s{S_OFF0}, s{S_T5}")
            if hf: S(lo - 10, hi, f"s_add_u32 s{S_OFF0}, s{S_OFF0}, {55*64 if isg else 128}")
            for n in range(4):
                if n: S(lo + step*n - 2, hi, f"s_add_u32 s{S_OFF0}, s{S_OFF0}, {32*pitch}")
                mq.add('d', lo + step*n, hi, f"s_add_u32 m0, s{S_WL}, {slot*16384 + n*4096}",
                       f"buffer_load_dwordx4 v{V_GOFF if isg else V_WOFF[0]}, {srd(S_GSRD if isg else S_WQ)}, s{S_OFF0} offen lds", ("W", gs))
    def a_stage(s, lo, step, hi):
        S(lo - 6, hi, f"s_add_u32 s{S_OFFA}, s{S_ROT}, {s}", f"s_and_b32 s{S_OFFA}, s{S_OFFA}, 7", f"s_lshl_b32 s{S_OFFA}, s{S_OFFA}, 7", f"s_add_u32 s{S_OFFA}, s{S_OFFA}, s{S_AROW}")
        for q in range(8):
            if q and q % 2 == 0: S(lo + step*q - 2, hi, f"s_add_u32 s{S_OFFA}, s{S_OFFA}, 16384")
            mq.add('d', lo + step*q, hi, f"s_add_u32 m0, s{S_WA}, {(s % 2)*32768 + q*1024}",
                   f"buffer_load_dwordx4 v{V_AOFF[q & 1]}, {srd(S_CKV)}, s{S_OFFA} offen lds", ("A", s), [("AF", s-2, 0), ("AF", s-2, 1)])
    def xn_stage(s, lo, step, hi):
        if s % 2 == 0: S(lo - 6, hi, f"s_add_u32 s{S_OFFA}, s{S_ROTB}, {s//2}", f"s_and_b32 s{S_OFFA}, s{S_OFFA}, 3", f"s_lshl_b32 s{S_OFFA}, s{S_OFFA}, 14", f"s_add_u32 s{S_OFFA}, s{S_OFFA}, s{S_XNB}")
        for ksub in range(2):
            if ksub or s % 2: S(lo + step*4*ksub - 2, hi, f"s_add_u32 s{S_OFFA}, s{S_OFFA}, 4096")
            for rb in range(4):
                mq.add('l', lo + step*(ksub*4 + rb), hi, f"buffer_load_dwordx4 {ar(actf(2*s+ksub, rb))}, v{V_L16}, {srd(S_WS)}, s{S_OFFA} offen offset:{rb*1024}{SC}", ("XN", 2*s+ksub))
    V_PO = V_TMP[13]
    poll_xn = Poll(e, "xn", V_PO); poll_kv = Poll(e, "kv", V_PO); poll_b = Poll(e, "b", V_TMP[15]); poll_c = Poll(e, "c", V_TMP[15])
    V_RT = V_TMP[8]; V_RTA = V_TMP[9:13]; V_PFD = V_TMP[1]
    RTL, RTS, RG = OPT.get("rtl", 19), OPT.get("rts", 21), OPT.get("rtgap", 30)
    S_RL = S_RET
    PRO = OPT.get("pro", 1); KVS = OPT.get("kvs", 30)
    w_stage(0, P, 0, INF); a_stage(0, P, 0, INF)
    n_pro0 = len(mq.items)
    S(P, INF, f"s_lshl_b32 s{S_T2}, s{w}, 8", f"s_add_u32 s{S_T2}, s{S_T2}, s2", f"s_lshr_b32 s{S_T3}, s{S_T2}, 3", f"s_add_u32 s{S_T4}, s{S_T2}, s{S_T3}", f"s_and_b32 s{S_T4}, s{S_T4}, 7",
      f"s_cmp_lt_u32 s{S_T2}, 448 ! s_cselect_b32 s{S_WD+2}, {1792*1024}, 0", f"s_cmp_lt_u32 s{S_T2}, 448 ! s_cselect_b32 s{S_BSRD+2}, {WS_END}, 0")
    VV(P, INF, f"v_lshrrev_b32 v{V_RT}, 3, v{V_LANE}", f"v_lshl_add_u32 v{V_RT}, v{V_RT}, 10, v{V_UOFF}")
    w_stage(1, P, 0, INF)
    if PRO >= 2: a_stage(1, P, 0, INF)
    if PRO >= 3: w_stage(2, P, 0, INF)
    n_pro1 = len(mq.items)
    if PRO < 2: a_stage(1, 0, 1, 30)
    if PRO < 3: w_stage(2, 10, 1, 36)
    def rt_loads(E0, half):
        for q in range(2*half, 2*half + 2):
            if OPT.get("rtlin"): S(E0, INF, f"s_add_u32 s{S_RL}, s{S_RL}, 1024" if q else f"s_lshl_b32 s{S_RL}, s{S_T4}, 12 ! s_lshl_b32 s{S_T5}, s{S_T3}, 3 ! s_add_u32 s{S_RL}, s{S_RL}, s{S_T5}")
            else: S(E0, INF, f"s_add_u32 s{S_RL}, s{S_RL}, 8192" if q else f"s_lshl_b32 s{S_RL}, s{S_T4}, 7 ! s_lshl_b32 s{S_T5}, s{S_T3}, 3 ! s_add_u32 s{S_RL}, s{S_RL}, s{S_T5}")
            for t, sr in enumerate((S_WO, S_WD)):
                mq.add('d', E0 + ((4 + 14*(q % 2) + 7*t) if RTL > 5 else 36), E0 + (33 if RTL > 5 else 60), f"s_add_u32 m0, s{S_WA}, {32768 + t*4096 + q*1024}", f"buffer_load_dwordx4 v{V_L16 if OPT.get('rtlin') else V_RT}, {srd(sr)}, s{S_RL} offen lds", "RT")
    for gs in range(NS):
        b = gs * 64
        if gs + 2 < 8: a_stage(gs + 2, b + (6 if gs or PRO >= 3 else 22), (4 if gs or PRO >= 3 else 2), b + 41)
        if gs == 6:
            S(b - 8, INF, f"s_lshl_b32 s{S_T1}, s{i}, 6", f"s_lshl_b32 s{S_T0}, s{w}, 4", f"s_add_u32 s{S_T1}, s{S_T1}, s{S_T0}", f"s_mul_i32 s{S_T0}, s{S_T1}, 3584",
              f"s_lshl_b32 s{S_T5}, s{h}, 6", f"s_add_u32 s{S_T0}, s{S_T0}, s{S_T5}", f"s_lshl_b32 s{S_T5}, s{h}, 7", f"s_sub_u32 s{S_T5}, {55*64}, s{S_T5}", f"s_max_i32 s{S_T5}, s{S_T5}, 0")
            VV(b - 8, INF, f"v_lshrrev_b32 v{V_TMP[0]}, 2, v{V_LANE}", f"v_and_b32 v{V_PO}, 1, v{V_LANE}", f"v_mul_u32_u24 v{V_PO}, s{S_T5}, v{V_PO}",
               f"v_mul_u32_u24 v{V_TMP[0]}, 3584, v{V_TMP[0]}", f"v_add_u32 v{V_TMP[0]}, v{V_TMP[0]}, v{V_PO}")
        if gs == 6 and OPT.get("pfq"):
            S(b, INF, f"s_lshl_b32 s{S_T1}, s{S_T1}, 13", f"s_lshl_b32 s{S_T5}, s{h}, 8", f"s_add_u32 s{S_T1}, s{S_T1}, s{S_T5}")
            VV(b, INF, f"v_lshrrev_b32 v{V_TMP[5]}, 2, v{V_LANE}", f"v_and_b32 v{V_PO}, 3, v{V_LANE}", f"v_lshlrev_b32 v{V_PO}, 6, v{V_PO}", f"v_lshl_add_u32 v{V_TMP[5]}, v{V_TMP[5]}, 13, v{V_PO}")
        if gs == OPT.get("pfq"): mq.add('l', b + 20, b + 41, f"buffer_load_dword v{V_PFD}, v{V_TMP[5]}, {srd(S_WQ)}, s{S_T1} offen", "PF")
        for kk, sg in enumerate(OPT.get("pfg", (7, 7))):
            if gs == sg: mq.add('l', b + 8 + 12*kk, b + 41, f"buffer_load_dword v{V_PFD}, v{V_TMP[0]}, {srd((S_WG, S_WU)[kk])}, s{S_T0} offen", "PF")
        if gs == 8:
            t0, t1 = V_TMP[2:4]
            S(b + 4, b + 30, f"s_lshl_b32 s{S_T5}, s{S_QT}, 7", f"s_add_u32 s{S_T5}, s{S_T5}, {WS_FX}")
            VV(b + 4, b + 30, f"v_and_b32 v{V_PO}, 7, v{V_LANE}", f"v_lshlrev_b32 v{V_PO}, 2, v{V_PO}", f"v_add_u32 v{V_PO}, s{S_T5}, v{V_PO}")
            mq.add('f', b + 28, b + 36, poll_xn.issue, 4, "mem")
        if gs == 9: mq.add('f', b + 2, b + 6, poll_xn.check, 8, "valu")
        if 9 <= gs <= 16: xn_stage(gs - 9, b + 8, 4, b + 41)
        if gs == 10:
            t0, t1 = V_TMP[2:4]
            S(b + 20, INF, f"s_cmp_lt_u32 s{w}, 2 ! s_cselect_b64 s[{S_GSRD}:{S_GSRD+1}], s[{S_WG}:{S_WG+1}], s[{S_WU}:{S_WU+1}]", f"s_mov_b32 s{S_GSRD+2}, s{S_WG+2}",
              f"s_and_b32 s{S_T5}, s{w}, 1", f"s_lshl_b32 s{S_T5}, s{S_T5}, 2")
            VV(b + 20, INF, f"v_lshrrev_b32 v{t0}, 4, v{V_LANE}", f"v_lshlrev_b32 v{t0}, 3, v{t0}", f"v_bfe_u32 v{t1}, v{V_LANE}, 2, 2", f"v_add3_u32 v{t0}, v{t0}, v{t1}, s{S_T5}",
               f"v_mul_u32_u24 v{t0}, 3584, v{t0}", f"v_bfe_u32 v{t1}, v{V_LANE}, 4, 1", f"v_lshlrev_b32 v{t1}, 5, v{t1}", f"v_and_b32 v{V_GOFF}, 3, v{V_LANE}",
               f"v_lshlrev_b32 v{V_GOFF}, 4, v{V_GOFF}", f"v_xor_b32 v{V_GOFF}, v{V_GOFF}, v{t1}", f"v_add_u32 v{V_GOFF}, v{V_GOFF}, v{t0}",
               f"v_lshrrev_b32 v{t0}, 2, v{V_LANE}", f"v_lshlrev_b32 v{t0}, 6, v{t0}", f"v_add_u32 v{t0}, v{t0}, v{t1}", f"v_and_b32 v{t1}, 3, v{V_LANE}",
               f"v_lshl_add_u32 v{V_TRG[0]}, v{t1}, 3, v{t0}", f"v_xor_b32 v{V_TRG[1]}, 32, v{V_TRG[0]}")
        if gs in (RTL, RTL + 1) and not OPT.get("nortl"): rt_loads(b, gs - RTL)
        if gs == 27:
            S(b + 4, b + 30, f"s_and_b32 s{S_T5}, s2, 31", f"s_lshl_b32 s{S_T5}, s{S_T5}, 7", f"s_add_u32 s{S_T5}, s{S_T5}, {WS_FK}")
            VV(b + 4, b + 30, f"v_and_b32 v{V_PO}, 7, v{V_LANE}", f"v_lshlrev_b32 v{V_PO}, 2, v{V_PO}", f"v_add_u32 v{V_PO}, s{S_T5}, v{V_PO}")
        if gs == KVS - 1: mq.add('f', b + 26, b + 33, poll_kv.issue, 4, "mem")
        if gs in OPT.get("cpf", ()): mq.add('l', b + 2, b + 41, f"global_load_dword v{V_UOFF}, v{V_CPF}, s[0:1]", "PF")
        if gs + 3 < NS: w_stage(gs + 3, b + 44, 4, b + 64 + 5)
    b = KVS*64
    mq.add('f', b + 4, b + 8, poll_kv.check, 8, "valu")
    for st in range(2):
        for j in range(8):
            if j == 4: S(b, INF, f"s_add_u32 s{S_T4}, s{S_SRCA}, 4096")
            mq.add('d', b + 8 + st*64 + 6*j, INF, f"s_add_u32 m0, s{S_LA}, {st*32768 + (j//4)*4096}",
                   f"buffer_load_dwordx4 v{V_L16}, {srd(S_ASRD)}, s{S_T4 if j >= 4 else S_SRCA} offen offset:{(j%4)*1024}{SC} lds", ("KV", st))
        if st == 0: S(b, INF, f"s_cmp_eq_u32 s{w}, 2 ! s_cselect_b32 s{S_T4}, 1, 2", f"s_lshl_b32 s{S_T4}, s{S_T4}, 13", f"s_add_u32 s{S_SRCA}, s{S_SRCA}, s{S_T4}")
        else: S(b, INF, f"s_add_u32 s{S_SRCA}, s{S_SRCA}, 16384")
    mfill = mq.fillers()
    e(mq.first_m0)
    for f in mfill[:n_pro0]:
        f.fn()
        if f.cost == 8: e("s_nop 0")
    if OPT.get("pfcode", 1):
        e(f"""s_getpc_b64 s[4:5]
        s_lshr_b32 s{S_T0}, s2, 3
        s_lshl_b32 s{S_T0}, s{S_T0}, 2
        s_add_u32 s{S_T0}, s{S_T0}, s{w}
        s_lshl_b32 s{S_T0}, s{S_T0}, 9
        v_and_b32 v{V_TMP[0]}, 7, v{V_LANE}
        v_lshlrev_b32 v{V_TMP[0]}, 6, v{V_TMP[0]}
        v_add_u32 v{V_TMP[0]}, s{S_T0}, v{V_TMP[0]}
        v_min_u32 v{V_TMP[0]}, L_end-L_pcref, v{V_TMP[0]}""")
        e.label("L_pcref")
        e.vmem(f"global_load_dword v{V_TMP[1]}, v{V_TMP[0]}, s[4:5]", "PF")
        e(f"v_mov_b32 v{V_CPF}, v{V_TMP[0]}")
    if OPT.get("tlb", 1):
        a, b, c = S_N, S_EVT, S_TRANS
        e(f"""s_lshr_b32 s{a}, s2, 3
        s_and_b32 s{b}, s{a}, 7
        s_add_u32 s{b}, s{b}, 2
        s_cmp_eq_u32 s{w}, 2
        s_cselect_b32 s{b}, 10, s{b}
        s_and_b32 s{c}, s{w}, 1
        s_lshr_b32 s{S_T0}, s{w}, 1
        s_cmp_eq_u32 s{c}, s{S_T0}
        s_cselect_b32 s{b}, 12, s{b}
        s_lshl_b32 s{S_T1}, s{b}, 3
        s_load_dwordx2 s[{S_ASRD}:{S_ASRD+1}], s[0:1], s{S_T1}
        s_cmp_lt_u32 s{b}, 6
        s_mov_b32 s{S_ASRD+2}, {1792*1024}
        s_cselect_b32 s{S_ASRD+2}, {4*MB}, s{S_ASRD+2}
        s_lshr_b32 s{S_T1}, s{a}, 3
        s_lshl_b32 s{a}, s{a}, 1
        s_add_u32 s{a}, s{a}, s{c}
        s_cmp_eq_u32 s{b}, 12
        s_cselect_b32 s{S_ASRD+2}, {WS_END}, s{S_ASRD+2}
        s_cselect_b32 s{a}, s{a}, s{S_T1}
        s_lshl_b32 s{a}, s{a}, 20
        v_mov_b32 v{V_TMP[5]}, s{a}
        s_waitcnt lgkmcnt(0)""")
        e.vmem(f"buffer_load_dword v{V_TMP[1]}, v{V_TMP[5]}, {srd(S_ASRD)}, 0 offen sc1", "PF")
        e(f"s_mov_b64 s[{S_ASRD}:{S_ASRD+1}], s[{S_WS}:{S_WS+1}]\ns_mov_b32 s{S_ASRD+2}, {WS_END}")
    if not OPT.get("dbgst"): e("s_mov_b64 s[0:1], s[4:5]")
    e.need(vm=["X"])
    ln = layernorm_lines()
    rest = mfill[n_pro0:n_pro1]
    per = len(ln) // (sum(f.cost == 8 for f in rest) + 1) + 1
    while ln or rest:
        for t in ln[:per]: e(t)
        ln = ln[per:]
        while rest:
            f = rest.pop(0); f.fn()
            if f.cost == 8: break
    mfill = mfill[n_pro1:]
    t0, t1, t2 = V_TMP[2:5]
    e(f"""s_lshl_b32 s{S_T0}, s{w}, 5
    s_add_u32 s{S_T0}, s{S_T0}, 49152
    v_lshlrev_b32 v{t0}, 7, v{V_LANE}
    v_add_u32 v{t0}, s{S_T0}, v{t0}""")
    e.ds(f"ds_write_b128 v{t0}, v[64:67]"); e.ds(f"ds_write_b128 v{t0}, v[68:71] offset:16")
    e(f"""s_lshl_b32 s{S_T0}, s{w}, 11
    s_add_u32 s{S_T0}, s{S_T0}, 49152
    v_add_u32 v{t0}, s{S_T0}, v{V_L16}
    v_lshrrev_b32 v{t1}, 5, v{V_LANE}
    v_lshlrev_b32 v{t1}, 12, v{t1}
    v_bfe_u32 v{t2}, v{V_LANE}, 3, 2
    v_lshl_add_u32 v{t1}, v{t2}, 8, v{t1}
    v_and_b32 v{t2}, 7, v{V_LANE}
    v_lshl_add_u32 v{t1}, v{t2}, 4, v{t1}
    s_lshr_b32 s{S_T0}, s2, 3
    s_lshl_b32 s{S_T0}, s{S_T0}, 16
    s_bfe_u32 s{S_T1}, s2, 0x20001
    s_lshl_b32 s{S_T1}, s{S_T1}, 10
    s_add_u32 s{S_T0}, s{S_T0}, s{S_T1}
    s_and_b32 s{S_T1}, s2, 1
    s_lshl_b32 s{S_T1}, s{S_T1}, 7
    s_add_u32 s{S_T0}, s{S_T0}, s{S_T1}
    s_lshl_b32 s{S_T1}, s{w}, 14
    s_add_u32 s{S_T0}, s{S_T0}, s{S_T1}
    s_add_u32 s{S_T1}, s{S_T0}, 8192""")
    misc = []
    misc.append(Filler(lambda: (e.ds(f"ds_read_b128 v[64:67], v{t0}", "LN"), e.ds(f"ds_read_b128 v[68:71], v{t0} offset:1024", "LN")), 8, "mem", 2, 30))
    misc.append(Filler(lambda: (e.need(lg=["LN"]), e.vmem(f"buffer_store_dwordx4 v[64:67], v{t1}, {srd(S_WS)}, s{S_T0} offen{SC}", "XNST")), 8, "mem", 14, 40))
    misc.append(Filler(lambda: e.vmem(f"buffer_store_dwordx4 v[68:71], v{t1}, {srd(S_WS)}, s{S_T1} offen{SC}", "XNST"), 8, "mem", 16, 41))
    for t in scalar_setup2(e): misc.append(Filler(lambda t=t: e(t.replace(" ! ", "\n")), 4, "salu", 44, 150))
    S_RA, S_RB = S_N, S_EVT
    rts = [Filler(lambda: e(f"s_add_u32 s{S_RA}, s{S_WA}, 32768"), 4, "salu", 150)]
    for c in range(4): rts.append(Filler(lambda c=c: e(f"v_add_u32 v{V_RTA[c]}, s{S_RA}, v{V_TR[c]}"), 4, "valu", 150))
    for t in (f"s_lshl_b32 s{S_RA}, s{S_T4}, 19", f"s_lshl_b32 s{S_T3}, s{S_T3}, 12", f"s_add_u32 s{S_RA}, s{S_RA}, s{S_T3}", f"s_add_u32 s{S_RA}, s{S_RA}, {WS_WOF}",
              f"s_mul_i32 s{S_RB}, s{S_T4}, {56*4096}", f"s_add_u32 s{S_RB}, s{S_RB}, s{S_T3}", f"s_add_u32 s{S_RB}, s{S_RB}, {WS_WDF}"):
        rts.append(Filler(lambda t=t: e(t), 4, "salu", 150, 185))
    SIGKV = OPT.get("sigkv", 27)
    for n in range(8):
        t, c = n // 4, n % 4
        d0 = V_PK + (n % 2)*4
        def fr(t=t, c=c, d0=d0, n=n):
            e.need(vm=["RT"])
            for rr in range(2): e.ds(f"ds_read_b64_tr_b16 v[{d0+rr*2}:{d0+rr*2+1}], v{V_RTA[c]} offset:{t*4096 + rr*2048}", ("RTF", n))
        def fs(t=t, c=c, d0=d0, n=n):
            e.need(lg=[("RTF", n)])
            e.vmem(f"buffer_store_dwordx4 {vr(d0)}, v{V_L16}, {srd((S_WS, S_BSRD)[t])}, s{(S_RA, S_RB)[t]} offen offset:{c*1024}{SC}", "RTST")
        if not OPT.get("norts"): rts.append(Filler(fr, 8, "mem", RTS*64 + 40 + RG*n)); rts.append(Filler(fs, 4, "mem", RTS*64 + 40 + RG*n + 12, 30*64 + 30 if POLLALL else (SIGKV - 1)*64))
    mfmas = []; rd = []
    sig_at = {3: (["XNST"], sig_lin(WS_FX)), SIGKV: (["KST", "VST"] + ([] if POLLALL else ["RTST"]), SIG_KV)}
    def stage_gate(gs):
        def fn():
            tags = [("W", gs)]
            if gs < 8: tags.append(("A", gs))
            if gs in sig_at: tags += sig_at[gs][0]
            f3 = OPT.get("fine3")
            if f3 is not None and 0 <= gs - f3 < 6: stamp(e, 14 + 3*(gs - f3))
            e.need(vm=tags)
            if f3 is not None and 0 <= gs - f3 < 6: stamp(e, 15 + 3*(gs - f3))
            e("s_barrier")
            if f3 is not None and 0 <= gs - f3 < 6: stamp(e, 16 + 3*(gs - f3))
            if gs in sig_at: signal(e, sig_at[gs][1], V_TMP[6])
            if gs % 8 == 0: stamp(e, 2 + gs // 8)
            if OPT.get("fine") is not None and 0 <= gs - OPT["fine"] < 18: stamp(e, 14 + gs - OPT["fine"])
        return fn
    def actread(s, ksub, rb):
        return lambda: e.ds(f"ds_read_b128 {ar(actf(2*s+ksub, rb))}, v{V_ARD[ksub]} offset:{(s % 2)*32768 + rb*2048}", ("AF", s, ksub))
    AHEAD = 5
    for gs in range(NS):
        base = gs * 64
        if gs > 0: rd.append(Filler(stage_gate(gs), 8, "mem", base - 64 + BAR, base - 64 + BAR + 1))
        pend = [Filler(actread(gs, ksub, rb), 4, "mem", base - 64 + BAR, base - 2 + 32*ksub) for ksub in range(2) for rb in range(4)] if gs < 8 else []
        for j in range(16):
            f = gs*16 + j
            if gs < 16: kslot = 2*(gs % 8) + j // 8; db = j % 8; first = (gs % 8 == 0 and j < 8)
            else: kslot = 4*(gs % 4) + j // 4; db = 4*((gs // 4) % 2) + j % 4; first = (gs % 4 == 0 and j < 4)
            for rr in range(2):
                if 16 <= gs < 24: ad, off = V_TRG[j % 2], (j // 4)*4096 + ((j % 4) // 2)*2048 + rr*1024
                else: ad, off = V_TR[j % 4], (j // 4)*4096 + rr*2048
                d = V_WF + (j % 8)*4 + rr*2
                rd.append(Filler(lambda d=d, ad=ad, off=off + (gs % 4)*16384, f=f: e.ds(f"ds_read_b64_tr_b16 v[{d}:{d+1}], v{ad} offset:{off}", ("F", f)),
                                 4, "mem", max(4*(f - AHEAD) + rr*OPT.get("trsplit", 0), base - 64 + BAR), 4*(f - 1)))
            for _ in range(2):
                if pend: rd.append(pend.pop(0))
            for rb in range(4):
                def m(gs=gs, j=j, f=f, kslot=kslot, db=db, rb=rb, first=first):
                    e.need(lg=[("F", f)] + ([("AF", gs, j // 8)] if gs < 8 else []), vm=[("XN", kslot)] if 16 <= gs < 20 else ())
                    wv = vr(V_WF + (j % 8)*4); a = ar(actf(kslot, rb)); d = vr(acc(db, rb))
                    e(mf(d, a, wv, "0" if first else d) if 8 <= gs < 16 else mf(d, wv, a, "0" if first else d))
                if OPT.get("prew", 1):
                    m.pre = lambda gs=gs, j=j, f=f, kslot=kslot: e.need(lg=[("F", f)] + ([("AF", gs, j // 8)] if gs < 8 else []), vm=[("XN", kslot)] if 16 <= gs < 20 else ())
                mfmas.append(m)
    def cvts(base, dst, dl):
        out = []
        for db in range(8):
            for rb in range(4):
                for hh in range(2):
                    d = dst(db, rb, hh); s = acc(db, rb) + 2*hh
                    out.append(Filler(lambda d=d, s=s: e(f"v_cvt_pk_bf16_f32 v{d}, v{s}, v{s+1}"), 4, "valu", base + 480 + 4*db + 9, dl(db, rb)))
        return out
    cv = cvts(0, lambda db, rb, hh: V_PK + (rb*4 + db//2)*4 + (db & 1)*2 + hh, lambda db, rb: 512 + 4*db + rb)
    VH = OPT.get("vh", 1232)
    cvv = cvts(512, lambda db, rb, hh: V_PK + ((db//4)*8 + (rb//2)*4 + db % 4)*4 + (rb & 1)*2 + hh, lambda db, rb: 1024 + 4*db + rb if db < 4 else 1278)
    for f in cvv[32:]: f.earliest = VH
    cv += cvv
    st = []
    G2 = OPT.get("sgap", 25)
    sched = [(WS_K + n*1024, n, "KST", 512 + 40 + 56*n, 512 + 484) for n in range(8)]
    sched += [(WS_K + n*1024, n, "KST", 1024 + 4 + G2*(n - 8), VH - 2) for n in range(8, 16)]
    sched += [(WS_V + ((n % 8)//4)*8192 + ((n // 8)*4 + n % 4)*1024, n, "VST", max(1024 + 4 + G2*(n + 8), 1282 if n >= 8 else 0), (SIGKV - 1)*64 + 20) for n in range(16)]
    for off, n, tag, lo, dl in sched:
        if n % 4 == 0: st.append(Filler(lambda off=off: e(f"s_add_u32 s{S_T2}, s{S_KVST}, {off}"), 4, "salu", lo - 4))
        st.append(Filler(lambda n=n, tag=tag: e.vmem(f"buffer_store_dwordx4 {vr(V_PK + n*4)}, v{V_L16}, {srd(S_WS)}, s{S_T2} offen offset:{(n%4)*1024}{SC}", tag), 4, "mem", lo, dl))
    C0 = -2.0 * math.sqrt(2.0 / math.pi) * math.log2(math.e)
    V_C1 = V_TMP[4]; V_QW = V_TMP[5]
    ge = [Filler(lambda: e(f"v_mov_b32 v{V_C1}, {fb(C0*0.044715):#x}"), 4, "valu", 1100)]
    for hf in range(2):
        lo = 1024 + 256*(hf + 1) + 6; dl = lo + 250
        def V(txt, cost=4): ge.append(Filler(lambda: e(txt), cost, "valu", lo, dl))
        for t in ([f"s_sub_u32 s{S_T0}, 55, s{h}", f"s_lshl_b32 s{S_T0}, s{S_T0}, 12"] if hf else [f"s_lshl_b32 s{S_T0}, s{h}, 12"]) + [f"s_add_u32 s{S_T0}, s{S_T0}, s{S_HST}"]:
            ge.append(Filler(lambda t=t: e(t), 4, "salu", lo, dl))
        for rb in range(4):
            for c in range(2):
                G, U = acc(4*hf + c, rb), acc(4*hf + 2 + c, rb); T = V_TMP[0:4]
                for r in range(4): V(f"v_mul_f32 v{T[r]}, v{G+r}, v{G+r}")
                for r in range(4): V(f"v_fmaak_f32 v{T[r]}, v{T[r]}, v{V_C1}, {fb(C0):#x}")
                for r in range(4): V(f"v_mul_f32 v{T[r]}, v{G+r}, v{T[r]}")
                for r in range(4):
                    V(f"v_exp_f32 v{T[r]}, v{T[r]}", 8)
                    if r % 2: V(f"v_mul_f32 v{G+r-1}, v{G+r-1}, v{U+r-1}"); V(f"v_mul_f32 v{G+r}, v{G+r}, v{U+r}")
                for r in range(4): V(f"v_add_f32 v{T[r]}, 1.0, v{T[r]}")
                for r in range(4): V(f"v_rcp_f32 v{T[r]}, v{T[r]}", 8)
                for r in range(4): V(f"v_mul_f32 v{G+r}, v{G+r}, v{T[r]}")
                D = acc(4*hf + 2, rb) + 2*c
                V(f"v_cvt_pk_bf16_f32 v{D}, v{G}, v{G+1}"); V(f"v_cvt_pk_bf16_f32 v{D+1}, v{G+2}, v{G+3}")
            ge.append(Filler(lambda rb=rb, hf=hf: e.vmem(f"buffer_store_dwordx4 {vr(acc(4*hf + 2, rb))}, v{V_L16}, {srd(S_HSRD)}, s{S_T0} offen offset:{rb*1024}{SC}", "HST"), 4, "mem", lo, dl))
    ge.append(Filler(lambda: e(f"s_lshl_b32 s{S_T0}, s{w}, 14"), 4, "salu", 1792))
    ge.append(Filler(lambda: e(f"s_add_u32 s{S_T0}, s{S_T0}, 131072"), 4, "salu", 1792))
    ge.append(Filler(lambda: e(f"v_add_u32 v{V_QW}, s{S_T0}, v{V_L16}"), 4, "valu", 1792))
    late = []
    for hf in range(2):
        for dg in (2*hf, 2*hf + 1):
            lo = 1536 + 256*hf + 240 + 8*(dg % 2) + 7 + 6
            def V(txt, cost=4, kind="valu", lo=lo): ge.append(Filler(lambda: e(txt), cost, kind, lo))
            for qb in range(4):
                o0, o1 = acc(2*dg, qb), acc(2*dg+1, qb)
                for r in range(4): V(f"v_mul_f32 v{o0+r}, {QSCALE:#x}, v{o0+r}"); V(f"v_mul_f32 v{o1+r}, {QSCALE:#x}, v{o1+r}")
                for d, s_ in ((o0, o0), (o0+1, o0+2), (o0+2, o1), (o0+3, o1+2)): V(f"v_cvt_pk_bf16_f32 v{d}, v{s_}, v{s_+1}")
                for r in range(4): V(f"v_mov_b32 v{o1+r}, 0")
                ge.append(Filler(lambda o0=o0, qb=qb, dg=dg: e.ds(f"ds_write_b128 v{V_QW}, {vr(o0)} offset:{(qb*4+dg)*1024}", "QW"), 4, "mem", lo))
        for dg in (2*hf, 2*hf + 1):
            for qb in range(4):
                o0 = acc(2*dg, qb)
                for r in range(4): ge.append(Filler(lambda r=r, o0=o0, qb=qb, dg=dg: e(f"v_accvgpr_write_b32 a{A_Q + (qb*4+dg)*4 + r}, v{o0+r}"), 4, "valu", 29*64 + 4))
        ge.append(Filler(lambda: e.need(lg=["QW"]), 4, "salu", 29*64 + 4))
        for dg in (2*hf, 2*hf + 1):
            for qb in range(4):
                for r in range(4): ge.append(Filler(lambda r=r, qb=qb, dg=dg: e(f"v_mov_b32 v{acc(2*dg, qb) + r}, 0"), 4, "valu", 29*64 + 4))
        if hf == 0:
            for r in range(16): ge.append(Filler(lambda r=r: e(f"v_mov_b32 v{Sreg(1, 1, 0) + r}, {NEGINF:#x}"), 4, "valu", 29*64 + 4))
            for r in range(64): ge.append(Filler(lambda r=r: e(f"v_accvgpr_write_b32 a{A_DACC + r}, 0"), 4, "valu", 31*64 + 4))
    stamp(e, 1)
    e.need(vm=[("W", 0), ("A", 0)]); e.wait_all(vm=False); e("s_barrier")
    e(f"s_mul_i32 s{S_TAG}, s{S_TAG}, 0x9e3779b1\ns_add_u32 s{S_TAG}, s{S_TAG}, 0x7f4a7c15")
    stamp(e, 2)
    k = 0
    while rd[k].earliest < 0: rd[k].fn(); k += 1
    rest = e.schedule(mfmas, [rd[k:], mfill, cv, misc, rts, st, ge], flush=False)
    e("s_nop 7")
    e.c(f"left over fillers: {[len(r) for r in rest]}")
    for r in rest:
        for f in r: f.fn()
    stamp(e, 6)
    attention(e, poll_b, poll_c)
    phase_d(e, poll_c)
    stamp_flush(e)
    e("s_branch L_end")
    e.cold()
    for p in (poll_xn, poll_kv, poll_b, poll_c): p.spin()
    slow_path(e)
    e.label("L_end")
    e("s_endpgm")

A_Z = 212
S_FIRST = 20
def att_dma(e, which, j):
    sr, src, ld = ((S_ASRD, S_SRCA, S_LA), (S_BSRD, S_SRCB, S_LB))[which]
    e.vmem(f"buffer_load_dwordx4 v{V_L16}, {srd(sr)}, s{S_T4 if j >= 4 else src} offen offset:{(j%4)*1024}{SC} lds", "KV")
    if j == 3: e(f"s_add_u32 m0, s{ld}, 4096"); e(f"s_add_u32 s{S_T4}, s{src}, 4096")
    if j == 7:
        if which == 0: e(f"s_mov_b32 m0, s{S_LB}\ns_add_u32 s{S_SRCA}, s{S_SRCA}, 16384")
        else: e(f"s_sub_u32 s{S_VMAXB}, s{S_VMAXB}, 16384\ns_min_u32 s{S_SRCB}, s{S_VMAXB}, s{S_VCLB}")
def d_load(e, j):
    so = S_DW if j < 4 else S_DH
    e.vmem(f"buffer_load_dwordx4 {ar(A_DOP + j*4)}, v{V_L16}, {srd(S_DSRD)}, s{so} offen offset:{(j%4)*1024}{SC}", "KV")
    if j % 4 == 3: e(f"s_add_u32 s{so}, s{so}, s{S_DINC}")
class M:
    def __init__(self, txt, tag=None): self.txt, self.tag = txt, tag
def d_mfmas():
    return [M(mf(ar(A_DACC + (mb*4+qb)*4), ar(A_DOP + mb*4), ar(A_DOP + 16 + qb*4), ar(A_DACC + (mb*4+qb)*4))) for mb in range(4) for qb in range(4)]
def sm_half(e, buf, kb2):
    ex = []; cv = []
    for p in range(8):
        qb, hh = p // 2, p % 2
        r = Sreg(buf, kb2, qb) + 2*hh
        ex.append(lambda r=r: e(f"v_exp_f32 v{r}, v{r}")); ex.append(lambda r=r: e(f"v_exp_f32 v{r+1}, v{r+1}"))
        d = Preg(buf, qb) + 2*kb2 + hh
        cv.append(lambda r=r, d=d: e(f"v_cvt_pk_bf16_f32 v{d}, v{r}, v{r+1}"))
    return ex, cv
def qk_mfmas(buf, half):
    out = []
    for kb2 in range(2):
        kb = half*2 + kb2
        for dg in range(4):
            for qb in range(4):
                d = vr(Sreg(buf, kb2, qb))
                c = d if dg else ("0" if kb < qb else vr(V_TD) if kb == qb else vr(V_TN))
                out.append(M(mf(d, ar(A_FB[0] + (kb2*4+dg)*4), ar(A_Q + (qb*4+dg)*4), c), ("FR", 0, kb2*4)))
    return out
def pv_mfmas(buf, zero=False, order=range(8)):
    o = []
    for db in order:
        for qb in range(4):
            d = vr(Oreg(db, qb))
            o.append(M(mf(d, ar(A_Z), ar(A_Z), "0")) if zero else M(mf(d, ar(A_FB[1] + db*4), vr(Preg(buf, qb)), d), ("FR", 1, (db // 4)*4)))
    s_ = []
    for qb in range(4):
        d = ar(A_L + qb*4)
        s_.append(M(mf(d, ar(A_Z), ar(A_Z), "0")) if zero else M(mf(d, ar(A_ONE), vr(Preg(buf, qb)), d)))
    return o, s_
def frag_reads(e, fb_, off, order=range(8)):
    return [lambda j=j: e.ds(f"ds_read_b128 {ar(A_FB[fb_] + j*4)}, v{V_RD} offset:{off + j*1024}", ("FR", fb_, (j // 4)*4)) for j in order]
NOP = lambda: None
def run(e, mfmas, gaps, nxt=None):
    if mfmas[0].tag: e.need(lg=[mfmas[0].tag])
    for i, m in enumerate(mfmas):
        e(m.txt)
        t = mfmas[i+1].tag if i + 1 < len(mfmas) else nxt
        if t: e.need(lg=[t])
        for f in gaps.get(i, ()): f()
def section(e, mfmas, reads, ex, cv, carry, g2, nxt=None, tail=None):
    gaps = {}
    for q in range(8):
        gaps[4*q] = [reads[q], (carry or NOP) if q == 0 else cv[q-1]]
        gaps[4*q+1] = [ex[2*q]]; gaps[4*q+2] = [g2[q]]; gaps[4*q+3] = [ex[2*q+1]]
    if len(mfmas) > 32: gaps[32] = [cv[7]]
    for k, f in (tail or {}).items(): gaps.setdefault(k, []).insert(0, f)
    run(e, mfmas, gaps, nxt)
    return cv[7] if len(mfmas) == 32 else None
PREP = [f"s_cmp_le_u32 s{S_N}, 15\ns_cselect_b32 s{S_ASRD+2}, {WS_END}, 0\ns_cselect_b32 s{S_T0}, 32768, s{S_T1}", f"s_add_u32 s{S_T3}, s{S_N}, 2\ns_xor_b32 s{S_LB}, s{S_LB}, s{S_T0}",
        f"s_cmp_ge_u32 s{S_T3}, s{S_N0}\ns_cselect_b32 s{S_BSRD+2}, s{S_ASRD+2}, 0", f"s_xor_b32 s{S_LA}, s{S_LA}, s{S_T0}\ns_mov_b32 m0, s{S_LA}"]
PREP0 = f"s_mov_b32 s{S_T1}, 0x30000"
LR = V_TMP[10:14]
def check_lines(ret, qt):
    return [f"v_min3_f32 v{V_LIM+1}, v{LR[0]}, v{LR[1]}, v{LR[2]}\nv_add_f32 v{V_LIM}, v{LR[0]}, v{LR[1]}",
            f"v_add_f32 v{V_LIM}, v{V_LIM}, v{LR[2]}\nv_min_f32 v{V_LIM+1}, v{V_LIM+1}, v{LR[3]}",
            f"s_mov_b32 s{S_RET}, {ret}\nv_add_f32 v{V_LIM}, v{V_LIM}, v{LR[3]}\nv_cmp_nle_f32 vcc, 0x17800000, v{V_LIM+1}",
            f"s_mov_b64 s[{S_FL}:{S_FL+1}], vcc\ns_mov_b32 s{S_CNT}, s{qt}\nv_cmp_nge_f32 vcc, {OPT.get('lhi', 0x67800000):#x}, v{V_LIM}",
            f"s_or_b64 vcc, vcc, s[{S_FL}:{S_FL+1}]\n" + ("s_nop 0" if OPT.get("noslow") else "s_cbranch_vccnz L_slow")]
def norm_items(e, dbs, sbase):
    it = []
    for dg in sorted({d // 2 for d in dbs}):
        it.append((lambda dg=dg: e(f"s_add_u32 s{S_T0}, s{sbase}, {dg*4096}"), 0, 2*dg+1))
        for qb in range(4):
            o0, o1 = Oreg(2*dg, qb), Oreg(2*dg+1, qb)
            for r in range(4):
                for o in (o0, o1): it.append((lambda o=o, r=r, qb=qb: e(f"v_mul_f32 v{o+r}, v{o+r}, v{LR[qb]}"), 4, 2*dg+1))
            for d, s_ in ((o0, o0), (o0+1, o0+2), (o0+2, o1), (o0+3, o1+2)): it.append((lambda d=d, s_=s_: e(f"v_cvt_pk_bf16_f32 v{d}, v{s_}, v{s_+1}"), 4, 2*dg+1))
            it.append((lambda o0=o0, qb=qb: e.vmem(f"buffer_store_dwordx4 {vr(o0)}, v{V_L16}, {srd(S_WS)}, s{S_T0} offen offset:{qb*1024}{SC}", "CST"), 8, 2*dg+1))
    return it
def emit_items(items, extra=()):
    extra = list(extra)
    for f, c, _ in items:
        f()
        if c == 8:
            for _ in range(2):
                if extra: extra.pop(0)()
    for f in extra: f()
def sm_tail(e, order=range(8)):
    ex, cv = sm_half(e, 1, 1)
    for f in frag_reads(e, 1, 16384, order): f()
    for p in range(8):
        ex[2*p](); ex[2*p+1]()
        if p: cv[p-1]()
    e("s_nop 0"); cv[7]()

S_WOo, S_AC = S_OFF0, S_OFFA
WSLOT = [14, 15, 13, 12, 4, 5, 6, 7, 0, 1, 2, 3, 8, 9, 10, 11]
def wo_load(e, n, q):
    e.vmem(f"buffer_load_dwordx4 {ar(WSLOT[n % 16]*16 + q*4)}, v{V_L16}, {srd(S_WS)}, s{S_WOo} offen offset:{q*1024}{SC}", ("WO", n))
    if q == 3: e(f"s_add_u32 s{S_WOo}, s{S_WOo}, 4096")

def attention(e, poll_b, poll_c):
    i, h, w = S_BLK, S_HEAD, S_WAVE
    V_TRI = 8
    S_D1, S_D2, S_M = S_EVT, S_FIRST, S_FIRST + 1
    e(f"v_add_u32 v{V_RD}, 65536, v{V_L16}")
    e.need(vm=[("KV", 0)], lg=["QW"])
    e("s_barrier")
    for f in frag_reads(e, 0, 0): f()
    t0, t1, t2 = V_TMP[10:13]
    e(f"""v_mov_b32 v7, v{V_CPF}
    v_mov_b32 v{V_TMP[15]}, 0x3f803f80
    v_lshrrev_b32 v{t0}, 4, v{V_LANE}
    v_lshlrev_b32 v{t0}, 2, v{t0}
    v_and_b32 v{t1}, 15, v{V_LANE}
    v_sub_u32 v{t0}, v{t1}, v{t0}
    v_mov_b32 v{t2}, {NEGINF:#x}""")
    if OPT.get("onehot", 1):
        e(f"v_and_b32 v5, 3, v{V_LANE}\nv_cmp_eq_u32 vcc, 0, v5\ns_nop 1\nv_cndmask_b32 v{V_TMP[15]}, 0, v{V_TMP[15]}, vcc")
    for r in range(4):
        e(f"v_cmp_gt_i32 vcc, {r}, v{t0}\nv_accvgpr_write_b32 a{A_Z + r}, 0\nv_accvgpr_write_b32 a{A_ONE + r}, v{V_TMP[15]}\nv_cndmask_b32 v{V_TRI + r}, 0, v{t2}, vcc")
    for r in range(16): e(f"v_accvgpr_write_b32 a{A_L + r}, 0")
    for qb in range(4): e(f"v_mov_b32 v{Preg(1, qb)}, 0\nv_mov_b32 v{Preg(1, qb) + 1}, 0")
    e(f"""s_lshl_b32 s{S_TRANS}, s{i}, 1
    s_add_u32 s{S_TRANS}, s{S_TRANS}, s{w}
    s_sub_u32 s{S_TRANS}, s{S_TRANS}, 1
    s_sub_u32 s{S_D1}, s{S_TRANS}, 1
    s_add_u32 s{S_D2}, s{S_TRANS}, 1
    s_cmp_eq_u32 s{i}, 7
    s_cselect_b32 s{S_T0}, 16, 99
    s_cmp_eq_u32 s{w}, 0
    s_cselect_b32 s{S_T0}, s{S_T0}, 99
    s_cmp_lt_u32 s{w}, 2
    s_cselect_b32 s{S_D1}, s{S_T0}, s{S_D1}
    s_cselect_b32 s{S_D2}, 99, s{S_D2}
    s_cselect_b32 s{S_TRANS}, 17, s{S_TRANS}
    s_mov_b32 s{S_T2}, 1
    s_mov_b32 s{S_N}, -1
    s_mov_b32 s{S_BSRD+2}, 0
    s_mov_b32 s{S_DSRD+2}, 0
    s_xor_b32 s{S_LA}, s{S_LA}, 32768
    s_add_u32 m0, s{S_LB}, 4096
    s_mov_b32 s{S_T4}, s{S_SRCB}""")
    MS = [f"s_add_u32 s{S_N}, s{S_N}, 1", f"s_cmp_eq_u32 s{S_N}, s{S_D1}\ns_cselect_b32 s{S_M}, -1, 0", f"s_cmp_eq_u32 s{S_N}, s{S_D2}\ns_cselect_b32 s{S_M}, -1, s{S_M}",
          f"v_and_b32 v{V_TD}, s{S_M}, v{V_TRI}\nv_and_b32 v{V_TD+1}, s{S_M}, v{V_TRI+1}", f"v_and_b32 v{V_TD+2}, s{S_M}, v{V_TRI+2}\nv_and_b32 v{V_TD+3}, s{S_M}, v{V_TRI+3}",
          f"s_and_b32 s{S_M}, s{S_M}, {NEGINF:#x}\nv_mov_b32 v{V_TN}, s{S_M}\nv_mov_b32 v{V_TN+1}, s{S_M}", f"v_mov_b32 v{V_TN+2}, s{S_M}\nv_mov_b32 v{V_TN+3}, s{S_M}"]
    for t in MS: e(t)
    V_SIG, V_TAGV = 12, 13
    e(sig_lin(WS_FB))
    e(f"""v_mov_b32 v{V_TAGV}, s{S_TAG}
    v_add_u32 v{V_SIG}, s{S_WL}, v{V_LANE}
    v_min_u32 v{V_SIG}, 1, v{V_SIG}
    v_lshlrev_b32 v{V_SIG}, 30, v{V_SIG}
    v_add_u32 v{V_SIG}, s{S_CNT}, v{V_SIG}""")
    if not POLLALL: poll32_addr(e, poll_b.voff, WS_FB)
    else: e(f"""v_lshrrev_b32 v{poll_b.voff}, 1, v{V_LANE}
    v_lshlrev_b32 v{poll_b.voff}, 3, v{poll_b.voff}
    v_and_or_b32 v{poll_b.voff}, v{V_LANE}, 1, v{poll_b.voff}
    v_lshlrev_b32 v{poll_b.voff}, 4, v{poll_b.voff}
    v_add_u32 v{poll_b.voff}, {WS_FB}, v{poll_b.voff}""")
    S_PSRD, S_PF, V_PF = S_WUV, S_FIRST + 2, 14
    NPF = OPT.get("npf", 0); PF0 = OPT.get("pf0", 17 - NPF)
    e(f"""s_mov_b64 s[{S_PSRD}:{S_PSRD+1}], s[{S_WS}:{S_WS+1}]
    s_lshl_b32 s{S_PF}, s{i}, 19
    s_lshl_b32 s{S_T0}, s{w}, 17
    s_add_u32 s{S_PF}, s{S_PF}, s{S_T0}
    s_and_b32 s{S_T0}, s{h}, 3
    s_lshl_b32 s{S_T0}, s{S_T0}, 13
    s_add_u32 s{S_PF}, s{S_PF}, s{S_T0}
    s_add_u32 s{S_PF}, s{S_PF}, {WS_WOF - PF0*32768}
    v_lshlrev_b32 v{V_PF}, 7, v{V_LANE}""")
    PFL = [lambda: e(f"s_sub_u32 s{S_T0}, s{S_N}, {PF0 + 1}\ns_cmp_lt_u32 s{S_T0}, {NPF}\ns_cselect_b32 s{S_PSRD+2}, {WS_END}, 0"),
           lambda: (e.vmem(f"buffer_load_dword v{V_PF+1}, v{V_PF}, {srd(S_PSRD)}, s{S_PF} offen sc1", "KV"), e(f"s_add_u32 s{S_PF}, s{S_PF}, 32768"))] if NPF else []
    stamp(e, 7)
    e.need(lg=[("FR", 0, 0)])
    e("s_nop 0")
    top = [("FR", 0, 4)]*4
    e(".p2align 6")
    e.label("L_body")
    loop_start = len(e.L)
    e.lgkm = list(top)
    A = [lambda j=j: att_dma(e, 0, j) for j in range(8)]; B = [lambda j=j: att_dma(e, 1, j) for j in range(8)]; D = [lambda j=j: d_load(e, j) for j in range(8)]
    T = lambda t: (lambda: e(t))
    ex, cv = sm_half(e, 1, 1)
    carry = section(e, qk_mfmas(0, 0), frag_reads(e, 1, 16384), ex, cv, None, B[4:] + D[:4], nxt=("FR", 1, 0))
    ex, cv = sm_half(e, 0, 0)
    o, s_ = pv_mfmas(1)
    section(e, o + s_, frag_reads(e, 0, 8192), ex, cv, carry, D[4:] + [T(t) for t in PREP], nxt=("FR", 0, 0), tail={1: T(PREP0)})
    ex, cv = sm_half(e, 0, 1)
    r = frag_reads(e, 1, 24576)
    carry = section(e, qk_mfmas(1, 1), r[0::2] + [NOP]*4, ex, cv, None, r[1::2] + [T(f"v_xor_b32 v{V_RD}, 32768, v{V_RD}"), NOP, NOP, NOP],
                    tail={31: lambda: e.wait_all()})
    if not OPT.get("nobar"): e("s_barrier")
    def itstamp():
        if OPT.get("itst"):
            e(f"s_memtime s[4:5]\nv_subrev_u32 v5, 14, v{V_LANE}\nv_cmp_eq_u32 vcc, s{S_N}, v5\ns_waitcnt lgkmcnt(0)\nv_mov_b32 v5, s4\nv_cndmask_b32 v{V_STAMP}, v{V_STAMP}, v5, vcc")
    itstamp()
    dg_ = {0: [A[0], carry], 4: [A[1]], 8: [A[2]], 12: [A[3]]}
    for k, t in zip((1, 2, 3, 5, 6, 7, 9), MS): dg_[k] = [T(t)]
    for k, f in zip((10, 14), PFL): dg_[k] = [f]
    if OPT.get("cpfl", 0): dg_[11] = [lambda: e.vmem("global_load_dword v6, v7, s[0:1]", "KV")]
    run(e, d_mfmas(), dg_)
    ex, cv = sm_half(e, 1, 0)
    o, s_ = pv_mfmas(0)
    section(e, o + s_, frag_reads(e, 0, 0), ex, cv, None, A[4:] + B[:4], nxt=("FR", 0, 0), tail={34: T(f"s_cmp_eq_u32 s{S_N}, s{S_T2}")})
    assert e.lgkm == top, e.lgkm
    e("s_cbranch_scc0 L_body")
    e.loop = (loop_start, len(e.L))
    e.label("L_special")
    e(f"s_cmp_gt_u32 s{S_N}, 3\ns_mov_b32 s{S_T2}, s{S_TRANS}\ns_cbranch_scc1 L_late")
    e(f"buffer_store_dword v{V_TAGV}, v{V_SIG}, {srd(S_WS)}, 0 offen sc1")
    e(poll_b.test())
    e(f"""v_mov_b32 v{V_SIG}, 0x40000000
    s_cselect_b32 s{S_T0}, 99, 3
    s_cmp_eq_u32 s{S_N}, s{S_T0}
    s_cbranch_scc1 L_spin_b""")
    e.label("L_ok_b")
    e(poll_b.ld)
    e(f"""s_add_u32 s{S_T0}, s{S_N}, 1
    s_cmp_eq_u32 s{S_N}, 3
    s_cselect_b32 s{S_DSRD+2}, {WS_END}, 0
    s_cselect_b32 s{S_DINC}, 4096, 0
    s_cselect_b32 s{S_T2}, s{S_TRANS}, s{S_T0}""")
    e.label("L_late")
    e(f"s_cmp_eq_u32 s{S_N}, s{S_TRANS}\ns_cbranch_scc0 L_body")
    e(f"s_cmp_eq_u32 s{S_N}, 17\ns_cbranch_scc0 L_trans")
    def cold():
        e.label("L_trans")
        e.lgkm = list(top); e.vm = ["KV"]*13
        qaddr = f"s_sub_u32 s{S_T0}, 3, s{w}\ns_lshl_b32 s{S_T0}, s{S_T0}, 14\ns_add_u32 s{S_T0}, s{S_T0}, 131072\nv_add_u32 v{V_TMP[14]}, s{S_T0}, v{V_L16}"
        qr = lambda: [lambda j=j: e.ds(f"ds_read_b128 {ar(A_Q + j*4)}, v{V_TMP[14]} offset:{j*1024}", "QS") for j in range(16)]
        rcp = [f"v_rcp_f32 v{LR[qb]}, v{LR[qb]}" for qb in range(4)]
        sm_tail(e)
        e(qaddr)
        o, s_ = pv_mfmas(1)
        gaps = {k: [f] for k, f in enumerate(B[4:] + D)}
        gaps[12] = [T(f"v_accvgpr_read_b32 v{LR[0]}, a{A_L}\nv_accvgpr_read_b32 v{LR[1]}, a{A_L+4}")]
        gaps[13] = [T(f"v_accvgpr_read_b32 v{LR[2]}, a{A_L+8}\nv_accvgpr_read_b32 v{LR[3]}, a{A_L+12}")]
        for k, t in enumerate(check_lines(0, S_QT) + rcp): gaps[14 + k] = [T(t)]
        items = norm_items(e, range(8), S_CTXLO)
        for k in range(23, 36):
            left = 8; gaps[k] = []
            while items and items[0][1] <= left and 4 + 4*items[0][2] + 3 + 5 <= k:
                f, c, _ = items.pop(0); gaps[k].append(f); left -= c
        run(e, s_ + o, gaps)
        emit_items(items)
        e.label("L_tjoin")
        e(PREP0)
        for t in PREP: e(t)
        e(f"v_xor_b32 v{V_RD}, {32768 + 65536}, v{V_RD}")
        e.need(vm=["KV"])
        e("s_barrier")
        itstamp()
        o, s_ = pv_mfmas(1, zero=True)
        gaps = {}
        for k, f in enumerate(A + B[:4]): gaps[4*k] = [f]
        for k, f in enumerate(qr() + frag_reads(e, 0, 0)): gaps.setdefault(1 + 4*(k // 2), []).append(f)
        init = MS + [f"v_mov_b32 v{Sreg(1, 1, 0) + 2*r}, {NEGINF:#x}\nv_mov_b32 v{Sreg(1, 1, 0) + 2*r + 1}, {NEGINF:#x}" for r in range(8)]
        init += [f"v_mov_b32 v{Preg(1, qb)}, 0\nv_mov_b32 v{Preg(1, qb) + 1}, 0" for qb in range(4)]
        for k, f in enumerate([T(t) for t in init] + PFL): gaps[2 + 4*(k // 2) + k % 2] = [f]
        gaps[50] = [T(f"s_mov_b32 s{S_TRANS}, 17")]
        run(e, d_mfmas() + o + s_, gaps, nxt=("FR", 0, 0))
        assert e.lgkm == top, e.lgkm
        e("s_branch L_special")
        e.label("L_ret0")
        e.lgkm = []; e.vm = []
        for t in rcp: e(t)
        emit_items(norm_items(e, range(8), S_CTXLO))
        e("s_branch L_tjoin")
    e.cold = cold
    e.label("L_final")
    stamp(e, 8)
    tw, trd, tl, tlr = V_TMP[0:4]
    e(f"""s_lshl_b32 s{S_T0}, s{w}, 17
    s_lshl_b32 s{S_AC}, s{h}, 19
    s_add_u32 s{S_AC}, s{S_AC}, s{S_T0}
    s_add_u32 s{S_AC}, s{S_AC}, {WS_CTX}
    s_lshl_b32 s{S_WOo}, s{i}, 19
    s_add_u32 s{S_WOo}, s{S_WOo}, s{S_T0}
    s_add_u32 s{S_WOo}, s{S_WOo}, {WS_WOF}
    s_and_b32 s{S_T0}, s{w}, 1
    s_lshl_b32 s{S_T0}, s{S_T0}, 14
    s_lshr_b32 s{S_T1}, s{w}, 1
    s_lshl_b32 s{S_T1}, s{S_T1}, 16
    s_add_u32 s{S_T0}, s{S_T0}, s{S_T1}
    v_add_u32 v{tw}, s{S_T0}, v{V_L16}
    v_xor_b32 v{trd}, {65536 + 16384}, v{tw}
    s_add_u32 s{S_T0}, s{S_WL}, {144*1024}
    v_add_u32 v{tl}, s{S_T0}, v{V_L16}
    v_xor_b32 v{tlr}, 3072, v{tl}
    s_cmp_ge_u32 s{w}, 2
    s_cbranch_scc1 L_mergeB""")
    for role in range(2):
        keep = list(range(4)) if role == 0 else list(range(4, 8))
        send = list(range(4, 8)) if role == 0 else list(range(4))
        if role == 1: e.label("L_mergeB")
        e.lgkm = list(top); e.vm = ["KV"]*13
        sm_tail(e, send + keep)
        e("s_nop 0")
        o, s_ = pv_mfmas(1, order=send + keep)
        gaps = {k: [lambda k=k: wo_load(e, k // 4, k % 4)] for k in range(8)}
        gaps[9] = [T(f"v_accvgpr_read_b32 v{LR[0]}, a{A_L}\nv_accvgpr_read_b32 v{LR[1]}, a{A_L+4}")]
        gaps[10] = [T(f"v_accvgpr_read_b32 v{LR[2]}, a{A_L+8}\nv_accvgpr_read_b32 v{LR[3]}, a{A_L+12}")]
        gaps[11] = [lambda: e.ds(f"ds_write_b128 v{tl}, {vr(LR[0])}")]
        for n in range(16): gaps[12 + n + n // 2] = [lambda n=n: e.ds(f"ds_write_b128 v{tw}, {vr(V_O + send[0]*16 + n*4)} offset:{n*1024}")]
        if OPT.get("fst"): stamp(e, 14)
        run(e, s_ + o, gaps)
        if OPT.get("fst"): stamp(e, 15)
        e.wait_all(vm=False)
        e("s_barrier")
        if OPT.get("fst"): stamp(e, 16)
        e.ds(f"ds_read_b128 {vr(V_TMP[4])}, v{tlr}", "ML")
        for n in range(16):
            e.ds(f"ds_read_b128 {vr(V_S[0] + n*4)}, v{trd} offset:{n*1024}", ("MO", n // 4))
            if n % 2: wo_load(e, 2 + n // 8, (n // 2) % 4)
        e.need(lg=["ML"])
        for qb in range(4): e(f"v_add_f32 v{LR[qb]}, v{LR[qb]}, v{V_TMP[4] + qb}")
        for t in check_lines(1 + role, S_QTHI): e(t)
        for n in range(16):
            e.need(lg=[("MO", n // 4)])
            for r in range(4):
                o = V_O + keep[0]*16 + n*4 + r
                e(f"v_add_f32 v{o}, v{o}, v{V_S[0] + n*4 + r}")
        e.label(f"L_ret{1 + role}")
        if OPT.get("fst"): stamp(e, 17)
        for qb in range(4): e(f"v_rcp_f32 v{LR[qb]}, v{LR[qb]}")
        e(f"v_add_u32 v{tw}, 32768, v{tw}")
        emit_items(norm_items(e, keep, S_CTXHI))
        if role == 0: e("s_branch L_attdone")
    e.label("L_attdone")
    stamp(e, 9)

def slow_path(e):
    M = V_P[1]; AL = V_P[1] + 4; T = V_P[1] + 8; QI = V_P[1] + 12; NI = V_P[1] + 13
    u, nu, ko, vo = S_T0, S_T1, S_T3, S_T5
    e.label("L_slow")
    e.lgkm = []; e.vm = []
    e("s_waitcnt vmcnt(0) lgkmcnt(0)")
    e(f"""s_lshl_b32 s{nu}, s{S_CNT}, 1
    s_add_u32 s{nu}, s{nu}, 2
    s_lshl_b32 s{ko}, s{S_HEAD}, 19
    s_add_u32 s{vo}, s{ko}, {WS_V}
    s_add_u32 s{ko}, s{ko}, {WS_K}
    s_lshl_b32 s{S_CNT}, s{S_CNT}, 6
    v_lshrrev_b32 v{T}, 4, v{V_LANE}
    v_lshlrev_b32 v{T}, 2, v{T}
    v_and_b32 v{QI}, 15, v{V_LANE}
    v_sub_u32 v{QI}, v{QI}, v{T}
    v_add_u32 v{QI}, s{S_CNT}, v{QI}
    v_mov_b32 v{NI}, {NEGINF:#x}
    s_mov_b32 s{u}, 0""")
    for r in range(128): e(f"v_mov_b32 v{V_O + r}, 0")
    for qb in range(4): e(f"v_mov_b32 v{M+qb}, v{NI}\nv_mov_b32 v{LR[qb]}, 0")
    e.label("L_slowl")
    for t, so in ((0, ko), (1, vo)):
        for j in range(8):
            if j == 4: e(f"s_add_u32 s{so}, s{so}, 4096")
            e.vmem(f"buffer_load_dwordx4 {ar(A_FB[t] + j*4)}, v{V_L16}, {srd(S_WS)}, s{so} offen offset:{(j%4)*1024}{SC}", "SL")
        e(f"s_add_u32 s{so}, s{so}, 4096")
    e.wait_all()
    for kb2 in range(2):
        for dg in range(4):
            for qb in range(4):
                d = vr(Sreg(0, kb2, qb))
                e(mf(d, ar(A_FB[0] + (kb2*4+dg)*4), ar(A_Q + (qb*4+dg)*4), d if dg else "0"))
    e("s_nop 7")
    for kb2 in range(2):
        for qb in range(4):
            for r in range(4):
                s = Sreg(0, kb2, qb) + r
                e(f"v_cmp_gt_i32 vcc, {16*kb2 + r - 16*qb}, v{QI}\ns_nop 1\nv_cndmask_b32 v{s}, v{s}, v{NI}, vcc")
    e(f"v_subrev_u32 v{QI}, 32, v{QI}")
    for qb in range(4):
        a, b = Sreg(0, 0, qb), Sreg(0, 1, qb)
        e(f"""v_max3_f32 v{T}, v{a}, v{a+1}, v{a+2}
        v_max3_f32 v{T}, v{T}, v{a+3}, v{b}
        v_max3_f32 v{T}, v{T}, v{b+1}, v{b+2}
        v_max3_f32 v{T}, v{T}, v{b+3}, v{M+qb}
        v_mov_b32 v{T+1}, v{T}
        s_nop 1
        v_permlane32_swap_b32 v{T}, v{T+1}
        v_max_f32 v{T}, v{T}, v{T+1}
        v_mov_b32 v{T+1}, v{T}
        s_nop 1
        v_permlane16_swap_b32 v{T}, v{T+1}
        v_max_f32 v{T}, v{T}, v{T+1}
        v_sub_f32 v{AL+qb}, v{M+qb}, v{T}
        v_mov_b32 v{M+qb}, v{T}
        v_exp_f32 v{AL+qb}, v{AL+qb}""")
        for s in list(range(a, a+4)) + list(range(b, b+4)):
            e(f"v_sub_f32 v{s}, v{s}, v{T}")
        for s in list(range(a, a+4)) + list(range(b, b+4)):
            e(f"v_exp_f32 v{s}, v{s}")
        e(f"v_mul_f32 v{LR[qb]}, v{LR[qb]}, v{AL+qb}")
        for s in list(range(a, a+4)) + list(range(b, b+4)):
            e(f"v_add_f32 v{LR[qb]}, v{LR[qb]}, v{s}")
        p = Preg(0, qb)
        e(f"v_cvt_pk_bf16_f32 v{p}, v{a}, v{a+1}\nv_cvt_pk_bf16_f32 v{p+1}, v{a+2}, v{a+3}\nv_cvt_pk_bf16_f32 v{p+2}, v{b}, v{b+1}\nv_cvt_pk_bf16_f32 v{p+3}, v{b+2}, v{b+3}")
        for db in range(8):
            for r in range(4): e(f"v_mul_f32 v{Oreg(db, qb)+r}, v{Oreg(db, qb)+r}, v{AL+qb}")
    e("s_nop 1")
    for db in range(8):
        for qb in range(4):
            d = vr(Oreg(db, qb))
            e(mf(d, ar(A_FB[1] + db*4), vr(Preg(0, qb)), d))
    e(f"s_add_u32 s{u}, s{u}, 1\ns_cmp_lt_u32 s{u}, s{nu}\ns_nop 7\ns_cbranch_scc1 L_slowl")
    for qb in range(4):
        e(f"""v_mov_b32 v{T}, v{LR[qb]}
        s_nop 1
        v_permlane32_swap_b32 v{LR[qb]}, v{T}
        v_add_f32 v{LR[qb]}, v{LR[qb]}, v{T}
        v_mov_b32 v{T}, v{LR[qb]}
        s_nop 1
        v_permlane16_swap_b32 v{LR[qb]}, v{T}
        v_add_f32 v{LR[qb]}, v{LR[qb]}, v{T}""")
    e(f"s_cmp_eq_u32 s{S_RET}, 0\ns_cbranch_scc1 L_ret0\ns_cmp_eq_u32 s{S_RET}, 1\ns_cbranch_scc1 L_ret1\ns_branch L_ret2")


def phase_d(e, poll_c):
    qt, mt, w = S_HEAD, S_BLK, S_WAVE
    V_XO, V_X, V_G = 4, 8, 17
    V_CR, NCR = 32, 6
    V_AS, V_AD = 128, 192
    t0, t1 = 24, 25
    S_XO = S_XNB
    for j in range(16):
        e.ds(f"ds_write_b128 v{V_TMP[0]}, {ar(A_DACC + j*4)} offset:{((j%4)*4 + j//4)*1024}", "DW")
        if j < OPT.get("wpre", 12): wo_load(e, 4 + j // 4, j % 4)
    e(f"""v_and_b32 v{t0}, 15, v{V_LANE}
    v_lshlrev_b32 v{t0}, 10, v{t0}
    v_lshrrev_b32 v{t1}, 4, v{V_LANE}
    v_lshl_add_u32 v{V_XO}, v{t1}, 3, v{t0}
    s_lshl_b32 s{S_XO}, s{qt}, 16
    s_lshl_b32 s{S_T0}, s{w}, 14
    s_add_u32 s{S_XO}, s{S_XO}, s{S_T0}
    s_lshl_b32 s{S_T1}, s{mt}, 7
    s_add_u32 s{S_XO}, s{S_XO}, s{S_T1}
    v_subrev_u32 v{t1}, 32768, v{V_TMP[0]}
    s_lshl_b32 s{S_T0}, s{w}, 12
    v_add_u32 v{t0}, s{S_T0}, v{V_L16}
    v_add_u32 v{V_G}, 65536, v{t0}""")
    poll32_addr(e, poll_c.voff, WS_FC)
    if OPT.get("fst"): stamp(e, 18)
    e.need(vm=["CST"]); e.wait_all(vm=False)
    if OPT.get("fst"): stamp(e, 19)
    e("s_barrier")
    if OPT.get("fst"): stamp(e, 20)
    signal(e, sig_lin(WS_FC), 26)
    for sw in range(4):
        for mb in range(4): e.ds(f"ds_read_b128 {vr(V_AD + (sw*4+mb)*4)}, v{V_G if sw >= 2 else t0} offset:{32768 + (sw % 2)*16384 + mb*1024}", ("R", sw))
    for mb in range(4):
        e.vmem(f"buffer_load_dwordx2 v[{V_X+2*mb}:{V_X+2*mb+1}], v{V_XO}, {srd(S_X)}, s{S_XO} offen offset:{mb*32}", "X")
    wl = [lambda n=n, q=q: wo_load(e, n, q) for n in range(4, 16) for q in range(4)][OPT.get("wpre", 12):]
    cnt = [0]
    def V(t):
        e(t); cnt[0] += 1
        if cnt[0] % 6 == 0 and wl: wl.pop(0)()
    def rnd(base, pk):
        for j in range(8): V(f"v_cvt_pk_bf16_f32 v{pk+j}, v{base+2*j}, v{base+2*j+1}")
        for j in range(8): V(f"v_lshlrev_b32 v{base+2*j}, 16, v{pk+j}"); V(f"v_and_b32 v{base+2*j+1}, 0xffff0000, v{pk+j}")
    def red(base, tag):
        e.need(lg=[(tag, 1)])
        for r in range(16): V(f"v_add_f32 v{base+r}, v{base+r}, v{base+16+r}")
        e.need(lg=[(tag, 3)])
        for r in range(16): V(f"v_add_f32 v{base+32+r}, v{base+32+r}, v{base+48+r}")
        for r in range(16): V(f"v_add_f32 v{base+r}, v{base+r}, v{base+32+r}")
    T = V_AD + 16; PK = V_AD + 32
    red(V_AD, "R"); rnd(V_AD, PK)
    for r in range(16): V(f"v_mul_f32 v{T+r}, 0xbfb8aa3b, v{V_AD+r}")
    for r in range(16): V(f"v_exp_f32 v{T+r}, v{T+r}")
    for r in range(16): V(f"v_add_f32 v{T+r}, 1.0, v{T+r}")
    for r in range(16): V(f"v_rcp_f32 v{T+r}, v{T+r}")
    for r in range(16): V(f"v_mul_f32 v{V_AD+r}, v{V_AD+r}, v{T+r}")
    rnd(V_AD, PK)
    while len(wl) > 8: wl.pop(0)()
    poll_c.issue()
    while wl: wl.pop(0)()
    stamp(e, 10); poll_c.check(); stamp(e, 11)
    def c_load(n, q):
        e.vmem(f"buffer_load_dwordx4 {vr(V_CR + (n % NCR)*16 + q*4)}, v{V_L16}, {srd(S_WS)}, s{S_AC} offen offset:{q*1024}{SC}", ("C", n))
        if q == 3: e(f"s_add_u32 s{S_AC}, s{S_AC}, 4096")
    for n in range(NCR - 1):
        for q in range(4): c_load(n, q)
    for n in range(32):
        ld = []
        if n + NCR - 1 < 32: ld += [lambda q=q: c_load(n + NCR - 1, q) for q in range(4)]
        if n >= 1 and n + 15 < 32: ld += [lambda q=q: wo_load(e, n + 15, q) for q in range(4)]
        e.need(vm=[("C", n), ("WO", n)])
        for k in range(16):
            mb, qb = k // 4, k % 4
            d = vr(V_AS + k*4)
            e(mf(d, ar(WSLOT[n % 16]*16 + mb*4), vr(V_CR + (n % NCR)*16 + qb*4), d if n else "0"))
            if k % 2 == 0 and ld: ld.pop(0)()
    stamp(e, 12)
    e("s_nop 7")
    for j in range(16): e.ds(f"ds_write_b128 v{t1}, {vr(V_AS + j*4)} offset:{((j%4)*4 + j//4)*1024}", "SW")
    e.need(vm=["X"])
    for j in range(8): e(f"v_lshlrev_b32 v{T+2*j}, 16, v{V_X+j}"); e(f"v_and_b32 v{T+2*j+1}, 0xffff0000, v{V_X+j}")
    e.wait_all(vm=False)
    e("s_barrier")
    for sw in range(4):
        for mb in range(4): e.ds(f"ds_read_b128 {vr(V_AS + (sw*4+mb)*4)}, v{V_G if sw >= 2 else t0} offset:{(sw % 2)*16384 + mb*1024}", ("RS", sw))
    red(V_AS, "RS"); rnd(V_AS, PK)
    for r in range(16): e(f"v_mul_f32 v{V_AS+r}, v{V_AS+r}, v{V_AD+r}")
    rnd(V_AS, PK)
    for r in range(16): e(f"v_add_f32 v{V_AS+r}, v{V_AS+r}, v{T+r}")
    for j in range(8): e(f"v_cvt_pk_bf16_f32 v{PK+j}, v{V_AS+2*j}, v{V_AS+2*j+1}")
    for mb in range(4):
        e.vmem(f"buffer_store_dwordx2 v[{PK+2*mb}:{PK+2*mb+1}], v{V_XO}, {srd(S_OUT)}, s{S_XO} offen offset:{mb*32}{OPT.get('outsc', '')}", "OUT")
    e("s_cmp_lg_u32 s2, 0")
    e("s_cbranch_scc1 L_nobump")
    signal(e, f"s_mov_b32 s{S_CNT}, {WS_EP}", 26)
    e.label("L_nobump")
    stamp(e, 13)

HEADER = open("cdna_kernels/" + NAME + ".s.ref").read().split("; Override launch geometry")[0]
def build():
    e = E(); body(e)
    n = chk.check(e.L, "all")
    a, b = e.loop
    n += chk.check(e.L[a:b] + e.L[a:b], "loop")
    if n: print(f"{n} hazards", file=sys.stderr)
    return "\n".join([HEADER.rstrip("\n"), "; @launch grid=(256,1,1) block=(256,1,1) lds=163840",
        '.amdgcn_target "amdgcn-amd-amdhsa--gfx950"\n.text', e.text(), '.section .rodata,"a"\n.p2align 6',
        f""".amdhsa_kernel {KN}
  .amdhsa_next_free_vgpr 512
  .amdhsa_next_free_sgpr 102
  .amdhsa_accum_offset 256
  .amdhsa_group_segment_fixed_size 0
  .amdhsa_kernarg_size 104
  .amdhsa_user_sgpr_count 2
  .amdhsa_user_sgpr_kernarg_segment_ptr 1
  .amdhsa_system_sgpr_workgroup_id_x 1
.end_amdhsa_kernel
"""])
if __name__ == "__main__":
    open(sys.argv[1], "w").write(build())
```

```python
import sys, math, os, struct
from emit import E, Filler
import check as chk

NAME = "recurrent_scan__compressed_kv_cla__glu_gated_geglu__prompt"
KN = NAME + "_kernel"
MB = 1 << 20
OPT = eval(os.environ.get("OPT", "{}"))
STAMPS = os.environ.get("STAMPS")
POLLALL = OPT.get("pollall", 0)
WS_XN, WS_H, WS_WDF, WS_WOF, WS_CTX, WS_K, WS_V, WS_END = 0, 2*MB, 9*MB, 12*MB, 16*MB, 32*MB, 48*MB, 64*MB
fb = lambda x: struct.unpack("<I", struct.pack("<f", x))[0]

S_X, S_CKV, S_WQ, S_WUK, S_WUV, S_WO, S_WG, S_WU, S_WD, S_OUT, S_DBG, S_WS = [8 + 4*i for i in range(12)]
S_HSRD, S_ASRD, S_BSRD = 56, 60, 64
S_WAVE, S_HEAD, S_BLK, S_ROT = 68, 69, 70, 71
S_T0, S_T1, S_T2, S_T3, S_T4, S_T5 = 72, 73, 74, 75, 76, 77
S_WL, S_WA = 78, 79
S_OFF0, S_OFFA, S_AROW, S_KVST, S_XNB, S_HST = 80, 81, 82, 83, 84, 85
S_CTXLO, S_CTXHI = 86, 87
S_SRCA, S_SRCB, S_LA, S_LB, S_VMAXB, S_VCLB = 88, 89, 90, 91, 92, 93
S_N, S_EVT, S_TRANS, S_N0 = 94, 95, 96, 97
S_QT, S_QTHI, S_RET, S_CNT = 98, 99, 100, 101
S_ROTB, S_DW, S_DH, S_DINC = 48, 49, 50, 51
S_GSRD = S_CKV
S_DSRD = S_HSRD
S_FL = 6
def srd(n): return f"s[{n}:{n+3}]"
def mf(d, a, b, c): return f"v_mfma_f32_16x16x32_bf16 {d}, {a}, {b}, {c}"
def vr(n, k=4): return f"v[{n}:{n+k-1}]"
def ar(n, k=4): return f"a[{n}:{n+k-1}]"

V_LANE, V_STAMP, V_L16 = 1, 2, 3
V_TR = (4, 5, 6, 7)
V_WOFF = (8, 9, 10, 11)
V_AOFF = (12, 13)
V_WOFG = (12, 13)
V_ARD = (14, 15)
V_TMP = list(range(16, 32))
V_POLL = 0
V_WF, V_PK, V_ACC = 32, 64, 128
def acc(db, rb): return V_ACC + (db*4 + rb)*4
def actf(ks, rb): return (ks*4 + rb)*4
V_RD = 4
V_TD, V_TN, V_LIM = 16, 20, 24
V_P, V_S, V_O = (32, 48), (64, 96), 128
A_Q, A_FB, A_DACC, A_L, A_ONE, A_DOP = 0, (64, 96), 128, 192, 208, 224
QSCALE = fb(math.log2(math.e) / math.sqrt(128.0))
NEGINF = 0xff800000
def Sreg(buf, kb2, qb): return V_S[buf] + (kb2*4 + qb)*4
def Preg(buf, qb): return V_P[buf] + qb*4
def Oreg(db, qb): return V_O + (db*4 + qb)*4
SC = " sc1"

def stamp(e, idx):
    if not STAMPS: return
    e(("s_memtime" if STAMPS == "2" else "s_memrealtime") + " s[4:5]")
    e.wait_all(vm=False)
    e(f"v_writelane_b32 v{V_STAMP}, s4, {idx}")
def stamp_flush(e):
    if not STAMPS: return
    if OPT.get("dbgst"):
        e(f"""s_load_dwordx2 s[8:9], s[0:1], 88
        s_mov_b32 s10, 256
        s_mov_b32 s11, 0x20000
        v_readlane_b32 s4, v{V_STAMP}, 0
        s_not_b32 s4, s4
        s_nop 3
        v_writelane_b32 v{V_STAMP}, s4, 14
        v_lshlrev_b32 v0, 2, v{V_LANE}
        v_cmp_gt_u32 vcc, 15, v{V_LANE}
        s_and_saveexec_b64 s[6:7], vcc
        s_waitcnt lgkmcnt(0)
        buffer_atomic_umax v{V_STAMP}, v0, s[8:11], 0 offen
        s_waitcnt vmcnt(0)""")
        return
    e(f"""s_lshl_b32 s4, s2, 2
    s_add_u32 s4, s4, s{S_WAVE}
    s_lshl_b32 s4, s4, 7
    s_add_u32 s4, s4, {64*MB}
    v_lshlrev_b32 v0, 2, v{V_LANE}
    v_cmp_gt_u32 vcc, 32, v{V_LANE}
    s_and_saveexec_b64 s[6:7], vcc
    buffer_store_dword v{V_STAMP}, v0, {srd(S_WS)}, s4 offen
    s_waitcnt vmcnt(0)""")

WS_EP = 11*MB
WS_FX, WS_FK, WS_FB, WS_FC = WS_EP + 4096, WS_EP + 8192, WS_EP + 12288, WS_EP + 16384
S_TAG = 3
def signal(e, soff_lines, tmp):
    e(soff_lines)
    e(f"""v_mov_b32 v{tmp}, s{S_TAG}
    v_add_u32 v{tmp+1}, s{S_WL}, v{V_LANE}
    v_min_u32 v{tmp+1}, 1, v{tmp+1}
    v_lshlrev_b32 v{tmp+1}, 30, v{tmp+1}""")
    e.vmem(f"buffer_store_dword v{tmp}, v{tmp+1}, {srd(S_WS)}, s{S_CNT} offen sc1", "SIG")
def sig_lin(base):
    return f"""s_lshr_b32 s{S_CNT}, s2, 3
    s_lshl_b32 s{S_CNT}, s{S_CNT}, 7
    s_and_b32 s{S_FL}, s2, 7
    s_lshl_b32 s{S_FL}, s{S_FL}, 2
    s_add_u32 s{S_CNT}, s{S_CNT}, s{S_FL}
    s_add_u32 s{S_CNT}, s{S_CNT}, {base}"""
SIG_KV = f"""s_and_b32 s{S_CNT}, s2, 31
    s_lshl_b32 s{S_CNT}, s{S_CNT}, 7
    s_lshl_b32 s{S_FL}, s{S_BLK}, 2
    s_add_u32 s{S_CNT}, s{S_CNT}, s{S_FL}
    s_add_u32 s{S_CNT}, s{S_CNT}, {WS_FK}"""
class Poll:
    def __init__(self, e, name, voff):
        self.e, self.name, self.voff = e, name, voff
    @property
    def ld(self):
        if self.name == "b" and POLLALL: return f"buffer_load_dwordx4 a[216:219], v{self.voff}, {srd(S_WS)}, 0 offen sc1"
        return f"buffer_load_dword v{V_POLL}, v{self.voff}, {srd(S_WS)}, 0 offen sc1"
    def issue(self): self.e.vmem(self.ld, ("POLL", self.name))
    def test(self):
        if self.name == "b" and POLLALL:
            return f"""v_accvgpr_read_b32 v5, a216
            v_accvgpr_read_b32 v6, a217
            v_accvgpr_read_b32 v7, a218
            v_accvgpr_read_b32 v{V_POLL}, a219
            v_xor_b32 v5, v5, v{V_POLL}
            v_xor_b32 v6, v6, v{V_POLL}
            v_xor_b32 v7, v7, v{V_POLL}
            v_or3_b32 v5, v5, v6, v7
            v_xor_b32 v{V_POLL}, s{S_TAG}, v{V_POLL}
            v_or_b32 v5, v5, v{V_POLL}
            v_cmp_eq_u32 vcc, 0, v5
            s_cmp_eq_u64 vcc, exec"""
        return f"v_cmp_eq_u32 vcc, s{S_TAG}, v{V_POLL}\ns_cmp_eq_u64 vcc, exec"
    def check(self):
        e = self.e
        e.need(vm=[("POLL", self.name)])
        e(self.test())
        e(f"s_cbranch_scc0 L_spin_{self.name}")
        e.label(f"L_ok_{self.name}")
    def spin(self):
        e = self.e
        e.label(f"L_spin_{self.name}")
        e(f"s_mov_b32 s{S_CNT}, 0x40000")
        e.label(f"L_spinl_{self.name}")
        e("s_sleep 2")
        e(self.ld)
        e("s_waitcnt vmcnt(0)")
        e(self.test())
        e(f"s_cbranch_scc1 L_ok_{self.name}")
        e(f"s_sub_u32 s{S_CNT}, s{S_CNT}, 1")
        e(f"s_cmp_lg_u32 s{S_CNT}, 0")
        e(f"s_cbranch_scc1 L_spinl_{self.name}")
        e(f"s_branch L_ok_{self.name}")
def poll32_addr(e, v, base):
    e(f"""s_lshr_b32 s{S_T0}, s{S_HEAD}, 1
    s_sub_u32 s{S_T1}, 15, s{S_T0}
    s_min_u32 s{S_T0}, s{S_T0}, s{S_T1}
    s_lshl_b32 s{S_T0}, s{S_T0}, 9
    s_add_u32 s{S_T0}, s{S_T0}, {base}
    v_bfe_u32 v{v}, v{V_LANE}, 3, 2
    v_lshlrev_b32 v{v}, 5, v{v}
    v_and_or_b32 v{v}, v{V_LANE}, 7, v{v}
    v_lshlrev_b32 v{v}, 2, v{v}
    v_add_u32 v{v}, s{S_T0}, v{v}""")

def kernel_head(e):
    e(f".globl {KN}\n.p2align 8\n.type {KN},@function")
    e.label(KN)
    e("s_cmp_ge_u32 s2, 256")
    e("s_cbranch_scc1 L_end")
    e("s_load_dwordx16 s[76:91], s[0:1], 0")
    e("s_load_dwordx8 s[92:99], s[0:1], 64")
    e("s_load_dwordx2 s[100:101], s[0:1], 96")
    if STAMPS: e(("s_memtime" if STAMPS == "2" else "s_memrealtime") + " s[4:5]")
    e(f"v_and_b32 v{V_LANE}, 63, v0")
    e("v_lshrrev_b32 v2, 6, v0")
    e(f"v_lshlrev_b32 v{V_L16}, 4, v{V_LANE}")
    e(f"v_readfirstlane_b32 s{S_WAVE}, v2")
    e(f"""s_and_b32 s{S_T0}, s2, 7
    s_lshl_b32 s{S_T0}, s{S_T0}, 2
    s_lshr_b32 s{S_T1}, s2, 3
    s_and_b32 s{S_T1}, s{S_T1}, 3
    s_add_u32 s{S_HEAD}, s{S_T0}, s{S_T1}
    s_lshr_b32 s{S_BLK}, s2, 5
    s_mul_i32 s{S_T0}, s{S_T1}, {OPT.get('rota', 4)}
    s_add_u32 s{S_ROT}, s{S_BLK}, s{S_T0}
    s_and_b32 s{S_ROT}, s{S_ROT}, 7
    s_mul_i32 s{S_T0}, s{S_T1}, {OPT.get('rotb', 0)}
    s_add_u32 s{S_ROTB}, s{S_BLK}, s{S_T0}
    s_and_b32 s{S_ROTB}, s{S_ROTB}, 3""")
    if STAMPS: e("v_mov_b32 v2, -1")
    setup_addrs(e)
    e("s_waitcnt lgkmcnt(0)")
    if STAMPS: e("v_writelane_b32 v2, s4, 0")
    if OPT.get("wsoff"): e(f"s_add_u32 s100, s100, {OPT['wsoff']*MB}\ns_addc_u32 s101, s101, 0")
    sizes = {S_X: (76, 2*MB), S_CKV: (78, 2*MB), S_WUK: (82, 4*MB), S_WS: (100, 65*MB if STAMPS else WS_END), S_WQ: (80, 4*MB), S_WUV: (84, 4*MB), S_WO: (86, 4*MB),
             S_WG: (90, 512*3584), S_WU: (92, 512*3584), S_WD: (94, 1792*1024), S_OUT: (96, 2*MB),
             S_HSRD: (100, WS_END), S_ASRD: (100, WS_END), S_BSRD: (100, WS_END)}
    for s, (p, n) in sizes.items():
        e(f"s_mov_b64 s[{s}:{s+1}], s[{p}:{p+1}]\ns_mov_b32 s{s+2}, {n}\ns_mov_b32 s{s+3}, 0x20000")
        if s == S_X:
            e(f"s_lshl_b32 s{S_T0}, s2, 13\ns_lshl_b32 s{S_T1}, s{S_WAVE}, 11\ns_add_u32 s{S_T0}, s{S_T0}, s{S_T1}")
            e.vmem(f"buffer_load_dwordx4 v[64:67], v{V_L16}, {srd(S_X)}, s{S_T0} offen", "X")
            e.vmem(f"buffer_load_dwordx4 v[68:71], v{V_L16}, {srd(S_X)}, s{S_T0} offen offset:1024", "X")
    e(f"s_add_u32 s{S_FL}, s100, {WS_EP}\ns_addc_u32 s{S_FL+1}, s101, 0\ns_load_dword s{S_TAG}, s[{S_FL}:{S_FL+1}], 0")
    e(f"""s_lshl_b32 s{S_WL}, s{S_WAVE}, 10
    s_lshl_b32 s{S_WA}, s{S_WAVE}, 13
    s_add_u32 s{S_WA}, s{S_WA}, 65536
    v_add_u32 v{V_ARD[0]}, s{S_WA}, v{V_ARD[0]}
    v_xor_b32 v{V_ARD[1]}, 64, v{V_ARD[0]}""")

V_CPF = 31
V_KPERM = 31
V_UOFF = 30
def setup_addrs(e):
    t0, t1, t2, t3, t4 = V_TMP[:5]
    e(f"""v_lshrrev_b32 v{t0}, 2, v{V_LANE}
    v_lshlrev_b32 v{t0}, 7, v{t0}
    v_and_b32 v{t1}, 3, v{V_LANE}
    v_lshlrev_b32 v{t1}, 3, v{t1}
    v_add_u32 v{t0}, v{t0}, v{t1}
    v_bfe_u32 v{t1}, v{V_LANE}, 3, 2
    v_lshlrev_b32 v{t1}, 5, v{t1}
    v_add_u32 v{V_TR[0]}, v{t0}, v{t1}""")
    for c in (1, 2, 3): e(f"v_xor_b32 v{V_TR[c]}, {c*32}, v{V_TR[0]}")
    e(f"""v_lshrrev_b32 v{t0}, 3, v{V_LANE}
    v_and_b32 v{t1}, 7, v{V_LANE}
    v_and_b32 v{t2}, 6, v{t0}
    v_xor_b32 v{t1}, v{t1}, v{t2}
    v_lshlrev_b32 v{V_UOFF}, 4, v{t1}
    s_lshl_b32 s{S_T0}, s{S_WAVE}, 3
    v_add_u32 v{t2}, s{S_T0}, v{t0}
    v_bfe_u32 v{t3}, v{t2}, 2, 2
    v_lshlrev_b32 v{t3}, 3, v{t3}
    v_lshrrev_b32 v{t4}, 4, v{t2}
    v_lshl_add_u32 v{t3}, v{t4}, 2, v{t3}
    v_and_b32 v{t4}, 3, v{t2}
    v_add_u32 v{V_KPERM}, v{t3}, v{t4}
    v_lshl_add_u32 v{V_WOFF[0]}, v{V_KPERM}, 13, v{V_UOFF}
    v_add_u32 v{V_WOFF[1]}, 128, v{V_WOFF[0]}
    v_add_u32 v{V_WOFF[2]}, {32*8192}, v{V_WOFF[0]}
    v_add_u32 v{V_WOFF[3]}, {32*8192 + 128}, v{V_WOFF[0]}
    v_and_b32 v{t1}, 7, v{V_LANE}
    v_lshrrev_b32 v{t2}, 1, v{t0}
    v_xor_b32 v{t1}, v{t1}, v{t2}
    v_lshlrev_b32 v{t1}, 4, v{t1}
    v_lshl_add_u32 v{V_AOFF[0]}, v{t0}, 10, v{t1}
    v_xor_b32 v{V_AOFF[1]}, 64, v{V_AOFF[0]}
    v_add_u32 v{V_AOFF[1]}, 8192, v{V_AOFF[1]}
    v_and_b32 v{t0}, 15, v{V_LANE}
    v_lshrrev_b32 v{t1}, 4, v{V_LANE}
    v_lshrrev_b32 v{t2}, 1, v{t0}
    v_xor_b32 v{t1}, v{t1}, v{t2}
    v_lshlrev_b32 v{t1}, 4, v{t1}
    v_lshl_add_u32 v{V_ARD[0]}, v{t0}, 7, v{t1}""")

def scalar_setup(e):
    i, h, w = S_BLK, S_HEAD, S_WAVE
    e(f"""s_lshl_b32 s{S_T0}, s{i}, 2
    s_add_u32 s{S_T0}, s{S_T0}, s{w}
    s_lshl_b32 s{S_AROW}, s{S_T0}, 16
    s_lshl_b32 s{S_KVST}, s{h}, 19
    s_lshl_b32 s{S_T0}, s{S_T0}, 14
    s_add_u32 s{S_KVST}, s{S_KVST}, s{S_T0}""")
def scalar_setup2(e):
    i, h, w = S_BLK, S_HEAD, S_WAVE
    a, b, c, d = S_N, S_EVT, S_TRANS, S_RET
    return f"""s_sub_u32 s{a}, 15, s{i}
    s_cmp_lt_u32 s{w}, 2 ! s_cselect_b32 s{b}, s{a}, s{i}
    s_lshl_b32 s{b}, s{b}, 1
    s_and_b32 s{c}, s{w}, 1
    s_add_u32 s{S_QT}, s{b}, s{c}
    s_lshl_b32 s{S_XNB}, s{S_QT}, 16
    s_mul_i32 s{S_HST}, s{S_QT}, {56*4096}
    s_add_u32 s{S_HST}, s{S_HST}, {WS_H}
    s_lshl_b32 s{d}, s{h}, 14
    s_add_u32 s{d}, s{d}, {WS_CTX}
    s_lshl_b32 s{S_CTXLO}, s{S_QT}, 19
    s_add_u32 s{S_CTXLO}, s{S_CTXLO}, s{d}
    s_lshr_b32 s{b}, s{w}, 1
    s_xor_b32 s{b}, s{b}, s{w}
    s_and_b32 s{b}, s{b}, 1
    s_lshl_b32 s{a}, s{a}, 1
    s_add_u32 s{S_QTHI}, s{a}, s{b}
    s_lshl_b32 s{S_CTXHI}, s{S_QTHI}, 19
    s_add_u32 s{S_CTXHI}, s{S_CTXHI}, s{d}
    s_cmp_lt_u32 s{h}, 28 ! s_cselect_b32 s{S_WG+2}, {512*3584}, 0
    s_mov_b32 s{S_WU+2}, s{S_WG+2}
    s_cmp_lt_u32 s{h}, 28 ! s_cselect_b32 s{S_HSRD+2}, {WS_END}, 0
    s_lshl_b32 s{a}, s{h}, 19
    s_mov_b32 s{b}, {WS_V}
    s_cmp_lt_u32 s{w}, 2 ! s_cselect_b32 s{b}, {WS_K}, s{b}
    s_add_u32 s{b}, s{b}, s{a}
    s_add_u32 s{S_VCLB}, s{b}, {63*8192}
    s_cmp_eq_u32 s{w}, 1 ! s_cselect_b32 s{a}, 8192, 0
    s_add_u32 s{S_SRCA}, s{b}, s{a}
    s_cmp_eq_u32 s{w}, 2 ! s_cselect_b32 s{a}, {3*8192}, s{a}
    s_add_u32 s{S_VMAXB}, s{b}, s{a}
    s_add_u32 s{S_VMAXB}, s{S_VMAXB}, {64*8192}
    s_min_u32 s{S_SRCB}, s{S_VMAXB}, s{S_VCLB}
    s_lshl_b32 s{S_LB}, s{w}, 13
    s_add_u32 s{S_LA}, s{S_LB}, 65536
    s_xor_b32 s{S_LB}, s{S_LB}, 32768
    s_lshl_b32 s{S_N0}, s{i}, 1
    s_add_u32 s{S_N0}, s{S_N0}, 2
    s_mul_i32 s{a}, s{w}, {14*4096}
    s_mul_i32 s{S_DH}, s{h}, {56*4096}
    s_add_u32 s{S_DH}, s{S_DH}, s{a}
    s_add_u32 s{S_DH}, s{S_DH}, {WS_H}
    s_mul_i32 s{S_DW}, s{i}, {56*4096}
    s_add_u32 s{S_DW}, s{S_DW}, s{a}
    s_add_u32 s{S_DW}, s{S_DW}, {WS_WDF}
    s_mov_b32 s{S_DINC}, 0""".split("\n")

def layernorm_lines():
    L = []; e = L.append
    X = (72, 80); SUM = (88, 89); TMP = (90, 91); MEAN = (92, 93); VAR = (94, 95)
    SS = (S_T0, S_T1)
    for r in range(2):
        for j in range(4):
            e(f"v_lshlrev_b32 v{X[r]+2*j}, 16, v{64+4*r+j}")
            e(f"v_and_b32 v{X[r]+2*j+1}, 0xffff0000, v{64+4*r+j}")
    def reduce():
        for mod in ("quad_perm:[1,0,3,2] row_mask:0xf bank_mask:0xf", "quad_perm:[2,3,0,1] row_mask:0xf bank_mask:0xf",
                    "row_half_mirror row_mask:0xf bank_mask:0xf", "row_mirror row_mask:0xf bank_mask:0xf",
                    "row_bcast:15 row_mask:0xa bank_mask:0xf", "row_bcast:31 row_mask:0xc bank_mask:0xf"):
            e("s_nop 0")
            for r in range(2): e(f"v_add_f32_dpp v{SUM[r]}, v{SUM[r]}, v{SUM[r]} {mod}")
        e("s_nop 0")
        for r in range(2): e(f"v_readlane_b32 s{SS[r]}, v{SUM[r]}, 63")
        e("s_nop 1")
    for r in range(2): e(f"v_add_f32 v{SUM[r]}, v{X[r]}, v{X[r]+1}")
    for j in range(2, 8):
        for r in range(2): e(f"v_add_f32 v{SUM[r]}, v{SUM[r]}, v{X[r]+j}")
    reduce()
    for r in range(2): e(f"v_mov_b32 v{MEAN[r]}, s{SS[r]}")
    for r in range(2): e(f"v_mul_f32 v{MEAN[r]}, 0x3b000000, v{MEAN[r]}")
    for j in range(8):
        for r in range(2): e(f"v_sub_f32 v{TMP[r]}, v{X[r]+j}, v{MEAN[r]}")
        for r in range(2): e(f"v_mul_f32 v{SUM[r]}, v{TMP[r]}, v{TMP[r]}" if j == 0 else f"v_fmac_f32 v{SUM[r]}, v{TMP[r]}, v{TMP[r]}")
    reduce()
    def both(fmt):
        for r in range(2): e(fmt.format(v=VAR[r], m=MEAN[r], s=SS[r]))
    def rnd(x):
        both("v_cvt_pk_bf16_f32 v{%s}, v{%s}, v{%s}" % (x, x, x)); both("v_lshlrev_b32 v{%s}, 16, v{%s}" % (x, x))
    both("v_mov_b32 v{v}, s{s}"); both("v_mul_f32 v{v}, 0x3b000000, v{v}")
    rnd("v"); both("v_add_f32 v{v}, 0x3727c5ac, v{v}"); rnd("v")
    both("v_sqrt_f32 v{v}, v{v}"); rnd("m"); rnd("v"); both("v_rcp_f32 v{v}, v{v}")
    for r in range(2):
        for j in range(8): e(f"v_sub_f32 v{X[r]+j}, v{X[r]+j}, v{MEAN[r]}")
        for j in range(4): e(f"v_cvt_pk_bf16_f32 v{64+4*r+j}, v{X[r]+2*j}, v{X[r]+2*j+1}")
        for j in range(4):
            e(f"v_lshlrev_b32 v{X[r]+2*j}, 16, v{64+4*r+j}")
            e(f"v_and_b32 v{X[r]+2*j+1}, 0xffff0000, v{64+4*r+j}")
        for j in range(8): e(f"v_mul_f32 v{X[r]+j}, v{X[r]+j}, v{VAR[r]}")
        for j in range(4): e(f"v_cvt_pk_bf16_f32 v{64+4*r+j}, v{X[r]+2*j}, v{X[r]+2*j+1}")
    return L

class MemQ:
    def __init__(self, e): self.e = e; self.items = []
    def add(self, kind, lo, hi, *a): self.items.append([kind, lo, hi, a])
    def fillers(self):
        e = self.e; out = []
        dm = [k for k, it in enumerate(self.items) if it[0] == 'd']
        nxt = {dm[j]: dm[j+1] for j in range(len(dm) - 1)}
        self.first_m0 = self.items[dm[0]][3][0]
        for k, (kind, lo, hi, a) in enumerate(self.items):
            if kind == 's': out.append(Filler(lambda a=a: e(a[0].replace(" ! ", "\n")), 4, "salu", lo, hi))
            elif kind == 'l': out.append(Filler(lambda a=a: e.vmem(a[0], a[1]), 4, "mem", lo, hi))
            elif kind == 'f': out.append(Filler(a[0], a[1], a[2], lo, hi))
            else:
                def fn(k=k, a=a):
                    if len(a) > 3: e.need(lg=a[3])
                    e.vmem(a[1], a[2])
                    if k in nxt: e(self.items[nxt[k]][3][0])
                out.append(Filler(fn, 8, "mem", lo, hi))
        return out


def body(e):
    i, h, w = S_BLK, S_HEAD, S_WAVE
    kernel_head(e)
    scalar_setup(e)
    NS = 32; BAR = 42; INF = 10**9; P = -10**6
    mq = MemQ(e)
    def S(lo, hi, *lines):
        for t in lines: mq.add('s', lo, hi, t)
    def VV(lo, hi, *lines):
        for t in lines: mq.add('f', lo, hi, lambda t=t: e(t), 4, "valu")
    V_GOFF, V_TRG = V_AOFF[0], V_ARD
    def w_stage(gs, lo, step, hi):
        slot = gs % 4
        if gs < 16:
            s = gs % 8
            if s == 0: S(lo - 8, hi, f"s_lshl_b32 s{S_OFF0}, s{S_ROT}, 19", f"s_lshl_b32 s{S_T5}, s{h}, 8", f"s_add_u32 s{S_OFF0}, s{S_OFF0}, s{S_T5}")
            else: S(lo - 8, hi, f"s_add_u32 s{S_OFF0}, s{S_OFF0}, {1<<19}", f"s_and_b32 s{S_OFF0}, s{S_OFF0}, {4*MB-1}")
            for n in range(4):
                mq.add('d', lo + step*n, hi, f"s_add_u32 m0, s{S_WL}, {slot*16384 + n*4096}",
                       f"buffer_load_dwordx4 v{V_WOFF[n]}, {srd(S_WUK if gs < 8 else S_WUV)}, s{S_OFF0} offen lds", ("W", gs))
        else:
            s = gs % 4; hf = (gs // 4) % 2; isg = gs < 24
            pitch = 3584 if isg else 8192
            S(lo - 10, hi, f"s_add_u32 s{S_OFF0}, s{S_ROTB}, {s}", f"s_and_b32 s{S_OFF0}, s{S_OFF0}, 3", f"s_mul_i32 s{S_OFF0}, s{S_OFF0}, {128*pitch}",
              f"s_lshl_b32 s{S_T5}, s{h}, {6 if isg else 8}", f"s_{'sub' if isg and hf else 'add'}_u32 s{S_OFF0}, s{S_OFF0}, s{S_T5}")
            if hf: S(lo - 10, hi, f"s_add_u32 s{S_OFF0}, s{S_OFF0}, {55*64 if isg else 128}")
            for n in range(4):
                if n: S(lo + step*n - 2, hi, f"s_add_u32 s{S_OFF0}, s{S_OFF0}, {32*pitch}")
                mq.add('d', lo + step*n, hi, f"s_add_u32 m0, s{S_WL}, {slot*16384 + n*4096}",
                       f"buffer_load_dwordx4 v{V_GOFF if isg else V_WOFF[0]}, {srd(S_GSRD if isg else S_WQ)}, s{S_OFF0} offen lds", ("W", gs))
    def a_stage(s, lo, step, hi):
        S(lo - 6, hi, f"s_add_u32 s{S_OFFA}, s{S_ROT}, {s}", f"s_and_b32 s{S_OFFA}, s{S_OFFA}, 7", f"s_lshl_b32 s{S_OFFA}, s{S_OFFA}, 7", f"s_add_u32 s{S_OFFA}, s{S_OFFA}, s{S_AROW}")
        for q in range(8):
            if q and q % 2 == 0: S(lo + step*q - 2, hi, f"s_add_u32 s{S_OFFA}, s{S_OFFA}, 16384")
            mq.add('d', lo + step*q, hi, f"s_add_u32 m0, s{S_WA}, {(s % 2)*32768 + q*1024}",
                   f"buffer_load_dwordx4 v{V_AOFF[q & 1]}, {srd(S_CKV)}, s{S_OFFA} offen lds", ("A", s), [("AF", s-2, 0), ("AF", s-2, 1)])
    def xn_stage(s, lo, step, hi):
        if s % 2 == 0: S(lo - 6, hi, f"s_add_u32 s{S_OFFA}, s{S_ROTB}, {s//2}", f"s_and_b32 s{S_OFFA}, s{S_OFFA}, 3", f"s_lshl_b32 s{S_OFFA}, s{S_OFFA}, 14", f"s_add_u32 s{S_OFFA}, s{S_OFFA}, s{S_XNB}")
        for ksub in range(2):
            if ksub or s % 2: S(lo + step*4*ksub - 2, hi, f"s_add_u32 s{S_OFFA}, s{S_OFFA}, 4096")
            for rb in range(4):
                mq.add('l', lo + step*(ksub*4 + rb), hi, f"buffer_load_dwordx4 {ar(actf(2*s+ksub, rb))}, v{V_L16}, {srd(S_WS)}, s{S_OFFA} offen offset:{rb*1024}{SC}", ("XN", 2*s+ksub))
    V_PO = V_TMP[13]
    poll_xn = Poll(e, "xn", V_PO); poll_kv = Poll(e, "kv", V_PO); poll_b = Poll(e, "b", V_TMP[15]); poll_c = Poll(e, "c", V_TMP[15])
    V_RT = V_TMP[8]; V_RTA = V_TMP[9:13]; V_PFD = V_TMP[1]
    RTL, RTS, RG = OPT.get("rtl", 19), OPT.get("rts", 21), OPT.get("rtgap", 30)
    S_RL = S_RET
    PRO = OPT.get("pro", 1); KVS = OPT.get("kvs", 30)
    w_stage(0, P, 0, INF); a_stage(0, P, 0, INF)
    n_pro0 = len(mq.items)
    S(P, INF, f"s_lshl_b32 s{S_T2}, s{w}, 8", f"s_add_u32 s{S_T2}, s{S_T2}, s2", f"s_lshr_b32 s{S_T3}, s{S_T2}, 3", f"s_add_u32 s{S_T4}, s{S_T2}, s{S_T3}", f"s_and_b32 s{S_T4}, s{S_T4}, 7",
      f"s_cmp_lt_u32 s{S_T2}, 448 ! s_cselect_b32 s{S_WD+2}, {1792*1024}, 0", f"s_cmp_lt_u32 s{S_T2}, 448 ! s_cselect_b32 s{S_BSRD+2}, {WS_END}, 0")
    VV(P, INF, f"v_lshrrev_b32 v{V_RT}, 3, v{V_LANE}", f"v_lshl_add_u32 v{V_RT}, v{V_RT}, 10, v{V_UOFF}")
    w_stage(1, P, 0, INF)
    if PRO >= 2: a_stage(1, P, 0, INF)
    if PRO >= 3: w_stage(2, P, 0, INF)
    n_pro1 = len(mq.items)
    if PRO < 2: a_stage(1, 0, 1, 30)
    if PRO < 3: w_stage(2, 10, 1, 36)
    def rt_loads(E0, half):
        for q in range(2*half, 2*half + 2):
            if OPT.get("rtlin"): S(E0, INF, f"s_add_u32 s{S_RL}, s{S_RL}, 1024" if q else f"s_lshl_b32 s{S_RL}, s{S_T4}, 12 ! s_lshl_b32 s{S_T5}, s{S_T3}, 3 ! s_add_u32 s{S_RL}, s{S_RL}, s{S_T5}")
            else: S(E0, INF, f"s_add_u32 s{S_RL}, s{S_RL}, 8192" if q else f"s_lshl_b32 s{S_RL}, s{S_T4}, 7 ! s_lshl_b32 s{S_T5}, s{S_T3}, 3 ! s_add_u32 s{S_RL}, s{S_RL}, s{S_T5}")
            for t, sr in enumerate((S_WO, S_WD)):
                mq.add('d', E0 + ((4 + 14*(q % 2) + 7*t) if RTL > 5 else 36), E0 + (33 if RTL > 5 else 60), f"s_add_u32 m0, s{S_WA}, {32768 + t*4096 + q*1024}", f"buffer_load_dwordx4 v{V_L16 if OPT.get('rtlin') else V_RT}, {srd(sr)}, s{S_RL} offen lds", "RT")
    for gs in range(NS):
        b = gs * 64
        if gs + 2 < 8: a_stage(gs + 2, b + (6 if gs or PRO >= 3 else 22), (4 if gs or PRO >= 3 else 2), b + 41)
        if gs == 6:
            S(b - 8, INF, f"s_lshl_b32 s{S_T1}, s{i}, 6", f"s_lshl_b32 s{S_T0}, s{w}, 4", f"s_add_u32 s{S_T1}, s{S_T1}, s{S_T0}", f"s_mul_i32 s{S_T0}, s{S_T1}, 3584",
              f"s_lshl_b32 s{S_T5}, s{h}, 6", f"s_add_u32 s{S_T0}, s{S_T0}, s{S_T5}", f"s_lshl_b32 s{S_T5}, s{h}, 7", f"s_sub_u32 s{S_T5}, {55*64}, s{S_T5}", f"s_max_i32 s{S_T5}, s{S_T5}, 0")
            VV(b - 8, INF, f"v_lshrrev_b32 v{V_TMP[0]}, 2, v{V_LANE}", f"v_and_b32 v{V_PO}, 1, v{V_LANE}", f"v_mul_u32_u24 v{V_PO}, s{S_T5}, v{V_PO}",
               f"v_mul_u32_u24 v{V_TMP[0]}, 3584, v{V_TMP[0]}", f"v_add_u32 v{V_TMP[0]}, v{V_TMP[0]}, v{V_PO}")
        if gs == 6 and OPT.get("pfq"):
            S(b, INF, f"s_lshl_b32 s{S_T1}, s{S_T1}, 13", f"s_lshl_b32 s{S_T5}, s{h}, 8", f"s_add_u32 s{S_T1}, s{S_T1}, s{S_T5}")
            VV(b, INF, f"v_lshrrev_b32 v{V_TMP[5]}, 2, v{V_LANE}", f"v_and_b32 v{V_PO}, 3, v{V_LANE}", f"v_lshlrev_b32 v{V_PO}, 6, v{V_PO}", f"v_lshl_add_u32 v{V_TMP[5]}, v{V_TMP[5]}, 13, v{V_PO}")
        if gs == OPT.get("pfq"): mq.add('l', b + 20, b + 41, f"buffer_load_dword v{V_PFD}, v{V_TMP[5]}, {srd(S_WQ)}, s{S_T1} offen", "PF")
        for kk, sg in enumerate(OPT.get("pfg", (7, 7))):
            if gs == sg: mq.add('l', b + 8 + 12*kk, b + 41, f"buffer_load_dword v{V_PFD}, v{V_TMP[0]}, {srd((S_WG, S_WU)[kk])}, s{S_T0} offen", "PF")
        if gs == 8:
            t0, t1 = V_TMP[2:4]
            S(b + 4, b + 30, f"s_lshl_b32 s{S_T5}, s{S_QT}, 7", f"s_add_u32 s{S_T5}, s{S_T5}, {WS_FX}")
            VV(b + 4, b + 30, f"v_and_b32 v{V_PO}, 7, v{V_LANE}", f"v_lshlrev_b32 v{V_PO}, 2, v{V_PO}", f"v_add_u32 v{V_PO}, s{S_T5}, v{V_PO}")
            mq.add('f', b + 28, b + 36, poll_xn.issue, 4, "mem")
        if gs == 9: mq.add('f', b + 2, b + 6, poll_xn.check, 8, "valu")
        if 9 <= gs <= 16: xn_stage(gs - 9, b + 8, 4, b + 41)
        if gs == 10:
            t0, t1 = V_TMP[2:4]
            S(b + 20, INF, f"s_cmp_lt_u32 s{w}, 2 ! s_cselect_b64 s[{S_GSRD}:{S_GSRD+1}], s[{S_WG}:{S_WG+1}], s[{S_WU}:{S_WU+1}]", f"s_mov_b32 s{S_GSRD+2}, s{S_WG+2}",
              f"s_and_b32 s{S_T5}, s{w}, 1", f"s_lshl_b32 s{S_T5}, s{S_T5}, 2")
            VV(b + 20, INF, f"v_lshrrev_b32 v{t0}, 4, v{V_LANE}", f"v_lshlrev_b32 v{t0}, 3, v{t0}", f"v_bfe_u32 v{t1}, v{V_LANE}, 2, 2", f"v_add3_u32 v{t0}, v{t0}, v{t1}, s{S_T5}",
               f"v_mul_u32_u24 v{t0}, 3584, v{t0}", f"v_bfe_u32 v{t1}, v{V_LANE}, 4, 1", f"v_lshlrev_b32 v{t1}, 5, v{t1}", f"v_and_b32 v{V_GOFF}, 3, v{V_LANE}",
               f"v_lshlrev_b32 v{V_GOFF}, 4, v{V_GOFF}", f"v_xor_b32 v{V_GOFF}, v{V_GOFF}, v{t1}", f"v_add_u32 v{V_GOFF}, v{V_GOFF}, v{t0}",
               f"v_lshrrev_b32 v{t0}, 2, v{V_LANE}", f"v_lshlrev_b32 v{t0}, 6, v{t0}", f"v_add_u32 v{t0}, v{t0}, v{t1}", f"v_and_b32 v{t1}, 3, v{V_LANE}",
               f"v_lshl_add_u32 v{V_TRG[0]}, v{t1}, 3, v{t0}", f"v_xor_b32 v{V_TRG[1]}, 32, v{V_TRG[0]}")
        if gs in (RTL, RTL + 1) and not OPT.get("nortl"): rt_loads(b, gs - RTL)
        if gs == 27:
            S(b + 4, b + 30, f"s_and_b32 s{S_T5}, s2, 31", f"s_lshl_b32 s{S_T5}, s{S_T5}, 7", f"s_add_u32 s{S_T5}, s{S_T5}, {WS_FK}")
            VV(b + 4, b + 30, f"v_and_b32 v{V_PO}, 7, v{V_LANE}", f"v_lshlrev_b32 v{V_PO}, 2, v{V_PO}", f"v_add_u32 v{V_PO}, s{S_T5}, v{V_PO}")
        if gs == KVS - 1: mq.add('f', b + 26, b + 33, poll_kv.issue, 4, "mem")
        if gs in OPT.get("cpf", ()): mq.add('l', b + 2, b + 41, f"global_load_dword v{V_UOFF}, v{V_CPF}, s[0:1]", "PF")
        if gs + 3 < NS: w_stage(gs + 3, b + 44, 4, b + 64 + 5)
    b = KVS*64
    mq.add('f', b + 4, b + 8, poll_kv.check, 8, "valu")
    for st in range(2):
        for j in range(8):
            if j == 4: S(b, INF, f"s_add_u32 s{S_T4}, s{S_SRCA}, 4096")
            mq.add('d', b + 8 + st*64 + 6*j, INF, f"s_add_u32 m0, s{S_LA}, {st*32768 + (j//4)*4096}",
                   f"buffer_load_dwordx4 v{V_L16}, {srd(S_ASRD)}, s{S_T4 if j >= 4 else S_SRCA} offen offset:{(j%4)*1024}{SC} lds", ("KV", st))
        if st == 0: S(b, INF, f"s_cmp_eq_u32 s{w}, 2 ! s_cselect_b32 s{S_T4}, 1, 2", f"s_lshl_b32 s{S_T4}, s{S_T4}, 13", f"s_add_u32 s{S_SRCA}, s{S_SRCA}, s{S_T4}")
        else: S(b, INF, f"s_add_u32 s{S_SRCA}, s{S_SRCA}, 16384")
    mfill = mq.fillers()
    e(mq.first_m0)
    for f in mfill[:n_pro0]:
        f.fn()
        if f.cost == 8: e("s_nop 0")
    if OPT.get("pfcode", 1):
        e(f"""s_getpc_b64 s[4:5]
        s_lshr_b32 s{S_T0}, s2, 3
        s_lshl_b32 s{S_T0}, s{S_T0}, 2
        s_add_u32 s{S_T0}, s{S_T0}, s{w}
        s_lshl_b32 s{S_T0}, s{S_T0}, 9
        v_and_b32 v{V_TMP[0]}, 7, v{V_LANE}
        v_lshlrev_b32 v{V_TMP[0]}, 6, v{V_TMP[0]}
        v_add_u32 v{V_TMP[0]}, s{S_T0}, v{V_TMP[0]}
        v_min_u32 v{V_TMP[0]}, L_end-L_pcref, v{V_TMP[0]}""")
        e.label("L_pcref")
        e.vmem(f"global_load_dword v{V_TMP[1]}, v{V_TMP[0]}, s[4:5]", "PF")
        e(f"v_mov_b32 v{V_CPF}, v{V_TMP[0]}")
    if OPT.get("tlb", 1):
        a, b, c = S_N, S_EVT, S_TRANS
        e(f"""s_lshr_b32 s{a}, s2, 3
        s_and_b32 s{b}, s{a}, 7
        s_add_u32 s{b}, s{b}, 2
        s_cmp_eq_u32 s{w}, 2
        s_cselect_b32 s{b}, 10, s{b}
        s_and_b32 s{c}, s{w}, 1
        s_lshr_b32 s{S_T0}, s{w}, 1
        s_cmp_eq_u32 s{c}, s{S_T0}
        s_cselect_b32 s{b}, 12, s{b}
        s_lshl_b32 s{S_T1}, s{b}, 3
        s_load_dwordx2 s[{S_ASRD}:{S_ASRD+1}], s[0:1], s{S_T1}
        s_cmp_lt_u32 s{b}, 6
        s_mov_b32 s{S_ASRD+2}, {1792*1024}
        s_cselect_b32 s{S_ASRD+2}, {4*MB}, s{S_ASRD+2}
        s_lshr_b32 s{S_T1}, s{a}, 3
        s_lshl_b32 s{a}, s{a}, 1
        s_add_u32 s{a}, s{a}, s{c}
        s_cmp_eq_u32 s{b}, 12
        s_cselect_b32 s{S_ASRD+2}, {WS_END}, s{S_ASRD+2}
        s_cselect_b32 s{a}, s{a}, s{S_T1}
        s_lshl_b32 s{a}, s{a}, 20
        v_mov_b32 v{V_TMP[5]}, s{a}
        s_waitcnt lgkmcnt(0)""")
        e.vmem(f"buffer_load_dword v{V_TMP[1]}, v{V_TMP[5]}, {srd(S_ASRD)}, 0 offen sc1", "PF")
        e(f"s_mov_b64 s[{S_ASRD}:{S_ASRD+1}], s[{S_WS}:{S_WS+1}]\ns_mov_b32 s{S_ASRD+2}, {WS_END}")
    if not OPT.get("dbgst"): e("s_mov_b64 s[0:1], s[4:5]")
    e.need(vm=["X"])
    ln = layernorm_lines()
    rest = mfill[n_pro0:n_pro1]
    per = len(ln) // (sum(f.cost == 8 for f in rest) + 1) + 1
    while ln or rest:
        for t in ln[:per]: e(t)
        ln = ln[per:]
        while rest:
            f = rest.pop(0); f.fn()
            if f.cost == 8: break
    mfill = mfill[n_pro1:]
    t0, t1, t2 = V_TMP[2:5]
    e(f"""s_lshl_b32 s{S_T0}, s{w}, 5
    s_add_u32 s{S_T0}, s{S_T0}, 49152
    v_lshlrev_b32 v{t0}, 7, v{V_LANE}
    v_add_u32 v{t0}, s{S_T0}, v{t0}""")
    e.ds(f"ds_write_b128 v{t0}, v[64:67]"); e.ds(f"ds_write_b128 v{t0}, v[68:71] offset:16")
    e(f"""s_lshl_b32 s{S_T0}, s{w}, 11
    s_add_u32 s{S_T0}, s{S_T0}, 49152
    v_add_u32 v{t0}, s{S_T0}, v{V_L16}
    v_lshrrev_b32 v{t1}, 5, v{V_LANE}
    v_lshlrev_b32 v{t1}, 12, v{t1}
    v_bfe_u32 v{t2}, v{V_LANE}, 3, 2
    v_lshl_add_u32 v{t1}, v{t2}, 8, v{t1}
    v_and_b32 v{t2}, 7, v{V_LANE}
    v_lshl_add_u32 v{t1}, v{t2}, 4, v{t1}
    s_lshr_b32 s{S_T0}, s2, 3
    s_lshl_b32 s{S_T0}, s{S_T0}, 16
    s_bfe_u32 s{S_T1}, s2, 0x20001
    s_lshl_b32 s{S_T1}, s{S_T1}, 10
    s_add_u32 s{S_T0}, s{S_T0}, s{S_T1}
    s_and_b32 s{S_T1}, s2, 1
    s_lshl_b32 s{S_T1}, s{S_T1}, 7
    s_add_u32 s{S_T0}, s{S_T0}, s{S_T1}
    s_lshl_b32 s{S_T1}, s{w}, 14
    s_add_u32 s{S_T0}, s{S_T0}, s{S_T1}
    s_add_u32 s{S_T1}, s{S_T0}, 8192""")
    misc = []
    misc.append(Filler(lambda: (e.ds(f"ds_read_b128 v[64:67], v{t0}", "LN"), e.ds(f"ds_read_b128 v[68:71], v{t0} offset:1024", "LN")), 8, "mem", 2, 30))
    misc.append(Filler(lambda: (e.need(lg=["LN"]), e.vmem(f"buffer_store_dwordx4 v[64:67], v{t1}, {srd(S_WS)}, s{S_T0} offen{SC}", "XNST")), 8, "mem", 14, 40))
    misc.append(Filler(lambda: e.vmem(f"buffer_store_dwordx4 v[68:71], v{t1}, {srd(S_WS)}, s{S_T1} offen{SC}", "XNST"), 8, "mem", 16, 41))
    for t in scalar_setup2(e): misc.append(Filler(lambda t=t: e(t.replace(" ! ", "\n")), 4, "salu", 44, 150))
    S_RA, S_RB = S_N, S_EVT
    rts = [Filler(lambda: e(f"s_add_u32 s{S_RA}, s{S_WA}, 32768"), 4, "salu", 150)]
    for c in range(4): rts.append(Filler(lambda c=c: e(f"v_add_u32 v{V_RTA[c]}, s{S_RA}, v{V_TR[c]}"), 4, "valu", 150))
    for t in (f"s_lshl_b32 s{S_RA}, s{S_T4}, 19", f"s_lshl_b32 s{S_T3}, s{S_T3}, 12", f"s_add_u32 s{S_RA}, s{S_RA}, s{S_T3}", f"s_add_u32 s{S_RA}, s{S_RA}, {WS_WOF}",
              f"s_mul_i32 s{S_RB}, s{S_T4}, {56*4096}", f"s_add_u32 s{S_RB}, s{S_RB}, s{S_T3}", f"s_add_u32 s{S_RB}, s{S_RB}, {WS_WDF}"):
        rts.append(Filler(lambda t=t: e(t), 4, "salu", 150, 185))
    SIGKV = OPT.get("sigkv", 27)
    for n in range(8):
        t, c = n // 4, n % 4
        d0 = V_PK + (n % 2)*4
        def fr(t=t, c=c, d0=d0, n=n):
            e.need(vm=["RT"])
            for rr in range(2): e.ds(f"ds_read_b64_tr_b16 v[{d0+rr*2}:{d0+rr*2+1}], v{V_RTA[c]} offset:{t*4096 + rr*2048}", ("RTF", n))
        def fs(t=t, c=c, d0=d0, n=n):
            e.need(lg=[("RTF", n)])
            e.vmem(f"buffer_store_dwordx4 {vr(d0)}, v{V_L16}, {srd((S_WS, S_BSRD)[t])}, s{(S_RA, S_RB)[t]} offen offset:{c*1024}{SC}", "RTST")
        if not OPT.get("norts"): rts.append(Filler(fr, 8, "mem", RTS*64 + 40 + RG*n)); rts.append(Filler(fs, 4, "mem", RTS*64 + 40 + RG*n + 12, 30*64 + 30 if POLLALL else (SIGKV - 1)*64))
    mfmas = []; rd = []
    sig_at = {3: (["XNST"], sig_lin(WS_FX)), SIGKV: (["KST", "VST"] + ([] if POLLALL else ["RTST"]), SIG_KV)}
    def stage_gate(gs):
        def fn():
            tags = [("W", gs)]
            if gs < 8: tags.append(("A", gs))
            if gs in sig_at: tags += sig_at[gs][0]
            f3 = OPT.get("fine3")
            if f3 is not None and 0 <= gs - f3 < 6: stamp(e, 14 + 3*(gs - f3))
            e.need(vm=tags)
            if f3 is not None and 0 <= gs - f3 < 6: stamp(e, 15 + 3*(gs - f3))
            e("s_barrier")
            if f3 is not None and 0 <= gs - f3 < 6: stamp(e, 16 + 3*(gs - f3))
            if gs in sig_at: signal(e, sig_at[gs][1], V_TMP[6])
            if gs % 8 == 0: stamp(e, 2 + gs // 8)
            if OPT.get("fine") is not None and 0 <= gs - OPT["fine"] < 18: stamp(e, 14 + gs - OPT["fine"])
        return fn
    def actread(s, ksub, rb):
        return lambda: e.ds(f"ds_read_b128 {ar(actf(2*s+ksub, rb))}, v{V_ARD[ksub]} offset:{(s % 2)*32768 + rb*2048}", ("AF", s, ksub))
    AHEAD = 5
    for gs in range(NS):
        base = gs * 64
        if gs > 0: rd.append(Filler(stage_gate(gs), 8, "mem", base - 64 + BAR, base - 64 + BAR + 1))
        pend = [Filler(actread(gs, ksub, rb), 4, "mem", base - 64 + BAR, base - 2 + 32*ksub) for ksub in range(2) for rb in range(4)] if gs < 8 else []
        for j in range(16):
            f = gs*16 + j
            if gs < 16: kslot = 2*(gs % 8) + j // 8; db = j % 8; first = (gs % 8 == 0 and j < 8)
            else: kslot = 4*(gs % 4) + j // 4; db = 4*((gs // 4) % 2) + j % 4; first = (gs % 4 == 0 and j < 4)
            for rr in range(2):
                if 16 <= gs < 24: ad, off = V_TRG[j % 2], (j // 4)*4096 + ((j % 4) // 2)*2048 + rr*1024
                else: ad, off = V_TR[j % 4], (j // 4)*4096 + rr*2048
                d = V_WF + (j % 8)*4 + rr*2
                rd.append(Filler(lambda d=d, ad=ad, off=off + (gs % 4)*16384, f=f: e.ds(f"ds_read_b64_tr_b16 v[{d}:{d+1}], v{ad} offset:{off}", ("F", f)),
                                 4, "mem", max(4*(f - AHEAD) + rr*OPT.get("trsplit", 0), base - 64 + BAR), 4*(f - 1)))
            for _ in range(2):
                if pend: rd.append(pend.pop(0))
            for rb in range(4):
                def m(gs=gs, j=j, f=f, kslot=kslot, db=db, rb=rb, first=first):
                    e.need(lg=[("F", f)] + ([("AF", gs, j // 8)] if gs < 8 else []), vm=[("XN", kslot)] if 16 <= gs < 20 else ())
                    wv = vr(V_WF + (j % 8)*4); a = ar(actf(kslot, rb)); d = vr(acc(db, rb))
                    e(mf(d, a, wv, "0" if first else d) if 8 <= gs < 16 else mf(d, wv, a, "0" if first else d))
                if OPT.get("prew", 1):
                    m.pre = lambda gs=gs, j=j, f=f, kslot=kslot: e.need(lg=[("F", f)] + ([("AF", gs, j // 8)] if gs < 8 else []), vm=[("XN", kslot)] if 16 <= gs < 20 else ())
                mfmas.append(m)
    def cvts(base, dst, dl):
        out = []
        for db in range(8):
            for rb in range(4):
                for hh in range(2):
                    d = dst(db, rb, hh); s = acc(db, rb) + 2*hh
                    out.append(Filler(lambda d=d, s=s: e(f"v_cvt_pk_bf16_f32 v{d}, v{s}, v{s+1}"), 4, "valu", base + 480 + 4*db + 9, dl(db, rb)))
        return out
    cv = cvts(0, lambda db, rb, hh: V_PK + (rb*4 + db//2)*4 + (db & 1)*2 + hh, lambda db, rb: 512 + 4*db + rb)
    VH = OPT.get("vh", 1232)
    cvv = cvts(512, lambda db, rb, hh: V_PK + ((db//4)*8 + (rb//2)*4 + db % 4)*4 + (rb & 1)*2 + hh, lambda db, rb: 1024 + 4*db + rb if db < 4 else 1278)
    for f in cvv[32:]: f.earliest = VH
    cv += cvv
    st = []
    G2 = OPT.get("sgap", 25)
    sched = [(WS_K + n*1024, n, "KST", 512 + 40 + 56*n, 512 + 484) for n in range(8)]
    sched += [(WS_K + n*1024, n, "KST", 1024 + 4 + G2*(n - 8), VH - 2) for n in range(8, 16)]
    sched += [(WS_V + ((n % 8)//4)*8192 + ((n // 8)*4 + n % 4)*1024, n, "VST", max(1024 + 4 + G2*(n + 8), 1282 if n >= 8 else 0), (SIGKV - 1)*64 + 20) for n in range(16)]
    for off, n, tag, lo, dl in sched:
        if n % 4 == 0: st.append(Filler(lambda off=off: e(f"s_add_u32 s{S_T2}, s{S_KVST}, {off}"), 4, "salu", lo - 4))
        st.append(Filler(lambda n=n, tag=tag: e.vmem(f"buffer_store_dwordx4 {vr(V_PK + n*4)}, v{V_L16}, {srd(S_WS)}, s{S_T2} offen offset:{(n%4)*1024}{SC}", tag), 4, "mem", lo, dl))
    C0 = -2.0 * math.sqrt(2.0 / math.pi) * math.log2(math.e)
    V_C1 = V_TMP[4]; V_QW = V_TMP[5]
    ge = [Filler(lambda: e(f"v_mov_b32 v{V_C1}, {fb(C0*0.044715):#x}"), 4, "valu", 1100)]
    for hf in range(2):
        lo = 1024 + 256*(hf + 1) + 6; dl = lo + 250
        def V(txt, cost=4): ge.append(Filler(lambda: e(txt), cost, "valu", lo, dl))
        for t in ([f"s_sub_u32 s{S_T0}, 55, s{h}", f"s_lshl_b32 s{S_T0}, s{S_T0}, 12"] if hf else [f"s_lshl_b32 s{S_T0}, s{h}, 12"]) + [f"s_add_u32 s{S_T0}, s{S_T0}, s{S_HST}"]:
            ge.append(Filler(lambda t=t: e(t), 4, "salu", lo, dl))
        for rb in range(4):
            for c in range(2):
                G, U = acc(4*hf + c, rb), acc(4*hf + 2 + c, rb); T = V_TMP[0:4]
                for r in range(4): V(f"v_mul_f32 v{T[r]}, v{G+r}, v{G+r}")
                for r in range(4): V(f"v_fmaak_f32 v{T[r]}, v{T[r]}, v{V_C1}, {fb(C0):#x}")
                for r in range(4): V(f"v_mul_f32 v{T[r]}, v{G+r}, v{T[r]}")
                for r in range(4):
                    V(f"v_exp_f32 v{T[r]}, v{T[r]}", 8)
                    if r % 2: V(f"v_mul_f32 v{G+r-1}, v{G+r-1}, v{U+r-1}"); V(f"v_mul_f32 v{G+r}, v{G+r}, v{U+r}")
                for r in range(4): V(f"v_add_f32 v{T[r]}, 1.0, v{T[r]}")
                for r in range(4): V(f"v_rcp_f32 v{T[r]}, v{T[r]}", 8)
                for r in range(4): V(f"v_mul_f32 v{G+r}, v{G+r}, v{T[r]}")
                D = acc(4*hf + 2, rb) + 2*c
                V(f"v_cvt_pk_bf16_f32 v{D}, v{G}, v{G+1}"); V(f"v_cvt_pk_bf16_f32 v{D+1}, v{G+2}, v{G+3}")
            ge.append(Filler(lambda rb=rb, hf=hf: e.vmem(f"buffer_store_dwordx4 {vr(acc(4*hf + 2, rb))}, v{V_L16}, {srd(S_HSRD)}, s{S_T0} offen offset:{rb*1024}{SC}", "HST"), 4, "mem", lo, dl))
    ge.append(Filler(lambda: e(f"s_lshl_b32 s{S_T0}, s{w}, 14"), 4, "salu", 1792))
    ge.append(Filler(lambda: e(f"s_add_u32 s{S_T0}, s{S_T0}, 131072"), 4, "salu", 1792))
    ge.append(Filler(lambda: e(f"v_add_u32 v{V_QW}, s{S_T0}, v{V_L16}"), 4, "valu", 1792))
    late = []
    for hf in range(2):
        for dg in (2*hf, 2*hf + 1):
            lo = 1536 + 256*hf + 240 + 8*(dg % 2) + 7 + 6
            def V(txt, cost=4, kind="valu", lo=lo): ge.append(Filler(lambda: e(txt), cost, kind, lo))
            for qb in range(4):
                o0, o1 = acc(2*dg, qb), acc(2*dg+1, qb)
                for r in range(4): V(f"v_mul_f32 v{o0+r}, {QSCALE:#x}, v{o0+r}"); V(f"v_mul_f32 v{o1+r}, {QSCALE:#x}, v{o1+r}")
                for d, s_ in ((o0, o0), (o0+1, o0+2), (o0+2, o1), (o0+3, o1+2)): V(f"v_cvt_pk_bf16_f32 v{d}, v{s_}, v{s_+1}")
                for r in range(4): V(f"v_mov_b32 v{o1+r}, 0")
                ge.append(Filler(lambda o0=o0, qb=qb, dg=dg: e.ds(f"ds_write_b128 v{V_QW}, {vr(o0)} offset:{(qb*4+dg)*1024}", "QW"), 4, "mem", lo))
        for dg in (2*hf, 2*hf + 1):
            for qb in range(4):
                o0 = acc(2*dg, qb)
                for r in range(4): ge.append(Filler(lambda r=r, o0=o0, qb=qb, dg=dg: e(f"v_accvgpr_write_b32 a{A_Q + (qb*4+dg)*4 + r}, v{o0+r}"), 4, "valu", 29*64 + 4))
        ge.append(Filler(lambda: e.need(lg=["QW"]), 4, "salu", 29*64 + 4))
        for dg in (2*hf, 2*hf + 1):
            for qb in range(4):
                for r in range(4): ge.append(Filler(lambda r=r, qb=qb, dg=dg: e(f"v_mov_b32 v{acc(2*dg, qb) + r}, 0"), 4, "valu", 29*64 + 4))
        if hf == 0:
            for r in range(16): ge.append(Filler(lambda r=r: e(f"v_mov_b32 v{Sreg(1, 1, 0) + r}, {NEGINF:#x}"), 4, "valu", 29*64 + 4))
            for r in range(64): ge.append(Filler(lambda r=r: e(f"v_accvgpr_write_b32 a{A_DACC + r}, 0"), 4, "valu", 31*64 + 4))
    stamp(e, 1)
    e.need(vm=[("W", 0), ("A", 0)]); e.wait_all(vm=False); e("s_barrier")
    e(f"s_mul_i32 s{S_TAG}, s{S_TAG}, 0x9e3779b1\ns_add_u32 s{S_TAG}, s{S_TAG}, 0x7f4a7c15")
    stamp(e, 2)
    k = 0
    while rd[k].earliest < 0: rd[k].fn(); k += 1
    rest = e.schedule(mfmas, [rd[k:], mfill, cv, misc, rts, st, ge], flush=False)
    e("s_nop 7")
    e.c(f"left over fillers: {[len(r) for r in rest]}")
    for r in rest:
        for f in r: f.fn()
    stamp(e, 6)
    attention(e, poll_b, poll_c)
    phase_d(e, poll_c)
    if OPT.get("padto"):
        e(f"v_readlane_b32 s6, v{V_STAMP}, 0\ns_add_u32 s6, s6, {OPT['padto']*100}")
        e.label("L_pad")
        e("s_memrealtime s[4:5]\ns_waitcnt lgkmcnt(0)\ns_sub_u32 s7, s4, s6\ns_cmp_lt_i32 s7, 0\ns_cbranch_scc1 L_pad")
    else: stamp_flush(e)
    e("s_branch L_end")
    e.cold()
    for p in (poll_xn, poll_kv, poll_b, poll_c): p.spin()
    slow_path(e)
    e.label("L_end")
    e("s_endpgm")

A_Z = 212
S_FIRST = 20
def att_dma(e, which, j):
    sr, src, ld = ((S_ASRD, S_SRCA, S_LA), (S_BSRD, S_SRCB, S_LB))[which]
    e.vmem(f"buffer_load_dwordx4 v{V_L16}, {srd(sr)}, s{S_T4 if j >= 4 else src} offen offset:{(j%4)*1024}{SC} lds", "KV")
    if j == 3: e(f"s_add_u32 m0, s{ld}, 4096"); e(f"s_add_u32 s{S_T4}, s{src}, 4096")
    if j == 7:
        if which == 0: e(f"s_mov_b32 m0, s{S_LB}\ns_add_u32 s{S_SRCA}, s{S_SRCA}, 16384")
        else: e(f"s_sub_u32 s{S_VMAXB}, s{S_VMAXB}, 16384\ns_min_u32 s{S_SRCB}, s{S_VMAXB}, s{S_VCLB}")
def d_load(e, j):
    so = S_DW if j < 4 else S_DH
    e.vmem(f"buffer_load_dwordx4 {ar(A_DOP + j*4)}, v{V_L16}, {srd(S_DSRD)}, s{so} offen offset:{(j%4)*1024}{SC}", "KV")
    if j % 4 == 3: e(f"s_add_u32 s{so}, s{so}, s{S_DINC}")
class M:
    def __init__(self, txt, tag=None): self.txt, self.tag = txt, tag
def d_mfmas():
    return [M(mf(ar(A_DACC + (mb*4+qb)*4), ar(A_DOP + mb*4), ar(A_DOP + 16 + qb*4), ar(A_DACC + (mb*4+qb)*4))) for mb in range(4) for qb in range(4)]
def sm_half(e, buf, kb2):
    ex = []; cv = []
    for p in range(8):
        qb, hh = p // 2, p % 2
        r = Sreg(buf, kb2, qb) + 2*hh
        ex.append(lambda r=r: e(f"v_exp_f32 v{r}, v{r}")); ex.append(lambda r=r: e(f"v_exp_f32 v{r+1}, v{r+1}"))
        d = Preg(buf, qb) + 2*kb2 + hh
        cv.append(lambda r=r, d=d: e(f"v_cvt_pk_bf16_f32 v{d}, v{r}, v{r+1}"))
    return ex, cv
def qk_mfmas(buf, half):
    out = []
    for kb2 in range(2):
        kb = half*2 + kb2
        for dg in range(4):
            for qb in range(4):
                d = vr(Sreg(buf, kb2, qb))
                c = d if dg else ("0" if kb < qb else vr(V_TD) if kb == qb else vr(V_TN))
                out.append(M(mf(d, ar(A_FB[0] + (kb2*4+dg)*4), ar(A_Q + (qb*4+dg)*4), c), ("FR", 0, kb2*4)))
    return out
def pv_mfmas(buf, zero=False, order=range(8)):
    o = []
    for db in order:
        for qb in range(4):
            d = vr(Oreg(db, qb))
            o.append(M(mf(d, ar(A_Z), ar(A_Z), "0")) if zero else M(mf(d, ar(A_FB[1] + db*4), vr(Preg(buf, qb)), d), ("FR", 1, (db // 4)*4)))
    s_ = []
    for qb in range(4):
        d = ar(A_L + qb*4)
        s_.append(M(mf(d, ar(A_Z), ar(A_Z), "0")) if zero else M(mf(d, ar(A_ONE), vr(Preg(buf, qb)), d)))
    return o, s_
def frag_reads(e, fb_, off, order=range(8)):
    return [lambda j=j: e.ds(f"ds_read_b128 {ar(A_FB[fb_] + j*4)}, v{V_RD} offset:{off + j*1024}", ("FR", fb_, (j // 4)*4)) for j in order]
NOP = lambda: None
def run(e, mfmas, gaps, nxt=None):
    if mfmas[0].tag: e.need(lg=[mfmas[0].tag])
    for i, m in enumerate(mfmas):
        e(m.txt)
        t = mfmas[i+1].tag if i + 1 < len(mfmas) else nxt
        if t: e.need(lg=[t])
        for f in gaps.get(i, ()): f()
def section(e, mfmas, reads, ex, cv, carry, g2, nxt=None, tail=None):
    gaps = {}
    for q in range(8):
        gaps[4*q] = [reads[q], (carry or NOP) if q == 0 else cv[q-1]]
        gaps[4*q+1] = [ex[2*q]]; gaps[4*q+2] = [g2[q]]; gaps[4*q+3] = [ex[2*q+1]]
    if len(mfmas) > 32: gaps[32] = [cv[7]]
    for k, f in (tail or {}).items(): gaps.setdefault(k, []).insert(0, f)
    run(e, mfmas, gaps, nxt)
    return cv[7] if len(mfmas) == 32 else None
PREP = [f"s_cmp_le_u32 s{S_N}, 15\ns_cselect_b32 s{S_ASRD+2}, {WS_END}, 0\ns_cselect_b32 s{S_T0}, 32768, s{S_T1}", f"s_add_u32 s{S_T3}, s{S_N}, 2\ns_xor_b32 s{S_LB}, s{S_LB}, s{S_T0}",
        f"s_cmp_ge_u32 s{S_T3}, s{S_N0}\ns_cselect_b32 s{S_BSRD+2}, s{S_ASRD+2}, 0", f"s_xor_b32 s{S_LA}, s{S_LA}, s{S_T0}\ns_mov_b32 m0, s{S_LA}"]
PREP0 = f"s_mov_b32 s{S_T1}, 0x30000"
LR = V_TMP[10:14]
def check_lines(ret, qt):
    return [f"v_min3_f32 v{V_LIM+1}, v{LR[0]}, v{LR[1]}, v{LR[2]}\nv_add_f32 v{V_LIM}, v{LR[0]}, v{LR[1]}",
            f"v_add_f32 v{V_LIM}, v{V_LIM}, v{LR[2]}\nv_min_f32 v{V_LIM+1}, v{V_LIM+1}, v{LR[3]}",
            f"s_mov_b32 s{S_RET}, {ret}\nv_add_f32 v{V_LIM}, v{V_LIM}, v{LR[3]}\nv_cmp_nle_f32 vcc, 0x17800000, v{V_LIM+1}",
            f"s_mov_b64 s[{S_FL}:{S_FL+1}], vcc\ns_mov_b32 s{S_CNT}, s{qt}\nv_cmp_nge_f32 vcc, {OPT.get('lhi', 0x67800000):#x}, v{V_LIM}",
            f"s_or_b64 vcc, vcc, s[{S_FL}:{S_FL+1}]\n" + ("s_nop 0" if OPT.get("noslow") else "s_cbranch_vccnz L_slow")]
def norm_items(e, dbs, sbase):
    it = []
    for dg in sorted({d // 2 for d in dbs}):
        it.append((lambda dg=dg: e(f"s_add_u32 s{S_T0}, s{sbase}, {dg*4096}"), 0, 2*dg+1))
        for qb in range(4):
            o0, o1 = Oreg(2*dg, qb), Oreg(2*dg+1, qb)
            for r in range(4):
                for o in (o0, o1): it.append((lambda o=o, r=r, qb=qb: e(f"v_mul_f32 v{o+r}, v{o+r}, v{LR[qb]}"), 4, 2*dg+1))
            for d, s_ in ((o0, o0), (o0+1, o0+2), (o0+2, o1), (o0+3, o1+2)): it.append((lambda d=d, s_=s_: e(f"v_cvt_pk_bf16_f32 v{d}, v{s_}, v{s_+1}"), 4, 2*dg+1))
            it.append((lambda o0=o0, qb=qb: e.vmem(f"buffer_store_dwordx4 {vr(o0)}, v{V_L16}, {srd(S_WS)}, s{S_T0} offen offset:{qb*1024}{SC}", "CST"), 8, 2*dg+1))
    return it
def emit_items(items, extra=()):
    extra = list(extra)
    for f, c, _ in items:
        f()
        if c == 8:
            for _ in range(2):
                if extra: extra.pop(0)()
    for f in extra: f()
def sm_tail(e, order=range(8)):
    ex, cv = sm_half(e, 1, 1)
    for f in frag_reads(e, 1, 16384, order): f()
    for p in range(8):
        ex[2*p](); ex[2*p+1]()
        if p: cv[p-1]()
    e("s_nop 0"); cv[7]()

S_WOo, S_AC = S_OFF0, S_OFFA
WSLOT = [14, 15, 13, 12, 4, 5, 6, 7, 0, 1, 2, 3, 8, 9, 10, 11]
def wo_load(e, n, q):
    e.vmem(f"buffer_load_dwordx4 {ar(WSLOT[n % 16]*16 + q*4)}, v{V_L16}, {srd(S_WS)}, s{S_WOo} offen offset:{q*1024}{SC}", ("WO", n))
    if q == 3: e(f"s_add_u32 s{S_WOo}, s{S_WOo}, 4096")

def attention(e, poll_b, poll_c):
    i, h, w = S_BLK, S_HEAD, S_WAVE
    V_TRI = 8
    S_D1, S_D2, S_M = S_EVT, S_FIRST, S_FIRST + 1
    e(f"v_add_u32 v{V_RD}, 65536, v{V_L16}")
    e.need(vm=[("KV", 0)], lg=["QW"])
    e("s_barrier")
    for f in frag_reads(e, 0, 0): f()
    t0, t1, t2 = V_TMP[10:13]
    e(f"""v_mov_b32 v7, v{V_CPF}
    v_mov_b32 v{V_TMP[15]}, 0x3f803f80
    v_lshrrev_b32 v{t0}, 4, v{V_LANE}
    v_lshlrev_b32 v{t0}, 2, v{t0}
    v_and_b32 v{t1}, 15, v{V_LANE}
    v_sub_u32 v{t0}, v{t1}, v{t0}
    v_mov_b32 v{t2}, {NEGINF:#x}""")
    if OPT.get("onehot", 1):
        e(f"v_and_b32 v5, 3, v{V_LANE}\nv_cmp_eq_u32 vcc, 0, v5\ns_nop 1\nv_cndmask_b32 v{V_TMP[15]}, 0, v{V_TMP[15]}, vcc")
    for r in range(4):
        e(f"v_cmp_gt_i32 vcc, {r}, v{t0}\nv_accvgpr_write_b32 a{A_Z + r}, 0\nv_accvgpr_write_b32 a{A_ONE + r}, v{V_TMP[15]}\nv_cndmask_b32 v{V_TRI + r}, 0, v{t2}, vcc")
    for r in range(16): e(f"v_accvgpr_write_b32 a{A_L + r}, 0")
    for qb in range(4): e(f"v_mov_b32 v{Preg(1, qb)}, 0\nv_mov_b32 v{Preg(1, qb) + 1}, 0")
    e(f"""s_lshl_b32 s{S_TRANS}, s{i}, 1
    s_add_u32 s{S_TRANS}, s{S_TRANS}, s{w}
    s_sub_u32 s{S_TRANS}, s{S_TRANS}, 1
    s_sub_u32 s{S_D1}, s{S_TRANS}, 1
    s_add_u32 s{S_D2}, s{S_TRANS}, 1
    s_cmp_eq_u32 s{i}, 7
    s_cselect_b32 s{S_T0}, 16, 99
    s_cmp_eq_u32 s{w}, 0
    s_cselect_b32 s{S_T0}, s{S_T0}, 99
    s_cmp_lt_u32 s{w}, 2
    s_cselect_b32 s{S_D1}, s{S_T0}, s{S_D1}
    s_cselect_b32 s{S_D2}, 99, s{S_D2}
    s_cselect_b32 s{S_TRANS}, 17, s{S_TRANS}
    s_mov_b32 s{S_T2}, 1
    s_mov_b32 s{S_N}, -1
    s_mov_b32 s{S_BSRD+2}, 0
    s_mov_b32 s{S_DSRD+2}, 0
    s_xor_b32 s{S_LA}, s{S_LA}, 32768
    s_add_u32 m0, s{S_LB}, 4096
    s_mov_b32 s{S_T4}, s{S_SRCB}""")
    MS = [f"s_add_u32 s{S_N}, s{S_N}, 1", f"s_cmp_eq_u32 s{S_N}, s{S_D1}\ns_cselect_b32 s{S_M}, -1, 0", f"s_cmp_eq_u32 s{S_N}, s{S_D2}\ns_cselect_b32 s{S_M}, -1, s{S_M}",
          f"v_and_b32 v{V_TD}, s{S_M}, v{V_TRI}\nv_and_b32 v{V_TD+1}, s{S_M}, v{V_TRI+1}", f"v_and_b32 v{V_TD+2}, s{S_M}, v{V_TRI+2}\nv_and_b32 v{V_TD+3}, s{S_M}, v{V_TRI+3}",
          f"s_and_b32 s{S_M}, s{S_M}, {NEGINF:#x}\nv_mov_b32 v{V_TN}, s{S_M}\nv_mov_b32 v{V_TN+1}, s{S_M}", f"v_mov_b32 v{V_TN+2}, s{S_M}\nv_mov_b32 v{V_TN+3}, s{S_M}"]
    for t in MS: e(t)
    V_SIG, V_TAGV = 12, 13
    e(sig_lin(WS_FB))
    e(f"""v_mov_b32 v{V_TAGV}, s{S_TAG}
    v_add_u32 v{V_SIG}, s{S_WL}, v{V_LANE}
    v_min_u32 v{V_SIG}, 1, v{V_SIG}
    v_lshlrev_b32 v{V_SIG}, 30, v{V_SIG}
    v_add_u32 v{V_SIG}, s{S_CNT}, v{V_SIG}""")
    if not POLLALL: poll32_addr(e, poll_b.voff, WS_FB)
    else: e(f"""v_lshrrev_b32 v{poll_b.voff}, 1, v{V_LANE}
    v_lshlrev_b32 v{poll_b.voff}, 3, v{poll_b.voff}
    v_and_or_b32 v{poll_b.voff}, v{V_LANE}, 1, v{poll_b.voff}
    v_lshlrev_b32 v{poll_b.voff}, 4, v{poll_b.voff}
    v_add_u32 v{poll_b.voff}, {WS_FB}, v{poll_b.voff}""")
    S_PSRD, S_PF, V_PF = S_WUV, S_FIRST + 2, 14
    NPF = OPT.get("npf", 0); PF0 = OPT.get("pf0", 17 - NPF)
    e(f"""s_mov_b64 s[{S_PSRD}:{S_PSRD+1}], s[{S_WS}:{S_WS+1}]
    s_lshl_b32 s{S_PF}, s{i}, 19
    s_lshl_b32 s{S_T0}, s{w}, 17
    s_add_u32 s{S_PF}, s{S_PF}, s{S_T0}
    s_and_b32 s{S_T0}, s{h}, 3
    s_lshl_b32 s{S_T0}, s{S_T0}, 13
    s_add_u32 s{S_PF}, s{S_PF}, s{S_T0}
    s_add_u32 s{S_PF}, s{S_PF}, {WS_WOF - PF0*32768}
    v_lshlrev_b32 v{V_PF}, 7, v{V_LANE}""")
    PFL = [lambda: e(f"s_sub_u32 s{S_T0}, s{S_N}, {PF0 + 1}\ns_cmp_lt_u32 s{S_T0}, {NPF}\ns_cselect_b32 s{S_PSRD+2}, {WS_END}, 0"),
           lambda: (e.vmem(f"buffer_load_dword v{V_PF+1}, v{V_PF}, {srd(S_PSRD)}, s{S_PF} offen sc1", "KV"), e(f"s_add_u32 s{S_PF}, s{S_PF}, 32768"))] if NPF else []
    stamp(e, 7)
    e.need(lg=[("FR", 0, 0)])
    e("s_nop 0")
    top = [("FR", 0, 4)]*4
    e(".p2align 6")
    e.label("L_body")
    loop_start = len(e.L)
    e.lgkm = list(top)
    A = [lambda j=j: att_dma(e, 0, j) for j in range(8)]; B = [lambda j=j: att_dma(e, 1, j) for j in range(8)]; D = [lambda j=j: d_load(e, j) for j in range(8)]
    T = lambda t: (lambda: e(t))
    ex, cv = sm_half(e, 1, 1)
    carry = section(e, qk_mfmas(0, 0), frag_reads(e, 1, 16384), ex, cv, None, B[4:] + D[:4], nxt=("FR", 1, 0))
    ex, cv = sm_half(e, 0, 0)
    o, s_ = pv_mfmas(1)
    section(e, o + s_, frag_reads(e, 0, 8192), ex, cv, carry, D[4:] + [T(t) for t in PREP], nxt=("FR", 0, 0), tail={1: T(PREP0)})
    ex, cv = sm_half(e, 0, 1)
    r = frag_reads(e, 1, 24576)
    carry = section(e, qk_mfmas(1, 1), r[0::2] + [NOP]*4, ex, cv, None, r[1::2] + [T(f"v_xor_b32 v{V_RD}, 32768, v{V_RD}"), NOP, NOP, NOP],
                    tail={31: lambda: e.wait_all()})
    if not OPT.get("nobar"): e("s_barrier")
    def itstamp():
        if OPT.get("itst"):
            e(f"s_memtime s[4:5]\nv_subrev_u32 v5, 14, v{V_LANE}\nv_cmp_eq_u32 vcc, s{S_N}, v5\ns_waitcnt lgkmcnt(0)\nv_mov_b32 v5, s4\nv_cndmask_b32 v{V_STAMP}, v{V_STAMP}, v5, vcc")
    itstamp()
    dg_ = {0: [A[0], carry], 4: [A[1]], 8: [A[2]], 12: [A[3]]}
    for k, t in zip((1, 2, 3, 5, 6, 7, 9), MS): dg_[k] = [T(t)]
    for k, f in zip((10, 14), PFL): dg_[k] = [f]
    if OPT.get("cpfl", 0): dg_[11] = [lambda: e.vmem("global_load_dword v6, v7, s[0:1]", "KV")]
    run(e, d_mfmas(), dg_)
    ex, cv = sm_half(e, 1, 0)
    o, s_ = pv_mfmas(0)
    section(e, o + s_, frag_reads(e, 0, 0), ex, cv, None, A[4:] + B[:4], nxt=("FR", 0, 0), tail={34: T(f"s_cmp_eq_u32 s{S_N}, s{S_T2}")})
    assert e.lgkm == top, e.lgkm
    e("s_cbranch_scc0 L_body")
    e.loop = (loop_start, len(e.L))
    e.label("L_special")
    e(f"s_cmp_gt_u32 s{S_N}, 3\ns_mov_b32 s{S_T2}, s{S_TRANS}\ns_cbranch_scc1 L_late")
    e(f"buffer_store_dword v{V_TAGV}, v{V_SIG}, {srd(S_WS)}, 0 offen sc1")
    e(poll_b.test())
    e(f"""v_mov_b32 v{V_SIG}, 0x40000000
    s_cselect_b32 s{S_T0}, 99, 3
    s_cmp_eq_u32 s{S_N}, s{S_T0}
    s_cbranch_scc1 L_spin_b""")
    e.label("L_ok_b")
    e(poll_b.ld)
    e(f"""s_add_u32 s{S_T0}, s{S_N}, 1
    s_cmp_eq_u32 s{S_N}, 3
    s_cselect_b32 s{S_DSRD+2}, {WS_END}, 0
    s_cselect_b32 s{S_DINC}, 4096, 0
    s_cselect_b32 s{S_T2}, s{S_TRANS}, s{S_T0}""")
    e.label("L_late")
    e(f"s_cmp_eq_u32 s{S_N}, s{S_TRANS}\ns_cbranch_scc0 L_body")
    e(f"s_cmp_eq_u32 s{S_N}, 17\ns_cbranch_scc0 L_trans")
    def cold():
        e.label("L_trans")
        e.lgkm = list(top); e.vm = ["KV"]*13
        qaddr = f"s_sub_u32 s{S_T0}, 3, s{w}\ns_lshl_b32 s{S_T0}, s{S_T0}, 14\ns_add_u32 s{S_T0}, s{S_T0}, 131072\nv_add_u32 v{V_TMP[14]}, s{S_T0}, v{V_L16}"
        qr = lambda: [lambda j=j: e.ds(f"ds_read_b128 {ar(A_Q + j*4)}, v{V_TMP[14]} offset:{j*1024}", "QS") for j in range(16)]
        rcp = [f"v_rcp_f32 v{LR[qb]}, v{LR[qb]}" for qb in range(4)]
        sm_tail(e)
        e(qaddr)
        o, s_ = pv_mfmas(1)
        gaps = {k: [f] for k, f in enumerate(B[4:] + D)}
        gaps[12] = [T(f"v_accvgpr_read_b32 v{LR[0]}, a{A_L}\nv_accvgpr_read_b32 v{LR[1]}, a{A_L+4}")]
        gaps[13] = [T(f"v_accvgpr_read_b32 v{LR[2]}, a{A_L+8}\nv_accvgpr_read_b32 v{LR[3]}, a{A_L+12}")]
        for k, t in enumerate(check_lines(0, S_QT) + rcp): gaps[14 + k] = [T(t)]
        items = norm_items(e, range(8), S_CTXLO)
        for k in range(23, 36):
            left = 8; gaps[k] = []
            while items and items[0][1] <= left and 4 + 4*items[0][2] + 3 + 5 <= k:
                f, c, _ = items.pop(0); gaps[k].append(f); left -= c
        run(e, s_ + o, gaps)
        emit_items(items)
        e.label("L_tjoin")
        e(PREP0)
        for t in PREP: e(t)
        e(f"v_xor_b32 v{V_RD}, {32768 + 65536}, v{V_RD}")
        e.need(vm=["KV"])
        e("s_barrier")
        itstamp()
        o, s_ = pv_mfmas(1, zero=True)
        gaps = {}
        for k, f in enumerate(A + B[:4]): gaps[4*k] = [f]
        for k, f in enumerate(qr() + frag_reads(e, 0, 0)): gaps.setdefault(1 + 4*(k // 2), []).append(f)
        init = MS + [f"v_mov_b32 v{Sreg(1, 1, 0) + 2*r}, {NEGINF:#x}\nv_mov_b32 v{Sreg(1, 1, 0) + 2*r + 1}, {NEGINF:#x}" for r in range(8)]
        init += [f"v_mov_b32 v{Preg(1, qb)}, 0\nv_mov_b32 v{Preg(1, qb) + 1}, 0" for qb in range(4)]
        for k, f in enumerate([T(t) for t in init] + PFL): gaps[2 + 4*(k // 2) + k % 2] = [f]
        gaps[50] = [T(f"s_mov_b32 s{S_TRANS}, 17")]
        run(e, d_mfmas() + o + s_, gaps, nxt=("FR", 0, 0))
        assert e.lgkm == top, e.lgkm
        e("s_branch L_special")
        e.label("L_ret0")
        e.lgkm = []; e.vm = []
        for t in rcp: e(t)
        emit_items(norm_items(e, range(8), S_CTXLO))
        e("s_branch L_tjoin")
    e.cold = cold
    e.label("L_final")
    stamp(e, 8)
    tw, trd, tl, tlr = V_TMP[0:4]
    e(f"""s_lshl_b32 s{S_T0}, s{w}, 17
    s_lshl_b32 s{S_AC}, s{h}, 19
    s_add_u32 s{S_AC}, s{S_AC}, s{S_T0}
    s_add_u32 s{S_AC}, s{S_AC}, {WS_CTX}
    s_lshl_b32 s{S_WOo}, s{i}, 19
    s_add_u32 s{S_WOo}, s{S_WOo}, s{S_T0}
    s_add_u32 s{S_WOo}, s{S_WOo}, {WS_WOF}
    s_and_b32 s{S_T0}, s{w}, 1
    s_lshl_b32 s{S_T0}, s{S_T0}, 14
    s_lshr_b32 s{S_T1}, s{w}, 1
    s_lshl_b32 s{S_T1}, s{S_T1}, 16
    s_add_u32 s{S_T0}, s{S_T0}, s{S_T1}
    v_add_u32 v{tw}, s{S_T0}, v{V_L16}
    v_xor_b32 v{trd}, {65536 + 16384}, v{tw}
    s_add_u32 s{S_T0}, s{S_WL}, {144*1024}
    v_add_u32 v{tl}, s{S_T0}, v{V_L16}
    v_xor_b32 v{tlr}, 3072, v{tl}
    s_cmp_ge_u32 s{w}, 2
    s_cbranch_scc1 L_mergeB""")
    for role in range(2):
        keep = list(range(4)) if role == 0 else list(range(4, 8))
        send = list(range(4, 8)) if role == 0 else list(range(4))
        if role == 1: e.label("L_mergeB")
        e.lgkm = list(top); e.vm = ["KV"]*13
        sm_tail(e, send + keep)
        e("s_nop 0")
        o, s_ = pv_mfmas(1, order=send + keep)
        gaps = {k: [lambda k=k: wo_load(e, k // 4, k % 4)] for k in range(8)}
        gaps[9] = [T(f"v_accvgpr_read_b32 v{LR[0]}, a{A_L}\nv_accvgpr_read_b32 v{LR[1]}, a{A_L+4}")]
        gaps[10] = [T(f"v_accvgpr_read_b32 v{LR[2]}, a{A_L+8}\nv_accvgpr_read_b32 v{LR[3]}, a{A_L+12}")]
        gaps[11] = [lambda: e.ds(f"ds_write_b128 v{tl}, {vr(LR[0])}")]
        for n in range(16): gaps[12 + n + n // 2] = [lambda n=n: e.ds(f"ds_write_b128 v{tw}, {vr(V_O + send[0]*16 + n*4)} offset:{n*1024}")]
        if OPT.get("fst"): stamp(e, 14)
        run(e, s_ + o, gaps)
        if OPT.get("fst"): stamp(e, 15)
        e.wait_all(vm=False)
        e("s_barrier")
        if OPT.get("fst"): stamp(e, 16)
        e.ds(f"ds_read_b128 {vr(V_TMP[4])}, v{tlr}", "ML")
        for n in range(16):
            e.ds(f"ds_read_b128 {vr(V_S[0] + n*4)}, v{trd} offset:{n*1024}", ("MO", n // 4))
            if n % 2: wo_load(e, 2 + n // 8, (n // 2) % 4)
        e.need(lg=["ML"])
        for qb in range(4): e(f"v_add_f32 v{LR[qb]}, v{LR[qb]}, v{V_TMP[4] + qb}")
        for t in check_lines(1 + role, S_QTHI): e(t)
        for n in range(16):
            e.need(lg=[("MO", n // 4)])
            for r in range(4):
                o = V_O + keep[0]*16 + n*4 + r
                e(f"v_add_f32 v{o}, v{o}, v{V_S[0] + n*4 + r}")
        e.label(f"L_ret{1 + role}")
        if OPT.get("fst"): stamp(e, 17)
        for qb in range(4): e(f"v_rcp_f32 v{LR[qb]}, v{LR[qb]}")
        e(f"v_add_u32 v{tw}, 32768, v{tw}")
        emit_items(norm_items(e, keep, S_CTXHI))
        if role == 0: e("s_branch L_attdone")
    e.label("L_attdone")
    stamp(e, 9)

def slow_path(e):
    M = V_P[1]; AL = V_P[1] + 4; T = V_P[1] + 8; QI = V_P[1] + 12; NI = V_P[1] + 13
    u, nu, ko, vo = S_T0, S_T1, S_T3, S_T5
    e.label("L_slow")
    e.lgkm = []; e.vm = []
    e("s_waitcnt vmcnt(0) lgkmcnt(0)")
    e(f"""s_lshl_b32 s{nu}, s{S_CNT}, 1
    s_add_u32 s{nu}, s{nu}, 2
    s_lshl_b32 s{ko}, s{S_HEAD}, 19
    s_add_u32 s{vo}, s{ko}, {WS_V}
    s_add_u32 s{ko}, s{ko}, {WS_K}
    s_lshl_b32 s{S_CNT}, s{S_CNT}, 6
    v_lshrrev_b32 v{T}, 4, v{V_LANE}
    v_lshlrev_b32 v{T}, 2, v{T}
    v_and_b32 v{QI}, 15, v{V_LANE}
    v_sub_u32 v{QI}, v{QI}, v{T}
    v_add_u32 v{QI}, s{S_CNT}, v{QI}
    v_mov_b32 v{NI}, {NEGINF:#x}
    s_mov_b32 s{u}, 0""")
    for r in range(128): e(f"v_mov_b32 v{V_O + r}, 0")
    for qb in range(4): e(f"v_mov_b32 v{M+qb}, v{NI}\nv_mov_b32 v{LR[qb]}, 0")
    e.label("L_slowl")
    for t, so in ((0, ko), (1, vo)):
        for j in range(8):
            if j == 4: e(f"s_add_u32 s{so}, s{so}, 4096")
            e.vmem(f"buffer_load_dwordx4 {ar(A_FB[t] + j*4)}, v{V_L16}, {srd(S_WS)}, s{so} offen offset:{(j%4)*1024}{SC}", "SL")
        e(f"s_add_u32 s{so}, s{so}, 4096")
    e.wait_all()
    for kb2 in range(2):
        for dg in range(4):
            for qb in range(4):
                d = vr(Sreg(0, kb2, qb))
                e(mf(d, ar(A_FB[0] + (kb2*4+dg)*4), ar(A_Q + (qb*4+dg)*4), d if dg else "0"))
    e("s_nop 7")
    for kb2 in range(2):
        for qb in range(4):
            for r in range(4):
                s = Sreg(0, kb2, qb) + r
                e(f"v_cmp_gt_i32 vcc, {16*kb2 + r - 16*qb}, v{QI}\ns_nop 1\nv_cndmask_b32 v{s}, v{s}, v{NI}, vcc")
    e(f"v_subrev_u32 v{QI}, 32, v{QI}")
    for qb in range(4):
        a, b = Sreg(0, 0, qb), Sreg(0, 1, qb)
        e(f"""v_max3_f32 v{T}, v{a}, v{a+1}, v{a+2}
        v_max3_f32 v{T}, v{T}, v{a+3}, v{b}
        v_max3_f32 v{T}, v{T}, v{b+1}, v{b+2}
        v_max3_f32 v{T}, v{T}, v{b+3}, v{M+qb}
        v_mov_b32 v{T+1}, v{T}
        s_nop 1
        v_permlane32_swap_b32 v{T}, v{T+1}
        v_max_f32 v{T}, v{T}, v{T+1}
        v_mov_b32 v{T+1}, v{T}
        s_nop 1
        v_permlane16_swap_b32 v{T}, v{T+1}
        v_max_f32 v{T}, v{T}, v{T+1}
        v_sub_f32 v{AL+qb}, v{M+qb}, v{T}
        v_mov_b32 v{M+qb}, v{T}
        v_exp_f32 v{AL+qb}, v{AL+qb}""")
        for s in list(range(a, a+4)) + list(range(b, b+4)):
            e(f"v_sub_f32 v{s}, v{s}, v{T}")
        for s in list(range(a, a+4)) + list(range(b, b+4)):
            e(f"v_exp_f32 v{s}, v{s}")
        e(f"v_mul_f32 v{LR[qb]}, v{LR[qb]}, v{AL+qb}")
        for s in list(range(a, a+4)) + list(range(b, b+4)):
            e(f"v_add_f32 v{LR[qb]}, v{LR[qb]}, v{s}")
        p = Preg(0, qb)
        e(f"v_cvt_pk_bf16_f32 v{p}, v{a}, v{a+1}\nv_cvt_pk_bf16_f32 v{p+1}, v{a+2}, v{a+3}\nv_cvt_pk_bf16_f32 v{p+2}, v{b}, v{b+1}\nv_cvt_pk_bf16_f32 v{p+3}, v{b+2}, v{b+3}")
        for db in range(8):
            for r in range(4): e(f"v_mul_f32 v{Oreg(db, qb)+r}, v{Oreg(db, qb)+r}, v{AL+qb}")
    e("s_nop 1")
    for db in range(8):
        for qb in range(4):
            d = vr(Oreg(db, qb))
            e(mf(d, ar(A_FB[1] + db*4), vr(Preg(0, qb)), d))
    e(f"s_add_u32 s{u}, s{u}, 1\ns_cmp_lt_u32 s{u}, s{nu}\ns_nop 7\ns_cbranch_scc1 L_slowl")
    for qb in range(4):
        e(f"""v_mov_b32 v{T}, v{LR[qb]}
        s_nop 1
        v_permlane32_swap_b32 v{LR[qb]}, v{T}
        v_add_f32 v{LR[qb]}, v{LR[qb]}, v{T}
        v_mov_b32 v{T}, v{LR[qb]}
        s_nop 1
        v_permlane16_swap_b32 v{LR[qb]}, v{T}
        v_add_f32 v{LR[qb]}, v{LR[qb]}, v{T}""")
    e(f"s_cmp_eq_u32 s{S_RET}, 0\ns_cbranch_scc1 L_ret0\ns_cmp_eq_u32 s{S_RET}, 1\ns_cbranch_scc1 L_ret1\ns_branch L_ret2")


def phase_d(e, poll_c):
    qt, mt, w = S_HEAD, S_BLK, S_WAVE
    V_XO, V_X, V_G = 4, 8, 17
    V_CR, NCR = 32, 6
    V_AS, V_AD = 128, 192
    t0, t1 = 24, 25
    S_XO = S_XNB
    for j in range(16):
        e.ds(f"ds_write_b128 v{V_TMP[0]}, {ar(A_DACC + j*4)} offset:{((j%4)*4 + j//4)*1024}", "DW")
        if j < OPT.get("wpre", 12): wo_load(e, 4 + j // 4, j % 4)
    e(f"""v_and_b32 v{t0}, 15, v{V_LANE}
    v_lshlrev_b32 v{t0}, 10, v{t0}
    v_lshrrev_b32 v{t1}, 4, v{V_LANE}
    v_lshl_add_u32 v{V_XO}, v{t1}, 3, v{t0}
    s_lshl_b32 s{S_XO}, s{qt}, 16
    s_lshl_b32 s{S_T0}, s{w}, 14
    s_add_u32 s{S_XO}, s{S_XO}, s{S_T0}
    s_lshl_b32 s{S_T1}, s{mt}, 7
    s_add_u32 s{S_XO}, s{S_XO}, s{S_T1}
    v_subrev_u32 v{t1}, 32768, v{V_TMP[0]}
    s_lshl_b32 s{S_T0}, s{w}, 12
    v_add_u32 v{t0}, s{S_T0}, v{V_L16}
    v_add_u32 v{V_G}, 65536, v{t0}""")
    poll32_addr(e, poll_c.voff, WS_FC)
    if OPT.get("fst"): stamp(e, 18)
    e.need(vm=["CST"]); e.wait_all(vm=False)
    if OPT.get("fst"): stamp(e, 19)
    e("s_barrier")
    if OPT.get("fst"): stamp(e, 20)
    signal(e, sig_lin(WS_FC), 26)
    for sw in range(4):
        for mb in range(4): e.ds(f"ds_read_b128 {vr(V_AD + (sw*4+mb)*4)}, v{V_G if sw >= 2 else t0} offset:{32768 + (sw % 2)*16384 + mb*1024}", ("R", sw))
    for mb in range(4):
        e.vmem(f"buffer_load_dwordx2 v[{V_X+2*mb}:{V_X+2*mb+1}], v{V_XO}, {srd(S_X)}, s{S_XO} offen offset:{mb*32}", "X")
    wl = [lambda n=n, q=q: wo_load(e, n, q) for n in range(4, 16) for q in range(4)][OPT.get("wpre", 12):]
    cnt = [0]
    def V(t):
        e(t); cnt[0] += 1
        if cnt[0] % 6 == 0 and wl: wl.pop(0)()
    def rnd(base, pk):
        for j in range(8): V(f"v_cvt_pk_bf16_f32 v{pk+j}, v{base+2*j}, v{base+2*j+1}")
        for j in range(8): V(f"v_lshlrev_b32 v{base+2*j}, 16, v{pk+j}"); V(f"v_and_b32 v{base+2*j+1}, 0xffff0000, v{pk+j}")
    def red(base, tag):
        e.need(lg=[(tag, 1)])
        for r in range(16): V(f"v_add_f32 v{base+r}, v{base+r}, v{base+16+r}")
        e.need(lg=[(tag, 3)])
        for r in range(16): V(f"v_add_f32 v{base+32+r}, v{base+32+r}, v{base+48+r}")
        for r in range(16): V(f"v_add_f32 v{base+r}, v{base+r}, v{base+32+r}")
    T = V_AD + 16; PK = V_AD + 32
    red(V_AD, "R"); rnd(V_AD, PK)
    for r in range(16): V(f"v_mul_f32 v{T+r}, 0xbfb8aa3b, v{V_AD+r}")
    for r in range(16): V(f"v_exp_f32 v{T+r}, v{T+r}")
    for r in range(16): V(f"v_add_f32 v{T+r}, 1.0, v{T+r}")
    for r in range(16): V(f"v_rcp_f32 v{T+r}, v{T+r}")
    for r in range(16): V(f"v_mul_f32 v{V_AD+r}, v{V_AD+r}, v{T+r}")
    rnd(V_AD, PK)
    while len(wl) > 8: wl.pop(0)()
    poll_c.issue()
    while wl: wl.pop(0)()
    stamp(e, 10); poll_c.check(); stamp(e, 11)
    def c_load(n, q):
        e.vmem(f"buffer_load_dwordx4 {vr(V_CR + (n % NCR)*16 + q*4)}, v{V_L16}, {srd(S_WS)}, s{S_AC} offen offset:{q*1024}{SC}", ("C", n))
        if q == 3: e(f"s_add_u32 s{S_AC}, s{S_AC}, 4096")
    for n in range(NCR - 1):
        for q in range(4): c_load(n, q)
    for n in range(32):
        ld = []
        if n + NCR - 1 < 32: ld += [lambda q=q: c_load(n + NCR - 1, q) for q in range(4)]
        if n >= 1 and n + 15 < 32: ld += [lambda q=q: wo_load(e, n + 15, q) for q in range(4)]
        e.need(vm=[("C", n), ("WO", n)])
        for k in range(16):
            mb, qb = k // 4, k % 4
            d = vr(V_AS + k*4)
            e(mf(d, ar(WSLOT[n % 16]*16 + mb*4), vr(V_CR + (n % NCR)*16 + qb*4), d if n else "0"))
            if k % 2 == 0 and ld: ld.pop(0)()
    stamp(e, 12)
    e("s_nop 7")
    for j in range(16): e.ds(f"ds_write_b128 v{t1}, {vr(V_AS + j*4)} offset:{((j%4)*4 + j//4)*1024}", "SW")
    e.need(vm=["X"])
    for j in range(8): e(f"v_lshlrev_b32 v{T+2*j}, 16, v{V_X+j}"); e(f"v_and_b32 v{T+2*j+1}, 0xffff0000, v{V_X+j}")
    e.wait_all(vm=False)
    e("s_barrier")
    for sw in range(4):
        for mb in range(4): e.ds(f"ds_read_b128 {vr(V_AS + (sw*4+mb)*4)}, v{V_G if sw >= 2 else t0} offset:{(sw % 2)*16384 + mb*1024}", ("RS", sw))
    red(V_AS, "RS"); rnd(V_AS, PK)
    for r in range(16): e(f"v_mul_f32 v{V_AS+r}, v{V_AS+r}, v{V_AD+r}")
    rnd(V_AS, PK)
    for r in range(16): e(f"v_add_f32 v{V_AS+r}, v{V_AS+r}, v{T+r}")
    for j in range(8): e(f"v_cvt_pk_bf16_f32 v{PK+j}, v{V_AS+2*j}, v{V_AS+2*j+1}")
    for mb in range(4):
        e.vmem(f"buffer_store_dwordx2 v[{PK+2*mb}:{PK+2*mb+1}], v{V_XO}, {srd(S_OUT)}, s{S_XO} offen offset:{mb*32}{OPT.get('outsc', '')}", "OUT")
    e("s_cmp_lg_u32 s2, 0")
    e("s_cbranch_scc1 L_nobump")
    signal(e, f"s_mov_b32 s{S_CNT}, {WS_EP}", 26)
    e.label("L_nobump")
    stamp(e, 13)

HEADER = open("cdna_kernels/" + NAME + ".s.ref").read().split("; Override launch geometry")[0]
def build():
    e = E(); body(e)
    n = chk.check(e.L, "all")
    a, b = e.loop
    n += chk.check(e.L[a:b] + e.L[a:b], "loop")
    if n: print(f"{n} hazards", file=sys.stderr)
    return "\n".join([HEADER.rstrip("\n"), "; @launch grid=(256,1,1) block=(256,1,1) lds=163840",
        '.amdgcn_target "amdgcn-amd-amdhsa--gfx950"\n.text', e.text(), '.section .rodata,"a"\n.p2align 6',
        f""".amdhsa_kernel {KN}
  .amdhsa_next_free_vgpr 512
  .amdhsa_next_free_sgpr 102
  .amdhsa_accum_offset 256
  .amdhsa_group_segment_fixed_size 0
  .amdhsa_kernarg_size 104
  .amdhsa_user_sgpr_count 2
  .amdhsa_user_sgpr_kernarg_segment_ptr 1
  .amdhsa_system_sgpr_workgroup_id_x 1
.end_amdhsa_kernel
"""])
if __name__ == "__main__":
    open(sys.argv[1], "w").write(build())
```

```python
import sys, math, os, struct
from emit import E, Filler
import check as chk

NAME = "recurrent_scan__compressed_kv_cla__glu_gated_geglu__prompt"
KN = NAME + "_kernel"
MB = 1 << 20
OPT = eval(os.environ.get("OPT", "{}"))
STAMPS = os.environ.get("STAMPS")
POLLALL = OPT.get("pollall", 0)
WS_XN, WS_H, WS_WDF, WS_WOF, WS_CTX, WS_K, WS_V, WS_END = 0, 2*MB, 9*MB, 12*MB, 16*MB, 32*MB, 48*MB, 64*MB
fb = lambda x: struct.unpack("<I", struct.pack("<f", x))[0]

S_X, S_CKV, S_WQ, S_WUK, S_WUV, S_WO, S_WG, S_WU, S_WD, S_OUT, S_DBG, S_WS = [8 + 4*i for i in range(12)]
S_HSRD, S_ASRD, S_BSRD = 56, 60, 64
S_WAVE, S_HEAD, S_BLK, S_ROT = 68, 69, 70, 71
S_T0, S_T1, S_T2, S_T3, S_T4, S_T5 = 72, 73, 74, 75, 76, 77
S_WL, S_WA = 78, 79
S_OFF0, S_OFFA, S_AROW, S_KVST, S_XNB, S_HST = 80, 81, 82, 83, 84, 85
S_CTXLO, S_CTXHI = 86, 87
S_SRCA, S_SRCB, S_LA, S_LB, S_VMAXB, S_VCLB = 88, 89, 90, 91, 92, 93
S_N, S_EVT, S_TRANS, S_N0 = 94, 95, 96, 97
S_QT, S_QTHI, S_RET, S_CNT = 98, 99, 100, 101
S_ROTB, S_DW, S_DH, S_DINC = 48, 49, 50, 51
S_GSRD = S_CKV
S_DSRD = S_HSRD
S_FL = 6
def srd(n): return f"s[{n}:{n+3}]"
def mf(d, a, b, c): return f"v_mfma_f32_16x16x32_bf16 {d}, {a}, {b}, {c}"
def vr(n, k=4): return f"v[{n}:{n+k-1}]"
def ar(n, k=4): return f"a[{n}:{n+k-1}]"

V_LANE, V_STAMP, V_L16 = 1, 2, 3
V_TR = (4, 5, 6, 7)
V_WOFF = (8, 9, 10, 11)
V_AOFF = (12, 13)
V_WOFG = (12, 13)
V_ARD = (14, 15)
V_TMP = list(range(16, 32))
V_POLL = 0
V_WF, V_PK, V_ACC = 32, 64, 128
def acc(db, rb): return V_ACC + (db*4 + rb)*4
def actf(ks, rb): return (ks*4 + rb)*4
V_RD = 4
V_TD, V_TN, V_LIM = 16, 20, 24
V_P, V_S, V_O = (32, 48), (64, 96), 128
A_Q, A_FB, A_DACC, A_L, A_ONE, A_DOP = 0, (64, 96), 128, 192, 208, 224
QSCALE = fb(math.log2(math.e) / math.sqrt(128.0))
NEGINF = 0xff800000
def Sreg(buf, kb2, qb): return V_S[buf] + (kb2*4 + qb)*4
def Preg(buf, qb): return V_P[buf] + qb*4
def Oreg(db, qb): return V_O + (db*4 + qb)*4
SC = " sc1"

def stamp(e, idx):
    if not STAMPS: return
    if OPT.get("padat"):
        if idx == OPT["padat"][0]:
            e(f"s_nop 1\nv_readlane_b32 s5, v{V_STAMP}, 0\ns_add_u32 s{S_CNT}, s5, {OPT['padat'][1]*100}")
            e.label("L_padat")
            e(f"s_memrealtime s[4:5]\ns_waitcnt lgkmcnt(0)\ns_sub_u32 s5, s4, s{S_CNT}\ns_cmp_lt_i32 s5, 0\ns_cbranch_scc1 L_padat")
            e.lgkm = []
        return
    e(("s_memtime" if STAMPS == "2" else "s_memrealtime") + " s[4:5]")
    e.wait_all(vm=False)
    e(f"v_writelane_b32 v{V_STAMP}, s4, {idx}")
def stamp_flush(e):
    if not STAMPS: return
    if OPT.get("dbgst"):
        e(f"""s_load_dwordx2 s[8:9], s[0:1], 88
        s_mov_b32 s10, 256
        s_mov_b32 s11, 0x20000
        v_readlane_b32 s4, v{V_STAMP}, 0
        s_not_b32 s4, s4
        s_nop 3
        v_writelane_b32 v{V_STAMP}, s4, 14
        v_lshlrev_b32 v0, 2, v{V_LANE}
        v_cmp_gt_u32 vcc, 15, v{V_LANE}
        s_and_saveexec_b64 s[6:7], vcc
        s_waitcnt lgkmcnt(0)
        buffer_atomic_umax v{V_STAMP}, v0, s[8:11], 0 offen
        s_waitcnt vmcnt(0)""")
        return
    e(f"""s_lshl_b32 s4, s2, 2
    s_add_u32 s4, s4, s{S_WAVE}
    s_lshl_b32 s4, s4, 7
    s_add_u32 s4, s4, {64*MB}
    v_lshlrev_b32 v0, 2, v{V_LANE}
    v_cmp_gt_u32 vcc, 32, v{V_LANE}
    s_and_saveexec_b64 s[6:7], vcc
    buffer_store_dword v{V_STAMP}, v0, {srd(S_WS)}, s4 offen
    s_waitcnt vmcnt(0)""")

WS_EP = 11*MB
WS_FX, WS_FK, WS_FB, WS_FC = WS_EP + 4096, WS_EP + 8192, WS_EP + 12288, WS_EP + 16384
S_TAG = 3
def signal(e, soff_lines, tmp):
    e(soff_lines)
    e(f"""v_mov_b32 v{tmp}, s{S_TAG}
    v_add_u32 v{tmp+1}, s{S_WL}, v{V_LANE}
    v_min_u32 v{tmp+1}, 1, v{tmp+1}
    v_lshlrev_b32 v{tmp+1}, 30, v{tmp+1}""")
    e.vmem(f"buffer_store_dword v{tmp}, v{tmp+1}, {srd(S_WS)}, s{S_CNT} offen sc1", "SIG")
def sig_lin(base):
    return f"""s_lshr_b32 s{S_CNT}, s2, 3
    s_lshl_b32 s{S_CNT}, s{S_CNT}, 7
    s_and_b32 s{S_FL}, s2, 7
    s_lshl_b32 s{S_FL}, s{S_FL}, 2
    s_add_u32 s{S_CNT}, s{S_CNT}, s{S_FL}
    s_add_u32 s{S_CNT}, s{S_CNT}, {base}"""
SIG_KV = f"""s_and_b32 s{S_CNT}, s2, 31
    s_lshl_b32 s{S_CNT}, s{S_CNT}, 7
    s_lshl_b32 s{S_FL}, s{S_BLK}, 2
    s_add_u32 s{S_CNT}, s{S_CNT}, s{S_FL}
    s_add_u32 s{S_CNT}, s{S_CNT}, {WS_FK}"""
class Poll:
    def __init__(self, e, name, voff):
        self.e, self.name, self.voff = e, name, voff
    @property
    def ld(self):
        if self.name == "b" and POLLALL: return f"buffer_load_dwordx4 a[216:219], v{self.voff}, {srd(S_WS)}, 0 offen sc1"
        return f"buffer_load_dword v{V_POLL}, v{self.voff}, {srd(S_WS)}, 0 offen sc1"
    def issue(self): self.e.vmem(self.ld, ("POLL", self.name))
    def test(self):
        if self.name == "b" and POLLALL:
            return f"""v_accvgpr_read_b32 v5, a216
            v_accvgpr_read_b32 v6, a217
            v_accvgpr_read_b32 v7, a218
            v_accvgpr_read_b32 v{V_POLL}, a219
            v_xor_b32 v5, v5, v{V_POLL}
            v_xor_b32 v6, v6, v{V_POLL}
            v_xor_b32 v7, v7, v{V_POLL}
            v_or3_b32 v5, v5, v6, v7
            v_xor_b32 v{V_POLL}, s{S_TAG}, v{V_POLL}
            v_or_b32 v5, v5, v{V_POLL}
            v_cmp_eq_u32 vcc, 0, v5
            s_cmp_eq_u64 vcc, exec"""
        return f"v_cmp_eq_u32 vcc, s{S_TAG}, v{V_POLL}\ns_cmp_eq_u64 vcc, exec"
    def check(self):
        e = self.e
        e.need(vm=[("POLL", self.name)])
        e(self.test())
        e(f"s_cbranch_scc0 L_spin_{self.name}")
        e.label(f"L_ok_{self.name}")
    def spin(self):
        e = self.e
        e.label(f"L_spin_{self.name}")
        e(f"s_mov_b32 s{S_CNT}, 0x40000")
        e.label(f"L_spinl_{self.name}")
        e("s_sleep 2")
        e(self.ld)
        e("s_waitcnt vmcnt(0)")
        e(self.test())
        e(f"s_cbranch_scc1 L_ok_{self.name}")
        e(f"s_sub_u32 s{S_CNT}, s{S_CNT}, 1")
        e(f"s_cmp_lg_u32 s{S_CNT}, 0")
        e(f"s_cbranch_scc1 L_spinl_{self.name}")
        e(f"s_branch L_ok_{self.name}")
def poll32_addr(e, v, base):
    e(f"""s_lshr_b32 s{S_T0}, s{S_HEAD}, 1
    s_sub_u32 s{S_T1}, 15, s{S_T0}
    s_min_u32 s{S_T0}, s{S_T0}, s{S_T1}
    s_lshl_b32 s{S_T0}, s{S_T0}, 9
    s_add_u32 s{S_T0}, s{S_T0}, {base}
    v_bfe_u32 v{v}, v{V_LANE}, 3, 2
    v_lshlrev_b32 v{v}, 5, v{v}
    v_and_or_b32 v{v}, v{V_LANE}, 7, v{v}
    v_lshlrev_b32 v{v}, 2, v{v}
    v_add_u32 v{v}, s{S_T0}, v{v}""")

def kernel_head(e):
    e(f".globl {KN}\n.p2align 8\n.type {KN},@function")
    e.label(KN)
    e("s_cmp_ge_u32 s2, 256")
    e("s_cbranch_scc1 L_end")
    sizes = {S_X: (0, 2*MB), S_CKV: (8, 2*MB), S_WUK: (24, 4*MB), S_WS: (96, 65*MB if STAMPS else WS_END), S_WQ: (16, 4*MB), S_WUV: (32, 4*MB), S_WO: (40, 4*MB),
             S_WG: (56, 512*3584), S_WU: (64, 512*3584), S_WD: (72, 1792*1024), S_OUT: (80, 2*MB)}
    first = (S_X, S_CKV, S_WUK, S_WS)
    for sr in first: e(f"s_load_dwordx2 s[{sr}:{sr+1}], s[0:1], {sizes[sr][0]}")
    if STAMPS: e(("s_memtime" if STAMPS == "2" else "s_memrealtime") + " s[6:7]")
    e(f"v_and_b32 v{V_LANE}, 63, v0")
    e("v_lshrrev_b32 v2, 6, v0")
    e(f"v_lshlrev_b32 v{V_L16}, 4, v{V_LANE}")
    e(f"v_readfirstlane_b32 s{S_WAVE}, v2")
    if OPT.get("pfcode", 1):
        e(f"""s_getpc_b64 s[4:5]
        s_lshr_b32 s{S_T0}, s2, 3
        s_lshl_b32 s{S_T0}, s{S_T0}, 11
        v_lshlrev_b32 v{V_TMP[0]}, 3, v2
        v_and_or_b32 v{V_TMP[0]}, v0, 7, v{V_TMP[0]}
        v_lshlrev_b32 v{V_TMP[0]}, 6, v{V_TMP[0]}
        v_add_u32 v{V_TMP[0]}, s{S_T0}, v{V_TMP[0]}
        v_min_u32 v{V_TMP[0]}, L_end-L_pcref, v{V_TMP[0]}""")
        e.label("L_pcref")
        e.vmem(f"global_load_dword v{V_TMP[12]}, v{V_TMP[0]}, s[4:5]", "PF")
        e(f"v_mov_b32 v{V_TMP[11]}, v{V_TMP[0]}")
    e(f"""s_and_b32 s{S_T0}, s2, 7
    s_lshl_b32 s{S_T0}, s{S_T0}, 2
    s_lshr_b32 s{S_T1}, s2, 3
    s_and_b32 s{S_T1}, s{S_T1}, 3
    s_add_u32 s{S_HEAD}, s{S_T0}, s{S_T1}
    s_lshr_b32 s{S_BLK}, s2, 5
    s_mul_i32 s{S_T0}, s{S_T1}, {OPT.get('rota', 0)}
    s_add_u32 s{S_ROT}, s{S_BLK}, s{S_T0}
    s_mul_i32 s{S_T0}, s2, {OPT.get('rotx', 1)}
    s_add_u32 s{S_ROT}, s{S_ROT}, s{S_T0}
    s_and_b32 s{S_ROT}, s{S_ROT}, 7
    s_and_b32 s{S_ROTB}, s{S_BLK}, 3
    s_lshl_b32 s{S_WL}, s{S_WAVE}, 10
    s_lshl_b32 s{S_WA}, s{S_WAVE}, 13
    s_add_u32 s{S_WA}, s{S_WA}, 65536""")
    if STAMPS: e("v_mov_b32 v2, -1")
    for sr in first: e(f"s_mov_b32 s{sr+2}, {sizes[sr][1]}\ns_mov_b32 s{sr+3}, 0x20000")
    setup_addrs(e)
    e(f"v_add_u32 v{V_ARD[0]}, s{S_WA}, v{V_ARD[0]}\nv_xor_b32 v{V_ARD[1]}, 64, v{V_ARD[0]}")
    scalar_setup(e)
    e(f"s_lshl_b32 s{S_T0}, s2, 13\ns_lshl_b32 s{S_T1}, s{S_WAVE}, 11\ns_add_u32 s{S_T0}, s{S_T0}, s{S_T1}")
    def late():
        for sr, (p, n) in sizes.items():
            if sr not in first: e(f"s_load_dwordx2 s[{sr}:{sr+1}], s[0:1], {p}\ns_mov_b32 s{sr+2}, {n}\ns_mov_b32 s{sr+3}, 0x20000")
        for sr in (S_HSRD, S_ASRD, S_BSRD): e(f"s_mov_b64 s[{sr}:{sr+1}], s[{S_WS}:{S_WS+1}]\ns_mov_b32 s{sr+2}, {WS_END}\ns_mov_b32 s{sr+3}, 0x20000")
        e(f"s_add_u32 s{S_FL}, s{S_WS}, {WS_EP}\ns_addc_u32 s{S_FL+1}, s{S_WS+1}, 0\ns_load_dword s{S_TAG}, s[{S_FL}:{S_FL+1}], 0")
    def go():
        e("s_waitcnt lgkmcnt(0)")
        if STAMPS: e("v_writelane_b32 v2, s6, 0")
        e.vmem(f"buffer_load_dwordx4 v[64:67], v{V_L16}, {srd(S_X)}, s{S_T0} offen", "X")
        e.vmem(f"buffer_load_dwordx4 v[68:71], v{V_L16}, {srd(S_X)}, s{S_T0} offen offset:1024", "X")
    return go, late

V_CPF = 31
V_KPERM = 31
V_UOFF = 30
def setup_addrs(e):
    t0, t1, t2, t3, t4 = V_TMP[:5]
    e(f"""v_lshrrev_b32 v{t0}, 2, v{V_LANE}
    v_lshlrev_b32 v{t0}, 7, v{t0}
    v_and_b32 v{t1}, 3, v{V_LANE}
    v_lshlrev_b32 v{t1}, 3, v{t1}
    v_add_u32 v{t0}, v{t0}, v{t1}
    v_bfe_u32 v{t1}, v{V_LANE}, 3, 2
    v_lshlrev_b32 v{t1}, 5, v{t1}
    v_add_u32 v{V_TR[0]}, v{t0}, v{t1}""")
    for c in (1, 2, 3): e(f"v_xor_b32 v{V_TR[c]}, {c*32}, v{V_TR[0]}")
    e(f"""v_lshrrev_b32 v{t0}, 3, v{V_LANE}
    v_and_b32 v{t1}, 7, v{V_LANE}
    v_and_b32 v{t2}, 6, v{t0}
    v_xor_b32 v{t1}, v{t1}, v{t2}
    v_lshlrev_b32 v{V_UOFF}, 4, v{t1}
    s_lshl_b32 s{S_T0}, s{S_WAVE}, 3
    v_add_u32 v{t2}, s{S_T0}, v{t0}
    v_bfe_u32 v{t3}, v{t2}, 2, 2
    v_lshlrev_b32 v{t3}, 3, v{t3}
    v_lshrrev_b32 v{t4}, 4, v{t2}
    v_lshl_add_u32 v{t3}, v{t4}, 2, v{t3}
    v_and_b32 v{t4}, 3, v{t2}
    v_add_u32 v{V_KPERM}, v{t3}, v{t4}
    v_lshl_add_u32 v{V_WOFF[0]}, v{V_KPERM}, 13, v{V_UOFF}
    v_add_u32 v{V_WOFF[1]}, 128, v{V_WOFF[0]}
    v_add_u32 v{V_WOFF[2]}, {32*8192}, v{V_WOFF[0]}
    v_add_u32 v{V_WOFF[3]}, {32*8192 + 128}, v{V_WOFF[0]}
    v_and_b32 v{t1}, 7, v{V_LANE}
    v_lshrrev_b32 v{t2}, 1, v{t0}
    v_xor_b32 v{t1}, v{t1}, v{t2}
    v_lshlrev_b32 v{t1}, 4, v{t1}
    v_lshl_add_u32 v{V_AOFF[0]}, v{t0}, 10, v{t1}
    v_xor_b32 v{V_AOFF[1]}, 64, v{V_AOFF[0]}
    v_add_u32 v{V_AOFF[1]}, 8192, v{V_AOFF[1]}
    v_and_b32 v{t0}, 15, v{V_LANE}
    v_lshrrev_b32 v{t1}, 4, v{V_LANE}
    v_lshrrev_b32 v{t2}, 1, v{t0}
    v_xor_b32 v{t1}, v{t1}, v{t2}
    v_lshlrev_b32 v{t1}, 4, v{t1}
    v_lshl_add_u32 v{V_ARD[0]}, v{t0}, 7, v{t1}""")

def scalar_setup(e):
    i, h, w = S_BLK, S_HEAD, S_WAVE
    e(f"""s_lshl_b32 s{S_T0}, s{i}, 2
    s_add_u32 s{S_T0}, s{S_T0}, s{w}
    s_lshl_b32 s{S_AROW}, s{S_T0}, 16
    s_lshl_b32 s{S_KVST}, s{h}, 19
    s_lshl_b32 s{S_T0}, s{S_T0}, 14
    s_add_u32 s{S_KVST}, s{S_KVST}, s{S_T0}""")
def scalar_setup2(e):
    i, h, w = S_BLK, S_HEAD, S_WAVE
    a, b, c, d = S_N, S_EVT, S_TRANS, S_RET
    return f"""s_sub_u32 s{a}, 15, s{i}
    s_cmp_lt_u32 s{w}, 2 ! s_cselect_b32 s{b}, s{a}, s{i}
    s_lshl_b32 s{b}, s{b}, 1
    s_and_b32 s{c}, s{w}, 1
    s_add_u32 s{S_QT}, s{b}, s{c}
    s_lshl_b32 s{S_XNB}, s{S_QT}, 16
    s_mul_i32 s{S_HST}, s{S_QT}, {56*4096}
    s_add_u32 s{S_HST}, s{S_HST}, {WS_H}
    s_lshl_b32 s{d}, s{h}, 14
    s_add_u32 s{d}, s{d}, {WS_CTX}
    s_lshl_b32 s{S_CTXLO}, s{S_QT}, 19
    s_add_u32 s{S_CTXLO}, s{S_CTXLO}, s{d}
    s_lshr_b32 s{b}, s{w}, 1
    s_xor_b32 s{b}, s{b}, s{w}
    s_and_b32 s{b}, s{b}, 1
    s_lshl_b32 s{a}, s{a}, 1
    s_add_u32 s{S_QTHI}, s{a}, s{b}
    s_lshl_b32 s{S_CTXHI}, s{S_QTHI}, 19
    s_add_u32 s{S_CTXHI}, s{S_CTXHI}, s{d}
    s_cmp_lt_u32 s{h}, 28 ! s_cselect_b32 s{S_WG+2}, {512*3584}, 0
    s_mov_b32 s{S_WU+2}, s{S_WG+2}
    s_cmp_lt_u32 s{h}, 28 ! s_cselect_b32 s{S_HSRD+2}, {WS_END}, 0
    s_lshl_b32 s{a}, s{h}, 19
    s_mov_b32 s{b}, {WS_V}
    s_cmp_lt_u32 s{w}, 2 ! s_cselect_b32 s{b}, {WS_K}, s{b}
    s_add_u32 s{b}, s{b}, s{a}
    s_add_u32 s{S_VCLB}, s{b}, {63*8192}
    s_cmp_eq_u32 s{w}, 1 ! s_cselect_b32 s{a}, 8192, 0
    s_add_u32 s{S_SRCA}, s{b}, s{a}
    s_cmp_eq_u32 s{w}, 2 ! s_cselect_b32 s{a}, {3*8192}, s{a}
    s_add_u32 s{S_VMAXB}, s{b}, s{a}
    s_add_u32 s{S_VMAXB}, s{S_VMAXB}, {64*8192}
    s_min_u32 s{S_SRCB}, s{S_VMAXB}, s{S_VCLB}
    s_lshl_b32 s{S_LB}, s{w}, 13
    s_add_u32 s{S_LA}, s{S_LB}, 65536
    s_xor_b32 s{S_LB}, s{S_LB}, 32768
    s_lshl_b32 s{S_N0}, s{i}, 1
    s_add_u32 s{S_N0}, s{S_N0}, 2
    s_mul_i32 s{a}, s{w}, {14*4096}
    s_mul_i32 s{S_DH}, s{h}, {56*4096}
    s_add_u32 s{S_DH}, s{S_DH}, s{a}
    s_add_u32 s{S_DH}, s{S_DH}, {WS_H}
    s_mul_i32 s{S_DW}, s{i}, {56*4096}
    s_add_u32 s{S_DW}, s{S_DW}, s{a}
    s_add_u32 s{S_DW}, s{S_DW}, {WS_WDF}
    s_mov_b32 s{S_DINC}, 0""".split("\n")

def layernorm_lines():
    L = []; e = L.append
    X = (72, 80); SUM = (88, 89); TMP = (90, 91); MEAN = (92, 93); VAR = (94, 95)
    SS = (S_T0, S_T1)
    for r in range(2):
        for j in range(4):
            e(f"v_lshlrev_b32 v{X[r]+2*j}, 16, v{64+4*r+j}")
            e(f"v_and_b32 v{X[r]+2*j+1}, 0xffff0000, v{64+4*r+j}")
    def reduce():
        for mod in ("quad_perm:[1,0,3,2] row_mask:0xf bank_mask:0xf", "quad_perm:[2,3,0,1] row_mask:0xf bank_mask:0xf",
                    "row_half_mirror row_mask:0xf bank_mask:0xf", "row_mirror row_mask:0xf bank_mask:0xf",
                    "row_bcast:15 row_mask:0xa bank_mask:0xf", "row_bcast:31 row_mask:0xc bank_mask:0xf"):
            e("s_nop 0")
            for r in range(2): e(f"v_add_f32_dpp v{SUM[r]}, v{SUM[r]}, v{SUM[r]} {mod}")
        e("s_nop 0")
        for r in range(2): e(f"v_readlane_b32 s{SS[r]}, v{SUM[r]}, 63")
        e("s_nop 1")
    for r in range(2): e(f"v_add_f32 v{SUM[r]}, v{X[r]}, v{X[r]+1}")
    for j in range(2, 8):
        for r in range(2): e(f"v_add_f32 v{SUM[r]}, v{SUM[r]}, v{X[r]+j}")
    reduce()
    for r in range(2): e(f"v_mov_b32 v{MEAN[r]}, s{SS[r]}")
    for r in range(2): e(f"v_mul_f32 v{MEAN[r]}, 0x3b000000, v{MEAN[r]}")
    for j in range(8):
        for r in range(2): e(f"v_sub_f32 v{TMP[r]}, v{X[r]+j}, v{MEAN[r]}")
        for r in range(2): e(f"v_mul_f32 v{SUM[r]}, v{TMP[r]}, v{TMP[r]}" if j == 0 else f"v_fmac_f32 v{SUM[r]}, v{TMP[r]}, v{TMP[r]}")
    reduce()
    def both(fmt):
        for r in range(2): e(fmt.format(v=VAR[r], m=MEAN[r], s=SS[r]))
    def rnd(x):
        both("v_cvt_pk_bf16_f32 v{%s}, v{%s}, v{%s}" % (x, x, x)); both("v_lshlrev_b32 v{%s}, 16, v{%s}" % (x, x))
    both("v_mov_b32 v{v}, s{s}"); both("v_mul_f32 v{v}, 0x3b000000, v{v}")
    rnd("v"); both("v_add_f32 v{v}, 0x3727c5ac, v{v}"); rnd("v")
    both("v_sqrt_f32 v{v}, v{v}"); rnd("m"); rnd("v"); both("v_rcp_f32 v{v}, v{v}")
    for r in range(2):
        for j in range(8): e(f"v_sub_f32 v{X[r]+j}, v{X[r]+j}, v{MEAN[r]}")
        for j in range(4): e(f"v_cvt_pk_bf16_f32 v{64+4*r+j}, v{X[r]+2*j}, v{X[r]+2*j+1}")
        for j in range(4):
            e(f"v_lshlrev_b32 v{X[r]+2*j}, 16, v{64+4*r+j}")
            e(f"v_and_b32 v{X[r]+2*j+1}, 0xffff0000, v{64+4*r+j}")
        for j in range(8): e(f"v_mul_f32 v{X[r]+j}, v{X[r]+j}, v{VAR[r]}")
        for j in range(4): e(f"v_cvt_pk_bf16_f32 v{64+4*r+j}, v{X[r]+2*j}, v{X[r]+2*j+1}")
    return L

class MemQ:
    def __init__(self, e): self.e = e; self.items = []
    def add(self, kind, lo, hi, *a): self.items.append([kind, lo, hi, a])
    def fillers(self):
        e = self.e; out = []
        dm = [k for k, it in enumerate(self.items) if it[0] == 'd']
        nxt = {dm[j]: dm[j+1] for j in range(len(dm) - 1)}
        self.first_m0 = self.items[dm[0]][3][0]
        for k, (kind, lo, hi, a) in enumerate(self.items):
            if kind == 's': out.append(Filler(lambda a=a: e(a[0].replace(" ! ", "\n")), 4, "salu", lo, hi))
            elif kind == 'l': out.append(Filler(lambda a=a: e.vmem(a[0], a[1]), 4, "mem", lo, hi))
            elif kind == 'f': out.append(Filler(a[0], a[1], a[2], lo, hi))
            else:
                def fn(k=k, a=a):
                    if len(a) > 3: e.need(lg=a[3])
                    e.vmem(a[1], a[2])
                    if k in nxt: e(self.items[nxt[k]][3][0])
                out.append(Filler(fn, 8, "mem", lo, hi))
        return out


def body(e):
    i, h, w = S_BLK, S_HEAD, S_WAVE
    go, late = kernel_head(e)
    NS = 32; BAR = 42; INF = 10**9; P = -10**6
    mq = MemQ(e)
    def S(lo, hi, *lines):
        for t in lines: mq.add('s', lo, hi, t)
    def VV(lo, hi, *lines):
        for t in lines: mq.add('f', lo, hi, lambda t=t: e(t), 4, "valu")
    V_GOFF = V_KPERM; V_TRH = V_AOFF + V_ARD
    S_GO = S_T1
    def area(gs):
        if gs < 16: return (gs % 4)*16384
        if gs < 24: return ((gs % 4)*32768 + 65536) % 131072
        return ((gs - 24)*16384 + 65536) % 131072
    def w_stage(gs, lo, step, hi):
        slot = gs % 4
        if gs < 16:
            s = gs % 8
            if s == 0: S(lo - 8, hi, f"s_lshl_b32 s{S_OFF0}, s{S_ROT}, 19", f"s_lshl_b32 s{S_T5}, s{h}, 8", f"s_add_u32 s{S_OFF0}, s{S_OFF0}, s{S_T5}")
            else: S(lo - 8, hi, f"s_add_u32 s{S_OFF0}, s{S_OFF0}, {1<<19}", f"s_and_b32 s{S_OFF0}, s{S_OFF0}, {4*MB-1}")
            for n in range(4):
                mq.add('d', lo + step*n, hi, f"s_add_u32 m0, s{S_WL}, {slot*16384 + n*4096}",
                       f"buffer_load_dwordx4 v{V_WOFF[n]}, {srd(S_WUK if gs < 8 else S_WUV)}, s{S_OFF0} offen lds", ("W", gs))
        elif gs >= 24:
            s = gs % 4; hf = (gs // 4) % 2
            S(lo - 10, hi, f"s_add_u32 s{S_OFF0}, s{S_ROTB}, {s}", f"s_and_b32 s{S_OFF0}, s{S_OFF0}, 3", f"s_lshl_b32 s{S_OFF0}, s{S_OFF0}, 20",
              f"s_lshl_b32 s{S_T5}, s{h}, 8", f"s_add_u32 s{S_OFF0}, s{S_OFF0}, s{S_T5}")
            if hf: S(lo - 10, hi, f"s_add_u32 s{S_OFF0}, s{S_OFF0}, 128")
            for n in range(4):
                if n: S(lo + step*n - 2, hi, f"s_add_u32 s{S_OFF0}, s{S_OFF0}, {32*8192}")
                mq.add('d', lo + step*n, hi, f"s_add_u32 m0, s{S_WL}, {area(gs) + n*4096}",
                       f"buffer_load_dwordx4 v{V_WOFF[0]}, {srd(S_WQ)}, s{S_OFF0} offen lds", ("W", gs))
    def g_stage(s, lo, step, hi):
        S(lo - 10, hi, f"s_add_u32 s{S_GO}, s{S_ROTB}, {s}", f"s_and_b32 s{S_GO}, s{S_GO}, 3", f"s_mul_i32 s{S_GO}, s{S_GO}, {128*3584}",
          f"s_lshl_b32 s{S_T5}, s{h}, 7", f"s_add_u32 s{S_GO}, s{S_GO}, s{S_T5}")
        for n in range(8):
            if n and n % 2 == 0: S(lo + step*n - 2, hi, f"s_add_u32 s{S_GO}, s{S_GO}, {32*3584}")
            mq.add('d', lo + step*n, hi, f"s_add_u32 m0, s{S_WL}, {area(16 + s) + n*4096}",
                   f"buffer_load_dwordx4 v{V_GOFF}, {srd((S_WG, S_WU)[n % 2])}, s{S_GO} offen lds", ("W", 16 + s))
    def a_stage(s, lo, step, hi):
        S(lo - 6, hi, f"s_add_u32 s{S_OFFA}, s{S_ROT}, {s}", f"s_and_b32 s{S_OFFA}, s{S_OFFA}, 7", f"s_lshl_b32 s{S_OFFA}, s{S_OFFA}, 7", f"s_add_u32 s{S_OFFA}, s{S_OFFA}, s{S_AROW}")
        for q in range(8):
            if q and q % 2 == 0: S(lo + step*q - 2, hi, f"s_add_u32 s{S_OFFA}, s{S_OFFA}, 16384")
            mq.add('d', lo + step*q, hi, f"s_add_u32 m0, s{S_WA}, {(s % 2)*32768 + q*1024}",
                   f"buffer_load_dwordx4 v{V_AOFF[q & 1]}, {srd(S_CKV)}, s{S_OFFA} offen lds", ("A", s), [("AF", s-2, 0), ("AF", s-2, 1)])
    def xn_stage(s, lo, step, hi):
        if s % 2 == 0: S(lo - 6, hi, f"s_add_u32 s{S_OFFA}, s{S_ROTB}, {s//2}", f"s_and_b32 s{S_OFFA}, s{S_OFFA}, 3", f"s_lshl_b32 s{S_OFFA}, s{S_OFFA}, 14", f"s_add_u32 s{S_OFFA}, s{S_OFFA}, s{S_XNB}")
        for ksub in range(2):
            if ksub or s % 2: S(lo + step*4*ksub - 2, hi, f"s_add_u32 s{S_OFFA}, s{S_OFFA}, 4096")
            for rb in range(4):
                mq.add('l', lo + step*(ksub*4 + rb), hi, f"buffer_load_dwordx4 {ar(actf(2*s+ksub, rb))}, v{V_L16}, {srd(S_WS)}, s{S_OFFA} offen offset:{rb*1024}{SC}", ("XN", 2*s+ksub))
    V_PO = V_TMP[13]
    poll_xn = Poll(e, "xn", V_PO); poll_kv = Poll(e, "kv", V_PO); poll_b = Poll(e, "b", V_TMP[15]); poll_c = Poll(e, "c", V_TMP[15])
    V_RT = V_TMP[8]; V_RTA = V_TMP[9:13]; V_PFD = V_TMP[1]
    RTL, RTS, RG = OPT.get("rtl", 19), OPT.get("rts", 22), OPT.get("rtgap", 32)
    S_RL = S_RET
    PRO = OPT.get("pro", 1); KVS = OPT.get("kvs", 30)
    w_stage(0, P, 0, INF); a_stage(0, P, 0, INF)
    n_pro0 = len(mq.items)
    S(P, INF, f"s_lshl_b32 s{S_T2}, s{w}, 8", f"s_add_u32 s{S_T2}, s{S_T2}, s2", f"s_lshr_b32 s{S_T3}, s{S_T2}, 3", f"s_add_u32 s{S_T4}, s{S_T2}, s{S_T3}", f"s_and_b32 s{S_T4}, s{S_T4}, 7",
      f"s_cmp_lt_u32 s{S_T2}, 448 ! s_cselect_b32 s{S_WD+2}, {1792*1024}, 0", f"s_cmp_lt_u32 s{S_T2}, 448 ! s_cselect_b32 s{S_BSRD+2}, {WS_END}, 0")
    VV(P, INF, f"v_lshrrev_b32 v{V_RT}, 3, v{V_LANE}", f"v_lshl_add_u32 v{V_RT}, v{V_RT}, 10, v{V_UOFF}", f"v_mul_u32_u24 v{V_GOFF}, 3584, v{V_KPERM}", f"v_add_u32 v{V_GOFF}, v{V_GOFF}, v{V_UOFF}", f"v_mov_b32 v{V_UOFF}, v{V_TMP[11]}")
    w_stage(1, P, 0, INF)
    if PRO >= 2: a_stage(1, P, 0, INF)
    if PRO >= 3: w_stage(2, P, 0, INF)
    n_pro1 = len(mq.items)
    if PRO < 2: a_stage(1, 0, 1, 30)
    if PRO < 3: w_stage(2, 10, 1, 36)
    def rt_loads(E0, half):
        for q in range(2*half, 2*half + 2):
            if OPT.get("rtlin"): S(E0, INF, f"s_add_u32 s{S_RL}, s{S_RL}, 1024" if q else f"s_lshl_b32 s{S_RL}, s{S_T4}, 12 ! s_lshl_b32 s{S_T5}, s{S_T3}, 3 ! s_add_u32 s{S_RL}, s{S_RL}, s{S_T5}")
            else: S(E0, INF, f"s_add_u32 s{S_RL}, s{S_RL}, 8192" if q else f"s_lshl_b32 s{S_RL}, s{S_T4}, 7 ! s_lshl_b32 s{S_T5}, s{S_T3}, 3 ! s_add_u32 s{S_RL}, s{S_RL}, s{S_T5}")
            for t, sr in enumerate((S_WO, S_WD)):
                mq.add('d', E0 + ((4 + 14*(q % 2) + 7*t) if RTL > 5 else 36), E0 + (33 if RTL > 5 else 60), f"s_add_u32 m0, s{S_WA}, {65536 + t*4096 + q*1024}", f"buffer_load_dwordx4 v{V_L16 if OPT.get('rtlin') else V_RT}, {srd(sr)}, s{S_RL} offen lds", "RT")
    for gs in range(NS):
        b = gs * 64
        if gs in OPT.get("cpf", ()):
            assert gs not in (9, KVS)
            mq.add('l', b + 1, b + 41, f"global_load_dword v{V_POLL}, v{V_UOFF}, s[0:1]", "PF")
        if gs + 2 < 8: a_stage(gs + 2, b + (6 if gs or PRO >= 3 else 22), (4 if gs or PRO >= 3 else 2), b + 41)
        GS = OPT.get("gs", (7, 8))
        if gs in GS: g_stage(GS.index(gs), b + 4, 3, b + 41)
        if gs == 8:
            t0, t1 = V_TMP[2:4]
            S(b + 4, b + 30, f"s_lshl_b32 s{S_T5}, s{S_QT}, 7", f"s_add_u32 s{S_T5}, s{S_T5}, {WS_FX}")
            VV(b + 4, b + 30, f"v_and_b32 v{V_PO}, 7, v{V_LANE}", f"v_lshlrev_b32 v{V_PO}, 2, v{V_PO}", f"v_add_u32 v{V_PO}, s{S_T5}, v{V_PO}")
            mq.add('f', b + 28, b + 36, poll_xn.issue, 4, "mem")
        if gs == 9: mq.add('f', b + 2, b + 6, poll_xn.check, 8, "valu")
        if 9 <= gs <= 16: xn_stage(gs - 9, b + 8, 4, b + 41)
        if gs == 10: VV(b + 20, INF, *[f"v_add_u32 v{V_TRH[c]}, 65536, v{V_TR[c]}" for c in range(4)])
        if gs in (RTL, RTL + 1) and not OPT.get("nortl"): rt_loads(b, gs - RTL)
        if gs == 27:
            S(b + 4, b + 30, f"s_and_b32 s{S_T5}, s2, 31", f"s_lshl_b32 s{S_T5}, s{S_T5}, 7", f"s_add_u32 s{S_T5}, s{S_T5}, {WS_FK}")
            VV(b + 4, b + 30, f"v_and_b32 v{V_PO}, 7, v{V_LANE}", f"v_lshlrev_b32 v{V_PO}, 2, v{V_PO}", f"v_add_u32 v{V_PO}, s{S_T5}, v{V_PO}")
        if gs == KVS - 1: mq.add('f', b + 26, b + 33, poll_kv.issue, 4, "mem")
        if gs + 3 < NS: w_stage(gs + 3, b + 44, 4, b + 64 + 5)
        if gs in (14, 16): g_stage(2 + (gs - 14)//2, b + 44, 3, b + 64 + 7)
    b = KVS*64
    mq.add('f', b + 4, b + 8, poll_kv.check, 8, "valu")
    for st in range(2):
        for j in range(8):
            if j == 4: S(b, INF, f"s_add_u32 s{S_T4}, s{S_SRCA}, 4096")
            mq.add('d', b + 8 + st*64 + 6*j, INF, f"s_add_u32 m0, s{S_LA}, {st*32768 + (j//4)*4096}",
                   f"buffer_load_dwordx4 v{V_L16}, {srd(S_ASRD)}, s{S_T4 if j >= 4 else S_SRCA} offen offset:{(j%4)*1024}{SC} lds", ("KV", st))
        if st == 0: S(b, INF, f"s_cmp_eq_u32 s{w}, 2 ! s_cselect_b32 s{S_T4}, 1, 2", f"s_lshl_b32 s{S_T4}, s{S_T4}, 13", f"s_add_u32 s{S_SRCA}, s{S_SRCA}, s{S_T4}")
        else: S(b, INF, f"s_add_u32 s{S_SRCA}, s{S_SRCA}, 16384")
    mfill = mq.fillers()
    e(mq.first_m0)
    started = False
    for f in mfill[:n_pro0]:
        if f.cost == 8 and not started: go(); started = True
        f.fn()
        if f.cost == 8: e("s_nop 0")
    late()
    if OPT.get("tlb", 0):
        a, b, c = S_N, S_EVT, S_TRANS
        e(f"""s_lshr_b32 s{a}, s2, 3
        s_and_b32 s{b}, s{a}, 7
        s_add_u32 s{b}, s{b}, 2
        s_cmp_eq_u32 s{w}, 2
        s_cselect_b32 s{b}, 10, s{b}
        s_and_b32 s{c}, s{w}, 1
        s_lshr_b32 s{S_T0}, s{w}, 1
        s_cmp_eq_u32 s{c}, s{S_T0}
        s_cselect_b32 s{b}, 12, s{b}
        s_lshl_b32 s{S_T1}, s{b}, 3
        s_load_dwordx2 s[{S_ASRD}:{S_ASRD+1}], s[0:1], s{S_T1}
        s_cmp_lt_u32 s{b}, 6
        s_mov_b32 s{S_ASRD+2}, {1792*1024}
        s_cselect_b32 s{S_ASRD+2}, {4*MB}, s{S_ASRD+2}
        s_lshr_b32 s{S_T1}, s{a}, 3
        s_lshl_b32 s{a}, s{a}, 1
        s_add_u32 s{a}, s{a}, s{c}
        s_cmp_eq_u32 s{b}, 12
        s_cselect_b32 s{S_ASRD+2}, {WS_END}, s{S_ASRD+2}
        s_cselect_b32 s{a}, s{a}, s{S_T1}
        s_lshl_b32 s{a}, s{a}, 20
        v_mov_b32 v{V_TMP[5]}, s{a}
        s_waitcnt lgkmcnt(0)""")
        e.vmem(f"buffer_load_dword v{V_TMP[1]}, v{V_TMP[5]}, {srd(S_ASRD)}, 0 offen sc1", "PF")
        e(f"s_mov_b64 s[{S_ASRD}:{S_ASRD+1}], s[{S_WS}:{S_WS+1}]\ns_mov_b32 s{S_ASRD+2}, {WS_END}")
    if not OPT.get("dbgst"): e("s_waitcnt lgkmcnt(0)\ns_mov_b64 s[0:1], s[4:5]")
    e.need(vm=["X"])
    ln = layernorm_lines()
    rest = mfill[n_pro0:n_pro1]
    per = len(ln) // (sum(f.cost == 8 for f in rest) + 1) + 1
    while ln or rest:
        for t in ln[:per]: e(t)
        ln = ln[per:]
        while rest:
            f = rest.pop(0); f.fn()
            if f.cost == 8: break
    mfill = mfill[n_pro1:]
    t0, t1, t2 = V_TMP[2:5]
    e(f"""s_lshl_b32 s{S_T0}, s{w}, 5
    s_add_u32 s{S_T0}, s{S_T0}, 49152
    v_lshlrev_b32 v{t0}, 7, v{V_LANE}
    v_add_u32 v{t0}, s{S_T0}, v{t0}""")
    e.ds(f"ds_write_b128 v{t0}, v[64:67]"); e.ds(f"ds_write_b128 v{t0}, v[68:71] offset:16")
    e(f"""s_lshl_b32 s{S_T0}, s{w}, 11
    s_add_u32 s{S_T0}, s{S_T0}, 49152
    v_add_u32 v{t0}, s{S_T0}, v{V_L16}
    v_lshrrev_b32 v{t1}, 5, v{V_LANE}
    v_lshlrev_b32 v{t1}, 12, v{t1}
    v_bfe_u32 v{t2}, v{V_LANE}, 3, 2
    v_lshl_add_u32 v{t1}, v{t2}, 8, v{t1}
    v_and_b32 v{t2}, 7, v{V_LANE}
    v_lshl_add_u32 v{t1}, v{t2}, 4, v{t1}
    s_lshr_b32 s{S_T0}, s2, 3
    s_lshl_b32 s{S_T0}, s{S_T0}, 16
    s_bfe_u32 s{S_T1}, s2, 0x20001
    s_lshl_b32 s{S_T1}, s{S_T1}, 10
    s_add_u32 s{S_T0}, s{S_T0}, s{S_T1}
    s_and_b32 s{S_T1}, s2, 1
    s_lshl_b32 s{S_T1}, s{S_T1}, 7
    s_add_u32 s{S_T0}, s{S_T0}, s{S_T1}
    s_lshl_b32 s{S_T1}, s{w}, 14
    s_add_u32 s{S_T0}, s{S_T0}, s{S_T1}
    s_add_u32 s{S_T1}, s{S_T0}, 8192""")
    misc = []
    misc.append(Filler(lambda: (e.ds(f"ds_read_b128 v[64:67], v{t0}", "LN"), e.ds(f"ds_read_b128 v[68:71], v{t0} offset:1024", "LN")), 8, "mem", 2, 30))
    misc.append(Filler(lambda: (e.need(lg=["LN"]), e.vmem(f"buffer_store_dwordx4 v[64:67], v{t1}, {srd(S_WS)}, s{S_T0} offen{SC}", "XNST")), 8, "mem", 14, 40))
    misc.append(Filler(lambda: e.vmem(f"buffer_store_dwordx4 v[68:71], v{t1}, {srd(S_WS)}, s{S_T1} offen{SC}", "XNST"), 8, "mem", 16, 41))
    for t in scalar_setup2(e): misc.append(Filler(lambda t=t: e(t.replace(" ! ", "\n")), 4, "salu", 44, 150))
    S_RA, S_RB = S_N, S_EVT
    rts = [Filler(lambda: e(f"s_add_u32 s{S_RA}, s{S_WA}, 65536"), 4, "salu", 150)]
    for c in range(4): rts.append(Filler(lambda c=c: e(f"v_add_u32 v{V_RTA[c]}, s{S_RA}, v{V_TR[c]}"), 4, "valu", 150))
    for t in (f"s_lshl_b32 s{S_RA}, s{S_T4}, 19", f"s_lshl_b32 s{S_T3}, s{S_T3}, 12", f"s_add_u32 s{S_RA}, s{S_RA}, s{S_T3}", f"s_add_u32 s{S_RA}, s{S_RA}, {WS_WOF}",
              f"s_mul_i32 s{S_RB}, s{S_T4}, {56*4096}", f"s_add_u32 s{S_RB}, s{S_RB}, s{S_T3}", f"s_add_u32 s{S_RB}, s{S_RB}, {WS_WDF}"):
        rts.append(Filler(lambda t=t: e(t), 4, "salu", 150, 185))
    SIGKV = OPT.get("sigkv", 28)
    for n in range(8):
        t, c = n // 4, n % 4
        d0 = V_PK + (n % 2)*4
        def fr(t=t, c=c, d0=d0, n=n):
            e.need(vm=["RT"])
            for rr in range(2): e.ds(f"ds_read_b64_tr_b16 v[{d0+rr*2}:{d0+rr*2+1}], v{V_RTA[c]} offset:{t*4096 + rr*2048}", ("RTF", n))
        def fs(t=t, c=c, d0=d0, n=n):
            e.need(lg=[("RTF", n)])
            e.vmem(f"buffer_store_dwordx4 {vr(d0)}, v{V_L16}, {srd((S_WS, S_BSRD)[t])}, s{(S_RA, S_RB)[t]} offen offset:{c*1024}{SC}", "RTST")
        if not OPT.get("norts"): rts.append(Filler(fr, 8, "mem", RTS*64 + 40 + RG*n)); rts.append(Filler(fs, 4, "mem", RTS*64 + 40 + RG*n + 12, 30*64 + 30 if POLLALL else (SIGKV - 1)*64))
    mfmas = []; rd = []
    sig_at = {3: (["XNST"], sig_lin(WS_FX)), SIGKV: (["KST", "VST"] + ([] if POLLALL else ["RTST"]), SIG_KV)}
    def stage_gate(gs):
        def fn():
            tags = [("W", gs)]
            if gs < 8: tags.append(("A", gs))
            if gs in sig_at: tags += sig_at[gs][0]
            f3 = OPT.get("fine3")
            if f3 is not None and 0 <= gs - f3 < 6: stamp(e, 14 + 3*(gs - f3))
            e.need(vm=tags)
            if f3 is not None and 0 <= gs - f3 < 6: stamp(e, 15 + 3*(gs - f3))
            e("s_barrier")
            if f3 is not None and 0 <= gs - f3 < 6: stamp(e, 16 + 3*(gs - f3))
            if gs in sig_at: signal(e, sig_at[gs][1], V_TMP[6])
            if gs % 8 == 0: stamp(e, 2 + gs // 8)
            if OPT.get("fine") is not None and 0 <= gs - OPT["fine"] < 18: stamp(e, 14 + gs - OPT["fine"])
        return fn
    def actread(s, ksub, rb):
        return lambda: e.ds(f"ds_read_b128 {ar(actf(2*s+ksub, rb))}, v{V_ARD[ksub]} offset:{(s % 2)*32768 + rb*2048}", ("AF", s, ksub))
    AHEAD = 5
    for gs in range(NS):
        base = gs * 64
        if gs > 0: rd.append(Filler(stage_gate(gs), 8, "mem", base - 64 + BAR, base - 64 + BAR + 1))
        pend = [Filler(actread(gs, ksub, rb), 4, "mem", base - 64 + BAR, base - 2 + 32*ksub) for ksub in range(2) for rb in range(4)] if gs < 8 else []
        for j in range(16):
            f = gs*16 + j
            if gs < 16: kslot = 2*(gs % 8) + j // 8; db = j % 8; first = (gs % 8 == 0 and j < 8)
            else: kslot = 4*(gs % 4) + j // 4; db = 4*((gs // 4) % 2) + j % 4; first = (gs % 4 == 0 and j < 4)
            for rr in range(2):
                if 16 <= gs < 24: c_, off = 2*((gs // 4) % 2) + j % 2, (j // 2)*4096 + rr*2048
                else: c_, off = j % 4, (j // 4)*4096 + rr*2048
                off += area(gs)
                ad = V_TRH[c_] if off >= 65536 else V_TR[c_]
                d = V_WF + (j % 8)*4 + rr*2
                rd.append(Filler(lambda d=d, ad=ad, off=off % 65536, f=f: e.ds(f"ds_read_b64_tr_b16 v[{d}:{d+1}], v{ad} offset:{off}", ("F", f)),
                                 4, "mem", max(4*(f - AHEAD) + rr*OPT.get("trsplit", 0), base - 64 + BAR), 4*(f - 1)))
            for _ in range(2):
                if pend: rd.append(pend.pop(0))
            for rb in range(4):
                def m(gs=gs, j=j, f=f, kslot=kslot, db=db, rb=rb, first=first):
                    e.need(lg=[("F", f)] + ([("AF", gs, j // 8)] if gs < 8 else []), vm=[("XN", kslot)] if 16 <= gs < 20 else ())
                    wv = vr(V_WF + (j % 8)*4); a = ar(actf(kslot, rb)); d = vr(acc(db, rb))
                    e(mf(d, a, wv, "0" if first else d) if 8 <= gs < 16 else mf(d, wv, a, "0" if first else d))
                if OPT.get("prew", 1):
                    m.pre = lambda gs=gs, j=j, f=f, kslot=kslot: e.need(lg=[("F", f)] + ([("AF", gs, j // 8)] if gs < 8 else []), vm=[("XN", kslot)] if 16 <= gs < 20 else ())
                mfmas.append(m)
    def cvts(base, dst, dl):
        out = []
        for db in range(8):
            for rb in range(4):
                for hh in range(2):
                    d = dst(db, rb, hh); s = acc(db, rb) + 2*hh
                    out.append(Filler(lambda d=d, s=s: e(f"v_cvt_pk_bf16_f32 v{d}, v{s}, v{s+1}"), 4, "valu", base + 480 + 4*db + 9, dl(db, rb)))
        return out
    cv = cvts(0, lambda db, rb, hh: V_PK + (rb*4 + db//2)*4 + (db & 1)*2 + hh, lambda db, rb: 512 + 4*db + rb)
    VH = OPT.get("vh", 1150)
    cvv = cvts(512, lambda db, rb, hh: V_PK + ((db//4)*8 + (rb//2)*4 + db % 4)*4 + (rb & 1)*2 + hh, lambda db, rb: 1024 + 4*db + rb if db < 4 else min(VH + 39, 1278))
    for f in cvv[32:]: f.earliest = VH
    cv += cvv
    st = []
    G2 = OPT.get("sgap", 37)
    NKV = OPT.get("nkv", 14)
    sched = [(WS_K + n*1024, n, "KST", 512 + 36 + (444 // NKV)*n, 512 + 484) for n in range(NKV)]
    sched += [(WS_K + n*1024, n, "KST", 1024 + 4 + G2*(n - NKV), VH - 2) for n in range(NKV, 16)]
    sched += [(WS_V + ((n % 8)//4)*8192 + ((n // 8)*4 + n % 4)*1024, n, "VST", max(1024 + 20 + G2*(n + 16 - NKV), VH + 40 if n >= 8 else 0), (SIGKV - 1)*64 + 20) for n in range(16)]
    for off, n, tag, lo, dl in sched:
        if n % 4 == 0: st.append(Filler(lambda off=off: e(f"s_add_u32 s{S_T2}, s{S_KVST}, {off}"), 4, "salu", lo - 4))
        st.append(Filler(lambda n=n, tag=tag: e.vmem(f"buffer_store_dwordx4 {vr(V_PK + n*4)}, v{V_L16}, {srd(S_WS)}, s{S_T2} offen offset:{(n%4)*1024}{SC}", tag), 4, "mem", lo, dl))
    C0 = -2.0 * math.sqrt(2.0 / math.pi) * math.log2(math.e)
    V_C1 = V_TMP[4]; V_QW = V_TMP[5]
    ge = [Filler(lambda: e(f"v_mov_b32 v{V_C1}, {fb(C0*0.044715):#x}"), 4, "valu", 1100)]
    for hf in range(2):
        lo = 1024 + 256*(hf + 1) + 6; dl = lo + 250
        def V(txt, cost=4): ge.append(Filler(lambda: e(txt), cost, "valu", lo, dl))
        for t in [f"s_lshl_b32 s{S_T0}, s{h}, 13", f"s_add_u32 s{S_T0}, s{S_T0}, {hf*4096}", f"s_add_u32 s{S_T0}, s{S_T0}, s{S_HST}"]:
            ge.append(Filler(lambda t=t: e(t), 4, "salu", lo, dl))
        for rb in range(4):
            for c in range(2):
                G, U = acc(4*hf + c, rb), acc(4*hf + 2 + c, rb); T = V_TMP[0:4]
                for r in range(4): V(f"v_mul_f32 v{T[r]}, v{G+r}, v{G+r}")
                for r in range(4): V(f"v_fmaak_f32 v{T[r]}, v{T[r]}, v{V_C1}, {fb(C0):#x}")
                for r in range(4): V(f"v_mul_f32 v{T[r]}, v{G+r}, v{T[r]}")
                for r in range(4):
                    V(f"v_exp_f32 v{T[r]}, v{T[r]}", 8)
                    if r % 2: V(f"v_mul_f32 v{G+r-1}, v{G+r-1}, v{U+r-1}"); V(f"v_mul_f32 v{G+r}, v{G+r}, v{U+r}")
                for r in range(4): V(f"v_add_f32 v{T[r]}, 1.0, v{T[r]}")
                for r in range(4): V(f"v_rcp_f32 v{T[r]}, v{T[r]}", 8)
                for r in range(4): V(f"v_mul_f32 v{G+r}, v{G+r}, v{T[r]}")
                D = acc(4*hf + 2, rb) + 2*c
                V(f"v_cvt_pk_bf16_f32 v{D}, v{G}, v{G+1}"); V(f"v_cvt_pk_bf16_f32 v{D+1}, v{G+2}, v{G+3}")
            ge.append(Filler(lambda rb=rb, hf=hf: e.vmem(f"buffer_store_dwordx4 {vr(acc(4*hf + 2, rb))}, v{V_L16}, {srd(S_HSRD)}, s{S_T0} offen offset:{rb*1024}{SC}", "HST"), 4, "mem", lo, dl))
    ge.append(Filler(lambda: e(f"s_lshl_b32 s{S_T0}, s{w}, 14"), 4, "salu", 1792))
    ge.append(Filler(lambda: e(f"s_add_u32 s{S_T0}, s{S_T0}, 131072"), 4, "salu", 1792))
    ge.append(Filler(lambda: e(f"v_add_u32 v{V_QW}, s{S_T0}, v{V_L16}"), 4, "valu", 1792))
    late = []
    for hf in range(2):
        for dg in (2*hf, 2*hf + 1):
            lo = 1536 + 256*hf + 240 + 8*(dg % 2) + 7 + 6
            def V(txt, cost=4, kind="valu", lo=lo): ge.append(Filler(lambda: e(txt), cost, kind, lo))
            for qb in range(4):
                o0, o1 = acc(2*dg, qb), acc(2*dg+1, qb)
                for r in range(4): V(f"v_mul_f32 v{o0+r}, {QSCALE:#x}, v{o0+r}"); V(f"v_mul_f32 v{o1+r}, {QSCALE:#x}, v{o1+r}")
                for d, s_ in ((o0, o0), (o0+1, o0+2), (o0+2, o1), (o0+3, o1+2)): V(f"v_cvt_pk_bf16_f32 v{d}, v{s_}, v{s_+1}")
                for r in range(4): V(f"v_mov_b32 v{o1+r}, 0")
                ge.append(Filler(lambda o0=o0, qb=qb, dg=dg: e.ds(f"ds_write_b128 v{V_QW}, {vr(o0)} offset:{(qb*4+dg)*1024}", "QW"), 4, "mem", lo))
        for dg in (2*hf, 2*hf + 1):
            for qb in range(4):
                o0 = acc(2*dg, qb)
                for r in range(4): ge.append(Filler(lambda r=r, o0=o0, qb=qb, dg=dg: e(f"v_accvgpr_write_b32 a{A_Q + (qb*4+dg)*4 + r}, v{o0+r}"), 4, "valu", 29*64 + 4))
        ge.append(Filler(lambda: e.need(lg=["QW"]), 4, "salu", 29*64 + 4))
        for dg in (2*hf, 2*hf + 1):
            for qb in range(4):
                for r in range(4): ge.append(Filler(lambda r=r, qb=qb, dg=dg: e(f"v_mov_b32 v{acc(2*dg, qb) + r}, 0"), 4, "valu", 29*64 + 4))
        if hf == 0:
            for r in range(16): ge.append(Filler(lambda r=r: e(f"v_mov_b32 v{Sreg(1, 1, 0) + r}, {NEGINF:#x}"), 4, "valu", 29*64 + 4))
            for r in range(64): ge.append(Filler(lambda r=r: e(f"v_accvgpr_write_b32 a{A_DACC + r}, 0"), 4, "valu", 31*64 + 4))
    stamp(e, 1)
    e.need(vm=[("W", 0), ("A", 0)]); e.wait_all(vm=False); e("s_barrier")
    e(f"s_mul_i32 s{S_TAG}, s{S_TAG}, 0x9e3779b1\ns_add_u32 s{S_TAG}, s{S_TAG}, 0x7f4a7c15")
    stamp(e, 2)
    k = 0
    while rd[k].earliest < 0: rd[k].fn(); k += 1
    rest = e.schedule(mfmas, [rd[k:], mfill, cv, misc, rts, st, ge], flush=False)
    e("s_nop 7")
    e.c(f"left over fillers: {[len(r) for r in rest]}")
    for r in rest:
        for f in r: f.fn()
    stamp(e, 6)
    attention(e, poll_b, poll_c)
    phase_d(e, poll_c)
    if OPT.get("padto"):
        if "padx" in OPT: e(f"s_and_b32 s6, s2, 7\ns_cmp_lg_u32 s6, {OPT['padx']}\ns_cbranch_scc1 L_end")
        e(f"s_nop 1\nv_readlane_b32 s6, v{V_STAMP}, 0\ns_add_u32 s6, s6, {OPT['padto']*100}")
        e.label("L_pad")
        e("s_memrealtime s[4:5]\ns_waitcnt lgkmcnt(0)\ns_sub_u32 s7, s4, s6\ns_cmp_lt_i32 s7, 0\ns_cbranch_scc1 L_pad")
    else: stamp_flush(e)
    e("s_branch L_end")
    e.cold()
    for p in (poll_xn, poll_kv, poll_b, poll_c): p.spin()
    slow_path(e)
    e.label("L_end")
    e("s_endpgm")

A_Z = 212
S_FIRST = 20
def att_dma(e, which, j):
    sr, src, ld = ((S_ASRD, S_SRCA, S_LA), (S_BSRD, S_SRCB, S_LB))[which]
    e.vmem(f"buffer_load_dwordx4 v{V_L16}, {srd(sr)}, s{S_T4 if j >= 4 else src} offen offset:{(j%4)*1024}{SC} lds", "KV")
    if j == 3: e(f"s_add_u32 m0, s{ld}, 4096"); e(f"s_add_u32 s{S_T4}, s{src}, 4096")
    if j == 7:
        if which == 0: e(f"s_mov_b32 m0, s{S_LB}\ns_add_u32 s{S_SRCA}, s{S_SRCA}, 16384")
        else: e(f"s_sub_u32 s{S_VMAXB}, s{S_VMAXB}, 16384\ns_min_u32 s{S_SRCB}, s{S_VMAXB}, s{S_VCLB}")
def d_load(e, j):
    so = S_DW if j < 4 else S_DH
    e.vmem(f"buffer_load_dwordx4 {ar(A_DOP + j*4)}, v{V_L16}, {srd(S_DSRD)}, s{so} offen offset:{(j%4)*1024}{SC}", "KV")
    if j % 4 == 3: e(f"s_add_u32 s{so}, s{so}, s{S_DINC}")
class M:
    def __init__(self, txt, tag=None): self.txt, self.tag = txt, tag
def d_mfmas():
    return [M(mf(ar(A_DACC + (mb*4+qb)*4), ar(A_DOP + mb*4), ar(A_DOP + 16 + qb*4), ar(A_DACC + (mb*4+qb)*4))) for mb in range(4) for qb in range(4)]
def sm_half(e, buf, kb2):
    ex = []; cv = []
    for p in range(8):
        qb, hh = p // 2, p % 2
        r = Sreg(buf, kb2, qb) + 2*hh
        ex.append(lambda r=r: e(f"v_exp_f32 v{r}, v{r}")); ex.append(lambda r=r: e(f"v_exp_f32 v{r+1}, v{r+1}"))
        d = Preg(buf, qb) + 2*kb2 + hh
        cv.append(lambda r=r, d=d: e(f"v_cvt_pk_bf16_f32 v{d}, v{r}, v{r+1}"))
    return ex, cv
def qk_mfmas(buf, half):
    out = []
    for kb2 in range(2):
        kb = half*2 + kb2
        for dg in range(4):
            for qb in range(4):
                d = vr(Sreg(buf, kb2, qb))
                c = d if dg else ("0" if kb < qb else vr(V_TD) if kb == qb else vr(V_TN))
                out.append(M(mf(d, ar(A_FB[0] + (kb2*4+dg)*4), ar(A_Q + (qb*4+dg)*4), c), ("FR", 0, kb2*4)))
    return out
def pv_mfmas(buf, zero=False, order=range(8)):
    o = []
    for db in order:
        for qb in range(4):
            d = vr(Oreg(db, qb))
            o.append(M(mf(d, ar(A_Z), ar(A_Z), "0")) if zero else M(mf(d, ar(A_FB[1] + db*4), vr(Preg(buf, qb)), d), ("FR", 1, (db // 4)*4)))
    s_ = []
    for qb in range(4):
        d = ar(A_L + qb*4)
        s_.append(M(mf(d, ar(A_Z), ar(A_Z), "0")) if zero else M(mf(d, ar(A_ONE), vr(Preg(buf, qb)), d)))
    return o, s_
def frag_reads(e, fb_, off, order=range(8)):
    return [lambda j=j: e.ds(f"ds_read_b128 {ar(A_FB[fb_] + j*4)}, v{V_RD} offset:{off + j*1024}", ("FR", fb_, (j // 4)*4)) for j in order]
NOP = lambda: None
def run(e, mfmas, gaps, nxt=None):
    if mfmas[0].tag: e.need(lg=[mfmas[0].tag])
    for i, m in enumerate(mfmas):
        e(m.txt)
        t = mfmas[i+1].tag if i + 1 < len(mfmas) else nxt
        if t: e.need(lg=[t])
        for f in gaps.get(i, ()): f()
def section(e, mfmas, reads, ex, cv, carry, g2, nxt=None, tail=None):
    gaps = {}
    for q in range(8):
        gaps[4*q] = [reads[q], (carry or NOP) if q == 0 else cv[q-1]]
        gaps[4*q+1] = [ex[2*q]]; gaps[4*q+2] = [g2[q]]; gaps[4*q+3] = [ex[2*q+1]]
    if len(mfmas) > 32: gaps[32] = [cv[7]]
    for k, f in (tail or {}).items(): gaps.setdefault(k, []).insert(0, f)
    run(e, mfmas, gaps, nxt)
    return cv[7] if len(mfmas) == 32 else None
PREP = [f"s_cmp_le_u32 s{S_N}, 15\ns_cselect_b32 s{S_ASRD+2}, {WS_END}, 0\ns_cselect_b32 s{S_T0}, 32768, s{S_T1}", f"s_add_u32 s{S_T3}, s{S_N}, 2\ns_xor_b32 s{S_LB}, s{S_LB}, s{S_T0}",
        f"s_cmp_ge_u32 s{S_T3}, s{S_N0}\ns_cselect_b32 s{S_BSRD+2}, s{S_ASRD+2}, 0", f"s_xor_b32 s{S_LA}, s{S_LA}, s{S_T0}\ns_mov_b32 m0, s{S_LA}"]
PREP0 = f"s_mov_b32 s{S_T1}, 0x30000"
LR = V_TMP[10:14]
def check_lines(ret, qt):
    return [f"v_min3_f32 v{V_LIM+1}, v{LR[0]}, v{LR[1]}, v{LR[2]}\nv_add_f32 v{V_LIM}, v{LR[0]}, v{LR[1]}",
            f"v_add_f32 v{V_LIM}, v{V_LIM}, v{LR[2]}\nv_min_f32 v{V_LIM+1}, v{V_LIM+1}, v{LR[3]}",
            f"s_mov_b32 s{S_RET}, {ret}\nv_add_f32 v{V_LIM}, v{V_LIM}, v{LR[3]}\nv_cmp_nle_f32 vcc, 0x17800000, v{V_LIM+1}",
            f"s_mov_b64 s[{S_FL}:{S_FL+1}], vcc\ns_mov_b32 s{S_CNT}, s{qt}\nv_cmp_nge_f32 vcc, {OPT.get('lhi', 0x67800000):#x}, v{V_LIM}",
            f"s_or_b64 vcc, vcc, s[{S_FL}:{S_FL+1}]\n" + ("s_nop 0" if OPT.get("noslow") else "s_cbranch_vccnz L_slow")]
def norm_items(e, dbs, sbase):
    it = []
    for dg in sorted({d // 2 for d in dbs}):
        it.append((lambda dg=dg: e(f"s_add_u32 s{S_T0}, s{sbase}, {dg*4096}"), 0, 2*dg+1))
        for qb in range(4):
            o0, o1 = Oreg(2*dg, qb), Oreg(2*dg+1, qb)
            for r in range(4):
                for o in (o0, o1): it.append((lambda o=o, r=r, qb=qb: e(f"v_mul_f32 v{o+r}, v{o+r}, v{LR[qb]}"), 4, 2*dg+1))
            for d, s_ in ((o0, o0), (o0+1, o0+2), (o0+2, o1), (o0+3, o1+2)): it.append((lambda d=d, s_=s_: e(f"v_cvt_pk_bf16_f32 v{d}, v{s_}, v{s_+1}"), 4, 2*dg+1))
            it.append((lambda o0=o0, qb=qb: e.vmem(f"buffer_store_dwordx4 {vr(o0)}, v{V_L16}, {srd(S_WS)}, s{S_T0} offen offset:{qb*1024}{SC}", "CST"), 8, 2*dg+1))
    return it
def emit_items(items, extra=()):
    extra = list(extra)
    for f, c, _ in items:
        f()
        if c == 8:
            for _ in range(2):
                if extra: extra.pop(0)()
    for f in extra: f()
def sm_tail(e, order=range(8)):
    ex, cv = sm_half(e, 1, 1)
    for f in frag_reads(e, 1, 16384, order): f()
    for p in range(8):
        ex[2*p](); ex[2*p+1]()
        if p: cv[p-1]()
    e("s_nop 0"); cv[7]()

S_WOo, S_AC = S_OFF0, S_OFFA
WSLOT = [14, 15, 13, 12, 4, 5, 6, 7, 0, 1, 2, 3, 8, 9, 10, 11]
def wo_load(e, n, q):
    e.vmem(f"buffer_load_dwordx4 {ar(WSLOT[n % 16]*16 + q*4)}, v{V_L16}, {srd(S_WS)}, s{S_WOo} offen offset:{q*1024}{SC}", ("WO", n))
    if q == 3: e(f"s_add_u32 s{S_WOo}, s{S_WOo}, 4096")

def attention(e, poll_b, poll_c):
    i, h, w = S_BLK, S_HEAD, S_WAVE
    V_TRI = 8
    S_D1, S_D2, S_M = S_EVT, S_FIRST, S_FIRST + 1
    e(f"v_add_u32 v{V_RD}, 65536, v{V_L16}")
    e.need(vm=[("KV", 0)], lg=["QW"])
    e("s_barrier")
    for f in frag_reads(e, 0, 0): f()
    t0, t1, t2 = V_TMP[10:13]
    e(f"""v_mov_b32 v7, v{V_UOFF}
    v_mov_b32 v{V_TMP[15]}, 0x3f803f80
    v_lshrrev_b32 v{t0}, 4, v{V_LANE}
    v_lshlrev_b32 v{t0}, 2, v{t0}
    v_and_b32 v{t1}, 15, v{V_LANE}
    v_sub_u32 v{t0}, v{t1}, v{t0}
    v_mov_b32 v{t2}, {NEGINF:#x}""")
    if OPT.get("onehot", 1):
        e(f"v_and_b32 v5, 3, v{V_LANE}\nv_cmp_eq_u32 vcc, 0, v5\ns_nop 1\nv_cndmask_b32 v{V_TMP[15]}, 0, v{V_TMP[15]}, vcc")
    for r in range(4):
        e(f"v_cmp_gt_i32 vcc, {r}, v{t0}\nv_accvgpr_write_b32 a{A_Z + r}, 0\nv_accvgpr_write_b32 a{A_ONE + r}, v{V_TMP[15]}\nv_cndmask_b32 v{V_TRI + r}, 0, v{t2}, vcc")
    for r in range(16): e(f"v_accvgpr_write_b32 a{A_L + r}, 0")
    for qb in range(4): e(f"v_mov_b32 v{Preg(1, qb)}, 0\nv_mov_b32 v{Preg(1, qb) + 1}, 0")
    e(f"""s_lshl_b32 s{S_TRANS}, s{i}, 1
    s_add_u32 s{S_TRANS}, s{S_TRANS}, s{w}
    s_sub_u32 s{S_TRANS}, s{S_TRANS}, 1
    s_sub_u32 s{S_D1}, s{S_TRANS}, 1
    s_add_u32 s{S_D2}, s{S_TRANS}, 1
    s_cmp_eq_u32 s{i}, 7
    s_cselect_b32 s{S_T0}, 16, 99
    s_cmp_eq_u32 s{w}, 0
    s_cselect_b32 s{S_T0}, s{S_T0}, 99
    s_cmp_lt_u32 s{w}, 2
    s_cselect_b32 s{S_D1}, s{S_T0}, s{S_D1}
    s_cselect_b32 s{S_D2}, 99, s{S_D2}
    s_cselect_b32 s{S_TRANS}, 17, s{S_TRANS}
    s_mov_b32 s{S_T2}, 1
    s_mov_b32 s{S_N}, -1
    s_mov_b32 s{S_BSRD+2}, 0
    s_mov_b32 s{S_DSRD+2}, 0
    s_xor_b32 s{S_LA}, s{S_LA}, 32768
    s_add_u32 m0, s{S_LB}, 4096
    s_mov_b32 s{S_T4}, s{S_SRCB}""")
    MS = [f"s_add_u32 s{S_N}, s{S_N}, 1", f"s_cmp_eq_u32 s{S_N}, s{S_D1}\ns_cselect_b32 s{S_M}, -1, 0", f"s_cmp_eq_u32 s{S_N}, s{S_D2}\ns_cselect_b32 s{S_M}, -1, s{S_M}",
          f"v_and_b32 v{V_TD}, s{S_M}, v{V_TRI}\nv_and_b32 v{V_TD+1}, s{S_M}, v{V_TRI+1}", f"v_and_b32 v{V_TD+2}, s{S_M}, v{V_TRI+2}\nv_and_b32 v{V_TD+3}, s{S_M}, v{V_TRI+3}",
          f"s_and_b32 s{S_M}, s{S_M}, {NEGINF:#x}\nv_mov_b32 v{V_TN}, s{S_M}\nv_mov_b32 v{V_TN+1}, s{S_M}", f"v_mov_b32 v{V_TN+2}, s{S_M}\nv_mov_b32 v{V_TN+3}, s{S_M}"]
    for t in MS: e(t)
    V_SIG, V_TAGV = 12, 13
    e(sig_lin(WS_FB))
    e(f"""v_mov_b32 v{V_TAGV}, s{S_TAG}
    v_add_u32 v{V_SIG}, s{S_WL}, v{V_LANE}
    v_min_u32 v{V_SIG}, 1, v{V_SIG}
    v_lshlrev_b32 v{V_SIG}, 30, v{V_SIG}
    v_add_u32 v{V_SIG}, s{S_CNT}, v{V_SIG}""")
    if not POLLALL: poll32_addr(e, poll_b.voff, WS_FB)
    else: e(f"""v_lshrrev_b32 v{poll_b.voff}, 1, v{V_LANE}
    v_lshlrev_b32 v{poll_b.voff}, 3, v{poll_b.voff}
    v_and_or_b32 v{poll_b.voff}, v{V_LANE}, 1, v{poll_b.voff}
    v_lshlrev_b32 v{poll_b.voff}, 4, v{poll_b.voff}
    v_add_u32 v{poll_b.voff}, {WS_FB}, v{poll_b.voff}""")
    S_PSRD, S_PF, V_PF = S_WUV, S_FIRST + 2, 14
    NPF = OPT.get("npf", 0); PF0 = OPT.get("pf0", 17 - NPF)
    e(f"""s_mov_b64 s[{S_PSRD}:{S_PSRD+1}], s[{S_WS}:{S_WS+1}]
    s_lshl_b32 s{S_PF}, s{i}, 19
    s_lshl_b32 s{S_T0}, s{w}, 17
    s_add_u32 s{S_PF}, s{S_PF}, s{S_T0}
    s_and_b32 s{S_T0}, s{h}, 3
    s_lshl_b32 s{S_T0}, s{S_T0}, 13
    s_add_u32 s{S_PF}, s{S_PF}, s{S_T0}
    s_add_u32 s{S_PF}, s{S_PF}, {WS_WOF - PF0*32768}
    v_lshlrev_b32 v{V_PF}, 7, v{V_LANE}""")
    PFL = [lambda: e(f"s_sub_u32 s{S_T0}, s{S_N}, {PF0 + 1}\ns_cmp_lt_u32 s{S_T0}, {NPF}\ns_cselect_b32 s{S_PSRD+2}, {WS_END}, 0"),
           lambda: (e.vmem(f"buffer_load_dword v{V_PF+1}, v{V_PF}, {srd(S_PSRD)}, s{S_PF} offen sc1", "KV"), e(f"s_add_u32 s{S_PF}, s{S_PF}, 32768"))] if NPF else []
    stamp(e, 7)
    e.need(lg=[("FR", 0, 0)])
    e("s_nop 0")
    top = [("FR", 0, 4)]*4
    e(".p2align 6")
    e.label("L_body")
    loop_start = len(e.L)
    e.lgkm = list(top)
    A = [lambda j=j: att_dma(e, 0, j) for j in range(8)]; B = [lambda j=j: att_dma(e, 1, j) for j in range(8)]; D = [lambda j=j: d_load(e, j) for j in range(8)]
    T = lambda t: (lambda: e(t))
    ex, cv = sm_half(e, 1, 1)
    carry = section(e, qk_mfmas(0, 0), frag_reads(e, 1, 16384), ex, cv, None, B[4:] + D[:4], nxt=("FR", 1, 0))
    ex, cv = sm_half(e, 0, 0)
    o, s_ = pv_mfmas(1)
    section(e, o + s_, frag_reads(e, 0, 8192), ex, cv, carry, D[4:] + [T(t) for t in PREP], nxt=("FR", 0, 0), tail={1: T(PREP0)})
    ex, cv = sm_half(e, 0, 1)
    r = frag_reads(e, 1, 24576)
    carry = section(e, qk_mfmas(1, 1), r[0::2] + [NOP]*4, ex, cv, None, r[1::2] + [T(f"v_xor_b32 v{V_RD}, 32768, v{V_RD}"), NOP, NOP, NOP],
                    tail={31: lambda: e.wait_all()})
    if not OPT.get("nobar"): e("s_barrier")
    def itstamp():
        if OPT.get("itst"):
            e(f"s_memtime s[4:5]\nv_subrev_u32 v5, 14, v{V_LANE}\nv_cmp_eq_u32 vcc, s{S_N}, v5\ns_waitcnt lgkmcnt(0)\nv_mov_b32 v5, s4\nv_cndmask_b32 v{V_STAMP}, v{V_STAMP}, v5, vcc")
    itstamp()
    dg_ = {0: [A[0], carry], 4: [A[1]], 8: [A[2]], 12: [A[3]]}
    for k, t in zip((1, 2, 3, 5, 6, 7, 9), MS): dg_[k] = [T(t)]
    for k, f in zip((10, 14), PFL): dg_[k] = [f]
    if OPT.get("cpfl", 0): dg_[11] = [lambda: e.vmem("global_load_dword v6, v7, s[0:1]", "KV")]
    run(e, d_mfmas(), dg_)
    ex, cv = sm_half(e, 1, 0)
    o, s_ = pv_mfmas(0)
    section(e, o + s_, frag_reads(e, 0, 0), ex, cv, None, A[4:] + B[:4], nxt=("FR", 0, 0), tail={34: T(f"s_cmp_eq_u32 s{S_N}, s{S_T2}")})
    assert e.lgkm == top, e.lgkm
    e("s_cbranch_scc0 L_body")
    e.loop = (loop_start, len(e.L))
    e.label("L_special")
    e(f"s_cmp_gt_u32 s{S_N}, 3\ns_mov_b32 s{S_T2}, s{S_TRANS}\ns_cbranch_scc1 L_late")
    e(f"buffer_store_dword v{V_TAGV}, v{V_SIG}, {srd(S_WS)}, 0 offen sc1")
    e(poll_b.test())
    e(f"""v_mov_b32 v{V_SIG}, 0x40000000
    s_cselect_b32 s{S_T0}, 99, 3
    s_cmp_eq_u32 s{S_N}, s{S_T0}
    s_cbranch_scc1 L_spin_b""")
    e.label("L_ok_b")
    e(poll_b.ld)
    e(f"""s_add_u32 s{S_T0}, s{S_N}, 1
    s_cmp_eq_u32 s{S_N}, 3
    s_cselect_b32 s{S_DSRD+2}, {WS_END}, 0
    s_cselect_b32 s{S_DINC}, 4096, 0
    s_cselect_b32 s{S_T2}, s{S_TRANS}, s{S_T0}""")
    e.label("L_late")
    e(f"s_cmp_eq_u32 s{S_N}, s{S_TRANS}\ns_cbranch_scc0 L_body")
    e(f"s_cmp_eq_u32 s{S_N}, 17\ns_cbranch_scc0 L_trans")
    def cold():
        e.label("L_trans")
        e.lgkm = list(top); e.vm = ["KV"]*13
        qaddr = f"s_sub_u32 s{S_T0}, 3, s{w}\ns_lshl_b32 s{S_T0}, s{S_T0}, 14\ns_add_u32 s{S_T0}, s{S_T0}, 131072\nv_add_u32 v{V_TMP[14]}, s{S_T0}, v{V_L16}"
        qr = lambda: [lambda j=j: e.ds(f"ds_read_b128 {ar(A_Q + j*4)}, v{V_TMP[14]} offset:{j*1024}", "QS") for j in range(16)]
        rcp = [f"v_rcp_f32 v{LR[qb]}, v{LR[qb]}" for qb in range(4)]
        sm_tail(e)
        e(qaddr)
        o, s_ = pv_mfmas(1)
        gaps = {k: [f] for k, f in enumerate(B[4:] + D)}
        gaps[12] = [T(f"v_accvgpr_read_b32 v{LR[0]}, a{A_L}\nv_accvgpr_read_b32 v{LR[1]}, a{A_L+4}")]
        gaps[13] = [T(f"v_accvgpr_read_b32 v{LR[2]}, a{A_L+8}\nv_accvgpr_read_b32 v{LR[3]}, a{A_L+12}")]
        for k, t in enumerate(check_lines(0, S_QT) + rcp): gaps[14 + k] = [T(t)]
        items = norm_items(e, range(8), S_CTXLO)
        for k in range(23, 36):
            left = 8; gaps[k] = []
            while items and items[0][1] <= left and 4 + 4*items[0][2] + 3 + 5 <= k:
                f, c, _ = items.pop(0); gaps[k].append(f); left -= c
        run(e, s_ + o, gaps)
        emit_items(items)
        e.label("L_tjoin")
        e(PREP0)
        for t in PREP: e(t)
        e(f"v_xor_b32 v{V_RD}, {32768 + 65536}, v{V_RD}")
        e.need(vm=["KV"])
        e("s_barrier")
        itstamp()
        o, s_ = pv_mfmas(1, zero=True)
        gaps = {}
        for k, f in enumerate(A + B[:4]): gaps[4*k] = [f]
        for k, f in enumerate(qr() + frag_reads(e, 0, 0)): gaps.setdefault(1 + 4*(k // 2), []).append(f)
        init = MS + [f"v_mov_b32 v{Sreg(1, 1, 0) + 2*r}, {NEGINF:#x}\nv_mov_b32 v{Sreg(1, 1, 0) + 2*r + 1}, {NEGINF:#x}" for r in range(8)]
        init += [f"v_mov_b32 v{Preg(1, qb)}, 0\nv_mov_b32 v{Preg(1, qb) + 1}, 0" for qb in range(4)]
        for k, f in enumerate([T(t) for t in init] + PFL): gaps[2 + 4*(k // 2) + k % 2] = [f]
        gaps[50] = [T(f"s_mov_b32 s{S_TRANS}, 17")]
        run(e, d_mfmas() + o + s_, gaps, nxt=("FR", 0, 0))
        assert e.lgkm == top, e.lgkm
        e("s_branch L_special")
        e.label("L_ret0")
        e.lgkm = []; e.vm = []
        for t in rcp: e(t)
        emit_items(norm_items(e, range(8), S_CTXLO))
        e("s_branch L_tjoin")
    e.cold = cold
    e.label("L_final")
    stamp(e, 8)
    tw, trd, tl, tlr = V_TMP[0:4]
    e(f"""s_lshl_b32 s{S_T0}, s{w}, 17
    s_lshl_b32 s{S_AC}, s{h}, 19
    s_add_u32 s{S_AC}, s{S_AC}, s{S_T0}
    s_add_u32 s{S_AC}, s{S_AC}, {WS_CTX}
    s_lshl_b32 s{S_WOo}, s{i}, 19
    s_add_u32 s{S_WOo}, s{S_WOo}, s{S_T0}
    s_add_u32 s{S_WOo}, s{S_WOo}, {WS_WOF}
    s_and_b32 s{S_T0}, s{w}, 1
    s_lshl_b32 s{S_T0}, s{S_T0}, 14
    s_lshr_b32 s{S_T1}, s{w}, 1
    s_lshl_b32 s{S_T1}, s{S_T1}, 16
    s_add_u32 s{S_T0}, s{S_T0}, s{S_T1}
    v_add_u32 v{tw}, s{S_T0}, v{V_L16}
    v_xor_b32 v{trd}, {65536 + 16384}, v{tw}
    s_add_u32 s{S_T0}, s{S_WL}, {144*1024}
    v_add_u32 v{tl}, s{S_T0}, v{V_L16}
    v_xor_b32 v{tlr}, 3072, v{tl}
    s_cmp_ge_u32 s{w}, 2
    s_cbranch_scc1 L_mergeB""")
    for role in range(2):
        keep = list(range(4)) if role == 0 else list(range(4, 8))
        send = list(range(4, 8)) if role == 0 else list(range(4))
        if role == 1: e.label("L_mergeB")
        e.lgkm = list(top); e.vm = ["KV"]*13
        sm_tail(e, send + keep)
        e("s_nop 0")
        o, s_ = pv_mfmas(1, order=send + keep)
        gaps = {k: [lambda k=k: wo_load(e, k // 4, k % 4)] for k in range(8)}
        gaps[9] = [T(f"v_accvgpr_read_b32 v{LR[0]}, a{A_L}\nv_accvgpr_read_b32 v{LR[1]}, a{A_L+4}")]
        gaps[10] = [T(f"v_accvgpr_read_b32 v{LR[2]}, a{A_L+8}\nv_accvgpr_read_b32 v{LR[3]}, a{A_L+12}")]
        gaps[11] = [lambda: e.ds(f"ds_write_b128 v{tl}, {vr(LR[0])}")]
        for n in range(16): gaps[12 + n + n // 2] = [lambda n=n: e.ds(f"ds_write_b128 v{tw}, {vr(V_O + send[0]*16 + n*4)} offset:{n*1024}")]
        if OPT.get("fst"): stamp(e, 14)
        run(e, s_ + o, gaps)
        if OPT.get("fst"): stamp(e, 15)
        e.wait_all(vm=False)
        e("s_barrier")
        if OPT.get("fst"): stamp(e, 16)
        e.ds(f"ds_read_b128 {vr(V_TMP[4])}, v{tlr}", "ML")
        for n in range(16):
            e.ds(f"ds_read_b128 {vr(V_S[0] + n*4)}, v{trd} offset:{n*1024}", ("MO", n // 4))
            if n % 2: wo_load(e, 2 + n // 8, (n // 2) % 4)
        e.need(lg=["ML"])
        for qb in range(4): e(f"v_add_f32 v{LR[qb]}, v{LR[qb]}, v{V_TMP[4] + qb}")
        for t in check_lines(1 + role, S_QTHI): e(t)
        for n in range(16):
            e.need(lg=[("MO", n // 4)])
            for r in range(4):
                o = V_O + keep[0]*16 + n*4 + r
                e(f"v_add_f32 v{o}, v{o}, v{V_S[0] + n*4 + r}")
        e.label(f"L_ret{1 + role}")
        if OPT.get("fst"): stamp(e, 17)
        for qb in range(4): e(f"v_rcp_f32 v{LR[qb]}, v{LR[qb]}")
        e(f"v_add_u32 v{tw}, 32768, v{tw}")
        emit_items(norm_items(e, keep, S_CTXHI))
        if role == 0: e("s_branch L_attdone")
    e.label("L_attdone")
    stamp(e, 9)

def slow_path(e):
    M = V_P[1]; AL = V_P[1] + 4; T = V_P[1] + 8; QI = V_P[1] + 12; NI = V_P[1] + 13
    u, nu, ko, vo = S_T0, S_T1, S_T3, S_T5
    e.label("L_slow")
    e.lgkm = []; e.vm = []
    e("s_waitcnt vmcnt(0) lgkmcnt(0)")
    e(f"""s_lshl_b32 s{nu}, s{S_CNT}, 1
    s_add_u32 s{nu}, s{nu}, 2
    s_lshl_b32 s{ko}, s{S_HEAD}, 19
    s_add_u32 s{vo}, s{ko}, {WS_V}
    s_add_u32 s{ko}, s{ko}, {WS_K}
    s_lshl_b32 s{S_CNT}, s{S_CNT}, 6
    v_lshrrev_b32 v{T}, 4, v{V_LANE}
    v_lshlrev_b32 v{T}, 2, v{T}
    v_and_b32 v{QI}, 15, v{V_LANE}
    v_sub_u32 v{QI}, v{QI}, v{T}
    v_add_u32 v{QI}, s{S_CNT}, v{QI}
    v_mov_b32 v{NI}, {NEGINF:#x}
    s_mov_b32 s{u}, 0""")
    for r in range(128): e(f"v_mov_b32 v{V_O + r}, 0")
    for qb in range(4): e(f"v_mov_b32 v{M+qb}, v{NI}\nv_mov_b32 v{LR[qb]}, 0")
    e.label("L_slowl")
    for t, so in ((0, ko), (1, vo)):
        for j in range(8):
            if j == 4: e(f"s_add_u32 s{so}, s{so}, 4096")
            e.vmem(f"buffer_load_dwordx4 {ar(A_FB[t] + j*4)}, v{V_L16}, {srd(S_WS)}, s{so} offen offset:{(j%4)*1024}{SC}", "SL")
        e(f"s_add_u32 s{so}, s{so}, 4096")
    e.wait_all()
    for kb2 in range(2):
        for dg in range(4):
            for qb in range(4):
                d = vr(Sreg(0, kb2, qb))
                e(mf(d, ar(A_FB[0] + (kb2*4+dg)*4), ar(A_Q + (qb*4+dg)*4), d if dg else "0"))
    e("s_nop 7")
    for kb2 in range(2):
        for qb in range(4):
            for r in range(4):
                s = Sreg(0, kb2, qb) + r
                e(f"v_cmp_gt_i32 vcc, {16*kb2 + r - 16*qb}, v{QI}\ns_nop 1\nv_cndmask_b32 v{s}, v{s}, v{NI}, vcc")
    e(f"v_subrev_u32 v{QI}, 32, v{QI}")
    for qb in range(4):
        a, b = Sreg(0, 0, qb), Sreg(0, 1, qb)
        e(f"""v_max3_f32 v{T}, v{a}, v{a+1}, v{a+2}
        v_max3_f32 v{T}, v{T}, v{a+3}, v{b}
        v_max3_f32 v{T}, v{T}, v{b+1}, v{b+2}
        v_max3_f32 v{T}, v{T}, v{b+3}, v{M+qb}
        v_mov_b32 v{T+1}, v{T}
        s_nop 1
        v_permlane32_swap_b32 v{T}, v{T+1}
        v_max_f32 v{T}, v{T}, v{T+1}
        v_mov_b32 v{T+1}, v{T}
        s_nop 1
        v_permlane16_swap_b32 v{T}, v{T+1}
        v_max_f32 v{T}, v{T}, v{T+1}
        v_sub_f32 v{AL+qb}, v{M+qb}, v{T}
        v_mov_b32 v{M+qb}, v{T}
        v_exp_f32 v{AL+qb}, v{AL+qb}""")
        for s in list(range(a, a+4)) + list(range(b, b+4)):
            e(f"v_sub_f32 v{s}, v{s}, v{T}")
        for s in list(range(a, a+4)) + list(range(b, b+4)):
            e(f"v_exp_f32 v{s}, v{s}")
        e(f"v_mul_f32 v{LR[qb]}, v{LR[qb]}, v{AL+qb}")
        for s in list(range(a, a+4)) + list(range(b, b+4)):
            e(f"v_add_f32 v{LR[qb]}, v{LR[qb]}, v{s}")
        p = Preg(0, qb)
        e(f"v_cvt_pk_bf16_f32 v{p}, v{a}, v{a+1}\nv_cvt_pk_bf16_f32 v{p+1}, v{a+2}, v{a+3}\nv_cvt_pk_bf16_f32 v{p+2}, v{b}, v{b+1}\nv_cvt_pk_bf16_f32 v{p+3}, v{b+2}, v{b+3}")
        for db in range(8):
            for r in range(4): e(f"v_mul_f32 v{Oreg(db, qb)+r}, v{Oreg(db, qb)+r}, v{AL+qb}")
    e("s_nop 1")
    for db in range(8):
        for qb in range(4):
            d = vr(Oreg(db, qb))
            e(mf(d, ar(A_FB[1] + db*4), vr(Preg(0, qb)), d))
    e(f"s_add_u32 s{u}, s{u}, 1\ns_cmp_lt_u32 s{u}, s{nu}\ns_nop 7\ns_cbranch_scc1 L_slowl")
    for qb in range(4):
        e(f"""v_mov_b32 v{T}, v{LR[qb]}
        s_nop 1
        v_permlane32_swap_b32 v{LR[qb]}, v{T}
        v_add_f32 v{LR[qb]}, v{LR[qb]}, v{T}
        v_mov_b32 v{T}, v{LR[qb]}
        s_nop 1
        v_permlane16_swap_b32 v{LR[qb]}, v{T}
        v_add_f32 v{LR[qb]}, v{LR[qb]}, v{T}""")
    e(f"s_cmp_eq_u32 s{S_RET}, 0\ns_cbranch_scc1 L_ret0\ns_cmp_eq_u32 s{S_RET}, 1\ns_cbranch_scc1 L_ret1\ns_branch L_ret2")


def phase_d(e, poll_c):
    qt, mt, w = S_HEAD, S_BLK, S_WAVE
    V_XO, V_X, V_G = 4, 8, 17
    V_CR, NCR = 32, 6
    V_AS, V_AD = 128, 192
    t0, t1 = 24, 25
    S_XO = S_XNB
    for j in range(16):
        e.ds(f"ds_write_b128 v{V_TMP[0]}, {ar(A_DACC + j*4)} offset:{((j%4)*4 + j//4)*1024}", "DW")
        if j < OPT.get("wpre", 12): wo_load(e, 4 + j // 4, j % 4)
    e(f"""v_and_b32 v{t0}, 15, v{V_LANE}
    v_lshlrev_b32 v{t0}, 10, v{t0}
    v_lshrrev_b32 v{t1}, 4, v{V_LANE}
    v_lshl_add_u32 v{V_XO}, v{t1}, 3, v{t0}
    s_lshl_b32 s{S_XO}, s{qt}, 16
    s_lshl_b32 s{S_T0}, s{w}, 14
    s_add_u32 s{S_XO}, s{S_XO}, s{S_T0}
    s_lshl_b32 s{S_T1}, s{mt}, 7
    s_add_u32 s{S_XO}, s{S_XO}, s{S_T1}
    v_subrev_u32 v{t1}, 32768, v{V_TMP[0]}
    s_lshl_b32 s{S_T0}, s{w}, 12
    v_add_u32 v{t0}, s{S_T0}, v{V_L16}
    v_add_u32 v{V_G}, 65536, v{t0}""")
    poll32_addr(e, poll_c.voff, WS_FC)
    if OPT.get("fst"): stamp(e, 18)
    e.need(vm=["CST"]); e.wait_all(vm=False)
    if OPT.get("fst"): stamp(e, 19)
    e("s_barrier")
    if OPT.get("fst"): stamp(e, 20)
    signal(e, sig_lin(WS_FC), 26)
    for sw in range(4):
        for mb in range(4): e.ds(f"ds_read_b128 {vr(V_AD + (sw*4+mb)*4)}, v{V_G if sw >= 2 else t0} offset:{32768 + (sw % 2)*16384 + mb*1024}", ("R", sw))
    for mb in range(4):
        e.vmem(f"buffer_load_dwordx2 v[{V_X+2*mb}:{V_X+2*mb+1}], v{V_XO}, {srd(S_X)}, s{S_XO} offen offset:{mb*32}", "X")
    wl = [lambda n=n, q=q: wo_load(e, n, q) for n in range(4, 16) for q in range(4)][OPT.get("wpre", 12):]
    cnt = [0]
    def V(t):
        e(t); cnt[0] += 1
        if cnt[0] % 6 == 0 and wl: wl.pop(0)()
    def rnd(base, pk):
        for j in range(8): V(f"v_cvt_pk_bf16_f32 v{pk+j}, v{base+2*j}, v{base+2*j+1}")
        for j in range(8): V(f"v_lshlrev_b32 v{base+2*j}, 16, v{pk+j}"); V(f"v_and_b32 v{base+2*j+1}, 0xffff0000, v{pk+j}")
    def red(base, tag):
        e.need(lg=[(tag, 1)])
        for r in range(16): V(f"v_add_f32 v{base+r}, v{base+r}, v{base+16+r}")
        e.need(lg=[(tag, 3)])
        for r in range(16): V(f"v_add_f32 v{base+32+r}, v{base+32+r}, v{base+48+r}")
        for r in range(16): V(f"v_add_f32 v{base+r}, v{base+r}, v{base+32+r}")
    T = V_AD + 16; PK = V_AD + 32
    red(V_AD, "R"); rnd(V_AD, PK)
    for r in range(16): V(f"v_mul_f32 v{T+r}, 0xbfb8aa3b, v{V_AD+r}")
    for r in range(16): V(f"v_exp_f32 v{T+r}, v{T+r}")
    for r in range(16): V(f"v_add_f32 v{T+r}, 1.0, v{T+r}")
    for r in range(16): V(f"v_rcp_f32 v{T+r}, v{T+r}")
    for r in range(16): V(f"v_mul_f32 v{V_AD+r}, v{V_AD+r}, v{T+r}")
    rnd(V_AD, PK)
    while len(wl) > 8: wl.pop(0)()
    poll_c.issue()
    while wl: wl.pop(0)()
    stamp(e, 10); poll_c.check(); stamp(e, 11)
    def c_load(n, q):
        e.vmem(f"buffer_load_dwordx4 {vr(V_CR + (n % NCR)*16 + q*4)}, v{V_L16}, {srd(S_WS)}, s{S_AC} offen offset:{q*1024}{SC}", ("C", n))
        if q == 3: e(f"s_add_u32 s{S_AC}, s{S_AC}, 4096")
    for n in range(NCR - 1):
        for q in range(4): c_load(n, q)
    for n in range(32):
        ld = []
        if n + NCR - 1 < 32: ld += [lambda q=q: c_load(n + NCR - 1, q) for q in range(4)]
        if n >= 1 and n + 15 < 32: ld += [lambda q=q: wo_load(e, n + 15, q) for q in range(4)]
        e.need(vm=[("C", n), ("WO", n)])
        for k in range(16):
            mb, qb = k // 4, k % 4
            d = vr(V_AS + k*4)
            e(mf(d, ar(WSLOT[n % 16]*16 + mb*4), vr(V_CR + (n % NCR)*16 + qb*4), d if n else "0"))
            if k % 2 == 0 and ld: ld.pop(0)()
    stamp(e, 12)
    e("s_nop 7")
    for j in range(16): e.ds(f"ds_write_b128 v{t1}, {vr(V_AS + j*4)} offset:{((j%4)*4 + j//4)*1024}", "SW")
    e.need(vm=["X"])
    for j in range(8): e(f"v_lshlrev_b32 v{T+2*j}, 16, v{V_X+j}"); e(f"v_and_b32 v{T+2*j+1}, 0xffff0000, v{V_X+j}")
    e.wait_all(vm=False)
    e("s_barrier")
    for sw in range(4):
        for mb in range(4): e.ds(f"ds_read_b128 {vr(V_AS + (sw*4+mb)*4)}, v{V_G if sw >= 2 else t0} offset:{(sw % 2)*16384 + mb*1024}", ("RS", sw))
    red(V_AS, "RS"); rnd(V_AS, PK)
    for r in range(16): e(f"v_mul_f32 v{V_AS+r}, v{V_AS+r}, v{V_AD+r}")
    rnd(V_AS, PK)
    for r in range(16): e(f"v_add_f32 v{V_AS+r}, v{V_AS+r}, v{T+r}")
    for j in range(8): e(f"v_cvt_pk_bf16_f32 v{PK+j}, v{V_AS+2*j}, v{V_AS+2*j+1}")
    for mb in range(4):
        e.vmem(f"buffer_store_dwordx2 v[{PK+2*mb}:{PK+2*mb+1}], v{V_XO}, {srd(S_OUT)}, s{S_XO} offen offset:{mb*32}{OPT.get('outsc', '')}", "OUT")
    e("s_cmp_lg_u32 s2, 0")
    e("s_cbranch_scc1 L_nobump")
    signal(e, f"s_mov_b32 s{S_CNT}, {WS_EP}", 26)
    e.label("L_nobump")
    stamp(e, 13)

HEADER = open("cdna_kernels/" + NAME + ".s.ref").read().split("; Override launch geometry")[0]
def build():
    e = E(); body(e)
    n = chk.check(e.L, "all")
    a, b = e.loop
    n += chk.check(e.L[a:b] + e.L[a:b], "loop")
    if n: print(f"{n} hazards", file=sys.stderr)
    return "\n".join([HEADER.rstrip("\n"), "; @launch grid=(256,1,1) block=(256,1,1) lds=163840",
        '.amdgcn_target "amdgcn-amd-amdhsa--gfx950"\n.text', e.text(), '.section .rodata,"a"\n.p2align 6',
        f""".amdhsa_kernel {KN}
  .amdhsa_next_free_vgpr 512
  .amdhsa_next_free_sgpr 102
  .amdhsa_accum_offset 256
  .amdhsa_group_segment_fixed_size 0
  .amdhsa_kernarg_size 104
  .amdhsa_user_sgpr_count 2
  .amdhsa_user_sgpr_kernarg_segment_ptr 1
  .amdhsa_system_sgpr_workgroup_id_x 1
.end_amdhsa_kernel
"""])
if __name__ == "__main__":
    open(sys.argv[1], "w").write(build())
```

```python
import sys, math, os, struct
from emit import E, Filler
import check as chk

NAME = "recurrent_scan__compressed_kv_cla__glu_gated_geglu__prompt"
KN = NAME + "_kernel"
MB = 1 << 20
OPT = eval(os.environ.get("OPT", "{}"))
STAMPS = os.environ.get("STAMPS")
POLLALL = OPT.get("pollall", 0)
WS_XN, WS_H, WS_WDF, WS_WOF, WS_CTX, WS_K, WS_V, WS_END = 0, 2*MB, 9*MB, 12*MB, 16*MB, 32*MB, 48*MB, 64*MB
fb = lambda x: struct.unpack("<I", struct.pack("<f", x))[0]

S_X, S_CKV, S_WQ, S_WUK, S_WUV, S_WO, S_WG, S_WU, S_WD, S_OUT, S_DBG, S_WS = [8 + 4*i for i in range(12)]
S_HSRD, S_ASRD, S_BSRD = 56, 60, 64
S_WAVE, S_HEAD, S_BLK, S_ROT = 68, 69, 70, 71
S_T0, S_T1, S_T2, S_T3, S_T4, S_T5 = 72, 73, 74, 75, 76, 77
S_WL, S_WA = 78, 79
S_OFF0, S_OFFA, S_AROW, S_KVST, S_XNB, S_HST = 80, 81, 82, 83, 84, 85
S_CTXLO, S_CTXHI = 86, 87
S_SRCA, S_SRCB, S_LA, S_LB, S_VMAXB, S_VCLB = 88, 89, 90, 91, 92, 93
S_N, S_EVT, S_TRANS, S_N0 = 94, 95, 96, 97
S_QT, S_QTHI, S_RET, S_CNT = 98, 99, 100, 101
S_ROTB, S_DW, S_DH, S_DINC = 48, 49, 50, 51
S_GSRD = S_CKV
S_DSRD = S_HSRD
S_FL = 6
def srd(n): return f"s[{n}:{n+3}]"
def mf(d, a, b, c): return f"v_mfma_f32_16x16x32_bf16 {d}, {a}, {b}, {c}"
def vr(n, k=4): return f"v[{n}:{n+k-1}]"
def ar(n, k=4): return f"a[{n}:{n+k-1}]"

V_LANE, V_STAMP, V_L16 = 1, 2, 3
V_TR = (4, 5, 6, 7)
V_WOFF = (8, 9, 10, 11)
V_AOFF = (12, 13)
V_WOFG = (12, 13)
V_ARD = (14, 15)
V_TMP = list(range(16, 32))
V_POLL = 0
V_WF, V_PK, V_ACC = 32, 64, 128
def acc(db, rb): return V_ACC + (db*4 + rb)*4
def actf(ks, rb): return (ks*4 + rb)*4
V_RD = 4
V_TD, V_TN, V_LIM = 16, 20, 24
V_P, V_S, V_O = (32, 48), (64, 96), 128
A_Q, A_FB, A_DACC, A_L, A_ONE, A_DOP = 0, (64, 96), 128, 192, 208, 224
QSCALE = fb(math.log2(math.e) / math.sqrt(128.0))
NEGINF = 0xff800000
def Sreg(buf, kb2, qb): return V_S[buf] + (kb2*4 + qb)*4
def Preg(buf, qb): return V_P[buf] + qb*4
def Oreg(db, qb): return V_O + (db*4 + qb)*4
SC = " sc1"

def stamp(e, idx):
    if not STAMPS: return
    if OPT.get("padat"):
        if idx == OPT["padat"][0]:
            e(f"s_nop 1\nv_readlane_b32 s5, v{V_STAMP}, 0\ns_add_u32 s{S_CNT}, s5, {OPT['padat'][1]*100}")
            e.label("L_padat")
            e(f"s_memrealtime s[4:5]\ns_waitcnt lgkmcnt(0)\ns_sub_u32 s5, s4, s{S_CNT}\ns_cmp_lt_i32 s5, 0\ns_cbranch_scc1 L_padat")
            e.lgkm = []
        return
    e(("s_memtime" if STAMPS == "2" else "s_memrealtime") + " s[4:5]")
    e.wait_all(vm=False)
    e(f"v_writelane_b32 v{V_STAMP}, s4, {idx}")
def stamp_flush(e):
    if not STAMPS: return
    if OPT.get("dbgst"):
        e(f"""s_load_dwordx2 s[8:9], s[0:1], 88
        s_mov_b32 s10, 256
        s_mov_b32 s11, 0x20000
        v_readlane_b32 s4, v{V_STAMP}, 0
        s_not_b32 s4, s4
        s_nop 3
        v_writelane_b32 v{V_STAMP}, s4, 14
        v_lshlrev_b32 v0, 2, v{V_LANE}
        v_cmp_gt_u32 vcc, 15, v{V_LANE}
        s_and_saveexec_b64 s[6:7], vcc
        s_waitcnt lgkmcnt(0)
        buffer_atomic_umax v{V_STAMP}, v0, s[8:11], 0 offen
        s_waitcnt vmcnt(0)""")
        return
    e(f"""s_lshl_b32 s4, s2, 2
    s_add_u32 s4, s4, s{S_WAVE}
    s_lshl_b32 s4, s4, 7
    s_add_u32 s4, s4, {64*MB}
    v_lshlrev_b32 v0, 2, v{V_LANE}
    v_cmp_gt_u32 vcc, 32, v{V_LANE}
    s_and_saveexec_b64 s[6:7], vcc
    buffer_store_dword v{V_STAMP}, v0, {srd(S_WS)}, s4 offen
    s_waitcnt vmcnt(0)""")

WS_EP = 11*MB
WS_FX, WS_FK, WS_FB, WS_FC = WS_EP + 4096, WS_EP + 8192, WS_EP + 12288, WS_EP + 16384
S_TAG = 3
def signal(e, soff_lines, tmp):
    e(soff_lines)
    e(f"""v_mov_b32 v{tmp}, s{S_TAG}
    v_add_u32 v{tmp+1}, s{S_WL}, v{V_LANE}
    v_min_u32 v{tmp+1}, 1, v{tmp+1}
    v_lshlrev_b32 v{tmp+1}, 30, v{tmp+1}""")
    e.vmem(f"buffer_store_dword v{tmp}, v{tmp+1}, {srd(S_WS)}, s{S_CNT} offen sc1", "SIG")
def sig_lin(base):
    return f"""s_lshr_b32 s{S_CNT}, s2, 3
    s_lshl_b32 s{S_CNT}, s{S_CNT}, 7
    s_and_b32 s{S_FL}, s2, 7
    s_lshl_b32 s{S_FL}, s{S_FL}, 2
    s_add_u32 s{S_CNT}, s{S_CNT}, s{S_FL}
    s_add_u32 s{S_CNT}, s{S_CNT}, {base}"""
SIG_KV = f"""s_and_b32 s{S_CNT}, s2, 31
    s_lshl_b32 s{S_CNT}, s{S_CNT}, 7
    s_lshl_b32 s{S_FL}, s{S_BLK}, 2
    s_add_u32 s{S_CNT}, s{S_CNT}, s{S_FL}
    s_add_u32 s{S_CNT}, s{S_CNT}, {WS_FK}"""
class Poll:
    def __init__(self, e, name, voff):
        self.e, self.name, self.voff = e, name, voff
    @property
    def ld(self):
        if self.name == "b" and POLLALL: return f"buffer_load_dwordx4 a[216:219], v{self.voff}, {srd(S_WS)}, 0 offen sc1"
        return f"buffer_load_dword v{V_POLL}, v{self.voff}, {srd(S_WS)}, 0 offen sc1"
    def issue(self): self.e.vmem(self.ld, ("POLL", self.name))
    def test(self):
        if self.name == "b" and POLLALL:
            return f"""v_accvgpr_read_b32 v5, a216
            v_accvgpr_read_b32 v6, a217
            v_accvgpr_read_b32 v7, a218
            v_accvgpr_read_b32 v{V_POLL}, a219
            v_xor_b32 v5, v5, v{V_POLL}
            v_xor_b32 v6, v6, v{V_POLL}
            v_xor_b32 v7, v7, v{V_POLL}
            v_or3_b32 v5, v5, v6, v7
            v_xor_b32 v{V_POLL}, s{S_TAG}, v{V_POLL}
            v_or_b32 v5, v5, v{V_POLL}
            v_cmp_eq_u32 vcc, 0, v5
            s_cmp_eq_u64 vcc, exec"""
        return f"v_cmp_eq_u32 vcc, s{S_TAG}, v{V_POLL}\ns_cmp_eq_u64 vcc, exec"
    def check(self):
        e = self.e
        e.need(vm=[("POLL", self.name)])
        e(self.test())
        e(f"s_cbranch_scc0 L_spin_{self.name}")
        e.label(f"L_ok_{self.name}")
    def spin(self):
        e = self.e
        e.label(f"L_spin_{self.name}")
        e(f"s_mov_b32 s{S_CNT}, 0x40000")
        e.label(f"L_spinl_{self.name}")
        e("s_sleep 2")
        e(self.ld)
        e("s_waitcnt vmcnt(0)")
        e(self.test())
        e(f"s_cbranch_scc1 L_ok_{self.name}")
        e(f"s_sub_u32 s{S_CNT}, s{S_CNT}, 1")
        e(f"s_cmp_lg_u32 s{S_CNT}, 0")
        e(f"s_cbranch_scc1 L_spinl_{self.name}")
        e(f"s_branch L_ok_{self.name}")
def poll32_addr(e, v, base):
    e(f"""s_lshr_b32 s{S_T0}, s{S_HEAD}, 1
    s_sub_u32 s{S_T1}, 15, s{S_T0}
    s_min_u32 s{S_T0}, s{S_T0}, s{S_T1}
    s_lshl_b32 s{S_T0}, s{S_T0}, 9
    s_add_u32 s{S_T0}, s{S_T0}, {base}
    v_bfe_u32 v{v}, v{V_LANE}, 3, 2
    v_lshlrev_b32 v{v}, 5, v{v}
    v_and_or_b32 v{v}, v{V_LANE}, 7, v{v}
    v_lshlrev_b32 v{v}, 2, v{v}
    v_add_u32 v{v}, s{S_T0}, v{v}""")

def kernel_head(e):
    e(f".globl {KN}\n.p2align 8\n.type {KN},@function")
    e.label(KN)
    e("s_cmp_ge_u32 s2, 256")
    e("s_cbranch_scc1 L_end")
    sizes = {S_X: (0, 2*MB), S_CKV: (8, 2*MB), S_WUK: (24, 4*MB), S_WS: (96, 65*MB if STAMPS else WS_END), S_WQ: (16, 4*MB), S_WUV: (32, 4*MB), S_WO: (40, 4*MB),
             S_WG: (56, 512*3584), S_WU: (64, 512*3584), S_WD: (72, 1792*1024), S_OUT: (80, 2*MB)}
    first = (S_X, S_CKV, S_WUK, S_WS)
    if OPT.get("st0") == 1: e("s_memrealtime s[6:7]\ns_waitcnt lgkmcnt(0)")
    for sr in first: e(f"s_load_dwordx2 s[{sr}:{sr+1}], s[0:1], {sizes[sr][0]}")
    if OPT.get("st0") == 2: e("s_waitcnt lgkmcnt(0)\ns_memrealtime s[6:7]")
    if STAMPS and not OPT.get("st0"): e(("s_memtime" if STAMPS == "2" else "s_memrealtime") + " s[6:7]")
    e(f"v_and_b32 v{V_LANE}, 63, v0")
    e("v_lshrrev_b32 v2, 6, v0")
    e(f"v_lshlrev_b32 v{V_L16}, 4, v{V_LANE}")
    e(f"v_readfirstlane_b32 s{S_WAVE}, v2")
    if OPT.get("pfcode", 1):
        e(f"""s_getpc_b64 s[4:5]
        s_lshr_b32 s{S_T0}, s2, 3
        s_lshl_b32 s{S_T0}, s{S_T0}, 11
        v_lshlrev_b32 v{V_TMP[0]}, 3, v2
        v_and_or_b32 v{V_TMP[0]}, v0, 7, v{V_TMP[0]}
        v_lshlrev_b32 v{V_TMP[0]}, 6, v{V_TMP[0]}
        v_add_u32 v{V_TMP[0]}, s{S_T0}, v{V_TMP[0]}
        v_min_u32 v{V_TMP[0]}, L_end-L_pcref, v{V_TMP[0]}""")
        e.label("L_pcref")
        e.vmem(f"global_load_dword v{V_TMP[12]}, v{V_TMP[0]}, s[4:5]", "PF")
    e(f"""s_and_b32 s{S_T0}, s2, 7
    s_lshl_b32 s{S_T0}, s{S_T0}, 2
    s_lshr_b32 s{S_T1}, s2, 3
    s_and_b32 s{S_T1}, s{S_T1}, 3
    s_add_u32 s{S_HEAD}, s{S_T0}, s{S_T1}
    s_lshr_b32 s{S_BLK}, s2, 5
    s_mul_i32 s{S_T0}, s{S_T1}, {OPT.get('rota', 0)}
    s_add_u32 s{S_ROT}, s{S_BLK}, s{S_T0}
    s_mul_i32 s{S_T0}, s2, {OPT.get('rotx', 1)}
    s_add_u32 s{S_ROT}, s{S_ROT}, s{S_T0}
    s_and_b32 s{S_ROT}, s{S_ROT}, 7
    s_and_b32 s{S_ROTB}, s{S_BLK}, 3
    s_lshl_b32 s{S_WL}, s{S_WAVE}, 10
    s_lshl_b32 s{S_WA}, s{S_WAVE}, 13
    s_add_u32 s{S_WA}, s{S_WA}, 65536""")
    if STAMPS: e("v_mov_b32 v2, -1")
    for sr in first: e(f"s_mov_b32 s{sr+2}, {sizes[sr][1]}\ns_mov_b32 s{sr+3}, 0x20000")
    setup_addrs(e)
    e(f"v_add_u32 v{V_ARD[0]}, s{S_WA}, v{V_ARD[0]}\nv_xor_b32 v{V_ARD[1]}, 64, v{V_ARD[0]}")
    scalar_setup(e)
    e(f"s_lshl_b32 s{S_T0}, s2, 13\ns_lshl_b32 s{S_T1}, s{S_WAVE}, 11\ns_add_u32 s{S_T0}, s{S_T0}, s{S_T1}")
    def late():
        for sr, (p, n) in sizes.items():
            if sr not in first: e(f"s_load_dwordx2 s[{sr}:{sr+1}], s[0:1], {p}\ns_mov_b32 s{sr+2}, {n}\ns_mov_b32 s{sr+3}, 0x20000")
        for sr in (S_HSRD, S_ASRD, S_BSRD): e(f"s_mov_b64 s[{sr}:{sr+1}], s[{S_WS}:{S_WS+1}]\ns_mov_b32 s{sr+2}, {WS_END}\ns_mov_b32 s{sr+3}, 0x20000")
        e(f"s_add_u32 s{S_FL}, s{S_WS}, {WS_EP}\ns_addc_u32 s{S_FL+1}, s{S_WS+1}, 0\ns_load_dword s{S_TAG}, s[{S_FL}:{S_FL+1}], 0")
    def go():
        e("s_waitcnt lgkmcnt(0)")
        if STAMPS: e("v_writelane_b32 v2, s6, 0")
        e.vmem(f"buffer_load_dwordx4 v[64:67], v{V_L16}, {srd(S_X)}, s{S_T0} offen", "X")
        e.vmem(f"buffer_load_dwordx4 v[68:71], v{V_L16}, {srd(S_X)}, s{S_T0} offen offset:1024", "X")
    return go, late

V_CPF = 31
V_KPERM = 31
V_UOFF = 30
def setup_addrs(e):
    t0, t1, t2, t3, t4 = V_TMP[:5]
    e(f"""v_lshrrev_b32 v{t0}, 2, v{V_LANE}
    v_lshlrev_b32 v{t0}, 7, v{t0}
    v_and_b32 v{t1}, 3, v{V_LANE}
    v_lshlrev_b32 v{t1}, 3, v{t1}
    v_add_u32 v{t0}, v{t0}, v{t1}
    v_bfe_u32 v{t1}, v{V_LANE}, 3, 2
    v_lshlrev_b32 v{t1}, 5, v{t1}
    v_add_u32 v{V_TR[0]}, v{t0}, v{t1}""")
    for c in (1, 2, 3): e(f"v_xor_b32 v{V_TR[c]}, {c*32}, v{V_TR[0]}")
    e(f"""v_lshrrev_b32 v{t0}, 3, v{V_LANE}
    v_and_b32 v{t1}, 7, v{V_LANE}
    v_and_b32 v{t2}, 6, v{t0}
    v_xor_b32 v{t1}, v{t1}, v{t2}
    v_lshlrev_b32 v{V_UOFF}, 4, v{t1}
    s_lshl_b32 s{S_T0}, s{S_WAVE}, 3
    v_add_u32 v{t2}, s{S_T0}, v{t0}
    v_bfe_u32 v{t3}, v{t2}, 2, 2
    v_lshlrev_b32 v{t3}, 3, v{t3}
    v_lshrrev_b32 v{t4}, 4, v{t2}
    v_lshl_add_u32 v{t3}, v{t4}, 2, v{t3}
    v_and_b32 v{t4}, 3, v{t2}
    v_add_u32 v{V_KPERM}, v{t3}, v{t4}
    v_lshl_add_u32 v{V_WOFF[0]}, v{V_KPERM}, 13, v{V_UOFF}
    v_add_u32 v{V_WOFF[1]}, 128, v{V_WOFF[0]}
    v_add_u32 v{V_WOFF[2]}, {32*8192}, v{V_WOFF[0]}
    v_add_u32 v{V_WOFF[3]}, {32*8192 + 128}, v{V_WOFF[0]}
    v_and_b32 v{t1}, 7, v{V_LANE}
    v_lshrrev_b32 v{t2}, 1, v{t0}
    v_xor_b32 v{t1}, v{t1}, v{t2}
    v_lshlrev_b32 v{t1}, 4, v{t1}
    v_lshl_add_u32 v{V_AOFF[0]}, v{t0}, 10, v{t1}
    v_xor_b32 v{V_AOFF[1]}, 64, v{V_AOFF[0]}
    v_add_u32 v{V_AOFF[1]}, 8192, v{V_AOFF[1]}
    v_and_b32 v{t0}, 15, v{V_LANE}
    v_lshrrev_b32 v{t1}, 4, v{V_LANE}
    v_lshrrev_b32 v{t2}, 1, v{t0}
    v_xor_b32 v{t1}, v{t1}, v{t2}
    v_lshlrev_b32 v{t1}, 4, v{t1}
    v_lshl_add_u32 v{V_ARD[0]}, v{t0}, 7, v{t1}""")

def scalar_setup(e):
    i, h, w = S_BLK, S_HEAD, S_WAVE
    e(f"""s_lshl_b32 s{S_T0}, s{i}, 2
    s_add_u32 s{S_T0}, s{S_T0}, s{w}
    s_lshl_b32 s{S_AROW}, s{S_T0}, 16
    s_lshl_b32 s{S_KVST}, s{h}, 19
    s_lshl_b32 s{S_T0}, s{S_T0}, 14
    s_add_u32 s{S_KVST}, s{S_KVST}, s{S_T0}""")
def scalar_setup2(e):
    i, h, w = S_BLK, S_HEAD, S_WAVE
    a, b, c, d = S_N, S_EVT, S_TRANS, S_RET
    return f"""s_sub_u32 s{a}, 15, s{i}
    s_cmp_lt_u32 s{w}, 2 ! s_cselect_b32 s{b}, s{a}, s{i}
    s_lshl_b32 s{b}, s{b}, 1
    s_and_b32 s{c}, s{w}, 1
    s_add_u32 s{S_QT}, s{b}, s{c}
    s_lshl_b32 s{S_XNB}, s{S_QT}, 16
    s_mul_i32 s{S_HST}, s{S_QT}, {56*4096}
    s_add_u32 s{S_HST}, s{S_HST}, {WS_H}
    s_lshl_b32 s{d}, s{h}, 14
    s_add_u32 s{d}, s{d}, {WS_CTX}
    s_lshl_b32 s{S_CTXLO}, s{S_QT}, 19
    s_add_u32 s{S_CTXLO}, s{S_CTXLO}, s{d}
    s_lshr_b32 s{b}, s{w}, 1
    s_xor_b32 s{b}, s{b}, s{w}
    s_and_b32 s{b}, s{b}, 1
    s_lshl_b32 s{a}, s{a}, 1
    s_add_u32 s{S_QTHI}, s{a}, s{b}
    s_lshl_b32 s{S_CTXHI}, s{S_QTHI}, 19
    s_add_u32 s{S_CTXHI}, s{S_CTXHI}, s{d}
    s_cmp_lt_u32 s{h}, 28 ! s_cselect_b32 s{S_WG+2}, {512*3584}, 0
    s_mov_b32 s{S_WU+2}, s{S_WG+2}
    s_cmp_lt_u32 s{h}, 28 ! s_cselect_b32 s{S_HSRD+2}, {WS_END}, 0
    s_lshl_b32 s{a}, s{h}, 19
    s_mov_b32 s{b}, {WS_V}
    s_cmp_lt_u32 s{w}, 2 ! s_cselect_b32 s{b}, {WS_K}, s{b}
    s_add_u32 s{b}, s{b}, s{a}
    s_add_u32 s{S_VCLB}, s{b}, {63*8192}
    s_cmp_eq_u32 s{w}, 1 ! s_cselect_b32 s{a}, 8192, 0
    s_add_u32 s{S_SRCA}, s{b}, s{a}
    s_cmp_eq_u32 s{w}, 2 ! s_cselect_b32 s{a}, {3*8192}, s{a}
    s_add_u32 s{S_VMAXB}, s{b}, s{a}
    s_add_u32 s{S_VMAXB}, s{S_VMAXB}, {64*8192}
    s_min_u32 s{S_SRCB}, s{S_VMAXB}, s{S_VCLB}
    s_lshl_b32 s{S_LB}, s{w}, 13
    s_add_u32 s{S_LA}, s{S_LB}, 65536
    s_xor_b32 s{S_LB}, s{S_LB}, 32768
    s_lshl_b32 s{S_N0}, s{i}, 1
    s_add_u32 s{S_N0}, s{S_N0}, 2
    s_mul_i32 s{a}, s{w}, {14*4096}
    s_mul_i32 s{S_DH}, s{h}, {56*4096}
    s_add_u32 s{S_DH}, s{S_DH}, s{a}
    s_add_u32 s{S_DH}, s{S_DH}, {WS_H}
    s_mul_i32 s{S_DW}, s{i}, {56*4096}
    s_add_u32 s{S_DW}, s{S_DW}, s{a}
    s_add_u32 s{S_DW}, s{S_DW}, {WS_WDF}
    s_mov_b32 s{S_DINC}, 0""".split("\n")

def layernorm_lines():
    L = []; e = L.append
    X = (72, 80); SUM = (88, 89); TMP = (90, 91); MEAN = (92, 93); VAR = (94, 95)
    SS = (S_T0, S_T1)
    for r in range(2):
        for j in range(4):
            e(f"v_lshlrev_b32 v{X[r]+2*j}, 16, v{64+4*r+j}")
            e(f"v_and_b32 v{X[r]+2*j+1}, 0xffff0000, v{64+4*r+j}")
    def reduce():
        for mod in ("quad_perm:[1,0,3,2] row_mask:0xf bank_mask:0xf", "quad_perm:[2,3,0,1] row_mask:0xf bank_mask:0xf",
                    "row_half_mirror row_mask:0xf bank_mask:0xf", "row_mirror row_mask:0xf bank_mask:0xf",
                    "row_bcast:15 row_mask:0xa bank_mask:0xf", "row_bcast:31 row_mask:0xc bank_mask:0xf"):
            e("s_nop 0")
            for r in range(2): e(f"v_add_f32_dpp v{SUM[r]}, v{SUM[r]}, v{SUM[r]} {mod}")
        e("s_nop 0")
        for r in range(2): e(f"v_readlane_b32 s{SS[r]}, v{SUM[r]}, 63")
        e("s_nop 1")
    for r in range(2): e(f"v_add_f32 v{SUM[r]}, v{X[r]}, v{X[r]+1}")
    for j in range(2, 8):
        for r in range(2): e(f"v_add_f32 v{SUM[r]}, v{SUM[r]}, v{X[r]+j}")
    reduce()
    for r in range(2): e(f"v_mov_b32 v{MEAN[r]}, s{SS[r]}")
    for r in range(2): e(f"v_mul_f32 v{MEAN[r]}, 0x3b000000, v{MEAN[r]}")
    for j in range(8):
        for r in range(2): e(f"v_sub_f32 v{TMP[r]}, v{X[r]+j}, v{MEAN[r]}")
        for r in range(2): e(f"v_mul_f32 v{SUM[r]}, v{TMP[r]}, v{TMP[r]}" if j == 0 else f"v_fmac_f32 v{SUM[r]}, v{TMP[r]}, v{TMP[r]}")
    reduce()
    def both(fmt):
        for r in range(2): e(fmt.format(v=VAR[r], m=MEAN[r], s=SS[r]))
    def rnd(x):
        both("v_cvt_pk_bf16_f32 v{%s}, v{%s}, v{%s}" % (x, x, x)); both("v_lshlrev_b32 v{%s}, 16, v{%s}" % (x, x))
    both("v_mov_b32 v{v}, s{s}"); both("v_mul_f32 v{v}, 0x3b000000, v{v}")
    rnd("v"); both("v_add_f32 v{v}, 0x3727c5ac, v{v}"); rnd("v")
    both("v_sqrt_f32 v{v}, v{v}"); rnd("m"); rnd("v"); both("v_rcp_f32 v{v}, v{v}")
    for r in range(2):
        for j in range(8): e(f"v_sub_f32 v{X[r]+j}, v{X[r]+j}, v{MEAN[r]}")
        for j in range(4): e(f"v_cvt_pk_bf16_f32 v{64+4*r+j}, v{X[r]+2*j}, v{X[r]+2*j+1}")
        for j in range(4):
            e(f"v_lshlrev_b32 v{X[r]+2*j}, 16, v{64+4*r+j}")
            e(f"v_and_b32 v{X[r]+2*j+1}, 0xffff0000, v{64+4*r+j}")
        for j in range(8): e(f"v_mul_f32 v{X[r]+j}, v{X[r]+j}, v{VAR[r]}")
        for j in range(4): e(f"v_cvt_pk_bf16_f32 v{64+4*r+j}, v{X[r]+2*j}, v{X[r]+2*j+1}")
    return L

class MemQ:
    def __init__(self, e): self.e = e; self.items = []
    def add(self, kind, lo, hi, *a): self.items.append([kind, lo, hi, a])
    def fillers(self):
        e = self.e; out = []
        dm = [k for k, it in enumerate(self.items) if it[0] == 'd']
        nxt = {dm[j]: dm[j+1] for j in range(len(dm) - 1)}
        self.first_m0 = self.items[dm[0]][3][0]
        for k, (kind, lo, hi, a) in enumerate(self.items):
            if kind == 's': out.append(Filler(lambda a=a: e(a[0].replace(" ! ", "\n")), 4, "salu", lo, hi))
            elif kind == 'l': out.append(Filler(lambda a=a: e.vmem(a[0], a[1]), 4, "mem", lo, hi))
            elif kind == 'f': out.append(Filler(a[0], a[1], a[2], lo, hi))
            else:
                def fn(k=k, a=a):
                    if len(a) > 3: e.need(lg=a[3])
                    if " m0," in e.L[-1]: e("s_nop 0")
                    e.vmem(a[1], a[2])
                    if k in nxt: e(self.items[nxt[k]][3][0])
                out.append(Filler(fn, 8, "mem", lo, hi))
        return out


def body(e):
    i, h, w = S_BLK, S_HEAD, S_WAVE
    go, late = kernel_head(e)
    NS = 32; BAR = 42; INF = 10**9; P = -10**6
    mq = MemQ(e)
    def S(lo, hi, *lines):
        for t in lines: mq.add('s', lo, hi, t)
    def VV(lo, hi, *lines):
        for t in lines: mq.add('f', lo, hi, lambda t=t: e(t), 4, "valu")
    V_GOFF = V_KPERM; V_TRH = V_AOFF + V_ARD
    S_GO = S_T1
    def area(gs):
        if gs < 16: return (gs % 4)*16384
        if gs < 24: return ((gs % 4)*32768 + 65536) % 131072
        return ((gs - 24)*16384 + 65536) % 131072
    def w_stage(gs, lo, step, hi):
        slot = gs % 4
        if gs < 16:
            s = gs % 8
            if s == 0: S(lo - 8, hi, f"s_lshl_b32 s{S_OFF0}, s{S_ROT}, 19", f"s_lshl_b32 s{S_T5}, s{h}, 8", f"s_add_u32 s{S_OFF0}, s{S_OFF0}, s{S_T5}")
            else: S(lo - 8, hi, f"s_add_u32 s{S_OFF0}, s{S_OFF0}, {1<<19}", f"s_and_b32 s{S_OFF0}, s{S_OFF0}, {4*MB-1}")
            for n in range(4):
                mq.add('d', lo + step*n, hi, f"s_add_u32 m0, s{S_WL}, {slot*16384 + n*4096}",
                       f"buffer_load_dwordx4 v{V_WOFF[n]}, {srd(S_WUK if gs < 8 else S_WUV)}, s{S_OFF0} offen lds", ("W", gs))
        elif gs >= 24:
            s = gs % 4; hf = (gs // 4) % 2
            S(lo - 10, hi, f"s_add_u32 s{S_OFF0}, s{S_ROTB}, {s}", f"s_and_b32 s{S_OFF0}, s{S_OFF0}, 3", f"s_lshl_b32 s{S_OFF0}, s{S_OFF0}, 20",
              f"s_lshl_b32 s{S_T5}, s{h}, 8", f"s_add_u32 s{S_OFF0}, s{S_OFF0}, s{S_T5}")
            if hf: S(lo - 10, hi, f"s_add_u32 s{S_OFF0}, s{S_OFF0}, 128")
            for n in range(4):
                if n: S(lo + step*n - 2, hi, f"s_add_u32 s{S_OFF0}, s{S_OFF0}, {32*8192}")
                mq.add('d', lo + step*n, hi, f"s_add_u32 m0, s{S_WL}, {area(gs) + n*4096}",
                       f"buffer_load_dwordx4 v{V_WOFF[0]}, {srd(S_WQ)}, s{S_OFF0} offen lds", ("W", gs))
    def g_stage(s, lo, step, hi):
        S(lo - 10, hi, f"s_add_u32 s{S_GO}, s{S_ROTB}, {s}", f"s_and_b32 s{S_GO}, s{S_GO}, 3", f"s_mul_i32 s{S_GO}, s{S_GO}, {128*3584}",
          f"s_lshl_b32 s{S_T5}, s{h}, 7", f"s_add_u32 s{S_GO}, s{S_GO}, s{S_T5}")
        for n in range(8):
            if n and n % 2 == 0: S(lo + step*n - 2, hi, f"s_add_u32 s{S_GO}, s{S_GO}, {32*3584}")
            mq.add('d', lo + step*n, hi, f"s_add_u32 m0, s{S_WL}, {area(16 + s) + n*4096}",
                   f"buffer_load_dwordx4 v{V_GOFF}, {srd((S_WG, S_WU)[n % 2])}, s{S_GO} offen lds", ("W", 16 + s))
    def a_stage(s, lo, step, hi):
        S(lo - 6, hi, f"s_add_u32 s{S_OFFA}, s{S_ROT}, {s}", f"s_and_b32 s{S_OFFA}, s{S_OFFA}, 7", f"s_lshl_b32 s{S_OFFA}, s{S_OFFA}, 7", f"s_add_u32 s{S_OFFA}, s{S_OFFA}, s{S_AROW}")
        for q in range(8):
            if q and q % 2 == 0: S(lo + step*q - 2, hi, f"s_add_u32 s{S_OFFA}, s{S_OFFA}, 16384")
            mq.add('d', lo + step*q, hi, f"s_add_u32 m0, s{S_WA}, {(s % 2)*32768 + q*1024}",
                   f"buffer_load_dwordx4 v{V_AOFF[q & 1]}, {srd(S_CKV)}, s{S_OFFA} offen lds", ("A", s), [("AF", s-2, 0), ("AF", s-2, 1)])
    def xn_stage(s, lo, step, hi):
        if s % 2 == 0: S(lo - 6, hi, f"s_add_u32 s{S_OFFA}, s{S_ROTB}, {s//2}", f"s_and_b32 s{S_OFFA}, s{S_OFFA}, 3", f"s_lshl_b32 s{S_OFFA}, s{S_OFFA}, 14", f"s_add_u32 s{S_OFFA}, s{S_OFFA}, s{S_XNB}")
        for ksub in range(2):
            if ksub or s % 2: S(lo + step*4*ksub - 2, hi, f"s_add_u32 s{S_OFFA}, s{S_OFFA}, 4096")
            for rb in range(4):
                mq.add('l', lo + step*(ksub*4 + rb), hi, f"buffer_load_dwordx4 {ar(actf(2*s+ksub, rb))}, v{V_L16}, {srd(S_WS)}, s{S_OFFA} offen offset:{rb*1024}{SC}", ("XN", 2*s+ksub))
    V_PO = V_TMP[13]
    poll_xn = Poll(e, "xn", V_PO); poll_kv = Poll(e, "kv", V_PO); poll_b = Poll(e, "b", V_TMP[15]); poll_c = Poll(e, "c", V_TMP[15])
    V_RT = V_TMP[8]; V_RTA = V_TMP[9:13]; V_PFD = V_TMP[1]
    RTL, RTS, RG = OPT.get("rtl", 19), OPT.get("rts", 22), OPT.get("rtgap", 32)
    S_RL = S_RET
    PRO = OPT.get("pro", 1); KVS = OPT.get("kvs", 30)
    w_stage(0, P, 0, INF); a_stage(0, P, 0, INF)
    n_pro0 = len(mq.items)
    S(P, INF, f"s_lshl_b32 s{S_T2}, s{w}, 8", f"s_add_u32 s{S_T2}, s{S_T2}, s2", f"s_lshr_b32 s{S_T3}, s{S_T2}, 3", f"s_add_u32 s{S_T4}, s{S_T2}, s{S_T3}", f"s_and_b32 s{S_T4}, s{S_T4}, 7",
      f"s_cmp_lt_u32 s{S_T2}, 448 ! s_cselect_b32 s{S_WD+2}, {1792*1024}, 0", f"s_cmp_lt_u32 s{S_T2}, 448 ! s_cselect_b32 s{S_BSRD+2}, {WS_END}, 0")
    VV(P, INF, f"v_lshrrev_b32 v{V_RT}, 3, v{V_LANE}", f"v_lshl_add_u32 v{V_RT}, v{V_RT}, 10, v{V_UOFF}", f"v_mul_u32_u24 v{V_GOFF}, 3584, v{V_KPERM}", f"v_add_u32 v{V_GOFF}, v{V_GOFF}, v{V_UOFF}")
    w_stage(1, P, 0, INF)
    if PRO >= 2: a_stage(1, P, 0, INF)
    if PRO >= 3: w_stage(2, P, 0, INF)
    n_pro1 = len(mq.items)
    if PRO < 2: a_stage(1, 0, 1, 30)
    if PRO < 3: w_stage(2, 10, 1, 36)
    def rt_loads(E0, half):
        for q in range(2*half, 2*half + 2):
            if OPT.get("rtlin"): S(E0, INF, f"s_add_u32 s{S_RL}, s{S_RL}, 1024" if q else f"s_lshl_b32 s{S_RL}, s{S_T4}, 12 ! s_lshl_b32 s{S_T5}, s{S_T3}, 3 ! s_add_u32 s{S_RL}, s{S_RL}, s{S_T5}")
            else: S(E0, INF, f"s_add_u32 s{S_RL}, s{S_RL}, 8192" if q else f"s_lshl_b32 s{S_RL}, s{S_T4}, 7 ! s_lshl_b32 s{S_T5}, s{S_T3}, 3 ! s_add_u32 s{S_RL}, s{S_RL}, s{S_T5}")
            for t, sr in enumerate((S_WO, S_WD)):
                mq.add('d', E0 + ((4 + 14*(q % 2) + 7*t) if RTL > 5 else 36), E0 + (33 if RTL > 5 else 60), f"s_add_u32 m0, s{S_WA}, {65536 + t*4096 + q*1024}", f"buffer_load_dwordx4 v{V_L16 if OPT.get('rtlin') else V_RT}, {srd(sr)}, s{S_RL} offen lds", "RT")
    for gs in range(NS):
        b = gs * 64
        if gs + 2 < 8: a_stage(gs + 2, b + (6 if gs or PRO >= 3 else 22), (4 if gs or PRO >= 3 else 2), b + 41)
        GS = OPT.get("gs", (7, 8))
        if gs in GS: g_stage(GS.index(gs), b + 4, 3, b + 41)
        if gs == 8:
            t0, t1 = V_TMP[2:4]
            S(b + 4, b + 30, f"s_lshl_b32 s{S_T5}, s{S_QT}, 7", f"s_add_u32 s{S_T5}, s{S_T5}, {WS_FX}")
            VV(b + 4, b + 30, f"v_and_b32 v{V_PO}, 7, v{V_LANE}", f"v_lshlrev_b32 v{V_PO}, 2, v{V_PO}", f"v_add_u32 v{V_PO}, s{S_T5}, v{V_PO}")
            mq.add('f', b + 28, b + 36, poll_xn.issue, 4, "mem")
        if gs == 9: mq.add('f', b + 2, b + 6, poll_xn.check, 8, "valu")
        if 9 <= gs <= 16: xn_stage(gs - 9, b + 8, 4, b + 41)
        if gs == 10: VV(b + 20, INF, *[f"v_add_u32 v{V_TRH[c]}, 65536, v{V_TR[c]}" for c in range(4)])
        if gs in (RTL, RTL + 1) and not OPT.get("nortl"): rt_loads(b, gs - RTL)
        if gs == 27:
            S(b + 4, b + 30, f"s_and_b32 s{S_T5}, s2, 31", f"s_lshl_b32 s{S_T5}, s{S_T5}, 7", f"s_add_u32 s{S_T5}, s{S_T5}, {WS_FK}")
            VV(b + 4, b + 30, f"v_and_b32 v{V_PO}, 7, v{V_LANE}", f"v_lshlrev_b32 v{V_PO}, 2, v{V_PO}", f"v_add_u32 v{V_PO}, s{S_T5}, v{V_PO}")
        if gs == KVS - 1: mq.add('f', b + 26, b + 33, poll_kv.issue, 4, "mem")
        if gs + 3 < NS: w_stage(gs + 3, b + 44, 4, b + 64 + 5)
        if gs in (14, 16): g_stage(2 + (gs - 14)//2, b + 44, 3, b + 64 + 7)
    b = KVS*64
    mq.add('f', b + 4, b + 8, poll_kv.check, 8, "valu")
    for st in range(2):
        for j in range(8):
            if j == 4: S(b, INF, f"s_add_u32 s{S_T4}, s{S_SRCA}, 4096")
            mq.add('d', b + 8 + st*64 + 6*j, INF, f"s_add_u32 m0, s{S_LA}, {st*32768 + (j//4)*4096}",
                   f"buffer_load_dwordx4 v{V_L16}, {srd(S_ASRD)}, s{S_T4 if j >= 4 else S_SRCA} offen offset:{(j%4)*1024}{SC} lds", ("KV", st))
        if st == 0: S(b, INF, f"s_cmp_eq_u32 s{w}, 2 ! s_cselect_b32 s{S_T4}, 1, 2", f"s_lshl_b32 s{S_T4}, s{S_T4}, 13", f"s_add_u32 s{S_SRCA}, s{S_SRCA}, s{S_T4}")
        else: S(b, INF, f"s_add_u32 s{S_SRCA}, s{S_SRCA}, 16384")
    mfill = mq.fillers()
    e(mq.first_m0)
    started = False
    for f in mfill[:n_pro0]:
        if f.cost == 8 and not started: go(); started = True
        f.fn()
        if f.cost == 8: e("s_nop 0")
    late()
    if OPT.get("tlb", 0):
        a, b, c = S_N, S_EVT, S_TRANS
        e(f"""s_lshr_b32 s{a}, s2, 3
        s_and_b32 s{b}, s{a}, 7
        s_add_u32 s{b}, s{b}, 2
        s_cmp_eq_u32 s{w}, 2
        s_cselect_b32 s{b}, 10, s{b}
        s_and_b32 s{c}, s{w}, 1
        s_lshr_b32 s{S_T0}, s{w}, 1
        s_cmp_eq_u32 s{c}, s{S_T0}
        s_cselect_b32 s{b}, 12, s{b}
        s_lshl_b32 s{S_T1}, s{b}, 3
        s_load_dwordx2 s[{S_ASRD}:{S_ASRD+1}], s[0:1], s{S_T1}
        s_cmp_lt_u32 s{b}, 6
        s_mov_b32 s{S_ASRD+2}, {1792*1024}
        s_cselect_b32 s{S_ASRD+2}, {4*MB}, s{S_ASRD+2}
        s_lshr_b32 s{S_T1}, s{a}, 3
        s_lshl_b32 s{a}, s{a}, 1
        s_add_u32 s{a}, s{a}, s{c}
        s_cmp_eq_u32 s{b}, 12
        s_cselect_b32 s{S_ASRD+2}, {WS_END}, s{S_ASRD+2}
        s_cselect_b32 s{a}, s{a}, s{S_T1}
        s_lshl_b32 s{a}, s{a}, 20
        v_mov_b32 v{V_TMP[5]}, s{a}
        s_waitcnt lgkmcnt(0)""")
        e.vmem(f"buffer_load_dword v{V_TMP[1]}, v{V_TMP[5]}, {srd(S_ASRD)}, 0 offen sc1", "PF")
        e(f"s_mov_b64 s[{S_ASRD}:{S_ASRD+1}], s[{S_WS}:{S_WS+1}]\ns_mov_b32 s{S_ASRD+2}, {WS_END}")
    e.need(vm=["X"])
    ln = layernorm_lines()
    rest = mfill[n_pro0:n_pro1]
    per = len(ln) // (sum(f.cost == 8 for f in rest) + 1) + 1
    while ln or rest:
        for t in ln[:per]: e(t)
        ln = ln[per:]
        while rest:
            f = rest.pop(0); f.fn()
            if f.cost == 8: break
    mfill = mfill[n_pro1:]
    t0, t1, t2 = V_TMP[2:5]
    e(f"""s_lshl_b32 s{S_T0}, s{w}, 5
    s_add_u32 s{S_T0}, s{S_T0}, 49152
    v_lshlrev_b32 v{t0}, 7, v{V_LANE}
    v_add_u32 v{t0}, s{S_T0}, v{t0}""")
    e.ds(f"ds_write_b128 v{t0}, v[64:67]"); e.ds(f"ds_write_b128 v{t0}, v[68:71] offset:16")
    e(f"""s_lshl_b32 s{S_T0}, s{w}, 11
    s_add_u32 s{S_T0}, s{S_T0}, 49152
    v_add_u32 v{t0}, s{S_T0}, v{V_L16}
    v_lshrrev_b32 v{t1}, 5, v{V_LANE}
    v_lshlrev_b32 v{t1}, 12, v{t1}
    v_bfe_u32 v{t2}, v{V_LANE}, 3, 2
    v_lshl_add_u32 v{t1}, v{t2}, 8, v{t1}
    v_and_b32 v{t2}, 7, v{V_LANE}
    v_lshl_add_u32 v{t1}, v{t2}, 4, v{t1}
    s_lshr_b32 s{S_T0}, s2, 3
    s_lshl_b32 s{S_T0}, s{S_T0}, 16
    s_bfe_u32 s{S_T1}, s2, 0x20001
    s_lshl_b32 s{S_T1}, s{S_T1}, 10
    s_add_u32 s{S_T0}, s{S_T0}, s{S_T1}
    s_and_b32 s{S_T1}, s2, 1
    s_lshl_b32 s{S_T1}, s{S_T1}, 7
    s_add_u32 s{S_T0}, s{S_T0}, s{S_T1}
    s_lshl_b32 s{S_T1}, s{w}, 14
    s_add_u32 s{S_T0}, s{S_T0}, s{S_T1}
    s_add_u32 s{S_T1}, s{S_T0}, 8192""")
    misc = []
    misc.append(Filler(lambda: (e.ds(f"ds_read_b128 v[64:67], v{t0}", "LN"), e.ds(f"ds_read_b128 v[68:71], v{t0} offset:1024", "LN")), 8, "mem", 2, 30))
    misc.append(Filler(lambda: (e.need(lg=["LN"]), e.vmem(f"buffer_store_dwordx4 v[64:67], v{t1}, {srd(S_WS)}, s{S_T0} offen{SC}", "XNST")), 8, "mem", 14, 40))
    misc.append(Filler(lambda: e.vmem(f"buffer_store_dwordx4 v[68:71], v{t1}, {srd(S_WS)}, s{S_T1} offen{SC}", "XNST"), 8, "mem", 16, 41))
    for t in scalar_setup2(e): misc.append(Filler(lambda t=t: e(t.replace(" ! ", "\n")), 4, "salu", 44, 150))
    S_RA, S_RB = S_N, S_EVT
    rts = [Filler(lambda: e(f"s_add_u32 s{S_RA}, s{S_WA}, 65536"), 4, "salu", 150)]
    for c in range(4): rts.append(Filler(lambda c=c: e(f"v_add_u32 v{V_RTA[c]}, s{S_RA}, v{V_TR[c]}"), 4, "valu", 150))
    for t in (f"s_lshl_b32 s{S_RA}, s{S_T4}, 19", f"s_lshl_b32 s{S_T3}, s{S_T3}, 12", f"s_add_u32 s{S_RA}, s{S_RA}, s{S_T3}", f"s_add_u32 s{S_RA}, s{S_RA}, {WS_WOF}",
              f"s_mul_i32 s{S_RB}, s{S_T4}, {56*4096}", f"s_add_u32 s{S_RB}, s{S_RB}, s{S_T3}", f"s_add_u32 s{S_RB}, s{S_RB}, {WS_WDF}"):
        rts.append(Filler(lambda t=t: e(t), 4, "salu", 150, 185))
    SIGKV = OPT.get("sigkv", 28)
    for n in range(8):
        t, c = n // 4, n % 4
        d0 = V_PK + (n % 2)*4
        def fr(t=t, c=c, d0=d0, n=n):
            e.need(vm=["RT"])
            for rr in range(2): e.ds(f"ds_read_b64_tr_b16 v[{d0+rr*2}:{d0+rr*2+1}], v{V_RTA[c]} offset:{t*4096 + rr*2048}", ("RTF", n))
        def fs(t=t, c=c, d0=d0, n=n):
            e.need(lg=[("RTF", n)])
            e.vmem(f"buffer_store_dwordx4 {vr(d0)}, v{V_L16}, {srd((S_WS, S_BSRD)[t])}, s{(S_RA, S_RB)[t]} offen offset:{c*1024}{SC}", "RTST")
        if not OPT.get("norts"): rts.append(Filler(fr, 8, "mem", RTS*64 + 40 + RG*n)); rts.append(Filler(fs, 4, "mem", RTS*64 + 40 + RG*n + 12, 30*64 + 30 if POLLALL else (SIGKV - 1)*64))
    mfmas = []; rd = []
    sig_at = {3: (["XNST"], sig_lin(WS_FX)), SIGKV: (["KST", "VST"] + ([] if POLLALL else ["RTST"]), SIG_KV)}
    def stage_gate(gs):
        def fn():
            tags = [("W", gs)]
            if gs < 8: tags.append(("A", gs))
            if gs in sig_at: tags += sig_at[gs][0]
            f3 = OPT.get("fine3")
            if f3 is not None and 0 <= gs - f3 < 6: stamp(e, 14 + 3*(gs - f3))
            e.need(vm=tags)
            if f3 is not None and 0 <= gs - f3 < 6: stamp(e, 15 + 3*(gs - f3))
            e("s_barrier")
            if f3 is not None and 0 <= gs - f3 < 6: stamp(e, 16 + 3*(gs - f3))
            if gs in sig_at: signal(e, sig_at[gs][1], V_TMP[6])
            if gs % 8 == 0: stamp(e, 2 + gs // 8)
            if OPT.get("fine") is not None and 0 <= gs - OPT["fine"] < 18: stamp(e, 14 + gs - OPT["fine"])
        return fn
    def actread(s, ksub, rb):
        return lambda: e.ds(f"ds_read_b128 {ar(actf(2*s+ksub, rb))}, v{V_ARD[ksub]} offset:{(s % 2)*32768 + rb*2048}", ("AF", s, ksub))
    for gs in range(NS):
        base = gs * 64
        if gs > 0: rd.append(Filler(stage_gate(gs), 8, "mem", base - 64 + BAR, base - 64 + BAR + 1))
        pend = [Filler(actread(gs, ksub, rb), 4, "mem", base - 64 + BAR, base - 3) for rb in range(4) for ksub in range(2)] if gs < 8 else []
        CH = 2 if gs < 16 else 4
        for g in range(16 // CH):
            g0 = base + g*4*CH
            db = g if gs < 16 else 4*((gs // 4) % 2) + g
            first = gs % (16 // CH) == 0
            for k in range(CH):
                slot = (g*CH + k) % 8
                if gs < 16: c_, off = g % 4, (k*2 + g // 4)*4096
                elif gs < 24: c_, off = 2*((gs // 4) % 2) + g % 2, (k*2 + g // 2)*4096
                else: c_, off = g, k*4096
                off += area(gs)
                for rr in range(2):
                    ad = V_TRH[c_] if off >= 65536 else V_TR[c_]
                    d = V_WF + slot*4 + rr*2
                    n_ = k*2 + rr
                    lo = (g0 - 22 + 2*n_) if CH == 2 else (g0 - 16 + n_)
                    if gs == 16 and g == 1: lo = max(lo, base)
                    rd.append(Filler(lambda d=d, ad=ad, o=(off + rr*2048) % 65536, t=(gs, g): e.ds(f"ds_read_b64_tr_b16 v[{d}:{d+1}], v{ad} offset:{o}", ("F", t)),
                                     4, "mem", max(lo, base - 64 + BAR), g0 - 3))
                    for _ in range(1 if g else 2):
                        if pend: rd.append(pend.pop(0))
            for rb in range(4):
                for kk in range(CH):
                    k = kk if rb % 2 == 0 else CH - 1 - kk
                    kslot = CH*(gs % (16 // CH)) + k
                    def needs(gs=gs, g=g, CH=CH):
                        return e.need(lg=[("F", (gs, g))] + ([("AF", gs, 0), ("AF", gs, 1)] if gs < 8 else []),
                                      vm=[("XN", 4*(gs % 4) + q) for q in range(4)] if 16 <= gs < 20 else ())
                    def m(gs=gs, slot=(g*CH + k) % 8, kslot=kslot, db=db, rb=rb, z=(first and kk == 0), needs=needs):
                        needs()
                        wv = vr(V_WF + slot*4); a = ar(actf(kslot, rb)); d = vr(acc(db, rb))
                        e(mf(d, a, wv, "0" if z else d) if 8 <= gs < 16 else mf(d, wv, a, "0" if z else d))
                    m.pre = needs
                    mfmas.append(m)
    def cvts(base, dst, dl):
        out = []
        for db in range(8):
            for rb in range(4):
                for hh in range(2):
                    d = dst(db, rb, hh); s = acc(db, rb) + 2*hh
                    out.append(Filler(lambda d=d, s=s: e(f"v_cvt_pk_bf16_f32 v{d}, v{s}, v{s+1}"), 4, "valu", base + 448 + 8*db + 2*rb + 1 + 8, dl(db, rb)))
        return out
    cv = cvts(0, lambda db, rb, hh: V_PK + (rb*4 + db//2)*4 + (db & 1)*2 + hh, lambda db, rb: min(512 + 8*db + 2*rb, 512 + 30))
    VH = OPT.get("vh", 1150)
    cvv = cvts(512, lambda db, rb, hh: V_PK + ((db//4)*8 + (rb//2)*4 + db % 4)*4 + (rb & 1)*2 + hh, lambda db, rb: min(1024 + 16*db + 4*rb, 1024 + 16) if db < 4 else min(VH + 39, 1278))
    for f in cvv[32:]: f.earliest = VH
    cv += cvv
    st = []
    G2 = OPT.get("sgap", 37)
    NKV = OPT.get("nkv", 14)
    sched = [(WS_K + n*1024, n, "KST", 512 + 36 + (444 // NKV)*n, 512 + 454 if n < 8 else 1024) for n in range(NKV)]
    sched += [(WS_K + n*1024, n, "KST", 1024 + 4 + G2*(n - NKV), VH - 2) for n in range(NKV, 16)]
    sched += [(WS_V + ((n % 8)//4)*8192 + ((n // 8)*4 + n % 4)*1024, n, "VST", max(1024 + 20 + G2*(n + 16 - NKV), VH + 40 if n >= 8 else 0), (SIGKV - 1)*64 + 20) for n in range(16)]
    for off, n, tag, lo, dl in sched:
        if n % 4 == 0: st.append(Filler(lambda off=off: e(f"s_add_u32 s{S_T2}, s{S_KVST}, {off}"), 4, "salu", lo - 4))
        st.append(Filler(lambda n=n, tag=tag: e.vmem(f"buffer_store_dwordx4 {vr(V_PK + n*4)}, v{V_L16}, {srd(S_WS)}, s{S_T2} offen offset:{(n%4)*1024}{SC}", tag), 4, "mem", lo, dl))
    C0 = -2.0 * math.sqrt(2.0 / math.pi) * math.log2(math.e)
    V_C1 = V_TMP[4]; V_QW = V_TMP[5]
    ge = [Filler(lambda: e(f"v_mov_b32 v{V_C1}, {fb(C0*0.044715):#x}"), 4, "valu", 1100)]
    for hf in range(2):
        lo = 1024 + 256*(hf + 1) - 16 + 11; dl = 1024 + 256*(hf + 2)
        def V(txt, cost=4): ge.append(Filler(lambda: e(txt), cost, "valu", lo, dl))
        for t in [f"s_lshl_b32 s{S_T0}, s{h}, 13", f"s_add_u32 s{S_T0}, s{S_T0}, {hf*4096}", f"s_add_u32 s{S_T0}, s{S_T0}, s{S_HST}"]:
            ge.append(Filler(lambda t=t: e(t), 4, "salu", lo, dl))
        for rb in range(4):
            lo = 1024 + 256*(hf + 1) - 16 + 4*rb + 11
            for c in range(2):
                G, U = acc(4*hf + c, rb), acc(4*hf + 2 + c, rb); T = V_TMP[0:4]
                for r in range(4): V(f"v_mul_f32 v{T[r]}, v{G+r}, v{G+r}")
                for r in range(4): V(f"v_fmaak_f32 v{T[r]}, v{T[r]}, v{V_C1}, {fb(C0):#x}")
                for r in range(4): V(f"v_mul_f32 v{T[r]}, v{G+r}, v{T[r]}")
                for r in range(4):
                    V(f"v_exp_f32 v{T[r]}, v{T[r]}", 8)
                    if r % 2: V(f"v_mul_f32 v{G+r-1}, v{G+r-1}, v{U+r-1}"); V(f"v_mul_f32 v{G+r}, v{G+r}, v{U+r}")
                for r in range(4): V(f"v_add_f32 v{T[r]}, 1.0, v{T[r]}")
                for r in range(4): V(f"v_rcp_f32 v{T[r]}, v{T[r]}", 8)
                for r in range(4): V(f"v_mul_f32 v{G+r}, v{G+r}, v{T[r]}")
                D = acc(4*hf + 2, rb) + 2*c
                V(f"v_cvt_pk_bf16_f32 v{D}, v{G}, v{G+1}"); V(f"v_cvt_pk_bf16_f32 v{D+1}, v{G+2}, v{G+3}")
            ge.append(Filler(lambda rb=rb, hf=hf: e.vmem(f"buffer_store_dwordx4 {vr(acc(4*hf + 2, rb))}, v{V_L16}, {srd(S_HSRD)}, s{S_T0} offen offset:{rb*1024}{SC}", "HST"), 4, "mem", lo, dl))
    ge.append(Filler(lambda: e(f"s_lshl_b32 s{S_T0}, s{w}, 14"), 4, "salu", 1792))
    ge.append(Filler(lambda: e(f"s_add_u32 s{S_T0}, s{S_T0}, 131072"), 4, "salu", 1792))
    ge.append(Filler(lambda: e(f"v_add_u32 v{V_QW}, s{S_T0}, v{V_L16}"), 4, "valu", 1792))
    zero_hi = []
    for hf in range(2):
        for dg in (2*hf, 2*hf + 1):
            for qb in range(4):
                lo = 1536 + 256*hf + 192 + 32*(dg % 2) + 16 + 4*qb + 3 + 8
                def V(txt, cost=4, kind="valu", lo=lo): ge.append(Filler(lambda: e(txt), cost, kind, lo))
                o0, o1 = acc(2*dg, qb), acc(2*dg+1, qb)
                for r in range(4): V(f"v_mul_f32 v{o0+r}, {QSCALE:#x}, v{o0+r}"); V(f"v_mul_f32 v{o1+r}, {QSCALE:#x}, v{o1+r}")
                for d, s_ in ((o0, o0), (o0+1, o0+2), (o0+2, o1), (o0+3, o1+2)): V(f"v_cvt_pk_bf16_f32 v{d}, v{s_}, v{s_+1}")
                for r in range(4):
                    if hf: zero_hi.append(f"v_mov_b32 v{o1+r}, 0")
                    else: V(f"v_mov_b32 v{o1+r}, 0")
                ge.append(Filler(lambda o0=o0, qb=qb, dg=dg: e.ds(f"ds_write_b128 v{V_QW}, {vr(o0)} offset:{(qb*4+dg)*1024}", "QW"), 4, "mem", lo))
        for dg in (2*hf, 2*hf + 1):
            for qb in range(4):
                o0 = acc(2*dg, qb)
                for r in range(4): ge.append(Filler(lambda r=r, o0=o0, qb=qb, dg=dg: e(f"v_accvgpr_write_b32 a{A_Q + (qb*4+dg)*4 + r}, v{o0+r}"), 4, "valu", 29*64 + 4))
        ge.append(Filler(lambda: e.need(lg=["QW"]), 4, "salu", 29*64 + 4))
        for dg in (2*hf, 2*hf + 1):
            for qb in range(4):
                for r in range(4):
                    if hf: zero_hi.append(f"v_mov_b32 v{acc(2*dg, qb) + r}, 0")
                    else: ge.append(Filler(lambda r=r, qb=qb, dg=dg: e(f"v_mov_b32 v{acc(2*dg, qb) + r}, 0"), 4, "valu", 29*64 + 4))
        if hf == 0:
            for r in range(64): ge.append(Filler(lambda r=r: e(f"v_accvgpr_write_b32 a{A_DACC + r}, 0"), 4, "valu", 31*64 + 4))
    stamp(e, 1)
    e.need(vm=[("W", 0), ("A", 0)]); e.wait_all(vm=False); e("s_barrier")
    e(f"s_mul_i32 s{S_TAG}, s{S_TAG}, 0x9e3779b1\ns_add_u32 s{S_TAG}, s{S_TAG}, 0x7f4a7c15")
    stamp(e, 2)
    k = 0
    while rd[k].earliest < 0: rd[k].fn(); k += 1
    rest = e.schedule(mfmas, [rd[k:], mfill, cv, misc, rts, st, att_setup_fillers(e, poll_b), ge], flush=False)
    e("s_nop 7")
    e.c(f"left over fillers: {[len(r) for r in rest]}")
    for r in rest:
        for f in r: f.fn()
    stamp(e, 6)
    attention(e, poll_b, poll_c, zero_hi)
    phase_d(e, poll_c)
    if OPT.get("padto"):
        if "padb" in OPT: e(f"s_lshr_b32 s6, s2, 3\ns_cmp_lg_u32 s6, {OPT['padb']}\ns_cbranch_scc1 L_end")
        if "padx" in OPT: e(f"s_and_b32 s6, s2, 7\ns_cmp_lg_u32 s6, {OPT['padx']}\ns_cbranch_scc1 L_end")
        e(f"s_nop 1\nv_readlane_b32 s6, v{V_STAMP}, 0\ns_add_u32 s6, s6, {OPT['padto']*100}")
        e.label("L_pad")
        e("s_memrealtime s[4:5]\ns_waitcnt lgkmcnt(0)\ns_sub_u32 s7, s4, s6\ns_cmp_lt_i32 s7, 0\ns_cbranch_scc1 L_pad")
    else: stamp_flush(e)
    e("s_branch L_end")
    e.cold()
    for p in (poll_xn, poll_kv, poll_b, poll_c): p.spin()
    slow_path(e)
    e.label("L_end")
    e("s_endpgm")

A_Z = 212
S_FIRST = 20
def att_dma(e, which, j):
    sr, src, ld = ((S_ASRD, S_SRCA, S_LA), (S_BSRD, S_SRCB, S_LB))[which]
    e.vmem(f"buffer_load_dwordx4 v{V_L16}, {srd(sr)}, s{S_T4 if j >= 4 else src} offen offset:{(j%4)*1024}{SC} lds", "KV")
    if j == 3: e(f"s_add_u32 m0, s{ld}, 4096"); e(f"s_add_u32 s{S_T4}, s{src}, 4096")
    if j == 7:
        if which == 0: e(f"s_mov_b32 m0, s{S_LB}\ns_add_u32 s{S_SRCA}, s{S_SRCA}, 16384")
        else: e(f"s_sub_u32 s{S_VMAXB}, s{S_VMAXB}, 16384\ns_min_u32 s{S_SRCB}, s{S_VMAXB}, s{S_VCLB}")
def d_load(e, j):
    so = S_DW if j < 4 else S_DH
    e.vmem(f"buffer_load_dwordx4 {ar(A_DOP + j*4)}, v{V_L16}, {srd(S_DSRD)}, s{so} offen offset:{(j%4)*1024}{SC}", "KV")
    if j % 4 == 3: e(f"s_add_u32 s{so}, s{so}, s{S_DINC}")
class M:
    def __init__(self, txt, tag=None): self.txt, self.tag = txt, tag
def d_mfmas():
    return [M(mf(ar(A_DACC + (mb*4+qb)*4), ar(A_DOP + mb*4), ar(A_DOP + 16 + qb*4), ar(A_DACC + (mb*4+qb)*4))) for mb in range(4) for qb in (range(4) if mb % 2 == 0 else range(3, -1, -1))]
def sm_half(e, buf, kb2):
    ex = []; cv = []
    for p in range(8):
        qb, hh = p // 2, p % 2
        r = Sreg(buf, kb2, qb) + 2*hh
        ex.append(lambda r=r: e(f"v_exp_f32 v{r}, v{r}")); ex.append(lambda r=r: e(f"v_exp_f32 v{r+1}, v{r+1}"))
        d = Preg(buf, qb) + 2*kb2 + hh
        cv.append(lambda r=r, d=d: e(f"v_cvt_pk_bf16_f32 v{d}, v{r}, v{r+1}"))
    return ex, cv
def qk_mfmas(buf, half, tag="FR"):
    out = []
    for kb2 in range(2):
        kb = half*2 + kb2
        for qb in range(4):
            for kk in range(4):
                dg = kk if qb % 2 == 0 else 3 - kk
                d = vr(Sreg(buf, kb2, qb))
                c = d if kk else ("0" if kb < qb else vr(V_TD) if kb == qb else vr(V_TN))
                out.append(M(mf(d, ar(A_FB[0] + (kb2*4+dg)*4), ar(A_Q + (qb*4+dg)*4), c), (tag, 0, kb2*4)))
    return out
def pv_mfmas(buf, zero=False, order=range(8)):
    o = []
    for n_, db in enumerate(order):
        for qb in (range(4) if n_ % 2 == 0 else range(3, -1, -1)):
            d = vr(Oreg(db, qb))
            o.append(M(mf(d, ar(A_Z), ar(A_Z), "0")) if zero else M(mf(d, ar(A_FB[1] + db*4), vr(Preg(buf, qb)), d), ("FR", 1, (db // 4)*4)))
    s_ = []
    for qb in range(4):
        d = ar(A_L + qb*4)
        s_.append(M(mf(d, ar(A_Z), ar(A_Z), "0")) if zero else M(mf(d, ar(A_ONE), vr(Preg(buf, qb)), d)))
    return o, s_
def frag_reads(e, fb_, off, order=range(8), tag="FR"):
    return [lambda j=j: e.ds(f"ds_read_b128 {ar(A_FB[fb_] + j*4)}, v{V_RD} offset:{off + j*1024}", (tag, fb_, (j // 4)*4)) for j in order]
NOP = lambda: None
def run(e, mfmas, gaps, nxt=None):
    if mfmas[0].tag: e.need(lg=[mfmas[0].tag])
    for i, m in enumerate(mfmas):
        e(m.txt)
        t = mfmas[i+1].tag if i + 1 < len(mfmas) else nxt
        if t: e.need(lg=[t])
        for f in gaps.get(i, ()): f()
def section(e, mfmas, reads, ex, cv, carry, g2, nxt=None, tail=None):
    gaps = {}
    for q in range(8):
        gaps[4*q] = [reads[q], (carry or NOP) if q == 0 else cv[q-1]]
        gaps[4*q+1] = [ex[2*q]]; gaps[4*q+2] = [g2[q]]; gaps[4*q+3] = [ex[2*q+1]]
    if len(mfmas) > 32: gaps[32] = [cv[7]]
    for k, f in (tail or {}).items(): gaps.setdefault(k, []).insert(0, f)
    run(e, mfmas, gaps, nxt)
    return cv[7] if len(mfmas) == 32 else None
PREP = [f"s_cmp_le_u32 s{S_N}, 15\ns_cselect_b32 s{S_ASRD+2}, {WS_END}, 0\ns_cselect_b32 s{S_T0}, 32768, s{S_T1}", f"s_add_u32 s{S_T3}, s{S_N}, 2\ns_xor_b32 s{S_LB}, s{S_LB}, s{S_T0}",
        f"s_cmp_ge_u32 s{S_T3}, s{S_N0}\ns_cselect_b32 s{S_BSRD+2}, s{S_ASRD+2}, 0", f"s_xor_b32 s{S_LA}, s{S_LA}, s{S_T0}\ns_mov_b32 m0, s{S_LA}"]
PREP0 = f"s_mov_b32 s{S_T1}, 0x30000"
LR = V_TMP[10:14]
def check_lines(ret, qt):
    return [f"v_min3_f32 v{V_LIM+1}, v{LR[0]}, v{LR[1]}, v{LR[2]}\nv_add_f32 v{V_LIM}, v{LR[0]}, v{LR[1]}",
            f"v_add_f32 v{V_LIM}, v{V_LIM}, v{LR[2]}\nv_min_f32 v{V_LIM+1}, v{V_LIM+1}, v{LR[3]}",
            f"s_mov_b32 s{S_RET}, {ret}\nv_add_f32 v{V_LIM}, v{V_LIM}, v{LR[3]}\nv_cmp_nle_f32 vcc, 0x17800000, v{V_LIM+1}",
            f"s_mov_b64 s[{S_FL}:{S_FL+1}], vcc\ns_mov_b32 s{S_CNT}, s{qt}\nv_cmp_nge_f32 vcc, {OPT.get('lhi', 0x67800000):#x}, v{V_LIM}",
            f"s_or_b64 vcc, vcc, s[{S_FL}:{S_FL+1}]\n" + ("s_nop 0" if OPT.get("noslow") else "s_cbranch_vccnz L_slow")]
def norm_items(e, dbs, sbase):
    it = []
    for dg in sorted({d // 2 for d in dbs}):
        it.append((lambda dg=dg: e(f"s_add_u32 s{S_T0}, s{sbase}, {dg*4096}"), 0, 2*dg+1))
        for qb in range(4):
            o0, o1 = Oreg(2*dg, qb), Oreg(2*dg+1, qb)
            for r in range(4):
                for o in (o0, o1): it.append((lambda o=o, r=r, qb=qb: e(f"v_mul_f32 v{o+r}, v{o+r}, v{LR[qb]}"), 4, 2*dg+1))
            for d, s_ in ((o0, o0), (o0+1, o0+2), (o0+2, o1), (o0+3, o1+2)): it.append((lambda d=d, s_=s_: e(f"v_cvt_pk_bf16_f32 v{d}, v{s_}, v{s_+1}"), 4, 2*dg+1))
            it.append((lambda o0=o0, qb=qb: e.vmem(f"buffer_store_dwordx4 {vr(o0)}, v{V_L16}, {srd(S_WS)}, s{S_T0} offen offset:{qb*1024}{SC}", "CST"), 8, 2*dg+1))
    return it
def emit_items(items, extra=()):
    extra = list(extra)
    for f, c, _ in items:
        f()
        if c == 8:
            for _ in range(2):
                if extra: extra.pop(0)()
    for f in extra: f()
def sm_tail(e, order=range(8)):
    ex, cv = sm_half(e, 1, 1)
    for f in frag_reads(e, 1, 16384, order): f()
    for p in range(8):
        ex[2*p](); ex[2*p+1]()
        if p: cv[p-1]()
    e("s_nop 0"); cv[7]()

S_WOo, S_AC = S_OFF0, S_OFFA
WSLOT = [14, 15, 13, 12, 4, 5, 6, 7, 0, 1, 2, 3, 8, 9, 10, 11]
def wo_load(e, n, q):
    e.vmem(f"buffer_load_dwordx4 {ar(WSLOT[n % 16]*16 + q*4)}, v{V_L16}, {srd(S_WS)}, s{S_WOo} offen offset:{q*1024}{SC}", ("WO", n))
    if q == 3: e(f"s_add_u32 s{S_WOo}, s{S_WOo}, 4096")

V_TRI = (9, 10, 11, 30)
V_SIG, V_TAGV, V_QA, V_ONE = 12, 13, 14, 15
S_D1, S_D2, S_M = S_FIRST + 2, S_FIRST, S_FIRST + 1
def att_setup_fillers(e, poll_b):
    i, h, w = S_BLK, S_HEAD, S_WAVE
    out = []
    def add(lo, hi, txt):
        for t in txt.split("\n"):
            t = t.strip()
            out.append(Filler(lambda t=t: e(t.replace(" ! ", "\n")), 4, "salu" if t.startswith("s_") else "valu", lo, hi))
    a, b, c, d = V_TRI; pv = poll_b.voff; t = S_M
    lo, hi = 17*64 + 10, 20*64
    add(lo, hi, f"""v_lshrrev_b32 v{d}, 4, v{V_LANE}
    v_lshlrev_b32 v{d}, 2, v{d}
    v_and_b32 v{a}, 15, v{V_LANE}
    v_sub_u32 v{a}, v{a}, v{d}
    v_subrev_u32 v{b}, 1, v{a}
    v_subrev_u32 v{c}, 2, v{a}
    v_subrev_u32 v{d}, 3, v{a}""")
    for r in V_TRI: add(lo, hi, f"v_ashrrev_i32 v{r}, 31, v{r}\nv_and_b32 v{r}, {NEGINF:#x}, v{r}")
    add(lo, hi, f"""s_lshr_b32 s{t}, s{h}, 1
    s_sub_u32 s{S_D1}, 15, s{t}
    s_min_u32 s{t}, s{t}, s{S_D1}
    s_lshl_b32 s{t}, s{t}, 9
    s_add_u32 s{t}, s{t}, {WS_FB}
    v_bfe_u32 v{pv}, v{V_LANE}, 3, 2
    v_lshlrev_b32 v{pv}, 5, v{pv}
    v_and_or_b32 v{pv}, v{V_LANE}, 7, v{pv}
    v_lshlrev_b32 v{pv}, 2, v{pv}
    v_add_u32 v{pv}, s{t}, v{pv}
    s_lshl_b32 s{S_TRANS}, s{i}, 1
    s_add_u32 s{S_TRANS}, s{S_TRANS}, s{w}
    s_sub_u32 s{S_TRANS}, s{S_TRANS}, 1
    s_sub_u32 s{S_D1}, s{S_TRANS}, 1
    s_add_u32 s{S_D2}, s{S_TRANS}, 1
    s_cmp_eq_u32 s{i}, 7 ! s_cselect_b32 s{t}, 16, 99
    s_cmp_eq_u32 s{w}, 0 ! s_cselect_b32 s{t}, s{t}, 99
    s_cmp_lt_u32 s{w}, 2 ! s_cselect_b32 s{S_D1}, s{t}, s{S_D1}
    s_cmp_lt_u32 s{w}, 2 ! s_cselect_b32 s{S_D2}, 99, s{S_D2}
    s_cmp_lt_u32 s{w}, 2 ! s_cselect_b32 s{S_TRANS}, 17, s{S_TRANS}
    s_sub_u32 s{S_VMAXB}, s{S_VMAXB}, 16384
    s_min_u32 s{S_SRCB}, s{S_VMAXB}, s{S_VCLB}
    s_lshr_b32 s{t}, s2, 3
    s_lshl_b32 s{t}, s{t}, 5
    s_and_b32 s{S_FIRST+3}, s2, 7
    s_add_u32 s{t}, s{t}, s{S_FIRST+3}
    s_lshl_b32 s{t}, s{t}, 2
    s_add_u32 s{t}, s{t}, {WS_FB}
    s_sub_u32 s{S_FIRST+3}, 3, s{w}
    s_lshl_b32 s{S_FIRST+3}, s{S_FIRST+3}, 14
    s_add_u32 s{S_FIRST+3}, s{S_FIRST+3}, 131072""")
    lo, hi = 28*64, 31*64
    add(lo, hi, f"""v_mov_b32 v{V_TAGV}, s{S_TAG}
    v_add_u32 v{V_SIG}, s{S_WL}, v{V_LANE}
    v_min_u32 v{V_SIG}, 1, v{V_SIG}
    v_lshlrev_b32 v{V_SIG}, 30, v{V_SIG}
    v_add_u32 v{V_SIG}, s{t}, v{V_SIG}
    v_add_u32 v{V_QA}, s{S_FIRST+3}, v{V_L16}
    v_and_b32 v{V_ONE}, 3, v{V_LANE}
    v_subrev_u32 v{V_ONE}, 1, v{V_ONE}
    v_ashrrev_i32 v{V_ONE}, 31, v{V_ONE}
    v_and_b32 v{V_ONE}, 0x3f803f80, v{V_ONE}
    s_mov_b32 s{S_T2}, 1
    s_mov_b32 s{S_N}, -1
    s_mov_b32 s{S_DSRD+2}, 0""")
    return out

def attention(e, poll_b, poll_c, zero_hi):
    i, h, w = S_BLK, S_HEAD, S_WAVE
    T = lambda t: (lambda: e(t))
    A = [lambda j=j: att_dma(e, 0, j) for j in range(8)]; B = [lambda j=j: att_dma(e, 1, j) for j in range(8)]; D = [lambda j=j: d_load(e, j) for j in range(8)]
    e(f"v_add_u32 v{V_RD}, 65536, v{V_L16}")
    e.need(vm=[("KV", 0)], lg=["QW"])
    e("s_barrier")
    for f in frag_reads(e, 0, 0, tag="F0"): f()
    MS = [f"s_add_u32 s{S_N}, s{S_N}, 1", f"s_cmp_eq_u32 s{S_N}, s{S_D1}\ns_cselect_b32 s{S_M}, -1, 0", f"s_cmp_eq_u32 s{S_N}, s{S_D2}\ns_cselect_b32 s{S_M}, -1, s{S_M}",
          f"v_and_b32 v{V_TD}, s{S_M}, v{V_TRI[0]}\nv_and_b32 v{V_TD+1}, s{S_M}, v{V_TRI[1]}", f"v_and_b32 v{V_TD+2}, s{S_M}, v{V_TRI[2]}\nv_and_b32 v{V_TD+3}, s{S_M}, v{V_TRI[3]}",
          f"s_and_b32 s{S_M}, s{S_M}, {NEGINF:#x}\nv_mov_b32 v{V_TN}, s{S_M}\nv_mov_b32 v{V_TN+1}, s{S_M}", f"v_mov_b32 v{V_TN+2}, s{S_M}\nv_mov_b32 v{V_TN+3}, s{S_M}"]
    for t in MS: e(t)
    e(f"s_xor_b32 s{S_LA}, s{S_LA}, 32768")
    PFL = []
    stamp(e, 7)
    init = [f"v_accvgpr_write_b32 a{A_L + r}, 0" for r in range(16)] + [f"v_accvgpr_write_b32 a{A_Z + r}, 0" for r in range(4)]
    init += [f"v_accvgpr_write_b32 a{A_ONE + r}, v{V_ONE}" for r in range(4)] + zero_hi
    for _ in range(12): e(init.pop())
    ex, cv = sm_half(e, 0, 0)
    kr = frag_reads(e, 0, 8192)
    gaps = {}
    for k in range(32):
        g = gaps[k] = []
        if k % 4 == 0 and k >= 16: g.append(kr[k // 4 - 4]); g.append(T(init.pop()))
        elif k % 4 == 2: g.append(D[k // 4]); g.append(T(init.pop()))
        else: g.append(T(init.pop())); g.append(T(init.pop()))
    run(e, qk_mfmas(0, 0, "F0"), gaps)
    for f in kr[4:]: f()
    e(PREP0)
    for p in range(8):
        ex[2*p](); ex[2*p+1]()
        if p < 4: e(PREP[p])
        for _ in range(4):
            if init: e(init.pop())
        e("s_nop 0") if not init and p >= 4 else None
        cv[p]()
    assert not init
    e.need(lg=[("FR", 0, 0)])
    st2p = list(e.lgkm)
    e("s_branch L_sec2")
    top = [("FR", 0, 4)]*4
    e(".p2align 6")
    e.label("L_body")
    loop_start = len(e.L)
    e.lgkm = list(top)
    ex, cv = sm_half(e, 1, 1)
    carry = section(e, qk_mfmas(0, 0), frag_reads(e, 1, 16384), ex, cv, None, B[4:] + D[:4], nxt=("FR", 1, 0))
    ex, cv = sm_half(e, 0, 0)
    o, s_ = pv_mfmas(1)
    section(e, o + s_, frag_reads(e, 0, 8192), ex, cv, carry, D[4:] + [T(t) for t in PREP], nxt=("FR", 0, 0), tail={1: T(PREP0)})
    assert e.lgkm == st2p, (e.lgkm, st2p)
    e.label("L_sec2")
    ex, cv = sm_half(e, 0, 1)
    r = frag_reads(e, 1, 24576)
    carry = section(e, qk_mfmas(1, 1), r[0::2] + [NOP]*4, ex, cv, None, r[1::2] + [T(f"v_xor_b32 v{V_RD}, 32768, v{V_RD}"), NOP, NOP, NOP],
                    tail={31: lambda: e.wait_all()})
    if not OPT.get("nobar"): e("s_barrier")
    def itstamp():
        if OPT.get("itst"):
            e(f"s_memtime s[4:5]\nv_subrev_u32 v5, 14, v{V_LANE}\nv_cmp_eq_u32 vcc, s{S_N}, v5\ns_waitcnt lgkmcnt(0)\nv_mov_b32 v5, s4\nv_cndmask_b32 v{V_STAMP}, v{V_STAMP}, v5, vcc")
    itstamp()
    dg_ = {0: [A[0], carry], 4: [A[1]], 8: [A[2]], 12: [A[3]]}
    for k, t in zip((1, 2, 3, 5, 6, 7, 9), MS): dg_[k] = [T(t)]
    for k, f in zip((10, 14), PFL): dg_[k] = [f]
    run(e, d_mfmas(), dg_)
    ex, cv = sm_half(e, 1, 0)
    o, s_ = pv_mfmas(0)
    section(e, o + s_, frag_reads(e, 0, 0), ex, cv, None, A[4:] + B[:4], nxt=("FR", 0, 0), tail={34: T(f"s_cmp_eq_u32 s{S_N}, s{S_T2}")})
    assert e.lgkm == top, e.lgkm
    e("s_cbranch_scc0 L_body")
    e.loop = (loop_start, len(e.L))
    e.label("L_special")
    e(f"s_cmp_gt_u32 s{S_N}, 3\ns_mov_b32 s{S_T2}, s{S_TRANS}\ns_cbranch_scc1 L_late")
    e(f"buffer_store_dword v{V_TAGV}, v{V_SIG}, {srd(S_WS)}, 0 offen sc1")
    e(poll_b.test())
    e(f"""v_mov_b32 v{V_SIG}, 0x40000000
    s_cselect_b32 s{S_T0}, 99, 3
    s_cmp_eq_u32 s{S_N}, s{S_T0}
    s_cbranch_scc1 L_spin_b""")
    e.label("L_ok_b")
    e(poll_b.ld)
    e(f"""s_add_u32 s{S_T0}, s{S_N}, 1
    s_cmp_eq_u32 s{S_N}, 3
    s_cselect_b32 s{S_DSRD+2}, {WS_END}, 0
    s_cselect_b32 s{S_DINC}, 4096, 0
    s_cselect_b32 s{S_T2}, s{S_TRANS}, s{S_T0}""")
    e.label("L_late")
    e(f"s_cmp_eq_u32 s{S_N}, s{S_TRANS}\ns_cbranch_scc0 L_body")
    e(f"s_cmp_eq_u32 s{S_N}, 17\ns_cbranch_scc0 L_trans")
    def cold():
        e.label("L_trans")
        e.lgkm = list(top); e.vm = ["KV"]*13
        qr = lambda: [lambda j=j: e.ds(f"ds_read_b128 {ar(A_Q + j*4)}, v{V_QA} offset:{j*1024}", "QS") for j in range(16)]
        rcp = [f"v_rcp_f32 v{LR[qb]}, v{LR[qb]}" for qb in range(4)]
        sm_tail(e)
        e("s_nop 0")
        o, s_ = pv_mfmas(1)
        gaps = {k: [f] for k, f in enumerate(B[4:] + D)}
        gaps[12] = [T(f"v_accvgpr_read_b32 v{LR[0]}, a{A_L}\nv_accvgpr_read_b32 v{LR[1]}, a{A_L+4}")]
        gaps[13] = [T(f"v_accvgpr_read_b32 v{LR[2]}, a{A_L+8}\nv_accvgpr_read_b32 v{LR[3]}, a{A_L+12}")]
        for k, t in enumerate(check_lines(0, S_QT) + rcp): gaps[14 + k] = [T(t)]
        items = norm_items(e, range(8), S_CTXLO)
        for k in range(23, 36):
            left = 8; gaps[k] = []
            while items and items[0][1] <= left and 4 + 4*items[0][2] + 3 + 5 <= k:
                f, c, _ = items.pop(0); gaps[k].append(f); left -= c
        run(e, s_ + o, gaps)
        emit_items(items)
        e.label("L_tjoin")
        e(PREP0)
        for t in PREP: e(t)
        e(f"v_xor_b32 v{V_RD}, {32768 + 65536}, v{V_RD}")
        e.need(vm=["KV"])
        e("s_barrier")
        itstamp()
        o, s_ = pv_mfmas(1, zero=True)
        gaps = {}
        for k, f in enumerate(A + B[:4]): gaps[4*k] = [f]
        for k, f in enumerate(qr() + frag_reads(e, 0, 0)): gaps.setdefault(1 + 4*(k // 2), []).append(f)
        init = MS + [f"v_mov_b32 v{Sreg(1, 1, 0) + 2*r}, {NEGINF:#x}\nv_mov_b32 v{Sreg(1, 1, 0) + 2*r + 1}, {NEGINF:#x}" for r in range(8)]
        init += [f"v_mov_b32 v{Preg(1, qb)}, 0\nv_mov_b32 v{Preg(1, qb) + 1}, 0" for qb in range(4)]
        for k, f in enumerate([T(t) for t in init] + PFL): gaps[2 + 4*(k // 2) + k % 2] = [f]
        gaps[50] = [T(f"s_mov_b32 s{S_TRANS}, 17")]
        run(e, d_mfmas() + o + s_, gaps, nxt=("FR", 0, 0))
        assert e.lgkm == top, e.lgkm
        e("s_branch L_special")
        e.label("L_ret0")
        e.lgkm = []; e.vm = []
        for t in rcp: e(t)
        emit_items(norm_items(e, range(8), S_CTXLO))
        e("s_branch L_tjoin")
    e.cold = cold
    e.label("L_final")
    stamp(e, 8)
    tw, trd, tl, tlr = V_TMP[0:4]
    e(f"""s_lshl_b32 s{S_T0}, s{w}, 17
    s_lshl_b32 s{S_AC}, s{h}, 19
    s_add_u32 s{S_AC}, s{S_AC}, s{S_T0}
    s_add_u32 s{S_AC}, s{S_AC}, {WS_CTX}
    s_lshl_b32 s{S_WOo}, s{i}, 19
    s_add_u32 s{S_WOo}, s{S_WOo}, s{S_T0}
    s_add_u32 s{S_WOo}, s{S_WOo}, {WS_WOF}
    s_and_b32 s{S_T0}, s{w}, 1
    s_lshl_b32 s{S_T0}, s{S_T0}, 14
    s_lshr_b32 s{S_T1}, s{w}, 1
    s_lshl_b32 s{S_T1}, s{S_T1}, 16
    s_add_u32 s{S_T0}, s{S_T0}, s{S_T1}
    v_add_u32 v{tw}, s{S_T0}, v{V_L16}
    v_xor_b32 v{trd}, {65536 + 16384}, v{tw}
    s_add_u32 s{S_T0}, s{S_WL}, {144*1024}
    v_add_u32 v{tl}, s{S_T0}, v{V_L16}
    v_xor_b32 v{tlr}, 3072, v{tl}
    s_cmp_ge_u32 s{w}, 2
    s_cbranch_scc1 L_mergeB""")
    for role in range(2):
        keep = list(range(4)) if role == 0 else list(range(4, 8))
        send = list(range(4, 8)) if role == 0 else list(range(4))
        if role == 1: e.label("L_mergeB")
        e.lgkm = list(top); e.vm = ["KV"]*13
        sm_tail(e, send + keep)
        e("s_nop 0")
        o, s_ = pv_mfmas(1, order=send + keep)
        gaps = {k: [lambda k=k: wo_load(e, k // 4, k % 4)] for k in range(8)}
        gaps[9] = [T(f"v_accvgpr_read_b32 v{LR[0]}, a{A_L}\nv_accvgpr_read_b32 v{LR[1]}, a{A_L+4}")]
        gaps[10] = [T(f"v_accvgpr_read_b32 v{LR[2]}, a{A_L+8}\nv_accvgpr_read_b32 v{LR[3]}, a{A_L+12}")]
        gaps[11] = [lambda: e.ds(f"ds_write_b128 v{tl}, {vr(LR[0])}")]
        for n in range(16): gaps[12 + n + n // 2] = [lambda n=n: e.ds(f"ds_write_b128 v{tw}, {vr(V_O + send[0]*16 + n*4)} offset:{n*1024}")]
        if OPT.get("fst"): stamp(e, 14)
        run(e, s_ + o, gaps)
        if OPT.get("fst"): stamp(e, 15)
        e.wait_all(vm=False)
        e("s_barrier")
        if OPT.get("fst"): stamp(e, 16)
        e.ds(f"ds_read_b128 {vr(V_TMP[4])}, v{tlr}", "ML")
        for n in range(16):
            e.ds(f"ds_read_b128 {vr(V_S[0] + n*4)}, v{trd} offset:{n*1024}", ("MO", n // 4))
            if n % 2: wo_load(e, 2 + n // 8, (n // 2) % 4)
        e.need(lg=["ML"])
        for qb in range(4): e(f"v_add_f32 v{LR[qb]}, v{LR[qb]}, v{V_TMP[4] + qb}")
        for t in check_lines(1 + role, S_QTHI): e(t)
        for n in range(16):
            e.need(lg=[("MO", n // 4)])
            for r in range(4):
                o = V_O + keep[0]*16 + n*4 + r
                e(f"v_add_f32 v{o}, v{o}, v{V_S[0] + n*4 + r}")
        e.label(f"L_ret{1 + role}")
        if OPT.get("fst"): stamp(e, 17)
        for qb in range(4): e(f"v_rcp_f32 v{LR[qb]}, v{LR[qb]}")
        e(f"v_add_u32 v{tw}, 32768, v{tw}")
        emit_items(norm_items(e, keep, S_CTXHI))
        if role == 0: e("s_branch L_attdone")
    e.label("L_attdone")
    stamp(e, 9)

def slow_path(e):
    M = V_P[1]; AL = V_P[1] + 4; T = V_P[1] + 8; QI = V_P[1] + 12; NI = V_P[1] + 13
    u, nu, ko, vo = S_T0, S_T1, S_T3, S_T5
    e.label("L_slow")
    e.lgkm = []; e.vm = []
    e("s_waitcnt vmcnt(0) lgkmcnt(0)")
    e(f"""s_lshl_b32 s{nu}, s{S_CNT}, 1
    s_add_u32 s{nu}, s{nu}, 2
    s_lshl_b32 s{ko}, s{S_HEAD}, 19
    s_add_u32 s{vo}, s{ko}, {WS_V}
    s_add_u32 s{ko}, s{ko}, {WS_K}
    s_lshl_b32 s{S_CNT}, s{S_CNT}, 6
    v_lshrrev_b32 v{T}, 4, v{V_LANE}
    v_lshlrev_b32 v{T}, 2, v{T}
    v_and_b32 v{QI}, 15, v{V_LANE}
    v_sub_u32 v{QI}, v{QI}, v{T}
    v_add_u32 v{QI}, s{S_CNT}, v{QI}
    v_mov_b32 v{NI}, {NEGINF:#x}
    s_mov_b32 s{u}, 0""")
    for r in range(128): e(f"v_mov_b32 v{V_O + r}, 0")
    for qb in range(4): e(f"v_mov_b32 v{M+qb}, v{NI}\nv_mov_b32 v{LR[qb]}, 0")
    e.label("L_slowl")
    for t, so in ((0, ko), (1, vo)):
        for j in range(8):
            if j == 4: e(f"s_add_u32 s{so}, s{so}, 4096")
            e.vmem(f"buffer_load_dwordx4 {ar(A_FB[t] + j*4)}, v{V_L16}, {srd(S_WS)}, s{so} offen offset:{(j%4)*1024}{SC}", "SL")
        e(f"s_add_u32 s{so}, s{so}, 4096")
    e.wait_all()
    for kb2 in range(2):
        for dg in range(4):
            for qb in range(4):
                d = vr(Sreg(0, kb2, qb))
                e(mf(d, ar(A_FB[0] + (kb2*4+dg)*4), ar(A_Q + (qb*4+dg)*4), d if dg else "0"))
    e("s_nop 7")
    for kb2 in range(2):
        for qb in range(4):
            for r in range(4):
                s = Sreg(0, kb2, qb) + r
                e(f"v_cmp_gt_i32 vcc, {16*kb2 + r - 16*qb}, v{QI}\ns_nop 1\nv_cndmask_b32 v{s}, v{s}, v{NI}, vcc")
    e(f"v_subrev_u32 v{QI}, 32, v{QI}")
    for qb in range(4):
        a, b = Sreg(0, 0, qb), Sreg(0, 1, qb)
        e(f"""v_max3_f32 v{T}, v{a}, v{a+1}, v{a+2}
        v_max3_f32 v{T}, v{T}, v{a+3}, v{b}
        v_max3_f32 v{T}, v{T}, v{b+1}, v{b+2}
        v_max3_f32 v{T}, v{T}, v{b+3}, v{M+qb}
        v_mov_b32 v{T+1}, v{T}
        s_nop 1
        v_permlane32_swap_b32 v{T}, v{T+1}
        v_max_f32 v{T}, v{T}, v{T+1}
        v_mov_b32 v{T+1}, v{T}
        s_nop 1
        v_permlane16_swap_b32 v{T}, v{T+1}
        v_max_f32 v{T}, v{T}, v{T+1}
        v_sub_f32 v{AL+qb}, v{M+qb}, v{T}
        v_mov_b32 v{M+qb}, v{T}
        v_exp_f32 v{AL+qb}, v{AL+qb}""")
        for s in list(range(a, a+4)) + list(range(b, b+4)):
            e(f"v_sub_f32 v{s}, v{s}, v{T}")
        for s in list(range(a, a+4)) + list(range(b, b+4)):
            e(f"v_exp_f32 v{s}, v{s}")
        e(f"v_mul_f32 v{LR[qb]}, v{LR[qb]}, v{AL+qb}")
        for s in list(range(a, a+4)) + list(range(b, b+4)):
            e(f"v_add_f32 v{LR[qb]}, v{LR[qb]}, v{s}")
        p = Preg(0, qb)
        e(f"v_cvt_pk_bf16_f32 v{p}, v{a}, v{a+1}\nv_cvt_pk_bf16_f32 v{p+1}, v{a+2}, v{a+3}\nv_cvt_pk_bf16_f32 v{p+2}, v{b}, v{b+1}\nv_cvt_pk_bf16_f32 v{p+3}, v{b+2}, v{b+3}")
        for db in range(8):
            for r in range(4): e(f"v_mul_f32 v{Oreg(db, qb)+r}, v{Oreg(db, qb)+r}, v{AL+qb}")
    e("s_nop 1")
    for db in range(8):
        for qb in range(4):
            d = vr(Oreg(db, qb))
            e(mf(d, ar(A_FB[1] + db*4), vr(Preg(0, qb)), d))
    e(f"s_add_u32 s{u}, s{u}, 1\ns_cmp_lt_u32 s{u}, s{nu}\ns_nop 7\ns_cbranch_scc1 L_slowl")
    for qb in range(4):
        e(f"""v_mov_b32 v{T}, v{LR[qb]}
        s_nop 1
        v_permlane32_swap_b32 v{LR[qb]}, v{T}
        v_add_f32 v{LR[qb]}, v{LR[qb]}, v{T}
        v_mov_b32 v{T}, v{LR[qb]}
        s_nop 1
        v_permlane16_swap_b32 v{LR[qb]}, v{T}
        v_add_f32 v{LR[qb]}, v{LR[qb]}, v{T}""")
    e(f"s_cmp_eq_u32 s{S_RET}, 0\ns_cbranch_scc1 L_ret0\ns_cmp_eq_u32 s{S_RET}, 1\ns_cbranch_scc1 L_ret1\ns_branch L_ret2")


def phase_d(e, poll_c):
    qt, mt, w = S_HEAD, S_BLK, S_WAVE
    V_XO, V_X, V_G = 4, 8, 17
    V_CR, NCR = 32, 6
    V_AS, V_AD = 128, 192
    t0, t1 = 24, 25
    S_XO = S_XNB
    for j in range(16):
        e.ds(f"ds_write_b128 v{V_TMP[0]}, {ar(A_DACC + j*4)} offset:{((j%4)*4 + j//4)*1024}", "DW")
        if j < OPT.get("wpre", 12): wo_load(e, 4 + j // 4, j % 4)
    e(f"""v_and_b32 v{t0}, 15, v{V_LANE}
    v_lshlrev_b32 v{t0}, 10, v{t0}
    v_lshrrev_b32 v{t1}, 4, v{V_LANE}
    v_lshl_add_u32 v{V_XO}, v{t1}, 3, v{t0}
    s_lshl_b32 s{S_XO}, s{qt}, 16
    s_lshl_b32 s{S_T0}, s{w}, 14
    s_add_u32 s{S_XO}, s{S_XO}, s{S_T0}
    s_lshl_b32 s{S_T1}, s{mt}, 7
    s_add_u32 s{S_XO}, s{S_XO}, s{S_T1}
    v_subrev_u32 v{t1}, 32768, v{V_TMP[0]}
    s_lshl_b32 s{S_T0}, s{w}, 12
    v_add_u32 v{t0}, s{S_T0}, v{V_L16}
    v_add_u32 v{V_G}, 65536, v{t0}""")
    poll32_addr(e, poll_c.voff, WS_FC)
    if OPT.get("fst"): stamp(e, 18)
    e.need(vm=["CST"]); e.wait_all(vm=False)
    if OPT.get("fst"): stamp(e, 19)
    e("s_barrier")
    if OPT.get("fst"): stamp(e, 20)
    signal(e, sig_lin(WS_FC), 26)
    for sw in range(4):
        for mb in range(4): e.ds(f"ds_read_b128 {vr(V_AD + (sw*4+mb)*4)}, v{V_G if sw >= 2 else t0} offset:{32768 + (sw % 2)*16384 + mb*1024}", ("R", sw))
    for mb in range(4):
        e.vmem(f"buffer_load_dwordx2 v[{V_X+2*mb}:{V_X+2*mb+1}], v{V_XO}, {srd(S_X)}, s{S_XO} offen offset:{mb*32}", "X")
    wl = [lambda n=n, q=q: wo_load(e, n, q) for n in range(4, 16) for q in range(4)][OPT.get("wpre", 12):]
    cnt = [0]
    def V(t):
        e(t); cnt[0] += 1
        if cnt[0] % 6 == 0 and wl: wl.pop(0)()
    def rnd(base, pk):
        for j in range(8): V(f"v_cvt_pk_bf16_f32 v{pk+j}, v{base+2*j}, v{base+2*j+1}")
        for j in range(8): V(f"v_lshlrev_b32 v{base+2*j}, 16, v{pk+j}"); V(f"v_and_b32 v{base+2*j+1}, 0xffff0000, v{pk+j}")
    def red(base, tag):
        e.need(lg=[(tag, 1)])
        for r in range(16): V(f"v_add_f32 v{base+r}, v{base+r}, v{base+16+r}")
        e.need(lg=[(tag, 3)])
        for r in range(16): V(f"v_add_f32 v{base+32+r}, v{base+32+r}, v{base+48+r}")
        for r in range(16): V(f"v_add_f32 v{base+r}, v{base+r}, v{base+32+r}")
    T = V_AD + 16; PK = V_AD + 32
    red(V_AD, "R"); rnd(V_AD, PK)
    for r in range(16): V(f"v_mul_f32 v{T+r}, 0xbfb8aa3b, v{V_AD+r}")
    for r in range(16): V(f"v_exp_f32 v{T+r}, v{T+r}")
    for r in range(16): V(f"v_add_f32 v{T+r}, 1.0, v{T+r}")
    for r in range(16): V(f"v_rcp_f32 v{T+r}, v{T+r}")
    for r in range(16): V(f"v_mul_f32 v{V_AD+r}, v{V_AD+r}, v{T+r}")
    rnd(V_AD, PK)
    while len(wl) > 8: wl.pop(0)()
    poll_c.issue()
    while wl: wl.pop(0)()
    stamp(e, 10); poll_c.check(); stamp(e, 11)
    def c_load(n, q):
        e.vmem(f"buffer_load_dwordx4 {vr(V_CR + (n % NCR)*16 + q*4)}, v{V_L16}, {srd(S_WS)}, s{S_AC} offen offset:{q*1024}{SC}", ("C", n))
        if q == 3: e(f"s_add_u32 s{S_AC}, s{S_AC}, 4096")
    for n in range(NCR - 1):
        for q in range(4): c_load(n, q)
    for n in range(32):
        ld = []
        if n + NCR - 1 < 32: ld += [lambda q=q: c_load(n + NCR - 1, q) for q in range(4)]
        if n >= 1 and n + 15 < 32: ld += [lambda q=q: wo_load(e, n + 15, q) for q in range(4)]
        e.need(vm=[("C", n), ("WO", n)])
        for k in range(16):
            mb, qb = k // 4, k % 4
            d = vr(V_AS + k*4)
            e(mf(d, ar(WSLOT[n % 16]*16 + mb*4), vr(V_CR + (n % NCR)*16 + qb*4), d if n else "0"))
            if k % 2 == 0 and ld: ld.pop(0)()
    stamp(e, 12)
    e("s_nop 7")
    for j in range(16): e.ds(f"ds_write_b128 v{t1}, {vr(V_AS + j*4)} offset:{((j%4)*4 + j//4)*1024}", "SW")
    e.need(vm=["X"])
    for j in range(8): e(f"v_lshlrev_b32 v{T+2*j}, 16, v{V_X+j}"); e(f"v_and_b32 v{T+2*j+1}, 0xffff0000, v{V_X+j}")
    e.wait_all(vm=False)
    e("s_barrier")
    for sw in range(4):
        for mb in range(4): e.ds(f"ds_read_b128 {vr(V_AS + (sw*4+mb)*4)}, v{V_G if sw >= 2 else t0} offset:{(sw % 2)*16384 + mb*1024}", ("RS", sw))
    red(V_AS, "RS"); rnd(V_AS, PK)
    for r in range(16): e(f"v_mul_f32 v{V_AS+r}, v{V_AS+r}, v{V_AD+r}")
    rnd(V_AS, PK)
    for r in range(16): e(f"v_add_f32 v{V_AS+r}, v{V_AS+r}, v{T+r}")
    for j in range(8): e(f"v_cvt_pk_bf16_f32 v{PK+j}, v{V_AS+2*j}, v{V_AS+2*j+1}")
    for mb in range(4):
        e.vmem(f"buffer_store_dwordx2 v[{PK+2*mb}:{PK+2*mb+1}], v{V_XO}, {srd(S_OUT)}, s{S_XO} offen offset:{mb*32}{OPT.get('outsc', '')}", "OUT")
    e("s_cmp_lg_u32 s2, 0")
    e("s_cbranch_scc1 L_nobump")
    signal(e, f"s_mov_b32 s{S_CNT}, {WS_EP}", 26)
    e.label("L_nobump")
    stamp(e, 13)

HEADER = open("cdna_kernels/" + NAME + ".s.ref").read().split("; Override launch geometry")[0]
def build():
    e = E(); body(e)
    n = chk.check(e.L, "all")
    a, b = e.loop
    n += chk.check(e.L[a:b] + e.L[a:b], "loop")
    if n: print(f"{n} hazards", file=sys.stderr)
    return "\n".join([HEADER.rstrip("\n"), "; @launch grid=(256,1,1) block=(256,1,1) lds=163840",
        '.amdgcn_target "amdgcn-amd-amdhsa--gfx950"\n.text', e.text(), '.section .rodata,"a"\n.p2align 6',
        f""".amdhsa_kernel {KN}
  .amdhsa_next_free_vgpr 512
  .amdhsa_next_free_sgpr 102
  .amdhsa_accum_offset 256
  .amdhsa_group_segment_fixed_size 0
  .amdhsa_kernarg_size 104
  .amdhsa_user_sgpr_count 2
  .amdhsa_user_sgpr_kernarg_segment_ptr 1
  .amdhsa_system_sgpr_workgroup_id_x 1
.end_amdhsa_kernel
"""])
if __name__ == "__main__":
    open(sys.argv[1], "w").write(build())
```

```python
import re, sys

def regs(tok):
    tok = tok.strip()
    m = re.fullmatch(r"(-|abs\(|\|)?([vas])(\d+)\)?\|?", tok)
    if m: return [(m.group(2), int(m.group(3)))]
    m = re.fullmatch(r"([vas])\[(\d+):(\d+)\]", tok)
    if m: return [(m.group(1), i) for i in range(int(m.group(2)), int(m.group(3)) + 1)]
    if tok in ("vcc",): return [("s", 106), ("s", 107)]
    if tok == "m0": return [("s", 124)]
    if tok == "exec": return [("s", 126), ("s", 127)]
    return []

TRANS = ("v_exp_f32", "v_log_f32", "v_rcp_f32", "v_rsq_f32", "v_sqrt_f32")
class I: pass
def parse(line):
    line = line.split(";")[0].strip()
    if not line or line.endswith(":") or line.startswith("."): return None
    p = line.split(None, 1)
    op = p[0]; rest = p[1] if len(p) > 1 else ""
    ops = [x.strip() for x in re.split(r",(?![^\[]*\])", rest)] if rest else []
    mods = ""
    if ops:
        q = ops[-1].split(None, 1)
        ops[-1] = q[0]; mods = q[1] if len(q) > 1 else ""
    i = I(); i.op = op; i.ops = ops; i.mods = mods; i.line = line
    i.w = []; i.r = []; i.cls = "other"; i.srcc = []; i.ab = []
    R = lambda k: regs(ops[k]) if k < len(ops) else []
    if op.startswith("v_mfma"):
        i.cls = "mfma"; i.w = R(0); i.ab = R(1) + R(2); i.srcc = R(3); i.r = i.ab + i.srcc
        i.passes = 4 if "16x16x32" in op else 8
    elif op.startswith("ds_read"):
        i.cls = "dsr"; i.w = R(0); i.r = R(1)
    elif op.startswith("ds_write"):
        i.cls = "dsw"; i.r = R(0) + R(1) + R(2)
    elif op.startswith("ds_bpermute") or op.startswith("ds_swizzle"):
        i.cls = "dsr"; i.w = R(0); i.r = R(1) + R(2)
    elif op.startswith("buffer_load"):
        if "lds" in mods.split():
            i.cls = "dma"; i.r = R(0) + R(1) + R(2) + [("s", 124)]
        else:
            i.cls = "vml"; i.w = R(0); i.r = R(1) + R(2) + R(3)
    elif op.startswith("global_load"):
        i.cls = "vml"; i.w = R(0); i.r = R(1) + R(2)
    elif op.startswith("buffer_store"):
        i.cls = "vms"; i.r = R(0) + R(1) + R(2) + R(3); i.data = R(0)
    elif op.startswith("buffer_atomic"):
        i.cls = "vms"; i.r = R(0) + R(1) + R(2) + R(3); i.data = R(0)
        if "sc0" in mods.split(): i.cls = "vml"; i.w = R(0)
    elif op.startswith("buffer_inv") or op.startswith("buffer_wbl2"):
        i.cls = "vms"; i.data = []
    elif op.startswith("s_load") or op.startswith("s_memtime") or op.startswith("s_memrealtime"):
        i.cls = "smem"; i.w = R(0); i.r = R(1)
    elif op.startswith("v_cmp"):
        i.cls = "valu"; i.w = R(0); i.r = R(1) + R(2)
    elif op.startswith("v_readfirstlane") or op.startswith("v_readlane"):
        i.cls = "valu"; i.w = R(0); i.r = R(1) + R(2); i.rl = True
    elif op.startswith("v_permlane"):
        i.cls = "valu"; i.w = R(0) + R(1); i.r = R(0) + R(1); i.pl = True
    elif op.startswith("v_"):
        i.cls = "valu"; i.w = R(0)
        for k in range(1, len(ops)): i.r += R(k)
        if op.startswith("v_fmac") or op.startswith("v_writelane"): i.r += R(0)
        if op.startswith("v_cndmask") and len(ops) == 3: i.r += regs("vcc")
        if "dpp" in op or "quad_perm" in mods or "row_" in mods: i.dpp = True; i.r += R(0)
    elif op.startswith("s_"):
        i.cls = "salu"
        if op.startswith("s_cmp") or op.startswith("s_cbranch") or op in ("s_branch", "s_barrier", "s_nop", "s_waitcnt", "s_endpgm", "s_setprio", "s_sleep"):
            for k in range(len(ops)): i.r += R(k)
        else:
            i.w = R(0)
            for k in range(1, len(ops)): i.r += R(k)
            if "saveexec" in op: i.w += regs("exec")
    return i

def check(lines, name=""):
    errs = 0
    hist = []
    pos = 0
    lg = []; vm = []
    def err(msg, a, b):
        nonlocal errs
        errs += 1
        print(f"[{name}] HAZARD {msg}\n    first : {a.line}\n    second: {b.line}")
    for ln in lines:
        i = parse(ln)
        if i is None: continue
        rs, ws = set(i.r), set(i.w)
        for q, nm in ((lg, "lgkm"), (vm, "vm")):
            for o in q:
                if set(o.w) & (rs | ws): err(f"pending {nm} result touched", o, i)
        for (o, p) in hist:
            d = pos - p - 1
            ow = set(o.w)
            if o.cls == "valu":
                vw = {r for r in ow if r[0] in "va"}; sw = {r for r in ow if r[0] == "s"}
                if i.cls == "mfma" and vw & rs and d < 2: err("valu->mfma needs 2", o, i)
                if getattr(i, "dpp", False) and vw & rs and d < 2: err("valu->dpp needs 2", o, i)
                if getattr(i, "pl", False) and vw & rs and d < 2: err("valu->permlane needs 2", o, i)
                if getattr(i, "rl", False) and vw & rs and d < 1: err("valu->readlane needs 1", o, i)
                if o.op.startswith(TRANS) and i.cls in ("valu",) and not i.op.startswith(TRANS) and vw & rs and d < 1: err("trans->valu needs 1", o, i)
                if sw & rs:
                    if i.cls in ("vml", "vms", "dma") and d < 5: err("valu sgpr->vmem needs 5", o, i)
                    if i.cls == "valu" and d < 2: err("valu sgpr->valu needs 2", o, i)
                    if getattr(i, "rl", False) and d < 4: err("valu sgpr->lane select needs 4", o, i)
            if o.cls == "salu" and ("s", 124) in ow and i.cls == "dma" and d < 1: err("m0->dma needs 1", o, i)
            if o.cls == "mfma":
                n_ab = 8 if o.passes == 4 else 12
                if i.cls == "mfma":
                    if ow & set(i.ab) and d < n_ab: err("mfma D->mfma A/B", o, i)
                    sc = set(i.srcc)
                    if ow & sc and not (ow == sc and o.passes == i.passes) and d < (6 if o.passes == 4 else 10): err("mfma D->partial C", o, i)
                    if ow & ws and not (ow & sc) and d < n_ab: err("mfma D WAW mfma (be careful)", o, i)
                elif i.cls in ("valu", "vml", "vms", "dsr", "dsw", "dma"):
                    if ow & (rs | ws) and d < n_ab: err("mfma D->valu/mem", o, i)
                if i.cls == "valu" and set(o.srcc) & ws and d < (3 if o.passes == 4 else 7): err("mfma C read->valu write WAR", o, i)
            if o.cls == "vms" and len(getattr(o, "data", [])) >= 3 and set(o.data) & ws and d < 2: err("wide store data WAR", o, i)
            if o.cls == "dsw" and False: pass
        if i.op == "s_waitcnt":
            m = re.search(r"vmcnt\((\d+)\)", i.line)
            if m:
                n = int(m.group(1)); vm[:] = vm[len(vm) - n:] if n and n < len(vm) else ([] if n == 0 else vm)
            m = re.search(r"lgkmcnt\((\d+)\)", i.line)
            if m:
                n = int(m.group(1))
                if any(o.cls == "smem" for o in lg) and n > 0: pass
                else: lg[:] = lg[len(lg) - n:] if n and n < len(lg) else ([] if n == 0 else lg)
        if i.cls in ("dsr", "dsw", "smem"): lg.append(i)
        if i.cls in ("vml", "vms", "dma"): vm.append(i)
        hist.append((i, pos))
        step = 1
        if i.op == "s_nop": step = int(i.ops[0], 0) + 1
        pos += step
        hist = [(o, p) for (o, p) in hist if pos - p < 24]
    return errs


def trace(lines, decide, limit=200000):
    labels = {}
    for n, ln in enumerate(lines):
        t = ln.strip()
        if t.endswith(":"): labels[t[:-1]] = n
    out = []; pc = 0; cnt = {}
    while pc < len(lines) and len(out) < limit:
        t = lines[pc].split(";")[0].strip()
        out.append(lines[pc])
        if t.startswith("s_endpgm"): break
        if t.startswith("s_branch"): pc = labels[t.split()[1]]; continue
        if t.startswith("s_cbranch"):
            lb = t.split()[1]; key = (pc, lb); c = cnt.get(key, 0); cnt[key] = c + 1
            site = [n for n, l in enumerate(lines) if l.split(";")[0].strip().startswith("s_cbranch") and l.split(";")[0].split()[1] == lb].index(pc)
            if decide(lb, site, c): pc = labels[lb]; continue
        pc += 1
    return out
```

```python
import sys, math, os, struct
from emit import E, Filler
import check as chk

NAME = "recurrent_scan__compressed_kv_cla__glu_gated_geglu__prompt"
KN = NAME + "_kernel"
MB = 1 << 20
OPT = eval(os.environ.get("OPT", "{}"))
STAMPS = os.environ.get("STAMPS")
POLLALL = OPT.get("pollall", 0)
WS_XN, WS_H, WS_WDF, WS_WOF, WS_CTX, WS_K, WS_V, WS_END = 0, 2*MB, 9*MB, 12*MB, 16*MB, 32*MB, 48*MB, 64*MB
fb = lambda x: struct.unpack("<I", struct.pack("<f", x))[0]

S_X, S_CKV, S_WQ, S_WUK, S_WUV, S_WO, S_WG, S_WU, S_WD, S_OUT, S_DBG, S_WS = [8 + 4*i for i in range(12)]
S_HSRD, S_ASRD, S_BSRD = 56, 60, 64
S_WAVE, S_HEAD, S_BLK, S_ROT = 68, 69, 70, 71
S_T0, S_T1, S_T2, S_T3, S_T4, S_T5 = 72, 73, 74, 75, 76, 77
S_WL, S_WA = 78, 79
S_OFF0, S_OFFA, S_AROW, S_KVST, S_XNB, S_HST = 80, 81, 82, 83, 84, 85
S_CTXLO, S_CTXHI = 86, 87
S_SRCA, S_SRCB, S_LA, S_LB, S_VMAXB, S_VCLB = 88, 89, 90, 91, 92, 93
S_N, S_EVT, S_TRANS, S_N0 = 94, 95, 96, 97
S_QT, S_QTHI, S_RET, S_CNT = 98, 99, 100, 101
S_ROTB, S_DW, S_DH, S_DINC = 48, 49, 50, 51
S_GSRD = S_CKV
S_DSRD = S_HSRD
S_FL = 6
def srd(n): return f"s[{n}:{n+3}]"
def mf(d, a, b, c): return f"v_mfma_f32_16x16x32_bf16 {d}, {a}, {b}, {c}"
def vr(n, k=4): return f"v[{n}:{n+k-1}]"
def ar(n, k=4): return f"a[{n}:{n+k-1}]"

V_LANE, V_STAMP, V_L16 = 1, 2, 3
V_TR = (4, 5, 6, 7)
V_WOFF = (8, 9, 10, 11)
V_AOFF = (12, 13)
V_WOFG = (12, 13)
V_ARD = (14, 15)
V_TMP = list(range(16, 32))
V_POLL = 0
V_WF, V_PK, V_ACC = 32, 64, 128
def acc(db, rb): return V_ACC + (db*4 + rb)*4
def actf(ks, rb): return (ks*4 + rb)*4
V_RD = 4
V_TD, V_TN, V_LIM = 16, 20, 24
V_P, V_S, V_O = (32, 48), (64, 96), 128
A_Q, A_FB, A_DACC, A_L, A_ONE, A_DOP = 0, (64, 96), 128, 192, 208, 224
QSCALE = fb(math.log2(math.e) / math.sqrt(128.0))
NEGINF = 0xff800000
def Sreg(buf, kb2, qb): return V_S[buf] + (kb2*4 + qb)*4
def Preg(buf, qb): return V_P[buf] + qb*4
def Oreg(db, qb): return V_O + (db*4 + qb)*4
SC = " sc1"

def stamp(e, idx):
    if not STAMPS: return
    if OPT.get("padat"):
        if idx == OPT["padat"][0]:
            e(f"s_nop 1\nv_readlane_b32 s5, v{V_STAMP}, 0\ns_add_u32 s{S_CNT}, s5, {OPT['padat'][1]*100}")
            e.label("L_padat")
            e(f"s_memrealtime s[4:5]\ns_waitcnt lgkmcnt(0)\ns_sub_u32 s5, s4, s{S_CNT}\ns_cmp_lt_i32 s5, 0\ns_cbranch_scc1 L_padat")
            e.lgkm = []
        return
    e(("s_memtime" if STAMPS == "2" else "s_memrealtime") + " s[4:5]")
    e.wait_all(vm=False)
    e(f"v_writelane_b32 v{V_STAMP}, s4, {idx}")
def stamp_flush(e):
    if not STAMPS: return
    if OPT.get("dbgst"):
        e(f"""s_load_dwordx2 s[8:9], s[0:1], 88
        s_mov_b32 s10, 256
        s_mov_b32 s11, 0x20000
        v_readlane_b32 s4, v{V_STAMP}, 0
        s_not_b32 s4, s4
        s_nop 3
        v_writelane_b32 v{V_STAMP}, s4, 14
        v_lshlrev_b32 v0, 2, v{V_LANE}
        v_cmp_gt_u32 vcc, 15, v{V_LANE}
        s_and_saveexec_b64 s[6:7], vcc
        s_waitcnt lgkmcnt(0)
        buffer_atomic_umax v{V_STAMP}, v0, s[8:11], 0 offen
        s_waitcnt vmcnt(0)""")
        return
    e(f"""s_lshl_b32 s4, s2, 2
    s_add_u32 s4, s4, s{S_WAVE}
    s_lshl_b32 s4, s4, 7
    s_add_u32 s4, s4, {64*MB}
    v_lshlrev_b32 v0, 2, v{V_LANE}
    v_cmp_gt_u32 vcc, 32, v{V_LANE}
    s_and_saveexec_b64 s[6:7], vcc
    buffer_store_dword v{V_STAMP}, v0, {srd(S_WS)}, s4 offen
    s_waitcnt vmcnt(0)""")

WS_EP = 11*MB
WS_FX, WS_FK, WS_FB, WS_FC = WS_EP + 4096, WS_EP + 8192, WS_EP + 12288, WS_EP + 16384
S_TAG = 3
def signal(e, soff_lines, tmp):
    e(soff_lines)
    e(f"""v_mov_b32 v{tmp}, s{S_TAG}
    v_add_u32 v{tmp+1}, s{S_WL}, v{V_LANE}
    v_min_u32 v{tmp+1}, 1, v{tmp+1}
    v_lshlrev_b32 v{tmp+1}, 30, v{tmp+1}""")
    e.vmem(f"buffer_store_dword v{tmp}, v{tmp+1}, {srd(S_WS)}, s{S_CNT} offen sc1", "SIG")
def sig_lin(base):
    return f"""s_lshr_b32 s{S_CNT}, s2, 3
    s_lshl_b32 s{S_CNT}, s{S_CNT}, 7
    s_and_b32 s{S_FL}, s2, 7
    s_lshl_b32 s{S_FL}, s{S_FL}, 2
    s_add_u32 s{S_CNT}, s{S_CNT}, s{S_FL}
    s_add_u32 s{S_CNT}, s{S_CNT}, {base}"""
SIG_KV = f"""s_and_b32 s{S_CNT}, s2, 31
    s_lshl_b32 s{S_CNT}, s{S_CNT}, 7
    s_lshl_b32 s{S_FL}, s{S_BLK}, 2
    s_add_u32 s{S_CNT}, s{S_CNT}, s{S_FL}
    s_add_u32 s{S_CNT}, s{S_CNT}, {WS_FK}"""
class Poll:
    def __init__(self, e, name, voff):
        self.e, self.name, self.voff = e, name, voff
    @property
    def ld(self):
        if self.name == "b" and POLLALL: return f"buffer_load_dwordx4 a[216:219], v{self.voff}, {srd(S_WS)}, 0 offen sc1"
        return f"buffer_load_dword v{V_POLL}, v{self.voff}, {srd(S_WS)}, 0 offen sc1"
    def issue(self): self.e.vmem(self.ld, ("POLL", self.name))
    def test(self):
        if self.name == "b" and POLLALL:
            return f"""v_accvgpr_read_b32 v5, a216
            v_accvgpr_read_b32 v6, a217
            v_accvgpr_read_b32 v7, a218
            v_accvgpr_read_b32 v{V_POLL}, a219
            v_xor_b32 v5, v5, v{V_POLL}
            v_xor_b32 v6, v6, v{V_POLL}
            v_xor_b32 v7, v7, v{V_POLL}
            v_or3_b32 v5, v5, v6, v7
            v_xor_b32 v{V_POLL}, s{S_TAG}, v{V_POLL}
            v_or_b32 v5, v5, v{V_POLL}
            v_cmp_eq_u32 vcc, 0, v5
            s_cmp_eq_u64 vcc, exec"""
        return f"v_cmp_eq_u32 vcc, s{S_TAG}, v{V_POLL}\ns_cmp_eq_u64 vcc, exec"
    def check(self):
        e = self.e
        e.need(vm=[("POLL", self.name)])
        e(self.test())
        e(f"s_cbranch_scc0 L_spin_{self.name}")
        e.label(f"L_ok_{self.name}")
    def spin(self):
        e = self.e
        e.label(f"L_spin_{self.name}")
        e(f"s_mov_b32 s{S_CNT}, 0x40000")
        e.label(f"L_spinl_{self.name}")
        e("s_sleep 2")
        e(self.ld)
        e("s_waitcnt vmcnt(0)")
        e(self.test())
        e(f"s_cbranch_scc1 L_ok_{self.name}")
        e(f"s_sub_u32 s{S_CNT}, s{S_CNT}, 1")
        e(f"s_cmp_lg_u32 s{S_CNT}, 0")
        e(f"s_cbranch_scc1 L_spinl_{self.name}")
        e(f"s_branch L_ok_{self.name}")
def poll32_addr(e, v, base):
    e(f"""s_lshr_b32 s{S_T0}, s{S_HEAD}, 1
    s_sub_u32 s{S_T1}, 15, s{S_T0}
    s_min_u32 s{S_T0}, s{S_T0}, s{S_T1}
    s_lshl_b32 s{S_T0}, s{S_T0}, 9
    s_add_u32 s{S_T0}, s{S_T0}, {base}
    v_bfe_u32 v{v}, v{V_LANE}, 3, 2
    v_lshlrev_b32 v{v}, 5, v{v}
    v_and_or_b32 v{v}, v{V_LANE}, 7, v{v}
    v_lshlrev_b32 v{v}, 2, v{v}
    v_add_u32 v{v}, s{S_T0}, v{v}""")

def kernel_head(e):
    e(f".globl {KN}\n.p2align 8\n.type {KN},@function")
    e.label(KN)
    e("s_cmp_ge_u32 s2, 256")
    e("s_cbranch_scc1 L_end")
    sizes = {S_X: (0, 2*MB), S_CKV: (8, 2*MB), S_WUK: (24, 4*MB), S_WS: (96, 65*MB if STAMPS else WS_END), S_WQ: (16, 4*MB), S_WUV: (32, 4*MB), S_WO: (40, 4*MB),
             S_WG: (56, 512*3584), S_WU: (64, 512*3584), S_WD: (72, 1792*1024), S_OUT: (80, 2*MB)}
    first = (S_X, S_CKV, S_WUK, S_WS)
    if OPT.get("st0") == 1: e("s_memrealtime s[6:7]\ns_waitcnt lgkmcnt(0)")
    for sr in first: e(f"s_load_dwordx2 s[{sr}:{sr+1}], s[0:1], {sizes[sr][0]}")
    if OPT.get("st0") == 2: e("s_waitcnt lgkmcnt(0)\ns_memrealtime s[6:7]")
    if STAMPS and not OPT.get("st0"): e(("s_memtime" if STAMPS == "2" else "s_memrealtime") + " s[6:7]")
    e(f"v_and_b32 v{V_LANE}, 63, v0")
    e("v_lshrrev_b32 v2, 6, v0")
    e(f"v_lshlrev_b32 v{V_L16}, 4, v{V_LANE}")
    e(f"v_readfirstlane_b32 s{S_WAVE}, v2")
    if OPT.get("pfcode", 1):
        e(f"""s_getpc_b64 s[4:5]
        s_lshr_b32 s{S_T0}, s2, 3
        s_lshl_b32 s{S_T0}, s{S_T0}, 11
        v_lshlrev_b32 v{V_TMP[0]}, 3, v2
        v_and_or_b32 v{V_TMP[0]}, v0, 7, v{V_TMP[0]}
        v_lshlrev_b32 v{V_TMP[0]}, 6, v{V_TMP[0]}
        v_add_u32 v{V_TMP[0]}, s{S_T0}, v{V_TMP[0]}
        v_min_u32 v{V_TMP[0]}, L_end-L_pcref, v{V_TMP[0]}""")
        e.label("L_pcref")
        e.vmem(f"global_load_dword v{V_TMP[12]}, v{V_TMP[0]}, s[4:5]", "PF")
    e(f"""s_and_b32 s{S_T0}, s2, 7
    s_lshl_b32 s{S_T0}, s{S_T0}, 2
    s_lshr_b32 s{S_T1}, s2, 3
    s_and_b32 s{S_T1}, s{S_T1}, 3
    s_add_u32 s{S_HEAD}, s{S_T0}, s{S_T1}
    s_lshr_b32 s{S_BLK}, s2, 5
    s_mul_i32 s{S_T0}, s{S_T1}, {OPT.get('rota', 0)}
    s_add_u32 s{S_ROT}, s{S_BLK}, s{S_T0}
    s_mul_i32 s{S_T0}, s2, {OPT.get('rotx', 1)}
    s_add_u32 s{S_ROT}, s{S_ROT}, s{S_T0}
    s_and_b32 s{S_ROT}, s{S_ROT}, 7
    s_and_b32 s{S_ROTB}, s{S_BLK}, 3
    s_lshl_b32 s{S_WL}, s{S_WAVE}, 10
    s_lshl_b32 s{S_WA}, s{S_WAVE}, 13
    s_add_u32 s{S_WA}, s{S_WA}, 65536""")
    if STAMPS: e("v_mov_b32 v2, -1")
    for sr in first: e(f"s_mov_b32 s{sr+2}, {sizes[sr][1]}\ns_mov_b32 s{sr+3}, 0x20000")
    setup_addrs(e)
    e(f"v_add_u32 v{V_ARD[0]}, s{S_WA}, v{V_ARD[0]}\nv_xor_b32 v{V_ARD[1]}, 64, v{V_ARD[0]}")
    scalar_setup(e)
    e(f"s_lshl_b32 s{S_T0}, s2, 13\ns_lshl_b32 s{S_T1}, s{S_WAVE}, 11\ns_add_u32 s{S_T0}, s{S_T0}, s{S_T1}")
    def late():
        for sr, (p, n) in sizes.items():
            if sr not in first: e(f"s_load_dwordx2 s[{sr}:{sr+1}], s[0:1], {p}\ns_mov_b32 s{sr+2}, {n}\ns_mov_b32 s{sr+3}, 0x20000")
        for sr in (S_HSRD, S_ASRD, S_BSRD): e(f"s_mov_b64 s[{sr}:{sr+1}], s[{S_WS}:{S_WS+1}]\ns_mov_b32 s{sr+2}, {WS_END}\ns_mov_b32 s{sr+3}, 0x20000")
        e(f"s_add_u32 s{S_FL}, s{S_WS}, {WS_EP}\ns_addc_u32 s{S_FL+1}, s{S_WS+1}, 0\ns_load_dword s{S_TAG}, s[{S_FL}:{S_FL+1}], 0")
    def go():
        e("s_waitcnt lgkmcnt(0)")
        if STAMPS: e("v_writelane_b32 v2, s6, 0")
        e.vmem(f"buffer_load_dwordx4 v[64:67], v{V_L16}, {srd(S_X)}, s{S_T0} offen", "X")
        e.vmem(f"buffer_load_dwordx4 v[68:71], v{V_L16}, {srd(S_X)}, s{S_T0} offen offset:1024", "X")
    return go, late

V_CPF = 31
V_KPERM = 31
V_UOFF = 30
def setup_addrs(e):
    t0, t1, t2, t3, t4 = V_TMP[:5]
    e(f"""v_lshrrev_b32 v{t0}, 2, v{V_LANE}
    v_lshlrev_b32 v{t0}, 7, v{t0}
    v_and_b32 v{t1}, 3, v{V_LANE}
    v_lshlrev_b32 v{t1}, 3, v{t1}
    v_add_u32 v{t0}, v{t0}, v{t1}
    v_bfe_u32 v{t1}, v{V_LANE}, 3, 2
    v_lshlrev_b32 v{t1}, 5, v{t1}
    v_add_u32 v{V_TR[0]}, v{t0}, v{t1}""")
    for c in (1, 2, 3): e(f"v_xor_b32 v{V_TR[c]}, {c*32}, v{V_TR[0]}")
    e(f"""v_lshrrev_b32 v{t0}, 3, v{V_LANE}
    v_and_b32 v{t1}, 7, v{V_LANE}
    v_and_b32 v{t2}, 6, v{t0}
    v_xor_b32 v{t1}, v{t1}, v{t2}
    v_lshlrev_b32 v{V_UOFF}, 4, v{t1}
    s_lshl_b32 s{S_T0}, s{S_WAVE}, 3
    v_add_u32 v{t2}, s{S_T0}, v{t0}
    v_bfe_u32 v{t3}, v{t2}, 2, 2
    v_lshlrev_b32 v{t3}, 3, v{t3}
    v_lshrrev_b32 v{t4}, 4, v{t2}
    v_lshl_add_u32 v{t3}, v{t4}, 2, v{t3}
    v_and_b32 v{t4}, 3, v{t2}
    v_add_u32 v{V_KPERM}, v{t3}, v{t4}
    v_lshl_add_u32 v{V_WOFF[0]}, v{V_KPERM}, 13, v{V_UOFF}
    v_add_u32 v{V_WOFF[1]}, 128, v{V_WOFF[0]}
    v_add_u32 v{V_WOFF[2]}, {32*8192}, v{V_WOFF[0]}
    v_add_u32 v{V_WOFF[3]}, {32*8192 + 128}, v{V_WOFF[0]}
    v_and_b32 v{t1}, 7, v{V_LANE}
    v_lshrrev_b32 v{t2}, 1, v{t0}
    v_xor_b32 v{t1}, v{t1}, v{t2}
    v_lshlrev_b32 v{t1}, 4, v{t1}
    v_lshl_add_u32 v{V_AOFF[0]}, v{t0}, 10, v{t1}
    v_xor_b32 v{V_AOFF[1]}, 64, v{V_AOFF[0]}
    v_add_u32 v{V_AOFF[1]}, 8192, v{V_AOFF[1]}
    v_and_b32 v{t0}, 15, v{V_LANE}
    v_lshrrev_b32 v{t1}, 4, v{V_LANE}
    v_lshrrev_b32 v{t2}, 1, v{t0}
    v_xor_b32 v{t1}, v{t1}, v{t2}
    v_lshlrev_b32 v{t1}, 4, v{t1}
    v_lshl_add_u32 v{V_ARD[0]}, v{t0}, 7, v{t1}""")

def scalar_setup(e):
    i, h, w = S_BLK, S_HEAD, S_WAVE
    e(f"""s_lshl_b32 s{S_T0}, s{i}, 2
    s_add_u32 s{S_T0}, s{S_T0}, s{w}
    s_lshl_b32 s{S_AROW}, s{S_T0}, 16
    s_lshl_b32 s{S_KVST}, s{h}, 19
    s_lshl_b32 s{S_T0}, s{S_T0}, 14
    s_add_u32 s{S_KVST}, s{S_KVST}, s{S_T0}""")
def scalar_setup2(e):
    i, h, w = S_BLK, S_HEAD, S_WAVE
    a, b, c, d = S_N, S_EVT, S_TRANS, S_RET
    return f"""s_sub_u32 s{a}, 15, s{i}
    s_cmp_lt_u32 s{w}, 2 ! s_cselect_b32 s{b}, s{a}, s{i}
    s_lshl_b32 s{b}, s{b}, 1
    s_and_b32 s{c}, s{w}, 1
    s_add_u32 s{S_QT}, s{b}, s{c}
    s_lshl_b32 s{S_XNB}, s{S_QT}, 16
    s_mul_i32 s{S_HST}, s{S_QT}, {56*4096}
    s_add_u32 s{S_HST}, s{S_HST}, {WS_H}
    s_lshl_b32 s{d}, s{h}, 14
    s_add_u32 s{d}, s{d}, {WS_CTX}
    s_lshl_b32 s{S_CTXLO}, s{S_QT}, 19
    s_add_u32 s{S_CTXLO}, s{S_CTXLO}, s{d}
    s_lshr_b32 s{b}, s{w}, 1
    s_xor_b32 s{b}, s{b}, s{w}
    s_and_b32 s{b}, s{b}, 1
    s_lshl_b32 s{a}, s{a}, 1
    s_add_u32 s{S_QTHI}, s{a}, s{b}
    s_lshl_b32 s{S_CTXHI}, s{S_QTHI}, 19
    s_add_u32 s{S_CTXHI}, s{S_CTXHI}, s{d}
    s_cmp_lt_u32 s{h}, 28 ! s_cselect_b32 s{S_WG+2}, {512*3584}, 0
    s_mov_b32 s{S_WU+2}, s{S_WG+2}
    s_cmp_lt_u32 s{h}, 28 ! s_cselect_b32 s{S_HSRD+2}, {WS_END}, 0
    s_lshl_b32 s{a}, s{h}, 19
    s_mov_b32 s{b}, {WS_V}
    s_cmp_lt_u32 s{w}, 2 ! s_cselect_b32 s{b}, {WS_K}, s{b}
    s_add_u32 s{b}, s{b}, s{a}
    s_add_u32 s{S_VCLB}, s{b}, {63*8192}
    s_and_b32 s{a}, s{w}, 1
    s_lshl_b32 s{a}, s{a}, 13
    s_add_u32 s{S_SRCA}, s{b}, s{a}
    s_lshl_b32 s{a}, s{w}, 13
    s_add_u32 s{S_VMAXB}, s{b}, s{a}
    s_add_u32 s{S_VMAXB}, s{S_VMAXB}, {64*8192}
    s_min_u32 s{S_SRCB}, s{S_VMAXB}, s{S_VCLB}
    s_lshl_b32 s{S_LB}, s{w}, 13
    s_add_u32 s{S_LA}, s{S_LB}, 65536
    s_xor_b32 s{S_LB}, s{S_LB}, 32768
    s_lshl_b32 s{S_N0}, s{i}, 1
    s_add_u32 s{S_N0}, s{S_N0}, 2
    s_mul_i32 s{a}, s{w}, {14*4096}
    s_mul_i32 s{S_DH}, s{h}, {56*4096}
    s_add_u32 s{S_DH}, s{S_DH}, s{a}
    s_add_u32 s{S_DH}, s{S_DH}, {WS_H}
    s_mul_i32 s{S_DW}, s{i}, {56*4096}
    s_add_u32 s{S_DW}, s{S_DW}, s{a}
    s_add_u32 s{S_DW}, s{S_DW}, {WS_WDF}
    s_mov_b32 s{S_DINC}, 0""".split("\n")

def layernorm_lines():
    L = []; e = L.append
    X = (72, 80); SUM = (88, 89); TMP = (90, 91); MEAN = (92, 93); VAR = (94, 95)
    SS = (S_T0, S_T1)
    for r in range(2):
        for j in range(4):
            e(f"v_lshlrev_b32 v{X[r]+2*j}, 16, v{64+4*r+j}")
            e(f"v_and_b32 v{X[r]+2*j+1}, 0xffff0000, v{64+4*r+j}")
    def reduce():
        for mod in ("quad_perm:[1,0,3,2] row_mask:0xf bank_mask:0xf", "quad_perm:[2,3,0,1] row_mask:0xf bank_mask:0xf",
                    "row_half_mirror row_mask:0xf bank_mask:0xf", "row_mirror row_mask:0xf bank_mask:0xf",
                    "row_bcast:15 row_mask:0xa bank_mask:0xf", "row_bcast:31 row_mask:0xc bank_mask:0xf"):
            e("s_nop 0")
            for r in range(2): e(f"v_add_f32_dpp v{SUM[r]}, v{SUM[r]}, v{SUM[r]} {mod}")
        e("s_nop 0")
        for r in range(2): e(f"v_readlane_b32 s{SS[r]}, v{SUM[r]}, 63")
        e("s_nop 1")
    for r in range(2): e(f"v_add_f32 v{SUM[r]}, v{X[r]}, v{X[r]+1}")
    for j in range(2, 8):
        for r in range(2): e(f"v_add_f32 v{SUM[r]}, v{SUM[r]}, v{X[r]+j}")
    reduce()
    for r in range(2): e(f"v_mov_b32 v{MEAN[r]}, s{SS[r]}")
    for r in range(2): e(f"v_mul_f32 v{MEAN[r]}, 0x3b000000, v{MEAN[r]}")
    for j in range(8):
        for r in range(2): e(f"v_sub_f32 v{TMP[r]}, v{X[r]+j}, v{MEAN[r]}")
        for r in range(2): e(f"v_mul_f32 v{SUM[r]}, v{TMP[r]}, v{TMP[r]}" if j == 0 else f"v_fmac_f32 v{SUM[r]}, v{TMP[r]}, v{TMP[r]}")
    reduce()
    def both(fmt):
        for r in range(2): e(fmt.format(v=VAR[r], m=MEAN[r], s=SS[r]))
    def rnd(x):
        both("v_cvt_pk_bf16_f32 v{%s}, v{%s}, v{%s}" % (x, x, x)); both("v_lshlrev_b32 v{%s}, 16, v{%s}" % (x, x))
    both("v_mov_b32 v{v}, s{s}"); both("v_mul_f32 v{v}, 0x3b000000, v{v}")
    rnd("v"); both("v_add_f32 v{v}, 0x3727c5ac, v{v}"); rnd("v")
    both("v_sqrt_f32 v{v}, v{v}"); rnd("m"); rnd("v"); both("v_rcp_f32 v{v}, v{v}")
    for r in range(2):
        for j in range(8): e(f"v_sub_f32 v{X[r]+j}, v{X[r]+j}, v{MEAN[r]}")
        for j in range(4): e(f"v_cvt_pk_bf16_f32 v{64+4*r+j}, v{X[r]+2*j}, v{X[r]+2*j+1}")
        for j in range(4):
            e(f"v_lshlrev_b32 v{X[r]+2*j}, 16, v{64+4*r+j}")
            e(f"v_and_b32 v{X[r]+2*j+1}, 0xffff0000, v{64+4*r+j}")
        for j in range(8): e(f"v_mul_f32 v{X[r]+j}, v{X[r]+j}, v{VAR[r]}")
        for j in range(4): e(f"v_cvt_pk_bf16_f32 v{64+4*r+j}, v{X[r]+2*j}, v{X[r]+2*j+1}")
    return L

class MemQ:
    def __init__(self, e): self.e = e; self.items = []
    def add(self, kind, lo, hi, *a): self.items.append([kind, lo, hi, a])
    def fillers(self):
        e = self.e; out = []
        dm = [k for k, it in enumerate(self.items) if it[0] == 'd']
        nxt = {dm[j]: dm[j+1] for j in range(len(dm) - 1)}
        self.first_m0 = self.items[dm[0]][3][0]
        for k, (kind, lo, hi, a) in enumerate(self.items):
            if kind == 's': out.append(Filler(lambda a=a: e(a[0].replace(" ! ", "\n")), 4, "salu", lo, hi))
            elif kind == 'l': out.append(Filler(lambda a=a: e.vmem(a[0], a[1]), 4, "mem", lo, hi))
            elif kind == 'f': out.append(Filler(a[0], a[1], a[2], lo, hi))
            else:
                def fn(k=k, a=a):
                    if len(a) > 3: e.need(lg=a[3])
                    if " m0," in e.L[-1]: e("s_nop 0")
                    e.vmem(a[1], a[2])
                    if k in nxt: e(self.items[nxt[k]][3][0])
                out.append(Filler(fn, 8, "mem", lo, hi))
        return out


def body(e):
    i, h, w = S_BLK, S_HEAD, S_WAVE
    go, late = kernel_head(e)
    NS = 32; BAR = 42; INF = 10**9; P = -10**6
    mq = MemQ(e)
    def S(lo, hi, *lines):
        for t in lines: mq.add('s', lo, hi, t)
    def VV(lo, hi, *lines):
        for t in lines: mq.add('f', lo, hi, lambda t=t: e(t), 4, "valu")
    V_GOFF = V_KPERM; V_TRH = V_AOFF + V_ARD
    S_GO = S_T1
    def area(gs):
        if gs < 16: return (gs % 4)*16384
        if gs < 24: return ((gs % 4)*32768 + 65536) % 131072
        return ((gs - 24)*16384 + 65536) % 131072
    def w_stage(gs, lo, step, hi):
        slot = gs % 4
        if gs < 16:
            s = gs % 8
            if s == 0: S(lo - 8, hi, f"s_lshl_b32 s{S_OFF0}, s{S_ROT}, 19", f"s_lshl_b32 s{S_T5}, s{h}, 8", f"s_add_u32 s{S_OFF0}, s{S_OFF0}, s{S_T5}")
            else: S(lo - 8, hi, f"s_add_u32 s{S_OFF0}, s{S_OFF0}, {1<<19}", f"s_and_b32 s{S_OFF0}, s{S_OFF0}, {4*MB-1}")
            for n in range(4):
                mq.add('d', lo + step*n, hi, f"s_add_u32 m0, s{S_WL}, {slot*16384 + n*4096}",
                       f"buffer_load_dwordx4 v{V_WOFF[n]}, {srd(S_WUK if gs < 8 else S_WUV)}, s{S_OFF0} offen lds", ("W", gs))
        elif gs >= 24:
            s = gs % 4; hf = (gs // 4) % 2
            S(lo - 10, hi, f"s_add_u32 s{S_OFF0}, s{S_ROTB}, {s}", f"s_and_b32 s{S_OFF0}, s{S_OFF0}, 3", f"s_lshl_b32 s{S_OFF0}, s{S_OFF0}, 20",
              f"s_lshl_b32 s{S_T5}, s{h}, 8", f"s_add_u32 s{S_OFF0}, s{S_OFF0}, s{S_T5}")
            if hf: S(lo - 10, hi, f"s_add_u32 s{S_OFF0}, s{S_OFF0}, 128")
            for n in range(4):
                if n: S(lo + step*n - 2, hi, f"s_add_u32 s{S_OFF0}, s{S_OFF0}, {32*8192}")
                mq.add('d', lo + step*n, hi, f"s_add_u32 m0, s{S_WL}, {area(gs) + n*4096}",
                       f"buffer_load_dwordx4 v{V_WOFF[0]}, {srd(S_WQ)}, s{S_OFF0} offen lds", ("W", gs))
    def g_stage(s, lo, step, hi):
        S(lo - 10, hi, f"s_add_u32 s{S_GO}, s{S_ROTB}, {s}", f"s_and_b32 s{S_GO}, s{S_GO}, 3", f"s_mul_i32 s{S_GO}, s{S_GO}, {128*3584}",
          f"s_lshl_b32 s{S_T5}, s{h}, 7", f"s_add_u32 s{S_GO}, s{S_GO}, s{S_T5}")
        for n in range(8):
            if n and n % 2 == 0: S(lo + step*n - 2, hi, f"s_add_u32 s{S_GO}, s{S_GO}, {32*3584}")
            mq.add('d', lo + step*n, hi, f"s_add_u32 m0, s{S_WL}, {area(16 + s) + n*4096}",
                   f"buffer_load_dwordx4 v{V_GOFF}, {srd((S_WG, S_WU)[n % 2])}, s{S_GO} offen lds", ("W", 16 + s))
    def a_stage(s, lo, step, hi):
        S(lo - 6, hi, f"s_add_u32 s{S_OFFA}, s{S_ROT}, {s}", f"s_and_b32 s{S_OFFA}, s{S_OFFA}, 7", f"s_lshl_b32 s{S_OFFA}, s{S_OFFA}, 7", f"s_add_u32 s{S_OFFA}, s{S_OFFA}, s{S_AROW}")
        for q in range(8):
            if q and q % 2 == 0: S(lo + step*q - 2, hi, f"s_add_u32 s{S_OFFA}, s{S_OFFA}, 16384")
            mq.add('d', lo + step*q, hi, f"s_add_u32 m0, s{S_WA}, {(s % 2)*32768 + q*1024}",
                   f"buffer_load_dwordx4 v{V_AOFF[q & 1]}, {srd(S_CKV)}, s{S_OFFA} offen lds", ("A", s), [("AF", s-2, 0), ("AF", s-2, 1)])
    def xn_stage(s, lo, step, hi):
        if s % 2 == 0: S(lo - 6, hi, f"s_add_u32 s{S_OFFA}, s{S_ROTB}, {s//2}", f"s_and_b32 s{S_OFFA}, s{S_OFFA}, 3", f"s_lshl_b32 s{S_OFFA}, s{S_OFFA}, 14", f"s_add_u32 s{S_OFFA}, s{S_OFFA}, s{S_XNB}")
        for ksub in range(2):
            if ksub or s % 2: S(lo + step*4*ksub - 2, hi, f"s_add_u32 s{S_OFFA}, s{S_OFFA}, 4096")
            for rb in range(4):
                mq.add('l', lo + step*(ksub*4 + rb), hi, f"buffer_load_dwordx4 {ar(actf(2*s+ksub, rb))}, v{V_L16}, {srd(S_WS)}, s{S_OFFA} offen offset:{rb*1024}{SC}", ("XN", 2*s+ksub))
    V_PO = V_TMP[13]
    poll_xn = Poll(e, "xn", V_PO); poll_kv = Poll(e, "kv", V_PO); poll_b = Poll(e, "b", V_TMP[15]); poll_c = Poll(e, "c", V_TMP[15])
    V_RT = V_TMP[8]; V_RTA = V_TMP[9:13]; V_PFD = V_TMP[1]
    RTL, RTS, RG = OPT.get("rtl", 19), OPT.get("rts", 22), OPT.get("rtgap", 32)
    S_RL = S_RET
    PRO = OPT.get("pro", 1); KVS = OPT.get("kvs", 30)
    w_stage(0, P, 0, INF); a_stage(0, P, 0, INF)
    n_pro0 = len(mq.items)
    S(P, INF, f"s_lshl_b32 s{S_T2}, s{w}, 8", f"s_add_u32 s{S_T2}, s{S_T2}, s2", f"s_lshr_b32 s{S_T3}, s{S_T2}, 3", f"s_add_u32 s{S_T4}, s{S_T2}, s{S_T3}", f"s_and_b32 s{S_T4}, s{S_T4}, 7",
      f"s_cmp_lt_u32 s{S_T2}, 448 ! s_cselect_b32 s{S_WD+2}, {1792*1024}, 0", f"s_cmp_lt_u32 s{S_T2}, 448 ! s_cselect_b32 s{S_BSRD+2}, {WS_END}, 0")
    VV(P, INF, f"v_lshrrev_b32 v{V_RT}, 3, v{V_LANE}", f"v_lshl_add_u32 v{V_RT}, v{V_RT}, 10, v{V_UOFF}", f"v_mul_u32_u24 v{V_GOFF}, 3584, v{V_KPERM}", f"v_add_u32 v{V_GOFF}, v{V_GOFF}, v{V_UOFF}")
    w_stage(1, P, 0, INF)
    if PRO >= 2: a_stage(1, P, 0, INF)
    if PRO >= 3: w_stage(2, P, 0, INF)
    n_pro1 = len(mq.items)
    if PRO < 2: a_stage(1, 0, 1, 30)
    if PRO < 3: w_stage(2, 10, 1, 36)
    def rt_loads(E0, half):
        for q in range(2*half, 2*half + 2):
            if OPT.get("rtlin"): S(E0, INF, f"s_add_u32 s{S_RL}, s{S_RL}, 1024" if q else f"s_lshl_b32 s{S_RL}, s{S_T4}, 12 ! s_lshl_b32 s{S_T5}, s{S_T3}, 3 ! s_add_u32 s{S_RL}, s{S_RL}, s{S_T5}")
            else: S(E0, INF, f"s_add_u32 s{S_RL}, s{S_RL}, 8192" if q else f"s_lshl_b32 s{S_RL}, s{S_T4}, 7 ! s_lshl_b32 s{S_T5}, s{S_T3}, 3 ! s_add_u32 s{S_RL}, s{S_RL}, s{S_T5}")
            for t, sr in enumerate((S_WO, S_WD)):
                mq.add('d', E0 + ((4 + 14*(q % 2) + 7*t) if RTL > 5 else 36), E0 + (33 if RTL > 5 else 60), f"s_add_u32 m0, s{S_WA}, {65536 + t*4096 + q*1024}", f"buffer_load_dwordx4 v{V_L16 if OPT.get('rtlin') else V_RT}, {srd(sr)}, s{S_RL} offen lds", "RT")
    for gs in range(NS):
        b = gs * 64
        if gs + 2 < 8: a_stage(gs + 2, b + (6 if gs or PRO >= 3 else 22), (4 if gs or PRO >= 3 else 2), b + 41)
        GS = OPT.get("gs", (7, 8))
        if gs in GS: g_stage(GS.index(gs), b + 4, 3, b + 41)
        if gs == 8:
            t0, t1 = V_TMP[2:4]
            S(b + 4, b + 30, f"s_lshl_b32 s{S_T5}, s{S_QT}, 7", f"s_add_u32 s{S_T5}, s{S_T5}, {WS_FX}")
            VV(b + 4, b + 30, f"v_and_b32 v{V_PO}, 7, v{V_LANE}", f"v_lshlrev_b32 v{V_PO}, 2, v{V_PO}", f"v_add_u32 v{V_PO}, s{S_T5}, v{V_PO}")
            mq.add('f', b + 28, b + 36, poll_xn.issue, 4, "mem")
        if gs == 9: mq.add('f', b + 2, b + 6, poll_xn.check, 8, "valu")
        if 9 <= gs <= 16: xn_stage(gs - 9, b + 8, 4, b + 41)
        if gs == 10: VV(b + 20, INF, *[f"v_add_u32 v{V_TRH[c]}, 65536, v{V_TR[c]}" for c in range(4)])
        if gs in (RTL, RTL + 1) and not OPT.get("nortl"): rt_loads(b, gs - RTL)
        if gs == 27:
            S(b + 4, b + 30, f"s_and_b32 s{S_T5}, s2, 31", f"s_lshl_b32 s{S_T5}, s{S_T5}, 7", f"s_add_u32 s{S_T5}, s{S_T5}, {WS_FK}")
            VV(b + 4, b + 30, f"v_and_b32 v{V_PO}, 7, v{V_LANE}", f"v_lshlrev_b32 v{V_PO}, 2, v{V_PO}", f"v_add_u32 v{V_PO}, s{S_T5}, v{V_PO}")
        if gs == KVS - 1: mq.add('f', b + 26, b + 33, poll_kv.issue, 4, "mem")
        if gs + 3 < NS: w_stage(gs + 3, b + 44, 4, b + 64 + 5)
        if gs in (14, 16): g_stage(2 + (gs - 14)//2, b + 44, 3, b + 64 + 7)
    b = KVS*64
    mq.add('f', b + 4, b + 8, poll_kv.check, 8, "valu")
    for st in range(2):
        for j in range(8):
            if j == 4: S(b, INF, f"s_add_u32 s{S_T4}, s{S_SRCA}, 4096")
            mq.add('d', b + 8 + st*64 + 6*j, INF, f"s_add_u32 m0, s{S_LA}, {st*32768 + (j//4)*4096}",
                   f"buffer_load_dwordx4 v{V_L16}, {srd(S_ASRD)}, s{S_T4 if j >= 4 else S_SRCA} offen offset:{(j%4)*1024}{SC} lds", ("KV", st))
        if st == 0: S(b, INF, f"s_cmp_ge_u32 s{w}, 2 ! s_cselect_b32 s{S_T4}, 0, 2", f"s_lshl_b32 s{S_T4}, s{S_T4}, 13", f"s_add_u32 s{S_SRCA}, s{S_SRCA}, s{S_T4}")
        else: S(b, INF, f"s_add_u32 s{S_SRCA}, s{S_SRCA}, 16384")
    mfill = mq.fillers()
    e(mq.first_m0)
    started = False
    for f in mfill[:n_pro0]:
        if f.cost == 8 and not started: go(); started = True
        f.fn()
        if f.cost == 8: e("s_nop 0")
    late()
    if OPT.get("tlb", 0):
        a, b, c = S_N, S_EVT, S_TRANS
        e(f"""s_lshr_b32 s{a}, s2, 3
        s_and_b32 s{b}, s{a}, 7
        s_add_u32 s{b}, s{b}, 2
        s_cmp_eq_u32 s{w}, 2
        s_cselect_b32 s{b}, 10, s{b}
        s_and_b32 s{c}, s{w}, 1
        s_lshr_b32 s{S_T0}, s{w}, 1
        s_cmp_eq_u32 s{c}, s{S_T0}
        s_cselect_b32 s{b}, 12, s{b}
        s_lshl_b32 s{S_T1}, s{b}, 3
        s_load_dwordx2 s[{S_ASRD}:{S_ASRD+1}], s[0:1], s{S_T1}
        s_cmp_lt_u32 s{b}, 6
        s_mov_b32 s{S_ASRD+2}, {1792*1024}
        s_cselect_b32 s{S_ASRD+2}, {4*MB}, s{S_ASRD+2}
        s_lshr_b32 s{S_T1}, s{a}, 3
        s_lshl_b32 s{a}, s{a}, 1
        s_add_u32 s{a}, s{a}, s{c}
        s_cmp_eq_u32 s{b}, 12
        s_cselect_b32 s{S_ASRD+2}, {WS_END}, s{S_ASRD+2}
        s_cselect_b32 s{a}, s{a}, s{S_T1}
        s_lshl_b32 s{a}, s{a}, 20
        v_mov_b32 v{V_TMP[5]}, s{a}
        s_waitcnt lgkmcnt(0)""")
        e.vmem(f"buffer_load_dword v{V_TMP[1]}, v{V_TMP[5]}, {srd(S_ASRD)}, 0 offen sc1", "PF")
        e(f"s_mov_b64 s[{S_ASRD}:{S_ASRD+1}], s[{S_WS}:{S_WS+1}]\ns_mov_b32 s{S_ASRD+2}, {WS_END}")
    e.need(vm=["X"])
    ln = layernorm_lines()
    rest = mfill[n_pro0:n_pro1]
    per = len(ln) // (sum(f.cost == 8 for f in rest) + 1) + 1
    while ln or rest:
        for t in ln[:per]: e(t)
        ln = ln[per:]
        while rest:
            f = rest.pop(0); f.fn()
            if f.cost == 8: break
    mfill = mfill[n_pro1:]
    t0, t1, t2 = V_TMP[2:5]
    e(f"""s_lshl_b32 s{S_T0}, s{w}, 5
    s_add_u32 s{S_T0}, s{S_T0}, 49152
    v_lshlrev_b32 v{t0}, 7, v{V_LANE}
    v_add_u32 v{t0}, s{S_T0}, v{t0}""")
    e.ds(f"ds_write_b128 v{t0}, v[64:67]"); e.ds(f"ds_write_b128 v{t0}, v[68:71] offset:16")
    e(f"""s_lshl_b32 s{S_T0}, s{w}, 11
    s_add_u32 s{S_T0}, s{S_T0}, 49152
    v_add_u32 v{t0}, s{S_T0}, v{V_L16}
    v_lshrrev_b32 v{t1}, 5, v{V_LANE}
    v_lshlrev_b32 v{t1}, 12, v{t1}
    v_bfe_u32 v{t2}, v{V_LANE}, 3, 2
    v_lshl_add_u32 v{t1}, v{t2}, 8, v{t1}
    v_and_b32 v{t2}, 7, v{V_LANE}
    v_lshl_add_u32 v{t1}, v{t2}, 4, v{t1}
    s_lshr_b32 s{S_T0}, s2, 3
    s_lshl_b32 s{S_T0}, s{S_T0}, 16
    s_bfe_u32 s{S_T1}, s2, 0x20001
    s_lshl_b32 s{S_T1}, s{S_T1}, 10
    s_add_u32 s{S_T0}, s{S_T0}, s{S_T1}
    s_and_b32 s{S_T1}, s2, 1
    s_lshl_b32 s{S_T1}, s{S_T1}, 7
    s_add_u32 s{S_T0}, s{S_T0}, s{S_T1}
    s_lshl_b32 s{S_T1}, s{w}, 14
    s_add_u32 s{S_T0}, s{S_T0}, s{S_T1}
    s_add_u32 s{S_T1}, s{S_T0}, 8192""")
    misc = []
    misc.append(Filler(lambda: (e.ds(f"ds_read_b128 v[64:67], v{t0}", "LN"), e.ds(f"ds_read_b128 v[68:71], v{t0} offset:1024", "LN")), 8, "mem", 2, 30))
    misc.append(Filler(lambda: (e.need(lg=["LN"]), e.vmem(f"buffer_store_dwordx4 v[64:67], v{t1}, {srd(S_WS)}, s{S_T0} offen{SC}", "XNST")), 8, "mem", 14, 40))
    misc.append(Filler(lambda: e.vmem(f"buffer_store_dwordx4 v[68:71], v{t1}, {srd(S_WS)}, s{S_T1} offen{SC}", "XNST"), 8, "mem", 16, 41))
    for t in scalar_setup2(e): misc.append(Filler(lambda t=t: e(t.replace(" ! ", "\n")), 4, "salu", 44, 150))
    S_RA, S_RB = S_N, S_EVT
    rts = [Filler(lambda: e(f"s_add_u32 s{S_RA}, s{S_WA}, 65536"), 4, "salu", 150)]
    for c in range(4): rts.append(Filler(lambda c=c: e(f"v_add_u32 v{V_RTA[c]}, s{S_RA}, v{V_TR[c]}"), 4, "valu", 150))
    for t in (f"s_lshl_b32 s{S_RA}, s{S_T4}, 19", f"s_lshl_b32 s{S_T3}, s{S_T3}, 12", f"s_add_u32 s{S_RA}, s{S_RA}, s{S_T3}", f"s_add_u32 s{S_RA}, s{S_RA}, {WS_WOF}",
              f"s_mul_i32 s{S_RB}, s{S_T4}, {56*4096}", f"s_add_u32 s{S_RB}, s{S_RB}, s{S_T3}", f"s_add_u32 s{S_RB}, s{S_RB}, {WS_WDF}"):
        rts.append(Filler(lambda t=t: e(t), 4, "salu", 150, 185))
    SIGKV = OPT.get("sigkv", 28)
    for n in range(8):
        t, c = n // 4, n % 4
        d0 = V_PK + (n % 2)*4
        def fr(t=t, c=c, d0=d0, n=n):
            e.need(vm=["RT"])
            for rr in range(2): e.ds(f"ds_read_b64_tr_b16 v[{d0+rr*2}:{d0+rr*2+1}], v{V_RTA[c]} offset:{t*4096 + rr*2048}", ("RTF", n))
        def fs(t=t, c=c, d0=d0, n=n):
            e.need(lg=[("RTF", n)])
            e.vmem(f"buffer_store_dwordx4 {vr(d0)}, v{V_L16}, {srd((S_WS, S_BSRD)[t])}, s{(S_RA, S_RB)[t]} offen offset:{c*1024}{SC}", "RTST")
        if not OPT.get("norts"): rts.append(Filler(fr, 8, "mem", RTS*64 + 40 + RG*n)); rts.append(Filler(fs, 4, "mem", RTS*64 + 40 + RG*n + 12, 30*64 + 30 if POLLALL else (SIGKV - 1)*64))
    mfmas = []; rd = []
    sig_at = {3: (["XNST"], sig_lin(WS_FX)), SIGKV: (["KST", "VST"] + ([] if POLLALL else ["RTST"]), SIG_KV)}
    def stage_gate(gs):
        def fn():
            tags = [("W", gs)]
            if gs < 8: tags.append(("A", gs))
            if gs in sig_at: tags += sig_at[gs][0]
            f3 = OPT.get("fine3")
            if f3 is not None and 0 <= gs - f3 < 6: stamp(e, 14 + 3*(gs - f3))
            e.need(vm=tags)
            if f3 is not None and 0 <= gs - f3 < 6: stamp(e, 15 + 3*(gs - f3))
            e("s_barrier")
            if f3 is not None and 0 <= gs - f3 < 6: stamp(e, 16 + 3*(gs - f3))
            if gs in sig_at: signal(e, sig_at[gs][1], V_TMP[6])
            if gs % 8 == 0: stamp(e, 2 + gs // 8)
            if OPT.get("fine") is not None and 0 <= gs - OPT["fine"] < 18: stamp(e, 14 + gs - OPT["fine"])
        return fn
    def actread(s, ksub, rb):
        return lambda: e.ds(f"ds_read_b128 {ar(actf(2*s+ksub, rb))}, v{V_ARD[ksub]} offset:{(s % 2)*32768 + rb*2048}", ("AF", s, ksub))
    for gs in range(NS):
        base = gs * 64
        if gs > 0: rd.append(Filler(stage_gate(gs), 8, "mem", base - 64 + BAR, base - 64 + BAR + 1))
        pend = [Filler(actread(gs, ksub, rb), 4, "mem", base - 64 + BAR, base - 3) for rb in range(4) for ksub in range(2)] if gs < 8 else []
        CH = 2 if gs < 16 else 4
        for g in range(16 // CH):
            g0 = base + g*4*CH
            db = g if gs < 16 else 4*((gs // 4) % 2) + g
            first = gs % (16 // CH) == 0
            for k in range(CH):
                slot = (g*CH + k) % 8
                if gs < 16: c_, off = g % 4, (k*2 + g // 4)*4096
                elif gs < 24: c_, off = 2*((gs // 4) % 2) + g % 2, (k*2 + g // 2)*4096
                else: c_, off = g, k*4096
                off += area(gs)
                for rr in range(2):
                    ad = V_TRH[c_] if off >= 65536 else V_TR[c_]
                    d = V_WF + slot*4 + rr*2
                    n_ = k*2 + rr
                    lo = (g0 - 22 + 2*n_) if CH == 2 else (g0 - 16 + n_)
                    if gs == 16 and g == 1: lo = max(lo, base)
                    rd.append(Filler(lambda d=d, ad=ad, o=(off + rr*2048) % 65536, t=(gs, g): e.ds(f"ds_read_b64_tr_b16 v[{d}:{d+1}], v{ad} offset:{o}", ("F", t)),
                                     4, "mem", max(lo, base - 64 + BAR), g0 - 3))
                    for _ in range(1 if g else 2):
                        if pend: rd.append(pend.pop(0))
            for rb in range(4):
                for kk in range(CH):
                    k = kk if rb % 2 == 0 else CH - 1 - kk
                    kslot = CH*(gs % (16 // CH)) + k
                    def needs(gs=gs, g=g, CH=CH):
                        return e.need(lg=[("F", (gs, g))] + ([("AF", gs, 0), ("AF", gs, 1)] if gs < 8 else []),
                                      vm=[("XN", 4*(gs % 4) + q) for q in range(4)] if 16 <= gs < 20 else ())
                    def m(gs=gs, slot=(g*CH + k) % 8, kslot=kslot, db=db, rb=rb, z=(first and kk == 0), needs=needs):
                        needs()
                        wv = vr(V_WF + slot*4); a = ar(actf(kslot, rb)); d = vr(acc(db, rb))
                        e(mf(d, a, wv, "0" if z else d) if 8 <= gs < 16 else mf(d, wv, a, "0" if z else d))
                    m.pre = needs
                    mfmas.append(m)
    def cvts(base, dst, dl):
        out = []
        for db in range(8):
            for rb in range(4):
                for hh in range(2):
                    d = dst(db, rb, hh); s = acc(db, rb) + 2*hh
                    out.append(Filler(lambda d=d, s=s: e(f"v_cvt_pk_bf16_f32 v{d}, v{s}, v{s+1}"), 4, "valu", base + 448 + 8*db + 2*rb + 1 + 8, dl(db, rb)))
        return out
    cv = cvts(0, lambda db, rb, hh: V_PK + (rb*4 + db//2)*4 + (db & 1)*2 + hh, lambda db, rb: min(512 + 8*db + 2*rb, 512 + 30))
    VH = OPT.get("vh", 1150)
    cvv = cvts(512, lambda db, rb, hh: V_PK + ((db//4)*8 + (rb//2)*4 + db % 4)*4 + (rb & 1)*2 + hh, lambda db, rb: min(1024 + 16*db + 4*rb, 1024 + 16) if db < 4 else min(VH + 39, 1278))
    for f in cvv[32:]: f.earliest = VH
    cv += cvv
    st = []
    G2 = OPT.get("sgap", 37)
    NKV = OPT.get("nkv", 14)
    sched = [(WS_K + n*1024, n, "KST", 512 + 36 + (444 // NKV)*n, 512 + 454 if n < 8 else 1024) for n in range(NKV)]
    sched += [(WS_K + n*1024, n, "KST", 1024 + 4 + G2*(n - NKV), VH - 2) for n in range(NKV, 16)]
    sched += [(WS_V + ((n % 8)//4)*8192 + ((n // 8)*4 + n % 4)*1024, n, "VST", max(1024 + 20 + G2*(n + 16 - NKV), VH + 40 if n >= 8 else 0), (SIGKV - 1)*64 + 20) for n in range(16)]
    for off, n, tag, lo, dl in sched:
        if n % 4 == 0: st.append(Filler(lambda off=off: e(f"s_add_u32 s{S_T2}, s{S_KVST}, {off}"), 4, "salu", lo - 4))
        st.append(Filler(lambda n=n, tag=tag: e.vmem(f"buffer_store_dwordx4 {vr(V_PK + n*4)}, v{V_L16}, {srd(S_WS)}, s{S_T2} offen offset:{(n%4)*1024}{SC}", tag), 4, "mem", lo, dl))
    C0 = -2.0 * math.sqrt(2.0 / math.pi) * math.log2(math.e)
    V_C1 = V_TMP[4]; V_QW = V_TMP[5]
    ge = [Filler(lambda: e(f"v_mov_b32 v{V_C1}, {fb(C0*0.044715):#x}"), 4, "valu", 1100)]
    for hf in range(2):
        lo = 1024 + 256*(hf + 1) - 16 + 11; dl = 1024 + 256*(hf + 2)
        def V(txt, cost=4): ge.append(Filler(lambda: e(txt), cost, "valu", lo, dl))
        for t in [f"s_lshl_b32 s{S_T0}, s{h}, 13", f"s_add_u32 s{S_T0}, s{S_T0}, {hf*4096}", f"s_add_u32 s{S_T0}, s{S_T0}, s{S_HST}"]:
            ge.append(Filler(lambda t=t: e(t), 4, "salu", lo, dl))
        for rb in range(4):
            lo = 1024 + 256*(hf + 1) - 16 + 4*rb + 11
            for c in range(2):
                G, U = acc(4*hf + c, rb), acc(4*hf + 2 + c, rb); T = V_TMP[0:4]
                for r in range(4): V(f"v_mul_f32 v{T[r]}, v{G+r}, v{G+r}")
                for r in range(4): V(f"v_fmaak_f32 v{T[r]}, v{T[r]}, v{V_C1}, {fb(C0):#x}")
                for r in range(4): V(f"v_mul_f32 v{T[r]}, v{G+r}, v{T[r]}")
                for r in range(4):
                    V(f"v_exp_f32 v{T[r]}, v{T[r]}", 8)
                    if r % 2: V(f"v_mul_f32 v{G+r-1}, v{G+r-1}, v{U+r-1}"); V(f"v_mul_f32 v{G+r}, v{G+r}, v{U+r}")
                for r in range(4): V(f"v_add_f32 v{T[r]}, 1.0, v{T[r]}")
                for r in range(4): V(f"v_rcp_f32 v{T[r]}, v{T[r]}", 8)
                for r in range(4): V(f"v_mul_f32 v{G+r}, v{G+r}, v{T[r]}")
                D = acc(4*hf + 2, rb) + 2*c
                V(f"v_cvt_pk_bf16_f32 v{D}, v{G}, v{G+1}"); V(f"v_cvt_pk_bf16_f32 v{D+1}, v{G+2}, v{G+3}")
            ge.append(Filler(lambda rb=rb, hf=hf: e.vmem(f"buffer_store_dwordx4 {vr(acc(4*hf + 2, rb))}, v{V_L16}, {srd(S_HSRD)}, s{S_T0} offen offset:{rb*1024}{SC}", "HST"), 4, "mem", lo, dl))
    ge.append(Filler(lambda: e(f"s_lshl_b32 s{S_T0}, s{w}, 14"), 4, "salu", 1792))
    ge.append(Filler(lambda: e(f"s_add_u32 s{S_T0}, s{S_T0}, 131072"), 4, "salu", 1792))
    ge.append(Filler(lambda: e(f"v_add_u32 v{V_QW}, s{S_T0}, v{V_L16}"), 4, "valu", 1792))
    zero_hi = []
    for hf in range(2):
        for dg in (2*hf, 2*hf + 1):
            for qb in range(4):
                lo = 1536 + 256*hf + 192 + 32*(dg % 2) + 16 + 4*qb + 3 + 8
                def V(txt, cost=4, kind="valu", lo=lo): ge.append(Filler(lambda: e(txt), cost, kind, lo))
                o0, o1 = acc(2*dg, qb), acc(2*dg+1, qb)
                for r in range(4): V(f"v_mul_f32 v{o0+r}, {QSCALE:#x}, v{o0+r}"); V(f"v_mul_f32 v{o1+r}, {QSCALE:#x}, v{o1+r}")
                for d, s_ in ((o0, o0), (o0+1, o0+2), (o0+2, o1), (o0+3, o1+2)): V(f"v_cvt_pk_bf16_f32 v{d}, v{s_}, v{s_+1}")
                for r in range(4):
                    if hf: zero_hi.append(f"v_mov_b32 v{o1+r}, 0")
                    else: V(f"v_mov_b32 v{o1+r}, 0")
                ge.append(Filler(lambda o0=o0, qb=qb, dg=dg: e.ds(f"ds_write_b128 v{V_QW}, {vr(o0)} offset:{(qb*4+dg)*1024}", "QW"), 4, "mem", lo))
        for dg in (2*hf, 2*hf + 1):
            for qb in range(4):
                o0 = acc(2*dg, qb)
                for r in range(4): ge.append(Filler(lambda r=r, o0=o0, qb=qb, dg=dg: e(f"v_accvgpr_write_b32 a{A_Q + (qb*4+dg)*4 + r}, v{o0+r}"), 4, "valu", 29*64 + 4))
        ge.append(Filler(lambda: e.need(lg=["QW"]), 4, "salu", 29*64 + 4))
        for dg in (2*hf, 2*hf + 1):
            for qb in range(4):
                for r in range(4):
                    if hf: zero_hi.append(f"v_mov_b32 v{acc(2*dg, qb) + r}, 0")
                    else: ge.append(Filler(lambda r=r, qb=qb, dg=dg: e(f"v_mov_b32 v{acc(2*dg, qb) + r}, 0"), 4, "valu", 29*64 + 4))
        if hf == 0:
            for r in range(64): ge.append(Filler(lambda r=r: e(f"v_accvgpr_write_b32 a{A_DACC + r}, 0"), 4, "valu", 31*64 + 4))
    stamp(e, 1)
    e.need(vm=[("W", 0), ("A", 0)]); e.wait_all(vm=False); e("s_barrier")
    e(f"s_mul_i32 s{S_TAG}, s{S_TAG}, 0x9e3779b1\ns_add_u32 s{S_TAG}, s{S_TAG}, 0x7f4a7c15")
    stamp(e, 2)
    k = 0
    while rd[k].earliest < 0: rd[k].fn(); k += 1
    rest = e.schedule(mfmas, [rd[k:], mfill, cv, misc, rts, st, att_setup_fillers(e, poll_b), ge], flush=False)
    e("s_nop 7")
    e.c(f"left over fillers: {[len(r) for r in rest]}")
    for r in rest:
        for f in r: f.fn()
    stamp(e, 6)
    attention(e, poll_b, poll_c, zero_hi)
    phase_d(e, poll_c)
    if OPT.get("padto"):
        if "padb" in OPT: e(f"s_lshr_b32 s6, s2, 3\ns_cmp_lg_u32 s6, {OPT['padb']}\ns_cbranch_scc1 L_end")
        if "padx" in OPT: e(f"s_and_b32 s6, s2, 7\ns_cmp_lg_u32 s6, {OPT['padx']}\ns_cbranch_scc1 L_end")
        e(f"s_nop 1\nv_readlane_b32 s6, v{V_STAMP}, 0\ns_add_u32 s6, s6, {OPT['padto']*100}")
        e.label("L_pad")
        e("s_memrealtime s[4:5]\ns_waitcnt lgkmcnt(0)\ns_sub_u32 s7, s4, s6\ns_cmp_lt_i32 s7, 0\ns_cbranch_scc1 L_pad")
    else: stamp_flush(e)
    e("s_branch L_end")
    e.cold()
    for p in (poll_xn, poll_kv, poll_b, poll_c): p.spin()
    slow_path(e)
    e.label("L_end")
    e("s_endpgm")

A_Z = 212
S_FIRST = 20
def att_dma(e, which, j):
    if " m0," in e.L[-1]: e("s_nop 0")
    sr, src, ld = ((S_ASRD, S_SRCA, S_LA), (S_BSRD, S_SRCB, S_LB))[which]
    e.vmem(f"buffer_load_dwordx4 v{V_L16}, {srd(sr)}, s{S_T4 if j >= 4 else src} offen offset:{(j%4)*1024}{OPT.get('kvsc', SC)} lds", "KV")
    if which == 1 and OPT.get("boob"): ld = S_FIRST + 3
    if j == 3: e(f"s_add_u32 m0, s{ld}, 4096"); e(f"s_add_u32 s{S_T4}, s{src}, 4096")
    if j == 7:
        if which == 0: e(f"s_mov_b32 m0, s{S_FIRST + 3 if OPT.get('boob') else S_LB}\ns_add_u32 s{S_SRCA}, s{S_SRCA}, 16384")
        else: e(f"s_sub_u32 s{S_VMAXB}, s{S_VMAXB}, 16384\ns_min_u32 s{S_SRCB}, s{S_VMAXB}, s{S_VCLB}")
def d_load(e, j):
    so = S_DW if j < 4 else S_DH
    e.vmem(f"buffer_load_dwordx4 {ar(A_DOP + j*4)}, v{V_L16}, {srd(S_DSRD)}, s{so} offen offset:{(j%4)*1024}{OPT.get('kvsc', SC)}", "KV")
    if j % 4 == 3: e(f"s_add_u32 s{so}, s{so}, s{S_DINC}")
class M:
    def __init__(self, txt, tag=None): self.txt, self.tag = txt, tag
def d_mfmas():
    return [M(mf(ar(A_DACC + (mb*4+qb)*4), ar(A_DOP + mb*4), ar(A_DOP + 16 + qb*4), ar(A_DACC + (mb*4+qb)*4))) for mb in range(4) for qb in (range(4) if mb % 2 == 0 else range(3, -1, -1))]
def sm_half(e, buf, kb2):
    ex = []; cv = []
    for p in range(8):
        qb, hh = p // 2, p % 2
        r = Sreg(buf, kb2, qb) + 2*hh
        if OPT.get("noexp"): ex += [NOP, NOP]
        else: ex.append(lambda r=r: e(f"v_exp_f32 v{r}, v{r}")); ex.append(lambda r=r: e(f"v_exp_f32 v{r+1}, v{r+1}"))
        d = Preg(buf, qb) + 2*kb2 + hh
        cv.append(lambda r=r, d=d: e(f"v_perm_b32 v{d}, v{r+1}, v{r}, s{S_WUV}" if OPT.get("perm") else f"v_cvt_pk_bf16_f32 v{d}, v{r}, v{r+1}"))
    return ex, cv
def qk_mfmas(buf, half, tag="FR"):
    out = []
    for kb2 in range(2):
        kb = half*2 + kb2
        for qb in range(4):
            for kk in range(4):
                dg = kk if qb % 2 == 0 else 3 - kk
                d = vr(Sreg(buf, kb2, qb))
                c = d if kk else ("0" if kb < qb else vr(V_TD) if kb == qb else vr(V_TN))
                out.append(M(mf(d, ar(A_FB[0] + (kb2*4+dg)*4), ar(A_Q + (qb*4+dg)*4), c), (tag, 0, kb2*4)))
    return out
def pv_mfmas(buf, zero=False, order=range(8)):
    o = []
    for n_, db in enumerate(order):
        for qb in (range(4) if n_ % 2 == 0 else range(3, -1, -1)):
            d = vr(Oreg(db, qb))
            o.append(M(mf(d, ar(A_Z), ar(A_Z), "0")) if zero else M(mf(d, ar(A_FB[1] + db*4), vr(Preg(buf, qb)), d), ("FR", 1, (db // 4)*4)))
    s_ = []
    for qb in range(4):
        d = ar(A_L + qb*4)
        s_.append(M(mf(d, ar(A_Z), ar(A_Z), "0")) if zero else M(mf(d, ar(A_ONE), vr(Preg(buf, qb)), d)))
    if OPT.get("nosum"): s_ = [M("s_nop 0")]*4
    return o, s_
def frag_reads(e, fb_, off, order=range(8), tag="FR"):
    return [lambda j=j: e.ds(f"ds_read_b128 {ar(A_FB[fb_] + j*4)}, v{V_RD} offset:{off + j*1024}", (tag, fb_, (j // 4)*4)) for j in order]
NOP = lambda: None
def run(e, mfmas, gaps, nxt=None):
    if mfmas[0].tag: e.need(lg=[mfmas[0].tag])
    for i, m in enumerate(mfmas):
        if m.txt: e(m.txt)
        t = mfmas[i+1].tag if i + 1 < len(mfmas) else nxt
        if t: e.need(lg=[t])
        for f in gaps.get(i, ()): f()
def section(e, mfmas, reads, ex, cv, carry, g2, nxt=None, tail=None):
    gaps = {}
    for q in range(8):
        gaps[4*q] = [reads[q], (carry or NOP) if q == 0 else cv[q-1]]
        gaps[4*q+1] = [ex[2*q]]; gaps[4*q+2] = [g2[q]]; gaps[4*q+3] = [ex[2*q+1]]
    if len(mfmas) > 32: gaps[32] = [cv[7]]
    for k, f in (tail or {}).items(): gaps.setdefault(k, []).insert(0, f)
    run(e, mfmas, gaps, nxt)
    return cv[7] if len(mfmas) == 32 else None
PREP = [f"s_cmp_le_u32 s{S_N}, 15\ns_cselect_b32 s{S_ASRD+2}, {WS_END}, 0\ns_cselect_b32 s{S_T0}, 32768, s{S_T1}", f"s_add_u32 s{S_T3}, s{S_N}, 2\ns_xor_b32 s{S_LB}, s{S_LB}, s{S_T0}",
        f"s_cmp_ge_u32 s{S_T3}, s{S_N0}\ns_cselect_b32 s{S_BSRD+2}, s{S_ASRD+2}, 0" + (f"\ns_cselect_b32 s{S_FIRST+3}, s{S_LB}, s{S_T1}" if OPT.get("boob") else ""), f"s_xor_b32 s{S_LA}, s{S_LA}, s{S_T0}\ns_mov_b32 m0, s{S_LA}"]
PREP0 = f"s_mov_b32 s{S_T1}, 0x30000"
LR = V_TMP[10:14]
def check_lines(ret, qt):
    return [f"v_min3_f32 v{V_LIM+1}, v{LR[0]}, v{LR[1]}, v{LR[2]}\nv_add_f32 v{V_LIM}, v{LR[0]}, v{LR[1]}",
            f"v_add_f32 v{V_LIM}, v{V_LIM}, v{LR[2]}\nv_min_f32 v{V_LIM+1}, v{V_LIM+1}, v{LR[3]}",
            f"s_mov_b32 s{S_RET}, {ret}\nv_add_f32 v{V_LIM}, v{V_LIM}, v{LR[3]}\nv_cmp_nle_f32 vcc, 0x17800000, v{V_LIM+1}",
            f"s_mov_b64 s[{S_FL}:{S_FL+1}], vcc\ns_mov_b32 s{S_CNT}, s{qt}\nv_cmp_nge_f32 vcc, {OPT.get('lhi', 0x67800000):#x}, v{V_LIM}",
            f"s_or_b64 vcc, vcc, s[{S_FL}:{S_FL+1}]\n" + ("s_nop 0" if OPT.get("noslow") else "s_cbranch_vccnz L_slow")]
def norm_items(e, dbs, sbase):
    it = []
    for dg in sorted({d // 2 for d in dbs}):
        it.append((lambda dg=dg: e(f"s_add_u32 s{S_T0}, s{sbase}, {dg*4096}"), 0, 2*dg+1))
        for qb in range(4):
            o0, o1 = Oreg(2*dg, qb), Oreg(2*dg+1, qb)
            for r in range(4):
                for o in (o0, o1): it.append((lambda o=o, r=r, qb=qb: e(f"v_mul_f32 v{o+r}, v{o+r}, v{LR[qb]}"), 4, 2*dg+1))
            for d, s_ in ((o0, o0), (o0+1, o0+2), (o0+2, o1), (o0+3, o1+2)): it.append((lambda d=d, s_=s_: e(f"v_cvt_pk_bf16_f32 v{d}, v{s_}, v{s_+1}"), 4, 2*dg+1))
            it.append((lambda o0=o0, qb=qb: e.vmem(f"buffer_store_dwordx4 {vr(o0)}, v{V_L16}, {srd(S_WS)}, s{S_T0} offen offset:{qb*1024}{SC}", "CST"), 8, 2*dg+1))
    return it
def emit_items(items, extra=()):
    extra = list(extra)
    for f, c, _ in items:
        f()
        if c == 8:
            for _ in range(2):
                if extra: extra.pop(0)()
    for f in extra: f()
def sm_tail(e, order=range(8)):
    ex, cv = sm_half(e, 1, 1)
    for f in frag_reads(e, 1, 16384, order): f()
    for p in range(8):
        ex[2*p](); ex[2*p+1]()
        if p: cv[p-1]()
    e("s_nop 0"); cv[7]()

S_WOo, S_AC = S_OFF0, S_OFFA
WSLOT = [14, 15, 4, 5, 13, 12, 6, 7, 0, 1, 2, 3, -2, -3, 8, 9, 10, 11]
NWS = len(WSLOT)
def wreg(n, q):
    s_ = WSLOT[n % NWS]
    return ar(s_*16 + q*4) if s_ >= 0 else vr(-s_*16 + q*4)
def wo_load(e, n, q):
    e.vmem(f"buffer_load_dwordx4 {wreg(n, q)}, v{V_L16}, {srd(S_WS)}, s{S_WOo} offen offset:{q*1024}{SC}", ("WO", n))
    if q == 3: e(f"s_add_u32 s{S_WOo}, s{S_WOo}, 4096")

V_TRI = (9, 10, 11, 30)
V_SIG, V_TAGV, V_QA, V_ONE = 12, 13, 14, 15
S_D1, S_D2, S_M = S_FIRST + 2, S_FIRST, S_FIRST + 1
def att_setup_fillers(e, poll_b):
    i, h, w = S_BLK, S_HEAD, S_WAVE
    out = []
    def add(lo, hi, txt):
        for t in txt.split("\n"):
            t = t.strip()
            out.append(Filler(lambda t=t: e(t.replace(" ! ", "\n")), 4, "salu" if t.startswith("s_") else "valu", lo, hi))
    a, b, c, d = V_TRI; pv = poll_b.voff; t = S_M
    lo, hi = 17*64 + 10, 20*64
    add(lo, hi, f"""v_lshrrev_b32 v{d}, 4, v{V_LANE}
    v_lshlrev_b32 v{d}, 2, v{d}
    v_and_b32 v{a}, 15, v{V_LANE}
    v_sub_u32 v{a}, v{a}, v{d}
    v_subrev_u32 v{b}, 1, v{a}
    v_subrev_u32 v{c}, 2, v{a}
    v_subrev_u32 v{d}, 3, v{a}""")
    for r in V_TRI: add(lo, hi, f"v_ashrrev_i32 v{r}, 31, v{r}\nv_and_b32 v{r}, {NEGINF:#x}, v{r}")
    add(lo, hi, f"""s_lshr_b32 s{t}, s{h}, 1
    s_sub_u32 s{S_D1}, 15, s{t}
    s_min_u32 s{t}, s{t}, s{S_D1}
    s_lshl_b32 s{t}, s{t}, 9
    s_add_u32 s{t}, s{t}, {WS_FB}
    v_bfe_u32 v{pv}, v{V_LANE}, 3, 2
    v_lshlrev_b32 v{pv}, 5, v{pv}
    v_and_or_b32 v{pv}, v{V_LANE}, 7, v{pv}
    v_lshlrev_b32 v{pv}, 2, v{pv}
    v_add_u32 v{pv}, s{t}, v{pv}
    s_lshl_b32 s{S_TRANS}, s{i}, 1
    s_add_u32 s{S_TRANS}, s{S_TRANS}, s{w}
    s_sub_u32 s{S_TRANS}, s{S_TRANS}, 1
    s_sub_u32 s{S_D1}, s{S_TRANS}, 1
    s_add_u32 s{S_D2}, s{S_TRANS}, 1
    s_cmp_eq_u32 s{i}, 7 ! s_cselect_b32 s{t}, 16, 99
    s_cmp_eq_u32 s{w}, 0 ! s_cselect_b32 s{t}, s{t}, 99
    s_cmp_lt_u32 s{w}, 2 ! s_cselect_b32 s{S_D1}, s{t}, s{S_D1}
    s_cmp_lt_u32 s{w}, 2 ! s_cselect_b32 s{S_D2}, 99, s{S_D2}
    s_cmp_lt_u32 s{w}, 2 ! s_cselect_b32 s{S_TRANS}, 17, s{S_TRANS}
    s_sub_u32 s{S_VMAXB}, s{S_VMAXB}, 16384
    s_min_u32 s{S_SRCB}, s{S_VMAXB}, s{S_VCLB}
    s_lshr_b32 s{t}, s2, 3
    s_lshl_b32 s{t}, s{t}, 5
    s_and_b32 s{S_FIRST+3}, s2, 7
    s_add_u32 s{t}, s{t}, s{S_FIRST+3}
    s_lshl_b32 s{t}, s{t}, 2
    s_add_u32 s{t}, s{t}, {WS_FB}
    s_sub_u32 s{S_FIRST+3}, 3, s{w}
    s_lshl_b32 s{S_FIRST+3}, s{S_FIRST+3}, 14
    s_add_u32 s{S_FIRST+3}, s{S_FIRST+3}, 131072""")
    lo, hi = 28*64, 31*64
    add(lo, hi, f"""v_mov_b32 v{V_TAGV}, s{S_TAG}
    v_add_u32 v{V_SIG}, s{S_WL}, v{V_LANE}
    v_min_u32 v{V_SIG}, 1, v{V_SIG}
    v_lshlrev_b32 v{V_SIG}, 30, v{V_SIG}
    v_add_u32 v{V_SIG}, s{t}, v{V_SIG}
    v_add_u32 v{V_QA}, s{S_FIRST+3}, v{V_L16}
    v_and_b32 v{V_ONE}, 3, v{V_LANE}
    v_subrev_u32 v{V_ONE}, 1, v{V_ONE}
    v_ashrrev_i32 v{V_ONE}, 31, v{V_ONE}
    v_and_b32 v{V_ONE}, 0x3f803f80, v{V_ONE}
    s_mov_b32 s{S_T2}, 1
    s_mov_b32 s{S_WUV}, 0x07060302
    s_mov_b32 s{S_N}, -1
    s_mov_b32 s{S_DSRD+2}, 0""")
    return out

def Sq(c): return V_S[0] + c*4
def ring(g, j): return A_FB[0] + (g % 4)*16 + j*4
def qk2(tag="FR"):
    out = []
    for c in range(16):
        kb, qb = c // 4, c % 4
        for kk in range(4):
            dg = kk if c % 2 == 0 else 3 - kk
            d = vr(Sq(c))
            cc = d if kk else ("0" if kb < qb else vr(V_TD) if kb == qb else vr(V_TN))
            out.append(M(mf(d, ar(ring(kb, dg)), ar(A_Q + (qb*4+dg)*4), cc), (tag, kb)))
    return out
def pv2(order=(0, 1, 2, 3)):
    o = []; c = 0
    for n, p in enumerate(order):
        for x in range(2):
            for qb in (range(4) if x == 0 else range(3, -1, -1)):
                d = vr(Oreg(2*p + x, qb))
                for kg in ((0, 1) if c % 2 == 0 else (1, 0)):
                    o.append(M(mf(d, ar(ring(n, x*2 + kg)), vr(Preg(kg, qb)), d), ("FR", 4 + n)))
                c += 1
    s_ = [M(mf(ar(A_L + qb*4), ar(A_ONE), vr(Preg(kg, qb)), ar(A_L + qb*4))) for qb in range(4) for kg in range(2)]
    return o, s_
def kreads(e, g, tag="FR"): return [lambda j=j: e.ds(f"ds_read_b128 {ar(ring(g, j))}, v{V_RD} offset:{g*4096 + j*1024}", (tag, g)) for j in range(4)]
def vreads(e, n, p): return [lambda j=j: e.ds(f"ds_read_b128 {ar(ring(n, j))}, v{V_RD} offset:{16384 + (j % 2)*8192 + (2*p + j // 2)*1024}", ("FR", 4 + n)) for j in range(4)]
def cvt2(c, hh): return f"v_cvt_pk_bf16_f32 v{Preg(c // 8, c % 4) + 2*((c // 4) % 2) + hh}, v{Sq(c) + 2*hh}, v{Sq(c) + 2*hh + 1}"
def exp2(k): return f"v_exp_f32 v{V_S[0] + k}, v{V_S[0] + k}"
def drain_head(e, order):
    e.need(lg=[("FR", 1)])
    rd_ = [f for n, p in enumerate(order) for f in vreads(e, n, p)]
    for f in rd_[:8]: f()
    for c in range(1, 16):
        e(cvt2(c, 0)); e(cvt2(c, 1))
    for f in rd_[8:]: f()

def attention(e, poll_b, poll_c, zero_hi):
    i, h, w = S_BLK, S_HEAD, S_WAVE
    T = lambda t: (lambda: e(t))
    A = [lambda j=j: att_dma(e, 0, j) for j in range(8)]; B = [lambda j=j: att_dma(e, 1, j) for j in range(8)]; D = [lambda j=j: d_load(e, j) for j in range(8)]
    e(f"v_add_u32 v{V_RD}, 65536, v{V_L16}")
    e.need(vm=[("KV", 0)], lg=["QW"])
    e("s_barrier")
    for g in range(2):
        for f in kreads(e, g, "F0"): f()
    MS = [f"s_add_u32 s{S_N}, s{S_N}, 1", f"s_cmp_eq_u32 s{S_N}, s{S_D1}\ns_cselect_b32 s{S_M}, -1, 0", f"s_cmp_eq_u32 s{S_N}, s{S_D2}\ns_cselect_b32 s{S_M}, -1, s{S_M}",
          f"v_and_b32 v{V_TD}, s{S_M}, v{V_TRI[0]}\nv_and_b32 v{V_TD+1}, s{S_M}, v{V_TRI[1]}", f"v_and_b32 v{V_TD+2}, s{S_M}, v{V_TRI[2]}\nv_and_b32 v{V_TD+3}, s{S_M}, v{V_TRI[3]}",
          f"s_and_b32 s{S_M}, s{S_M}, {NEGINF:#x}\nv_mov_b32 v{V_TN}, s{S_M}\nv_mov_b32 v{V_TN+1}, s{S_M}", f"v_mov_b32 v{V_TN+2}, s{S_M}\nv_mov_b32 v{V_TN+3}, s{S_M}"]
    for t in MS: e(t)
    e(f"s_xor_b32 s{S_LA}, s{S_LA}, 32768")
    XRD = f"v_xor_b32 v{V_RD}, 32768, v{V_RD}"
    CV0 = cvt2(0, 0) + "\n" + cvt2(0, 1)
    def itstamp(dn=0):
        if OPT.get("itst"):
            e(f"s_memtime s[4:5]\nv_subrev_u32 v5, {14 - dn}, v{V_LANE}\nv_cmp_eq_u32 vcc, s{S_N}, v5\ns_waitcnt lgkmcnt(0)\nv_mov_b32 v5, s4\nv_cndmask_b32 v{V_STAMP}, v{V_STAMP}, v5, vcc")
    stamp(e, 7)
    init = [f"v_accvgpr_write_b32 a{A_L + r}, 0" for r in range(16)] + [f"v_accvgpr_write_b32 a{A_Z + r}, 0" for r in range(4)]
    init += [f"v_accvgpr_write_b32 a{A_ONE + r}, v{V_ONE}" for r in range(4)] + zero_hi
    for _ in range(8): e(init.pop())
    gaps = {}; ne = 0
    kr = kreads(e, 2, "F0") + kreads(e, 3, "F0")
    pre = [PREP0] + PREP + [XRD]
    for k in range(64):
        g = gaps[k] = []
        if k % 2 == 0 and kr: g.append(kr.pop(0)); g.append(T(init.pop()))
        elif k >= 52 and k % 2 == 0: g.append(T(pre.pop(0)))
        elif init: g.append(T(init.pop())); g.append(T(init.pop()))
        else: g.append(T(exp2(ne))); ne += 1
    assert not init and not pre
    gaps[63].insert(0, lambda: e.wait_all())
    run(e, qk2("F0"), gaps)
    e("s_barrier")
    itstamp()
    mem = [f for p in zip(A, kreads(e, 0) + kreads(e, 1)) for f in p] + B[:4]
    while mem or ne < 64:
        if mem: mem.pop(0)()
        for _ in range(3):
            if ne < 64: e(exp2(ne)); ne += 1
    for t in MS: e(t)
    e(CV0)
    e.need(lg=[("FR", 0)])
    top = [("FR", 1)]*4
    assert e.lgkm == top, e.lgkm
    e("s_branch L_special")
    e(".p2align 6")
    e.label("L_body")
    def loop_body(first):
        e.lgkm = list(top)
        gaps = {k: [] for k in range(152)}
        rds = kreads(e, 2) + kreads(e, 3) + ([] if first else vreads(e, 0, 0) + vreads(e, 1, 1))
        for n, f in enumerate(rds): gaps[4*n].append(f)
        for n, f in enumerate(kreads(e, 0) + kreads(e, 1)): gaps[100 + 4*n].append(f)
        for n, f in enumerate(B[4:] + D): gaps[2 + 4*n].append(f)
        for n, f in enumerate(A + B[:4]): gaps[98 + 4*n].append(f)
        if not first:
            for n, f in enumerate(vreads(e, 2, 2) + vreads(e, 3, 3)): gaps[64 + 2*n].append(f)
            for c in range(1, 16):
                gaps[4*(c-1)].append(T(cvt2(c, 0)))
                gaps[1 + 2*((c - 1)//2)].append(T(cvt2(c, 1)))
        for k in range(64): gaps[17 + 2*k].append(T(exp2(k)))
        gaps[62].append(T(PREP0))
        for n, t in enumerate(PREP + [XRD] + MS[:3]): gaps[80 + 2*n].append(T(t))
        for n, t in enumerate(MS[3:]): gaps[132 + 4*n].append(T(t))
        gaps[146].append(T(CV0)); gaps[150].append(T(f"s_cmp_eq_u32 s{S_N}, s{S_T2}"))
        gaps[95].insert(0, lambda: e.wait_all())
        gaps[95].append(lambda: (e("s_barrier"), itstamp(1)))
        o, s_ = pv2()
        if first:
            zo, zl = pv_mfmas(1, zero=True)
            o = [M("")]*32 + zo; s_ = zl + [M("")]*4
        run(e, qk2() + o + s_ + d_mfmas(), gaps, nxt=("FR", 0))
        assert e.lgkm == top, e.lgkm
        e("s_cbranch_scc0 L_body")
    loop_body(False)
    e.label("L_special")
    e(f"s_cmp_gt_u32 s{S_N}, 3\ns_mov_b32 s{S_T2}, s{S_TRANS}\ns_cbranch_scc1 L_late")
    e(f"buffer_store_dword v{V_TAGV}, v{V_SIG}, {srd(S_WS)}, 0 offen sc1")
    e(poll_b.test())
    e(f"""v_mov_b32 v{V_SIG}, 0x40000000
    s_cselect_b32 s{S_T0}, 99, 3
    s_cmp_eq_u32 s{S_N}, s{S_T0}
    s_cbranch_scc1 L_spin_b""")
    e.label("L_ok_b")
    e(poll_b.ld)
    e(f"""s_add_u32 s{S_T0}, s{S_N}, 1
    s_cmp_eq_u32 s{S_N}, 3
    s_cselect_b32 s{S_DSRD+2}, {WS_END}, 0
    s_cselect_b32 s{S_DINC}, 4096, 0
    s_cselect_b32 s{S_T2}, s{S_TRANS}, s{S_T0}""")
    e.label("L_late")
    e(f"s_cmp_eq_u32 s{S_N}, s{S_D2}\ns_cbranch_scc1 L_first")
    e(f"s_cmp_eq_u32 s{S_N}, s{S_TRANS}\ns_cbranch_scc0 L_body")
    e(f"s_cmp_eq_u32 s{S_N}, 17\ns_cbranch_scc0 L_trans")
    LRD = [f"v_accvgpr_read_b32 v{LR[0]}, a{A_L}\nv_accvgpr_read_b32 v{LR[1]}, a{A_L+4}", f"v_accvgpr_read_b32 v{LR[2]}, a{A_L+8}\nv_accvgpr_read_b32 v{LR[3]}, a{A_L+12}"]
    def cold():
        e.label("L_trans")
        e.lgkm = list(top); e.vm = ["KV"]*13
        qr = [lambda j=j: e.ds(f"ds_read_b128 {ar(A_Q + j*4)}, v{V_QA} offset:{j*1024}", "QS") for j in range(16)]
        rcp = [f"v_rcp_f32 v{LR[qb]}, v{LR[qb]}" for qb in range(4)]
        drain_head(e, (0, 1, 2, 3))
        o, s_ = pv2()
        gaps = {k: [f] for k, f in enumerate(B[4:] + D)}
        for k, t in enumerate(LRD + check_lines(0, S_QT) + rcp): gaps[13 + k] = [T(t)]
        items = norm_items(e, range(8), S_CTXLO)
        XB = f"v_xor_b32 v{V_RD}, {32768 + 65536}, v{V_RD}"
        def fill(g, k, left):
            while items and items[0][1] <= left and 8 + 8*(items[0][2] + 1) - 1 + 5 <= k:
                f, c, _ = items.pop(0); g.append(f); left -= c
        gaps[24] = [T(XB)]
        for k in range(25, 72):
            gaps[k] = []; fill(gaps[k], k, 8)
        run(e, s_ + o, gaps)
        def post():
            e(PREP0)
            for t in PREP: e(t.replace(f"s{S_T0}", f"s{S_T5}"))
            e.need(vm=["KV"])
            e("s_barrier")
            itstamp()
            mem = A + B[:4]; lds = qr + kreads(e, 0) + kreads(e, 1)
            gaps = {k: [mem.pop(0)] if k % 4 == 0 else [lds.pop(0), lds.pop(0)] for k in range(16)}
            run(e, d_mfmas(), gaps)
            extra = []
            for f in mem: extra += [f, NOP]
            emit_items(items, extra) if items else [(f(), e("s_nop 0")) for f in mem]
            del items[:]
            for t in MS: e(t)
            e(f"s_mov_b32 s{S_TRANS}, 17")
            e.need(lg=[("FR", 0)])
            assert e.lgkm == top, e.lgkm
            e("s_branch L_special")
        post()
        e.label("L_first")
        e(f"s_cmp_eq_u32 s{S_N}, 17\ns_cbranch_scc1 L_fzero")
        loop_body(True)
        e("s_branch L_special")
        e.label("L_fzero")
        for r in list(range(V_O, V_O + 128)) + list(range(V_S[0], V_S[0] + 64)) + [Preg(0, 0), Preg(0, 0) + 1]: e(f"v_mov_b32 v{r}, 0")
        for r in range(16): e(f"v_accvgpr_write_b32 a{A_L + r}, 0")
        e("s_branch L_final")
        e.label("L_ret0")
        e.lgkm = []; e.vm = []
        for t in rcp: e(t)
        e(XB)
        emit_items(norm_items(e, range(8), S_CTXLO))
        post()
    e.cold = cold
    e.label("L_final")
    stamp(e, 8)
    tw, trd, tl, tlr = V_TMP[0:4]
    e(f"""s_lshl_b32 s{S_T0}, s{w}, 17
    s_lshl_b32 s{S_AC}, s{h}, 19
    s_add_u32 s{S_AC}, s{S_AC}, s{S_T0}
    s_add_u32 s{S_AC}, s{S_AC}, {WS_CTX}
    s_lshl_b32 s{S_WOo}, s{i}, 19
    s_add_u32 s{S_WOo}, s{S_WOo}, s{S_T0}
    s_add_u32 s{S_WOo}, s{S_WOo}, {WS_WOF}
    s_and_b32 s{S_T0}, s{w}, 1
    s_lshl_b32 s{S_T0}, s{S_T0}, 14
    s_lshr_b32 s{S_T1}, s{w}, 1
    s_lshl_b32 s{S_T1}, s{S_T1}, 16
    s_add_u32 s{S_T0}, s{S_T0}, s{S_T1}
    v_add_u32 v{tw}, s{S_T0}, v{V_L16}
    v_xor_b32 v{trd}, {65536 + 16384}, v{tw}
    s_add_u32 s{S_T0}, s{S_WL}, {144*1024}
    v_add_u32 v{tl}, s{S_T0}, v{V_L16}
    v_xor_b32 v{tlr}, 3072, v{tl}
    s_cmp_ge_u32 s{w}, 2
    s_cbranch_scc1 L_mergeB""")
    for role in range(2):
        keep = list(range(4)) if role == 0 else list(range(4, 8))
        send = list(range(4, 8)) if role == 0 else list(range(4))
        if role == 1: e.label("L_mergeB")
        e.lgkm = list(top); e.vm = ["KV"]*13
        order = (2, 3, 0, 1) if role == 0 else (0, 1, 2, 3)
        drain_head(e, order)
        o, s_ = pv2(order)
        gaps = {2*k: [lambda k=k: wo_load(e, k // 4, k % 4)] for k in range(8)}
        for k in range(8): gaps[45 + 3*k] = [lambda k=k: wo_load(e, 2 + k // 4, k % 4)]
        gaps[17] = [T(LRD[0])]; gaps[18] = [T(LRD[1])]
        gaps[19] = [lambda: e.ds(f"ds_write_b128 v{tl}, {vr(LR[0])}")]
        for n in range(16): gaps[23 + 3*n] = [lambda n=n: e.ds(f"ds_write_b128 v{tw}, {vr(V_O + send[0]*16 + n*4)} offset:{n*1024}")]
        if OPT.get("fst"): stamp(e, 14)
        run(e, s_ + o, gaps)
        if OPT.get("fst"): stamp(e, 15)
        e.wait_all(vm=False)
        e("s_barrier")
        if OPT.get("fst"): stamp(e, 16)
        e.ds(f"ds_read_b128 {vr(V_TMP[4])}, v{tlr}", "ML")
        for n in range(16):
            e.ds(f"ds_read_b128 {vr(V_S[0] + n*4)}, v{trd} offset:{n*1024}", ("MO", n // 4))
            if n % 2: wo_load(e, 4 + n // 8, (n // 2) % 4)
        e.need(lg=["ML"])
        for qb in range(4): e(f"v_add_f32 v{LR[qb]}, v{LR[qb]}, v{V_TMP[4] + qb}")
        for t in check_lines(1 + role, S_QTHI): e(t)
        for n in range(16):
            e.need(lg=[("MO", n // 4)])
            for r in range(4):
                o = V_O + keep[0]*16 + n*4 + r
                e(f"v_add_f32 v{o}, v{o}, v{V_S[0] + n*4 + r}")
        e.label(f"L_ret{1 + role}")
        for q in range(4): wo_load(e, 6, q)
        if OPT.get("fst"): stamp(e, 17)
        for qb in range(4): e(f"v_rcp_f32 v{LR[qb]}, v{LR[qb]}")
        e(f"v_add_u32 v{tw}, 32768, v{tw}")
        emit_items(norm_items(e, keep, S_CTXHI))
        if role == 0: e("s_branch L_attdone")
    e.label("L_attdone")
    stamp(e, 9)

def slow_path(e):
    M = V_P[1]; AL = V_P[1] + 4; T = V_P[1] + 8; QI = V_P[1] + 12; NI = V_P[1] + 13
    u, nu, ko, vo = S_T0, S_T1, S_T3, S_T5
    e.label("L_slow")
    e.lgkm = []; e.vm = []
    e("s_waitcnt vmcnt(0) lgkmcnt(0)")
    e(f"""s_lshl_b32 s{nu}, s{S_CNT}, 1
    s_add_u32 s{nu}, s{nu}, 2
    s_lshl_b32 s{ko}, s{S_HEAD}, 19
    s_add_u32 s{vo}, s{ko}, {WS_V}
    s_add_u32 s{ko}, s{ko}, {WS_K}
    s_lshl_b32 s{S_CNT}, s{S_CNT}, 6
    v_lshrrev_b32 v{T}, 4, v{V_LANE}
    v_lshlrev_b32 v{T}, 2, v{T}
    v_and_b32 v{QI}, 15, v{V_LANE}
    v_sub_u32 v{QI}, v{QI}, v{T}
    v_add_u32 v{QI}, s{S_CNT}, v{QI}
    v_mov_b32 v{NI}, {NEGINF:#x}
    s_mov_b32 s{u}, 0""")
    for r in range(128): e(f"v_mov_b32 v{V_O + r}, 0")
    for qb in range(4): e(f"v_mov_b32 v{M+qb}, v{NI}\nv_mov_b32 v{LR[qb]}, 0")
    e.label("L_slowl")
    def ld8(so):
        for j in range(8):
            if j == 4: e(f"s_add_u32 s{so}, s{so}, 4096")
            e.vmem(f"buffer_load_dwordx4 {ar(A_FB[1] + j*4)}, v{V_L16}, {srd(S_WS)}, s{so} offen offset:{(j%4)*1024}{SC}", "SL")
        e(f"s_add_u32 s{so}, s{so}, 4096")
    ld8(ko)
    e.wait_all()
    for kb2 in range(2):
        for dg in range(4):
            for qb in range(4):
                d = vr(Sreg(0, kb2, qb))
                e(mf(d, ar(A_FB[1] + (kb2*4+dg)*4), ar(A_Q + (qb*4+dg)*4), d if dg else "0"))
    e("s_nop 7")
    ld8(vo)
    for kb2 in range(2):
        for qb in range(4):
            for r in range(4):
                s = Sreg(0, kb2, qb) + r
                e(f"v_cmp_gt_i32 vcc, {16*kb2 + r - 16*qb}, v{QI}\ns_nop 1\nv_cndmask_b32 v{s}, v{s}, v{NI}, vcc")
    e(f"v_subrev_u32 v{QI}, 32, v{QI}")
    for qb in range(4):
        a, b = Sreg(0, 0, qb), Sreg(0, 1, qb)
        e(f"""v_max3_f32 v{T}, v{a}, v{a+1}, v{a+2}
        v_max3_f32 v{T}, v{T}, v{a+3}, v{b}
        v_max3_f32 v{T}, v{T}, v{b+1}, v{b+2}
        v_max3_f32 v{T}, v{T}, v{b+3}, v{M+qb}
        v_mov_b32 v{T+1}, v{T}
        s_nop 1
        v_permlane32_swap_b32 v{T}, v{T+1}
        v_max_f32 v{T}, v{T}, v{T+1}
        v_mov_b32 v{T+1}, v{T}
        s_nop 1
        v_permlane16_swap_b32 v{T}, v{T+1}
        v_max_f32 v{T}, v{T}, v{T+1}
        v_sub_f32 v{AL+qb}, v{M+qb}, v{T}
        v_mov_b32 v{M+qb}, v{T}
        v_exp_f32 v{AL+qb}, v{AL+qb}""")
        for s in list(range(a, a+4)) + list(range(b, b+4)):
            e(f"v_sub_f32 v{s}, v{s}, v{T}")
        for s in list(range(a, a+4)) + list(range(b, b+4)):
            e(f"v_exp_f32 v{s}, v{s}")
        e(f"v_mul_f32 v{LR[qb]}, v{LR[qb]}, v{AL+qb}")
        for s in list(range(a, a+4)) + list(range(b, b+4)):
            e(f"v_add_f32 v{LR[qb]}, v{LR[qb]}, v{s}")
        p = Preg(0, qb)
        e(f"v_cvt_pk_bf16_f32 v{p}, v{a}, v{a+1}\nv_cvt_pk_bf16_f32 v{p+1}, v{a+2}, v{a+3}\nv_cvt_pk_bf16_f32 v{p+2}, v{b}, v{b+1}\nv_cvt_pk_bf16_f32 v{p+3}, v{b+2}, v{b+3}")
        for db in range(8):
            for r in range(4): e(f"v_mul_f32 v{Oreg(db, qb)+r}, v{Oreg(db, qb)+r}, v{AL+qb}")
    e.wait_all()
    e("s_nop 1")
    for db in range(8):
        for qb in range(4):
            d = vr(Oreg(db, qb))
            e(mf(d, ar(A_FB[1] + db*4), vr(Preg(0, qb)), d))
    e(f"s_add_u32 s{u}, s{u}, 1\ns_cmp_lt_u32 s{u}, s{nu}\ns_nop 7\ns_cbranch_scc1 L_slowl")
    for qb in range(4):
        e(f"""v_mov_b32 v{T}, v{LR[qb]}
        s_nop 1
        v_permlane32_swap_b32 v{LR[qb]}, v{T}
        v_add_f32 v{LR[qb]}, v{LR[qb]}, v{T}
        v_mov_b32 v{T}, v{LR[qb]}
        s_nop 1
        v_permlane16_swap_b32 v{LR[qb]}, v{T}
        v_add_f32 v{LR[qb]}, v{LR[qb]}, v{T}""")
    e(f"s_cmp_eq_u32 s{S_RET}, 0\ns_cbranch_scc1 L_ret0\ns_cmp_eq_u32 s{S_RET}, 1\ns_cbranch_scc1 L_ret1\ns_branch L_ret2")


def phase_d(e, poll_c):
    qt, mt, w = S_HEAD, S_BLK, S_WAVE
    V_XO, V_X, V_G = 4, 8, 17
    V_CR, NCR = 64, 4
    V_AS, V_AD = 128, 192
    t0, t1 = 24, 25
    S_XO = S_XNB
    for j in range(16):
        e.ds(f"ds_write_b128 v{V_TMP[0]}, {ar(A_DACC + j*4)} offset:{((j%4)*4 + j//4)*1024}", "DW")
        if j < OPT.get("wpre", 12): wo_load(e, 7 + j // 4, j % 4)
    e(f"""v_and_b32 v{t0}, 15, v{V_LANE}
    v_lshlrev_b32 v{t0}, 10, v{t0}
    v_lshrrev_b32 v{t1}, 4, v{V_LANE}
    v_lshl_add_u32 v{V_XO}, v{t1}, 3, v{t0}
    s_lshl_b32 s{S_XO}, s{qt}, 16
    s_lshl_b32 s{S_T0}, s{w}, 14
    s_add_u32 s{S_XO}, s{S_XO}, s{S_T0}
    s_lshl_b32 s{S_T1}, s{mt}, 7
    s_add_u32 s{S_XO}, s{S_XO}, s{S_T1}
    v_subrev_u32 v{t1}, 32768, v{V_TMP[0]}
    s_lshl_b32 s{S_T0}, s{w}, 12
    v_add_u32 v{t0}, s{S_T0}, v{V_L16}
    v_add_u32 v{V_G}, 65536, v{t0}""")
    if OPT.get("pollw", 1):
        v = poll_c.voff
        e(f"""s_lshr_b32 s{S_T0}, s{qt}, 1
        s_sub_u32 s{S_T1}, 15, s{S_T0}
        s_min_u32 s{S_T0}, s{S_T0}, s{S_T1}
        s_lshl_b32 s{S_T0}, s{S_T0}, 9
        s_lshl_b32 s{S_T1}, s{w}, 3
        s_add_u32 s{S_T0}, s{S_T0}, s{S_T1}
        s_add_u32 s{S_T0}, s{S_T0}, {WS_FC}
        v_and_b32 v{v}, 3, v{V_LANE}
        v_lshlrev_b32 v{v}, 7, v{v}
        v_and_or_b32 v{v}, v{V_LANE}, 4, v{v}
        v_add_u32 v{v}, s{S_T0}, v{v}""")
    else: poll32_addr(e, poll_c.voff, WS_FC)
    if OPT.get("fst"): stamp(e, 18)
    e.need(vm=["CST"]); e.wait_all(vm=False)
    if OPT.get("fst"): stamp(e, 19)
    e("s_barrier")
    if OPT.get("fst"): stamp(e, 20)
    signal(e, sig_lin(WS_FC), 26)
    for sw in range(4):
        for mb in range(4): e.ds(f"ds_read_b128 {vr(V_AD + (sw*4+mb)*4)}, v{V_G if sw >= 2 else t0} offset:{32768 + (sw % 2)*16384 + mb*1024}", ("R", sw))
    for mb in range(4):
        e.vmem(f"buffer_load_dwordx2 v[{V_X+2*mb}:{V_X+2*mb+1}], v{V_XO}, {srd(S_X)}, s{S_XO} offen offset:{mb*32}", "X")
    wl = [lambda n=n, q=q: wo_load(e, n, q) for n in range(7, NWS) for q in range(4)][OPT.get("wpre", 12):]
    cnt = [0]
    def V(t):
        e(t); cnt[0] += 1
        if cnt[0] % 6 == 0 and wl: wl.pop(0)()
    def rnd(base, pk):
        for j in range(8): V(f"v_cvt_pk_bf16_f32 v{pk+j}, v{base+2*j}, v{base+2*j+1}")
        for j in range(8): V(f"v_lshlrev_b32 v{base+2*j}, 16, v{pk+j}"); V(f"v_and_b32 v{base+2*j+1}, 0xffff0000, v{pk+j}")
    def red(base, tag):
        e.need(lg=[(tag, 1)])
        for r in range(16): V(f"v_add_f32 v{base+r}, v{base+r}, v{base+16+r}")
        e.need(lg=[(tag, 3)])
        for r in range(16): V(f"v_add_f32 v{base+32+r}, v{base+32+r}, v{base+48+r}")
        for r in range(16): V(f"v_add_f32 v{base+r}, v{base+r}, v{base+32+r}")
    T = V_AD + 16; PK = V_AD + 32
    red(V_AD, "R"); rnd(V_AD, PK)
    for r in range(16): V(f"v_mul_f32 v{T+r}, 0xbfb8aa3b, v{V_AD+r}")
    for r in range(16): V(f"v_exp_f32 v{T+r}, v{T+r}")
    for r in range(16): V(f"v_add_f32 v{T+r}, 1.0, v{T+r}")
    for r in range(16): V(f"v_rcp_f32 v{T+r}, v{T+r}")
    for r in range(16): V(f"v_mul_f32 v{V_AD+r}, v{V_AD+r}, v{T+r}")
    rnd(V_AD, PK)
    while len(wl) > 8: wl.pop(0)()
    poll_c.issue()
    while wl: wl.pop(0)()
    stamp(e, 10); poll_c.check(); stamp(e, 11)
    def c_load(n, q):
        e.vmem(f"buffer_load_dwordx4 {vr(V_CR + (n % NCR)*16 + q*4)}, v{V_L16}, {srd(S_WS)}, s{S_AC} offen offset:{q*1024}{SC}", ("C", n))
        if q == 3: e(f"s_add_u32 s{S_AC}, s{S_AC}, 4096")
    if OPT.get("dchain", 0):
        for n in range(2):
            for q in range(4): c_load(n, q)
        for n in range(0, 32, 2):
            ld = []
            for t in range(2):
                if n + 2 + t < 32: ld += [lambda q=q, t=t: c_load(n + 2 + t, q) for q in range(4)]
            for t in range(2):
                if n >= 2 and n + NWS - 2 + t < 32: ld += [lambda q=q, t=t: wo_load(e, n + NWS - 2 + t, q) for q in range(4)]
            for _ in range(min(4, len(ld))): ld.pop(0)()
            e.need(vm=[("C", n), ("C", n + 1), ("WO", n), ("WO", n + 1)])
            for k in range(32):
                c = k // 2; mb = c // 4; qb = c % 4 if mb % 2 == 0 else 3 - c % 4
                t = k % 2 if c % 2 == 0 else 1 - k % 2
                d = vr(V_AS + (mb*4 + qb)*4)
                e(mf(d, wreg(n + t, mb), vr(V_CR + ((n + t) % NCR)*16 + qb*4), d if (n or k % 2) else "0"))
                if k % 2 == 0 and ld: ld.pop(0)()
    else:
        for n in range(NCR - 1):
            for q in range(4): c_load(n, q)
        for n in range(32):
            ld = []
            if n + NCR - 1 < 32: ld += [lambda q=q: c_load(n + NCR - 1, q) for q in range(4)]
            if n >= 1 and n + NWS - 1 < 32: ld += [lambda q=q: wo_load(e, n + NWS - 1, q) for q in range(4)]
            e.need(vm=[("C", n), ("WO", n)])
            for k in range(16):
                mb, qb = k // 4, k % 4
                d = vr(V_AS + k*4)
                e(mf(d, wreg(n, mb), vr(V_CR + (n % NCR)*16 + qb*4), d if n else "0"))
                if k % 2 == 0 and ld: ld.pop(0)()
    stamp(e, 12)
    e("s_nop 7")
    for j in range(16): e.ds(f"ds_write_b128 v{t1}, {vr(V_AS + j*4)} offset:{((j%4)*4 + j//4)*1024}", "SW")
    e.need(vm=["X"])
    for j in range(8): e(f"v_lshlrev_b32 v{T+2*j}, 16, v{V_X+j}"); e(f"v_and_b32 v{T+2*j+1}, 0xffff0000, v{V_X+j}")
    e.wait_all(vm=False)
    e("s_barrier")
    for sw in range(4):
        for mb in range(4): e.ds(f"ds_read_b128 {vr(V_AS + (sw*4+mb)*4)}, v{V_G if sw >= 2 else t0} offset:{(sw % 2)*16384 + mb*1024}", ("RS", sw))
    red(V_AS, "RS"); rnd(V_AS, PK)
    for r in range(16): e(f"v_mul_f32 v{V_AS+r}, v{V_AS+r}, v{V_AD+r}")
    rnd(V_AS, PK)
    for r in range(16): e(f"v_add_f32 v{V_AS+r}, v{V_AS+r}, v{T+r}")
    for j in range(8): e(f"v_cvt_pk_bf16_f32 v{PK+j}, v{V_AS+2*j}, v{V_AS+2*j+1}")
    for mb in range(4):
        e.vmem(f"buffer_store_dwordx2 v[{PK+2*mb}:{PK+2*mb+1}], v{V_XO}, {srd(S_OUT)}, s{S_XO} offen offset:{mb*32}{OPT.get('outsc', '')}", "OUT")
    e("s_cmp_lg_u32 s2, 0")
    e("s_cbranch_scc1 L_nobump")
    signal(e, f"s_mov_b32 s{S_CNT}, {WS_EP}", 26)
    e.label("L_nobump")
    stamp(e, 13)

HEADER = open("cdna_kernels/" + NAME + ".s.ref").read().split("; Override launch geometry")[0]
def build():
    e = E(); body(e)
    n = 0
    def policy(roleB, trans, slow, spin):
        def d(lb, site, c):
            if lb == "L_body": return (c == 0) if site < 2 else True
            if lb == "L_first": return trans and c == 2
            if lb == "L_fzero": return trans == 2
            if lb == "L_late": return c >= 1
            if lb == "L_trans": return trans and c == 0
            if lb == "L_mergeB": return roleB
            if lb == "L_slow": return slow
            if lb == "L_slowl": return c % 2 == 0
            if lb == "L_ret0": return trans and c == 0
            if lb == "L_ret1": return not roleB
            if lb.startswith("L_spin_"): return spin and c == 0
            if lb.startswith("L_ok_"): return c >= 1
            if lb.startswith("L_spinl_"): return True
            return False
        return d
    for cfg in ((0, 0, 0, 0), (1, 1, 0, 0), (0, 0, 1, 1), (1, 1, 1, 1), (1, 2, 0, 0)):
        tr = chk.trace(e.L, policy(*cfg))
        assert "s_endpgm" in tr[-1], cfg
        n += chk.check(tr, f"path{cfg}")
    if n: print(f"{n} hazards", file=sys.stderr)
    return "\n".join([HEADER.rstrip("\n"), "; @launch grid=(256,1,1) block=(256,1,1) lds=163840",
        '.amdgcn_target "amdgcn-amd-amdhsa--gfx950"\n.text', e.text(), '.section .rodata,"a"\n.p2align 6',
        f""".amdhsa_kernel {KN}
  .amdhsa_next_free_vgpr 512
  .amdhsa_next_free_sgpr 102
  .amdhsa_accum_offset 256
  .amdhsa_group_segment_fixed_size 0
  .amdhsa_kernarg_size 104
  .amdhsa_user_sgpr_count 2
  .amdhsa_user_sgpr_kernarg_segment_ptr 1
  .amdhsa_system_sgpr_workgroup_id_x 1
.end_amdhsa_kernel
"""])
if __name__ == "__main__":
    open(sys.argv[1], "w").write(build())
```

```python
import sys, math, os, struct
from emit import E, Filler
import check as chk

NAME = "recurrent_scan__compressed_kv_cla__glu_gated_geglu__prompt"
KN = NAME + "_kernel"
MB = 1 << 20
OPT = eval(os.environ.get("OPT", "{}"))
STAMPS = os.environ.get("STAMPS")
POLLALL = OPT.get("pollall", 0)
WS_XN, WS_H, WS_WDF, WS_WOF, WS_CTX, WS_K, WS_V, WS_END = 0, 2*MB, 9*MB, 12*MB, 16*MB, 32*MB, 48*MB, 64*MB
fb = lambda x: struct.unpack("<I", struct.pack("<f", x))[0]

S_X, S_CKV, S_WQ, S_WUK, S_WUV, S_WO, S_WG, S_WU, S_WD, S_OUT, S_DBG, S_WS = [8 + 4*i for i in range(12)]
S_HSRD, S_ASRD, S_BSRD = 56, 60, 64
S_WAVE, S_HEAD, S_BLK, S_ROT = 68, 69, 70, 71
S_T0, S_T1, S_T2, S_T3, S_T4, S_T5 = 72, 73, 74, 75, 76, 77
S_WL, S_WA = 78, 79
S_OFF0, S_OFFA, S_AROW, S_KVST, S_XNB, S_HST = 80, 81, 82, 83, 84, 85
S_CTXLO, S_CTXHI = 86, 87
S_SRCA, S_SRCB, S_LA, S_LB, S_VMAXB, S_VCLB = 88, 89, 90, 91, 92, 93
S_N, S_EVT, S_TRANS, S_N0 = 94, 95, 96, 97
S_QT, S_QTHI, S_RET, S_CNT = 98, 99, 100, 101
S_ROTB, S_DW, S_DH, S_DINC = 48, 49, 50, 51
S_GJ = 7
S_GSRD = S_CKV
S_DSRD = S_HSRD
S_FL = 6
def srd(n): return f"s[{n}:{n+3}]"
def mf(d, a, b, c): return f"v_mfma_f32_16x16x32_bf16 {d}, {a}, {b}, {c}"
def vr(n, k=4): return f"v[{n}:{n+k-1}]"
def ar(n, k=4): return f"a[{n}:{n+k-1}]"

V_LANE, V_STAMP, V_L16 = 1, 2, 3
V_TR = (4, 5, 6, 7)
V_WOFF = (8, 9, 10, 11)
V_AOFF = (12, 13)
V_WOFG = (12, 13)
V_ARD = (14, 15)
V_TMP = list(range(16, 32))
V_POLL = 0
V_WF, V_PK, V_ACC = 32, 64, 128
def acc(db, rb): return V_ACC + (db*4 + rb)*4
def actf(ks, rb): return (ks*4 + rb)*4
V_RD = 4
V_TD, V_TN, V_LIM = 16, 20, 24
V_P, V_S, V_O = (32, 48), (64, 96), 128
A_Q, A_FB, A_DACC, A_L, A_ONE, A_DOP = 0, (64, 96), 128, 192, 208, 224
QSCALE = fb(math.log2(math.e) / math.sqrt(128.0))
NEGINF = 0xff800000
def Sreg(buf, kb2, qb): return V_S[buf] + (kb2*4 + qb)*4
def Preg(buf, qb): return V_P[buf] + qb*4
def Oreg(db, qb): return V_O + (db*4 + qb)*4
SC = " sc1"

def stamp(e, idx):
    if not STAMPS: return
    if OPT.get("padat"):
        if idx == OPT["padat"][0]:
            e(f"s_nop 1\nv_readlane_b32 s5, v{V_STAMP}, 0\ns_add_u32 s{S_CNT}, s5, {OPT['padat'][1]*100}")
            e.label("L_padat")
            e(f"s_memrealtime s[4:5]\ns_waitcnt lgkmcnt(0)\ns_sub_u32 s5, s4, s{S_CNT}\ns_cmp_lt_i32 s5, 0\ns_cbranch_scc1 L_padat")
            e.lgkm = []
        return
    e(("s_memtime" if STAMPS == "2" else "s_memrealtime") + " s[4:5]")
    e.wait_all(vm=False)
    e(f"v_writelane_b32 v{V_STAMP}, s4, {idx}")
def stamp_flush(e):
    if not STAMPS: return
    if OPT.get("dbgst"):
        e(f"""s_load_dwordx2 s[8:9], s[0:1], 88
        s_mov_b32 s10, 256
        s_mov_b32 s11, 0x20000
        v_readlane_b32 s4, v{V_STAMP}, 0
        s_not_b32 s4, s4
        s_nop 3
        v_writelane_b32 v{V_STAMP}, s4, 14
        v_lshlrev_b32 v0, 2, v{V_LANE}
        v_cmp_gt_u32 vcc, 15, v{V_LANE}
        s_and_saveexec_b64 s[6:7], vcc
        s_waitcnt lgkmcnt(0)
        buffer_atomic_umax v{V_STAMP}, v0, s[8:11], 0 offen
        s_waitcnt vmcnt(0)""")
        return
    e(f"""s_lshl_b32 s4, s2, 2
    s_add_u32 s4, s4, s{S_WAVE}
    s_lshl_b32 s4, s4, 7
    s_add_u32 s4, s4, {64*MB}
    v_lshlrev_b32 v0, 2, v{V_LANE}
    v_cmp_gt_u32 vcc, 32, v{V_LANE}
    s_and_saveexec_b64 s[6:7], vcc
    buffer_store_dword v{V_STAMP}, v0, {srd(S_WS)}, s4 offen
    s_waitcnt vmcnt(0)""")

WS_EP = 11*MB
WS_FX, WS_FK, WS_FB, WS_FC = WS_EP + 4096, WS_EP + 8192, WS_EP + 12288, WS_EP + 16384
S_TAG = 3
def signal(e, soff_lines, tmp):
    e(soff_lines)
    e(f"""v_mov_b32 v{tmp}, s{S_TAG}
    v_add_u32 v{tmp+1}, s{S_WL}, v{V_LANE}
    v_min_u32 v{tmp+1}, 1, v{tmp+1}
    v_lshlrev_b32 v{tmp+1}, 30, v{tmp+1}""")
    e.vmem(f"buffer_store_dword v{tmp}, v{tmp+1}, {srd(S_WS)}, s{S_CNT} offen sc1", "SIG")
def sig_lin(base):
    return f"""s_lshr_b32 s{S_CNT}, s2, 3
    s_lshl_b32 s{S_CNT}, s{S_CNT}, 7
    s_and_b32 s{S_FL}, s2, 7
    s_lshl_b32 s{S_FL}, s{S_FL}, 2
    s_add_u32 s{S_CNT}, s{S_CNT}, s{S_FL}
    s_add_u32 s{S_CNT}, s{S_CNT}, {base}"""
SIG_KV = f"""s_and_b32 s{S_CNT}, s2, 31
    s_lshl_b32 s{S_CNT}, s{S_CNT}, 7
    s_lshl_b32 s{S_FL}, s{S_BLK}, 2
    s_add_u32 s{S_CNT}, s{S_CNT}, s{S_FL}
    s_add_u32 s{S_CNT}, s{S_CNT}, {WS_FK}"""
class Poll:
    def __init__(self, e, name, voff):
        self.e, self.name, self.voff = e, name, voff
    @property
    def ld(self):
        if self.name == "b" and POLLALL: return f"buffer_load_dwordx4 a[216:219], v{self.voff}, {srd(S_WS)}, 0 offen sc1"
        return f"buffer_load_dword v{V_POLL}, v{self.voff}, {srd(S_WS)}, 0 offen sc1"
    def issue(self): self.e.vmem(self.ld, ("POLL", self.name))
    def test(self):
        if self.name == "b" and POLLALL:
            return f"""v_accvgpr_read_b32 v5, a216
            v_accvgpr_read_b32 v6, a217
            v_accvgpr_read_b32 v7, a218
            v_accvgpr_read_b32 v{V_POLL}, a219
            v_xor_b32 v5, v5, v{V_POLL}
            v_xor_b32 v6, v6, v{V_POLL}
            v_xor_b32 v7, v7, v{V_POLL}
            v_or3_b32 v5, v5, v6, v7
            v_xor_b32 v{V_POLL}, s{S_TAG}, v{V_POLL}
            v_or_b32 v5, v5, v{V_POLL}
            v_cmp_eq_u32 vcc, 0, v5
            s_cmp_eq_u64 vcc, exec"""
        return f"v_cmp_eq_u32 vcc, s{S_TAG}, v{V_POLL}\ns_cmp_eq_u64 vcc, exec"
    def check(self):
        e = self.e
        e.need(vm=[("POLL", self.name)])
        e(self.test())
        e(f"s_cbranch_scc0 L_spin_{self.name}")
        e.label(f"L_ok_{self.name}")
    def spin(self):
        e = self.e
        e.label(f"L_spin_{self.name}")
        e(f"s_mov_b32 s{S_CNT}, 0x40000")
        e.label(f"L_spinl_{self.name}")
        e("s_sleep 2")
        e(self.ld)
        e("s_waitcnt vmcnt(0)")
        e(self.test())
        e(f"s_cbranch_scc1 L_ok_{self.name}")
        e(f"s_sub_u32 s{S_CNT}, s{S_CNT}, 1")
        e(f"s_cmp_lg_u32 s{S_CNT}, 0")
        e(f"s_cbranch_scc1 L_spinl_{self.name}")
        e(f"s_branch L_ok_{self.name}")
def poll32_addr(e, v, base):
    e(f"""s_lshr_b32 s{S_T0}, s{S_HEAD}, 1
    s_sub_u32 s{S_T1}, 15, s{S_T0}
    s_min_u32 s{S_T0}, s{S_T0}, s{S_T1}
    s_lshl_b32 s{S_T0}, s{S_T0}, 9
    s_add_u32 s{S_T0}, s{S_T0}, {base}
    v_bfe_u32 v{v}, v{V_LANE}, 3, 2
    v_lshlrev_b32 v{v}, 5, v{v}
    v_and_or_b32 v{v}, v{V_LANE}, 7, v{v}
    v_lshlrev_b32 v{v}, 2, v{v}
    v_add_u32 v{v}, s{S_T0}, v{v}""")

def kernel_head(e):
    e(f".globl {KN}\n.p2align 8\n.type {KN},@function")
    e.label(KN)
    e("s_cmp_ge_u32 s2, 256")
    e("s_cbranch_scc1 L_end")
    sizes = {S_X: (0, 2*MB), S_CKV: (8, 2*MB), S_WUK: (24, 4*MB), S_WS: (96, 65*MB if STAMPS else WS_END), S_WQ: (16, 4*MB), S_WUV: (32, 4*MB), S_WO: (40, 4*MB),
             S_WG: (56, 512*3584), S_WU: (64, 512*3584), S_WD: (72, 1792*1024), S_OUT: (80, 2*MB)}
    first = (S_X, S_CKV, S_WUK, S_WS)
    if OPT.get("st0") == 1: e("s_memrealtime s[6:7]\ns_waitcnt lgkmcnt(0)")
    for sr in first: e(f"s_load_dwordx2 s[{sr}:{sr+1}], s[0:1], {sizes[sr][0]}")
    if OPT.get("st0") == 2: e("s_waitcnt lgkmcnt(0)\ns_memrealtime s[6:7]")
    if STAMPS and not OPT.get("st0"): e(("s_memtime" if STAMPS == "2" else "s_memrealtime") + " s[6:7]")
    e(f"v_and_b32 v{V_LANE}, 63, v0")
    e("v_lshrrev_b32 v2, 6, v0")
    e(f"v_lshlrev_b32 v{V_L16}, 4, v{V_LANE}")
    e(f"v_readfirstlane_b32 s{S_WAVE}, v2")
    if OPT.get("pfcode", 1):
        e(f"""s_getpc_b64 s[4:5]
        s_lshr_b32 s{S_T0}, s2, 3
        s_lshl_b32 s{S_T0}, s{S_T0}, 11
        v_lshlrev_b32 v{V_TMP[0]}, 3, v2
        v_and_or_b32 v{V_TMP[0]}, v0, 7, v{V_TMP[0]}
        v_lshlrev_b32 v{V_TMP[0]}, 6, v{V_TMP[0]}
        v_add_u32 v{V_TMP[0]}, s{S_T0}, v{V_TMP[0]}
        v_min_u32 v{V_TMP[0]}, L_end-L_pcref, v{V_TMP[0]}""")
        e.label("L_pcref")
        e.vmem(f"global_load_dword v{V_TMP[12]}, v{V_TMP[0]}, s[4:5]", "PF")
    e(f"""s_and_b32 s{S_T0}, s2, 7
    s_lshl_b32 s{S_T0}, s{S_T0}, 2
    s_lshr_b32 s{S_T1}, s2, 3
    s_and_b32 s{S_T1}, s{S_T1}, 3
    s_add_u32 s{S_HEAD}, s{S_T0}, s{S_T1}
    s_lshr_b32 s{S_BLK}, s2, 5
    s_mul_i32 s{S_T0}, s{S_T1}, {OPT.get('rota', 0)}
    s_add_u32 s{S_ROT}, s{S_BLK}, s{S_T0}
    s_mul_i32 s{S_T0}, s2, {OPT.get('rotx', 1)}
    s_add_u32 s{S_ROT}, s{S_ROT}, s{S_T0}
    s_and_b32 s{S_ROT}, s{S_ROT}, 7
    s_and_b32 s{S_ROTB}, s{S_BLK}, 3
    s_lshl_b32 s{S_WL}, s{S_WAVE}, 10
    s_lshl_b32 s{S_WA}, s{S_WAVE}, 13
    s_add_u32 s{S_WA}, s{S_WA}, 65536""")
    if STAMPS: e("v_mov_b32 v2, -1")
    for sr in first: e(f"s_mov_b32 s{sr+2}, {sizes[sr][1]}\ns_mov_b32 s{sr+3}, 0x20000")
    setup_addrs(e)
    e(f"v_add_u32 v{V_ARD[0]}, s{S_WA}, v{V_ARD[0]}\nv_xor_b32 v{V_ARD[1]}, 64, v{V_ARD[0]}")
    scalar_setup(e)
    e(f"s_lshl_b32 s{S_T0}, s2, 13\ns_lshl_b32 s{S_T1}, s{S_WAVE}, 11\ns_add_u32 s{S_T0}, s{S_T0}, s{S_T1}")
    def late():
        for sr, (p, n) in sizes.items():
            if sr not in first: e(f"s_load_dwordx2 s[{sr}:{sr+1}], s[0:1], {p}\ns_mov_b32 s{sr+2}, {n}\ns_mov_b32 s{sr+3}, 0x20000")
        for sr in (S_HSRD, S_ASRD, S_BSRD): e(f"s_mov_b64 s[{sr}:{sr+1}], s[{S_WS}:{S_WS+1}]\ns_mov_b32 s{sr+2}, {WS_END}\ns_mov_b32 s{sr+3}, 0x20000")
        e(f"s_add_u32 s{S_FL}, s{S_WS}, {WS_EP}\ns_addc_u32 s{S_FL+1}, s{S_WS+1}, 0\ns_load_dword s{S_TAG}, s[{S_FL}:{S_FL+1}], 0")
    def go():
        e("s_waitcnt lgkmcnt(0)")
        if STAMPS: e("v_writelane_b32 v2, s6, 0")
        e.vmem(f"buffer_load_dwordx4 v[64:67], v{V_L16}, {srd(S_X)}, s{S_T0} offen", "X")
        e.vmem(f"buffer_load_dwordx4 v[68:71], v{V_L16}, {srd(S_X)}, s{S_T0} offen offset:1024", "X")
    return go, late

V_CPF = 31
V_KPERM = 31
V_UOFF = 30
def setup_addrs(e):
    t0, t1, t2, t3, t4 = V_TMP[:5]
    e(f"""v_lshrrev_b32 v{t0}, 2, v{V_LANE}
    v_lshlrev_b32 v{t0}, 7, v{t0}
    v_and_b32 v{t1}, 3, v{V_LANE}
    v_lshlrev_b32 v{t1}, 3, v{t1}
    v_add_u32 v{t0}, v{t0}, v{t1}
    v_bfe_u32 v{t1}, v{V_LANE}, 3, 2
    v_lshlrev_b32 v{t1}, 5, v{t1}
    v_add_u32 v{V_TR[0]}, v{t0}, v{t1}""")
    for c in (1, 2, 3): e(f"v_xor_b32 v{V_TR[c]}, {c*32}, v{V_TR[0]}")
    e(f"""v_lshrrev_b32 v{t0}, 3, v{V_LANE}
    v_and_b32 v{t1}, 7, v{V_LANE}
    v_and_b32 v{t2}, 6, v{t0}
    v_xor_b32 v{t1}, v{t1}, v{t2}
    v_lshlrev_b32 v{V_UOFF}, 4, v{t1}
    s_lshl_b32 s{S_T0}, s{S_WAVE}, 3
    v_add_u32 v{t2}, s{S_T0}, v{t0}
    v_bfe_u32 v{t3}, v{t2}, 2, 2
    v_lshlrev_b32 v{t3}, 3, v{t3}
    v_lshrrev_b32 v{t4}, 4, v{t2}
    v_lshl_add_u32 v{t3}, v{t4}, 2, v{t3}
    v_and_b32 v{t4}, 3, v{t2}
    v_add_u32 v{V_KPERM}, v{t3}, v{t4}
    v_lshl_add_u32 v{V_WOFF[0]}, v{V_KPERM}, 13, v{V_UOFF}
    v_add_u32 v{V_WOFF[1]}, 128, v{V_WOFF[0]}
    v_add_u32 v{V_WOFF[2]}, {32*8192}, v{V_WOFF[0]}
    v_add_u32 v{V_WOFF[3]}, {32*8192 + 128}, v{V_WOFF[0]}
    v_and_b32 v{t1}, 7, v{V_LANE}
    v_lshrrev_b32 v{t2}, 1, v{t0}
    v_xor_b32 v{t1}, v{t1}, v{t2}
    v_lshlrev_b32 v{t1}, 4, v{t1}
    v_lshl_add_u32 v{V_AOFF[0]}, v{t0}, 10, v{t1}
    v_xor_b32 v{V_AOFF[1]}, 64, v{V_AOFF[0]}
    v_add_u32 v{V_AOFF[1]}, 8192, v{V_AOFF[1]}
    v_and_b32 v{t0}, 15, v{V_LANE}
    v_lshrrev_b32 v{t1}, 4, v{V_LANE}
    v_lshrrev_b32 v{t2}, 1, v{t0}
    v_xor_b32 v{t1}, v{t1}, v{t2}
    v_lshlrev_b32 v{t1}, 4, v{t1}
    v_lshl_add_u32 v{V_ARD[0]}, v{t0}, 7, v{t1}""")

def scalar_setup(e):
    i, h, w = S_BLK, S_HEAD, S_WAVE
    e(f"""s_lshl_b32 s{S_T0}, s{i}, 2
    s_add_u32 s{S_T0}, s{S_T0}, s{w}
    s_lshl_b32 s{S_AROW}, s{S_T0}, 16
    s_lshl_b32 s{S_KVST}, s{h}, 19
    s_lshl_b32 s{S_T0}, s{S_T0}, 14
    s_add_u32 s{S_KVST}, s{S_KVST}, s{S_T0}""")
def scalar_setup2(e):
    i, h, w = S_BLK, S_HEAD, S_WAVE
    a, b, c, d = S_N, S_EVT, S_TRANS, S_RET
    IDLE = f"s{i}" if OPT.get("spread", 1) else "7"
    return f"""s_sub_u32 s{a}, 15, s{i}
    s_cmp_lt_u32 s{w}, 2 ! s_cselect_b32 s{b}, s{a}, s{i}
    s_lshl_b32 s{b}, s{b}, 1
    s_and_b32 s{c}, s{w}, 1
    s_add_u32 s{S_QT}, s{b}, s{c}
    s_lshl_b32 s{S_XNB}, s{S_QT}, 16
    s_mul_i32 s{S_HST}, s{S_QT}, {56*4096}
    s_add_u32 s{S_HST}, s{S_HST}, {WS_H}
    s_lshl_b32 s{d}, s{h}, 14
    s_add_u32 s{d}, s{d}, {WS_CTX}
    s_lshl_b32 s{S_CTXLO}, s{S_QT}, 19
    s_add_u32 s{S_CTXLO}, s{S_CTXLO}, s{d}
    s_lshr_b32 s{b}, s{w}, 1
    s_xor_b32 s{b}, s{b}, s{w}
    s_and_b32 s{b}, s{b}, 1
    s_lshl_b32 s{a}, s{a}, 1
    s_add_u32 s{S_QTHI}, s{a}, s{b}
    s_lshl_b32 s{S_CTXHI}, s{S_QTHI}, 19
    s_add_u32 s{S_CTXHI}, s{S_CTXHI}, s{d}
    s_lshr_b32 s{a}, s{h}, 2
    s_cmp_lg_u32 s{a}, {IDLE} ! s_cselect_b32 s{S_WG+2}, {512*3584}, 0
    s_mov_b32 s{S_WU+2}, s{S_WG+2}
    s_cmp_lg_u32 s{a}, {IDLE} ! s_cselect_b32 s{S_HSRD+2}, {WS_END}, 0
    s_cmp_gt_u32 s{a}, {IDLE} ! s_cselect_b32 s{a}, 4, 0
    s_sub_u32 s{S_GJ}, s{h}, s{a}
    s_lshl_b32 s{a}, s{h}, 19
    s_mov_b32 s{b}, {WS_V}
    s_cmp_lt_u32 s{w}, 2 ! s_cselect_b32 s{b}, {WS_K}, s{b}
    s_add_u32 s{b}, s{b}, s{a}
    s_add_u32 s{S_VCLB}, s{b}, {63*8192}
    s_and_b32 s{a}, s{w}, 1
    s_lshl_b32 s{a}, s{a}, 13
    s_add_u32 s{S_SRCA}, s{b}, s{a}
    s_lshl_b32 s{a}, s{w}, 13
    s_add_u32 s{S_VMAXB}, s{b}, s{a}
    s_add_u32 s{S_VMAXB}, s{S_VMAXB}, {64*8192}
    s_min_u32 s{S_SRCB}, s{S_VMAXB}, s{S_VCLB}
    s_lshl_b32 s{S_LB}, s{w}, 13
    s_add_u32 s{S_LA}, s{S_LB}, 65536
    s_xor_b32 s{S_LB}, s{S_LB}, 32768
    s_lshl_b32 s{S_N0}, s{i}, 1
    s_add_u32 s{S_N0}, s{S_N0}, 2
    s_mul_i32 s{a}, s{w}, {14*4096}
    s_mul_i32 s{S_DH}, s{h}, {56*4096}
    s_add_u32 s{S_DH}, s{S_DH}, s{a}
    s_add_u32 s{S_DH}, s{S_DH}, {WS_H}
    s_mul_i32 s{S_DW}, s{i}, {56*4096}
    s_add_u32 s{S_DW}, s{S_DW}, s{a}
    s_add_u32 s{S_DW}, s{S_DW}, {WS_WDF}
    s_mov_b32 s{S_DINC}, 0""".split("\n")

def layernorm_lines():
    L = []; e = L.append
    X = (72, 80); SUM = (88, 89); TMP = (90, 91); MEAN = (92, 93); VAR = (94, 95)
    SS = (S_T0, S_T1)
    for r in range(2):
        for j in range(4):
            e(f"v_lshlrev_b32 v{X[r]+2*j}, 16, v{64+4*r+j}")
            e(f"v_and_b32 v{X[r]+2*j+1}, 0xffff0000, v{64+4*r+j}")
    def reduce():
        for mod in ("quad_perm:[1,0,3,2] row_mask:0xf bank_mask:0xf", "quad_perm:[2,3,0,1] row_mask:0xf bank_mask:0xf",
                    "row_half_mirror row_mask:0xf bank_mask:0xf", "row_mirror row_mask:0xf bank_mask:0xf",
                    "row_bcast:15 row_mask:0xa bank_mask:0xf", "row_bcast:31 row_mask:0xc bank_mask:0xf"):
            e("s_nop 0")
            for r in range(2): e(f"v_add_f32_dpp v{SUM[r]}, v{SUM[r]}, v{SUM[r]} {mod}")
        e("s_nop 0")
        for r in range(2): e(f"v_readlane_b32 s{SS[r]}, v{SUM[r]}, 63")
        e("s_nop 1")
    for r in range(2): e(f"v_add_f32 v{SUM[r]}, v{X[r]}, v{X[r]+1}")
    for j in range(2, 8):
        for r in range(2): e(f"v_add_f32 v{SUM[r]}, v{SUM[r]}, v{X[r]+j}")
    reduce()
    for r in range(2): e(f"v_mov_b32 v{MEAN[r]}, s{SS[r]}")
    for r in range(2): e(f"v_mul_f32 v{MEAN[r]}, 0x3b000000, v{MEAN[r]}")
    for j in range(8):
        for r in range(2): e(f"v_sub_f32 v{TMP[r]}, v{X[r]+j}, v{MEAN[r]}")
        for r in range(2): e(f"v_mul_f32 v{SUM[r]}, v{TMP[r]}, v{TMP[r]}" if j == 0 else f"v_fmac_f32 v{SUM[r]}, v{TMP[r]}, v{TMP[r]}")
    reduce()
    def both(fmt):
        for r in range(2): e(fmt.format(v=VAR[r], m=MEAN[r], s=SS[r]))
    def rnd(x):
        both("v_cvt_pk_bf16_f32 v{%s}, v{%s}, v{%s}" % (x, x, x)); both("v_lshlrev_b32 v{%s}, 16, v{%s}" % (x, x))
    both("v_mov_b32 v{v}, s{s}"); both("v_mul_f32 v{v}, 0x3b000000, v{v}")
    rnd("v"); both("v_add_f32 v{v}, 0x3727c5ac, v{v}"); rnd("v")
    both("v_sqrt_f32 v{v}, v{v}"); rnd("m"); rnd("v"); both("v_rcp_f32 v{v}, v{v}")
    for r in range(2):
        for j in range(8): e(f"v_sub_f32 v{X[r]+j}, v{X[r]+j}, v{MEAN[r]}")
        for j in range(4): e(f"v_cvt_pk_bf16_f32 v{64+4*r+j}, v{X[r]+2*j}, v{X[r]+2*j+1}")
        for j in range(4):
            e(f"v_lshlrev_b32 v{X[r]+2*j}, 16, v{64+4*r+j}")
            e(f"v_and_b32 v{X[r]+2*j+1}, 0xffff0000, v{64+4*r+j}")
        for j in range(8): e(f"v_mul_f32 v{X[r]+j}, v{X[r]+j}, v{VAR[r]}")
        for j in range(4): e(f"v_cvt_pk_bf16_f32 v{64+4*r+j}, v{X[r]+2*j}, v{X[r]+2*j+1}")
    return L

class MemQ:
    def __init__(self, e): self.e = e; self.items = []
    def add(self, kind, lo, hi, *a): self.items.append([kind, lo, hi, a])
    def fillers(self):
        e = self.e; out = []
        dm = [k for k, it in enumerate(self.items) if it[0] == 'd']
        nxt = {dm[j]: dm[j+1] for j in range(len(dm) - 1)}
        self.first_m0 = self.items[dm[0]][3][0]
        for k, (kind, lo, hi, a) in enumerate(self.items):
            if kind == 's': out.append(Filler(lambda a=a: e(a[0].replace(" ! ", "\n")), 4, "salu", lo, hi))
            elif kind == 'l': out.append(Filler(lambda a=a: e.vmem(a[0], a[1]), 4, "mem", lo, hi))
            elif kind == 'f': out.append(Filler(a[0], a[1], a[2], lo, hi))
            else:
                def fn(k=k, a=a):
                    if len(a) > 3: e.need(lg=a[3])
                    if " m0," in e.L[-1]: e("s_nop 0")
                    e.vmem(a[1], a[2])
                    if k in nxt: e(self.items[nxt[k]][3][0])
                out.append(Filler(fn, 8, "mem", lo, hi))
        return out


def body(e):
    i, h, w = S_BLK, S_HEAD, S_WAVE
    go, late = kernel_head(e)
    NS = 32; BAR = 42; INF = 10**9; P = -10**6
    mq = MemQ(e)
    def S(lo, hi, *lines):
        for t in lines: mq.add('s', lo, hi, t)
    def VV(lo, hi, *lines):
        for t in lines: mq.add('f', lo, hi, lambda t=t: e(t), 4, "valu")
    V_GOFF = V_KPERM; V_TRH = V_AOFF + V_ARD
    S_GO = S_T1
    def area(gs):
        if gs < 16: return (gs % 4)*16384
        if gs < 24: return ((gs % 4)*32768 + 65536) % 131072
        return ((gs - 24)*16384 + 65536) % 131072
    def w_stage(gs, lo, step, hi):
        slot = gs % 4
        if gs < 16:
            s = gs % 8
            if s == 0: S(lo - 8, hi, f"s_lshl_b32 s{S_OFF0}, s{S_ROT}, 19", f"s_lshl_b32 s{S_T5}, s{h}, 8", f"s_add_u32 s{S_OFF0}, s{S_OFF0}, s{S_T5}")
            else: S(lo - 8, hi, f"s_add_u32 s{S_OFF0}, s{S_OFF0}, {1<<19}", f"s_and_b32 s{S_OFF0}, s{S_OFF0}, {4*MB-1}")
            for n in range(4):
                mq.add('d', lo + step*n, hi, f"s_add_u32 m0, s{S_WL}, {slot*16384 + n*4096}",
                       f"buffer_load_dwordx4 v{V_WOFF[n]}, {srd(S_WUK if gs < 8 else S_WUV)}, s{S_OFF0} offen lds", ("W", gs))
        elif gs >= 24:
            s = gs % 4; hf = (gs // 4) % 2
            S(lo - 10, hi, f"s_add_u32 s{S_OFF0}, s{S_ROTB}, {s}", f"s_and_b32 s{S_OFF0}, s{S_OFF0}, 3", f"s_lshl_b32 s{S_OFF0}, s{S_OFF0}, 20",
              f"s_lshl_b32 s{S_T5}, s{h}, 8", f"s_add_u32 s{S_OFF0}, s{S_OFF0}, s{S_T5}")
            if hf: S(lo - 10, hi, f"s_add_u32 s{S_OFF0}, s{S_OFF0}, 128")
            for n in range(4):
                if n: S(lo + step*n - 2, hi, f"s_add_u32 s{S_OFF0}, s{S_OFF0}, {32*8192}")
                mq.add('d', lo + step*n, hi, f"s_add_u32 m0, s{S_WL}, {area(gs) + n*4096}",
                       f"buffer_load_dwordx4 v{V_WOFF[0]}, {srd(S_WQ)}, s{S_OFF0} offen lds", ("W", gs))
    def g_stage(s, lo, step, hi):
        S(lo - 10, hi, f"s_add_u32 s{S_GO}, s{S_ROTB}, {s}", f"s_and_b32 s{S_GO}, s{S_GO}, 3", f"s_mul_i32 s{S_GO}, s{S_GO}, {128*3584}",
          f"s_lshl_b32 s{S_T5}, s{S_GJ}, 7", f"s_add_u32 s{S_GO}, s{S_GO}, s{S_T5}")
        for n in range(8):
            if n and n % 2 == 0: S(lo + step*n - 2, hi, f"s_add_u32 s{S_GO}, s{S_GO}, {32*3584}")
            mq.add('d', lo + step*n, hi, f"s_add_u32 m0, s{S_WL}, {area(16 + s) + n*4096}",
                   f"buffer_load_dwordx4 v{V_GOFF}, {srd((S_WG, S_WU)[n % 2])}, s{S_GO} offen lds", ("W", 16 + s))
    def a_stage(s, lo, step, hi):
        S(lo - 6, hi, f"s_add_u32 s{S_OFFA}, s{S_ROT}, {s}", f"s_and_b32 s{S_OFFA}, s{S_OFFA}, 7", f"s_lshl_b32 s{S_OFFA}, s{S_OFFA}, 7", f"s_add_u32 s{S_OFFA}, s{S_OFFA}, s{S_AROW}")
        for q in range(8):
            if q and q % 2 == 0: S(lo + step*q - 2, hi, f"s_add_u32 s{S_OFFA}, s{S_OFFA}, 16384")
            mq.add('d', lo + step*q, hi, f"s_add_u32 m0, s{S_WA}, {(s % 2)*32768 + q*1024}",
                   f"buffer_load_dwordx4 v{V_AOFF[q & 1]}, {srd(S_CKV)}, s{S_OFFA} offen lds", ("A", s), [("AF", s-2, 0), ("AF", s-2, 1)])
    def xn_stage(s, lo, step, hi):
        if s % 2 == 0: S(lo - 6, hi, f"s_add_u32 s{S_OFFA}, s{S_ROTB}, {s//2}", f"s_and_b32 s{S_OFFA}, s{S_OFFA}, 3", f"s_lshl_b32 s{S_OFFA}, s{S_OFFA}, 14", f"s_add_u32 s{S_OFFA}, s{S_OFFA}, s{S_XNB}")
        for ksub in range(2):
            if ksub or s % 2: S(lo + step*4*ksub - 2, hi, f"s_add_u32 s{S_OFFA}, s{S_OFFA}, 4096")
            for rb in range(4):
                mq.add('l', lo + step*(ksub*4 + rb), hi, f"buffer_load_dwordx4 {ar(actf(2*s+ksub, rb))}, v{V_L16}, {srd(S_WS)}, s{S_OFFA} offen offset:{rb*1024}{SC}", ("XN", 2*s+ksub))
    V_PO = V_TMP[13]
    poll_xn = Poll(e, "xn", V_PO); poll_kv = Poll(e, "kv", V_PO); poll_b = Poll(e, "b", V_TMP[15]); poll_c = Poll(e, "c", V_TMP[15])
    V_RT = V_TMP[8]; V_RTA = V_TMP[9:13]; V_PFD = V_TMP[1]
    RTL, RTS, RG = OPT.get("rtl", 19), OPT.get("rts", 22), OPT.get("rtgap", 32)
    S_RL = S_RET
    PRO = OPT.get("pro", 1); KVS = OPT.get("kvs", 30)
    w_stage(0, P, 0, INF); a_stage(0, P, 0, INF)
    n_pro0 = len(mq.items)
    S(P, INF, f"s_lshl_b32 s{S_T2}, s{w}, 8", f"s_add_u32 s{S_T2}, s{S_T2}, s2", f"s_lshr_b32 s{S_T3}, s{S_T2}, 3", f"s_add_u32 s{S_T4}, s{S_T2}, s{S_T3}", f"s_and_b32 s{S_T4}, s{S_T4}, 7",
      f"s_cmp_lt_u32 s{S_T2}, 448 ! s_cselect_b32 s{S_WD+2}, {1792*1024}, 0", f"s_cmp_lt_u32 s{S_T2}, 448 ! s_cselect_b32 s{S_BSRD+2}, {WS_END}, 0")
    VV(P, INF, f"v_lshrrev_b32 v{V_RT}, 3, v{V_LANE}", f"v_lshl_add_u32 v{V_RT}, v{V_RT}, 10, v{V_UOFF}", f"v_mul_u32_u24 v{V_GOFF}, 3584, v{V_KPERM}", f"v_add_u32 v{V_GOFF}, v{V_GOFF}, v{V_UOFF}")
    w_stage(1, P, 0, INF)
    if PRO >= 2: a_stage(1, P, 0, INF)
    if PRO >= 3: w_stage(2, P, 0, INF)
    n_pro1 = len(mq.items)
    if PRO < 2: a_stage(1, 0, 1, 30)
    if PRO < 3: w_stage(2, 10, 1, 36)
    def rt_loads(E0, half):
        for q in range(2*half, 2*half + 2):
            if OPT.get("rtlin"): S(E0, INF, f"s_add_u32 s{S_RL}, s{S_RL}, 1024" if q else f"s_lshl_b32 s{S_RL}, s{S_T4}, 12 ! s_lshl_b32 s{S_T5}, s{S_T3}, 3 ! s_add_u32 s{S_RL}, s{S_RL}, s{S_T5}")
            else: S(E0, INF, f"s_add_u32 s{S_RL}, s{S_RL}, 8192" if q else f"s_lshl_b32 s{S_RL}, s{S_T4}, 7 ! s_lshl_b32 s{S_T5}, s{S_T3}, 3 ! s_add_u32 s{S_RL}, s{S_RL}, s{S_T5}")
            for t, sr in enumerate((S_WO, S_WD)):
                mq.add('d', E0 + ((4 + 14*(q % 2) + 7*t) if RTL > 5 else 36), E0 + (33 if RTL > 5 else 60), f"s_add_u32 m0, s{S_WA}, {65536 + t*4096 + q*1024}", f"buffer_load_dwordx4 v{V_L16 if OPT.get('rtlin') else V_RT}, {srd(sr)}, s{S_RL} offen lds", "RT")
    for gs in range(NS):
        b = gs * 64
        if gs + 2 < 8: a_stage(gs + 2, b + (6 if gs or PRO >= 3 else 22), (4 if gs or PRO >= 3 else 2), b + 41)
        GS = OPT.get("gs", (7, 8))
        if gs in GS: g_stage(GS.index(gs), b + 4, 3, b + 41)
        if gs == 8:
            t0, t1 = V_TMP[2:4]
            S(b + 4, b + 30, f"s_lshl_b32 s{S_T5}, s{S_QT}, 7", f"s_add_u32 s{S_T5}, s{S_T5}, {WS_FX}")
            VV(b + 4, b + 30, f"v_and_b32 v{V_PO}, 7, v{V_LANE}", f"v_lshlrev_b32 v{V_PO}, 2, v{V_PO}", f"v_add_u32 v{V_PO}, s{S_T5}, v{V_PO}")
            mq.add('f', b + 28, b + 36, poll_xn.issue, 4, "mem")
        if gs == 9: mq.add('f', b + 2, b + 6, poll_xn.check, 8, "valu")
        if 9 <= gs <= 16: xn_stage(gs - 9, b + 8, 4, b + 41)
        if gs == 10: VV(b + 20, INF, *[f"v_add_u32 v{V_TRH[c]}, 65536, v{V_TR[c]}" for c in range(4)])
        if gs in (RTL, RTL + 1) and not OPT.get("nortl"): rt_loads(b, gs - RTL)
        if gs == 27:
            S(b + 4, b + 30, f"s_and_b32 s{S_T5}, s2, 31", f"s_lshl_b32 s{S_T5}, s{S_T5}, 7", f"s_add_u32 s{S_T5}, s{S_T5}, {WS_FK}")
            VV(b + 4, b + 30, f"v_and_b32 v{V_PO}, 7, v{V_LANE}", f"v_lshlrev_b32 v{V_PO}, 2, v{V_PO}", f"v_add_u32 v{V_PO}, s{S_T5}, v{V_PO}")
        if gs == KVS - 1: mq.add('f', b + 26, b + 33, poll_kv.issue, 4, "mem")
        if gs + 3 < NS: w_stage(gs + 3, b + 44, 4, b + 64 + 5)
        if gs in (14, 16): g_stage(2 + (gs - 14)//2, b + 44, 3, b + 64 + 7)
    b = KVS*64
    mq.add('f', b + 4, b + 8, poll_kv.check, 8, "valu")
    for st in range(2):
        for j in range(8):
            if j == 4: S(b, INF, f"s_add_u32 s{S_T4}, s{S_SRCA}, 4096")
            mq.add('d', b + 8 + st*64 + 6*j, INF, f"s_add_u32 m0, s{S_LA}, {st*32768 + (j//4)*4096}",
                   f"buffer_load_dwordx4 v{V_L16}, {srd(S_ASRD)}, s{S_T4 if j >= 4 else S_SRCA} offen offset:{(j%4)*1024}{SC} lds", ("KV", st))
        if st == 0: S(b, INF, f"s_cmp_ge_u32 s{w}, 2 ! s_cselect_b32 s{S_T4}, 0, 2", f"s_lshl_b32 s{S_T4}, s{S_T4}, 13", f"s_add_u32 s{S_SRCA}, s{S_SRCA}, s{S_T4}")
        else: S(b, INF, f"s_add_u32 s{S_SRCA}, s{S_SRCA}, 16384")
    mfill = mq.fillers()
    e(mq.first_m0)
    started = False
    for f in mfill[:n_pro0]:
        if f.cost == 8 and not started: go(); started = True
        f.fn()
        if f.cost == 8: e("s_nop 0")
    late()
    if OPT.get("tlb", 0):
        a, b, c = S_N, S_EVT, S_TRANS
        e(f"""s_lshr_b32 s{a}, s2, 3
        s_and_b32 s{b}, s{a}, 7
        s_add_u32 s{b}, s{b}, 2
        s_cmp_eq_u32 s{w}, 2
        s_cselect_b32 s{b}, 10, s{b}
        s_and_b32 s{c}, s{w}, 1
        s_lshr_b32 s{S_T0}, s{w}, 1
        s_cmp_eq_u32 s{c}, s{S_T0}
        s_cselect_b32 s{b}, 12, s{b}
        s_lshl_b32 s{S_T1}, s{b}, 3
        s_load_dwordx2 s[{S_ASRD}:{S_ASRD+1}], s[0:1], s{S_T1}
        s_cmp_lt_u32 s{b}, 6
        s_mov_b32 s{S_ASRD+2}, {1792*1024}
        s_cselect_b32 s{S_ASRD+2}, {4*MB}, s{S_ASRD+2}
        s_lshr_b32 s{S_T1}, s{a}, 3
        s_lshl_b32 s{a}, s{a}, 1
        s_add_u32 s{a}, s{a}, s{c}
        s_cmp_eq_u32 s{b}, 12
        s_cselect_b32 s{S_ASRD+2}, {WS_END}, s{S_ASRD+2}
        s_cselect_b32 s{a}, s{a}, s{S_T1}
        s_lshl_b32 s{a}, s{a}, 20
        v_mov_b32 v{V_TMP[5]}, s{a}
        s_waitcnt lgkmcnt(0)""")
        e.vmem(f"buffer_load_dword v{V_TMP[1]}, v{V_TMP[5]}, {srd(S_ASRD)}, 0 offen sc1", "PF")
        e(f"s_mov_b64 s[{S_ASRD}:{S_ASRD+1}], s[{S_WS}:{S_WS+1}]\ns_mov_b32 s{S_ASRD+2}, {WS_END}")
    e.need(vm=["X"])
    ln = layernorm_lines()
    rest = mfill[n_pro0:n_pro1]
    per = len(ln) // (sum(f.cost == 8 for f in rest) + 1) + 1
    while ln or rest:
        for t in ln[:per]: e(t)
        ln = ln[per:]
        while rest:
            f = rest.pop(0); f.fn()
            if f.cost == 8: break
    mfill = mfill[n_pro1:]
    t0, t1, t2 = V_TMP[2:5]
    e(f"""s_lshl_b32 s{S_T0}, s{w}, 5
    s_add_u32 s{S_T0}, s{S_T0}, 49152
    v_lshlrev_b32 v{t0}, 7, v{V_LANE}
    v_add_u32 v{t0}, s{S_T0}, v{t0}""")
    e.ds(f"ds_write_b128 v{t0}, v[64:67]"); e.ds(f"ds_write_b128 v{t0}, v[68:71] offset:16")
    e(f"""s_lshl_b32 s{S_T0}, s{w}, 11
    s_add_u32 s{S_T0}, s{S_T0}, 49152
    v_add_u32 v{t0}, s{S_T0}, v{V_L16}
    v_lshrrev_b32 v{t1}, 5, v{V_LANE}
    v_lshlrev_b32 v{t1}, 12, v{t1}
    v_bfe_u32 v{t2}, v{V_LANE}, 3, 2
    v_lshl_add_u32 v{t1}, v{t2}, 8, v{t1}
    v_and_b32 v{t2}, 7, v{V_LANE}
    v_lshl_add_u32 v{t1}, v{t2}, 4, v{t1}
    s_lshr_b32 s{S_T0}, s2, 3
    s_lshl_b32 s{S_T0}, s{S_T0}, 16
    s_bfe_u32 s{S_T1}, s2, 0x20001
    s_lshl_b32 s{S_T1}, s{S_T1}, 10
    s_add_u32 s{S_T0}, s{S_T0}, s{S_T1}
    s_and_b32 s{S_T1}, s2, 1
    s_lshl_b32 s{S_T1}, s{S_T1}, 7
    s_add_u32 s{S_T0}, s{S_T0}, s{S_T1}
    s_lshl_b32 s{S_T1}, s{w}, 14
    s_add_u32 s{S_T0}, s{S_T0}, s{S_T1}
    s_add_u32 s{S_T1}, s{S_T0}, 8192""")
    misc = []
    misc.append(Filler(lambda: (e.ds(f"ds_read_b128 v[64:67], v{t0}", "LN"), e.ds(f"ds_read_b128 v[68:71], v{t0} offset:1024", "LN")), 8, "mem", 2, 30))
    misc.append(Filler(lambda: (e.need(lg=["LN"]), e.vmem(f"buffer_store_dwordx4 v[64:67], v{t1}, {srd(S_WS)}, s{S_T0} offen{SC}", "XNST")), 8, "mem", 14, 40))
    misc.append(Filler(lambda: e.vmem(f"buffer_store_dwordx4 v[68:71], v{t1}, {srd(S_WS)}, s{S_T1} offen{SC}", "XNST"), 8, "mem", 16, 41))
    for t in scalar_setup2(e): misc.append(Filler(lambda t=t: e(t.replace(" ! ", "\n")), 4, "salu", 44, 150))
    S_RA, S_RB = S_N, S_EVT
    rts = [Filler(lambda: e(f"s_add_u32 s{S_RA}, s{S_WA}, 65536"), 4, "salu", 150)]
    for c in range(4): rts.append(Filler(lambda c=c: e(f"v_add_u32 v{V_RTA[c]}, s{S_RA}, v{V_TR[c]}"), 4, "valu", 150))
    for t in (f"s_lshl_b32 s{S_RA}, s{S_T4}, 19", f"s_lshl_b32 s{S_T3}, s{S_T3}, 12", f"s_add_u32 s{S_RA}, s{S_RA}, s{S_T3}", f"s_add_u32 s{S_RA}, s{S_RA}, {WS_WOF}",
              f"s_mul_i32 s{S_RB}, s{S_T4}, {56*4096}", f"s_add_u32 s{S_RB}, s{S_RB}, s{S_T3}", f"s_add_u32 s{S_RB}, s{S_RB}, {WS_WDF}"):
        rts.append(Filler(lambda t=t: e(t), 4, "salu", 150, 185))
    SIGKV = OPT.get("sigkv", 28)
    for n in range(8):
        t, c = n // 4, n % 4
        d0 = V_PK + (n % 2)*4
        def fr(t=t, c=c, d0=d0, n=n):
            e.need(vm=["RT"])
            for rr in range(2): e.ds(f"ds_read_b64_tr_b16 v[{d0+rr*2}:{d0+rr*2+1}], v{V_RTA[c]} offset:{t*4096 + rr*2048}", ("RTF", n))
        def fs(t=t, c=c, d0=d0, n=n):
            e.need(lg=[("RTF", n)])
            e.vmem(f"buffer_store_dwordx4 {vr(d0)}, v{V_L16}, {srd((S_WS, S_BSRD)[t])}, s{(S_RA, S_RB)[t]} offen offset:{c*1024}{SC}", "RTST")
        if not OPT.get("norts"): rts.append(Filler(fr, 8, "mem", RTS*64 + 40 + RG*n)); rts.append(Filler(fs, 4, "mem", RTS*64 + 40 + RG*n + 12, 30*64 + 30 if POLLALL else (SIGKV - 1)*64))
    mfmas = []; rd = []
    sig_at = {3: (["XNST"], sig_lin(WS_FX)), SIGKV: (["KST", "VST"] + ([] if POLLALL else ["RTST"]), SIG_KV)}
    def stage_gate(gs):
        def fn():
            tags = [("W", gs)]
            if gs < 8: tags.append(("A", gs))
            if gs in sig_at: tags += sig_at[gs][0]
            f3 = OPT.get("fine3")
            if f3 is not None and 0 <= gs - f3 < 6: stamp(e, 14 + 3*(gs - f3))
            e.need(vm=tags)
            if f3 is not None and 0 <= gs - f3 < 6: stamp(e, 15 + 3*(gs - f3))
            e("s_barrier")
            if f3 is not None and 0 <= gs - f3 < 6: stamp(e, 16 + 3*(gs - f3))
            if gs in sig_at: signal(e, sig_at[gs][1], V_TMP[6])
            if gs % 8 == 0: stamp(e, 2 + gs // 8)
            if OPT.get("fine") is not None and 0 <= gs - OPT["fine"] < 18: stamp(e, 14 + gs - OPT["fine"])
        return fn
    def actread(s, ksub, rb):
        return lambda: e.ds(f"ds_read_b128 {ar(actf(2*s+ksub, rb))}, v{V_ARD[ksub]} offset:{(s % 2)*32768 + rb*2048}", ("AF", s, ksub))
    for gs in range(NS):
        base = gs * 64
        if gs > 0: rd.append(Filler(stage_gate(gs), 8, "mem", base - 64 + BAR, base - 64 + BAR + 1))
        pend = [Filler(actread(gs, ksub, rb), 4, "mem", base - 64 + BAR, base - 3) for rb in range(4) for ksub in range(2)] if gs < 8 else []
        CH = 2 if gs < 16 else 4
        for g in range(16 // CH):
            g0 = base + g*4*CH
            db = g if gs < 16 else 4*((gs // 4) % 2) + g
            first = gs % (16 // CH) == 0
            for k in range(CH):
                slot = (g*CH + k) % 8
                if gs < 16: c_, off = g % 4, (k*2 + g // 4)*4096
                elif gs < 24: c_, off = 2*((gs // 4) % 2) + g % 2, (k*2 + g // 2)*4096
                else: c_, off = g, k*4096
                off += area(gs)
                for rr in range(2):
                    ad = V_TRH[c_] if off >= 65536 else V_TR[c_]
                    d = V_WF + slot*4 + rr*2
                    n_ = k*2 + rr
                    lo = (g0 - 22 + 2*n_) if CH == 2 else (g0 - 16 + n_)
                    if gs == 16 and g == 1: lo = max(lo, base)
                    rd.append(Filler(lambda d=d, ad=ad, o=(off + rr*2048) % 65536, t=(gs, g): e.ds(f"ds_read_b64_tr_b16 v[{d}:{d+1}], v{ad} offset:{o}", ("F", t)),
                                     4, "mem", max(lo, base - 64 + BAR), g0 - 3))
                    for _ in range(1 if g else 2):
                        if pend: rd.append(pend.pop(0))
            for rb in range(4):
                for kk in range(CH):
                    k = kk if rb % 2 == 0 else CH - 1 - kk
                    kslot = CH*(gs % (16 // CH)) + k
                    def needs(gs=gs, g=g, CH=CH):
                        return e.need(lg=[("F", (gs, g))] + ([("AF", gs, 0), ("AF", gs, 1)] if gs < 8 else []),
                                      vm=[("XN", 4*(gs % 4) + q) for q in range(4)] if 16 <= gs < 20 else ())
                    def m(gs=gs, slot=(g*CH + k) % 8, kslot=kslot, db=db, rb=rb, z=(first and kk == 0), needs=needs):
                        needs()
                        wv = vr(V_WF + slot*4); a = ar(actf(kslot, rb)); d = vr(acc(db, rb))
                        e(mf(d, a, wv, "0" if z else d) if 8 <= gs < 16 else mf(d, wv, a, "0" if z else d))
                    m.pre = needs
                    mfmas.append(m)
    def cvts(base, dst, dl):
        out = []
        for db in range(8):
            for rb in range(4):
                for hh in range(2):
                    d = dst(db, rb, hh); s = acc(db, rb) + 2*hh
                    out.append(Filler(lambda d=d, s=s: e(f"v_cvt_pk_bf16_f32 v{d}, v{s}, v{s+1}"), 4, "valu", base + 448 + 8*db + 2*rb + 1 + 8, dl(db, rb)))
        return out
    cv = cvts(0, lambda db, rb, hh: V_PK + (rb*4 + db//2)*4 + (db & 1)*2 + hh, lambda db, rb: min(512 + 8*db + 2*rb, 512 + 30))
    VH = OPT.get("vh", 1150)
    cvv = cvts(512, lambda db, rb, hh: V_PK + ((db//4)*8 + (rb//2)*4 + db % 4)*4 + (rb & 1)*2 + hh, lambda db, rb: min(1024 + 16*db + 4*rb, 1024 + 16) if db < 4 else min(VH + 39, 1278))
    for f in cvv[32:]: f.earliest = VH
    cv += cvv
    st = []
    G2 = OPT.get("sgap", 37)
    NKV = OPT.get("nkv", 14)
    sched = [(WS_K + n*1024, n, "KST", 512 + 36 + (444 // NKV)*n, 512 + 454 if n < 8 else 1024) for n in range(NKV)]
    sched += [(WS_K + n*1024, n, "KST", 1024 + 4 + G2*(n - NKV), VH - 2) for n in range(NKV, 16)]
    sched += [(WS_V + ((n % 8)//4)*8192 + ((n // 8)*4 + n % 4)*1024, n, "VST", max(1024 + 20 + G2*(n + 16 - NKV), VH + 40 if n >= 8 else 0), (SIGKV - 1)*64 + 20) for n in range(16)]
    for off, n, tag, lo, dl in sched:
        if n % 4 == 0: st.append(Filler(lambda off=off: e(f"s_add_u32 s{S_T2}, s{S_KVST}, {off}"), 4, "salu", lo - 4))
        st.append(Filler(lambda n=n, tag=tag: e.vmem(f"buffer_store_dwordx4 {vr(V_PK + n*4)}, v{V_L16}, {srd(S_WS)}, s{S_T2} offen offset:{(n%4)*1024}{SC}", tag), 4, "mem", lo, dl))
    C0 = -2.0 * math.sqrt(2.0 / math.pi) * math.log2(math.e)
    V_C1 = V_TMP[4]; V_QW = V_TMP[5]
    ge = [Filler(lambda: e(f"v_mov_b32 v{V_C1}, {fb(C0*0.044715):#x}"), 4, "valu", 1100)]
    for hf in range(2):
        lo = 1024 + 256*(hf + 1) - 16 + 11; dl = 1024 + 256*(hf + 2)
        def V(txt, cost=4): ge.append(Filler(lambda: e(txt), cost, "valu", lo, dl))
        for t in [f"s_lshl_b32 s{S_T0}, s{S_GJ}, 13", f"s_add_u32 s{S_T0}, s{S_T0}, {hf*4096}", f"s_add_u32 s{S_T0}, s{S_T0}, s{S_HST}"]:
            ge.append(Filler(lambda t=t: e(t), 4, "salu", lo, dl))
        for rb in range(4):
            lo = 1024 + 256*(hf + 1) - 16 + 4*rb + 11
            for c in range(2):
                G, U = acc(4*hf + c, rb), acc(4*hf + 2 + c, rb); T = V_TMP[0:4]
                for r in range(4): V(f"v_mul_f32 v{T[r]}, v{G+r}, v{G+r}")
                for r in range(4): V(f"v_fmaak_f32 v{T[r]}, v{T[r]}, v{V_C1}, {fb(C0):#x}")
                for r in range(4): V(f"v_mul_f32 v{T[r]}, v{G+r}, v{T[r]}")
                for r in range(4):
                    V(f"v_exp_f32 v{T[r]}, v{T[r]}", 8)
                    if r % 2: V(f"v_mul_f32 v{G+r-1}, v{G+r-1}, v{U+r-1}"); V(f"v_mul_f32 v{G+r}, v{G+r}, v{U+r}")
                for r in range(4): V(f"v_add_f32 v{T[r]}, 1.0, v{T[r]}")
                for r in range(4): V(f"v_rcp_f32 v{T[r]}, v{T[r]}", 8)
                for r in range(4): V(f"v_mul_f32 v{G+r}, v{G+r}, v{T[r]}")
                D = acc(4*hf + 2, rb) + 2*c
                V(f"v_cvt_pk_bf16_f32 v{D}, v{G}, v{G+1}"); V(f"v_cvt_pk_bf16_f32 v{D+1}, v{G+2}, v{G+3}")
            ge.append(Filler(lambda rb=rb, hf=hf: e.vmem(f"buffer_store_dwordx4 {vr(acc(4*hf + 2, rb))}, v{V_L16}, {srd(S_HSRD)}, s{S_T0} offen offset:{rb*1024}{SC}", "HST"), 4, "mem", lo, dl))
    ge.append(Filler(lambda: e(f"s_lshl_b32 s{S_T0}, s{w}, 14"), 4, "salu", 1792))
    ge.append(Filler(lambda: e(f"s_add_u32 s{S_T0}, s{S_T0}, 131072"), 4, "salu", 1792))
    ge.append(Filler(lambda: e(f"v_add_u32 v{V_QW}, s{S_T0}, v{V_L16}"), 4, "valu", 1792))
    zero_hi = []
    for hf in range(2):
        for dg in (2*hf, 2*hf + 1):
            for qb in range(4):
                lo = 1536 + 256*hf + 192 + 32*(dg % 2) + 16 + 4*qb + 3 + 8
                def V(txt, cost=4, kind="valu", lo=lo): ge.append(Filler(lambda: e(txt), cost, kind, lo))
                o0, o1 = acc(2*dg, qb), acc(2*dg+1, qb)
                for r in range(4): V(f"v_mul_f32 v{o0+r}, {QSCALE:#x}, v{o0+r}"); V(f"v_mul_f32 v{o1+r}, {QSCALE:#x}, v{o1+r}")
                for d, s_ in ((o0, o0), (o0+1, o0+2), (o0+2, o1), (o0+3, o1+2)): V(f"v_cvt_pk_bf16_f32 v{d}, v{s_}, v{s_+1}")
                for r in range(4):
                    if hf: zero_hi.append(f"v_mov_b32 v{o1+r}, 0")
                    else: V(f"v_mov_b32 v{o1+r}, 0")
                ge.append(Filler(lambda o0=o0, qb=qb, dg=dg: e.ds(f"ds_write_b128 v{V_QW}, {vr(o0)} offset:{(qb*4+dg)*1024}", "QW"), 4, "mem", lo))
        for dg in (2*hf, 2*hf + 1):
            for qb in range(4):
                o0 = acc(2*dg, qb)
                for r in range(4): ge.append(Filler(lambda r=r, o0=o0, qb=qb, dg=dg: e(f"v_accvgpr_write_b32 a{A_Q + (qb*4+dg)*4 + r}, v{o0+r}"), 4, "valu", 29*64 + 4))
        ge.append(Filler(lambda: e.need(lg=["QW"]), 4, "salu", 29*64 + 4))
        for dg in (2*hf, 2*hf + 1):
            for qb in range(4):
                for r in range(4):
                    if hf: zero_hi.append(f"v_mov_b32 v{acc(2*dg, qb) + r}, 0")
                    else: ge.append(Filler(lambda r=r, qb=qb, dg=dg: e(f"v_mov_b32 v{acc(2*dg, qb) + r}, 0"), 4, "valu", 29*64 + 4))
        if hf == 0:
            for r in range(64): ge.append(Filler(lambda r=r: e(f"v_accvgpr_write_b32 a{A_DACC + r}, 0"), 4, "valu", 31*64 + 4))
    stamp(e, 1)
    e.need(vm=[("W", 0), ("A", 0)]); e.wait_all(vm=False); e("s_barrier")
    e(f"s_mul_i32 s{S_TAG}, s{S_TAG}, 0x9e3779b1\ns_add_u32 s{S_TAG}, s{S_TAG}, 0x7f4a7c15")
    stamp(e, 2)
    k = 0
    while rd[k].earliest < 0: rd[k].fn(); k += 1
    rest = e.schedule(mfmas, [rd[k:], mfill, cv, misc, rts, st, att_setup_fillers(e, poll_b), ge], flush=False)
    e("s_nop 7")
    e.c(f"left over fillers: {[len(r) for r in rest]}")
    for r in rest:
        for f in r: f.fn()
    stamp(e, 6)
    attention(e, poll_b, poll_c, zero_hi)
    phase_d(e, poll_c)
    if OPT.get("padto"):
        if "padb" in OPT: e(f"s_lshr_b32 s6, s2, 3\ns_cmp_lg_u32 s6, {OPT['padb']}\ns_cbranch_scc1 L_end")
        if "padx" in OPT: e(f"s_and_b32 s6, s2, 7\ns_cmp_lg_u32 s6, {OPT['padx']}\ns_cbranch_scc1 L_end")
        e(f"s_nop 1\nv_readlane_b32 s6, v{V_STAMP}, 0\ns_add_u32 s6, s6, {OPT['padto']*100}")
        e.label("L_pad")
        e("s_memrealtime s[4:5]\ns_waitcnt lgkmcnt(0)\ns_sub_u32 s7, s4, s6\ns_cmp_lt_i32 s7, 0\ns_cbranch_scc1 L_pad")
    else: stamp_flush(e)
    e("s_branch L_end")
    e.cold()
    for p in (poll_xn, poll_kv, poll_b, poll_c): p.spin()
    slow_path(e)
    e.label("L_end")
    e("s_endpgm")

A_Z = 212
S_FIRST = 20
def att_dma(e, which, j):
    if " m0," in e.L[-1]: e("s_nop 0")
    sr, src, ld = ((S_ASRD, S_SRCA, S_LA), (S_BSRD, S_SRCB, S_LB))[which]
    e.vmem(f"buffer_load_dwordx4 v{V_L16}, {srd(sr)}, s{S_T4 if j >= 4 else src} offen offset:{(j%4)*1024}{OPT.get('kvsc', SC)} lds", "KV")
    if which == 1 and OPT.get("boob"): ld = S_FIRST + 3
    if j == 3: e(f"s_add_u32 m0, s{ld}, 4096"); e(f"s_add_u32 s{S_T4}, s{src}, 4096")
    if j == 7:
        if which == 0: e(f"s_mov_b32 m0, s{S_FIRST + 3 if OPT.get('boob') else S_LB}\ns_add_u32 s{S_SRCA}, s{S_SRCA}, 16384")
        else: e(f"s_sub_u32 s{S_VMAXB}, s{S_VMAXB}, 16384\ns_min_u32 s{S_SRCB}, s{S_VMAXB}, s{S_VCLB}")
def d_load(e, j):
    so = S_DW if j < 4 else S_DH
    e.vmem(f"buffer_load_dwordx4 {ar(A_DOP + j*4)}, v{V_L16}, {srd(S_DSRD)}, s{so} offen offset:{(j%4)*1024}{OPT.get('kvsc', SC)}", "KV")
    if j % 4 == 3: e(f"s_add_u32 s{so}, s{so}, s{S_DINC}")
class M:
    def __init__(self, txt, tag=None): self.txt, self.tag = txt, tag
def d_mfmas():
    return [M(mf(ar(A_DACC + (mb*4+qb)*4), ar(A_DOP + mb*4), ar(A_DOP + 16 + qb*4), ar(A_DACC + (mb*4+qb)*4))) for mb in range(4) for qb in (range(4) if mb % 2 == 0 else range(3, -1, -1))]
def sm_half(e, buf, kb2):
    ex = []; cv = []
    for p in range(8):
        qb, hh = p // 2, p % 2
        r = Sreg(buf, kb2, qb) + 2*hh
        if OPT.get("noexp"): ex += [NOP, NOP]
        else: ex.append(lambda r=r: e(f"v_exp_f32 v{r}, v{r}")); ex.append(lambda r=r: e(f"v_exp_f32 v{r+1}, v{r+1}"))
        d = Preg(buf, qb) + 2*kb2 + hh
        cv.append(lambda r=r, d=d: e(f"v_perm_b32 v{d}, v{r+1}, v{r}, s{S_WUV}" if OPT.get("perm") else f"v_cvt_pk_bf16_f32 v{d}, v{r}, v{r+1}"))
    return ex, cv
def qk_mfmas(buf, half, tag="FR"):
    out = []
    for kb2 in range(2):
        kb = half*2 + kb2
        for qb in range(4):
            for kk in range(4):
                dg = kk if qb % 2 == 0 else 3 - kk
                d = vr(Sreg(buf, kb2, qb))
                c = d if kk else ("0" if kb < qb else vr(V_TD) if kb == qb else vr(V_TN))
                out.append(M(mf(d, ar(A_FB[0] + (kb2*4+dg)*4), ar(A_Q + (qb*4+dg)*4), c), (tag, 0, kb2*4)))
    return out
def pv_mfmas(buf, zero=False, order=range(8)):
    o = []
    for n_, db in enumerate(order):
        for qb in (range(4) if n_ % 2 == 0 else range(3, -1, -1)):
            d = vr(Oreg(db, qb))
            o.append(M(mf(d, ar(A_Z), ar(A_Z), "0")) if zero else M(mf(d, ar(A_FB[1] + db*4), vr(Preg(buf, qb)), d), ("FR", 1, (db // 4)*4)))
    s_ = []
    for qb in range(4):
        d = ar(A_L + qb*4)
        s_.append(M(mf(d, ar(A_Z), ar(A_Z), "0")) if zero else M(mf(d, ar(A_ONE), vr(Preg(buf, qb)), d)))
    if OPT.get("nosum"): s_ = [M("s_nop 0")]*4
    return o, s_
def frag_reads(e, fb_, off, order=range(8), tag="FR"):
    return [lambda j=j: e.ds(f"ds_read_b128 {ar(A_FB[fb_] + j*4)}, v{V_RD} offset:{off + j*1024}", (tag, fb_, (j // 4)*4)) for j in order]
NOP = lambda: None
def run(e, mfmas, gaps, nxt=None):
    if mfmas[0].tag: e.need(lg=[mfmas[0].tag])
    for i, m in enumerate(mfmas):
        if m.txt: e(m.txt)
        t = mfmas[i+1].tag if i + 1 < len(mfmas) else nxt
        if t: e.need(lg=[t])
        for f in gaps.get(i, ()): f()
def section(e, mfmas, reads, ex, cv, carry, g2, nxt=None, tail=None):
    gaps = {}
    for q in range(8):
        gaps[4*q] = [reads[q], (carry or NOP) if q == 0 else cv[q-1]]
        gaps[4*q+1] = [ex[2*q]]; gaps[4*q+2] = [g2[q]]; gaps[4*q+3] = [ex[2*q+1]]
    if len(mfmas) > 32: gaps[32] = [cv[7]]
    for k, f in (tail or {}).items(): gaps.setdefault(k, []).insert(0, f)
    run(e, mfmas, gaps, nxt)
    return cv[7] if len(mfmas) == 32 else None
PREP = [f"s_cmp_le_u32 s{S_N}, 15\ns_cselect_b32 s{S_ASRD+2}, {WS_END}, 0\ns_cselect_b32 s{S_T0}, 32768, s{S_T1}", f"s_add_u32 s{S_T3}, s{S_N}, 2\ns_xor_b32 s{S_LB}, s{S_LB}, s{S_T0}",
        f"s_cmp_ge_u32 s{S_T3}, s{S_N0}\ns_cselect_b32 s{S_BSRD+2}, s{S_ASRD+2}, 0" + (f"\ns_cselect_b32 s{S_FIRST+3}, s{S_LB}, s{S_T1}" if OPT.get("boob") else ""), f"s_xor_b32 s{S_LA}, s{S_LA}, s{S_T0}\ns_mov_b32 m0, s{S_LA}"]
PREP0 = f"s_mov_b32 s{S_T1}, 0x30000"
LR = V_TMP[10:14]
def check_lines(ret, qt):
    return [f"v_min3_f32 v{V_LIM+1}, v{LR[0]}, v{LR[1]}, v{LR[2]}\nv_add_f32 v{V_LIM}, v{LR[0]}, v{LR[1]}",
            f"v_add_f32 v{V_LIM}, v{V_LIM}, v{LR[2]}\nv_min_f32 v{V_LIM+1}, v{V_LIM+1}, v{LR[3]}",
            f"s_mov_b32 s{S_RET}, {ret}\nv_add_f32 v{V_LIM}, v{V_LIM}, v{LR[3]}\nv_cmp_nle_f32 vcc, 0x17800000, v{V_LIM+1}",
            f"s_mov_b64 s[{S_FL}:{S_FL+1}], vcc\ns_mov_b32 s{S_CNT}, s{qt}\nv_cmp_nge_f32 vcc, {OPT.get('lhi', 0x67800000):#x}, v{V_LIM}",
            f"s_or_b64 vcc, vcc, s[{S_FL}:{S_FL+1}]\n" + ("s_nop 0" if OPT.get("noslow") else "s_cbranch_vccnz L_slow")]
def norm_items(e, dbs, sbase):
    it = []
    for dg in sorted({d // 2 for d in dbs}):
        it.append((lambda dg=dg: e(f"s_add_u32 s{S_T0}, s{sbase}, {dg*4096}"), 0, 2*dg+1))
        for qb in range(4):
            o0, o1 = Oreg(2*dg, qb), Oreg(2*dg+1, qb)
            for r in range(4):
                for o in (o0, o1): it.append((lambda o=o, r=r, qb=qb: e(f"v_mul_f32 v{o+r}, v{o+r}, v{LR[qb]}"), 4, 2*dg+1))
            for d, s_ in ((o0, o0), (o0+1, o0+2), (o0+2, o1), (o0+3, o1+2)): it.append((lambda d=d, s_=s_: e(f"v_cvt_pk_bf16_f32 v{d}, v{s_}, v{s_+1}"), 4, 2*dg+1))
            it.append((lambda o0=o0, qb=qb: e.vmem(f"buffer_store_dwordx4 {vr(o0)}, v{V_L16}, {srd(S_WS)}, s{S_T0} offen offset:{qb*1024}{SC}", "CST"), 8, 2*dg+1))
    return it
def emit_items(items, extra=()):
    extra = list(extra)
    for f, c, _ in items:
        f()
        if c == 8:
            for _ in range(2):
                if extra: extra.pop(0)()
    for f in extra: f()
def sm_tail(e, order=range(8)):
    ex, cv = sm_half(e, 1, 1)
    for f in frag_reads(e, 1, 16384, order): f()
    for p in range(8):
        ex[2*p](); ex[2*p+1]()
        if p: cv[p-1]()
    e("s_nop 0"); cv[7]()

S_WOo, S_AC = S_OFF0, S_OFFA
WSLOT = [14, 15, 4, 5, 13, 12, 6, 7, 0, 1, 2, 3, -2, -3, 8, 9, 10, 11]
NWS = len(WSLOT)
def wreg(n, q):
    s_ = WSLOT[n % NWS]
    return ar(s_*16 + q*4) if s_ >= 0 else vr(-s_*16 + q*4)
def wo_load(e, n, q):
    e.vmem(f"buffer_load_dwordx4 {wreg(n, q)}, v{V_L16}, {srd(S_WS)}, s{S_WOo} offen offset:{q*1024}{SC}", ("WO", n))
    if q == 3: e(f"s_add_u32 s{S_WOo}, s{S_WOo}, 4096")

V_TRI = (9, 10, 11, 30)
V_SIG, V_TAGV, V_QA, V_ONE = 12, 13, 14, 15
S_D1, S_D2, S_M = S_FIRST + 2, S_FIRST, S_FIRST + 1
def att_setup_fillers(e, poll_b):
    i, h, w = S_BLK, S_HEAD, S_WAVE
    out = []
    def add(lo, hi, txt):
        for t in txt.split("\n"):
            t = t.strip()
            out.append(Filler(lambda t=t: e(t.replace(" ! ", "\n")), 4, "salu" if t.startswith("s_") else "valu", lo, hi))
    a, b, c, d = V_TRI; pv = poll_b.voff; t = S_M
    lo, hi = 17*64 + 10, 20*64
    add(lo, hi, f"""v_lshrrev_b32 v{d}, 4, v{V_LANE}
    v_lshlrev_b32 v{d}, 2, v{d}
    v_and_b32 v{a}, 15, v{V_LANE}
    v_sub_u32 v{a}, v{a}, v{d}
    v_subrev_u32 v{b}, 1, v{a}
    v_subrev_u32 v{c}, 2, v{a}
    v_subrev_u32 v{d}, 3, v{a}""")
    for r in V_TRI: add(lo, hi, f"v_ashrrev_i32 v{r}, 31, v{r}\nv_and_b32 v{r}, {NEGINF:#x}, v{r}")
    add(lo, hi, f"""s_lshr_b32 s{t}, s{h}, 1
    s_sub_u32 s{S_D1}, 15, s{t}
    s_min_u32 s{t}, s{t}, s{S_D1}
    s_lshl_b32 s{t}, s{t}, 9
    s_add_u32 s{t}, s{t}, {WS_FB}
    v_bfe_u32 v{pv}, v{V_LANE}, 3, 2
    v_lshlrev_b32 v{pv}, 5, v{pv}
    v_and_or_b32 v{pv}, v{V_LANE}, 7, v{pv}
    v_lshlrev_b32 v{pv}, 2, v{pv}
    v_add_u32 v{pv}, s{t}, v{pv}
    s_lshl_b32 s{S_TRANS}, s{i}, 1
    s_add_u32 s{S_TRANS}, s{S_TRANS}, s{w}
    s_sub_u32 s{S_TRANS}, s{S_TRANS}, 1
    s_sub_u32 s{S_D1}, s{S_TRANS}, 1
    s_add_u32 s{S_D2}, s{S_TRANS}, 1
    s_cmp_eq_u32 s{i}, 7 ! s_cselect_b32 s{t}, 16, 99
    s_cmp_eq_u32 s{w}, 0 ! s_cselect_b32 s{t}, s{t}, 99
    s_cmp_lt_u32 s{w}, 2 ! s_cselect_b32 s{S_D1}, s{t}, s{S_D1}
    s_cmp_lt_u32 s{w}, 2 ! s_cselect_b32 s{S_D2}, 99, s{S_D2}
    s_cmp_lt_u32 s{w}, 2 ! s_cselect_b32 s{S_TRANS}, 17, s{S_TRANS}
    s_sub_u32 s{S_VMAXB}, s{S_VMAXB}, 16384
    s_min_u32 s{S_SRCB}, s{S_VMAXB}, s{S_VCLB}
    s_lshr_b32 s{t}, s2, 3
    s_lshl_b32 s{t}, s{t}, 5
    s_and_b32 s{S_FIRST+3}, s2, 7
    s_add_u32 s{t}, s{t}, s{S_FIRST+3}
    s_lshl_b32 s{t}, s{t}, 2
    s_add_u32 s{t}, s{t}, {WS_FB}
    s_sub_u32 s{S_FIRST+3}, 3, s{w}
    s_lshl_b32 s{S_FIRST+3}, s{S_FIRST+3}, 14
    s_add_u32 s{S_FIRST+3}, s{S_FIRST+3}, 131072""")
    lo, hi = 28*64, 31*64
    add(lo, hi, f"""v_mov_b32 v{V_TAGV}, s{S_TAG}
    v_add_u32 v{V_SIG}, s{S_WL}, v{V_LANE}
    v_min_u32 v{V_SIG}, 1, v{V_SIG}
    v_lshlrev_b32 v{V_SIG}, 30, v{V_SIG}
    v_add_u32 v{V_SIG}, s{t}, v{V_SIG}
    v_add_u32 v{V_QA}, s{S_FIRST+3}, v{V_L16}
    v_and_b32 v{V_ONE}, 3, v{V_LANE}
    v_subrev_u32 v{V_ONE}, 1, v{V_ONE}
    v_ashrrev_i32 v{V_ONE}, 31, v{V_ONE}
    v_and_b32 v{V_ONE}, 0x3f803f80, v{V_ONE}
    s_mov_b32 s{S_T2}, 1
    s_mov_b32 s{S_WUV}, 0x07060302
    s_mov_b32 s{S_N}, -1
    s_mov_b32 s{S_DSRD+2}, 0""")
    return out

def Sq(c): return V_S[0] + c*4
def ring(g, j): return A_FB[0] + (g % 4)*16 + j*4
def qk2(tag="FR"):
    out = []
    for c in range(16):
        kb, qb = c // 4, c % 4
        for kk in range(4):
            dg = kk if c % 2 == 0 else 3 - kk
            d = vr(Sq(c))
            cc = d if kk else ("0" if kb < qb else vr(V_TD) if kb == qb else vr(V_TN))
            out.append(M(mf(d, ar(ring(kb, dg)), ar(A_Q + (qb*4+dg)*4), cc), (tag, kb)))
    return out
def pv2(order=(0, 1, 2, 3)):
    o = []; c = 0
    for n, p in enumerate(order):
        for x in range(2):
            for qb in (range(4) if x == 0 else range(3, -1, -1)):
                d = vr(Oreg(2*p + x, qb))
                for kg in ((0, 1) if c % 2 == 0 else (1, 0)):
                    o.append(M(mf(d, ar(ring(n, x*2 + kg)), vr(Preg(kg, qb)), d), ("FR", 4 + n)))
                c += 1
    s_ = [M(mf(ar(A_L + qb*4), ar(A_ONE), vr(Preg(kg, qb)), ar(A_L + qb*4))) for qb in range(4) for kg in range(2)]
    return o, s_
def kreads(e, g, tag="FR"): return [lambda j=j: e.ds(f"ds_read_b128 {ar(ring(g, j))}, v{V_RD} offset:{g*4096 + j*1024}", (tag, g)) for j in range(4)]
def vreads(e, n, p): return [lambda j=j: e.ds(f"ds_read_b128 {ar(ring(n, j))}, v{V_RD} offset:{16384 + (j % 2)*8192 + (2*p + j // 2)*1024}", ("FR", 4 + n)) for j in range(4)]
def cvt2(c, hh): return f"v_cvt_pk_bf16_f32 v{Preg(c // 8, c % 4) + 2*((c // 4) % 2) + hh}, v{Sq(c) + 2*hh}, v{Sq(c) + 2*hh + 1}"
def exp2(k): return f"v_exp_f32 v{V_S[0] + k}, v{V_S[0] + k}"
def drain_head(e, order):
    e.need(lg=[("FR", 1)])
    rd_ = [f for n, p in enumerate(order) for f in vreads(e, n, p)]
    for f in rd_[:8]: f()
    for c in range(1, 16):
        e(cvt2(c, 0)); e(cvt2(c, 1))
    for f in rd_[8:]: f()

def attention(e, poll_b, poll_c, zero_hi):
    i, h, w = S_BLK, S_HEAD, S_WAVE
    T = lambda t: (lambda: e(t))
    A = [lambda j=j: att_dma(e, 0, j) for j in range(8)]; B = [lambda j=j: att_dma(e, 1, j) for j in range(8)]; D = [lambda j=j: d_load(e, j) for j in range(8)]
    e(f"v_add_u32 v{V_RD}, 65536, v{V_L16}")
    e.need(vm=[("KV", 0), "HST", "RTST"], lg=["QW"])
    e("s_barrier")
    for g in range(2):
        for f in kreads(e, g, "F0"): f()
    e.vmem(f"buffer_store_dword v{V_TAGV}, v{V_SIG}, {srd(S_WS)}, 0 offen sc1", "SIG")
    MS = [f"s_add_u32 s{S_N}, s{S_N}, 1", f"s_cmp_eq_u32 s{S_N}, s{S_D1}\ns_cselect_b32 s{S_M}, -1, 0", f"s_cmp_eq_u32 s{S_N}, s{S_D2}\ns_cselect_b32 s{S_M}, -1, s{S_M}",
          f"v_and_b32 v{V_TD}, s{S_M}, v{V_TRI[0]}\nv_and_b32 v{V_TD+1}, s{S_M}, v{V_TRI[1]}", f"v_and_b32 v{V_TD+2}, s{S_M}, v{V_TRI[2]}\nv_and_b32 v{V_TD+3}, s{S_M}, v{V_TRI[3]}",
          f"s_and_b32 s{S_M}, s{S_M}, {NEGINF:#x}\nv_mov_b32 v{V_TN}, s{S_M}\nv_mov_b32 v{V_TN+1}, s{S_M}", f"v_mov_b32 v{V_TN+2}, s{S_M}\nv_mov_b32 v{V_TN+3}, s{S_M}"]
    for t in MS: e(t)
    e(f"s_xor_b32 s{S_LA}, s{S_LA}, 32768")
    XRD = f"v_xor_b32 v{V_RD}, 32768, v{V_RD}"
    CV0 = cvt2(0, 0) + "\n" + cvt2(0, 1)
    def itstamp(dn=0):
        if OPT.get("itst"):
            e(f"s_memtime s[4:5]\nv_subrev_u32 v5, {14 - dn}, v{V_LANE}\nv_cmp_eq_u32 vcc, s{S_N}, v5\ns_waitcnt lgkmcnt(0)\nv_mov_b32 v5, s4\nv_cndmask_b32 v{V_STAMP}, v{V_STAMP}, v5, vcc")
    stamp(e, 7)
    init = [f"v_accvgpr_write_b32 a{A_L + r}, 0" for r in range(16)] + [f"v_accvgpr_write_b32 a{A_Z + r}, 0" for r in range(4)]
    init += [f"v_accvgpr_write_b32 a{A_ONE + r}, v{V_ONE}" for r in range(4)] + zero_hi
    for _ in range(8): e(init.pop())
    gaps = {}; ne = 0
    kr = kreads(e, 2, "F0") + kreads(e, 3, "F0")
    pre = [PREP0] + PREP + [XRD]
    for k in range(64):
        g = gaps[k] = []
        if k % 2 == 0 and kr: g.append(kr.pop(0)); g.append(T(init.pop()))
        elif k >= 52 and k % 2 == 0: g.append(T(pre.pop(0)))
        elif init: g.append(T(init.pop())); g.append(T(init.pop()))
        else: g.append(T(exp2(ne))); ne += 1
    assert not init and not pre
    gaps[63].insert(0, lambda: e.wait_all())
    run(e, qk2("F0"), gaps)
    e("s_barrier")
    itstamp()
    mem = [f for p in zip(A, kreads(e, 0) + kreads(e, 1)) for f in p] + B[:4]
    while mem or ne < 64:
        if mem: mem.pop(0)()
        for _ in range(3):
            if ne < 64: e(exp2(ne)); ne += 1
    for t in MS: e(t)
    e(CV0)
    e.need(lg=[("FR", 0)])
    top = [("FR", 1)]*4
    assert e.lgkm == top, e.lgkm
    e("s_branch L_special")
    e(".p2align 6")
    e.label("L_body")
    def loop_body(first):
        e.lgkm = list(top)
        gaps = {k: [] for k in range(152)}
        rds = kreads(e, 2) + kreads(e, 3) + ([] if first else vreads(e, 0, 0) + vreads(e, 1, 1))
        for n, f in enumerate(rds): gaps[4*n].append(f)
        for n, f in enumerate(kreads(e, 0) + kreads(e, 1)): gaps[100 + 4*n].append(f)
        for n, f in enumerate(B[4:] + D): gaps[2 + 4*n].append(f)
        for n, f in enumerate(A + B[:4]): gaps[98 + 4*n].append(f)
        if not first:
            for n, f in enumerate(vreads(e, 2, 2) + vreads(e, 3, 3)): gaps[64 + 2*n].append(f)
            for c in range(1, 16):
                gaps[4*(c-1)].append(T(cvt2(c, 0)))
                gaps[1 + 2*((c - 1)//2)].append(T(cvt2(c, 1)))
        for k in range(64): gaps[17 + 2*k].append(T(exp2(k)))
        gaps[58].append(lambda: e.vmem(poll_b.ld, "KV"))
        gaps[62].append(T(PREP0))
        for n, t in enumerate(PREP + [XRD] + MS[:3]): gaps[80 + 2*n].append(T(t))
        for n, t in enumerate(MS[3:]): gaps[132 + 4*n].append(T(t))
        gaps[146].append(T(CV0)); gaps[150].append(T(f"s_cmp_eq_u32 s{S_N}, s{S_T2}"))
        gaps[95].insert(0, lambda: e.wait_all())
        gaps[95].append(lambda: (e("s_barrier"), itstamp(1)))
        o, s_ = pv2()
        if first:
            zo, zl = pv_mfmas(1, zero=True)
            o = [M("")]*32 + zo; s_ = zl + [M("")]*4
        run(e, qk2() + o + s_ + d_mfmas(), gaps, nxt=("FR", 0))
        assert e.lgkm == top, e.lgkm
        e("s_cbranch_scc0 L_body")
    loop_body(False)
    e.label("L_special")
    e(f"""s_cmp_lt_u32 s{S_N}, 3
    s_cselect_b32 s{S_T2}, 3, 17
    s_min_u32 s{S_T2}, s{S_T2}, s{S_TRANS}
    s_cmp_eq_u32 s{S_N}, 3
    s_cbranch_scc0 L_late""")
    e(poll_b.test())
    e("s_cbranch_scc0 L_spin_b")
    e.label("L_ok_b")
    e(f"s_mov_b32 s{S_DSRD+2}, {WS_END}\ns_mov_b32 s{S_DINC}, 4096")
    e.label("L_late")
    e(f"s_cmp_eq_u32 s{S_N}, s{S_D2}\ns_cbranch_scc1 L_first")
    e(f"s_cmp_eq_u32 s{S_N}, s{S_TRANS}\ns_cbranch_scc0 L_body")
    e(f"s_cmp_eq_u32 s{S_N}, 17\ns_cbranch_scc0 L_trans")
    LRD = [f"v_accvgpr_read_b32 v{LR[0]}, a{A_L}\nv_accvgpr_read_b32 v{LR[1]}, a{A_L+4}", f"v_accvgpr_read_b32 v{LR[2]}, a{A_L+8}\nv_accvgpr_read_b32 v{LR[3]}, a{A_L+12}"]
    def cold():
        e.label("L_trans")
        e.lgkm = list(top); e.vm = ["KV"]*13
        qr = [lambda j=j: e.ds(f"ds_read_b128 {ar(A_Q + j*4)}, v{V_QA} offset:{j*1024}", "QS") for j in range(16)]
        rcp = [f"v_rcp_f32 v{LR[qb]}, v{LR[qb]}" for qb in range(4)]
        drain_head(e, (0, 1, 2, 3))
        o, s_ = pv2()
        gaps = {k: [f] for k, f in enumerate(B[4:] + D + [lambda: e.vmem(poll_b.ld, "KV")])}
        for k, t in enumerate(LRD + check_lines(0, S_QT) + rcp): gaps[13 + k] = [T(t)]
        items = norm_items(e, range(8), S_CTXLO)
        XB = f"v_xor_b32 v{V_RD}, {32768 + 65536}, v{V_RD}"
        def fill(g, k, left):
            while items and items[0][1] <= left and 8 + 8*(items[0][2] + 1) - 1 + 5 <= k:
                f, c, _ = items.pop(0); g.append(f); left -= c
        gaps[24] = [T(XB)]
        for k in range(25, 72):
            gaps[k] = []; fill(gaps[k], k, 8)
        run(e, s_ + o, gaps)
        def post():
            e(PREP0)
            for t in PREP: e(t.replace(f"s{S_T0}", f"s{S_T5}"))
            e.need(vm=["KV"])
            e("s_barrier")
            itstamp()
            mem = A + B[:4]; lds = qr + kreads(e, 0) + kreads(e, 1)
            gaps = {k: [mem.pop(0)] if k % 4 == 0 else [lds.pop(0), lds.pop(0)] for k in range(16)}
            run(e, d_mfmas(), gaps)
            extra = []
            for f in mem: extra += [f, NOP]
            emit_items(items, extra) if items else [(f(), e("s_nop 0")) for f in mem]
            del items[:]
            for t in MS: e(t)
            e(f"s_mov_b32 s{S_TRANS}, 17")
            e.need(lg=[("FR", 0)])
            assert e.lgkm == top, e.lgkm
            e("s_branch L_special")
        post()
        e.label("L_first")
        e(f"s_cmp_eq_u32 s{S_N}, 17\ns_cbranch_scc1 L_fzero")
        loop_body(True)
        e("s_branch L_special")
        e.label("L_fzero")
        for r in list(range(V_O, V_O + 128)) + list(range(V_S[0], V_S[0] + 64)) + [Preg(0, 0), Preg(0, 0) + 1]: e(f"v_mov_b32 v{r}, 0")
        for r in range(16): e(f"v_accvgpr_write_b32 a{A_L + r}, 0")
        e("s_branch L_final")
        e.label("L_ret0")
        e.lgkm = []; e.vm = []
        for t in rcp: e(t)
        e(XB)
        emit_items(norm_items(e, range(8), S_CTXLO))
        post()
    e.cold = cold
    e.label("L_final")
    stamp(e, 8)
    tw, trd, tl, tlr = V_TMP[0:4]
    e(f"""s_lshl_b32 s{S_T0}, s{w}, 17
    s_lshl_b32 s{S_AC}, s{h}, 19
    s_add_u32 s{S_AC}, s{S_AC}, s{S_T0}
    s_add_u32 s{S_AC}, s{S_AC}, {WS_CTX}
    s_lshl_b32 s{S_WOo}, s{i}, 19
    s_add_u32 s{S_WOo}, s{S_WOo}, s{S_T0}
    s_add_u32 s{S_WOo}, s{S_WOo}, {WS_WOF}
    s_and_b32 s{S_T0}, s{w}, 1
    s_lshl_b32 s{S_T0}, s{S_T0}, 14
    s_lshr_b32 s{S_T1}, s{w}, 1
    s_lshl_b32 s{S_T1}, s{S_T1}, 16
    s_add_u32 s{S_T0}, s{S_T0}, s{S_T1}
    v_add_u32 v{tw}, s{S_T0}, v{V_L16}
    v_xor_b32 v{trd}, {65536 + 16384}, v{tw}
    s_add_u32 s{S_T0}, s{S_WL}, {144*1024}
    v_add_u32 v{tl}, s{S_T0}, v{V_L16}
    v_xor_b32 v{tlr}, 3072, v{tl}
    s_cmp_ge_u32 s{w}, 2
    s_cbranch_scc1 L_mergeB""")
    for role in range(2):
        keep = list(range(4)) if role == 0 else list(range(4, 8))
        send = list(range(4, 8)) if role == 0 else list(range(4))
        if role == 1: e.label("L_mergeB")
        e.lgkm = list(top); e.vm = ["KV"]*13
        order = (2, 3, 0, 1) if role == 0 else (0, 1, 2, 3)
        drain_head(e, order)
        o, s_ = pv2(order)
        gaps = {2*k: [lambda k=k: wo_load(e, k // 4, k % 4)] for k in range(8)}
        for k in range(8): gaps[45 + 3*k] = [lambda k=k: wo_load(e, 2 + k // 4, k % 4)]
        gaps[17] = [T(LRD[0])]; gaps[18] = [T(LRD[1])]
        gaps[19] = [lambda: e.ds(f"ds_write_b128 v{tl}, {vr(LR[0])}")]
        for n in range(16): gaps[23 + 3*n] = [lambda n=n: e.ds(f"ds_write_b128 v{tw}, {vr(V_O + send[0]*16 + n*4)} offset:{n*1024}")]
        if OPT.get("fst"): stamp(e, 14)
        run(e, s_ + o, gaps)
        if OPT.get("fst"): stamp(e, 15)
        e.wait_all(vm=False)
        e("s_barrier")
        if OPT.get("fst"): stamp(e, 16)
        e.ds(f"ds_read_b128 {vr(V_TMP[4])}, v{tlr}", "ML")
        for n in range(16):
            e.ds(f"ds_read_b128 {vr(V_S[0] + n*4)}, v{trd} offset:{n*1024}", ("MO", n // 4))
            if n % 2: wo_load(e, 4 + n // 8, (n // 2) % 4)
        e.need(lg=["ML"])
        for qb in range(4): e(f"v_add_f32 v{LR[qb]}, v{LR[qb]}, v{V_TMP[4] + qb}")
        for t in check_lines(1 + role, S_QTHI): e(t)
        for n in range(16):
            e.need(lg=[("MO", n // 4)])
            for r in range(4):
                o = V_O + keep[0]*16 + n*4 + r
                e(f"v_add_f32 v{o}, v{o}, v{V_S[0] + n*4 + r}")
        e.label(f"L_ret{1 + role}")
        for q in range(4): wo_load(e, 6, q)
        if OPT.get("fst"): stamp(e, 17)
        for qb in range(4): e(f"v_rcp_f32 v{LR[qb]}, v{LR[qb]}")
        e(f"v_add_u32 v{tw}, 32768, v{tw}")
        emit_items(norm_items(e, keep, S_CTXHI))
        if role == 0: e("s_branch L_attdone")
    e.label("L_attdone")
    stamp(e, 9)

def slow_path(e):
    M = V_P[1]; AL = V_P[1] + 4; T = V_P[1] + 8; QI = V_P[1] + 12; NI = V_P[1] + 13
    u, nu, ko, vo = S_T0, S_T1, S_T3, S_T5
    e.label("L_slow")
    e.lgkm = []; e.vm = []
    e("s_waitcnt vmcnt(0) lgkmcnt(0)")
    e(f"""s_lshl_b32 s{nu}, s{S_CNT}, 1
    s_add_u32 s{nu}, s{nu}, 2
    s_lshl_b32 s{ko}, s{S_HEAD}, 19
    s_add_u32 s{vo}, s{ko}, {WS_V}
    s_add_u32 s{ko}, s{ko}, {WS_K}
    s_lshl_b32 s{S_CNT}, s{S_CNT}, 6
    v_lshrrev_b32 v{T}, 4, v{V_LANE}
    v_lshlrev_b32 v{T}, 2, v{T}
    v_and_b32 v{QI}, 15, v{V_LANE}
    v_sub_u32 v{QI}, v{QI}, v{T}
    v_add_u32 v{QI}, s{S_CNT}, v{QI}
    v_mov_b32 v{NI}, {NEGINF:#x}
    s_mov_b32 s{u}, 0""")
    for r in range(128): e(f"v_mov_b32 v{V_O + r}, 0")
    for qb in range(4): e(f"v_mov_b32 v{M+qb}, v{NI}\nv_mov_b32 v{LR[qb]}, 0")
    e.label("L_slowl")
    def ld8(so):
        for j in range(8):
            if j == 4: e(f"s_add_u32 s{so}, s{so}, 4096")
            e.vmem(f"buffer_load_dwordx4 {ar(A_FB[1] + j*4)}, v{V_L16}, {srd(S_WS)}, s{so} offen offset:{(j%4)*1024}{SC}", "SL")
        e(f"s_add_u32 s{so}, s{so}, 4096")
    ld8(ko)
    e.wait_all()
    for kb2 in range(2):
        for dg in range(4):
            for qb in range(4):
                d = vr(Sreg(0, kb2, qb))
                e(mf(d, ar(A_FB[1] + (kb2*4+dg)*4), ar(A_Q + (qb*4+dg)*4), d if dg else "0"))
    e("s_nop 7")
    ld8(vo)
    for kb2 in range(2):
        for qb in range(4):
            for r in range(4):
                s = Sreg(0, kb2, qb) + r
                e(f"v_cmp_gt_i32 vcc, {16*kb2 + r - 16*qb}, v{QI}\ns_nop 1\nv_cndmask_b32 v{s}, v{s}, v{NI}, vcc")
    e(f"v_subrev_u32 v{QI}, 32, v{QI}")
    for qb in range(4):
        a, b = Sreg(0, 0, qb), Sreg(0, 1, qb)
        e(f"""v_max3_f32 v{T}, v{a}, v{a+1}, v{a+2}
        v_max3_f32 v{T}, v{T}, v{a+3}, v{b}
        v_max3_f32 v{T}, v{T}, v{b+1}, v{b+2}
        v_max3_f32 v{T}, v{T}, v{b+3}, v{M+qb}
        v_mov_b32 v{T+1}, v{T}
        s_nop 1
        v_permlane32_swap_b32 v{T}, v{T+1}
        v_max_f32 v{T}, v{T}, v{T+1}
        v_mov_b32 v{T+1}, v{T}
        s_nop 1
        v_permlane16_swap_b32 v{T}, v{T+1}
        v_max_f32 v{T}, v{T}, v{T+1}
        v_sub_f32 v{AL+qb}, v{M+qb}, v{T}
        v_mov_b32 v{M+qb}, v{T}
        v_exp_f32 v{AL+qb}, v{AL+qb}""")
        for s in list(range(a, a+4)) + list(range(b, b+4)):
            e(f"v_sub_f32 v{s}, v{s}, v{T}")
        for s in list(range(a, a+4)) + list(range(b, b+4)):
            e(f"v_exp_f32 v{s}, v{s}")
        e(f"v_mul_f32 v{LR[qb]}, v{LR[qb]}, v{AL+qb}")
        for s in list(range(a, a+4)) + list(range(b, b+4)):
            e(f"v_add_f32 v{LR[qb]}, v{LR[qb]}, v{s}")
        p = Preg(0, qb)
        e(f"v_cvt_pk_bf16_f32 v{p}, v{a}, v{a+1}\nv_cvt_pk_bf16_f32 v{p+1}, v{a+2}, v{a+3}\nv_cvt_pk_bf16_f32 v{p+2}, v{b}, v{b+1}\nv_cvt_pk_bf16_f32 v{p+3}, v{b+2}, v{b+3}")
        for db in range(8):
            for r in range(4): e(f"v_mul_f32 v{Oreg(db, qb)+r}, v{Oreg(db, qb)+r}, v{AL+qb}")
    e.wait_all()
    e("s_nop 1")
    for db in range(8):
        for qb in range(4):
            d = vr(Oreg(db, qb))
            e(mf(d, ar(A_FB[1] + db*4), vr(Preg(0, qb)), d))
    e(f"s_add_u32 s{u}, s{u}, 1\ns_cmp_lt_u32 s{u}, s{nu}\ns_nop 7\ns_cbranch_scc1 L_slowl")
    for qb in range(4):
        e(f"""v_mov_b32 v{T}, v{LR[qb]}
        s_nop 1
        v_permlane32_swap_b32 v{LR[qb]}, v{T}
        v_add_f32 v{LR[qb]}, v{LR[qb]}, v{T}
        v_mov_b32 v{T}, v{LR[qb]}
        s_nop 1
        v_permlane16_swap_b32 v{LR[qb]}, v{T}
        v_add_f32 v{LR[qb]}, v{LR[qb]}, v{T}""")
    e(f"s_cmp_eq_u32 s{S_RET}, 0\ns_cbranch_scc1 L_ret0\ns_cmp_eq_u32 s{S_RET}, 1\ns_cbranch_scc1 L_ret1\ns_branch L_ret2")


def phase_d(e, poll_c):
    qt, mt, w = S_HEAD, S_BLK, S_WAVE
    V_XO, V_X, V_G = 4, 8, 17
    V_CR, NCR = 64, 4
    V_AS, V_AD = 128, 192
    t0, t1 = 24, 25
    S_XO = S_XNB
    for j in range(16):
        e.ds(f"ds_write_b128 v{V_TMP[0]}, {ar(A_DACC + j*4)} offset:{((j%4)*4 + j//4)*1024}", "DW")
        if j < OPT.get("wpre", 12): wo_load(e, 7 + j // 4, j % 4)
    e(f"""v_and_b32 v{t0}, 15, v{V_LANE}
    v_lshlrev_b32 v{t0}, 10, v{t0}
    v_lshrrev_b32 v{t1}, 4, v{V_LANE}
    v_lshl_add_u32 v{V_XO}, v{t1}, 3, v{t0}
    s_lshl_b32 s{S_XO}, s{qt}, 16
    s_lshl_b32 s{S_T0}, s{w}, 14
    s_add_u32 s{S_XO}, s{S_XO}, s{S_T0}
    s_lshl_b32 s{S_T1}, s{mt}, 7
    s_add_u32 s{S_XO}, s{S_XO}, s{S_T1}
    v_subrev_u32 v{t1}, 32768, v{V_TMP[0]}
    s_lshl_b32 s{S_T0}, s{w}, 12
    v_add_u32 v{t0}, s{S_T0}, v{V_L16}
    v_add_u32 v{V_G}, 65536, v{t0}""")
    if OPT.get("pollw", 1):
        v = poll_c.voff
        e(f"""s_lshr_b32 s{S_T0}, s{qt}, 1
        s_sub_u32 s{S_T1}, 15, s{S_T0}
        s_min_u32 s{S_T0}, s{S_T0}, s{S_T1}
        s_lshl_b32 s{S_T0}, s{S_T0}, 9
        s_lshl_b32 s{S_T1}, s{w}, 3
        s_add_u32 s{S_T0}, s{S_T0}, s{S_T1}
        s_add_u32 s{S_T0}, s{S_T0}, {WS_FC}
        v_and_b32 v{v}, 3, v{V_LANE}
        v_lshlrev_b32 v{v}, 7, v{v}
        v_and_or_b32 v{v}, v{V_LANE}, 4, v{v}
        v_add_u32 v{v}, s{S_T0}, v{v}""")
    else: poll32_addr(e, poll_c.voff, WS_FC)
    if OPT.get("fst"): stamp(e, 18)
    e.need(vm=["CST"]); e.wait_all(vm=False)
    if OPT.get("fst"): stamp(e, 19)
    e("s_barrier")
    if OPT.get("fst"): stamp(e, 20)
    signal(e, sig_lin(WS_FC), 26)
    for sw in range(4):
        for mb in range(4): e.ds(f"ds_read_b128 {vr(V_AD + (sw*4+mb)*4)}, v{V_G if sw >= 2 else t0} offset:{32768 + (sw % 2)*16384 + mb*1024}", ("R", sw))
    for mb in range(4):
        e.vmem(f"buffer_load_dwordx2 v[{V_X+2*mb}:{V_X+2*mb+1}], v{V_XO}, {srd(S_X)}, s{S_XO} offen offset:{mb*32}", "X")
    wl = [lambda n=n, q=q: wo_load(e, n, q) for n in range(7, NWS) for q in range(4)][OPT.get("wpre", 12):]
    cnt = [0]
    def V(t):
        e(t); cnt[0] += 1
        if cnt[0] % 6 == 0 and wl: wl.pop(0)()
    def rnd(base, pk):
        for j in range(8): V(f"v_cvt_pk_bf16_f32 v{pk+j}, v{base+2*j}, v{base+2*j+1}")
        for j in range(8): V(f"v_lshlrev_b32 v{base+2*j}, 16, v{pk+j}"); V(f"v_and_b32 v{base+2*j+1}, 0xffff0000, v{pk+j}")
    def red(base, tag):
        e.need(lg=[(tag, 1)])
        for r in range(16): V(f"v_add_f32 v{base+r}, v{base+r}, v{base+16+r}")
        e.need(lg=[(tag, 3)])
        for r in range(16): V(f"v_add_f32 v{base+32+r}, v{base+32+r}, v{base+48+r}")
        for r in range(16): V(f"v_add_f32 v{base+r}, v{base+r}, v{base+32+r}")
    T = V_AD + 16; PK = V_AD + 32
    red(V_AD, "R"); rnd(V_AD, PK)
    for r in range(16): V(f"v_mul_f32 v{T+r}, 0xbfb8aa3b, v{V_AD+r}")
    for r in range(16): V(f"v_exp_f32 v{T+r}, v{T+r}")
    for r in range(16): V(f"v_add_f32 v{T+r}, 1.0, v{T+r}")
    for r in range(16): V(f"v_rcp_f32 v{T+r}, v{T+r}")
    for r in range(16): V(f"v_mul_f32 v{V_AD+r}, v{V_AD+r}, v{T+r}")
    rnd(V_AD, PK)
    while len(wl) > 8: wl.pop(0)()
    poll_c.issue()
    while wl: wl.pop(0)()
    stamp(e, 10); poll_c.check(); stamp(e, 11)
    def c_load(n, q):
        e.vmem(f"buffer_load_dwordx4 {vr(V_CR + (n % NCR)*16 + q*4)}, v{V_L16}, {srd(S_WS)}, s{S_AC} offen offset:{q*1024}{SC}", ("C", n))
        if q == 3: e(f"s_add_u32 s{S_AC}, s{S_AC}, 4096")
    if OPT.get("dchain", 0):
        for n in range(2):
            for q in range(4): c_load(n, q)
        for n in range(0, 32, 2):
            ld = []
            for t in range(2):
                if n + 2 + t < 32: ld += [lambda q=q, t=t: c_load(n + 2 + t, q) for q in range(4)]
            for t in range(2):
                if n >= 2 and n + NWS - 2 + t < 32: ld += [lambda q=q, t=t: wo_load(e, n + NWS - 2 + t, q) for q in range(4)]
            for _ in range(min(4, len(ld))): ld.pop(0)()
            e.need(vm=[("C", n), ("C", n + 1), ("WO", n), ("WO", n + 1)])
            for k in range(32):
                c = k // 2; mb = c // 4; qb = c % 4 if mb % 2 == 0 else 3 - c % 4
                t = k % 2 if c % 2 == 0 else 1 - k % 2
                d = vr(V_AS + (mb*4 + qb)*4)
                e(mf(d, wreg(n + t, mb), vr(V_CR + ((n + t) % NCR)*16 + qb*4), d if (n or k % 2) else "0"))
                if k % 2 == 0 and ld: ld.pop(0)()
    else:
        for n in range(NCR - 1):
            for q in range(4): c_load(n, q)
        for n in range(32):
            ld = []
            if n + NCR - 1 < 32: ld += [lambda q=q: c_load(n + NCR - 1, q) for q in range(4)]
            if n >= 1 and n + NWS - 1 < 32: ld += [lambda q=q: wo_load(e, n + NWS - 1, q) for q in range(4)]
            e.need(vm=[("C", n), ("WO", n)])
            for k in range(16):
                mb, qb = k // 4, k % 4
                d = vr(V_AS + k*4)
                e(mf(d, wreg(n, mb), vr(V_CR + (n % NCR)*16 + qb*4), d if n else "0"))
                if k % 2 == 0 and ld: ld.pop(0)()
    stamp(e, 12)
    e("s_nop 7")
    for j in range(16): e.ds(f"ds_write_b128 v{t1}, {vr(V_AS + j*4)} offset:{((j%4)*4 + j//4)*1024}", "SW")
    e.need(vm=["X"])
    for j in range(8): e(f"v_lshlrev_b32 v{T+2*j}, 16, v{V_X+j}"); e(f"v_and_b32 v{T+2*j+1}, 0xffff0000, v{V_X+j}")
    e.wait_all(vm=False)
    e("s_barrier")
    for sw in range(4):
        for mb in range(4): e.ds(f"ds_read_b128 {vr(V_AS + (sw*4+mb)*4)}, v{V_G if sw >= 2 else t0} offset:{(sw % 2)*16384 + mb*1024}", ("RS", sw))
    red(V_AS, "RS"); rnd(V_AS, PK)
    for r in range(16): e(f"v_mul_f32 v{V_AS+r}, v{V_AS+r}, v{V_AD+r}")
    rnd(V_AS, PK)
    for r in range(16): e(f"v_add_f32 v{V_AS+r}, v{V_AS+r}, v{T+r}")
    for j in range(8): e(f"v_cvt_pk_bf16_f32 v{PK+j}, v{V_AS+2*j}, v{V_AS+2*j+1}")
    for mb in range(4):
        e.vmem(f"buffer_store_dwordx2 v[{PK+2*mb}:{PK+2*mb+1}], v{V_XO}, {srd(S_OUT)}, s{S_XO} offen offset:{mb*32}{OPT.get('outsc', '')}", "OUT")
    e("s_cmp_lg_u32 s2, 0")
    e("s_cbranch_scc1 L_nobump")
    signal(e, f"s_mov_b32 s{S_CNT}, {WS_EP}", 26)
    e.label("L_nobump")
    stamp(e, 13)

HEADER = open("cdna_kernels/" + NAME + ".s.ref").read().split("; Override launch geometry")[0]
def build():
    e = E(); body(e)
    n = 0
    def policy(roleB, trans, slow, spin):
        def d(lb, site, c):
            if lb == "L_body": return (c == 0) if site < 2 else True
            if lb == "L_first": return trans and c == 2
            if lb == "L_fzero": return trans == 2
            if lb == "L_late": return c != 1
            if lb == "L_trans": return trans and c == 0
            if lb == "L_mergeB": return roleB
            if lb == "L_slow": return slow
            if lb == "L_slowl": return c % 2 == 0
            if lb == "L_ret0": return trans and c == 0
            if lb == "L_ret1": return not roleB
            if lb.startswith("L_spin_"): return spin and c == 0
            if lb.startswith("L_ok_"): return c >= 1
            if lb.startswith("L_spinl_"): return True
            return False
        return d
    for cfg in ((0, 0, 0, 0), (1, 1, 0, 0), (0, 0, 1, 1), (1, 1, 1, 1), (1, 2, 0, 0)):
        tr = chk.trace(e.L, policy(*cfg))
        assert "s_endpgm" in tr[-1], cfg
        n += chk.check(tr, f"path{cfg}")
    if n: print(f"{n} hazards", file=sys.stderr)
    return "\n".join([HEADER.rstrip("\n"), "; @launch grid=(256,1,1) block=(256,1,1) lds=163840",
        '.amdgcn_target "amdgcn-amd-amdhsa--gfx950"\n.text', e.text(), '.section .rodata,"a"\n.p2align 6',
        f""".amdhsa_kernel {KN}
  .amdhsa_next_free_vgpr 512
  .amdhsa_next_free_sgpr 102
  .amdhsa_accum_offset 256
  .amdhsa_group_segment_fixed_size 0
  .amdhsa_kernarg_size 104
  .amdhsa_user_sgpr_count 2
  .amdhsa_user_sgpr_kernarg_segment_ptr 1
  .amdhsa_system_sgpr_workgroup_id_x 1
.end_amdhsa_kernel
"""])
if __name__ == "__main__":
    open(sys.argv[1], "w").write(build())
```

```python
import sys, math, os, struct
from emit import E, Filler
import check as chk

NAME = "recurrent_scan__compressed_kv_cla__glu_gated_geglu__prompt"
KN = NAME + "_kernel"
MB = 1 << 20
OPT = eval(os.environ.get("OPT", "{}"))
STAMPS = os.environ.get("STAMPS")
POLLALL = OPT.get("pollall", 0)
WS_XN, WS_H, WS_WDF, WS_WOF, WS_CTX, WS_K, WS_V, WS_END = 0, 2*MB, 9*MB, 12*MB, 16*MB, 32*MB, 48*MB, 64*MB
fb = lambda x: struct.unpack("<I", struct.pack("<f", x))[0]

S_X, S_CKV, S_WQ, S_WUK, S_WUV, S_WO, S_WG, S_WU, S_WD, S_OUT, S_DBG, S_WS = [8 + 4*i for i in range(12)]
S_HSRD, S_ASRD, S_BSRD = 56, 60, 64
S_WAVE, S_HEAD, S_BLK, S_ROT = 68, 69, 70, 71
S_T0, S_T1, S_T2, S_T3, S_T4, S_T5 = 72, 73, 74, 75, 76, 77
S_WL, S_WA = 78, 79
S_OFF0, S_OFFA, S_AROW, S_KVST, S_XNB, S_HST = 80, 81, 82, 83, 84, 85
S_CTXLO, S_CTXHI = 86, 87
S_SRCA, S_SRCB, S_LA, S_LB, S_VMAXB, S_VCLB = 88, 89, 90, 91, 92, 93
S_N, S_EVT, S_TRANS, S_N0 = 94, 95, 96, 97
S_QT, S_QTHI, S_RET, S_CNT = 98, 99, 100, 101
S_ROTB, S_DW, S_DH, S_DINC = 48, 49, 50, 51
S_GJ = 7
S_GSRD = S_CKV
S_DSRD = S_HSRD
S_FL = 6
def srd(n): return f"s[{n}:{n+3}]"
def mf(d, a, b, c): return f"v_mfma_f32_16x16x32_bf16 {d}, {a}, {b}, {c}"
def vr(n, k=4): return f"v[{n}:{n+k-1}]"
def ar(n, k=4): return f"a[{n}:{n+k-1}]"

V_LANE, V_STAMP, V_L16 = 1, 2, 3
V_TR = (4, 5, 6, 7)
V_WOFF = (8, 9, 10, 11)
V_AOFF = (12, 13)
V_WOFG = (12, 13)
V_ARD = (14, 15)
V_TMP = list(range(16, 32))
V_POLL = 0
V_WF, V_PK, V_ACC = 32, 64, 128
def acc(db, rb): return V_ACC + (db*4 + rb)*4
def actf(ks, rb): return (ks*4 + rb)*4
V_RD = 4
V_TD, V_TN, V_LIM = 16, 20, 24
V_P, V_S, V_O = (32, 48), (64, 96), 128
A_Q, A_FB, A_DACC, A_L, A_ONE, A_DOP = 0, (64, 96), 128, 192, 208, 224
QSCALE = fb(math.log2(math.e) / math.sqrt(128.0))
NEGINF = 0xff800000
def Sreg(buf, kb2, qb): return V_S[buf] + (kb2*4 + qb)*4
def Preg(buf, qb): return V_P[buf] + qb*4
def Oreg(db, qb): return V_O + (db*4 + qb)*4
SC = " sc1"

def stamp(e, idx):
    if not STAMPS: return
    if OPT.get("padat"):
        if idx == OPT["padat"][0]:
            e(f"s_nop 1\nv_readlane_b32 s5, v{V_STAMP}, 0\ns_add_u32 s{S_CNT}, s5, {OPT['padat'][1]*100}")
            e.label("L_padat")
            e(f"s_memrealtime s[4:5]\ns_waitcnt lgkmcnt(0)\ns_sub_u32 s5, s4, s{S_CNT}\ns_cmp_lt_i32 s5, 0\ns_cbranch_scc1 L_padat")
            e.lgkm = []
        return
    e(("s_memtime" if STAMPS == "2" else "s_memrealtime") + " s[4:5]")
    e.wait_all(vm=False)
    e(f"v_writelane_b32 v{V_STAMP}, s4, {idx}")
def stamp_flush(e):
    if not STAMPS: return
    if OPT.get("dbgst"):
        e(f"""s_load_dwordx2 s[8:9], s[0:1], 88
        s_mov_b32 s10, 256
        s_mov_b32 s11, 0x20000
        v_readlane_b32 s4, v{V_STAMP}, 0
        s_not_b32 s4, s4
        s_nop 3
        v_writelane_b32 v{V_STAMP}, s4, 14
        v_lshlrev_b32 v0, 2, v{V_LANE}
        v_cmp_gt_u32 vcc, 15, v{V_LANE}
        s_and_saveexec_b64 s[6:7], vcc
        s_waitcnt lgkmcnt(0)
        buffer_atomic_umax v{V_STAMP}, v0, s[8:11], 0 offen
        s_waitcnt vmcnt(0)""")
        return
    e(f"""s_lshl_b32 s4, s2, 2
    s_add_u32 s4, s4, s{S_WAVE}
    s_lshl_b32 s4, s4, 7
    s_add_u32 s4, s4, {64*MB}
    v_lshlrev_b32 v0, 2, v{V_LANE}
    v_cmp_gt_u32 vcc, 32, v{V_LANE}
    s_and_saveexec_b64 s[6:7], vcc
    buffer_store_dword v{V_STAMP}, v0, {srd(S_WS)}, s4 offen
    s_waitcnt vmcnt(0)""")

WS_EP = 11*MB
WS_FX, WS_FK, WS_FB, WS_FC = WS_EP + 4096, WS_EP + 8192, WS_EP + 12288, WS_EP + 16384
S_TAG = 3
def signal(e, soff_lines, tmp):
    e(soff_lines)
    e(f"""v_mov_b32 v{tmp}, s{S_TAG}
    v_add_u32 v{tmp+1}, s{S_WL}, v{V_LANE}
    v_min_u32 v{tmp+1}, 1, v{tmp+1}
    v_lshlrev_b32 v{tmp+1}, 30, v{tmp+1}""")
    e.vmem(f"buffer_store_dword v{tmp}, v{tmp+1}, {srd(S_WS)}, s{S_CNT} offen sc1", "SIG")
def sig_lin(base):
    return f"""s_lshr_b32 s{S_CNT}, s2, 3
    s_lshl_b32 s{S_CNT}, s{S_CNT}, 7
    s_and_b32 s{S_FL}, s2, 7
    s_lshl_b32 s{S_FL}, s{S_FL}, 2
    s_add_u32 s{S_CNT}, s{S_CNT}, s{S_FL}
    s_add_u32 s{S_CNT}, s{S_CNT}, {base}"""
SIG_KV = f"""s_and_b32 s{S_CNT}, s2, 31
    s_lshl_b32 s{S_CNT}, s{S_CNT}, 7
    s_lshl_b32 s{S_FL}, s{S_BLK}, 2
    s_add_u32 s{S_CNT}, s{S_CNT}, s{S_FL}
    s_add_u32 s{S_CNT}, s{S_CNT}, {WS_FK}"""
class Poll:
    def __init__(self, e, name, voff):
        self.e, self.name, self.voff = e, name, voff
    @property
    def ld(self):
        if self.name == "b" and POLLALL: return f"buffer_load_dwordx4 a[216:219], v{self.voff}, {srd(S_WS)}, 0 offen sc1"
        return f"buffer_load_dword v{V_POLL}, v{self.voff}, {srd(S_WS)}, 0 offen sc1"
    def issue(self): self.e.vmem(self.ld, ("POLL", self.name))
    def test(self):
        if self.name == "b" and POLLALL:
            return f"""v_accvgpr_read_b32 v5, a216
            v_accvgpr_read_b32 v6, a217
            v_accvgpr_read_b32 v7, a218
            v_accvgpr_read_b32 v{V_POLL}, a219
            v_xor_b32 v5, v5, v{V_POLL}
            v_xor_b32 v6, v6, v{V_POLL}
            v_xor_b32 v7, v7, v{V_POLL}
            v_or3_b32 v5, v5, v6, v7
            v_xor_b32 v{V_POLL}, s{S_TAG}, v{V_POLL}
            v_or_b32 v5, v5, v{V_POLL}
            v_cmp_eq_u32 vcc, 0, v5
            s_cmp_eq_u64 vcc, exec"""
        return f"v_cmp_eq_u32 vcc, s{S_TAG}, v{V_POLL}\ns_cmp_eq_u64 vcc, exec"
    def check(self):
        e = self.e
        e.need(vm=[("POLL", self.name)])
        e(self.test())
        e(f"s_cbranch_scc0 L_spin_{self.name}")
        e.label(f"L_ok_{self.name}")
    def spin(self):
        e = self.e
        e.label(f"L_spin_{self.name}")
        e(f"s_mov_b32 s{S_CNT}, 0x40000")
        e.label(f"L_spinl_{self.name}")
        e("s_sleep 2")
        e(self.ld)
        e("s_waitcnt vmcnt(0)")
        e(self.test())
        e(f"s_cbranch_scc1 L_ok_{self.name}")
        e(f"s_sub_u32 s{S_CNT}, s{S_CNT}, 1")
        e(f"s_cmp_lg_u32 s{S_CNT}, 0")
        e(f"s_cbranch_scc1 L_spinl_{self.name}")
        e(f"s_branch L_ok_{self.name}")
def poll32_addr(e, v, base):
    e(f"""s_lshr_b32 s{S_T0}, s{S_HEAD}, 1
    s_sub_u32 s{S_T1}, 15, s{S_T0}
    s_min_u32 s{S_T0}, s{S_T0}, s{S_T1}
    s_lshl_b32 s{S_T0}, s{S_T0}, 9
    s_add_u32 s{S_T0}, s{S_T0}, {base}
    v_bfe_u32 v{v}, v{V_LANE}, 3, 2
    v_lshlrev_b32 v{v}, 5, v{v}
    v_and_or_b32 v{v}, v{V_LANE}, 7, v{v}
    v_lshlrev_b32 v{v}, 2, v{v}
    v_add_u32 v{v}, s{S_T0}, v{v}""")

def kernel_head(e):
    e(f".globl {KN}\n.p2align 8\n.type {KN},@function")
    e.label(KN)
    e("s_cmp_ge_u32 s2, 256")
    e("s_cbranch_scc1 L_end")
    sizes = {S_X: (0, 2*MB), S_CKV: (8, 2*MB), S_WUK: (24, 4*MB), S_WS: (96, 65*MB if STAMPS else WS_END), S_WQ: (16, 4*MB), S_WUV: (32, 4*MB), S_WO: (40, 4*MB),
             S_WG: (56, 512*3584), S_WU: (64, 512*3584), S_WD: (72, 1792*1024), S_OUT: (80, 2*MB)}
    first = (S_X, S_CKV, S_WUK, S_WS)
    if OPT.get("st0") == 1: e("s_memrealtime s[6:7]\ns_waitcnt lgkmcnt(0)")
    for sr in first: e(f"s_load_dwordx2 s[{sr}:{sr+1}], s[0:1], {sizes[sr][0]}")
    if OPT.get("st0") == 2: e("s_waitcnt lgkmcnt(0)\ns_memrealtime s[6:7]")
    if STAMPS and not OPT.get("st0"): e(("s_memtime" if STAMPS == "2" else "s_memrealtime") + " s[6:7]")
    e(f"v_and_b32 v{V_LANE}, 63, v0")
    e("v_lshrrev_b32 v2, 6, v0")
    e(f"v_lshlrev_b32 v{V_L16}, 4, v{V_LANE}")
    e(f"v_readfirstlane_b32 s{S_WAVE}, v2")
    if OPT.get("pfcode", 1):
        e(f"""s_getpc_b64 s[4:5]
        s_lshr_b32 s{S_T0}, s2, 3
        s_lshl_b32 s{S_T0}, s{S_T0}, 11
        v_lshlrev_b32 v{V_TMP[0]}, 3, v2
        v_and_or_b32 v{V_TMP[0]}, v0, 7, v{V_TMP[0]}
        v_lshlrev_b32 v{V_TMP[0]}, 6, v{V_TMP[0]}
        v_add_u32 v{V_TMP[0]}, s{S_T0}, v{V_TMP[0]}
        v_min_u32 v{V_TMP[0]}, L_end-L_pcref, v{V_TMP[0]}""")
        e.label("L_pcref")
        e.vmem(f"global_load_dword v{V_TMP[12]}, v{V_TMP[0]}, s[4:5]", "PF")
    e(f"""s_and_b32 s{S_T0}, s2, 7
    s_lshl_b32 s{S_T0}, s{S_T0}, 2
    s_lshr_b32 s{S_T1}, s2, 3
    s_and_b32 s{S_T1}, s{S_T1}, 3
    s_add_u32 s{S_HEAD}, s{S_T0}, s{S_T1}
    s_lshr_b32 s{S_BLK}, s2, 5
    s_mul_i32 s{S_T0}, s{S_T1}, {OPT.get('rota', 0)}
    s_add_u32 s{S_ROT}, s{S_BLK}, s{S_T0}
    s_mul_i32 s{S_T0}, s2, {OPT.get('rotx', 1)}
    s_add_u32 s{S_ROT}, s{S_ROT}, s{S_T0}
    s_and_b32 s{S_ROT}, s{S_ROT}, 7
    s_and_b32 s{S_ROTB}, s{S_BLK}, 3
    s_lshl_b32 s{S_WL}, s{S_WAVE}, 10
    s_lshl_b32 s{S_WA}, s{S_WAVE}, 13
    s_add_u32 s{S_WA}, s{S_WA}, 65536""")
    if STAMPS: e("v_mov_b32 v2, -1")
    for sr in first: e(f"s_mov_b32 s{sr+2}, {sizes[sr][1]}\ns_mov_b32 s{sr+3}, 0x20000")
    setup_addrs(e)
    e(f"v_add_u32 v{V_ARD[0]}, s{S_WA}, v{V_ARD[0]}\nv_xor_b32 v{V_ARD[1]}, 64, v{V_ARD[0]}")
    scalar_setup(e)
    e(f"s_lshl_b32 s{S_T0}, s2, 13\ns_lshl_b32 s{S_T1}, s{S_WAVE}, 11\ns_add_u32 s{S_T0}, s{S_T0}, s{S_T1}")
    def late():
        for sr, (p, n) in sizes.items():
            if sr not in first: e(f"s_load_dwordx2 s[{sr}:{sr+1}], s[0:1], {p}\ns_mov_b32 s{sr+2}, {n}\ns_mov_b32 s{sr+3}, 0x20000")
        for sr in (S_HSRD, S_ASRD, S_BSRD): e(f"s_mov_b64 s[{sr}:{sr+1}], s[{S_WS}:{S_WS+1}]\ns_mov_b32 s{sr+2}, {WS_END}\ns_mov_b32 s{sr+3}, 0x20000")
        e(f"s_add_u32 s{S_FL}, s{S_WS}, {WS_EP}\ns_addc_u32 s{S_FL+1}, s{S_WS+1}, 0\ns_load_dword s{S_TAG}, s[{S_FL}:{S_FL+1}], 0")
    def go():
        e("s_waitcnt lgkmcnt(0)")
        if STAMPS: e("v_writelane_b32 v2, s6, 0")
        e.vmem(f"buffer_load_dwordx4 v[64:67], v{V_L16}, {srd(S_X)}, s{S_T0} offen", "X")
        e.vmem(f"buffer_load_dwordx4 v[68:71], v{V_L16}, {srd(S_X)}, s{S_T0} offen offset:1024", "X")
    return go, late

V_CPF = 31
V_KPERM = 31
V_UOFF = 30
def setup_addrs(e):
    t0, t1, t2, t3, t4 = V_TMP[:5]
    e(f"""v_lshrrev_b32 v{t0}, 2, v{V_LANE}
    v_lshlrev_b32 v{t0}, 7, v{t0}
    v_and_b32 v{t1}, 3, v{V_LANE}
    v_lshlrev_b32 v{t1}, 3, v{t1}
    v_add_u32 v{t0}, v{t0}, v{t1}
    v_bfe_u32 v{t1}, v{V_LANE}, 3, 2
    v_lshlrev_b32 v{t1}, 5, v{t1}
    v_add_u32 v{V_TR[0]}, v{t0}, v{t1}""")
    for c in (1, 2, 3): e(f"v_xor_b32 v{V_TR[c]}, {c*32}, v{V_TR[0]}")
    e(f"""v_lshrrev_b32 v{t0}, 3, v{V_LANE}
    v_and_b32 v{t1}, 7, v{V_LANE}
    v_and_b32 v{t2}, 6, v{t0}
    v_xor_b32 v{t1}, v{t1}, v{t2}
    v_lshlrev_b32 v{V_UOFF}, 4, v{t1}
    s_lshl_b32 s{S_T0}, s{S_WAVE}, 3
    v_add_u32 v{t2}, s{S_T0}, v{t0}
    v_bfe_u32 v{t3}, v{t2}, 2, 2
    v_lshlrev_b32 v{t3}, 3, v{t3}
    v_lshrrev_b32 v{t4}, 4, v{t2}
    v_lshl_add_u32 v{t3}, v{t4}, 2, v{t3}
    v_and_b32 v{t4}, 3, v{t2}
    v_add_u32 v{V_KPERM}, v{t3}, v{t4}
    v_lshl_add_u32 v{V_WOFF[0]}, v{V_KPERM}, 13, v{V_UOFF}
    v_add_u32 v{V_WOFF[1]}, 128, v{V_WOFF[0]}
    v_add_u32 v{V_WOFF[2]}, {32*8192}, v{V_WOFF[0]}
    v_add_u32 v{V_WOFF[3]}, {32*8192 + 128}, v{V_WOFF[0]}
    v_and_b32 v{t1}, 7, v{V_LANE}
    v_lshrrev_b32 v{t2}, 1, v{t0}
    v_xor_b32 v{t1}, v{t1}, v{t2}
    v_lshlrev_b32 v{t1}, 4, v{t1}
    v_lshl_add_u32 v{V_AOFF[0]}, v{t0}, 10, v{t1}
    v_xor_b32 v{V_AOFF[1]}, 64, v{V_AOFF[0]}
    v_add_u32 v{V_AOFF[1]}, 8192, v{V_AOFF[1]}
    v_and_b32 v{t0}, 15, v{V_LANE}
    v_lshrrev_b32 v{t1}, 4, v{V_LANE}
    v_lshrrev_b32 v{t2}, 1, v{t0}
    v_xor_b32 v{t1}, v{t1}, v{t2}
    v_lshlrev_b32 v{t1}, 4, v{t1}
    v_lshl_add_u32 v{V_ARD[0]}, v{t0}, 7, v{t1}""")

def scalar_setup(e):
    i, h, w = S_BLK, S_HEAD, S_WAVE
    e(f"""s_lshl_b32 s{S_T0}, s{i}, 2
    s_add_u32 s{S_T0}, s{S_T0}, s{w}
    s_lshl_b32 s{S_AROW}, s{S_T0}, 16
    s_lshl_b32 s{S_KVST}, s{h}, 19
    s_lshl_b32 s{S_T0}, s{S_T0}, 14
    s_add_u32 s{S_KVST}, s{S_KVST}, s{S_T0}""")
def scalar_setup2(e):
    i, h, w = S_BLK, S_HEAD, S_WAVE
    a, b, c, d = S_N, S_EVT, S_TRANS, S_RET
    IDLE = f"s{i}" if OPT.get("spread", 1) else "7"
    return f"""s_sub_u32 s{a}, 15, s{i}
    s_cmp_lt_u32 s{w}, 2 ! s_cselect_b32 s{b}, s{a}, s{i}
    s_lshl_b32 s{b}, s{b}, 1
    s_and_b32 s{c}, s{w}, 1
    s_add_u32 s{S_QT}, s{b}, s{c}
    s_lshl_b32 s{S_XNB}, s{S_QT}, 16
    s_mul_i32 s{S_HST}, s{S_QT}, {56*4096}
    s_add_u32 s{S_HST}, s{S_HST}, {WS_H}
    s_lshl_b32 s{d}, s{h}, 14
    s_add_u32 s{d}, s{d}, {WS_CTX}
    s_lshl_b32 s{S_CTXLO}, s{S_QT}, 19
    s_add_u32 s{S_CTXLO}, s{S_CTXLO}, s{d}
    s_lshr_b32 s{b}, s{w}, 1
    s_xor_b32 s{b}, s{b}, s{w}
    s_and_b32 s{b}, s{b}, 1
    s_lshl_b32 s{a}, s{a}, 1
    s_add_u32 s{S_QTHI}, s{a}, s{b}
    s_lshl_b32 s{S_CTXHI}, s{S_QTHI}, 19
    s_add_u32 s{S_CTXHI}, s{S_CTXHI}, s{d}
    s_lshr_b32 s{a}, s{h}, 2
    s_cmp_lg_u32 s{a}, {IDLE} ! s_cselect_b32 s{S_HSRD+2}, {WS_END}, 0
    s_cmp_gt_u32 s{a}, {IDLE} ! s_cselect_b32 s{a}, 4, 0
    s_sub_u32 s{S_GJ}, s{h}, s{a}
    s_lshl_b32 s{a}, s{h}, 19
    s_mov_b32 s{b}, {WS_V}
    s_cmp_lt_u32 s{w}, 2 ! s_cselect_b32 s{b}, {WS_K}, s{b}
    s_add_u32 s{b}, s{b}, s{a}
    s_add_u32 s{S_VCLB}, s{b}, {63*8192}
    s_and_b32 s{a}, s{w}, 1
    s_lshl_b32 s{a}, s{a}, 13
    s_add_u32 s{S_SRCA}, s{b}, s{a}
    s_lshl_b32 s{a}, s{w}, 13
    s_add_u32 s{S_VMAXB}, s{b}, s{a}
    s_add_u32 s{S_VMAXB}, s{S_VMAXB}, {64*8192}
    s_min_u32 s{S_SRCB}, s{S_VMAXB}, s{S_VCLB}
    s_lshl_b32 s{S_LB}, s{w}, 13
    s_add_u32 s{S_LA}, s{S_LB}, 65536
    s_xor_b32 s{S_LB}, s{S_LB}, 32768
    s_lshl_b32 s{S_N0}, s{i}, 1
    s_add_u32 s{S_N0}, s{S_N0}, 2
    s_mul_i32 s{a}, s{w}, {14*4096}
    s_mul_i32 s{S_DH}, s{h}, {56*4096}
    s_add_u32 s{S_DH}, s{S_DH}, s{a}
    s_add_u32 s{S_DH}, s{S_DH}, {WS_H}
    s_mul_i32 s{S_DW}, s{i}, {56*4096}
    s_add_u32 s{S_DW}, s{S_DW}, s{a}
    s_add_u32 s{S_DW}, s{S_DW}, {WS_WDF}
    s_mov_b32 s{S_DINC}, 0""".split("\n")

def layernorm_lines():
    L = []; e = L.append
    X = (72, 80); SUM = (88, 89); TMP = (90, 91); MEAN = (92, 93); VAR = (94, 95)
    SS = (S_T0, S_T1)
    for r in range(2):
        for j in range(4):
            e(f"v_lshlrev_b32 v{X[r]+2*j}, 16, v{64+4*r+j}")
            e(f"v_and_b32 v{X[r]+2*j+1}, 0xffff0000, v{64+4*r+j}")
    def reduce():
        for mod in ("quad_perm:[1,0,3,2] row_mask:0xf bank_mask:0xf", "quad_perm:[2,3,0,1] row_mask:0xf bank_mask:0xf",
                    "row_half_mirror row_mask:0xf bank_mask:0xf", "row_mirror row_mask:0xf bank_mask:0xf",
                    "row_bcast:15 row_mask:0xa bank_mask:0xf", "row_bcast:31 row_mask:0xc bank_mask:0xf"):
            e("s_nop 0")
            for r in range(2): e(f"v_add_f32_dpp v{SUM[r]}, v{SUM[r]}, v{SUM[r]} {mod}")
        e("s_nop 0")
        for r in range(2): e(f"v_readlane_b32 s{SS[r]}, v{SUM[r]}, 63")
        e("s_nop 1")
    for r in range(2): e(f"v_add_f32 v{SUM[r]}, v{X[r]}, v{X[r]+1}")
    for j in range(2, 8):
        for r in range(2): e(f"v_add_f32 v{SUM[r]}, v{SUM[r]}, v{X[r]+j}")
    reduce()
    for r in range(2): e(f"v_mov_b32 v{MEAN[r]}, s{SS[r]}")
    for r in range(2): e(f"v_mul_f32 v{MEAN[r]}, 0x3b000000, v{MEAN[r]}")
    for j in range(8):
        for r in range(2): e(f"v_sub_f32 v{TMP[r]}, v{X[r]+j}, v{MEAN[r]}")
        for r in range(2): e(f"v_mul_f32 v{SUM[r]}, v{TMP[r]}, v{TMP[r]}" if j == 0 else f"v_fmac_f32 v{SUM[r]}, v{TMP[r]}, v{TMP[r]}")
    reduce()
    def both(fmt):
        for r in range(2): e(fmt.format(v=VAR[r], m=MEAN[r], s=SS[r]))
    def rnd(x):
        both("v_cvt_pk_bf16_f32 v{%s}, v{%s}, v{%s}" % (x, x, x)); both("v_lshlrev_b32 v{%s}, 16, v{%s}" % (x, x))
    both("v_mov_b32 v{v}, s{s}"); both("v_mul_f32 v{v}, 0x3b000000, v{v}")
    rnd("v"); both("v_add_f32 v{v}, 0x3727c5ac, v{v}"); rnd("v")
    both("v_sqrt_f32 v{v}, v{v}"); rnd("m"); rnd("v"); both("v_rcp_f32 v{v}, v{v}")
    for r in range(2):
        for j in range(8): e(f"v_sub_f32 v{X[r]+j}, v{X[r]+j}, v{MEAN[r]}")
        for j in range(4): e(f"v_cvt_pk_bf16_f32 v{64+4*r+j}, v{X[r]+2*j}, v{X[r]+2*j+1}")
        for j in range(4):
            e(f"v_lshlrev_b32 v{X[r]+2*j}, 16, v{64+4*r+j}")
            e(f"v_and_b32 v{X[r]+2*j+1}, 0xffff0000, v{64+4*r+j}")
        for j in range(8): e(f"v_mul_f32 v{X[r]+j}, v{X[r]+j}, v{VAR[r]}")
        for j in range(4): e(f"v_cvt_pk_bf16_f32 v{64+4*r+j}, v{X[r]+2*j}, v{X[r]+2*j+1}")
    return L

class MemQ:
    def __init__(self, e): self.e = e; self.items = []
    def add(self, kind, lo, hi, *a): self.items.append([kind, lo, hi, a])
    def fillers(self):
        e = self.e; out = []
        dm = [k for k, it in enumerate(self.items) if it[0] == 'd']
        nxt = {dm[j]: dm[j+1] for j in range(len(dm) - 1)}
        self.first_m0 = self.items[dm[0]][3][0]
        for k, (kind, lo, hi, a) in enumerate(self.items):
            if kind == 's': out.append(Filler(lambda a=a: e(a[0].replace(" ! ", "\n")), 4, "salu", lo, hi))
            elif kind == 'l': out.append(Filler(lambda a=a: e.vmem(a[0], a[1]), 4, "mem", lo, hi))
            elif kind == 'f': out.append(Filler(a[0], a[1], a[2], lo, hi))
            else:
                def fn(k=k, a=a):
                    if len(a) > 3: e.need(lg=a[3])
                    if " m0," in e.L[-1]: e("s_nop 0")
                    e.vmem(a[1], a[2])
                    if k in nxt: e(self.items[nxt[k]][3][0])
                out.append(Filler(fn, 8, "mem", lo, hi))
        return out


def body(e):
    i, h, w = S_BLK, S_HEAD, S_WAVE
    go, late = kernel_head(e)
    NS = 32; BAR = 42; INF = 10**9; P = -10**6
    mq = MemQ(e)
    def S(lo, hi, *lines):
        for t in lines: mq.add('s', lo, hi, t)
    def VV(lo, hi, *lines):
        for t in lines: mq.add('f', lo, hi, lambda t=t: e(t), 4, "valu")
    V_GOFF = V_KPERM; V_TRH = V_AOFF + V_ARD
    S_GO = S_T1
    def area(gs):
        if gs < 16: return (gs % 4)*16384
        if gs < 24: return ((gs % 4)*32768 + 65536) % 131072
        return ((gs - 24)*16384 + 65536) % 131072
    def w_stage(gs, lo, step, hi):
        slot = gs % 4
        if gs < 16:
            s = gs % 8
            if s == 0: S(lo - 8, hi, f"s_lshl_b32 s{S_OFF0}, s{S_ROT}, 19", f"s_lshl_b32 s{S_T5}, s{h}, 8", f"s_add_u32 s{S_OFF0}, s{S_OFF0}, s{S_T5}")
            else: S(lo - 8, hi, f"s_add_u32 s{S_OFF0}, s{S_OFF0}, {1<<19}", f"s_and_b32 s{S_OFF0}, s{S_OFF0}, {4*MB-1}")
            for n in range(4):
                mq.add('d', lo + step*n, hi, f"s_add_u32 m0, s{S_WL}, {slot*16384 + n*4096}",
                       f"buffer_load_dwordx4 v{V_WOFF[n]}, {srd(S_WUK if gs < 8 else S_WUV)}, s{S_OFF0} offen lds", ("W", gs))
        elif gs >= 24:
            s = gs % 4; hf = (gs // 4) % 2
            S(lo - 10, hi, f"s_add_u32 s{S_OFF0}, s{S_ROTB}, {s}", f"s_and_b32 s{S_OFF0}, s{S_OFF0}, 3", f"s_lshl_b32 s{S_OFF0}, s{S_OFF0}, 20",
              f"s_lshl_b32 s{S_T5}, s{h}, 8", f"s_add_u32 s{S_OFF0}, s{S_OFF0}, s{S_T5}")
            if hf: S(lo - 10, hi, f"s_add_u32 s{S_OFF0}, s{S_OFF0}, 128")
            for n in range(4):
                if n: S(lo + step*n - 2, hi, f"s_add_u32 s{S_OFF0}, s{S_OFF0}, {32*8192}")
                mq.add('d', lo + step*n, hi, f"s_add_u32 m0, s{S_WL}, {area(gs) + n*4096}",
                       f"buffer_load_dwordx4 v{V_WOFF[0]}, {srd(S_WQ)}, s{S_OFF0} offen lds", ("W", gs))
    def g_stage(s, lo, step, hi):
        S(lo - 10, hi, f"s_add_u32 s{S_GO}, s{S_ROTB}, {s}", f"s_and_b32 s{S_GO}, s{S_GO}, 3", f"s_mul_i32 s{S_GO}, s{S_GO}, {128*3584}",
          f"s_lshl_b32 s{S_T5}, s{S_GJ}, 7", f"s_add_u32 s{S_GO}, s{S_GO}, s{S_T5}")
        for n in range(8):
            if n and n % 2 == 0: S(lo + step*n - 2, hi, f"s_add_u32 s{S_GO}, s{S_GO}, {32*3584}")
            mq.add('d', lo + step*n, hi, f"s_add_u32 m0, s{S_WL}, {area(16 + s) + n*4096}",
                   f"buffer_load_dwordx4 v{V_GOFF}, {srd((S_WG, S_WU)[n % 2])}, s{S_GO} offen lds", ("W", 16 + s))
    def a_stage(s, lo, step, hi):
        S(lo - 6, hi, f"s_add_u32 s{S_OFFA}, s{S_ROT}, {s}", f"s_and_b32 s{S_OFFA}, s{S_OFFA}, 7", f"s_lshl_b32 s{S_OFFA}, s{S_OFFA}, 7", f"s_add_u32 s{S_OFFA}, s{S_OFFA}, s{S_AROW}")
        for q in range(8):
            if q and q % 2 == 0: S(lo + step*q - 2, hi, f"s_add_u32 s{S_OFFA}, s{S_OFFA}, 16384")
            mq.add('d', lo + step*q, hi, f"s_add_u32 m0, s{S_WA}, {(s % 2)*32768 + q*1024}",
                   f"buffer_load_dwordx4 v{V_AOFF[q & 1]}, {srd(S_CKV)}, s{S_OFFA} offen lds", ("A", s), [("AF", s-2, 0), ("AF", s-2, 1)])
    def xn_stage(s, lo, step, hi):
        if s % 2 == 0: S(lo - 6, hi, f"s_add_u32 s{S_OFFA}, s{S_ROTB}, {s//2}", f"s_and_b32 s{S_OFFA}, s{S_OFFA}, 3", f"s_lshl_b32 s{S_OFFA}, s{S_OFFA}, 14", f"s_add_u32 s{S_OFFA}, s{S_OFFA}, s{S_XNB}")
        for ksub in range(2):
            if ksub or s % 2: S(lo + step*4*ksub - 2, hi, f"s_add_u32 s{S_OFFA}, s{S_OFFA}, 4096")
            for rb in range(4):
                mq.add('l', lo + step*(ksub*4 + rb), hi, f"buffer_load_dwordx4 {ar(actf(2*s+ksub, rb))}, v{V_L16}, {srd(S_WS)}, s{S_OFFA} offen offset:{rb*1024}{SC}", ("XN", 2*s+ksub))
    V_PO = V_TMP[13]
    poll_xn = Poll(e, "xn", V_PO); poll_kv = Poll(e, "kv", V_PO); poll_b = Poll(e, "b", V_TMP[15]); poll_c = Poll(e, "c", V_TMP[15])
    V_RT = V_TMP[8]; V_RTA = V_TMP[9:13]; V_PFD = V_TMP[1]
    RTL, RTS, RG = OPT.get("rtl", 19), OPT.get("rts", 22), OPT.get("rtgap", 32)
    S_RL = S_RET
    PRO = OPT.get("pro", 1); KVS = OPT.get("kvs", 30)
    w_stage(0, P, 0, INF); a_stage(0, P, 0, INF)
    n_pro0 = len(mq.items)
    S(P, INF, f"s_lshl_b32 s{S_T2}, s{w}, 8", f"s_add_u32 s{S_T2}, s{S_T2}, s2", f"s_lshr_b32 s{S_T3}, s{S_T2}, 3", f"s_add_u32 s{S_T4}, s{S_T2}, s{S_T3}", f"s_and_b32 s{S_T4}, s{S_T4}, 7",
      f"s_cmp_lt_u32 s{S_T2}, 448 ! s_cselect_b32 s{S_WD+2}, {1792*1024}, 0", f"s_cmp_lt_u32 s{S_T2}, 448 ! s_cselect_b32 s{S_BSRD+2}, {WS_END}, 0")
    VV(P, INF, f"v_lshrrev_b32 v{V_RT}, 3, v{V_LANE}", f"v_lshl_add_u32 v{V_RT}, v{V_RT}, 10, v{V_UOFF}", f"v_mul_u32_u24 v{V_GOFF}, 3584, v{V_KPERM}", f"v_add_u32 v{V_GOFF}, v{V_GOFF}, v{V_UOFF}")
    w_stage(1, P, 0, INF)
    if PRO >= 2: a_stage(1, P, 0, INF)
    if PRO >= 3: w_stage(2, P, 0, INF)
    n_pro1 = len(mq.items)
    if PRO < 2: a_stage(1, 0, 1, 30)
    if PRO < 3: w_stage(2, 10, 1, 36)
    def rt_loads(E0, half):
        for q in range(2*half, 2*half + 2):
            if OPT.get("rtlin"): S(E0, INF, f"s_add_u32 s{S_RL}, s{S_RL}, 1024" if q else f"s_lshl_b32 s{S_RL}, s{S_T4}, 12 ! s_lshl_b32 s{S_T5}, s{S_T3}, 3 ! s_add_u32 s{S_RL}, s{S_RL}, s{S_T5}")
            else: S(E0, INF, f"s_add_u32 s{S_RL}, s{S_RL}, 8192" if q else f"s_lshl_b32 s{S_RL}, s{S_T4}, 7 ! s_lshl_b32 s{S_T5}, s{S_T3}, 3 ! s_add_u32 s{S_RL}, s{S_RL}, s{S_T5}")
            for t, sr in enumerate((S_WO, S_WD)):
                mq.add('d', E0 + ((4 + 14*(q % 2) + 7*t) if RTL > 5 else 36), E0 + (33 if RTL > 5 else 60), f"s_add_u32 m0, s{S_WA}, {65536 + t*4096 + q*1024}", f"buffer_load_dwordx4 v{V_L16 if OPT.get('rtlin') else V_RT}, {srd(sr)}, s{S_RL} offen lds", "RT")
    for gs in range(NS):
        b = gs * 64
        if gs + 2 < 8: a_stage(gs + 2, b + (6 if gs or PRO >= 3 else 22), (4 if gs or PRO >= 3 else 2), b + 41)
        PFS = OPT.get("pfs", {2: "q", 3: "g", 4: "u"})
        if gs == 1:
            VV(b + 2, INF, f"v_lshrrev_b32 v{V_PO}, 2, v{V_LANE}", f"v_lshlrev_b32 v{V_PO}, 7, v{V_PO}", f"v_and_or_b32 v{V_PO}, v{V_LANE}, 3, v{V_PO}", f"v_lshlrev_b32 v{V_PO}, 6, v{V_PO}",
               f"v_lshlrev_b32 v{V_TMP[5]}, 6, v{V_LANE}", f"v_min_u32 v{V_TMP[4]}, 1728, v{V_TMP[5]}")
        for n_, c_ in enumerate(PFS.get(gs, "")):
            if c_ in "qv":
                S(b + 2, INF, f"s_lshl_b32 s{S_T1}, s{i}, 2", f"s_add_u32 s{S_T1}, s{S_T1}, s{w}", f"s_lshl_b32 s{S_T1}, s{S_T1}, 17", f"s_lshl_b32 s{S_T5}, s{h}, 8", f"s_add_u32 s{S_T1}, s{S_T1}, s{S_T5}")
                vo = V_PO
            else:
                S(b + 2, INF, f"s_lshl_b32 s{S_T1}, s2, 2", f"s_add_u32 s{S_T1}, s{S_T1}, s{w}", f"s_mul_i32 s{S_T1}, s{S_T1}, {4096 if c_ == 'o' else 1792}")
                vo = V_TMP[5] if c_ == "o" else V_TMP[4]
            mq.add('l', b + 8, INF, f"buffer_load_dword v{V_TMP['qgu'.find(c_) % 4]}, v{vo}, {srd(dict(q=S_WQ, v=S_WUV, g=S_WG, u=S_WU, o=S_WO, d=S_WD)[c_])}, s{S_T1} offen", "PF")
        if gs == 6: S(b + 10, INF, f"s_min_u32 s{S_WG+2}, s{S_WG+2}, s{S_HSRD+2}", f"s_mov_b32 s{S_WU+2}, s{S_WG+2}")
        GS = OPT.get("gs", (7, 8))
        if gs in GS: g_stage(GS.index(gs), b + 4, 3, b + 41)
        if gs == 8:
            t0, t1 = V_TMP[2:4]
            S(b + 4, b + 30, f"s_lshl_b32 s{S_T5}, s{S_QT}, 7", f"s_add_u32 s{S_T5}, s{S_T5}, {WS_FX}")
            VV(b + 4, b + 30, f"v_and_b32 v{V_PO}, 7, v{V_LANE}", f"v_lshlrev_b32 v{V_PO}, 2, v{V_PO}", f"v_add_u32 v{V_PO}, s{S_T5}, v{V_PO}")
            mq.add('f', b + 28, b + 36, poll_xn.issue, 4, "mem")
        if gs == 9: mq.add('f', b + 2, b + 6, poll_xn.check, 8, "valu")
        if 9 <= gs <= 16: xn_stage(gs - 9, b + 8, 4, b + 41)
        if gs == 10: VV(b + 20, INF, *[f"v_add_u32 v{V_TRH[c]}, 65536, v{V_TR[c]}" for c in range(4)])
        if gs in (RTL, RTL + 1) and not OPT.get("nortl"): rt_loads(b, gs - RTL)
        if gs == 27:
            S(b + 4, b + 30, f"s_and_b32 s{S_T5}, s2, 31", f"s_lshl_b32 s{S_T5}, s{S_T5}, 7", f"s_add_u32 s{S_T5}, s{S_T5}, {WS_FK}")
            VV(b + 4, b + 30, f"v_and_b32 v{V_PO}, 7, v{V_LANE}", f"v_lshlrev_b32 v{V_PO}, 2, v{V_PO}", f"v_add_u32 v{V_PO}, s{S_T5}, v{V_PO}")
        if gs == KVS - 1: mq.add('f', b + 26, b + 33, poll_kv.issue, 4, "mem")
        if gs + 3 < NS: w_stage(gs + 3, b + 44, 4, b + 64 + 5)
        if gs in (14, 16): g_stage(2 + (gs - 14)//2, b + 44, 3, b + 64 + 7)
    b = KVS*64
    mq.add('f', b + 4, b + 8, poll_kv.check, 8, "valu")
    for st in range(2):
        for j in range(8):
            if j == 4: S(b, INF, f"s_add_u32 s{S_T4}, s{S_SRCA}, 4096")
            mq.add('d', b + 8 + st*64 + 6*j, INF, f"s_add_u32 m0, s{S_LA}, {st*32768 + (j//4)*4096}",
                   f"buffer_load_dwordx4 v{V_L16}, {srd(S_ASRD)}, s{S_T4 if j >= 4 else S_SRCA} offen offset:{(j%4)*1024}{SC} lds", ("KV", st))
        if st == 0: S(b, INF, f"s_cmp_ge_u32 s{w}, 2 ! s_cselect_b32 s{S_T4}, 0, 2", f"s_lshl_b32 s{S_T4}, s{S_T4}, 13", f"s_add_u32 s{S_SRCA}, s{S_SRCA}, s{S_T4}")
        else: S(b, INF, f"s_add_u32 s{S_SRCA}, s{S_SRCA}, 16384")
    mfill = mq.fillers()
    e(mq.first_m0)
    started = False
    for f in mfill[:n_pro0]:
        if f.cost == 8 and not started: go(); started = True
        f.fn()
        if f.cost == 8: e("s_nop 0")
    late()
    if OPT.get("tlb", 0):
        a, b, c = S_N, S_EVT, S_TRANS
        e(f"""s_lshr_b32 s{a}, s2, 3
        s_and_b32 s{b}, s{a}, 7
        s_add_u32 s{b}, s{b}, 2
        s_cmp_eq_u32 s{w}, 2
        s_cselect_b32 s{b}, 10, s{b}
        s_and_b32 s{c}, s{w}, 1
        s_lshr_b32 s{S_T0}, s{w}, 1
        s_cmp_eq_u32 s{c}, s{S_T0}
        s_cselect_b32 s{b}, 12, s{b}
        s_lshl_b32 s{S_T1}, s{b}, 3
        s_load_dwordx2 s[{S_ASRD}:{S_ASRD+1}], s[0:1], s{S_T1}
        s_cmp_lt_u32 s{b}, 6
        s_mov_b32 s{S_ASRD+2}, {1792*1024}
        s_cselect_b32 s{S_ASRD+2}, {4*MB}, s{S_ASRD+2}
        s_lshr_b32 s{S_T1}, s{a}, 3
        s_lshl_b32 s{a}, s{a}, 1
        s_add_u32 s{a}, s{a}, s{c}
        s_cmp_eq_u32 s{b}, 12
        s_cselect_b32 s{S_ASRD+2}, {WS_END}, s{S_ASRD+2}
        s_cselect_b32 s{a}, s{a}, s{S_T1}
        s_lshl_b32 s{a}, s{a}, 20
        v_mov_b32 v{V_TMP[5]}, s{a}
        s_waitcnt lgkmcnt(0)""")
        e.vmem(f"buffer_load_dword v{V_TMP[1]}, v{V_TMP[5]}, {srd(S_ASRD)}, 0 offen sc1", "PF")
        e(f"s_mov_b64 s[{S_ASRD}:{S_ASRD+1}], s[{S_WS}:{S_WS+1}]\ns_mov_b32 s{S_ASRD+2}, {WS_END}")
    e.need(vm=["X"])
    ln = layernorm_lines()
    rest = mfill[n_pro0:n_pro1]
    per = len(ln) // (sum(f.cost == 8 for f in rest) + 1) + 1
    while ln or rest:
        for t in ln[:per]: e(t)
        ln = ln[per:]
        while rest:
            f = rest.pop(0); f.fn()
            if f.cost == 8: break
    mfill = mfill[n_pro1:]
    t0, t1, t2 = V_TMP[2:5]
    e(f"""s_lshl_b32 s{S_T0}, s{w}, 5
    s_add_u32 s{S_T0}, s{S_T0}, 49152
    v_lshlrev_b32 v{t0}, 7, v{V_LANE}
    v_add_u32 v{t0}, s{S_T0}, v{t0}""")
    e.ds(f"ds_write_b128 v{t0}, v[64:67]"); e.ds(f"ds_write_b128 v{t0}, v[68:71] offset:16")
    e(f"""s_lshl_b32 s{S_T0}, s{w}, 11
    s_add_u32 s{S_T0}, s{S_T0}, 49152
    v_add_u32 v{t0}, s{S_T0}, v{V_L16}
    v_lshrrev_b32 v{t1}, 5, v{V_LANE}
    v_lshlrev_b32 v{t1}, 12, v{t1}
    v_bfe_u32 v{t2}, v{V_LANE}, 3, 2
    v_lshl_add_u32 v{t1}, v{t2}, 8, v{t1}
    v_and_b32 v{t2}, 7, v{V_LANE}
    v_lshl_add_u32 v{t1}, v{t2}, 4, v{t1}
    s_lshr_b32 s{S_T0}, s2, 3
    s_lshl_b32 s{S_T0}, s{S_T0}, 16
    s_bfe_u32 s{S_T1}, s2, 0x20001
    s_lshl_b32 s{S_T1}, s{S_T1}, 10
    s_add_u32 s{S_T0}, s{S_T0}, s{S_T1}
    s_and_b32 s{S_T1}, s2, 1
    s_lshl_b32 s{S_T1}, s{S_T1}, 7
    s_add_u32 s{S_T0}, s{S_T0}, s{S_T1}
    s_lshl_b32 s{S_T1}, s{w}, 14
    s_add_u32 s{S_T0}, s{S_T0}, s{S_T1}
    s_add_u32 s{S_T1}, s{S_T0}, 8192""")
    misc = []
    misc.append(Filler(lambda: (e.ds(f"ds_read_b128 v[64:67], v{t0}", "LN"), e.ds(f"ds_read_b128 v[68:71], v{t0} offset:1024", "LN")), 8, "mem", 2, 30))
    misc.append(Filler(lambda: (e.need(lg=["LN"]), e.vmem(f"buffer_store_dwordx4 v[64:67], v{t1}, {srd(S_WS)}, s{S_T0} offen{SC}", "XNST")), 8, "mem", 14, 40))
    misc.append(Filler(lambda: e.vmem(f"buffer_store_dwordx4 v[68:71], v{t1}, {srd(S_WS)}, s{S_T1} offen{SC}", "XNST"), 8, "mem", 16, 41))
    for t in scalar_setup2(e): misc.append(Filler(lambda t=t: e(t.replace(" ! ", "\n")), 4, "salu", 44, 150))
    S_RA, S_RB = S_N, S_EVT
    rts = [Filler(lambda: e(f"s_add_u32 s{S_RA}, s{S_WA}, 65536"), 4, "salu", 150)]
    for c in range(4): rts.append(Filler(lambda c=c: e(f"v_add_u32 v{V_RTA[c]}, s{S_RA}, v{V_TR[c]}"), 4, "valu", 150))
    for t in (f"s_lshl_b32 s{S_RA}, s{S_T4}, 19", f"s_lshl_b32 s{S_T3}, s{S_T3}, 12", f"s_add_u32 s{S_RA}, s{S_RA}, s{S_T3}", f"s_add_u32 s{S_RA}, s{S_RA}, {WS_WOF}",
              f"s_mul_i32 s{S_RB}, s{S_T4}, {56*4096}", f"s_add_u32 s{S_RB}, s{S_RB}, s{S_T3}", f"s_add_u32 s{S_RB}, s{S_RB}, {WS_WDF}"):
        rts.append(Filler(lambda t=t: e(t), 4, "salu", 150, 185))
    SIGKV = OPT.get("sigkv", 28)
    for n in range(8):
        t, c = n // 4, n % 4
        d0 = V_PK + (n % 2)*4
        def fr(t=t, c=c, d0=d0, n=n):
            e.need(vm=["RT"])
            for rr in range(2): e.ds(f"ds_read_b64_tr_b16 v[{d0+rr*2}:{d0+rr*2+1}], v{V_RTA[c]} offset:{t*4096 + rr*2048}", ("RTF", n))
        def fs(t=t, c=c, d0=d0, n=n):
            e.need(lg=[("RTF", n)])
            e.vmem(f"buffer_store_dwordx4 {vr(d0)}, v{V_L16}, {srd((S_WS, S_BSRD)[t])}, s{(S_RA, S_RB)[t]} offen offset:{c*1024}{SC}", "RTST")
        if not OPT.get("norts"): rts.append(Filler(fr, 8, "mem", RTS*64 + 40 + RG*n)); rts.append(Filler(fs, 4, "mem", RTS*64 + 40 + RG*n + 12, 30*64 + 30 if POLLALL else (SIGKV - 1)*64))
    mfmas = []; rd = []
    sig_at = {3: (["XNST"], sig_lin(WS_FX)), SIGKV: (["KST", "VST"] + ([] if POLLALL else ["RTST"]), SIG_KV)}
    def stage_gate(gs):
        def fn():
            tags = [("W", gs)]
            if gs < 8: tags.append(("A", gs))
            if gs in sig_at: tags += sig_at[gs][0]
            f3 = OPT.get("fine3")
            if f3 is not None and 0 <= gs - f3 < 6: stamp(e, 14 + 3*(gs - f3))
            e.need(vm=tags)
            if f3 is not None and 0 <= gs - f3 < 6: stamp(e, 15 + 3*(gs - f3))
            e("s_barrier")
            if f3 is not None and 0 <= gs - f3 < 6: stamp(e, 16 + 3*(gs - f3))
            if gs in sig_at: signal(e, sig_at[gs][1], V_TMP[6])
            if gs % 8 == 0: stamp(e, 2 + gs // 8)
            if OPT.get("fine") is not None and 0 <= gs - OPT["fine"] < 18: stamp(e, 14 + gs - OPT["fine"])
        return fn
    def actread(s, ksub, rb):
        return lambda: e.ds(f"ds_read_b128 {ar(actf(2*s+ksub, rb))}, v{V_ARD[ksub]} offset:{(s % 2)*32768 + rb*2048}", ("AF", s, ksub))
    for gs in range(NS):
        base = gs * 64
        if gs > 0: rd.append(Filler(stage_gate(gs), 8, "mem", base - 64 + BAR, base - 64 + BAR + 1))
        pend = [Filler(actread(gs, ksub, rb), 4, "mem", base - 64 + BAR, base - 3) for rb in range(4) for ksub in range(2)] if gs < 8 else []
        CH = 2 if gs < 16 else 4
        for g in range(16 // CH):
            g0 = base + g*4*CH
            db = g if gs < 16 else 4*((gs // 4) % 2) + g
            first = gs % (16 // CH) == 0
            for k in range(CH):
                slot = (g*CH + k) % 8
                if gs < 16: c_, off = g % 4, (k*2 + g // 4)*4096
                elif gs < 24: c_, off = 2*((gs // 4) % 2) + g % 2, (k*2 + g // 2)*4096
                else: c_, off = g, k*4096
                off += area(gs)
                for rr in range(2):
                    ad = V_TRH[c_] if off >= 65536 else V_TR[c_]
                    d = V_WF + slot*4 + rr*2
                    n_ = k*2 + rr
                    lo = (g0 - 22 + 2*n_) if CH == 2 else (g0 - 16 + n_)
                    if gs == 16 and g == 1: lo = max(lo, base)
                    rd.append(Filler(lambda d=d, ad=ad, o=(off + rr*2048) % 65536, t=(gs, g): e.ds(f"ds_read_b64_tr_b16 v[{d}:{d+1}], v{ad} offset:{o}", ("F", t)),
                                     4, "mem", max(lo, base - 64 + BAR), g0 - 3))
                    for _ in range(1 if g else 2):
                        if pend: rd.append(pend.pop(0))
            for rb in range(4):
                for kk in range(CH):
                    k = kk if rb % 2 == 0 else CH - 1 - kk
                    kslot = CH*(gs % (16 // CH)) + k
                    def needs(gs=gs, g=g, CH=CH):
                        return e.need(lg=[("F", (gs, g))] + ([("AF", gs, 0), ("AF", gs, 1)] if gs < 8 else []),
                                      vm=[("XN", 4*(gs % 4) + q) for q in range(4)] if 16 <= gs < 20 else ())
                    def m(gs=gs, slot=(g*CH + k) % 8, kslot=kslot, db=db, rb=rb, z=(first and kk == 0), needs=needs):
                        needs()
                        wv = vr(V_WF + slot*4); a = ar(actf(kslot, rb)); d = vr(acc(db, rb))
                        e(mf(d, a, wv, "0" if z else d) if 8 <= gs < 16 else mf(d, wv, a, "0" if z else d))
                    m.pre = needs
                    mfmas.append(m)
    def cvts(base, dst, dl):
        out = []
        for db in range(8):
            for rb in range(4):
                for hh in range(2):
                    d = dst(db, rb, hh); s = acc(db, rb) + 2*hh
                    out.append(Filler(lambda d=d, s=s: e(f"v_cvt_pk_bf16_f32 v{d}, v{s}, v{s+1}"), 4, "valu", base + 448 + 8*db + 2*rb + 1 + 8, dl(db, rb)))
        return out
    cv = cvts(0, lambda db, rb, hh: V_PK + (rb*4 + db//2)*4 + (db & 1)*2 + hh, lambda db, rb: min(512 + 8*db + 2*rb, 512 + 30))
    VH = OPT.get("vh", 1150)
    cvv = cvts(512, lambda db, rb, hh: V_PK + ((db//4)*8 + (rb//2)*4 + db % 4)*4 + (rb & 1)*2 + hh, lambda db, rb: min(1024 + 16*db + 4*rb, 1024 + 16) if db < 4 else min(VH + 39, 1278))
    for f in cvv[32:]: f.earliest = VH
    cv += cvv
    st = []
    G2 = OPT.get("sgap", 37)
    NKV = OPT.get("nkv", 14)
    sched = [(WS_K + n*1024, n, "KST", 512 + 36 + (444 // NKV)*n, 512 + 454 if n < 8 else 1024) for n in range(NKV)]
    sched += [(WS_K + n*1024, n, "KST", 1024 + 4 + G2*(n - NKV), VH - 2) for n in range(NKV, 16)]
    sched += [(WS_V + ((n % 8)//4)*8192 + ((n // 8)*4 + n % 4)*1024, n, "VST", max(1024 + 20 + G2*(n + 16 - NKV), VH + 40 if n >= 8 else 0), (SIGKV - 1)*64 + 20) for n in range(16)]
    for off, n, tag, lo, dl in sched:
        if n % 4 == 0: st.append(Filler(lambda off=off: e(f"s_add_u32 s{S_T2}, s{S_KVST}, {off}"), 4, "salu", lo - 4))
        st.append(Filler(lambda n=n, tag=tag: e.vmem(f"buffer_store_dwordx4 {vr(V_PK + n*4)}, v{V_L16}, {srd(S_WS)}, s{S_T2} offen offset:{(n%4)*1024}{SC}", tag), 4, "mem", lo, dl))
    C0 = -2.0 * math.sqrt(2.0 / math.pi) * math.log2(math.e)
    V_C1 = V_TMP[4]; V_QW = V_TMP[5]
    ge = [Filler(lambda: e(f"v_mov_b32 v{V_C1}, {fb(C0*0.044715):#x}"), 4, "valu", 1100)]
    for hf in range(2):
        lo = 1024 + 256*(hf + 1) - 16 + 11; dl = 1024 + 256*(hf + 2)
        def V(txt, cost=4): ge.append(Filler(lambda: e(txt), cost, "valu", lo, dl))
        for t in [f"s_lshl_b32 s{S_T0}, s{S_GJ}, 13", f"s_add_u32 s{S_T0}, s{S_T0}, {hf*4096}", f"s_add_u32 s{S_T0}, s{S_T0}, s{S_HST}"]:
            ge.append(Filler(lambda t=t: e(t), 4, "salu", lo, dl))
        for rb in range(4):
            lo = 1024 + 256*(hf + 1) - 16 + 4*rb + 11
            for c in range(2):
                G, U = acc(4*hf + c, rb), acc(4*hf + 2 + c, rb); T = V_TMP[0:4]
                for r in range(4): V(f"v_mul_f32 v{T[r]}, v{G+r}, v{G+r}")
                for r in range(4): V(f"v_fmaak_f32 v{T[r]}, v{T[r]}, v{V_C1}, {fb(C0):#x}")
                for r in range(4): V(f"v_mul_f32 v{T[r]}, v{G+r}, v{T[r]}")
                for r in range(4):
                    V(f"v_exp_f32 v{T[r]}, v{T[r]}", 8)
                    if r % 2: V(f"v_mul_f32 v{G+r-1}, v{G+r-1}, v{U+r-1}"); V(f"v_mul_f32 v{G+r}, v{G+r}, v{U+r}")
                for r in range(4): V(f"v_add_f32 v{T[r]}, 1.0, v{T[r]}")
                for r in range(4): V(f"v_rcp_f32 v{T[r]}, v{T[r]}", 8)
                for r in range(4): V(f"v_mul_f32 v{G+r}, v{G+r}, v{T[r]}")
                D = acc(4*hf + 2, rb) + 2*c
                V(f"v_cvt_pk_bf16_f32 v{D}, v{G}, v{G+1}"); V(f"v_cvt_pk_bf16_f32 v{D+1}, v{G+2}, v{G+3}")
            ge.append(Filler(lambda rb=rb, hf=hf: e.vmem(f"buffer_store_dwordx4 {vr(acc(4*hf + 2, rb))}, v{V_L16}, {srd(S_HSRD)}, s{S_T0} offen offset:{rb*1024}{SC}", "HST"), 4, "mem", lo, dl))
    ge.append(Filler(lambda: e(f"s_lshl_b32 s{S_T0}, s{w}, 14"), 4, "salu", 1792))
    ge.append(Filler(lambda: e(f"s_add_u32 s{S_T0}, s{S_T0}, 131072"), 4, "salu", 1792))
    ge.append(Filler(lambda: e(f"v_add_u32 v{V_QW}, s{S_T0}, v{V_L16}"), 4, "valu", 1792))
    zero_hi = []
    for hf in range(2):
        for dg in (2*hf, 2*hf + 1):
            for qb in range(4):
                lo = 1536 + 256*hf + 192 + 32*(dg % 2) + 16 + 4*qb + 3 + 8
                def V(txt, cost=4, kind="valu", lo=lo): ge.append(Filler(lambda: e(txt), cost, kind, lo))
                o0, o1 = acc(2*dg, qb), acc(2*dg+1, qb)
                for r in range(4): V(f"v_mul_f32 v{o0+r}, {QSCALE:#x}, v{o0+r}"); V(f"v_mul_f32 v{o1+r}, {QSCALE:#x}, v{o1+r}")
                for d, s_ in ((o0, o0), (o0+1, o0+2), (o0+2, o1), (o0+3, o1+2)): V(f"v_cvt_pk_bf16_f32 v{d}, v{s_}, v{s_+1}")
                for r in range(4):
                    if hf: zero_hi.append(f"v_mov_b32 v{o1+r}, 0")
                    else: V(f"v_mov_b32 v{o1+r}, 0")
                ge.append(Filler(lambda o0=o0, qb=qb, dg=dg: e.ds(f"ds_write_b128 v{V_QW}, {vr(o0)} offset:{(qb*4+dg)*1024}", "QW"), 4, "mem", lo))
        for dg in (2*hf, 2*hf + 1):
            for qb in range(4):
                o0 = acc(2*dg, qb)
                for r in range(4): ge.append(Filler(lambda r=r, o0=o0, qb=qb, dg=dg: e(f"v_accvgpr_write_b32 a{A_Q + (qb*4+dg)*4 + r}, v{o0+r}"), 4, "valu", 29*64 + 4))
        ge.append(Filler(lambda: e.need(lg=["QW"]), 4, "salu", 29*64 + 4))
        for dg in (2*hf, 2*hf + 1):
            for qb in range(4):
                for r in range(4):
                    if hf: zero_hi.append(f"v_mov_b32 v{acc(2*dg, qb) + r}, 0")
                    else: ge.append(Filler(lambda r=r, qb=qb, dg=dg: e(f"v_mov_b32 v{acc(2*dg, qb) + r}, 0"), 4, "valu", 29*64 + 4))
        if hf == 0:
            for r in range(64): ge.append(Filler(lambda r=r: e(f"v_accvgpr_write_b32 a{A_DACC + r}, 0"), 4, "valu", 31*64 + 4))
    stamp(e, 1)
    e.need(vm=[("W", 0), ("A", 0)]); e.wait_all(vm=False); e("s_barrier")
    e(f"s_mul_i32 s{S_TAG}, s{S_TAG}, 0x9e3779b1\ns_add_u32 s{S_TAG}, s{S_TAG}, 0x7f4a7c15")
    stamp(e, 2)
    k = 0
    while rd[k].earliest < 0: rd[k].fn(); k += 1
    rest = e.schedule(mfmas, [rd[k:], mfill, cv, misc, rts, st, att_setup_fillers(e, poll_b), ge], flush=False)
    e("s_nop 7")
    e.c(f"left over fillers: {[len(r) for r in rest]}")
    for r in rest:
        for f in r: f.fn()
    stamp(e, 6)
    attention(e, poll_b, poll_c, zero_hi)
    phase_d(e, poll_c)
    if OPT.get("padto"):
        if "padb" in OPT: e(f"s_lshr_b32 s6, s2, 3\ns_cmp_lg_u32 s6, {OPT['padb']}\ns_cbranch_scc1 L_end")
        if "padx" in OPT: e(f"s_and_b32 s6, s2, 7\ns_cmp_lg_u32 s6, {OPT['padx']}\ns_cbranch_scc1 L_end")
        e(f"s_nop 1\nv_readlane_b32 s6, v{V_STAMP}, 0\ns_add_u32 s6, s6, {OPT['padto']*100}")
        e.label("L_pad")
        e("s_memrealtime s[4:5]\ns_waitcnt lgkmcnt(0)\ns_sub_u32 s7, s4, s6\ns_cmp_lt_i32 s7, 0\ns_cbranch_scc1 L_pad")
    else: stamp_flush(e)
    e("s_branch L_end")
    e.cold()
    for p in (poll_xn, poll_kv, poll_b, poll_c): p.spin()
    slow_path(e)
    e.label("L_end")
    e("s_endpgm")

A_Z = 212
S_FIRST = 20
def att_dma(e, which, j):
    if " m0," in e.L[-1]: e("s_nop 0")
    sr, src, ld = ((S_ASRD, S_SRCA, S_LA), (S_BSRD, S_SRCB, S_LB))[which]
    e.vmem(f"buffer_load_dwordx4 v{V_L16}, {srd(sr)}, s{S_T4 if j >= 4 else src} offen offset:{(j%4)*1024}{OPT.get('kvsc', SC)} lds", "KV")
    if which == 1 and OPT.get("boob"): ld = S_FIRST + 3
    if j == 3: e(f"s_add_u32 m0, s{ld}, 4096"); e(f"s_add_u32 s{S_T4}, s{src}, 4096")
    if j == 7:
        if which == 0: e(f"s_mov_b32 m0, s{S_FIRST + 3 if OPT.get('boob') else S_LB}\ns_add_u32 s{S_SRCA}, s{S_SRCA}, 16384")
        else: e(f"s_sub_u32 s{S_VMAXB}, s{S_VMAXB}, 16384\ns_min_u32 s{S_SRCB}, s{S_VMAXB}, s{S_VCLB}")
def d_load(e, j):
    so = S_DW if j < 4 else S_DH
    e.vmem(f"buffer_load_dwordx4 {ar(A_DOP + j*4)}, v{V_L16}, {srd(S_DSRD)}, s{so} offen offset:{(j%4)*1024}{OPT.get('kvsc', SC)}", "KV")
    if j % 4 == 3: e(f"s_add_u32 s{so}, s{so}, s{S_DINC}")
class M:
    def __init__(self, txt, tag=None): self.txt, self.tag = txt, tag
def d_mfmas():
    return [M(mf(ar(A_DACC + (mb*4+qb)*4), ar(A_DOP + mb*4), ar(A_DOP + 16 + qb*4), ar(A_DACC + (mb*4+qb)*4))) for mb in range(4) for qb in (range(4) if mb % 2 == 0 else range(3, -1, -1))]
def sm_half(e, buf, kb2):
    ex = []; cv = []
    for p in range(8):
        qb, hh = p // 2, p % 2
        r = Sreg(buf, kb2, qb) + 2*hh
        if OPT.get("noexp"): ex += [NOP, NOP]
        else: ex.append(lambda r=r: e(f"v_exp_f32 v{r}, v{r}")); ex.append(lambda r=r: e(f"v_exp_f32 v{r+1}, v{r+1}"))
        d = Preg(buf, qb) + 2*kb2 + hh
        cv.append(lambda r=r, d=d: e(f"v_perm_b32 v{d}, v{r+1}, v{r}, s{S_WUV}" if OPT.get("perm") else f"v_cvt_pk_bf16_f32 v{d}, v{r}, v{r+1}"))
    return ex, cv
def qk_mfmas(buf, half, tag="FR"):
    out = []
    for kb2 in range(2):
        kb = half*2 + kb2
        for qb in range(4):
            for kk in range(4):
                dg = kk if qb % 2 == 0 else 3 - kk
                d = vr(Sreg(buf, kb2, qb))
                c = d if kk else ("0" if kb < qb else vr(V_TD) if kb == qb else vr(V_TN))
                out.append(M(mf(d, ar(A_FB[0] + (kb2*4+dg)*4), ar(A_Q + (qb*4+dg)*4), c), (tag, 0, kb2*4)))
    return out
def pv_mfmas(buf, zero=False, order=range(8)):
    o = []
    for n_, db in enumerate(order):
        for qb in (range(4) if n_ % 2 == 0 else range(3, -1, -1)):
            d = vr(Oreg(db, qb))
            o.append(M(mf(d, ar(A_Z), ar(A_Z), "0")) if zero else M(mf(d, ar(A_FB[1] + db*4), vr(Preg(buf, qb)), d), ("FR", 1, (db // 4)*4)))
    s_ = []
    for qb in range(4):
        d = ar(A_L + qb*4)
        s_.append(M(mf(d, ar(A_Z), ar(A_Z), "0")) if zero else M(mf(d, ar(A_ONE), vr(Preg(buf, qb)), d)))
    if OPT.get("nosum"): s_ = [M("s_nop 0")]*4
    return o, s_
def frag_reads(e, fb_, off, order=range(8), tag="FR"):
    return [lambda j=j: e.ds(f"ds_read_b128 {ar(A_FB[fb_] + j*4)}, v{V_RD} offset:{off + j*1024}", (tag, fb_, (j // 4)*4)) for j in order]
NOP = lambda: None
def run(e, mfmas, gaps, nxt=None):
    if mfmas[0].tag: e.need(lg=[mfmas[0].tag])
    for i, m in enumerate(mfmas):
        if m.txt: e(m.txt)
        t = mfmas[i+1].tag if i + 1 < len(mfmas) else nxt
        if t: e.need(lg=[t])
        for f in gaps.get(i, ()): f()
def section(e, mfmas, reads, ex, cv, carry, g2, nxt=None, tail=None):
    gaps = {}
    for q in range(8):
        gaps[4*q] = [reads[q], (carry or NOP) if q == 0 else cv[q-1]]
        gaps[4*q+1] = [ex[2*q]]; gaps[4*q+2] = [g2[q]]; gaps[4*q+3] = [ex[2*q+1]]
    if len(mfmas) > 32: gaps[32] = [cv[7]]
    for k, f in (tail or {}).items(): gaps.setdefault(k, []).insert(0, f)
    run(e, mfmas, gaps, nxt)
    return cv[7] if len(mfmas) == 32 else None
PREP = [f"s_cmp_le_u32 s{S_N}, 15\ns_cselect_b32 s{S_ASRD+2}, {WS_END}, 0\ns_cselect_b32 s{S_T0}, 32768, s{S_T1}", f"s_add_u32 s{S_T3}, s{S_N}, 2\ns_xor_b32 s{S_LB}, s{S_LB}, s{S_T0}",
        f"s_cmp_ge_u32 s{S_T3}, s{S_N0}\ns_cselect_b32 s{S_BSRD+2}, s{S_ASRD+2}, 0" + (f"\ns_cselect_b32 s{S_FIRST+3}, s{S_LB}, s{S_T1}" if OPT.get("boob") else ""), f"s_xor_b32 s{S_LA}, s{S_LA}, s{S_T0}\ns_mov_b32 m0, s{S_LA}"]
PREP0 = f"s_mov_b32 s{S_T1}, 0x30000"
LR = V_TMP[10:14]
def check_lines(ret, qt):
    return [f"v_min3_f32 v{V_LIM+1}, v{LR[0]}, v{LR[1]}, v{LR[2]}\nv_add_f32 v{V_LIM}, v{LR[0]}, v{LR[1]}",
            f"v_add_f32 v{V_LIM}, v{V_LIM}, v{LR[2]}\nv_min_f32 v{V_LIM+1}, v{V_LIM+1}, v{LR[3]}",
            f"s_mov_b32 s{S_RET}, {ret}\nv_add_f32 v{V_LIM}, v{V_LIM}, v{LR[3]}\nv_cmp_nle_f32 vcc, 0x17800000, v{V_LIM+1}",
            f"s_mov_b64 s[{S_FL}:{S_FL+1}], vcc\ns_mov_b32 s{S_CNT}, s{qt}\nv_cmp_nge_f32 vcc, {OPT.get('lhi', 0x67800000):#x}, v{V_LIM}",
            f"s_or_b64 vcc, vcc, s[{S_FL}:{S_FL+1}]\n" + ("s_nop 0" if OPT.get("noslow") else "s_cbranch_vccnz L_slow")]
def norm_items(e, dbs, sbase):
    it = []
    for dg in sorted({d // 2 for d in dbs}):
        it.append((lambda dg=dg: e(f"s_add_u32 s{S_T0}, s{sbase}, {dg*4096}"), 0, 2*dg+1))
        for qb in range(4):
            o0, o1 = Oreg(2*dg, qb), Oreg(2*dg+1, qb)
            for r in range(4):
                for o in (o0, o1): it.append((lambda o=o, r=r, qb=qb: e(f"v_mul_f32 v{o+r}, v{o+r}, v{LR[qb]}"), 4, 2*dg+1))
            for d, s_ in ((o0, o0), (o0+1, o0+2), (o0+2, o1), (o0+3, o1+2)): it.append((lambda d=d, s_=s_: e(f"v_cvt_pk_bf16_f32 v{d}, v{s_}, v{s_+1}"), 4, 2*dg+1))
            it.append((lambda o0=o0, qb=qb: e.vmem(f"buffer_store_dwordx4 {vr(o0)}, v{V_L16}, {srd(S_WS)}, s{S_T0} offen offset:{qb*1024}{SC}", "CST"), 8, 2*dg+1))
    return it
def emit_items(items, extra=()):
    extra = list(extra)
    for f, c, _ in items:
        f()
        if c == 8:
            for _ in range(2):
                if extra: extra.pop(0)()
    for f in extra: f()
def sm_tail(e, order=range(8)):
    ex, cv = sm_half(e, 1, 1)
    for f in frag_reads(e, 1, 16384, order): f()
    for p in range(8):
        ex[2*p](); ex[2*p+1]()
        if p: cv[p-1]()
    e("s_nop 0"); cv[7]()

S_WOo, S_AC = S_OFF0, S_OFFA
WSLOT = [14, 15, 4, 5, 13, 12, 6, 7, 0, 1, 2, 3, -2, -3, 8, 9, 10, 11]
NWS = len(WSLOT)
def wreg(n, q):
    s_ = WSLOT[n % NWS]
    return ar(s_*16 + q*4) if s_ >= 0 else vr(-s_*16 + q*4)
def wo_load(e, n, q):
    e.vmem(f"buffer_load_dwordx4 {wreg(n, q)}, v{V_L16}, {srd(S_WS)}, s{S_WOo} offen offset:{q*1024}{SC}", ("WO", n))
    if q == 3: e(f"s_add_u32 s{S_WOo}, s{S_WOo}, 4096")

V_TRI = (9, 10, 11, 30)
V_SIG, V_TAGV, V_QA, V_ONE = 12, 13, 14, 15
S_D1, S_D2, S_M = S_FIRST + 2, S_FIRST, S_FIRST + 1
def att_setup_fillers(e, poll_b):
    i, h, w = S_BLK, S_HEAD, S_WAVE
    out = []
    def add(lo, hi, txt):
        for t in txt.split("\n"):
            t = t.strip()
            out.append(Filler(lambda t=t: e(t.replace(" ! ", "\n")), 4, "salu" if t.startswith("s_") else "valu", lo, hi))
    a, b, c, d = V_TRI; pv = poll_b.voff; t = S_M
    lo, hi = 17*64 + 10, 20*64
    add(lo, hi, f"""v_lshrrev_b32 v{d}, 4, v{V_LANE}
    v_lshlrev_b32 v{d}, 2, v{d}
    v_and_b32 v{a}, 15, v{V_LANE}
    v_sub_u32 v{a}, v{a}, v{d}
    v_subrev_u32 v{b}, 1, v{a}
    v_subrev_u32 v{c}, 2, v{a}
    v_subrev_u32 v{d}, 3, v{a}""")
    for r in V_TRI: add(lo, hi, f"v_ashrrev_i32 v{r}, 31, v{r}\nv_and_b32 v{r}, {NEGINF:#x}, v{r}")
    add(lo, hi, f"""s_lshr_b32 s{t}, s{h}, 1
    s_sub_u32 s{S_D1}, 15, s{t}
    s_min_u32 s{t}, s{t}, s{S_D1}
    s_lshl_b32 s{t}, s{t}, 9
    s_add_u32 s{t}, s{t}, {WS_FB}
    v_bfe_u32 v{pv}, v{V_LANE}, 3, 2
    v_lshlrev_b32 v{pv}, 5, v{pv}
    v_and_or_b32 v{pv}, v{V_LANE}, 7, v{pv}
    v_lshlrev_b32 v{pv}, 2, v{pv}
    v_add_u32 v{pv}, s{t}, v{pv}
    s_lshl_b32 s{S_TRANS}, s{i}, 1
    s_add_u32 s{S_TRANS}, s{S_TRANS}, s{w}
    s_sub_u32 s{S_TRANS}, s{S_TRANS}, 1
    s_sub_u32 s{S_D1}, s{S_TRANS}, 1
    s_add_u32 s{S_D2}, s{S_TRANS}, 1
    s_cmp_eq_u32 s{i}, 7 ! s_cselect_b32 s{t}, 16, 99
    s_cmp_eq_u32 s{w}, 0 ! s_cselect_b32 s{t}, s{t}, 99
    s_cmp_lt_u32 s{w}, 2 ! s_cselect_b32 s{S_D1}, s{t}, s{S_D1}
    s_cmp_lt_u32 s{w}, 2 ! s_cselect_b32 s{S_D2}, 99, s{S_D2}
    s_cmp_lt_u32 s{w}, 2 ! s_cselect_b32 s{S_TRANS}, 17, s{S_TRANS}
    s_sub_u32 s{S_VMAXB}, s{S_VMAXB}, 16384
    s_min_u32 s{S_SRCB}, s{S_VMAXB}, s{S_VCLB}
    s_lshr_b32 s{t}, s2, 3
    s_lshl_b32 s{t}, s{t}, 5
    s_and_b32 s{S_FIRST+3}, s2, 7
    s_add_u32 s{t}, s{t}, s{S_FIRST+3}
    s_lshl_b32 s{t}, s{t}, 2
    s_add_u32 s{t}, s{t}, {WS_FB}
    s_sub_u32 s{S_FIRST+3}, 3, s{w}
    s_lshl_b32 s{S_FIRST+3}, s{S_FIRST+3}, 14
    s_add_u32 s{S_FIRST+3}, s{S_FIRST+3}, 131072""")
    lo, hi = 28*64, 31*64
    add(lo, hi, f"""v_mov_b32 v{V_TAGV}, s{S_TAG}
    v_add_u32 v{V_SIG}, s{S_WL}, v{V_LANE}
    v_min_u32 v{V_SIG}, 1, v{V_SIG}
    v_lshlrev_b32 v{V_SIG}, 30, v{V_SIG}
    v_add_u32 v{V_SIG}, s{t}, v{V_SIG}
    v_add_u32 v{V_QA}, s{S_FIRST+3}, v{V_L16}
    v_and_b32 v{V_ONE}, 3, v{V_LANE}
    v_subrev_u32 v{V_ONE}, 1, v{V_ONE}
    v_ashrrev_i32 v{V_ONE}, 31, v{V_ONE}
    v_and_b32 v{V_ONE}, 0x3f803f80, v{V_ONE}
    s_mov_b32 s{S_T2}, 1
    s_mov_b32 s{S_WUV}, 0x07060302
    s_mov_b32 s{S_N}, -1
    s_mov_b32 s{S_DSRD+2}, 0""")
    return out

def Sq(c): return V_S[0] + c*4
def ring(g, j): return A_FB[0] + (g % 4)*16 + j*4
def qk2(tag="FR"):
    out = []
    for c in range(16):
        kb, qb = c // 4, c % 4
        for kk in range(4):
            dg = kk if c % 2 == 0 else 3 - kk
            d = vr(Sq(c))
            cc = d if kk else ("0" if kb < qb else vr(V_TD) if kb == qb else vr(V_TN))
            out.append(M(mf(d, ar(ring(kb, dg)), ar(A_Q + (qb*4+dg)*4), cc), (tag, kb)))
    return out
def pv2(order=(0, 1, 2, 3)):
    o = []; c = 0
    for n, p in enumerate(order):
        for x in range(2):
            for qb in (range(4) if x == 0 else range(3, -1, -1)):
                d = vr(Oreg(2*p + x, qb))
                for kg in ((0, 1) if c % 2 == 0 else (1, 0)):
                    o.append(M(mf(d, ar(ring(n, x*2 + kg)), vr(Preg(kg, qb)), d), ("FR", 4 + n)))
                c += 1
    s_ = [M(mf(ar(A_L + qb*4), ar(A_ONE), vr(Preg(kg, qb)), ar(A_L + qb*4))) for qb in range(4) for kg in range(2)]
    return o, s_
def kreads(e, g, tag="FR"): return [lambda j=j: e.ds(f"ds_read_b128 {ar(ring(g, j))}, v{V_RD} offset:{g*4096 + j*1024}", (tag, g)) for j in range(4)]
def vreads(e, n, p): return [lambda j=j: e.ds(f"ds_read_b128 {ar(ring(n, j))}, v{V_RD} offset:{16384 + (j % 2)*8192 + (2*p + j // 2)*1024}", ("FR", 4 + n)) for j in range(4)]
def cvt2(c, hh): return f"v_cvt_pk_bf16_f32 v{Preg(c // 8, c % 4) + 2*((c // 4) % 2) + hh}, v{Sq(c) + 2*hh}, v{Sq(c) + 2*hh + 1}"
def exp2(k): return f"v_exp_f32 v{V_S[0] + k}, v{V_S[0] + k}"
def drain_head(e, order):
    e.need(lg=[("FR", 1)])
    rd_ = [f for n, p in enumerate(order) for f in vreads(e, n, p)]
    for f in rd_[:8]: f()
    for c in range(1, 16):
        e(cvt2(c, 0)); e(cvt2(c, 1))
    for f in rd_[8:]: f()

def attention(e, poll_b, poll_c, zero_hi):
    i, h, w = S_BLK, S_HEAD, S_WAVE
    T = lambda t: (lambda: e(t))
    A = [lambda j=j: att_dma(e, 0, j) for j in range(8)]; B = [lambda j=j: att_dma(e, 1, j) for j in range(8)]; D = [lambda j=j: d_load(e, j) for j in range(8)]
    e(f"v_add_u32 v{V_RD}, 65536, v{V_L16}")
    e.need(vm=[("KV", 0), "HST", "RTST"], lg=["QW"])
    e("s_barrier")
    for g in range(2):
        for f in kreads(e, g, "F0"): f()
    e.vmem(f"buffer_store_dword v{V_TAGV}, v{V_SIG}, {srd(S_WS)}, 0 offen sc1", "SIG")
    MS = [f"s_add_u32 s{S_N}, s{S_N}, 1", f"s_cmp_eq_u32 s{S_N}, s{S_D1}\ns_cselect_b32 s{S_M}, -1, 0", f"s_cmp_eq_u32 s{S_N}, s{S_D2}\ns_cselect_b32 s{S_M}, -1, s{S_M}",
          f"v_and_b32 v{V_TD}, s{S_M}, v{V_TRI[0]}\nv_and_b32 v{V_TD+1}, s{S_M}, v{V_TRI[1]}", f"v_and_b32 v{V_TD+2}, s{S_M}, v{V_TRI[2]}\nv_and_b32 v{V_TD+3}, s{S_M}, v{V_TRI[3]}",
          f"s_and_b32 s{S_M}, s{S_M}, {NEGINF:#x}\nv_mov_b32 v{V_TN}, s{S_M}\nv_mov_b32 v{V_TN+1}, s{S_M}", f"v_mov_b32 v{V_TN+2}, s{S_M}\nv_mov_b32 v{V_TN+3}, s{S_M}"]
    for t in MS: e(t)
    e(f"s_xor_b32 s{S_LA}, s{S_LA}, 32768")
    XRD = f"v_xor_b32 v{V_RD}, 32768, v{V_RD}"
    CV0 = cvt2(0, 0) + "\n" + cvt2(0, 1)
    def itstamp(dn=0):
        if OPT.get("itst"):
            e(f"s_memtime s[4:5]\nv_subrev_u32 v5, {14 - dn}, v{V_LANE}\nv_cmp_eq_u32 vcc, s{S_N}, v5\ns_waitcnt lgkmcnt(0)\nv_mov_b32 v5, s4\nv_cndmask_b32 v{V_STAMP}, v{V_STAMP}, v5, vcc")
    stamp(e, 7)
    init = [f"v_accvgpr_write_b32 a{A_L + r}, 0" for r in range(16)] + [f"v_accvgpr_write_b32 a{A_Z + r}, 0" for r in range(4)]
    init += [f"v_accvgpr_write_b32 a{A_ONE + r}, v{V_ONE}" for r in range(4)] + zero_hi
    for _ in range(8): e(init.pop())
    gaps = {}; ne = 0
    kr = kreads(e, 2, "F0") + kreads(e, 3, "F0")
    pre = [PREP0] + PREP + [XRD]
    for k in range(64):
        g = gaps[k] = []
        if k % 2 == 0 and kr: g.append(kr.pop(0)); g.append(T(init.pop()))
        elif k >= 52 and k % 2 == 0: g.append(T(pre.pop(0)))
        elif init: g.append(T(init.pop())); g.append(T(init.pop()))
        else: g.append(T(exp2(ne))); ne += 1
    assert not init and not pre
    gaps[63].insert(0, lambda: e.wait_all())
    run(e, qk2("F0"), gaps)
    e("s_barrier")
    itstamp()
    mem = [f for p in zip(A, kreads(e, 0) + kreads(e, 1)) for f in p] + B[:4]
    while mem or ne < 64:
        if mem: mem.pop(0)()
        for _ in range(3):
            if ne < 64: e(exp2(ne)); ne += 1
    for t in MS: e(t)
    e(CV0)
    e.need(lg=[("FR", 0)])
    top = [("FR", 1)]*4
    assert e.lgkm == top, e.lgkm
    e("s_branch L_special")
    e(".p2align 6")
    e.label("L_body")
    def loop_body(first):
        e.lgkm = list(top)
        gaps = {k: [] for k in range(152)}
        rds = kreads(e, 2) + kreads(e, 3) + ([] if first else vreads(e, 0, 0) + vreads(e, 1, 1))
        for n, f in enumerate(rds): gaps[4*n].append(f)
        for n, f in enumerate(kreads(e, 0) + kreads(e, 1)): gaps[100 + 4*n].append(f)
        for n, f in enumerate(B[4:] + D): gaps[2 + 4*n].append(f)
        for n, f in enumerate(A + B[:4]): gaps[98 + 4*n].append(f)
        if not first:
            for n, f in enumerate(vreads(e, 2, 2) + vreads(e, 3, 3)): gaps[64 + 2*n].append(f)
            for c in range(1, 16):
                gaps[4*(c-1)].append(T(cvt2(c, 0)))
                gaps[1 + 2*((c - 1)//2)].append(T(cvt2(c, 1)))
        for k in range(64): gaps[17 + 2*k].append(T(exp2(k)))
        gaps[58].append(lambda: e.vmem(poll_b.ld, "KV"))
        gaps[62].append(T(PREP0))
        for n, t in enumerate(PREP + [XRD] + MS[:3]): gaps[80 + 2*n].append(T(t))
        for n, t in enumerate(MS[3:]): gaps[132 + 4*n].append(T(t))
        gaps[146].append(T(CV0)); gaps[150].append(T(f"s_cmp_eq_u32 s{S_N}, s{S_T2}"))
        gaps[95].insert(0, lambda: e.wait_all())
        gaps[95].append(lambda: (e("s_barrier"), itstamp(1)))
        o, s_ = pv2()
        if first:
            zo, zl = pv_mfmas(1, zero=True)
            o = [M("")]*32 + zo; s_ = zl + [M("")]*4
        run(e, qk2() + o + s_ + d_mfmas(), gaps, nxt=("FR", 0))
        assert e.lgkm == top, e.lgkm
        e("s_cbranch_scc0 L_body")
    loop_body(False)
    e.label("L_special")
    e(f"""s_cmp_lt_u32 s{S_N}, 3
    s_cselect_b32 s{S_T2}, 3, 17
    s_min_u32 s{S_T2}, s{S_T2}, s{S_TRANS}
    s_cmp_eq_u32 s{S_N}, 3
    s_cbranch_scc0 L_late""")
    e(poll_b.test())
    e("s_cbranch_scc0 L_spin_b")
    e.label("L_ok_b")
    e(f"s_mov_b32 s{S_DSRD+2}, {WS_END}\ns_mov_b32 s{S_DINC}, 4096")
    e.label("L_late")
    e(f"s_cmp_eq_u32 s{S_N}, s{S_D2}\ns_cbranch_scc1 L_first")
    e(f"s_cmp_eq_u32 s{S_N}, s{S_TRANS}\ns_cbranch_scc0 L_body")
    e(f"s_cmp_eq_u32 s{S_N}, 17\ns_cbranch_scc0 L_trans")
    LRD = [f"v_accvgpr_read_b32 v{LR[0]}, a{A_L}\nv_accvgpr_read_b32 v{LR[1]}, a{A_L+4}", f"v_accvgpr_read_b32 v{LR[2]}, a{A_L+8}\nv_accvgpr_read_b32 v{LR[3]}, a{A_L+12}"]
    def cold():
        e.label("L_trans")
        e.lgkm = list(top); e.vm = ["KV"]*13
        qr = [lambda j=j: e.ds(f"ds_read_b128 {ar(A_Q + j*4)}, v{V_QA} offset:{j*1024}", "QS") for j in range(16)]
        rcp = [f"v_rcp_f32 v{LR[qb]}, v{LR[qb]}" for qb in range(4)]
        drain_head(e, (0, 1, 2, 3))
        o, s_ = pv2()
        gaps = {k: [f] for k, f in enumerate(B[4:] + D + [lambda: e.vmem(poll_b.ld, "KV")])}
        for k, t in enumerate(LRD + check_lines(0, S_QT) + rcp): gaps[13 + k] = [T(t)]
        items = norm_items(e, range(8), S_CTXLO)
        XB = f"v_xor_b32 v{V_RD}, {32768 + 65536}, v{V_RD}"
        def fill(g, k, left):
            while items and items[0][1] <= left and 8 + 8*(items[0][2] + 1) - 1 + 5 <= k:
                f, c, _ = items.pop(0); g.append(f); left -= c
        gaps[24] = [T(XB)]
        for k in range(25, 72):
            gaps[k] = []; fill(gaps[k], k, 8)
        run(e, s_ + o, gaps)
        def post():
            e(PREP0)
            for t in PREP: e(t.replace(f"s{S_T0}", f"s{S_T5}"))
            e.need(vm=["KV"])
            e("s_barrier")
            itstamp()
            mem = A + B[:4]; lds = qr + kreads(e, 0) + kreads(e, 1)
            gaps = {k: [mem.pop(0)] if k % 4 == 0 else [lds.pop(0), lds.pop(0)] for k in range(16)}
            run(e, d_mfmas(), gaps)
            extra = []
            for f in mem: extra += [f, NOP]
            emit_items(items, extra) if items else [(f(), e("s_nop 0")) for f in mem]
            del items[:]
            for t in MS: e(t)
            e(f"s_mov_b32 s{S_TRANS}, 17")
            e.need(lg=[("FR", 0)])
            assert e.lgkm == top, e.lgkm
            e("s_branch L_special")
        post()
        e.label("L_first")
        e(f"s_cmp_eq_u32 s{S_N}, 17\ns_cbranch_scc1 L_fzero")
        loop_body(True)
        e("s_branch L_special")
        e.label("L_fzero")
        for r in list(range(V_O, V_O + 128)) + list(range(V_S[0], V_S[0] + 64)) + [Preg(0, 0), Preg(0, 0) + 1]: e(f"v_mov_b32 v{r}, 0")
        for r in range(16): e(f"v_accvgpr_write_b32 a{A_L + r}, 0")
        e("s_branch L_final")
        e.label("L_ret0")
        e.lgkm = []; e.vm = []
        for t in rcp: e(t)
        e(XB)
        emit_items(norm_items(e, range(8), S_CTXLO))
        post()
    e.cold = cold
    e.label("L_final")
    stamp(e, 8)
    tw, trd, tl, tlr = V_TMP[0:4]
    e(f"""s_lshl_b32 s{S_T0}, s{w}, 17
    s_lshl_b32 s{S_AC}, s{h}, 19
    s_add_u32 s{S_AC}, s{S_AC}, s{S_T0}
    s_add_u32 s{S_AC}, s{S_AC}, {WS_CTX}
    s_lshl_b32 s{S_WOo}, s{i}, 19
    s_add_u32 s{S_WOo}, s{S_WOo}, s{S_T0}
    s_add_u32 s{S_WOo}, s{S_WOo}, {WS_WOF}
    s_and_b32 s{S_T0}, s{w}, 1
    s_lshl_b32 s{S_T0}, s{S_T0}, 14
    s_lshr_b32 s{S_T1}, s{w}, 1
    s_lshl_b32 s{S_T1}, s{S_T1}, 16
    s_add_u32 s{S_T0}, s{S_T0}, s{S_T1}
    v_add_u32 v{tw}, s{S_T0}, v{V_L16}
    v_xor_b32 v{trd}, {65536 + 16384}, v{tw}
    s_add_u32 s{S_T0}, s{S_WL}, {144*1024}
    v_add_u32 v{tl}, s{S_T0}, v{V_L16}
    v_xor_b32 v{tlr}, 3072, v{tl}
    s_cmp_ge_u32 s{w}, 2
    s_cbranch_scc1 L_mergeB""")
    for role in range(2):
        keep = list(range(4)) if role == 0 else list(range(4, 8))
        send = list(range(4, 8)) if role == 0 else list(range(4))
        if role == 1: e.label("L_mergeB")
        e.lgkm = list(top); e.vm = ["KV"]*13
        order = (2, 3, 0, 1) if role == 0 else (0, 1, 2, 3)
        drain_head(e, order)
        o, s_ = pv2(order)
        gaps = {2*k: [lambda k=k: wo_load(e, k // 4, k % 4)] for k in range(8)}
        for k in range(8): gaps[45 + 3*k] = [lambda k=k: wo_load(e, 2 + k // 4, k % 4)]
        gaps[17] = [T(LRD[0])]; gaps[18] = [T(LRD[1])]
        gaps[19] = [lambda: e.ds(f"ds_write_b128 v{tl}, {vr(LR[0])}")]
        for n in range(16): gaps[23 + 3*n] = [lambda n=n: e.ds(f"ds_write_b128 v{tw}, {vr(V_O + send[0]*16 + n*4)} offset:{n*1024}")]
        if OPT.get("fst"): stamp(e, 14)
        run(e, s_ + o, gaps)
        if OPT.get("fst"): stamp(e, 15)
        e.wait_all(vm=False)
        e("s_barrier")
        if OPT.get("fst"): stamp(e, 16)
        e.ds(f"ds_read_b128 {vr(V_TMP[4])}, v{tlr}", "ML")
        for n in range(16):
            e.ds(f"ds_read_b128 {vr(V_S[0] + n*4)}, v{trd} offset:{n*1024}", ("MO", n // 4))
            if n % 2: wo_load(e, 4 + n // 8, (n // 2) % 4)
        e.need(lg=["ML"])
        for qb in range(4): e(f"v_add_f32 v{LR[qb]}, v{LR[qb]}, v{V_TMP[4] + qb}")
        for t in check_lines(1 + role, S_QTHI): e(t)
        for n in range(16):
            e.need(lg=[("MO", n // 4)])
            for r in range(4):
                o = V_O + keep[0]*16 + n*4 + r
                e(f"v_add_f32 v{o}, v{o}, v{V_S[0] + n*4 + r}")
        e.label(f"L_ret{1 + role}")
        for q in range(4): wo_load(e, 6, q)
        if OPT.get("fst"): stamp(e, 17)
        for qb in range(4): e(f"v_rcp_f32 v{LR[qb]}, v{LR[qb]}")
        e(f"v_add_u32 v{tw}, 32768, v{tw}")
        emit_items(norm_items(e, keep, S_CTXHI))
        if role == 0: e("s_branch L_attdone")
    e.label("L_attdone")
    stamp(e, 9)

def slow_path(e):
    M = V_P[1]; AL = V_P[1] + 4; T = V_P[1] + 8; QI = V_P[1] + 12; NI = V_P[1] + 13
    u, nu, ko, vo = S_T0, S_T1, S_T3, S_T5
    e.label("L_slow")
    e.lgkm = []; e.vm = []
    e("s_waitcnt vmcnt(0) lgkmcnt(0)")
    e(f"""s_lshl_b32 s{nu}, s{S_CNT}, 1
    s_add_u32 s{nu}, s{nu}, 2
    s_lshl_b32 s{ko}, s{S_HEAD}, 19
    s_add_u32 s{vo}, s{ko}, {WS_V}
    s_add_u32 s{ko}, s{ko}, {WS_K}
    s_lshl_b32 s{S_CNT}, s{S_CNT}, 6
    v_lshrrev_b32 v{T}, 4, v{V_LANE}
    v_lshlrev_b32 v{T}, 2, v{T}
    v_and_b32 v{QI}, 15, v{V_LANE}
    v_sub_u32 v{QI}, v{QI}, v{T}
    v_add_u32 v{QI}, s{S_CNT}, v{QI}
    v_mov_b32 v{NI}, {NEGINF:#x}
    s_mov_b32 s{u}, 0""")
    for r in range(128): e(f"v_mov_b32 v{V_O + r}, 0")
    for qb in range(4): e(f"v_mov_b32 v{M+qb}, v{NI}\nv_mov_b32 v{LR[qb]}, 0")
    e.label("L_slowl")
    def ld8(so):
        for j in range(8):
            if j == 4: e(f"s_add_u32 s{so}, s{so}, 4096")
            e.vmem(f"buffer_load_dwordx4 {ar(A_FB[1] + j*4)}, v{V_L16}, {srd(S_WS)}, s{so} offen offset:{(j%4)*1024}{SC}", "SL")
        e(f"s_add_u32 s{so}, s{so}, 4096")
    ld8(ko)
    e.wait_all()
    for kb2 in range(2):
        for dg in range(4):
            for qb in range(4):
                d = vr(Sreg(0, kb2, qb))
                e(mf(d, ar(A_FB[1] + (kb2*4+dg)*4), ar(A_Q + (qb*4+dg)*4), d if dg else "0"))
    e("s_nop 7")
    ld8(vo)
    for kb2 in range(2):
        for qb in range(4):
            for r in range(4):
                s = Sreg(0, kb2, qb) + r
                e(f"v_cmp_gt_i32 vcc, {16*kb2 + r - 16*qb}, v{QI}\ns_nop 1\nv_cndmask_b32 v{s}, v{s}, v{NI}, vcc")
    e(f"v_subrev_u32 v{QI}, 32, v{QI}")
    for qb in range(4):
        a, b = Sreg(0, 0, qb), Sreg(0, 1, qb)
        e(f"""v_max3_f32 v{T}, v{a}, v{a+1}, v{a+2}
        v_max3_f32 v{T}, v{T}, v{a+3}, v{b}
        v_max3_f32 v{T}, v{T}, v{b+1}, v{b+2}
        v_max3_f32 v{T}, v{T}, v{b+3}, v{M+qb}
        v_mov_b32 v{T+1}, v{T}
        s_nop 1
        v_permlane32_swap_b32 v{T}, v{T+1}
        v_max_f32 v{T}, v{T}, v{T+1}
        v_mov_b32 v{T+1}, v{T}
        s_nop 1
        v_permlane16_swap_b32 v{T}, v{T+1}
        v_max_f32 v{T}, v{T}, v{T+1}
        v_sub_f32 v{AL+qb}, v{M+qb}, v{T}
        v_mov_b32 v{M+qb}, v{T}
        v_exp_f32 v{AL+qb}, v{AL+qb}""")
        for s in list(range(a, a+4)) + list(range(b, b+4)):
            e(f"v_sub_f32 v{s}, v{s}, v{T}")
        for s in list(range(a, a+4)) + list(range(b, b+4)):
            e(f"v_exp_f32 v{s}, v{s}")
        e(f"v_mul_f32 v{LR[qb]}, v{LR[qb]}, v{AL+qb}")
        for s in list(range(a, a+4)) + list(range(b, b+4)):
            e(f"v_add_f32 v{LR[qb]}, v{LR[qb]}, v{s}")
        p = Preg(0, qb)
        e(f"v_cvt_pk_bf16_f32 v{p}, v{a}, v{a+1}\nv_cvt_pk_bf16_f32 v{p+1}, v{a+2}, v{a+3}\nv_cvt_pk_bf16_f32 v{p+2}, v{b}, v{b+1}\nv_cvt_pk_bf16_f32 v{p+3}, v{b+2}, v{b+3}")
        for db in range(8):
            for r in range(4): e(f"v_mul_f32 v{Oreg(db, qb)+r}, v{Oreg(db, qb)+r}, v{AL+qb}")
    e.wait_all()
    e("s_nop 1")
    for db in range(8):
        for qb in range(4):
            d = vr(Oreg(db, qb))
            e(mf(d, ar(A_FB[1] + db*4), vr(Preg(0, qb)), d))
    e(f"s_add_u32 s{u}, s{u}, 1\ns_cmp_lt_u32 s{u}, s{nu}\ns_nop 7\ns_cbranch_scc1 L_slowl")
    for qb in range(4):
        e(f"""v_mov_b32 v{T}, v{LR[qb]}
        s_nop 1
        v_permlane32_swap_b32 v{LR[qb]}, v{T}
        v_add_f32 v{LR[qb]}, v{LR[qb]}, v{T}
        v_mov_b32 v{T}, v{LR[qb]}
        s_nop 1
        v_permlane16_swap_b32 v{LR[qb]}, v{T}
        v_add_f32 v{LR[qb]}, v{LR[qb]}, v{T}""")
    e(f"s_cmp_eq_u32 s{S_RET}, 0\ns_cbranch_scc1 L_ret0\ns_cmp_eq_u32 s{S_RET}, 1\ns_cbranch_scc1 L_ret1\ns_branch L_ret2")


def phase_d(e, poll_c):
    qt, mt, w = S_HEAD, S_BLK, S_WAVE
    V_XO, V_X, V_G = 4, 8, 17
    V_CR, NCR = 64, 4
    V_AS, V_AD = 128, 192
    t0, t1 = 24, 25
    S_XO = S_XNB
    for j in range(16):
        e.ds(f"ds_write_b128 v{V_TMP[0]}, {ar(A_DACC + j*4)} offset:{((j%4)*4 + j//4)*1024}", "DW")
        if j < OPT.get("wpre", 12): wo_load(e, 7 + j // 4, j % 4)
    e(f"""v_and_b32 v{t0}, 15, v{V_LANE}
    v_lshlrev_b32 v{t0}, 10, v{t0}
    v_lshrrev_b32 v{t1}, 4, v{V_LANE}
    v_lshl_add_u32 v{V_XO}, v{t1}, 3, v{t0}
    s_lshl_b32 s{S_XO}, s{qt}, 16
    s_lshl_b32 s{S_T0}, s{w}, 14
    s_add_u32 s{S_XO}, s{S_XO}, s{S_T0}
    s_lshl_b32 s{S_T1}, s{mt}, 7
    s_add_u32 s{S_XO}, s{S_XO}, s{S_T1}
    v_subrev_u32 v{t1}, 32768, v{V_TMP[0]}
    s_lshl_b32 s{S_T0}, s{w}, 12
    v_add_u32 v{t0}, s{S_T0}, v{V_L16}
    v_add_u32 v{V_G}, 65536, v{t0}""")
    if OPT.get("pollw", 1):
        v = poll_c.voff
        e(f"""s_lshr_b32 s{S_T0}, s{qt}, 1
        s_sub_u32 s{S_T1}, 15, s{S_T0}
        s_min_u32 s{S_T0}, s{S_T0}, s{S_T1}
        s_lshl_b32 s{S_T0}, s{S_T0}, 9
        s_lshl_b32 s{S_T1}, s{w}, 3
        s_add_u32 s{S_T0}, s{S_T0}, s{S_T1}
        s_add_u32 s{S_T0}, s{S_T0}, {WS_FC}
        v_and_b32 v{v}, 3, v{V_LANE}
        v_lshlrev_b32 v{v}, 7, v{v}
        v_and_or_b32 v{v}, v{V_LANE}, 4, v{v}
        v_add_u32 v{v}, s{S_T0}, v{v}""")
    else: poll32_addr(e, poll_c.voff, WS_FC)
    if OPT.get("fst"): stamp(e, 18)
    e.need(vm=["CST"]); e.wait_all(vm=False)
    if OPT.get("fst"): stamp(e, 19)
    e("s_barrier")
    if OPT.get("fst"): stamp(e, 20)
    signal(e, sig_lin(WS_FC), 26)
    for sw in range(4):
        for mb in range(4): e.ds(f"ds_read_b128 {vr(V_AD + (sw*4+mb)*4)}, v{V_G if sw >= 2 else t0} offset:{32768 + (sw % 2)*16384 + mb*1024}", ("R", sw))
    for mb in range(4):
        e.vmem(f"buffer_load_dwordx2 v[{V_X+2*mb}:{V_X+2*mb+1}], v{V_XO}, {srd(S_X)}, s{S_XO} offen offset:{mb*32}", "X")
    wl = [lambda n=n, q=q: wo_load(e, n, q) for n in range(7, NWS) for q in range(4)][OPT.get("wpre", 12):]
    cnt = [0]
    def V(t):
        e(t); cnt[0] += 1
        if cnt[0] % 6 == 0 and wl: wl.pop(0)()
    def rnd(base, pk):
        for j in range(8): V(f"v_cvt_pk_bf16_f32 v{pk+j}, v{base+2*j}, v{base+2*j+1}")
        for j in range(8): V(f"v_lshlrev_b32 v{base+2*j}, 16, v{pk+j}"); V(f"v_and_b32 v{base+2*j+1}, 0xffff0000, v{pk+j}")
    def red(base, tag):
        e.need(lg=[(tag, 1)])
        for r in range(16): V(f"v_add_f32 v{base+r}, v{base+r}, v{base+16+r}")
        e.need(lg=[(tag, 3)])
        for r in range(16): V(f"v_add_f32 v{base+32+r}, v{base+32+r}, v{base+48+r}")
        for r in range(16): V(f"v_add_f32 v{base+r}, v{base+r}, v{base+32+r}")
    T = V_AD + 16; PK = V_AD + 32
    red(V_AD, "R"); rnd(V_AD, PK)
    for r in range(16): V(f"v_mul_f32 v{T+r}, 0xbfb8aa3b, v{V_AD+r}")
    for r in range(16): V(f"v_exp_f32 v{T+r}, v{T+r}")
    for r in range(16): V(f"v_add_f32 v{T+r}, 1.0, v{T+r}")
    for r in range(16): V(f"v_rcp_f32 v{T+r}, v{T+r}")
    for r in range(16): V(f"v_mul_f32 v{V_AD+r}, v{V_AD+r}, v{T+r}")
    rnd(V_AD, PK)
    while len(wl) > 8: wl.pop(0)()
    poll_c.issue()
    while wl: wl.pop(0)()
    stamp(e, 10); poll_c.check(); stamp(e, 11)
    def c_load(n, q):
        e.vmem(f"buffer_load_dwordx4 {vr(V_CR + (n % NCR)*16 + q*4)}, v{V_L16}, {srd(S_WS)}, s{S_AC} offen offset:{q*1024}{SC}", ("C", n))
        if q == 3: e(f"s_add_u32 s{S_AC}, s{S_AC}, 4096")
    if OPT.get("dchain", 0):
        for n in range(2):
            for q in range(4): c_load(n, q)
        for n in range(0, 32, 2):
            ld = []
            for t in range(2):
                if n + 2 + t < 32: ld += [lambda q=q, t=t: c_load(n + 2 + t, q) for q in range(4)]
            for t in range(2):
                if n >= 2 and n + NWS - 2 + t < 32: ld += [lambda q=q, t=t: wo_load(e, n + NWS - 2 + t, q) for q in range(4)]
            for _ in range(min(4, len(ld))): ld.pop(0)()
            e.need(vm=[("C", n), ("C", n + 1), ("WO", n), ("WO", n + 1)])
            for k in range(32):
                c = k // 2; mb = c // 4; qb = c % 4 if mb % 2 == 0 else 3 - c % 4
                t = k % 2 if c % 2 == 0 else 1 - k % 2
                d = vr(V_AS + (mb*4 + qb)*4)
                e(mf(d, wreg(n + t, mb), vr(V_CR + ((n + t) % NCR)*16 + qb*4), d if (n or k % 2) else "0"))
                if k % 2 == 0 and ld: ld.pop(0)()
    else:
        for n in range(NCR - 1):
            for q in range(4): c_load(n, q)
        for n in range(32):
            ld = []
            if n + NCR - 1 < 32: ld += [lambda q=q: c_load(n + NCR - 1, q) for q in range(4)]
            if n >= 1 and n + NWS - 1 < 32: ld += [lambda q=q: wo_load(e, n + NWS - 1, q) for q in range(4)]
            e.need(vm=[("C", n), ("WO", n)])
            for k in range(16):
                mb, qb = k // 4, k % 4
                d = vr(V_AS + k*4)
                e(mf(d, wreg(n, mb), vr(V_CR + (n % NCR)*16 + qb*4), d if n else "0"))
                if k % 2 == 0 and ld: ld.pop(0)()
    stamp(e, 12)
    e("s_nop 7")
    for j in range(16): e.ds(f"ds_write_b128 v{t1}, {vr(V_AS + j*4)} offset:{((j%4)*4 + j//4)*1024}", "SW")
    e.need(vm=["X"])
    for j in range(8): e(f"v_lshlrev_b32 v{T+2*j}, 16, v{V_X+j}"); e(f"v_and_b32 v{T+2*j+1}, 0xffff0000, v{V_X+j}")
    e.wait_all(vm=False)
    e("s_barrier")
    for sw in range(4):
        for mb in range(4): e.ds(f"ds_read_b128 {vr(V_AS + (sw*4+mb)*4)}, v{V_G if sw >= 2 else t0} offset:{(sw % 2)*16384 + mb*1024}", ("RS", sw))
    red(V_AS, "RS"); rnd(V_AS, PK)
    for r in range(16): e(f"v_mul_f32 v{V_AS+r}, v{V_AS+r}, v{V_AD+r}")
    rnd(V_AS, PK)
    for r in range(16): e(f"v_add_f32 v{V_AS+r}, v{V_AS+r}, v{T+r}")
    for j in range(8): e(f"v_cvt_pk_bf16_f32 v{PK+j}, v{V_AS+2*j}, v{V_AS+2*j+1}")
    for mb in range(4):
        e.vmem(f"buffer_store_dwordx2 v[{PK+2*mb}:{PK+2*mb+1}], v{V_XO}, {srd(S_OUT)}, s{S_XO} offen offset:{mb*32}{OPT.get('outsc', '')}", "OUT")
    e("s_cmp_lg_u32 s2, 0")
    e("s_cbranch_scc1 L_nobump")
    signal(e, f"s_mov_b32 s{S_CNT}, {WS_EP}", 26)
    e.label("L_nobump")
    stamp(e, 13)

HEADER = open("cdna_kernels/" + NAME + ".s.ref").read().split("; Override launch geometry")[0]
def build():
    e = E(); body(e)
    n = 0
    def policy(roleB, trans, slow, spin):
        def d(lb, site, c):
            if lb == "L_body": return (c == 0) if site < 2 else True
            if lb == "L_first": return trans and c == 2
            if lb == "L_fzero": return trans == 2
            if lb == "L_late": return c != 1
            if lb == "L_trans": return trans and c == 0
            if lb == "L_mergeB": return roleB
            if lb == "L_slow": return slow
            if lb == "L_slowl": return c % 2 == 0
            if lb == "L_ret0": return trans and c == 0
            if lb == "L_ret1": return not roleB
            if lb.startswith("L_spin_"): return spin and c == 0
            if lb.startswith("L_ok_"): return c >= 1
            if lb.startswith("L_spinl_"): return True
            return False
        return d
    for cfg in ((0, 0, 0, 0), (1, 1, 0, 0), (0, 0, 1, 1), (1, 1, 1, 1), (1, 2, 0, 0)):
        tr = chk.trace(e.L, policy(*cfg))
        assert "s_endpgm" in tr[-1], cfg
        n += chk.check(tr, f"path{cfg}")
    if n: print(f"{n} hazards", file=sys.stderr)
    return "\n".join([HEADER.rstrip("\n"), "; @launch grid=(256,1,1) block=(256,1,1) lds=163840",
        '.amdgcn_target "amdgcn-amd-amdhsa--gfx950"\n.text', e.text(), '.section .rodata,"a"\n.p2align 6',
        f""".amdhsa_kernel {KN}
  .amdhsa_next_free_vgpr 512
  .amdhsa_next_free_sgpr 102
  .amdhsa_accum_offset 256
  .amdhsa_group_segment_fixed_size 0
  .amdhsa_kernarg_size 104
  .amdhsa_user_sgpr_count 2
  .amdhsa_user_sgpr_kernarg_segment_ptr 1
  .amdhsa_system_sgpr_workgroup_id_x 1
.end_amdhsa_kernel
"""])
if __name__ == "__main__":
    open(sys.argv[1], "w").write(build())
```

```python
import sys, math, os, struct
from emit import E, Filler
import check as chk

NAME = "recurrent_scan__compressed_kv_cla__glu_gated_geglu__prompt"
KN = NAME + "_kernel"
MB = 1 << 20
OPT = eval(os.environ.get("OPT", "{}"))
STAMPS = os.environ.get("STAMPS")
POLLALL = OPT.get("pollall", 0)
WS_XN, WS_H, WS_WDF, WS_WOF, WS_CTX, WS_K, WS_V, WS_END = 0, 2*MB, 9*MB, 12*MB, 16*MB, 32*MB, 48*MB, 64*MB
fb = lambda x: struct.unpack("<I", struct.pack("<f", x))[0]

S_X, S_CKV, S_WQ, S_WUK, S_WUV, S_WO, S_WG, S_WU, S_WD, S_OUT, S_DBG, S_WS = [8 + 4*i for i in range(12)]
S_HSRD, S_ASRD, S_BSRD = 56, 60, 64
S_WAVE, S_HEAD, S_BLK, S_ROT = 68, 69, 70, 71
S_T0, S_T1, S_T2, S_T3, S_T4, S_T5 = 72, 73, 74, 75, 76, 77
S_WL, S_WA = 78, 79
S_OFF0, S_OFFA, S_AROW, S_KVST, S_XNB, S_HST = 80, 81, 82, 83, 84, 85
S_CTXLO, S_CTXHI = 86, 87
S_SRCA, S_SRCB, S_LA, S_LB, S_VMAXB, S_VCLB = 88, 89, 90, 91, 92, 93
S_N, S_EVT, S_TRANS, S_N0 = 94, 95, 96, 97
S_QT, S_QTHI, S_RET, S_CNT = 98, 99, 100, 101
S_ROTB, S_DW, S_DH, S_DINC = 48, 49, 50, 51
S_GJ = 7
S_GSRD = S_CKV
S_DSRD = S_HSRD
S_FL = 6
def srd(n): return f"s[{n}:{n+3}]"
def mf(d, a, b, c): return f"v_mfma_f32_16x16x32_bf16 {d}, {a}, {b}, {c}"
def vr(n, k=4): return f"v[{n}:{n+k-1}]"
def ar(n, k=4): return f"a[{n}:{n+k-1}]"

V_LANE, V_STAMP, V_L16 = 1, 2, 3
V_TR = (4, 5, 6, 7)
V_WOFF = (8, 9, 10, 11)
V_AOFF = (12, 13)
V_WOFG = (12, 13)
V_ARD = (14, 15)
V_TMP = list(range(16, 32))
V_POLL = 0
V_WF, V_PK, V_ACC = 32, 64, 128
def acc(db, rb): return V_ACC + (db*4 + rb)*4
def actf(ks, rb): return (ks*4 + rb)*4
V_RD = 4
V_TD, V_TN, V_LIM = 16, 20, 24
V_P, V_S, V_O = (32, 48), (64, 96), 128
A_Q, A_FB, A_DACC, A_L, A_ONE, A_DOP = 0, (64, 96), 128, 192, 208, 224
QSCALE = fb(math.log2(math.e) / math.sqrt(128.0))
NEGINF = 0xff800000
def Sreg(buf, kb2, qb): return V_S[buf] + (kb2*4 + qb)*4
def Preg(buf, qb): return V_P[buf] + qb*4
def Oreg(db, qb): return V_O + (db*4 + qb)*4
SC = " sc1"

def stamp(e, idx):
    if not STAMPS: return
    if OPT.get("padph") and idx not in OPT["padph"]: return
    if OPT.get("padat"):
        if idx == OPT["padat"][0]:
            e(f"s_nop 1\nv_readlane_b32 s5, v{V_STAMP}, 0\ns_add_u32 s{S_CNT}, s5, {OPT['padat'][1]*100}")
            e.label("L_padat")
            e(f"s_memrealtime s[4:5]\ns_waitcnt lgkmcnt(0)\ns_sub_u32 s5, s4, s{S_CNT}\ns_cmp_lt_i32 s5, 0\ns_cbranch_scc1 L_padat")
            e.lgkm = []
        return
    e(("s_memtime" if STAMPS == "2" else "s_memrealtime") + " s[4:5]")
    e.wait_all(vm=False)
    e(f"v_writelane_b32 v{V_STAMP}, s4, {idx}")
def stamp_flush(e):
    if not STAMPS: return
    if OPT.get("dbgst"):
        e(f"""s_load_dwordx2 s[8:9], s[0:1], 88
        s_mov_b32 s10, 256
        s_mov_b32 s11, 0x20000
        v_readlane_b32 s4, v{V_STAMP}, 0
        s_not_b32 s4, s4
        s_nop 3
        v_writelane_b32 v{V_STAMP}, s4, 14
        v_lshlrev_b32 v0, 2, v{V_LANE}
        v_cmp_gt_u32 vcc, 15, v{V_LANE}
        s_and_saveexec_b64 s[6:7], vcc
        s_waitcnt lgkmcnt(0)
        buffer_atomic_umax v{V_STAMP}, v0, s[8:11], 0 offen
        s_waitcnt vmcnt(0)""")
        return
    e(f"""s_lshl_b32 s4, s2, 2
    s_add_u32 s4, s4, s{S_WAVE}
    s_lshl_b32 s4, s4, 7
    s_add_u32 s4, s4, {64*MB}
    v_lshlrev_b32 v0, 2, v{V_LANE}
    v_cmp_gt_u32 vcc, 32, v{V_LANE}
    s_and_saveexec_b64 s[6:7], vcc
    buffer_store_dword v{V_STAMP}, v0, {srd(S_WS)}, s4 offen
    s_waitcnt vmcnt(0)""")

WS_EP = 11*MB
WS_FX, WS_FK, WS_FB, WS_FC = WS_EP + 4096, WS_EP + 8192, WS_EP + 12288, WS_EP + 16384
S_TAG = 3
def signal(e, soff_lines, tmp):
    e(soff_lines)
    e(f"""v_mov_b32 v{tmp}, s{S_TAG}
    v_add_u32 v{tmp+1}, s{S_WL}, v{V_LANE}
    v_min_u32 v{tmp+1}, 1, v{tmp+1}
    v_lshlrev_b32 v{tmp+1}, 30, v{tmp+1}""")
    e.vmem(f"buffer_store_dword v{tmp}, v{tmp+1}, {srd(S_WS)}, s{S_CNT} offen sc1", "SIG")
def sig_lin(base):
    return f"""s_lshr_b32 s{S_CNT}, s2, 3
    s_lshl_b32 s{S_CNT}, s{S_CNT}, 7
    s_and_b32 s{S_FL}, s2, 7
    s_lshl_b32 s{S_FL}, s{S_FL}, 2
    s_add_u32 s{S_CNT}, s{S_CNT}, s{S_FL}
    s_add_u32 s{S_CNT}, s{S_CNT}, {base}"""
SIG_KV = f"""s_and_b32 s{S_CNT}, s2, 31
    s_lshl_b32 s{S_CNT}, s{S_CNT}, 7
    s_lshl_b32 s{S_FL}, s{S_BLK}, 2
    s_add_u32 s{S_CNT}, s{S_CNT}, s{S_FL}
    s_add_u32 s{S_CNT}, s{S_CNT}, {WS_FK}"""
class Poll:
    def __init__(self, e, name, voff):
        self.e, self.name, self.voff = e, name, voff
    @property
    def ld(self):
        if self.name == "b" and POLLALL: return f"buffer_load_dwordx4 a[216:219], v{self.voff}, {srd(S_WS)}, 0 offen sc1"
        return f"buffer_load_dword v{V_POLL}, v{self.voff}, {srd(S_WS)}, 0 offen sc1"
    def issue(self): self.e.vmem(self.ld, ("POLL", self.name))
    def test(self):
        if self.name == "b" and POLLALL:
            return f"""v_accvgpr_read_b32 v5, a216
            v_accvgpr_read_b32 v6, a217
            v_accvgpr_read_b32 v7, a218
            v_accvgpr_read_b32 v{V_POLL}, a219
            v_xor_b32 v5, v5, v{V_POLL}
            v_xor_b32 v6, v6, v{V_POLL}
            v_xor_b32 v7, v7, v{V_POLL}
            v_or3_b32 v5, v5, v6, v7
            v_xor_b32 v{V_POLL}, s{S_TAG}, v{V_POLL}
            v_or_b32 v5, v5, v{V_POLL}
            v_cmp_eq_u32 vcc, 0, v5
            s_cmp_eq_u64 vcc, exec"""
        return f"v_cmp_eq_u32 vcc, s{S_TAG}, v{V_POLL}\ns_cmp_eq_u64 vcc, exec"
    def check(self):
        e = self.e
        e.need(vm=[("POLL", self.name)])
        e(self.test())
        e(f"s_cbranch_scc0 L_spin_{self.name}")
        e.label(f"L_ok_{self.name}")
    def spin(self):
        e = self.e
        e.label(f"L_spin_{self.name}")
        e(f"s_mov_b32 s{S_CNT}, 0x40000")
        e.label(f"L_spinl_{self.name}")
        e("s_sleep 2")
        e(self.ld)
        e("s_waitcnt vmcnt(0)")
        e(self.test())
        e(f"s_cbranch_scc1 L_ok_{self.name}")
        e(f"s_sub_u32 s{S_CNT}, s{S_CNT}, 1")
        e(f"s_cmp_lg_u32 s{S_CNT}, 0")
        e(f"s_cbranch_scc1 L_spinl_{self.name}")
        e(f"s_branch L_ok_{self.name}")
def poll32_addr(e, v, base):
    e(f"""s_lshr_b32 s{S_T0}, s{S_HEAD}, 1
    s_sub_u32 s{S_T1}, 15, s{S_T0}
    s_min_u32 s{S_T0}, s{S_T0}, s{S_T1}
    s_lshl_b32 s{S_T0}, s{S_T0}, 9
    s_add_u32 s{S_T0}, s{S_T0}, {base}
    v_bfe_u32 v{v}, v{V_LANE}, 3, 2
    v_lshlrev_b32 v{v}, 5, v{v}
    v_and_or_b32 v{v}, v{V_LANE}, 7, v{v}
    v_lshlrev_b32 v{v}, 2, v{v}
    v_add_u32 v{v}, s{S_T0}, v{v}""")

def kernel_head(e):
    e(f".globl {KN}\n.p2align 8\n.type {KN},@function")
    e.label(KN)
    e("s_cmp_ge_u32 s2, 256")
    e("s_cbranch_scc1 L_end")
    sizes = {S_X: (0, 2*MB), S_CKV: (8, 2*MB), S_WUK: (24, 4*MB), S_WS: (96, 65*MB if STAMPS else WS_END), S_WQ: (16, 4*MB), S_WUV: (32, 4*MB), S_WO: (40, 4*MB),
             S_WG: (56, 512*3584), S_WU: (64, 512*3584), S_WD: (72, 1792*1024), S_OUT: (80, 2*MB)}
    first = (S_X, S_CKV, S_WUK, S_WS)
    if OPT.get("st0") == 1: e("s_memrealtime s[6:7]\ns_waitcnt lgkmcnt(0)")
    for sr in first: e(f"s_load_dwordx2 s[{sr}:{sr+1}], s[0:1], {sizes[sr][0]}")
    if OPT.get("st0") == 2: e("s_waitcnt lgkmcnt(0)\ns_memrealtime s[6:7]")
    if STAMPS and not OPT.get("st0"): e(("s_memtime" if STAMPS == "2" else "s_memrealtime") + " s[6:7]")
    e(f"v_and_b32 v{V_LANE}, 63, v0")
    e("v_lshrrev_b32 v2, 6, v0")
    e(f"v_lshlrev_b32 v{V_L16}, 4, v{V_LANE}")
    e(f"v_readfirstlane_b32 s{S_WAVE}, v2")
    if OPT.get("pfcode", 1):
        e(f"""s_getpc_b64 s[4:5]
        s_lshr_b32 s{S_T0}, s2, 3
        s_lshl_b32 s{S_T0}, s{S_T0}, 11
        v_lshlrev_b32 v{V_TMP[0]}, 3, v2
        v_and_or_b32 v{V_TMP[0]}, v0, 7, v{V_TMP[0]}
        v_lshlrev_b32 v{V_TMP[0]}, 6, v{V_TMP[0]}
        v_add_u32 v{V_TMP[0]}, s{S_T0}, v{V_TMP[0]}
        v_min_u32 v{V_TMP[0]}, L_end-L_pcref, v{V_TMP[0]}""")
        e.label("L_pcref")
        e.vmem(f"global_load_dword v{V_TMP[12]}, v{V_TMP[0]}, s[4:5]", "PF")
    e(f"""s_and_b32 s{S_T0}, s2, 7
    s_lshl_b32 s{S_T0}, s{S_T0}, 2
    s_lshr_b32 s{S_T1}, s2, 3
    s_and_b32 s{S_T1}, s{S_T1}, 3
    s_add_u32 s{S_HEAD}, s{S_T0}, s{S_T1}
    s_lshr_b32 s{S_BLK}, s2, 5
    s_mul_i32 s{S_T0}, s{S_T1}, {OPT.get('rota', 0)}
    s_add_u32 s{S_ROT}, s{S_BLK}, s{S_T0}
    s_mul_i32 s{S_T0}, s2, {OPT.get('rotx', 1)}
    s_add_u32 s{S_ROT}, s{S_ROT}, s{S_T0}
    s_and_b32 s{S_ROT}, s{S_ROT}, 7
    s_and_b32 s{S_ROTB}, s{S_BLK}, 3
    s_lshl_b32 s{S_WL}, s{S_WAVE}, 10
    s_lshl_b32 s{S_WA}, s{S_WAVE}, 13
    s_add_u32 s{S_WA}, s{S_WA}, 65536""")
    if STAMPS: e("v_mov_b32 v2, -1")
    for sr in first: e(f"s_mov_b32 s{sr+2}, {sizes[sr][1]}\ns_mov_b32 s{sr+3}, 0x20000")
    setup_addrs(e)
    e(f"v_add_u32 v{V_ARD[0]}, s{S_WA}, v{V_ARD[0]}\nv_xor_b32 v{V_ARD[1]}, 64, v{V_ARD[0]}")
    scalar_setup(e)
    e(f"s_lshl_b32 s{S_T0}, s2, 13\ns_lshl_b32 s{S_T1}, s{S_WAVE}, 11\ns_add_u32 s{S_T0}, s{S_T0}, s{S_T1}")
    def late():
        for sr, (p, n) in sizes.items():
            if sr not in first: e(f"s_load_dwordx2 s[{sr}:{sr+1}], s[0:1], {p}\ns_mov_b32 s{sr+2}, {n}\ns_mov_b32 s{sr+3}, 0x20000")
        for sr in (S_HSRD, S_ASRD, S_BSRD): e(f"s_mov_b64 s[{sr}:{sr+1}], s[{S_WS}:{S_WS+1}]\ns_mov_b32 s{sr+2}, {WS_END}\ns_mov_b32 s{sr+3}, 0x20000")
        e(f"s_add_u32 s{S_FL}, s{S_WS}, {WS_EP}\ns_addc_u32 s{S_FL+1}, s{S_WS+1}, 0\ns_load_dword s{S_TAG}, s[{S_FL}:{S_FL+1}], 0")
    def go():
        e("s_waitcnt lgkmcnt(0)")
        if STAMPS: e("v_writelane_b32 v2, s6, 0")
        e.vmem(f"buffer_load_dwordx4 v[64:67], v{V_L16}, {srd(S_X)}, s{S_T0} offen", "X")
        e.vmem(f"buffer_load_dwordx4 v[68:71], v{V_L16}, {srd(S_X)}, s{S_T0} offen offset:1024", "X")
    return go, late

V_CPF = 31
V_KPERM = 31
V_UOFF = 30
def setup_addrs(e):
    t0, t1, t2, t3, t4 = V_TMP[:5]
    e(f"""v_lshrrev_b32 v{t0}, 2, v{V_LANE}
    v_lshlrev_b32 v{t0}, 7, v{t0}
    v_and_b32 v{t1}, 3, v{V_LANE}
    v_lshlrev_b32 v{t1}, 3, v{t1}
    v_add_u32 v{t0}, v{t0}, v{t1}
    v_bfe_u32 v{t1}, v{V_LANE}, 3, 2
    v_lshlrev_b32 v{t1}, 5, v{t1}
    v_add_u32 v{V_TR[0]}, v{t0}, v{t1}""")
    for c in (1, 2, 3): e(f"v_xor_b32 v{V_TR[c]}, {c*32}, v{V_TR[0]}")
    e(f"""v_lshrrev_b32 v{t0}, 3, v{V_LANE}
    v_and_b32 v{t1}, 7, v{V_LANE}
    v_and_b32 v{t2}, 6, v{t0}
    v_xor_b32 v{t1}, v{t1}, v{t2}
    v_lshlrev_b32 v{V_UOFF}, 4, v{t1}
    s_lshl_b32 s{S_T0}, s{S_WAVE}, 3
    v_add_u32 v{t2}, s{S_T0}, v{t0}
    v_bfe_u32 v{t3}, v{t2}, 2, 2
    v_lshlrev_b32 v{t3}, 3, v{t3}
    v_lshrrev_b32 v{t4}, 4, v{t2}
    v_lshl_add_u32 v{t3}, v{t4}, 2, v{t3}
    v_and_b32 v{t4}, 3, v{t2}
    v_add_u32 v{V_KPERM}, v{t3}, v{t4}
    v_lshl_add_u32 v{V_WOFF[0]}, v{V_KPERM}, 13, v{V_UOFF}
    v_add_u32 v{V_WOFF[1]}, 128, v{V_WOFF[0]}
    v_add_u32 v{V_WOFF[2]}, {32*8192}, v{V_WOFF[0]}
    v_add_u32 v{V_WOFF[3]}, {32*8192 + 128}, v{V_WOFF[0]}
    v_and_b32 v{t1}, 7, v{V_LANE}
    v_lshrrev_b32 v{t2}, 1, v{t0}
    v_xor_b32 v{t1}, v{t1}, v{t2}
    v_lshlrev_b32 v{t1}, 4, v{t1}
    v_lshl_add_u32 v{V_AOFF[0]}, v{t0}, 10, v{t1}
    v_xor_b32 v{V_AOFF[1]}, 64, v{V_AOFF[0]}
    v_add_u32 v{V_AOFF[1]}, 8192, v{V_AOFF[1]}
    v_and_b32 v{t0}, 15, v{V_LANE}
    v_lshrrev_b32 v{t1}, 4, v{V_LANE}
    v_lshrrev_b32 v{t2}, 1, v{t0}
    v_xor_b32 v{t1}, v{t1}, v{t2}
    v_lshlrev_b32 v{t1}, 4, v{t1}
    v_lshl_add_u32 v{V_ARD[0]}, v{t0}, 7, v{t1}""")

def scalar_setup(e):
    i, h, w = S_BLK, S_HEAD, S_WAVE
    e(f"""s_lshl_b32 s{S_T0}, s{i}, 2
    s_add_u32 s{S_T0}, s{S_T0}, s{w}
    s_lshl_b32 s{S_AROW}, s{S_T0}, 16
    s_lshl_b32 s{S_KVST}, s{h}, 19
    s_lshl_b32 s{S_T0}, s{S_T0}, 14
    s_add_u32 s{S_KVST}, s{S_KVST}, s{S_T0}""")
def scalar_setup2(e):
    i, h, w = S_BLK, S_HEAD, S_WAVE
    a, b, c, d = S_N, S_EVT, S_TRANS, S_RET
    IDLE = f"s{i}" if OPT.get("spread", 1) else "7"
    return f"""s_sub_u32 s{a}, 15, s{i}
    s_cmp_lt_u32 s{w}, 2 ! s_cselect_b32 s{b}, s{a}, s{i}
    s_lshl_b32 s{b}, s{b}, 1
    s_and_b32 s{c}, s{w}, 1
    s_add_u32 s{S_QT}, s{b}, s{c}
    s_lshl_b32 s{S_XNB}, s{S_QT}, 16
    s_mul_i32 s{S_HST}, s{S_QT}, {56*4096}
    s_add_u32 s{S_HST}, s{S_HST}, {WS_H}
    s_lshl_b32 s{d}, s{h}, 14
    s_add_u32 s{d}, s{d}, {WS_CTX}
    s_lshl_b32 s{S_CTXLO}, s{S_QT}, 19
    s_add_u32 s{S_CTXLO}, s{S_CTXLO}, s{d}
    s_lshr_b32 s{b}, s{w}, 1
    s_xor_b32 s{b}, s{b}, s{w}
    s_and_b32 s{b}, s{b}, 1
    s_lshl_b32 s{a}, s{a}, 1
    s_add_u32 s{S_QTHI}, s{a}, s{b}
    s_lshl_b32 s{S_CTXHI}, s{S_QTHI}, 19
    s_add_u32 s{S_CTXHI}, s{S_CTXHI}, s{d}
    s_lshr_b32 s{a}, s{h}, 2
    s_cmp_lg_u32 s{a}, {IDLE} ! s_cselect_b32 s{S_HSRD+2}, {WS_END}, 0
    s_cmp_gt_u32 s{a}, {IDLE} ! s_cselect_b32 s{a}, 4, 0
    s_sub_u32 s{S_GJ}, s{h}, s{a}
    s_lshl_b32 s{a}, s{h}, 19
    s_mov_b32 s{b}, {WS_V}
    s_cmp_lt_u32 s{w}, 2 ! s_cselect_b32 s{b}, {WS_K}, s{b}
    s_add_u32 s{b}, s{b}, s{a}
    s_add_u32 s{S_VCLB}, s{b}, {63*8192}
    s_and_b32 s{a}, s{w}, 1
    s_lshl_b32 s{a}, s{a}, 13
    s_add_u32 s{S_SRCA}, s{b}, s{a}
    s_lshl_b32 s{a}, s{w}, 13
    s_add_u32 s{S_VMAXB}, s{b}, s{a}
    s_add_u32 s{S_VMAXB}, s{S_VMAXB}, {64*8192}
    s_min_u32 s{S_SRCB}, s{S_VMAXB}, s{S_VCLB}
    s_lshl_b32 s{S_LB}, s{w}, 13
    s_add_u32 s{S_LA}, s{S_LB}, 65536
    s_xor_b32 s{S_LB}, s{S_LB}, 32768
    s_lshl_b32 s{S_N0}, s{i}, 1
    s_add_u32 s{S_N0}, s{S_N0}, 2
    s_mul_i32 s{a}, s{w}, {14*4096}
    s_mul_i32 s{S_DH}, s{h}, {56*4096}
    s_add_u32 s{S_DH}, s{S_DH}, s{a}
    s_add_u32 s{S_DH}, s{S_DH}, {WS_H}
    s_mul_i32 s{S_DW}, s{i}, {56*4096}
    s_add_u32 s{S_DW}, s{S_DW}, s{a}
    s_add_u32 s{S_DW}, s{S_DW}, {WS_WDF}
    s_mov_b32 s{S_DINC}, 0""".split("\n")

def layernorm_lines():
    L = []; e = L.append
    X = (72, 80); SUM = (88, 89); TMP = (90, 91); MEAN = (92, 93); VAR = (94, 95)
    SS = (S_T0, S_T1)
    for r in range(2):
        for j in range(4):
            e(f"v_lshlrev_b32 v{X[r]+2*j}, 16, v{64+4*r+j}")
            e(f"v_and_b32 v{X[r]+2*j+1}, 0xffff0000, v{64+4*r+j}")
    def reduce():
        for mod in ("quad_perm:[1,0,3,2] row_mask:0xf bank_mask:0xf", "quad_perm:[2,3,0,1] row_mask:0xf bank_mask:0xf",
                    "row_half_mirror row_mask:0xf bank_mask:0xf", "row_mirror row_mask:0xf bank_mask:0xf",
                    "row_bcast:15 row_mask:0xa bank_mask:0xf", "row_bcast:31 row_mask:0xc bank_mask:0xf"):
            e("s_nop 0")
            for r in range(2): e(f"v_add_f32_dpp v{SUM[r]}, v{SUM[r]}, v{SUM[r]} {mod}")
        e("s_nop 0")
        for r in range(2): e(f"v_readlane_b32 s{SS[r]}, v{SUM[r]}, 63")
        e("s_nop 1")
    for r in range(2): e(f"v_add_f32 v{SUM[r]}, v{X[r]}, v{X[r]+1}")
    for j in range(2, 8):
        for r in range(2): e(f"v_add_f32 v{SUM[r]}, v{SUM[r]}, v{X[r]+j}")
    reduce()
    for r in range(2): e(f"v_mov_b32 v{MEAN[r]}, s{SS[r]}")
    for r in range(2): e(f"v_mul_f32 v{MEAN[r]}, 0x3b000000, v{MEAN[r]}")
    for j in range(8):
        for r in range(2): e(f"v_sub_f32 v{TMP[r]}, v{X[r]+j}, v{MEAN[r]}")
        for r in range(2): e(f"v_mul_f32 v{SUM[r]}, v{TMP[r]}, v{TMP[r]}" if j == 0 else f"v_fmac_f32 v{SUM[r]}, v{TMP[r]}, v{TMP[r]}")
    reduce()
    def both(fmt):
        for r in range(2): e(fmt.format(v=VAR[r], m=MEAN[r], s=SS[r]))
    def rnd(x):
        both("v_cvt_pk_bf16_f32 v{%s}, v{%s}, v{%s}" % (x, x, x)); both("v_lshlrev_b32 v{%s}, 16, v{%s}" % (x, x))
    both("v_mov_b32 v{v}, s{s}"); both("v_mul_f32 v{v}, 0x3b000000, v{v}")
    rnd("v"); both("v_add_f32 v{v}, 0x3727c5ac, v{v}"); rnd("v")
    both("v_sqrt_f32 v{v}, v{v}"); rnd("m"); rnd("v"); both("v_rcp_f32 v{v}, v{v}")
    for r in range(2):
        for j in range(8): e(f"v_sub_f32 v{X[r]+j}, v{X[r]+j}, v{MEAN[r]}")
        for j in range(4): e(f"v_cvt_pk_bf16_f32 v{64+4*r+j}, v{X[r]+2*j}, v{X[r]+2*j+1}")
        for j in range(4):
            e(f"v_lshlrev_b32 v{X[r]+2*j}, 16, v{64+4*r+j}")
            e(f"v_and_b32 v{X[r]+2*j+1}, 0xffff0000, v{64+4*r+j}")
        for j in range(8): e(f"v_mul_f32 v{X[r]+j}, v{X[r]+j}, v{VAR[r]}")
        for j in range(4): e(f"v_cvt_pk_bf16_f32 v{64+4*r+j}, v{X[r]+2*j}, v{X[r]+2*j+1}")
    return L

class MemQ:
    def __init__(self, e): self.e = e; self.items = []
    def add(self, kind, lo, hi, *a): self.items.append([kind, lo, hi, a])
    def fillers(self):
        e = self.e; out = []
        dm = [k for k, it in enumerate(self.items) if it[0] == 'd']
        nxt = {dm[j]: dm[j+1] for j in range(len(dm) - 1)}
        self.first_m0 = self.items[dm[0]][3][0]
        for k, (kind, lo, hi, a) in enumerate(self.items):
            if kind == 's': out.append(Filler(lambda a=a: e(a[0].replace(" ! ", "\n")), 4, "salu", lo, hi))
            elif kind == 'l': out.append(Filler(lambda a=a: e.vmem(a[0], a[1]), 4, "mem", lo, hi))
            elif kind == 'f': out.append(Filler(a[0], a[1], a[2], lo, hi))
            else:
                def fn(k=k, a=a):
                    if len(a) > 3: e.need(lg=a[3])
                    if " m0," in e.L[-1]: e("s_nop 0")
                    e.vmem(a[1], a[2])
                    if k in nxt: e(self.items[nxt[k]][3][0])
                out.append(Filler(fn, 8, "mem", lo, hi))
        return out


def body(e):
    i, h, w = S_BLK, S_HEAD, S_WAVE
    go, late = kernel_head(e)
    NS = 32; BAR = 42; INF = 10**9; P = -10**6
    mq = MemQ(e)
    def S(lo, hi, *lines):
        for t in lines: mq.add('s', lo, hi, t)
    def VV(lo, hi, *lines):
        for t in lines: mq.add('f', lo, hi, lambda t=t: e(t), 4, "valu")
    V_GOFF = V_KPERM; V_TRH = V_AOFF + V_ARD
    S_GO = S_T1
    def area(gs):
        if gs < 16: return (gs % 4)*16384
        if gs < 24: return ((gs % 4)*32768 + 65536) % 131072
        return ((gs - 24)*16384 + 65536) % 131072
    def w_stage(gs, lo, step, hi):
        slot = gs % 4
        if gs < 16:
            s = gs % 8
            if s == 0: S(lo - 8, hi, f"s_lshl_b32 s{S_OFF0}, s{S_ROT}, 19", f"s_lshl_b32 s{S_T5}, s{h}, 8", f"s_add_u32 s{S_OFF0}, s{S_OFF0}, s{S_T5}")
            else: S(lo - 8, hi, f"s_add_u32 s{S_OFF0}, s{S_OFF0}, {1<<19}", f"s_and_b32 s{S_OFF0}, s{S_OFF0}, {4*MB-1}")
            for n in range(4):
                mq.add('d', lo + step*n, hi, f"s_add_u32 m0, s{S_WL}, {slot*16384 + n*4096}",
                       f"buffer_load_dwordx4 v{V_WOFF[n]}, {srd(S_WUK if gs < 8 else S_WUV)}, s{S_OFF0} offen lds", ("W", gs))
        elif gs >= 24:
            s = gs % 4; hf = (gs // 4) % 2
            S(lo - 10, hi, f"s_add_u32 s{S_OFF0}, s{S_ROTB}, {s}", f"s_and_b32 s{S_OFF0}, s{S_OFF0}, 3", f"s_lshl_b32 s{S_OFF0}, s{S_OFF0}, 20",
              f"s_lshl_b32 s{S_T5}, s{h}, 8", f"s_add_u32 s{S_OFF0}, s{S_OFF0}, s{S_T5}")
            if hf: S(lo - 10, hi, f"s_add_u32 s{S_OFF0}, s{S_OFF0}, 128")
            for n in range(4):
                if n: S(lo + step*n - 2, hi, f"s_add_u32 s{S_OFF0}, s{S_OFF0}, {32*8192}")
                mq.add('d', lo + step*n, hi, f"s_add_u32 m0, s{S_WL}, {area(gs) + n*4096}",
                       f"buffer_load_dwordx4 v{V_WOFF[0]}, {srd(S_WQ)}, s{S_OFF0} offen lds", ("W", gs))
    def g_stage(s, lo, step, hi):
        S(lo - 10, hi, f"s_add_u32 s{S_GO}, s{S_ROTB}, {s}", f"s_and_b32 s{S_GO}, s{S_GO}, 3", f"s_mul_i32 s{S_GO}, s{S_GO}, {128*3584}",
          f"s_lshl_b32 s{S_T5}, s{S_GJ}, 7", f"s_add_u32 s{S_GO}, s{S_GO}, s{S_T5}")
        for n in range(8):
            if n and n % 2 == 0: S(lo + step*n - 2, hi, f"s_add_u32 s{S_GO}, s{S_GO}, {32*3584}")
            mq.add('d', lo + step*n, hi, f"s_add_u32 m0, s{S_WL}, {area(16 + s) + n*4096}",
                   f"buffer_load_dwordx4 v{V_GOFF}, {srd((S_WG, S_WU)[n % 2])}, s{S_GO} offen lds", ("W", 16 + s))
    def a_stage(s, lo, step, hi):
        S(lo - 6, hi, f"s_add_u32 s{S_OFFA}, s{S_ROT}, {s}", f"s_and_b32 s{S_OFFA}, s{S_OFFA}, 7", f"s_lshl_b32 s{S_OFFA}, s{S_OFFA}, 7", f"s_add_u32 s{S_OFFA}, s{S_OFFA}, s{S_AROW}")
        for q in range(8):
            if q and q % 2 == 0: S(lo + step*q - 2, hi, f"s_add_u32 s{S_OFFA}, s{S_OFFA}, 16384")
            mq.add('d', lo + step*q, hi, f"s_add_u32 m0, s{S_WA}, {(s % 2)*32768 + q*1024}",
                   f"buffer_load_dwordx4 v{V_AOFF[q & 1]}, {srd(S_CKV)}, s{S_OFFA} offen lds", ("A", s), [("AF", s-2, 0), ("AF", s-2, 1)])
    def xn_stage(s, lo, step, hi):
        if s % 2 == 0: S(lo - 6, hi, f"s_add_u32 s{S_OFFA}, s{S_ROTB}, {s//2}", f"s_and_b32 s{S_OFFA}, s{S_OFFA}, 3", f"s_lshl_b32 s{S_OFFA}, s{S_OFFA}, 14", f"s_add_u32 s{S_OFFA}, s{S_OFFA}, s{S_XNB}")
        for ksub in range(2):
            if ksub or s % 2: S(lo + step*4*ksub - 2, hi, f"s_add_u32 s{S_OFFA}, s{S_OFFA}, 4096")
            for rb in range(4):
                mq.add('l', lo + step*(ksub*4 + rb), hi, f"buffer_load_dwordx4 {ar(actf(2*s+ksub, rb))}, v{V_L16}, {srd(S_WS)}, s{S_OFFA} offen offset:{rb*1024}{SC}", ("XN", 2*s+ksub))
    V_PO = V_TMP[13]
    poll_xn = Poll(e, "xn", V_PO); poll_kv = Poll(e, "kv", V_PO); poll_b = Poll(e, "b", V_TMP[15]); poll_c = Poll(e, "c", V_TMP[15])
    V_RT = V_TMP[8]; V_RTA = V_TMP[9:13]; V_PFD = V_TMP[1]
    RTL, RTS, RG = OPT.get("rtl", 19), OPT.get("rts", 22), OPT.get("rtgap", 32)
    S_RL = S_RET
    PRO = OPT.get("pro", 1); KVS = OPT.get("kvs", 30)
    w_stage(0, P, 0, INF); a_stage(0, P, 0, INF)
    n_pro0 = len(mq.items)
    S(P, INF, f"s_lshl_b32 s{S_T2}, s{w}, 8", f"s_add_u32 s{S_T2}, s{S_T2}, s2", f"s_lshr_b32 s{S_T3}, s{S_T2}, 3", f"s_add_u32 s{S_T4}, s{S_T2}, s{S_T3}", f"s_and_b32 s{S_T4}, s{S_T4}, 7",
      f"s_cmp_lt_u32 s{S_T2}, 448 ! s_cselect_b32 s{S_WD+2}, {1792*1024}, 0", f"s_cmp_lt_u32 s{S_T2}, 448 ! s_cselect_b32 s{S_BSRD+2}, {WS_END}, 0")
    VV(P, INF, f"v_lshrrev_b32 v{V_RT}, 3, v{V_LANE}", f"v_lshl_add_u32 v{V_RT}, v{V_RT}, 10, v{V_UOFF}", f"v_mul_u32_u24 v{V_GOFF}, 3584, v{V_KPERM}", f"v_add_u32 v{V_GOFF}, v{V_GOFF}, v{V_UOFF}")
    w_stage(1, P, 0, INF)
    if PRO >= 2: a_stage(1, P, 0, INF)
    if PRO >= 3: w_stage(2, P, 0, INF)
    n_pro1 = len(mq.items)
    if PRO < 2: a_stage(1, 0, 1, 30)
    if PRO < 3: w_stage(2, 10, 1, 36)
    def rt_loads(E0, half):
        for q in range(2*half, 2*half + 2):
            if OPT.get("rtlin"): S(E0, INF, f"s_add_u32 s{S_RL}, s{S_RL}, 1024" if q else f"s_lshl_b32 s{S_RL}, s{S_T4}, 12 ! s_lshl_b32 s{S_T5}, s{S_T3}, 3 ! s_add_u32 s{S_RL}, s{S_RL}, s{S_T5}")
            else: S(E0, INF, f"s_add_u32 s{S_RL}, s{S_RL}, 8192" if q else f"s_lshl_b32 s{S_RL}, s{S_T4}, 7 ! s_lshl_b32 s{S_T5}, s{S_T3}, 3 ! s_add_u32 s{S_RL}, s{S_RL}, s{S_T5}")
            for t, sr in enumerate((S_WO, S_WD)):
                mq.add('d', E0 + ((4 + 14*(q % 2) + 7*t) if RTL > 5 else 36), E0 + (33 if RTL > 5 else 60), f"s_add_u32 m0, s{S_WA}, {65536 + t*4096 + q*1024}", f"buffer_load_dwordx4 v{V_L16 if OPT.get('rtlin') else V_RT}, {srd(sr)}, s{S_RL} offen lds", "RT")
    for gs in range(NS):
        b = gs * 64
        if gs + 2 < 8: a_stage(gs + 2, b + (6 if gs or PRO >= 3 else 22), (4 if gs or PRO >= 3 else 2), b + 41)
        PFS = OPT.get("pfs", {})
        if gs == 1:
            VV(b + 2, INF, f"v_lshrrev_b32 v{V_PO}, 2, v{V_LANE}", f"v_lshlrev_b32 v{V_PO}, 7, v{V_PO}", f"v_and_or_b32 v{V_PO}, v{V_LANE}, 3, v{V_PO}", f"v_lshlrev_b32 v{V_PO}, 6, v{V_PO}",
               f"v_lshlrev_b32 v{V_TMP[5]}, 6, v{V_LANE}", f"v_min_u32 v{V_TMP[4]}, 1728, v{V_TMP[5]}")
        for n_, c_ in enumerate(PFS.get(gs, "")):
            if c_ in "qv":
                S(b + 2, INF, f"s_lshl_b32 s{S_T1}, s{i}, 2", f"s_add_u32 s{S_T1}, s{S_T1}, s{w}", f"s_lshl_b32 s{S_T1}, s{S_T1}, 17", f"s_lshl_b32 s{S_T5}, s{h}, 8", f"s_add_u32 s{S_T1}, s{S_T1}, s{S_T5}")
                vo = V_PO
            else:
                S(b + 2, INF, f"s_lshl_b32 s{S_T1}, s2, 2", f"s_add_u32 s{S_T1}, s{S_T1}, s{w}", f"s_mul_i32 s{S_T1}, s{S_T1}, {4096 if c_ == 'o' else 1792}")
                vo = V_TMP[5] if c_ == "o" else V_TMP[4]
            mq.add('l', b + 8, INF, f"buffer_load_dword v{V_TMP['qgu'.find(c_) % 4]}, v{vo}, {srd(dict(q=S_WQ, v=S_WUV, g=S_WG, u=S_WU, o=S_WO, d=S_WD)[c_])}, s{S_T1} offen", "PF")
        if gs == 6: S(b + 10, INF, f"s_min_u32 s{S_WG+2}, s{S_WG+2}, s{S_HSRD+2}", f"s_mov_b32 s{S_WU+2}, s{S_WG+2}")
        GS = OPT.get("gs", (7, 8))
        if gs in GS: g_stage(GS.index(gs), b + 4, 3, b + 41)
        if gs == 8:
            t0, t1 = V_TMP[2:4]
            S(b + 4, b + 30, f"s_lshl_b32 s{S_T5}, s{S_QT}, 7", f"s_add_u32 s{S_T5}, s{S_T5}, {WS_FX}")
            VV(b + 4, b + 30, f"v_and_b32 v{V_PO}, 7, v{V_LANE}", f"v_lshlrev_b32 v{V_PO}, 2, v{V_PO}", f"v_add_u32 v{V_PO}, s{S_T5}, v{V_PO}")
            mq.add('f', b + 28, b + 36, poll_xn.issue, 4, "mem")
        if gs == 9: mq.add('f', b + 2, b + 6, poll_xn.check, 8, "valu")
        if 9 <= gs <= 16: xn_stage(gs - 9, b + 8, 4, b + 41)
        if gs == 10: VV(b + 20, INF, *[f"v_add_u32 v{V_TRH[c]}, 65536, v{V_TR[c]}" for c in range(4)])
        if gs in (RTL, RTL + 1) and not OPT.get("nortl"): rt_loads(b, gs - RTL)
        if gs == 27:
            S(b + 4, b + 30, f"s_and_b32 s{S_T5}, s2, 31", f"s_lshl_b32 s{S_T5}, s{S_T5}, 7", f"s_add_u32 s{S_T5}, s{S_T5}, {WS_FK}")
            VV(b + 4, b + 30, f"v_and_b32 v{V_PO}, 7, v{V_LANE}", f"v_lshlrev_b32 v{V_PO}, 2, v{V_PO}", f"v_add_u32 v{V_PO}, s{S_T5}, v{V_PO}")
        if gs == KVS - 1: mq.add('f', b + 26, b + 33, poll_kv.issue, 4, "mem")
        if gs + 3 < NS: w_stage(gs + 3, b + 44, 4, b + 64 + 5)
        if gs in (14, 16): g_stage(2 + (gs - 14)//2, b + 44, 3, b + 64 + 7)
    b = KVS*64
    mq.add('f', b + 4, b + 8, poll_kv.check, 8, "valu")
    for st in range(2):
        for j in range(8):
            if j == 4: S(b, INF, f"s_add_u32 s{S_T4}, s{S_SRCA}, 4096")
            mq.add('d', b + 8 + st*64 + 6*j, INF, f"s_add_u32 m0, s{S_LA}, {st*32768 + (j//4)*4096}",
                   f"buffer_load_dwordx4 v{V_L16}, {srd(S_ASRD)}, s{S_T4 if j >= 4 else S_SRCA} offen offset:{(j%4)*1024}{SC} lds", ("KV", st))
        if st == 0: S(b, INF, f"s_cmp_ge_u32 s{w}, 2 ! s_cselect_b32 s{S_T4}, 0, 2", f"s_lshl_b32 s{S_T4}, s{S_T4}, 13", f"s_add_u32 s{S_SRCA}, s{S_SRCA}, s{S_T4}")
        else: S(b, INF, f"s_add_u32 s{S_SRCA}, s{S_SRCA}, 16384")
    mfill = mq.fillers()
    e(mq.first_m0)
    started = False
    for f in mfill[:n_pro0]:
        if f.cost == 8 and not started: go(); started = True
        f.fn()
        if f.cost == 8: e("s_nop 0")
    late()
    if OPT.get("tlb", 0):
        a, b, c = S_N, S_EVT, S_TRANS
        e(f"""s_lshr_b32 s{a}, s2, 3
        s_and_b32 s{b}, s{a}, 7
        s_add_u32 s{b}, s{b}, 2
        s_cmp_eq_u32 s{w}, 2
        s_cselect_b32 s{b}, 10, s{b}
        s_and_b32 s{c}, s{w}, 1
        s_lshr_b32 s{S_T0}, s{w}, 1
        s_cmp_eq_u32 s{c}, s{S_T0}
        s_cselect_b32 s{b}, 12, s{b}
        s_lshl_b32 s{S_T1}, s{b}, 3
        s_load_dwordx2 s[{S_ASRD}:{S_ASRD+1}], s[0:1], s{S_T1}
        s_cmp_lt_u32 s{b}, 6
        s_mov_b32 s{S_ASRD+2}, {1792*1024}
        s_cselect_b32 s{S_ASRD+2}, {4*MB}, s{S_ASRD+2}
        s_lshr_b32 s{S_T1}, s{a}, 3
        s_lshl_b32 s{a}, s{a}, 1
        s_add_u32 s{a}, s{a}, s{c}
        s_cmp_eq_u32 s{b}, 12
        s_cselect_b32 s{S_ASRD+2}, {WS_END}, s{S_ASRD+2}
        s_cselect_b32 s{a}, s{a}, s{S_T1}
        s_lshl_b32 s{a}, s{a}, 20
        v_mov_b32 v{V_TMP[5]}, s{a}
        s_waitcnt lgkmcnt(0)""")
        e.vmem(f"buffer_load_dword v{V_TMP[1]}, v{V_TMP[5]}, {srd(S_ASRD)}, 0 offen sc1", "PF")
        e(f"s_mov_b64 s[{S_ASRD}:{S_ASRD+1}], s[{S_WS}:{S_WS+1}]\ns_mov_b32 s{S_ASRD+2}, {WS_END}")
    e.need(vm=["X"])
    ln = layernorm_lines()
    rest = mfill[n_pro0:n_pro1]
    per = len(ln) // (sum(f.cost == 8 for f in rest) + 1) + 1
    while ln or rest:
        for t in ln[:per]: e(t)
        ln = ln[per:]
        while rest:
            f = rest.pop(0); f.fn()
            if f.cost == 8: break
    mfill = mfill[n_pro1:]
    t0, t1, t2 = V_TMP[2:5]
    e(f"""s_lshl_b32 s{S_T0}, s{w}, 5
    s_add_u32 s{S_T0}, s{S_T0}, 49152
    v_lshlrev_b32 v{t0}, 7, v{V_LANE}
    v_add_u32 v{t0}, s{S_T0}, v{t0}""")
    e.ds(f"ds_write_b128 v{t0}, v[64:67]"); e.ds(f"ds_write_b128 v{t0}, v[68:71] offset:16")
    e(f"""s_lshl_b32 s{S_T0}, s{w}, 11
    s_add_u32 s{S_T0}, s{S_T0}, 49152
    v_add_u32 v{t0}, s{S_T0}, v{V_L16}
    v_lshrrev_b32 v{t1}, 5, v{V_LANE}
    v_lshlrev_b32 v{t1}, 12, v{t1}
    v_bfe_u32 v{t2}, v{V_LANE}, 3, 2
    v_lshl_add_u32 v{t1}, v{t2}, 8, v{t1}
    v_and_b32 v{t2}, 7, v{V_LANE}
    v_lshl_add_u32 v{t1}, v{t2}, 4, v{t1}
    s_lshr_b32 s{S_T0}, s2, 3
    s_lshl_b32 s{S_T0}, s{S_T0}, 16
    s_bfe_u32 s{S_T1}, s2, 0x20001
    s_lshl_b32 s{S_T1}, s{S_T1}, 10
    s_add_u32 s{S_T0}, s{S_T0}, s{S_T1}
    s_and_b32 s{S_T1}, s2, 1
    s_lshl_b32 s{S_T1}, s{S_T1}, 7
    s_add_u32 s{S_T0}, s{S_T0}, s{S_T1}
    s_lshl_b32 s{S_T1}, s{w}, 14
    s_add_u32 s{S_T0}, s{S_T0}, s{S_T1}
    s_add_u32 s{S_T1}, s{S_T0}, 8192""")
    misc = []
    misc.append(Filler(lambda: (e.ds(f"ds_read_b128 v[64:67], v{t0}", "LN"), e.ds(f"ds_read_b128 v[68:71], v{t0} offset:1024", "LN")), 8, "mem", 2, 30))
    misc.append(Filler(lambda: (e.need(lg=["LN"]), e.vmem(f"buffer_store_dwordx4 v[64:67], v{t1}, {srd(S_WS)}, s{S_T0} offen{SC}", "XNST")), 8, "mem", 14, 40))
    misc.append(Filler(lambda: e.vmem(f"buffer_store_dwordx4 v[68:71], v{t1}, {srd(S_WS)}, s{S_T1} offen{SC}", "XNST"), 8, "mem", 16, 41))
    for t in scalar_setup2(e): misc.append(Filler(lambda t=t: e(t.replace(" ! ", "\n")), 4, "salu", 44, 150))
    S_RA, S_RB = S_N, S_EVT
    rts = [Filler(lambda: e(f"s_add_u32 s{S_RA}, s{S_WA}, 65536"), 4, "salu", 150)]
    for c in range(4): rts.append(Filler(lambda c=c: e(f"v_add_u32 v{V_RTA[c]}, s{S_RA}, v{V_TR[c]}"), 4, "valu", 150))
    for t in (f"s_lshl_b32 s{S_RA}, s{S_T4}, 19", f"s_lshl_b32 s{S_T3}, s{S_T3}, 12", f"s_add_u32 s{S_RA}, s{S_RA}, s{S_T3}", f"s_add_u32 s{S_RA}, s{S_RA}, {WS_WOF}",
              f"s_mul_i32 s{S_RB}, s{S_T4}, {56*4096}", f"s_add_u32 s{S_RB}, s{S_RB}, s{S_T3}", f"s_add_u32 s{S_RB}, s{S_RB}, {WS_WDF}"):
        rts.append(Filler(lambda t=t: e(t), 4, "salu", 150, 185))
    SIGKV = OPT.get("sigkv", 28)
    for n in range(8):
        t, c = n // 4, n % 4
        d0 = V_PK + (n % 2)*4
        def fr(t=t, c=c, d0=d0, n=n):
            e.need(vm=["RT"])
            for rr in range(2): e.ds(f"ds_read_b64_tr_b16 v[{d0+rr*2}:{d0+rr*2+1}], v{V_RTA[c]} offset:{t*4096 + rr*2048}", ("RTF", n))
        def fs(t=t, c=c, d0=d0, n=n):
            e.need(lg=[("RTF", n)])
            e.vmem(f"buffer_store_dwordx4 {vr(d0)}, v{V_L16}, {srd((S_WS, S_BSRD)[t])}, s{(S_RA, S_RB)[t]} offen offset:{c*1024}{SC}", "RTST")
        if not OPT.get("norts"): rts.append(Filler(fr, 8, "mem", RTS*64 + 40 + RG*n)); rts.append(Filler(fs, 4, "mem", RTS*64 + 40 + RG*n + 12, 30*64 + 30 if POLLALL else (SIGKV - 1)*64))
    mfmas = []; rd = []
    sig_at = {3: (["XNST"], sig_lin(WS_FX)), SIGKV: (["KST", "VST"] + ([] if POLLALL else ["RTST"]), SIG_KV)}
    def stage_gate(gs):
        def fn():
            tags = [("W", gs)]
            if gs < 8: tags.append(("A", gs))
            if gs in sig_at: tags += sig_at[gs][0]
            f3 = OPT.get("fine3")
            if f3 is not None and 0 <= gs - f3 < 6: stamp(e, 14 + 3*(gs - f3))
            e.need(vm=tags)
            if f3 is not None and 0 <= gs - f3 < 6: stamp(e, 15 + 3*(gs - f3))
            e("s_barrier")
            if f3 is not None and 0 <= gs - f3 < 6: stamp(e, 16 + 3*(gs - f3))
            if gs in sig_at: signal(e, sig_at[gs][1], V_TMP[6])
            if gs % 8 == 0: stamp(e, 2 + gs // 8)
            if OPT.get("fine") is not None and 0 <= gs - OPT["fine"] < 18: stamp(e, 14 + gs - OPT["fine"])
        return fn
    def actread(s, ksub, rb):
        return lambda: e.ds(f"ds_read_b128 {ar(actf(2*s+ksub, rb))}, v{V_ARD[ksub]} offset:{(s % 2)*32768 + rb*2048}", ("AF", s, ksub))
    for gs in range(NS):
        base = gs * 64
        if gs > 0: rd.append(Filler(stage_gate(gs), 8, "mem", base - 64 + BAR, base - 64 + BAR + 1))
        pend = [Filler(actread(gs, ksub, rb), 4, "mem", base - 64 + BAR, base - 3) for rb in range(4) for ksub in range(2)] if gs < 8 else []
        CH = 2 if gs < 16 else 4
        for g in range(16 // CH):
            g0 = base + g*4*CH
            db = g if gs < 16 else 4*((gs // 4) % 2) + g
            first = gs % (16 // CH) == 0
            for k in range(CH):
                slot = (g*CH + k) % 8
                if gs < 16: c_, off = g % 4, (k*2 + g // 4)*4096
                elif gs < 24: c_, off = 2*((gs // 4) % 2) + g % 2, (k*2 + g // 2)*4096
                else: c_, off = g, k*4096
                off += area(gs)
                for rr in range(2):
                    ad = V_TRH[c_] if off >= 65536 else V_TR[c_]
                    d = V_WF + slot*4 + rr*2
                    n_ = k*2 + rr
                    lo = (g0 - 22 + 2*n_) if CH == 2 else (g0 - 16 + n_)
                    if gs == 16 and g == 1: lo = max(lo, base)
                    rd.append(Filler(lambda d=d, ad=ad, o=(off + rr*2048) % 65536, t=(gs, g): e.ds(f"ds_read_b64_tr_b16 v[{d}:{d+1}], v{ad} offset:{o}", ("F", t)),
                                     4, "mem", max(lo, base - 64 + BAR), g0 - 3))
                    for _ in range(1 if g else 2):
                        if pend: rd.append(pend.pop(0))
            for rb in range(4):
                for kk in range(CH):
                    k = kk if rb % 2 == 0 else CH - 1 - kk
                    kslot = CH*(gs % (16 // CH)) + k
                    def needs(gs=gs, g=g, CH=CH):
                        return e.need(lg=[("F", (gs, g))] + ([("AF", gs, 0), ("AF", gs, 1)] if gs < 8 else []),
                                      vm=[("XN", 4*(gs % 4) + q) for q in range(4)] if 16 <= gs < 20 else ())
                    def m(gs=gs, slot=(g*CH + k) % 8, kslot=kslot, db=db, rb=rb, z=(first and kk == 0), needs=needs):
                        needs()
                        wv = vr(V_WF + slot*4); a = ar(actf(kslot, rb)); d = vr(acc(db, rb))
                        e(mf(d, a, wv, "0" if z else d) if 8 <= gs < 16 else mf(d, wv, a, "0" if z else d))
                    m.pre = needs
                    mfmas.append(m)
    def cvts(base, dst, dl):
        out = []
        for db in range(8):
            for rb in range(4):
                for hh in range(2):
                    d = dst(db, rb, hh); s = acc(db, rb) + 2*hh
                    out.append(Filler(lambda d=d, s=s: e(f"v_cvt_pk_bf16_f32 v{d}, v{s}, v{s+1}"), 4, "valu", base + 448 + 8*db + 2*rb + 1 + 8, dl(db, rb)))
        return out
    cv = cvts(0, lambda db, rb, hh: V_PK + (rb*4 + db//2)*4 + (db & 1)*2 + hh, lambda db, rb: min(512 + 8*db + 2*rb, 512 + 30))
    VH = OPT.get("vh", 1150)
    cvv = cvts(512, lambda db, rb, hh: V_PK + ((db//4)*8 + (rb//2)*4 + db % 4)*4 + (rb & 1)*2 + hh, lambda db, rb: min(1024 + 16*db + 4*rb, 1024 + 16) if db < 4 else min(VH + 39, 1278))
    for f in cvv[32:]: f.earliest = VH
    cv += cvv
    st = []
    G2 = OPT.get("sgap", 37)
    NKV = OPT.get("nkv", 14)
    sched = [(WS_K + n*1024, n, "KST", 512 + 36 + (444 // NKV)*n, 512 + 454 if n < 8 else 1024) for n in range(NKV)]
    sched += [(WS_K + n*1024, n, "KST", 1024 + 4 + G2*(n - NKV), VH - 2) for n in range(NKV, 16)]
    sched += [(WS_V + ((n % 8)//4)*8192 + ((n // 8)*4 + n % 4)*1024, n, "VST", max(1024 + 20 + G2*(n + 16 - NKV), VH + 40 if n >= 8 else 0), (SIGKV - 1)*64 + 20) for n in range(16)]
    for off, n, tag, lo, dl in sched:
        if n % 4 == 0: st.append(Filler(lambda off=off: e(f"s_add_u32 s{S_T2}, s{S_KVST}, {off}"), 4, "salu", lo - 4))
        st.append(Filler(lambda n=n, tag=tag: e.vmem(f"buffer_store_dwordx4 {vr(V_PK + n*4)}, v{V_L16}, {srd(S_WS)}, s{S_T2} offen offset:{(n%4)*1024}{SC}", tag), 4, "mem", lo, dl))
    C0 = -2.0 * math.sqrt(2.0 / math.pi) * math.log2(math.e)
    V_C1 = V_TMP[4]; V_QW = V_TMP[5]
    ge = [Filler(lambda: e(f"v_mov_b32 v{V_C1}, {fb(C0*0.044715):#x}"), 4, "valu", 1100)]
    for hf in range(2):
        lo = 1024 + 256*(hf + 1) - 16 + 11; dl = 1024 + 256*(hf + 2)
        def V(txt, cost=4): ge.append(Filler(lambda: e(txt), cost, "valu", lo, dl))
        for t in [f"s_lshl_b32 s{S_T0}, s{S_GJ}, 13", f"s_add_u32 s{S_T0}, s{S_T0}, {hf*4096}", f"s_add_u32 s{S_T0}, s{S_T0}, s{S_HST}"]:
            ge.append(Filler(lambda t=t: e(t), 4, "salu", lo, dl))
        for rb in range(4):
            lo = 1024 + 256*(hf + 1) - 16 + 4*rb + 11
            for c in range(2):
                G, U = acc(4*hf + c, rb), acc(4*hf + 2 + c, rb); T = V_TMP[0:4]
                for r in range(4): V(f"v_mul_f32 v{T[r]}, v{G+r}, v{G+r}")
                for r in range(4): V(f"v_fmaak_f32 v{T[r]}, v{T[r]}, v{V_C1}, {fb(C0):#x}")
                for r in range(4): V(f"v_mul_f32 v{T[r]}, v{G+r}, v{T[r]}")
                for r in range(4):
                    V(f"v_exp_f32 v{T[r]}, v{T[r]}", 8)
                    if r % 2: V(f"v_mul_f32 v{G+r-1}, v{G+r-1}, v{U+r-1}"); V(f"v_mul_f32 v{G+r}, v{G+r}, v{U+r}")
                for r in range(4): V(f"v_add_f32 v{T[r]}, 1.0, v{T[r]}")
                for r in range(4): V(f"v_rcp_f32 v{T[r]}, v{T[r]}", 8)
                for r in range(4): V(f"v_mul_f32 v{G+r}, v{G+r}, v{T[r]}")
                D = acc(4*hf + 2, rb) + 2*c
                V(f"v_cvt_pk_bf16_f32 v{D}, v{G}, v{G+1}"); V(f"v_cvt_pk_bf16_f32 v{D+1}, v{G+2}, v{G+3}")
            ge.append(Filler(lambda rb=rb, hf=hf: e.vmem(f"buffer_store_dwordx4 {vr(acc(4*hf + 2, rb))}, v{V_L16}, {srd(S_HSRD)}, s{S_T0} offen offset:{rb*1024}{SC}", "HST"), 4, "mem", lo, dl))
    ge.append(Filler(lambda: e(f"s_lshl_b32 s{S_T0}, s{w}, 14"), 4, "salu", 1792))
    ge.append(Filler(lambda: e(f"s_add_u32 s{S_T0}, s{S_T0}, 131072"), 4, "salu", 1792))
    ge.append(Filler(lambda: e(f"v_add_u32 v{V_QW}, s{S_T0}, v{V_L16}"), 4, "valu", 1792))
    zero_hi = []
    for hf in range(2):
        for dg in (2*hf, 2*hf + 1):
            for qb in range(4):
                lo = 1536 + 256*hf + 192 + 32*(dg % 2) + 16 + 4*qb + 3 + 8
                def V(txt, cost=4, kind="valu", lo=lo): ge.append(Filler(lambda: e(txt), cost, kind, lo))
                o0, o1 = acc(2*dg, qb), acc(2*dg+1, qb)
                for r in range(4): V(f"v_mul_f32 v{o0+r}, {QSCALE:#x}, v{o0+r}"); V(f"v_mul_f32 v{o1+r}, {QSCALE:#x}, v{o1+r}")
                for d, s_ in ((o0, o0), (o0+1, o0+2), (o0+2, o1), (o0+3, o1+2)): V(f"v_cvt_pk_bf16_f32 v{d}, v{s_}, v{s_+1}")
                for r in range(4):
                    if hf: zero_hi.append(f"v_mov_b32 v{o1+r}, 0")
                    else: V(f"v_mov_b32 v{o1+r}, 0")
                ge.append(Filler(lambda o0=o0, qb=qb, dg=dg: e.ds(f"ds_write_b128 v{V_QW}, {vr(o0)} offset:{(qb*4+dg)*1024}", "QW"), 4, "mem", lo))
        for dg in (2*hf, 2*hf + 1):
            for qb in range(4):
                o0 = acc(2*dg, qb)
                for r in range(4): ge.append(Filler(lambda r=r, o0=o0, qb=qb, dg=dg: e(f"v_accvgpr_write_b32 a{A_Q + (qb*4+dg)*4 + r}, v{o0+r}"), 4, "valu", 29*64 + 4))
        ge.append(Filler(lambda: e.need(lg=["QW"]), 4, "salu", 29*64 + 4))
        for dg in (2*hf, 2*hf + 1):
            for qb in range(4):
                for r in range(4):
                    if hf: zero_hi.append(f"v_mov_b32 v{acc(2*dg, qb) + r}, 0")
                    else: ge.append(Filler(lambda r=r, qb=qb, dg=dg: e(f"v_mov_b32 v{acc(2*dg, qb) + r}, 0"), 4, "valu", 29*64 + 4))
        if hf == 0:
            for r in range(64): ge.append(Filler(lambda r=r: e(f"v_accvgpr_write_b32 a{A_DACC + r}, 0"), 4, "valu", 31*64 + 4))
    stamp(e, 1)
    e.need(vm=[("W", 0), ("A", 0)]); e.wait_all(vm=False); e("s_barrier")
    e(f"s_mul_i32 s{S_TAG}, s{S_TAG}, 0x9e3779b1\ns_add_u32 s{S_TAG}, s{S_TAG}, 0x7f4a7c15")
    stamp(e, 2)
    k = 0
    while rd[k].earliest < 0: rd[k].fn(); k += 1
    rest = e.schedule(mfmas, [rd[k:], mfill, cv, misc, rts, st, att_setup_fillers(e, poll_b), ge], flush=False)
    e("s_nop 7")
    e.c(f"left over fillers: {[len(r) for r in rest]}")
    for r in rest:
        for f in r: f.fn()
    stamp(e, 6)
    attention(e, poll_b, poll_c, zero_hi)
    phase_d(e, poll_c)
    if OPT.get("padto"):
        if "padb" in OPT: e(f"s_lshr_b32 s6, s2, 3\ns_cmp_lg_u32 s6, {OPT['padb']}\ns_cbranch_scc1 L_end")
        if "padx" in OPT: e(f"s_and_b32 s6, s2, 7\ns_cmp_lg_u32 s6, {OPT['padx']}\ns_cbranch_scc1 L_end")
        e(f"s_nop 1\nv_readlane_b32 s6, v{V_STAMP}, 0\ns_add_u32 s6, s6, {OPT['padto']*100}")
        if OPT.get("padph"):
            e(f"v_readlane_b32 s4, v{V_STAMP}, {OPT['padph'][0]}\nv_readlane_b32 s5, v{V_STAMP}, {OPT['padph'][1]}\ns_sub_u32 s5, s5, s4\ns_add_u32 s6, s6, s5")
        e.label("L_pad")
        e("s_memrealtime s[4:5]\ns_waitcnt lgkmcnt(0)\ns_sub_u32 s7, s4, s6\ns_cmp_lt_i32 s7, 0\ns_cbranch_scc1 L_pad")
    else: stamp_flush(e)
    e("s_branch L_end")
    e.cold()
    for p in (poll_xn, poll_kv, poll_b, poll_c): p.spin()
    slow_path(e)
    e.label("L_end")
    e("s_endpgm")

A_Z = 212
S_FIRST = 20
def att_dma(e, which, j):
    if " m0," in e.L[-1]: e("s_nop 0")
    sr, src, ld = ((S_ASRD, S_SRCA, S_LA), (S_BSRD, S_SRCB, S_LB))[which]
    e.vmem(f"buffer_load_dwordx4 v{V_L16}, {srd(sr)}, s{S_T4 if j >= 4 else src} offen offset:{(j%4)*1024}{OPT.get('kvsc', SC)} lds", "KV")
    if which == 1 and OPT.get("boob"): ld = S_FIRST + 3
    if j == 3: e(f"s_add_u32 m0, s{ld}, 4096"); e(f"s_add_u32 s{S_T4}, s{src}, 4096")
    if j == 7:
        if which == 0: e(f"s_mov_b32 m0, s{S_FIRST + 3 if OPT.get('boob') else S_LB}\ns_add_u32 s{S_SRCA}, s{S_SRCA}, 16384")
        else: e(f"s_sub_u32 s{S_VMAXB}, s{S_VMAXB}, 16384\ns_min_u32 s{S_SRCB}, s{S_VMAXB}, s{S_VCLB}")
def d_load(e, j):
    so = S_DW if j < 4 else S_DH
    e.vmem(f"buffer_load_dwordx4 {ar(A_DOP + j*4)}, v{V_L16}, {srd(S_DSRD)}, s{so} offen offset:{(j%4)*1024}{OPT.get('kvsc', SC)}", "KV")
    if j % 4 == 3: e(f"s_add_u32 s{so}, s{so}, s{S_DINC}")
class M:
    def __init__(self, txt, tag=None): self.txt, self.tag = txt, tag
def d_mfmas():
    return [M(mf(ar(A_DACC + (mb*4+qb)*4), ar(A_DOP + mb*4), ar(A_DOP + 16 + qb*4), ar(A_DACC + (mb*4+qb)*4))) for mb in range(4) for qb in (range(4) if mb % 2 == 0 else range(3, -1, -1))]
def sm_half(e, buf, kb2):
    ex = []; cv = []
    for p in range(8):
        qb, hh = p // 2, p % 2
        r = Sreg(buf, kb2, qb) + 2*hh
        if OPT.get("noexp"): ex += [NOP, NOP]
        else: ex.append(lambda r=r: e(f"v_exp_f32 v{r}, v{r}")); ex.append(lambda r=r: e(f"v_exp_f32 v{r+1}, v{r+1}"))
        d = Preg(buf, qb) + 2*kb2 + hh
        cv.append(lambda r=r, d=d: e(f"v_perm_b32 v{d}, v{r+1}, v{r}, s{S_WUV}" if OPT.get("perm") else f"v_cvt_pk_bf16_f32 v{d}, v{r}, v{r+1}"))
    return ex, cv
def qk_mfmas(buf, half, tag="FR"):
    out = []
    for kb2 in range(2):
        kb = half*2 + kb2
        for qb in range(4):
            for kk in range(4):
                dg = kk if qb % 2 == 0 else 3 - kk
                d = vr(Sreg(buf, kb2, qb))
                c = d if kk else ("0" if kb < qb else vr(V_TD) if kb == qb else vr(V_TN))
                out.append(M(mf(d, ar(A_FB[0] + (kb2*4+dg)*4), ar(A_Q + (qb*4+dg)*4), c), (tag, 0, kb2*4)))
    return out
def pv_mfmas(buf, zero=False, order=range(8)):
    o = []
    for n_, db in enumerate(order):
        for qb in (range(4) if n_ % 2 == 0 else range(3, -1, -1)):
            d = vr(Oreg(db, qb))
            o.append(M(mf(d, ar(A_Z), ar(A_Z), "0")) if zero else M(mf(d, ar(A_FB[1] + db*4), vr(Preg(buf, qb)), d), ("FR", 1, (db // 4)*4)))
    s_ = []
    for qb in range(4):
        d = ar(A_L + qb*4)
        s_.append(M(mf(d, ar(A_Z), ar(A_Z), "0")) if zero else M(mf(d, ar(A_ONE), vr(Preg(buf, qb)), d)))
    if OPT.get("nosum"): s_ = [M("s_nop 0")]*4
    return o, s_
def frag_reads(e, fb_, off, order=range(8), tag="FR"):
    return [lambda j=j: e.ds(f"ds_read_b128 {ar(A_FB[fb_] + j*4)}, v{V_RD} offset:{off + j*1024}", (tag, fb_, (j // 4)*4)) for j in order]
NOP = lambda: None
def run(e, mfmas, gaps, nxt=None):
    if mfmas[0].tag: e.need(lg=[mfmas[0].tag])
    for i, m in enumerate(mfmas):
        if m.txt: e(m.txt)
        t = mfmas[i+1].tag if i + 1 < len(mfmas) else nxt
        if t: e.need(lg=[t])
        for f in gaps.get(i, ()): f()
def section(e, mfmas, reads, ex, cv, carry, g2, nxt=None, tail=None):
    gaps = {}
    for q in range(8):
        gaps[4*q] = [reads[q], (carry or NOP) if q == 0 else cv[q-1]]
        gaps[4*q+1] = [ex[2*q]]; gaps[4*q+2] = [g2[q]]; gaps[4*q+3] = [ex[2*q+1]]
    if len(mfmas) > 32: gaps[32] = [cv[7]]
    for k, f in (tail or {}).items(): gaps.setdefault(k, []).insert(0, f)
    run(e, mfmas, gaps, nxt)
    return cv[7] if len(mfmas) == 32 else None
PREP = [f"s_cmp_le_u32 s{S_N}, 15\ns_cselect_b32 s{S_ASRD+2}, {WS_END}, 0\ns_cselect_b32 s{S_T0}, 32768, s{S_T1}", f"s_add_u32 s{S_T3}, s{S_N}, 2\ns_xor_b32 s{S_LB}, s{S_LB}, s{S_T0}",
        f"s_cmp_ge_u32 s{S_T3}, s{S_N0}\ns_cselect_b32 s{S_BSRD+2}, s{S_ASRD+2}, 0" + (f"\ns_cselect_b32 s{S_FIRST+3}, s{S_LB}, s{S_T1}" if OPT.get("boob") else ""), f"s_xor_b32 s{S_LA}, s{S_LA}, s{S_T0}\ns_mov_b32 m0, s{S_LA}"]
PREP0 = f"s_mov_b32 s{S_T1}, 0x30000"
LR = V_TMP[10:14]
def check_lines(ret, qt):
    return [f"v_min3_f32 v{V_LIM+1}, v{LR[0]}, v{LR[1]}, v{LR[2]}\nv_add_f32 v{V_LIM}, v{LR[0]}, v{LR[1]}",
            f"v_add_f32 v{V_LIM}, v{V_LIM}, v{LR[2]}\nv_min_f32 v{V_LIM+1}, v{V_LIM+1}, v{LR[3]}",
            f"s_mov_b32 s{S_RET}, {ret}\nv_add_f32 v{V_LIM}, v{V_LIM}, v{LR[3]}\nv_cmp_nle_f32 vcc, 0x17800000, v{V_LIM+1}",
            f"s_mov_b64 s[{S_FL}:{S_FL+1}], vcc\ns_mov_b32 s{S_CNT}, s{qt}\nv_cmp_nge_f32 vcc, {OPT.get('lhi', 0x67800000):#x}, v{V_LIM}",
            f"s_or_b64 vcc, vcc, s[{S_FL}:{S_FL+1}]\n" + ("s_nop 0" if OPT.get("noslow") else "s_cbranch_vccnz L_slow")]
def norm_items(e, dbs, sbase):
    it = []
    for dg in sorted({d // 2 for d in dbs}):
        it.append((lambda dg=dg: e(f"s_add_u32 s{S_T0}, s{sbase}, {dg*4096}"), 0, 2*dg+1))
        for qb in range(4):
            o0, o1 = Oreg(2*dg, qb), Oreg(2*dg+1, qb)
            for r in range(4):
                for o in (o0, o1): it.append((lambda o=o, r=r, qb=qb: e(f"v_mul_f32 v{o+r}, v{o+r}, v{LR[qb]}"), 4, 2*dg+1))
            for d, s_ in ((o0, o0), (o0+1, o0+2), (o0+2, o1), (o0+3, o1+2)): it.append((lambda d=d, s_=s_: e(f"v_cvt_pk_bf16_f32 v{d}, v{s_}, v{s_+1}"), 4, 2*dg+1))
            it.append((lambda o0=o0, qb=qb: e.vmem(f"buffer_store_dwordx4 {vr(o0)}, v{V_L16}, {srd(S_WS)}, s{S_T0} offen offset:{qb*1024}{SC}", "CST"), 8, 2*dg+1))
    return it
def emit_items(items, extra=()):
    extra = list(extra)
    for f, c, _ in items:
        f()
        if c == 8:
            for _ in range(2):
                if extra: extra.pop(0)()
    for f in extra: f()
def sm_tail(e, order=range(8)):
    ex, cv = sm_half(e, 1, 1)
    for f in frag_reads(e, 1, 16384, order): f()
    for p in range(8):
        ex[2*p](); ex[2*p+1]()
        if p: cv[p-1]()
    e("s_nop 0"); cv[7]()

S_WOo, S_AC = S_OFF0, S_OFFA
WSLOT = [14, 15, 4, 5, 13, 12, 6, 7, 0, 1, 2, 3, -2, -3, 8, 9, 10, 11]
NWS = len(WSLOT)
def wreg(n, q):
    s_ = WSLOT[n % NWS]
    return ar(s_*16 + q*4) if s_ >= 0 else vr(-s_*16 + q*4)
def wo_load(e, n, q):
    e.vmem(f"buffer_load_dwordx4 {wreg(n, q)}, v{V_L16}, {srd(S_WS)}, s{S_WOo} offen offset:{q*1024}{SC}", ("WO", n))
    if q == 3: e(f"s_add_u32 s{S_WOo}, s{S_WOo}, 4096")

V_TRI = (9, 10, 11, 30)
V_SIG, V_TAGV, V_QA, V_ONE = 12, 13, 14, 15
S_D1, S_D2, S_M = S_FIRST + 2, S_FIRST, S_FIRST + 1
def att_setup_fillers(e, poll_b):
    i, h, w = S_BLK, S_HEAD, S_WAVE
    out = []
    def add(lo, hi, txt):
        for t in txt.split("\n"):
            t = t.strip()
            out.append(Filler(lambda t=t: e(t.replace(" ! ", "\n")), 4, "salu" if t.startswith("s_") else "valu", lo, hi))
    a, b, c, d = V_TRI; pv = poll_b.voff; t = S_M
    lo, hi = 17*64 + 10, 20*64
    add(lo, hi, f"""v_lshrrev_b32 v{d}, 4, v{V_LANE}
    v_lshlrev_b32 v{d}, 2, v{d}
    v_and_b32 v{a}, 15, v{V_LANE}
    v_sub_u32 v{a}, v{a}, v{d}
    v_subrev_u32 v{b}, 1, v{a}
    v_subrev_u32 v{c}, 2, v{a}
    v_subrev_u32 v{d}, 3, v{a}""")
    for r in V_TRI: add(lo, hi, f"v_ashrrev_i32 v{r}, 31, v{r}\nv_and_b32 v{r}, {NEGINF:#x}, v{r}")
    add(lo, hi, f"""s_lshr_b32 s{t}, s{h}, 1
    s_sub_u32 s{S_D1}, 15, s{t}
    s_min_u32 s{t}, s{t}, s{S_D1}
    s_lshl_b32 s{t}, s{t}, 9
    s_add_u32 s{t}, s{t}, {WS_FB}
    v_bfe_u32 v{pv}, v{V_LANE}, 3, 2
    v_lshlrev_b32 v{pv}, 5, v{pv}
    v_and_or_b32 v{pv}, v{V_LANE}, 7, v{pv}
    v_lshlrev_b32 v{pv}, 2, v{pv}
    v_add_u32 v{pv}, s{t}, v{pv}
    s_lshl_b32 s{S_TRANS}, s{i}, 1
    s_add_u32 s{S_TRANS}, s{S_TRANS}, s{w}
    s_sub_u32 s{S_TRANS}, s{S_TRANS}, 1
    s_sub_u32 s{S_D1}, s{S_TRANS}, 1
    s_add_u32 s{S_D2}, s{S_TRANS}, 1
    s_cmp_eq_u32 s{i}, 7 ! s_cselect_b32 s{t}, 16, 99
    s_cmp_eq_u32 s{w}, 0 ! s_cselect_b32 s{t}, s{t}, 99
    s_cmp_lt_u32 s{w}, 2 ! s_cselect_b32 s{S_D1}, s{t}, s{S_D1}
    s_cmp_lt_u32 s{w}, 2 ! s_cselect_b32 s{S_D2}, 99, s{S_D2}
    s_cmp_lt_u32 s{w}, 2 ! s_cselect_b32 s{S_TRANS}, 17, s{S_TRANS}
    s_sub_u32 s{S_VMAXB}, s{S_VMAXB}, 16384
    s_min_u32 s{S_SRCB}, s{S_VMAXB}, s{S_VCLB}
    s_lshr_b32 s{t}, s2, 3
    s_lshl_b32 s{t}, s{t}, 5
    s_and_b32 s{S_FIRST+3}, s2, 7
    s_add_u32 s{t}, s{t}, s{S_FIRST+3}
    s_lshl_b32 s{t}, s{t}, 2
    s_add_u32 s{t}, s{t}, {WS_FB}
    s_sub_u32 s{S_FIRST+3}, 3, s{w}
    s_lshl_b32 s{S_FIRST+3}, s{S_FIRST+3}, 14
    s_add_u32 s{S_FIRST+3}, s{S_FIRST+3}, 131072""")
    lo, hi = 28*64, 31*64
    add(lo, hi, f"""v_mov_b32 v{V_TAGV}, s{S_TAG}
    v_add_u32 v{V_SIG}, s{S_WL}, v{V_LANE}
    v_min_u32 v{V_SIG}, 1, v{V_SIG}
    v_lshlrev_b32 v{V_SIG}, 30, v{V_SIG}
    v_add_u32 v{V_SIG}, s{t}, v{V_SIG}
    v_add_u32 v{V_QA}, s{S_FIRST+3}, v{V_L16}
    v_and_b32 v{V_ONE}, 3, v{V_LANE}
    v_subrev_u32 v{V_ONE}, 1, v{V_ONE}
    v_ashrrev_i32 v{V_ONE}, 31, v{V_ONE}
    v_and_b32 v{V_ONE}, 0x3f803f80, v{V_ONE}
    s_mov_b32 s{S_T2}, 1
    s_mov_b32 s{S_WUV}, 0x07060302
    s_mov_b32 s{S_N}, -1
    s_mov_b32 s{S_DSRD+2}, 0""")
    return out

def Sq(c): return V_S[0] + c*4
def ring(g, j): return A_FB[0] + (g % 4)*16 + j*4
def qk2(tag="FR"):
    out = []
    for c in range(16):
        kb, qb = c // 4, c % 4
        for kk in range(4):
            dg = kk if c % 2 == 0 else 3 - kk
            d = vr(Sq(c))
            cc = d if kk else ("0" if kb < qb else vr(V_TD) if kb == qb else vr(V_TN))
            out.append(M(mf(d, ar(ring(kb, dg)), ar(A_Q + (qb*4+dg)*4), cc), (tag, kb)))
    return out
def pv2(order=(0, 1, 2, 3)):
    o = []; c = 0
    for n, p in enumerate(order):
        for x in range(2):
            for qb in (range(4) if x == 0 else range(3, -1, -1)):
                d = vr(Oreg(2*p + x, qb))
                for kg in ((0, 1) if c % 2 == 0 else (1, 0)):
                    o.append(M(mf(d, ar(ring(n, x*2 + kg)), vr(Preg(kg, qb)), d), ("FR", 4 + n)))
                c += 1
    s_ = [M(mf(ar(A_L + qb*4), ar(A_ONE), vr(Preg(kg, qb)), ar(A_L + qb*4))) for qb in range(4) for kg in range(2)]
    return o, s_
def kreads(e, g, tag="FR"): return [lambda j=j: e.ds(f"ds_read_b128 {ar(ring(g, j))}, v{V_RD} offset:{g*4096 + j*1024}", (tag, g)) for j in range(4)]
def vreads(e, n, p): return [lambda j=j: e.ds(f"ds_read_b128 {ar(ring(n, j))}, v{V_RD} offset:{16384 + (j % 2)*8192 + (2*p + j // 2)*1024}", ("FR", 4 + n)) for j in range(4)]
def cvt2(c, hh): return f"v_cvt_pk_bf16_f32 v{Preg(c // 8, c % 4) + 2*((c // 4) % 2) + hh}, v{Sq(c) + 2*hh}, v{Sq(c) + 2*hh + 1}"
def exp2(k): return f"v_exp_f32 v{V_S[0] + k}, v{V_S[0] + k}"
def drain_head(e, order):
    e.need(lg=[("FR", 1)])
    rd_ = [f for n, p in enumerate(order) for f in vreads(e, n, p)]
    for f in rd_[:8]: f()
    for c in range(1, 16):
        e(cvt2(c, 0)); e(cvt2(c, 1))
    for f in rd_[8:]: f()

def attention(e, poll_b, poll_c, zero_hi):
    i, h, w = S_BLK, S_HEAD, S_WAVE
    T = lambda t: (lambda: e(t))
    A = [lambda j=j: att_dma(e, 0, j) for j in range(8)]; B = [lambda j=j: att_dma(e, 1, j) for j in range(8)]; D = [lambda j=j: d_load(e, j) for j in range(8)]
    e(f"v_add_u32 v{V_RD}, 65536, v{V_L16}")
    e.need(vm=[("KV", 0), "HST", "RTST"], lg=["QW"])
    e("s_barrier")
    for g in range(2):
        for f in kreads(e, g, "F0"): f()
    e.vmem(f"buffer_store_dword v{V_TAGV}, v{V_SIG}, {srd(S_WS)}, 0 offen sc1", "SIG")
    MS = [f"s_add_u32 s{S_N}, s{S_N}, 1", f"s_cmp_eq_u32 s{S_N}, s{S_D1}\ns_cselect_b32 s{S_M}, -1, 0", f"s_cmp_eq_u32 s{S_N}, s{S_D2}\ns_cselect_b32 s{S_M}, -1, s{S_M}",
          f"v_and_b32 v{V_TD}, s{S_M}, v{V_TRI[0]}\nv_and_b32 v{V_TD+1}, s{S_M}, v{V_TRI[1]}", f"v_and_b32 v{V_TD+2}, s{S_M}, v{V_TRI[2]}\nv_and_b32 v{V_TD+3}, s{S_M}, v{V_TRI[3]}",
          f"s_and_b32 s{S_M}, s{S_M}, {NEGINF:#x}\nv_mov_b32 v{V_TN}, s{S_M}\nv_mov_b32 v{V_TN+1}, s{S_M}", f"v_mov_b32 v{V_TN+2}, s{S_M}\nv_mov_b32 v{V_TN+3}, s{S_M}"]
    for t in MS: e(t)
    e(f"s_xor_b32 s{S_LA}, s{S_LA}, 32768")
    XRD = f"v_xor_b32 v{V_RD}, 32768, v{V_RD}"
    CV0 = cvt2(0, 0) + "\n" + cvt2(0, 1)
    def itstamp(dn=0):
        if OPT.get("itst"):
            e(f"s_memtime s[4:5]\nv_subrev_u32 v5, {14 - dn}, v{V_LANE}\nv_cmp_eq_u32 vcc, s{S_N}, v5\ns_waitcnt lgkmcnt(0)\nv_mov_b32 v5, s4\nv_cndmask_b32 v{V_STAMP}, v{V_STAMP}, v5, vcc")
    stamp(e, 7)
    init = [f"v_accvgpr_write_b32 a{A_L + r}, 0" for r in range(16)] + [f"v_accvgpr_write_b32 a{A_Z + r}, 0" for r in range(4)]
    init += [f"v_accvgpr_write_b32 a{A_ONE + r}, v{V_ONE}" for r in range(4)] + zero_hi
    for _ in range(8): e(init.pop())
    gaps = {}; ne = 0
    kr = kreads(e, 2, "F0") + kreads(e, 3, "F0")
    pre = [PREP0] + PREP + [XRD]
    for k in range(64):
        g = gaps[k] = []
        if k % 2 == 0 and kr: g.append(kr.pop(0)); g.append(T(init.pop()))
        elif k >= 52 and k % 2 == 0: g.append(T(pre.pop(0)))
        elif init: g.append(T(init.pop())); g.append(T(init.pop()))
        else: g.append(T(exp2(ne))); ne += 1
    assert not init and not pre
    gaps[63].insert(0, lambda: e.wait_all())
    run(e, qk2("F0"), gaps)
    e("s_barrier")
    itstamp()
    mem = [f for p in zip(A, kreads(e, 0) + kreads(e, 1)) for f in p] + B[:4]
    while mem or ne < 64:
        if mem: mem.pop(0)()
        for _ in range(3):
            if ne < 64: e(exp2(ne)); ne += 1
    for t in MS: e(t)
    e(CV0)
    e.need(lg=[("FR", 0)])
    top = [("FR", 1)]*4
    assert e.lgkm == top, e.lgkm
    e("s_branch L_special")
    e(".p2align 6")
    e.label("L_body")
    def loop_body(first):
        e.lgkm = list(top)
        gaps = {k: [] for k in range(152)}
        rds = kreads(e, 2) + kreads(e, 3) + ([] if first else vreads(e, 0, 0) + vreads(e, 1, 1))
        for n, f in enumerate(rds): gaps[4*n].append(f)
        for n, f in enumerate(kreads(e, 0) + kreads(e, 1)): gaps[100 + 4*n].append(f)
        for n, f in enumerate(B[4:] + D): gaps[2 + 4*n].append(f)
        for n, f in enumerate(A + B[:4]): gaps[98 + 4*n].append(f)
        if not first:
            for n, f in enumerate(vreads(e, 2, 2) + vreads(e, 3, 3)): gaps[64 + 2*n].append(f)
            for c in range(1, 16):
                gaps[4*(c-1)].append(T(cvt2(c, 0)))
                gaps[1 + 2*((c - 1)//2)].append(T(cvt2(c, 1)))
        for k in range(64): gaps[17 + 2*k].append(T(exp2(k)))
        gaps[58].append(lambda: e.vmem(poll_b.ld, "KV"))
        gaps[62].append(T(PREP0))
        for n, t in enumerate(PREP + [XRD] + MS[:3]): gaps[80 + 2*n].append(T(t))
        for n, t in enumerate(MS[3:]): gaps[132 + 4*n].append(T(t))
        gaps[146].append(T(CV0)); gaps[150].append(T(f"s_cmp_eq_u32 s{S_N}, s{S_T2}"))
        gaps[95].insert(0, lambda: e.wait_all())
        gaps[95].append(lambda: (e("s_barrier"), itstamp(1)))
        o, s_ = pv2()
        if first:
            zo, zl = pv_mfmas(1, zero=True)
            o = [M("")]*32 + zo; s_ = zl + [M("")]*4
        run(e, qk2() + o + s_ + d_mfmas(), gaps, nxt=("FR", 0))
        assert e.lgkm == top, e.lgkm
        e("s_cbranch_scc0 L_body")
    loop_body(False)
    e.label("L_special")
    e(f"""s_cmp_lt_u32 s{S_N}, 3
    s_cselect_b32 s{S_T2}, 3, 17
    s_min_u32 s{S_T2}, s{S_T2}, s{S_TRANS}
    s_cmp_eq_u32 s{S_N}, 3
    s_cbranch_scc0 L_late""")
    e(poll_b.test())
    e("s_cbranch_scc0 L_spin_b")
    e.label("L_ok_b")
    e(f"s_mov_b32 s{S_DSRD+2}, {WS_END}\ns_mov_b32 s{S_DINC}, 4096")
    e.label("L_late")
    e(f"s_cmp_eq_u32 s{S_N}, s{S_D2}\ns_cbranch_scc1 L_first")
    e(f"s_cmp_eq_u32 s{S_N}, s{S_TRANS}\ns_cbranch_scc0 L_body")
    e(f"s_cmp_eq_u32 s{S_N}, 17\ns_cbranch_scc0 L_trans")
    LRD = [f"v_accvgpr_read_b32 v{LR[0]}, a{A_L}\nv_accvgpr_read_b32 v{LR[1]}, a{A_L+4}", f"v_accvgpr_read_b32 v{LR[2]}, a{A_L+8}\nv_accvgpr_read_b32 v{LR[3]}, a{A_L+12}"]
    def cold():
        e.label("L_trans")
        e.lgkm = list(top); e.vm = ["KV"]*13
        qr = [lambda j=j: e.ds(f"ds_read_b128 {ar(A_Q + j*4)}, v{V_QA} offset:{j*1024}", "QS") for j in range(16)]
        rcp = [f"v_rcp_f32 v{LR[qb]}, v{LR[qb]}" for qb in range(4)]
        drain_head(e, (0, 1, 2, 3))
        o, s_ = pv2()
        gaps = {k: [f] for k, f in enumerate(B[4:] + D + [lambda: e.vmem(poll_b.ld, "KV")])}
        for k, t in enumerate(LRD + check_lines(0, S_QT) + rcp): gaps[13 + k] = [T(t)]
        items = norm_items(e, range(8), S_CTXLO)
        XB = f"v_xor_b32 v{V_RD}, {32768 + 65536}, v{V_RD}"
        def fill(g, k, left):
            while items and items[0][1] <= left and 8 + 8*(items[0][2] + 1) - 1 + 5 <= k:
                f, c, _ = items.pop(0); g.append(f); left -= c
        gaps[24] = [T(XB)]
        for k in range(25, 72):
            gaps[k] = []; fill(gaps[k], k, 8)
        run(e, s_ + o, gaps)
        def post():
            e(PREP0)
            for t in PREP: e(t.replace(f"s{S_T0}", f"s{S_T5}"))
            e.need(vm=["KV"])
            e("s_barrier")
            itstamp()
            mem = A + B[:4]; lds = qr + kreads(e, 0) + kreads(e, 1)
            gaps = {k: [mem.pop(0)] if k % 4 == 0 else [lds.pop(0), lds.pop(0)] for k in range(16)}
            run(e, d_mfmas(), gaps)
            extra = []
            for f in mem: extra += [f, NOP]
            emit_items(items, extra) if items else [(f(), e("s_nop 0")) for f in mem]
            del items[:]
            for t in MS: e(t)
            e(f"s_mov_b32 s{S_TRANS}, 17")
            e.need(lg=[("FR", 0)])
            assert e.lgkm == top, e.lgkm
            e("s_branch L_special")
        post()
        e.label("L_first")
        e(f"s_cmp_eq_u32 s{S_N}, 17\ns_cbranch_scc1 L_fzero")
        loop_body(True)
        e("s_branch L_special")
        e.label("L_fzero")
        for r in list(range(V_O, V_O + 128)) + list(range(V_S[0], V_S[0] + 64)) + [Preg(0, 0), Preg(0, 0) + 1]: e(f"v_mov_b32 v{r}, 0")
        for r in range(16): e(f"v_accvgpr_write_b32 a{A_L + r}, 0")
        e("s_branch L_final")
        e.label("L_ret0")
        e.lgkm = []; e.vm = []
        for t in rcp: e(t)
        e(XB)
        emit_items(norm_items(e, range(8), S_CTXLO))
        post()
    e.cold = cold
    e.label("L_final")
    stamp(e, 8)
    tw, trd, tl, tlr = V_TMP[0:4]
    e(f"""s_lshl_b32 s{S_T0}, s{w}, 17
    s_lshl_b32 s{S_AC}, s{h}, 19
    s_add_u32 s{S_AC}, s{S_AC}, s{S_T0}
    s_add_u32 s{S_AC}, s{S_AC}, {WS_CTX}
    s_lshl_b32 s{S_WOo}, s{i}, 19
    s_add_u32 s{S_WOo}, s{S_WOo}, s{S_T0}
    s_add_u32 s{S_WOo}, s{S_WOo}, {WS_WOF}
    s_and_b32 s{S_T0}, s{w}, 1
    s_lshl_b32 s{S_T0}, s{S_T0}, 14
    s_lshr_b32 s{S_T1}, s{w}, 1
    s_lshl_b32 s{S_T1}, s{S_T1}, 16
    s_add_u32 s{S_T0}, s{S_T0}, s{S_T1}
    v_add_u32 v{tw}, s{S_T0}, v{V_L16}
    v_xor_b32 v{trd}, {65536 + 16384}, v{tw}
    s_add_u32 s{S_T0}, s{S_WL}, {144*1024}
    v_add_u32 v{tl}, s{S_T0}, v{V_L16}
    v_xor_b32 v{tlr}, 3072, v{tl}
    s_cmp_ge_u32 s{w}, 2
    s_cbranch_scc1 L_mergeB""")
    for role in range(2):
        keep = list(range(4)) if role == 0 else list(range(4, 8))
        send = list(range(4, 8)) if role == 0 else list(range(4))
        if role == 1: e.label("L_mergeB")
        e.lgkm = list(top); e.vm = ["KV"]*13
        order = (2, 3, 0, 1) if role == 0 else (0, 1, 2, 3)
        drain_head(e, order)
        o, s_ = pv2(order)
        gaps = {2*k: [lambda k=k: wo_load(e, k // 4, k % 4)] for k in range(8)}
        for k in range(8): gaps[45 + 3*k] = [lambda k=k: wo_load(e, 2 + k // 4, k % 4)]
        gaps[17] = [T(LRD[0])]; gaps[18] = [T(LRD[1])]
        gaps[19] = [lambda: e.ds(f"ds_write_b128 v{tl}, {vr(LR[0])}")]
        for n in range(16): gaps[23 + 3*n] = [lambda n=n: e.ds(f"ds_write_b128 v{tw}, {vr(V_O + send[0]*16 + n*4)} offset:{n*1024}")]
        if OPT.get("fst"): stamp(e, 14)
        run(e, s_ + o, gaps)
        if OPT.get("fst"): stamp(e, 15)
        e.wait_all(vm=False)
        e("s_barrier")
        if OPT.get("fst"): stamp(e, 16)
        e.ds(f"ds_read_b128 {vr(V_TMP[4])}, v{tlr}", "ML")
        for n in range(16):
            e.ds(f"ds_read_b128 {vr(V_S[0] + n*4)}, v{trd} offset:{n*1024}", ("MO", n // 4))
            if n % 2: wo_load(e, 4 + n // 8, (n // 2) % 4)
        e.need(lg=["ML"])
        for qb in range(4): e(f"v_add_f32 v{LR[qb]}, v{LR[qb]}, v{V_TMP[4] + qb}")
        for t in check_lines(1 + role, S_QTHI): e(t)
        for n in range(16):
            e.need(lg=[("MO", n // 4)])
            for r in range(4):
                o = V_O + keep[0]*16 + n*4 + r
                e(f"v_add_f32 v{o}, v{o}, v{V_S[0] + n*4 + r}")
        e.label(f"L_ret{1 + role}")
        for q in range(4): wo_load(e, 6, q)
        if OPT.get("fst"): stamp(e, 17)
        for qb in range(4): e(f"v_rcp_f32 v{LR[qb]}, v{LR[qb]}")
        e(f"v_add_u32 v{tw}, 32768, v{tw}")
        emit_items(norm_items(e, keep, S_CTXHI))
        if role == 0: e("s_branch L_attdone")
    e.label("L_attdone")
    stamp(e, 9)

def slow_path(e):
    M = V_P[1]; AL = V_P[1] + 4; T = V_P[1] + 8; QI = V_P[1] + 12; NI = V_P[1] + 13
    u, nu, ko, vo = S_T0, S_T1, S_T3, S_T5
    e.label("L_slow")
    e.lgkm = []; e.vm = []
    e("s_waitcnt vmcnt(0) lgkmcnt(0)")
    e(f"""s_lshl_b32 s{nu}, s{S_CNT}, 1
    s_add_u32 s{nu}, s{nu}, 2
    s_lshl_b32 s{ko}, s{S_HEAD}, 19
    s_add_u32 s{vo}, s{ko}, {WS_V}
    s_add_u32 s{ko}, s{ko}, {WS_K}
    s_lshl_b32 s{S_CNT}, s{S_CNT}, 6
    v_lshrrev_b32 v{T}, 4, v{V_LANE}
    v_lshlrev_b32 v{T}, 2, v{T}
    v_and_b32 v{QI}, 15, v{V_LANE}
    v_sub_u32 v{QI}, v{QI}, v{T}
    v_add_u32 v{QI}, s{S_CNT}, v{QI}
    v_mov_b32 v{NI}, {NEGINF:#x}
    s_mov_b32 s{u}, 0""")
    for r in range(128): e(f"v_mov_b32 v{V_O + r}, 0")
    for qb in range(4): e(f"v_mov_b32 v{M+qb}, v{NI}\nv_mov_b32 v{LR[qb]}, 0")
    e.label("L_slowl")
    def ld8(so):
        for j in range(8):
            if j == 4: e(f"s_add_u32 s{so}, s{so}, 4096")
            e.vmem(f"buffer_load_dwordx4 {ar(A_FB[1] + j*4)}, v{V_L16}, {srd(S_WS)}, s{so} offen offset:{(j%4)*1024}{SC}", "SL")
        e(f"s_add_u32 s{so}, s{so}, 4096")
    ld8(ko)
    e.wait_all()
    for kb2 in range(2):
        for dg in range(4):
            for qb in range(4):
                d = vr(Sreg(0, kb2, qb))
                e(mf(d, ar(A_FB[1] + (kb2*4+dg)*4), ar(A_Q + (qb*4+dg)*4), d if dg else "0"))
    e("s_nop 7")
    ld8(vo)
    for kb2 in range(2):
        for qb in range(4):
            for r in range(4):
                s = Sreg(0, kb2, qb) + r
                e(f"v_cmp_gt_i32 vcc, {16*kb2 + r - 16*qb}, v{QI}\ns_nop 1\nv_cndmask_b32 v{s}, v{s}, v{NI}, vcc")
    e(f"v_subrev_u32 v{QI}, 32, v{QI}")
    for qb in range(4):
        a, b = Sreg(0, 0, qb), Sreg(0, 1, qb)
        e(f"""v_max3_f32 v{T}, v{a}, v{a+1}, v{a+2}
        v_max3_f32 v{T}, v{T}, v{a+3}, v{b}
        v_max3_f32 v{T}, v{T}, v{b+1}, v{b+2}
        v_max3_f32 v{T}, v{T}, v{b+3}, v{M+qb}
        v_mov_b32 v{T+1}, v{T}
        s_nop 1
        v_permlane32_swap_b32 v{T}, v{T+1}
        v_max_f32 v{T}, v{T}, v{T+1}
        v_mov_b32 v{T+1}, v{T}
        s_nop 1
        v_permlane16_swap_b32 v{T}, v{T+1}
        v_max_f32 v{T}, v{T}, v{T+1}
        v_sub_f32 v{AL+qb}, v{M+qb}, v{T}
        v_mov_b32 v{M+qb}, v{T}
        v_exp_f32 v{AL+qb}, v{AL+qb}""")
        for s in list(range(a, a+4)) + list(range(b, b+4)):
            e(f"v_sub_f32 v{s}, v{s}, v{T}")
        for s in list(range(a, a+4)) + list(range(b, b+4)):
            e(f"v_exp_f32 v{s}, v{s}")
        e(f"v_mul_f32 v{LR[qb]}, v{LR[qb]}, v{AL+qb}")
        for s in list(range(a, a+4)) + list(range(b, b+4)):
            e(f"v_add_f32 v{LR[qb]}, v{LR[qb]}, v{s}")
        p = Preg(0, qb)
        e(f"v_cvt_pk_bf16_f32 v{p}, v{a}, v{a+1}\nv_cvt_pk_bf16_f32 v{p+1}, v{a+2}, v{a+3}\nv_cvt_pk_bf16_f32 v{p+2}, v{b}, v{b+1}\nv_cvt_pk_bf16_f32 v{p+3}, v{b+2}, v{b+3}")
        for db in range(8):
            for r in range(4): e(f"v_mul_f32 v{Oreg(db, qb)+r}, v{Oreg(db, qb)+r}, v{AL+qb}")
    e.wait_all()
    e("s_nop 1")
    for db in range(8):
        for qb in range(4):
            d = vr(Oreg(db, qb))
            e(mf(d, ar(A_FB[1] + db*4), vr(Preg(0, qb)), d))
    e(f"s_add_u32 s{u}, s{u}, 1\ns_cmp_lt_u32 s{u}, s{nu}\ns_nop 7\ns_cbranch_scc1 L_slowl")
    for qb in range(4):
        e(f"""v_mov_b32 v{T}, v{LR[qb]}
        s_nop 1
        v_permlane32_swap_b32 v{LR[qb]}, v{T}
        v_add_f32 v{LR[qb]}, v{LR[qb]}, v{T}
        v_mov_b32 v{T}, v{LR[qb]}
        s_nop 1
        v_permlane16_swap_b32 v{LR[qb]}, v{T}
        v_add_f32 v{LR[qb]}, v{LR[qb]}, v{T}""")
    e(f"s_cmp_eq_u32 s{S_RET}, 0\ns_cbranch_scc1 L_ret0\ns_cmp_eq_u32 s{S_RET}, 1\ns_cbranch_scc1 L_ret1\ns_branch L_ret2")


def phase_d(e, poll_c):
    qt, mt, w = S_HEAD, S_BLK, S_WAVE
    V_XO, V_X, V_G = 4, 8, 17
    V_CR, NCR = 64, 4
    V_AS, V_AD = 128, 192
    t0, t1 = 24, 25
    S_XO = S_XNB
    for j in range(16):
        e.ds(f"ds_write_b128 v{V_TMP[0]}, {ar(A_DACC + j*4)} offset:{((j%4)*4 + j//4)*1024}", "DW")
        if j < OPT.get("wpre", 12): wo_load(e, 7 + j // 4, j % 4)
    e(f"""v_and_b32 v{t0}, 15, v{V_LANE}
    v_lshlrev_b32 v{t0}, 10, v{t0}
    v_lshrrev_b32 v{t1}, 4, v{V_LANE}
    v_lshl_add_u32 v{V_XO}, v{t1}, 3, v{t0}
    s_lshl_b32 s{S_XO}, s{qt}, 16
    s_lshl_b32 s{S_T0}, s{w}, 14
    s_add_u32 s{S_XO}, s{S_XO}, s{S_T0}
    s_lshl_b32 s{S_T1}, s{mt}, 7
    s_add_u32 s{S_XO}, s{S_XO}, s{S_T1}
    v_subrev_u32 v{t1}, 32768, v{V_TMP[0]}
    s_lshl_b32 s{S_T0}, s{w}, 12
    v_add_u32 v{t0}, s{S_T0}, v{V_L16}
    v_add_u32 v{V_G}, 65536, v{t0}""")
    if OPT.get("pollw", 1):
        v = poll_c.voff
        e(f"""s_lshr_b32 s{S_T0}, s{qt}, 1
        s_sub_u32 s{S_T1}, 15, s{S_T0}
        s_min_u32 s{S_T0}, s{S_T0}, s{S_T1}
        s_lshl_b32 s{S_T0}, s{S_T0}, 9
        s_lshl_b32 s{S_T1}, s{w}, 3
        s_add_u32 s{S_T0}, s{S_T0}, s{S_T1}
        s_add_u32 s{S_T0}, s{S_T0}, {WS_FC}
        v_and_b32 v{v}, 3, v{V_LANE}
        v_lshlrev_b32 v{v}, 7, v{v}
        v_and_or_b32 v{v}, v{V_LANE}, 4, v{v}
        v_add_u32 v{v}, s{S_T0}, v{v}""")
    else: poll32_addr(e, poll_c.voff, WS_FC)
    if OPT.get("fst"): stamp(e, 18)
    e.need(vm=["CST"]); e.wait_all(vm=False)
    if OPT.get("fst"): stamp(e, 19)
    e("s_barrier")
    if OPT.get("fst"): stamp(e, 20)
    signal(e, sig_lin(WS_FC), 26)
    for sw in range(4):
        for mb in range(4): e.ds(f"ds_read_b128 {vr(V_AD + (sw*4+mb)*4)}, v{V_G if sw >= 2 else t0} offset:{32768 + (sw % 2)*16384 + mb*1024}", ("R", sw))
    for mb in range(4):
        e.vmem(f"buffer_load_dwordx2 v[{V_X+2*mb}:{V_X+2*mb+1}], v{V_XO}, {srd(S_X)}, s{S_XO} offen offset:{mb*32}", "X")
    wl = [lambda n=n, q=q: wo_load(e, n, q) for n in range(7, NWS) for q in range(4)][OPT.get("wpre", 12):]
    cnt = [0]
    def V(t):
        e(t); cnt[0] += 1
        if cnt[0] % 6 == 0 and wl: wl.pop(0)()
    def rnd(base, pk):
        for j in range(8): V(f"v_cvt_pk_bf16_f32 v{pk+j}, v{base+2*j}, v{base+2*j+1}")
        for j in range(8): V(f"v_lshlrev_b32 v{base+2*j}, 16, v{pk+j}"); V(f"v_and_b32 v{base+2*j+1}, 0xffff0000, v{pk+j}")
    def red(base, tag):
        e.need(lg=[(tag, 1)])
        for r in range(16): V(f"v_add_f32 v{base+r}, v{base+r}, v{base+16+r}")
        e.need(lg=[(tag, 3)])
        for r in range(16): V(f"v_add_f32 v{base+32+r}, v{base+32+r}, v{base+48+r}")
        for r in range(16): V(f"v_add_f32 v{base+r}, v{base+r}, v{base+32+r}")
    T = V_AD + 16; PK = V_AD + 32
    red(V_AD, "R"); rnd(V_AD, PK)
    for r in range(16): V(f"v_mul_f32 v{T+r}, 0xbfb8aa3b, v{V_AD+r}")
    for r in range(16): V(f"v_exp_f32 v{T+r}, v{T+r}")
    for r in range(16): V(f"v_add_f32 v{T+r}, 1.0, v{T+r}")
    for r in range(16): V(f"v_rcp_f32 v{T+r}, v{T+r}")
    for r in range(16): V(f"v_mul_f32 v{V_AD+r}, v{V_AD+r}, v{T+r}")
    rnd(V_AD, PK)
    while len(wl) > 8: wl.pop(0)()
    poll_c.issue()
    while wl: wl.pop(0)()
    stamp(e, 10); poll_c.check(); stamp(e, 11)
    def c_load(n, q):
        e.vmem(f"buffer_load_dwordx4 {vr(V_CR + (n % NCR)*16 + q*4)}, v{V_L16}, {srd(S_WS)}, s{S_AC} offen offset:{q*1024}{SC}", ("C", n))
        if q == 3: e(f"s_add_u32 s{S_AC}, s{S_AC}, 4096")
    if OPT.get("dchain", 0):
        for n in range(2):
            for q in range(4): c_load(n, q)
        for n in range(0, 32, 2):
            ld = []
            for t in range(2):
                if n + 2 + t < 32: ld += [lambda q=q, t=t: c_load(n + 2 + t, q) for q in range(4)]
            for t in range(2):
                if n >= 2 and n + NWS - 2 + t < 32: ld += [lambda q=q, t=t: wo_load(e, n + NWS - 2 + t, q) for q in range(4)]
            for _ in range(min(4, len(ld))): ld.pop(0)()
            e.need(vm=[("C", n), ("C", n + 1), ("WO", n), ("WO", n + 1)])
            for k in range(32):
                c = k // 2; mb = c // 4; qb = c % 4 if mb % 2 == 0 else 3 - c % 4
                t = k % 2 if c % 2 == 0 else 1 - k % 2
                d = vr(V_AS + (mb*4 + qb)*4)
                e(mf(d, wreg(n + t, mb), vr(V_CR + ((n + t) % NCR)*16 + qb*4), d if (n or k % 2) else "0"))
                if k % 2 == 0 and ld: ld.pop(0)()
    else:
        for n in range(NCR - 1):
            for q in range(4): c_load(n, q)
        for n in range(32):
            ld = []
            if n + NCR - 1 < 32: ld += [lambda q=q: c_load(n + NCR - 1, q) for q in range(4)]
            if n >= 1 and n + NWS - 1 < 32: ld += [lambda q=q: wo_load(e, n + NWS - 1, q) for q in range(4)]
            e.need(vm=[("C", n), ("WO", n)])
            for k in range(16):
                mb, qb = k // 4, k % 4
                d = vr(V_AS + k*4)
                e(mf(d, wreg(n, mb), vr(V_CR + (n % NCR)*16 + qb*4), d if n else "0"))
                if k % 2 == 0 and ld: ld.pop(0)()
    stamp(e, 12)
    e("s_nop 7")
    for j in range(16): e.ds(f"ds_write_b128 v{t1}, {vr(V_AS + j*4)} offset:{((j%4)*4 + j//4)*1024}", "SW")
    e.need(vm=["X"])
    for j in range(8): e(f"v_lshlrev_b32 v{T+2*j}, 16, v{V_X+j}"); e(f"v_and_b32 v{T+2*j+1}, 0xffff0000, v{V_X+j}")
    e.wait_all(vm=False)
    e("s_barrier")
    for sw in range(4):
        for mb in range(4): e.ds(f"ds_read_b128 {vr(V_AS + (sw*4+mb)*4)}, v{V_G if sw >= 2 else t0} offset:{(sw % 2)*16384 + mb*1024}", ("RS", sw))
    red(V_AS, "RS"); rnd(V_AS, PK)
    for r in range(16): e(f"v_mul_f32 v{V_AS+r}, v{V_AS+r}, v{V_AD+r}")
    rnd(V_AS, PK)
    for r in range(16): e(f"v_add_f32 v{V_AS+r}, v{V_AS+r}, v{T+r}")
    for j in range(8): e(f"v_cvt_pk_bf16_f32 v{PK+j}, v{V_AS+2*j}, v{V_AS+2*j+1}")
    for mb in range(4):
        e.vmem(f"buffer_store_dwordx2 v[{PK+2*mb}:{PK+2*mb+1}], v{V_XO}, {srd(S_OUT)}, s{S_XO} offen offset:{mb*32}{OPT.get('outsc', '')}", "OUT")
    e("s_cmp_lg_u32 s2, 0")
    e("s_cbranch_scc1 L_nobump")
    signal(e, f"s_mov_b32 s{S_CNT}, {WS_EP}", 26)
    e.label("L_nobump")
    stamp(e, 13)

HEADER = open("cdna_kernels/" + NAME + ".s.ref").read().split("; Override launch geometry")[0]
def build():
    e = E(); body(e)
    n = 0
    def policy(roleB, trans, slow, spin):
        def d(lb, site, c):
            if lb == "L_body": return (c == 0) if site < 2 else True
            if lb == "L_first": return trans and c == 2
            if lb == "L_fzero": return trans == 2
            if lb == "L_late": return c != 1
            if lb == "L_trans": return trans and c == 0
            if lb == "L_mergeB": return roleB
            if lb == "L_slow": return slow
            if lb == "L_slowl": return c % 2 == 0
            if lb == "L_ret0": return trans and c == 0
            if lb == "L_ret1": return not roleB
            if lb.startswith("L_spin_"): return spin and c == 0
            if lb.startswith("L_ok_"): return c >= 1
            if lb.startswith("L_spinl_"): return True
            return False
        return d
    for cfg in ((0, 0, 0, 0), (1, 1, 0, 0), (0, 0, 1, 1), (1, 1, 1, 1), (1, 2, 0, 0)):
        tr = chk.trace(e.L, policy(*cfg))
        assert "s_endpgm" in tr[-1], cfg
        n += chk.check(tr, f"path{cfg}")
    if n: print(f"{n} hazards", file=sys.stderr)
    return "\n".join([HEADER.rstrip("\n"), "; @launch grid=(256,1,1) block=(256,1,1) lds=163840",
        '.amdgcn_target "amdgcn-amd-amdhsa--gfx950"\n.text', e.text(), '.section .rodata,"a"\n.p2align 6',
        f""".amdhsa_kernel {KN}
  .amdhsa_next_free_vgpr 512
  .amdhsa_next_free_sgpr 102
  .amdhsa_accum_offset 256
  .amdhsa_group_segment_fixed_size 0
  .amdhsa_kernarg_size 104
  .amdhsa_user_sgpr_count 2
  .amdhsa_user_sgpr_kernarg_segment_ptr 1
  .amdhsa_system_sgpr_workgroup_id_x 1
.end_amdhsa_kernel
"""])
if __name__ == "__main__":
    open(sys.argv[1], "w").write(build())
```

```python
import re

class Filler:
    __slots__ = ("fn", "cost", "kind", "earliest", "deadline", "rw")
    def __init__(self, fn, cost=4, kind="valu", earliest=0, deadline=10**9, rw=None):
        self.rw = rw
        self.fn = fn; self.cost = cost; self.kind = kind
        self.earliest = earliest; self.deadline = deadline

class E:
    def __init__(self):
        self.L = []
        self.lgkm = []
        self.vm = []
    def __call__(self, s):
        for ln in s.strip("\n").split("\n"):
            ln = ln.strip()
            if ln: self.L.append(ln if ln.endswith(":") or ln.startswith(".") or ln.startswith(";") else "    " + ln)
    def c(self, s): self.L.append("    ; " + s)
    def label(self, s): self.L.append(s + ":")
    def ds(self, s, tag=None):
        self(s); self.lgkm.append(tag)
    def vmem(self, s, tag=None):
        self(s); self.vm.append(tag)
    @staticmethod
    def _cnt(q, tags):
        last = -1
        for i, t in enumerate(q):
            if t in tags: last = i
        return None if last < 0 else len(q) - 1 - last
    def need(self, lg=(), vm=()):
        parts = []
        n = self._cnt(self.vm, set(vm)) if vm else None
        if n is not None:
            n = min(n, 63)
            parts.append(f"vmcnt({n})"); self.vm = self.vm[len(self.vm) - n:] if n else []
        n = self._cnt(self.lgkm, set(lg)) if lg else None
        if n is not None:
            n = min(n, 15)
            parts.append(f"lgkmcnt({n})"); self.lgkm = self.lgkm[len(self.lgkm) - n:] if n else []
        if parts: self("s_waitcnt " + " ".join(parts))
        return bool(parts)
    def wait_all(self, lg=True, vm=True):
        p = []
        if vm: p.append("vmcnt(0)"); self.vm = []
        if lg: p.append("lgkmcnt(0)"); self.lgkm = []
        self("s_waitcnt " + " ".join(p))
    def text(self): return "\n".join(self.L) + "\n"

    def schedule(self, mfmas, streams, budget=8, flush=True):
        pos = [0] * len(streams)
        def head(k):
            return streams[k][pos[k]] if pos[k] < len(streams[k]) else None
        def dl(k):
            return min((f.deadline for f in streams[k][pos[k]:]), default=10**9)
        debt = 0
        for i, m in enumerate(mfmas):
            for k in range(len(streams)):
                while dl(k) <= i:
                    f = head(k)
                    assert f.earliest <= i, (f.earliest, i, k)
                    f.fn(); pos[k] += 1
            m()
            left = budget
            salu_free = 1
            if i + 1 < len(mfmas) and hasattr(mfmas[i+1], "pre") and not any(dl(k) <= i + 1 for k in range(len(streams))):
                if mfmas[i+1].pre(): salu_free = 0
            for kinds in (("mem", "salu"), ("valu", "salu")):
                progress = True
                while progress:
                    progress = False
                    for k in range(len(streams)):
                        f = head(k)
                        if f is None or f.earliest > i or f.kind not in kinds: continue
                        cost = f.cost
                        if f.kind == "salu" and salu_free and left == budget: cost = 0
                        if cost > left: continue
                        if f.kind == "salu" and cost == 0: salu_free = 0
                        f.fn(); pos[k] += 1; left -= cost; progress = True
                        break
            for k in range(len(streams)):
                j = pos[k]; R = set(); W = set()
                while left >= 4 and j < min(len(streams[k]), pos[k] + 40):
                    f = streams[k][j]
                    if f.rw is None: break
                    r, w = f.rw
                    if j > pos[k] and f.kind == "valu" and f.cost <= left and f.earliest <= i and not (r & W) and not (w & (R | W)):
                        f.fn(); left -= f.cost; del streams[k][j]; continue
                    R |= r; W |= w; j += 1
        rest = [streams[k][pos[k]:] for k in range(len(streams))]
        if flush:
            for r in rest:
                for f in r: f.fn()
            return None
        return rest
```

```python
import sys, math, os, struct
from emit import E, Filler
import check as chk

NAME = "recurrent_scan__compressed_kv_cla__glu_gated_geglu__prompt"
KN = NAME + "_kernel"
MB = 1 << 20
OPT = eval(os.environ.get("OPT", "{}"))
STAMPS = os.environ.get("STAMPS")
POLLALL = OPT.get("pollall", 0)
WS_XN, WS_H, WS_WDF, WS_WOF, WS_CTX, WS_K, WS_V, WS_END = 0, 2*MB, 9*MB, 12*MB, 16*MB, 32*MB, 48*MB, 64*MB
fb = lambda x: struct.unpack("<I", struct.pack("<f", x))[0]

S_X, S_CKV, S_WQ, S_WUK, S_WUV, S_WO, S_WG, S_WU, S_WD, S_OUT, S_DBG, S_WS = [8 + 4*i for i in range(12)]
S_HSRD, S_ASRD, S_BSRD = 56, 60, 64
S_WAVE, S_HEAD, S_BLK, S_ROT = 68, 69, 70, 71
S_T0, S_T1, S_T2, S_T3, S_T4, S_T5 = 72, 73, 74, 75, 76, 77
S_WL, S_WA = 78, 79
S_OFF0, S_OFFA, S_AROW, S_KVST, S_XNB, S_HST = 80, 81, 82, 83, 84, 85
S_CTXLO, S_CTXHI = 86, 87
S_SRCA, S_SRCB, S_LA, S_LB, S_VMAXB, S_VCLB = 88, 89, 90, 91, 92, 93
S_N, S_EVT, S_TRANS, S_N0 = 94, 95, 96, 97
S_QT, S_QTHI, S_RET, S_CNT = 98, 99, 100, 101
S_ROTB, S_DW, S_DH, S_DINC = 48, 49, 50, 51
S_GJ = 7
S_GSRD = S_CKV
S_DSRD = S_HSRD
S_FL = 6
def srd(n): return f"s[{n}:{n+3}]"
def mf(d, a, b, c): return f"v_mfma_f32_16x16x32_bf16 {d}, {a}, {b}, {c}"
def vr(n, k=4): return f"v[{n}:{n+k-1}]"
def ar(n, k=4): return f"a[{n}:{n+k-1}]"

V_LANE, V_STAMP, V_L16 = 1, 2, 3
V_TR = (4, 5, 6, 7)
V_WOFF = (8, 9, 10, 11)
V_AOFF = (12, 13)
V_WOFG = (12, 13)
V_ARD = (14, 15)
V_TMP = list(range(16, 32))
V_POLL = 0
V_WF, V_PK, V_ACC = 32, 64, 128
def acc(db, rb): return V_ACC + (db*4 + rb)*4
def actf(ks, rb): return (ks*4 + rb)*4
V_RD = 4
V_TD, V_TN, V_LIM = 16, 20, 24
V_P, V_S, V_O = (32, 48), (64, 96), 128
A_Q, A_FB, A_DACC, A_L, A_ONE, A_DOP = 0, (64, 96), 128, 192, 208, 224
QSCALE = fb(math.log2(math.e) / math.sqrt(128.0))
NEGINF = 0xff800000
def Sreg(buf, kb2, qb): return V_S[buf] + (kb2*4 + qb)*4
def Preg(buf, qb): return V_P[buf] + qb*4
def Oreg(db, qb): return V_O + (db*4 + qb)*4
SC = " sc1"

def stamp(e, idx):
    if not STAMPS: return
    if OPT.get("padph") and idx not in OPT["padph"]: return
    if OPT.get("padat"):
        if idx == OPT["padat"][0]:
            e(f"s_nop 1\nv_readlane_b32 s5, v{V_STAMP}, 0\ns_add_u32 s{S_CNT}, s5, {OPT['padat'][1]*100}")
            e.label("L_padat")
            e(f"s_memrealtime s[4:5]\ns_waitcnt lgkmcnt(0)\ns_sub_u32 s5, s4, s{S_CNT}\ns_cmp_lt_i32 s5, 0\ns_cbranch_scc1 L_padat")
            e.lgkm = []
        return
    e(("s_memtime" if STAMPS == "2" else "s_memrealtime") + " s[4:5]")
    e.wait_all(vm=False)
    e(f"v_writelane_b32 v{V_STAMP}, s4, {idx}")
def stamp_flush(e):
    if not STAMPS: return
    if OPT.get("dbgst"):
        e(f"""s_load_dwordx2 s[8:9], s[0:1], 88
        s_mov_b32 s10, 256
        s_mov_b32 s11, 0x20000
        v_readlane_b32 s4, v{V_STAMP}, 0
        s_not_b32 s4, s4
        s_nop 3
        v_writelane_b32 v{V_STAMP}, s4, 14
        v_lshlrev_b32 v0, 2, v{V_LANE}
        v_cmp_gt_u32 vcc, 15, v{V_LANE}
        s_and_saveexec_b64 s[6:7], vcc
        s_waitcnt lgkmcnt(0)
        buffer_atomic_umax v{V_STAMP}, v0, s[8:11], 0 offen
        s_waitcnt vmcnt(0)""")
        return
    e(f"""s_lshl_b32 s4, s2, 2
    s_add_u32 s4, s4, s{S_WAVE}
    s_lshl_b32 s4, s4, 7
    s_add_u32 s4, s4, {64*MB}
    v_lshlrev_b32 v0, 2, v{V_LANE}
    v_cmp_gt_u32 vcc, 32, v{V_LANE}
    s_and_saveexec_b64 s[6:7], vcc
    buffer_store_dword v{V_STAMP}, v0, {srd(S_WS)}, s4 offen
    s_waitcnt vmcnt(0)""")

WS_EP = 11*MB
WS_FX, WS_FK, WS_FB, WS_FC = WS_EP + 4096, WS_EP + 8192, WS_EP + 12288, WS_EP + 16384
S_TAG = 3
def signal(e, soff_lines, tmp):
    e(soff_lines)
    e(f"""v_mov_b32 v{tmp}, s{S_TAG}
    v_add_u32 v{tmp+1}, s{S_WL}, v{V_LANE}
    v_min_u32 v{tmp+1}, 1, v{tmp+1}
    v_lshlrev_b32 v{tmp+1}, 30, v{tmp+1}""")
    e.vmem(f"buffer_store_dword v{tmp}, v{tmp+1}, {srd(S_WS)}, s{S_CNT} offen sc1", "SIG")
def sig_lin(base):
    return f"""s_lshr_b32 s{S_CNT}, s2, 3
    s_lshl_b32 s{S_CNT}, s{S_CNT}, 7
    s_and_b32 s{S_FL}, s2, 7
    s_lshl_b32 s{S_FL}, s{S_FL}, 2
    s_add_u32 s{S_CNT}, s{S_CNT}, s{S_FL}
    s_add_u32 s{S_CNT}, s{S_CNT}, {base}"""
SIG_KV = f"""s_and_b32 s{S_CNT}, s2, 31
    s_lshl_b32 s{S_CNT}, s{S_CNT}, 7
    s_lshl_b32 s{S_FL}, s{S_BLK}, 2
    s_add_u32 s{S_CNT}, s{S_CNT}, s{S_FL}
    s_add_u32 s{S_CNT}, s{S_CNT}, {WS_FK}"""
class Poll:
    def __init__(self, e, name, voff):
        self.e, self.name, self.voff = e, name, voff
    @property
    def ld(self):
        if self.name == "b" and POLLALL: return f"buffer_load_dwordx4 a[216:219], v{self.voff}, {srd(S_WS)}, 0 offen sc1"
        return f"buffer_load_dword v{V_POLL}, v{self.voff}, {srd(S_WS)}, 0 offen sc1"
    def issue(self): self.e.vmem(self.ld, ("POLL", self.name))
    def test(self):
        if self.name == "b" and POLLALL:
            return f"""v_accvgpr_read_b32 v5, a216
            v_accvgpr_read_b32 v6, a217
            v_accvgpr_read_b32 v7, a218
            v_accvgpr_read_b32 v{V_POLL}, a219
            v_xor_b32 v5, v5, v{V_POLL}
            v_xor_b32 v6, v6, v{V_POLL}
            v_xor_b32 v7, v7, v{V_POLL}
            v_or3_b32 v5, v5, v6, v7
            v_xor_b32 v{V_POLL}, s{S_TAG}, v{V_POLL}
            v_or_b32 v5, v5, v{V_POLL}
            v_cmp_eq_u32 vcc, 0, v5
            s_cmp_eq_u64 vcc, exec"""
        return f"v_cmp_eq_u32 vcc, s{S_TAG}, v{V_POLL}\ns_cmp_eq_u64 vcc, exec"
    def check(self):
        e = self.e
        e.need(vm=[("POLL", self.name)])
        e(self.test())
        e(f"s_cbranch_scc0 L_spin_{self.name}")
        e.label(f"L_ok_{self.name}")
    def spin(self):
        e = self.e
        e.label(f"L_spin_{self.name}")
        e(f"s_mov_b32 s{S_CNT}, 0x40000")
        e.label(f"L_spinl_{self.name}")
        e("s_sleep 2")
        e(self.ld)
        e("s_waitcnt vmcnt(0)")
        e(self.test())
        e(f"s_cbranch_scc1 L_ok_{self.name}")
        e(f"s_sub_u32 s{S_CNT}, s{S_CNT}, 1")
        e(f"s_cmp_lg_u32 s{S_CNT}, 0")
        e(f"s_cbranch_scc1 L_spinl_{self.name}")
        e(f"s_branch L_ok_{self.name}")
def poll32_addr(e, v, base):
    e(f"""s_lshr_b32 s{S_T0}, s{S_HEAD}, 1
    s_sub_u32 s{S_T1}, 15, s{S_T0}
    s_min_u32 s{S_T0}, s{S_T0}, s{S_T1}
    s_lshl_b32 s{S_T0}, s{S_T0}, 9
    s_add_u32 s{S_T0}, s{S_T0}, {base}
    v_bfe_u32 v{v}, v{V_LANE}, 3, 2
    v_lshlrev_b32 v{v}, 5, v{v}
    v_and_or_b32 v{v}, v{V_LANE}, 7, v{v}
    v_lshlrev_b32 v{v}, 2, v{v}
    v_add_u32 v{v}, s{S_T0}, v{v}""")

def kernel_head(e):
    e(f".globl {KN}\n.p2align 8\n.type {KN},@function")
    e.label(KN)
    e("s_cmp_ge_u32 s2, 256")
    e("s_cbranch_scc1 L_end")
    sizes = {S_X: (0, 2*MB), S_CKV: (8, 2*MB), S_WUK: (24, 4*MB), S_WS: (96, 65*MB if STAMPS else WS_END), S_WQ: (16, 4*MB), S_WUV: (32, 4*MB), S_WO: (40, 4*MB),
             S_WG: (56, 512*3584), S_WU: (64, 512*3584), S_WD: (72, 1792*1024), S_OUT: (80, 2*MB)}
    first = (S_X, S_CKV, S_WUK, S_WS)
    if OPT.get("st0") == 1: e("s_memrealtime s[6:7]\ns_waitcnt lgkmcnt(0)")
    for sr in first: e(f"s_load_dwordx2 s[{sr}:{sr+1}], s[0:1], {sizes[sr][0]}")
    if OPT.get("st0") == 2: e("s_waitcnt lgkmcnt(0)\ns_memrealtime s[6:7]")
    if STAMPS and not OPT.get("st0"): e(("s_memtime" if STAMPS == "2" else "s_memrealtime") + " s[6:7]")
    e(f"v_and_b32 v{V_LANE}, 63, v0")
    e("v_lshrrev_b32 v2, 6, v0")
    e(f"v_lshlrev_b32 v{V_L16}, 4, v{V_LANE}")
    e(f"v_readfirstlane_b32 s{S_WAVE}, v2")
    if OPT.get("pfcode", 1):
        e(f"""s_getpc_b64 s[4:5]
        s_lshr_b32 s{S_T0}, s2, 3
        s_lshl_b32 s{S_T0}, s{S_T0}, 11
        v_lshlrev_b32 v{V_TMP[0]}, 3, v2
        v_and_or_b32 v{V_TMP[0]}, v0, 7, v{V_TMP[0]}
        v_lshlrev_b32 v{V_TMP[0]}, 6, v{V_TMP[0]}
        v_add_u32 v{V_TMP[0]}, s{S_T0}, v{V_TMP[0]}
        v_min_u32 v{V_TMP[0]}, L_end-L_pcref, v{V_TMP[0]}""")
        e.label("L_pcref")
        e.vmem(f"global_load_dword v{V_TMP[12]}, v{V_TMP[0]}, s[4:5]", "PF")
    e(f"""s_and_b32 s{S_T0}, s2, 7
    s_lshl_b32 s{S_T0}, s{S_T0}, 2
    s_lshr_b32 s{S_T1}, s2, 3
    s_and_b32 s{S_T1}, s{S_T1}, 3
    s_add_u32 s{S_HEAD}, s{S_T0}, s{S_T1}
    s_lshr_b32 s{S_BLK}, s2, 5
    s_mul_i32 s{S_T0}, s{S_T1}, {OPT.get('rota', 0)}
    s_add_u32 s{S_ROT}, s{S_BLK}, s{S_T0}
    s_mul_i32 s{S_T0}, s2, {OPT.get('rotx', 1)}
    s_add_u32 s{S_ROT}, s{S_ROT}, s{S_T0}
    s_and_b32 s{S_ROT}, s{S_ROT}, 7
    s_and_b32 s{S_ROTB}, s{S_BLK}, 3
    s_lshl_b32 s{S_WL}, s{S_WAVE}, 10
    s_lshl_b32 s{S_WA}, s{S_WAVE}, 13
    s_add_u32 s{S_WA}, s{S_WA}, 65536""")
    if STAMPS: e("v_mov_b32 v2, -1")
    for sr in first: e(f"s_mov_b32 s{sr+2}, {sizes[sr][1]}\ns_mov_b32 s{sr+3}, 0x20000")
    setup_addrs(e)
    e(f"v_add_u32 v{V_ARD[0]}, s{S_WA}, v{V_ARD[0]}\nv_xor_b32 v{V_ARD[1]}, 64, v{V_ARD[0]}")
    scalar_setup(e)
    e(f"s_lshl_b32 s{S_T0}, s2, 13\ns_lshl_b32 s{S_T1}, s{S_WAVE}, 11\ns_add_u32 s{S_T0}, s{S_T0}, s{S_T1}")
    def late():
        for sr, (p, n) in sizes.items():
            if sr not in first: e(f"s_load_dwordx2 s[{sr}:{sr+1}], s[0:1], {p}\ns_mov_b32 s{sr+2}, {n}\ns_mov_b32 s{sr+3}, 0x20000")
        for sr in (S_HSRD, S_ASRD, S_BSRD): e(f"s_mov_b64 s[{sr}:{sr+1}], s[{S_WS}:{S_WS+1}]\ns_mov_b32 s{sr+2}, {WS_END}\ns_mov_b32 s{sr+3}, 0x20000")
        e(f"s_add_u32 s{S_FL}, s{S_WS}, {WS_EP}\ns_addc_u32 s{S_FL+1}, s{S_WS+1}, 0\ns_load_dword s{S_TAG}, s[{S_FL}:{S_FL+1}], 0")
    def go():
        e("s_waitcnt lgkmcnt(0)")
        if STAMPS: e("v_writelane_b32 v2, s6, 0")
        e.vmem(f"buffer_load_dwordx4 v[64:67], v{V_L16}, {srd(S_X)}, s{S_T0} offen", "X")
        e.vmem(f"buffer_load_dwordx4 v[68:71], v{V_L16}, {srd(S_X)}, s{S_T0} offen offset:1024", "X")
    return go, late

V_CPF = 31
V_KPERM = 31
V_UOFF = 30
def setup_addrs(e):
    t0, t1, t2, t3, t4 = V_TMP[:5]
    e(f"""v_lshrrev_b32 v{t0}, 2, v{V_LANE}
    v_lshlrev_b32 v{t0}, 7, v{t0}
    v_and_b32 v{t1}, 3, v{V_LANE}
    v_lshlrev_b32 v{t1}, 3, v{t1}
    v_add_u32 v{t0}, v{t0}, v{t1}
    v_bfe_u32 v{t1}, v{V_LANE}, 3, 2
    v_lshlrev_b32 v{t1}, 5, v{t1}
    v_add_u32 v{V_TR[0]}, v{t0}, v{t1}""")
    for c in (1, 2, 3): e(f"v_xor_b32 v{V_TR[c]}, {c*32}, v{V_TR[0]}")
    e(f"""v_lshrrev_b32 v{t0}, 3, v{V_LANE}
    v_and_b32 v{t1}, 7, v{V_LANE}
    v_and_b32 v{t2}, 6, v{t0}
    v_xor_b32 v{t1}, v{t1}, v{t2}
    v_lshlrev_b32 v{V_UOFF}, 4, v{t1}
    s_lshl_b32 s{S_T0}, s{S_WAVE}, 3
    v_add_u32 v{t2}, s{S_T0}, v{t0}
    v_bfe_u32 v{t3}, v{t2}, 2, 2
    v_lshlrev_b32 v{t3}, 3, v{t3}
    v_lshrrev_b32 v{t4}, 4, v{t2}
    v_lshl_add_u32 v{t3}, v{t4}, 2, v{t3}
    v_and_b32 v{t4}, 3, v{t2}
    v_add_u32 v{V_KPERM}, v{t3}, v{t4}
    v_lshl_add_u32 v{V_WOFF[0]}, v{V_KPERM}, 13, v{V_UOFF}
    v_add_u32 v{V_WOFF[1]}, 128, v{V_WOFF[0]}
    v_add_u32 v{V_WOFF[2]}, {32*8192}, v{V_WOFF[0]}
    v_add_u32 v{V_WOFF[3]}, {32*8192 + 128}, v{V_WOFF[0]}
    v_and_b32 v{t1}, 7, v{V_LANE}
    v_lshrrev_b32 v{t2}, 1, v{t0}
    v_xor_b32 v{t1}, v{t1}, v{t2}
    v_lshlrev_b32 v{t1}, 4, v{t1}
    v_lshl_add_u32 v{V_AOFF[0]}, v{t0}, 10, v{t1}
    v_xor_b32 v{V_AOFF[1]}, 64, v{V_AOFF[0]}
    v_add_u32 v{V_AOFF[1]}, 8192, v{V_AOFF[1]}
    v_and_b32 v{t0}, 15, v{V_LANE}
    v_lshrrev_b32 v{t1}, 4, v{V_LANE}
    v_lshrrev_b32 v{t2}, 1, v{t0}
    v_xor_b32 v{t1}, v{t1}, v{t2}
    v_lshlrev_b32 v{t1}, 4, v{t1}
    v_lshl_add_u32 v{V_ARD[0]}, v{t0}, 7, v{t1}""")

def scalar_setup(e):
    i, h, w = S_BLK, S_HEAD, S_WAVE
    e(f"""s_lshl_b32 s{S_T0}, s{i}, 2
    s_add_u32 s{S_T0}, s{S_T0}, s{w}
    s_lshl_b32 s{S_AROW}, s{S_T0}, 16
    s_lshl_b32 s{S_KVST}, s{h}, 19
    s_lshl_b32 s{S_T0}, s{S_T0}, 14
    s_add_u32 s{S_KVST}, s{S_KVST}, s{S_T0}""")
def scalar_setup2(e):
    i, h, w = S_BLK, S_HEAD, S_WAVE
    a, b, c, d = S_N, S_EVT, S_TRANS, S_RET
    IDLE = f"s{i}" if OPT.get("spread", 1) else "7"
    return f"""s_sub_u32 s{a}, 15, s{i}
    s_cmp_lt_u32 s{w}, 2 ! s_cselect_b32 s{b}, s{a}, s{i}
    s_lshl_b32 s{b}, s{b}, 1
    s_and_b32 s{c}, s{w}, 1
    s_add_u32 s{S_QT}, s{b}, s{c}
    s_lshl_b32 s{S_XNB}, s{S_QT}, 16
    s_mul_i32 s{S_HST}, s{S_QT}, {56*4096}
    s_add_u32 s{S_HST}, s{S_HST}, {WS_H}
    s_lshl_b32 s{d}, s{h}, 14
    s_add_u32 s{d}, s{d}, {WS_CTX}
    s_lshl_b32 s{S_CTXLO}, s{S_QT}, 19
    s_add_u32 s{S_CTXLO}, s{S_CTXLO}, s{d}
    s_lshr_b32 s{b}, s{w}, 1
    s_xor_b32 s{b}, s{b}, s{w}
    s_and_b32 s{b}, s{b}, 1
    s_lshl_b32 s{a}, s{a}, 1
    s_add_u32 s{S_QTHI}, s{a}, s{b}
    s_lshl_b32 s{S_CTXHI}, s{S_QTHI}, 19
    s_add_u32 s{S_CTXHI}, s{S_CTXHI}, s{d}
    s_lshr_b32 s{a}, s{h}, 2
    s_cmp_lg_u32 s{a}, {IDLE} ! s_cselect_b32 s{S_HSRD+2}, {WS_END}, 0
    s_cmp_gt_u32 s{a}, {IDLE} ! s_cselect_b32 s{a}, 4, 0
    s_sub_u32 s{S_GJ}, s{h}, s{a}
    s_lshl_b32 s{a}, s{h}, 19
    s_mov_b32 s{b}, {WS_V}
    s_cmp_lt_u32 s{w}, 2 ! s_cselect_b32 s{b}, {WS_K}, s{b}
    s_add_u32 s{b}, s{b}, s{a}
    s_add_u32 s{S_VCLB}, s{b}, {63*8192}
    s_and_b32 s{a}, s{w}, 1
    s_lshl_b32 s{a}, s{a}, 13
    s_add_u32 s{S_SRCA}, s{b}, s{a}
    s_lshl_b32 s{a}, s{w}, 13
    s_add_u32 s{S_VMAXB}, s{b}, s{a}
    s_add_u32 s{S_VMAXB}, s{S_VMAXB}, {64*8192}
    s_min_u32 s{S_SRCB}, s{S_VMAXB}, s{S_VCLB}
    s_lshl_b32 s{S_LB}, s{w}, 13
    s_add_u32 s{S_LA}, s{S_LB}, 65536
    s_xor_b32 s{S_LB}, s{S_LB}, 32768
    s_lshl_b32 s{S_N0}, s{i}, 1
    s_add_u32 s{S_N0}, s{S_N0}, 2
    s_mul_i32 s{a}, s{w}, {14*4096}
    s_mul_i32 s{S_DH}, s{h}, {56*4096}
    s_add_u32 s{S_DH}, s{S_DH}, s{a}
    s_add_u32 s{S_DH}, s{S_DH}, {WS_H}
    s_mul_i32 s{S_DW}, s{i}, {56*4096}
    s_add_u32 s{S_DW}, s{S_DW}, s{a}
    s_add_u32 s{S_DW}, s{S_DW}, {WS_WDF}
    s_mov_b32 s{S_DINC}, 0""".split("\n")

def layernorm_lines():
    L = []; e = L.append
    X = (72, 80); SUM = (88, 89); TMP = (90, 91); MEAN = (92, 93); VAR = (94, 95)
    SS = (S_T0, S_T1)
    for r in range(2):
        for j in range(4):
            e(f"v_lshlrev_b32 v{X[r]+2*j}, 16, v{64+4*r+j}")
            e(f"v_and_b32 v{X[r]+2*j+1}, 0xffff0000, v{64+4*r+j}")
    def reduce():
        for mod in ("quad_perm:[1,0,3,2] row_mask:0xf bank_mask:0xf", "quad_perm:[2,3,0,1] row_mask:0xf bank_mask:0xf",
                    "row_half_mirror row_mask:0xf bank_mask:0xf", "row_mirror row_mask:0xf bank_mask:0xf",
                    "row_bcast:15 row_mask:0xa bank_mask:0xf", "row_bcast:31 row_mask:0xc bank_mask:0xf"):
            e("s_nop 0")
            for r in range(2): e(f"v_add_f32_dpp v{SUM[r]}, v{SUM[r]}, v{SUM[r]} {mod}")
        e("s_nop 0")
        for r in range(2): e(f"v_readlane_b32 s{SS[r]}, v{SUM[r]}, 63")
        e("s_nop 1")
    for r in range(2): e(f"v_add_f32 v{SUM[r]}, v{X[r]}, v{X[r]+1}")
    for j in range(2, 8):
        for r in range(2): e(f"v_add_f32 v{SUM[r]}, v{SUM[r]}, v{X[r]+j}")
    reduce()
    for r in range(2): e(f"v_mov_b32 v{MEAN[r]}, s{SS[r]}")
    for r in range(2): e(f"v_mul_f32 v{MEAN[r]}, 0x3b000000, v{MEAN[r]}")
    for j in range(8):
        for r in range(2): e(f"v_sub_f32 v{TMP[r]}, v{X[r]+j}, v{MEAN[r]}")
        for r in range(2): e(f"v_mul_f32 v{SUM[r]}, v{TMP[r]}, v{TMP[r]}" if j == 0 else f"v_fmac_f32 v{SUM[r]}, v{TMP[r]}, v{TMP[r]}")
    reduce()
    def both(fmt):
        for r in range(2): e(fmt.format(v=VAR[r], m=MEAN[r], s=SS[r]))
    def rnd(x):
        both("v_cvt_pk_bf16_f32 v{%s}, v{%s}, v{%s}" % (x, x, x)); both("v_lshlrev_b32 v{%s}, 16, v{%s}" % (x, x))
    both("v_mov_b32 v{v}, s{s}"); both("v_mul_f32 v{v}, 0x3b000000, v{v}")
    rnd("v"); both("v_add_f32 v{v}, 0x3727c5ac, v{v}"); rnd("v")
    both("v_sqrt_f32 v{v}, v{v}"); rnd("m"); rnd("v"); both("v_rcp_f32 v{v}, v{v}")
    for r in range(2):
        for j in range(8): e(f"v_sub_f32 v{X[r]+j}, v{X[r]+j}, v{MEAN[r]}")
        for j in range(4): e(f"v_cvt_pk_bf16_f32 v{64+4*r+j}, v{X[r]+2*j}, v{X[r]+2*j+1}")
        for j in range(4):
            e(f"v_lshlrev_b32 v{X[r]+2*j}, 16, v{64+4*r+j}")
            e(f"v_and_b32 v{X[r]+2*j+1}, 0xffff0000, v{64+4*r+j}")
        for j in range(8): e(f"v_mul_f32 v{X[r]+j}, v{X[r]+j}, v{VAR[r]}")
        for j in range(4): e(f"v_cvt_pk_bf16_f32 v{64+4*r+j}, v{X[r]+2*j}, v{X[r]+2*j+1}")
    return L

class MemQ:
    def __init__(self, e): self.e = e; self.items = []
    def add(self, kind, lo, hi, *a): self.items.append([kind, lo, hi, a])
    def fillers(self):
        e = self.e; out = []
        dm = [k for k, it in enumerate(self.items) if it[0] == 'd']
        nxt = {dm[j]: dm[j+1] for j in range(len(dm) - 1)}
        self.first_m0 = self.items[dm[0]][3][0]
        for k, (kind, lo, hi, a) in enumerate(self.items):
            if kind == 's': out.append(Filler(lambda a=a: e(a[0].replace(" ! ", "\n")), 4, "salu", lo, hi))
            elif kind == 'l': out.append(Filler(lambda a=a: e.vmem(a[0], a[1]), 4, "mem", lo, hi))
            elif kind == 'f': out.append(Filler(a[0], a[1], a[2], lo, hi))
            else:
                def fn(k=k, a=a):
                    if len(a) > 3: e.need(lg=a[3])
                    if " m0," in e.L[-1]: e("s_nop 0")
                    e.vmem(a[1], a[2])
                    if k in nxt: e(self.items[nxt[k]][3][0])
                out.append(Filler(fn, 8, "mem", lo, hi))
        return out


def body(e):
    i, h, w = S_BLK, S_HEAD, S_WAVE
    go, late = kernel_head(e)
    NS = 32; BAR = 42; INF = 10**9; P = -10**6
    mq = MemQ(e)
    def S(lo, hi, *lines):
        for t in lines: mq.add('s', lo, hi, t)
    def VV(lo, hi, *lines):
        for t in lines: mq.add('f', lo, hi, lambda t=t: e(t), 4, "valu")
    V_GOFF = V_KPERM; V_TRH = V_AOFF + V_ARD
    S_GO = S_T1
    def area(gs):
        if gs < 16: return (gs % 4)*16384
        if gs < 24: return ((gs % 4)*32768 + 65536) % 131072
        return ((gs - 24)*16384 + 65536) % 131072
    def w_stage(gs, lo, step, hi):
        slot = gs % 4
        if gs < 16:
            s = gs % 8
            if s == 0: S(lo - 8, hi, f"s_lshl_b32 s{S_OFF0}, s{S_ROT}, 19", f"s_lshl_b32 s{S_T5}, s{h}, 8", f"s_add_u32 s{S_OFF0}, s{S_OFF0}, s{S_T5}")
            else: S(lo - 8, hi, f"s_add_u32 s{S_OFF0}, s{S_OFF0}, {1<<19}", f"s_and_b32 s{S_OFF0}, s{S_OFF0}, {4*MB-1}")
            for n in range(4):
                mq.add('d', lo + step*n, hi, f"s_add_u32 m0, s{S_WL}, {slot*16384 + n*4096}",
                       f"buffer_load_dwordx4 v{V_WOFF[n]}, {srd(S_WUK if gs < 8 else S_WUV)}, s{S_OFF0} offen lds", ("W", gs))
        elif gs >= 24:
            s = gs % 4; hf = (gs // 4) % 2
            S(lo - 10, hi, f"s_add_u32 s{S_OFF0}, s{S_ROTB}, {s}", f"s_and_b32 s{S_OFF0}, s{S_OFF0}, 3", f"s_lshl_b32 s{S_OFF0}, s{S_OFF0}, 20",
              f"s_lshl_b32 s{S_T5}, s{h}, 8", f"s_add_u32 s{S_OFF0}, s{S_OFF0}, s{S_T5}")
            if hf: S(lo - 10, hi, f"s_add_u32 s{S_OFF0}, s{S_OFF0}, 128")
            for n in range(4):
                if n: S(lo + step*n - 2, hi, f"s_add_u32 s{S_OFF0}, s{S_OFF0}, {32*8192}")
                mq.add('d', lo + step*n, hi, f"s_add_u32 m0, s{S_WL}, {area(gs) + n*4096}",
                       f"buffer_load_dwordx4 v{V_WOFF[0]}, {srd(S_WQ)}, s{S_OFF0} offen lds", ("W", gs))
    def g_stage(s, lo, step, hi):
        S(lo - 10, hi, f"s_add_u32 s{S_GO}, s{S_ROTB}, {s}", f"s_and_b32 s{S_GO}, s{S_GO}, 3", f"s_mul_i32 s{S_GO}, s{S_GO}, {128*3584}",
          f"s_lshl_b32 s{S_T5}, s{S_GJ}, 7", f"s_add_u32 s{S_GO}, s{S_GO}, s{S_T5}")
        for n in range(8):
            if n and n % 2 == 0: S(lo + step*n - 2, hi, f"s_add_u32 s{S_GO}, s{S_GO}, {32*3584}")
            mq.add('d', lo + step*n, hi, f"s_add_u32 m0, s{S_WL}, {area(16 + s) + n*4096}",
                   f"buffer_load_dwordx4 v{V_GOFF}, {srd((S_WG, S_WU)[n % 2])}, s{S_GO} offen lds", ("W", 16 + s))
    def a_stage(s, lo, step, hi):
        S(lo - 6, hi, f"s_add_u32 s{S_OFFA}, s{S_ROT}, {s}", f"s_and_b32 s{S_OFFA}, s{S_OFFA}, 7", f"s_lshl_b32 s{S_OFFA}, s{S_OFFA}, 7", f"s_add_u32 s{S_OFFA}, s{S_OFFA}, s{S_AROW}")
        for q in range(8):
            if q and q % 2 == 0: S(lo + step*q - 2, hi, f"s_add_u32 s{S_OFFA}, s{S_OFFA}, 16384")
            mq.add('d', lo + step*q, hi, f"s_add_u32 m0, s{S_WA}, {(s % 2)*32768 + q*1024}",
                   f"buffer_load_dwordx4 v{V_AOFF[q & 1]}, {srd(S_CKV)}, s{S_OFFA} offen lds", ("A", s), [("AF", s-2, 0), ("AF", s-2, 1)])
    def xn_stage(s, lo, step, hi):
        if s % 2 == 0: S(lo - 6, hi, f"s_add_u32 s{S_OFFA}, s{S_ROTB}, {s//2}", f"s_and_b32 s{S_OFFA}, s{S_OFFA}, 3", f"s_lshl_b32 s{S_OFFA}, s{S_OFFA}, 14", f"s_add_u32 s{S_OFFA}, s{S_OFFA}, s{S_XNB}")
        for ksub in range(2):
            if ksub or s % 2: S(lo + step*4*ksub - 2, hi, f"s_add_u32 s{S_OFFA}, s{S_OFFA}, 4096")
            for rb in range(4):
                mq.add('l', lo + step*(ksub*4 + rb), hi, f"buffer_load_dwordx4 {ar(actf(2*s+ksub, rb))}, v{V_L16}, {srd(S_WS)}, s{S_OFFA} offen offset:{rb*1024}{SC}", ("XN", 2*s+ksub))
    V_PO = V_TMP[13]
    poll_xn = Poll(e, "xn", V_PO); poll_kv = Poll(e, "kv", V_PO); poll_b = Poll(e, "b", V_TMP[15]); poll_c = Poll(e, "c", V_TMP[15])
    V_RT = V_TMP[8]; V_RTA = V_TMP[9:13]; V_PFD = V_TMP[1]
    RTL, RTS, RG = OPT.get("rtl", 19), OPT.get("rts", 22), OPT.get("rtgap", 32)
    S_RL = S_RET
    PRO = OPT.get("pro", 1); KVS = OPT.get("kvs", 30)
    w_stage(0, P, 0, INF); a_stage(0, P, 0, INF)
    n_pro0 = len(mq.items)
    S(P, INF, f"s_lshl_b32 s{S_T2}, s{w}, 8", f"s_add_u32 s{S_T2}, s{S_T2}, s2", f"s_lshr_b32 s{S_T3}, s{S_T2}, 3", f"s_add_u32 s{S_T4}, s{S_T2}, s{S_T3}", f"s_and_b32 s{S_T4}, s{S_T4}, 7",
      f"s_cmp_lt_u32 s{S_T2}, 448 ! s_cselect_b32 s{S_WD+2}, {1792*1024}, 0", f"s_cmp_lt_u32 s{S_T2}, 448 ! s_cselect_b32 s{S_BSRD+2}, {WS_END}, 0")
    VV(P, INF, f"v_lshrrev_b32 v{V_RT}, 3, v{V_LANE}", f"v_lshl_add_u32 v{V_RT}, v{V_RT}, 10, v{V_UOFF}", f"v_mul_u32_u24 v{V_GOFF}, 3584, v{V_KPERM}", f"v_add_u32 v{V_GOFF}, v{V_GOFF}, v{V_UOFF}")
    w_stage(1, P, 0, INF)
    if PRO >= 2: a_stage(1, P, 0, INF)
    if PRO >= 3: w_stage(2, P, 0, INF)
    n_pro1 = len(mq.items)
    if PRO < 2: a_stage(1, 0, 1, 30)
    if PRO < 3: w_stage(2, 10, 1, 36)
    def rt_loads(E0, half):
        for q in range(2*half, 2*half + 2):
            if OPT.get("rtlin"): S(E0, INF, f"s_add_u32 s{S_RL}, s{S_RL}, 1024" if q else f"s_lshl_b32 s{S_RL}, s{S_T4}, 12 ! s_lshl_b32 s{S_T5}, s{S_T3}, 3 ! s_add_u32 s{S_RL}, s{S_RL}, s{S_T5}")
            else: S(E0, INF, f"s_add_u32 s{S_RL}, s{S_RL}, 8192" if q else f"s_lshl_b32 s{S_RL}, s{S_T4}, 7 ! s_lshl_b32 s{S_T5}, s{S_T3}, 3 ! s_add_u32 s{S_RL}, s{S_RL}, s{S_T5}")
            for t, sr in enumerate((S_WO, S_WD)):
                mq.add('d', E0 + ((4 + 14*(q % 2) + 7*t) if RTL > 5 else 36), E0 + (33 if RTL > 5 else 60), f"s_add_u32 m0, s{S_WA}, {65536 + t*4096 + q*1024}", f"buffer_load_dwordx4 v{V_L16 if OPT.get('rtlin') else V_RT}, {srd(sr)}, s{S_RL} offen lds", "RT")
    for gs in range(NS):
        b = gs * 64
        if gs + 2 < 8: a_stage(gs + 2, b + (6 if gs or PRO >= 3 else 22), (4 if gs or PRO >= 3 else 2), b + 41)
        PFS = OPT.get("pfs", {})
        if gs == 1:
            VV(b + 2, INF, f"v_lshrrev_b32 v{V_PO}, 2, v{V_LANE}", f"v_lshlrev_b32 v{V_PO}, 7, v{V_PO}", f"v_and_or_b32 v{V_PO}, v{V_LANE}, 3, v{V_PO}", f"v_lshlrev_b32 v{V_PO}, 6, v{V_PO}",
               f"v_lshlrev_b32 v{V_TMP[5]}, 6, v{V_LANE}", f"v_min_u32 v{V_TMP[4]}, 1728, v{V_TMP[5]}")
        for n_, c_ in enumerate(PFS.get(gs, "")):
            if c_ in "qv":
                S(b + 2, INF, f"s_lshl_b32 s{S_T1}, s{i}, 2", f"s_add_u32 s{S_T1}, s{S_T1}, s{w}", f"s_lshl_b32 s{S_T1}, s{S_T1}, 17", f"s_lshl_b32 s{S_T5}, s{h}, 8", f"s_add_u32 s{S_T1}, s{S_T1}, s{S_T5}")
                vo = V_PO
            else:
                S(b + 2, INF, f"s_lshl_b32 s{S_T1}, s2, 2", f"s_add_u32 s{S_T1}, s{S_T1}, s{w}", f"s_mul_i32 s{S_T1}, s{S_T1}, {4096 if c_ == 'o' else 1792}")
                vo = V_TMP[5] if c_ == "o" else V_TMP[4]
            mq.add('l', b + 8, INF, f"buffer_load_dword v{V_TMP['qgu'.find(c_) % 4]}, v{vo}, {srd(dict(q=S_WQ, v=S_WUV, g=S_WG, u=S_WU, o=S_WO, d=S_WD)[c_])}, s{S_T1} offen", "PF")
        if gs == 6: S(b + 10, INF, f"s_min_u32 s{S_WG+2}, s{S_WG+2}, s{S_HSRD+2}", f"s_mov_b32 s{S_WU+2}, s{S_WG+2}")
        GS = OPT.get("gs", (7, 8))
        if gs in GS: g_stage(GS.index(gs), b + 4, 3, b + 41)
        if gs == 8:
            t0, t1 = V_TMP[2:4]
            S(b + 4, b + 30, f"s_lshl_b32 s{S_T5}, s{S_QT}, 7", f"s_add_u32 s{S_T5}, s{S_T5}, {WS_FX}")
            VV(b + 4, b + 30, f"v_and_b32 v{V_PO}, 7, v{V_LANE}", f"v_lshlrev_b32 v{V_PO}, 2, v{V_PO}", f"v_add_u32 v{V_PO}, s{S_T5}, v{V_PO}")
            mq.add('f', b + 28, b + 36, poll_xn.issue, 4, "mem")
        if gs == 9: mq.add('f', b + 2, b + 6, poll_xn.check, 8, "valu")
        if 9 <= gs <= 16: xn_stage(gs - 9, b + 8, 4, b + 41)
        if gs == 10: VV(b + 20, INF, *[f"v_add_u32 v{V_TRH[c]}, 65536, v{V_TR[c]}" for c in range(4)])
        if gs in (RTL, RTL + 1) and not OPT.get("nortl"): rt_loads(b, gs - RTL)
        if gs == 27:
            S(b + 4, b + 30, f"s_and_b32 s{S_T5}, s2, 31", f"s_lshl_b32 s{S_T5}, s{S_T5}, 7", f"s_add_u32 s{S_T5}, s{S_T5}, {WS_FK}")
            VV(b + 4, b + 30, f"v_and_b32 v{V_PO}, 7, v{V_LANE}", f"v_lshlrev_b32 v{V_PO}, 2, v{V_PO}", f"v_add_u32 v{V_PO}, s{S_T5}, v{V_PO}")
        if gs == KVS - 1: mq.add('f', b + 26, b + 33, poll_kv.issue, 4, "mem")
        if gs + 3 < NS: w_stage(gs + 3, b + 44, 4, b + 64 + 5)
        if gs in (14, 16): g_stage(2 + (gs - 14)//2, b + 44, 3, b + 64 + 7)
    b = KVS*64
    mq.add('f', b + 4, b + 8, poll_kv.check, 8, "valu")
    for st in range(2):
        for j in range(8):
            if j == 4: S(b, INF, f"s_add_u32 s{S_T4}, s{S_SRCA}, 4096")
            mq.add('d', b + 8 + st*64 + 6*j, INF, f"s_add_u32 m0, s{S_LA}, {st*32768 + (j//4)*4096}",
                   f"buffer_load_dwordx4 v{V_L16}, {srd(S_ASRD)}, s{S_T4 if j >= 4 else S_SRCA} offen offset:{(j%4)*1024}{SC} lds", ("KV", st))
        if st == 0: S(b, INF, f"s_cmp_ge_u32 s{w}, 2 ! s_cselect_b32 s{S_T4}, 0, 2", f"s_lshl_b32 s{S_T4}, s{S_T4}, 13", f"s_add_u32 s{S_SRCA}, s{S_SRCA}, s{S_T4}")
        else: S(b, INF, f"s_add_u32 s{S_SRCA}, s{S_SRCA}, 16384")
    mfill = mq.fillers()
    e(mq.first_m0)
    started = False
    for f in mfill[:n_pro0]:
        if f.cost == 8 and not started: go(); started = True
        f.fn()
        if f.cost == 8: e("s_nop 0")
    late()
    if OPT.get("tlb", 0):
        a, b, c = S_N, S_EVT, S_TRANS
        e(f"""s_lshr_b32 s{a}, s2, 3
        s_and_b32 s{b}, s{a}, 7
        s_add_u32 s{b}, s{b}, 2
        s_cmp_eq_u32 s{w}, 2
        s_cselect_b32 s{b}, 10, s{b}
        s_and_b32 s{c}, s{w}, 1
        s_lshr_b32 s{S_T0}, s{w}, 1
        s_cmp_eq_u32 s{c}, s{S_T0}
        s_cselect_b32 s{b}, 12, s{b}
        s_lshl_b32 s{S_T1}, s{b}, 3
        s_load_dwordx2 s[{S_ASRD}:{S_ASRD+1}], s[0:1], s{S_T1}
        s_cmp_lt_u32 s{b}, 6
        s_mov_b32 s{S_ASRD+2}, {1792*1024}
        s_cselect_b32 s{S_ASRD+2}, {4*MB}, s{S_ASRD+2}
        s_lshr_b32 s{S_T1}, s{a}, 3
        s_lshl_b32 s{a}, s{a}, 1
        s_add_u32 s{a}, s{a}, s{c}
        s_cmp_eq_u32 s{b}, 12
        s_cselect_b32 s{S_ASRD+2}, {WS_END}, s{S_ASRD+2}
        s_cselect_b32 s{a}, s{a}, s{S_T1}
        s_lshl_b32 s{a}, s{a}, 20
        v_mov_b32 v{V_TMP[5]}, s{a}
        s_waitcnt lgkmcnt(0)""")
        e.vmem(f"buffer_load_dword v{V_TMP[1]}, v{V_TMP[5]}, {srd(S_ASRD)}, 0 offen sc1", "PF")
        e(f"s_mov_b64 s[{S_ASRD}:{S_ASRD+1}], s[{S_WS}:{S_WS+1}]\ns_mov_b32 s{S_ASRD+2}, {WS_END}")
    e.need(vm=["X"])
    ln = layernorm_lines()
    rest = mfill[n_pro0:n_pro1]
    per = len(ln) // (sum(f.cost == 8 for f in rest) + 1) + 1
    while ln or rest:
        for t in ln[:per]: e(t)
        ln = ln[per:]
        while rest:
            f = rest.pop(0); f.fn()
            if f.cost == 8: break
    mfill = mfill[n_pro1:]
    t0, t1, t2 = V_TMP[2:5]
    e(f"""s_lshl_b32 s{S_T0}, s{w}, 5
    s_add_u32 s{S_T0}, s{S_T0}, 49152
    v_lshlrev_b32 v{t0}, 7, v{V_LANE}
    v_add_u32 v{t0}, s{S_T0}, v{t0}""")
    e.ds(f"ds_write_b128 v{t0}, v[64:67]"); e.ds(f"ds_write_b128 v{t0}, v[68:71] offset:16")
    e(f"""s_lshl_b32 s{S_T0}, s{w}, 11
    s_add_u32 s{S_T0}, s{S_T0}, 49152
    v_add_u32 v{t0}, s{S_T0}, v{V_L16}
    v_lshrrev_b32 v{t1}, 5, v{V_LANE}
    v_lshlrev_b32 v{t1}, 12, v{t1}
    v_bfe_u32 v{t2}, v{V_LANE}, 3, 2
    v_lshl_add_u32 v{t1}, v{t2}, 8, v{t1}
    v_and_b32 v{t2}, 7, v{V_LANE}
    v_lshl_add_u32 v{t1}, v{t2}, 4, v{t1}
    s_lshr_b32 s{S_T0}, s2, 3
    s_lshl_b32 s{S_T0}, s{S_T0}, 16
    s_bfe_u32 s{S_T1}, s2, 0x20001
    s_lshl_b32 s{S_T1}, s{S_T1}, 10
    s_add_u32 s{S_T0}, s{S_T0}, s{S_T1}
    s_and_b32 s{S_T1}, s2, 1
    s_lshl_b32 s{S_T1}, s{S_T1}, 7
    s_add_u32 s{S_T0}, s{S_T0}, s{S_T1}
    s_lshl_b32 s{S_T1}, s{w}, 14
    s_add_u32 s{S_T0}, s{S_T0}, s{S_T1}
    s_add_u32 s{S_T1}, s{S_T0}, 8192""")
    misc = []
    misc.append(Filler(lambda: (e.ds(f"ds_read_b128 v[64:67], v{t0}", "LN"), e.ds(f"ds_read_b128 v[68:71], v{t0} offset:1024", "LN")), 8, "mem", 2, 30))
    misc.append(Filler(lambda: (e.need(lg=["LN"]), e.vmem(f"buffer_store_dwordx4 v[64:67], v{t1}, {srd(S_WS)}, s{S_T0} offen{SC}", "XNST")), 8, "mem", 14, 40))
    misc.append(Filler(lambda: e.vmem(f"buffer_store_dwordx4 v[68:71], v{t1}, {srd(S_WS)}, s{S_T1} offen{SC}", "XNST"), 8, "mem", 16, 41))
    for t in scalar_setup2(e): misc.append(Filler(lambda t=t: e(t.replace(" ! ", "\n")), 4, "salu", 44, 150))
    S_RA, S_RB = S_N, S_EVT
    rts = [Filler(lambda: e(f"s_add_u32 s{S_RA}, s{S_WA}, 65536"), 4, "salu", 150)]
    for c in range(4): rts.append(Filler(lambda c=c: e(f"v_add_u32 v{V_RTA[c]}, s{S_RA}, v{V_TR[c]}"), 4, "valu", 150))
    for t in (f"s_lshl_b32 s{S_RA}, s{S_T4}, 19", f"s_lshl_b32 s{S_T3}, s{S_T3}, 12", f"s_add_u32 s{S_RA}, s{S_RA}, s{S_T3}", f"s_add_u32 s{S_RA}, s{S_RA}, {WS_WOF}",
              f"s_mul_i32 s{S_RB}, s{S_T4}, {56*4096}", f"s_add_u32 s{S_RB}, s{S_RB}, s{S_T3}", f"s_add_u32 s{S_RB}, s{S_RB}, {WS_WDF}"):
        rts.append(Filler(lambda t=t: e(t), 4, "salu", 150, 185))
    SIGKV = OPT.get("sigkv", 28)
    for n in range(8):
        t, c = n // 4, n % 4
        d0 = V_PK + (n % 2)*4
        def fr(t=t, c=c, d0=d0, n=n):
            e.need(vm=["RT"])
            for rr in range(2): e.ds(f"ds_read_b64_tr_b16 v[{d0+rr*2}:{d0+rr*2+1}], v{V_RTA[c]} offset:{t*4096 + rr*2048}", ("RTF", n))
        def fs(t=t, c=c, d0=d0, n=n):
            e.need(lg=[("RTF", n)])
            e.vmem(f"buffer_store_dwordx4 {vr(d0)}, v{V_L16}, {srd((S_WS, S_BSRD)[t])}, s{(S_RA, S_RB)[t]} offen offset:{c*1024}{SC}", "RTST")
        if not OPT.get("norts"): rts.append(Filler(fr, 8, "mem", RTS*64 + 40 + RG*n)); rts.append(Filler(fs, 4, "mem", RTS*64 + 40 + RG*n + 12, 30*64 + 30 if POLLALL else (SIGKV - 1)*64))
    mfmas = []; rd = []
    sig_at = {3: (["XNST"], sig_lin(WS_FX)), SIGKV: (["KST", "VST"] + ([] if POLLALL else ["RTST"]), SIG_KV)}
    def stage_gate(gs):
        def fn():
            tags = [("W", gs)]
            if gs < 8: tags.append(("A", gs))
            if gs in sig_at: tags += sig_at[gs][0]
            f3 = OPT.get("fine3")
            if f3 is not None and 0 <= gs - f3 < 6: stamp(e, 14 + 3*(gs - f3))
            e.need(vm=tags)
            if f3 is not None and 0 <= gs - f3 < 6: stamp(e, 15 + 3*(gs - f3))
            e("s_barrier")
            if f3 is not None and 0 <= gs - f3 < 6: stamp(e, 16 + 3*(gs - f3))
            if gs in sig_at: signal(e, sig_at[gs][1], V_TMP[6])
            if gs % 8 == 0: stamp(e, 2 + gs // 8)
            if OPT.get("fine") is not None and 0 <= gs - OPT["fine"] < 18: stamp(e, 14 + gs - OPT["fine"])
        return fn
    def actread(s, ksub, rb):
        return lambda: e.ds(f"ds_read_b128 {ar(actf(2*s+ksub, rb))}, v{V_ARD[ksub]} offset:{(s % 2)*32768 + rb*2048}", ("AF", s, ksub))
    for gs in range(NS):
        base = gs * 64
        if gs > 0: rd.append(Filler(stage_gate(gs), 8, "mem", base - 64 + BAR, base - 64 + BAR + 1))
        pend = [Filler(actread(gs, ksub, rb), 4, "mem", base - 64 + BAR, base - 3) for rb in range(4) for ksub in range(2)] if gs < 8 else []
        CH = 2 if gs < 16 else 4
        for g in range(16 // CH):
            g0 = base + g*4*CH
            db = g if gs < 16 else 4*((gs // 4) % 2) + g
            first = gs % (16 // CH) == 0
            for k in range(CH):
                slot = (g*CH + k) % 8
                if gs < 16: c_, off = g % 4, (k*2 + g // 4)*4096
                elif gs < 24: c_, off = 2*((gs // 4) % 2) + g % 2, (k*2 + g // 2)*4096
                else: c_, off = g, k*4096
                off += area(gs)
                for rr in range(2):
                    ad = V_TRH[c_] if off >= 65536 else V_TR[c_]
                    d = V_WF + slot*4 + rr*2
                    n_ = k*2 + rr
                    lo = (g0 - 22 + 2*n_) if CH == 2 else (g0 - 16 + n_)
                    if gs == 16 and g == 1: lo = max(lo, base)
                    rd.append(Filler(lambda d=d, ad=ad, o=(off + rr*2048) % 65536, t=(gs, g): e.ds(f"ds_read_b64_tr_b16 v[{d}:{d+1}], v{ad} offset:{o}", ("F", t)),
                                     4, "mem", max(lo, base - 64 + BAR), g0 - 3))
                    for _ in range(1 if g else 2):
                        if pend: rd.append(pend.pop(0))
            for rb in range(4):
                for kk in range(CH):
                    k = kk if rb % 2 == 0 else CH - 1 - kk
                    kslot = CH*(gs % (16 // CH)) + k
                    def needs(gs=gs, g=g, CH=CH):
                        return e.need(lg=[("F", (gs, g))] + ([("AF", gs, 0), ("AF", gs, 1)] if gs < 8 else []),
                                      vm=[("XN", 4*(gs % 4) + q) for q in range(4)] if 16 <= gs < 20 else ())
                    def m(gs=gs, slot=(g*CH + k) % 8, kslot=kslot, db=db, rb=rb, z=(first and kk == 0), needs=needs):
                        needs()
                        wv = vr(V_WF + slot*4); a = ar(actf(kslot, rb)); d = vr(acc(db, rb))
                        e(mf(d, a, wv, "0" if z else d) if 8 <= gs < 16 else mf(d, wv, a, "0" if z else d))
                    m.pre = needs
                    mfmas.append(m)
    def cvts(base, dst, dl):
        out = []
        for db in range(8):
            for rb in range(4):
                for hh in range(2):
                    d = dst(db, rb, hh); s = acc(db, rb) + 2*hh
                    out.append(Filler(lambda d=d, s=s: e(f"v_cvt_pk_bf16_f32 v{d}, v{s}, v{s+1}"), 4, "valu", base + 448 + 8*db + 2*rb + 1 + 8, dl(db, rb)))
        return out
    cv = cvts(0, lambda db, rb, hh: V_PK + (rb*4 + db//2)*4 + (db & 1)*2 + hh, lambda db, rb: min(512 + 8*db + 2*rb, 512 + 30))
    VH = OPT.get("vh", 1150)
    cvv = cvts(512, lambda db, rb, hh: V_PK + ((db//4)*8 + (rb//2)*4 + db % 4)*4 + (rb & 1)*2 + hh, lambda db, rb: min(1024 + 16*db + 4*rb, 1024 + 16) if db < 4 else min(VH + 39, 1278))
    for f in cvv[32:]: f.earliest = VH
    cv += cvv
    st = []
    G2 = OPT.get("sgap", 37)
    NKV = OPT.get("nkv", 14)
    sched = [(WS_K + n*1024, n, "KST", 512 + 36 + (444 // NKV)*n, 512 + 454 if n < 8 else 1024) for n in range(NKV)]
    sched += [(WS_K + n*1024, n, "KST", 1024 + 4 + G2*(n - NKV), VH - 2) for n in range(NKV, 16)]
    sched += [(WS_V + ((n % 8)//4)*8192 + ((n // 8)*4 + n % 4)*1024, n, "VST", max(1024 + 20 + G2*(n + 16 - NKV), VH + 40 if n >= 8 else 0), (SIGKV - 1)*64 + 20) for n in range(16)]
    for off, n, tag, lo, dl in sched:
        if n % 4 == 0: st.append(Filler(lambda off=off: e(f"s_add_u32 s{S_T2}, s{S_KVST}, {off}"), 4, "salu", lo - 4))
        st.append(Filler(lambda n=n, tag=tag: e.vmem(f"buffer_store_dwordx4 {vr(V_PK + n*4)}, v{V_L16}, {srd(S_WS)}, s{S_T2} offen offset:{(n%4)*1024}{SC}", tag), 4, "mem", lo, dl))
    C0 = -2.0 * math.sqrt(2.0 / math.pi) * math.log2(math.e)
    V_C1 = V_TMP[4]; V_QW = V_TMP[5]
    ge = [Filler(lambda: e(f"v_mov_b32 v{V_C1}, {fb(C0*0.044715):#x}"), 4, "valu", 1100)]
    for hf in range(2):
        lo = 1024 + 256*(hf + 1) - 16 + 11; dl = 1024 + 256*(hf + 2)
        def RW(txt):
            i_ = chk.parse(txt); return (set(i_.r), set(i_.w))
        def V(txt, cost=4): ge.append(Filler(lambda: e(txt), cost, "valu", lo, dl, RW(txt) if OPT.get("ooo", 1) else None))
        for t in [f"s_lshl_b32 s{S_T0}, s{S_GJ}, 13", f"s_add_u32 s{S_T0}, s{S_T0}, {hf*4096}", f"s_add_u32 s{S_T0}, s{S_T0}, s{S_HST}"]:
            ge.append(Filler(lambda t=t: e(t), 4, "salu", lo, dl))
        for rb in range(4):
            lo = 1024 + 256*(hf + 1) - 16 + 4*rb + 11
            for c in range(2):
                G, U = acc(4*hf + c, rb), acc(4*hf + 2 + c, rb); T = V_TMP[0:4]
                for r in range(4): V(f"v_mul_f32 v{T[r]}, v{G+r}, v{G+r}")
                for r in range(4): V(f"v_mul_f32 v{U+r}, v{G+r}, v{U+r}")
                for r in range(4): V(f"v_fmaak_f32 v{T[r]}, v{T[r]}, v{V_C1}, {fb(C0):#x}")
                for r in range(4): V(f"v_mul_f32 v{G+r}, v{G+r}, v{T[r]}")
                for r in range(4): V(f"v_exp_f32 v{G+r}, v{G+r}", 8)
                for r in range(4): V(f"v_add_f32 v{G+r}, 1.0, v{G+r}")
                for r in range(4): V(f"v_rcp_f32 v{G+r}, v{G+r}", 8)
                for r in range(4): V(f"v_mul_f32 v{U+r}, v{U+r}, v{G+r}")
                D = acc(4*hf, rb) + 2*c
                V(f"v_cvt_pk_bf16_f32 v{D}, v{U}, v{U+1}"); V(f"v_cvt_pk_bf16_f32 v{D+1}, v{U+2}, v{U+3}")
            st_ = f"buffer_store_dwordx4 {vr(acc(4*hf, rb))}, v{V_L16}, {srd(S_HSRD)}, s{S_T0} offen offset:{rb*1024}{SC}"
            ge.append(Filler(lambda st_=st_: e.vmem(st_, "HST"), 4, "mem", lo, dl, RW(st_) if OPT.get("ooo", 1) else None))
    ge.append(Filler(lambda: e(f"s_lshl_b32 s{S_T0}, s{w}, 14"), 4, "salu", 1792))
    ge.append(Filler(lambda: e(f"s_add_u32 s{S_T0}, s{S_T0}, 131072"), 4, "salu", 1792))
    ge.append(Filler(lambda: e(f"v_add_u32 v{V_QW}, s{S_T0}, v{V_L16}"), 4, "valu", 1792))
    zero_hi = []
    for hf in range(2):
        for dg in (2*hf, 2*hf + 1):
            for qb in range(4):
                lo = 1536 + 256*hf + 192 + 32*(dg % 2) + 16 + 4*qb + 3 + 8
                def V(txt, cost=4, kind="valu", lo=lo): ge.append(Filler(lambda: e(txt), cost, kind, lo))
                o0, o1 = acc(2*dg, qb), acc(2*dg+1, qb)
                for r in range(4): V(f"v_mul_f32 v{o0+r}, {QSCALE:#x}, v{o0+r}"); V(f"v_mul_f32 v{o1+r}, {QSCALE:#x}, v{o1+r}")
                for d, s_ in ((o0, o0), (o0+1, o0+2), (o0+2, o1), (o0+3, o1+2)): V(f"v_cvt_pk_bf16_f32 v{d}, v{s_}, v{s_+1}")
                for r in range(4):
                    if hf: zero_hi.append(f"v_mov_b32 v{o1+r}, 0")
                    else: V(f"v_mov_b32 v{o1+r}, 0")
                ge.append(Filler(lambda o0=o0, qb=qb, dg=dg: e.ds(f"ds_write_b128 v{V_QW}, {vr(o0)} offset:{(qb*4+dg)*1024}", "QW"), 4, "mem", lo))
        for dg in (2*hf, 2*hf + 1):
            for qb in range(4):
                o0 = acc(2*dg, qb)
                for r in range(4): ge.append(Filler(lambda r=r, o0=o0, qb=qb, dg=dg: e(f"v_accvgpr_write_b32 a{A_Q + (qb*4+dg)*4 + r}, v{o0+r}"), 4, "valu", 29*64 + 4))
        ge.append(Filler(lambda: e.need(lg=["QW"]), 4, "salu", 29*64 + 4))
        for dg in (2*hf, 2*hf + 1):
            for qb in range(4):
                for r in range(4):
                    if hf: zero_hi.append(f"v_mov_b32 v{acc(2*dg, qb) + r}, 0")
                    else: ge.append(Filler(lambda r=r, qb=qb, dg=dg: e(f"v_mov_b32 v{acc(2*dg, qb) + r}, 0"), 4, "valu", 29*64 + 4))
        if hf == 0:
            for r in range(64): ge.append(Filler(lambda r=r: e(f"v_accvgpr_write_b32 a{A_DACC + r}, 0"), 4, "valu", 31*64 + 4))
    stamp(e, 1)
    e.need(vm=[("W", 0), ("A", 0)]); e.wait_all(vm=False); e("s_barrier")
    e(f"s_mul_i32 s{S_TAG}, s{S_TAG}, 0x9e3779b1\ns_add_u32 s{S_TAG}, s{S_TAG}, 0x7f4a7c15")
    stamp(e, 2)
    k = 0
    while rd[k].earliest < 0: rd[k].fn(); k += 1
    rest = e.schedule(mfmas, [rd[k:], mfill, cv, misc, rts, st, att_setup_fillers(e, poll_b), ge], flush=False)
    e("s_nop 7")
    e.c(f"left over fillers: {[len(r) for r in rest]}")
    for r in rest:
        for f in r: f.fn()
    stamp(e, 6)
    attention(e, poll_b, poll_c, zero_hi)
    phase_d(e, poll_c)
    if OPT.get("padto"):
        if "padb" in OPT: e(f"s_lshr_b32 s6, s2, 3\ns_cmp_lg_u32 s6, {OPT['padb']}\ns_cbranch_scc1 L_end")
        if "padx" in OPT: e(f"s_and_b32 s6, s2, 7\ns_cmp_lg_u32 s6, {OPT['padx']}\ns_cbranch_scc1 L_end")
        e(f"s_nop 1\nv_readlane_b32 s6, v{V_STAMP}, 0\ns_add_u32 s6, s6, {OPT['padto']*100}")
        if OPT.get("padph"):
            e(f"v_readlane_b32 s4, v{V_STAMP}, {OPT['padph'][0]}\nv_readlane_b32 s5, v{V_STAMP}, {OPT['padph'][1]}\ns_sub_u32 s5, s5, s4\ns_add_u32 s6, s6, s5")
        e.label("L_pad")
        e("s_memrealtime s[4:5]\ns_waitcnt lgkmcnt(0)\ns_sub_u32 s7, s4, s6\ns_cmp_lt_i32 s7, 0\ns_cbranch_scc1 L_pad")
    else: stamp_flush(e)
    e("s_branch L_end")
    e.cold()
    for p in (poll_xn, poll_kv, poll_b, poll_c): p.spin()
    slow_path(e)
    e.label("L_end")
    e("s_endpgm")

A_Z = 212
S_FIRST = 20
def att_dma(e, which, j):
    if " m0," in e.L[-1]: e("s_nop 0")
    sr, src, ld = ((S_ASRD, S_SRCA, S_LA), (S_BSRD, S_SRCB, S_LB))[which]
    e.vmem(f"buffer_load_dwordx4 v{V_L16}, {srd(sr)}, s{S_T4 if j >= 4 else src} offen offset:{(j%4)*1024}{OPT.get('kvsc', SC)} lds", "KV")
    if which == 1 and OPT.get("boob"): ld = S_FIRST + 3
    if j == 3: e(f"s_add_u32 m0, s{ld}, 4096"); e(f"s_add_u32 s{S_T4}, s{src}, 4096")
    if j == 7:
        if which == 0: e(f"s_mov_b32 m0, s{S_FIRST + 3 if OPT.get('boob') else S_LB}\ns_add_u32 s{S_SRCA}, s{S_SRCA}, 16384")
        else: e(f"s_sub_u32 s{S_VMAXB}, s{S_VMAXB}, 16384\ns_min_u32 s{S_SRCB}, s{S_VMAXB}, s{S_VCLB}")
def d_load(e, j):
    so = S_DW if j < 4 else S_DH
    e.vmem(f"buffer_load_dwordx4 {ar(A_DOP + j*4)}, v{V_L16}, {srd(S_DSRD)}, s{so} offen offset:{(j%4)*1024}{OPT.get('kvsc', SC)}", "KV")
    if j % 4 == 3: e(f"s_add_u32 s{so}, s{so}, s{S_DINC}")
class M:
    def __init__(self, txt, tag=None): self.txt, self.tag = txt, tag
def d_mfmas():
    return [M(mf(ar(A_DACC + (mb*4+qb)*4), ar(A_DOP + mb*4), ar(A_DOP + 16 + qb*4), ar(A_DACC + (mb*4+qb)*4))) for mb in range(4) for qb in (range(4) if mb % 2 == 0 else range(3, -1, -1))]
def sm_half(e, buf, kb2):
    ex = []; cv = []
    for p in range(8):
        qb, hh = p // 2, p % 2
        r = Sreg(buf, kb2, qb) + 2*hh
        if OPT.get("noexp"): ex += [NOP, NOP]
        else: ex.append(lambda r=r: e(f"v_exp_f32 v{r}, v{r}")); ex.append(lambda r=r: e(f"v_exp_f32 v{r+1}, v{r+1}"))
        d = Preg(buf, qb) + 2*kb2 + hh
        cv.append(lambda r=r, d=d: e(f"v_perm_b32 v{d}, v{r+1}, v{r}, s{S_WUV}" if OPT.get("perm") else f"v_cvt_pk_bf16_f32 v{d}, v{r}, v{r+1}"))
    return ex, cv
def qk_mfmas(buf, half, tag="FR"):
    out = []
    for kb2 in range(2):
        kb = half*2 + kb2
        for qb in range(4):
            for kk in range(4):
                dg = kk if qb % 2 == 0 else 3 - kk
                d = vr(Sreg(buf, kb2, qb))
                c = d if kk else ("0" if kb < qb else vr(V_TD) if kb == qb else vr(V_TN))
                out.append(M(mf(d, ar(A_FB[0] + (kb2*4+dg)*4), ar(A_Q + (qb*4+dg)*4), c), (tag, 0, kb2*4)))
    return out
def pv_mfmas(buf, zero=False, order=range(8)):
    o = []
    for n_, db in enumerate(order):
        for qb in (range(4) if n_ % 2 == 0 else range(3, -1, -1)):
            d = vr(Oreg(db, qb))
            o.append(M(mf(d, ar(A_Z), ar(A_Z), "0")) if zero else M(mf(d, ar(A_FB[1] + db*4), vr(Preg(buf, qb)), d), ("FR", 1, (db // 4)*4)))
    s_ = []
    for qb in range(4):
        d = ar(A_L + qb*4)
        s_.append(M(mf(d, ar(A_Z), ar(A_Z), "0")) if zero else M(mf(d, ar(A_ONE), vr(Preg(buf, qb)), d)))
    if OPT.get("nosum"): s_ = [M("s_nop 0")]*4
    return o, s_
def frag_reads(e, fb_, off, order=range(8), tag="FR"):
    return [lambda j=j: e.ds(f"ds_read_b128 {ar(A_FB[fb_] + j*4)}, v{V_RD} offset:{off + j*1024}", (tag, fb_, (j // 4)*4)) for j in order]
NOP = lambda: None
def run(e, mfmas, gaps, nxt=None):
    if mfmas[0].tag: e.need(lg=[mfmas[0].tag])
    for i, m in enumerate(mfmas):
        if m.txt: e(m.txt)
        t = mfmas[i+1].tag if i + 1 < len(mfmas) else nxt
        if t: e.need(lg=[t])
        for f in gaps.get(i, ()): f()
def section(e, mfmas, reads, ex, cv, carry, g2, nxt=None, tail=None):
    gaps = {}
    for q in range(8):
        gaps[4*q] = [reads[q], (carry or NOP) if q == 0 else cv[q-1]]
        gaps[4*q+1] = [ex[2*q]]; gaps[4*q+2] = [g2[q]]; gaps[4*q+3] = [ex[2*q+1]]
    if len(mfmas) > 32: gaps[32] = [cv[7]]
    for k, f in (tail or {}).items(): gaps.setdefault(k, []).insert(0, f)
    run(e, mfmas, gaps, nxt)
    return cv[7] if len(mfmas) == 32 else None
PREP = [f"s_cmp_le_u32 s{S_N}, 15\ns_cselect_b32 s{S_ASRD+2}, {WS_END}, 0\ns_cselect_b32 s{S_T0}, 32768, s{S_T1}", f"s_add_u32 s{S_T3}, s{S_N}, 2\ns_xor_b32 s{S_LB}, s{S_LB}, s{S_T0}",
        f"s_cmp_ge_u32 s{S_T3}, s{S_N0}\ns_cselect_b32 s{S_BSRD+2}, s{S_ASRD+2}, 0" + (f"\ns_cselect_b32 s{S_FIRST+3}, s{S_LB}, s{S_T1}" if OPT.get("boob") else ""), f"s_xor_b32 s{S_LA}, s{S_LA}, s{S_T0}\ns_mov_b32 m0, s{S_LA}"]
PREP0 = f"s_mov_b32 s{S_T1}, 0x30000"
LR = V_TMP[10:14]
def check_lines(ret, qt):
    return [f"v_min3_f32 v{V_LIM+1}, v{LR[0]}, v{LR[1]}, v{LR[2]}\nv_add_f32 v{V_LIM}, v{LR[0]}, v{LR[1]}",
            f"v_add_f32 v{V_LIM}, v{V_LIM}, v{LR[2]}\nv_min_f32 v{V_LIM+1}, v{V_LIM+1}, v{LR[3]}",
            f"s_mov_b32 s{S_RET}, {ret}\nv_add_f32 v{V_LIM}, v{V_LIM}, v{LR[3]}\nv_cmp_nle_f32 vcc, 0x17800000, v{V_LIM+1}",
            f"s_mov_b64 s[{S_FL}:{S_FL+1}], vcc\ns_mov_b32 s{S_CNT}, s{qt}\nv_cmp_nge_f32 vcc, {OPT.get('lhi', 0x67800000):#x}, v{V_LIM}",
            f"s_or_b64 vcc, vcc, s[{S_FL}:{S_FL+1}]\n" + ("s_nop 0" if OPT.get("noslow") else "s_cbranch_vccnz L_slow")]
def bsel(r):
    return (f"v[{r & ~1}:{(r & ~1) + 1}]", "op_sel:[0,1] op_sel_hi:[1,1]" if r & 1 else "op_sel_hi:[1,0]")
def norm_items(e, dbs, sbase, pk=False):
    it = []
    for dg in sorted({d // 2 for d in dbs}):
        it.append((lambda dg=dg: e(f"s_add_u32 s{S_T0}, s{sbase}, {dg*4096}"), 0, 2*dg+1))
        for qb in range(4):
            o0, o1 = Oreg(2*dg, qb), Oreg(2*dg+1, qb)
            for r in range(4):
                for o in (o0, o1):
                    if not pk: it.append((lambda o=o, r=r, qb=qb: e(f"v_mul_f32 v{o+r}, v{o+r}, v{LR[qb]}"), 4, 2*dg+1))
                    elif r % 2 == 0: it.append((lambda o=o, r=r, qb=qb: e(f"v_pk_mul_f32 {vr(o+r, 2)}, {vr(o+r, 2)}, {bsel(LR[qb])[0]} {bsel(LR[qb])[1]}"), 4, 2*dg+1))
            for d, s_ in ((o0, o0), (o0+1, o0+2), (o0+2, o1), (o0+3, o1+2)): it.append((lambda d=d, s_=s_: e(f"v_cvt_pk_bf16_f32 v{d}, v{s_}, v{s_+1}"), 4, 2*dg+1))
            it.append((lambda o0=o0, qb=qb: e.vmem(f"buffer_store_dwordx4 {vr(o0)}, v{V_L16}, {srd(S_WS)}, s{S_T0} offen offset:{qb*1024}{SC}", "CST"), 8, 2*dg+1))
    return it
def emit_items(items, extra=()):
    extra = list(extra)
    for f, c, _ in items:
        f()
        if c == 8:
            for _ in range(2):
                if extra: extra.pop(0)()
    for f in extra: f()
def sm_tail(e, order=range(8)):
    ex, cv = sm_half(e, 1, 1)
    for f in frag_reads(e, 1, 16384, order): f()
    for p in range(8):
        ex[2*p](); ex[2*p+1]()
        if p: cv[p-1]()
    e("s_nop 0"); cv[7]()

S_WOo, S_AC = S_OFF0, S_OFFA
WSLOT = [14, 15, 4, 5, 13, 12, 6, 7, 0, 1, 2, 3, -2, -3, 8, 9, 10, 11]
NWS = len(WSLOT)
def wreg(n, q):
    s_ = WSLOT[n % NWS]
    return ar(s_*16 + q*4) if s_ >= 0 else vr(-s_*16 + q*4)
def wo_load(e, n, q):
    e.vmem(f"buffer_load_dwordx4 {wreg(n, q)}, v{V_L16}, {srd(S_WS)}, s{S_WOo} offen offset:{q*1024}{SC}", ("WO", n))
    if q == 3: e(f"s_add_u32 s{S_WOo}, s{S_WOo}, 4096")

V_TRI = (9, 10, 11, 30)
V_SIG, V_TAGV, V_QA, V_ONE = 12, 13, 14, 15
S_D1, S_D2, S_M = S_FIRST + 2, S_FIRST, S_FIRST + 1
def att_setup_fillers(e, poll_b):
    i, h, w = S_BLK, S_HEAD, S_WAVE
    out = []
    def add(lo, hi, txt):
        for t in txt.split("\n"):
            t = t.strip()
            out.append(Filler(lambda t=t: e(t.replace(" ! ", "\n")), 4, "salu" if t.startswith("s_") else "valu", lo, hi))
    a, b, c, d = V_TRI; pv = poll_b.voff; t = S_M
    lo, hi = 17*64 + 10, 20*64
    add(lo, hi, f"""v_lshrrev_b32 v{d}, 4, v{V_LANE}
    v_lshlrev_b32 v{d}, 2, v{d}
    v_and_b32 v{a}, 15, v{V_LANE}
    v_sub_u32 v{a}, v{a}, v{d}
    v_subrev_u32 v{b}, 1, v{a}
    v_subrev_u32 v{c}, 2, v{a}
    v_subrev_u32 v{d}, 3, v{a}""")
    for r in V_TRI: add(lo, hi, f"v_ashrrev_i32 v{r}, 31, v{r}\nv_and_b32 v{r}, {NEGINF:#x}, v{r}")
    add(lo, hi, f"""s_lshr_b32 s{t}, s{h}, 1
    s_sub_u32 s{S_D1}, 15, s{t}
    s_min_u32 s{t}, s{t}, s{S_D1}
    s_lshl_b32 s{t}, s{t}, 9
    s_add_u32 s{t}, s{t}, {WS_FB}
    v_bfe_u32 v{pv}, v{V_LANE}, 3, 2
    v_lshlrev_b32 v{pv}, 5, v{pv}
    v_and_or_b32 v{pv}, v{V_LANE}, 7, v{pv}
    v_lshlrev_b32 v{pv}, 2, v{pv}
    v_add_u32 v{pv}, s{t}, v{pv}
    s_lshl_b32 s{S_TRANS}, s{i}, 1
    s_add_u32 s{S_TRANS}, s{S_TRANS}, s{w}
    s_sub_u32 s{S_TRANS}, s{S_TRANS}, 1
    s_sub_u32 s{S_D1}, s{S_TRANS}, 1
    s_add_u32 s{S_D2}, s{S_TRANS}, 1
    s_cmp_eq_u32 s{i}, 7 ! s_cselect_b32 s{t}, 16, 99
    s_cmp_eq_u32 s{w}, 0 ! s_cselect_b32 s{t}, s{t}, 99
    s_cmp_lt_u32 s{w}, 2 ! s_cselect_b32 s{S_D1}, s{t}, s{S_D1}
    s_cmp_lt_u32 s{w}, 2 ! s_cselect_b32 s{S_D2}, 99, s{S_D2}
    s_cmp_lt_u32 s{w}, 2 ! s_cselect_b32 s{S_TRANS}, 17, s{S_TRANS}
    s_sub_u32 s{S_VMAXB}, s{S_VMAXB}, 16384
    s_min_u32 s{S_SRCB}, s{S_VMAXB}, s{S_VCLB}
    s_lshr_b32 s{t}, s2, 3
    s_lshl_b32 s{t}, s{t}, 5
    s_and_b32 s{S_FIRST+3}, s2, 7
    s_add_u32 s{t}, s{t}, s{S_FIRST+3}
    s_lshl_b32 s{t}, s{t}, 2
    s_add_u32 s{t}, s{t}, {WS_FB}
    s_sub_u32 s{S_FIRST+3}, 3, s{w}
    s_lshl_b32 s{S_FIRST+3}, s{S_FIRST+3}, 14
    s_add_u32 s{S_FIRST+3}, s{S_FIRST+3}, 131072""")
    lo, hi = 28*64, 31*64
    add(lo, hi, f"""v_mov_b32 v{V_TAGV}, s{S_TAG}
    v_add_u32 v{V_SIG}, s{S_WL}, v{V_LANE}
    v_min_u32 v{V_SIG}, 1, v{V_SIG}
    v_lshlrev_b32 v{V_SIG}, 30, v{V_SIG}
    v_add_u32 v{V_SIG}, s{t}, v{V_SIG}
    v_add_u32 v{V_QA}, s{S_FIRST+3}, v{V_L16}
    v_and_b32 v{V_ONE}, 3, v{V_LANE}
    v_subrev_u32 v{V_ONE}, 1, v{V_ONE}
    v_ashrrev_i32 v{V_ONE}, 31, v{V_ONE}
    v_and_b32 v{V_ONE}, 0x3f803f80, v{V_ONE}
    s_mov_b32 s{S_T2}, 1
    s_mov_b32 s{S_WUV}, 0x07060302
    s_mov_b32 s{S_N}, -1
    s_mov_b32 s{S_DSRD+2}, 0""")
    return out

def Sq(c): return V_S[0] + c*4
def ring(g, j): return A_FB[0] + (g % 4)*16 + j*4
def qk2(tag="FR"):
    out = []
    for c in range(16):
        kb, qb = c // 4, c % 4
        for kk in range(4):
            dg = kk if c % 2 == 0 else 3 - kk
            d = vr(Sq(c))
            cc = d if kk else ("0" if kb < qb else vr(V_TD) if kb == qb else vr(V_TN))
            out.append(M(mf(d, ar(ring(kb, dg)), ar(A_Q + (qb*4+dg)*4), cc), (tag, kb)))
    return out
def pv2(order=(0, 1, 2, 3)):
    o = []; c = 0
    for n, p in enumerate(order):
        for x in range(2):
            for qb in (range(4) if x == 0 else range(3, -1, -1)):
                d = vr(Oreg(2*p + x, qb))
                for kg in ((0, 1) if c % 2 == 0 else (1, 0)):
                    o.append(M(mf(d, ar(ring(n, x*2 + kg)), vr(Preg(kg, qb)), d), ("FR", 4 + n)))
                c += 1
    s_ = [M(mf(ar(A_L + qb*4), ar(A_ONE), vr(Preg(kg, qb)), ar(A_L + qb*4))) for qb in range(4) for kg in range(2)]
    return o, s_
def kreads(e, g, tag="FR"): return [lambda j=j: e.ds(f"ds_read_b128 {ar(ring(g, j))}, v{V_RD} offset:{g*4096 + j*1024}", (tag, g)) for j in range(4)]
def vreads(e, n, p): return [lambda j=j: e.ds(f"ds_read_b128 {ar(ring(n, j))}, v{V_RD} offset:{16384 + (j % 2)*8192 + (2*p + j // 2)*1024}", ("FR", 4 + n)) for j in range(4)]
def cvt2(c, hh): return f"v_cvt_pk_bf16_f32 v{Preg(c // 8, c % 4) + 2*((c // 4) % 2) + hh}, v{Sq(c) + 2*hh}, v{Sq(c) + 2*hh + 1}"
def exp2(k): return f"v_exp_f32 v{V_S[0] + k}, v{V_S[0] + k}"
def drain_head(e, order):
    e.need(lg=[("FR", 1)])
    rd_ = [f for n, p in enumerate(order) for f in vreads(e, n, p)]
    for f in rd_[:8]: f()
    for c in range(1, 16):
        e(cvt2(c, 0)); e(cvt2(c, 1))
    for f in rd_[8:]: f()

def attention(e, poll_b, poll_c, zero_hi):
    i, h, w = S_BLK, S_HEAD, S_WAVE
    T = lambda t: (lambda: e(t))
    A = [lambda j=j: att_dma(e, 0, j) for j in range(8)]; B = [lambda j=j: att_dma(e, 1, j) for j in range(8)]; D = [lambda j=j: d_load(e, j) for j in range(8)]
    e(f"v_add_u32 v{V_RD}, 65536, v{V_L16}")
    e.need(vm=[("KV", 0), "HST", "RTST"], lg=["QW"])
    e("s_barrier")
    for g in range(2):
        for f in kreads(e, g, "F0"): f()
    e.vmem(f"buffer_store_dword v{V_TAGV}, v{V_SIG}, {srd(S_WS)}, 0 offen sc1", "SIG")
    MS = [f"s_add_u32 s{S_N}, s{S_N}, 1", f"s_cmp_eq_u32 s{S_N}, s{S_D1}\ns_cselect_b32 s{S_M}, -1, 0", f"s_cmp_eq_u32 s{S_N}, s{S_D2}\ns_cselect_b32 s{S_M}, -1, s{S_M}",
          f"v_and_b32 v{V_TD}, s{S_M}, v{V_TRI[0]}\nv_and_b32 v{V_TD+1}, s{S_M}, v{V_TRI[1]}", f"v_and_b32 v{V_TD+2}, s{S_M}, v{V_TRI[2]}\nv_and_b32 v{V_TD+3}, s{S_M}, v{V_TRI[3]}",
          f"s_and_b32 s{S_M}, s{S_M}, {NEGINF:#x}\nv_mov_b32 v{V_TN}, s{S_M}\nv_mov_b32 v{V_TN+1}, s{S_M}", f"v_mov_b32 v{V_TN+2}, s{S_M}\nv_mov_b32 v{V_TN+3}, s{S_M}"]
    for t in MS: e(t)
    e(f"s_xor_b32 s{S_LA}, s{S_LA}, 32768")
    XRD = f"v_xor_b32 v{V_RD}, 32768, v{V_RD}"
    CV0 = cvt2(0, 0) + "\n" + cvt2(0, 1)
    def itstamp(dn=0):
        if OPT.get("itst"):
            e(f"s_memtime s[4:5]\nv_subrev_u32 v5, {14 - dn}, v{V_LANE}\nv_cmp_eq_u32 vcc, s{S_N}, v5\ns_waitcnt lgkmcnt(0)\nv_mov_b32 v5, s4\nv_cndmask_b32 v{V_STAMP}, v{V_STAMP}, v5, vcc")
    stamp(e, 7)
    init = [f"v_accvgpr_write_b32 a{A_L + r}, 0" for r in range(16)] + [f"v_accvgpr_write_b32 a{A_Z + r}, 0" for r in range(4)]
    init += [f"v_accvgpr_write_b32 a{A_ONE + r}, v{V_ONE}" for r in range(4)] + zero_hi
    for _ in range(8): e(init.pop())
    gaps = {}; ne = 0
    kr = kreads(e, 2, "F0") + kreads(e, 3, "F0")
    pre = [PREP0] + PREP + [XRD]
    for k in range(64):
        g = gaps[k] = []
        if k % 2 == 0 and kr: g.append(kr.pop(0)); g.append(T(init.pop()))
        elif k >= 52 and k % 2 == 0: g.append(T(pre.pop(0)))
        elif init: g.append(T(init.pop())); g.append(T(init.pop()))
        else: g.append(T(exp2(ne))); ne += 1
    assert not init and not pre
    gaps[63].insert(0, lambda: e.wait_all())
    run(e, qk2("F0"), gaps)
    e("s_barrier")
    itstamp()
    mem = [f for p in zip(A, kreads(e, 0) + kreads(e, 1)) for f in p] + B[:4]
    while mem or ne < 64:
        if mem: mem.pop(0)()
        for _ in range(3):
            if ne < 64: e(exp2(ne)); ne += 1
    for t in MS: e(t)
    e(CV0)
    e.need(lg=[("FR", 0)])
    top = [("FR", 1)]*4
    assert e.lgkm == top, e.lgkm
    e("s_branch L_special")
    e(".p2align 6")
    e.label("L_body")
    def loop_body(first):
        e.lgkm = list(top)
        gaps = {k: [] for k in range(152)}
        rds = kreads(e, 2) + kreads(e, 3) + ([] if first else vreads(e, 0, 0) + vreads(e, 1, 1))
        for n, f in enumerate(rds): gaps[4*n].append(f)
        for n, f in enumerate(kreads(e, 0) + kreads(e, 1)): gaps[100 + 4*n].append(f)
        for n, f in enumerate(B[4:] + D): gaps[2 + 4*n].append(f)
        for n, f in enumerate(A + B[:4]): gaps[98 + 4*n].append(f)
        if not first:
            for n, f in enumerate(vreads(e, 2, 2) + vreads(e, 3, 3)): gaps[64 + 2*n].append(f)
            for c in range(1, 16):
                gaps[4*(c-1)].append(T(cvt2(c, 0)))
                gaps[1 + 2*((c - 1)//2)].append(T(cvt2(c, 1)))
        for k in range(64): gaps[17 + 2*k].append(T(exp2(k)))
        gaps[58].append(lambda: e.vmem(poll_b.ld, "KV"))
        gaps[62].append(T(PREP0))
        for n, t in enumerate(PREP + [XRD] + MS[:3]): gaps[80 + 2*n].append(T(t))
        for n, t in enumerate(MS[3:]): gaps[132 + 4*n].append(T(t))
        gaps[146].append(T(CV0)); gaps[150].append(T(f"s_cmp_eq_u32 s{S_N}, s{S_T2}"))
        gaps[95].insert(0, lambda: e.wait_all())
        gaps[95].append(lambda: (e("s_barrier"), itstamp(1)))
        o, s_ = pv2()
        if first:
            zo, zl = pv_mfmas(1, zero=True)
            o = [M("")]*32 + zo; s_ = zl + [M("")]*4
        run(e, qk2() + o + s_ + d_mfmas(), gaps, nxt=("FR", 0))
        assert e.lgkm == top, e.lgkm
        e("s_cbranch_scc0 L_body")
    loop_body(False)
    e.label("L_special")
    e(f"""s_cmp_lt_u32 s{S_N}, 3
    s_cselect_b32 s{S_T2}, 3, 17
    s_min_u32 s{S_T2}, s{S_T2}, s{S_TRANS}
    s_cmp_eq_u32 s{S_N}, 3
    s_cbranch_scc0 L_late""")
    e(poll_b.test())
    e("s_cbranch_scc0 L_spin_b")
    e.label("L_ok_b")
    e(f"s_mov_b32 s{S_DSRD+2}, {WS_END}\ns_mov_b32 s{S_DINC}, 4096")
    e.label("L_late")
    e(f"s_cmp_eq_u32 s{S_N}, s{S_D2}\ns_cbranch_scc1 L_first")
    e(f"s_cmp_eq_u32 s{S_N}, s{S_TRANS}\ns_cbranch_scc0 L_body")
    e(f"s_cmp_eq_u32 s{S_N}, 17\ns_cbranch_scc0 L_trans")
    LRD = [f"v_accvgpr_read_b32 v{LR[0]}, a{A_L}\nv_accvgpr_read_b32 v{LR[1]}, a{A_L+4}", f"v_accvgpr_read_b32 v{LR[2]}, a{A_L+8}\nv_accvgpr_read_b32 v{LR[3]}, a{A_L+12}"]
    def cold():
        e.label("L_trans")
        e.lgkm = list(top); e.vm = ["KV"]*13
        qr = [lambda j=j: e.ds(f"ds_read_b128 {ar(A_Q + j*4)}, v{V_QA} offset:{j*1024}", "QS") for j in range(16)]
        rcp = [f"v_rcp_f32 v{LR[qb]}, v{LR[qb]}" for qb in range(4)]
        drain_head(e, (0, 1, 2, 3))
        o, s_ = pv2()
        gaps = {k: [f] for k, f in enumerate(B[4:] + D + [lambda: e.vmem(poll_b.ld, "KV")])}
        for k, t in enumerate(LRD + check_lines(0, S_QT) + rcp): gaps[13 + k] = [T(t)]
        items = norm_items(e, range(8), S_CTXLO)
        XB = f"v_xor_b32 v{V_RD}, {32768 + 65536}, v{V_RD}"
        def fill(g, k, left):
            while items and items[0][1] <= left and 8 + 8*(items[0][2] + 1) - 1 + 5 <= k:
                f, c, _ = items.pop(0); g.append(f); left -= c
        gaps[24] = [T(XB)]
        for k in range(25, 72):
            gaps[k] = []; fill(gaps[k], k, 8)
        run(e, s_ + o, gaps)
        def post():
            e(PREP0)
            for t in PREP: e(t.replace(f"s{S_T0}", f"s{S_T5}"))
            e.need(vm=["KV"])
            e("s_barrier")
            itstamp()
            mem = A + B[:4]; lds = qr + kreads(e, 0) + kreads(e, 1)
            gaps = {k: [mem.pop(0)] if k % 4 == 0 else [lds.pop(0), lds.pop(0)] for k in range(16)}
            run(e, d_mfmas(), gaps)
            extra = []
            for f in mem: extra += [f, NOP]
            emit_items(items, extra) if items else [(f(), e("s_nop 0")) for f in mem]
            del items[:]
            for t in MS: e(t)
            e(f"s_mov_b32 s{S_TRANS}, 17")
            e.need(lg=[("FR", 0)])
            assert e.lgkm == top, e.lgkm
            e("s_branch L_special")
        post()
        e.label("L_first")
        e(f"s_cmp_eq_u32 s{S_N}, 17\ns_cbranch_scc1 L_fzero")
        loop_body(True)
        e("s_branch L_special")
        e.label("L_fzero")
        for r in list(range(V_O, V_O + 128)) + list(range(V_S[0], V_S[0] + 64)) + [Preg(0, 0), Preg(0, 0) + 1]: e(f"v_mov_b32 v{r}, 0")
        for r in range(16): e(f"v_accvgpr_write_b32 a{A_L + r}, 0")
        e("s_branch L_final")
        e.label("L_ret0")
        e.lgkm = []; e.vm = []
        for t in rcp: e(t)
        e(XB)
        emit_items(norm_items(e, range(8), S_CTXLO))
        post()
    e.cold = cold
    e.label("L_final")
    stamp(e, 8)
    tw, trd, tl, tlr = V_TMP[0:4]
    e(f"""s_lshl_b32 s{S_T0}, s{w}, 17
    s_lshl_b32 s{S_AC}, s{h}, 19
    s_add_u32 s{S_AC}, s{S_AC}, s{S_T0}
    s_add_u32 s{S_AC}, s{S_AC}, {WS_CTX}
    s_lshl_b32 s{S_WOo}, s{i}, 19
    s_add_u32 s{S_WOo}, s{S_WOo}, s{S_T0}
    s_add_u32 s{S_WOo}, s{S_WOo}, {WS_WOF}
    s_and_b32 s{S_T0}, s{w}, 1
    s_lshl_b32 s{S_T0}, s{S_T0}, 14
    s_lshr_b32 s{S_T1}, s{w}, 1
    s_lshl_b32 s{S_T1}, s{S_T1}, 16
    s_add_u32 s{S_T0}, s{S_T0}, s{S_T1}
    v_add_u32 v{tw}, s{S_T0}, v{V_L16}
    v_xor_b32 v{trd}, {65536 + 16384}, v{tw}
    s_add_u32 s{S_T0}, s{S_WL}, {144*1024}
    v_add_u32 v{tl}, s{S_T0}, v{V_L16}
    v_xor_b32 v{tlr}, 3072, v{tl}
    s_cmp_ge_u32 s{w}, 2
    s_cbranch_scc1 L_mergeB""")
    for role in range(2):
        keep = list(range(4)) if role == 0 else list(range(4, 8))
        send = list(range(4, 8)) if role == 0 else list(range(4))
        if role == 1: e.label("L_mergeB")
        e.lgkm = list(top); e.vm = ["KV"]*13
        order = (2, 3, 0, 1) if role == 0 else (0, 1, 2, 3)
        drain_head(e, order)
        o, s_ = pv2(order)
        gaps = {2*k: [lambda k=k: wo_load(e, k // 4, k % 4)] for k in range(8)}
        for k in range(8): gaps[45 + 3*k] = [lambda k=k: wo_load(e, 2 + k // 4, k % 4)]
        gaps[17] = [T(LRD[0])]; gaps[18] = [T(LRD[1])]
        gaps[19] = [lambda: e.ds(f"ds_write_b128 v{tl}, {vr(LR[0])}")]
        for n in range(16): gaps[23 + 3*n] = [lambda n=n: e.ds(f"ds_write_b128 v{tw}, {vr(V_O + send[0]*16 + n*4)} offset:{n*1024}")]
        if OPT.get("fst"): stamp(e, 14)
        run(e, s_ + o, gaps)
        if OPT.get("fst"): stamp(e, 15)
        e.wait_all(vm=False)
        e("s_barrier")
        if OPT.get("fst"): stamp(e, 16)
        e.ds(f"ds_read_b128 {vr(V_TMP[4])}, v{tlr}", "ML")
        for n in range(16):
            e.ds(f"ds_read_b128 {vr(V_S[0] + n*4)}, v{trd} offset:{n*1024}", ("MO", n // 4))
            if n % 2: wo_load(e, 4 + n // 8, (n // 2) % 4)
        e.need(lg=["ML"])
        for qb in range(4): e(f"v_add_f32 v{LR[qb]}, v{LR[qb]}, v{V_TMP[4] + qb}")
        for t in check_lines(1 + role, S_QTHI): e(t)
        for n in range(16):
            e.need(lg=[("MO", n // 4)])
            for r in (0, 2):
                o = V_O + keep[0]*16 + n*4 + r
                e(f"v_pk_add_f32 {vr(o, 2)}, {vr(o, 2)}, {vr(V_S[0] + n*4 + r, 2)}")
        e.label(f"L_ret{1 + role}")
        for q in range(4): wo_load(e, 6, q)
        if OPT.get("fst"): stamp(e, 17)
        for qb in range(4): e(f"v_rcp_f32 v{LR[qb]}, v{LR[qb]}")
        emit_items(norm_items(e, keep, S_CTXHI, pk=True))
        if role == 0: e("s_branch L_attdone")
    e.label("L_attdone")
    stamp(e, 9)

def slow_path(e):
    M = V_P[1]; AL = V_P[1] + 4; T = V_P[1] + 8; QI = V_P[1] + 12; NI = V_P[1] + 13
    u, nu, ko, vo = S_T0, S_T1, S_T3, S_T5
    e.label("L_slow")
    e.lgkm = []; e.vm = []
    e("s_waitcnt vmcnt(0) lgkmcnt(0)")
    e(f"""s_lshl_b32 s{nu}, s{S_CNT}, 1
    s_add_u32 s{nu}, s{nu}, 2
    s_lshl_b32 s{ko}, s{S_HEAD}, 19
    s_add_u32 s{vo}, s{ko}, {WS_V}
    s_add_u32 s{ko}, s{ko}, {WS_K}
    s_lshl_b32 s{S_CNT}, s{S_CNT}, 6
    v_lshrrev_b32 v{T}, 4, v{V_LANE}
    v_lshlrev_b32 v{T}, 2, v{T}
    v_and_b32 v{QI}, 15, v{V_LANE}
    v_sub_u32 v{QI}, v{QI}, v{T}
    v_add_u32 v{QI}, s{S_CNT}, v{QI}
    v_mov_b32 v{NI}, {NEGINF:#x}
    s_mov_b32 s{u}, 0""")
    for r in range(128): e(f"v_mov_b32 v{V_O + r}, 0")
    for qb in range(4): e(f"v_mov_b32 v{M+qb}, v{NI}\nv_mov_b32 v{LR[qb]}, 0")
    e.label("L_slowl")
    def ld8(so):
        for j in range(8):
            if j == 4: e(f"s_add_u32 s{so}, s{so}, 4096")
            e.vmem(f"buffer_load_dwordx4 {ar(A_FB[1] + j*4)}, v{V_L16}, {srd(S_WS)}, s{so} offen offset:{(j%4)*1024}{SC}", "SL")
        e(f"s_add_u32 s{so}, s{so}, 4096")
    ld8(ko)
    e.wait_all()
    for kb2 in range(2):
        for dg in range(4):
            for qb in range(4):
                d = vr(Sreg(0, kb2, qb))
                e(mf(d, ar(A_FB[1] + (kb2*4+dg)*4), ar(A_Q + (qb*4+dg)*4), d if dg else "0"))
    e("s_nop 7")
    ld8(vo)
    for kb2 in range(2):
        for qb in range(4):
            for r in range(4):
                s = Sreg(0, kb2, qb) + r
                e(f"v_cmp_gt_i32 vcc, {16*kb2 + r - 16*qb}, v{QI}\ns_nop 1\nv_cndmask_b32 v{s}, v{s}, v{NI}, vcc")
    e(f"v_subrev_u32 v{QI}, 32, v{QI}")
    for qb in range(4):
        a, b = Sreg(0, 0, qb), Sreg(0, 1, qb)
        e(f"""v_max3_f32 v{T}, v{a}, v{a+1}, v{a+2}
        v_max3_f32 v{T}, v{T}, v{a+3}, v{b}
        v_max3_f32 v{T}, v{T}, v{b+1}, v{b+2}
        v_max3_f32 v{T}, v{T}, v{b+3}, v{M+qb}
        v_mov_b32 v{T+1}, v{T}
        s_nop 1
        v_permlane32_swap_b32 v{T}, v{T+1}
        v_max_f32 v{T}, v{T}, v{T+1}
        v_mov_b32 v{T+1}, v{T}
        s_nop 1
        v_permlane16_swap_b32 v{T}, v{T+1}
        v_max_f32 v{T}, v{T}, v{T+1}
        v_sub_f32 v{AL+qb}, v{M+qb}, v{T}
        v_mov_b32 v{M+qb}, v{T}
        v_exp_f32 v{AL+qb}, v{AL+qb}""")
        for s in list(range(a, a+4)) + list(range(b, b+4)):
            e(f"v_sub_f32 v{s}, v{s}, v{T}")
        for s in list(range(a, a+4)) + list(range(b, b+4)):
            e(f"v_exp_f32 v{s}, v{s}")
        e(f"v_mul_f32 v{LR[qb]}, v{LR[qb]}, v{AL+qb}")
        for s in list(range(a, a+4)) + list(range(b, b+4)):
            e(f"v_add_f32 v{LR[qb]}, v{LR[qb]}, v{s}")
        p = Preg(0, qb)
        e(f"v_cvt_pk_bf16_f32 v{p}, v{a}, v{a+1}\nv_cvt_pk_bf16_f32 v{p+1}, v{a+2}, v{a+3}\nv_cvt_pk_bf16_f32 v{p+2}, v{b}, v{b+1}\nv_cvt_pk_bf16_f32 v{p+3}, v{b+2}, v{b+3}")
        for db in range(8):
            for r in range(4): e(f"v_mul_f32 v{Oreg(db, qb)+r}, v{Oreg(db, qb)+r}, v{AL+qb}")
    e.wait_all()
    e("s_nop 1")
    for db in range(8):
        for qb in range(4):
            d = vr(Oreg(db, qb))
            e(mf(d, ar(A_FB[1] + db*4), vr(Preg(0, qb)), d))
    e(f"s_add_u32 s{u}, s{u}, 1\ns_cmp_lt_u32 s{u}, s{nu}\ns_nop 7\ns_cbranch_scc1 L_slowl")
    for qb in range(4):
        e(f"""v_mov_b32 v{T}, v{LR[qb]}
        s_nop 1
        v_permlane32_swap_b32 v{LR[qb]}, v{T}
        v_add_f32 v{LR[qb]}, v{LR[qb]}, v{T}
        v_mov_b32 v{T}, v{LR[qb]}
        s_nop 1
        v_permlane16_swap_b32 v{LR[qb]}, v{T}
        v_add_f32 v{LR[qb]}, v{LR[qb]}, v{T}""")
    e(f"s_cmp_eq_u32 s{S_RET}, 0\ns_cbranch_scc1 L_ret0\ns_cmp_eq_u32 s{S_RET}, 1\ns_cbranch_scc1 L_ret1\ns_branch L_ret2")


def phase_d(e, poll_c):
    qt, mt, w = S_HEAD, S_BLK, S_WAVE
    V_XO, V_X, V_G = 4, 8, 17
    CRS = [64, 80, 96, 112, 208, 224, 240][:OPT.get('ncr', 5)]; NCR = len(CRS)
    V_AS, V_AD = 128, 192
    t0, t1 = 24, 25
    S_XO, S_XO2 = S_XNB, S_HST
    V_WA = (V_TMP[0], V_TMP[2]); V_RA = (t0, V_TMP[3], V_G, V_TMP[4])
    e(f"""v_lshrrev_b32 v{t0}, 5, v{V_LANE}
    v_lshlrev_b32 v{t0}, 6, v{t0}
    v_xor_b32 v{V_WA[0]}, v{V_WA[0]}, v{t0}
    v_xor_b32 v{V_WA[1]}, 128, v{V_WA[0]}""")
    for j in range(16):
        e.ds(f"ds_write_b128 v{V_WA[(j // 4) % 2]}, {ar(A_DACC + j*4)} offset:{32768 + ((j%4)*4 + j//4)*1024}", "DW")
        if j < OPT.get("wpre", 12): wo_load(e, 7 + j // 4, j % 4)
    e(f"""v_lshrrev_b32 v{t0}, 3, v{V_LANE}
    v_and_b32 v{t1}, 7, v{V_LANE}
    v_lshlrev_b32 v{V_XO}, 10, v{t0}
    v_lshl_add_u32 v{V_XO}, v{t1}, 4, v{V_XO}
    v_lshlrev_b32 v{t0}, 4, v{t0}
    v_lshl_add_u32 v{t0}, v{t1}, 9, v{t0}
    s_lshl_b32 s{S_XO}, s{qt}, 16
    s_lshl_b32 s{S_T0}, s{w}, 14
    s_add_u32 s{S_XO}, s{S_XO}, s{S_T0}
    s_lshl_b32 s{S_T1}, s{mt}, 7
    s_add_u32 s{S_XO}, s{S_XO}, s{S_T1}
    s_add_u32 s{S_XO2}, s{S_XO}, 8192
    v_and_b32 v{t1}, 3, v{V_LANE}
    v_lshlrev_b32 v{t1}, 6, v{t1}
    v_xor_b32 v{t0}, v{t0}, v{t1}
    s_lshl_b32 s{S_T0}, s{w}, 12
    v_add_u32 v{V_RA[0]}, s{S_T0}, v{t0}
    v_xor_b32 v{V_RA[1]}, 128, v{V_RA[0]}
    v_add_u32 v{V_RA[2]}, 65536, v{V_RA[0]}
    v_add_u32 v{V_RA[3]}, 65536, v{V_RA[1]}""")
    if OPT.get("pollw", 1):
        v = poll_c.voff
        e(f"""s_lshr_b32 s{S_T0}, s{qt}, 1
        s_sub_u32 s{S_T1}, 15, s{S_T0}
        s_min_u32 s{S_T0}, s{S_T0}, s{S_T1}
        s_lshl_b32 s{S_T0}, s{S_T0}, 9
        s_lshl_b32 s{S_T1}, s{w}, 3
        s_add_u32 s{S_T0}, s{S_T0}, s{S_T1}
        s_add_u32 s{S_T0}, s{S_T0}, {WS_FC}
        v_and_b32 v{v}, 3, v{V_LANE}
        v_lshlrev_b32 v{v}, 7, v{v}
        v_and_or_b32 v{v}, v{V_LANE}, 4, v{v}
        v_add_u32 v{v}, s{S_T0}, v{v}""")
    else: poll32_addr(e, poll_c.voff, WS_FC)
    if OPT.get("fst"): stamp(e, 18)
    e.need(vm=["CST"]); e.wait_all(vm=False)
    if OPT.get("fst"): stamp(e, 19)
    e("s_barrier")
    if OPT.get("fst"): stamp(e, 20)
    signal(e, sig_lin(WS_FC), 26)
    for sw in range(4):
        for mb in range(4): e.ds(f"ds_read_b128 {vr(V_AD + (sw*4+mb)*4)}, v{V_RA[(sw // 2)*2 + mb // 2]} offset:{32768 + (sw % 2)*16384 + (mb % 2)*256}", ("R", sw))
    for it in range(2):
        e.vmem(f"buffer_load_dwordx4 {vr(V_X + 4*it)}, v{V_XO}, {srd(S_X)}, s{(S_XO, S_XO2)[it]} offen", "X")
    wl = [lambda n=n, q=q: wo_load(e, n, q) for n in range(7, NWS) for q in range(4)][OPT.get("wpre", 12):]
    cnt = [0]
    def V(t):
        e(t); cnt[0] += 1
        if cnt[0] % 6 == 0 and wl: wl.pop(0)()
    def rnd(base, pk):
        for j in range(8): V(f"v_cvt_pk_bf16_f32 v{pk+j}, v{base+2*j}, v{base+2*j+1}")
        for j in range(8): V(f"v_lshlrev_b32 v{base+2*j}, 16, v{pk+j}"); V(f"v_and_b32 v{base+2*j+1}, 0xffff0000, v{pk+j}")
    def red(base, tag):
        e.need(lg=[(tag, 1)])
        for r in range(0, 16, 2): V(f"v_pk_add_f32 {vr(base+r, 2)}, {vr(base+r, 2)}, {vr(base+16+r, 2)}")
        e.need(lg=[(tag, 2)])
        for r in range(0, 16, 2): V(f"v_pk_add_f32 {vr(base+r, 2)}, {vr(base+r, 2)}, {vr(base+32+r, 2)}")
        e.need(lg=[(tag, 3)])
        for r in range(0, 16, 2): V(f"v_pk_add_f32 {vr(base+r, 2)}, {vr(base+r, 2)}, {vr(base+48+r, 2)}")
    T = V_AD + 16; PK = V_AD + 32
    red(V_AD, "R"); rnd(V_AD, PK)
    for r in range(16): V(f"v_mul_f32 v{T+r}, 0xbfb8aa3b, v{V_AD+r}")
    for r in range(16): V(f"v_exp_f32 v{T+r}, v{T+r}")
    for r in range(16): V(f"v_add_f32 v{T+r}, 1.0, v{T+r}")
    for r in range(16): V(f"v_rcp_f32 v{T+r}, v{T+r}")
    for r in range(16): V(f"v_mul_f32 v{V_AD+r}, v{V_AD+r}, v{T+r}")
    rnd(V_AD, PK)
    while len(wl) > 8: wl.pop(0)()
    poll_c.issue()
    while wl: wl.pop(0)()
    stamp(e, 10); poll_c.check(); stamp(e, 11)
    def sw_(j): e.ds(f"ds_write_b128 v{V_WA[(j // 4) % 2]}, {vr(V_AS + j*4)} offset:{((j%4)*4 + j//4)*1024}", "SW")
    def c_load(n, q):
        e.vmem(f"buffer_load_dwordx4 {vr(CRS[n % NCR] + q*4)}, v{V_L16}, {srd(S_WS)}, s{S_AC} offen offset:{q*1024}{SC}", ("C", n))
        if q == 3: e(f"s_add_u32 s{S_AC}, s{S_AC}, 4096")
    if OPT.get("dchain", 0):
        for n in range(2):
            for q in range(4): c_load(n, q)
        for n in range(0, 32, 2):
            ld = []
            for t in range(2):
                if n + 2 + t < 32: ld += [lambda q=q, t=t: c_load(n + 2 + t, q) for q in range(4)]
            for t in range(2):
                if n >= 2 and n + NWS - 2 + t < 32: ld += [lambda q=q, t=t: wo_load(e, n + NWS - 2 + t, q) for q in range(4)]
            for _ in range(min(4, len(ld))): ld.pop(0)()
            e.need(vm=[("C", n), ("C", n + 1), ("WO", n), ("WO", n + 1)])
            for k in range(32):
                c = k // 2; mb = c // 4; qb = c % 4 if mb % 2 == 0 else 3 - c % 4
                t = k % 2 if c % 2 == 0 else 1 - k % 2
                d = vr(V_AS + (mb*4 + qb)*4)
                e(mf(d, wreg(n + t, mb), vr(CRS[(n + t) % NCR] + qb*4), d if (n or k % 2) else "0"))
                if k % 2 == 0 and ld: ld.pop(0)()
    else:
        for n in range(NCR - 1):
            for q in range(4): c_load(n, q)
        for n in range(32):
            ld = []
            if n + NCR - 1 < 32: ld += [lambda q=q: c_load(n + NCR - 1, q) for q in range(4)]
            if n >= 1 and n + NWS - 1 < 32: ld += [lambda q=q: wo_load(e, n + NWS - 1, q) for q in range(4)]
            e.need(vm=[("C", n), ("WO", n)])
            for k in range(16):
                mb, qb = k // 4, k % 4
                d = vr(V_AS + k*4)
                e(mf(d, wreg(n, mb), vr(CRS[n % NCR] + qb*4), d if n else "0"))
                if k % 2 == 0 and ld: ld.pop(0)()
                if n == 31 and k >= 8: sw_(k - 8)
    stamp(e, 12)
    for j in range(8, 16):
        if j >= 12: e("s_nop 1")
        sw_(j)
    e.need(vm=["X"])
    for j in range(8): e(f"v_lshlrev_b32 v{T+2*j}, 16, v{V_X+j}"); e(f"v_and_b32 v{T+2*j+1}, 0xffff0000, v{V_X+j}")
    e.wait_all(vm=False)
    e("s_barrier")
    for sw in range(4):
        for mb in range(4): e.ds(f"ds_read_b128 {vr(V_AS + (sw*4+mb)*4)}, v{V_RA[(sw // 2)*2 + mb // 2]} offset:{(sw % 2)*16384 + (mb % 2)*256}", ("RS", sw))
    red(V_AS, "RS")
    for r in range(0, 16, 2): e(f"v_pk_fma_f32 {vr(V_AS+r, 2)}, {vr(V_AS+r, 2)}, {vr(V_AD+r, 2)}, {vr(T+r, 2)}")
    for j in range(8): e(f"v_cvt_pk_bf16_f32 v{PK+j}, v{V_AS+2*j}, v{V_AS+2*j+1}")
    for it in range(2):
        e.vmem(f"buffer_store_dwordx4 {vr(PK + 4*it)}, v{V_XO}, {srd(S_OUT)}, s{(S_XO, S_XO2)[it]} offen{OPT.get('outsc', SC)}", "OUT")
    e("s_cmp_lg_u32 s2, 0")
    e("s_cbranch_scc1 L_nobump")
    signal(e, f"s_mov_b32 s{S_CNT}, {WS_EP}", 26)
    e.label("L_nobump")
    stamp(e, 13)

HEADER = open("cdna_kernels/" + NAME + ".s.ref").read().split("; Override launch geometry")[0]
def build():
    e = E(); body(e)
    n = 0
    def policy(roleB, trans, slow, spin):
        def d(lb, site, c):
            if lb == "L_body": return (c == 0) if site < 2 else True
            if lb == "L_first": return trans and c == 2
            if lb == "L_fzero": return trans == 2
            if lb == "L_late": return c != 1
            if lb == "L_trans": return trans and c == 0
            if lb == "L_mergeB": return roleB
            if lb == "L_slow": return slow
            if lb == "L_slowl": return c % 2 == 0
            if lb == "L_ret0": return trans and c == 0
            if lb == "L_ret1": return not roleB
            if lb.startswith("L_spin_"): return spin and c == 0
            if lb.startswith("L_ok_"): return c >= 1
            if lb.startswith("L_spinl_"): return True
            return False
        return d
    for cfg in ((0, 0, 0, 0), (1, 1, 0, 0), (0, 0, 1, 1), (1, 1, 1, 1), (1, 2, 0, 0)):
        tr = chk.trace(e.L, policy(*cfg))
        assert "s_endpgm" in tr[-1], cfg
        n += chk.check(tr, f"path{cfg}")
    if n: print(f"{n} hazards", file=sys.stderr)
    return "\n".join([HEADER.rstrip("\n"), "; @launch grid=(256,1,1) block=(256,1,1) lds=163840",
        '.amdgcn_target "amdgcn-amd-amdhsa--gfx950"\n.text', e.text(), '.section .rodata,"a"\n.p2align 6',
        f""".amdhsa_kernel {KN}
  .amdhsa_next_free_vgpr 512
  .amdhsa_next_free_sgpr 102
  .amdhsa_accum_offset 256
  .amdhsa_group_segment_fixed_size 0
  .amdhsa_kernarg_size 104
  .amdhsa_user_sgpr_count 2
  .amdhsa_user_sgpr_kernarg_segment_ptr 1
  .amdhsa_system_sgpr_workgroup_id_x 1
.end_amdhsa_kernel
"""])
if __name__ == "__main__":
    open(sys.argv[1], "w").write(build())
```

```python
import sys, math, os, struct
from emit import E, Filler
import check as chk

NAME = "recurrent_scan__compressed_kv_cla__glu_gated_geglu__prompt"
KN = NAME + "_kernel"
MB = 1 << 20
OPT = eval(os.environ.get("OPT", "{}"))
STAMPS = os.environ.get("STAMPS")
POLLALL = OPT.get("pollall", 0)
WS_XN, WS_H, WS_WDF, WS_WOF, WS_CTX, WS_K, WS_V, WS_END = 0, 2*MB, 9*MB, 12*MB, 16*MB, 32*MB, 48*MB, 64*MB
fb = lambda x: struct.unpack("<I", struct.pack("<f", x))[0]

S_X, S_CKV, S_WQ, S_WUK, S_WUV, S_WO, S_WG, S_WU, S_WD, S_OUT, S_DBG, S_WS = [8 + 4*i for i in range(12)]
S_HSRD, S_ASRD, S_BSRD = 56, 60, 64
S_WAVE, S_HEAD, S_BLK, S_ROT = 68, 69, 70, 71
S_T0, S_T1, S_T2, S_T3, S_T4, S_T5 = 72, 73, 74, 75, 76, 77
S_WL, S_WA = 78, 79
S_OFF0, S_OFFA, S_AROW, S_KVST, S_XNB, S_HST = 80, 81, 82, 83, 84, 85
S_CTXLO, S_CTXHI = 86, 87
S_SRCA, S_SRCB, S_LA, S_LB, S_VMAXB, S_VCLB = 88, 89, 90, 91, 92, 93
S_N, S_EVT, S_TRANS, S_N0 = 94, 95, 96, 97
S_QT, S_QTHI, S_RET, S_CNT = 98, 99, 100, 101
S_ROTB, S_DW, S_DH, S_DINC = 48, 49, 50, 51
S_GJ = 7
S_GSRD = S_CKV
S_DSRD = S_HSRD
S_FL = 6
def srd(n): return f"s[{n}:{n+3}]"
def mf(d, a, b, c): return f"v_mfma_f32_16x16x32_bf16 {d}, {a}, {b}, {c}"
def vr(n, k=4): return f"v[{n}:{n+k-1}]"
def ar(n, k=4): return f"a[{n}:{n+k-1}]"

V_LANE, V_STAMP, V_L16 = 1, 2, 3
V_TR = (4, 5, 6, 7)
V_WOFF = (8, 9, 10, 11)
V_AOFF = (12, 13)
V_WOFG = (12, 13)
V_ARD = (14, 15)
V_TMP = list(range(16, 32))
V_POLL = 0
V_WF, V_PK, V_ACC = 32, 64, 128
def acc(db, rb): return V_ACC + (db*4 + rb)*4
def actf(ks, rb): return (ks*4 + rb)*4
V_RD = 4
V_TD, V_TN, V_LIM = 16, 20, 24
V_P, V_S, V_O = (32, 48), (64, 96), 128
A_Q, A_FB, A_DACC, A_L, A_ONE, A_DOP = 0, (64, 96), 128, 192, 208, 224
QSCALE = fb(math.log2(math.e) / math.sqrt(128.0))
NEGINF = 0xff800000
def Sreg(buf, kb2, qb): return V_S[buf] + (kb2*4 + qb)*4
def Preg(buf, qb): return V_P[buf] + qb*4
def Oreg(db, qb): return V_O + (db*4 + qb)*4
SC = " sc1"

def stamp(e, idx):
    if not STAMPS: return
    if OPT.get("padph") and idx not in OPT["padph"]: return
    if OPT.get("padat"):
        if idx == OPT["padat"][0]:
            e(f"s_nop 1\nv_readlane_b32 s5, v{V_STAMP}, 0\ns_add_u32 s{S_CNT}, s5, {OPT['padat'][1]*100}")
            e.label("L_padat")
            e(f"s_memrealtime s[4:5]\ns_waitcnt lgkmcnt(0)\ns_sub_u32 s5, s4, s{S_CNT}\ns_cmp_lt_i32 s5, 0\ns_cbranch_scc1 L_padat")
            e.lgkm = []
        return
    e(("s_memtime" if STAMPS == "2" else "s_memrealtime") + " s[4:5]")
    e.wait_all(vm=False)
    e(f"v_writelane_b32 v{V_STAMP}, s4, {idx}")
def stamp_flush(e):
    if not STAMPS: return
    if OPT.get("dbgst"):
        e(f"""s_load_dwordx2 s[8:9], s[0:1], 88
        s_mov_b32 s10, 256
        s_mov_b32 s11, 0x20000
        v_readlane_b32 s4, v{V_STAMP}, 0
        s_not_b32 s4, s4
        s_nop 3
        v_writelane_b32 v{V_STAMP}, s4, 14
        v_lshlrev_b32 v0, 2, v{V_LANE}
        v_cmp_gt_u32 vcc, 15, v{V_LANE}
        s_and_saveexec_b64 s[6:7], vcc
        s_waitcnt lgkmcnt(0)
        buffer_atomic_umax v{V_STAMP}, v0, s[8:11], 0 offen
        s_waitcnt vmcnt(0)""")
        return
    e(f"""s_lshl_b32 s4, s2, 2
    s_add_u32 s4, s4, s{S_WAVE}
    s_lshl_b32 s4, s4, 7
    s_add_u32 s4, s4, {64*MB}
    v_lshlrev_b32 v0, 2, v{V_LANE}
    v_cmp_gt_u32 vcc, 32, v{V_LANE}
    s_and_saveexec_b64 s[6:7], vcc
    buffer_store_dword v{V_STAMP}, v0, {srd(S_WS)}, s4 offen
    s_waitcnt vmcnt(0)""")

WS_EP = 11*MB
WS_FX, WS_FK, WS_FB, WS_FC = WS_EP + 4096, WS_EP + 8192, WS_EP + 12288, WS_EP + 16384
S_TAG = 3
def signal(e, soff_lines, tmp):
    e(soff_lines)
    e(f"""v_mov_b32 v{tmp}, s{S_TAG}
    v_add_u32 v{tmp+1}, s{S_WL}, v{V_LANE}
    v_min_u32 v{tmp+1}, 1, v{tmp+1}
    v_lshlrev_b32 v{tmp+1}, 30, v{tmp+1}""")
    e.vmem(f"buffer_store_dword v{tmp}, v{tmp+1}, {srd(S_WS)}, s{S_CNT} offen sc1", "SIG")
def sig_lin(base):
    return f"""s_lshr_b32 s{S_CNT}, s2, 3
    s_lshl_b32 s{S_CNT}, s{S_CNT}, 7
    s_and_b32 s{S_FL}, s2, 7
    s_lshl_b32 s{S_FL}, s{S_FL}, 2
    s_add_u32 s{S_CNT}, s{S_CNT}, s{S_FL}
    s_add_u32 s{S_CNT}, s{S_CNT}, {base}"""
SIG_KV = f"""s_and_b32 s{S_CNT}, s2, 31
    s_lshl_b32 s{S_CNT}, s{S_CNT}, 7
    s_lshl_b32 s{S_FL}, s{S_BLK}, 2
    s_add_u32 s{S_CNT}, s{S_CNT}, s{S_FL}
    s_add_u32 s{S_CNT}, s{S_CNT}, {WS_FK}"""
class Poll:
    def __init__(self, e, name, voff):
        self.e, self.name, self.voff = e, name, voff
    @property
    def ld(self):
        if self.name == "b" and POLLALL: return f"buffer_load_dwordx4 a[216:219], v{self.voff}, {srd(S_WS)}, 0 offen sc1"
        return f"buffer_load_dword v{V_POLL}, v{self.voff}, {srd(S_WS)}, 0 offen sc1"
    def issue(self): self.e.vmem(self.ld, ("POLL", self.name))
    def test(self):
        if self.name == "b" and POLLALL:
            return f"""v_accvgpr_read_b32 v5, a216
            v_accvgpr_read_b32 v6, a217
            v_accvgpr_read_b32 v7, a218
            v_accvgpr_read_b32 v{V_POLL}, a219
            v_xor_b32 v5, v5, v{V_POLL}
            v_xor_b32 v6, v6, v{V_POLL}
            v_xor_b32 v7, v7, v{V_POLL}
            v_or3_b32 v5, v5, v6, v7
            v_xor_b32 v{V_POLL}, s{S_TAG}, v{V_POLL}
            v_or_b32 v5, v5, v{V_POLL}
            v_cmp_eq_u32 vcc, 0, v5
            s_cmp_eq_u64 vcc, exec"""
        return f"v_cmp_eq_u32 vcc, s{S_TAG}, v{V_POLL}\ns_cmp_eq_u64 vcc, exec"
    def check(self):
        e = self.e
        e.need(vm=[("POLL", self.name)])
        e(self.test())
        e(f"s_cbranch_scc0 L_spin_{self.name}")
        e.label(f"L_ok_{self.name}")
    def spin(self):
        e = self.e
        e.label(f"L_spin_{self.name}")
        e(f"s_mov_b32 s{S_CNT}, 0x40000")
        e.label(f"L_spinl_{self.name}")
        e("s_sleep 2")
        e(self.ld)
        e("s_waitcnt vmcnt(0)")
        e(self.test())
        e(f"s_cbranch_scc1 L_ok_{self.name}")
        e(f"s_sub_u32 s{S_CNT}, s{S_CNT}, 1")
        e(f"s_cmp_lg_u32 s{S_CNT}, 0")
        e(f"s_cbranch_scc1 L_spinl_{self.name}")
        e(f"s_branch L_ok_{self.name}")
def poll32_addr(e, v, base):
    e(f"""s_lshr_b32 s{S_T0}, s{S_HEAD}, 1
    s_sub_u32 s{S_T1}, 15, s{S_T0}
    s_min_u32 s{S_T0}, s{S_T0}, s{S_T1}
    s_lshl_b32 s{S_T0}, s{S_T0}, 9
    s_add_u32 s{S_T0}, s{S_T0}, {base}
    v_bfe_u32 v{v}, v{V_LANE}, 3, 2
    v_lshlrev_b32 v{v}, 5, v{v}
    v_and_or_b32 v{v}, v{V_LANE}, 7, v{v}
    v_lshlrev_b32 v{v}, 2, v{v}
    v_add_u32 v{v}, s{S_T0}, v{v}""")

def kernel_head(e):
    e(f".globl {KN}\n.p2align 8\n.type {KN},@function")
    e.label(KN)
    e("s_cmp_ge_u32 s2, 256")
    e("s_cbranch_scc1 L_end")
    sizes = {S_X: (0, 2*MB), S_CKV: (8, 2*MB), S_WUK: (24, 4*MB), S_WS: (96, 65*MB if STAMPS else WS_END), S_WQ: (16, 4*MB), S_WUV: (32, 4*MB), S_WO: (40, 4*MB),
             S_WG: (56, 512*3584), S_WU: (64, 512*3584), S_WD: (72, 1792*1024), S_OUT: (80, 2*MB)}
    first = (S_X, S_CKV, S_WUK, S_WS)
    if OPT.get("st0") == 1: e("s_memrealtime s[6:7]\ns_waitcnt lgkmcnt(0)")
    for sr in first: e(f"s_load_dwordx2 s[{sr}:{sr+1}], s[0:1], {sizes[sr][0]}")
    if OPT.get("st0") == 2: e("s_waitcnt lgkmcnt(0)\ns_memrealtime s[6:7]")
    if STAMPS and not OPT.get("st0"): e(("s_memtime" if STAMPS == "2" else "s_memrealtime") + " s[6:7]")
    e(f"v_and_b32 v{V_LANE}, 63, v0")
    e("v_lshrrev_b32 v2, 6, v0")
    e(f"v_lshlrev_b32 v{V_L16}, 4, v{V_LANE}")
    e(f"v_readfirstlane_b32 s{S_WAVE}, v2")
    if OPT.get("pfcode", 1):
        e(f"""s_getpc_b64 s[4:5]
        s_lshr_b32 s{S_T0}, s2, 3
        s_lshl_b32 s{S_T0}, s{S_T0}, 11
        v_lshlrev_b32 v{V_TMP[0]}, 3, v2
        v_and_or_b32 v{V_TMP[0]}, v0, 7, v{V_TMP[0]}
        v_lshlrev_b32 v{V_TMP[0]}, 6, v{V_TMP[0]}
        v_add_u32 v{V_TMP[0]}, s{S_T0}, v{V_TMP[0]}
        v_min_u32 v{V_TMP[0]}, L_end-L_pcref, v{V_TMP[0]}""")
        e.label("L_pcref")
        e.vmem(f"global_load_dword v{V_TMP[12]}, v{V_TMP[0]}, s[4:5]", "PF")
    e(f"""s_and_b32 s{S_T0}, s2, 7
    s_lshl_b32 s{S_T0}, s{S_T0}, 2
    s_lshr_b32 s{S_T1}, s2, 3
    s_and_b32 s{S_T1}, s{S_T1}, 3
    s_add_u32 s{S_HEAD}, s{S_T0}, s{S_T1}
    s_lshr_b32 s{S_BLK}, s2, 5
    s_mul_i32 s{S_T0}, s{S_T1}, {OPT.get('rota', 0)}
    s_add_u32 s{S_ROT}, s{S_BLK}, s{S_T0}
    s_mul_i32 s{S_T0}, s2, {OPT.get('rotx', 1)}
    s_add_u32 s{S_ROT}, s{S_ROT}, s{S_T0}
    s_and_b32 s{S_ROT}, s{S_ROT}, 7
    s_and_b32 s{S_ROTB}, s{S_BLK}, 3
    s_lshl_b32 s{S_WL}, s{S_WAVE}, 10
    s_lshl_b32 s{S_WA}, s{S_WAVE}, 13
    s_add_u32 s{S_WA}, s{S_WA}, 65536""")
    if STAMPS: e("v_mov_b32 v2, -1")
    for sr in first: e(f"s_mov_b32 s{sr+2}, {sizes[sr][1]}\ns_mov_b32 s{sr+3}, 0x20000")
    setup_addrs(e)
    e(f"v_add_u32 v{V_ARD[0]}, s{S_WA}, v{V_ARD[0]}\nv_xor_b32 v{V_ARD[1]}, 64, v{V_ARD[0]}")
    scalar_setup(e)
    e(f"s_lshl_b32 s{S_T0}, s2, 13\ns_lshl_b32 s{S_T1}, s{S_WAVE}, 11\ns_add_u32 s{S_T0}, s{S_T0}, s{S_T1}")
    def late():
        for sr, (p, n) in sizes.items():
            if sr not in first: e(f"s_load_dwordx2 s[{sr}:{sr+1}], s[0:1], {p}\ns_mov_b32 s{sr+2}, {n}\ns_mov_b32 s{sr+3}, 0x20000")
        for sr in (S_HSRD, S_ASRD, S_BSRD): e(f"s_mov_b64 s[{sr}:{sr+1}], s[{S_WS}:{S_WS+1}]\ns_mov_b32 s{sr+2}, {WS_END}\ns_mov_b32 s{sr+3}, 0x20000")
        e(f"s_add_u32 s{S_FL}, s{S_WS}, {WS_EP}\ns_addc_u32 s{S_FL+1}, s{S_WS+1}, 0\ns_load_dword s{S_TAG}, s[{S_FL}:{S_FL+1}], 0")
    def go():
        e("s_waitcnt lgkmcnt(0)")
        if STAMPS: e("v_writelane_b32 v2, s6, 0")
        e.vmem(f"buffer_load_dwordx4 v[64:67], v{V_L16}, {srd(S_X)}, s{S_T0} offen", "X")
        e.vmem(f"buffer_load_dwordx4 v[68:71], v{V_L16}, {srd(S_X)}, s{S_T0} offen offset:1024", "X")
    return go, late

V_CPF = 31
V_KPERM = 31
V_UOFF = 30
def setup_addrs(e):
    t0, t1, t2, t3, t4 = V_TMP[:5]
    e(f"""v_lshrrev_b32 v{t0}, 2, v{V_LANE}
    v_lshlrev_b32 v{t0}, 7, v{t0}
    v_and_b32 v{t1}, 3, v{V_LANE}
    v_lshlrev_b32 v{t1}, 3, v{t1}
    v_add_u32 v{t0}, v{t0}, v{t1}
    v_bfe_u32 v{t1}, v{V_LANE}, 3, 2
    v_lshlrev_b32 v{t1}, 5, v{t1}
    v_add_u32 v{V_TR[0]}, v{t0}, v{t1}""")
    for c in (1, 2, 3): e(f"v_xor_b32 v{V_TR[c]}, {c*32}, v{V_TR[0]}")
    e(f"""v_lshrrev_b32 v{t0}, 3, v{V_LANE}
    v_and_b32 v{t1}, 7, v{V_LANE}
    v_and_b32 v{t2}, 6, v{t0}
    v_xor_b32 v{t1}, v{t1}, v{t2}
    v_lshlrev_b32 v{V_UOFF}, 4, v{t1}
    s_lshl_b32 s{S_T0}, s{S_WAVE}, 3
    v_add_u32 v{t2}, s{S_T0}, v{t0}
    v_bfe_u32 v{t3}, v{t2}, 2, 2
    v_lshlrev_b32 v{t3}, 3, v{t3}
    v_lshrrev_b32 v{t4}, 4, v{t2}
    v_lshl_add_u32 v{t3}, v{t4}, 2, v{t3}
    v_and_b32 v{t4}, 3, v{t2}
    v_add_u32 v{V_KPERM}, v{t3}, v{t4}
    v_lshl_add_u32 v{V_WOFF[0]}, v{V_KPERM}, 13, v{V_UOFF}
    v_add_u32 v{V_WOFF[1]}, 128, v{V_WOFF[0]}
    v_add_u32 v{V_WOFF[2]}, {32*8192}, v{V_WOFF[0]}
    v_add_u32 v{V_WOFF[3]}, {32*8192 + 128}, v{V_WOFF[0]}
    v_and_b32 v{t1}, 7, v{V_LANE}
    v_lshrrev_b32 v{t2}, 1, v{t0}
    v_xor_b32 v{t1}, v{t1}, v{t2}
    v_lshlrev_b32 v{t1}, 4, v{t1}
    v_lshl_add_u32 v{V_AOFF[0]}, v{t0}, 10, v{t1}
    v_xor_b32 v{V_AOFF[1]}, 64, v{V_AOFF[0]}
    v_add_u32 v{V_AOFF[1]}, 8192, v{V_AOFF[1]}
    v_and_b32 v{t0}, 15, v{V_LANE}
    v_lshrrev_b32 v{t1}, 4, v{V_LANE}
    v_lshrrev_b32 v{t2}, 1, v{t0}
    v_xor_b32 v{t1}, v{t1}, v{t2}
    v_lshlrev_b32 v{t1}, 4, v{t1}
    v_lshl_add_u32 v{V_ARD[0]}, v{t0}, 7, v{t1}""")

def scalar_setup(e):
    i, h, w = S_BLK, S_HEAD, S_WAVE
    e(f"""s_lshl_b32 s{S_T0}, s{i}, 2
    s_add_u32 s{S_T0}, s{S_T0}, s{w}
    s_lshl_b32 s{S_AROW}, s{S_T0}, 16
    s_lshl_b32 s{S_KVST}, s{h}, 19
    s_lshl_b32 s{S_T0}, s{S_T0}, 14
    s_add_u32 s{S_KVST}, s{S_KVST}, s{S_T0}""")
def scalar_setup2(e):
    i, h, w = S_BLK, S_HEAD, S_WAVE
    a, b, c, d = S_N, S_EVT, S_TRANS, S_RET
    IDLE = f"s{i}" if OPT.get("spread", 1) else "7"
    return f"""s_sub_u32 s{a}, 15, s{i}
    s_cmp_lt_u32 s{w}, 2 ! s_cselect_b32 s{b}, s{a}, s{i}
    s_lshl_b32 s{b}, s{b}, 1
    s_and_b32 s{c}, s{w}, 1
    s_add_u32 s{S_QT}, s{b}, s{c}
    s_lshl_b32 s{S_XNB}, s{S_QT}, 16
    s_mul_i32 s{S_HST}, s{S_QT}, {56*4096}
    s_add_u32 s{S_HST}, s{S_HST}, {WS_H}
    s_lshl_b32 s{d}, s{h}, 14
    s_add_u32 s{d}, s{d}, {WS_CTX}
    s_lshl_b32 s{S_CTXLO}, s{S_QT}, 19
    s_add_u32 s{S_CTXLO}, s{S_CTXLO}, s{d}
    s_lshr_b32 s{b}, s{w}, 1
    s_xor_b32 s{b}, s{b}, s{w}
    s_and_b32 s{b}, s{b}, 1
    s_lshl_b32 s{a}, s{a}, 1
    s_add_u32 s{S_QTHI}, s{a}, s{b}
    s_lshl_b32 s{S_CTXHI}, s{S_QTHI}, 19
    s_add_u32 s{S_CTXHI}, s{S_CTXHI}, s{d}
    s_lshr_b32 s{a}, s{h}, 2
    s_cmp_lg_u32 s{a}, {IDLE} ! s_cselect_b32 s{S_HSRD+2}, {WS_END}, 0
    s_cmp_gt_u32 s{a}, {IDLE} ! s_cselect_b32 s{a}, 4, 0
    s_sub_u32 s{S_GJ}, s{h}, s{a}
    s_lshl_b32 s{a}, s{h}, 19
    s_mov_b32 s{b}, {WS_V}
    s_cmp_lt_u32 s{w}, 2 ! s_cselect_b32 s{b}, {WS_K}, s{b}
    s_add_u32 s{b}, s{b}, s{a}
    s_add_u32 s{S_VCLB}, s{b}, {63*8192}
    s_and_b32 s{a}, s{w}, 1
    s_lshl_b32 s{a}, s{a}, 13
    s_add_u32 s{S_SRCA}, s{b}, s{a}
    s_lshl_b32 s{a}, s{w}, 13
    s_add_u32 s{S_VMAXB}, s{b}, s{a}
    s_add_u32 s{S_VMAXB}, s{S_VMAXB}, {64*8192}
    s_min_u32 s{S_SRCB}, s{S_VMAXB}, s{S_VCLB}
    s_lshl_b32 s{S_LB}, s{w}, 13
    s_add_u32 s{S_LA}, s{S_LB}, 65536
    s_xor_b32 s{S_LB}, s{S_LB}, 32768
    s_lshl_b32 s{S_N0}, s{i}, 1
    s_add_u32 s{S_N0}, s{S_N0}, 2
    s_mul_i32 s{a}, s{w}, {14*4096}
    s_mul_i32 s{S_DH}, s{h}, {56*4096}
    s_add_u32 s{S_DH}, s{S_DH}, s{a}
    s_add_u32 s{S_DH}, s{S_DH}, {WS_H}
    s_mul_i32 s{S_DW}, s{i}, {56*4096}
    s_add_u32 s{S_DW}, s{S_DW}, s{a}
    s_add_u32 s{S_DW}, s{S_DW}, {WS_WDF}
    s_mov_b32 s{S_DINC}, 0""".split("\n")

def layernorm_lines():
    L = []; e = L.append
    X = (72, 80); SUM = (88, 89); TMP = (90, 91); MEAN = (92, 93); VAR = (94, 95)
    SS = (S_T0, S_T1)
    for r in range(2):
        for j in range(4):
            e(f"v_lshlrev_b32 v{X[r]+2*j}, 16, v{64+4*r+j}")
            e(f"v_and_b32 v{X[r]+2*j+1}, 0xffff0000, v{64+4*r+j}")
    def reduce():
        for mod in ("quad_perm:[1,0,3,2] row_mask:0xf bank_mask:0xf", "quad_perm:[2,3,0,1] row_mask:0xf bank_mask:0xf",
                    "row_half_mirror row_mask:0xf bank_mask:0xf", "row_mirror row_mask:0xf bank_mask:0xf",
                    "row_bcast:15 row_mask:0xa bank_mask:0xf", "row_bcast:31 row_mask:0xc bank_mask:0xf"):
            e("s_nop 0")
            for r in range(2): e(f"v_add_f32_dpp v{SUM[r]}, v{SUM[r]}, v{SUM[r]} {mod}")
        e("s_nop 0")
        for r in range(2): e(f"v_readlane_b32 s{SS[r]}, v{SUM[r]}, 63")
        e("s_nop 1")
    for r in range(2): e(f"v_add_f32 v{SUM[r]}, v{X[r]}, v{X[r]+1}")
    for j in range(2, 8):
        for r in range(2): e(f"v_add_f32 v{SUM[r]}, v{SUM[r]}, v{X[r]+j}")
    reduce()
    for r in range(2): e(f"v_mov_b32 v{MEAN[r]}, s{SS[r]}")
    for r in range(2): e(f"v_mul_f32 v{MEAN[r]}, 0x3b000000, v{MEAN[r]}")
    for j in range(8):
        for r in range(2): e(f"v_sub_f32 v{TMP[r]}, v{X[r]+j}, v{MEAN[r]}")
        for r in range(2): e(f"v_mul_f32 v{SUM[r]}, v{TMP[r]}, v{TMP[r]}" if j == 0 else f"v_fmac_f32 v{SUM[r]}, v{TMP[r]}, v{TMP[r]}")
    reduce()
    def both(fmt):
        for r in range(2): e(fmt.format(v=VAR[r], m=MEAN[r], s=SS[r]))
    def rnd(x):
        both("v_cvt_pk_bf16_f32 v{%s}, v{%s}, v{%s}" % (x, x, x)); both("v_lshlrev_b32 v{%s}, 16, v{%s}" % (x, x))
    both("v_mov_b32 v{v}, s{s}"); both("v_mul_f32 v{v}, 0x3b000000, v{v}")
    rnd("v"); both("v_add_f32 v{v}, 0x3727c5ac, v{v}"); rnd("v")
    both("v_sqrt_f32 v{v}, v{v}"); rnd("m"); rnd("v"); both("v_rcp_f32 v{v}, v{v}")
    for r in range(2):
        for j in range(8): e(f"v_sub_f32 v{X[r]+j}, v{X[r]+j}, v{MEAN[r]}")
        for j in range(4): e(f"v_cvt_pk_bf16_f32 v{64+4*r+j}, v{X[r]+2*j}, v{X[r]+2*j+1}")
        for j in range(4):
            e(f"v_lshlrev_b32 v{X[r]+2*j}, 16, v{64+4*r+j}")
            e(f"v_and_b32 v{X[r]+2*j+1}, 0xffff0000, v{64+4*r+j}")
        for j in range(8): e(f"v_mul_f32 v{X[r]+j}, v{X[r]+j}, v{VAR[r]}")
        for j in range(4): e(f"v_cvt_pk_bf16_f32 v{64+4*r+j}, v{X[r]+2*j}, v{X[r]+2*j+1}")
    return L

class MemQ:
    def __init__(self, e): self.e = e; self.items = []
    def add(self, kind, lo, hi, *a): self.items.append([kind, lo, hi, a])
    def fillers(self):
        e = self.e; out = []
        dm = [k for k, it in enumerate(self.items) if it[0] == 'd']
        nxt = {dm[j]: dm[j+1] for j in range(len(dm) - 1)}
        self.first_m0 = self.items[dm[0]][3][0]
        for k, (kind, lo, hi, a) in enumerate(self.items):
            if kind == 's': out.append(Filler(lambda a=a: e(a[0].replace(" ! ", "\n")), 4, "salu", lo, hi))
            elif kind == 'l': out.append(Filler(lambda a=a: e.vmem(a[0], a[1]), 4, "mem", lo, hi))
            elif kind == 'f': out.append(Filler(a[0], a[1], a[2], lo, hi))
            else:
                def fn(k=k, a=a):
                    if len(a) > 3: e.need(lg=a[3])
                    if " m0," in e.L[-1]: e("s_nop 0")
                    e.vmem(a[1], a[2])
                    if k in nxt: e(self.items[nxt[k]][3][0])
                out.append(Filler(fn, 8, "mem", lo, hi))
        return out


def body(e):
    i, h, w = S_BLK, S_HEAD, S_WAVE
    go, late = kernel_head(e)
    NS = 32; BAR = 42; INF = 10**9; P = -10**6
    mq = MemQ(e)
    def S(lo, hi, *lines):
        for t in lines: mq.add('s', lo, hi, t)
    def VV(lo, hi, *lines):
        for t in lines: mq.add('f', lo, hi, lambda t=t: e(t), 4, "valu")
    V_GOFF = V_KPERM; V_TRH = V_AOFF + V_ARD
    S_GO = S_T1
    def area(gs):
        if gs < 16: return (gs % 4)*16384
        if gs < 24: return ((gs % 4)*32768 + 65536) % 131072
        return ((gs - 24)*16384 + 65536) % 131072
    def w_stage(gs, lo, step, hi):
        slot = gs % 4
        if gs < 16:
            s = gs % 8
            if s == 0: S(lo - 8, hi, f"s_lshl_b32 s{S_OFF0}, s{S_ROT}, 19", f"s_lshl_b32 s{S_T5}, s{h}, 8", f"s_add_u32 s{S_OFF0}, s{S_OFF0}, s{S_T5}")
            else: S(lo - 8, hi, f"s_add_u32 s{S_OFF0}, s{S_OFF0}, {1<<19}", f"s_and_b32 s{S_OFF0}, s{S_OFF0}, {4*MB-1}")
            for n in range(4):
                mq.add('d', lo + step*n, hi, f"s_add_u32 m0, s{S_WL}, {slot*16384 + n*4096}",
                       f"buffer_load_dwordx4 v{V_WOFF[n]}, {srd(S_WUK if gs < 8 else S_WUV)}, s{S_OFF0} offen lds", ("W", gs))
        elif gs >= 24:
            s = gs % 4; hf = (gs // 4) % 2
            S(lo - 10, hi, f"s_add_u32 s{S_OFF0}, s{S_ROTB}, {s}", f"s_and_b32 s{S_OFF0}, s{S_OFF0}, 3", f"s_lshl_b32 s{S_OFF0}, s{S_OFF0}, 20",
              f"s_lshl_b32 s{S_T5}, s{h}, 8", f"s_add_u32 s{S_OFF0}, s{S_OFF0}, s{S_T5}")
            if hf: S(lo - 10, hi, f"s_add_u32 s{S_OFF0}, s{S_OFF0}, 128")
            for n in range(4):
                if n: S(lo + step*n - 2, hi, f"s_add_u32 s{S_OFF0}, s{S_OFF0}, {32*8192}")
                mq.add('d', lo + step*n, hi, f"s_add_u32 m0, s{S_WL}, {area(gs) + n*4096}",
                       f"buffer_load_dwordx4 v{V_WOFF[0]}, {srd(S_WQ)}, s{S_OFF0} offen lds", ("W", gs))
    def g_stage(s, lo, step, hi):
        S(lo - 10, hi, f"s_add_u32 s{S_GO}, s{S_ROTB}, {s}", f"s_and_b32 s{S_GO}, s{S_GO}, 3", f"s_mul_i32 s{S_GO}, s{S_GO}, {128*3584}",
          f"s_lshl_b32 s{S_T5}, s{S_GJ}, 7", f"s_add_u32 s{S_GO}, s{S_GO}, s{S_T5}")
        for n in range(8):
            if n and n % 2 == 0: S(lo + step*n - 2, hi, f"s_add_u32 s{S_GO}, s{S_GO}, {32*3584}")
            mq.add('d', lo + step*n, hi, f"s_add_u32 m0, s{S_WL}, {area(16 + s) + n*4096}",
                   f"buffer_load_dwordx4 v{V_GOFF}, {srd((S_WG, S_WU)[n % 2])}, s{S_GO} offen lds", ("W", 16 + s))
    def a_stage(s, lo, step, hi):
        S(lo - 6, hi, f"s_add_u32 s{S_OFFA}, s{S_ROT}, {s}", f"s_and_b32 s{S_OFFA}, s{S_OFFA}, 7", f"s_lshl_b32 s{S_OFFA}, s{S_OFFA}, 7", f"s_add_u32 s{S_OFFA}, s{S_OFFA}, s{S_AROW}")
        for q in range(8):
            if q and q % 2 == 0: S(lo + step*q - 2, hi, f"s_add_u32 s{S_OFFA}, s{S_OFFA}, 16384")
            mq.add('d', lo + step*q, hi, f"s_add_u32 m0, s{S_WA}, {(s % 2)*32768 + q*1024}",
                   f"buffer_load_dwordx4 v{V_AOFF[q & 1]}, {srd(S_CKV)}, s{S_OFFA} offen lds", ("A", s), [("AF", s-2, 0), ("AF", s-2, 1)])
    def xn_stage(s, lo, step, hi):
        if s % 2 == 0: S(lo - 6, hi, f"s_add_u32 s{S_OFFA}, s{S_ROTB}, {s//2}", f"s_and_b32 s{S_OFFA}, s{S_OFFA}, 3", f"s_lshl_b32 s{S_OFFA}, s{S_OFFA}, 14", f"s_add_u32 s{S_OFFA}, s{S_OFFA}, s{S_XNB}")
        for ksub in range(2):
            if ksub or s % 2: S(lo + step*4*ksub - 2, hi, f"s_add_u32 s{S_OFFA}, s{S_OFFA}, 4096")
            for rb in range(4):
                mq.add('l', lo + step*(ksub*4 + rb), hi, f"buffer_load_dwordx4 {ar(actf(2*s+ksub, rb))}, v{V_L16}, {srd(S_WS)}, s{S_OFFA} offen offset:{rb*1024}{SC}", ("XN", 2*s+ksub))
    V_PO = V_TMP[13]
    poll_xn = Poll(e, "xn", V_PO); poll_kv = Poll(e, "kv", V_PO); poll_b = Poll(e, "b", V_TMP[15]); poll_c = Poll(e, "c", V_TMP[15])
    V_RT = V_TMP[8]; V_RTA = V_TMP[9:13]; V_PFD = V_TMP[1]
    RTL, RTS, RG = OPT.get("rtl", 19), OPT.get("rts", 22), OPT.get("rtgap", 32)
    S_RL = S_RET
    PRO = OPT.get("pro", 1); KVS = OPT.get("kvs", 30)
    w_stage(0, P, 0, INF); a_stage(0, P, 0, INF)
    n_pro0 = len(mq.items)
    S(P, INF, f"s_lshl_b32 s{S_T2}, s{w}, 8", f"s_add_u32 s{S_T2}, s{S_T2}, s2", f"s_lshr_b32 s{S_T3}, s{S_T2}, 3", f"s_add_u32 s{S_T4}, s{S_T2}, s{S_T3}", f"s_and_b32 s{S_T4}, s{S_T4}, 7",
      f"s_cmp_lt_u32 s{S_T2}, 448 ! s_cselect_b32 s{S_WD+2}, {1792*1024}, 0", f"s_cmp_lt_u32 s{S_T2}, 448 ! s_cselect_b32 s{S_BSRD+2}, {WS_END}, 0")
    VV(P, INF, f"v_lshrrev_b32 v{V_RT}, 3, v{V_LANE}", f"v_lshl_add_u32 v{V_RT}, v{V_RT}, 10, v{V_UOFF}", f"v_mul_u32_u24 v{V_GOFF}, 3584, v{V_KPERM}", f"v_add_u32 v{V_GOFF}, v{V_GOFF}, v{V_UOFF}")
    w_stage(1, P, 0, INF)
    if PRO >= 2: a_stage(1, P, 0, INF)
    if PRO >= 3: w_stage(2, P, 0, INF)
    n_pro1 = len(mq.items)
    if PRO < 2: a_stage(1, 0, 1, 30)
    if PRO < 3: w_stage(2, 10, 1, 36)
    def rt_loads(E0, half):
        for q in range(2*half, 2*half + 2):
            if OPT.get("rtlin"): S(E0, INF, f"s_add_u32 s{S_RL}, s{S_RL}, 1024" if q else f"s_lshl_b32 s{S_RL}, s{S_T4}, 12 ! s_lshl_b32 s{S_T5}, s{S_T3}, 3 ! s_add_u32 s{S_RL}, s{S_RL}, s{S_T5}")
            else: S(E0, INF, f"s_add_u32 s{S_RL}, s{S_RL}, 8192" if q else f"s_lshl_b32 s{S_RL}, s{S_T4}, 7 ! s_lshl_b32 s{S_T5}, s{S_T3}, 3 ! s_add_u32 s{S_RL}, s{S_RL}, s{S_T5}")
            for t, sr in enumerate((S_WO, S_WD)):
                mq.add('d', E0 + ((4 + 14*(q % 2) + 7*t) if RTL > 5 else 36), E0 + (33 if RTL > 5 else 60), f"s_add_u32 m0, s{S_WA}, {65536 + t*4096 + q*1024}", f"buffer_load_dwordx4 v{V_L16 if OPT.get('rtlin') else V_RT}, {srd(sr)}, s{S_RL} offen lds", "RT")
    for gs in range(NS):
        b = gs * 64
        if gs + 2 < 8: a_stage(gs + 2, b + (6 if gs or PRO >= 3 else 22), (4 if gs or PRO >= 3 else 2), b + 41)
        PFS = OPT.get("pfs", {})
        if gs == 1:
            VV(b + 2, INF, f"v_lshrrev_b32 v{V_PO}, 2, v{V_LANE}", f"v_lshlrev_b32 v{V_PO}, 7, v{V_PO}", f"v_and_or_b32 v{V_PO}, v{V_LANE}, 3, v{V_PO}", f"v_lshlrev_b32 v{V_PO}, 6, v{V_PO}",
               f"v_lshlrev_b32 v{V_TMP[5]}, 6, v{V_LANE}", f"v_min_u32 v{V_TMP[4]}, 1728, v{V_TMP[5]}")
        for n_, c_ in enumerate(PFS.get(gs, "")):
            if c_ in "qv":
                S(b + 2, INF, f"s_lshl_b32 s{S_T1}, s{i}, 2", f"s_add_u32 s{S_T1}, s{S_T1}, s{w}", f"s_lshl_b32 s{S_T1}, s{S_T1}, 17", f"s_lshl_b32 s{S_T5}, s{h}, 8", f"s_add_u32 s{S_T1}, s{S_T1}, s{S_T5}")
                vo = V_PO
            else:
                S(b + 2, INF, f"s_lshl_b32 s{S_T1}, s2, 2", f"s_add_u32 s{S_T1}, s{S_T1}, s{w}", f"s_mul_i32 s{S_T1}, s{S_T1}, {4096 if c_ == 'o' else 1792}")
                vo = V_TMP[5] if c_ == "o" else V_TMP[4]
            mq.add('l', b + 8, INF, f"buffer_load_dword v{V_TMP['qgu'.find(c_) % 4]}, v{vo}, {srd(dict(q=S_WQ, v=S_WUV, g=S_WG, u=S_WU, o=S_WO, d=S_WD)[c_])}, s{S_T1} offen", "PF")
        if gs == 6: S(b + 10, INF, f"s_min_u32 s{S_WG+2}, s{S_WG+2}, s{S_HSRD+2}", f"s_mov_b32 s{S_WU+2}, s{S_WG+2}")
        GS = OPT.get("gs", (7, 8))
        if gs in GS: g_stage(GS.index(gs), b + 4, 3, b + 41)
        if gs == 8:
            t0, t1 = V_TMP[2:4]
            S(b + 4, b + 30, f"s_lshl_b32 s{S_T5}, s{S_QT}, 7", f"s_add_u32 s{S_T5}, s{S_T5}, {WS_FX}")
            VV(b + 4, b + 30, f"v_and_b32 v{V_PO}, 7, v{V_LANE}", f"v_lshlrev_b32 v{V_PO}, 2, v{V_PO}", f"v_add_u32 v{V_PO}, s{S_T5}, v{V_PO}")
            mq.add('f', b + 28, b + 36, poll_xn.issue, 4, "mem")
        if gs == 9: mq.add('f', b + 2, b + 6, poll_xn.check, 8, "valu")
        if 9 <= gs <= 16: xn_stage(gs - 9, b + 8, 4, b + 41)
        if gs == 10: VV(b + 20, INF, *[f"v_add_u32 v{V_TRH[c]}, 65536, v{V_TR[c]}" for c in range(4)])
        if gs in (RTL, RTL + 1) and not OPT.get("nortl"): rt_loads(b, gs - RTL)
        if gs == 27:
            S(b + 4, b + 30, f"s_and_b32 s{S_T5}, s2, 31", f"s_lshl_b32 s{S_T5}, s{S_T5}, 7", f"s_add_u32 s{S_T5}, s{S_T5}, {WS_FK}")
            VV(b + 4, b + 30, f"v_and_b32 v{V_PO}, 7, v{V_LANE}", f"v_lshlrev_b32 v{V_PO}, 2, v{V_PO}", f"v_add_u32 v{V_PO}, s{S_T5}, v{V_PO}")
        if gs == KVS - 1: mq.add('f', b + 26, b + 33, poll_kv.issue, 4, "mem")
        if gs + 3 < NS: w_stage(gs + 3, b + 44, 4, b + 64 + 5)
        if gs in (14, 16): g_stage(2 + (gs - 14)//2, b + 44, 3, b + 64 + 7)
    b = KVS*64
    mq.add('f', b + 4, b + 8, poll_kv.check, 8, "valu")
    for st in range(2):
        S(b, INF, f"s_mov_b32 s{S_ASRD+2}, {WS_END}" if st else f"s_cmp_lt_u32 s{w}, 2 ! s_cselect_b32 s{S_ASRD+2}, {WS_END}, 0")
        for j in range(8):
            if j == 4: S(b, INF, f"s_add_u32 s{S_T4}, s{S_SRCA}, 4096")
            mq.add('d', b + 8 + st*64 + 6*j, INF, f"s_add_u32 m0, s{S_LA}, {st*32768 + (j//4)*4096}",
                   f"buffer_load_dwordx4 v{V_L16}, {srd(S_ASRD)}, s{S_T4 if j >= 4 else S_SRCA} offen offset:{(j%4)*1024}{SC} lds", ("KV", st))
        if st == 0: S(b, INF, f"s_cmp_ge_u32 s{w}, 2 ! s_cselect_b32 s{S_T4}, 0, 2", f"s_lshl_b32 s{S_T4}, s{S_T4}, 13", f"s_add_u32 s{S_SRCA}, s{S_SRCA}, s{S_T4}")
        else: S(b, INF, f"s_add_u32 s{S_SRCA}, s{S_SRCA}, 16384")
    mfill = mq.fillers()
    e(mq.first_m0)
    started = False
    for f in mfill[:n_pro0]:
        if f.cost == 8 and not started: go(); started = True
        f.fn()
        if f.cost == 8: e("s_nop 0")
    late()
    if OPT.get("tlb", 0):
        a, b, c = S_N, S_EVT, S_TRANS
        e(f"""s_lshr_b32 s{a}, s2, 3
        s_and_b32 s{b}, s{a}, 7
        s_add_u32 s{b}, s{b}, 2
        s_cmp_eq_u32 s{w}, 2
        s_cselect_b32 s{b}, 10, s{b}
        s_and_b32 s{c}, s{w}, 1
        s_lshr_b32 s{S_T0}, s{w}, 1
        s_cmp_eq_u32 s{c}, s{S_T0}
        s_cselect_b32 s{b}, 12, s{b}
        s_lshl_b32 s{S_T1}, s{b}, 3
        s_load_dwordx2 s[{S_ASRD}:{S_ASRD+1}], s[0:1], s{S_T1}
        s_cmp_lt_u32 s{b}, 6
        s_mov_b32 s{S_ASRD+2}, {1792*1024}
        s_cselect_b32 s{S_ASRD+2}, {4*MB}, s{S_ASRD+2}
        s_lshr_b32 s{S_T1}, s{a}, 3
        s_lshl_b32 s{a}, s{a}, 1
        s_add_u32 s{a}, s{a}, s{c}
        s_cmp_eq_u32 s{b}, 12
        s_cselect_b32 s{S_ASRD+2}, {WS_END}, s{S_ASRD+2}
        s_cselect_b32 s{a}, s{a}, s{S_T1}
        s_lshl_b32 s{a}, s{a}, 20
        v_mov_b32 v{V_TMP[5]}, s{a}
        s_waitcnt lgkmcnt(0)""")
        e.vmem(f"buffer_load_dword v{V_TMP[1]}, v{V_TMP[5]}, {srd(S_ASRD)}, 0 offen sc1", "PF")
        e(f"s_mov_b64 s[{S_ASRD}:{S_ASRD+1}], s[{S_WS}:{S_WS+1}]\ns_mov_b32 s{S_ASRD+2}, {WS_END}")
    e.need(vm=["X"])
    ln = layernorm_lines()
    rest = mfill[n_pro0:n_pro1]
    per = len(ln) // (sum(f.cost == 8 for f in rest) + 1) + 1
    while ln or rest:
        for t in ln[:per]: e(t)
        ln = ln[per:]
        while rest:
            f = rest.pop(0); f.fn()
            if f.cost == 8: break
    mfill = mfill[n_pro1:]
    t0, t1, t2 = V_TMP[2:5]
    e(f"""s_lshl_b32 s{S_T0}, s{w}, 5
    s_add_u32 s{S_T0}, s{S_T0}, 49152
    v_lshlrev_b32 v{t0}, 7, v{V_LANE}
    v_add_u32 v{t0}, s{S_T0}, v{t0}""")
    e.ds(f"ds_write_b128 v{t0}, v[64:67]"); e.ds(f"ds_write_b128 v{t0}, v[68:71] offset:16")
    e(f"""s_lshl_b32 s{S_T0}, s{w}, 11
    s_add_u32 s{S_T0}, s{S_T0}, 49152
    v_add_u32 v{t0}, s{S_T0}, v{V_L16}
    v_lshrrev_b32 v{t1}, 5, v{V_LANE}
    v_lshlrev_b32 v{t1}, 12, v{t1}
    v_bfe_u32 v{t2}, v{V_LANE}, 3, 2
    v_lshl_add_u32 v{t1}, v{t2}, 8, v{t1}
    v_and_b32 v{t2}, 7, v{V_LANE}
    v_lshl_add_u32 v{t1}, v{t2}, 4, v{t1}
    s_lshr_b32 s{S_T0}, s2, 3
    s_lshl_b32 s{S_T0}, s{S_T0}, 16
    s_bfe_u32 s{S_T1}, s2, 0x20001
    s_lshl_b32 s{S_T1}, s{S_T1}, 10
    s_add_u32 s{S_T0}, s{S_T0}, s{S_T1}
    s_and_b32 s{S_T1}, s2, 1
    s_lshl_b32 s{S_T1}, s{S_T1}, 7
    s_add_u32 s{S_T0}, s{S_T0}, s{S_T1}
    s_lshl_b32 s{S_T1}, s{w}, 14
    s_add_u32 s{S_T0}, s{S_T0}, s{S_T1}
    s_add_u32 s{S_T1}, s{S_T0}, 8192""")
    misc = []
    misc.append(Filler(lambda: (e.ds(f"ds_read_b128 v[64:67], v{t0}", "LN"), e.ds(f"ds_read_b128 v[68:71], v{t0} offset:1024", "LN")), 8, "mem", 2, 30))
    misc.append(Filler(lambda: (e.need(lg=["LN"]), e.vmem(f"buffer_store_dwordx4 v[64:67], v{t1}, {srd(S_WS)}, s{S_T0} offen{SC}", "XNST")), 8, "mem", 14, 40))
    misc.append(Filler(lambda: e.vmem(f"buffer_store_dwordx4 v[68:71], v{t1}, {srd(S_WS)}, s{S_T1} offen{SC}", "XNST"), 8, "mem", 16, 41))
    for t in scalar_setup2(e): misc.append(Filler(lambda t=t: e(t.replace(" ! ", "\n")), 4, "salu", 44, 150))
    S_RA, S_RB = S_N, S_EVT
    rts = [Filler(lambda: e(f"s_add_u32 s{S_RA}, s{S_WA}, 65536"), 4, "salu", 150)]
    for c in range(4): rts.append(Filler(lambda c=c: e(f"v_add_u32 v{V_RTA[c]}, s{S_RA}, v{V_TR[c]}"), 4, "valu", 150))
    for t in (f"s_lshl_b32 s{S_RA}, s{S_T4}, 19", f"s_lshl_b32 s{S_T3}, s{S_T3}, 12", f"s_add_u32 s{S_RA}, s{S_RA}, s{S_T3}", f"s_add_u32 s{S_RA}, s{S_RA}, {WS_WOF}",
              f"s_mul_i32 s{S_RB}, s{S_T4}, {56*4096}", f"s_add_u32 s{S_RB}, s{S_RB}, s{S_T3}", f"s_add_u32 s{S_RB}, s{S_RB}, {WS_WDF}"):
        rts.append(Filler(lambda t=t: e(t), 4, "salu", 150, 185))
    SIGKV = OPT.get("sigkv", 28)
    for n in range(8):
        t, c = n // 4, n % 4
        d0 = V_PK + (n % 2)*4
        def fr(t=t, c=c, d0=d0, n=n):
            e.need(vm=["RT"])
            for rr in range(2): e.ds(f"ds_read_b64_tr_b16 v[{d0+rr*2}:{d0+rr*2+1}], v{V_RTA[c]} offset:{t*4096 + rr*2048}", ("RTF", n))
        def fs(t=t, c=c, d0=d0, n=n):
            e.need(lg=[("RTF", n)])
            e.vmem(f"buffer_store_dwordx4 {vr(d0)}, v{V_L16}, {srd((S_WS, S_BSRD)[t])}, s{(S_RA, S_RB)[t]} offen offset:{c*1024}{SC}", "RTST")
        if not OPT.get("norts"): rts.append(Filler(fr, 8, "mem", RTS*64 + 40 + RG*n)); rts.append(Filler(fs, 4, "mem", RTS*64 + 40 + RG*n + 12, 30*64 + 30 if POLLALL else (SIGKV - 1)*64))
    mfmas = []; rd = []
    sig_at = {3: (["XNST"], sig_lin(WS_FX)), SIGKV: (["KST", "VST"] + ([] if POLLALL else ["RTST"]), SIG_KV)}
    def stage_gate(gs):
        def fn():
            tags = [("W", gs)]
            if gs < 8: tags.append(("A", gs))
            if gs in sig_at: tags += sig_at[gs][0]
            f3 = OPT.get("fine3")
            if f3 is not None and 0 <= gs - f3 < 6: stamp(e, 14 + 3*(gs - f3))
            e.need(vm=tags)
            if f3 is not None and 0 <= gs - f3 < 6: stamp(e, 15 + 3*(gs - f3))
            e("s_barrier")
            if f3 is not None and 0 <= gs - f3 < 6: stamp(e, 16 + 3*(gs - f3))
            if gs in sig_at: signal(e, sig_at[gs][1], V_TMP[6])
            if gs % 8 == 0: stamp(e, 2 + gs // 8)
            if OPT.get("fine") is not None and 0 <= gs - OPT["fine"] < 18: stamp(e, 14 + gs - OPT["fine"])
        return fn
    def actread(s, ksub, rb):
        return lambda: e.ds(f"ds_read_b128 {ar(actf(2*s+ksub, rb))}, v{V_ARD[ksub]} offset:{(s % 2)*32768 + rb*2048}", ("AF", s, ksub))
    for gs in range(NS):
        base = gs * 64
        if gs > 0: rd.append(Filler(stage_gate(gs), 8, "mem", base - 64 + BAR, base - 64 + BAR + 1))
        pend = [Filler(actread(gs, ksub, rb), 4, "mem", base - 64 + BAR, base - 3) for rb in range(4) for ksub in range(2)] if gs < 8 else []
        CH = 2 if gs < 16 else 4
        for g in range(16 // CH):
            g0 = base + g*4*CH
            db = g if gs < 16 else 4*((gs // 4) % 2) + g
            first = gs % (16 // CH) == 0
            for k in range(CH):
                slot = (g*CH + k) % 8
                if gs < 16: c_, off = g % 4, (k*2 + g // 4)*4096
                elif gs < 24: c_, off = 2*((gs // 4) % 2) + g % 2, (k*2 + g // 2)*4096
                else: c_, off = g, k*4096
                off += area(gs)
                for rr in range(2):
                    ad = V_TRH[c_] if off >= 65536 else V_TR[c_]
                    d = V_WF + slot*4 + rr*2
                    n_ = k*2 + rr
                    lo = (g0 - 22 + 2*n_) if CH == 2 else (g0 - 16 + n_)
                    if gs == 16 and g == 1: lo = max(lo, base)
                    rd.append(Filler(lambda d=d, ad=ad, o=(off + rr*2048) % 65536, t=(gs, g): e.ds(f"ds_read_b64_tr_b16 v[{d}:{d+1}], v{ad} offset:{o}", ("F", t)),
                                     4, "mem", max(lo, base - 64 + BAR), g0 - 3))
                    for _ in range(1 if g else 2):
                        if pend: rd.append(pend.pop(0))
            for rb in range(4):
                for kk in range(CH):
                    k = kk if rb % 2 == 0 else CH - 1 - kk
                    kslot = CH*(gs % (16 // CH)) + k
                    def needs(gs=gs, g=g, CH=CH):
                        return e.need(lg=[("F", (gs, g))] + ([("AF", gs, 0), ("AF", gs, 1)] if gs < 8 else []),
                                      vm=[("XN", 4*(gs % 4) + q) for q in range(4)] if 16 <= gs < 20 else ())
                    def m(gs=gs, slot=(g*CH + k) % 8, kslot=kslot, db=db, rb=rb, z=(first and kk == 0), needs=needs):
                        needs()
                        wv = vr(V_WF + slot*4); a = ar(actf(kslot, rb)); d = vr(acc(db, rb))
                        e(mf(d, a, wv, "0" if z else d) if 8 <= gs < 16 else mf(d, wv, a, "0" if z else d))
                    m.pre = needs
                    mfmas.append(m)
    def cvts(base, dst, dl):
        out = []
        for db in range(8):
            for rb in range(4):
                for hh in range(2):
                    d = dst(db, rb, hh); s = acc(db, rb) + 2*hh
                    out.append(Filler(lambda d=d, s=s: e(f"v_cvt_pk_bf16_f32 v{d}, v{s}, v{s+1}"), 4, "valu", base + 448 + 8*db + 2*rb + 1 + 8, dl(db, rb)))
        return out
    cv = cvts(0, lambda db, rb, hh: V_PK + (rb*4 + db//2)*4 + (db & 1)*2 + hh, lambda db, rb: min(512 + 8*db + 2*rb, 512 + 30))
    VH = OPT.get("vh", 1150)
    cvv = cvts(512, lambda db, rb, hh: V_PK + ((db//4)*8 + (rb//2)*4 + db % 4)*4 + (rb & 1)*2 + hh, lambda db, rb: min(1024 + 16*db + 4*rb, 1024 + 16) if db < 4 else min(VH + 39, 1278))
    for f in cvv[32:]: f.earliest = VH
    cv += cvv
    st = []
    G2 = OPT.get("sgap", 37)
    NKV = OPT.get("nkv", 14)
    sched = [(WS_K + n*1024, n, "KST", 512 + 36 + (444 // NKV)*n, 512 + 454 if n < 8 else 1024) for n in range(NKV)]
    sched += [(WS_K + n*1024, n, "KST", 1024 + 4 + G2*(n - NKV), VH - 2) for n in range(NKV, 16)]
    sched += [(WS_V + ((n % 8)//4)*8192 + ((n // 8)*4 + n % 4)*1024, n, "VST", max(1024 + 20 + G2*(n + 16 - NKV), VH + 40 if n >= 8 else 0), (SIGKV - 1)*64 + 20) for n in range(16)]
    for off, n, tag, lo, dl in sched:
        if n % 4 == 0: st.append(Filler(lambda off=off: e(f"s_add_u32 s{S_T2}, s{S_KVST}, {off}"), 4, "salu", lo - 4))
        st.append(Filler(lambda n=n, tag=tag: e.vmem(f"buffer_store_dwordx4 {vr(V_PK + n*4)}, v{V_L16}, {srd(S_WS)}, s{S_T2} offen offset:{(n%4)*1024}{SC}", tag), 4, "mem", lo, dl))
    C0 = -2.0 * math.sqrt(2.0 / math.pi) * math.log2(math.e)
    V_C1 = V_TMP[4]; V_QW = V_TMP[5]
    ge = [Filler(lambda: e(f"v_mov_b32 v{V_C1}, {fb(C0*0.044715):#x}"), 4, "valu", 1100)]
    for hf in range(2):
        lo = 1024 + 256*(hf + 1) - 16 + 11; dl = 1024 + 256*(hf + 2)
        def RW(txt):
            i_ = chk.parse(txt); return (set(i_.r), set(i_.w))
        def V(txt, cost=4): ge.append(Filler(lambda: e(txt), cost, "valu", lo, dl, RW(txt) if OPT.get("ooo", 1) else None))
        for t in [f"s_lshl_b32 s{S_T0}, s{S_GJ}, 13", f"s_add_u32 s{S_T0}, s{S_T0}, {hf*4096}", f"s_add_u32 s{S_T0}, s{S_T0}, s{S_HST}"]:
            ge.append(Filler(lambda t=t: e(t), 4, "salu", lo, dl))
        for rb in range(4):
            lo = 1024 + 256*(hf + 1) - 16 + 4*rb + 11
            for c in range(2):
                G, U = acc(4*hf + c, rb), acc(4*hf + 2 + c, rb); T = V_TMP[0:4]
                for r in range(4): V(f"v_mul_f32 v{T[r]}, v{G+r}, v{G+r}")
                for r in range(4): V(f"v_mul_f32 v{U+r}, v{G+r}, v{U+r}")
                for r in range(4): V(f"v_fmaak_f32 v{T[r]}, v{T[r]}, v{V_C1}, {fb(C0):#x}")
                for r in range(4): V(f"v_mul_f32 v{G+r}, v{G+r}, v{T[r]}")
                for r in range(4): V(f"v_exp_f32 v{G+r}, v{G+r}", 8)
                for r in range(4): V(f"v_add_f32 v{G+r}, 1.0, v{G+r}")
                for r in range(4): V(f"v_rcp_f32 v{G+r}, v{G+r}", 8)
                for r in range(4): V(f"v_mul_f32 v{U+r}, v{U+r}, v{G+r}")
                D = acc(4*hf, rb) + 2*c
                V(f"v_cvt_pk_bf16_f32 v{D}, v{U}, v{U+1}"); V(f"v_cvt_pk_bf16_f32 v{D+1}, v{U+2}, v{U+3}")
            st_ = f"buffer_store_dwordx4 {vr(acc(4*hf, rb))}, v{V_L16}, {srd(S_HSRD)}, s{S_T0} offen offset:{rb*1024}{SC}"
            ge.append(Filler(lambda st_=st_: e.vmem(st_, "HST"), 4, "mem", lo, dl, RW(st_) if OPT.get("ooo", 1) else None))
    ge.append(Filler(lambda: e(f"s_lshl_b32 s{S_T0}, s{w}, 14"), 4, "salu", 1792))
    ge.append(Filler(lambda: e(f"s_add_u32 s{S_T0}, s{S_T0}, 131072"), 4, "salu", 1792))
    ge.append(Filler(lambda: e(f"v_add_u32 v{V_QW}, s{S_T0}, v{V_L16}"), 4, "valu", 1792))
    zero_hi = []
    for hf in range(2):
        for dg in (2*hf, 2*hf + 1):
            for qb in range(4):
                lo = 1536 + 256*hf + 192 + 32*(dg % 2) + 16 + 4*qb + 3 + 8
                def V(txt, cost=4, kind="valu", lo=lo): ge.append(Filler(lambda: e(txt), cost, kind, lo))
                o0, o1 = acc(2*dg, qb), acc(2*dg+1, qb)
                for r in range(4): V(f"v_mul_f32 v{o0+r}, {QSCALE:#x}, v{o0+r}"); V(f"v_mul_f32 v{o1+r}, {QSCALE:#x}, v{o1+r}")
                for d, s_ in ((o0, o0), (o0+1, o0+2), (o0+2, o1), (o0+3, o1+2)): V(f"v_cvt_pk_bf16_f32 v{d}, v{s_}, v{s_+1}")
                for r in range(4):
                    if hf: zero_hi.append(f"v_mov_b32 v{o1+r}, 0")
                    else: V(f"v_mov_b32 v{o1+r}, 0")
                ge.append(Filler(lambda o0=o0, qb=qb, dg=dg: e.ds(f"ds_write_b128 v{V_QW}, {vr(o0)} offset:{(qb*4+dg)*1024}", "QW"), 4, "mem", lo))
        for dg in (2*hf, 2*hf + 1):
            for qb in range(4):
                o0 = acc(2*dg, qb)
                for r in range(4): ge.append(Filler(lambda r=r, o0=o0, qb=qb, dg=dg: e(f"v_accvgpr_write_b32 a{A_Q + (qb*4+dg)*4 + r}, v{o0+r}"), 4, "valu", 29*64 + 4))
        ge.append(Filler(lambda: e.need(lg=["QW"]), 4, "salu", 29*64 + 4))
        for dg in (2*hf, 2*hf + 1):
            for qb in range(4):
                for r in range(4):
                    if hf: zero_hi.append(f"v_mov_b32 v{acc(2*dg, qb) + r}, 0")
                    else: ge.append(Filler(lambda r=r, qb=qb, dg=dg: e(f"v_mov_b32 v{acc(2*dg, qb) + r}, 0"), 4, "valu", 29*64 + 4))
        if hf == 0:
            for r in range(64): ge.append(Filler(lambda r=r: e(f"v_accvgpr_write_b32 a{A_DACC + r}, 0"), 4, "valu", 31*64 + 4))
    stamp(e, 1)
    e.need(vm=[("W", 0), ("A", 0)]); e.wait_all(vm=False); e("s_barrier")
    e(f"s_mul_i32 s{S_TAG}, s{S_TAG}, 0x9e3779b1\ns_add_u32 s{S_TAG}, s{S_TAG}, 0x7f4a7c15")
    stamp(e, 2)
    k = 0
    while rd[k].earliest < 0: rd[k].fn(); k += 1
    rest = e.schedule(mfmas, [rd[k:], mfill, cv, misc, rts, st, att_setup_fillers(e, poll_b), ge], flush=False)
    e("s_nop 7")
    e.c(f"left over fillers: {[len(r) for r in rest]}")
    for r in rest:
        for f in r: f.fn()
    stamp(e, 6)
    attention(e, poll_b, poll_c, zero_hi)
    phase_d(e, poll_c)
    if OPT.get("padto"):
        if "padb" in OPT: e(f"s_lshr_b32 s6, s2, 3\ns_cmp_lg_u32 s6, {OPT['padb']}\ns_cbranch_scc1 L_end")
        if "padx" in OPT: e(f"s_and_b32 s6, s2, 7\ns_cmp_lg_u32 s6, {OPT['padx']}\ns_cbranch_scc1 L_end")
        e(f"s_nop 1\nv_readlane_b32 s6, v{V_STAMP}, 0\ns_add_u32 s6, s6, {OPT['padto']*100}")
        if OPT.get("padph"):
            e(f"v_readlane_b32 s4, v{V_STAMP}, {OPT['padph'][0]}\nv_readlane_b32 s5, v{V_STAMP}, {OPT['padph'][1]}\ns_sub_u32 s5, s5, s4\ns_add_u32 s6, s6, s5")
        e.label("L_pad")
        e("s_memrealtime s[4:5]\ns_waitcnt lgkmcnt(0)\ns_sub_u32 s7, s4, s6\ns_cmp_lt_i32 s7, 0\ns_cbranch_scc1 L_pad")
    else: stamp_flush(e)
    e("s_branch L_end")
    e.cold()
    for p in (poll_xn, poll_kv, poll_b, poll_c): p.spin()
    slow_path(e)
    e.label("L_end")
    e("s_endpgm")

A_Z = 212
S_FIRST = 20
def att_dma(e, which, j):
    if " m0," in e.L[-1]: e("s_nop 0")
    sr, src, ld = ((S_ASRD, S_SRCA, S_LA), (S_BSRD, S_SRCB, S_LB))[which]
    e.vmem(f"buffer_load_dwordx4 v{V_L16}, {srd(sr)}, s{S_T4 if j >= 4 else src} offen offset:{(j%4)*1024}{OPT.get('kvsc', SC)} lds", "KV")
    if which == 1 and OPT.get("boob"): ld = S_FIRST + 3
    if j == 3: e(f"s_add_u32 m0, s{ld}, 4096"); e(f"s_add_u32 s{S_T4}, s{src}, 4096")
    if j == 7:
        if which == 0: e(f"s_mov_b32 m0, s{S_FIRST + 3 if OPT.get('boob') else S_LB}\ns_add_u32 s{S_SRCA}, s{S_SRCA}, 16384")
        else: e(f"s_sub_u32 s{S_VMAXB}, s{S_VMAXB}, 16384\ns_min_u32 s{S_SRCB}, s{S_VMAXB}, s{S_VCLB}")
def d_load(e, j):
    so = S_DW if j < 4 else S_DH
    e.vmem(f"buffer_load_dwordx4 {ar(A_DOP + j*4)}, v{V_L16}, {srd(S_DSRD)}, s{so} offen offset:{(j%4)*1024}{OPT.get('kvsc', SC)}", "KV")
    if j % 4 == 3: e(f"s_add_u32 s{so}, s{so}, s{S_DINC}")
class M:
    def __init__(self, txt, tag=None): self.txt, self.tag = txt, tag
def d_mfmas():
    return [M(mf(ar(A_DACC + (mb*4+qb)*4), ar(A_DOP + mb*4), ar(A_DOP + 16 + qb*4), ar(A_DACC + (mb*4+qb)*4))) for mb in range(4) for qb in (range(4) if mb % 2 == 0 else range(3, -1, -1))]
def sm_half(e, buf, kb2):
    ex = []; cv = []
    for p in range(8):
        qb, hh = p // 2, p % 2
        r = Sreg(buf, kb2, qb) + 2*hh
        if OPT.get("noexp"): ex += [NOP, NOP]
        else: ex.append(lambda r=r: e(f"v_exp_f32 v{r}, v{r}")); ex.append(lambda r=r: e(f"v_exp_f32 v{r+1}, v{r+1}"))
        d = Preg(buf, qb) + 2*kb2 + hh
        cv.append(lambda r=r, d=d: e(f"v_perm_b32 v{d}, v{r+1}, v{r}, s{S_WUV}" if OPT.get("perm") else f"v_cvt_pk_bf16_f32 v{d}, v{r}, v{r+1}"))
    return ex, cv
def qk_mfmas(buf, half, tag="FR"):
    out = []
    for kb2 in range(2):
        kb = half*2 + kb2
        for qb in range(4):
            for kk in range(4):
                dg = kk if qb % 2 == 0 else 3 - kk
                d = vr(Sreg(buf, kb2, qb))
                c = d if kk else ("0" if kb < qb else vr(V_TD) if kb == qb else vr(V_TN))
                out.append(M(mf(d, ar(A_FB[0] + (kb2*4+dg)*4), ar(A_Q + (qb*4+dg)*4), c), (tag, 0, kb2*4)))
    return out
def pv_mfmas(buf, zero=False, order=range(8)):
    o = []
    for n_, db in enumerate(order):
        for qb in (range(4) if n_ % 2 == 0 else range(3, -1, -1)):
            d = vr(Oreg(db, qb))
            o.append(M(mf(d, ar(A_Z), ar(A_Z), "0")) if zero else M(mf(d, ar(A_FB[1] + db*4), vr(Preg(buf, qb)), d), ("FR", 1, (db // 4)*4)))
    s_ = []
    for qb in range(4):
        d = ar(A_L + qb*4)
        s_.append(M(mf(d, ar(A_Z), ar(A_Z), "0")) if zero else M(mf(d, ar(A_ONE), vr(Preg(buf, qb)), d)))
    if OPT.get("nosum"): s_ = [M("s_nop 0")]*4
    return o, s_
def frag_reads(e, fb_, off, order=range(8), tag="FR"):
    return [lambda j=j: e.ds(f"ds_read_b128 {ar(A_FB[fb_] + j*4)}, v{V_RD} offset:{off + j*1024}", (tag, fb_, (j // 4)*4)) for j in order]
NOP = lambda: None
def run(e, mfmas, gaps, nxt=None):
    if mfmas[0].tag: e.need(lg=[mfmas[0].tag])
    for i, m in enumerate(mfmas):
        if m.txt: e(m.txt)
        t = mfmas[i+1].tag if i + 1 < len(mfmas) else nxt
        if t: e.need(lg=[t])
        for f in gaps.get(i, ()): f()
def section(e, mfmas, reads, ex, cv, carry, g2, nxt=None, tail=None):
    gaps = {}
    for q in range(8):
        gaps[4*q] = [reads[q], (carry or NOP) if q == 0 else cv[q-1]]
        gaps[4*q+1] = [ex[2*q]]; gaps[4*q+2] = [g2[q]]; gaps[4*q+3] = [ex[2*q+1]]
    if len(mfmas) > 32: gaps[32] = [cv[7]]
    for k, f in (tail or {}).items(): gaps.setdefault(k, []).insert(0, f)
    run(e, mfmas, gaps, nxt)
    return cv[7] if len(mfmas) == 32 else None
S_LIM = S_WUV + 1
PREP = [f"s_cmp_le_u32 s{S_N}, 15\ns_cselect_b32 s{S_T0}, 32768, s{S_T1}", f"s_cmp_le_u32 s{S_N}, s{S_LIM}\ns_cselect_b32 s{S_ASRD+2}, {WS_END}, 0", f"s_add_u32 s{S_T3}, s{S_N}, 2\ns_xor_b32 s{S_LB}, s{S_LB}, s{S_T0}",
        f"s_cmp_ge_u32 s{S_T3}, s{S_N0}\ns_cselect_b32 s{S_BSRD+2}, s{S_ASRD+2}, 0" + (f"\ns_cselect_b32 s{S_FIRST+3}, s{S_LB}, s{S_T1}" if OPT.get("boob") else ""), f"s_xor_b32 s{S_LA}, s{S_LA}, s{S_T0}\ns_mov_b32 m0, s{S_LA}"]
PREP0 = f"s_mov_b32 s{S_T1}, 0x30000"
LR = V_TMP[10:14]
def check_lines(ret, qt):
    return [f"v_min3_f32 v{V_LIM+1}, v{LR[0]}, v{LR[1]}, v{LR[2]}\nv_add_f32 v{V_LIM}, v{LR[0]}, v{LR[1]}",
            f"v_add_f32 v{V_LIM}, v{V_LIM}, v{LR[2]}\nv_min_f32 v{V_LIM+1}, v{V_LIM+1}, v{LR[3]}",
            f"s_mov_b32 s{S_RET}, {ret}\nv_add_f32 v{V_LIM}, v{V_LIM}, v{LR[3]}\nv_cmp_nle_f32 vcc, 0x17800000, v{V_LIM+1}",
            f"s_mov_b64 s[{S_FL}:{S_FL+1}], vcc\ns_mov_b32 s{S_CNT}, s{qt}\nv_cmp_nge_f32 vcc, {OPT.get('lhi', 0x67800000):#x}, v{V_LIM}",
            f"s_or_b64 vcc, vcc, s[{S_FL}:{S_FL+1}]\n" + ("s_nop 0" if OPT.get("noslow") else "s_cbranch_vccnz L_slow")]
def bsel(r):
    return (f"v[{r & ~1}:{(r & ~1) + 1}]", "op_sel:[0,1] op_sel_hi:[1,1]" if r & 1 else "op_sel_hi:[1,0]")
def norm_items(e, dbs, sbase, pk=False):
    it = []
    for dg in sorted({d // 2 for d in dbs}):
        it.append((lambda dg=dg: e(f"s_add_u32 s{S_T0}, s{sbase}, {dg*4096}"), 0, 2*dg+1))
        for qb in range(4):
            o0, o1 = Oreg(2*dg, qb), Oreg(2*dg+1, qb)
            for r in range(4):
                for o in (o0, o1):
                    if not pk: it.append((lambda o=o, r=r, qb=qb: e(f"v_mul_f32 v{o+r}, v{o+r}, v{LR[qb]}"), 4, 2*dg+1))
                    elif r % 2 == 0: it.append((lambda o=o, r=r, qb=qb: e(f"v_pk_mul_f32 {vr(o+r, 2)}, {vr(o+r, 2)}, {bsel(LR[qb])[0]} {bsel(LR[qb])[1]}"), 4, 2*dg+1))
            for d, s_ in ((o0, o0), (o0+1, o0+2), (o0+2, o1), (o0+3, o1+2)): it.append((lambda d=d, s_=s_: e(f"v_cvt_pk_bf16_f32 v{d}, v{s_}, v{s_+1}"), 4, 2*dg+1))
            it.append((lambda o0=o0, qb=qb: e.vmem(f"buffer_store_dwordx4 {vr(o0)}, v{V_L16}, {srd(S_WS)}, s{S_T0} offen offset:{qb*1024}{SC}", "CST"), 8, 2*dg+1))
    return it
def emit_items(items, extra=()):
    extra = list(extra)
    for f, c, _ in items:
        f()
        if c == 8:
            for _ in range(2):
                if extra: extra.pop(0)()
    for f in extra: f()
def sm_tail(e, order=range(8)):
    ex, cv = sm_half(e, 1, 1)
    for f in frag_reads(e, 1, 16384, order): f()
    for p in range(8):
        ex[2*p](); ex[2*p+1]()
        if p: cv[p-1]()
    e("s_nop 0"); cv[7]()

S_WOo, S_AC = S_OFF0, S_OFFA
WSLOT = [14, 15, 4, 5, 13, 12, 6, 7, 0, 1, 2, 3, -2, -3, 8, 9, 10, 11]
NWS = len(WSLOT)
def wreg(n, q):
    s_ = WSLOT[n % NWS]
    return ar(s_*16 + q*4) if s_ >= 0 else vr(-s_*16 + q*4)
def wo_load(e, n, q):
    e.vmem(f"buffer_load_dwordx4 {wreg(n, q)}, v{V_L16}, {srd(S_WS)}, s{S_WOo} offen offset:{q*1024}{SC}", ("WO", n))
    if q == 3: e(f"s_add_u32 s{S_WOo}, s{S_WOo}, 4096")

V_TRI = (9, 10, 11, 30)
V_SIG, V_TAGV, V_QA, V_ONE = 12, 13, 14, 15
S_D1, S_D2, S_M = S_FIRST + 2, S_FIRST, S_FIRST + 1
def att_setup_fillers(e, poll_b):
    i, h, w = S_BLK, S_HEAD, S_WAVE
    out = []
    def add(lo, hi, txt):
        for t in txt.split("\n"):
            t = t.strip()
            out.append(Filler(lambda t=t: e(t.replace(" ! ", "\n")), 4, "salu" if t.startswith("s_") else "valu", lo, hi))
    a, b, c, d = V_TRI; pv = poll_b.voff; t = S_M
    lo, hi = 17*64 + 10, 20*64
    add(lo, hi, f"""v_lshrrev_b32 v{d}, 4, v{V_LANE}
    v_lshlrev_b32 v{d}, 2, v{d}
    v_and_b32 v{a}, 15, v{V_LANE}
    v_sub_u32 v{a}, v{a}, v{d}
    v_subrev_u32 v{b}, 1, v{a}
    v_subrev_u32 v{c}, 2, v{a}
    v_subrev_u32 v{d}, 3, v{a}""")
    for r in V_TRI: add(lo, hi, f"v_ashrrev_i32 v{r}, 31, v{r}\nv_and_b32 v{r}, {NEGINF:#x}, v{r}")
    add(lo, hi, f"""s_lshr_b32 s{t}, s{h}, 1
    s_sub_u32 s{S_D1}, 15, s{t}
    s_min_u32 s{t}, s{t}, s{S_D1}
    s_lshl_b32 s{t}, s{t}, 9
    s_add_u32 s{t}, s{t}, {WS_FB}
    v_bfe_u32 v{pv}, v{V_LANE}, 3, 2
    v_lshlrev_b32 v{pv}, 5, v{pv}
    v_and_or_b32 v{pv}, v{V_LANE}, 7, v{pv}
    v_lshlrev_b32 v{pv}, 2, v{pv}
    v_add_u32 v{pv}, s{t}, v{pv}
    s_lshl_b32 s{S_TRANS}, s{i}, 1
    s_add_u32 s{S_TRANS}, s{S_TRANS}, s{w}
    s_sub_u32 s{S_TRANS}, s{S_TRANS}, 1
    s_sub_u32 s{S_D1}, s{S_TRANS}, 1
    s_add_u32 s{S_D2}, s{S_TRANS}, 1
    s_cmp_eq_u32 s{i}, 7 ! s_cselect_b32 s{t}, 16, 99
    s_cmp_eq_u32 s{w}, 0 ! s_cselect_b32 s{t}, s{t}, 99
    s_cmp_lt_u32 s{w}, 2 ! s_cselect_b32 s{S_D1}, s{t}, s{S_D1}
    s_cmp_lt_u32 s{w}, 2 ! s_cselect_b32 s{S_D2}, 99, s{S_D2}
    s_cmp_lt_u32 s{w}, 2 ! s_cselect_b32 s{S_TRANS}, 17, s{S_TRANS}
    s_sub_u32 s{S_VMAXB}, s{S_VMAXB}, 16384
    s_min_u32 s{S_SRCB}, s{S_VMAXB}, s{S_VCLB}
    s_lshr_b32 s{t}, s2, 3
    s_lshl_b32 s{t}, s{t}, 5
    s_and_b32 s{S_FIRST+3}, s2, 7
    s_add_u32 s{t}, s{t}, s{S_FIRST+3}
    s_lshl_b32 s{t}, s{t}, 2
    s_add_u32 s{t}, s{t}, {WS_FB}
    s_sub_u32 s{S_FIRST+3}, 3, s{w}
    s_lshl_b32 s{S_FIRST+3}, s{S_FIRST+3}, 14
    s_add_u32 s{S_FIRST+3}, s{S_FIRST+3}, 131072""")
    lo, hi = 28*64, 31*64
    add(lo, hi, f"""v_mov_b32 v{V_TAGV}, s{S_TAG}
    v_add_u32 v{V_SIG}, s{S_WL}, v{V_LANE}
    v_min_u32 v{V_SIG}, 1, v{V_SIG}
    v_lshlrev_b32 v{V_SIG}, 30, v{V_SIG}
    v_add_u32 v{V_SIG}, s{t}, v{V_SIG}
    v_add_u32 v{V_QA}, s{S_FIRST+3}, v{V_L16}
    v_and_b32 v{V_ONE}, 3, v{V_LANE}
    v_subrev_u32 v{V_ONE}, 1, v{V_ONE}
    v_ashrrev_i32 v{V_ONE}, 31, v{V_ONE}
    v_and_b32 v{V_ONE}, 0x3f803f80, v{V_ONE}
    s_mov_b32 s{S_T2}, 1
    s_lshr_b32 s{S_LIM}, s{w}, 1
    s_add_u32 s{S_N0}, s{S_N0}, s{S_LIM}
    s_add_u32 s{S_LIM}, s{S_LIM}, 14
    s_mov_b32 s{S_N}, -1
    s_mov_b32 s{S_DSRD+2}, 0""")
    return out

def Sq(c): return V_S[0] + c*4
def ring(g, j): return A_FB[0] + (g % 4)*16 + j*4
def qk2(tag="FR"):
    out = []
    for c in range(16):
        kb, qb = c // 4, c % 4
        for kk in range(4):
            dg = kk if c % 2 == 0 else 3 - kk
            d = vr(Sq(c))
            cc = d if kk else ("0" if kb < qb else vr(V_TD) if kb == qb else vr(V_TN))
            out.append(M(mf(d, ar(ring(kb, dg)), ar(A_Q + (qb*4+dg)*4), cc), (tag, kb)))
    return out
def pv2(order=(0, 1, 2, 3)):
    o = []; c = 0
    for n, p in enumerate(order):
        for x in range(2):
            for qb in (range(4) if x == 0 else range(3, -1, -1)):
                d = vr(Oreg(2*p + x, qb))
                for kg in ((0, 1) if c % 2 == 0 else (1, 0)):
                    o.append(M(mf(d, ar(ring(n, x*2 + kg)), vr(Preg(kg, qb)), d), ("FR", 4 + n)))
                c += 1
    s_ = [M(mf(ar(A_L + qb*4), ar(A_ONE), vr(Preg(kg, qb)), ar(A_L + qb*4))) for qb in range(4) for kg in range(2)]
    return o, s_
def kreads(e, g, tag="FR"): return [lambda j=j: e.ds(f"ds_read_b128 {ar(ring(g, j))}, v{V_RD} offset:{g*4096 + j*1024}", (tag, g)) for j in range(4)]
def vreads(e, n, p): return [lambda j=j: e.ds(f"ds_read_b128 {ar(ring(n, j))}, v{V_RD} offset:{16384 + (j % 2)*8192 + (2*p + j // 2)*1024}", ("FR", 4 + n)) for j in range(4)]
def cvt2(c, hh): return f"v_cvt_pk_bf16_f32 v{Preg(c // 8, c % 4) + 2*((c // 4) % 2) + hh}, v{Sq(c) + 2*hh}, v{Sq(c) + 2*hh + 1}"
def exp2(k): return f"v_exp_f32 v{V_S[0] + k}, v{V_S[0] + k}"
def drain_head(e, order):
    e.need(lg=[("FR", 1)])
    rd_ = [f for n, p in enumerate(order) for f in vreads(e, n, p)]
    for f in rd_[:8]: f()
    for c in range(1, 16):
        e(cvt2(c, 0)); e(cvt2(c, 1))
    for f in rd_[8:]: f()

def attention(e, poll_b, poll_c, zero_hi):
    i, h, w = S_BLK, S_HEAD, S_WAVE
    T = lambda t: (lambda: e(t))
    A = [lambda j=j: att_dma(e, 0, j) for j in range(8)]; B = [lambda j=j: att_dma(e, 1, j) for j in range(8)]; D = [lambda j=j: d_load(e, j) for j in range(8)]
    e(f"v_add_u32 v{V_RD}, 65536, v{V_L16}")
    e.need(vm=[("KV", 0), "HST", "RTST"], lg=["QW"])
    e("s_barrier")
    for g in range(2):
        for f in kreads(e, g, "F0"): f()
    e.vmem(f"buffer_store_dword v{V_TAGV}, v{V_SIG}, {srd(S_WS)}, 0 offen sc1", "SIG")
    MS = [f"s_add_u32 s{S_N}, s{S_N}, 1", f"s_cmp_eq_u32 s{S_N}, s{S_D1}\ns_cselect_b32 s{S_M}, -1, 0", f"s_cmp_eq_u32 s{S_N}, s{S_D2}\ns_cselect_b32 s{S_M}, -1, s{S_M}",
          f"v_and_b32 v{V_TD}, s{S_M}, v{V_TRI[0]}\nv_and_b32 v{V_TD+1}, s{S_M}, v{V_TRI[1]}", f"v_and_b32 v{V_TD+2}, s{S_M}, v{V_TRI[2]}\nv_and_b32 v{V_TD+3}, s{S_M}, v{V_TRI[3]}",
          f"s_and_b32 s{S_M}, s{S_M}, {NEGINF:#x}\nv_mov_b32 v{V_TN}, s{S_M}\nv_mov_b32 v{V_TN+1}, s{S_M}", f"v_mov_b32 v{V_TN+2}, s{S_M}\nv_mov_b32 v{V_TN+3}, s{S_M}"]
    for t in MS: e(t)
    e(f"s_xor_b32 s{S_LA}, s{S_LA}, 32768")
    XRD = f"v_xor_b32 v{V_RD}, 32768, v{V_RD}"
    CV0 = cvt2(0, 0) + "\n" + cvt2(0, 1)
    def itstamp(dn=0):
        if OPT.get("itst"):
            e(f"s_memtime s[4:5]\nv_subrev_u32 v5, {14 - dn}, v{V_LANE}\nv_cmp_eq_u32 vcc, s{S_N}, v5\ns_waitcnt lgkmcnt(0)\nv_mov_b32 v5, s4\nv_cndmask_b32 v{V_STAMP}, v{V_STAMP}, v5, vcc")
    stamp(e, 7)
    init = [f"v_accvgpr_write_b32 a{A_L + r}, 0" for r in range(16)] + [f"v_accvgpr_write_b32 a{A_Z + r}, 0" for r in range(4)]
    init += [f"v_accvgpr_write_b32 a{A_ONE + r}, v{V_ONE}" for r in range(4)] + zero_hi
    for _ in range(8): e(init.pop())
    gaps = {}; ne = 0
    kr = kreads(e, 2, "F0") + kreads(e, 3, "F0")
    pre = [PREP0] + PREP + [XRD]
    for k in range(64):
        g = gaps[k] = []
        if k % 2 == 0 and kr: g.append(kr.pop(0)); g.append(T(init.pop()))
        elif k >= 50 and k % 2 == 0: g.append(T(pre.pop(0)))
        elif init: g.append(T(init.pop())); g.append(T(init.pop()))
        else: g.append(T(exp2(ne))); ne += 1
    assert not init and not pre
    gaps[63].insert(0, lambda: e.wait_all())
    run(e, qk2("F0"), gaps)
    e("s_barrier")
    itstamp()
    mem = [f for p in zip(A, kreads(e, 0) + kreads(e, 1)) for f in p] + B[:4]
    while mem or ne < 64:
        if mem: mem.pop(0)()
        for _ in range(3):
            if ne < 64: e(exp2(ne)); ne += 1
    for t in MS: e(t)
    e(CV0)
    e.need(lg=[("FR", 0)])
    top = [("FR", 1)]*4
    assert e.lgkm == top, e.lgkm
    e("s_branch L_special")
    e(".p2align 6")
    e.c("attention step: S = K Q^T (64) | O += V P of the previous tile (64+8) | one down-projection step (16)")
    e.label("L_body")
    def loop_body(first):
        e.lgkm = list(top)
        gaps = {k: [] for k in range(152)}
        rds = kreads(e, 2) + kreads(e, 3) + ([] if first else vreads(e, 0, 0) + vreads(e, 1, 1))
        for n, f in enumerate(rds): gaps[4*n].append(f)
        for n, f in enumerate(kreads(e, 0) + kreads(e, 1)): gaps[100 + 4*n].append(f)
        for n, f in enumerate(B[4:] + D): gaps[2 + 4*n].append(f)
        for n, f in enumerate(A + B[:4]): gaps[98 + 4*n].append(f)
        if not first:
            for n, f in enumerate(vreads(e, 2, 2) + vreads(e, 3, 3)): gaps[64 + 2*n].append(f)
            for c in range(1, 16):
                gaps[4*(c-1)].append(T(cvt2(c, 0)))
                gaps[1 + 2*((c - 1)//2)].append(T(cvt2(c, 1)))
        for k in range(64): gaps[17 + 2*k].append(T(exp2(k)))
        gaps[58].append(lambda: e.vmem(poll_b.ld, "KV"))
        gaps[62].append(T(PREP0))
        for n, t in enumerate(PREP + [XRD + chr(10) + MS[0]] + MS[1:3]): gaps[80 + 2*n].append(T(t))
        for n, t in enumerate(MS[3:]): gaps[132 + 4*n].append(T(t))
        gaps[146].append(T(CV0)); gaps[150].append(T(f"s_cmp_eq_u32 s{S_N}, s{S_T2}"))
        gaps[95].insert(0, lambda: e.wait_all())
        gaps[95].append(lambda: (e("s_barrier"), itstamp(1)))
        o, s_ = pv2()
        if first:
            zo, zl = pv_mfmas(1, zero=True)
            o = [M("")]*32 + zo; s_ = zl + [M("")]*4
        run(e, qk2() + o + s_ + d_mfmas(), gaps, nxt=("FR", 0))
        assert e.lgkm == top, e.lgkm
        e("s_cbranch_scc0 L_body")
    loop_body(False)
    e.label("L_special")
    e(f"""s_cmp_lt_u32 s{S_N}, 3
    s_cselect_b32 s{S_T2}, 3, 17
    s_min_u32 s{S_T2}, s{S_T2}, s{S_TRANS}
    s_cmp_eq_u32 s{S_N}, 3
    s_cbranch_scc0 L_late""")
    e(poll_b.test())
    e("s_cbranch_scc0 L_spin_b")
    e.label("L_ok_b")
    e(f"s_mov_b32 s{S_DSRD+2}, {WS_END}\ns_mov_b32 s{S_DINC}, 4096")
    e.label("L_late")
    e(f"s_cmp_eq_u32 s{S_N}, s{S_D2}\ns_cbranch_scc1 L_first")
    e(f"s_cmp_eq_u32 s{S_N}, s{S_TRANS}\ns_cbranch_scc0 L_body")
    e(f"s_cmp_eq_u32 s{S_N}, 17\ns_cbranch_scc0 L_trans")
    LRD = [f"v_accvgpr_read_b32 v{LR[0]}, a{A_L}\nv_accvgpr_read_b32 v{LR[1]}, a{A_L+4}", f"v_accvgpr_read_b32 v{LR[2]}, a{A_L+8}\nv_accvgpr_read_b32 v{LR[3]}, a{A_L+12}"]
    def cold():
        e.label("L_trans")
        e.lgkm = list(top); e.vm = ["KV"]*13
        qr = [lambda j=j: e.ds(f"ds_read_b128 {ar(A_Q + j*4)}, v{V_QA} offset:{j*1024}", "QS") for j in range(16)]
        rcp = [f"v_rcp_f32 v{LR[qb]}, v{LR[qb]}" for qb in range(4)]
        drain_head(e, (0, 1, 2, 3))
        o, s_ = pv2()
        gaps = {k: [f] for k, f in enumerate(B[4:] + D + [lambda: e.vmem(poll_b.ld, "KV")])}
        for k, t in enumerate(LRD + check_lines(0, S_QT) + rcp): gaps[13 + k] = [T(t)]
        items = norm_items(e, range(8), S_CTXLO)
        XB = f"v_xor_b32 v{V_RD}, {32768 + 65536}, v{V_RD}"
        def fill(g, k, left):
            while items and items[0][1] <= left and 8 + 8*(items[0][2] + 1) - 1 + 5 <= k:
                f, c, _ = items.pop(0); g.append(f); left -= c
        gaps[24] = [T(XB)]
        for k in range(25, 72):
            gaps[k] = []; fill(gaps[k], k, 8)
        run(e, s_ + o, gaps)
        def post():
            e(PREP0)
            for t in PREP: e(t.replace(f"s{S_T0}", f"s{S_T5}"))
            e.need(vm=["KV"])
            e("s_barrier")
            itstamp()
            mem = A + B[:4]; lds = qr + kreads(e, 0) + kreads(e, 1)
            gaps = {k: [mem.pop(0)] if k % 4 == 0 else [lds.pop(0), lds.pop(0)] for k in range(16)}
            run(e, d_mfmas(), gaps)
            extra = []
            for f in mem: extra += [f, NOP]
            emit_items(items, extra) if items else [(f(), e("s_nop 0")) for f in mem]
            del items[:]
            for t in MS: e(t)
            e(f"s_mov_b32 s{S_TRANS}, 17")
            e.need(lg=[("FR", 0)])
            assert e.lgkm == top, e.lgkm
            e("s_branch L_special")
        post()
        e.label("L_first")
        e(f"s_cmp_eq_u32 s{S_N}, 17\ns_cbranch_scc1 L_fzero")
        loop_body(True)
        e("s_branch L_special")
        e.label("L_fzero")
        for r in list(range(V_O, V_O + 128)) + list(range(V_S[0], V_S[0] + 64)) + [Preg(0, 0), Preg(0, 0) + 1]: e(f"v_mov_b32 v{r}, 0")
        for r in range(16): e(f"v_accvgpr_write_b32 a{A_L + r}, 0")
        e("s_branch L_final")
        e.label("L_ret0")
        e.lgkm = []; e.vm = []
        for t in rcp: e(t)
        e(XB)
        emit_items(norm_items(e, range(8), S_CTXLO))
        post()
    e.cold = cold
    e.c("last P V, merge of the two key ranges of the hi rows, range check of the row sums, ctx store")
    e.label("L_final")
    stamp(e, 8)
    tw, trd, tl, tlr = V_TMP[0:4]
    e(f"""s_lshl_b32 s{S_T0}, s{w}, 17
    s_lshl_b32 s{S_AC}, s{h}, 19
    s_add_u32 s{S_AC}, s{S_AC}, s{S_T0}
    s_add_u32 s{S_AC}, s{S_AC}, {WS_CTX}
    s_lshl_b32 s{S_WOo}, s{i}, 19
    s_add_u32 s{S_WOo}, s{S_WOo}, s{S_T0}
    s_add_u32 s{S_WOo}, s{S_WOo}, {WS_WOF}
    s_and_b32 s{S_T0}, s{w}, 1
    s_lshl_b32 s{S_T0}, s{S_T0}, 14
    s_lshr_b32 s{S_T1}, s{w}, 1
    s_lshl_b32 s{S_T1}, s{S_T1}, 16
    s_add_u32 s{S_T0}, s{S_T0}, s{S_T1}
    v_add_u32 v{tw}, s{S_T0}, v{V_L16}
    v_xor_b32 v{trd}, {65536 + 16384}, v{tw}
    s_add_u32 s{S_T0}, s{S_WL}, {144*1024}
    v_add_u32 v{tl}, s{S_T0}, v{V_L16}
    v_xor_b32 v{tlr}, 3072, v{tl}
    s_cmp_ge_u32 s{w}, 2
    s_cbranch_scc1 L_mergeB""")
    for role in range(2):
        keep = list(range(4)) if role == 0 else list(range(4, 8))
        send = list(range(4, 8)) if role == 0 else list(range(4))
        if role == 1: e.label("L_mergeB")
        e.lgkm = list(top); e.vm = ["KV"]*13
        order = (2, 3, 0, 1) if role == 0 else (0, 1, 2, 3)
        drain_head(e, order)
        o, s_ = pv2(order)
        gaps = {2*k: [lambda k=k: wo_load(e, k // 4, k % 4)] for k in range(8)}
        for k in range(8): gaps[45 + 3*k] = [lambda k=k: wo_load(e, 2 + k // 4, k % 4)]
        gaps[17] = [T(LRD[0])]; gaps[18] = [T(LRD[1])]
        gaps[19] = [lambda: e.ds(f"ds_write_b128 v{tl}, {vr(LR[0])}")]
        for n in range(16): gaps[23 + 3*n] = [lambda n=n: e.ds(f"ds_write_b128 v{tw}, {vr(V_O + send[0]*16 + n*4)} offset:{n*1024}")]
        if OPT.get("fst"): stamp(e, 14)
        run(e, s_ + o, gaps)
        if OPT.get("fst"): stamp(e, 15)
        e.wait_all(vm=False)
        e("s_barrier")
        if OPT.get("fst"): stamp(e, 16)
        e.ds(f"ds_read_b128 {vr(V_TMP[4])}, v{tlr}", "ML")
        for n in range(16):
            e.ds(f"ds_read_b128 {vr(V_S[0] + n*4)}, v{trd} offset:{n*1024}", ("MO", n // 4))
            if n % 2: wo_load(e, 4 + n // 8, (n // 2) % 4)
        e.need(lg=["ML"])
        for qb in range(4): e(f"v_add_f32 v{LR[qb]}, v{LR[qb]}, v{V_TMP[4] + qb}")
        for t in check_lines(1 + role, S_QTHI): e(t)
        for n in range(16):
            e.need(lg=[("MO", n // 4)])
            for r in (0, 2):
                o = V_O + keep[0]*16 + n*4 + r
                e(f"v_pk_add_f32 {vr(o, 2)}, {vr(o, 2)}, {vr(V_S[0] + n*4 + r, 2)}")
        e.label(f"L_ret{1 + role}")
        for q in range(4): wo_load(e, 6, q)
        if OPT.get("fst"): stamp(e, 17)
        for qb in range(4): e(f"v_rcp_f32 v{LR[qb]}, v{LR[qb]}")
        emit_items(norm_items(e, keep, S_CTXHI, pk=True))
        if role == 0: e("s_branch L_attdone")
    e.c("phase D")
    e.label("L_attdone")
    stamp(e, 9)

def slow_path(e):
    M = V_P[1]; AL = V_P[1] + 4; T = V_P[1] + 8; QI = V_P[1] + 12; NI = V_P[1] + 13
    u, nu, ko, vo = S_T0, S_T1, S_T3, S_T5
    e.c("fallback: exact online softmax with the true running max for the 64 rows of this wave")
    e.label("L_slow")
    e.lgkm = []; e.vm = []
    e("s_waitcnt vmcnt(0) lgkmcnt(0)")
    e(f"""s_lshl_b32 s{nu}, s{S_CNT}, 1
    s_add_u32 s{nu}, s{nu}, 2
    s_lshl_b32 s{ko}, s{S_HEAD}, 19
    s_add_u32 s{vo}, s{ko}, {WS_V}
    s_add_u32 s{ko}, s{ko}, {WS_K}
    s_lshl_b32 s{S_CNT}, s{S_CNT}, 6
    v_lshrrev_b32 v{T}, 4, v{V_LANE}
    v_lshlrev_b32 v{T}, 2, v{T}
    v_and_b32 v{QI}, 15, v{V_LANE}
    v_sub_u32 v{QI}, v{QI}, v{T}
    v_add_u32 v{QI}, s{S_CNT}, v{QI}
    v_mov_b32 v{NI}, {NEGINF:#x}
    s_mov_b32 s{u}, 0""")
    for r in range(128): e(f"v_mov_b32 v{V_O + r}, 0")
    for qb in range(4): e(f"v_mov_b32 v{M+qb}, v{NI}\nv_mov_b32 v{LR[qb]}, 0")
    e.label("L_slowl")
    def ld8(so):
        for j in range(8):
            if j == 4: e(f"s_add_u32 s{so}, s{so}, 4096")
            e.vmem(f"buffer_load_dwordx4 {ar(A_FB[1] + j*4)}, v{V_L16}, {srd(S_WS)}, s{so} offen offset:{(j%4)*1024}{SC}", "SL")
        e(f"s_add_u32 s{so}, s{so}, 4096")
    ld8(ko)
    e.wait_all()
    for kb2 in range(2):
        for dg in range(4):
            for qb in range(4):
                d = vr(Sreg(0, kb2, qb))
                e(mf(d, ar(A_FB[1] + (kb2*4+dg)*4), ar(A_Q + (qb*4+dg)*4), d if dg else "0"))
    e("s_nop 7")
    ld8(vo)
    for kb2 in range(2):
        for qb in range(4):
            for r in range(4):
                s = Sreg(0, kb2, qb) + r
                e(f"v_cmp_gt_i32 vcc, {16*kb2 + r - 16*qb}, v{QI}\ns_nop 1\nv_cndmask_b32 v{s}, v{s}, v{NI}, vcc")
    e(f"v_subrev_u32 v{QI}, 32, v{QI}")
    for qb in range(4):
        a, b = Sreg(0, 0, qb), Sreg(0, 1, qb)
        e(f"""v_max3_f32 v{T}, v{a}, v{a+1}, v{a+2}
        v_max3_f32 v{T}, v{T}, v{a+3}, v{b}
        v_max3_f32 v{T}, v{T}, v{b+1}, v{b+2}
        v_max3_f32 v{T}, v{T}, v{b+3}, v{M+qb}
        v_mov_b32 v{T+1}, v{T}
        s_nop 1
        v_permlane32_swap_b32 v{T}, v{T+1}
        v_max_f32 v{T}, v{T}, v{T+1}
        v_mov_b32 v{T+1}, v{T}
        s_nop 1
        v_permlane16_swap_b32 v{T}, v{T+1}
        v_max_f32 v{T}, v{T}, v{T+1}
        v_sub_f32 v{AL+qb}, v{M+qb}, v{T}
        v_mov_b32 v{M+qb}, v{T}
        v_exp_f32 v{AL+qb}, v{AL+qb}""")
        for s in list(range(a, a+4)) + list(range(b, b+4)):
            e(f"v_sub_f32 v{s}, v{s}, v{T}")
        for s in list(range(a, a+4)) + list(range(b, b+4)):
            e(f"v_exp_f32 v{s}, v{s}")
        e(f"v_mul_f32 v{LR[qb]}, v{LR[qb]}, v{AL+qb}")
        for s in list(range(a, a+4)) + list(range(b, b+4)):
            e(f"v_add_f32 v{LR[qb]}, v{LR[qb]}, v{s}")
        p = Preg(0, qb)
        e(f"v_cvt_pk_bf16_f32 v{p}, v{a}, v{a+1}\nv_cvt_pk_bf16_f32 v{p+1}, v{a+2}, v{a+3}\nv_cvt_pk_bf16_f32 v{p+2}, v{b}, v{b+1}\nv_cvt_pk_bf16_f32 v{p+3}, v{b+2}, v{b+3}")
        for db in range(8):
            for r in range(4): e(f"v_mul_f32 v{Oreg(db, qb)+r}, v{Oreg(db, qb)+r}, v{AL+qb}")
    e.wait_all()
    e("s_nop 1")
    for db in range(8):
        for qb in range(4):
            d = vr(Oreg(db, qb))
            e(mf(d, ar(A_FB[1] + db*4), vr(Preg(0, qb)), d))
    e(f"s_add_u32 s{u}, s{u}, 1\ns_cmp_lt_u32 s{u}, s{nu}\ns_nop 7\ns_cbranch_scc1 L_slowl")
    for qb in range(4):
        e(f"""v_mov_b32 v{T}, v{LR[qb]}
        s_nop 1
        v_permlane32_swap_b32 v{LR[qb]}, v{T}
        v_add_f32 v{LR[qb]}, v{LR[qb]}, v{T}
        v_mov_b32 v{T}, v{LR[qb]}
        s_nop 1
        v_permlane16_swap_b32 v{LR[qb]}, v{T}
        v_add_f32 v{LR[qb]}, v{LR[qb]}, v{T}""")
    e(f"s_cmp_eq_u32 s{S_RET}, 0\ns_cbranch_scc1 L_ret0\ns_cmp_eq_u32 s{S_RET}, 1\ns_cbranch_scc1 L_ret1\ns_branch L_ret2")


def phase_d(e, poll_c):
    qt, mt, w = S_HEAD, S_BLK, S_WAVE
    V_XO, V_X, V_G = 4, 8, 17
    CRS = [64, 80, 96, 112, 208, 224, 240][:OPT.get('ncr', 5)]; NCR = len(CRS)
    V_AS, V_AD = 128, 192
    t0, t1 = 24, 25
    S_XO, S_XO2 = S_XNB, S_HST
    V_WA = (V_TMP[0], V_TMP[2]); V_RA = (t0, V_TMP[3], V_G, V_TMP[4])
    e(f"""v_lshrrev_b32 v{t0}, 5, v{V_LANE}
    v_lshlrev_b32 v{t0}, 6, v{t0}
    v_xor_b32 v{V_WA[0]}, v{V_WA[0]}, v{t0}
    v_xor_b32 v{V_WA[1]}, 128, v{V_WA[0]}""")
    for j in range(16):
        e.ds(f"ds_write_b128 v{V_WA[(j // 4) % 2]}, {ar(A_DACC + j*4)} offset:{32768 + ((j%4)*4 + j//4)*1024}", "DW")
        if j < OPT.get("wpre", 12): wo_load(e, 7 + j // 4, j % 4)
    e(f"""v_lshrrev_b32 v{t0}, 3, v{V_LANE}
    v_and_b32 v{t1}, 7, v{V_LANE}
    v_lshlrev_b32 v{V_XO}, 10, v{t0}
    v_lshl_add_u32 v{V_XO}, v{t1}, 4, v{V_XO}
    v_lshlrev_b32 v{t0}, 4, v{t0}
    v_lshl_add_u32 v{t0}, v{t1}, 9, v{t0}
    s_lshl_b32 s{S_XO}, s{qt}, 16
    s_lshl_b32 s{S_T0}, s{w}, 14
    s_add_u32 s{S_XO}, s{S_XO}, s{S_T0}
    s_lshl_b32 s{S_T1}, s{mt}, 7
    s_add_u32 s{S_XO}, s{S_XO}, s{S_T1}
    s_add_u32 s{S_XO2}, s{S_XO}, 8192
    v_and_b32 v{t1}, 3, v{V_LANE}
    v_lshlrev_b32 v{t1}, 6, v{t1}
    v_xor_b32 v{t0}, v{t0}, v{t1}
    s_lshl_b32 s{S_T0}, s{w}, 12
    v_add_u32 v{V_RA[0]}, s{S_T0}, v{t0}
    v_xor_b32 v{V_RA[1]}, 128, v{V_RA[0]}
    v_add_u32 v{V_RA[2]}, 65536, v{V_RA[0]}
    v_add_u32 v{V_RA[3]}, 65536, v{V_RA[1]}""")
    if OPT.get("pollw", 1):
        v = poll_c.voff
        e(f"""s_lshr_b32 s{S_T0}, s{qt}, 1
        s_sub_u32 s{S_T1}, 15, s{S_T0}
        s_min_u32 s{S_T0}, s{S_T0}, s{S_T1}
        s_lshl_b32 s{S_T0}, s{S_T0}, 9
        s_lshl_b32 s{S_T1}, s{w}, 3
        s_add_u32 s{S_T0}, s{S_T0}, s{S_T1}
        s_add_u32 s{S_T0}, s{S_T0}, {WS_FC}
        v_and_b32 v{v}, 3, v{V_LANE}
        v_lshlrev_b32 v{v}, 7, v{v}
        v_and_or_b32 v{v}, v{V_LANE}, 4, v{v}
        v_add_u32 v{v}, s{S_T0}, v{v}""")
    else: poll32_addr(e, poll_c.voff, WS_FC)
    if OPT.get("fst"): stamp(e, 18)
    e.need(vm=["CST"]); e.wait_all(vm=False)
    if OPT.get("fst"): stamp(e, 19)
    e("s_barrier")
    if OPT.get("fst"): stamp(e, 20)
    signal(e, sig_lin(WS_FC), 26)
    for sw in range(4):
        for mb in range(4): e.ds(f"ds_read_b128 {vr(V_AD + (sw*4+mb)*4)}, v{V_RA[(sw // 2)*2 + mb // 2]} offset:{32768 + (sw % 2)*16384 + (mb % 2)*256}", ("R", sw))
    for it in range(2):
        e.vmem(f"buffer_load_dwordx4 {vr(V_X + 4*it)}, v{V_XO}, {srd(S_X)}, s{(S_XO, S_XO2)[it]} offen", "X")
    wl = [lambda n=n, q=q: wo_load(e, n, q) for n in range(7, NWS) for q in range(4)][OPT.get("wpre", 12):]
    cnt = [0]
    def V(t):
        e(t); cnt[0] += 1
        if cnt[0] % 6 == 0 and wl: wl.pop(0)()
    def rnd(base, pk):
        for j in range(8): V(f"v_cvt_pk_bf16_f32 v{pk+j}, v{base+2*j}, v{base+2*j+1}")
        for j in range(8): V(f"v_lshlrev_b32 v{base+2*j}, 16, v{pk+j}"); V(f"v_and_b32 v{base+2*j+1}, 0xffff0000, v{pk+j}")
    def red(base, tag):
        e.need(lg=[(tag, 1)])
        for r in range(0, 16, 2): V(f"v_pk_add_f32 {vr(base+r, 2)}, {vr(base+r, 2)}, {vr(base+16+r, 2)}")
        e.need(lg=[(tag, 2)])
        for r in range(0, 16, 2): V(f"v_pk_add_f32 {vr(base+r, 2)}, {vr(base+r, 2)}, {vr(base+32+r, 2)}")
        e.need(lg=[(tag, 3)])
        for r in range(0, 16, 2): V(f"v_pk_add_f32 {vr(base+r, 2)}, {vr(base+r, 2)}, {vr(base+48+r, 2)}")
    T = V_AD + 16; PK = V_AD + 32
    red(V_AD, "R"); rnd(V_AD, PK)
    for r in range(16): V(f"v_mul_f32 v{T+r}, 0xbfb8aa3b, v{V_AD+r}")
    for r in range(16): V(f"v_exp_f32 v{T+r}, v{T+r}")
    for r in range(16): V(f"v_add_f32 v{T+r}, 1.0, v{T+r}")
    for r in range(16): V(f"v_rcp_f32 v{T+r}, v{T+r}")
    for r in range(16): V(f"v_mul_f32 v{V_AD+r}, v{V_AD+r}, v{T+r}")
    rnd(V_AD, PK)
    while len(wl) > 8: wl.pop(0)()
    poll_c.issue()
    while wl: wl.pop(0)()
    stamp(e, 10); poll_c.check(); stamp(e, 11)
    def sw_(j): e.ds(f"ds_write_b128 v{V_WA[(j // 4) % 2]}, {vr(V_AS + j*4)} offset:{((j%4)*4 + j//4)*1024}", "SW")
    def c_load(n, q):
        e.vmem(f"buffer_load_dwordx4 {vr(CRS[n % NCR] + q*4)}, v{V_L16}, {srd(S_WS)}, s{S_AC} offen offset:{q*1024}{SC}", ("C", n))
        if q == 3: e(f"s_add_u32 s{S_AC}, s{S_AC}, 4096")
    if OPT.get("dchain", 0):
        for n in range(2):
            for q in range(4): c_load(n, q)
        for n in range(0, 32, 2):
            ld = []
            for t in range(2):
                if n + 2 + t < 32: ld += [lambda q=q, t=t: c_load(n + 2 + t, q) for q in range(4)]
            for t in range(2):
                if n >= 2 and n + NWS - 2 + t < 32: ld += [lambda q=q, t=t: wo_load(e, n + NWS - 2 + t, q) for q in range(4)]
            for _ in range(min(4, len(ld))): ld.pop(0)()
            e.need(vm=[("C", n), ("C", n + 1), ("WO", n), ("WO", n + 1)])
            for k in range(32):
                c = k // 2; mb = c // 4; qb = c % 4 if mb % 2 == 0 else 3 - c % 4
                t = k % 2 if c % 2 == 0 else 1 - k % 2
                d = vr(V_AS + (mb*4 + qb)*4)
                e(mf(d, wreg(n + t, mb), vr(CRS[(n + t) % NCR] + qb*4), d if (n or k % 2) else "0"))
                if k % 2 == 0 and ld: ld.pop(0)()
    else:
        for n in range(NCR - 1):
            for q in range(4): c_load(n, q)
        for n in range(32):
            ld = []
            if n + NCR - 1 < 32: ld += [lambda q=q: c_load(n + NCR - 1, q) for q in range(4)]
            if n >= 1 and n + NWS - 1 < 32: ld += [lambda q=q: wo_load(e, n + NWS - 1, q) for q in range(4)]
            e.need(vm=[("C", n), ("WO", n)])
            for k in range(16):
                mb, qb = k // 4, k % 4
                d = vr(V_AS + k*4)
                e(mf(d, wreg(n, mb), vr(CRS[n % NCR] + qb*4), d if n else "0"))
                if k % 2 == 0 and ld: ld.pop(0)()
                if n == 31 and k >= 8: sw_(k - 8)
    stamp(e, 12)
    for j in range(8, 16):
        if j >= 12: e("s_nop 1")
        sw_(j)
    e.need(vm=["X"])
    for j in range(8): e(f"v_lshlrev_b32 v{T+2*j}, 16, v{V_X+j}"); e(f"v_and_b32 v{T+2*j+1}, 0xffff0000, v{V_X+j}")
    e.wait_all(vm=False)
    e("s_barrier")
    for sw in range(4):
        for mb in range(4): e.ds(f"ds_read_b128 {vr(V_AS + (sw*4+mb)*4)}, v{V_RA[(sw // 2)*2 + mb // 2]} offset:{(sw % 2)*16384 + (mb % 2)*256}", ("RS", sw))
    red(V_AS, "RS")
    for r in range(0, 16, 2): e(f"v_pk_fma_f32 {vr(V_AS+r, 2)}, {vr(V_AS+r, 2)}, {vr(V_AD+r, 2)}, {vr(T+r, 2)}")
    for j in range(8): e(f"v_cvt_pk_bf16_f32 v{PK+j}, v{V_AS+2*j}, v{V_AS+2*j+1}")
    for it in range(2):
        e.vmem(f"buffer_store_dwordx4 {vr(PK + 4*it)}, v{V_XO}, {srd(S_OUT)}, s{(S_XO, S_XO2)[it]} offen{OPT.get('outsc', SC)}", "OUT")
    e("s_cmp_lg_u32 s2, 0")
    e("s_cbranch_scc1 L_nobump")
    signal(e, f"s_mov_b32 s{S_CNT}, {WS_EP}", 26)
    e.label("L_nobump")
    stamp(e, 13)

HEADER = open("cdna_kernels/" + NAME + ".s.ref").read().split("; Override launch geometry")[0]
DOC = '''; ---------------------------------------------------------------------------------------------------------------
; [2^-80, 2^80] (NaN included) and any wave with a row outside recomputes its 64 rows in L_slow with the true running
; ---------------------------------------------------------------------------------------------------------------'''
def build():
    e = E(); body(e)
    n = 0
    def policy(roleB, trans, slow, spin):
        def d(lb, site, c):
            if lb == "L_body": return (c == 0) if site < 2 else True
            if lb == "L_first": return trans and c == 2
            if lb == "L_fzero": return trans == 2
            if lb == "L_late": return c != 1
            if lb == "L_trans": return trans and c == 0
            if lb == "L_mergeB": return roleB
            if lb == "L_slow": return slow
            if lb == "L_slowl": return c % 2 == 0
            if lb == "L_ret0": return trans and c == 0
            if lb == "L_ret1": return not roleB
            if lb.startswith("L_spin_"): return spin and c == 0
            if lb.startswith("L_ok_"): return c >= 1
            if lb.startswith("L_spinl_"): return True
            return False
        return d
    for cfg in ((0, 0, 0, 0), (1, 1, 0, 0), (0, 0, 1, 1), (1, 1, 1, 1), (1, 2, 0, 0)):
        tr = chk.trace(e.L, policy(*cfg))
        assert "s_endpgm" in tr[-1], cfg
        n += chk.check(tr, f"path{cfg}")
    if n: print(f"{n} hazards", file=sys.stderr)
    return "\n".join([HEADER.rstrip("\n"), "; @launch grid=(256,1,1) block=(256,1,1) lds=163840",
        DOC, '.amdgcn_target "amdgcn-amd-amdhsa--gfx950"\n.text', e.text(), '.section .rodata,"a"\n.p2align 6',
        f""".amdhsa_kernel {KN}
  .amdhsa_next_free_vgpr 512
  .amdhsa_next_free_sgpr 102
  .amdhsa_accum_offset 256
  .amdhsa_group_segment_fixed_size 0
  .amdhsa_kernarg_size 104
  .amdhsa_user_sgpr_count 2
  .amdhsa_user_sgpr_kernarg_segment_ptr 1
  .amdhsa_system_sgpr_workgroup_id_x 1
.end_amdhsa_kernel
"""])
if __name__ == "__main__":
    open(sys.argv[1], "w").write(build())
```

```python
import sys, math, os, struct
from emit import E, Filler
import check as chk

NAME = "recurrent_scan__compressed_kv_cla__glu_gated_geglu__prompt"
KN = NAME + "_kernel"
MB = 1 << 20
OPT = eval(os.environ.get("OPT", "{}"))
STAMPS = os.environ.get("STAMPS")
POLLALL = OPT.get("pollall", 0)
WS_XN, WS_H, WS_WDF, WS_WOF, WS_CTX, WS_K, WS_V, WS_END = 0, 2*MB, 9*MB, 12*MB, 16*MB, 32*MB, 48*MB, 64*MB
fb = lambda x: struct.unpack("<I", struct.pack("<f", x))[0]

S_X, S_CKV, S_WQ, S_WUK, S_WUV, S_WO, S_WG, S_WU, S_WD, S_OUT, S_DBG, S_WS = [8 + 4*i for i in range(12)]
S_HSRD, S_ASRD, S_BSRD = 56, 60, 64
S_WAVE, S_HEAD, S_BLK, S_ROT = 68, 69, 70, 71
S_T0, S_T1, S_T2, S_T3, S_T4, S_T5 = 72, 73, 74, 75, 76, 77
S_WL, S_WA = 78, 79
S_OFF0, S_OFFA, S_AROW, S_KVST, S_XNB, S_HST = 80, 81, 82, 83, 84, 85
S_CTXLO, S_CTXHI = 86, 87
S_SRCA, S_SRCB, S_LA, S_LB, S_VMAXB, S_VCLB = 88, 89, 90, 91, 92, 93
S_N, S_EVT, S_TRANS, S_N0 = 94, 95, 96, 97
S_QT, S_QTHI, S_RET, S_CNT = 98, 99, 100, 101
S_ROTB, S_DW, S_DH, S_DINC = 48, 49, 50, 51
S_GJ = 7
S_GSRD = S_CKV
S_DSRD = S_HSRD
S_FL = 6
def srd(n): return f"s[{n}:{n+3}]"
def mf(d, a, b, c): return f"v_mfma_f32_16x16x32_bf16 {d}, {a}, {b}, {c}"
def vr(n, k=4): return f"v[{n}:{n+k-1}]"
def ar(n, k=4): return f"a[{n}:{n+k-1}]"

V_LANE, V_STAMP, V_L16 = 1, 2, 3
V_TR = (4, 5, 6, 7)
V_WOFF = (8, 9, 10, 11)
V_AOFF = (12, 13)
V_WOFG = (12, 13)
V_ARD = (14, 15)
V_TMP = list(range(16, 32))
V_POLL = 0
V_WF, V_PK, V_ACC = 32, 64, 128
def acc(db, rb): return V_ACC + (db*4 + rb)*4
def actf(ks, rb): return (ks*4 + rb)*4
V_RD = 4
V_TD, V_TN, V_LIM = 16, 20, 24
V_P, V_S, V_O = (32, 48), (64, 96), 128
A_Q, A_FB, A_DACC, A_L, A_ONE, A_DOP = 0, (64, 96), 128, 192, 208, 224
QSCALE = fb(math.log2(math.e) / math.sqrt(128.0))
NEGINF = 0xff800000
def Sreg(buf, kb2, qb): return V_S[buf] + (kb2*4 + qb)*4
def Preg(buf, qb): return V_P[buf] + qb*4
def Oreg(db, qb): return V_O + (db*4 + qb)*4
SC = " sc1"

def stamp(e, idx):
    if not STAMPS: return
    if OPT.get("padph") and idx not in OPT["padph"]: return
    if OPT.get("padat"):
        if idx == OPT["padat"][0]:
            e(f"s_nop 1\nv_readlane_b32 s5, v{V_STAMP}, 0\ns_add_u32 s{S_CNT}, s5, {OPT['padat'][1]*100}")
            e.label("L_padat")
            e(f"s_memrealtime s[4:5]\ns_waitcnt lgkmcnt(0)\ns_sub_u32 s5, s4, s{S_CNT}\ns_cmp_lt_i32 s5, 0\ns_cbranch_scc1 L_padat")
            e.lgkm = []
        return
    e(("s_memtime" if STAMPS == "2" else "s_memrealtime") + " s[4:5]")
    e.wait_all(vm=False)
    e(f"v_writelane_b32 v{V_STAMP}, s4, {idx}")
def stamp_flush(e):
    if not STAMPS: return
    if OPT.get("dbgst"):
        e(f"""s_load_dwordx2 s[8:9], s[0:1], 88
        s_mov_b32 s10, 256
        s_mov_b32 s11, 0x20000
        v_readlane_b32 s4, v{V_STAMP}, 0
        s_not_b32 s4, s4
        s_nop 3
        v_writelane_b32 v{V_STAMP}, s4, 14
        v_lshlrev_b32 v0, 2, v{V_LANE}
        v_cmp_gt_u32 vcc, 15, v{V_LANE}
        s_and_saveexec_b64 s[6:7], vcc
        s_waitcnt lgkmcnt(0)
        buffer_atomic_umax v{V_STAMP}, v0, s[8:11], 0 offen
        s_waitcnt vmcnt(0)""")
        return
    e(f"""s_lshl_b32 s4, s2, 2
    s_add_u32 s4, s4, s{S_WAVE}
    s_lshl_b32 s4, s4, 7
    s_add_u32 s4, s4, {64*MB}
    v_lshlrev_b32 v0, 2, v{V_LANE}
    v_cmp_gt_u32 vcc, 32, v{V_LANE}
    s_and_saveexec_b64 s[6:7], vcc
    buffer_store_dword v{V_STAMP}, v0, {srd(S_WS)}, s4 offen
    s_waitcnt vmcnt(0)""")

WS_EP = 11*MB
WS_FX, WS_FK, WS_FB, WS_FC = WS_EP + 4096, WS_EP + 8192, WS_EP + 12288, WS_EP + 16384
S_TAG = 3
def signal(e, soff_lines, tmp):
    e(soff_lines)
    e(f"""v_mov_b32 v{tmp}, s{S_TAG}
    v_add_u32 v{tmp+1}, s{S_WL}, v{V_LANE}
    v_min_u32 v{tmp+1}, 1, v{tmp+1}
    v_lshlrev_b32 v{tmp+1}, 30, v{tmp+1}""")
    e.vmem(f"buffer_store_dword v{tmp}, v{tmp+1}, {srd(S_WS)}, s{S_CNT} offen sc1", "SIG")
def sig_lin(base):
    return f"""s_lshr_b32 s{S_CNT}, s2, 3
    s_lshl_b32 s{S_CNT}, s{S_CNT}, 7
    s_and_b32 s{S_FL}, s2, 7
    s_lshl_b32 s{S_FL}, s{S_FL}, 2
    s_add_u32 s{S_CNT}, s{S_CNT}, s{S_FL}
    s_add_u32 s{S_CNT}, s{S_CNT}, {base}"""
SIG_KV = f"""s_and_b32 s{S_CNT}, s2, 31
    s_lshl_b32 s{S_CNT}, s{S_CNT}, 7
    s_lshl_b32 s{S_FL}, s{S_BLK}, 2
    s_add_u32 s{S_CNT}, s{S_CNT}, s{S_FL}
    s_add_u32 s{S_CNT}, s{S_CNT}, {WS_FK}"""
class Poll:
    def __init__(self, e, name, voff):
        self.e, self.name, self.voff = e, name, voff
    @property
    def ld(self):
        if self.name == "b" and POLLALL: return f"buffer_load_dwordx4 a[216:219], v{self.voff}, {srd(S_WS)}, 0 offen sc1"
        return f"buffer_load_dword v{V_POLL}, v{self.voff}, {srd(S_WS)}, 0 offen sc1"
    def issue(self): self.e.vmem(self.ld, ("POLL", self.name))
    def test(self):
        if self.name == "b" and POLLALL:
            return f"""v_accvgpr_read_b32 v5, a216
            v_accvgpr_read_b32 v6, a217
            v_accvgpr_read_b32 v7, a218
            v_accvgpr_read_b32 v{V_POLL}, a219
            v_xor_b32 v5, v5, v{V_POLL}
            v_xor_b32 v6, v6, v{V_POLL}
            v_xor_b32 v7, v7, v{V_POLL}
            v_or3_b32 v5, v5, v6, v7
            v_xor_b32 v{V_POLL}, s{S_TAG}, v{V_POLL}
            v_or_b32 v5, v5, v{V_POLL}
            v_cmp_eq_u32 vcc, 0, v5
            s_cmp_eq_u64 vcc, exec"""
        return f"v_cmp_eq_u32 vcc, s{S_TAG}, v{V_POLL}\ns_cmp_eq_u64 vcc, exec"
    def check(self):
        e = self.e
        e.need(vm=[("POLL", self.name)])
        e(self.test())
        e(f"s_cbranch_scc0 L_spin_{self.name}")
        e.label(f"L_ok_{self.name}")
    def spin(self):
        e = self.e
        e.label(f"L_spin_{self.name}")
        e(f"s_mov_b32 s{S_CNT}, 0x40000")
        e.label(f"L_spinl_{self.name}")
        e("s_sleep 2")
        e(self.ld)
        e("s_waitcnt vmcnt(0)")
        e(self.test())
        e(f"s_cbranch_scc1 L_ok_{self.name}")
        e(f"s_sub_u32 s{S_CNT}, s{S_CNT}, 1")
        e(f"s_cmp_lg_u32 s{S_CNT}, 0")
        e(f"s_cbranch_scc1 L_spinl_{self.name}")
        e(f"s_branch L_ok_{self.name}")
def poll32_addr(e, v, base):
    e(f"""s_lshr_b32 s{S_T0}, s{S_HEAD}, 1
    s_sub_u32 s{S_T1}, 15, s{S_T0}
    s_min_u32 s{S_T0}, s{S_T0}, s{S_T1}
    s_lshl_b32 s{S_T0}, s{S_T0}, 9
    s_add_u32 s{S_T0}, s{S_T0}, {base}
    v_bfe_u32 v{v}, v{V_LANE}, 3, 2
    v_lshlrev_b32 v{v}, 5, v{v}
    v_and_or_b32 v{v}, v{V_LANE}, 7, v{v}
    v_lshlrev_b32 v{v}, 2, v{v}
    v_add_u32 v{v}, s{S_T0}, v{v}""")

def kernel_head(e):
    e(f".globl {KN}\n.p2align 8\n.type {KN},@function")
    e.label(KN)
    e("s_cmp_ge_u32 s2, 256")
    e("s_cbranch_scc1 L_end")
    sizes = {S_X: (0, 2*MB), S_CKV: (8, 2*MB), S_WUK: (24, 4*MB), S_WS: (96, 65*MB if STAMPS else WS_END), S_WQ: (16, 4*MB), S_WUV: (32, 4*MB), S_WO: (40, 4*MB),
             S_WG: (56, 512*3584), S_WU: (64, 512*3584), S_WD: (72, 1792*1024), S_OUT: (80, 2*MB)}
    first = (S_X, S_CKV, S_WUK, S_WS)
    if OPT.get("st0") == 1: e("s_memrealtime s[6:7]\ns_waitcnt lgkmcnt(0)")
    for sr in first: e(f"s_load_dwordx2 s[{sr}:{sr+1}], s[0:1], {sizes[sr][0]}")
    if OPT.get("st0") == 2: e("s_waitcnt lgkmcnt(0)\ns_memrealtime s[6:7]")
    if STAMPS and not OPT.get("st0"): e(("s_memtime" if STAMPS == "2" else "s_memrealtime") + " s[6:7]")
    e(f"v_and_b32 v{V_LANE}, 63, v0")
    e("v_lshrrev_b32 v2, 6, v0")
    e(f"v_lshlrev_b32 v{V_L16}, 4, v{V_LANE}")
    e(f"v_readfirstlane_b32 s{S_WAVE}, v2")
    if OPT.get("pfcode", 1):
        e(f"""s_getpc_b64 s[4:5]
        s_lshr_b32 s{S_T0}, s2, 3
        s_lshl_b32 s{S_T0}, s{S_T0}, 11
        v_lshlrev_b32 v{V_TMP[0]}, 3, v2
        v_and_or_b32 v{V_TMP[0]}, v0, 7, v{V_TMP[0]}
        v_lshlrev_b32 v{V_TMP[0]}, 6, v{V_TMP[0]}
        v_add_u32 v{V_TMP[0]}, s{S_T0}, v{V_TMP[0]}
        v_min_u32 v{V_TMP[0]}, L_end-L_pcref, v{V_TMP[0]}""")
        e.label("L_pcref")
        e.vmem(f"global_load_dword v{V_TMP[12]}, v{V_TMP[0]}, s[4:5]", "PF")
    e(f"""s_and_b32 s{S_T0}, s2, 7
    s_lshl_b32 s{S_T0}, s{S_T0}, 2
    s_lshr_b32 s{S_T1}, s2, 3
    s_and_b32 s{S_T1}, s{S_T1}, 3
    s_add_u32 s{S_HEAD}, s{S_T0}, s{S_T1}
    s_lshr_b32 s{S_BLK}, s2, 5
    s_mul_i32 s{S_T0}, s{S_T1}, {OPT.get('rota', 0)}
    s_add_u32 s{S_ROT}, s{S_BLK}, s{S_T0}
    s_mul_i32 s{S_T0}, s2, {OPT.get('rotx', 1)}
    s_add_u32 s{S_ROT}, s{S_ROT}, s{S_T0}
    s_and_b32 s{S_ROT}, s{S_ROT}, 7
    s_and_b32 s{S_ROTB}, s{S_BLK}, 3
    s_lshl_b32 s{S_WL}, s{S_WAVE}, 10
    s_lshl_b32 s{S_WA}, s{S_WAVE}, 13
    s_add_u32 s{S_WA}, s{S_WA}, 65536""")
    if STAMPS: e("v_mov_b32 v2, -1")
    for sr in first: e(f"s_mov_b32 s{sr+2}, {sizes[sr][1]}\ns_mov_b32 s{sr+3}, 0x20000")
    setup_addrs(e)
    e(f"v_add_u32 v{V_ARD[0]}, s{S_WA}, v{V_ARD[0]}\nv_xor_b32 v{V_ARD[1]}, 64, v{V_ARD[0]}")
    scalar_setup(e)
    e(f"s_lshl_b32 s{S_T0}, s2, 13\ns_lshl_b32 s{S_T1}, s{S_WAVE}, 11\ns_add_u32 s{S_T0}, s{S_T0}, s{S_T1}")
    def late():
        for sr, (p, n) in sizes.items():
            if sr not in first: e(f"s_load_dwordx2 s[{sr}:{sr+1}], s[0:1], {p}\ns_mov_b32 s{sr+2}, {n}\ns_mov_b32 s{sr+3}, 0x20000")
        for sr in (S_HSRD, S_ASRD, S_BSRD): e(f"s_mov_b64 s[{sr}:{sr+1}], s[{S_WS}:{S_WS+1}]\ns_mov_b32 s{sr+2}, {WS_END}\ns_mov_b32 s{sr+3}, 0x20000")
        e(f"s_add_u32 s{S_FL}, s{S_WS}, {WS_EP}\ns_addc_u32 s{S_FL+1}, s{S_WS+1}, 0\ns_load_dword s{S_TAG}, s[{S_FL}:{S_FL+1}], 0")
    def go():
        e("s_waitcnt lgkmcnt(0)")
        if STAMPS: e("v_writelane_b32 v2, s6, 0")
        e.vmem(f"buffer_load_dwordx4 v[64:67], v{V_L16}, {srd(S_X)}, s{S_T0} offen", "X")
        e.vmem(f"buffer_load_dwordx4 v[68:71], v{V_L16}, {srd(S_X)}, s{S_T0} offen offset:1024", "X")
    return go, late

V_CPF = 31
V_KPERM = 31
V_UOFF = 30
def setup_addrs(e):
    t0, t1, t2, t3, t4 = V_TMP[:5]
    e(f"""v_lshrrev_b32 v{t0}, 2, v{V_LANE}
    v_lshlrev_b32 v{t0}, 7, v{t0}
    v_and_b32 v{t1}, 3, v{V_LANE}
    v_lshlrev_b32 v{t1}, 3, v{t1}
    v_add_u32 v{t0}, v{t0}, v{t1}
    v_bfe_u32 v{t1}, v{V_LANE}, 3, 2
    v_lshlrev_b32 v{t1}, 5, v{t1}
    v_add_u32 v{V_TR[0]}, v{t0}, v{t1}""")
    for c in (1, 2, 3): e(f"v_xor_b32 v{V_TR[c]}, {c*32}, v{V_TR[0]}")
    e(f"""v_lshrrev_b32 v{t0}, 3, v{V_LANE}
    v_and_b32 v{t1}, 7, v{V_LANE}
    v_and_b32 v{t2}, 6, v{t0}
    v_xor_b32 v{t1}, v{t1}, v{t2}
    v_lshlrev_b32 v{V_UOFF}, 4, v{t1}
    s_lshl_b32 s{S_T0}, s{S_WAVE}, 3
    v_add_u32 v{t2}, s{S_T0}, v{t0}
    v_bfe_u32 v{t3}, v{t2}, 2, 2
    v_lshlrev_b32 v{t3}, 3, v{t3}
    v_lshrrev_b32 v{t4}, 4, v{t2}
    v_lshl_add_u32 v{t3}, v{t4}, 2, v{t3}
    v_and_b32 v{t4}, 3, v{t2}
    v_add_u32 v{V_KPERM}, v{t3}, v{t4}
    v_lshl_add_u32 v{V_WOFF[0]}, v{V_KPERM}, 13, v{V_UOFF}
    v_add_u32 v{V_WOFF[1]}, 128, v{V_WOFF[0]}
    v_add_u32 v{V_WOFF[2]}, {32*8192}, v{V_WOFF[0]}
    v_add_u32 v{V_WOFF[3]}, {32*8192 + 128}, v{V_WOFF[0]}
    v_and_b32 v{t1}, 7, v{V_LANE}
    v_lshrrev_b32 v{t2}, 1, v{t0}
    v_xor_b32 v{t1}, v{t1}, v{t2}
    v_lshlrev_b32 v{t1}, 4, v{t1}
    v_lshl_add_u32 v{V_AOFF[0]}, v{t0}, 10, v{t1}
    v_xor_b32 v{V_AOFF[1]}, 64, v{V_AOFF[0]}
    v_add_u32 v{V_AOFF[1]}, 8192, v{V_AOFF[1]}
    v_and_b32 v{t0}, 15, v{V_LANE}
    v_lshrrev_b32 v{t1}, 4, v{V_LANE}
    v_lshrrev_b32 v{t2}, 1, v{t0}
    v_xor_b32 v{t1}, v{t1}, v{t2}
    v_lshlrev_b32 v{t1}, 4, v{t1}
    v_lshl_add_u32 v{V_ARD[0]}, v{t0}, 7, v{t1}""")

def scalar_setup(e):
    i, h, w = S_BLK, S_HEAD, S_WAVE
    e(f"""s_lshl_b32 s{S_T0}, s{i}, 2
    s_add_u32 s{S_T0}, s{S_T0}, s{w}
    s_lshl_b32 s{S_AROW}, s{S_T0}, 16
    s_lshl_b32 s{S_KVST}, s{h}, 19
    s_lshl_b32 s{S_T0}, s{S_T0}, 14
    s_add_u32 s{S_KVST}, s{S_KVST}, s{S_T0}""")
def scalar_setup2(e):
    i, h, w = S_BLK, S_HEAD, S_WAVE
    a, b, c, d = S_N, S_EVT, S_TRANS, S_RET
    IDLE = f"s{i}" if OPT.get("spread", 1) else "7"
    return f"""s_sub_u32 s{a}, 15, s{i}
    s_cmp_lt_u32 s{w}, 2 ! s_cselect_b32 s{b}, s{a}, s{i}
    s_lshl_b32 s{b}, s{b}, 1
    s_and_b32 s{c}, s{w}, 1
    s_add_u32 s{S_QT}, s{b}, s{c}
    s_lshl_b32 s{S_XNB}, s{S_QT}, 16
    s_mul_i32 s{S_HST}, s{S_QT}, {56*4096}
    s_add_u32 s{S_HST}, s{S_HST}, {WS_H}
    s_lshl_b32 s{d}, s{h}, 14
    s_add_u32 s{d}, s{d}, {WS_CTX}
    s_lshl_b32 s{S_CTXLO}, s{S_QT}, 19
    s_add_u32 s{S_CTXLO}, s{S_CTXLO}, s{d}
    s_lshr_b32 s{b}, s{w}, 1
    s_xor_b32 s{b}, s{b}, s{w}
    s_and_b32 s{b}, s{b}, 1
    s_lshl_b32 s{a}, s{a}, 1
    s_add_u32 s{S_QTHI}, s{a}, s{b}
    s_lshl_b32 s{S_CTXHI}, s{S_QTHI}, 19
    s_add_u32 s{S_CTXHI}, s{S_CTXHI}, s{d}
    s_lshr_b32 s{a}, s{h}, 2
    s_cmp_lg_u32 s{a}, {IDLE} ! s_cselect_b32 s{S_HSRD+2}, {WS_END}, 0
    s_cmp_gt_u32 s{a}, {IDLE} ! s_cselect_b32 s{a}, 4, 0
    s_sub_u32 s{S_GJ}, s{h}, s{a}
    s_lshl_b32 s{a}, s{h}, 19
    s_mov_b32 s{b}, {WS_V}
    s_cmp_lt_u32 s{w}, 2 ! s_cselect_b32 s{b}, {WS_K}, s{b}
    s_add_u32 s{b}, s{b}, s{a}
    s_add_u32 s{S_VCLB}, s{b}, {63*8192}
    s_and_b32 s{a}, s{w}, 1
    s_lshl_b32 s{a}, s{a}, 13
    s_add_u32 s{S_SRCA}, s{b}, s{a}
    s_lshl_b32 s{a}, s{w}, 13
    s_add_u32 s{S_VMAXB}, s{b}, s{a}
    s_add_u32 s{S_VMAXB}, s{S_VMAXB}, {64*8192}
    s_min_u32 s{S_SRCB}, s{S_VMAXB}, s{S_VCLB}
    s_lshl_b32 s{S_LB}, s{w}, 13
    s_add_u32 s{S_LA}, s{S_LB}, 65536
    s_xor_b32 s{S_LB}, s{S_LB}, 32768
    s_lshl_b32 s{S_N0}, s{i}, 1
    s_add_u32 s{S_N0}, s{S_N0}, 2
    s_mul_i32 s{a}, s{w}, {14*4096}
    s_mul_i32 s{S_DH}, s{h}, {56*4096}
    s_add_u32 s{S_DH}, s{S_DH}, s{a}
    s_add_u32 s{S_DH}, s{S_DH}, {WS_H}
    s_mul_i32 s{S_DW}, s{i}, {56*4096}
    s_add_u32 s{S_DW}, s{S_DW}, s{a}
    s_add_u32 s{S_DW}, s{S_DW}, {WS_WDF}
    s_mov_b32 s{S_DINC}, 0""".split("\n")

def layernorm_lines():
    L = []; e = L.append
    X = (72, 80); SUM = (88, 89); TMP = (90, 91); MEAN = (92, 93); VAR = (94, 95)
    SS = (S_T0, S_T1)
    for r in range(2):
        for j in range(4):
            e(f"v_lshlrev_b32 v{X[r]+2*j}, 16, v{64+4*r+j}")
            e(f"v_and_b32 v{X[r]+2*j+1}, 0xffff0000, v{64+4*r+j}")
    def reduce():
        for mod in ("quad_perm:[1,0,3,2] row_mask:0xf bank_mask:0xf", "quad_perm:[2,3,0,1] row_mask:0xf bank_mask:0xf",
                    "row_half_mirror row_mask:0xf bank_mask:0xf", "row_mirror row_mask:0xf bank_mask:0xf",
                    "row_bcast:15 row_mask:0xa bank_mask:0xf", "row_bcast:31 row_mask:0xc bank_mask:0xf"):
            e("s_nop 0")
            for r in range(2): e(f"v_add_f32_dpp v{SUM[r]}, v{SUM[r]}, v{SUM[r]} {mod}")
        e("s_nop 0")
        for r in range(2): e(f"v_readlane_b32 s{SS[r]}, v{SUM[r]}, 63")
        e("s_nop 1")
    for r in range(2): e(f"v_add_f32 v{SUM[r]}, v{X[r]}, v{X[r]+1}")
    for j in range(2, 8):
        for r in range(2): e(f"v_add_f32 v{SUM[r]}, v{SUM[r]}, v{X[r]+j}")
    reduce()
    for r in range(2): e(f"v_mov_b32 v{MEAN[r]}, s{SS[r]}")
    for r in range(2): e(f"v_mul_f32 v{MEAN[r]}, 0x3b000000, v{MEAN[r]}")
    for j in range(8):
        for r in range(2): e(f"v_sub_f32 v{TMP[r]}, v{X[r]+j}, v{MEAN[r]}")
        for r in range(2): e(f"v_mul_f32 v{SUM[r]}, v{TMP[r]}, v{TMP[r]}" if j == 0 else f"v_fmac_f32 v{SUM[r]}, v{TMP[r]}, v{TMP[r]}")
    reduce()
    def both(fmt):
        for r in range(2): e(fmt.format(v=VAR[r], m=MEAN[r], s=SS[r]))
    def rnd(x):
        both("v_cvt_pk_bf16_f32 v{%s}, v{%s}, v{%s}" % (x, x, x)); both("v_lshlrev_b32 v{%s}, 16, v{%s}" % (x, x))
    both("v_mov_b32 v{v}, s{s}"); both("v_mul_f32 v{v}, 0x3b000000, v{v}")
    rnd("v"); both("v_add_f32 v{v}, 0x3727c5ac, v{v}"); rnd("v")
    both("v_sqrt_f32 v{v}, v{v}"); rnd("m"); rnd("v"); both("v_rcp_f32 v{v}, v{v}")
    for r in range(2):
        for j in range(8): e(f"v_sub_f32 v{X[r]+j}, v{X[r]+j}, v{MEAN[r]}")
        for j in range(4): e(f"v_cvt_pk_bf16_f32 v{64+4*r+j}, v{X[r]+2*j}, v{X[r]+2*j+1}")
        for j in range(4):
            e(f"v_lshlrev_b32 v{X[r]+2*j}, 16, v{64+4*r+j}")
            e(f"v_and_b32 v{X[r]+2*j+1}, 0xffff0000, v{64+4*r+j}")
        for j in range(8): e(f"v_mul_f32 v{X[r]+j}, v{X[r]+j}, v{VAR[r]}")
        for j in range(4): e(f"v_cvt_pk_bf16_f32 v{64+4*r+j}, v{X[r]+2*j}, v{X[r]+2*j+1}")
    return L

class MemQ:
    def __init__(self, e): self.e = e; self.items = []
    def add(self, kind, lo, hi, *a): self.items.append([kind, lo, hi, a])
    def fillers(self):
        e = self.e; out = []
        dm = [k for k, it in enumerate(self.items) if it[0] == 'd']
        nxt = {dm[j]: dm[j+1] for j in range(len(dm) - 1)}
        self.first_m0 = self.items[dm[0]][3][0]
        for k, (kind, lo, hi, a) in enumerate(self.items):
            if kind == 's': out.append(Filler(lambda a=a: e(a[0].replace(" ! ", "\n")), 4, "salu", lo, hi))
            elif kind == 'l': out.append(Filler(lambda a=a: e.vmem(a[0], a[1]), 4, "mem", lo, hi))
            elif kind == 'f': out.append(Filler(a[0], a[1], a[2], lo, hi))
            else:
                def fn(k=k, a=a):
                    if len(a) > 3: e.need(lg=a[3])
                    if " m0," in e.L[-1]: e("s_nop 0")
                    e.vmem(a[1], a[2])
                    if k in nxt: e(self.items[nxt[k]][3][0])
                out.append(Filler(fn, 8, "mem", lo, hi))
        return out


def body(e):
    i, h, w = S_BLK, S_HEAD, S_WAVE
    go, late = kernel_head(e)
    NS = 32; BAR = 42; INF = 10**9; P = -10**6
    mq = MemQ(e)
    def S(lo, hi, *lines):
        for t in lines: mq.add('s', lo, hi, t)
    def VV(lo, hi, *lines):
        for t in lines: mq.add('f', lo, hi, lambda t=t: e(t), 4, "valu")
    V_GOFF = V_KPERM; V_TRH = V_AOFF + V_ARD
    S_GO = S_T1
    def area(gs):
        if gs < 16: return (gs % 4)*16384
        if gs < 24: return ((gs % 4)*32768 + 65536) % 131072
        return ((gs - 24)*16384 + 65536) % 131072
    def w_stage(gs, lo, step, hi):
        slot = gs % 4
        if gs < 16:
            s = gs % 8
            if s == 0: S(lo - 8, hi, f"s_lshl_b32 s{S_OFF0}, s{S_ROT}, 19", f"s_lshl_b32 s{S_T5}, s{h}, 8", f"s_add_u32 s{S_OFF0}, s{S_OFF0}, s{S_T5}")
            else: S(lo - 8, hi, f"s_add_u32 s{S_OFF0}, s{S_OFF0}, {1<<19}", f"s_and_b32 s{S_OFF0}, s{S_OFF0}, {4*MB-1}")
            for n in range(4):
                mq.add('d', lo + step*n, hi, f"s_add_u32 m0, s{S_WL}, {slot*16384 + n*4096}",
                       f"buffer_load_dwordx4 v{V_WOFF[n]}, {srd(S_WUK if gs < 8 else S_WUV)}, s{S_OFF0} offen lds", ("W", gs))
        elif gs >= 24:
            s = gs % 4; hf = (gs // 4) % 2
            S(lo - 10, hi, f"s_add_u32 s{S_OFF0}, s{S_ROTB}, {s}", f"s_and_b32 s{S_OFF0}, s{S_OFF0}, 3", f"s_lshl_b32 s{S_OFF0}, s{S_OFF0}, 20",
              f"s_lshl_b32 s{S_T5}, s{h}, 8", f"s_add_u32 s{S_OFF0}, s{S_OFF0}, s{S_T5}")
            if hf: S(lo - 10, hi, f"s_add_u32 s{S_OFF0}, s{S_OFF0}, 128")
            for n in range(4):
                if n: S(lo + step*n - 2, hi, f"s_add_u32 s{S_OFF0}, s{S_OFF0}, {32*8192}")
                mq.add('d', lo + step*n, hi, f"s_add_u32 m0, s{S_WL}, {area(gs) + n*4096}",
                       f"buffer_load_dwordx4 v{V_WOFF[0]}, {srd(S_WQ)}, s{S_OFF0} offen lds", ("W", gs))
    def g_stage(s, lo, step, hi):
        S(lo - 10, hi, f"s_add_u32 s{S_GO}, s{S_ROTB}, {s}", f"s_and_b32 s{S_GO}, s{S_GO}, 3", f"s_mul_i32 s{S_GO}, s{S_GO}, {128*3584}",
          f"s_lshl_b32 s{S_T5}, s{S_GJ}, 7", f"s_add_u32 s{S_GO}, s{S_GO}, s{S_T5}")
        for n in range(8):
            if n and n % 2 == 0: S(lo + step*n - 2, hi, f"s_add_u32 s{S_GO}, s{S_GO}, {32*3584}")
            mq.add('d', lo + step*n, hi, f"s_add_u32 m0, s{S_WL}, {area(16 + s) + n*4096}",
                   f"buffer_load_dwordx4 v{V_GOFF}, {srd((S_WG, S_WU)[n % 2])}, s{S_GO} offen lds", ("W", 16 + s))
    def a_stage(s, lo, step, hi):
        S(lo - 6, hi, f"s_add_u32 s{S_OFFA}, s{S_ROT}, {s}", f"s_and_b32 s{S_OFFA}, s{S_OFFA}, 7", f"s_lshl_b32 s{S_OFFA}, s{S_OFFA}, 7", f"s_add_u32 s{S_OFFA}, s{S_OFFA}, s{S_AROW}")
        for q in range(8):
            if q and q % 2 == 0: S(lo + step*q - 2, hi, f"s_add_u32 s{S_OFFA}, s{S_OFFA}, 16384")
            mq.add('d', lo + step*q, hi, f"s_add_u32 m0, s{S_WA}, {(s % 2)*32768 + q*1024}",
                   f"buffer_load_dwordx4 v{V_AOFF[q & 1]}, {srd(S_CKV)}, s{S_OFFA} offen lds", ("A", s), [("AF", s-2, 0), ("AF", s-2, 1)])
    def xn_stage(s, lo, step, hi):
        if s % 2 == 0: S(lo - 6, hi, f"s_add_u32 s{S_OFFA}, s{S_ROTB}, {s//2}", f"s_and_b32 s{S_OFFA}, s{S_OFFA}, 3", f"s_lshl_b32 s{S_OFFA}, s{S_OFFA}, 14", f"s_add_u32 s{S_OFFA}, s{S_OFFA}, s{S_XNB}")
        for ksub in range(2):
            if ksub or s % 2: S(lo + step*4*ksub - 2, hi, f"s_add_u32 s{S_OFFA}, s{S_OFFA}, 4096")
            for rb in range(4):
                mq.add('l', lo + step*(ksub*4 + rb), hi, f"buffer_load_dwordx4 {ar(actf(2*s+ksub, rb))}, v{V_L16}, {srd(S_WS)}, s{S_OFFA} offen offset:{rb*1024}{SC}", ("XN", 2*s+ksub))
    V_PO = V_TMP[13]
    poll_xn = Poll(e, "xn", V_PO); poll_kv = Poll(e, "kv", V_PO); poll_b = Poll(e, "b", V_TMP[15]); poll_c = Poll(e, "c", V_TMP[15])
    V_RT = V_TMP[8]; V_RTA = V_TMP[9:13]; V_PFD = V_TMP[1]
    RTL, RTS, RG = OPT.get("rtl", 19), OPT.get("rts", 22), OPT.get("rtgap", 32)
    S_RL = S_RET
    PRO = OPT.get("pro", 1); KVS = OPT.get("kvs", 30)
    w_stage(0, P, 0, INF); a_stage(0, P, 0, INF)
    n_pro0 = len(mq.items)
    S(P, INF, f"s_lshl_b32 s{S_T2}, s{w}, 8", f"s_add_u32 s{S_T2}, s{S_T2}, s2", f"s_lshr_b32 s{S_T3}, s{S_T2}, 3", f"s_add_u32 s{S_T4}, s{S_T2}, s{S_T3}", f"s_and_b32 s{S_T4}, s{S_T4}, 7",
      f"s_cmp_lt_u32 s{S_T2}, 448 ! s_cselect_b32 s{S_WD+2}, {1792*1024}, 0", f"s_cmp_lt_u32 s{S_T2}, 448 ! s_cselect_b32 s{S_BSRD+2}, {WS_END}, 0")
    VV(P, INF, f"v_lshrrev_b32 v{V_RT}, 3, v{V_LANE}", f"v_lshl_add_u32 v{V_RT}, v{V_RT}, 10, v{V_UOFF}", f"v_mul_u32_u24 v{V_GOFF}, 3584, v{V_KPERM}", f"v_add_u32 v{V_GOFF}, v{V_GOFF}, v{V_UOFF}")
    w_stage(1, P, 0, INF)
    if PRO >= 2: a_stage(1, P, 0, INF)
    if PRO >= 3: w_stage(2, P, 0, INF)
    n_pro1 = len(mq.items)
    if PRO < 2: a_stage(1, 0, 1, 30)
    if PRO < 3: w_stage(2, 10, 1, 36)
    def rt_loads(E0, half):
        for q in range(2*half, 2*half + 2):
            if OPT.get("rtlin"): S(E0, INF, f"s_add_u32 s{S_RL}, s{S_RL}, 1024" if q else f"s_lshl_b32 s{S_RL}, s{S_T4}, 12 ! s_lshl_b32 s{S_T5}, s{S_T3}, 3 ! s_add_u32 s{S_RL}, s{S_RL}, s{S_T5}")
            else: S(E0, INF, f"s_add_u32 s{S_RL}, s{S_RL}, 8192" if q else f"s_lshl_b32 s{S_RL}, s{S_T4}, 7 ! s_lshl_b32 s{S_T5}, s{S_T3}, 3 ! s_add_u32 s{S_RL}, s{S_RL}, s{S_T5}")
            for t, sr in enumerate((S_WO, S_WD)):
                mq.add('d', E0 + ((4 + 14*(q % 2) + 7*t) if RTL > 5 else 36), E0 + (33 if RTL > 5 else 60), f"s_add_u32 m0, s{S_WA}, {65536 + t*4096 + q*1024}", f"buffer_load_dwordx4 v{V_L16 if OPT.get('rtlin') else V_RT}, {srd(sr)}, s{S_RL} offen lds", "RT")
    for gs in range(NS):
        b = gs * 64
        if gs + 2 < 8: a_stage(gs + 2, b + (6 if gs or PRO >= 3 else 22), (4 if gs or PRO >= 3 else 2), b + 41)
        PFS = OPT.get("pfs", {})
        if gs == 1:
            VV(b + 2, INF, f"v_lshrrev_b32 v{V_PO}, 2, v{V_LANE}", f"v_lshlrev_b32 v{V_PO}, 7, v{V_PO}", f"v_and_or_b32 v{V_PO}, v{V_LANE}, 3, v{V_PO}", f"v_lshlrev_b32 v{V_PO}, 6, v{V_PO}",
               f"v_lshlrev_b32 v{V_TMP[5]}, 6, v{V_LANE}", f"v_min_u32 v{V_TMP[4]}, 1728, v{V_TMP[5]}")
        for n_, c_ in enumerate(PFS.get(gs, "")):
            if c_ in "qv":
                S(b + 2, INF, f"s_lshl_b32 s{S_T1}, s{i}, 2", f"s_add_u32 s{S_T1}, s{S_T1}, s{w}", f"s_lshl_b32 s{S_T1}, s{S_T1}, 17", f"s_lshl_b32 s{S_T5}, s{h}, 8", f"s_add_u32 s{S_T1}, s{S_T1}, s{S_T5}")
                vo = V_PO
            else:
                S(b + 2, INF, f"s_lshl_b32 s{S_T1}, s2, 2", f"s_add_u32 s{S_T1}, s{S_T1}, s{w}", f"s_mul_i32 s{S_T1}, s{S_T1}, {4096 if c_ == 'o' else 1792}")
                vo = V_TMP[5] if c_ == "o" else V_TMP[4]
            mq.add('l', b + 8, INF, f"buffer_load_dword v{V_TMP['qgu'.find(c_) % 4]}, v{vo}, {srd(dict(q=S_WQ, v=S_WUV, g=S_WG, u=S_WU, o=S_WO, d=S_WD)[c_])}, s{S_T1} offen", "PF")
        if gs == 6: S(b + 10, INF, f"s_min_u32 s{S_WG+2}, s{S_WG+2}, s{S_HSRD+2}", f"s_mov_b32 s{S_WU+2}, s{S_WG+2}")
        GS = OPT.get("gs", (7, 8))
        if gs in GS: g_stage(GS.index(gs), b + 4, 3, b + 41)
        if gs == 8:
            t0, t1 = V_TMP[2:4]
            S(b + 4, b + 30, f"s_lshl_b32 s{S_T5}, s{S_QT}, 7", f"s_add_u32 s{S_T5}, s{S_T5}, {WS_FX}")
            VV(b + 4, b + 30, f"v_and_b32 v{V_PO}, 7, v{V_LANE}", f"v_lshlrev_b32 v{V_PO}, 2, v{V_PO}", f"v_add_u32 v{V_PO}, s{S_T5}, v{V_PO}")
            mq.add('f', b + 28, b + 36, poll_xn.issue, 4, "mem")
        if gs == 9: mq.add('f', b + 2, b + 6, poll_xn.check, 8, "valu")
        if 9 <= gs <= 16: xn_stage(gs - 9, b + 8, 4, b + 41)
        if gs == 10: VV(b + 20, INF, *[f"v_add_u32 v{V_TRH[c]}, 65536, v{V_TR[c]}" for c in range(4)])
        if gs in (RTL, RTL + 1) and not OPT.get("nortl"): rt_loads(b, gs - RTL)
        if gs == 27:
            S(b + 4, b + 30, f"s_and_b32 s{S_T5}, s2, 31", f"s_lshl_b32 s{S_T5}, s{S_T5}, 7", f"s_add_u32 s{S_T5}, s{S_T5}, {WS_FK}")
            VV(b + 4, b + 30, f"v_and_b32 v{V_PO}, 7, v{V_LANE}", f"v_lshlrev_b32 v{V_PO}, 2, v{V_PO}", f"v_add_u32 v{V_PO}, s{S_T5}, v{V_PO}")
        if gs == KVS - 1: mq.add('f', b + 26, b + 33, poll_kv.issue, 4, "mem")
        if gs + 3 < NS: w_stage(gs + 3, b + 44, 4, b + 64 + 5)
        if gs in (14, 16): g_stage(2 + (gs - 14)//2, b + 44, 3, b + 64 + 7)
    b = KVS*64
    mq.add('f', b + 4, b + 8, poll_kv.check, 8, "valu")
    for st in range(2):
        for j in range(8):
            if j == 4: S(b, INF, f"s_add_u32 s{S_T4}, s{S_SRCA}, 4096")
            mq.add('d', b + 8 + st*64 + 6*j, INF, f"s_add_u32 m0, s{S_LA}, {st*32768 + (j//4)*4096}",
                   f"buffer_load_dwordx4 v{V_L16}, {srd(S_ASRD)}, s{S_T4 if j >= 4 else S_SRCA} offen offset:{(j%4)*1024}{SC} lds", ("KV", st))
        if st == 0: S(b, INF, f"s_cmp_ge_u32 s{w}, 2 ! s_cselect_b32 s{S_T4}, 0, 2", f"s_lshl_b32 s{S_T4}, s{S_T4}, 13", f"s_add_u32 s{S_SRCA}, s{S_SRCA}, s{S_T4}")
        else: S(b, INF, f"s_add_u32 s{S_SRCA}, s{S_SRCA}, 16384")
    mfill = mq.fillers()
    e(mq.first_m0)
    started = False
    for f in mfill[:n_pro0]:
        if f.cost == 8 and not started: go(); started = True
        f.fn()
        if f.cost == 8: e("s_nop 0")
    late()
    if OPT.get("tlb", 0):
        a, b, c = S_N, S_EVT, S_TRANS
        e(f"""s_lshr_b32 s{a}, s2, 3
        s_and_b32 s{b}, s{a}, 7
        s_add_u32 s{b}, s{b}, 2
        s_cmp_eq_u32 s{w}, 2
        s_cselect_b32 s{b}, 10, s{b}
        s_and_b32 s{c}, s{w}, 1
        s_lshr_b32 s{S_T0}, s{w}, 1
        s_cmp_eq_u32 s{c}, s{S_T0}
        s_cselect_b32 s{b}, 12, s{b}
        s_lshl_b32 s{S_T1}, s{b}, 3
        s_load_dwordx2 s[{S_ASRD}:{S_ASRD+1}], s[0:1], s{S_T1}
        s_cmp_lt_u32 s{b}, 6
        s_mov_b32 s{S_ASRD+2}, {1792*1024}
        s_cselect_b32 s{S_ASRD+2}, {4*MB}, s{S_ASRD+2}
        s_lshr_b32 s{S_T1}, s{a}, 3
        s_lshl_b32 s{a}, s{a}, 1
        s_add_u32 s{a}, s{a}, s{c}
        s_cmp_eq_u32 s{b}, 12
        s_cselect_b32 s{S_ASRD+2}, {WS_END}, s{S_ASRD+2}
        s_cselect_b32 s{a}, s{a}, s{S_T1}
        s_lshl_b32 s{a}, s{a}, 20
        v_mov_b32 v{V_TMP[5]}, s{a}
        s_waitcnt lgkmcnt(0)""")
        e.vmem(f"buffer_load_dword v{V_TMP[1]}, v{V_TMP[5]}, {srd(S_ASRD)}, 0 offen sc1", "PF")
        e(f"s_mov_b64 s[{S_ASRD}:{S_ASRD+1}], s[{S_WS}:{S_WS+1}]\ns_mov_b32 s{S_ASRD+2}, {WS_END}")
    e.need(vm=["X"])
    ln = layernorm_lines()
    rest = mfill[n_pro0:n_pro1]
    per = len(ln) // (sum(f.cost == 8 for f in rest) + 1) + 1
    while ln or rest:
        for t in ln[:per]: e(t)
        ln = ln[per:]
        while rest:
            f = rest.pop(0); f.fn()
            if f.cost == 8: break
    mfill = mfill[n_pro1:]
    t0, t1, t2 = V_TMP[2:5]
    e(f"""s_lshl_b32 s{S_T0}, s{w}, 5
    s_add_u32 s{S_T0}, s{S_T0}, 49152
    v_lshlrev_b32 v{t0}, 7, v{V_LANE}
    v_add_u32 v{t0}, s{S_T0}, v{t0}""")
    e.ds(f"ds_write_b128 v{t0}, v[64:67]"); e.ds(f"ds_write_b128 v{t0}, v[68:71] offset:16")
    e(f"""s_lshl_b32 s{S_T0}, s{w}, 11
    s_add_u32 s{S_T0}, s{S_T0}, 49152
    v_add_u32 v{t0}, s{S_T0}, v{V_L16}
    v_lshrrev_b32 v{t1}, 5, v{V_LANE}
    v_lshlrev_b32 v{t1}, 12, v{t1}
    v_bfe_u32 v{t2}, v{V_LANE}, 3, 2
    v_lshl_add_u32 v{t1}, v{t2}, 8, v{t1}
    v_and_b32 v{t2}, 7, v{V_LANE}
    v_lshl_add_u32 v{t1}, v{t2}, 4, v{t1}
    s_lshr_b32 s{S_T0}, s2, 3
    s_lshl_b32 s{S_T0}, s{S_T0}, 16
    s_bfe_u32 s{S_T1}, s2, 0x20001
    s_lshl_b32 s{S_T1}, s{S_T1}, 10
    s_add_u32 s{S_T0}, s{S_T0}, s{S_T1}
    s_and_b32 s{S_T1}, s2, 1
    s_lshl_b32 s{S_T1}, s{S_T1}, 7
    s_add_u32 s{S_T0}, s{S_T0}, s{S_T1}
    s_lshl_b32 s{S_T1}, s{w}, 14
    s_add_u32 s{S_T0}, s{S_T0}, s{S_T1}
    s_add_u32 s{S_T1}, s{S_T0}, 8192""")
    misc = []
    misc.append(Filler(lambda: (e.ds(f"ds_read_b128 v[64:67], v{t0}", "LN"), e.ds(f"ds_read_b128 v[68:71], v{t0} offset:1024", "LN")), 8, "mem", 2, 30))
    misc.append(Filler(lambda: (e.need(lg=["LN"]), e.vmem(f"buffer_store_dwordx4 v[64:67], v{t1}, {srd(S_WS)}, s{S_T0} offen{SC}", "XNST")), 8, "mem", 14, 40))
    misc.append(Filler(lambda: e.vmem(f"buffer_store_dwordx4 v[68:71], v{t1}, {srd(S_WS)}, s{S_T1} offen{SC}", "XNST"), 8, "mem", 16, 41))
    for t in scalar_setup2(e): misc.append(Filler(lambda t=t: e(t.replace(" ! ", "\n")), 4, "salu", 44, 150))
    S_RA, S_RB = S_N, S_EVT
    rts = [Filler(lambda: e(f"s_add_u32 s{S_RA}, s{S_WA}, 65536"), 4, "salu", 150)]
    for c in range(4): rts.append(Filler(lambda c=c: e(f"v_add_u32 v{V_RTA[c]}, s{S_RA}, v{V_TR[c]}"), 4, "valu", 150))
    for t in (f"s_lshl_b32 s{S_RA}, s{S_T4}, 19", f"s_lshl_b32 s{S_T3}, s{S_T3}, 12", f"s_add_u32 s{S_RA}, s{S_RA}, s{S_T3}", f"s_add_u32 s{S_RA}, s{S_RA}, {WS_WOF}",
              f"s_mul_i32 s{S_RB}, s{S_T4}, {56*4096}", f"s_add_u32 s{S_RB}, s{S_RB}, s{S_T3}", f"s_add_u32 s{S_RB}, s{S_RB}, {WS_WDF}"):
        rts.append(Filler(lambda t=t: e(t), 4, "salu", 150, 185))
    SIGKV = OPT.get("sigkv", 28)
    for n in range(8):
        t, c = n // 4, n % 4
        d0 = V_PK + (n % 2)*4
        def fr(t=t, c=c, d0=d0, n=n):
            e.need(vm=["RT"])
            for rr in range(2): e.ds(f"ds_read_b64_tr_b16 v[{d0+rr*2}:{d0+rr*2+1}], v{V_RTA[c]} offset:{t*4096 + rr*2048}", ("RTF", n))
        def fs(t=t, c=c, d0=d0, n=n):
            e.need(lg=[("RTF", n)])
            e.vmem(f"buffer_store_dwordx4 {vr(d0)}, v{V_L16}, {srd((S_WS, S_BSRD)[t])}, s{(S_RA, S_RB)[t]} offen offset:{c*1024}{SC}", "RTST")
        if not OPT.get("norts"): rts.append(Filler(fr, 8, "mem", RTS*64 + 40 + RG*n)); rts.append(Filler(fs, 4, "mem", RTS*64 + 40 + RG*n + 12, 30*64 + 30 if POLLALL else (SIGKV - 1)*64))
    mfmas = []; rd = []
    sig_at = {3: (["XNST"], sig_lin(WS_FX)), SIGKV: (["KST", "VST"] + ([] if POLLALL else ["RTST"]), SIG_KV)}
    def stage_gate(gs):
        def fn():
            tags = [("W", gs)]
            if gs < 8: tags.append(("A", gs))
            if gs in sig_at: tags += sig_at[gs][0]
            f3 = OPT.get("fine3")
            if f3 is not None and 0 <= gs - f3 < 6: stamp(e, 14 + 3*(gs - f3))
            e.need(vm=tags)
            if f3 is not None and 0 <= gs - f3 < 6: stamp(e, 15 + 3*(gs - f3))
            e("s_barrier")
            if f3 is not None and 0 <= gs - f3 < 6: stamp(e, 16 + 3*(gs - f3))
            if gs in sig_at: signal(e, sig_at[gs][1], V_TMP[6])
            if gs % 8 == 0: stamp(e, 2 + gs // 8)
            if OPT.get("fine") is not None and 0 <= gs - OPT["fine"] < 18: stamp(e, 14 + gs - OPT["fine"])
        return fn
    def actread(s, ksub, rb):
        return lambda: e.ds(f"ds_read_b128 {ar(actf(2*s+ksub, rb))}, v{V_ARD[ksub]} offset:{(s % 2)*32768 + rb*2048}", ("AF", s, ksub))
    for gs in range(NS):
        base = gs * 64
        if gs > 0: rd.append(Filler(stage_gate(gs), 8, "mem", base - 64 + BAR, base - 64 + BAR + 1))
        pend = [Filler(actread(gs, ksub, rb), 4, "mem", base - 64 + BAR, base - 3) for rb in range(4) for ksub in range(2)] if gs < 8 else []
        CH = 2 if gs < 16 else 4
        for g in range(16 // CH):
            g0 = base + g*4*CH
            db = g if gs < 16 else 4*((gs // 4) % 2) + g
            first = gs % (16 // CH) == 0
            for k in range(CH):
                slot = (g*CH + k) % 8
                if gs < 16: c_, off = g % 4, (k*2 + g // 4)*4096
                elif gs < 24: c_, off = 2*((gs // 4) % 2) + g % 2, (k*2 + g // 2)*4096
                else: c_, off = g, k*4096
                off += area(gs)
                for rr in range(2):
                    ad = V_TRH[c_] if off >= 65536 else V_TR[c_]
                    d = V_WF + slot*4 + rr*2
                    n_ = k*2 + rr
                    lo = (g0 - 22 + 2*n_) if CH == 2 else (g0 - 16 + n_)
                    if gs == 16 and g == 1: lo = max(lo, base)
                    rd.append(Filler(lambda d=d, ad=ad, o=(off + rr*2048) % 65536, t=(gs, g): e.ds(f"ds_read_b64_tr_b16 v[{d}:{d+1}], v{ad} offset:{o}", ("F", t)),
                                     4, "mem", max(lo, base - 64 + BAR), g0 - 3))
                    for _ in range(1 if g else 2):
                        if pend: rd.append(pend.pop(0))
            for rb in range(4):
                for kk in range(CH):
                    k = kk if rb % 2 == 0 else CH - 1 - kk
                    kslot = CH*(gs % (16 // CH)) + k
                    def needs(gs=gs, g=g, CH=CH):
                        return e.need(lg=[("F", (gs, g))] + ([("AF", gs, 0), ("AF", gs, 1)] if gs < 8 else []),
                                      vm=[("XN", 4*(gs % 4) + q) for q in range(4)] if 16 <= gs < 20 else ())
                    def m(gs=gs, slot=(g*CH + k) % 8, kslot=kslot, db=db, rb=rb, z=(first and kk == 0), needs=needs):
                        needs()
                        wv = vr(V_WF + slot*4); a = ar(actf(kslot, rb)); d = vr(acc(db, rb))
                        e(mf(d, a, wv, "0" if z else d) if 8 <= gs < 16 else mf(d, wv, a, "0" if z else d))
                    m.pre = needs
                    mfmas.append(m)
    def cvts(base, dst, dl):
        out = []
        for db in range(8):
            for rb in range(4):
                for hh in range(2):
                    d = dst(db, rb, hh); s = acc(db, rb) + 2*hh
                    out.append(Filler(lambda d=d, s=s: e(f"v_cvt_pk_bf16_f32 v{d}, v{s}, v{s+1}"), 4, "valu", base + 448 + 8*db + 2*rb + 1 + 8, dl(db, rb)))
        return out
    cv = cvts(0, lambda db, rb, hh: V_PK + (rb*4 + db//2)*4 + (db & 1)*2 + hh, lambda db, rb: min(512 + 8*db + 2*rb, 512 + 30))
    VH = OPT.get("vh", 1150)
    cvv = cvts(512, lambda db, rb, hh: V_PK + ((db//4)*8 + (rb//2)*4 + db % 4)*4 + (rb & 1)*2 + hh, lambda db, rb: min(1024 + 16*db + 4*rb, 1024 + 16) if db < 4 else min(VH + 39, 1278))
    for f in cvv[32:]: f.earliest = VH
    cv += cvv
    st = []
    G2 = OPT.get("sgap", 37)
    NKV = OPT.get("nkv", 14)
    sched = [(WS_K + n*1024, n, "KST", 512 + 36 + (444 // NKV)*n, 512 + 454 if n < 8 else 1024) for n in range(NKV)]
    sched += [(WS_K + n*1024, n, "KST", 1024 + 4 + G2*(n - NKV), VH - 2) for n in range(NKV, 16)]
    sched += [(WS_V + ((n % 8)//4)*8192 + ((n // 8)*4 + n % 4)*1024, n, "VST", max(1024 + 20 + G2*(n + 16 - NKV), VH + 40 if n >= 8 else 0), (SIGKV - 1)*64 + 20) for n in range(16)]
    for off, n, tag, lo, dl in sched:
        if n % 4 == 0: st.append(Filler(lambda off=off: e(f"s_add_u32 s{S_T2}, s{S_KVST}, {off}"), 4, "salu", lo - 4))
        st.append(Filler(lambda n=n, tag=tag: e.vmem(f"buffer_store_dwordx4 {vr(V_PK + n*4)}, v{V_L16}, {srd(S_WS)}, s{S_T2} offen offset:{(n%4)*1024}{SC}", tag), 4, "mem", lo, dl))
    C0 = -2.0 * math.sqrt(2.0 / math.pi) * math.log2(math.e)
    V_C1 = V_TMP[4]; V_QW = V_TMP[5]
    ge = [Filler(lambda: e(f"v_mov_b32 v{V_C1}, {fb(C0*0.044715):#x}"), 4, "valu", 1100)]
    for hf in range(2):
        lo = 1024 + 256*(hf + 1) - 16 + 11; dl = 1024 + 256*(hf + 2)
        def RW(txt):
            i_ = chk.parse(txt); return (set(i_.r), set(i_.w))
        def V(txt, cost=4): ge.append(Filler(lambda: e(txt), cost, "valu", lo, dl, RW(txt) if OPT.get("ooo", 1) else None))
        for t in [f"s_lshl_b32 s{S_T0}, s{S_GJ}, 13", f"s_add_u32 s{S_T0}, s{S_T0}, {hf*4096}", f"s_add_u32 s{S_T0}, s{S_T0}, s{S_HST}"]:
            ge.append(Filler(lambda t=t: e(t), 4, "salu", lo, dl))
        for rb in range(4):
            lo = 1024 + 256*(hf + 1) - 16 + 4*rb + 11
            for c in range(2):
                G, U = acc(4*hf + c, rb), acc(4*hf + 2 + c, rb); T = V_TMP[0:4]
                for r in range(4): V(f"v_mul_f32 v{T[r]}, v{G+r}, v{G+r}")
                for r in range(4): V(f"v_mul_f32 v{U+r}, v{G+r}, v{U+r}")
                for r in range(4): V(f"v_fmaak_f32 v{T[r]}, v{T[r]}, v{V_C1}, {fb(C0):#x}")
                for r in range(4): V(f"v_mul_f32 v{G+r}, v{G+r}, v{T[r]}")
                for r in range(4): V(f"v_exp_f32 v{G+r}, v{G+r}", 8)
                for r in range(4): V(f"v_add_f32 v{G+r}, 1.0, v{G+r}")
                for r in range(4): V(f"v_rcp_f32 v{G+r}, v{G+r}", 8)
                for r in range(4): V(f"v_mul_f32 v{U+r}, v{U+r}, v{G+r}")
                D = acc(4*hf, rb) + 2*c
                V(f"v_cvt_pk_bf16_f32 v{D}, v{U}, v{U+1}"); V(f"v_cvt_pk_bf16_f32 v{D+1}, v{U+2}, v{U+3}")
            st_ = f"buffer_store_dwordx4 {vr(acc(4*hf, rb))}, v{V_L16}, {srd(S_HSRD)}, s{S_T0} offen offset:{rb*1024}{SC}"
            ge.append(Filler(lambda st_=st_: e.vmem(st_, "HST"), 4, "mem", lo, dl, RW(st_) if OPT.get("ooo", 1) else None))
    ge.append(Filler(lambda: e(f"s_lshl_b32 s{S_T0}, s{w}, 14"), 4, "salu", 1792))
    ge.append(Filler(lambda: e(f"s_add_u32 s{S_T0}, s{S_T0}, 131072"), 4, "salu", 1792))
    ge.append(Filler(lambda: e(f"v_add_u32 v{V_QW}, s{S_T0}, v{V_L16}"), 4, "valu", 1792))
    zero_hi = []
    for hf in range(2):
        for dg in (2*hf, 2*hf + 1):
            for qb in range(4):
                lo = 1536 + 256*hf + 192 + 32*(dg % 2) + 16 + 4*qb + 3 + 8
                def V(txt, cost=4, kind="valu", lo=lo): ge.append(Filler(lambda: e(txt), cost, kind, lo))
                o0, o1 = acc(2*dg, qb), acc(2*dg+1, qb)
                for r in range(4): V(f"v_mul_f32 v{o0+r}, {QSCALE:#x}, v{o0+r}"); V(f"v_mul_f32 v{o1+r}, {QSCALE:#x}, v{o1+r}")
                for d, s_ in ((o0, o0), (o0+1, o0+2), (o0+2, o1), (o0+3, o1+2)): V(f"v_cvt_pk_bf16_f32 v{d}, v{s_}, v{s_+1}")
                for r in range(4):
                    if hf: zero_hi.append(f"v_mov_b32 v{o1+r}, 0")
                    else: V(f"v_mov_b32 v{o1+r}, 0")
                ge.append(Filler(lambda o0=o0, qb=qb, dg=dg: e.ds(f"ds_write_b128 v{V_QW}, {vr(o0)} offset:{(qb*4+dg)*1024}", "QW"), 4, "mem", lo))
        for dg in (2*hf, 2*hf + 1):
            for qb in range(4):
                o0 = acc(2*dg, qb)
                for r in range(4): ge.append(Filler(lambda r=r, o0=o0, qb=qb, dg=dg: e(f"v_accvgpr_write_b32 a{A_Q + (qb*4+dg)*4 + r}, v{o0+r}"), 4, "valu", 29*64 + 4))
        ge.append(Filler(lambda: e.need(lg=["QW"]), 4, "salu", 29*64 + 4))
        for dg in (2*hf, 2*hf + 1):
            for qb in range(4):
                for r in range(4):
                    if hf: zero_hi.append(f"v_mov_b32 v{acc(2*dg, qb) + r}, 0")
                    else: ge.append(Filler(lambda r=r, qb=qb, dg=dg: e(f"v_mov_b32 v{acc(2*dg, qb) + r}, 0"), 4, "valu", 29*64 + 4))
        if hf == 0:
            for r in range(64): ge.append(Filler(lambda r=r: e(f"v_accvgpr_write_b32 a{A_DACC + r}, 0"), 4, "valu", 31*64 + 4))
    stamp(e, 1)
    e.need(vm=[("W", 0), ("A", 0)]); e.wait_all(vm=False); e("s_barrier")
    e(f"s_mul_i32 s{S_TAG}, s{S_TAG}, 0x9e3779b1\ns_add_u32 s{S_TAG}, s{S_TAG}, 0x7f4a7c15")
    stamp(e, 2)
    k = 0
    while rd[k].earliest < 0: rd[k].fn(); k += 1
    rest = e.schedule(mfmas, [rd[k:], mfill, cv, misc, rts, st, att_setup_fillers(e, poll_b), ge], flush=False)
    e("s_nop 7")
    e.c(f"left over fillers: {[len(r) for r in rest]}")
    for r in rest:
        for f in r: f.fn()
    stamp(e, 6)
    attention(e, poll_b, poll_c, zero_hi)
    phase_d(e, poll_c)
    if OPT.get("padto"):
        if "padb" in OPT: e(f"s_lshr_b32 s6, s2, 3\ns_cmp_lg_u32 s6, {OPT['padb']}\ns_cbranch_scc1 L_end")
        if "padx" in OPT: e(f"s_and_b32 s6, s2, 7\ns_cmp_lg_u32 s6, {OPT['padx']}\ns_cbranch_scc1 L_end")
        e(f"s_nop 1\nv_readlane_b32 s6, v{V_STAMP}, 0\ns_add_u32 s6, s6, {OPT['padto']*100}")
        if OPT.get("padph"):
            e(f"v_readlane_b32 s4, v{V_STAMP}, {OPT['padph'][0]}\nv_readlane_b32 s5, v{V_STAMP}, {OPT['padph'][1]}\ns_sub_u32 s5, s5, s4\ns_add_u32 s6, s6, s5")
        e.label("L_pad")
        e("s_memrealtime s[4:5]\ns_waitcnt lgkmcnt(0)\ns_sub_u32 s7, s4, s6\ns_cmp_lt_i32 s7, 0\ns_cbranch_scc1 L_pad")
    else: stamp_flush(e)
    e("s_branch L_end")
    e.cold()
    for p in (poll_xn, poll_kv, poll_b, poll_c): p.spin()
    slow_path(e)
    e.label("L_end")
    e("s_endpgm")

A_Z = 212
S_FIRST = 20
def att_dma(e, which, j):
    if " m0," in e.L[-1]: e("s_nop 0")
    sr, src, ld = ((S_ASRD, S_SRCA, S_LA), (S_BSRD, S_SRCB, S_LB))[which]
    e.vmem(f"buffer_load_dwordx4 v{V_L16}, {srd(sr)}, s{S_T4 if j >= 4 else src} offen offset:{(j%4)*1024}{OPT.get('kvsc', SC)} lds", "KV")
    if which == 1 and OPT.get("boob"): ld = S_FIRST + 3
    if j == 3: e(f"s_add_u32 m0, s{ld}, 4096"); e(f"s_add_u32 s{S_T4}, s{src}, 4096")
    if j == 7:
        if which == 0: e(f"s_mov_b32 m0, s{S_FIRST + 3 if OPT.get('boob') else S_LB}\ns_add_u32 s{S_SRCA}, s{S_SRCA}, 16384")
        else: e(f"s_sub_u32 s{S_VMAXB}, s{S_VMAXB}, 16384\ns_min_u32 s{S_SRCB}, s{S_VMAXB}, s{S_VCLB}")
def d_load(e, j):
    so = S_DW if j < 4 else S_DH
    e.vmem(f"buffer_load_dwordx4 {ar(A_DOP + j*4)}, v{V_L16}, {srd(S_DSRD)}, s{so} offen offset:{(j%4)*1024}{OPT.get('kvsc', SC)}", "KV")
    if j % 4 == 3: e(f"s_add_u32 s{so}, s{so}, s{S_DINC}")
class M:
    def __init__(self, txt, tag=None): self.txt, self.tag = txt, tag
def d_mfmas():
    return [M(mf(ar(A_DACC + (mb*4+qb)*4), ar(A_DOP + mb*4), ar(A_DOP + 16 + qb*4), ar(A_DACC + (mb*4+qb)*4))) for mb in range(4) for qb in (range(4) if mb % 2 == 0 else range(3, -1, -1))]
def sm_half(e, buf, kb2):
    ex = []; cv = []
    for p in range(8):
        qb, hh = p // 2, p % 2
        r = Sreg(buf, kb2, qb) + 2*hh
        if OPT.get("noexp"): ex += [NOP, NOP]
        else: ex.append(lambda r=r: e(f"v_exp_f32 v{r}, v{r}")); ex.append(lambda r=r: e(f"v_exp_f32 v{r+1}, v{r+1}"))
        d = Preg(buf, qb) + 2*kb2 + hh
        cv.append(lambda r=r, d=d: e(f"v_perm_b32 v{d}, v{r+1}, v{r}, s{S_WUV}" if OPT.get("perm") else f"v_cvt_pk_bf16_f32 v{d}, v{r}, v{r+1}"))
    return ex, cv
def qk_mfmas(buf, half, tag="FR"):
    out = []
    for kb2 in range(2):
        kb = half*2 + kb2
        for qb in range(4):
            for kk in range(4):
                dg = kk if qb % 2 == 0 else 3 - kk
                d = vr(Sreg(buf, kb2, qb))
                c = d if kk else ("0" if kb < qb else vr(V_TD) if kb == qb else vr(V_TN))
                out.append(M(mf(d, ar(A_FB[0] + (kb2*4+dg)*4), ar(A_Q + (qb*4+dg)*4), c), (tag, 0, kb2*4)))
    return out
def pv_mfmas(buf, zero=False, order=range(8)):
    o = []
    for n_, db in enumerate(order):
        for qb in (range(4) if n_ % 2 == 0 else range(3, -1, -1)):
            d = vr(Oreg(db, qb))
            o.append(M(mf(d, ar(A_Z), ar(A_Z), "0")) if zero else M(mf(d, ar(A_FB[1] + db*4), vr(Preg(buf, qb)), d), ("FR", 1, (db // 4)*4)))
    s_ = []
    for qb in range(4):
        d = ar(A_L + qb*4)
        s_.append(M(mf(d, ar(A_Z), ar(A_Z), "0")) if zero else M(mf(d, ar(A_ONE), vr(Preg(buf, qb)), d)))
    if OPT.get("nosum"): s_ = [M("s_nop 0")]*4
    return o, s_
def frag_reads(e, fb_, off, order=range(8), tag="FR"):
    return [lambda j=j: e.ds(f"ds_read_b128 {ar(A_FB[fb_] + j*4)}, v{V_RD} offset:{off + j*1024}", (tag, fb_, (j // 4)*4)) for j in order]
NOP = lambda: None
def run(e, mfmas, gaps, nxt=None):
    if mfmas[0].tag: e.need(lg=[mfmas[0].tag])
    for i, m in enumerate(mfmas):
        if m.txt: e(m.txt)
        t = mfmas[i+1].tag if i + 1 < len(mfmas) else nxt
        if t: e.need(lg=[t])
        for f in gaps.get(i, ()): f()
def section(e, mfmas, reads, ex, cv, carry, g2, nxt=None, tail=None):
    gaps = {}
    for q in range(8):
        gaps[4*q] = [reads[q], (carry or NOP) if q == 0 else cv[q-1]]
        gaps[4*q+1] = [ex[2*q]]; gaps[4*q+2] = [g2[q]]; gaps[4*q+3] = [ex[2*q+1]]
    if len(mfmas) > 32: gaps[32] = [cv[7]]
    for k, f in (tail or {}).items(): gaps.setdefault(k, []).insert(0, f)
    run(e, mfmas, gaps, nxt)
    return cv[7] if len(mfmas) == 32 else None
PREP = [f"s_cmp_le_u32 s{S_N}, 15\ns_cselect_b32 s{S_ASRD+2}, {WS_END}, 0\ns_cselect_b32 s{S_T0}, 32768, s{S_T1}", f"s_add_u32 s{S_T3}, s{S_N}, 2\ns_xor_b32 s{S_LB}, s{S_LB}, s{S_T0}",
        f"s_cmp_ge_u32 s{S_T3}, s{S_N0}\ns_cselect_b32 s{S_BSRD+2}, s{S_ASRD+2}, 0" + (f"\ns_cselect_b32 s{S_FIRST+3}, s{S_LB}, s{S_T1}" if OPT.get("boob") else ""), f"s_xor_b32 s{S_LA}, s{S_LA}, s{S_T0}\ns_mov_b32 m0, s{S_LA}"]
PREP0 = f"s_mov_b32 s{S_T1}, 0x30000"
LR = V_TMP[10:14]
def check_lines(ret, qt):
    return [f"v_min3_f32 v{V_LIM+1}, v{LR[0]}, v{LR[1]}, v{LR[2]}\nv_add_f32 v{V_LIM}, v{LR[0]}, v{LR[1]}",
            f"v_add_f32 v{V_LIM}, v{V_LIM}, v{LR[2]}\nv_min_f32 v{V_LIM+1}, v{V_LIM+1}, v{LR[3]}",
            f"s_mov_b32 s{S_RET}, {ret}\nv_add_f32 v{V_LIM}, v{V_LIM}, v{LR[3]}\nv_cmp_nle_f32 vcc, 0x17800000, v{V_LIM+1}",
            f"s_mov_b64 s[{S_FL}:{S_FL+1}], vcc\ns_mov_b32 s{S_CNT}, s{qt}\nv_cmp_nge_f32 vcc, {OPT.get('lhi', 0x67800000):#x}, v{V_LIM}",
            f"s_or_b64 vcc, vcc, s[{S_FL}:{S_FL+1}]\n" + ("s_nop 0" if OPT.get("noslow") else "s_cbranch_vccnz L_slow")]
def norm_items(e, dbs, sbase):
    it = []
    for dg in sorted({d // 2 for d in dbs}):
        it.append((lambda dg=dg: e(f"s_add_u32 s{S_T0}, s{sbase}, {dg*4096}"), 0, 2*dg+1))
        for qb in range(4):
            o0, o1 = Oreg(2*dg, qb), Oreg(2*dg+1, qb)
            for r in range(4):
                for o in (o0, o1): it.append((lambda o=o, r=r, qb=qb: e(f"v_mul_f32 v{o+r}, v{o+r}, v{LR[qb]}"), 4, 2*dg+1))
            for d, s_ in ((o0, o0), (o0+1, o0+2), (o0+2, o1), (o0+3, o1+2)): it.append((lambda d=d, s_=s_: e(f"v_cvt_pk_bf16_f32 v{d}, v{s_}, v{s_+1}"), 4, 2*dg+1))
            it.append((lambda o0=o0, qb=qb: e.vmem(f"buffer_store_dwordx4 {vr(o0)}, v{V_L16}, {srd(S_WS)}, s{S_T0} offen offset:{qb*1024}{SC}", "CST"), 8, 2*dg+1))
    return it
def emit_items(items, extra=()):
    extra = list(extra)
    for f, c, _ in items:
        f()
        if c == 8:
            for _ in range(2):
                if extra: extra.pop(0)()
    for f in extra: f()
def sm_tail(e, order=range(8)):
    ex, cv = sm_half(e, 1, 1)
    for f in frag_reads(e, 1, 16384, order): f()
    for p in range(8):
        ex[2*p](); ex[2*p+1]()
        if p: cv[p-1]()
    e("s_nop 0"); cv[7]()

S_WOo, S_AC = S_OFF0, S_OFFA
WSLOT = [14, 15, 4, 5, 13, 12, 6, 7, 0, 1, 2, 3, -2, -3, 8, 9, 10, 11]
NWS = len(WSLOT)
def wreg(n, q):
    s_ = WSLOT[n % NWS]
    return ar(s_*16 + q*4) if s_ >= 0 else vr(-s_*16 + q*4)
def wo_load(e, n, q):
    e.vmem(f"buffer_load_dwordx4 {wreg(n, q)}, v{V_L16}, {srd(S_WS)}, s{S_WOo} offen offset:{q*1024}{SC}", ("WO", n))
    if q == 3: e(f"s_add_u32 s{S_WOo}, s{S_WOo}, 4096")

V_TRI = (9, 10, 11, 30)
V_SIG, V_TAGV, V_QA, V_ONE = 12, 13, 14, 15
S_D1, S_D2, S_M = S_FIRST + 2, S_FIRST, S_FIRST + 1
def att_setup_fillers(e, poll_b):
    i, h, w = S_BLK, S_HEAD, S_WAVE
    out = []
    def add(lo, hi, txt):
        for t in txt.split("\n"):
            t = t.strip()
            out.append(Filler(lambda t=t: e(t.replace(" ! ", "\n")), 4, "salu" if t.startswith("s_") else "valu", lo, hi))
    a, b, c, d = V_TRI; pv = poll_b.voff; t = S_M
    lo, hi = 17*64 + 10, 20*64
    add(lo, hi, f"""v_lshrrev_b32 v{d}, 4, v{V_LANE}
    v_lshlrev_b32 v{d}, 2, v{d}
    v_and_b32 v{a}, 15, v{V_LANE}
    v_sub_u32 v{a}, v{a}, v{d}
    v_subrev_u32 v{b}, 1, v{a}
    v_subrev_u32 v{c}, 2, v{a}
    v_subrev_u32 v{d}, 3, v{a}""")
    for r in V_TRI: add(lo, hi, f"v_ashrrev_i32 v{r}, 31, v{r}\nv_and_b32 v{r}, {NEGINF:#x}, v{r}")
    add(lo, hi, f"""s_lshr_b32 s{t}, s{h}, 1
    s_sub_u32 s{S_D1}, 15, s{t}
    s_min_u32 s{t}, s{t}, s{S_D1}
    s_lshl_b32 s{t}, s{t}, 9
    s_add_u32 s{t}, s{t}, {WS_FB}
    v_bfe_u32 v{pv}, v{V_LANE}, 3, 2
    v_lshlrev_b32 v{pv}, 5, v{pv}
    v_and_or_b32 v{pv}, v{V_LANE}, 7, v{pv}
    v_lshlrev_b32 v{pv}, 2, v{pv}
    v_add_u32 v{pv}, s{t}, v{pv}
    s_lshl_b32 s{S_TRANS}, s{i}, 1
    s_add_u32 s{S_TRANS}, s{S_TRANS}, s{w}
    s_sub_u32 s{S_TRANS}, s{S_TRANS}, 1
    s_sub_u32 s{S_D1}, s{S_TRANS}, 1
    s_add_u32 s{S_D2}, s{S_TRANS}, 1
    s_cmp_eq_u32 s{i}, 7 ! s_cselect_b32 s{t}, 16, 99
    s_cmp_eq_u32 s{w}, 0 ! s_cselect_b32 s{t}, s{t}, 99
    s_cmp_lt_u32 s{w}, 2 ! s_cselect_b32 s{S_D1}, s{t}, s{S_D1}
    s_cmp_lt_u32 s{w}, 2 ! s_cselect_b32 s{S_D2}, 99, s{S_D2}
    s_cmp_lt_u32 s{w}, 2 ! s_cselect_b32 s{S_TRANS}, 17, s{S_TRANS}
    s_sub_u32 s{S_VMAXB}, s{S_VMAXB}, 16384
    s_min_u32 s{S_SRCB}, s{S_VMAXB}, s{S_VCLB}
    s_lshr_b32 s{t}, s2, 3
    s_lshl_b32 s{t}, s{t}, 5
    s_and_b32 s{S_FIRST+3}, s2, 7
    s_add_u32 s{t}, s{t}, s{S_FIRST+3}
    s_lshl_b32 s{t}, s{t}, 2
    s_add_u32 s{t}, s{t}, {WS_FB}
    s_sub_u32 s{S_FIRST+3}, 3, s{w}
    s_lshl_b32 s{S_FIRST+3}, s{S_FIRST+3}, 14
    s_add_u32 s{S_FIRST+3}, s{S_FIRST+3}, 131072""")
    lo, hi = 28*64, 31*64
    add(lo, hi, f"""v_mov_b32 v{V_TAGV}, s{S_TAG}
    v_add_u32 v{V_SIG}, s{S_WL}, v{V_LANE}
    v_min_u32 v{V_SIG}, 1, v{V_SIG}
    v_lshlrev_b32 v{V_SIG}, 30, v{V_SIG}
    v_add_u32 v{V_SIG}, s{t}, v{V_SIG}
    v_add_u32 v{V_QA}, s{S_FIRST+3}, v{V_L16}
    v_and_b32 v{V_ONE}, 3, v{V_LANE}
    v_subrev_u32 v{V_ONE}, 1, v{V_ONE}
    v_ashrrev_i32 v{V_ONE}, 31, v{V_ONE}
    v_and_b32 v{V_ONE}, 0x3f803f80, v{V_ONE}
    s_mov_b32 s{S_T2}, 1
    s_mov_b32 s{S_WUV}, 0x07060302
    s_mov_b32 s{S_N}, -1
    s_mov_b32 s{S_DSRD+2}, 0""")
    return out

def Sq(c): return V_S[0] + c*4
def ring(g, j): return A_FB[0] + (g % 4)*16 + j*4
def qk2(tag="FR"):
    out = []
    for c in range(16):
        kb, qb = c // 4, c % 4
        for kk in range(4):
            dg = kk if c % 2 == 0 else 3 - kk
            d = vr(Sq(c))
            cc = d if kk else ("0" if kb < qb else vr(V_TD) if kb == qb else vr(V_TN))
            out.append(M(mf(d, ar(ring(kb, dg)), ar(A_Q + (qb*4+dg)*4), cc), (tag, kb)))
    return out
def pv2(order=(0, 1, 2, 3)):
    o = []; c = 0
    for n, p in enumerate(order):
        for x in range(2):
            for qb in (range(4) if x == 0 else range(3, -1, -1)):
                d = vr(Oreg(2*p + x, qb))
                for kg in ((0, 1) if c % 2 == 0 else (1, 0)):
                    o.append(M(mf(d, ar(ring(n, x*2 + kg)), vr(Preg(kg, qb)), d), ("FR", 4 + n)))
                c += 1
    s_ = [M(mf(ar(A_L + qb*4), ar(A_ONE), vr(Preg(kg, qb)), ar(A_L + qb*4))) for qb in range(4) for kg in range(2)]
    return o, s_
def kreads(e, g, tag="FR"): return [lambda j=j: e.ds(f"ds_read_b128 {ar(ring(g, j))}, v{V_RD} offset:{g*4096 + j*1024}", (tag, g)) for j in range(4)]
def vreads(e, n, p): return [lambda j=j: e.ds(f"ds_read_b128 {ar(ring(n, j))}, v{V_RD} offset:{16384 + (j % 2)*8192 + (2*p + j // 2)*1024}", ("FR", 4 + n)) for j in range(4)]
def cvt2(c, hh): return f"v_cvt_pk_bf16_f32 v{Preg(c // 8, c % 4) + 2*((c // 4) % 2) + hh}, v{Sq(c) + 2*hh}, v{Sq(c) + 2*hh + 1}"
def exp2(k): return f"v_exp_f32 v{V_S[0] + k}, v{V_S[0] + k}"
def drain_head(e, order):
    e.need(lg=[("FR", 1)])
    rd_ = [f for n, p in enumerate(order) for f in vreads(e, n, p)]
    for f in rd_[:8]: f()
    for c in range(1, 16):
        e(cvt2(c, 0)); e(cvt2(c, 1))
    for f in rd_[8:]: f()

def attention(e, poll_b, poll_c, zero_hi):
    i, h, w = S_BLK, S_HEAD, S_WAVE
    T = lambda t: (lambda: e(t))
    A = [lambda j=j: att_dma(e, 0, j) for j in range(8)]; B = [lambda j=j: att_dma(e, 1, j) for j in range(8)]; D = [lambda j=j: d_load(e, j) for j in range(8)]
    e(f"v_add_u32 v{V_RD}, 65536, v{V_L16}")
    e.need(vm=[("KV", 0), "HST", "RTST"], lg=["QW"])
    e("s_barrier")
    for g in range(2):
        for f in kreads(e, g, "F0"): f()
    e.vmem(f"buffer_store_dword v{V_TAGV}, v{V_SIG}, {srd(S_WS)}, 0 offen sc1", "SIG")
    MS = [f"s_add_u32 s{S_N}, s{S_N}, 1", f"s_cmp_eq_u32 s{S_N}, s{S_D1}\ns_cselect_b32 s{S_M}, -1, 0", f"s_cmp_eq_u32 s{S_N}, s{S_D2}\ns_cselect_b32 s{S_M}, -1, s{S_M}",
          f"v_and_b32 v{V_TD}, s{S_M}, v{V_TRI[0]}\nv_and_b32 v{V_TD+1}, s{S_M}, v{V_TRI[1]}", f"v_and_b32 v{V_TD+2}, s{S_M}, v{V_TRI[2]}\nv_and_b32 v{V_TD+3}, s{S_M}, v{V_TRI[3]}",
          f"s_and_b32 s{S_M}, s{S_M}, {NEGINF:#x}\nv_mov_b32 v{V_TN}, s{S_M}\nv_mov_b32 v{V_TN+1}, s{S_M}", f"v_mov_b32 v{V_TN+2}, s{S_M}\nv_mov_b32 v{V_TN+3}, s{S_M}"]
    for t in MS: e(t)
    e(f"s_xor_b32 s{S_LA}, s{S_LA}, 32768")
    XRD = f"v_xor_b32 v{V_RD}, 32768, v{V_RD}"
    CV0 = cvt2(0, 0) + "\n" + cvt2(0, 1)
    def itstamp(dn=0):
        if OPT.get("itst"):
            e(f"s_memtime s[4:5]\nv_subrev_u32 v5, {14 - dn}, v{V_LANE}\nv_cmp_eq_u32 vcc, s{S_N}, v5\ns_waitcnt lgkmcnt(0)\nv_mov_b32 v5, s4\nv_cndmask_b32 v{V_STAMP}, v{V_STAMP}, v5, vcc")
    stamp(e, 7)
    init = [f"v_accvgpr_write_b32 a{A_L + r}, 0" for r in range(16)] + [f"v_accvgpr_write_b32 a{A_Z + r}, 0" for r in range(4)]
    init += [f"v_accvgpr_write_b32 a{A_ONE + r}, v{V_ONE}" for r in range(4)] + zero_hi
    for _ in range(8): e(init.pop())
    gaps = {}; ne = 0
    kr = kreads(e, 2, "F0") + kreads(e, 3, "F0")
    pre = [PREP0] + PREP + [XRD]
    for k in range(64):
        g = gaps[k] = []
        if k % 2 == 0 and kr: g.append(kr.pop(0)); g.append(T(init.pop()))
        elif k >= 52 and k % 2 == 0: g.append(T(pre.pop(0)))
        elif init: g.append(T(init.pop())); g.append(T(init.pop()))
        else: g.append(T(exp2(ne))); ne += 1
    assert not init and not pre
    gaps[63].insert(0, lambda: e.wait_all())
    run(e, qk2("F0"), gaps)
    e("s_barrier")
    itstamp()
    mem = [f for p in zip(A, kreads(e, 0) + kreads(e, 1)) for f in p] + B[:4]
    while mem or ne < 64:
        if mem: mem.pop(0)()
        for _ in range(3):
            if ne < 64: e(exp2(ne)); ne += 1
    for t in MS: e(t)
    e(CV0)
    e.need(lg=[("FR", 0)])
    top = [("FR", 1)]*4
    assert e.lgkm == top, e.lgkm
    e("s_branch L_special")
    e(".p2align 6")
    e.label("L_body")
    def loop_body(first):
        e.lgkm = list(top)
        gaps = {k: [] for k in range(152)}
        rds = kreads(e, 2) + kreads(e, 3) + ([] if first else vreads(e, 0, 0) + vreads(e, 1, 1))
        for n, f in enumerate(rds): gaps[4*n].append(f)
        for n, f in enumerate(kreads(e, 0) + kreads(e, 1)): gaps[100 + 4*n].append(f)
        for n, f in enumerate(B[4:] + D): gaps[2 + 4*n].append(f)
        for n, f in enumerate(A + B[:4]): gaps[98 + 4*n].append(f)
        if not first:
            for n, f in enumerate(vreads(e, 2, 2) + vreads(e, 3, 3)): gaps[64 + 2*n].append(f)
            for c in range(1, 16):
                gaps[4*(c-1)].append(T(cvt2(c, 0)))
                gaps[1 + 2*((c - 1)//2)].append(T(cvt2(c, 1)))
        for k in range(64): gaps[17 + 2*k].append(T(exp2(k)))
        gaps[58].append(lambda: e.vmem(poll_b.ld, "KV"))
        gaps[62].append(T(PREP0))
        for n, t in enumerate(PREP + [XRD] + MS[:3]): gaps[80 + 2*n].append(T(t))
        for n, t in enumerate(MS[3:]): gaps[132 + 4*n].append(T(t))
        gaps[146].append(T(CV0)); gaps[150].append(T(f"s_cmp_eq_u32 s{S_N}, s{S_T2}"))
        gaps[95].insert(0, lambda: e.wait_all())
        gaps[95].append(lambda: (e("s_barrier"), itstamp(1)))
        o, s_ = pv2()
        if first:
            zo, zl = pv_mfmas(1, zero=True)
            o = [M("")]*32 + zo; s_ = zl + [M("")]*4
        run(e, qk2() + o + s_ + d_mfmas(), gaps, nxt=("FR", 0))
        assert e.lgkm == top, e.lgkm
        e("s_cbranch_scc0 L_body")
    loop_body(False)
    e.label("L_special")
    e(f"""s_cmp_lt_u32 s{S_N}, 3
    s_cselect_b32 s{S_T2}, 3, 17
    s_min_u32 s{S_T2}, s{S_T2}, s{S_TRANS}
    s_cmp_eq_u32 s{S_N}, 3
    s_cbranch_scc0 L_late""")
    e(poll_b.test())
    e("s_cbranch_scc0 L_spin_b")
    e.label("L_ok_b")
    e(f"s_mov_b32 s{S_DSRD+2}, {WS_END}\ns_mov_b32 s{S_DINC}, 4096")
    e.label("L_late")
    e(f"s_cmp_eq_u32 s{S_N}, s{S_D2}\ns_cbranch_scc1 L_first")
    e(f"s_cmp_eq_u32 s{S_N}, s{S_TRANS}\ns_cbranch_scc0 L_body")
    e(f"s_cmp_eq_u32 s{S_N}, 17\ns_cbranch_scc0 L_trans")
    LRD = [f"v_accvgpr_read_b32 v{LR[0]}, a{A_L}\nv_accvgpr_read_b32 v{LR[1]}, a{A_L+4}", f"v_accvgpr_read_b32 v{LR[2]}, a{A_L+8}\nv_accvgpr_read_b32 v{LR[3]}, a{A_L+12}"]
    def cold():
        e.label("L_trans")
        e.lgkm = list(top); e.vm = ["KV"]*13
        qr = [lambda j=j: e.ds(f"ds_read_b128 {ar(A_Q + j*4)}, v{V_QA} offset:{j*1024}", "QS") for j in range(16)]
        rcp = [f"v_rcp_f32 v{LR[qb]}, v{LR[qb]}" for qb in range(4)]
        drain_head(e, (0, 1, 2, 3))
        o, s_ = pv2()
        gaps = {k: [f] for k, f in enumerate(B[4:] + D + [lambda: e.vmem(poll_b.ld, "KV")])}
        for k, t in enumerate(LRD + check_lines(0, S_QT) + rcp): gaps[13 + k] = [T(t)]
        items = norm_items(e, range(8), S_CTXLO)
        XB = f"v_xor_b32 v{V_RD}, {32768 + 65536}, v{V_RD}"
        def fill(g, k, left):
            while items and items[0][1] <= left and 8 + 8*(items[0][2] + 1) - 1 + 5 <= k:
                f, c, _ = items.pop(0); g.append(f); left -= c
        gaps[24] = [T(XB)]
        for k in range(25, 72):
            gaps[k] = []; fill(gaps[k], k, 8)
        run(e, s_ + o, gaps)
        def post():
            e(PREP0)
            for t in PREP: e(t.replace(f"s{S_T0}", f"s{S_T5}"))
            e.need(vm=["KV"])
            e("s_barrier")
            itstamp()
            mem = A + B[:4]; lds = qr + kreads(e, 0) + kreads(e, 1)
            gaps = {k: [mem.pop(0)] if k % 4 == 0 else [lds.pop(0), lds.pop(0)] for k in range(16)}
            run(e, d_mfmas(), gaps)
            extra = []
            for f in mem: extra += [f, NOP]
            emit_items(items, extra) if items else [(f(), e("s_nop 0")) for f in mem]
            del items[:]
            for t in MS: e(t)
            e(f"s_mov_b32 s{S_TRANS}, 17")
            e.need(lg=[("FR", 0)])
            assert e.lgkm == top, e.lgkm
            e("s_branch L_special")
        post()
        e.label("L_first")
        e(f"s_cmp_eq_u32 s{S_N}, 17\ns_cbranch_scc1 L_fzero")
        loop_body(True)
        e("s_branch L_special")
        e.label("L_fzero")
        for r in list(range(V_O, V_O + 128)) + list(range(V_S[0], V_S[0] + 64)) + [Preg(0, 0), Preg(0, 0) + 1]: e(f"v_mov_b32 v{r}, 0")
        for r in range(16): e(f"v_accvgpr_write_b32 a{A_L + r}, 0")
        e("s_branch L_final")
        e.label("L_ret0")
        e.lgkm = []; e.vm = []
        for t in rcp: e(t)
        e(XB)
        emit_items(norm_items(e, range(8), S_CTXLO))
        post()
    e.cold = cold
    e.label("L_final")
    stamp(e, 8)
    tw, trd, tl, tlr = V_TMP[0:4]
    e(f"""s_lshl_b32 s{S_T0}, s{w}, 17
    s_lshl_b32 s{S_AC}, s{h}, 19
    s_add_u32 s{S_AC}, s{S_AC}, s{S_T0}
    s_add_u32 s{S_AC}, s{S_AC}, {WS_CTX}
    s_lshl_b32 s{S_WOo}, s{i}, 19
    s_add_u32 s{S_WOo}, s{S_WOo}, s{S_T0}
    s_add_u32 s{S_WOo}, s{S_WOo}, {WS_WOF}
    s_and_b32 s{S_T0}, s{w}, 1
    s_lshl_b32 s{S_T0}, s{S_T0}, 14
    s_lshr_b32 s{S_T1}, s{w}, 1
    s_lshl_b32 s{S_T1}, s{S_T1}, 16
    s_add_u32 s{S_T0}, s{S_T0}, s{S_T1}
    v_add_u32 v{tw}, s{S_T0}, v{V_L16}
    v_xor_b32 v{trd}, {65536 + 16384}, v{tw}
    s_add_u32 s{S_T0}, s{S_WL}, {144*1024}
    v_add_u32 v{tl}, s{S_T0}, v{V_L16}
    v_xor_b32 v{tlr}, 3072, v{tl}
    s_cmp_ge_u32 s{w}, 2
    s_cbranch_scc1 L_mergeB""")
    for role in range(2):
        keep = list(range(4)) if role == 0 else list(range(4, 8))
        send = list(range(4, 8)) if role == 0 else list(range(4))
        if role == 1: e.label("L_mergeB")
        e.lgkm = list(top); e.vm = ["KV"]*13
        order = (2, 3, 0, 1) if role == 0 else (0, 1, 2, 3)
        drain_head(e, order)
        o, s_ = pv2(order)
        gaps = {2*k: [lambda k=k: wo_load(e, k // 4, k % 4)] for k in range(8)}
        for k in range(8): gaps[45 + 3*k] = [lambda k=k: wo_load(e, 2 + k // 4, k % 4)]
        gaps[17] = [T(LRD[0])]; gaps[18] = [T(LRD[1])]
        gaps[19] = [lambda: e.ds(f"ds_write_b128 v{tl}, {vr(LR[0])}")]
        for n in range(16): gaps[23 + 3*n] = [lambda n=n: e.ds(f"ds_write_b128 v{tw}, {vr(V_O + send[0]*16 + n*4)} offset:{n*1024}")]
        if OPT.get("fst"): stamp(e, 14)
        run(e, s_ + o, gaps)
        if OPT.get("fst"): stamp(e, 15)
        e.wait_all(vm=False)
        e("s_barrier")
        if OPT.get("fst"): stamp(e, 16)
        e.ds(f"ds_read_b128 {vr(V_TMP[4])}, v{tlr}", "ML")
        for n in range(16):
            e.ds(f"ds_read_b128 {vr(V_S[0] + n*4)}, v{trd} offset:{n*1024}", ("MO", n // 4))
            if n % 2: wo_load(e, 4 + n // 8, (n // 2) % 4)
        e.need(lg=["ML"])
        for qb in range(4): e(f"v_add_f32 v{LR[qb]}, v{LR[qb]}, v{V_TMP[4] + qb}")
        for t in check_lines(1 + role, S_QTHI): e(t)
        for n in range(16):
            e.need(lg=[("MO", n // 4)])
            for r in range(4):
                o = V_O + keep[0]*16 + n*4 + r
                e(f"v_add_f32 v{o}, v{o}, v{V_S[0] + n*4 + r}")
        e.label(f"L_ret{1 + role}")
        for q in range(4): wo_load(e, 6, q)
        if OPT.get("fst"): stamp(e, 17)
        for qb in range(4): e(f"v_rcp_f32 v{LR[qb]}, v{LR[qb]}")
        e(f"v_add_u32 v{tw}, 32768, v{tw}")
        emit_items(norm_items(e, keep, S_CTXHI))
        if role == 0: e("s_branch L_attdone")
    e.label("L_attdone")
    stamp(e, 9)

def slow_path(e):
    M = V_P[1]; AL = V_P[1] + 4; T = V_P[1] + 8; QI = V_P[1] + 12; NI = V_P[1] + 13
    u, nu, ko, vo = S_T0, S_T1, S_T3, S_T5
    e.label("L_slow")
    e.lgkm = []; e.vm = []
    e("s_waitcnt vmcnt(0) lgkmcnt(0)")
    e(f"""s_lshl_b32 s{nu}, s{S_CNT}, 1
    s_add_u32 s{nu}, s{nu}, 2
    s_lshl_b32 s{ko}, s{S_HEAD}, 19
    s_add_u32 s{vo}, s{ko}, {WS_V}
    s_add_u32 s{ko}, s{ko}, {WS_K}
    s_lshl_b32 s{S_CNT}, s{S_CNT}, 6
    v_lshrrev_b32 v{T}, 4, v{V_LANE}
    v_lshlrev_b32 v{T}, 2, v{T}
    v_and_b32 v{QI}, 15, v{V_LANE}
    v_sub_u32 v{QI}, v{QI}, v{T}
    v_add_u32 v{QI}, s{S_CNT}, v{QI}
    v_mov_b32 v{NI}, {NEGINF:#x}
    s_mov_b32 s{u}, 0""")
    for r in range(128): e(f"v_mov_b32 v{V_O + r}, 0")
    for qb in range(4): e(f"v_mov_b32 v{M+qb}, v{NI}\nv_mov_b32 v{LR[qb]}, 0")
    e.label("L_slowl")
    def ld8(so):
        for j in range(8):
            if j == 4: e(f"s_add_u32 s{so}, s{so}, 4096")
            e.vmem(f"buffer_load_dwordx4 {ar(A_FB[1] + j*4)}, v{V_L16}, {srd(S_WS)}, s{so} offen offset:{(j%4)*1024}{SC}", "SL")
        e(f"s_add_u32 s{so}, s{so}, 4096")
    ld8(ko)
    e.wait_all()
    for kb2 in range(2):
        for dg in range(4):
            for qb in range(4):
                d = vr(Sreg(0, kb2, qb))
                e(mf(d, ar(A_FB[1] + (kb2*4+dg)*4), ar(A_Q + (qb*4+dg)*4), d if dg else "0"))
    e("s_nop 7")
    ld8(vo)
    for kb2 in range(2):
        for qb in range(4):
            for r in range(4):
                s = Sreg(0, kb2, qb) + r
                e(f"v_cmp_gt_i32 vcc, {16*kb2 + r - 16*qb}, v{QI}\ns_nop 1\nv_cndmask_b32 v{s}, v{s}, v{NI}, vcc")
    e(f"v_subrev_u32 v{QI}, 32, v{QI}")
    for qb in range(4):
        a, b = Sreg(0, 0, qb), Sreg(0, 1, qb)
        e(f"""v_max3_f32 v{T}, v{a}, v{a+1}, v{a+2}
        v_max3_f32 v{T}, v{T}, v{a+3}, v{b}
        v_max3_f32 v{T}, v{T}, v{b+1}, v{b+2}
        v_max3_f32 v{T}, v{T}, v{b+3}, v{M+qb}
        v_mov_b32 v{T+1}, v{T}
        s_nop 1
        v_permlane32_swap_b32 v{T}, v{T+1}
        v_max_f32 v{T}, v{T}, v{T+1}
        v_mov_b32 v{T+1}, v{T}
        s_nop 1
        v_permlane16_swap_b32 v{T}, v{T+1}
        v_max_f32 v{T}, v{T}, v{T+1}
        v_sub_f32 v{AL+qb}, v{M+qb}, v{T}
        v_mov_b32 v{M+qb}, v{T}
        v_exp_f32 v{AL+qb}, v{AL+qb}""")
        for s in list(range(a, a+4)) + list(range(b, b+4)):
            e(f"v_sub_f32 v{s}, v{s}, v{T}")
        for s in list(range(a, a+4)) + list(range(b, b+4)):
            e(f"v_exp_f32 v{s}, v{s}")
        e(f"v_mul_f32 v{LR[qb]}, v{LR[qb]}, v{AL+qb}")
        for s in list(range(a, a+4)) + list(range(b, b+4)):
            e(f"v_add_f32 v{LR[qb]}, v{LR[qb]}, v{s}")
        p = Preg(0, qb)
        e(f"v_cvt_pk_bf16_f32 v{p}, v{a}, v{a+1}\nv_cvt_pk_bf16_f32 v{p+1}, v{a+2}, v{a+3}\nv_cvt_pk_bf16_f32 v{p+2}, v{b}, v{b+1}\nv_cvt_pk_bf16_f32 v{p+3}, v{b+2}, v{b+3}")
        for db in range(8):
            for r in range(4): e(f"v_mul_f32 v{Oreg(db, qb)+r}, v{Oreg(db, qb)+r}, v{AL+qb}")
    e.wait_all()
    e("s_nop 1")
    for db in range(8):
        for qb in range(4):
            d = vr(Oreg(db, qb))
            e(mf(d, ar(A_FB[1] + db*4), vr(Preg(0, qb)), d))
    e(f"s_add_u32 s{u}, s{u}, 1\ns_cmp_lt_u32 s{u}, s{nu}\ns_nop 7\ns_cbranch_scc1 L_slowl")
    for qb in range(4):
        e(f"""v_mov_b32 v{T}, v{LR[qb]}
        s_nop 1
        v_permlane32_swap_b32 v{LR[qb]}, v{T}
        v_add_f32 v{LR[qb]}, v{LR[qb]}, v{T}
        v_mov_b32 v{T}, v{LR[qb]}
        s_nop 1
        v_permlane16_swap_b32 v{LR[qb]}, v{T}
        v_add_f32 v{LR[qb]}, v{LR[qb]}, v{T}""")
    e(f"s_cmp_eq_u32 s{S_RET}, 0\ns_cbranch_scc1 L_ret0\ns_cmp_eq_u32 s{S_RET}, 1\ns_cbranch_scc1 L_ret1\ns_branch L_ret2")


def phase_d(e, poll_c):
    qt, mt, w = S_HEAD, S_BLK, S_WAVE
    V_XO, V_X, V_G = 4, 8, 17
    V_CR, NCR = 64, 4
    V_AS, V_AD = 128, 192
    t0, t1 = 24, 25
    S_XO, S_XO2 = S_XNB, S_HST
    for j in range(16):
        e.ds(f"ds_write_b128 v{V_TMP[0]}, {ar(A_DACC + j*4)} offset:{((j%4)*4 + j//4)*1024}", "DW")
        if j < OPT.get("wpre", 12): wo_load(e, 7 + j // 4, j % 4)
    e(f"""v_lshrrev_b32 v{t0}, 3, v{V_LANE}
    v_and_b32 v{t1}, 7, v{V_LANE}
    v_lshlrev_b32 v{V_XO}, 10, v{t0}
    v_lshl_add_u32 v{V_XO}, v{t1}, 4, v{V_XO}
    v_lshlrev_b32 v{t0}, 4, v{t0}
    v_lshl_add_u32 v{t0}, v{t1}, 9, v{t0}
    s_lshl_b32 s{S_XO}, s{qt}, 16
    s_lshl_b32 s{S_T0}, s{w}, 14
    s_add_u32 s{S_XO}, s{S_XO}, s{S_T0}
    s_lshl_b32 s{S_T1}, s{mt}, 7
    s_add_u32 s{S_XO}, s{S_XO}, s{S_T1}
    s_add_u32 s{S_XO2}, s{S_XO}, 8192
    v_subrev_u32 v{t1}, 32768, v{V_TMP[0]}
    s_lshl_b32 s{S_T0}, s{w}, 12
    v_add_u32 v{t0}, s{S_T0}, v{t0}
    v_add_u32 v{V_G}, 65536, v{t0}""")
    if OPT.get("pollw", 1):
        v = poll_c.voff
        e(f"""s_lshr_b32 s{S_T0}, s{qt}, 1
        s_sub_u32 s{S_T1}, 15, s{S_T0}
        s_min_u32 s{S_T0}, s{S_T0}, s{S_T1}
        s_lshl_b32 s{S_T0}, s{S_T0}, 9
        s_lshl_b32 s{S_T1}, s{w}, 3
        s_add_u32 s{S_T0}, s{S_T0}, s{S_T1}
        s_add_u32 s{S_T0}, s{S_T0}, {WS_FC}
        v_and_b32 v{v}, 3, v{V_LANE}
        v_lshlrev_b32 v{v}, 7, v{v}
        v_and_or_b32 v{v}, v{V_LANE}, 4, v{v}
        v_add_u32 v{v}, s{S_T0}, v{v}""")
    else: poll32_addr(e, poll_c.voff, WS_FC)
    if OPT.get("fst"): stamp(e, 18)
    e.need(vm=["CST"]); e.wait_all(vm=False)
    if OPT.get("fst"): stamp(e, 19)
    e("s_barrier")
    if OPT.get("fst"): stamp(e, 20)
    signal(e, sig_lin(WS_FC), 26)
    for sw in range(4):
        for mb in range(4): e.ds(f"ds_read_b128 {vr(V_AD + (sw*4+mb)*4)}, v{V_G if sw >= 2 else t0} offset:{32768 + (sw % 2)*16384 + (mb % 2)*256 + (mb // 2)*128}", ("R", sw))
    for it in range(2):
        e.vmem(f"buffer_load_dwordx4 {vr(V_X + 4*it)}, v{V_XO}, {srd(S_X)}, s{(S_XO, S_XO2)[it]} offen", "X")
    wl = [lambda n=n, q=q: wo_load(e, n, q) for n in range(7, NWS) for q in range(4)][OPT.get("wpre", 12):]
    cnt = [0]
    def V(t):
        e(t); cnt[0] += 1
        if cnt[0] % 6 == 0 and wl: wl.pop(0)()
    def rnd(base, pk):
        for j in range(8): V(f"v_cvt_pk_bf16_f32 v{pk+j}, v{base+2*j}, v{base+2*j+1}")
        for j in range(8): V(f"v_lshlrev_b32 v{base+2*j}, 16, v{pk+j}"); V(f"v_and_b32 v{base+2*j+1}, 0xffff0000, v{pk+j}")
    def red(base, tag):
        e.need(lg=[(tag, 1)])
        for r in range(16): V(f"v_add_f32 v{base+r}, v{base+r}, v{base+16+r}")
        e.need(lg=[(tag, 3)])
        for r in range(16): V(f"v_add_f32 v{base+32+r}, v{base+32+r}, v{base+48+r}")
        for r in range(16): V(f"v_add_f32 v{base+r}, v{base+r}, v{base+32+r}")
    T = V_AD + 16; PK = V_AD + 32
    red(V_AD, "R"); rnd(V_AD, PK)
    for r in range(16): V(f"v_mul_f32 v{T+r}, 0xbfb8aa3b, v{V_AD+r}")
    for r in range(16): V(f"v_exp_f32 v{T+r}, v{T+r}")
    for r in range(16): V(f"v_add_f32 v{T+r}, 1.0, v{T+r}")
    for r in range(16): V(f"v_rcp_f32 v{T+r}, v{T+r}")
    for r in range(16): V(f"v_mul_f32 v{V_AD+r}, v{V_AD+r}, v{T+r}")
    rnd(V_AD, PK)
    while len(wl) > 8: wl.pop(0)()
    poll_c.issue()
    while wl: wl.pop(0)()
    stamp(e, 10); poll_c.check(); stamp(e, 11)
    def sw_(j): e.ds(f"ds_write_b128 v{t1}, {vr(V_AS + j*4)} offset:{((j%4)*4 + j//4)*1024}", "SW")
    def c_load(n, q):
        e.vmem(f"buffer_load_dwordx4 {vr(V_CR + (n % NCR)*16 + q*4)}, v{V_L16}, {srd(S_WS)}, s{S_AC} offen offset:{q*1024}{SC}", ("C", n))
        if q == 3: e(f"s_add_u32 s{S_AC}, s{S_AC}, 4096")
    if OPT.get("dchain", 0):
        for n in range(2):
            for q in range(4): c_load(n, q)
        for n in range(0, 32, 2):
            ld = []
            for t in range(2):
                if n + 2 + t < 32: ld += [lambda q=q, t=t: c_load(n + 2 + t, q) for q in range(4)]
            for t in range(2):
                if n >= 2 and n + NWS - 2 + t < 32: ld += [lambda q=q, t=t: wo_load(e, n + NWS - 2 + t, q) for q in range(4)]
            for _ in range(min(4, len(ld))): ld.pop(0)()
            e.need(vm=[("C", n), ("C", n + 1), ("WO", n), ("WO", n + 1)])
            for k in range(32):
                c = k // 2; mb = c // 4; qb = c % 4 if mb % 2 == 0 else 3 - c % 4
                t = k % 2 if c % 2 == 0 else 1 - k % 2
                d = vr(V_AS + (mb*4 + qb)*4)
                e(mf(d, wreg(n + t, mb), vr(V_CR + ((n + t) % NCR)*16 + qb*4), d if (n or k % 2) else "0"))
                if k % 2 == 0 and ld: ld.pop(0)()
    else:
        for n in range(NCR - 1):
            for q in range(4): c_load(n, q)
        for n in range(32):
            ld = []
            if n + NCR - 1 < 32: ld += [lambda q=q: c_load(n + NCR - 1, q) for q in range(4)]
            if n >= 1 and n + NWS - 1 < 32: ld += [lambda q=q: wo_load(e, n + NWS - 1, q) for q in range(4)]
            e.need(vm=[("C", n), ("WO", n)])
            for k in range(16):
                mb, qb = k // 4, k % 4
                d = vr(V_AS + k*4)
                e(mf(d, wreg(n, mb), vr(V_CR + (n % NCR)*16 + qb*4), d if n else "0"))
                if k % 2 == 0 and ld: ld.pop(0)()
                if n == 31 and k >= 8: sw_(k - 8)
    stamp(e, 12)
    for j in range(8, 16):
        if j >= 12: e("s_nop 1")
        sw_(j)
    e.need(vm=["X"])
    for j in range(8): e(f"v_lshlrev_b32 v{T+2*j}, 16, v{V_X+j}"); e(f"v_and_b32 v{T+2*j+1}, 0xffff0000, v{V_X+j}")
    e.wait_all(vm=False)
    e("s_barrier")
    for sw in range(4):
        for mb in range(4): e.ds(f"ds_read_b128 {vr(V_AS + (sw*4+mb)*4)}, v{V_G if sw >= 2 else t0} offset:{(sw % 2)*16384 + (mb % 2)*256 + (mb // 2)*128}", ("RS", sw))
    red(V_AS, "RS"); rnd(V_AS, PK)
    for r in range(16): e(f"v_mul_f32 v{V_AS+r}, v{V_AS+r}, v{V_AD+r}")
    rnd(V_AS, PK)
    for r in range(16): e(f"v_add_f32 v{V_AS+r}, v{V_AS+r}, v{T+r}")
    for j in range(8): e(f"v_cvt_pk_bf16_f32 v{PK+j}, v{V_AS+2*j}, v{V_AS+2*j+1}")
    for it in range(2):
        e.vmem(f"buffer_store_dwordx4 {vr(PK + 4*it)}, v{V_XO}, {srd(S_OUT)}, s{(S_XO, S_XO2)[it]} offen{OPT.get('outsc', '')}", "OUT")
    e("s_cmp_lg_u32 s2, 0")
    e("s_cbranch_scc1 L_nobump")
    signal(e, f"s_mov_b32 s{S_CNT}, {WS_EP}", 26)
    e.label("L_nobump")
    stamp(e, 13)

HEADER = open("cdna_kernels/" + NAME + ".s.ref").read().split("; Override launch geometry")[0]
def build():
    e = E(); body(e)
    n = 0
    def policy(roleB, trans, slow, spin):
        def d(lb, site, c):
            if lb == "L_body": return (c == 0) if site < 2 else True
            if lb == "L_first": return trans and c == 2
            if lb == "L_fzero": return trans == 2
            if lb == "L_late": return c != 1
            if lb == "L_trans": return trans and c == 0
            if lb == "L_mergeB": return roleB
            if lb == "L_slow": return slow
            if lb == "L_slowl": return c % 2 == 0
            if lb == "L_ret0": return trans and c == 0
            if lb == "L_ret1": return not roleB
            if lb.startswith("L_spin_"): return spin and c == 0
            if lb.startswith("L_ok_"): return c >= 1
            if lb.startswith("L_spinl_"): return True
            return False
        return d
    for cfg in ((0, 0, 0, 0), (1, 1, 0, 0), (0, 0, 1, 1), (1, 1, 1, 1), (1, 2, 0, 0)):
        tr = chk.trace(e.L, policy(*cfg))
        assert "s_endpgm" in tr[-1], cfg
        n += chk.check(tr, f"path{cfg}")
    if n: print(f"{n} hazards", file=sys.stderr)
    return "\n".join([HEADER.rstrip("\n"), "; @launch grid=(256,1,1) block=(256,1,1) lds=163840",
        '.amdgcn_target "amdgcn-amd-amdhsa--gfx950"\n.text', e.text(), '.section .rodata,"a"\n.p2align 6',
        f""".amdhsa_kernel {KN}
  .amdhsa_next_free_vgpr 512
  .amdhsa_next_free_sgpr 102
  .amdhsa_accum_offset 256
  .amdhsa_group_segment_fixed_size 0
  .amdhsa_kernarg_size 104
  .amdhsa_user_sgpr_count 2
  .amdhsa_user_sgpr_kernarg_segment_ptr 1
  .amdhsa_system_sgpr_workgroup_id_x 1
.end_amdhsa_kernel
"""])
if __name__ == "__main__":
    open(sys.argv[1], "w").write(build())
```

```python
import sys, math, os, struct
from emit import E, Filler
import check as chk

NAME = "recurrent_scan__compressed_kv_cla__glu_gated_geglu__prompt"
KN = NAME + "_kernel"
MB = 1 << 20
OPT = eval(os.environ.get("OPT", "{}"))
STAMPS = os.environ.get("STAMPS")
POLLALL = OPT.get("pollall", 0)
WS_XN, WS_H, WS_WDF, WS_WOF, WS_CTX, WS_K, WS_V, WS_END = 0, 2*MB, 9*MB, 12*MB, 16*MB, 32*MB, 48*MB, 64*MB
fb = lambda x: struct.unpack("<I", struct.pack("<f", x))[0]

S_X, S_CKV, S_WQ, S_WUK, S_WUV, S_WO, S_WG, S_WU, S_WD, S_OUT, S_DBG, S_WS = [8 + 4*i for i in range(12)]
S_HSRD, S_ASRD, S_BSRD = 56, 60, 64
S_WAVE, S_HEAD, S_BLK, S_ROT = 68, 69, 70, 71
S_T0, S_T1, S_T2, S_T3, S_T4, S_T5 = 72, 73, 74, 75, 76, 77
S_WL, S_WA = 78, 79
S_OFF0, S_OFFA, S_AROW, S_KVST, S_XNB, S_HST = 80, 81, 82, 83, 84, 85
S_CTXLO, S_CTXHI = 86, 87
S_SRCA, S_SRCB, S_LA, S_LB, S_VMAXB, S_VCLB = 88, 89, 90, 91, 92, 93
S_N, S_EVT, S_TRANS, S_N0 = 94, 95, 96, 97
S_QT, S_QTHI, S_RET, S_CNT = 98, 99, 100, 101
S_ROTB, S_DW, S_DH, S_DINC = 48, 49, 50, 51
S_GJ = 7
S_GSRD = S_CKV
S_DSRD = S_HSRD
S_FL = 6
def srd(n): return f"s[{n}:{n+3}]"
def mf(d, a, b, c): return f"v_mfma_f32_16x16x32_bf16 {d}, {a}, {b}, {c}"
def vr(n, k=4): return f"v[{n}:{n+k-1}]"
def ar(n, k=4): return f"a[{n}:{n+k-1}]"

V_LANE, V_STAMP, V_L16 = 1, 2, 3
V_TR = (4, 5, 6, 7)
V_WOFF = (8, 9, 10, 11)
V_AOFF = (12, 13)
V_WOFG = (12, 13)
V_ARD = (14, 15)
V_TMP = list(range(16, 32))
V_POLL = 0
V_WF, V_PK, V_ACC = 32, 64, 128
def acc(db, rb): return V_ACC + (db*4 + rb)*4
def actf(ks, rb): return (ks*4 + rb)*4
V_RD = 4
V_TD, V_TN, V_LIM = 16, 20, 24
V_P, V_S, V_O = (32, 48), (64, 96), 128
A_Q, A_FB, A_DACC, A_L, A_ONE, A_DOP = 0, (64, 96), 128, 192, 208, 224
QSCALE = fb(math.log2(math.e) / math.sqrt(128.0))
NEGINF = 0xff800000
def Sreg(buf, kb2, qb): return V_S[buf] + (kb2*4 + qb)*4
def Preg(buf, qb): return V_P[buf] + qb*4
def Oreg(db, qb): return V_O + (db*4 + qb)*4
SC = " sc1"

def stamp(e, idx):
    if not STAMPS: return
    if OPT.get("padph") and idx not in OPT["padph"]: return
    if OPT.get("padat"):
        if idx == OPT["padat"][0]:
            e(f"s_nop 1\nv_readlane_b32 s5, v{V_STAMP}, 0\ns_add_u32 s{S_CNT}, s5, {OPT['padat'][1]*100}")
            e.label("L_padat")
            e(f"s_memrealtime s[4:5]\ns_waitcnt lgkmcnt(0)\ns_sub_u32 s5, s4, s{S_CNT}\ns_cmp_lt_i32 s5, 0\ns_cbranch_scc1 L_padat")
            e.lgkm = []
        return
    e(("s_memtime" if STAMPS == "2" else "s_memrealtime") + " s[4:5]")
    e.wait_all(vm=False)
    e(f"v_writelane_b32 v{V_STAMP}, s4, {idx}")
def stamp_flush(e):
    if not STAMPS: return
    if OPT.get("dbgst"):
        e(f"""s_load_dwordx2 s[8:9], s[0:1], 88
        s_mov_b32 s10, 256
        s_mov_b32 s11, 0x20000
        v_readlane_b32 s4, v{V_STAMP}, 0
        s_not_b32 s4, s4
        s_nop 3
        v_writelane_b32 v{V_STAMP}, s4, 14
        v_lshlrev_b32 v0, 2, v{V_LANE}
        v_cmp_gt_u32 vcc, 15, v{V_LANE}
        s_and_saveexec_b64 s[6:7], vcc
        s_waitcnt lgkmcnt(0)
        buffer_atomic_umax v{V_STAMP}, v0, s[8:11], 0 offen
        s_waitcnt vmcnt(0)""")
        return
    e(f"""s_lshl_b32 s4, s2, 2
    s_add_u32 s4, s4, s{S_WAVE}
    s_lshl_b32 s4, s4, 7
    s_add_u32 s4, s4, {64*MB}
    v_lshlrev_b32 v0, 2, v{V_LANE}
    v_cmp_gt_u32 vcc, 32, v{V_LANE}
    s_and_saveexec_b64 s[6:7], vcc
    buffer_store_dword v{V_STAMP}, v0, {srd(S_WS)}, s4 offen
    s_waitcnt vmcnt(0)""")

WS_EP = 11*MB
WS_FX, WS_FK, WS_FB, WS_FC = WS_EP + 4096, WS_EP + 8192, WS_EP + 12288, WS_EP + 16384
S_TAG = 3
def signal(e, soff_lines, tmp):
    e(soff_lines)
    e(f"""v_mov_b32 v{tmp}, s{S_TAG}
    v_add_u32 v{tmp+1}, s{S_WL}, v{V_LANE}
    v_min_u32 v{tmp+1}, 1, v{tmp+1}
    v_lshlrev_b32 v{tmp+1}, 30, v{tmp+1}""")
    e.vmem(f"buffer_store_dword v{tmp}, v{tmp+1}, {srd(S_WS)}, s{S_CNT} offen sc1", "SIG")
def sig_lin(base):
    return f"""s_lshr_b32 s{S_CNT}, s2, 3
    s_lshl_b32 s{S_CNT}, s{S_CNT}, 7
    s_and_b32 s{S_FL}, s2, 7
    s_lshl_b32 s{S_FL}, s{S_FL}, 2
    s_add_u32 s{S_CNT}, s{S_CNT}, s{S_FL}
    s_add_u32 s{S_CNT}, s{S_CNT}, {base}"""
SIG_KV = f"""s_and_b32 s{S_CNT}, s2, 31
    s_lshl_b32 s{S_CNT}, s{S_CNT}, 7
    s_lshl_b32 s{S_FL}, s{S_BLK}, 2
    s_add_u32 s{S_CNT}, s{S_CNT}, s{S_FL}
    s_add_u32 s{S_CNT}, s{S_CNT}, {WS_FK}"""
class Poll:
    def __init__(self, e, name, voff):
        self.e, self.name, self.voff = e, name, voff
    @property
    def ld(self):
        if self.name == "b" and POLLALL: return f"buffer_load_dwordx4 a[216:219], v{self.voff}, {srd(S_WS)}, 0 offen sc1"
        return f"buffer_load_dword v{V_POLL}, v{self.voff}, {srd(S_WS)}, 0 offen sc1"
    def issue(self): self.e.vmem(self.ld, ("POLL", self.name))
    def test(self):
        if self.name == "b" and POLLALL:
            return f"""v_accvgpr_read_b32 v5, a216
            v_accvgpr_read_b32 v6, a217
            v_accvgpr_read_b32 v7, a218
            v_accvgpr_read_b32 v{V_POLL}, a219
            v_xor_b32 v5, v5, v{V_POLL}
            v_xor_b32 v6, v6, v{V_POLL}
            v_xor_b32 v7, v7, v{V_POLL}
            v_or3_b32 v5, v5, v6, v7
            v_xor_b32 v{V_POLL}, s{S_TAG}, v{V_POLL}
            v_or_b32 v5, v5, v{V_POLL}
            v_cmp_eq_u32 vcc, 0, v5
            s_cmp_eq_u64 vcc, exec"""
        return f"v_cmp_eq_u32 vcc, s{S_TAG}, v{V_POLL}\ns_cmp_eq_u64 vcc, exec"
    def check(self):
        e = self.e
        e.need(vm=[("POLL", self.name)])
        e(self.test())
        e(f"s_cbranch_scc0 L_spin_{self.name}")
        e.label(f"L_ok_{self.name}")
    def spin(self):
        e = self.e
        e.label(f"L_spin_{self.name}")
        e(f"s_mov_b32 s{S_CNT}, 0x40000")
        e.label(f"L_spinl_{self.name}")
        e("s_sleep 2")
        e(self.ld)
        e("s_waitcnt vmcnt(0)")
        e(self.test())
        e(f"s_cbranch_scc1 L_ok_{self.name}")
        e(f"s_sub_u32 s{S_CNT}, s{S_CNT}, 1")
        e(f"s_cmp_lg_u32 s{S_CNT}, 0")
        e(f"s_cbranch_scc1 L_spinl_{self.name}")
        e(f"s_branch L_ok_{self.name}")
def poll32_addr(e, v, base):
    e(f"""s_lshr_b32 s{S_T0}, s{S_HEAD}, 1
    s_sub_u32 s{S_T1}, 15, s{S_T0}
    s_min_u32 s{S_T0}, s{S_T0}, s{S_T1}
    s_lshl_b32 s{S_T0}, s{S_T0}, 9
    s_add_u32 s{S_T0}, s{S_T0}, {base}
    v_bfe_u32 v{v}, v{V_LANE}, 3, 2
    v_lshlrev_b32 v{v}, 5, v{v}
    v_and_or_b32 v{v}, v{V_LANE}, 7, v{v}
    v_lshlrev_b32 v{v}, 2, v{v}
    v_add_u32 v{v}, s{S_T0}, v{v}""")

def kernel_head(e):
    e(f".globl {KN}\n.p2align 8\n.type {KN},@function")
    e.label(KN)
    e("s_cmp_ge_u32 s2, 256")
    e("s_cbranch_scc1 L_end")
    sizes = {S_X: (0, 2*MB), S_CKV: (8, 2*MB), S_WUK: (24, 4*MB), S_WS: (96, 65*MB if STAMPS else WS_END), S_WQ: (16, 4*MB), S_WUV: (32, 4*MB), S_WO: (40, 4*MB),
             S_WG: (56, 512*3584), S_WU: (64, 512*3584), S_WD: (72, 1792*1024), S_OUT: (80, 2*MB)}
    first = (S_X, S_CKV, S_WUK, S_WS)
    if OPT.get("st0") == 1: e("s_memrealtime s[6:7]\ns_waitcnt lgkmcnt(0)")
    for sr in first: e(f"s_load_dwordx2 s[{sr}:{sr+1}], s[0:1], {sizes[sr][0]}")
    if OPT.get("st0") == 2: e("s_waitcnt lgkmcnt(0)\ns_memrealtime s[6:7]")
    if STAMPS and not OPT.get("st0"): e(("s_memtime" if STAMPS == "2" else "s_memrealtime") + " s[6:7]")
    e(f"v_and_b32 v{V_LANE}, 63, v0")
    e("v_lshrrev_b32 v2, 6, v0")
    e(f"v_lshlrev_b32 v{V_L16}, 4, v{V_LANE}")
    e(f"v_readfirstlane_b32 s{S_WAVE}, v2")
    if OPT.get("pfcode", 1):
        e(f"""s_getpc_b64 s[4:5]
        s_lshr_b32 s{S_T0}, s2, 3
        s_lshl_b32 s{S_T0}, s{S_T0}, 11
        v_lshlrev_b32 v{V_TMP[0]}, 3, v2
        v_and_or_b32 v{V_TMP[0]}, v0, 7, v{V_TMP[0]}
        v_lshlrev_b32 v{V_TMP[0]}, 6, v{V_TMP[0]}
        v_add_u32 v{V_TMP[0]}, s{S_T0}, v{V_TMP[0]}
        v_min_u32 v{V_TMP[0]}, L_end-L_pcref, v{V_TMP[0]}""")
        e.label("L_pcref")
        e.vmem(f"global_load_dword v{V_TMP[12]}, v{V_TMP[0]}, s[4:5]", "PF")
    e(f"""s_and_b32 s{S_T0}, s2, 7
    s_lshl_b32 s{S_T0}, s{S_T0}, 2
    s_lshr_b32 s{S_T1}, s2, 3
    s_and_b32 s{S_T1}, s{S_T1}, 3
    s_add_u32 s{S_HEAD}, s{S_T0}, s{S_T1}
    s_lshr_b32 s{S_BLK}, s2, 5
    s_mul_i32 s{S_T0}, s{S_T1}, {OPT.get('rota', 0)}
    s_add_u32 s{S_ROT}, s{S_BLK}, s{S_T0}
    s_mul_i32 s{S_T0}, s2, {OPT.get('rotx', 1)}
    s_add_u32 s{S_ROT}, s{S_ROT}, s{S_T0}
    s_and_b32 s{S_ROT}, s{S_ROT}, 7
    s_and_b32 s{S_ROTB}, s{S_BLK}, 3
    s_lshl_b32 s{S_WL}, s{S_WAVE}, 10
    s_lshl_b32 s{S_WA}, s{S_WAVE}, 13
    s_add_u32 s{S_WA}, s{S_WA}, 65536""")
    if STAMPS: e("v_mov_b32 v2, -1")
    for sr in first: e(f"s_mov_b32 s{sr+2}, {sizes[sr][1]}\ns_mov_b32 s{sr+3}, 0x20000")
    setup_addrs(e)
    e(f"v_add_u32 v{V_ARD[0]}, s{S_WA}, v{V_ARD[0]}\nv_xor_b32 v{V_ARD[1]}, 64, v{V_ARD[0]}")
    scalar_setup(e)
    e(f"s_lshl_b32 s{S_T0}, s2, 13\ns_lshl_b32 s{S_T1}, s{S_WAVE}, 11\ns_add_u32 s{S_T0}, s{S_T0}, s{S_T1}")
    def late():
        for sr, (p, n) in sizes.items():
            if sr not in first: e(f"s_load_dwordx2 s[{sr}:{sr+1}], s[0:1], {p}\ns_mov_b32 s{sr+2}, {n}\ns_mov_b32 s{sr+3}, 0x20000")
        for sr in (S_HSRD, S_ASRD, S_BSRD): e(f"s_mov_b64 s[{sr}:{sr+1}], s[{S_WS}:{S_WS+1}]\ns_mov_b32 s{sr+2}, {WS_END}\ns_mov_b32 s{sr+3}, 0x20000")
        e(f"s_add_u32 s{S_FL}, s{S_WS}, {WS_EP}\ns_addc_u32 s{S_FL+1}, s{S_WS+1}, 0\ns_load_dword s{S_TAG}, s[{S_FL}:{S_FL+1}], 0")
    def go():
        e("s_waitcnt lgkmcnt(0)")
        if STAMPS: e("v_writelane_b32 v2, s6, 0")
        e.vmem(f"buffer_load_dwordx4 v[64:67], v{V_L16}, {srd(S_X)}, s{S_T0} offen", "X")
        e.vmem(f"buffer_load_dwordx4 v[68:71], v{V_L16}, {srd(S_X)}, s{S_T0} offen offset:1024", "X")
    return go, late

V_CPF = 31
V_KPERM = 31
V_UOFF = 30
def setup_addrs(e):
    t0, t1, t2, t3, t4 = V_TMP[:5]
    e(f"""v_lshrrev_b32 v{t0}, 2, v{V_LANE}
    v_lshlrev_b32 v{t0}, 7, v{t0}
    v_and_b32 v{t1}, 3, v{V_LANE}
    v_lshlrev_b32 v{t1}, 3, v{t1}
    v_add_u32 v{t0}, v{t0}, v{t1}
    v_bfe_u32 v{t1}, v{V_LANE}, 3, 2
    v_lshlrev_b32 v{t1}, 5, v{t1}
    v_add_u32 v{V_TR[0]}, v{t0}, v{t1}""")
    for c in (1, 2, 3): e(f"v_xor_b32 v{V_TR[c]}, {c*32}, v{V_TR[0]}")
    e(f"""v_lshrrev_b32 v{t0}, 3, v{V_LANE}
    v_and_b32 v{t1}, 7, v{V_LANE}
    v_and_b32 v{t2}, 6, v{t0}
    v_xor_b32 v{t1}, v{t1}, v{t2}
    v_lshlrev_b32 v{V_UOFF}, 4, v{t1}
    s_lshl_b32 s{S_T0}, s{S_WAVE}, 3
    v_add_u32 v{t2}, s{S_T0}, v{t0}
    v_bfe_u32 v{t3}, v{t2}, 2, 2
    v_lshlrev_b32 v{t3}, 3, v{t3}
    v_lshrrev_b32 v{t4}, 4, v{t2}
    v_lshl_add_u32 v{t3}, v{t4}, 2, v{t3}
    v_and_b32 v{t4}, 3, v{t2}
    v_add_u32 v{V_KPERM}, v{t3}, v{t4}
    v_lshl_add_u32 v{V_WOFF[0]}, v{V_KPERM}, 13, v{V_UOFF}
    v_add_u32 v{V_WOFF[1]}, 128, v{V_WOFF[0]}
    v_add_u32 v{V_WOFF[2]}, {32*8192}, v{V_WOFF[0]}
    v_add_u32 v{V_WOFF[3]}, {32*8192 + 128}, v{V_WOFF[0]}
    v_and_b32 v{t1}, 7, v{V_LANE}
    v_lshrrev_b32 v{t2}, 1, v{t0}
    v_xor_b32 v{t1}, v{t1}, v{t2}
    v_lshlrev_b32 v{t1}, 4, v{t1}
    v_lshl_add_u32 v{V_AOFF[0]}, v{t0}, 10, v{t1}
    v_xor_b32 v{V_AOFF[1]}, 64, v{V_AOFF[0]}
    v_add_u32 v{V_AOFF[1]}, 8192, v{V_AOFF[1]}
    v_and_b32 v{t0}, 15, v{V_LANE}
    v_lshrrev_b32 v{t1}, 4, v{V_LANE}
    v_lshrrev_b32 v{t2}, 1, v{t0}
    v_xor_b32 v{t1}, v{t1}, v{t2}
    v_lshlrev_b32 v{t1}, 4, v{t1}
    v_lshl_add_u32 v{V_ARD[0]}, v{t0}, 7, v{t1}""")

def scalar_setup(e):
    i, h, w = S_BLK, S_HEAD, S_WAVE
    e(f"""s_lshl_b32 s{S_T0}, s{i}, 2
    s_add_u32 s{S_T0}, s{S_T0}, s{w}
    s_lshl_b32 s{S_AROW}, s{S_T0}, 16
    s_lshl_b32 s{S_KVST}, s{h}, 19
    s_lshl_b32 s{S_T0}, s{S_T0}, 14
    s_add_u32 s{S_KVST}, s{S_KVST}, s{S_T0}""")
def scalar_setup2(e):
    i, h, w = S_BLK, S_HEAD, S_WAVE
    a, b, c, d = S_N, S_EVT, S_TRANS, S_RET
    IDLE = f"s{i}" if OPT.get("spread", 1) else "7"
    return f"""s_sub_u32 s{a}, 15, s{i}
    s_cmp_lt_u32 s{w}, 2 ! s_cselect_b32 s{b}, s{a}, s{i}
    s_lshl_b32 s{b}, s{b}, 1
    s_and_b32 s{c}, s{w}, 1
    s_add_u32 s{S_QT}, s{b}, s{c}
    s_lshl_b32 s{S_XNB}, s{S_QT}, 16
    s_mul_i32 s{S_HST}, s{S_QT}, {56*4096}
    s_add_u32 s{S_HST}, s{S_HST}, {WS_H}
    s_lshl_b32 s{d}, s{h}, 14
    s_add_u32 s{d}, s{d}, {WS_CTX}
    s_lshl_b32 s{S_CTXLO}, s{S_QT}, 19
    s_add_u32 s{S_CTXLO}, s{S_CTXLO}, s{d}
    s_lshr_b32 s{b}, s{w}, 1
    s_xor_b32 s{b}, s{b}, s{w}
    s_and_b32 s{b}, s{b}, 1
    s_lshl_b32 s{a}, s{a}, 1
    s_add_u32 s{S_QTHI}, s{a}, s{b}
    s_lshl_b32 s{S_CTXHI}, s{S_QTHI}, 19
    s_add_u32 s{S_CTXHI}, s{S_CTXHI}, s{d}
    s_lshr_b32 s{a}, s{h}, 2
    s_cmp_lg_u32 s{a}, {IDLE} ! s_cselect_b32 s{S_HSRD+2}, {WS_END}, 0
    s_cmp_gt_u32 s{a}, {IDLE} ! s_cselect_b32 s{a}, 4, 0
    s_sub_u32 s{S_GJ}, s{h}, s{a}
    s_lshl_b32 s{a}, s{h}, 19
    s_mov_b32 s{b}, {WS_V}
    s_cmp_lt_u32 s{w}, 2 ! s_cselect_b32 s{b}, {WS_K}, s{b}
    s_add_u32 s{b}, s{b}, s{a}
    s_add_u32 s{S_VCLB}, s{b}, {63*8192}
    s_and_b32 s{a}, s{w}, 1
    s_lshl_b32 s{a}, s{a}, 13
    s_add_u32 s{S_SRCA}, s{b}, s{a}
    s_lshl_b32 s{a}, s{w}, 13
    s_add_u32 s{S_VMAXB}, s{b}, s{a}
    s_add_u32 s{S_VMAXB}, s{S_VMAXB}, {64*8192}
    s_min_u32 s{S_SRCB}, s{S_VMAXB}, s{S_VCLB}
    s_lshl_b32 s{S_LB}, s{w}, 13
    s_add_u32 s{S_LA}, s{S_LB}, 65536
    s_xor_b32 s{S_LB}, s{S_LB}, 32768
    s_lshl_b32 s{S_N0}, s{i}, 1
    s_add_u32 s{S_N0}, s{S_N0}, 2
    s_mul_i32 s{a}, s{w}, {14*4096}
    s_mul_i32 s{S_DH}, s{h}, {56*4096}
    s_add_u32 s{S_DH}, s{S_DH}, s{a}
    s_add_u32 s{S_DH}, s{S_DH}, {WS_H}
    s_mul_i32 s{S_DW}, s{i}, {56*4096}
    s_add_u32 s{S_DW}, s{S_DW}, s{a}
    s_add_u32 s{S_DW}, s{S_DW}, {WS_WDF}
    s_mov_b32 s{S_DINC}, 0""".split("\n")

def layernorm_lines():
    L = []; e = L.append
    X = (72, 80); SUM = (88, 89); TMP = (90, 91); MEAN = (92, 93); VAR = (94, 95)
    SS = (S_T0, S_T1)
    for r in range(2):
        for j in range(4):
            e(f"v_lshlrev_b32 v{X[r]+2*j}, 16, v{64+4*r+j}")
            e(f"v_and_b32 v{X[r]+2*j+1}, 0xffff0000, v{64+4*r+j}")
    def reduce():
        for mod in ("quad_perm:[1,0,3,2] row_mask:0xf bank_mask:0xf", "quad_perm:[2,3,0,1] row_mask:0xf bank_mask:0xf",
                    "row_half_mirror row_mask:0xf bank_mask:0xf", "row_mirror row_mask:0xf bank_mask:0xf",
                    "row_bcast:15 row_mask:0xa bank_mask:0xf", "row_bcast:31 row_mask:0xc bank_mask:0xf"):
            e("s_nop 0")
            for r in range(2): e(f"v_add_f32_dpp v{SUM[r]}, v{SUM[r]}, v{SUM[r]} {mod}")
        e("s_nop 0")
        for r in range(2): e(f"v_readlane_b32 s{SS[r]}, v{SUM[r]}, 63")
        e("s_nop 1")
    P2 = lambda r: f"v[{r}:{r+1}]"
    AC = (96, 98); DD = (100, 108)
    for r in range(2): e(f"v_pk_add_f32 {P2(AC[r])}, {P2(X[r])}, {P2(X[r]+2)}")
    for j in (4, 6):
        for r in range(2): e(f"v_pk_add_f32 {P2(AC[r])}, {P2(AC[r])}, {P2(X[r]+j)}")
    for r in range(2): e(f"v_add_f32 v{SUM[r]}, v{AC[r]}, v{AC[r]+1}")
    reduce()
    for r in range(2): e(f"v_mov_b32 v{MEAN[r]}, s{SS[r]}")
    for r in range(2): e(f"v_mul_f32 v{MEAN[r]}, 0x3b000000, v{MEAN[r]}")
    NEGB = lambda r: bsel(r)[1] + " neg_lo:[0,1] neg_hi:[0,1]"
    for j in range(0, 8, 2):
        for r in range(2): e(f"v_pk_add_f32 {P2(DD[r]+j)}, {P2(X[r]+j)}, {bsel(MEAN[r])[0]} {NEGB(MEAN[r])}")
    for j in range(0, 8, 2):
        for r in range(2): e(f"v_pk_mul_f32 {P2(AC[r])}, {P2(DD[r])}, {P2(DD[r])}" if j == 0 else f"v_pk_fma_f32 {P2(AC[r])}, {P2(DD[r]+j)}, {P2(DD[r]+j)}, {P2(AC[r])}")
    for r in range(2): e(f"v_add_f32 v{SUM[r]}, v{AC[r]}, v{AC[r]+1}")
    reduce()
    def both(fmt):
        for r in range(2): e(fmt.format(v=VAR[r], m=MEAN[r], s=SS[r]))
    def rnd(x):
        both("v_cvt_pk_bf16_f32 v{%s}, v{%s}, v{%s}" % (x, x, x)); both("v_lshlrev_b32 v{%s}, 16, v{%s}" % (x, x))
    both("v_mov_b32 v{v}, s{s}"); both("v_mul_f32 v{v}, 0x3b000000, v{v}")
    rnd("v"); both("v_add_f32 v{v}, 0x3727c5ac, v{v}"); rnd("v")
    both("v_sqrt_f32 v{v}, v{v}"); rnd("m"); rnd("v"); both("v_rcp_f32 v{v}, v{v}")
    for r in range(2):
        for j in range(0, 8, 2): e(f"v_pk_add_f32 {P2(X[r]+j)}, {P2(X[r]+j)}, {bsel(MEAN[r])[0]} {NEGB(MEAN[r])}")
        for j in range(4): e(f"v_cvt_pk_bf16_f32 v{64+4*r+j}, v{X[r]+2*j}, v{X[r]+2*j+1}")
        for j in range(4):
            e(f"v_lshlrev_b32 v{X[r]+2*j}, 16, v{64+4*r+j}")
            e(f"v_and_b32 v{X[r]+2*j+1}, 0xffff0000, v{64+4*r+j}")
        for j in range(0, 8, 2): e(f"v_pk_mul_f32 {P2(X[r]+j)}, {P2(X[r]+j)}, {bsel(VAR[r])[0]} {bsel(VAR[r])[1]}")
        for j in range(4): e(f"v_cvt_pk_bf16_f32 v{64+4*r+j}, v{X[r]+2*j}, v{X[r]+2*j+1}")
    return L

class MemQ:
    def __init__(self, e): self.e = e; self.items = []
    def add(self, kind, lo, hi, *a): self.items.append([kind, lo, hi, a])
    def fillers(self):
        e = self.e; out = []
        dm = [k for k, it in enumerate(self.items) if it[0] == 'd']
        nxt = {dm[j]: dm[j+1] for j in range(len(dm) - 1)}
        self.first_m0 = self.items[dm[0]][3][0]
        for k, (kind, lo, hi, a) in enumerate(self.items):
            if kind == 's': out.append(Filler(lambda a=a: e(a[0].replace(" ! ", "\n")), 4, "salu", lo, hi))
            elif kind == 'l': out.append(Filler(lambda a=a: e.vmem(a[0], a[1]), 4, "mem", lo, hi))
            elif kind == 'f': out.append(Filler(a[0], a[1], a[2], lo, hi))
            else:
                def fn(k=k, a=a):
                    if len(a) > 3: e.need(lg=a[3])
                    if " m0," in e.L[-1]: e("s_nop 0")
                    e.vmem(a[1], a[2])
                    if k in nxt: e(self.items[nxt[k]][3][0])
                out.append(Filler(fn, 8, "mem", lo, hi))
        return out


def body(e):
    i, h, w = S_BLK, S_HEAD, S_WAVE
    go, late = kernel_head(e)
    NS = 32; BAR = 42; INF = 10**9; P = -10**6
    mq = MemQ(e)
    def S(lo, hi, *lines):
        for t in lines: mq.add('s', lo, hi, t)
    def VV(lo, hi, *lines):
        for t in lines: mq.add('f', lo, hi, lambda t=t: e(t), 4, "valu")
    V_GOFF = V_KPERM; V_TRH = V_AOFF + V_ARD
    S_GO = S_T1
    def area(gs):
        if gs < 16: return (gs % 4)*16384
        if gs < 24: return ((gs % 4)*32768 + 65536) % 131072
        return ((gs - 24)*16384 + 65536) % 131072
    def w_stage(gs, lo, step, hi):
        slot = gs % 4
        if gs < 16:
            s = gs % 8
            if s == 0: S(lo - 8, hi, f"s_lshl_b32 s{S_OFF0}, s{S_ROT}, 19", f"s_lshl_b32 s{S_T5}, s{h}, 8", f"s_add_u32 s{S_OFF0}, s{S_OFF0}, s{S_T5}")
            else: S(lo - 8, hi, f"s_add_u32 s{S_OFF0}, s{S_OFF0}, {1<<19}", f"s_and_b32 s{S_OFF0}, s{S_OFF0}, {4*MB-1}")
            for n in range(4):
                mq.add('d', lo + step*n, hi, f"s_add_u32 m0, s{S_WL}, {slot*16384 + n*4096}",
                       f"buffer_load_dwordx4 v{V_WOFF[n]}, {srd(S_WUK if gs < 8 else S_WUV)}, s{S_OFF0} offen lds", ("W", gs))
        elif gs >= 24:
            s = gs % 4; hf = (gs // 4) % 2
            S(lo - 10, hi, f"s_add_u32 s{S_OFF0}, s{S_ROTB}, {s}", f"s_and_b32 s{S_OFF0}, s{S_OFF0}, 3", f"s_lshl_b32 s{S_OFF0}, s{S_OFF0}, 20",
              f"s_lshl_b32 s{S_T5}, s{h}, 8", f"s_add_u32 s{S_OFF0}, s{S_OFF0}, s{S_T5}")
            if hf: S(lo - 10, hi, f"s_add_u32 s{S_OFF0}, s{S_OFF0}, 128")
            for n in range(4):
                if n: S(lo + step*n - 2, hi, f"s_add_u32 s{S_OFF0}, s{S_OFF0}, {32*8192}")
                mq.add('d', lo + step*n, hi, f"s_add_u32 m0, s{S_WL}, {area(gs) + n*4096}",
                       f"buffer_load_dwordx4 v{V_WOFF[0]}, {srd(S_WQ)}, s{S_OFF0} offen lds", ("W", gs))
    def g_stage(s, lo, step, hi):
        S(lo - 10, hi, f"s_add_u32 s{S_GO}, s{S_ROTB}, {s}", f"s_and_b32 s{S_GO}, s{S_GO}, 3", f"s_mul_i32 s{S_GO}, s{S_GO}, {128*3584}",
          f"s_lshl_b32 s{S_T5}, s{S_GJ}, 7", f"s_add_u32 s{S_GO}, s{S_GO}, s{S_T5}")
        for n in range(8):
            if n and n % 2 == 0: S(lo + step*n - 2, hi, f"s_add_u32 s{S_GO}, s{S_GO}, {32*3584}")
            mq.add('d', lo + step*n, hi, f"s_add_u32 m0, s{S_WL}, {area(16 + s) + n*4096}",
                   f"buffer_load_dwordx4 v{V_GOFF}, {srd((S_WG, S_WU)[n % 2])}, s{S_GO} offen lds", ("W", 16 + s))
    def a_stage(s, lo, step, hi):
        S(lo - 6, hi, f"s_add_u32 s{S_OFFA}, s{S_ROT}, {s}", f"s_and_b32 s{S_OFFA}, s{S_OFFA}, 7", f"s_lshl_b32 s{S_OFFA}, s{S_OFFA}, 7", f"s_add_u32 s{S_OFFA}, s{S_OFFA}, s{S_AROW}")
        for q in range(8):
            if q and q % 2 == 0: S(lo + step*q - 2, hi, f"s_add_u32 s{S_OFFA}, s{S_OFFA}, 16384")
            mq.add('d', lo + step*q, hi, f"s_add_u32 m0, s{S_WA}, {(s % 2)*32768 + q*1024}",
                   f"buffer_load_dwordx4 v{V_AOFF[q & 1]}, {srd(S_CKV)}, s{S_OFFA} offen lds", ("A", s), [("AF", s-2, 0), ("AF", s-2, 1)])
    def xn_stage(s, lo, step, hi):
        if s % 2 == 0: S(lo - 6, hi, f"s_add_u32 s{S_OFFA}, s{S_ROTB}, {s//2}", f"s_and_b32 s{S_OFFA}, s{S_OFFA}, 3", f"s_lshl_b32 s{S_OFFA}, s{S_OFFA}, 14", f"s_add_u32 s{S_OFFA}, s{S_OFFA}, s{S_XNB}")
        for ksub in range(2):
            if ksub or s % 2: S(lo + step*4*ksub - 2, hi, f"s_add_u32 s{S_OFFA}, s{S_OFFA}, 4096")
            for rb in range(4):
                mq.add('l', lo + step*(ksub*4 + rb), hi, f"buffer_load_dwordx4 {ar(actf(2*s+ksub, rb))}, v{V_L16}, {srd(S_WS)}, s{S_OFFA} offen offset:{rb*1024}{SC}", ("XN", 2*s+ksub))
    V_PO = V_TMP[13]
    poll_xn = Poll(e, "xn", V_PO); poll_kv = Poll(e, "kv", V_PO); poll_b = Poll(e, "b", V_TMP[15]); poll_c = Poll(e, "c", V_TMP[15])
    V_RT = V_TMP[8]; V_RTA = V_TMP[9:13]; V_PFD = V_TMP[1]
    RTL, RTS, RG = OPT.get("rtl", 19), OPT.get("rts", 22), OPT.get("rtgap", 32)
    S_RL = S_RET
    PRO = OPT.get("pro", 1); KVS = OPT.get("kvs", 30)
    w_stage(0, P, 0, INF); a_stage(0, P, 0, INF)
    n_pro0 = len(mq.items)
    S(P, INF, f"s_lshl_b32 s{S_T2}, s{w}, 8", f"s_add_u32 s{S_T2}, s{S_T2}, s2", f"s_lshr_b32 s{S_T3}, s{S_T2}, 3", f"s_add_u32 s{S_T4}, s{S_T2}, s{S_T3}", f"s_and_b32 s{S_T4}, s{S_T4}, 7",
      f"s_cmp_lt_u32 s{S_T2}, 448 ! s_cselect_b32 s{S_WD+2}, {1792*1024}, 0", f"s_cmp_lt_u32 s{S_T2}, 448 ! s_cselect_b32 s{S_BSRD+2}, {WS_END}, 0")
    VV(P, INF, f"v_lshrrev_b32 v{V_RT}, 3, v{V_LANE}", f"v_lshl_add_u32 v{V_RT}, v{V_RT}, 10, v{V_UOFF}", f"v_mul_u32_u24 v{V_GOFF}, 3584, v{V_KPERM}", f"v_add_u32 v{V_GOFF}, v{V_GOFF}, v{V_UOFF}")
    w_stage(1, P, 0, INF)
    if PRO >= 2: a_stage(1, P, 0, INF)
    if PRO >= 3: w_stage(2, P, 0, INF)
    n_pro1 = len(mq.items)
    if PRO < 2: a_stage(1, 0, 1, 30)
    if PRO < 3: w_stage(2, 10, 1, 36)
    def rt_loads(E0, half):
        for q in range(2*half, 2*half + 2):
            if OPT.get("rtlin"): S(E0, INF, f"s_add_u32 s{S_RL}, s{S_RL}, 1024" if q else f"s_lshl_b32 s{S_RL}, s{S_T4}, 12 ! s_lshl_b32 s{S_T5}, s{S_T3}, 3 ! s_add_u32 s{S_RL}, s{S_RL}, s{S_T5}")
            else: S(E0, INF, f"s_add_u32 s{S_RL}, s{S_RL}, 8192" if q else f"s_lshl_b32 s{S_RL}, s{S_T4}, 7 ! s_lshl_b32 s{S_T5}, s{S_T3}, 3 ! s_add_u32 s{S_RL}, s{S_RL}, s{S_T5}")
            for t, sr in enumerate((S_WO, S_WD)):
                mq.add('d', E0 + ((4 + 14*(q % 2) + 7*t) if RTL > 5 else 36), E0 + (33 if RTL > 5 else 60), f"s_add_u32 m0, s{S_WA}, {65536 + t*4096 + q*1024}", f"buffer_load_dwordx4 v{V_L16 if OPT.get('rtlin') else V_RT}, {srd(sr)}, s{S_RL} offen lds", "RT")
    for gs in range(NS):
        b = gs * 64
        if gs + 2 < 8: a_stage(gs + 2, b + (6 if gs or PRO >= 3 else 22), (4 if gs or PRO >= 3 else 2), b + 41)
        PFS = OPT.get("pfs", {})
        if gs == 1:
            VV(b + 2, INF, f"v_lshrrev_b32 v{V_PO}, 2, v{V_LANE}", f"v_lshlrev_b32 v{V_PO}, 7, v{V_PO}", f"v_and_or_b32 v{V_PO}, v{V_LANE}, 3, v{V_PO}", f"v_lshlrev_b32 v{V_PO}, 6, v{V_PO}",
               f"v_lshlrev_b32 v{V_TMP[5]}, 6, v{V_LANE}", f"v_min_u32 v{V_TMP[4]}, 1728, v{V_TMP[5]}")
        for n_, c_ in enumerate(PFS.get(gs, "")):
            if c_ in "qv":
                S(b + 2, INF, f"s_lshl_b32 s{S_T1}, s{i}, 2", f"s_add_u32 s{S_T1}, s{S_T1}, s{w}", f"s_lshl_b32 s{S_T1}, s{S_T1}, 17", f"s_lshl_b32 s{S_T5}, s{h}, 8", f"s_add_u32 s{S_T1}, s{S_T1}, s{S_T5}")
                vo = V_PO
            else:
                S(b + 2, INF, f"s_lshl_b32 s{S_T1}, s2, 2", f"s_add_u32 s{S_T1}, s{S_T1}, s{w}", f"s_mul_i32 s{S_T1}, s{S_T1}, {4096 if c_ == 'o' else 1792}")
                vo = V_TMP[5] if c_ == "o" else V_TMP[4]
            mq.add('l', b + 8, INF, f"buffer_load_dword v{V_TMP['qgu'.find(c_) % 4]}, v{vo}, {srd(dict(q=S_WQ, v=S_WUV, g=S_WG, u=S_WU, o=S_WO, d=S_WD)[c_])}, s{S_T1} offen", "PF")
        if gs == 6: S(b + 10, INF, f"s_min_u32 s{S_WG+2}, s{S_WG+2}, s{S_HSRD+2}", f"s_mov_b32 s{S_WU+2}, s{S_WG+2}")
        GS = OPT.get("gs", (7, 8))
        if gs in GS: g_stage(GS.index(gs), b + 4, 3, b + 41)
        if gs == 8:
            t0, t1 = V_TMP[2:4]
            S(b + 4, b + 30, f"s_lshl_b32 s{S_T5}, s{S_QT}, 7", f"s_add_u32 s{S_T5}, s{S_T5}, {WS_FX}")
            VV(b + 4, b + 30, f"v_and_b32 v{V_PO}, 7, v{V_LANE}", f"v_lshlrev_b32 v{V_PO}, 2, v{V_PO}", f"v_add_u32 v{V_PO}, s{S_T5}, v{V_PO}")
            mq.add('f', b + 28, b + 36, poll_xn.issue, 4, "mem")
        if gs == 9: mq.add('f', b + 2, b + 6, poll_xn.check, 8, "valu")
        if 9 <= gs <= 16: xn_stage(gs - 9, b + 8, 4, b + 41)
        if gs == 10: VV(b + 20, INF, *[f"v_add_u32 v{V_TRH[c]}, 65536, v{V_TR[c]}" for c in range(4)])
        if gs in (RTL, RTL + 1) and not OPT.get("nortl"): rt_loads(b, gs - RTL)
        if gs == 27:
            S(b + 4, b + 30, f"s_and_b32 s{S_T5}, s2, 31", f"s_lshl_b32 s{S_T5}, s{S_T5}, 7", f"s_add_u32 s{S_T5}, s{S_T5}, {WS_FK}")
            VV(b + 4, b + 30, f"v_and_b32 v{V_PO}, 7, v{V_LANE}", f"v_lshlrev_b32 v{V_PO}, 2, v{V_PO}", f"v_add_u32 v{V_PO}, s{S_T5}, v{V_PO}")
        if gs == KVS - 1: mq.add('f', b + 26, b + 33, poll_kv.issue, 4, "mem")
        if gs + 3 < NS: w_stage(gs + 3, b + 44, 4, b + 64 + 5)
        if gs in (14, 16): g_stage(2 + (gs - 14)//2, b + 44, 3, b + 64 + 7)
    b = KVS*64
    mq.add('f', b + 4, b + 8, poll_kv.check, 8, "valu")
    for st in range(2):
        S(b, INF, f"s_mov_b32 s{S_ASRD+2}, {WS_END}" if st else f"s_cmp_lt_u32 s{w}, 2 ! s_cselect_b32 s{S_ASRD+2}, {WS_END}, 0")
        for j in range(8):
            if j == 4: S(b, INF, f"s_add_u32 s{S_T4}, s{S_SRCA}, 4096")
            mq.add('d', b + 8 + st*64 + 6*j, INF, f"s_add_u32 m0, s{S_LA}, {st*32768 + (j//4)*4096}",
                   f"buffer_load_dwordx4 v{V_L16}, {srd(S_ASRD)}, s{S_T4 if j >= 4 else S_SRCA} offen offset:{(j%4)*1024}{SC} lds", ("KV", st))
        if st == 0: S(b, INF, f"s_cmp_ge_u32 s{w}, 2 ! s_cselect_b32 s{S_T4}, 0, 2", f"s_lshl_b32 s{S_T4}, s{S_T4}, 13", f"s_add_u32 s{S_SRCA}, s{S_SRCA}, s{S_T4}")
        else: S(b, INF, f"s_add_u32 s{S_SRCA}, s{S_SRCA}, 16384")
    mfill = mq.fillers()
    e(mq.first_m0)
    started = False
    for f in mfill[:n_pro0]:
        if f.cost == 8 and not started: go(); started = True
        f.fn()
        if f.cost == 8: e("s_nop 0")
    late()
    if OPT.get("tlb", 0):
        a, b, c = S_N, S_EVT, S_TRANS
        e(f"""s_lshr_b32 s{a}, s2, 3
        s_and_b32 s{b}, s{a}, 7
        s_add_u32 s{b}, s{b}, 2
        s_cmp_eq_u32 s{w}, 2
        s_cselect_b32 s{b}, 10, s{b}
        s_and_b32 s{c}, s{w}, 1
        s_lshr_b32 s{S_T0}, s{w}, 1
        s_cmp_eq_u32 s{c}, s{S_T0}
        s_cselect_b32 s{b}, 12, s{b}
        s_lshl_b32 s{S_T1}, s{b}, 3
        s_load_dwordx2 s[{S_ASRD}:{S_ASRD+1}], s[0:1], s{S_T1}
        s_cmp_lt_u32 s{b}, 6
        s_mov_b32 s{S_ASRD+2}, {1792*1024}
        s_cselect_b32 s{S_ASRD+2}, {4*MB}, s{S_ASRD+2}
        s_lshr_b32 s{S_T1}, s{a}, 3
        s_lshl_b32 s{a}, s{a}, 1
        s_add_u32 s{a}, s{a}, s{c}
        s_cmp_eq_u32 s{b}, 12
        s_cselect_b32 s{S_ASRD+2}, {WS_END}, s{S_ASRD+2}
        s_cselect_b32 s{a}, s{a}, s{S_T1}
        s_lshl_b32 s{a}, s{a}, 20
        v_mov_b32 v{V_TMP[5]}, s{a}
        s_waitcnt lgkmcnt(0)""")
        e.vmem(f"buffer_load_dword v{V_TMP[1]}, v{V_TMP[5]}, {srd(S_ASRD)}, 0 offen sc1", "PF")
        e(f"s_mov_b64 s[{S_ASRD}:{S_ASRD+1}], s[{S_WS}:{S_WS+1}]\ns_mov_b32 s{S_ASRD+2}, {WS_END}")
    e.need(vm=["X"])
    ln = layernorm_lines()
    rest = mfill[n_pro0:n_pro1]
    per = len(ln) // (sum(f.cost == 8 for f in rest) + 1) + 1
    while ln or rest:
        for t in ln[:per]: e(t)
        ln = ln[per:]
        while rest:
            f = rest.pop(0); f.fn()
            if f.cost == 8: break
    mfill = mfill[n_pro1:]
    t0, t1, t2 = V_TMP[2:5]
    e(f"""s_lshl_b32 s{S_T0}, s{w}, 5
    s_add_u32 s{S_T0}, s{S_T0}, 49152
    v_lshlrev_b32 v{t0}, 7, v{V_LANE}
    v_add_u32 v{t0}, s{S_T0}, v{t0}""")
    e.ds(f"ds_write_b128 v{t0}, v[64:67]"); e.ds(f"ds_write_b128 v{t0}, v[68:71] offset:16")
    e(f"""s_lshl_b32 s{S_T0}, s{w}, 11
    s_add_u32 s{S_T0}, s{S_T0}, 49152
    v_add_u32 v{t0}, s{S_T0}, v{V_L16}
    v_lshrrev_b32 v{t1}, 5, v{V_LANE}
    v_lshlrev_b32 v{t1}, 12, v{t1}
    v_bfe_u32 v{t2}, v{V_LANE}, 3, 2
    v_lshl_add_u32 v{t1}, v{t2}, 8, v{t1}
    v_and_b32 v{t2}, 7, v{V_LANE}
    v_lshl_add_u32 v{t1}, v{t2}, 4, v{t1}
    s_lshr_b32 s{S_T0}, s2, 3
    s_lshl_b32 s{S_T0}, s{S_T0}, 16
    s_bfe_u32 s{S_T1}, s2, 0x20001
    s_lshl_b32 s{S_T1}, s{S_T1}, 10
    s_add_u32 s{S_T0}, s{S_T0}, s{S_T1}
    s_and_b32 s{S_T1}, s2, 1
    s_lshl_b32 s{S_T1}, s{S_T1}, 7
    s_add_u32 s{S_T0}, s{S_T0}, s{S_T1}
    s_lshl_b32 s{S_T1}, s{w}, 14
    s_add_u32 s{S_T0}, s{S_T0}, s{S_T1}
    s_add_u32 s{S_T1}, s{S_T0}, 8192""")
    misc = []
    misc.append(Filler(lambda: (e.ds(f"ds_read_b128 v[64:67], v{t0}", "LN"), e.ds(f"ds_read_b128 v[68:71], v{t0} offset:1024", "LN")), 8, "mem", 2, 30))
    misc.append(Filler(lambda: (e.need(lg=["LN"]), e.vmem(f"buffer_store_dwordx4 v[64:67], v{t1}, {srd(S_WS)}, s{S_T0} offen{SC}", "XNST")), 8, "mem", 14, 40))
    misc.append(Filler(lambda: e.vmem(f"buffer_store_dwordx4 v[68:71], v{t1}, {srd(S_WS)}, s{S_T1} offen{SC}", "XNST"), 8, "mem", 16, 41))
    for t in scalar_setup2(e): misc.append(Filler(lambda t=t: e(t.replace(" ! ", "\n")), 4, "salu", 44, 150))
    S_RA, S_RB = S_N, S_EVT
    rts = [Filler(lambda: e(f"s_add_u32 s{S_RA}, s{S_WA}, 65536"), 4, "salu", 150)]
    for c in range(4): rts.append(Filler(lambda c=c: e(f"v_add_u32 v{V_RTA[c]}, s{S_RA}, v{V_TR[c]}"), 4, "valu", 150))
    for t in (f"s_lshl_b32 s{S_RA}, s{S_T4}, 19", f"s_lshl_b32 s{S_T3}, s{S_T3}, 12", f"s_add_u32 s{S_RA}, s{S_RA}, s{S_T3}", f"s_add_u32 s{S_RA}, s{S_RA}, {WS_WOF}",
              f"s_mul_i32 s{S_RB}, s{S_T4}, {56*4096}", f"s_add_u32 s{S_RB}, s{S_RB}, s{S_T3}", f"s_add_u32 s{S_RB}, s{S_RB}, {WS_WDF}"):
        rts.append(Filler(lambda t=t: e(t), 4, "salu", 150, 185))
    SIGKV = OPT.get("sigkv", 28)
    for n in range(8):
        t, c = n // 4, n % 4
        d0 = V_PK + (n % 2)*4
        def fr(t=t, c=c, d0=d0, n=n):
            e.need(vm=["RT"])
            for rr in range(2): e.ds(f"ds_read_b64_tr_b16 v[{d0+rr*2}:{d0+rr*2+1}], v{V_RTA[c]} offset:{t*4096 + rr*2048}", ("RTF", n))
        def fs(t=t, c=c, d0=d0, n=n):
            e.need(lg=[("RTF", n)])
            e.vmem(f"buffer_store_dwordx4 {vr(d0)}, v{V_L16}, {srd((S_WS, S_BSRD)[t])}, s{(S_RA, S_RB)[t]} offen offset:{c*1024}{SC}", "RTST")
        if not OPT.get("norts"): rts.append(Filler(fr, 8, "mem", RTS*64 + 40 + RG*n)); rts.append(Filler(fs, 4, "mem", RTS*64 + 40 + RG*n + 12, 30*64 + 30 if POLLALL else (SIGKV - 1)*64))
    mfmas = []; rd = []
    sig_at = {3: (["XNST"], sig_lin(WS_FX)), SIGKV: (["KST", "VST"] + ([] if POLLALL else ["RTST"]), SIG_KV)}
    def stage_gate(gs):
        def fn():
            tags = [("W", gs)]
            if gs < 8: tags.append(("A", gs))
            if gs in sig_at: tags += sig_at[gs][0]
            f3 = OPT.get("fine3")
            if f3 is not None and 0 <= gs - f3 < 6: stamp(e, 14 + 3*(gs - f3))
            e.need(vm=tags)
            if f3 is not None and 0 <= gs - f3 < 6: stamp(e, 15 + 3*(gs - f3))
            e("s_barrier")
            if f3 is not None and 0 <= gs - f3 < 6: stamp(e, 16 + 3*(gs - f3))
            if gs in sig_at: signal(e, sig_at[gs][1], V_TMP[6])
            if gs % 8 == 0: stamp(e, 2 + gs // 8)
            if OPT.get("fine") is not None and 0 <= gs - OPT["fine"] < 18: stamp(e, 14 + gs - OPT["fine"])
        return fn
    def actread(s, ksub, rb):
        return lambda: e.ds(f"ds_read_b128 {ar(actf(2*s+ksub, rb))}, v{V_ARD[ksub]} offset:{(s % 2)*32768 + rb*2048}", ("AF", s, ksub))
    for gs in range(NS):
        base = gs * 64
        if gs > 0: rd.append(Filler(stage_gate(gs), 8, "mem", base - 64 + BAR, base - 64 + BAR + 1))
        pend = [Filler(actread(gs, ksub, rb), 4, "mem", base - 64 + BAR, base - 3) for rb in range(4) for ksub in range(2)] if gs < 8 else []
        CH = 2 if gs < 16 else 4
        for g in range(16 // CH):
            g0 = base + g*4*CH
            db = g if gs < 16 else 4*((gs // 4) % 2) + g
            first = gs % (16 // CH) == 0
            for k in range(CH):
                slot = (g*CH + k) % 8
                if gs < 16: c_, off = g % 4, (k*2 + g // 4)*4096
                elif gs < 24: c_, off = 2*((gs // 4) % 2) + g % 2, (k*2 + g // 2)*4096
                else: c_, off = g, k*4096
                off += area(gs)
                for rr in range(2):
                    ad = V_TRH[c_] if off >= 65536 else V_TR[c_]
                    d = V_WF + slot*4 + rr*2
                    n_ = k*2 + rr
                    lo = (g0 - 22 + 2*n_) if CH == 2 else (g0 - 16 + n_)
                    if gs == 16 and g == 1: lo = max(lo, base)
                    rd.append(Filler(lambda d=d, ad=ad, o=(off + rr*2048) % 65536, t=(gs, g): e.ds(f"ds_read_b64_tr_b16 v[{d}:{d+1}], v{ad} offset:{o}", ("F", t)),
                                     4, "mem", max(lo, base - 64 + BAR), g0 - 3))
                    for _ in range(1 if g else 2):
                        if pend: rd.append(pend.pop(0))
            for rb in range(4):
                for kk in range(CH):
                    k = kk if rb % 2 == 0 else CH - 1 - kk
                    kslot = CH*(gs % (16 // CH)) + k
                    def needs(gs=gs, g=g, CH=CH):
                        return e.need(lg=[("F", (gs, g))] + ([("AF", gs, 0), ("AF", gs, 1)] if gs < 8 else []),
                                      vm=[("XN", 4*(gs % 4) + q) for q in range(4)] if 16 <= gs < 20 else ())
                    def m(gs=gs, slot=(g*CH + k) % 8, kslot=kslot, db=db, rb=rb, z=(first and kk == 0), needs=needs):
                        needs()
                        wv = vr(V_WF + slot*4); a = ar(actf(kslot, rb)); d = vr(acc(db, rb))
                        e(mf(d, a, wv, "0" if z else d) if 8 <= gs < 16 else mf(d, wv, a, "0" if z else d))
                    m.pre = needs
                    mfmas.append(m)
    def cvts(base, dst, dl):
        out = []
        for db in range(8):
            for rb in range(4):
                for hh in range(2):
                    d = dst(db, rb, hh); s = acc(db, rb) + 2*hh
                    out.append(Filler(lambda d=d, s=s: e(f"v_cvt_pk_bf16_f32 v{d}, v{s}, v{s+1}"), 4, "valu", base + 448 + 8*db + 2*rb + 1 + 8, dl(db, rb)))
        return out
    cv = cvts(0, lambda db, rb, hh: V_PK + (rb*4 + db//2)*4 + (db & 1)*2 + hh, lambda db, rb: min(512 + 8*db + 2*rb, 512 + 30))
    VH = OPT.get("vh", 1150)
    cvv = cvts(512, lambda db, rb, hh: V_PK + ((db//4)*8 + (rb//2)*4 + db % 4)*4 + (rb & 1)*2 + hh, lambda db, rb: min(1024 + 16*db + 4*rb, 1024 + 16) if db < 4 else min(VH + 39, 1278))
    for f in cvv[32:]: f.earliest = VH
    cv += cvv
    st = []
    G2 = OPT.get("sgap", 37)
    NKV = OPT.get("nkv", 14)
    sched = [(WS_K + n*1024, n, "KST", 512 + 36 + (444 // NKV)*n, 512 + 454 if n < 8 else 1024) for n in range(NKV)]
    sched += [(WS_K + n*1024, n, "KST", 1024 + 4 + G2*(n - NKV), VH - 2) for n in range(NKV, 16)]
    sched += [(WS_V + ((n % 8)//4)*8192 + ((n // 8)*4 + n % 4)*1024, n, "VST", max(1024 + 20 + G2*(n + 16 - NKV), VH + 40 if n >= 8 else 0), (SIGKV - 1)*64 + 20) for n in range(16)]
    for off, n, tag, lo, dl in sched:
        if n % 4 == 0: st.append(Filler(lambda off=off: e(f"s_add_u32 s{S_T2}, s{S_KVST}, {off}"), 4, "salu", lo - 4))
        st.append(Filler(lambda n=n, tag=tag: e.vmem(f"buffer_store_dwordx4 {vr(V_PK + n*4)}, v{V_L16}, {srd(S_WS)}, s{S_T2} offen offset:{(n%4)*1024}{SC}", tag), 4, "mem", lo, dl))
    C0 = -2.0 * math.sqrt(2.0 / math.pi) * math.log2(math.e)
    V_C1 = V_TMP[4]; V_QW = V_TMP[5]
    ge = [Filler(lambda: e(f"v_mov_b32 v{V_C1}, {fb(C0*0.044715):#x}"), 4, "valu", 1100)]
    for hf in range(2):
        lo = 1024 + 256*(hf + 1) - 16 + 11; dl = 1024 + 256*(hf + 2)
        def RW(txt):
            i_ = chk.parse(txt); return (set(i_.r), set(i_.w))
        def V(txt, cost=4): ge.append(Filler(lambda: e(txt), cost, "valu", lo, dl, RW(txt) if OPT.get("ooo", 1) else None))
        for t in [f"s_lshl_b32 s{S_T0}, s{S_GJ}, 13", f"s_add_u32 s{S_T0}, s{S_T0}, {hf*4096}", f"s_add_u32 s{S_T0}, s{S_T0}, s{S_HST}"]:
            ge.append(Filler(lambda t=t: e(t), 4, "salu", lo, dl))
        for rb in range(4):
            lo = 1024 + 256*(hf + 1) - 16 + 4*rb + 11
            for c in range(2):
                G, U = acc(4*hf + c, rb), acc(4*hf + 2 + c, rb); T = V_TMP[0:4]
                for r in range(4): V(f"v_mul_f32 v{T[r]}, v{G+r}, v{G+r}")
                for r in range(4): V(f"v_mul_f32 v{U+r}, v{G+r}, v{U+r}")
                for r in range(4): V(f"v_fmaak_f32 v{T[r]}, v{T[r]}, v{V_C1}, {fb(C0):#x}")
                for r in range(4): V(f"v_mul_f32 v{G+r}, v{G+r}, v{T[r]}")
                for r in range(4): V(f"v_exp_f32 v{G+r}, v{G+r}", 8)
                for r in range(4): V(f"v_add_f32 v{G+r}, 1.0, v{G+r}")
                for r in range(4): V(f"v_rcp_f32 v{G+r}, v{G+r}", 8)
                for r in range(4): V(f"v_mul_f32 v{U+r}, v{U+r}, v{G+r}")
                D = acc(4*hf, rb) + 2*c
                V(f"v_cvt_pk_bf16_f32 v{D}, v{U}, v{U+1}"); V(f"v_cvt_pk_bf16_f32 v{D+1}, v{U+2}, v{U+3}")
            st_ = f"buffer_store_dwordx4 {vr(acc(4*hf, rb))}, v{V_L16}, {srd(S_HSRD)}, s{S_T0} offen offset:{rb*1024}{SC}"
            ge.append(Filler(lambda st_=st_: e.vmem(st_, "HST"), 4, "mem", lo, dl, RW(st_) if OPT.get("ooo", 1) else None))
    ge.append(Filler(lambda: e(f"s_lshl_b32 s{S_T0}, s{w}, 14"), 4, "salu", 1792))
    ge.append(Filler(lambda: e(f"s_add_u32 s{S_T0}, s{S_T0}, 131072"), 4, "salu", 1792))
    ge.append(Filler(lambda: e(f"v_add_u32 v{V_QW}, s{S_T0}, v{V_L16}"), 4, "valu", 1792))
    zero_hi = []
    for hf in range(2):
        for dg in (2*hf, 2*hf + 1):
            for qb in range(4):
                lo = 1536 + 256*hf + 192 + 32*(dg % 2) + 16 + 4*qb + 3 + 8
                def V(txt, cost=4, kind="valu", lo=lo): ge.append(Filler(lambda: e(txt), cost, kind, lo))
                o0, o1 = acc(2*dg, qb), acc(2*dg+1, qb)
                for r in range(4): V(f"v_mul_f32 v{o0+r}, {QSCALE:#x}, v{o0+r}"); V(f"v_mul_f32 v{o1+r}, {QSCALE:#x}, v{o1+r}")
                for d, s_ in ((o0, o0), (o0+1, o0+2), (o0+2, o1), (o0+3, o1+2)): V(f"v_cvt_pk_bf16_f32 v{d}, v{s_}, v{s_+1}")
                for r in range(4):
                    if hf: zero_hi.append(f"v_mov_b32 v{o1+r}, 0")
                    else: V(f"v_mov_b32 v{o1+r}, 0")
                ge.append(Filler(lambda o0=o0, qb=qb, dg=dg: e.ds(f"ds_write_b128 v{V_QW}, {vr(o0)} offset:{(qb*4+dg)*1024}", "QW"), 4, "mem", lo))
        for dg in (2*hf, 2*hf + 1):
            for qb in range(4):
                o0 = acc(2*dg, qb)
                for r in range(4): ge.append(Filler(lambda r=r, o0=o0, qb=qb, dg=dg: e(f"v_accvgpr_write_b32 a{A_Q + (qb*4+dg)*4 + r}, v{o0+r}"), 4, "valu", 29*64 + 4))
        ge.append(Filler(lambda: e.need(lg=["QW"]), 4, "salu", 29*64 + 4))
        for dg in (2*hf, 2*hf + 1):
            for qb in range(4):
                for r in range(4):
                    if hf: zero_hi.append(f"v_mov_b32 v{acc(2*dg, qb) + r}, 0")
                    else: ge.append(Filler(lambda r=r, qb=qb, dg=dg: e(f"v_mov_b32 v{acc(2*dg, qb) + r}, 0"), 4, "valu", 29*64 + 4))
        if hf == 0:
            for r in range(64): ge.append(Filler(lambda r=r: e(f"v_accvgpr_write_b32 a{A_DACC + r}, 0"), 4, "valu", 31*64 + 4))
    stamp(e, 1)
    e.need(vm=[("W", 0), ("A", 0)]); e.wait_all(vm=False); e("s_barrier")
    e(f"s_mul_i32 s{S_TAG}, s{S_TAG}, 0x9e3779b1\ns_add_u32 s{S_TAG}, s{S_TAG}, 0x7f4a7c15")
    stamp(e, 2)
    k = 0
    while rd[k].earliest < 0: rd[k].fn(); k += 1
    rest = e.schedule(mfmas, [rd[k:], mfill, cv, misc, rts, st, att_setup_fillers(e, poll_b), ge], flush=False)
    e("s_nop 7")
    e.c(f"left over fillers: {[len(r) for r in rest]}")
    for r in rest:
        for f in r: f.fn()
    stamp(e, 6)
    attention(e, poll_b, poll_c, zero_hi)
    phase_d(e, poll_c)
    if OPT.get("padto"):
        if "padb" in OPT: e(f"s_lshr_b32 s6, s2, 3\ns_cmp_lg_u32 s6, {OPT['padb']}\ns_cbranch_scc1 L_end")
        if "padx" in OPT: e(f"s_and_b32 s6, s2, 7\ns_cmp_lg_u32 s6, {OPT['padx']}\ns_cbranch_scc1 L_end")
        e(f"s_nop 1\nv_readlane_b32 s6, v{V_STAMP}, 0\ns_add_u32 s6, s6, {OPT['padto']*100}")
        if OPT.get("padph"):
            e(f"v_readlane_b32 s4, v{V_STAMP}, {OPT['padph'][0]}\nv_readlane_b32 s5, v{V_STAMP}, {OPT['padph'][1]}\ns_sub_u32 s5, s5, s4\ns_add_u32 s6, s6, s5")
        e.label("L_pad")
        e("s_memrealtime s[4:5]\ns_waitcnt lgkmcnt(0)\ns_sub_u32 s7, s4, s6\ns_cmp_lt_i32 s7, 0\ns_cbranch_scc1 L_pad")
    else: stamp_flush(e)
    e("s_branch L_end")
    e.cold()
    for p in (poll_xn, poll_kv, poll_b, poll_c): p.spin()
    slow_path(e)
    e.label("L_end")
    e("s_endpgm")

A_Z = 212
S_FIRST = 20
def att_dma(e, which, j):
    if " m0," in e.L[-1]: e("s_nop 0")
    sr, src, ld = ((S_ASRD, S_SRCA, S_LA), (S_BSRD, S_SRCB, S_LB))[which]
    e.vmem(f"buffer_load_dwordx4 v{V_L16}, {srd(sr)}, s{S_T4 if j >= 4 else src} offen offset:{(j%4)*1024}{OPT.get('kvsc', SC)} lds", "KV")
    if which == 1 and OPT.get("boob"): ld = S_FIRST + 3
    if j == 3: e(f"s_add_u32 m0, s{ld}, 4096"); e(f"s_add_u32 s{S_T4}, s{src}, 4096")
    if j == 7:
        if which == 0: e(f"s_mov_b32 m0, s{S_FIRST + 3 if OPT.get('boob') else S_LB}\ns_add_u32 s{S_SRCA}, s{S_SRCA}, 16384")
        else: e(f"s_sub_u32 s{S_VMAXB}, s{S_VMAXB}, 16384\ns_min_u32 s{S_SRCB}, s{S_VMAXB}, s{S_VCLB}")
def d_load(e, j):
    so = S_DW if j < 4 else S_DH
    e.vmem(f"buffer_load_dwordx4 {ar(A_DOP + j*4)}, v{V_L16}, {srd(S_DSRD)}, s{so} offen offset:{(j%4)*1024}{OPT.get('kvsc', SC)}", "KV")
    if j % 4 == 3: e(f"s_add_u32 s{so}, s{so}, s{S_DINC}")
class M:
    def __init__(self, txt, tag=None): self.txt, self.tag = txt, tag
def d_mfmas():
    return [M(mf(ar(A_DACC + (mb*4+qb)*4), ar(A_DOP + mb*4), ar(A_DOP + 16 + qb*4), ar(A_DACC + (mb*4+qb)*4))) for mb in range(4) for qb in (range(4) if mb % 2 == 0 else range(3, -1, -1))]
def sm_half(e, buf, kb2):
    ex = []; cv = []
    for p in range(8):
        qb, hh = p // 2, p % 2
        r = Sreg(buf, kb2, qb) + 2*hh
        if OPT.get("noexp"): ex += [NOP, NOP]
        else: ex.append(lambda r=r: e(f"v_exp_f32 v{r}, v{r}")); ex.append(lambda r=r: e(f"v_exp_f32 v{r+1}, v{r+1}"))
        d = Preg(buf, qb) + 2*kb2 + hh
        cv.append(lambda r=r, d=d: e(f"v_perm_b32 v{d}, v{r+1}, v{r}, s{S_WUV}" if OPT.get("perm") else f"v_cvt_pk_bf16_f32 v{d}, v{r}, v{r+1}"))
    return ex, cv
def qk_mfmas(buf, half, tag="FR"):
    out = []
    for kb2 in range(2):
        kb = half*2 + kb2
        for qb in range(4):
            for kk in range(4):
                dg = kk if qb % 2 == 0 else 3 - kk
                d = vr(Sreg(buf, kb2, qb))
                c = d if kk else ("0" if kb < qb else vr(V_TD) if kb == qb else vr(V_TN))
                out.append(M(mf(d, ar(A_FB[0] + (kb2*4+dg)*4), ar(A_Q + (qb*4+dg)*4), c), (tag, 0, kb2*4)))
    return out
def pv_mfmas(buf, zero=False, order=range(8)):
    o = []
    for n_, db in enumerate(order):
        for qb in (range(4) if n_ % 2 == 0 else range(3, -1, -1)):
            d = vr(Oreg(db, qb))
            o.append(M(mf(d, ar(A_Z), ar(A_Z), "0")) if zero else M(mf(d, ar(A_FB[1] + db*4), vr(Preg(buf, qb)), d), ("FR", 1, (db // 4)*4)))
    s_ = []
    for qb in range(4):
        d = ar(A_L + qb*4)
        s_.append(M(mf(d, ar(A_Z), ar(A_Z), "0")) if zero else M(mf(d, ar(A_ONE), vr(Preg(buf, qb)), d)))
    if OPT.get("nosum"): s_ = [M("s_nop 0")]*4
    return o, s_
def frag_reads(e, fb_, off, order=range(8), tag="FR"):
    return [lambda j=j: e.ds(f"ds_read_b128 {ar(A_FB[fb_] + j*4)}, v{V_RD} offset:{off + j*1024}", (tag, fb_, (j // 4)*4)) for j in order]
NOP = lambda: None
def run(e, mfmas, gaps, nxt=None):
    if mfmas[0].tag: e.need(lg=[mfmas[0].tag])
    for i, m in enumerate(mfmas):
        if m.txt: e(m.txt)
        t = mfmas[i+1].tag if i + 1 < len(mfmas) else nxt
        if t: e.need(lg=[t])
        for f in gaps.get(i, ()): f()
def section(e, mfmas, reads, ex, cv, carry, g2, nxt=None, tail=None):
    gaps = {}
    for q in range(8):
        gaps[4*q] = [reads[q], (carry or NOP) if q == 0 else cv[q-1]]
        gaps[4*q+1] = [ex[2*q]]; gaps[4*q+2] = [g2[q]]; gaps[4*q+3] = [ex[2*q+1]]
    if len(mfmas) > 32: gaps[32] = [cv[7]]
    for k, f in (tail or {}).items(): gaps.setdefault(k, []).insert(0, f)
    run(e, mfmas, gaps, nxt)
    return cv[7] if len(mfmas) == 32 else None
S_LIM = S_WUV + 1
PREP = [f"s_cmp_le_u32 s{S_N}, 15\ns_cselect_b32 s{S_T0}, 32768, s{S_T1}", f"s_cmp_le_u32 s{S_N}, s{S_LIM}\ns_cselect_b32 s{S_ASRD+2}, {WS_END}, 0", f"s_add_u32 s{S_T3}, s{S_N}, 2\ns_xor_b32 s{S_LB}, s{S_LB}, s{S_T0}",
        f"s_cmp_ge_u32 s{S_T3}, s{S_N0}\ns_cselect_b32 s{S_BSRD+2}, s{S_ASRD+2}, 0" + (f"\ns_cselect_b32 s{S_FIRST+3}, s{S_LB}, s{S_T1}" if OPT.get("boob") else ""), f"s_xor_b32 s{S_LA}, s{S_LA}, s{S_T0}\ns_mov_b32 m0, s{S_LA}"]
PREP0 = f"s_mov_b32 s{S_T1}, 0x30000"
LR = V_TMP[10:14]
def check_lines(ret, qt):
    return [f"v_min3_f32 v{V_LIM+1}, v{LR[0]}, v{LR[1]}, v{LR[2]}\nv_add_f32 v{V_LIM}, v{LR[0]}, v{LR[1]}",
            f"v_add_f32 v{V_LIM}, v{V_LIM}, v{LR[2]}\nv_min_f32 v{V_LIM+1}, v{V_LIM+1}, v{LR[3]}",
            f"s_mov_b32 s{S_RET}, {ret}\nv_add_f32 v{V_LIM}, v{V_LIM}, v{LR[3]}\nv_cmp_nle_f32 vcc, 0x17800000, v{V_LIM+1}",
            f"s_mov_b64 s[{S_FL}:{S_FL+1}], vcc\ns_mov_b32 s{S_CNT}, s{qt}\nv_cmp_nge_f32 vcc, {OPT.get('lhi', 0x67800000):#x}, v{V_LIM}",
            f"s_or_b64 vcc, vcc, s[{S_FL}:{S_FL+1}]\n" + ("s_nop 0" if OPT.get("noslow") else "s_cbranch_vccnz L_slow")]
def bsel(r):
    return (f"v[{r & ~1}:{(r & ~1) + 1}]", "op_sel:[0,1] op_sel_hi:[1,1]" if r & 1 else "op_sel_hi:[1,0]")
def norm_items(e, dbs, sbase, pk=False):
    it = []
    for dg in sorted({d // 2 for d in dbs}):
        it.append((lambda dg=dg: e(f"s_add_u32 s{S_T0}, s{sbase}, {dg*4096}"), 0, 2*dg+1))
        for qb in range(4):
            o0, o1 = Oreg(2*dg, qb), Oreg(2*dg+1, qb)
            for r in range(4):
                for o in (o0, o1):
                    if not pk: it.append((lambda o=o, r=r, qb=qb: e(f"v_mul_f32 v{o+r}, v{o+r}, v{LR[qb]}"), 4, 2*dg+1))
                    elif r % 2 == 0: it.append((lambda o=o, r=r, qb=qb: e(f"v_pk_mul_f32 {vr(o+r, 2)}, {vr(o+r, 2)}, {bsel(LR[qb])[0]} {bsel(LR[qb])[1]}"), 4, 2*dg+1))
            for d, s_ in ((o0, o0), (o0+1, o0+2), (o0+2, o1), (o0+3, o1+2)): it.append((lambda d=d, s_=s_: e(f"v_cvt_pk_bf16_f32 v{d}, v{s_}, v{s_+1}"), 4, 2*dg+1))
            it.append((lambda o0=o0, qb=qb: e.vmem(f"buffer_store_dwordx4 {vr(o0)}, v{V_L16}, {srd(S_WS)}, s{S_T0} offen offset:{qb*1024}{SC}", "CST"), 8, 2*dg+1))
    return it
def emit_items(items, extra=()):
    extra = list(extra)
    for f, c, _ in items:
        f()
        if c == 8:
            for _ in range(2):
                if extra: extra.pop(0)()
    for f in extra: f()
def sm_tail(e, order=range(8)):
    ex, cv = sm_half(e, 1, 1)
    for f in frag_reads(e, 1, 16384, order): f()
    for p in range(8):
        ex[2*p](); ex[2*p+1]()
        if p: cv[p-1]()
    e("s_nop 0"); cv[7]()

S_WOo, S_AC = S_OFF0, S_OFFA
WSLOT = [14, 15, 4, 5, 13, 12, 6, 7, 0, 1, 2, 3, -2, -3, 8, 9, 10, 11]
NWS = len(WSLOT)
def wreg(n, q):
    s_ = WSLOT[n % NWS]
    return ar(s_*16 + q*4) if s_ >= 0 else vr(-s_*16 + q*4)
def wo_load(e, n, q):
    e.vmem(f"buffer_load_dwordx4 {wreg(n, q)}, v{V_L16}, {srd(S_WS)}, s{S_WOo} offen offset:{q*1024}{SC}", ("WO", n))
    if q == 3: e(f"s_add_u32 s{S_WOo}, s{S_WOo}, 4096")

V_TRI = (9, 10, 11, 30)
V_SIG, V_TAGV, V_QA, V_ONE = 12, 13, 14, 15
S_D1, S_D2, S_M = S_FIRST + 2, S_FIRST, S_FIRST + 1
def att_setup_fillers(e, poll_b):
    i, h, w = S_BLK, S_HEAD, S_WAVE
    out = []
    def add(lo, hi, txt):
        for t in txt.split("\n"):
            t = t.strip()
            out.append(Filler(lambda t=t: e(t.replace(" ! ", "\n")), 4, "salu" if t.startswith("s_") else "valu", lo, hi))
    a, b, c, d = V_TRI; pv = poll_b.voff; t = S_M
    lo, hi = 17*64 + 10, 20*64
    add(lo, hi, f"""v_lshrrev_b32 v{d}, 4, v{V_LANE}
    v_lshlrev_b32 v{d}, 2, v{d}
    v_and_b32 v{a}, 15, v{V_LANE}
    v_sub_u32 v{a}, v{a}, v{d}
    v_subrev_u32 v{b}, 1, v{a}
    v_subrev_u32 v{c}, 2, v{a}
    v_subrev_u32 v{d}, 3, v{a}""")
    for r in V_TRI: add(lo, hi, f"v_ashrrev_i32 v{r}, 31, v{r}\nv_and_b32 v{r}, {NEGINF:#x}, v{r}")
    add(lo, hi, f"""s_lshr_b32 s{t}, s{h}, 1
    s_sub_u32 s{S_D1}, 15, s{t}
    s_min_u32 s{t}, s{t}, s{S_D1}
    s_lshl_b32 s{t}, s{t}, 9
    s_add_u32 s{t}, s{t}, {WS_FB}
    v_bfe_u32 v{pv}, v{V_LANE}, 3, 2
    v_lshlrev_b32 v{pv}, 5, v{pv}
    v_and_or_b32 v{pv}, v{V_LANE}, 7, v{pv}
    v_lshlrev_b32 v{pv}, 2, v{pv}
    v_add_u32 v{pv}, s{t}, v{pv}
    s_lshl_b32 s{S_TRANS}, s{i}, 1
    s_add_u32 s{S_TRANS}, s{S_TRANS}, s{w}
    s_sub_u32 s{S_TRANS}, s{S_TRANS}, 1
    s_sub_u32 s{S_D1}, s{S_TRANS}, 1
    s_add_u32 s{S_D2}, s{S_TRANS}, 1
    s_cmp_eq_u32 s{i}, 7 ! s_cselect_b32 s{t}, 16, 99
    s_cmp_eq_u32 s{w}, 0 ! s_cselect_b32 s{t}, s{t}, 99
    s_cmp_lt_u32 s{w}, 2 ! s_cselect_b32 s{S_D1}, s{t}, s{S_D1}
    s_cmp_lt_u32 s{w}, 2 ! s_cselect_b32 s{S_D2}, 99, s{S_D2}
    s_cmp_lt_u32 s{w}, 2 ! s_cselect_b32 s{S_TRANS}, 17, s{S_TRANS}
    s_sub_u32 s{S_VMAXB}, s{S_VMAXB}, 16384
    s_min_u32 s{S_SRCB}, s{S_VMAXB}, s{S_VCLB}
    s_lshr_b32 s{t}, s2, 3
    s_lshl_b32 s{t}, s{t}, 5
    s_and_b32 s{S_FIRST+3}, s2, 7
    s_add_u32 s{t}, s{t}, s{S_FIRST+3}
    s_lshl_b32 s{t}, s{t}, 2
    s_add_u32 s{t}, s{t}, {WS_FB}
    s_sub_u32 s{S_FIRST+3}, 3, s{w}
    s_lshl_b32 s{S_FIRST+3}, s{S_FIRST+3}, 14
    s_add_u32 s{S_FIRST+3}, s{S_FIRST+3}, 131072""")
    lo, hi = 28*64, 31*64
    add(lo, hi, f"""v_mov_b32 v{V_TAGV}, s{S_TAG}
    v_add_u32 v{V_SIG}, s{S_WL}, v{V_LANE}
    v_min_u32 v{V_SIG}, 1, v{V_SIG}
    v_lshlrev_b32 v{V_SIG}, 30, v{V_SIG}
    v_add_u32 v{V_SIG}, s{t}, v{V_SIG}
    v_add_u32 v{V_QA}, s{S_FIRST+3}, v{V_L16}
    v_and_b32 v{V_ONE}, 3, v{V_LANE}
    v_subrev_u32 v{V_ONE}, 1, v{V_ONE}
    v_ashrrev_i32 v{V_ONE}, 31, v{V_ONE}
    v_and_b32 v{V_ONE}, 0x3f803f80, v{V_ONE}
    s_mov_b32 s{S_T2}, 1
    s_lshr_b32 s{S_LIM}, s{w}, 1
    s_add_u32 s{S_N0}, s{S_N0}, s{S_LIM}
    s_add_u32 s{S_LIM}, s{S_LIM}, 14
    s_mov_b32 s{S_N}, -1
    s_mov_b32 s{S_DSRD+2}, 0""")
    return out

def Sq(c): return V_S[0] + c*4
def ring(g, j): return A_FB[0] + (g % 4)*16 + j*4
def qk2(tag="FR"):
    out = []
    for c in range(16):
        kb, qb = c // 4, c % 4
        for kk in range(4):
            dg = kk if c % 2 == 0 else 3 - kk
            d = vr(Sq(c))
            cc = d if kk else ("0" if kb < qb else vr(V_TD) if kb == qb else vr(V_TN))
            out.append(M(mf(d, ar(ring(kb, dg)), ar(A_Q + (qb*4+dg)*4), cc), (tag, kb)))
    return out
def pv2(order=(0, 1, 2, 3)):
    o = []; c = 0
    for n, p in enumerate(order):
        for x in range(2):
            for qb in (range(4) if x == 0 else range(3, -1, -1)):
                d = vr(Oreg(2*p + x, qb))
                for kg in ((0, 1) if c % 2 == 0 else (1, 0)):
                    o.append(M(mf(d, ar(ring(n, x*2 + kg)), vr(Preg(kg, qb)), d), ("FR", 4 + n)))
                c += 1
    s_ = [M(mf(ar(A_L + qb*4), ar(A_ONE), vr(Preg(kg, qb)), ar(A_L + qb*4))) for qb in range(4) for kg in range(2)]
    return o, s_
def kreads(e, g, tag="FR"): return [lambda j=j: e.ds(f"ds_read_b128 {ar(ring(g, j))}, v{V_RD} offset:{g*4096 + j*1024}", (tag, g)) for j in range(4)]
def vreads(e, n, p): return [lambda j=j: e.ds(f"ds_read_b128 {ar(ring(n, j))}, v{V_RD} offset:{16384 + (j % 2)*8192 + (2*p + j // 2)*1024}", ("FR", 4 + n)) for j in range(4)]
def cvt2(c, hh): return f"v_cvt_pk_bf16_f32 v{Preg(c // 8, c % 4) + 2*((c // 4) % 2) + hh}, v{Sq(c) + 2*hh}, v{Sq(c) + 2*hh + 1}"
def exp2(k): return f"v_exp_f32 v{V_S[0] + k}, v{V_S[0] + k}"
def drain_head(e, order):
    e.need(lg=[("FR", 1)])
    rd_ = [f for n, p in enumerate(order) for f in vreads(e, n, p)]
    for f in rd_[:8]: f()
    for c in range(1, 16):
        e(cvt2(c, 0)); e(cvt2(c, 1))
    for f in rd_[8:]: f()

def attention(e, poll_b, poll_c, zero_hi):
    i, h, w = S_BLK, S_HEAD, S_WAVE
    T = lambda t: (lambda: e(t))
    A = [lambda j=j: att_dma(e, 0, j) for j in range(8)]; B = [lambda j=j: att_dma(e, 1, j) for j in range(8)]; D = [lambda j=j: d_load(e, j) for j in range(8)]
    e(f"v_add_u32 v{V_RD}, 65536, v{V_L16}")
    e.need(vm=[("KV", 0), "HST", "RTST"], lg=["QW"])
    e("s_barrier")
    for g in range(2):
        for f in kreads(e, g, "F0"): f()
    e.vmem(f"buffer_store_dword v{V_TAGV}, v{V_SIG}, {srd(S_WS)}, 0 offen sc1", "SIG")
    MS = [f"s_add_u32 s{S_N}, s{S_N}, 1", f"s_cmp_eq_u32 s{S_N}, s{S_D1}\ns_cselect_b32 s{S_M}, -1, 0", f"s_cmp_eq_u32 s{S_N}, s{S_D2}\ns_cselect_b32 s{S_M}, -1, s{S_M}",
          f"v_and_b32 v{V_TD}, s{S_M}, v{V_TRI[0]}\nv_and_b32 v{V_TD+1}, s{S_M}, v{V_TRI[1]}", f"v_and_b32 v{V_TD+2}, s{S_M}, v{V_TRI[2]}\nv_and_b32 v{V_TD+3}, s{S_M}, v{V_TRI[3]}",
          f"s_and_b32 s{S_M}, s{S_M}, {NEGINF:#x}\nv_mov_b32 v{V_TN}, s{S_M}\nv_mov_b32 v{V_TN+1}, s{S_M}", f"v_mov_b32 v{V_TN+2}, s{S_M}\nv_mov_b32 v{V_TN+3}, s{S_M}"]
    for t in MS: e(t)
    e(f"s_xor_b32 s{S_LA}, s{S_LA}, 32768")
    XRD = f"v_xor_b32 v{V_RD}, 32768, v{V_RD}"
    CV0 = cvt2(0, 0) + "\n" + cvt2(0, 1)
    def itstamp(dn=0):
        if OPT.get("itst"):
            e(f"s_memtime s[4:5]\nv_subrev_u32 v5, {14 - dn}, v{V_LANE}\nv_cmp_eq_u32 vcc, s{S_N}, v5\ns_waitcnt lgkmcnt(0)\nv_mov_b32 v5, s4\nv_cndmask_b32 v{V_STAMP}, v{V_STAMP}, v5, vcc")
    stamp(e, 7)
    init = [f"v_accvgpr_write_b32 a{A_L + r}, 0" for r in range(16)] + [f"v_accvgpr_write_b32 a{A_Z + r}, 0" for r in range(4)]
    init += [f"v_accvgpr_write_b32 a{A_ONE + r}, v{V_ONE}" for r in range(4)] + zero_hi
    for _ in range(8): e(init.pop())
    gaps = {}; ne = 0
    kr = kreads(e, 2, "F0") + kreads(e, 3, "F0")
    pre = [PREP0] + PREP + [XRD]
    for k in range(64):
        g = gaps[k] = []
        if k % 2 == 0 and kr: g.append(kr.pop(0)); g.append(T(init.pop()))
        elif k >= 50 and k % 2 == 0: g.append(T(pre.pop(0)))
        elif init: g.append(T(init.pop())); g.append(T(init.pop()))
        else: g.append(T(exp2(ne))); ne += 1
    assert not init and not pre
    gaps[63].insert(0, lambda: e.wait_all())
    run(e, qk2("F0"), gaps)
    e("s_barrier")
    itstamp()
    mem = [f for p in zip(A, kreads(e, 0) + kreads(e, 1)) for f in p] + B[:4]
    while mem or ne < 64:
        if mem: mem.pop(0)()
        for _ in range(3):
            if ne < 64: e(exp2(ne)); ne += 1
    for t in MS: e(t)
    e(CV0)
    e.need(lg=[("FR", 0)])
    top = [("FR", 1)]*4
    assert e.lgkm == top, e.lgkm
    e("s_branch L_special")
    e(".p2align 6")
    e.c("attention step: S = K Q^T (64) | O += V P of the previous tile (64+8) | one down-projection step (16)")
    e.label("L_body")
    def loop_body(first):
        e.lgkm = list(top)
        gaps = {k: [] for k in range(152)}
        rds = kreads(e, 2) + kreads(e, 3) + ([] if first else vreads(e, 0, 0) + vreads(e, 1, 1))
        for n, f in enumerate(rds): gaps[4*n].append(f)
        for n, f in enumerate(kreads(e, 0) + kreads(e, 1)): gaps[100 + 4*n].append(f)
        for n, f in enumerate(B[4:] + D): gaps[2 + 4*n].append(f)
        for n, f in enumerate(A + B[:4]): gaps[98 + 4*n].append(f)
        if not first:
            for n, f in enumerate(vreads(e, 2, 2) + vreads(e, 3, 3)): gaps[64 + 2*n].append(f)
            for c in range(1, 16):
                gaps[4*(c-1)].append(T(cvt2(c, 0)))
                gaps[1 + 2*((c - 1)//2)].append(T(cvt2(c, 1)))
        for k in range(64): gaps[17 + 2*k].append(T(exp2(k)))
        gaps[58].append(lambda: e.vmem(poll_b.ld, "KV"))
        gaps[62].append(T(PREP0))
        for n, t in enumerate(PREP + [XRD + chr(10) + MS[0]] + MS[1:3]): gaps[80 + 2*n].append(T(t))
        for n, t in enumerate(MS[3:]): gaps[132 + 4*n].append(T(t))
        gaps[146].append(T(CV0)); gaps[150].append(T(f"s_cmp_eq_u32 s{S_N}, s{S_T2}"))
        gaps[95].insert(0, lambda: e.wait_all())
        gaps[95].append(lambda: (e("s_barrier"), itstamp(1)))
        o, s_ = pv2()
        if first:
            zo, zl = pv_mfmas(1, zero=True)
            o = [M("")]*32 + zo; s_ = zl + [M("")]*4
        run(e, qk2() + o + s_ + d_mfmas(), gaps, nxt=("FR", 0))
        assert e.lgkm == top, e.lgkm
        e("s_cbranch_scc0 L_body")
    loop_body(False)
    e.label("L_special")
    e(f"""s_cmp_lt_u32 s{S_N}, 3
    s_cselect_b32 s{S_T2}, 3, 17
    s_min_u32 s{S_T2}, s{S_T2}, s{S_TRANS}
    s_cmp_eq_u32 s{S_N}, 3
    s_cbranch_scc0 L_late""")
    e(poll_b.test())
    e("s_cbranch_scc0 L_spin_b")
    e.label("L_ok_b")
    e(f"s_mov_b32 s{S_DSRD+2}, {WS_END}\ns_mov_b32 s{S_DINC}, 4096")
    e.label("L_late")
    e(f"s_cmp_eq_u32 s{S_N}, s{S_D2}\ns_cbranch_scc1 L_first")
    e(f"s_cmp_eq_u32 s{S_N}, s{S_TRANS}\ns_cbranch_scc0 L_body")
    e(f"s_cmp_eq_u32 s{S_N}, 17\ns_cbranch_scc0 L_trans")
    LRD = [f"v_accvgpr_read_b32 v{LR[0]}, a{A_L}\nv_accvgpr_read_b32 v{LR[1]}, a{A_L+4}", f"v_accvgpr_read_b32 v{LR[2]}, a{A_L+8}\nv_accvgpr_read_b32 v{LR[3]}, a{A_L+12}"]
    def cold():
        e.label("L_trans")
        e.lgkm = list(top); e.vm = ["KV"]*13
        qr = [lambda j=j: e.ds(f"ds_read_b128 {ar(A_Q + j*4)}, v{V_QA} offset:{j*1024}", "QS") for j in range(16)]
        rcp = [f"v_rcp_f32 v{LR[qb]}, v{LR[qb]}" for qb in range(4)]
        drain_head(e, (0, 1, 2, 3))
        o, s_ = pv2()
        gaps = {k: [f] for k, f in enumerate(B[4:] + D + [lambda: e.vmem(poll_b.ld, "KV")])}
        for k, t in enumerate(LRD + check_lines(0, S_QT) + rcp): gaps[13 + k] = [T(t)]
        items = norm_items(e, range(8), S_CTXLO)
        XB = f"v_xor_b32 v{V_RD}, {32768 + 65536}, v{V_RD}"
        def fill(g, k, left):
            while items and items[0][1] <= left and 8 + 8*(items[0][2] + 1) - 1 + 5 <= k:
                f, c, _ = items.pop(0); g.append(f); left -= c
        gaps[24] = [T(XB)]
        for k in range(25, 72):
            gaps[k] = []; fill(gaps[k], k, 8)
        run(e, s_ + o, gaps)
        def post():
            e(PREP0)
            for t in PREP: e(t.replace(f"s{S_T0}", f"s{S_T5}"))
            e.need(vm=["KV"])
            e("s_barrier")
            itstamp()
            mem = A + B[:4]; lds = qr + kreads(e, 0) + kreads(e, 1)
            gaps = {k: [mem.pop(0)] if k % 4 == 0 else [lds.pop(0), lds.pop(0)] for k in range(16)}
            run(e, d_mfmas(), gaps)
            extra = []
            for f in mem: extra += [f, NOP]
            emit_items(items, extra) if items else [(f(), e("s_nop 0")) for f in mem]
            del items[:]
            for t in MS: e(t)
            e(f"s_mov_b32 s{S_TRANS}, 17")
            e.need(lg=[("FR", 0)])
            assert e.lgkm == top, e.lgkm
            e("s_branch L_special")
        post()
        e.label("L_first")
        e(f"s_cmp_eq_u32 s{S_N}, 17\ns_cbranch_scc1 L_fzero")
        loop_body(True)
        e("s_branch L_special")
        e.label("L_fzero")
        for r in list(range(V_O, V_O + 128)) + list(range(V_S[0], V_S[0] + 64)) + [Preg(0, 0), Preg(0, 0) + 1]: e(f"v_mov_b32 v{r}, 0")
        for r in range(16): e(f"v_accvgpr_write_b32 a{A_L + r}, 0")
        e("s_branch L_final")
        e.label("L_ret0")
        e.lgkm = []; e.vm = []
        for t in rcp: e(t)
        e(XB)
        emit_items(norm_items(e, range(8), S_CTXLO))
        post()
    e.cold = cold
    e.c("last P V, merge of the two key ranges of the hi rows, range check of the row sums, ctx store")
    e.label("L_final")
    stamp(e, 8)
    tw, trd, tl, tlr = V_TMP[0:4]
    e(f"""s_lshl_b32 s{S_T0}, s{w}, 17
    s_lshl_b32 s{S_AC}, s{h}, 19
    s_add_u32 s{S_AC}, s{S_AC}, s{S_T0}
    s_add_u32 s{S_AC}, s{S_AC}, {WS_CTX}
    s_lshl_b32 s{S_WOo}, s{i}, 19
    s_add_u32 s{S_WOo}, s{S_WOo}, s{S_T0}
    s_add_u32 s{S_WOo}, s{S_WOo}, {WS_WOF}
    s_and_b32 s{S_T0}, s{w}, 1
    s_lshl_b32 s{S_T0}, s{S_T0}, 14
    s_lshr_b32 s{S_T1}, s{w}, 1
    s_lshl_b32 s{S_T1}, s{S_T1}, 16
    s_add_u32 s{S_T0}, s{S_T0}, s{S_T1}
    v_add_u32 v{tw}, s{S_T0}, v{V_L16}
    v_xor_b32 v{trd}, {65536 + 16384}, v{tw}
    s_add_u32 s{S_T0}, s{S_WL}, {144*1024}
    v_add_u32 v{tl}, s{S_T0}, v{V_L16}
    v_xor_b32 v{tlr}, 3072, v{tl}
    s_cmp_ge_u32 s{w}, 2
    s_cbranch_scc1 L_mergeB""")
    for role in range(2):
        keep = list(range(4)) if role == 0 else list(range(4, 8))
        send = list(range(4, 8)) if role == 0 else list(range(4))
        if role == 1: e.label("L_mergeB")
        e.lgkm = list(top); e.vm = ["KV"]*13
        order = (2, 3, 0, 1) if role == 0 else (0, 1, 2, 3)
        drain_head(e, order)
        o, s_ = pv2(order)
        gaps = {2*k: [lambda k=k: wo_load(e, k // 4, k % 4)] for k in range(8)}
        for k in range(8): gaps[45 + 3*k] = [lambda k=k: wo_load(e, 2 + k // 4, k % 4)]
        gaps[17] = [T(LRD[0])]; gaps[18] = [T(LRD[1])]
        gaps[19] = [lambda: e.ds(f"ds_write_b128 v{tl}, {vr(LR[0])}")]
        for n in range(16): gaps[23 + 3*n] = [lambda n=n: e.ds(f"ds_write_b128 v{tw}, {vr(V_O + send[0]*16 + n*4)} offset:{n*1024}")]
        if OPT.get("fst"): stamp(e, 14)
        run(e, s_ + o, gaps)
        if OPT.get("fst"): stamp(e, 15)
        e.wait_all(vm=False)
        e("s_barrier")
        if OPT.get("fst"): stamp(e, 16)
        e.ds(f"ds_read_b128 {vr(V_TMP[4])}, v{tlr}", "ML")
        for n in range(16):
            e.ds(f"ds_read_b128 {vr(V_S[0] + n*4)}, v{trd} offset:{n*1024}", ("MO", n // 4))
            if n % 2: wo_load(e, 4 + n // 8, (n // 2) % 4)
        e.need(lg=["ML"])
        for qb in range(4): e(f"v_add_f32 v{LR[qb]}, v{LR[qb]}, v{V_TMP[4] + qb}")
        for t in check_lines(1 + role, S_QTHI): e(t)
        for n in range(16):
            e.need(lg=[("MO", n // 4)])
            for r in (0, 2):
                o = V_O + keep[0]*16 + n*4 + r
                e(f"v_pk_add_f32 {vr(o, 2)}, {vr(o, 2)}, {vr(V_S[0] + n*4 + r, 2)}")
        e.label(f"L_ret{1 + role}")
        for q in range(4): wo_load(e, 6, q)
        if OPT.get("fst"): stamp(e, 17)
        for qb in range(4): e(f"v_rcp_f32 v{LR[qb]}, v{LR[qb]}")
        emit_items(norm_items(e, keep, S_CTXHI, pk=True))
        if role == 0: e("s_branch L_attdone")
    e.c("phase D")
    e.label("L_attdone")
    stamp(e, 9)

def slow_path(e):
    M = V_P[1]; AL = V_P[1] + 4; T = V_P[1] + 8; QI = V_P[1] + 12; NI = V_P[1] + 13
    u, nu, ko, vo = S_T0, S_T1, S_T3, S_T5
    e.c("fallback: exact online softmax with the true running max for the 64 rows of this wave")
    e.label("L_slow")
    e.lgkm = []; e.vm = []
    e("s_waitcnt vmcnt(0) lgkmcnt(0)")
    e(f"""s_lshl_b32 s{nu}, s{S_CNT}, 1
    s_add_u32 s{nu}, s{nu}, 2
    s_lshl_b32 s{ko}, s{S_HEAD}, 19
    s_add_u32 s{vo}, s{ko}, {WS_V}
    s_add_u32 s{ko}, s{ko}, {WS_K}
    s_lshl_b32 s{S_CNT}, s{S_CNT}, 6
    v_lshrrev_b32 v{T}, 4, v{V_LANE}
    v_lshlrev_b32 v{T}, 2, v{T}
    v_and_b32 v{QI}, 15, v{V_LANE}
    v_sub_u32 v{QI}, v{QI}, v{T}
    v_add_u32 v{QI}, s{S_CNT}, v{QI}
    v_mov_b32 v{NI}, {NEGINF:#x}
    s_mov_b32 s{u}, 0""")
    for r in range(128): e(f"v_mov_b32 v{V_O + r}, 0")
    for qb in range(4): e(f"v_mov_b32 v{M+qb}, v{NI}\nv_mov_b32 v{LR[qb]}, 0")
    e.label("L_slowl")
    def ld8(so):
        for j in range(8):
            if j == 4: e(f"s_add_u32 s{so}, s{so}, 4096")
            e.vmem(f"buffer_load_dwordx4 {ar(A_FB[1] + j*4)}, v{V_L16}, {srd(S_WS)}, s{so} offen offset:{(j%4)*1024}{SC}", "SL")
        e(f"s_add_u32 s{so}, s{so}, 4096")
    ld8(ko)
    e.wait_all()
    for kb2 in range(2):
        for dg in range(4):
            for qb in range(4):
                d = vr(Sreg(0, kb2, qb))
                e(mf(d, ar(A_FB[1] + (kb2*4+dg)*4), ar(A_Q + (qb*4+dg)*4), d if dg else "0"))
    e("s_nop 7")
    ld8(vo)
    for kb2 in range(2):
        for qb in range(4):
            for r in range(4):
                s = Sreg(0, kb2, qb) + r
                e(f"v_cmp_gt_i32 vcc, {16*kb2 + r - 16*qb}, v{QI}\ns_nop 1\nv_cndmask_b32 v{s}, v{s}, v{NI}, vcc")
    e(f"v_subrev_u32 v{QI}, 32, v{QI}")
    for qb in range(4):
        a, b = Sreg(0, 0, qb), Sreg(0, 1, qb)
        e(f"""v_max3_f32 v{T}, v{a}, v{a+1}, v{a+2}
        v_max3_f32 v{T}, v{T}, v{a+3}, v{b}
        v_max3_f32 v{T}, v{T}, v{b+1}, v{b+2}
        v_max3_f32 v{T}, v{T}, v{b+3}, v{M+qb}
        v_mov_b32 v{T+1}, v{T}
        s_nop 1
        v_permlane32_swap_b32 v{T}, v{T+1}
        v_max_f32 v{T}, v{T}, v{T+1}
        v_mov_b32 v{T+1}, v{T}
        s_nop 1
        v_permlane16_swap_b32 v{T}, v{T+1}
        v_max_f32 v{T}, v{T}, v{T+1}
        v_sub_f32 v{AL+qb}, v{M+qb}, v{T}
        v_mov_b32 v{M+qb}, v{T}
        v_exp_f32 v{AL+qb}, v{AL+qb}""")
        for s in list(range(a, a+4)) + list(range(b, b+4)):
            e(f"v_sub_f32 v{s}, v{s}, v{T}")
        for s in list(range(a, a+4)) + list(range(b, b+4)):
            e(f"v_exp_f32 v{s}, v{s}")
        e(f"v_mul_f32 v{LR[qb]}, v{LR[qb]}, v{AL+qb}")
        for s in list(range(a, a+4)) + list(range(b, b+4)):
            e(f"v_add_f32 v{LR[qb]}, v{LR[qb]}, v{s}")
        p = Preg(0, qb)
        e(f"v_cvt_pk_bf16_f32 v{p}, v{a}, v{a+1}\nv_cvt_pk_bf16_f32 v{p+1}, v{a+2}, v{a+3}\nv_cvt_pk_bf16_f32 v{p+2}, v{b}, v{b+1}\nv_cvt_pk_bf16_f32 v{p+3}, v{b+2}, v{b+3}")
        for db in range(8):
            for r in range(4): e(f"v_mul_f32 v{Oreg(db, qb)+r}, v{Oreg(db, qb)+r}, v{AL+qb}")
    e.wait_all()
    e("s_nop 1")
    for db in range(8):
        for qb in range(4):
            d = vr(Oreg(db, qb))
            e(mf(d, ar(A_FB[1] + db*4), vr(Preg(0, qb)), d))
    e(f"s_add_u32 s{u}, s{u}, 1\ns_cmp_lt_u32 s{u}, s{nu}\ns_nop 7\ns_cbranch_scc1 L_slowl")
    for qb in range(4):
        e(f"""v_mov_b32 v{T}, v{LR[qb]}
        s_nop 1
        v_permlane32_swap_b32 v{LR[qb]}, v{T}
        v_add_f32 v{LR[qb]}, v{LR[qb]}, v{T}
        v_mov_b32 v{T}, v{LR[qb]}
        s_nop 1
        v_permlane16_swap_b32 v{LR[qb]}, v{T}
        v_add_f32 v{LR[qb]}, v{LR[qb]}, v{T}""")
    e(f"s_cmp_eq_u32 s{S_RET}, 0\ns_cbranch_scc1 L_ret0\ns_cmp_eq_u32 s{S_RET}, 1\ns_cbranch_scc1 L_ret1\ns_branch L_ret2")


def phase_d(e, poll_c):
    qt, mt, w = S_HEAD, S_BLK, S_WAVE
    V_XO, V_X, V_G = 4, 8, 17
    CRS = [64, 80, 96, 112, 208, 224, 240][:OPT.get('ncr', 5)]; NCR = len(CRS)
    V_AS, V_AD = 128, 192
    t0, t1 = 24, 25
    S_XO, S_XO2 = S_XNB, S_HST
    V_WA = (V_TMP[0], V_TMP[2]); V_RA = (t0, V_TMP[3], V_G, V_TMP[4])
    e(f"""v_lshrrev_b32 v{t0}, 5, v{V_LANE}
    v_lshlrev_b32 v{t0}, 6, v{t0}
    v_xor_b32 v{V_WA[0]}, v{V_WA[0]}, v{t0}
    v_xor_b32 v{V_WA[1]}, 128, v{V_WA[0]}""")
    for j in range(16):
        e.ds(f"ds_write_b128 v{V_WA[(j // 4) % 2]}, {ar(A_DACC + j*4)} offset:{32768 + ((j%4)*4 + j//4)*1024}", "DW")
        if j < OPT.get("wpre", 12): wo_load(e, 7 + j // 4, j % 4)
    e(f"""v_lshrrev_b32 v{t0}, 3, v{V_LANE}
    v_and_b32 v{t1}, 7, v{V_LANE}
    v_lshlrev_b32 v{V_XO}, 10, v{t0}
    v_lshl_add_u32 v{V_XO}, v{t1}, 4, v{V_XO}
    v_lshlrev_b32 v{t0}, 4, v{t0}
    v_lshl_add_u32 v{t0}, v{t1}, 9, v{t0}
    s_lshl_b32 s{S_XO}, s{qt}, 16
    s_lshl_b32 s{S_T0}, s{w}, 14
    s_add_u32 s{S_XO}, s{S_XO}, s{S_T0}
    s_lshl_b32 s{S_T1}, s{mt}, 7
    s_add_u32 s{S_XO}, s{S_XO}, s{S_T1}
    s_add_u32 s{S_XO2}, s{S_XO}, 8192
    v_and_b32 v{t1}, 3, v{V_LANE}
    v_lshlrev_b32 v{t1}, 6, v{t1}
    v_xor_b32 v{t0}, v{t0}, v{t1}
    s_lshl_b32 s{S_T0}, s{w}, 12
    v_add_u32 v{V_RA[0]}, s{S_T0}, v{t0}
    v_xor_b32 v{V_RA[1]}, 128, v{V_RA[0]}
    v_add_u32 v{V_RA[2]}, 65536, v{V_RA[0]}
    v_add_u32 v{V_RA[3]}, 65536, v{V_RA[1]}""")
    if OPT.get("pollw", 1):
        v = poll_c.voff
        e(f"""s_lshr_b32 s{S_T0}, s{qt}, 1
        s_sub_u32 s{S_T1}, 15, s{S_T0}
        s_min_u32 s{S_T0}, s{S_T0}, s{S_T1}
        s_lshl_b32 s{S_T0}, s{S_T0}, 9
        s_lshl_b32 s{S_T1}, s{w}, 3
        s_add_u32 s{S_T0}, s{S_T0}, s{S_T1}
        s_add_u32 s{S_T0}, s{S_T0}, {WS_FC}
        v_and_b32 v{v}, 3, v{V_LANE}
        v_lshlrev_b32 v{v}, 7, v{v}
        v_and_or_b32 v{v}, v{V_LANE}, 4, v{v}
        v_add_u32 v{v}, s{S_T0}, v{v}""")
    else: poll32_addr(e, poll_c.voff, WS_FC)
    if OPT.get("fst"): stamp(e, 18)
    e.need(vm=["CST"]); e.wait_all(vm=False)
    if OPT.get("fst"): stamp(e, 19)
    e("s_barrier")
    if OPT.get("fst"): stamp(e, 20)
    signal(e, sig_lin(WS_FC), 26)
    for sw in range(4):
        for mb in range(4): e.ds(f"ds_read_b128 {vr(V_AD + (sw*4+mb)*4)}, v{V_RA[(sw // 2)*2 + mb // 2]} offset:{32768 + (sw % 2)*16384 + (mb % 2)*256}", ("R", sw))
    for it in range(2):
        e.vmem(f"buffer_load_dwordx4 {vr(V_X + 4*it)}, v{V_XO}, {srd(S_X)}, s{(S_XO, S_XO2)[it]} offen", "X")
    wl = [lambda n=n, q=q: wo_load(e, n, q) for n in range(7, NWS) for q in range(4)][OPT.get("wpre", 12):]
    cnt = [0]
    def V(t):
        e(t); cnt[0] += 1
        if cnt[0] % 6 == 0 and wl: wl.pop(0)()
    def rnd(base, pk):
        for j in range(8): V(f"v_cvt_pk_bf16_f32 v{pk+j}, v{base+2*j}, v{base+2*j+1}")
        for j in range(8): V(f"v_lshlrev_b32 v{base+2*j}, 16, v{pk+j}"); V(f"v_and_b32 v{base+2*j+1}, 0xffff0000, v{pk+j}")
    def red(base, tag):
        e.need(lg=[(tag, 1)])
        for r in range(0, 16, 2): V(f"v_pk_add_f32 {vr(base+r, 2)}, {vr(base+r, 2)}, {vr(base+16+r, 2)}")
        e.need(lg=[(tag, 2)])
        for r in range(0, 16, 2): V(f"v_pk_add_f32 {vr(base+r, 2)}, {vr(base+r, 2)}, {vr(base+32+r, 2)}")
        e.need(lg=[(tag, 3)])
        for r in range(0, 16, 2): V(f"v_pk_add_f32 {vr(base+r, 2)}, {vr(base+r, 2)}, {vr(base+48+r, 2)}")
    T = V_AD + 16; PK = V_AD + 32
    red(V_AD, "R"); rnd(V_AD, PK)
    for r in range(16): V(f"v_mul_f32 v{T+r}, 0xbfb8aa3b, v{V_AD+r}")
    for r in range(16): V(f"v_exp_f32 v{T+r}, v{T+r}")
    for r in range(16): V(f"v_add_f32 v{T+r}, 1.0, v{T+r}")
    for r in range(16): V(f"v_rcp_f32 v{T+r}, v{T+r}")
    for r in range(16): V(f"v_mul_f32 v{V_AD+r}, v{V_AD+r}, v{T+r}")
    rnd(V_AD, PK)
    while len(wl) > 8: wl.pop(0)()
    poll_c.issue()
    while wl: wl.pop(0)()
    stamp(e, 10); poll_c.check(); stamp(e, 11)
    def sw_(j): e.ds(f"ds_write_b128 v{V_WA[(j // 4) % 2]}, {vr(V_AS + j*4)} offset:{((j%4)*4 + j//4)*1024}", "SW")
    def c_load(n, q):
        e.vmem(f"buffer_load_dwordx4 {vr(CRS[n % NCR] + q*4)}, v{V_L16}, {srd(S_WS)}, s{S_AC} offen offset:{q*1024}{SC}", ("C", n))
        if q == 3: e(f"s_add_u32 s{S_AC}, s{S_AC}, 4096")
    if OPT.get("dchain", 0):
        for n in range(2):
            for q in range(4): c_load(n, q)
        for n in range(0, 32, 2):
            ld = []
            for t in range(2):
                if n + 2 + t < 32: ld += [lambda q=q, t=t: c_load(n + 2 + t, q) for q in range(4)]
            for t in range(2):
                if n >= 2 and n + NWS - 2 + t < 32: ld += [lambda q=q, t=t: wo_load(e, n + NWS - 2 + t, q) for q in range(4)]
            for _ in range(min(4, len(ld))): ld.pop(0)()
            e.need(vm=[("C", n), ("C", n + 1), ("WO", n), ("WO", n + 1)])
            for k in range(32):
                c = k // 2; mb = c // 4; qb = c % 4 if mb % 2 == 0 else 3 - c % 4
                t = k % 2 if c % 2 == 0 else 1 - k % 2
                d = vr(V_AS + (mb*4 + qb)*4)
                e(mf(d, wreg(n + t, mb), vr(CRS[(n + t) % NCR] + qb*4), d if (n or k % 2) else "0"))
                if k % 2 == 0 and ld: ld.pop(0)()
    else:
        for n in range(NCR - 1):
            for q in range(4): c_load(n, q)
        for n in range(32):
            ld = []
            if n + NCR - 1 < 32: ld += [lambda q=q: c_load(n + NCR - 1, q) for q in range(4)]
            if n >= 1 and n + NWS - 1 < 32: ld += [lambda q=q: wo_load(e, n + NWS - 1, q) for q in range(4)]
            e.need(vm=[("C", n), ("WO", n)])
            for k in range(16):
                mb, qb = k // 4, k % 4
                d = vr(V_AS + k*4)
                e(mf(d, wreg(n, mb), vr(CRS[n % NCR] + qb*4), d if n else "0"))
                if k % 2 == 0 and ld: ld.pop(0)()
                if n == 31 and k >= 8: sw_(k - 8)
    stamp(e, 12)
    for j in range(8, 16):
        if j >= 12: e("s_nop 1")
        sw_(j)
    e.need(vm=["X"])
    for j in range(8): e(f"v_lshlrev_b32 v{T+2*j}, 16, v{V_X+j}"); e(f"v_and_b32 v{T+2*j+1}, 0xffff0000, v{V_X+j}")
    e.wait_all(vm=False)
    e("s_barrier")
    for sw in range(4):
        for mb in range(4): e.ds(f"ds_read_b128 {vr(V_AS + (sw*4+mb)*4)}, v{V_RA[(sw // 2)*2 + mb // 2]} offset:{(sw % 2)*16384 + (mb % 2)*256}", ("RS", sw))
    red(V_AS, "RS")
    for r in range(0, 16, 2): e(f"v_pk_fma_f32 {vr(V_AS+r, 2)}, {vr(V_AS+r, 2)}, {vr(V_AD+r, 2)}, {vr(T+r, 2)}")
    for j in range(8): e(f"v_cvt_pk_bf16_f32 v{PK+j}, v{V_AS+2*j}, v{V_AS+2*j+1}")
    for it in range(2):
        e.vmem(f"buffer_store_dwordx4 {vr(PK + 4*it)}, v{V_XO}, {srd(S_OUT)}, s{(S_XO, S_XO2)[it]} offen{OPT.get('outsc', SC)}", "OUT")
    e("s_cmp_lg_u32 s2, 0")
    e("s_cbranch_scc1 L_nobump")
    signal(e, f"s_mov_b32 s{S_CNT}, {WS_EP}", 26)
    e.label("L_nobump")
    stamp(e, 13)

HEADER = open("cdna_kernels/" + NAME + ".s.ref").read().split("; Override launch geometry")[0]
DOC = '''; ---------------------------------------------------------------------------------------------------------------
; [2^-80, 2^80] (NaN included) and any wave with a row outside recomputes its 64 rows in L_slow with the true running
; ---------------------------------------------------------------------------------------------------------------'''
def build():
    e = E(); body(e)
    n = 0
    def policy(roleB, trans, slow, spin):
        def d(lb, site, c):
            if lb == "L_body": return (c == 0) if site < 2 else True
            if lb == "L_first": return trans and c == 2
            if lb == "L_fzero": return trans == 2
            if lb == "L_late": return c != 1
            if lb == "L_trans": return trans and c == 0
            if lb == "L_mergeB": return roleB
            if lb == "L_slow": return slow
            if lb == "L_slowl": return c % 2 == 0
            if lb == "L_ret0": return trans and c == 0
            if lb == "L_ret1": return not roleB
            if lb.startswith("L_spin_"): return spin and c == 0
            if lb.startswith("L_ok_"): return c >= 1
            if lb.startswith("L_spinl_"): return True
            return False
        return d
    for cfg in ((0, 0, 0, 0), (1, 1, 0, 0), (0, 0, 1, 1), (1, 1, 1, 1), (1, 2, 0, 0)):
        tr = chk.trace(e.L, policy(*cfg))
        assert "s_endpgm" in tr[-1], cfg
        n += chk.check(tr, f"path{cfg}")
    if n: print(f"{n} hazards", file=sys.stderr)
    return "\n".join([HEADER.rstrip("\n"), "; @launch grid=(256,1,1) block=(256,1,1) lds=163840",
        DOC, '.amdgcn_target "amdgcn-amd-amdhsa--gfx950"\n.text', e.text(), '.section .rodata,"a"\n.p2align 6',
        f""".amdhsa_kernel {KN}
  .amdhsa_next_free_vgpr 512
  .amdhsa_next_free_sgpr 102
  .amdhsa_accum_offset 256
  .amdhsa_group_segment_fixed_size 0
  .amdhsa_kernarg_size 104
  .amdhsa_user_sgpr_count 2
  .amdhsa_user_sgpr_kernarg_segment_ptr 1
  .amdhsa_system_sgpr_workgroup_id_x 1
.end_amdhsa_kernel
"""])
if __name__ == "__main__":
    open(sys.argv[1], "w").write(build())
```

```python
import sys, math, os, struct
from emit import E, Filler
import check as chk

NAME = "recurrent_scan__compressed_kv_cla__glu_gated_geglu__prompt"
KN = NAME + "_kernel"
MB = 1 << 20
OPT = eval(os.environ.get("OPT", "{}"))
STAMPS = os.environ.get("STAMPS")
POLLALL = OPT.get("pollall", 0)
WS_XN, WS_H, WS_WDF, WS_WOF, WS_CTX, WS_K, WS_V, WS_END = 0, 2*MB, 9*MB, 12*MB, 16*MB, 32*MB, 48*MB, 64*MB
fb = lambda x: struct.unpack("<I", struct.pack("<f", x))[0]

S_X, S_CKV, S_WQ, S_WUK, S_WUV, S_WO, S_WG, S_WU, S_WD, S_OUT, S_DBG, S_WS = [8 + 4*i for i in range(12)]
S_HSRD, S_ASRD, S_BSRD = 56, 60, 64
S_WAVE, S_HEAD, S_BLK, S_ROT = 68, 69, 70, 71
S_T0, S_T1, S_T2, S_T3, S_T4, S_T5 = 72, 73, 74, 75, 76, 77
S_WL, S_WA = 78, 79
S_OFF0, S_OFFA, S_AROW, S_KVST, S_XNB, S_HST = 80, 81, 82, 83, 84, 85
S_CTXLO, S_CTXHI = 86, 87
S_SRCA, S_SRCB, S_LA, S_LB, S_VMAXB, S_VCLB = 88, 89, 90, 91, 92, 93
S_N, S_EVT, S_TRANS, S_N0 = 94, 95, 96, 97
S_QT, S_QTHI, S_RET, S_CNT = 98, 99, 100, 101
S_ROTB, S_DW, S_DH, S_DINC = 48, 49, 50, 51
S_GJ = 7
S_GSRD = S_CKV
S_DSRD = S_HSRD
S_FL = 6
def srd(n): return f"s[{n}:{n+3}]"
def mf(d, a, b, c): return f"v_mfma_f32_16x16x32_bf16 {d}, {a}, {b}, {c}"
def vr(n, k=4): return f"v[{n}:{n+k-1}]"
def ar(n, k=4): return f"a[{n}:{n+k-1}]"

V_LANE, V_STAMP, V_L16 = 1, 2, 3
V_TR = (4, 5, 6, 7)
V_WOFF = (8, 9, 10, 11)
V_AOFF = (12, 13)
V_WOFG = (12, 13)
V_ARD = (14, 15)
V_TMP = list(range(16, 32))
V_POLL = 0
V_WF, V_PK, V_ACC = 32, 64, 128
def acc(db, rb): return V_ACC + (db*4 + rb)*4
def actf(ks, rb): return (ks*4 + rb)*4
V_RD = 4
V_TD, V_TN, V_LIM = 16, 20, 24
V_P, V_S, V_O = (32, 48), (64, 96), 128
A_Q, A_FB, A_DACC, A_L, A_ONE, A_DOP = 0, (64, 96), 128, 192, 208, 224
QSCALE = fb(math.log2(math.e) / math.sqrt(128.0))
NEGINF = 0xff800000
def Sreg(buf, kb2, qb): return V_S[buf] + (kb2*4 + qb)*4
def Preg(buf, qb): return V_P[buf] + qb*4
def Oreg(db, qb): return V_O + (db*4 + qb)*4
SC = " sc1"

def stamp(e, idx):
    if not STAMPS: return
    if OPT.get("padph") and idx not in OPT["padph"]: return
    if OPT.get("padat"):
        if idx == OPT["padat"][0]:
            e(f"s_nop 1\nv_readlane_b32 s5, v{V_STAMP}, 0\ns_add_u32 s{S_CNT}, s5, {OPT['padat'][1]*100}")
            e.label("L_padat")
            e(f"s_memrealtime s[4:5]\ns_waitcnt lgkmcnt(0)\ns_sub_u32 s5, s4, s{S_CNT}\ns_cmp_lt_i32 s5, 0\ns_cbranch_scc1 L_padat")
            e.lgkm = []
        return
    e(("s_memtime" if STAMPS == "2" else "s_memrealtime") + " s[4:5]")
    e.wait_all(vm=False)
    e(f"v_writelane_b32 v{V_STAMP}, s4, {idx}")
def stamp_flush(e):
    if not STAMPS: return
    if OPT.get("dbgst"):
        e(f"""s_load_dwordx2 s[8:9], s[0:1], 88
        s_mov_b32 s10, 256
        s_mov_b32 s11, 0x20000
        v_readlane_b32 s4, v{V_STAMP}, 0
        s_not_b32 s4, s4
        s_nop 3
        v_writelane_b32 v{V_STAMP}, s4, 14
        v_lshlrev_b32 v0, 2, v{V_LANE}
        v_cmp_gt_u32 vcc, 15, v{V_LANE}
        s_and_saveexec_b64 s[6:7], vcc
        s_waitcnt lgkmcnt(0)
        buffer_atomic_umax v{V_STAMP}, v0, s[8:11], 0 offen
        s_waitcnt vmcnt(0)""")
        return
    e(f"""s_lshl_b32 s4, s2, 2
    s_add_u32 s4, s4, s{S_WAVE}
    s_lshl_b32 s4, s4, 7
    s_add_u32 s4, s4, {64*MB}
    v_lshlrev_b32 v0, 2, v{V_LANE}
    v_cmp_gt_u32 vcc, 32, v{V_LANE}
    s_and_saveexec_b64 s[6:7], vcc
    buffer_store_dword v{V_STAMP}, v0, {srd(S_WS)}, s4 offen
    s_waitcnt vmcnt(0)""")

WS_EP = 11*MB
WS_FX, WS_FK, WS_FB, WS_FC = WS_EP + 4096, WS_EP + 8192, WS_EP + 12288, WS_EP + 16384
S_TAG = 3
def signal(e, soff_lines, tmp):
    e(soff_lines)
    e(f"""v_mov_b32 v{tmp}, s{S_TAG}
    v_add_u32 v{tmp+1}, s{S_WL}, v{V_LANE}
    v_min_u32 v{tmp+1}, 1, v{tmp+1}
    v_lshlrev_b32 v{tmp+1}, 30, v{tmp+1}""")
    e.vmem(f"buffer_store_dword v{tmp}, v{tmp+1}, {srd(S_WS)}, s{S_CNT} offen sc1", "SIG")
def sig_lin(base):
    return f"""s_lshr_b32 s{S_CNT}, s2, 3
    s_lshl_b32 s{S_CNT}, s{S_CNT}, 7
    s_and_b32 s{S_FL}, s2, 7
    s_lshl_b32 s{S_FL}, s{S_FL}, 2
    s_add_u32 s{S_CNT}, s{S_CNT}, s{S_FL}
    s_add_u32 s{S_CNT}, s{S_CNT}, {base}"""
SIG_KV = f"""s_and_b32 s{S_CNT}, s2, 31
    s_lshl_b32 s{S_CNT}, s{S_CNT}, 7
    s_lshl_b32 s{S_FL}, s{S_BLK}, 2
    s_add_u32 s{S_CNT}, s{S_CNT}, s{S_FL}
    s_add_u32 s{S_CNT}, s{S_CNT}, {WS_FK}"""
class Poll:
    def __init__(self, e, name, voff):
        self.e, self.name, self.voff = e, name, voff
    @property
    def ld(self):
        if self.name == "b" and POLLALL: return f"buffer_load_dwordx4 a[216:219], v{self.voff}, {srd(S_WS)}, 0 offen sc1"
        return f"buffer_load_dword v{V_POLL}, v{self.voff}, {srd(S_WS)}, 0 offen sc1"
    def issue(self): self.e.vmem(self.ld, ("POLL", self.name))
    def test(self):
        if self.name == "b" and POLLALL:
            return f"""v_accvgpr_read_b32 v5, a216
            v_accvgpr_read_b32 v6, a217
            v_accvgpr_read_b32 v7, a218
            v_accvgpr_read_b32 v{V_POLL}, a219
            v_xor_b32 v5, v5, v{V_POLL}
            v_xor_b32 v6, v6, v{V_POLL}
            v_xor_b32 v7, v7, v{V_POLL}
            v_or3_b32 v5, v5, v6, v7
            v_xor_b32 v{V_POLL}, s{S_TAG}, v{V_POLL}
            v_or_b32 v5, v5, v{V_POLL}
            v_cmp_eq_u32 vcc, 0, v5
            s_cmp_eq_u64 vcc, exec"""
        return f"v_cmp_eq_u32 vcc, s{S_TAG}, v{V_POLL}\ns_cmp_eq_u64 vcc, exec"
    def check(self):
        e = self.e
        e.need(vm=[("POLL", self.name)])
        e(self.test())
        e(f"s_cbranch_scc0 L_spin_{self.name}")
        e.label(f"L_ok_{self.name}")
    def spin(self):
        e = self.e
        e.label(f"L_spin_{self.name}")
        e(f"s_mov_b32 s{S_CNT}, 0x40000")
        e.label(f"L_spinl_{self.name}")
        e("s_sleep 2")
        e(self.ld)
        e("s_waitcnt vmcnt(0)")
        e(self.test())
        e(f"s_cbranch_scc1 L_ok_{self.name}")
        e(f"s_sub_u32 s{S_CNT}, s{S_CNT}, 1")
        e(f"s_cmp_lg_u32 s{S_CNT}, 0")
        e(f"s_cbranch_scc1 L_spinl_{self.name}")
        e(f"s_branch L_ok_{self.name}")
def poll32_addr(e, v, base):
    e(f"""s_lshr_b32 s{S_T0}, s{S_HEAD}, 1
    s_sub_u32 s{S_T1}, 15, s{S_T0}
    s_min_u32 s{S_T0}, s{S_T0}, s{S_T1}
    s_lshl_b32 s{S_T0}, s{S_T0}, 9
    s_add_u32 s{S_T0}, s{S_T0}, {base}
    v_bfe_u32 v{v}, v{V_LANE}, 3, 2
    v_lshlrev_b32 v{v}, 5, v{v}
    v_and_or_b32 v{v}, v{V_LANE}, 7, v{v}
    v_lshlrev_b32 v{v}, 2, v{v}
    v_add_u32 v{v}, s{S_T0}, v{v}""")

def kernel_head(e):
    e(f".globl {KN}\n.p2align 8\n.type {KN},@function")
    e.label(KN)
    e("s_cmp_ge_u32 s2, 256")
    e("s_cbranch_scc1 L_end")
    sizes = {S_X: (0, 2*MB), S_CKV: (8, 2*MB), S_WUK: (24, 4*MB), S_WS: (96, 65*MB if STAMPS else WS_END), S_WQ: (16, 4*MB), S_WUV: (32, 4*MB), S_WO: (40, 4*MB),
             S_WG: (56, 512*3584), S_WU: (64, 512*3584), S_WD: (72, 1792*1024), S_OUT: (80, 2*MB)}
    first = (S_X, S_CKV, S_WUK, S_WS)
    if OPT.get("st0") == 1: e("s_memrealtime s[6:7]\ns_waitcnt lgkmcnt(0)")
    for sr in first: e(f"s_load_dwordx2 s[{sr}:{sr+1}], s[0:1], {sizes[sr][0]}")
    if OPT.get("st0") == 2: e("s_waitcnt lgkmcnt(0)\ns_memrealtime s[6:7]")
    if STAMPS and not OPT.get("st0"): e(("s_memtime" if STAMPS == "2" else "s_memrealtime") + " s[6:7]")
    e(f"v_and_b32 v{V_LANE}, 63, v0")
    e("v_lshrrev_b32 v2, 6, v0")
    e(f"v_lshlrev_b32 v{V_L16}, 4, v{V_LANE}")
    e(f"v_readfirstlane_b32 s{S_WAVE}, v2")
    if OPT.get("pfcode", 1):
        e(f"""s_getpc_b64 s[4:5]
        s_lshr_b32 s{S_T0}, s2, 3
        s_lshl_b32 s{S_T0}, s{S_T0}, 11
        v_lshlrev_b32 v{V_TMP[0]}, 3, v2
        v_and_or_b32 v{V_TMP[0]}, v0, 7, v{V_TMP[0]}
        v_lshlrev_b32 v{V_TMP[0]}, 6, v{V_TMP[0]}
        v_add_u32 v{V_TMP[0]}, s{S_T0}, v{V_TMP[0]}
        v_min_u32 v{V_TMP[0]}, L_end-L_pcref, v{V_TMP[0]}""")
        e.label("L_pcref")
        e.vmem(f"global_load_dword v{V_TMP[12]}, v{V_TMP[0]}, s[4:5]", "PF")
    e(f"""s_and_b32 s{S_T0}, s2, 7
    s_lshl_b32 s{S_T0}, s{S_T0}, 2
    s_lshr_b32 s{S_T1}, s2, 3
    s_and_b32 s{S_T1}, s{S_T1}, 3
    s_add_u32 s{S_HEAD}, s{S_T0}, s{S_T1}
    s_lshr_b32 s{S_BLK}, s2, 5
    s_mul_i32 s{S_T0}, s{S_T1}, {OPT.get('rota', 4)}
    s_add_u32 s{S_ROT}, s{S_BLK}, s{S_T0}
    s_mul_i32 s{S_T0}, s2, {OPT.get('rotx', 1)}
    s_add_u32 s{S_ROT}, s{S_ROT}, s{S_T0}
    s_and_b32 s{S_ROT}, s{S_ROT}, 7
    s_mul_i32 s{S_T0}, s{S_T1}, {OPT.get('rotb', 0)}
    s_add_u32 s{S_ROTB}, s{S_BLK}, s{S_T0}
    s_mul_i32 s{S_T0}, s2, {OPT.get('rotbx', 1)}
    s_add_u32 s{S_ROTB}, s{S_ROTB}, s{S_T0}
    s_and_b32 s{S_ROTB}, s{S_ROTB}, 3
    s_lshl_b32 s{S_WL}, s{S_WAVE}, 10
    s_lshl_b32 s{S_WA}, s{S_WAVE}, 13
    s_add_u32 s{S_WA}, s{S_WA}, 65536""")
    if STAMPS: e("v_mov_b32 v2, -1")
    for sr in first: e(f"s_mov_b32 s{sr+2}, {sizes[sr][1]}\ns_mov_b32 s{sr+3}, 0x20000")
    setup_addrs(e)
    e(f"v_add_u32 v{V_ARD[0]}, s{S_WA}, v{V_ARD[0]}\nv_xor_b32 v{V_ARD[1]}, 64, v{V_ARD[0]}")
    scalar_setup(e)
    e(f"s_lshl_b32 s{S_T0}, s2, 13\ns_lshl_b32 s{S_T1}, s{S_WAVE}, 11\ns_add_u32 s{S_T0}, s{S_T0}, s{S_T1}")
    def late():
        for sr, (p, n) in sizes.items():
            if sr not in first: e(f"s_load_dwordx2 s[{sr}:{sr+1}], s[0:1], {p}\ns_mov_b32 s{sr+2}, {n}\ns_mov_b32 s{sr+3}, 0x20000")
        for sr in (S_HSRD, S_ASRD, S_BSRD): e(f"s_mov_b64 s[{sr}:{sr+1}], s[{S_WS}:{S_WS+1}]\ns_mov_b32 s{sr+2}, {WS_END}\ns_mov_b32 s{sr+3}, 0x20000")
        e(f"s_add_u32 s{S_FL}, s{S_WS}, {WS_EP}\ns_addc_u32 s{S_FL+1}, s{S_WS+1}, 0\ns_load_dword s{S_TAG}, s[{S_FL}:{S_FL+1}], 0")
    def go():
        e("s_waitcnt lgkmcnt(0)")
        if STAMPS: e("v_writelane_b32 v2, s6, 0")
        e.vmem(f"buffer_load_dwordx4 v[64:67], v{V_L16}, {srd(S_X)}, s{S_T0} offen", "X")
        e.vmem(f"buffer_load_dwordx4 v[68:71], v{V_L16}, {srd(S_X)}, s{S_T0} offen offset:1024", "X")
    return go, late

V_CPF = 31
V_KPERM = 31
V_UOFF = 30
def setup_addrs(e):
    t0, t1, t2, t3, t4 = V_TMP[:5]
    e(f"""v_lshrrev_b32 v{t0}, 2, v{V_LANE}
    v_lshlrev_b32 v{t0}, 7, v{t0}
    v_and_b32 v{t1}, 3, v{V_LANE}
    v_lshlrev_b32 v{t1}, 3, v{t1}
    v_add_u32 v{t0}, v{t0}, v{t1}
    v_bfe_u32 v{t1}, v{V_LANE}, 3, 2
    v_lshlrev_b32 v{t1}, 5, v{t1}
    v_add_u32 v{V_TR[0]}, v{t0}, v{t1}""")
    for c in (1, 2, 3): e(f"v_xor_b32 v{V_TR[c]}, {c*32}, v{V_TR[0]}")
    e(f"""v_lshrrev_b32 v{t0}, 3, v{V_LANE}
    v_and_b32 v{t1}, 7, v{V_LANE}
    v_and_b32 v{t2}, 6, v{t0}
    v_xor_b32 v{t1}, v{t1}, v{t2}
    v_lshlrev_b32 v{V_UOFF}, 4, v{t1}
    s_lshl_b32 s{S_T0}, s{S_WAVE}, 3
    v_add_u32 v{t2}, s{S_T0}, v{t0}
    v_bfe_u32 v{t3}, v{t2}, 2, 2
    v_lshlrev_b32 v{t3}, 3, v{t3}
    v_lshrrev_b32 v{t4}, 4, v{t2}
    v_lshl_add_u32 v{t3}, v{t4}, 2, v{t3}
    v_and_b32 v{t4}, 3, v{t2}
    v_add_u32 v{V_KPERM}, v{t3}, v{t4}
    v_lshl_add_u32 v{V_WOFF[0]}, v{V_KPERM}, 13, v{V_UOFF}
    v_add_u32 v{V_WOFF[1]}, 128, v{V_WOFF[0]}
    v_add_u32 v{V_WOFF[2]}, {32*8192}, v{V_WOFF[0]}
    v_add_u32 v{V_WOFF[3]}, {32*8192 + 128}, v{V_WOFF[0]}
    v_and_b32 v{t1}, 7, v{V_LANE}
    v_lshrrev_b32 v{t2}, 1, v{t0}
    v_xor_b32 v{t1}, v{t1}, v{t2}
    v_lshlrev_b32 v{t1}, 4, v{t1}
    v_lshl_add_u32 v{V_AOFF[0]}, v{t0}, 10, v{t1}
    v_xor_b32 v{V_AOFF[1]}, 64, v{V_AOFF[0]}
    v_add_u32 v{V_AOFF[1]}, 8192, v{V_AOFF[1]}
    v_and_b32 v{t0}, 15, v{V_LANE}
    v_lshrrev_b32 v{t1}, 4, v{V_LANE}
    v_lshrrev_b32 v{t2}, 1, v{t0}
    v_xor_b32 v{t1}, v{t1}, v{t2}
    v_lshlrev_b32 v{t1}, 4, v{t1}
    v_lshl_add_u32 v{V_ARD[0]}, v{t0}, 7, v{t1}""")

def scalar_setup(e):
    i, h, w = S_BLK, S_HEAD, S_WAVE
    e(f"""s_lshl_b32 s{S_T0}, s{i}, 2
    s_add_u32 s{S_T0}, s{S_T0}, s{w}
    s_lshl_b32 s{S_AROW}, s{S_T0}, 16
    s_lshl_b32 s{S_KVST}, s{h}, 19
    s_lshl_b32 s{S_T0}, s{S_T0}, 14
    s_add_u32 s{S_KVST}, s{S_KVST}, s{S_T0}""")
def scalar_setup2(e):
    i, h, w = S_BLK, S_HEAD, S_WAVE
    a, b, c, d = S_N, S_EVT, S_TRANS, S_RET
    IDLE = f"s{i}" if OPT.get("spread", 1) else "7"
    return f"""s_sub_u32 s{a}, 15, s{i}
    s_cmp_lt_u32 s{w}, 2 ! s_cselect_b32 s{b}, s{a}, s{i}
    s_lshl_b32 s{b}, s{b}, 1
    s_and_b32 s{c}, s{w}, 1
    s_add_u32 s{S_QT}, s{b}, s{c}
    s_lshl_b32 s{S_XNB}, s{S_QT}, 16
    s_mul_i32 s{S_HST}, s{S_QT}, {56*4096}
    s_add_u32 s{S_HST}, s{S_HST}, {WS_H}
    s_lshl_b32 s{d}, s{h}, 14
    s_add_u32 s{d}, s{d}, {WS_CTX}
    s_lshl_b32 s{S_CTXLO}, s{S_QT}, 19
    s_add_u32 s{S_CTXLO}, s{S_CTXLO}, s{d}
    s_lshr_b32 s{b}, s{w}, 1
    s_xor_b32 s{b}, s{b}, s{w}
    s_and_b32 s{b}, s{b}, 1
    s_lshl_b32 s{a}, s{a}, 1
    s_add_u32 s{S_QTHI}, s{a}, s{b}
    s_lshl_b32 s{S_CTXHI}, s{S_QTHI}, 19
    s_add_u32 s{S_CTXHI}, s{S_CTXHI}, s{d}
    s_lshr_b32 s{a}, s{h}, 2
    s_cmp_lg_u32 s{a}, {IDLE} ! s_cselect_b32 s{S_HSRD+2}, {WS_END}, 0
    s_cmp_gt_u32 s{a}, {IDLE} ! s_cselect_b32 s{a}, 4, 0
    s_sub_u32 s{S_GJ}, s{h}, s{a}
    s_lshl_b32 s{a}, s{h}, 19
    s_mov_b32 s{b}, {WS_V}
    s_cmp_lt_u32 s{w}, 2 ! s_cselect_b32 s{b}, {WS_K}, s{b}
    s_add_u32 s{b}, s{b}, s{a}
    s_add_u32 s{S_VCLB}, s{b}, {63*8192}
    s_and_b32 s{a}, s{w}, 1
    s_lshl_b32 s{a}, s{a}, 13
    s_add_u32 s{S_SRCA}, s{b}, s{a}
    s_lshl_b32 s{a}, s{w}, 13
    s_add_u32 s{S_VMAXB}, s{b}, s{a}
    s_add_u32 s{S_VMAXB}, s{S_VMAXB}, {64*8192}
    s_min_u32 s{S_SRCB}, s{S_VMAXB}, s{S_VCLB}
    s_lshl_b32 s{S_LB}, s{w}, 13
    s_add_u32 s{S_LA}, s{S_LB}, 65536
    s_xor_b32 s{S_LB}, s{S_LB}, 32768
    s_lshl_b32 s{S_N0}, s{i}, 1
    s_add_u32 s{S_N0}, s{S_N0}, 2
    s_mul_i32 s{a}, s{w}, {14*4096}
    s_mul_i32 s{S_DH}, s{h}, {56*4096}
    s_add_u32 s{S_DH}, s{S_DH}, s{a}
    s_add_u32 s{S_DH}, s{S_DH}, {WS_H}
    s_mul_i32 s{S_DW}, s{i}, {56*4096}
    s_add_u32 s{S_DW}, s{S_DW}, s{a}
    s_add_u32 s{S_DW}, s{S_DW}, {WS_WDF}
    s_mov_b32 s{S_DINC}, 0""".split("\n")

def layernorm_lines():
    L = []; e = L.append
    X = (72, 80); SUM = (88, 89); TMP = (90, 91); MEAN = (92, 93); VAR = (94, 95)
    SS = (S_T0, S_T1)
    for r in range(2):
        for j in range(4):
            e(f"v_lshlrev_b32 v{X[r]+2*j}, 16, v{64+4*r+j}")
            e(f"v_and_b32 v{X[r]+2*j+1}, 0xffff0000, v{64+4*r+j}")
    def reduce():
        for mod in ("quad_perm:[1,0,3,2] row_mask:0xf bank_mask:0xf", "quad_perm:[2,3,0,1] row_mask:0xf bank_mask:0xf",
                    "row_half_mirror row_mask:0xf bank_mask:0xf", "row_mirror row_mask:0xf bank_mask:0xf",
                    "row_bcast:15 row_mask:0xa bank_mask:0xf", "row_bcast:31 row_mask:0xc bank_mask:0xf"):
            e("s_nop 0")
            for r in range(2): e(f"v_add_f32_dpp v{SUM[r]}, v{SUM[r]}, v{SUM[r]} {mod}")
        e("s_nop 0")
        for r in range(2): e(f"v_readlane_b32 s{SS[r]}, v{SUM[r]}, 63")
        e("s_nop 1")
    P2 = lambda r: f"v[{r}:{r+1}]"
    AC = (96, 98); DD = (100, 108)
    for r in range(2): e(f"v_pk_add_f32 {P2(AC[r])}, {P2(X[r])}, {P2(X[r]+2)}")
    for j in (4, 6):
        for r in range(2): e(f"v_pk_add_f32 {P2(AC[r])}, {P2(AC[r])}, {P2(X[r]+j)}")
    for r in range(2): e(f"v_add_f32 v{SUM[r]}, v{AC[r]}, v{AC[r]+1}")
    reduce()
    for r in range(2): e(f"v_mov_b32 v{MEAN[r]}, s{SS[r]}")
    for r in range(2): e(f"v_mul_f32 v{MEAN[r]}, 0x3b000000, v{MEAN[r]}")
    NEGB = lambda r: bsel(r)[1] + " neg_lo:[0,1] neg_hi:[0,1]"
    for j in range(0, 8, 2):
        for r in range(2): e(f"v_pk_add_f32 {P2(DD[r]+j)}, {P2(X[r]+j)}, {bsel(MEAN[r])[0]} {NEGB(MEAN[r])}")
    for j in range(0, 8, 2):
        for r in range(2): e(f"v_pk_mul_f32 {P2(AC[r])}, {P2(DD[r])}, {P2(DD[r])}" if j == 0 else f"v_pk_fma_f32 {P2(AC[r])}, {P2(DD[r]+j)}, {P2(DD[r]+j)}, {P2(AC[r])}")
    for r in range(2): e(f"v_add_f32 v{SUM[r]}, v{AC[r]}, v{AC[r]+1}")
    reduce()
    def both(fmt):
        for r in range(2): e(fmt.format(v=VAR[r], m=MEAN[r], s=SS[r]))
    def rnd(x):
        both("v_cvt_pk_bf16_f32 v{%s}, v{%s}, v{%s}" % (x, x, x)); both("v_lshlrev_b32 v{%s}, 16, v{%s}" % (x, x))
    both("v_mov_b32 v{v}, s{s}"); both("v_mul_f32 v{v}, 0x3b000000, v{v}")
    rnd("v"); both("v_add_f32 v{v}, 0x3727c5ac, v{v}"); rnd("v")
    both("v_sqrt_f32 v{v}, v{v}"); rnd("m"); rnd("v"); both("v_rcp_f32 v{v}, v{v}")
    for r in range(2):
        for j in range(0, 8, 2): e(f"v_pk_add_f32 {P2(X[r]+j)}, {P2(X[r]+j)}, {bsel(MEAN[r])[0]} {NEGB(MEAN[r])}")
        for j in range(4): e(f"v_cvt_pk_bf16_f32 v{64+4*r+j}, v{X[r]+2*j}, v{X[r]+2*j+1}")
        for j in range(4):
            e(f"v_lshlrev_b32 v{X[r]+2*j}, 16, v{64+4*r+j}")
            e(f"v_and_b32 v{X[r]+2*j+1}, 0xffff0000, v{64+4*r+j}")
        for j in range(0, 8, 2): e(f"v_pk_mul_f32 {P2(X[r]+j)}, {P2(X[r]+j)}, {bsel(VAR[r])[0]} {bsel(VAR[r])[1]}")
        for j in range(4): e(f"v_cvt_pk_bf16_f32 v{64+4*r+j}, v{X[r]+2*j}, v{X[r]+2*j+1}")
    return L

class MemQ:
    def __init__(self, e): self.e = e; self.items = []
    def add(self, kind, lo, hi, *a): self.items.append([kind, lo, hi, a])
    def fillers(self):
        e = self.e; out = []
        dm = [k for k, it in enumerate(self.items) if it[0] == 'd']
        nxt = {dm[j]: dm[j+1] for j in range(len(dm) - 1)}
        self.first_m0 = self.items[dm[0]][3][0]
        for k, (kind, lo, hi, a) in enumerate(self.items):
            if kind == 's': out.append(Filler(lambda a=a: e(a[0].replace(" ! ", "\n")), 4, "salu", lo, hi))
            elif kind == 'l': out.append(Filler(lambda a=a: e.vmem(a[0], a[1]), 4, "mem", lo, hi))
            elif kind == 'f': out.append(Filler(a[0], a[1], a[2], lo, hi))
            else:
                def fn(k=k, a=a):
                    if len(a) > 3: e.need(lg=a[3])
                    if " m0," in e.L[-1]: e("s_nop 0")
                    e.vmem(a[1], a[2])
                    if k in nxt: e(self.items[nxt[k]][3][0])
                out.append(Filler(fn, 8, "mem", lo, hi))
        return out


def body(e):
    i, h, w = S_BLK, S_HEAD, S_WAVE
    go, late = kernel_head(e)
    NS = 32; BAR = 42; INF = 10**9; P = -10**6
    mq = MemQ(e)
    def S(lo, hi, *lines):
        for t in lines: mq.add('s', lo, hi, t)
    def VV(lo, hi, *lines):
        for t in lines: mq.add('f', lo, hi, lambda t=t: e(t), 4, "valu")
    V_GOFF = V_KPERM; V_TRH = V_AOFF + V_ARD
    S_GO = S_T1
    def area(gs):
        if gs < 16: return (gs % 4)*16384
        if gs < 24: return ((gs % 4)*32768 + 65536) % 131072
        return ((gs - 24)*16384 + 65536) % 131072
    def w_stage(gs, lo, step, hi):
        slot = gs % 4
        if gs < 16:
            s = gs % 8
            if s == 0: S(lo - 8, hi, f"s_lshl_b32 s{S_OFF0}, s{S_ROT}, 19", f"s_lshl_b32 s{S_T5}, s{h}, 8", f"s_add_u32 s{S_OFF0}, s{S_OFF0}, s{S_T5}")
            else: S(lo - 8, hi, f"s_add_u32 s{S_OFF0}, s{S_OFF0}, {1<<19}", f"s_and_b32 s{S_OFF0}, s{S_OFF0}, {4*MB-1}")
            for n in range(4):
                mq.add('d', lo + step*n, hi, f"s_add_u32 m0, s{S_WL}, {slot*16384 + n*4096}",
                       f"buffer_load_dwordx4 v{V_WOFF[n]}, {srd(S_WUK if gs < 8 else S_WUV)}, s{S_OFF0} offen lds", ("W", gs))
        elif gs >= 24:
            s = gs % 4; hf = (gs // 4) % 2
            S(lo - 10, hi, f"s_add_u32 s{S_OFF0}, s{S_ROTB}, {s}", f"s_and_b32 s{S_OFF0}, s{S_OFF0}, 3", f"s_lshl_b32 s{S_OFF0}, s{S_OFF0}, 20",
              f"s_lshl_b32 s{S_T5}, s{h}, 8", f"s_add_u32 s{S_OFF0}, s{S_OFF0}, s{S_T5}")
            if hf: S(lo - 10, hi, f"s_add_u32 s{S_OFF0}, s{S_OFF0}, 128")
            for n in range(4):
                if n: S(lo + step*n - 2, hi, f"s_add_u32 s{S_OFF0}, s{S_OFF0}, {32*8192}")
                mq.add('d', lo + step*n, hi, f"s_add_u32 m0, s{S_WL}, {area(gs) + n*4096}",
                       f"buffer_load_dwordx4 v{V_WOFF[0]}, {srd(S_WQ)}, s{S_OFF0} offen lds", ("W", gs))
    def g_stage(s, lo, step, hi):
        S(lo - 10, hi, f"s_add_u32 s{S_GO}, s{S_ROTB}, {s}", f"s_and_b32 s{S_GO}, s{S_GO}, 3", f"s_mul_i32 s{S_GO}, s{S_GO}, {128*3584}",
          f"s_lshl_b32 s{S_T5}, s{S_GJ}, 7", f"s_add_u32 s{S_GO}, s{S_GO}, s{S_T5}")
        for n in range(8):
            if n and n % 2 == 0: S(lo + step*n - 2, hi, f"s_add_u32 s{S_GO}, s{S_GO}, {32*3584}")
            mq.add('d', lo + step*n, hi, f"s_add_u32 m0, s{S_WL}, {area(16 + s) + n*4096}",
                   f"buffer_load_dwordx4 v{V_GOFF}, {srd((S_WG, S_WU)[n % 2])}, s{S_GO} offen lds", ("W", 16 + s))
    def a_stage(s, lo, step, hi):
        S(lo - 6, hi, f"s_add_u32 s{S_OFFA}, s{S_ROT}, {s}", f"s_and_b32 s{S_OFFA}, s{S_OFFA}, 7", f"s_lshl_b32 s{S_OFFA}, s{S_OFFA}, 7", f"s_add_u32 s{S_OFFA}, s{S_OFFA}, s{S_AROW}")
        for q in range(8):
            if q and q % 2 == 0: S(lo + step*q - 2, hi, f"s_add_u32 s{S_OFFA}, s{S_OFFA}, 16384")
            mq.add('d', lo + step*q, hi, f"s_add_u32 m0, s{S_WA}, {(s % 2)*32768 + q*1024}",
                   f"buffer_load_dwordx4 v{V_AOFF[q & 1]}, {srd(S_CKV)}, s{S_OFFA} offen lds", ("A", s), [("AF", s-2, 0), ("AF", s-2, 1)])
    def xn_stage(s, lo, step, hi):
        if s % 2 == 0: S(lo - 6, hi, f"s_add_u32 s{S_OFFA}, s{S_ROTB}, {s//2}", f"s_and_b32 s{S_OFFA}, s{S_OFFA}, 3", f"s_lshl_b32 s{S_OFFA}, s{S_OFFA}, 14", f"s_add_u32 s{S_OFFA}, s{S_OFFA}, s{S_XNB}")
        for ksub in range(2):
            if ksub or s % 2: S(lo + step*4*ksub - 2, hi, f"s_add_u32 s{S_OFFA}, s{S_OFFA}, 4096")
            for rb in range(4):
                mq.add('l', lo + step*(ksub*4 + rb), hi, f"buffer_load_dwordx4 {ar(actf(2*s+ksub, rb))}, v{V_L16}, {srd(S_WS)}, s{S_OFFA} offen offset:{rb*1024}{SC}", ("XN", 2*s+ksub))
    V_PO = V_TMP[13]
    poll_xn = Poll(e, "xn", V_PO); poll_kv = Poll(e, "kv", V_PO); poll_b = Poll(e, "b", V_TMP[15]); poll_c = Poll(e, "c", V_TMP[15])
    V_RT = V_TMP[8]; V_RTA = V_TMP[9:13]; V_PFD = V_TMP[1]
    RTL, RTS, RG = OPT.get("rtl", 17), OPT.get("rts", 20), OPT.get("rtgap", 32)
    S_RL = S_RET
    PRO = OPT.get("pro", 1); KVS = OPT.get("kvs", 29)
    w_stage(0, P, 0, INF); a_stage(0, P, 0, INF)
    n_pro0 = len(mq.items)
    S(P, INF, f"s_lshl_b32 s{S_T2}, s{w}, 8", f"s_add_u32 s{S_T2}, s{S_T2}, s2", f"s_lshr_b32 s{S_T3}, s{S_T2}, 3", f"s_add_u32 s{S_T4}, s{S_T2}, s{S_T3}", f"s_and_b32 s{S_T4}, s{S_T4}, 7",
      f"s_cmp_lt_u32 s{S_T2}, 448 ! s_cselect_b32 s{S_WD+2}, {1792*1024}, 0", f"s_cmp_lt_u32 s{S_T2}, 448 ! s_cselect_b32 s{S_BSRD+2}, {WS_END}, 0")
    VV(P, INF, f"v_lshrrev_b32 v{V_RT}, 3, v{V_LANE}", f"v_lshl_add_u32 v{V_RT}, v{V_RT}, 10, v{V_UOFF}", f"v_mul_u32_u24 v{V_GOFF}, 3584, v{V_KPERM}", f"v_add_u32 v{V_GOFF}, v{V_GOFF}, v{V_UOFF}")
    if PRO >= 1: w_stage(1, P, 0, INF)
    if PRO >= 2: a_stage(1, P, 0, INF)
    if PRO >= 3: w_stage(2, P, 0, INF)
    n_pro1 = len(mq.items)
    if PRO < 1: w_stage(1, 0, 1, 20)
    if PRO < 2: a_stage(1, 0, 1, 30)
    if PRO < 3: w_stage(2, 10, 1, 36)
    def rt_loads(E0, half):
        for q in range(2*half, 2*half + 2):
            if OPT.get("rtlin"): S(E0, INF, f"s_add_u32 s{S_RL}, s{S_RL}, 1024" if q else f"s_lshl_b32 s{S_RL}, s{S_T4}, 12 ! s_lshl_b32 s{S_T5}, s{S_T3}, 3 ! s_add_u32 s{S_RL}, s{S_RL}, s{S_T5}")
            else: S(E0, INF, f"s_add_u32 s{S_RL}, s{S_RL}, 8192" if q else f"s_lshl_b32 s{S_RL}, s{S_T4}, 7 ! s_lshl_b32 s{S_T5}, s{S_T3}, 3 ! s_add_u32 s{S_RL}, s{S_RL}, s{S_T5}")
            for t, sr in enumerate((S_WO, S_WD)):
                mq.add('d', E0 + ((4 + 14*(q % 2) + 7*t) if RTL > 5 else 36), E0 + (33 if RTL > 5 else 60), f"s_add_u32 m0, s{S_WA}, {65536 + t*4096 + q*1024}", f"buffer_load_dwordx4 v{V_L16 if OPT.get('rtlin') else V_RT}, {srd(sr)}, s{S_RL} offen lds", "RT")
    for gs in range(NS):
        b = gs * 64
        if gs + 2 < 8: a_stage(gs + 2, b + (6 if gs or PRO >= 3 else 22), (4 if gs or PRO >= 3 else 2), b + 41)
        PFS = OPT.get("pfs", {})
        if gs == 1:
            VV(b + 2, INF, f"v_lshrrev_b32 v{V_PO}, 2, v{V_LANE}", f"v_lshlrev_b32 v{V_PO}, 7, v{V_PO}", f"v_and_or_b32 v{V_PO}, v{V_LANE}, 3, v{V_PO}", f"v_lshlrev_b32 v{V_PO}, 6, v{V_PO}",
               f"v_lshlrev_b32 v{V_TMP[5]}, 6, v{V_LANE}", f"v_min_u32 v{V_TMP[4]}, 1728, v{V_TMP[5]}")
        for n_, c_ in enumerate(PFS.get(gs, "")):
            if c_ in "qv":
                S(b + 2, INF, f"s_lshl_b32 s{S_T1}, s{i}, 2", f"s_add_u32 s{S_T1}, s{S_T1}, s{w}", f"s_lshl_b32 s{S_T1}, s{S_T1}, 17", f"s_lshl_b32 s{S_T5}, s{h}, 8", f"s_add_u32 s{S_T1}, s{S_T1}, s{S_T5}")
                vo = V_PO
            else:
                S(b + 2, INF, f"s_lshl_b32 s{S_T1}, s2, 2", f"s_add_u32 s{S_T1}, s{S_T1}, s{w}", f"s_mul_i32 s{S_T1}, s{S_T1}, {4096 if c_ == 'o' else 1792}")
                vo = V_TMP[5] if c_ == "o" else V_TMP[4]
            mq.add('l', b + 8, INF, f"buffer_load_dword v{V_TMP['qgu'.find(c_) % 4]}, v{vo}, {srd(dict(q=S_WQ, v=S_WUV, g=S_WG, u=S_WU, o=S_WO, d=S_WD)[c_])}, s{S_T1} offen", "PF")
        if gs == 6: S(b + 10, INF, f"s_min_u32 s{S_WG+2}, s{S_WG+2}, s{S_HSRD+2}", f"s_mov_b32 s{S_WU+2}, s{S_WG+2}")
        GS = OPT.get("gs", (7, 8))
        if gs in GS: g_stage(GS.index(gs), b + 4, 3, b + 41)
        if gs == 8:
            t0, t1 = V_TMP[2:4]
            S(b + 4, b + 30, f"s_lshl_b32 s{S_T5}, s{S_QT}, 7", f"s_add_u32 s{S_T5}, s{S_T5}, {WS_FX}")
            VV(b + 4, b + 30, f"v_and_b32 v{V_PO}, 7, v{V_LANE}", f"v_lshlrev_b32 v{V_PO}, 2, v{V_PO}", f"v_add_u32 v{V_PO}, s{S_T5}, v{V_PO}")
            mq.add('f', b + 28, b + 36, poll_xn.issue, 4, "mem")
        if gs == 9: mq.add('f', b + 2, b + 6, poll_xn.check, 8, "valu")
        if 9 <= gs <= 16: xn_stage(gs - 9, b + 8, 4, b + 41)
        if gs == 10: VV(b + 20, INF, *[f"v_add_u32 v{V_TRH[c]}, 65536, v{V_TR[c]}" for c in range(4)])
        if gs in (RTL, RTL + 1) and not OPT.get("nortl"): rt_loads(b, gs - RTL)
        if gs == 27:
            S(b + 4, b + 30, f"s_and_b32 s{S_T5}, s2, 31", f"s_lshl_b32 s{S_T5}, s{S_T5}, 7", f"s_add_u32 s{S_T5}, s{S_T5}, {WS_FK}")
            VV(b + 4, b + 30, f"v_and_b32 v{V_PO}, 7, v{V_LANE}", f"v_lshlrev_b32 v{V_PO}, 2, v{V_PO}", f"v_add_u32 v{V_PO}, s{S_T5}, v{V_PO}")
        if gs == KVS - 1: mq.add('f', b + 26, b + 33, poll_kv.issue, 4, "mem")
        if gs + 3 < NS: w_stage(gs + 3, b + 44, 4, b + 64 + 5)
        if gs in (14, 16): g_stage(2 + (gs - 14)//2, b + 44, 3, b + 64 + 7)
    b = KVS*64
    mq.add('f', b + 4, b + 8, poll_kv.check, 8, "valu")
    for st in range(2):
        S(b, INF, f"s_mov_b32 s{S_ASRD+2}, {WS_END}" if st else f"s_cmp_lt_u32 s{w}, 2 ! s_cselect_b32 s{S_ASRD+2}, {WS_END}, 0")
        for j in range(8):
            if j == 4: S(b, INF, f"s_add_u32 s{S_T4}, s{S_SRCA}, 4096")
            mq.add('d', b + 8 + st*64 + 6*j, INF, f"s_add_u32 m0, s{S_LA}, {st*32768 + (j//4)*4096}",
                   f"buffer_load_dwordx4 v{V_L16}, {srd(S_ASRD)}, s{S_T4 if j >= 4 else S_SRCA} offen offset:{(j%4)*1024}{SC} lds", ("KV", st))
        if st == 0: S(b, INF, f"s_cmp_ge_u32 s{w}, 2 ! s_cselect_b32 s{S_T4}, 0, 2", f"s_lshl_b32 s{S_T4}, s{S_T4}, 13", f"s_add_u32 s{S_SRCA}, s{S_SRCA}, s{S_T4}")
        else: S(b, INF, f"s_add_u32 s{S_SRCA}, s{S_SRCA}, 16384")
    mfill = mq.fillers()
    e(mq.first_m0)
    started = False
    for f in mfill[:n_pro0]:
        if f.cost == 8 and not started: go(); started = True
        f.fn()
        if f.cost == 8: e("s_nop 0")
    late()
    if OPT.get("tlb", 0):
        a, b, c = S_N, S_EVT, S_TRANS
        e(f"""s_lshr_b32 s{a}, s2, 3
        s_and_b32 s{b}, s{a}, 7
        s_add_u32 s{b}, s{b}, 2
        s_cmp_eq_u32 s{w}, 2
        s_cselect_b32 s{b}, 10, s{b}
        s_and_b32 s{c}, s{w}, 1
        s_lshr_b32 s{S_T0}, s{w}, 1
        s_cmp_eq_u32 s{c}, s{S_T0}
        s_cselect_b32 s{b}, 12, s{b}
        s_lshl_b32 s{S_T1}, s{b}, 3
        s_load_dwordx2 s[{S_ASRD}:{S_ASRD+1}], s[0:1], s{S_T1}
        s_cmp_lt_u32 s{b}, 6
        s_mov_b32 s{S_ASRD+2}, {1792*1024}
        s_cselect_b32 s{S_ASRD+2}, {4*MB}, s{S_ASRD+2}
        s_lshr_b32 s{S_T1}, s{a}, 3
        s_lshl_b32 s{a}, s{a}, 1
        s_add_u32 s{a}, s{a}, s{c}
        s_cmp_eq_u32 s{b}, 12
        s_cselect_b32 s{S_ASRD+2}, {WS_END}, s{S_ASRD+2}
        s_cselect_b32 s{a}, s{a}, s{S_T1}
        s_lshl_b32 s{a}, s{a}, 20
        v_mov_b32 v{V_TMP[5]}, s{a}
        s_waitcnt lgkmcnt(0)""")
        e.vmem(f"buffer_load_dword v{V_TMP[1]}, v{V_TMP[5]}, {srd(S_ASRD)}, 0 offen sc1", "PF")
        e(f"s_mov_b64 s[{S_ASRD}:{S_ASRD+1}], s[{S_WS}:{S_WS+1}]\ns_mov_b32 s{S_ASRD+2}, {WS_END}")
    LNG = OPT.get("lng", 0)
    LNB = 131072 if LNG else 49152
    t0, t1, t2 = V_TMP[2:5]
    def ln_tail():
        e(f"""s_lshl_b32 s{S_T0}, s{w}, 5
    s_add_u32 s{S_T0}, s{S_T0}, {LNB}
    v_lshlrev_b32 v{t0}, 7, v{V_LANE}
    v_add_u32 v{t0}, s{S_T0}, v{t0}""")
        e.ds(f"ds_write_b128 v{t0}, v[64:67]", "LNW"); e.ds(f"ds_write_b128 v{t0}, v[68:71] offset:16", "LNW")
        e(f"""s_lshl_b32 s{S_T0}, s{w}, 11
    s_add_u32 s{S_T0}, s{S_T0}, {LNB}
    v_add_u32 v{t0}, s{S_T0}, v{V_L16}
    v_lshrrev_b32 v{t1}, 5, v{V_LANE}
    v_lshlrev_b32 v{t1}, 12, v{t1}
    v_bfe_u32 v{t2}, v{V_LANE}, 3, 2
    v_lshl_add_u32 v{t1}, v{t2}, 8, v{t1}
    v_and_b32 v{t2}, 7, v{V_LANE}
    v_lshl_add_u32 v{t1}, v{t2}, 4, v{t1}
    s_lshr_b32 s{S_T0}, s2, 3
    s_lshl_b32 s{S_T0}, s{S_T0}, 16
    s_bfe_u32 s{S_T1}, s2, 0x20001
    s_lshl_b32 s{S_T1}, s{S_T1}, 10
    s_add_u32 s{S_T0}, s{S_T0}, s{S_T1}
    s_and_b32 s{S_T1}, s2, 1
    s_lshl_b32 s{S_T1}, s{S_T1}, 7
    s_add_u32 s{S_T0}, s{S_T0}, s{S_T1}
    s_lshl_b32 s{S_T1}, s{w}, 14
    s_add_u32 s{S_T0}, s{S_T0}, s{S_T1}
    s_add_u32 s{S_T1}, s{S_T0}, 8192""")
    if LNG:
        for f in mfill[n_pro0:n_pro1]: f.fn()
    else:
        e.need(vm=["X"])
        ln = layernorm_lines()
        rest = mfill[n_pro0:n_pro1]
        per = len(ln) // (sum(f.cost == 8 for f in rest) + 1) + 1
        while ln or rest:
            for t in ln[:per]: e(t)
            ln = ln[per:]
            while rest:
                f = rest.pop(0); f.fn()
                if f.cost == 8: break
        ln_tail()
    mfill = mfill[n_pro1:]
    P0 = (LNG - 1)*64 + 44 if LNG else 0
    misc = []
    misc.append(Filler(lambda: (e.ds(f"ds_read_b128 v[64:67], v{t0}", "LN"), e.ds(f"ds_read_b128 v[68:71], v{t0} offset:1024", "LN")), 8, "mem", P0 + 2, P0 + 30))
    misc.append(Filler(lambda: (e.need(lg=["LN"]), e.vmem(f"buffer_store_dwordx4 v[64:67], v{t1}, {srd(S_WS)}, s{S_T0} offen{SC}", "XNST")), 8, "mem", P0 + 14, P0 + 40))
    misc.append(Filler(lambda: e.vmem(f"buffer_store_dwordx4 v[68:71], v{t1}, {srd(S_WS)}, s{S_T1} offen{SC}", "XNST"), 8, "mem", P0 + 16, P0 + 41))
    for t in scalar_setup2(e): misc.append(Filler(lambda t=t: e(t.replace(" ! ", "\n")), 4, "salu", 44, 150 + P0))
    S_RA, S_RB = S_N, S_EVT
    rts = [Filler(lambda: e(f"s_add_u32 s{S_RA}, s{S_WA}, 65536"), 4, "salu", 150 + P0)]
    for c in range(4): rts.append(Filler(lambda c=c: e(f"v_add_u32 v{V_RTA[c]}, s{S_RA}, v{V_TR[c]}"), 4, "valu", 150 + P0))
    for t in (f"s_lshl_b32 s{S_RA}, s{S_T4}, 19", f"s_lshl_b32 s{S_T3}, s{S_T3}, 12", f"s_add_u32 s{S_RA}, s{S_RA}, s{S_T3}", f"s_add_u32 s{S_RA}, s{S_RA}, {WS_WOF}",
              f"s_mul_i32 s{S_RB}, s{S_T4}, {56*4096}", f"s_add_u32 s{S_RB}, s{S_RB}, s{S_T3}", f"s_add_u32 s{S_RB}, s{S_RB}, {WS_WDF}"):
        rts.append(Filler(lambda t=t: e(t), 4, "salu", 150 + P0, 185 + P0))
    SIGKV = OPT.get("sigkv", 27)
    for n in range(8):
        t, c = n // 4, n % 4
        d0 = V_PK + (n % 2)*4
        def fr(t=t, c=c, d0=d0, n=n):
            e.need(vm=["RT"])
            for rr in range(2): e.ds(f"ds_read_b64_tr_b16 v[{d0+rr*2}:{d0+rr*2+1}], v{V_RTA[c]} offset:{t*4096 + rr*2048}", ("RTF", n))
        def fs(t=t, c=c, d0=d0, n=n):
            e.need(lg=[("RTF", n)])
            e.vmem(f"buffer_store_dwordx4 {vr(d0)}, v{V_L16}, {srd((S_WS, S_BSRD)[t])}, s{(S_RA, S_RB)[t]} offen offset:{c*1024}{SC}", "RTST")
        if not OPT.get("norts"): rts.append(Filler(fr, 8, "mem", RTS*64 + 40 + RG*n)); rts.append(Filler(fs, 4, "mem", RTS*64 + 40 + RG*n + 12, 30*64 + 30 if POLLALL else (SIGKV - 1)*64))
    mfmas = []; rd = []
    sig_at = {3 + LNG: (["XNST"], sig_lin(WS_FX)), SIGKV: (["KST", "VST"] + ([] if POLLALL else ["RTST"]), SIG_KV)}
    def stage_gate(gs):
        def fn():
            tags = [("W", gs)]
            if gs < 8: tags.append(("A", gs))
            if gs in sig_at: tags += sig_at[gs][0]
            if gs == LNG:
                e("s_nop 7")
                for t in layernorm_lines(): e(t)
                ln_tail()
            f3 = OPT.get("fine3")
            if f3 is not None and 0 <= gs - f3 < 6: stamp(e, 14 + 3*(gs - f3))
            e.need(vm=tags, lg=["LNW"])
            if f3 is not None and 0 <= gs - f3 < 6: stamp(e, 15 + 3*(gs - f3))
            e("s_barrier")
            if f3 is not None and 0 <= gs - f3 < 6: stamp(e, 16 + 3*(gs - f3))
            if gs in sig_at: signal(e, sig_at[gs][1], V_TMP[6])
            if gs % 8 == 0: stamp(e, 2 + gs // 8)
            if OPT.get("fine") is not None and 0 <= gs - OPT["fine"] < 18: stamp(e, 14 + gs - OPT["fine"])
        return fn
    def actread(s, ksub, rb):
        return lambda: e.ds(f"ds_read_b128 {ar(actf(2*s+ksub, rb))}, v{V_ARD[ksub]} offset:{(s % 2)*32768 + rb*2048}", ("AF", s, ksub))
    for gs in range(NS):
        base = gs * 64
        if gs > 0: rd.append(Filler(stage_gate(gs), 8, "mem", base - 64 + BAR, base - 64 + BAR + 1))
        pend = [Filler(actread(gs, ksub, rb), 4, "mem", base - 64 + BAR, base - 3) for rb in range(4) for ksub in range(2)] if gs < 8 else []
        CH = 2 if gs < 16 else 4
        for g in range(16 // CH):
            g0 = base + g*4*CH
            db = g if gs < 16 else 4*((gs // 4) % 2) + g
            first = gs % (16 // CH) == 0
            for k in range(CH):
                slot = (g*CH + k) % 8
                if gs < 16: c_, off = g % 4, (k*2 + g // 4)*4096
                elif gs < 24: c_, off = 2*((gs // 4) % 2) + g % 2, (k*2 + g // 2)*4096
                else: c_, off = g, k*4096
                off += area(gs)
                for rr in range(2):
                    ad = V_TRH[c_] if off >= 65536 else V_TR[c_]
                    d = V_WF + slot*4 + rr*2
                    n_ = k*2 + rr
                    lo = (g0 - 22 + 2*n_) if CH == 2 else (g0 - 16 + n_)
                    if gs == 16 and g == 1: lo = max(lo, base)
                    rd.append(Filler(lambda d=d, ad=ad, o=(off + rr*2048) % 65536, t=(gs, g): e.ds(f"ds_read_b64_tr_b16 v[{d}:{d+1}], v{ad} offset:{o}", ("F", t)),
                                     4, "mem", max(lo, base - 64 + BAR), g0 - 3))
                    for _ in range(1 if g else 2):
                        if pend: rd.append(pend.pop(0))
            for rb in range(4):
                for kk in range(CH):
                    k = kk if rb % 2 == 0 else CH - 1 - kk
                    kslot = CH*(gs % (16 // CH)) + k
                    def needs(gs=gs, g=g, CH=CH):
                        return e.need(lg=[("F", (gs, g))] + ([("AF", gs, 0), ("AF", gs, 1)] if gs < 8 else []),
                                      vm=[("XN", 4*(gs % 4) + q) for q in range(4)] if 16 <= gs < 20 else ())
                    def m(gs=gs, slot=(g*CH + k) % 8, kslot=kslot, db=db, rb=rb, z=(first and kk == 0), needs=needs):
                        needs()
                        wv = vr(V_WF + slot*4); a = ar(actf(kslot, rb)); d = vr(acc(db, rb))
                        e(mf(d, a, wv, "0" if z else d) if 8 <= gs < 16 else mf(d, wv, a, "0" if z else d))
                    m.pre = needs
                    mfmas.append(m)
    def cvts(base, dst, dl):
        out = []
        for db in range(8):
            for rb in range(4):
                for hh in range(2):
                    d = dst(db, rb, hh); s = acc(db, rb) + 2*hh
                    out.append(Filler(lambda d=d, s=s: e(f"v_cvt_pk_bf16_f32 v{d}, v{s}, v{s+1}"), 4, "valu", base + 448 + 8*db + 2*rb + 1 + 8, dl(db, rb)))
        return out
    cv = cvts(0, lambda db, rb, hh: V_PK + (rb*4 + db//2)*4 + (db & 1)*2 + hh, lambda db, rb: min(512 + 8*db + 2*rb, 512 + 30))
    VH = OPT.get("vh", 1150)
    cvv = cvts(512, lambda db, rb, hh: V_PK + ((db//4)*8 + (rb//2)*4 + db % 4)*4 + (rb & 1)*2 + hh, lambda db, rb: min(1024 + 16*db + 4*rb, 1024 + 16) if db < 4 else min(VH + 39, 1278))
    for f in cvv[32:]: f.earliest = VH
    cv += cvv
    st = []
    G2 = OPT.get("sgap", 34)
    NKV = OPT.get("nkv", 14)
    sched = [(WS_K + n*1024, n, "KST", 512 + 36 + (444 // NKV)*n, 512 + 454 if n < 8 else 1024) for n in range(NKV)]
    sched += [(WS_K + n*1024, n, "KST", 1024 + 4 + G2*(n - NKV), VH - 2) for n in range(NKV, 16)]
    sched += [(WS_V + ((n % 8)//4)*8192 + ((n // 8)*4 + n % 4)*1024, n, "VST", max(1024 + 20 + G2*(n + 16 - NKV), VH + 40 if n >= 8 else 0), (SIGKV - 1)*64 + 20) for n in range(16)]
    for off, n, tag, lo, dl in sched:
        if n % 4 == 0: st.append(Filler(lambda off=off: e(f"s_add_u32 s{S_T2}, s{S_KVST}, {off}"), 4, "salu", lo - 4))
        st.append(Filler(lambda n=n, tag=tag: e.vmem(f"buffer_store_dwordx4 {vr(V_PK + n*4)}, v{V_L16}, {srd(S_WS)}, s{S_T2} offen offset:{(n%4)*1024}{SC}", tag), 4, "mem", lo, dl))
    C0 = -2.0 * math.sqrt(2.0 / math.pi) * math.log2(math.e)
    V_C1 = V_TMP[4]; V_QW = V_TMP[5]
    ge = [Filler(lambda: e(f"v_mov_b32 v{V_C1}, {fb(C0*0.044715):#x}"), 4, "valu", 1100)]
    for hf in range(2):
        lo = 1024 + 256*(hf + 1) - 16 + 11; dl = 1024 + 256*(hf + 2)
        def RW(txt):
            i_ = chk.parse(txt); return (set(i_.r), set(i_.w))
        def V(txt, cost=4): ge.append(Filler(lambda: e(txt), cost, "valu", lo, dl, RW(txt) if OPT.get("ooo", 1) else None))
        for t in [f"s_lshl_b32 s{S_T0}, s{S_GJ}, 13", f"s_add_u32 s{S_T0}, s{S_T0}, {hf*4096}", f"s_add_u32 s{S_T0}, s{S_T0}, s{S_HST}"]:
            ge.append(Filler(lambda t=t: e(t), 4, "salu", lo, dl))
        for rb in range(4):
            lo = 1024 + 256*(hf + 1) - 16 + 4*rb + 11
            for c in range(2):
                G, U = acc(4*hf + c, rb), acc(4*hf + 2 + c, rb); T = V_TMP[0:4]
                for r in range(4): V(f"v_mul_f32 v{T[r]}, v{G+r}, v{G+r}")
                for r in range(4): V(f"v_mul_f32 v{U+r}, v{G+r}, v{U+r}")
                for r in range(4): V(f"v_fmaak_f32 v{T[r]}, v{T[r]}, v{V_C1}, {fb(C0):#x}")
                for r in range(4): V(f"v_mul_f32 v{G+r}, v{G+r}, v{T[r]}")
                for r in range(4): V(f"v_exp_f32 v{G+r}, v{G+r}", 8)
                for r in range(4): V(f"v_add_f32 v{G+r}, 1.0, v{G+r}")
                for r in range(4): V(f"v_rcp_f32 v{G+r}, v{G+r}", 8)
                for r in range(4): V(f"v_mul_f32 v{U+r}, v{U+r}, v{G+r}")
                D = acc(4*hf, rb) + 2*c
                V(f"v_cvt_pk_bf16_f32 v{D}, v{U}, v{U+1}"); V(f"v_cvt_pk_bf16_f32 v{D+1}, v{U+2}, v{U+3}")
            st_ = f"buffer_store_dwordx4 {vr(acc(4*hf, rb))}, v{V_L16}, {srd(S_HSRD)}, s{S_T0} offen offset:{rb*1024}{SC}"
            ge.append(Filler(lambda st_=st_: e.vmem(st_, "HST"), 4, "mem", lo, dl, RW(st_) if OPT.get("ooo", 1) else None))
    ge.append(Filler(lambda: e(f"s_lshl_b32 s{S_T0}, s{w}, 14"), 4, "salu", 1792))
    ge.append(Filler(lambda: e(f"s_add_u32 s{S_T0}, s{S_T0}, 131072"), 4, "salu", 1792))
    ge.append(Filler(lambda: e(f"v_add_u32 v{V_QW}, s{S_T0}, v{V_L16}"), 4, "valu", 1792))
    zero_hi = []
    for hf in range(2):
        for dg in (2*hf, 2*hf + 1):
            for qb in range(4):
                lo = 1536 + 256*hf + 192 + 32*(dg % 2) + 16 + 4*qb + 3 + 8
                def V(txt, cost=4, kind="valu", lo=lo): ge.append(Filler(lambda: e(txt), cost, kind, lo))
                o0, o1 = acc(2*dg, qb), acc(2*dg+1, qb)
                for r in range(4): V(f"v_mul_f32 v{o0+r}, {QSCALE:#x}, v{o0+r}"); V(f"v_mul_f32 v{o1+r}, {QSCALE:#x}, v{o1+r}")
                for d, s_ in ((o0, o0), (o0+1, o0+2), (o0+2, o1), (o0+3, o1+2)): V(f"v_cvt_pk_bf16_f32 v{d}, v{s_}, v{s_+1}")
                for r in range(4):
                    if hf: zero_hi.append(f"v_mov_b32 v{o1+r}, 0")
                    else: V(f"v_mov_b32 v{o1+r}, 0")
                ge.append(Filler(lambda o0=o0, qb=qb, dg=dg: e.ds(f"ds_write_b128 v{V_QW}, {vr(o0)} offset:{(qb*4+dg)*1024}", "QW"), 4, "mem", lo))
        for dg in (2*hf, 2*hf + 1):
            for qb in range(4):
                o0 = acc(2*dg, qb)
                for r in range(4): ge.append(Filler(lambda r=r, o0=o0, qb=qb, dg=dg: e(f"v_accvgpr_write_b32 a{A_Q + (qb*4+dg)*4 + r}, v{o0+r}"), 4, "valu", 29*64 + 4))
        ge.append(Filler(lambda: e.need(lg=["QW"]), 4, "salu", 29*64 + 4))
        for dg in (2*hf, 2*hf + 1):
            for qb in range(4):
                for r in range(4):
                    if hf: zero_hi.append(f"v_mov_b32 v{acc(2*dg, qb) + r}, 0")
                    else: ge.append(Filler(lambda r=r, qb=qb, dg=dg: e(f"v_mov_b32 v{acc(2*dg, qb) + r}, 0"), 4, "valu", 29*64 + 4))
        if hf == 0:
            for r in range(64): ge.append(Filler(lambda r=r: e(f"v_accvgpr_write_b32 a{A_DACC + r}, 0"), 4, "valu", 31*64 + 4))
    stamp(e, 1)
    e.need(vm=[("W", 0), ("A", 0)]); e.wait_all(vm=False); e("s_barrier")
    e(f"s_mul_i32 s{S_TAG}, s{S_TAG}, 0x9e3779b1\ns_add_u32 s{S_TAG}, s{S_TAG}, 0x7f4a7c15")
    stamp(e, 2)
    k = 0
    while rd[k].earliest < 0: rd[k].fn(); k += 1
    rest = e.schedule(mfmas, [rd[k:], mfill, cv, misc, rts, st, att_setup_fillers(e, poll_b), ge], flush=False)
    e("s_nop 7")
    e.c(f"left over fillers: {[len(r) for r in rest]}")
    for r in rest:
        for f in r: f.fn()
    stamp(e, 6)
    attention(e, poll_b, poll_c, zero_hi)
    phase_d(e, poll_c)
    if OPT.get("padto"):
        if "padb" in OPT: e(f"s_lshr_b32 s6, s2, 3\ns_cmp_lg_u32 s6, {OPT['padb']}\ns_cbranch_scc1 L_end")
        if "padx" in OPT: e(f"s_and_b32 s6, s2, 7\ns_cmp_lg_u32 s6, {OPT['padx']}\ns_cbranch_scc1 L_end")
        e(f"s_nop 1\nv_readlane_b32 s6, v{V_STAMP}, 0\ns_add_u32 s6, s6, {OPT['padto']*100}")
        if OPT.get("padph"):
            e(f"v_readlane_b32 s4, v{V_STAMP}, {OPT['padph'][0]}\nv_readlane_b32 s5, v{V_STAMP}, {OPT['padph'][1]}\ns_sub_u32 s5, s5, s4\ns_add_u32 s6, s6, s5")
        e.label("L_pad")
        e("s_memrealtime s[4:5]\ns_waitcnt lgkmcnt(0)\ns_sub_u32 s7, s4, s6\ns_cmp_lt_i32 s7, 0\ns_cbranch_scc1 L_pad")
    else: stamp_flush(e)
    e("s_branch L_end")
    e.cold()
    for p in (poll_xn, poll_kv, poll_b, poll_c): p.spin()
    slow_path(e)
    e.label("L_end")
    e("s_endpgm")

A_Z = 212
S_FIRST = 20
def att_dma(e, which, j):
    if " m0," in e.L[-1]: e("s_nop 0")
    sr, src, ld = ((S_ASRD, S_SRCA, S_LA), (S_BSRD, S_SRCB, S_LB))[which]
    e.vmem(f"buffer_load_dwordx4 v{V_L16}, {srd(sr)}, s{S_T4 if j >= 4 else src} offen offset:{(j%4)*1024}{OPT.get('kvsc', SC)} lds", "KV")
    if which == 1 and OPT.get("boob"): ld = S_FIRST + 3
    if j == 3: e(f"s_add_u32 m0, s{ld}, 4096"); e(f"s_add_u32 s{S_T4}, s{src}, 4096")
    if j == 7:
        if which == 0: e(f"s_mov_b32 m0, s{S_FIRST + 3 if OPT.get('boob') else S_LB}\ns_add_u32 s{S_SRCA}, s{S_SRCA}, 16384")
        else: e(f"s_sub_u32 s{S_VMAXB}, s{S_VMAXB}, 16384\ns_min_u32 s{S_SRCB}, s{S_VMAXB}, s{S_VCLB}")
def d_load(e, j):
    so = S_DW if j < 4 else S_DH
    e.vmem(f"buffer_load_dwordx4 {ar(A_DOP + j*4)}, v{V_L16}, {srd(S_DSRD)}, s{so} offen offset:{(j%4)*1024}{OPT.get('kvsc', SC)}", "KV")
    if j % 4 == 3: e(f"s_add_u32 s{so}, s{so}, s{S_DINC}")
class M:
    def __init__(self, txt, tag=None): self.txt, self.tag = txt, tag
def d_mfmas():
    return [M(mf(ar(A_DACC + (mb*4+qb)*4), ar(A_DOP + mb*4), ar(A_DOP + 16 + qb*4), ar(A_DACC + (mb*4+qb)*4))) for mb in range(4) for qb in (range(4) if mb % 2 == 0 else range(3, -1, -1))]
def sm_half(e, buf, kb2):
    ex = []; cv = []
    for p in range(8):
        qb, hh = p // 2, p % 2
        r = Sreg(buf, kb2, qb) + 2*hh
        if OPT.get("noexp"): ex += [NOP, NOP]
        else: ex.append(lambda r=r: e(f"v_exp_f32 v{r}, v{r}")); ex.append(lambda r=r: e(f"v_exp_f32 v{r+1}, v{r+1}"))
        d = Preg(buf, qb) + 2*kb2 + hh
        cv.append(lambda r=r, d=d: e(f"v_perm_b32 v{d}, v{r+1}, v{r}, s{S_WUV}" if OPT.get("perm") else f"v_cvt_pk_bf16_f32 v{d}, v{r}, v{r+1}"))
    return ex, cv
def qk_mfmas(buf, half, tag="FR"):
    out = []
    for kb2 in range(2):
        kb = half*2 + kb2
        for qb in range(4):
            for kk in range(4):
                dg = kk if qb % 2 == 0 else 3 - kk
                d = vr(Sreg(buf, kb2, qb))
                c = d if kk else ("0" if kb < qb else vr(V_TD) if kb == qb else vr(V_TN))
                out.append(M(mf(d, ar(A_FB[0] + (kb2*4+dg)*4), ar(A_Q + (qb*4+dg)*4), c), (tag, 0, kb2*4)))
    return out
def pv_mfmas(buf, zero=False, order=range(8)):
    o = []
    for n_, db in enumerate(order):
        for qb in (range(4) if n_ % 2 == 0 else range(3, -1, -1)):
            d = vr(Oreg(db, qb))
            o.append(M(mf(d, ar(A_Z), ar(A_Z), "0")) if zero else M(mf(d, ar(A_FB[1] + db*4), vr(Preg(buf, qb)), d), ("FR", 1, (db // 4)*4)))
    s_ = []
    for qb in range(4):
        d = ar(A_L + qb*4)
        s_.append(M(mf(d, ar(A_Z), ar(A_Z), "0")) if zero else M(mf(d, ar(A_ONE), vr(Preg(buf, qb)), d)))
    if OPT.get("nosum"): s_ = [M("s_nop 0")]*4
    return o, s_
def frag_reads(e, fb_, off, order=range(8), tag="FR"):
    return [lambda j=j: e.ds(f"ds_read_b128 {ar(A_FB[fb_] + j*4)}, v{V_RD} offset:{off + j*1024}", (tag, fb_, (j // 4)*4)) for j in order]
NOP = lambda: None
def run(e, mfmas, gaps, nxt=None):
    if mfmas[0].tag: e.need(lg=[mfmas[0].tag])
    for i, m in enumerate(mfmas):
        if m.txt: e(m.txt)
        t = mfmas[i+1].tag if i + 1 < len(mfmas) else nxt
        if t: e.need(lg=[t])
        for f in gaps.get(i, ()): f()
def section(e, mfmas, reads, ex, cv, carry, g2, nxt=None, tail=None):
    gaps = {}
    for q in range(8):
        gaps[4*q] = [reads[q], (carry or NOP) if q == 0 else cv[q-1]]
        gaps[4*q+1] = [ex[2*q]]; gaps[4*q+2] = [g2[q]]; gaps[4*q+3] = [ex[2*q+1]]
    if len(mfmas) > 32: gaps[32] = [cv[7]]
    for k, f in (tail or {}).items(): gaps.setdefault(k, []).insert(0, f)
    run(e, mfmas, gaps, nxt)
    return cv[7] if len(mfmas) == 32 else None
S_LIM = S_WUV + 1
PREP = [f"s_cmp_le_u32 s{S_N}, 15\ns_cselect_b32 s{S_T0}, 32768, s{S_T1}", f"s_cmp_le_u32 s{S_N}, s{S_LIM}\ns_cselect_b32 s{S_ASRD+2}, {WS_END}, 0", f"s_add_u32 s{S_T3}, s{S_N}, 2\ns_xor_b32 s{S_LB}, s{S_LB}, s{S_T0}",
        f"s_cmp_ge_u32 s{S_T3}, s{S_N0}\ns_cselect_b32 s{S_BSRD+2}, s{S_ASRD+2}, 0" + (f"\ns_cselect_b32 s{S_FIRST+3}, s{S_LB}, s{S_T1}" if OPT.get("boob") else ""), f"s_xor_b32 s{S_LA}, s{S_LA}, s{S_T0}\ns_mov_b32 m0, s{S_LA}"]
PREP0 = f"s_mov_b32 s{S_T1}, 0x30000"
LR = V_TMP[10:14]
def check_lines(ret, qt):
    return [f"v_min3_f32 v{V_LIM+1}, v{LR[0]}, v{LR[1]}, v{LR[2]}\nv_add_f32 v{V_LIM}, v{LR[0]}, v{LR[1]}",
            f"v_add_f32 v{V_LIM}, v{V_LIM}, v{LR[2]}\nv_min_f32 v{V_LIM+1}, v{V_LIM+1}, v{LR[3]}",
            f"s_mov_b32 s{S_RET}, {ret}\nv_add_f32 v{V_LIM}, v{V_LIM}, v{LR[3]}\nv_cmp_nle_f32 vcc, 0x17800000, v{V_LIM+1}",
            f"s_mov_b64 s[{S_FL}:{S_FL+1}], vcc\ns_mov_b32 s{S_CNT}, s{qt}\nv_cmp_nge_f32 vcc, {OPT.get('lhi', 0x67800000):#x}, v{V_LIM}",
            f"s_or_b64 vcc, vcc, s[{S_FL}:{S_FL+1}]\n" + ("s_nop 0" if OPT.get("noslow") else "s_cbranch_vccnz L_slow")]
def bsel(r):
    return (f"v[{r & ~1}:{(r & ~1) + 1}]", "op_sel:[0,1] op_sel_hi:[1,1]" if r & 1 else "op_sel_hi:[1,0]")
def norm_items(e, dbs, sbase, pk=False):
    it = []
    for dg in sorted({d // 2 for d in dbs}):
        it.append((lambda dg=dg: e(f"s_add_u32 s{S_T0}, s{sbase}, {dg*4096}"), 0, 2*dg+1))
        for qb in range(4):
            o0, o1 = Oreg(2*dg, qb), Oreg(2*dg+1, qb)
            for r in range(4):
                for o in (o0, o1):
                    if not pk: it.append((lambda o=o, r=r, qb=qb: e(f"v_mul_f32 v{o+r}, v{o+r}, v{LR[qb]}"), 4, 2*dg+1))
                    elif r % 2 == 0: it.append((lambda o=o, r=r, qb=qb: e(f"v_pk_mul_f32 {vr(o+r, 2)}, {vr(o+r, 2)}, {bsel(LR[qb])[0]} {bsel(LR[qb])[1]}"), 4, 2*dg+1))
            for d, s_ in ((o0, o0), (o0+1, o0+2), (o0+2, o1), (o0+3, o1+2)): it.append((lambda d=d, s_=s_: e(f"v_cvt_pk_bf16_f32 v{d}, v{s_}, v{s_+1}"), 4, 2*dg+1))
            it.append((lambda o0=o0, qb=qb: e.vmem(f"buffer_store_dwordx4 {vr(o0)}, v{V_L16}, {srd(S_WS)}, s{S_T0} offen offset:{qb*1024}{SC}", "CST"), 8, 2*dg+1))
    return it
def emit_items(items, extra=()):
    extra = list(extra)
    for f, c, _ in items:
        f()
        if c == 8:
            for _ in range(2):
                if extra: extra.pop(0)()
    for f in extra: f()
def sm_tail(e, order=range(8)):
    ex, cv = sm_half(e, 1, 1)
    for f in frag_reads(e, 1, 16384, order): f()
    for p in range(8):
        ex[2*p](); ex[2*p+1]()
        if p: cv[p-1]()
    e("s_nop 0"); cv[7]()

S_WOo, S_AC = S_OFF0, S_OFFA
WSLOT = [14, 15, 4, 5, 13, 12, 6, 7, 0, 1, 2, 3, -2, -3, 8, 9, 10, 11]
NWS = len(WSLOT)
def adv(so, base):
    if not OPT.get("drot", 0): return f"s_add_u32 s{so}, s{so}, 4096"
    return f"s_add_u32 s{so}, s{so}, 4096\ns_and_b32 s{so}, s{so}, 0x1ffff\ns_or_b32 s{so}, s{so}, s{base}"
def wreg(n, q):
    s_ = WSLOT[n % NWS]
    return ar(s_*16 + q*4) if s_ >= 0 else vr(-s_*16 + q*4)
def wo_load(e, n, q):
    e.vmem(f"buffer_load_dwordx4 {wreg(n, q)}, v{V_L16}, {srd(S_WS)}, s{S_WOo} offen offset:{q*1024}{SC}", ("WO", n))
    if q == 3: e(adv(S_WOo, S_AROW))

V_TRI = (9, 10, 11, 30)
V_SIG, V_TAGV, V_QA, V_ONE = 12, 13, 14, 15
S_D1, S_D2, S_M = S_FIRST + 2, S_FIRST, S_FIRST + 1
def att_setup_fillers(e, poll_b):
    i, h, w = S_BLK, S_HEAD, S_WAVE
    out = []
    def add(lo, hi, txt):
        for t in txt.split("\n"):
            t = t.strip()
            out.append(Filler(lambda t=t: e(t.replace(" ! ", "\n")), 4, "salu" if t.startswith("s_") else "valu", lo, hi))
    a, b, c, d = V_TRI; pv = poll_b.voff; t = S_M
    lo, hi = 17*64 + 10, 20*64
    add(lo, hi, f"""v_lshrrev_b32 v{d}, 4, v{V_LANE}
    v_lshlrev_b32 v{d}, 2, v{d}
    v_and_b32 v{a}, 15, v{V_LANE}
    v_sub_u32 v{a}, v{a}, v{d}
    v_subrev_u32 v{b}, 1, v{a}
    v_subrev_u32 v{c}, 2, v{a}
    v_subrev_u32 v{d}, 3, v{a}""")
    for r in V_TRI: add(lo, hi, f"v_ashrrev_i32 v{r}, 31, v{r}\nv_and_b32 v{r}, {NEGINF:#x}, v{r}")
    add(lo, hi, f"""s_lshr_b32 s{t}, s{h}, 1
    s_sub_u32 s{S_D1}, 15, s{t}
    s_min_u32 s{t}, s{t}, s{S_D1}
    s_lshl_b32 s{t}, s{t}, 9
    s_add_u32 s{t}, s{t}, {WS_FB}
    v_bfe_u32 v{pv}, v{V_LANE}, 3, 2
    v_lshlrev_b32 v{pv}, 5, v{pv}
    v_and_or_b32 v{pv}, v{V_LANE}, 7, v{pv}
    v_lshlrev_b32 v{pv}, 2, v{pv}
    v_add_u32 v{pv}, s{t}, v{pv}
    s_lshl_b32 s{S_TRANS}, s{i}, 1
    s_add_u32 s{S_TRANS}, s{S_TRANS}, s{w}
    s_sub_u32 s{S_TRANS}, s{S_TRANS}, 1
    s_sub_u32 s{S_D1}, s{S_TRANS}, 1
    s_add_u32 s{S_D2}, s{S_TRANS}, 1
    s_cmp_eq_u32 s{i}, 7 ! s_cselect_b32 s{t}, 16, 99
    s_cmp_eq_u32 s{w}, 0 ! s_cselect_b32 s{t}, s{t}, 99
    s_cmp_lt_u32 s{w}, 2 ! s_cselect_b32 s{S_D1}, s{t}, s{S_D1}
    s_cmp_lt_u32 s{w}, 2 ! s_cselect_b32 s{S_D2}, 99, s{S_D2}
    s_cmp_lt_u32 s{w}, 2 ! s_cselect_b32 s{S_TRANS}, 17, s{S_TRANS}
    s_sub_u32 s{S_VMAXB}, s{S_VMAXB}, 16384
    s_min_u32 s{S_SRCB}, s{S_VMAXB}, s{S_VCLB}
    s_lshr_b32 s{t}, s2, 3
    s_lshl_b32 s{t}, s{t}, 5
    s_and_b32 s{S_FIRST+3}, s2, 7
    s_add_u32 s{t}, s{t}, s{S_FIRST+3}
    s_lshl_b32 s{t}, s{t}, 2
    s_add_u32 s{t}, s{t}, {WS_FB}
    s_sub_u32 s{S_FIRST+3}, 3, s{w}
    s_lshl_b32 s{S_FIRST+3}, s{S_FIRST+3}, 14
    s_add_u32 s{S_FIRST+3}, s{S_FIRST+3}, 131072""")
    lo, hi = 28*64, 31*64
    add(lo, hi, f"""v_mov_b32 v{V_TAGV}, s{S_TAG}
    v_add_u32 v{V_SIG}, s{S_WL}, v{V_LANE}
    v_min_u32 v{V_SIG}, 1, v{V_SIG}
    v_lshlrev_b32 v{V_SIG}, 30, v{V_SIG}
    v_add_u32 v{V_SIG}, s{t}, v{V_SIG}
    v_add_u32 v{V_QA}, s{S_FIRST+3}, v{V_L16}
    v_and_b32 v{V_ONE}, 3, v{V_LANE}
    v_subrev_u32 v{V_ONE}, 1, v{V_ONE}
    v_ashrrev_i32 v{V_ONE}, 31, v{V_ONE}
    v_and_b32 v{V_ONE}, 0x3f803f80, v{V_ONE}
    s_mov_b32 s{S_T2}, 1
    s_lshr_b32 s{S_LIM}, s{w}, 1
    s_add_u32 s{S_N0}, s{S_N0}, s{S_LIM}
    s_add_u32 s{S_LIM}, s{S_LIM}, 14
    s_mov_b32 s{S_N}, -1
    s_mov_b32 s{S_DSRD+2}, 0""")
    return out

def Sq(c): return V_S[0] + c*4
def ring(g, j): return A_FB[0] + (g % 4)*16 + j*4
def qk2(tag="FR"):
    out = []
    for c in range(16):
        kb, qb = c // 4, c % 4
        for kk in range(4):
            dg = kk if c % 2 == 0 else 3 - kk
            d = vr(Sq(c))
            cc = d if kk else ("0" if kb < qb else vr(V_TD) if kb == qb else vr(V_TN))
            out.append(M(mf(d, ar(ring(kb, dg)), ar(A_Q + (qb*4+dg)*4), cc), (tag, kb)))
    return out
def pv2(order=(0, 1, 2, 3)):
    o = []; c = 0
    for n, p in enumerate(order):
        for x in range(2):
            for qb in (range(4) if x == 0 else range(3, -1, -1)):
                d = vr(Oreg(2*p + x, qb))
                for kg in ((0, 1) if c % 2 == 0 else (1, 0)):
                    o.append(M(mf(d, ar(ring(n, x*2 + kg)), vr(Preg(kg, qb)), d), ("FR", 4 + n)))
                c += 1
    s_ = [M(mf(ar(A_L + qb*4), ar(A_ONE), vr(Preg(kg, qb)), ar(A_L + qb*4))) for qb in range(4) for kg in range(2)]
    return o, s_
def kreads(e, g, tag="FR"): return [lambda j=j: e.ds(f"ds_read_b128 {ar(ring(g, j))}, v{V_RD} offset:{g*4096 + j*1024}", (tag, g)) for j in range(4)]
def vreads(e, n, p): return [lambda j=j: e.ds(f"ds_read_b128 {ar(ring(n, j))}, v{V_RD} offset:{16384 + (j % 2)*8192 + (2*p + j // 2)*1024}", ("FR", 4 + n)) for j in range(4)]
def cvt2(c, hh): return f"v_cvt_pk_bf16_f32 v{Preg(c // 8, c % 4) + 2*((c // 4) % 2) + hh}, v{Sq(c) + 2*hh}, v{Sq(c) + 2*hh + 1}"
def exp2(k): return f"v_exp_f32 v{V_S[0] + k}, v{V_S[0] + k}"
def drain_head(e, order):
    e.need(lg=[("FR", 1)])
    rd_ = [f for n, p in enumerate(order) for f in vreads(e, n, p)]
    for f in rd_[:8]: f()
    for c in range(1, 16):
        e(cvt2(c, 0)); e(cvt2(c, 1))
    for f in rd_[8:]: f()

def attention(e, poll_b, poll_c, zero_hi):
    i, h, w = S_BLK, S_HEAD, S_WAVE
    T = lambda t: (lambda: e(t))
    A = [lambda j=j: att_dma(e, 0, j) for j in range(8)]; B = [lambda j=j: att_dma(e, 1, j) for j in range(8)]; D = [lambda j=j: d_load(e, j) for j in range(8)]
    e(f"v_add_u32 v{V_RD}, 65536, v{V_L16}")
    e.need(vm=[("KV", 0), "HST", "RTST"], lg=["QW"])
    e("s_barrier")
    for g in range(2):
        for f in kreads(e, g, "F0"): f()
    e.vmem(f"buffer_store_dword v{V_TAGV}, v{V_SIG}, {srd(S_WS)}, 0 offen sc1", "SIG")
    MS = [f"s_add_u32 s{S_N}, s{S_N}, 1", f"s_cmp_eq_u32 s{S_N}, s{S_D1}\ns_cselect_b32 s{S_M}, -1, 0", f"s_cmp_eq_u32 s{S_N}, s{S_D2}\ns_cselect_b32 s{S_M}, -1, s{S_M}",
          f"v_and_b32 v{V_TD}, s{S_M}, v{V_TRI[0]}\nv_and_b32 v{V_TD+1}, s{S_M}, v{V_TRI[1]}", f"v_and_b32 v{V_TD+2}, s{S_M}, v{V_TRI[2]}\nv_and_b32 v{V_TD+3}, s{S_M}, v{V_TRI[3]}",
          f"s_and_b32 s{S_M}, s{S_M}, {NEGINF:#x}\nv_mov_b32 v{V_TN}, s{S_M}\nv_mov_b32 v{V_TN+1}, s{S_M}", f"v_mov_b32 v{V_TN+2}, s{S_M}\nv_mov_b32 v{V_TN+3}, s{S_M}"]
    for t in MS: e(t)
    e(f"s_xor_b32 s{S_LA}, s{S_LA}, 32768")
    XRD = f"v_xor_b32 v{V_RD}, 32768, v{V_RD}"
    CV0 = cvt2(0, 0) + "\n" + cvt2(0, 1)
    def itstamp(dn=0):
        if OPT.get("itst"):
            e(f"s_memtime s[4:5]\nv_subrev_u32 v5, {14 - dn}, v{V_LANE}\nv_cmp_eq_u32 vcc, s{S_N}, v5\ns_waitcnt lgkmcnt(0)\nv_mov_b32 v5, s4\nv_cndmask_b32 v{V_STAMP}, v{V_STAMP}, v5, vcc")
    stamp(e, 7)
    init = [f"v_accvgpr_write_b32 a{A_L + r}, 0" for r in range(16)] + [f"v_accvgpr_write_b32 a{A_Z + r}, 0" for r in range(4)]
    init += [f"v_accvgpr_write_b32 a{A_ONE + r}, v{V_ONE}" for r in range(4)] + zero_hi
    for _ in range(8): e(init.pop())
    gaps = {}; ne = 0
    kr = kreads(e, 2, "F0") + kreads(e, 3, "F0")
    pre = [PREP0] + PREP + [XRD]
    for k in range(64):
        g = gaps[k] = []
        if k % 2 == 0 and kr: g.append(kr.pop(0)); g.append(T(init.pop()))
        elif k >= 50 and k % 2 == 0: g.append(T(pre.pop(0)))
        elif init: g.append(T(init.pop())); g.append(T(init.pop()))
        else: g.append(T(exp2(ne))); ne += 1
    assert not init and not pre
    gaps[63].insert(0, lambda: e.wait_all())
    run(e, qk2("F0"), gaps)
    e("s_barrier")
    itstamp()
    mem = [f for p in zip(A, kreads(e, 0) + kreads(e, 1)) for f in p] + B[:4]
    while mem or ne < 64:
        if mem: mem.pop(0)()
        for _ in range(3):
            if ne < 64: e(exp2(ne)); ne += 1
    for t in MS: e(t)
    e(CV0)
    e.need(lg=[("FR", 0)])
    top = [("FR", 1)]*4
    assert e.lgkm == top, e.lgkm
    e("s_branch L_special")
    e(".p2align 6")
    e.c("attention step: S = K Q^T (64) | O += V P of the previous tile (64+8) | one down-projection step (16)")
    e.label("L_body")
    def loop_body(first):
        e.lgkm = list(top)
        gaps = {k: [] for k in range(152)}
        rds = kreads(e, 2) + kreads(e, 3) + ([] if first else vreads(e, 0, 0) + vreads(e, 1, 1))
        for n, f in enumerate(rds): gaps[4*n].append(f)
        for n, f in enumerate(kreads(e, 0) + kreads(e, 1)): gaps[100 + 4*n].append(f)
        for n, f in enumerate(B[4:] + D): gaps[2 + 4*n].append(f)
        for n, f in enumerate(A + B[:4]): gaps[98 + 4*n].append(f)
        if not first:
            for n, f in enumerate(vreads(e, 2, 2) + vreads(e, 3, 3)): gaps[64 + 2*n].append(f)
            for c in range(1, 16):
                gaps[4*(c-1)].append(T(cvt2(c, 0)))
                gaps[1 + 2*((c - 1)//2)].append(T(cvt2(c, 1)))
        for k in range(64): gaps[17 + 2*k].append(T(exp2(k)))
        gaps[58].append(lambda: e.vmem(poll_b.ld, "KV"))
        gaps[62].append(T(PREP0))
        for n, t in enumerate(PREP + [XRD + chr(10) + MS[0]] + MS[1:3]): gaps[80 + 2*n].append(T(t))
        for n, t in enumerate(MS[3:]): gaps[132 + 4*n].append(T(t))
        gaps[146].append(T(CV0)); gaps[150].append(T(f"s_cmp_eq_u32 s{S_N}, s{S_T2}"))
        gaps[95].insert(0, lambda: e.wait_all())
        gaps[95].append(lambda: (e("s_barrier"), itstamp(1)))
        o, s_ = pv2()
        if first:
            zo, zl = pv_mfmas(1, zero=True)
            o = [M("")]*32 + zo; s_ = zl + [M("")]*4
        run(e, qk2() + o + s_ + d_mfmas(), gaps, nxt=("FR", 0))
        assert e.lgkm == top, e.lgkm
        e("s_cbranch_scc0 L_body")
    loop_body(False)
    e.label("L_special")
    e(f"""s_cmp_lt_u32 s{S_N}, 3
    s_cselect_b32 s{S_T2}, 3, 17
    s_min_u32 s{S_T2}, s{S_T2}, s{S_TRANS}
    s_cmp_eq_u32 s{S_N}, 3
    s_cbranch_scc0 L_late""")
    e(poll_b.test())
    e("s_cbranch_scc0 L_spin_b")
    e.label("L_ok_b")
    e(f"s_mov_b32 s{S_DSRD+2}, {WS_END}\ns_mov_b32 s{S_DINC}, 4096")
    e.label("L_late")
    e(f"s_cmp_eq_u32 s{S_N}, s{S_D2}\ns_cbranch_scc1 L_first")
    e(f"s_cmp_eq_u32 s{S_N}, s{S_TRANS}\ns_cbranch_scc0 L_body")
    e(f"s_cmp_eq_u32 s{S_N}, 17\ns_cbranch_scc0 L_trans")
    LRD = [f"v_accvgpr_read_b32 v{LR[0]}, a{A_L}\nv_accvgpr_read_b32 v{LR[1]}, a{A_L+4}", f"v_accvgpr_read_b32 v{LR[2]}, a{A_L+8}\nv_accvgpr_read_b32 v{LR[3]}, a{A_L+12}"]
    def cold():
        e.label("L_trans")
        e.lgkm = list(top); e.vm = ["KV"]*13
        qr = [lambda j=j: e.ds(f"ds_read_b128 {ar(A_Q + j*4)}, v{V_QA} offset:{j*1024}", "QS") for j in range(16)]
        rcp = [f"v_rcp_f32 v{LR[qb]}, v{LR[qb]}" for qb in range(4)]
        drain_head(e, (0, 1, 2, 3))
        o, s_ = pv2()
        gaps = {k: [f] for k, f in enumerate(B[4:] + D + [lambda: e.vmem(poll_b.ld, "KV")])}
        for k, t in enumerate(LRD + check_lines(0, S_QT) + rcp): gaps[13 + k] = [T(t)]
        items = norm_items(e, range(8), S_CTXLO)
        XB = f"v_xor_b32 v{V_RD}, {32768 + 65536}, v{V_RD}"
        def fill(g, k, left):
            while items and items[0][1] <= left and 8 + 8*(items[0][2] + 1) - 1 + 5 <= k:
                f, c, _ = items.pop(0); g.append(f); left -= c
        gaps[24] = [T(XB)]
        for k in range(25, 72):
            gaps[k] = []; fill(gaps[k], k, 8)
        run(e, s_ + o, gaps)
        def post():
            e(PREP0)
            for t in PREP: e(t.replace(f"s{S_T0}", f"s{S_T5}"))
            e.need(vm=["KV"])
            e("s_barrier")
            itstamp()
            mem = A + B[:4]; lds = qr + kreads(e, 0) + kreads(e, 1)
            gaps = {k: [mem.pop(0)] if k % 4 == 0 else [lds.pop(0), lds.pop(0)] for k in range(16)}
            run(e, d_mfmas(), gaps)
            extra = []
            for f in mem: extra += [f, NOP]
            emit_items(items, extra) if items else [(f(), e("s_nop 0")) for f in mem]
            del items[:]
            for t in MS: e(t)
            e(f"s_mov_b32 s{S_TRANS}, 17")
            e.need(lg=[("FR", 0)])
            assert e.lgkm == top, e.lgkm
            e("s_branch L_special")
        post()
        e.label("L_first")
        e(f"s_cmp_eq_u32 s{S_N}, 17\ns_cbranch_scc1 L_fzero")
        loop_body(True)
        e("s_branch L_special")
        e.label("L_fzero")
        for r in list(range(V_O, V_O + 128)) + list(range(V_S[0], V_S[0] + 64)) + [Preg(0, 0), Preg(0, 0) + 1]: e(f"v_mov_b32 v{r}, 0")
        for r in range(16): e(f"v_accvgpr_write_b32 a{A_L + r}, 0")
        e("s_branch L_final")
        e.label("L_ret0")
        e.lgkm = []; e.vm = []
        for t in rcp: e(t)
        e(XB)
        emit_items(norm_items(e, range(8), S_CTXLO))
        post()
    e.cold = cold
    e.c("last P V, merge of the two key ranges of the hi rows, range check of the row sums, ctx store")
    e.label("L_final")
    stamp(e, 8)
    tw, trd, tl, tlr = V_TMP[0:4]
    e(f"""s_lshl_b32 s{S_T0}, s{w}, 17
    s_lshl_b32 s{S_AC}, s{h}, 19
    s_add_u32 s{S_AC}, s{S_AC}, s{S_T0}
    s_add_u32 s{S_AC}, s{S_AC}, {WS_CTX}
    s_lshl_b32 s{S_WOo}, s{i}, 19
    s_add_u32 s{S_WOo}, s{S_WOo}, s{S_T0}
    s_add_u32 s{S_WOo}, s{S_WOo}, {WS_WOF}
    s_mov_b32 s{S_AROW}, s{S_WOo}
    s_mov_b32 s{S_KVST}, s{S_AC}
    s_mul_i32 s{S_T0}, s2, {OPT.get("drot", 0)*4096}
    s_and_b32 s{S_T0}, s{S_T0}, {0x1ffff if OPT.get("drot", 0) % 4 == 0 else 8*OPT.get("drot", 0)*4096 - 1}
    s_add_u32 s{S_WOo}, s{S_WOo}, s{S_T0}
    s_add_u32 s{S_AC}, s{S_AC}, s{S_T0}
    s_and_b32 s{S_T0}, s{w}, 1
    s_lshl_b32 s{S_T0}, s{S_T0}, 14
    s_lshr_b32 s{S_T1}, s{w}, 1
    s_lshl_b32 s{S_T1}, s{S_T1}, 16
    s_add_u32 s{S_T0}, s{S_T0}, s{S_T1}
    v_add_u32 v{tw}, s{S_T0}, v{V_L16}
    v_xor_b32 v{trd}, {65536 + 16384}, v{tw}
    s_add_u32 s{S_T0}, s{S_WL}, {144*1024}
    v_add_u32 v{tl}, s{S_T0}, v{V_L16}
    v_xor_b32 v{tlr}, 3072, v{tl}
    s_cmp_ge_u32 s{w}, 2
    s_cbranch_scc1 L_mergeB""")
    for role in range(2):
        keep = list(range(4)) if role == 0 else list(range(4, 8))
        send = list(range(4, 8)) if role == 0 else list(range(4))
        if role == 1: e.label("L_mergeB")
        e.lgkm = list(top); e.vm = ["KV"]*13
        order = (2, 3, 0, 1) if role == 0 else (0, 1, 2, 3)
        drain_head(e, order)
        o, s_ = pv2(order)
        gaps = {2*k: [lambda k=k: wo_load(e, k // 4, k % 4)] for k in range(8)}
        for k in range(8): gaps[45 + 3*k] = [lambda k=k: wo_load(e, 2 + k // 4, k % 4)]
        gaps[17] = [T(LRD[0])]; gaps[18] = [T(LRD[1])]
        gaps[19] = [lambda: e.ds(f"ds_write_b128 v{tl}, {vr(LR[0])}")]
        for n in range(16): gaps[23 + 3*n] = [lambda n=n: e.ds(f"ds_write_b128 v{tw}, {vr(V_O + send[0]*16 + n*4)} offset:{n*1024}")]
        if OPT.get("fst"): stamp(e, 14)
        run(e, s_ + o, gaps)
        if OPT.get("fst"): stamp(e, 15)
        e.wait_all(vm=False)
        e("s_barrier")
        if OPT.get("fst"): stamp(e, 16)
        e.ds(f"ds_read_b128 {vr(V_TMP[4])}, v{tlr}", "ML")
        for n in range(16):
            e.ds(f"ds_read_b128 {vr(V_S[0] + n*4)}, v{trd} offset:{n*1024}", ("MO", n // 4))
            if n % 2: wo_load(e, 4 + n // 8, (n // 2) % 4)
        e.need(lg=["ML"])
        for qb in range(4): e(f"v_add_f32 v{LR[qb]}, v{LR[qb]}, v{V_TMP[4] + qb}")
        for t in check_lines(1 + role, S_QTHI): e(t)
        for n in range(16):
            e.need(lg=[("MO", n // 4)])
            for r in (0, 2):
                o = V_O + keep[0]*16 + n*4 + r
                e(f"v_pk_add_f32 {vr(o, 2)}, {vr(o, 2)}, {vr(V_S[0] + n*4 + r, 2)}")
        e.label(f"L_ret{1 + role}")
        for q in range(4): wo_load(e, 6, q)
        if OPT.get("fst"): stamp(e, 17)
        for qb in range(4): e(f"v_rcp_f32 v{LR[qb]}, v{LR[qb]}")
        emit_items(norm_items(e, keep, S_CTXHI, pk=True))
        if role == 0: e("s_branch L_attdone")
    e.c("phase D")
    e.label("L_attdone")
    stamp(e, 9)

def slow_path(e):
    M = V_P[1]; AL = V_P[1] + 4; T = V_P[1] + 8; QI = V_P[1] + 12; NI = V_P[1] + 13
    u, nu, ko, vo = S_T0, S_T1, S_T3, S_T5
    e.c("fallback: exact online softmax with the true running max for the 64 rows of this wave")
    e.label("L_slow")
    e.lgkm = []; e.vm = []
    e("s_waitcnt vmcnt(0) lgkmcnt(0)")
    e(f"""s_lshl_b32 s{nu}, s{S_CNT}, 1
    s_add_u32 s{nu}, s{nu}, 2
    s_lshl_b32 s{ko}, s{S_HEAD}, 19
    s_add_u32 s{vo}, s{ko}, {WS_V}
    s_add_u32 s{ko}, s{ko}, {WS_K}
    s_lshl_b32 s{S_CNT}, s{S_CNT}, 6
    v_lshrrev_b32 v{T}, 4, v{V_LANE}
    v_lshlrev_b32 v{T}, 2, v{T}
    v_and_b32 v{QI}, 15, v{V_LANE}
    v_sub_u32 v{QI}, v{QI}, v{T}
    v_add_u32 v{QI}, s{S_CNT}, v{QI}
    v_mov_b32 v{NI}, {NEGINF:#x}
    s_mov_b32 s{u}, 0""")
    for r in range(128): e(f"v_mov_b32 v{V_O + r}, 0")
    for qb in range(4): e(f"v_mov_b32 v{M+qb}, v{NI}\nv_mov_b32 v{LR[qb]}, 0")
    e.label("L_slowl")
    def ld8(so):
        for j in range(8):
            if j == 4: e(f"s_add_u32 s{so}, s{so}, 4096")
            e.vmem(f"buffer_load_dwordx4 {ar(A_FB[1] + j*4)}, v{V_L16}, {srd(S_WS)}, s{so} offen offset:{(j%4)*1024}{SC}", "SL")
        e(f"s_add_u32 s{so}, s{so}, 4096")
    ld8(ko)
    e.wait_all()
    for kb2 in range(2):
        for dg in range(4):
            for qb in range(4):
                d = vr(Sreg(0, kb2, qb))
                e(mf(d, ar(A_FB[1] + (kb2*4+dg)*4), ar(A_Q + (qb*4+dg)*4), d if dg else "0"))
    e("s_nop 7")
    ld8(vo)
    for kb2 in range(2):
        for qb in range(4):
            for r in range(4):
                s = Sreg(0, kb2, qb) + r
                e(f"v_cmp_gt_i32 vcc, {16*kb2 + r - 16*qb}, v{QI}\ns_nop 1\nv_cndmask_b32 v{s}, v{s}, v{NI}, vcc")
    e(f"v_subrev_u32 v{QI}, 32, v{QI}")
    for qb in range(4):
        a, b = Sreg(0, 0, qb), Sreg(0, 1, qb)
        e(f"""v_max3_f32 v{T}, v{a}, v{a+1}, v{a+2}
        v_max3_f32 v{T}, v{T}, v{a+3}, v{b}
        v_max3_f32 v{T}, v{T}, v{b+1}, v{b+2}
        v_max3_f32 v{T}, v{T}, v{b+3}, v{M+qb}
        v_mov_b32 v{T+1}, v{T}
        s_nop 1
        v_permlane32_swap_b32 v{T}, v{T+1}
        v_max_f32 v{T}, v{T}, v{T+1}
        v_mov_b32 v{T+1}, v{T}
        s_nop 1
        v_permlane16_swap_b32 v{T}, v{T+1}
        v_max_f32 v{T}, v{T}, v{T+1}
        v_sub_f32 v{AL+qb}, v{M+qb}, v{T}
        v_mov_b32 v{M+qb}, v{T}
        v_exp_f32 v{AL+qb}, v{AL+qb}""")
        for s in list(range(a, a+4)) + list(range(b, b+4)):
            e(f"v_sub_f32 v{s}, v{s}, v{T}")
        for s in list(range(a, a+4)) + list(range(b, b+4)):
            e(f"v_exp_f32 v{s}, v{s}")
        e(f"v_mul_f32 v{LR[qb]}, v{LR[qb]}, v{AL+qb}")
        for s in list(range(a, a+4)) + list(range(b, b+4)):
            e(f"v_add_f32 v{LR[qb]}, v{LR[qb]}, v{s}")
        p = Preg(0, qb)
        e(f"v_cvt_pk_bf16_f32 v{p}, v{a}, v{a+1}\nv_cvt_pk_bf16_f32 v{p+1}, v{a+2}, v{a+3}\nv_cvt_pk_bf16_f32 v{p+2}, v{b}, v{b+1}\nv_cvt_pk_bf16_f32 v{p+3}, v{b+2}, v{b+3}")
        for db in range(8):
            for r in range(4): e(f"v_mul_f32 v{Oreg(db, qb)+r}, v{Oreg(db, qb)+r}, v{AL+qb}")
    e.wait_all()
    e("s_nop 1")
    for db in range(8):
        for qb in range(4):
            d = vr(Oreg(db, qb))
            e(mf(d, ar(A_FB[1] + db*4), vr(Preg(0, qb)), d))
    e(f"s_add_u32 s{u}, s{u}, 1\ns_cmp_lt_u32 s{u}, s{nu}\ns_nop 7\ns_cbranch_scc1 L_slowl")
    for qb in range(4):
        e(f"""v_mov_b32 v{T}, v{LR[qb]}
        s_nop 1
        v_permlane32_swap_b32 v{LR[qb]}, v{T}
        v_add_f32 v{LR[qb]}, v{LR[qb]}, v{T}
        v_mov_b32 v{T}, v{LR[qb]}
        s_nop 1
        v_permlane16_swap_b32 v{LR[qb]}, v{T}
        v_add_f32 v{LR[qb]}, v{LR[qb]}, v{T}""")
    e(f"s_cmp_eq_u32 s{S_RET}, 0\ns_cbranch_scc1 L_ret0\ns_cmp_eq_u32 s{S_RET}, 1\ns_cbranch_scc1 L_ret1\ns_branch L_ret2")


def phase_d(e, poll_c):
    qt, mt, w = S_HEAD, S_BLK, S_WAVE
    V_XO, V_X, V_G = 4, 8, 17
    CRS = [64, 80, 96, 112, 208, 224, 240][:OPT.get('ncr', 5)]; NCR = len(CRS)
    V_AS, V_AD = 128, 192
    t0, t1 = 24, 25
    S_XO, S_XO2 = S_XNB, S_HST
    V_WA = (V_TMP[0], V_TMP[2]); V_RA = (t0, V_TMP[3], V_G, V_TMP[4])
    e(f"""v_lshrrev_b32 v{t0}, 5, v{V_LANE}
    v_lshlrev_b32 v{t0}, 6, v{t0}
    v_xor_b32 v{V_WA[0]}, v{V_WA[0]}, v{t0}
    v_xor_b32 v{V_WA[1]}, 128, v{V_WA[0]}""")
    for j in range(16):
        e.ds(f"ds_write_b128 v{V_WA[(j // 4) % 2]}, {ar(A_DACC + j*4)} offset:{32768 + ((j%4)*4 + j//4)*1024}", "DW")
        if j < OPT.get("wpre", 6): wo_load(e, 7 + j // 4, j % 4)
    e(f"""v_lshrrev_b32 v{t0}, 3, v{V_LANE}
    v_and_b32 v{t1}, 7, v{V_LANE}
    v_lshlrev_b32 v{V_XO}, 10, v{t0}
    v_lshl_add_u32 v{V_XO}, v{t1}, 4, v{V_XO}
    v_lshlrev_b32 v{t0}, 4, v{t0}
    v_lshl_add_u32 v{t0}, v{t1}, 9, v{t0}
    s_lshl_b32 s{S_XO}, s{qt}, 16
    s_lshl_b32 s{S_T0}, s{w}, 14
    s_add_u32 s{S_XO}, s{S_XO}, s{S_T0}
    s_lshl_b32 s{S_T1}, s{mt}, 7
    s_add_u32 s{S_XO}, s{S_XO}, s{S_T1}
    s_add_u32 s{S_XO2}, s{S_XO}, 8192
    v_and_b32 v{t1}, 3, v{V_LANE}
    v_lshlrev_b32 v{t1}, 6, v{t1}
    v_xor_b32 v{t0}, v{t0}, v{t1}
    s_lshl_b32 s{S_T0}, s{w}, 12
    v_add_u32 v{V_RA[0]}, s{S_T0}, v{t0}
    v_xor_b32 v{V_RA[1]}, 128, v{V_RA[0]}
    v_add_u32 v{V_RA[2]}, 65536, v{V_RA[0]}
    v_add_u32 v{V_RA[3]}, 65536, v{V_RA[1]}""")
    if OPT.get("pollw", 1):
        v = poll_c.voff
        e(f"""s_lshr_b32 s{S_T0}, s{qt}, 1
        s_sub_u32 s{S_T1}, 15, s{S_T0}
        s_min_u32 s{S_T0}, s{S_T0}, s{S_T1}
        s_lshl_b32 s{S_T0}, s{S_T0}, 9
        s_lshl_b32 s{S_T1}, s{w}, 3
        s_add_u32 s{S_T0}, s{S_T0}, s{S_T1}
        s_add_u32 s{S_T0}, s{S_T0}, {WS_FC}
        v_and_b32 v{v}, 3, v{V_LANE}
        v_lshlrev_b32 v{v}, 7, v{v}
        v_and_or_b32 v{v}, v{V_LANE}, 4, v{v}
        v_add_u32 v{v}, s{S_T0}, v{v}""")
    else: poll32_addr(e, poll_c.voff, WS_FC)
    if OPT.get("fst"): stamp(e, 18)
    e.need(vm=["CST"]); e.wait_all(vm=False)
    if OPT.get("fst"): stamp(e, 19)
    e("s_barrier")
    if OPT.get("fst"): stamp(e, 20)
    signal(e, sig_lin(WS_FC), 26)
    for sw in range(4):
        for mb in range(4): e.ds(f"ds_read_b128 {vr(V_AD + (sw*4+mb)*4)}, v{V_RA[(sw // 2)*2 + mb // 2]} offset:{32768 + (sw % 2)*16384 + (mb % 2)*256}", ("R", sw))
    for it in range(2):
        e.vmem(f"buffer_load_dwordx4 {vr(V_X + 4*it)}, v{V_XO}, {srd(S_X)}, s{(S_XO, S_XO2)[it]} offen", "X")
    wl = [lambda n=n, q=q: wo_load(e, n, q) for n in range(7, NWS) for q in range(4)][OPT.get("wpre", 6):]
    cnt = [0]
    def V(t):
        e(t); cnt[0] += 1
        if cnt[0] % 6 == 0 and wl: wl.pop(0)()
    def rnd(base, pk):
        for j in range(8): V(f"v_cvt_pk_bf16_f32 v{pk+j}, v{base+2*j}, v{base+2*j+1}")
        for j in range(8): V(f"v_lshlrev_b32 v{base+2*j}, 16, v{pk+j}"); V(f"v_and_b32 v{base+2*j+1}, 0xffff0000, v{pk+j}")
    def red(base, tag):
        e.need(lg=[(tag, 1)])
        for r in range(0, 16, 2): V(f"v_pk_add_f32 {vr(base+r, 2)}, {vr(base+r, 2)}, {vr(base+16+r, 2)}")
        e.need(lg=[(tag, 2)])
        for r in range(0, 16, 2): V(f"v_pk_add_f32 {vr(base+r, 2)}, {vr(base+r, 2)}, {vr(base+32+r, 2)}")
        e.need(lg=[(tag, 3)])
        for r in range(0, 16, 2): V(f"v_pk_add_f32 {vr(base+r, 2)}, {vr(base+r, 2)}, {vr(base+48+r, 2)}")
    T = V_AD + 16; PK = V_AD + 32
    red(V_AD, "R"); rnd(V_AD, PK)
    for r in range(16): V(f"v_mul_f32 v{T+r}, 0xbfb8aa3b, v{V_AD+r}")
    for r in range(16): V(f"v_exp_f32 v{T+r}, v{T+r}")
    for r in range(16): V(f"v_add_f32 v{T+r}, 1.0, v{T+r}")
    for r in range(16): V(f"v_rcp_f32 v{T+r}, v{T+r}")
    for r in range(16): V(f"v_mul_f32 v{V_AD+r}, v{V_AD+r}, v{T+r}")
    rnd(V_AD, PK)
    while len(wl) > 8: wl.pop(0)()
    poll_c.issue()
    while wl: wl.pop(0)()
    stamp(e, 10); poll_c.check(); stamp(e, 11)
    def sw_(j): e.ds(f"ds_write_b128 v{V_WA[(j // 4) % 2]}, {vr(V_AS + j*4)} offset:{((j%4)*4 + j//4)*1024}", "SW")
    def c_load(n, q):
        e.vmem(f"buffer_load_dwordx4 {vr(CRS[n % NCR] + q*4)}, v{V_L16}, {srd(S_WS)}, s{S_AC} offen offset:{q*1024}{SC}", ("C", n))
        if q == 3: e(adv(S_AC, S_KVST))
    if OPT.get("dchain", 0):
        for n in range(2):
            for q in range(4): c_load(n, q)
        for n in range(0, 32, 2):
            ld = []
            for t in range(2):
                if n + 2 + t < 32: ld += [lambda q=q, t=t: c_load(n + 2 + t, q) for q in range(4)]
            for t in range(2):
                if n >= 2 and n + NWS - 2 + t < 32: ld += [lambda q=q, t=t: wo_load(e, n + NWS - 2 + t, q) for q in range(4)]
            for _ in range(min(4, len(ld))): ld.pop(0)()
            e.need(vm=[("C", n), ("C", n + 1), ("WO", n), ("WO", n + 1)])
            for k in range(32):
                c = k // 2; mb = c // 4; qb = c % 4 if mb % 2 == 0 else 3 - c % 4
                t = k % 2 if c % 2 == 0 else 1 - k % 2
                d = vr(V_AS + (mb*4 + qb)*4)
                e(mf(d, wreg(n + t, mb), vr(CRS[(n + t) % NCR] + qb*4), d if (n or k % 2) else "0"))
                if k % 2 == 0 and ld: ld.pop(0)()
    else:
        for n in range(NCR - 1):
            for q in range(4): c_load(n, q)
        for n in range(32):
            ld = []
            if n + NCR - 1 < 32: ld += [lambda q=q: c_load(n + NCR - 1, q) for q in range(4)]
            if n >= 1 and n + NWS - 1 < 32: ld += [lambda q=q: wo_load(e, n + NWS - 1, q) for q in range(4)]
            e.need(vm=[("C", n), ("WO", n)])
            for k in range(16):
                mb, qb = k // 4, k % 4
                d = vr(V_AS + k*4)
                e(mf(d, wreg(n, mb), vr(CRS[n % NCR] + qb*4), d if n else "0"))
                if k % 2 == 0 and ld: ld.pop(0)()
                if n == 31 and k >= 8: sw_(k - 8)
    stamp(e, 12)
    for j in range(8, 16):
        if j >= 12: e("s_nop 1")
        sw_(j)
    e.need(vm=["X"])
    for j in range(8): e(f"v_lshlrev_b32 v{T+2*j}, 16, v{V_X+j}"); e(f"v_and_b32 v{T+2*j+1}, 0xffff0000, v{V_X+j}")
    e.wait_all(vm=False)
    e("s_barrier")
    for sw in range(4):
        for mb in range(4): e.ds(f"ds_read_b128 {vr(V_AS + (sw*4+mb)*4)}, v{V_RA[(sw // 2)*2 + mb // 2]} offset:{(sw % 2)*16384 + (mb % 2)*256}", ("RS", sw))
    red(V_AS, "RS")
    for r in range(0, 16, 2): e(f"v_pk_fma_f32 {vr(V_AS+r, 2)}, {vr(V_AS+r, 2)}, {vr(V_AD+r, 2)}, {vr(T+r, 2)}")
    for j in range(8): e(f"v_cvt_pk_bf16_f32 v{PK+j}, v{V_AS+2*j}, v{V_AS+2*j+1}")
    for it in range(2):
        e.vmem(f"buffer_store_dwordx4 {vr(PK + 4*it)}, v{V_XO}, {srd(S_OUT)}, s{(S_XO, S_XO2)[it]} offen{OPT.get('outsc', SC)}", "OUT")
    e("s_cmp_lg_u32 s2, 0")
    e("s_cbranch_scc1 L_nobump")
    signal(e, f"s_mov_b32 s{S_CNT}, {WS_EP}", 26)
    e.label("L_nobump")
    stamp(e, 13)

HEADER = open("cdna_kernels/" + NAME + ".s.ref").read().split("; Override launch geometry")[0]
DOC = '''; ---------------------------------------------------------------------------------------------------------------
; [2^-80, 2^80] (NaN included) and any wave with a row outside recomputes its 64 rows in L_slow with the true running
; ---------------------------------------------------------------------------------------------------------------'''
def build():
    e = E(); body(e)
    n = 0
    def policy(roleB, trans, slow, spin):
        def d(lb, site, c):
            if lb == "L_body": return (c == 0) if site < 2 else True
            if lb == "L_first": return trans and c == 2
            if lb == "L_fzero": return trans == 2
            if lb == "L_late": return c != 1
            if lb == "L_trans": return trans and c == 0
            if lb == "L_mergeB": return roleB
            if lb == "L_slow": return slow
            if lb == "L_slowl": return c % 2 == 0
            if lb == "L_ret0": return trans and c == 0
            if lb == "L_ret1": return not roleB
            if lb.startswith("L_spin_"): return spin and c == 0
            if lb.startswith("L_ok_"): return c >= 1
            if lb.startswith("L_spinl_"): return True
            return False
        return d
    for cfg in ((0, 0, 0, 0), (1, 1, 0, 0), (0, 0, 1, 1), (1, 1, 1, 1), (1, 2, 0, 0)):
        tr = chk.trace(e.L, policy(*cfg))
        assert "s_endpgm" in tr[-1], cfg
        n += chk.check(tr, f"path{cfg}")
    if n: print(f"{n} hazards", file=sys.stderr)
    return "\n".join([HEADER.rstrip("\n"), "; @launch grid=(256,1,1) block=(256,1,1) lds=163840",
        DOC, '.amdgcn_target "amdgcn-amd-amdhsa--gfx950"\n.text', e.text(), '.section .rodata,"a"\n.p2align 6',
        f""".amdhsa_kernel {KN}
  .amdhsa_next_free_vgpr 512
  .amdhsa_next_free_sgpr 102
  .amdhsa_accum_offset 256
  .amdhsa_group_segment_fixed_size 0
  .amdhsa_kernarg_size 104
  .amdhsa_user_sgpr_count 2
  .amdhsa_user_sgpr_kernarg_segment_ptr 1
  .amdhsa_system_sgpr_workgroup_id_x 1
.end_amdhsa_kernel
"""])
if __name__ == "__main__":
    open(sys.argv[1], "w").write(build())
```

```python
import re

class Filler:
    __slots__ = ("fn", "cost", "kind", "earliest", "deadline", "rw")
    def __init__(self, fn, cost=4, kind="valu", earliest=0, deadline=10**9, rw=None):
        self.rw = rw
        self.fn = fn; self.cost = cost; self.kind = kind
        self.earliest = earliest; self.deadline = deadline

class E:
    def __init__(self):
        self.L = []
        self.lgkm = []
        self.vm = []
        self.maxmem = 2
    def __call__(self, s):
        for ln in s.strip("\n").split("\n"):
            ln = ln.strip()
            if ln: self.L.append(ln if ln.endswith(":") or ln.startswith(".") or ln.startswith(";") else "    " + ln)
    def c(self, s): self.L.append("    ; " + s)
    def label(self, s): self.L.append(s + ":")
    def ds(self, s, tag=None):
        self(s); self.lgkm.append(tag)
    def vmem(self, s, tag=None):
        self(s); self.vm.append(tag)
    @staticmethod
    def _cnt(q, tags):
        last = -1
        for i, t in enumerate(q):
            if t in tags: last = i
        return None if last < 0 else len(q) - 1 - last
    def need(self, lg=(), vm=()):
        parts = []
        n = self._cnt(self.vm, set(vm)) if vm else None
        if n is not None:
            n = min(n, 63)
            parts.append(f"vmcnt({n})"); self.vm = self.vm[len(self.vm) - n:] if n else []
        n = self._cnt(self.lgkm, set(lg)) if lg else None
        if n is not None:
            n = min(n, 15)
            parts.append(f"lgkmcnt({n})"); self.lgkm = self.lgkm[len(self.lgkm) - n:] if n else []
        if parts: self("s_waitcnt " + " ".join(parts))
        return bool(parts)
    def wait_all(self, lg=True, vm=True):
        p = []
        if vm: p.append("vmcnt(0)"); self.vm = []
        if lg: p.append("lgkmcnt(0)"); self.lgkm = []
        self("s_waitcnt " + " ".join(p))
    def text(self): return "\n".join(self.L) + "\n"

    def schedule(self, mfmas, streams, budget=8, flush=True):
        pos = [0] * len(streams)
        def head(k):
            return streams[k][pos[k]] if pos[k] < len(streams[k]) else None
        def dl(k):
            return min((f.deadline for f in streams[k][pos[k]:]), default=10**9)
        debt = 0
        for i, m in enumerate(mfmas):
            for k in range(len(streams)):
                while dl(k) <= i:
                    f = head(k)
                    assert f.earliest <= i, (f.earliest, i, k)
                    f.fn(); pos[k] += 1
            m()
            left = budget
            salu_free = 1; nmem = 0
            if i + 1 < len(mfmas) and hasattr(mfmas[i+1], "pre") and not any(dl(k) <= i + 1 for k in range(len(streams))):
                if mfmas[i+1].pre(): salu_free = 0
            for kinds in (("mem", "salu"), ("valu", "salu")):
                progress = True
                while progress:
                    progress = False
                    for k in range(len(streams)):
                        f = head(k)
                        if f is None or f.earliest > i or f.kind not in kinds: continue
                        cost = f.cost
                        if f.kind == "salu" and salu_free and left == budget: cost = 0
                        if cost > left: continue
                        if f.kind == "mem":
                            if nmem >= self.maxmem and f.deadline > i + 3: continue
                            nmem += 1
                        if f.kind == "salu" and cost == 0: salu_free = 0
                        f.fn(); pos[k] += 1; left -= cost; progress = True
                        break
            for k in range(len(streams)):
                j = pos[k]; R = set(); W = set()
                while left >= 4 and j < min(len(streams[k]), pos[k] + 40):
                    f = streams[k][j]
                    if f.rw is None: break
                    r, w = f.rw
                    if j > pos[k] and f.kind == "valu" and f.cost <= left and f.earliest <= i and not (r & W) and not (w & (R | W)):
                        f.fn(); left -= f.cost; del streams[k][j]; continue
                    R |= r; W |= w; j += 1
        rest = [streams[k][pos[k]:] for k in range(len(streams))]
        if flush:
            for r in rest:
                for f in r: f.fn()
            return None
        return rest
```

```python
import sys, math, os, struct
from emit import E, Filler
import check as chk

NAME = "recurrent_scan__compressed_kv_cla__glu_gated_geglu__prompt"
KN = NAME + "_kernel"
MB = 1 << 20
OPT = eval(os.environ.get("OPT", "{}"))
STAMPS = os.environ.get("STAMPS")
POLLALL = OPT.get("pollall", 0)
WS_XN, WS_H, WS_WDF, WS_WOF, WS_CTX, WS_K, WS_V, WS_END = 0, 2*MB, 9*MB, 12*MB, 16*MB, 32*MB, 48*MB, 64*MB
fb = lambda x: struct.unpack("<I", struct.pack("<f", x))[0]

S_X, S_CKV, S_WQ, S_WUK, S_WUV, S_WO, S_WG, S_WU, S_WD, S_OUT, S_DBG, S_WS = [8 + 4*i for i in range(12)]
S_HSRD, S_ASRD, S_BSRD = 56, 60, 64
S_WAVE, S_HEAD, S_BLK, S_ROT = 68, 69, 70, 71
S_T0, S_T1, S_T2, S_T3, S_T4, S_T5 = 72, 73, 74, 75, 76, 77
S_WL, S_WA = 78, 79
S_OFF0, S_OFFA, S_AROW, S_KVST, S_XNB, S_HST = 80, 81, 82, 83, 84, 85
S_CTXLO, S_CTXHI = 86, 87
S_SRCA, S_SRCB, S_LA, S_LB, S_VMAXB, S_VCLB = 88, 89, 90, 91, 92, 93
S_N, S_EVT, S_TRANS, S_N0 = 94, 95, 96, 97
S_QT, S_QTHI, S_RET, S_CNT = 98, 99, 100, 101
S_ROTB, S_DW, S_DH, S_DINC = 48, 49, 50, 51
S_GJ = 7
S_GSRD = S_CKV
S_DSRD = S_HSRD
S_FL = 6
def srd(n): return f"s[{n}:{n+3}]"
def mf(d, a, b, c): return f"v_mfma_f32_16x16x32_bf16 {d}, {a}, {b}, {c}"
def vr(n, k=4): return f"v[{n}:{n+k-1}]"
def ar(n, k=4): return f"a[{n}:{n+k-1}]"

V_LANE, V_STAMP, V_L16 = 1, 2, 3
V_TR = (4, 5, 6, 7)
V_WOFF = (8, 9, 10, 11)
V_AOFF = (12, 13)
V_WOFG = (12, 13)
V_ARD = (14, 15)
V_TMP = list(range(16, 32))
V_POLL = 0
V_WF, V_PK, V_ACC = 32, 64, 128
def acc(db, rb): return V_ACC + (db*4 + rb)*4
def actf(ks, rb): return (ks*4 + rb)*4
V_RD = 4
V_TD, V_TN, V_LIM = 16, 20, 24
V_P, V_S, V_O = (32, 48), (64, 96), 128
A_Q, A_FB, A_DACC, A_L, A_ONE, A_DOP = 0, (64, 96), 128, 192, 208, 224
QSCALE = fb(math.log2(math.e) / math.sqrt(128.0))
NEGINF = 0xff800000
def Sreg(buf, kb2, qb): return V_S[buf] + (kb2*4 + qb)*4
def Preg(buf, qb): return V_P[buf] + qb*4
def Oreg(db, qb): return V_O + (db*4 + qb)*4
SC = " sc1"

def stamp(e, idx):
    if not STAMPS: return
    if OPT.get("padph") and idx not in OPT["padph"]: return
    if OPT.get("padat"):
        if idx == OPT["padat"][0]:
            e(f"s_nop 1\nv_readlane_b32 s5, v{V_STAMP}, 0\ns_add_u32 s{S_CNT}, s5, {OPT['padat'][1]*100}")
            e.label("L_padat")
            e(f"s_memrealtime s[4:5]\ns_waitcnt lgkmcnt(0)\ns_sub_u32 s5, s4, s{S_CNT}\ns_cmp_lt_i32 s5, 0\ns_cbranch_scc1 L_padat")
            e.lgkm = []
        return
    e(("s_memtime" if STAMPS == "2" else "s_memrealtime") + " s[4:5]")
    e.wait_all(vm=False)
    e(f"v_writelane_b32 v{V_STAMP}, s4, {idx}")
def stamp_flush(e):
    if not STAMPS: return
    if OPT.get("dbgst"):
        e(f"""s_load_dwordx2 s[8:9], s[0:1], 88
        s_mov_b32 s10, 256
        s_mov_b32 s11, 0x20000
        v_readlane_b32 s4, v{V_STAMP}, 0
        s_not_b32 s4, s4
        s_nop 3
        v_writelane_b32 v{V_STAMP}, s4, 14
        v_lshlrev_b32 v0, 2, v{V_LANE}
        v_cmp_gt_u32 vcc, 15, v{V_LANE}
        s_and_saveexec_b64 s[6:7], vcc
        s_waitcnt lgkmcnt(0)
        buffer_atomic_umax v{V_STAMP}, v0, s[8:11], 0 offen
        s_waitcnt vmcnt(0)""")
        return
    e(f"""s_lshl_b32 s4, s2, 2
    s_add_u32 s4, s4, s{S_WAVE}
    s_lshl_b32 s4, s4, 7
    s_add_u32 s4, s4, {64*MB}
    v_lshlrev_b32 v0, 2, v{V_LANE}
    v_cmp_gt_u32 vcc, 32, v{V_LANE}
    s_and_saveexec_b64 s[6:7], vcc
    buffer_store_dword v{V_STAMP}, v0, {srd(S_WS)}, s4 offen
    s_waitcnt vmcnt(0)""")

WS_EP = 11*MB
WS_FX, WS_FK, WS_FB, WS_FC = WS_EP + 4096, WS_EP + 8192, WS_EP + 12288, WS_EP + 16384
S_TAG = 3
def signal(e, soff_lines, tmp):
    e(soff_lines)
    e(f"""v_mov_b32 v{tmp}, s{S_TAG}
    v_add_u32 v{tmp+1}, s{S_WL}, v{V_LANE}
    v_min_u32 v{tmp+1}, 1, v{tmp+1}
    v_lshlrev_b32 v{tmp+1}, 30, v{tmp+1}""")
    e.vmem(f"buffer_store_dword v{tmp}, v{tmp+1}, {srd(S_WS)}, s{S_CNT} offen sc1", "SIG")
def sig_lin(base):
    return f"""s_lshr_b32 s{S_CNT}, s2, 3
    s_lshl_b32 s{S_CNT}, s{S_CNT}, 7
    s_and_b32 s{S_FL}, s2, 7
    s_lshl_b32 s{S_FL}, s{S_FL}, 2
    s_add_u32 s{S_CNT}, s{S_CNT}, s{S_FL}
    s_add_u32 s{S_CNT}, s{S_CNT}, {base}"""
SIG_KV = f"""s_and_b32 s{S_CNT}, s2, 31
    s_lshl_b32 s{S_CNT}, s{S_CNT}, 7
    s_lshl_b32 s{S_FL}, s{S_BLK}, 2
    s_add_u32 s{S_CNT}, s{S_CNT}, s{S_FL}
    s_add_u32 s{S_CNT}, s{S_CNT}, {WS_FK}"""
class Poll:
    def __init__(self, e, name, voff):
        self.e, self.name, self.voff = e, name, voff
    @property
    def ld(self):
        if self.name == "b" and POLLALL: return f"buffer_load_dwordx4 a[216:219], v{self.voff}, {srd(S_WS)}, 0 offen sc1"
        return f"buffer_load_dword v{V_POLL}, v{self.voff}, {srd(S_WS)}, 0 offen sc1"
    def issue(self): self.e.vmem(self.ld, ("POLL", self.name))
    def test(self):
        if self.name == "b" and POLLALL:
            return f"""v_accvgpr_read_b32 v5, a216
            v_accvgpr_read_b32 v6, a217
            v_accvgpr_read_b32 v7, a218
            v_accvgpr_read_b32 v{V_POLL}, a219
            v_xor_b32 v5, v5, v{V_POLL}
            v_xor_b32 v6, v6, v{V_POLL}
            v_xor_b32 v7, v7, v{V_POLL}
            v_or3_b32 v5, v5, v6, v7
            v_xor_b32 v{V_POLL}, s{S_TAG}, v{V_POLL}
            v_or_b32 v5, v5, v{V_POLL}
            v_cmp_eq_u32 vcc, 0, v5
            s_cmp_eq_u64 vcc, exec"""
        return f"v_cmp_eq_u32 vcc, s{S_TAG}, v{V_POLL}\ns_cmp_eq_u64 vcc, exec"
    def check(self):
        e = self.e
        e.need(vm=[("POLL", self.name)])
        e(self.test())
        e(f"s_cbranch_scc0 L_spin_{self.name}")
        e.label(f"L_ok_{self.name}")
    def spin(self):
        e = self.e
        e.label(f"L_spin_{self.name}")
        e(f"s_mov_b32 s{S_CNT}, 0x40000")
        e.label(f"L_spinl_{self.name}")
        e("s_sleep 2")
        e(self.ld)
        e("s_waitcnt vmcnt(0)")
        e(self.test())
        e(f"s_cbranch_scc1 L_ok_{self.name}")
        e(f"s_sub_u32 s{S_CNT}, s{S_CNT}, 1")
        e(f"s_cmp_lg_u32 s{S_CNT}, 0")
        e(f"s_cbranch_scc1 L_spinl_{self.name}")
        e(f"s_branch L_ok_{self.name}")
def poll32_addr(e, v, base):
    e(f"""s_lshr_b32 s{S_T0}, s{S_HEAD}, 1
    s_sub_u32 s{S_T1}, 15, s{S_T0}
    s_min_u32 s{S_T0}, s{S_T0}, s{S_T1}
    s_lshl_b32 s{S_T0}, s{S_T0}, 9
    s_add_u32 s{S_T0}, s{S_T0}, {base}
    v_bfe_u32 v{v}, v{V_LANE}, 3, 2
    v_lshlrev_b32 v{v}, 5, v{v}
    v_and_or_b32 v{v}, v{V_LANE}, 7, v{v}
    v_lshlrev_b32 v{v}, 2, v{v}
    v_add_u32 v{v}, s{S_T0}, v{v}""")

def kernel_head(e):
    e(f".globl {KN}\n.p2align 8\n.type {KN},@function")
    e.label(KN)
    e("s_cmp_ge_u32 s2, 256")
    e("s_cbranch_scc1 L_end")
    sizes = {S_X: (0, 2*MB), S_CKV: (8, 2*MB), S_WUK: (24, 4*MB), S_WS: (96, 65*MB if STAMPS else WS_END), S_WQ: (16, 4*MB), S_WUV: (32, 4*MB), S_WO: (40, 4*MB),
             S_WG: (56, 512*3584), S_WU: (64, 512*3584), S_WD: (72, 1792*1024), S_OUT: (80, 2*MB)}
    first = (S_X, S_CKV, S_WUK, S_WS)
    if OPT.get("st0") == 1: e("s_memrealtime s[6:7]\ns_waitcnt lgkmcnt(0)")
    for sr in first: e(f"s_load_dwordx2 s[{sr}:{sr+1}], s[0:1], {sizes[sr][0]}")
    if OPT.get("st0") == 2: e("s_waitcnt lgkmcnt(0)\ns_memrealtime s[6:7]")
    if STAMPS and not OPT.get("st0"): e(("s_memtime" if STAMPS == "2" else "s_memrealtime") + " s[6:7]")
    e(f"v_and_b32 v{V_LANE}, 63, v0")
    e("v_lshrrev_b32 v2, 6, v0")
    e(f"v_lshlrev_b32 v{V_L16}, 4, v{V_LANE}")
    e(f"v_readfirstlane_b32 s{S_WAVE}, v2")
    if OPT.get("pfcode", 1):
        e(f"""s_getpc_b64 s[4:5]
        s_lshr_b32 s{S_T0}, s2, 3
        s_lshl_b32 s{S_T0}, s{S_T0}, 11
        v_lshlrev_b32 v{V_TMP[0]}, 3, v2
        v_and_or_b32 v{V_TMP[0]}, v0, 7, v{V_TMP[0]}
        v_lshlrev_b32 v{V_TMP[0]}, 6, v{V_TMP[0]}
        v_add_u32 v{V_TMP[0]}, s{S_T0}, v{V_TMP[0]}
        v_min_u32 v{V_TMP[0]}, L_end-L_pcref, v{V_TMP[0]}""")
        e.label("L_pcref")
        e.vmem(f"global_load_dword v{V_TMP[12]}, v{V_TMP[0]}, s[4:5]", "PF")
    e(f"""s_and_b32 s{S_T0}, s2, 7
    s_lshl_b32 s{S_T0}, s{S_T0}, 2
    s_lshr_b32 s{S_T1}, s2, 3
    s_and_b32 s{S_T1}, s{S_T1}, 3
    s_add_u32 s{S_HEAD}, s{S_T0}, s{S_T1}
    s_lshr_b32 s{S_BLK}, s2, 5
    s_mul_i32 s{S_T0}, s{S_T1}, {OPT.get('rota', 4)}
    s_add_u32 s{S_ROT}, s{S_BLK}, s{S_T0}
    s_mul_i32 s{S_T0}, s2, {OPT.get('rotx', 1)}
    s_add_u32 s{S_ROT}, s{S_ROT}, s{S_T0}
    s_and_b32 s{S_ROT}, s{S_ROT}, 7
    s_mul_i32 s{S_T0}, s{S_T1}, {OPT.get('rotb', 0)}
    s_add_u32 s{S_ROTB}, s{S_BLK}, s{S_T0}
    s_mul_i32 s{S_T0}, s2, {OPT.get('rotbx', 1)}
    s_add_u32 s{S_ROTB}, s{S_ROTB}, s{S_T0}
    s_and_b32 s{S_ROTB}, s{S_ROTB}, 3
    s_lshl_b32 s{S_WL}, s{S_WAVE}, 10
    s_lshl_b32 s{S_WA}, s{S_WAVE}, 13
    s_add_u32 s{S_WA}, s{S_WA}, 65536""")
    if STAMPS: e("v_mov_b32 v2, -1")
    for sr in first: e(f"s_mov_b32 s{sr+2}, {sizes[sr][1]}\ns_mov_b32 s{sr+3}, 0x20000")
    setup_addrs(e)
    e(f"v_add_u32 v{V_ARD[0]}, s{S_WA}, v{V_ARD[0]}\nv_xor_b32 v{V_ARD[1]}, 64, v{V_ARD[0]}")
    scalar_setup(e)
    e(f"s_lshl_b32 s{S_T0}, s2, 13\ns_lshl_b32 s{S_T1}, s{S_WAVE}, 11\ns_add_u32 s{S_T0}, s{S_T0}, s{S_T1}")
    def late():
        for sr, (p, n) in sizes.items():
            if sr not in first: e(f"s_load_dwordx2 s[{sr}:{sr+1}], s[0:1], {p}\ns_mov_b32 s{sr+2}, {n}\ns_mov_b32 s{sr+3}, 0x20000")
        for sr in (S_HSRD, S_ASRD, S_BSRD): e(f"s_mov_b64 s[{sr}:{sr+1}], s[{S_WS}:{S_WS+1}]\ns_mov_b32 s{sr+2}, {WS_END}\ns_mov_b32 s{sr+3}, 0x20000")
        e(f"s_add_u32 s{S_FL}, s{S_WS}, {WS_EP}\ns_addc_u32 s{S_FL+1}, s{S_WS+1}, 0\ns_load_dword s{S_TAG}, s[{S_FL}:{S_FL+1}], 0")
    def go():
        e("s_waitcnt lgkmcnt(0)")
        if STAMPS: e("v_writelane_b32 v2, s6, 0")
        e.vmem(f"buffer_load_dwordx4 v[64:67], v{V_L16}, {srd(S_X)}, s{S_T0} offen", "X")
        e.vmem(f"buffer_load_dwordx4 v[68:71], v{V_L16}, {srd(S_X)}, s{S_T0} offen offset:1024", "X")
    return go, late

V_CPF = 31
V_KPERM = 31
V_UOFF = 30
def setup_addrs(e):
    t0, t1, t2, t3, t4 = V_TMP[:5]
    e(f"""v_lshrrev_b32 v{t0}, 2, v{V_LANE}
    v_lshlrev_b32 v{t0}, 7, v{t0}
    v_and_b32 v{t1}, 3, v{V_LANE}
    v_lshlrev_b32 v{t1}, 3, v{t1}
    v_add_u32 v{t0}, v{t0}, v{t1}
    v_bfe_u32 v{t1}, v{V_LANE}, 3, 2
    v_lshlrev_b32 v{t1}, 5, v{t1}
    v_add_u32 v{V_TR[0]}, v{t0}, v{t1}""")
    for c in (1, 2, 3): e(f"v_xor_b32 v{V_TR[c]}, {c*32}, v{V_TR[0]}")
    e(f"""v_lshrrev_b32 v{t0}, 3, v{V_LANE}
    v_and_b32 v{t1}, 7, v{V_LANE}
    v_and_b32 v{t2}, 6, v{t0}
    v_xor_b32 v{t1}, v{t1}, v{t2}
    v_lshlrev_b32 v{V_UOFF}, 4, v{t1}
    s_lshl_b32 s{S_T0}, s{S_WAVE}, 3
    v_add_u32 v{t2}, s{S_T0}, v{t0}
    v_bfe_u32 v{t3}, v{t2}, 2, 2
    v_lshlrev_b32 v{t3}, 3, v{t3}
    v_lshrrev_b32 v{t4}, 4, v{t2}
    v_lshl_add_u32 v{t3}, v{t4}, 2, v{t3}
    v_and_b32 v{t4}, 3, v{t2}
    v_add_u32 v{V_KPERM}, v{t3}, v{t4}
    v_lshl_add_u32 v{V_WOFF[0]}, v{V_KPERM}, 13, v{V_UOFF}
    v_add_u32 v{V_WOFF[1]}, 128, v{V_WOFF[0]}
    v_add_u32 v{V_WOFF[2]}, {32*8192}, v{V_WOFF[0]}
    v_add_u32 v{V_WOFF[3]}, {32*8192 + 128}, v{V_WOFF[0]}
    v_and_b32 v{t1}, 7, v{V_LANE}
    v_lshrrev_b32 v{t2}, 1, v{t0}
    v_xor_b32 v{t1}, v{t1}, v{t2}
    v_lshlrev_b32 v{t1}, 4, v{t1}
    v_lshl_add_u32 v{V_AOFF[0]}, v{t0}, 10, v{t1}
    v_xor_b32 v{V_AOFF[1]}, 64, v{V_AOFF[0]}
    v_add_u32 v{V_AOFF[1]}, 8192, v{V_AOFF[1]}
    v_and_b32 v{t0}, 15, v{V_LANE}
    v_lshrrev_b32 v{t1}, 4, v{V_LANE}
    v_lshrrev_b32 v{t2}, 1, v{t0}
    v_xor_b32 v{t1}, v{t1}, v{t2}
    v_lshlrev_b32 v{t1}, 4, v{t1}
    v_lshl_add_u32 v{V_ARD[0]}, v{t0}, 7, v{t1}""")

def scalar_setup(e):
    i, h, w = S_BLK, S_HEAD, S_WAVE
    e(f"""s_lshl_b32 s{S_T0}, s{i}, 2
    s_add_u32 s{S_T0}, s{S_T0}, s{w}
    s_lshl_b32 s{S_AROW}, s{S_T0}, 16
    s_lshl_b32 s{S_KVST}, s{h}, 19
    s_lshl_b32 s{S_T0}, s{S_T0}, 14
    s_add_u32 s{S_KVST}, s{S_KVST}, s{S_T0}""")
def scalar_setup2(e):
    i, h, w = S_BLK, S_HEAD, S_WAVE
    a, b, c, d = S_N, S_EVT, S_TRANS, S_RET
    IDLE = f"s{i}" if OPT.get("spread", 1) else "7"
    return f"""s_sub_u32 s{a}, 15, s{i}
    s_cmp_lt_u32 s{w}, 2 ! s_cselect_b32 s{b}, s{a}, s{i}
    s_lshl_b32 s{b}, s{b}, 1
    s_and_b32 s{c}, s{w}, 1
    s_add_u32 s{S_QT}, s{b}, s{c}
    s_lshl_b32 s{S_XNB}, s{S_QT}, 16
    s_mul_i32 s{S_HST}, s{S_QT}, {56*4096}
    s_add_u32 s{S_HST}, s{S_HST}, {WS_H}
    s_lshl_b32 s{d}, s{h}, 14
    s_add_u32 s{d}, s{d}, {WS_CTX}
    s_lshl_b32 s{S_CTXLO}, s{S_QT}, 19
    s_add_u32 s{S_CTXLO}, s{S_CTXLO}, s{d}
    s_lshr_b32 s{b}, s{w}, 1
    s_xor_b32 s{b}, s{b}, s{w}
    s_and_b32 s{b}, s{b}, 1
    s_lshl_b32 s{a}, s{a}, 1
    s_add_u32 s{S_QTHI}, s{a}, s{b}
    s_lshl_b32 s{S_CTXHI}, s{S_QTHI}, 19
    s_add_u32 s{S_CTXHI}, s{S_CTXHI}, s{d}
    s_lshr_b32 s{a}, s{h}, 2
    s_cmp_lg_u32 s{a}, {IDLE} ! s_cselect_b32 s{S_HSRD+2}, {WS_END}, 0
    s_cmp_gt_u32 s{a}, {IDLE} ! s_cselect_b32 s{a}, 4, 0
    s_sub_u32 s{S_GJ}, s{h}, s{a}
    s_lshl_b32 s{a}, s{h}, 19
    s_mov_b32 s{b}, {WS_V}
    s_cmp_lt_u32 s{w}, 2 ! s_cselect_b32 s{b}, {WS_K}, s{b}
    s_add_u32 s{b}, s{b}, s{a}
    s_add_u32 s{S_VCLB}, s{b}, {63*8192}
    s_and_b32 s{a}, s{w}, 1
    s_lshl_b32 s{a}, s{a}, 13
    s_add_u32 s{S_SRCA}, s{b}, s{a}
    s_lshl_b32 s{a}, s{w}, 13
    s_add_u32 s{S_VMAXB}, s{b}, s{a}
    s_add_u32 s{S_VMAXB}, s{S_VMAXB}, {64*8192}
    s_min_u32 s{S_SRCB}, s{S_VMAXB}, s{S_VCLB}
    s_lshl_b32 s{S_LB}, s{w}, 13
    s_add_u32 s{S_LA}, s{S_LB}, 65536
    s_xor_b32 s{S_LB}, s{S_LB}, 32768
    s_lshl_b32 s{S_N0}, s{i}, 1
    s_add_u32 s{S_N0}, s{S_N0}, 2
    s_mul_i32 s{a}, s{w}, {14*4096}
    s_mul_i32 s{S_DH}, s{h}, {56*4096}
    s_add_u32 s{S_DH}, s{S_DH}, s{a}
    s_add_u32 s{S_DH}, s{S_DH}, {WS_H}
    s_mul_i32 s{S_DW}, s{i}, {56*4096}
    s_add_u32 s{S_DW}, s{S_DW}, s{a}
    s_add_u32 s{S_DW}, s{S_DW}, {WS_WDF}
    s_mov_b32 s{S_DINC}, 0""".split("\n")

def layernorm_lines():
    L = []; e = L.append
    X = (72, 80); SUM = (88, 89); TMP = (90, 91); MEAN = (92, 93); VAR = (94, 95)
    SS = (S_T0, S_T1)
    for r in range(2):
        for j in range(4):
            e(f"v_lshlrev_b32 v{X[r]+2*j}, 16, v{64+4*r+j}")
            e(f"v_and_b32 v{X[r]+2*j+1}, 0xffff0000, v{64+4*r+j}")
    def reduce():
        for mod in ("quad_perm:[1,0,3,2] row_mask:0xf bank_mask:0xf", "quad_perm:[2,3,0,1] row_mask:0xf bank_mask:0xf",
                    "row_half_mirror row_mask:0xf bank_mask:0xf", "row_mirror row_mask:0xf bank_mask:0xf",
                    "row_bcast:15 row_mask:0xa bank_mask:0xf", "row_bcast:31 row_mask:0xc bank_mask:0xf"):
            e("s_nop 0")
            for r in range(2): e(f"v_add_f32_dpp v{SUM[r]}, v{SUM[r]}, v{SUM[r]} {mod}")
        e("s_nop 0")
        for r in range(2): e(f"v_readlane_b32 s{SS[r]}, v{SUM[r]}, 63")
        e("s_nop 1")
    P2 = lambda r: f"v[{r}:{r+1}]"
    AC = (96, 98); DD = (100, 108)
    for r in range(2): e(f"v_pk_add_f32 {P2(AC[r])}, {P2(X[r])}, {P2(X[r]+2)}")
    for j in (4, 6):
        for r in range(2): e(f"v_pk_add_f32 {P2(AC[r])}, {P2(AC[r])}, {P2(X[r]+j)}")
    for r in range(2): e(f"v_add_f32 v{SUM[r]}, v{AC[r]}, v{AC[r]+1}")
    reduce()
    for r in range(2): e(f"v_mov_b32 v{MEAN[r]}, s{SS[r]}")
    for r in range(2): e(f"v_mul_f32 v{MEAN[r]}, 0x3b000000, v{MEAN[r]}")
    NEGB = lambda r: bsel(r)[1] + " neg_lo:[0,1] neg_hi:[0,1]"
    for j in range(0, 8, 2):
        for r in range(2): e(f"v_pk_add_f32 {P2(DD[r]+j)}, {P2(X[r]+j)}, {bsel(MEAN[r])[0]} {NEGB(MEAN[r])}")
    for j in range(0, 8, 2):
        for r in range(2): e(f"v_pk_mul_f32 {P2(AC[r])}, {P2(DD[r])}, {P2(DD[r])}" if j == 0 else f"v_pk_fma_f32 {P2(AC[r])}, {P2(DD[r]+j)}, {P2(DD[r]+j)}, {P2(AC[r])}")
    for r in range(2): e(f"v_add_f32 v{SUM[r]}, v{AC[r]}, v{AC[r]+1}")
    reduce()
    def both(fmt):
        for r in range(2): e(fmt.format(v=VAR[r], m=MEAN[r], s=SS[r]))
    def rnd(x):
        both("v_cvt_pk_bf16_f32 v{%s}, v{%s}, v{%s}" % (x, x, x)); both("v_lshlrev_b32 v{%s}, 16, v{%s}" % (x, x))
    both("v_mov_b32 v{v}, s{s}"); both("v_mul_f32 v{v}, 0x3b000000, v{v}")
    rnd("v"); both("v_add_f32 v{v}, 0x3727c5ac, v{v}"); rnd("v")
    both("v_sqrt_f32 v{v}, v{v}"); rnd("m"); rnd("v"); both("v_rcp_f32 v{v}, v{v}")
    for r in range(2):
        for j in range(0, 8, 2): e(f"v_pk_add_f32 {P2(X[r]+j)}, {P2(X[r]+j)}, {bsel(MEAN[r])[0]} {NEGB(MEAN[r])}")
        for j in range(4): e(f"v_cvt_pk_bf16_f32 v{64+4*r+j}, v{X[r]+2*j}, v{X[r]+2*j+1}")
        for j in range(4):
            e(f"v_lshlrev_b32 v{X[r]+2*j}, 16, v{64+4*r+j}")
            e(f"v_and_b32 v{X[r]+2*j+1}, 0xffff0000, v{64+4*r+j}")
        for j in range(0, 8, 2): e(f"v_pk_mul_f32 {P2(X[r]+j)}, {P2(X[r]+j)}, {bsel(VAR[r])[0]} {bsel(VAR[r])[1]}")
        for j in range(4): e(f"v_cvt_pk_bf16_f32 v{64+4*r+j}, v{X[r]+2*j}, v{X[r]+2*j+1}")
    return L

class MemQ:
    def __init__(self, e): self.e = e; self.items = []
    def add(self, kind, lo, hi, *a): self.items.append([kind, lo, hi, a])
    def fillers(self):
        e = self.e; out = []
        dm = [k for k, it in enumerate(self.items) if it[0] == 'd']
        nxt = {dm[j]: dm[j+1] for j in range(len(dm) - 1)}
        self.first_m0 = self.items[dm[0]][3][0]
        for k, (kind, lo, hi, a) in enumerate(self.items):
            if kind == 's': out.append(Filler(lambda a=a: e(a[0].replace(" ! ", "\n")), 4, "salu", lo, hi))
            elif kind == 'l': out.append(Filler(lambda a=a: e.vmem(a[0], a[1]), 4, "mem", lo, hi))
            elif kind == 'f': out.append(Filler(a[0], a[1], a[2], lo, hi))
            else:
                def fn(k=k, a=a):
                    if len(a) > 3: e.need(lg=a[3])
                    if " m0," in e.L[-1]: e("s_nop 0")
                    e.vmem(a[1], a[2])
                    if k in nxt: e(self.items[nxt[k]][3][0])
                out.append(Filler(fn, 8, "mem", lo, hi))
        return out


def body(e):
    i, h, w = S_BLK, S_HEAD, S_WAVE
    go, late = kernel_head(e)
    NS = 32; BAR = 42; INF = 10**9; P = -10**6
    mq = MemQ(e)
    def S(lo, hi, *lines):
        for t in lines: mq.add('s', lo, hi, t)
    def VV(lo, hi, *lines):
        for t in lines: mq.add('f', lo, hi, lambda t=t: e(t), 4, "valu")
    V_GOFF = V_KPERM; V_TRH = V_AOFF + V_ARD
    S_GO = S_T1
    def area(gs):
        if gs < 16: return (gs % 4)*16384
        if gs < 24: return ((gs % 4)*32768 + 65536) % 131072
        return ((gs - 24)*16384 + 65536) % 131072
    def w_stage(gs, lo, step, hi):
        slot = gs % 4
        if gs < 16:
            s = gs % 8
            if s == 0: S(lo - 8, hi, f"s_lshl_b32 s{S_OFF0}, s{S_ROT}, 19", f"s_lshl_b32 s{S_T5}, s{h}, 8", f"s_add_u32 s{S_OFF0}, s{S_OFF0}, s{S_T5}")
            else: S(lo - 8, hi, f"s_add_u32 s{S_OFF0}, s{S_OFF0}, {1<<19}", f"s_and_b32 s{S_OFF0}, s{S_OFF0}, {4*MB-1}")
            for n in range(4):
                mq.add('d', lo + step*n, hi, f"s_add_u32 m0, s{S_WL}, {slot*16384 + n*4096}",
                       f"buffer_load_dwordx4 v{V_WOFF[n]}, {srd(S_WUK if gs < 8 else S_WUV)}, s{S_OFF0} offen lds", ("W", gs))
        elif gs >= 24:
            s = gs % 4; hf = (gs // 4) % 2
            S(lo - 10, hi, f"s_add_u32 s{S_OFF0}, s{S_ROTB}, {s}", f"s_and_b32 s{S_OFF0}, s{S_OFF0}, 3", f"s_lshl_b32 s{S_OFF0}, s{S_OFF0}, 20",
              f"s_lshl_b32 s{S_T5}, s{h}, 8", f"s_add_u32 s{S_OFF0}, s{S_OFF0}, s{S_T5}")
            if hf: S(lo - 10, hi, f"s_add_u32 s{S_OFF0}, s{S_OFF0}, 128")
            for n in range(4):
                if n: S(lo + step*n - 2, hi, f"s_add_u32 s{S_OFF0}, s{S_OFF0}, {32*8192}")
                mq.add('d', lo + step*n, hi, f"s_add_u32 m0, s{S_WL}, {area(gs) + n*4096}",
                       f"buffer_load_dwordx4 v{V_WOFF[0]}, {srd(S_WQ)}, s{S_OFF0} offen lds", ("W", gs))
    def g_stage(s, lo, step, hi):
        S(lo - 10, hi, f"s_add_u32 s{S_GO}, s{S_ROTB}, {s}", f"s_and_b32 s{S_GO}, s{S_GO}, 3", f"s_mul_i32 s{S_GO}, s{S_GO}, {128*3584}",
          f"s_lshl_b32 s{S_T5}, s{S_GJ}, 7", f"s_add_u32 s{S_GO}, s{S_GO}, s{S_T5}")
        for n in range(8):
            if n and n % 2 == 0: S(lo + step*n - 2, hi, f"s_add_u32 s{S_GO}, s{S_GO}, {32*3584}")
            mq.add('d', lo + step*n, hi, f"s_add_u32 m0, s{S_WL}, {area(16 + s) + n*4096}",
                   f"buffer_load_dwordx4 v{V_GOFF}, {srd((S_WG, S_WU)[n % 2])}, s{S_GO} offen lds", ("W", 16 + s))
    def a_stage(s, lo, step, hi):
        S(lo - 6, hi, f"s_add_u32 s{S_OFFA}, s{S_ROT}, {s}", f"s_and_b32 s{S_OFFA}, s{S_OFFA}, 7", f"s_lshl_b32 s{S_OFFA}, s{S_OFFA}, 7", f"s_add_u32 s{S_OFFA}, s{S_OFFA}, s{S_AROW}")
        for q in range(8):
            if q and q % 2 == 0: S(lo + step*q - 2, hi, f"s_add_u32 s{S_OFFA}, s{S_OFFA}, 16384")
            mq.add('d', lo + step*q, hi, f"s_add_u32 m0, s{S_WA}, {(s % 2)*32768 + q*1024}",
                   f"buffer_load_dwordx4 v{V_AOFF[q & 1]}, {srd(S_CKV)}, s{S_OFFA} offen lds", ("A", s), [("AF", s-2, 0), ("AF", s-2, 1)])
    def xn_stage(s, lo, step, hi):
        if s % 2 == 0: S(lo - 6, hi, f"s_add_u32 s{S_OFFA}, s{S_ROTB}, {s//2}", f"s_and_b32 s{S_OFFA}, s{S_OFFA}, 3", f"s_lshl_b32 s{S_OFFA}, s{S_OFFA}, 14", f"s_add_u32 s{S_OFFA}, s{S_OFFA}, s{S_XNB}")
        for ksub in range(2):
            if ksub or s % 2: S(lo + step*4*ksub - 2, hi, f"s_add_u32 s{S_OFFA}, s{S_OFFA}, 4096")
            for rb in range(4):
                mq.add('l', lo + step*(ksub*4 + rb), hi, f"buffer_load_dwordx4 {ar(actf(2*s+ksub, rb))}, v{V_L16}, {srd(S_WS)}, s{S_OFFA} offen offset:{rb*1024}{SC}", ("XN", 2*s+ksub))
    V_PO = V_TMP[13]
    poll_xn = Poll(e, "xn", V_PO); poll_kv = Poll(e, "kv", V_PO); poll_b = Poll(e, "b", V_TMP[15]); poll_c = Poll(e, "c", V_TMP[15])
    V_RT = V_TMP[8]; V_RTA = V_TMP[9:13]; V_PFD = V_TMP[1]
    RTL, RTS, RG = OPT.get("rtl", 17), OPT.get("rts", 20), OPT.get("rtgap", 32)
    S_RL = S_RET
    PRO = OPT.get("pro", 1); KVS = OPT.get("kvs", 29)
    w_stage(0, P, 0, INF); a_stage(0, P, 0, INF)
    n_pro0 = len(mq.items)
    S(P, INF, f"s_lshl_b32 s{S_T2}, s{w}, 8", f"s_add_u32 s{S_T2}, s{S_T2}, s2", f"s_lshr_b32 s{S_T3}, s{S_T2}, 3", f"s_add_u32 s{S_T4}, s{S_T2}, s{S_T3}", f"s_and_b32 s{S_T4}, s{S_T4}, 7",
      f"s_cmp_lt_u32 s{S_T2}, 448 ! s_cselect_b32 s{S_WD+2}, {1792*1024}, 0", f"s_cmp_lt_u32 s{S_T2}, 448 ! s_cselect_b32 s{S_BSRD+2}, {WS_END}, 0")
    VV(P, INF, f"v_lshrrev_b32 v{V_RT}, 3, v{V_LANE}", f"v_lshl_add_u32 v{V_RT}, v{V_RT}, 10, v{V_UOFF}", f"v_mul_u32_u24 v{V_GOFF}, 3584, v{V_KPERM}", f"v_add_u32 v{V_GOFF}, v{V_GOFF}, v{V_UOFF}")
    if PRO >= 1: w_stage(1, P, 0, INF)
    if PRO >= 2: a_stage(1, P, 0, INF)
    if PRO >= 3: w_stage(2, P, 0, INF)
    n_pro1 = len(mq.items)
    if PRO < 1: w_stage(1, 0, 1, 20)
    if PRO < 2: a_stage(1, 0, 1, 30)
    if PRO < 3: w_stage(2, 10, 1, 36)
    def rt_loads(E0, half):
        for q in range(2*half, 2*half + 2):
            if OPT.get("rtlin"): S(E0, INF, f"s_add_u32 s{S_RL}, s{S_RL}, 1024" if q else f"s_lshl_b32 s{S_RL}, s{S_T4}, 12 ! s_lshl_b32 s{S_T5}, s{S_T3}, 3 ! s_add_u32 s{S_RL}, s{S_RL}, s{S_T5}")
            else: S(E0, INF, f"s_add_u32 s{S_RL}, s{S_RL}, 8192" if q else f"s_lshl_b32 s{S_RL}, s{S_T4}, 7 ! s_lshl_b32 s{S_T5}, s{S_T3}, 3 ! s_add_u32 s{S_RL}, s{S_RL}, s{S_T5}")
            for t, sr in enumerate((S_WO, S_WD)):
                mq.add('d', E0 + ((4 + 14*(q % 2) + 7*t) if RTL > 5 else 36), E0 + (33 if RTL > 5 else 60), f"s_add_u32 m0, s{S_WA}, {65536 + t*4096 + q*1024}", f"buffer_load_dwordx4 v{V_L16 if OPT.get('rtlin') else V_RT}, {srd(sr)}, s{S_RL} offen lds", "RT")
    for gs in range(NS):
        b = gs * 64
        if gs + 2 < 8: a_stage(gs + 2, b + (6 if gs or PRO >= 3 else 22), (4 if gs or PRO >= 3 else 2), b + 41)
        PFS = OPT.get("pfs", {})
        if gs == 1:
            VV(b + 2, INF, f"v_lshrrev_b32 v{V_PO}, 2, v{V_LANE}", f"v_lshlrev_b32 v{V_PO}, 7, v{V_PO}", f"v_and_or_b32 v{V_PO}, v{V_LANE}, 3, v{V_PO}", f"v_lshlrev_b32 v{V_PO}, 6, v{V_PO}",
               f"v_lshlrev_b32 v{V_TMP[5]}, 6, v{V_LANE}", f"v_min_u32 v{V_TMP[4]}, 1728, v{V_TMP[5]}")
        for n_, c_ in enumerate(PFS.get(gs, "")):
            if c_ in "qv":
                S(b + 2, INF, f"s_lshl_b32 s{S_T1}, s{i}, 2", f"s_add_u32 s{S_T1}, s{S_T1}, s{w}", f"s_lshl_b32 s{S_T1}, s{S_T1}, 17", f"s_lshl_b32 s{S_T5}, s{h}, 8", f"s_add_u32 s{S_T1}, s{S_T1}, s{S_T5}")
                vo = V_PO
            else:
                S(b + 2, INF, f"s_lshl_b32 s{S_T1}, s2, 2", f"s_add_u32 s{S_T1}, s{S_T1}, s{w}", f"s_mul_i32 s{S_T1}, s{S_T1}, {4096 if c_ == 'o' else 1792}")
                vo = V_TMP[5] if c_ == "o" else V_TMP[4]
            mq.add('l', b + 8, INF, f"buffer_load_dword v{V_TMP['qgu'.find(c_) % 4]}, v{vo}, {srd(dict(q=S_WQ, v=S_WUV, g=S_WG, u=S_WU, o=S_WO, d=S_WD)[c_])}, s{S_T1} offen", "PF")
        if gs == 6: S(b + 10, INF, f"s_min_u32 s{S_WG+2}, s{S_WG+2}, s{S_HSRD+2}", f"s_mov_b32 s{S_WU+2}, s{S_WG+2}")
        GS = OPT.get("gs", (7, 8))
        if gs in GS: g_stage(GS.index(gs), b + 4, 3, b + 41)
        if gs == 8:
            t0, t1 = V_TMP[2:4]
            S(b + 4, b + 30, f"s_lshl_b32 s{S_T5}, s{S_QT}, 7", f"s_add_u32 s{S_T5}, s{S_T5}, {WS_FX}")
            VV(b + 4, b + 30, f"v_and_b32 v{V_PO}, 7, v{V_LANE}", f"v_lshlrev_b32 v{V_PO}, 2, v{V_PO}", f"v_add_u32 v{V_PO}, s{S_T5}, v{V_PO}")
            mq.add('f', b + 28, b + 36, poll_xn.issue, 4, "mem")
        if gs == 9: mq.add('f', b + 2, b + 6, poll_xn.check, 8, "valu")
        if 9 <= gs <= 16: xn_stage(gs - 9, b + 8, 4, b + 41)
        if gs == 10: VV(b + 20, INF, *[f"v_add_u32 v{V_TRH[c]}, 65536, v{V_TR[c]}" for c in range(4)])
        if gs in (RTL, RTL + 1) and not OPT.get("nortl"): rt_loads(b, gs - RTL)
        if gs == 27:
            S(b + 4, b + 30, f"s_and_b32 s{S_T5}, s2, 31", f"s_lshl_b32 s{S_T5}, s{S_T5}, 7", f"s_add_u32 s{S_T5}, s{S_T5}, {WS_FK}")
            VV(b + 4, b + 30, f"v_and_b32 v{V_PO}, 7, v{V_LANE}", f"v_lshlrev_b32 v{V_PO}, 2, v{V_PO}", f"v_add_u32 v{V_PO}, s{S_T5}, v{V_PO}")
        if gs == KVS - 1: mq.add('f', b + 26, b + 33, poll_kv.issue, 4, "mem")
        if gs + 3 < NS: w_stage(gs + 3, b + 44, 4, b + 64 + 5)
        if gs in (14, 16): g_stage(2 + (gs - 14)//2, b + 44, 3, b + 64 + 7)
    b = KVS*64
    mq.add('f', b + 4, b + 8, poll_kv.check, 8, "valu")
    for st in range(2):
        S(b, INF, f"s_mov_b32 s{S_ASRD+2}, {WS_END}" if st else f"s_cmp_lt_u32 s{w}, 2 ! s_cselect_b32 s{S_ASRD+2}, {WS_END}, 0")
        for j in range(8):
            if j == 4: S(b, INF, f"s_add_u32 s{S_T4}, s{S_SRCA}, 4096")
            mq.add('d', b + 8 + st*64 + 6*j, INF, f"s_add_u32 m0, s{S_LA}, {st*32768 + (j//4)*4096}",
                   f"buffer_load_dwordx4 v{V_L16}, {srd(S_ASRD)}, s{S_T4 if j >= 4 else S_SRCA} offen offset:{(j%4)*1024}{SC} lds", ("KV", st))
        if st == 0: S(b, INF, f"s_cmp_ge_u32 s{w}, 2 ! s_cselect_b32 s{S_T4}, 0, 2", f"s_lshl_b32 s{S_T4}, s{S_T4}, 13", f"s_add_u32 s{S_SRCA}, s{S_SRCA}, s{S_T4}")
        else: S(b, INF, f"s_add_u32 s{S_SRCA}, s{S_SRCA}, 16384")
    mfill = mq.fillers()
    e(mq.first_m0)
    started = False
    for f in mfill[:n_pro0]:
        if f.cost == 8 and not started: go(); started = True
        f.fn()
        if f.cost == 8: e("s_nop 0")
    late()
    if OPT.get("tlb", 0):
        a, b, c = S_N, S_EVT, S_TRANS
        e(f"""s_lshr_b32 s{a}, s2, 3
        s_and_b32 s{b}, s{a}, 7
        s_add_u32 s{b}, s{b}, 2
        s_cmp_eq_u32 s{w}, 2
        s_cselect_b32 s{b}, 10, s{b}
        s_and_b32 s{c}, s{w}, 1
        s_lshr_b32 s{S_T0}, s{w}, 1
        s_cmp_eq_u32 s{c}, s{S_T0}
        s_cselect_b32 s{b}, 12, s{b}
        s_lshl_b32 s{S_T1}, s{b}, 3
        s_load_dwordx2 s[{S_ASRD}:{S_ASRD+1}], s[0:1], s{S_T1}
        s_cmp_lt_u32 s{b}, 6
        s_mov_b32 s{S_ASRD+2}, {1792*1024}
        s_cselect_b32 s{S_ASRD+2}, {4*MB}, s{S_ASRD+2}
        s_lshr_b32 s{S_T1}, s{a}, 3
        s_lshl_b32 s{a}, s{a}, 1
        s_add_u32 s{a}, s{a}, s{c}
        s_cmp_eq_u32 s{b}, 12
        s_cselect_b32 s{S_ASRD+2}, {WS_END}, s{S_ASRD+2}
        s_cselect_b32 s{a}, s{a}, s{S_T1}
        s_lshl_b32 s{a}, s{a}, 20
        v_mov_b32 v{V_TMP[5]}, s{a}
        s_waitcnt lgkmcnt(0)""")
        e.vmem(f"buffer_load_dword v{V_TMP[1]}, v{V_TMP[5]}, {srd(S_ASRD)}, 0 offen sc1", "PF")
        e(f"s_mov_b64 s[{S_ASRD}:{S_ASRD+1}], s[{S_WS}:{S_WS+1}]\ns_mov_b32 s{S_ASRD+2}, {WS_END}")
    LNG = OPT.get("lng", 0)
    LNB = 131072 if LNG else 49152
    t0, t1, t2 = V_TMP[2:5]
    def ln_tail():
        e(f"""s_lshl_b32 s{S_T0}, s{w}, 5
    s_add_u32 s{S_T0}, s{S_T0}, {LNB}
    v_lshlrev_b32 v{t0}, 7, v{V_LANE}
    v_add_u32 v{t0}, s{S_T0}, v{t0}""")
        e.ds(f"ds_write_b128 v{t0}, v[64:67]", "LNW"); e.ds(f"ds_write_b128 v{t0}, v[68:71] offset:16", "LNW")
        e(f"""s_lshl_b32 s{S_T0}, s{w}, 11
    s_add_u32 s{S_T0}, s{S_T0}, {LNB}
    v_add_u32 v{t0}, s{S_T0}, v{V_L16}
    v_lshrrev_b32 v{t1}, 5, v{V_LANE}
    v_lshlrev_b32 v{t1}, 12, v{t1}
    v_bfe_u32 v{t2}, v{V_LANE}, 3, 2
    v_lshl_add_u32 v{t1}, v{t2}, 8, v{t1}
    v_and_b32 v{t2}, 7, v{V_LANE}
    v_lshl_add_u32 v{t1}, v{t2}, 4, v{t1}
    s_lshr_b32 s{S_T0}, s2, 3
    s_lshl_b32 s{S_T0}, s{S_T0}, 16
    s_bfe_u32 s{S_T1}, s2, 0x20001
    s_lshl_b32 s{S_T1}, s{S_T1}, 10
    s_add_u32 s{S_T0}, s{S_T0}, s{S_T1}
    s_and_b32 s{S_T1}, s2, 1
    s_lshl_b32 s{S_T1}, s{S_T1}, 7
    s_add_u32 s{S_T0}, s{S_T0}, s{S_T1}
    s_lshl_b32 s{S_T1}, s{w}, 14
    s_add_u32 s{S_T0}, s{S_T0}, s{S_T1}
    s_add_u32 s{S_T1}, s{S_T0}, 8192""")
    if LNG:
        for f in mfill[n_pro0:n_pro1]: f.fn()
    else:
        e.need(vm=["X"])
        ln = layernorm_lines()
        rest = mfill[n_pro0:n_pro1]
        per = len(ln) // (sum(f.cost == 8 for f in rest) + 1) + 1
        while ln or rest:
            for t in ln[:per]: e(t)
            ln = ln[per:]
            while rest:
                f = rest.pop(0); f.fn()
                if f.cost == 8: break
        ln_tail()
    mfill = mfill[n_pro1:]
    P0 = (LNG - 1)*64 + 44 if LNG else 0
    misc = []
    misc.append(Filler(lambda: (e.ds(f"ds_read_b128 v[64:67], v{t0}", "LN"), e.ds(f"ds_read_b128 v[68:71], v{t0} offset:1024", "LN")), 8, "mem", P0 + 2, P0 + 30))
    misc.append(Filler(lambda: (e.need(lg=["LN"]), e.vmem(f"buffer_store_dwordx4 v[64:67], v{t1}, {srd(S_WS)}, s{S_T0} offen{SC}", "XNST")), 8, "mem", P0 + 14, P0 + 40))
    misc.append(Filler(lambda: e.vmem(f"buffer_store_dwordx4 v[68:71], v{t1}, {srd(S_WS)}, s{S_T1} offen{SC}", "XNST"), 8, "mem", P0 + 16, P0 + 41))
    for t in scalar_setup2(e): misc.append(Filler(lambda t=t: e(t.replace(" ! ", "\n")), 4, "salu", 44, 150 + P0))
    S_RA, S_RB = S_N, S_EVT
    rts = [Filler(lambda: e(f"s_add_u32 s{S_RA}, s{S_WA}, 65536"), 4, "salu", 150 + P0)]
    for c in range(4): rts.append(Filler(lambda c=c: e(f"v_add_u32 v{V_RTA[c]}, s{S_RA}, v{V_TR[c]}"), 4, "valu", 150 + P0))
    for t in (f"s_lshl_b32 s{S_RA}, s{S_T4}, 19", f"s_lshl_b32 s{S_T3}, s{S_T3}, 12", f"s_add_u32 s{S_RA}, s{S_RA}, s{S_T3}", f"s_add_u32 s{S_RA}, s{S_RA}, {WS_WOF}",
              f"s_mul_i32 s{S_RB}, s{S_T4}, {56*4096}", f"s_add_u32 s{S_RB}, s{S_RB}, s{S_T3}", f"s_add_u32 s{S_RB}, s{S_RB}, {WS_WDF}"):
        rts.append(Filler(lambda t=t: e(t), 4, "salu", 150 + P0, 185 + P0))
    SIGKV = OPT.get("sigkv", 27)
    for n in range(8):
        t, c = n // 4, n % 4
        d0 = V_PK + (n % 2)*4
        def fr(t=t, c=c, d0=d0, n=n):
            e.need(vm=["RT"])
            for rr in range(2): e.ds(f"ds_read_b64_tr_b16 v[{d0+rr*2}:{d0+rr*2+1}], v{V_RTA[c]} offset:{t*4096 + rr*2048}", ("RTF", n))
        def fs(t=t, c=c, d0=d0, n=n):
            e.need(lg=[("RTF", n)])
            e.vmem(f"buffer_store_dwordx4 {vr(d0)}, v{V_L16}, {srd((S_WS, S_BSRD)[t])}, s{(S_RA, S_RB)[t]} offen offset:{c*1024}{SC}", "RTST")
        if not OPT.get("norts"): rts.append(Filler(fr, 8, "mem", RTS*64 + 40 + RG*n)); rts.append(Filler(fs, 4, "mem", RTS*64 + 40 + RG*n + 12, 30*64 + 30 if POLLALL else (SIGKV - 1)*64))
    mfmas = []; rd = []
    sig_at = {3 + LNG: (["XNST"], sig_lin(WS_FX)), SIGKV: (["KST", "VST"] + ([] if POLLALL else ["RTST"]), SIG_KV)}
    def stage_gate(gs):
        def fn():
            tags = [("W", gs)]
            if gs < 8: tags.append(("A", gs))
            if gs in sig_at: tags += sig_at[gs][0]
            if gs == LNG:
                e("s_nop 7")
                for t in layernorm_lines(): e(t)
                ln_tail()
            f3 = OPT.get("fine3")
            if f3 is not None and 0 <= gs - f3 < 6: stamp(e, 14 + 3*(gs - f3))
            e.need(vm=tags, lg=["LNW"])
            if f3 is not None and 0 <= gs - f3 < 6: stamp(e, 15 + 3*(gs - f3))
            e("s_barrier")
            if f3 is not None and 0 <= gs - f3 < 6: stamp(e, 16 + 3*(gs - f3))
            if gs in sig_at: signal(e, sig_at[gs][1], V_TMP[6])
            if gs % 8 == 0: stamp(e, 2 + gs // 8)
            if OPT.get("fine") is not None and 0 <= gs - OPT["fine"] < 18: stamp(e, 14 + gs - OPT["fine"])
        return fn
    def actread(s, ksub, rb):
        return lambda: e.ds(f"ds_read_b128 {ar(actf(2*s+ksub, rb))}, v{V_ARD[ksub]} offset:{(s % 2)*32768 + rb*2048}", ("AF", s, ksub))
    for gs in range(NS):
        base = gs * 64
        if gs > 0 and gs not in OPT.get("nogate", (20, 21)): rd.append(Filler(stage_gate(gs), 8, "mem", base - 64 + BAR, base - 64 + BAR + 1))
        pend = [Filler(actread(gs, ksub, rb), 4, "mem", base - 64 + BAR, base - 3) for rb in range(4) for ksub in range(2)] if gs < 8 else []
        CH = 2 if gs < 16 else 4
        for g in range(16 // CH):
            g0 = base + g*4*CH
            db = g if gs < 16 else 4*((gs // 4) % 2) + g
            first = gs % (16 // CH) == 0
            for k in range(CH):
                slot = (g*CH + k) % 8
                if gs < 16: c_, off = g % 4, (k*2 + g // 4)*4096
                elif gs < 24: c_, off = 2*((gs // 4) % 2) + g % 2, (k*2 + g // 2)*4096
                else: c_, off = g, k*4096
                off += area(gs)
                for rr in range(2):
                    ad = V_TRH[c_] if off >= 65536 else V_TR[c_]
                    d = V_WF + slot*4 + rr*2
                    n_ = k*2 + rr
                    lo = (g0 - 22 + 2*n_) if CH == 2 else (g0 - 16 + n_)
                    if gs == 16 and g == 1: lo = max(lo, base)
                    rd.append(Filler(lambda d=d, ad=ad, o=(off + rr*2048) % 65536, t=(gs, g): e.ds(f"ds_read_b64_tr_b16 v[{d}:{d+1}], v{ad} offset:{o}", ("F", t)),
                                     4, "mem", max(lo, base - 64 + BAR), g0 - 3))
                    for _ in range(1 if g else 2):
                        if pend: rd.append(pend.pop(0))
            for rb in range(4):
                for kk in range(CH):
                    k = kk if rb % 2 == 0 else CH - 1 - kk
                    kslot = CH*(gs % (16 // CH)) + k
                    def needs(gs=gs, g=g, CH=CH):
                        return e.need(lg=[("F", (gs, g))] + ([("AF", gs, 0), ("AF", gs, 1)] if gs < 8 else []),
                                      vm=[("XN", 4*(gs % 4) + q) for q in range(4)] if 16 <= gs < 20 else ())
                    def m(gs=gs, slot=(g*CH + k) % 8, kslot=kslot, db=db, rb=rb, z=(first and kk == 0), needs=needs):
                        needs()
                        wv = vr(V_WF + slot*4); a = ar(actf(kslot, rb)); d = vr(acc(db, rb))
                        e(mf(d, a, wv, "0" if z else d) if 8 <= gs < 16 else mf(d, wv, a, "0" if z else d))
                    m.pre = needs
                    mfmas.append(m)
    def cvts(base, dst, dl):
        out = []
        for db in range(8):
            for rb in range(4):
                for hh in range(2):
                    d = dst(db, rb, hh); s = acc(db, rb) + 2*hh
                    out.append(Filler(lambda d=d, s=s: e(f"v_cvt_pk_bf16_f32 v{d}, v{s}, v{s+1}"), 4, "valu", base + 448 + 8*db + 2*rb + 1 + 8, dl(db, rb)))
        return out
    cv = cvts(0, lambda db, rb, hh: V_PK + (rb*4 + db//2)*4 + (db & 1)*2 + hh, lambda db, rb: min(512 + 8*db + 2*rb, 512 + 30))
    VH = OPT.get("vh", 1150)
    cvv = cvts(512, lambda db, rb, hh: V_PK + ((db//4)*8 + (rb//2)*4 + db % 4)*4 + (rb & 1)*2 + hh, lambda db, rb: min(1024 + 16*db + 4*rb, 1024 + 16) if db < 4 else min(VH + 39, 1278))
    for f in cvv[32:]: f.earliest = VH
    cv += cvv
    st = []
    G2 = OPT.get("sgap", 34)
    NKV = OPT.get("nkv", 14)
    sched = [(WS_K + n*1024, n, "KST", 512 + 36 + (444 // NKV)*n, 512 + 454 if n < 8 else 1024) for n in range(NKV)]
    sched += [(WS_K + n*1024, n, "KST", 1024 + 4 + G2*(n - NKV), VH - 2) for n in range(NKV, 16)]
    sched += [(WS_V + ((n % 8)//4)*8192 + ((n // 8)*4 + n % 4)*1024, n, "VST", max(1024 + 20 + G2*(n + 16 - NKV), VH + 40 if n >= 8 else 0), (SIGKV - 1)*64 + 20) for n in range(16)]
    for off, n, tag, lo, dl in sched:
        if n % 4 == 0: st.append(Filler(lambda off=off: e(f"s_add_u32 s{S_T2}, s{S_KVST}, {off}"), 4, "salu", lo - 4))
        st.append(Filler(lambda n=n, tag=tag: e.vmem(f"buffer_store_dwordx4 {vr(V_PK + n*4)}, v{V_L16}, {srd(S_WS)}, s{S_T2} offen offset:{(n%4)*1024}{SC}", tag), 4, "mem", lo, dl))
    C0 = -2.0 * math.sqrt(2.0 / math.pi) * math.log2(math.e)
    V_C1 = V_TMP[4]; V_QW = V_TMP[5]
    ge = [Filler(lambda: e(f"v_mov_b32 v{V_C1}, {fb(C0*0.044715):#x}"), 4, "valu", 1100)]
    for hf in range(2):
        lo = 1024 + 256*(hf + 1) - 16 + 11; dl = 1024 + 256*(hf + 2)
        def RW(txt):
            i_ = chk.parse(txt); return (set(i_.r), set(i_.w))
        def V(txt, cost=4): ge.append(Filler(lambda: e(txt), cost, "valu", lo, dl, RW(txt) if OPT.get("ooo", 1) else None))
        for t in [f"s_lshl_b32 s{S_T0}, s{S_GJ}, 13", f"s_add_u32 s{S_T0}, s{S_T0}, {hf*4096}", f"s_add_u32 s{S_T0}, s{S_T0}, s{S_HST}"]:
            ge.append(Filler(lambda t=t: e(t), 4, "salu", lo, dl))
        for rb in range(4):
            lo = 1024 + 256*(hf + 1) - 16 + 4*rb + 11
            for c in range(2):
                G, U = acc(4*hf + c, rb), acc(4*hf + 2 + c, rb); T = V_TMP[0:4]
                for r in range(4): V(f"v_mul_f32 v{T[r]}, v{G+r}, v{G+r}")
                for r in range(4): V(f"v_mul_f32 v{U+r}, v{G+r}, v{U+r}")
                for r in range(4): V(f"v_fmaak_f32 v{T[r]}, v{T[r]}, v{V_C1}, {fb(C0):#x}")
                for r in range(4): V(f"v_mul_f32 v{G+r}, v{G+r}, v{T[r]}")
                for r in range(4): V(f"v_exp_f32 v{G+r}, v{G+r}", 8)
                for r in range(4): V(f"v_add_f32 v{G+r}, 1.0, v{G+r}")
                for r in range(4): V(f"v_rcp_f32 v{G+r}, v{G+r}", 8)
                for r in range(4): V(f"v_mul_f32 v{U+r}, v{U+r}, v{G+r}")
                D = acc(4*hf, rb) + 2*c
                V(f"v_cvt_pk_bf16_f32 v{D}, v{U}, v{U+1}"); V(f"v_cvt_pk_bf16_f32 v{D+1}, v{U+2}, v{U+3}")
            st_ = f"buffer_store_dwordx4 {vr(acc(4*hf, rb))}, v{V_L16}, {srd(S_HSRD)}, s{S_T0} offen offset:{rb*1024}{SC}"
            ge.append(Filler(lambda st_=st_: e.vmem(st_, "HST"), 4, "mem", lo, dl, RW(st_) if OPT.get("ooo", 1) else None))
    ge.append(Filler(lambda: e(f"s_lshl_b32 s{S_T0}, s{w}, 14"), 4, "salu", 1792))
    ge.append(Filler(lambda: e(f"s_add_u32 s{S_T0}, s{S_T0}, 131072"), 4, "salu", 1792))
    ge.append(Filler(lambda: e(f"v_add_u32 v{V_QW}, s{S_T0}, v{V_L16}"), 4, "valu", 1792))
    zero_hi = []
    for hf in range(2):
        for dg in (2*hf, 2*hf + 1):
            for qb in range(4):
                lo = 1536 + 256*hf + 192 + 32*(dg % 2) + 16 + 4*qb + 3 + 8
                def V(txt, cost=4, kind="valu", lo=lo): ge.append(Filler(lambda: e(txt), cost, kind, lo))
                o0, o1 = acc(2*dg, qb), acc(2*dg+1, qb)
                for r in range(4): V(f"v_mul_f32 v{o0+r}, {QSCALE:#x}, v{o0+r}"); V(f"v_mul_f32 v{o1+r}, {QSCALE:#x}, v{o1+r}")
                for d, s_ in ((o0, o0), (o0+1, o0+2), (o0+2, o1), (o0+3, o1+2)): V(f"v_cvt_pk_bf16_f32 v{d}, v{s_}, v{s_+1}")
                ge.append(Filler(lambda o0=o0, qb=qb, dg=dg: e.ds(f"ds_write_b128 v{V_QW}, {vr(o0)} offset:{(qb*4+dg)*1024}", "QW"), 4, "mem", lo))
        for dg in (2*hf, 2*hf + 1):
            for qb in range(4):
                o0 = acc(2*dg, qb)
                for r in range(4): ge.append(Filler(lambda r=r, o0=o0, qb=qb, dg=dg: e(f"v_accvgpr_write_b32 a{A_Q + (qb*4+dg)*4 + r}, v{o0+r}"), 4, "valu", 29*64 + 4))
        if hf == 0:
            for r in range(64): ge.append(Filler(lambda r=r: e(f"v_accvgpr_write_b32 a{A_DACC + r}, 0"), 4, "valu", 31*64 + 4))
    stamp(e, 1)
    e.need(vm=[("W", 0), ("A", 0)]); e.wait_all(vm=False); e("s_barrier")
    e(f"s_mul_i32 s{S_TAG}, s{S_TAG}, 0x9e3779b1\ns_add_u32 s{S_TAG}, s{S_TAG}, 0x7f4a7c15")
    stamp(e, 2)
    k = 0
    while rd[k].earliest < 0: rd[k].fn(); k += 1
    e.maxmem = OPT.get("maxmem", 1)
    rest = e.schedule(mfmas, [rd[k:], mfill, cv, misc, rts, st, att_setup_fillers(e, poll_b), ge], flush=False)
    e("s_nop 7")
    e.c(f"left over fillers: {[len(r) for r in rest]}")
    for r in rest:
        for f in r: f.fn()
    stamp(e, 6)
    attention(e, poll_b, poll_c, zero_hi)
    phase_d(e, poll_c)
    if OPT.get("padto"):
        if "padb" in OPT: e(f"s_lshr_b32 s6, s2, 3\ns_cmp_lg_u32 s6, {OPT['padb']}\ns_cbranch_scc1 L_end")
        if "padx" in OPT: e(f"s_and_b32 s6, s2, 7\ns_cmp_lg_u32 s6, {OPT['padx']}\ns_cbranch_scc1 L_end")
        e(f"s_nop 1\nv_readlane_b32 s6, v{V_STAMP}, 0\ns_add_u32 s6, s6, {OPT['padto']*100}")
        if OPT.get("padph"):
            e(f"v_readlane_b32 s4, v{V_STAMP}, {OPT['padph'][0]}\nv_readlane_b32 s5, v{V_STAMP}, {OPT['padph'][1]}\ns_sub_u32 s5, s5, s4\ns_add_u32 s6, s6, s5")
        e.label("L_pad")
        e("s_memrealtime s[4:5]\ns_waitcnt lgkmcnt(0)\ns_sub_u32 s7, s4, s6\ns_cmp_lt_i32 s7, 0\ns_cbranch_scc1 L_pad")
    else: stamp_flush(e)
    e("s_branch L_end")
    e.cold()
    for p in (poll_xn, poll_kv, poll_b, poll_c): p.spin()
    slow_path(e)
    e.label("L_end")
    e("s_endpgm")

A_Z = 212
S_FIRST = 20
def att_dma(e, which, j):
    if " m0," in e.L[-1]: e("s_nop 0")
    sr, src, ld = ((S_ASRD, S_SRCA, S_LA), (S_BSRD, S_SRCB, S_LB))[which]
    e.vmem(f"buffer_load_dwordx4 v{V_L16}, {srd(sr)}, s{S_T4 if j >= 4 else src} offen offset:{(j%4)*1024}{OPT.get('kvsc', SC)} lds", "KV")
    if which == 1 and OPT.get("boob"): ld = S_FIRST + 3
    ex = ()
    if j == 3: ex = (f"s_add_u32 m0, s{ld}, 4096", f"s_add_u32 s{S_T4}, s{src}, 4096")
    if j == 7: ex = (f"s_mov_b32 m0, s{S_LB}", f"s_add_u32 s{S_SRCA}, s{S_SRCA}, 16384") if which == 0 else (f"s_sub_u32 s{S_VMAXB}, s{S_VMAXB}, 16384", f"s_min_u32 s{S_SRCB}, s{S_VMAXB}, s{S_VCLB}")
    if ex:
        e(ex[0])
        if getattr(e, "defer", None) is not None: e.defer.append(ex[1])
        else: e(ex[1])
def d_load(e, j):
    so = S_DW if j < 4 else S_DH
    e.vmem(f"buffer_load_dwordx4 {ar(A_DOP + j*4)}, v{V_L16}, {srd(S_DSRD)}, s{so} offen offset:{(j%4)*1024}{OPT.get('kvsc', SC)}", "KV")
    if j % 4 == 3: e(f"s_add_u32 s{so}, s{so}, s{S_DINC}")
class M:
    def __init__(self, txt, tag=None): self.txt, self.tag = txt, tag
def d_mfmas():
    return [M(mf(ar(A_DACC + (mb*4+qb)*4), ar(A_DOP + mb*4), ar(A_DOP + 16 + qb*4), ar(A_DACC + (mb*4+qb)*4))) for mb in range(4) for qb in (range(4) if mb % 2 == 0 else range(3, -1, -1))]
def sm_half(e, buf, kb2):
    ex = []; cv = []
    for p in range(8):
        qb, hh = p // 2, p % 2
        r = Sreg(buf, kb2, qb) + 2*hh
        if OPT.get("noexp"): ex += [NOP, NOP]
        else: ex.append(lambda r=r: e(f"v_exp_f32 v{r}, v{r}")); ex.append(lambda r=r: e(f"v_exp_f32 v{r+1}, v{r+1}"))
        d = Preg(buf, qb) + 2*kb2 + hh
        cv.append(lambda r=r, d=d: e(f"v_perm_b32 v{d}, v{r+1}, v{r}, s{S_WUV}" if OPT.get("perm") else f"v_cvt_pk_bf16_f32 v{d}, v{r}, v{r+1}"))
    return ex, cv
def qk_mfmas(buf, half, tag="FR"):
    out = []
    for kb2 in range(2):
        kb = half*2 + kb2
        for qb in range(4):
            for kk in range(4):
                dg = kk if qb % 2 == 0 else 3 - kk
                d = vr(Sreg(buf, kb2, qb))
                c = d if kk else ("0" if kb < qb else vr(V_TD) if kb == qb else vr(V_TN))
                out.append(M(mf(d, ar(A_FB[0] + (kb2*4+dg)*4), ar(A_Q + (qb*4+dg)*4), c), (tag, 0, kb2*4)))
    return out
def pv_mfmas(buf, zero=False, order=range(8)):
    o = []
    for n_, db in enumerate(order):
        for qb in (range(4) if n_ % 2 == 0 else range(3, -1, -1)):
            d = vr(Oreg(db, qb))
            o.append(M(mf(d, ar(A_Z), ar(A_Z), "0")) if zero else M(mf(d, ar(A_FB[1] + db*4), vr(Preg(buf, qb)), d), ("FR", 1, (db // 4)*4)))
    s_ = []
    for qb in range(4):
        d = ar(A_L + qb*4)
        s_.append(M(mf(d, ar(A_Z), ar(A_Z), "0")) if zero else M(mf(d, ar(A_ONE), vr(Preg(buf, qb)), d)))
    if OPT.get("nosum"): s_ = [M("s_nop 0")]*4
    return o, s_
def frag_reads(e, fb_, off, order=range(8), tag="FR"):
    return [lambda j=j: e.ds(f"ds_read_b128 {ar(A_FB[fb_] + j*4)}, v{V_RD} offset:{off + j*1024}", (tag, fb_, (j // 4)*4)) for j in order]
NOP = lambda: None
def run(e, mfmas, gaps, nxt=None, skipw=-1):
    if mfmas[0].tag: e.need(lg=[mfmas[0].tag])
    for i, m in enumerate(mfmas):
        if m.txt: e(m.txt)
        t = mfmas[i+1].tag if i + 1 < len(mfmas) else nxt
        w_ = e.need(lg=[t]) if t and i != skipw else False
        if getattr(e, "defer", None) and not w_: e(e.defer.pop(0))
        for f in gaps.get(i, ()): f()
def section(e, mfmas, reads, ex, cv, carry, g2, nxt=None, tail=None):
    gaps = {}
    for q in range(8):
        gaps[4*q] = [reads[q], (carry or NOP) if q == 0 else cv[q-1]]
        gaps[4*q+1] = [ex[2*q]]; gaps[4*q+2] = [g2[q]]; gaps[4*q+3] = [ex[2*q+1]]
    if len(mfmas) > 32: gaps[32] = [cv[7]]
    for k, f in (tail or {}).items(): gaps.setdefault(k, []).insert(0, f)
    run(e, mfmas, gaps, nxt)
    return cv[7] if len(mfmas) == 32 else None
S_LIM = S_WUV + 1
PREP = [f"s_cmp_le_u32 s{S_N}, 15\ns_cselect_b32 s{S_T0}, 32768, s{S_T1}", f"s_cmp_le_u32 s{S_N}, s{S_LIM}\ns_cselect_b32 s{S_ASRD+2}, {WS_END}, 0", f"s_add_u32 s{S_T3}, s{S_N}, 2\ns_xor_b32 s{S_LB}, s{S_LB}, s{S_T0}",
        f"s_cmp_ge_u32 s{S_T3}, s{S_N0}\ns_cselect_b32 s{S_BSRD+2}, s{S_ASRD+2}, 0" + (f"\ns_cselect_b32 s{S_FIRST+3}, s{S_LB}, s{S_T1}" if OPT.get("boob") else ""), f"s_xor_b32 s{S_LA}, s{S_LA}, s{S_T0}\ns_mov_b32 m0, s{S_LA}"]
PREP0 = f"s_mov_b32 s{S_T1}, 0x30000"
LR = V_TMP[10:14]
def check_lines(ret, qt):
    return [f"v_min3_f32 v{V_LIM+1}, v{LR[0]}, v{LR[1]}, v{LR[2]}\nv_add_f32 v{V_LIM}, v{LR[0]}, v{LR[1]}",
            f"v_add_f32 v{V_LIM}, v{V_LIM}, v{LR[2]}\nv_min_f32 v{V_LIM+1}, v{V_LIM+1}, v{LR[3]}",
            f"s_mov_b32 s{S_RET}, {ret}\nv_add_f32 v{V_LIM}, v{V_LIM}, v{LR[3]}\nv_cmp_nle_f32 vcc, 0x17800000, v{V_LIM+1}",
            f"s_mov_b64 s[{S_FL}:{S_FL+1}], vcc\ns_mov_b32 s{S_CNT}, s{qt}\nv_cmp_nge_f32 vcc, {OPT.get('lhi', 0x67800000):#x}, v{V_LIM}",
            f"s_or_b64 vcc, vcc, s[{S_FL}:{S_FL+1}]\n" + ("s_nop 0" if OPT.get("noslow") else "s_cbranch_vccnz L_slow")]
def bsel(r):
    return (f"v[{r & ~1}:{(r & ~1) + 1}]", "op_sel:[0,1] op_sel_hi:[1,1]" if r & 1 else "op_sel_hi:[1,0]")
def norm_items(e, dbs, sbase, pk=False):
    it = []
    for dg in sorted({d // 2 for d in dbs}):
        it.append((lambda dg=dg: e(f"s_add_u32 s{S_T0}, s{sbase}, {dg*4096}"), 0, 2*dg+1))
        for qb in range(4):
            o0, o1 = Oreg(2*dg, qb), Oreg(2*dg+1, qb)
            for r in range(4):
                for o in (o0, o1):
                    if not pk: it.append((lambda o=o, r=r, qb=qb: e(f"v_mul_f32 v{o+r}, v{o+r}, v{LR[qb]}"), 4, 2*dg+1))
                    elif r % 2 == 0: it.append((lambda o=o, r=r, qb=qb: e(f"v_pk_mul_f32 {vr(o+r, 2)}, {vr(o+r, 2)}, {bsel(LR[qb])[0]} {bsel(LR[qb])[1]}"), 4, 2*dg+1))
            for d, s_ in ((o0, o0), (o0+1, o0+2), (o0+2, o1), (o0+3, o1+2)): it.append((lambda d=d, s_=s_: e(f"v_cvt_pk_bf16_f32 v{d}, v{s_}, v{s_+1}"), 4, 2*dg+1))
            it.append((lambda o0=o0, qb=qb: e.vmem(f"buffer_store_dwordx4 {vr(o0)}, v{V_L16}, {srd(S_WS)}, s{S_T0} offen offset:{qb*1024}{SC}", "CST"), 8, 2*dg+1))
    return it
def emit_items(items, extra=()):
    extra = list(extra)
    for f, c, _ in items:
        f()
        if c == 8:
            for _ in range(2):
                if extra: extra.pop(0)()
    for f in extra: f()
def sm_tail(e, order=range(8)):
    ex, cv = sm_half(e, 1, 1)
    for f in frag_reads(e, 1, 16384, order): f()
    for p in range(8):
        ex[2*p](); ex[2*p+1]()
        if p: cv[p-1]()
    e("s_nop 0"); cv[7]()

S_WOo, S_AC = S_OFF0, S_OFFA
WSLOT = [14, 15, 4, 5, 13, 12, 6, 7, 0, 1, 2, 3, -2, -3, 8, 9, 10, 11]
NWS = len(WSLOT)
def adv(so, base):
    if not OPT.get("drot", 0): return f"s_add_u32 s{so}, s{so}, 4096"
    return f"s_add_u32 s{so}, s{so}, 4096\ns_and_b32 s{so}, s{so}, 0x1ffff\ns_or_b32 s{so}, s{so}, s{base}"
def wreg(n, q):
    s_ = WSLOT[n % NWS]
    return ar(s_*16 + q*4) if s_ >= 0 else vr(-s_*16 + q*4)
def wo_load(e, n, q):
    e.vmem(f"buffer_load_dwordx4 {wreg(n, q)}, v{V_L16}, {srd(S_WS)}, s{S_WOo} offen offset:{q*1024}{SC}", ("WO", n))
    if q == 3: e(adv(S_WOo, S_AROW))

V_TRI = (9, 10, 11, 30)
V_SIG, V_TAGV, V_QA, V_ONE = 12, 13, 14, 15
S_D1, S_D2, S_M = S_FIRST + 2, S_FIRST, S_FIRST + 1
def att_setup_fillers(e, poll_b):
    i, h, w = S_BLK, S_HEAD, S_WAVE
    out = []
    def add(lo, hi, txt):
        for t in txt.split("\n"):
            t = t.strip()
            out.append(Filler(lambda t=t: e(t.replace(" ! ", "\n")), 4, "salu" if t.startswith("s_") else "valu", lo, hi))
    a, b, c, d = V_TRI; pv = poll_b.voff; t = S_M
    lo, hi = 17*64 + 10, 20*64
    add(lo, hi, f"""v_lshrrev_b32 v{d}, 4, v{V_LANE}
    v_lshlrev_b32 v{d}, 2, v{d}
    v_and_b32 v{a}, 15, v{V_LANE}
    v_sub_u32 v{a}, v{a}, v{d}
    v_subrev_u32 v{b}, 1, v{a}
    v_subrev_u32 v{c}, 2, v{a}
    v_subrev_u32 v{d}, 3, v{a}""")
    for r in V_TRI: add(lo, hi, f"v_ashrrev_i32 v{r}, 31, v{r}\nv_and_b32 v{r}, {NEGINF:#x}, v{r}")
    add(lo, hi, f"""s_lshr_b32 s{t}, s{h}, 1
    s_sub_u32 s{S_D1}, 15, s{t}
    s_min_u32 s{t}, s{t}, s{S_D1}
    s_lshl_b32 s{t}, s{t}, 9
    s_add_u32 s{t}, s{t}, {WS_FB}
    v_bfe_u32 v{pv}, v{V_LANE}, 3, 2
    v_lshlrev_b32 v{pv}, 5, v{pv}
    v_and_or_b32 v{pv}, v{V_LANE}, 7, v{pv}
    v_lshlrev_b32 v{pv}, 2, v{pv}
    v_add_u32 v{pv}, s{t}, v{pv}
    s_lshl_b32 s{S_TRANS}, s{i}, 1
    s_add_u32 s{S_TRANS}, s{S_TRANS}, s{w}
    s_sub_u32 s{S_TRANS}, s{S_TRANS}, 1
    s_sub_u32 s{S_D1}, s{S_TRANS}, 1
    s_add_u32 s{S_D2}, s{S_TRANS}, 1
    s_cmp_eq_u32 s{i}, 7 ! s_cselect_b32 s{t}, 16, 99
    s_cmp_eq_u32 s{w}, 0 ! s_cselect_b32 s{t}, s{t}, 99
    s_cmp_lt_u32 s{w}, 2 ! s_cselect_b32 s{S_D1}, s{t}, s{S_D1}
    s_cmp_lt_u32 s{w}, 2 ! s_cselect_b32 s{S_D2}, 99, s{S_D2}
    s_cmp_lt_u32 s{w}, 2 ! s_cselect_b32 s{S_TRANS}, 17, s{S_TRANS}
    s_sub_u32 s{S_VMAXB}, s{S_VMAXB}, 16384
    s_min_u32 s{S_SRCB}, s{S_VMAXB}, s{S_VCLB}
    s_lshr_b32 s{t}, s2, 3
    s_lshl_b32 s{t}, s{t}, 5
    s_and_b32 s{S_FIRST+3}, s2, 7
    s_add_u32 s{t}, s{t}, s{S_FIRST+3}
    s_lshl_b32 s{t}, s{t}, 2
    s_add_u32 s{t}, s{t}, {WS_FB}
    s_sub_u32 s{S_FIRST+3}, 3, s{w}
    s_lshl_b32 s{S_FIRST+3}, s{S_FIRST+3}, 14
    s_add_u32 s{S_FIRST+3}, s{S_FIRST+3}, 131072""")
    lo, hi = 28*64, 31*64
    add(lo, hi, f"""v_mov_b32 v{V_TAGV}, s{S_TAG}
    v_add_u32 v{V_SIG}, s{S_WL}, v{V_LANE}
    v_min_u32 v{V_SIG}, 1, v{V_SIG}
    v_lshlrev_b32 v{V_SIG}, 30, v{V_SIG}
    v_add_u32 v{V_SIG}, s{t}, v{V_SIG}
    v_add_u32 v{V_QA}, s{S_FIRST+3}, v{V_L16}
    v_and_b32 v{V_ONE}, 3, v{V_LANE}
    v_subrev_u32 v{V_ONE}, 1, v{V_ONE}
    v_ashrrev_i32 v{V_ONE}, 31, v{V_ONE}
    v_and_b32 v{V_ONE}, 0x3f803f80, v{V_ONE}
    s_mov_b32 s{S_T2}, 1
    s_lshr_b32 s{S_LIM}, s{w}, 1
    s_add_u32 s{S_N0}, s{S_N0}, s{S_LIM}
    s_add_u32 s{S_LIM}, s{S_LIM}, 14
    s_mov_b32 s{S_N}, -1
    s_mov_b32 s{S_DSRD+2}, 0""")
    return out

def Sq(c): return V_S[0] + c*4
def ring(g, j): return A_FB[0] + (g % 4)*16 + j*4
def qk2(tag="FR"):
    out = []
    for c in range(16):
        kb, qb = c // 4, c % 4
        for kk in range(4):
            dg = kk if c % 2 == 0 else 3 - kk
            d = vr(Sq(c))
            cc = d if kk else ("0" if kb < qb else vr(V_TD) if kb == qb else vr(V_TN))
            out.append(M(mf(d, ar(ring(kb, dg)), ar(A_Q + (qb*4+dg)*4), cc), (tag, kb)))
    return out
def pv2(order=(0, 1, 2, 3)):
    o = []; c = 0
    for n, p in enumerate(order):
        for x in range(2):
            for qb in (range(4) if x == 0 else range(3, -1, -1)):
                d = vr(Oreg(2*p + x, qb))
                for kg in ((0, 1) if c % 2 == 0 else (1, 0)):
                    o.append(M(mf(d, ar(ring(n, x*2 + kg)), vr(Preg(kg, qb)), d), ("FR", 4 + n)))
                c += 1
    s_ = [M(mf(ar(A_L + qb*4), ar(A_ONE), vr(Preg(kg, qb)), ar(A_L + qb*4))) for qb in range(4) for kg in range(2)]
    return o, s_
def kreads(e, g, tag="FR"): return [lambda j=j: e.ds(f"ds_read_b128 {ar(ring(g, j))}, v{V_RD} offset:{g*4096 + j*1024}", (tag, g)) for j in range(4)]
def vreads(e, n, p): return [lambda j=j: e.ds(f"ds_read_b128 {ar(ring(n, j))}, v{V_RD} offset:{16384 + (j % 2)*8192 + (2*p + j // 2)*1024}", ("FR", 4 + n)) for j in range(4)]
def cvt2(c, hh): return f"v_cvt_pk_bf16_f32 v{Preg(c // 8, c % 4) + 2*((c // 4) % 2) + hh}, v{Sq(c) + 2*hh}, v{Sq(c) + 2*hh + 1}"
def exp2(k): return f"v_exp_f32 v{V_S[0] + k}, v{V_S[0] + k}"
def drain_head(e, order):
    e.need(lg=[("FR", 1)])
    rd_ = [f for n, p in enumerate(order) for f in vreads(e, n, p)]
    for f in rd_[:8]: f()
    for c in range(1, 16):
        e(cvt2(c, 0)); e(cvt2(c, 1))
    for f in rd_[8:]: f()

def attention(e, poll_b, poll_c, zero_hi):
    i, h, w = S_BLK, S_HEAD, S_WAVE
    T = lambda t: (lambda: e(t))
    A = [lambda j=j: att_dma(e, 0, j) for j in range(8)]; B = [lambda j=j: att_dma(e, 1, j) for j in range(8)]; D = [lambda j=j: d_load(e, j) for j in range(8)]
    e(f"v_add_u32 v{V_RD}, 65536, v{V_L16}")
    e.need(vm=[("KV", 0), "HST", "RTST"], lg=["QW"])
    e("s_barrier")
    for g in range(2):
        for f in kreads(e, g, "F0"): f()
    e.vmem(f"buffer_store_dword v{V_TAGV}, v{V_SIG}, {srd(S_WS)}, 0 offen sc1", "SIG")
    MS = [f"s_add_u32 s{S_N}, s{S_N}, 1", f"s_cmp_eq_u32 s{S_N}, s{S_D1}\ns_cselect_b32 s{S_M}, -1, 0", f"s_cmp_eq_u32 s{S_N}, s{S_D2}\ns_cselect_b32 s{S_M}, -1, s{S_M}",
          f"v_and_b32 v{V_TD}, s{S_M}, v{V_TRI[0]}\nv_and_b32 v{V_TD+1}, s{S_M}, v{V_TRI[1]}", f"v_and_b32 v{V_TD+2}, s{S_M}, v{V_TRI[2]}\nv_and_b32 v{V_TD+3}, s{S_M}, v{V_TRI[3]}",
          f"s_and_b32 s{S_M}, s{S_M}, {NEGINF:#x}\nv_mov_b32 v{V_TN}, s{S_M}\nv_mov_b32 v{V_TN+1}, s{S_M}", f"v_mov_b32 v{V_TN+2}, s{S_M}\nv_mov_b32 v{V_TN+3}, s{S_M}"]
    for t in MS: e(t)
    e(f"s_xor_b32 s{S_LA}, s{S_LA}, 32768")
    XRD = f"v_xor_b32 v{V_RD}, 32768, v{V_RD}"
    CV0 = cvt2(0, 0) + "\n" + cvt2(0, 1)
    def itstamp(dn=0):
        if OPT.get("itst"):
            e(f"s_memtime s[4:5]\nv_subrev_u32 v5, {14 - dn}, v{V_LANE}\nv_cmp_eq_u32 vcc, s{S_N}, v5\ns_waitcnt lgkmcnt(0)\nv_mov_b32 v5, s4\nv_cndmask_b32 v{V_STAMP}, v{V_STAMP}, v5, vcc")
    stamp(e, 7)
    init = [f"v_accvgpr_write_b32 a{A_Z + r}, 0\nv_accvgpr_write_b32 a{A_ONE + r}, v{V_ONE}" for r in range(4)]
    gaps = {}; ne = 0
    kr = kreads(e, 2, "F0") + kreads(e, 3, "F0")
    pre = [PREP0] + PREP + [XRD]
    for k in range(64):
        g = gaps[k] = []
        if k % 2 == 0 and kr: g.append(kr.pop(0))
        elif init: g.append(T(init.pop()))
        elif k >= 16 and k % 6 == 0 and pre: g.append(T(pre.pop(0)))
        elif k >= 4*(ne // 4) + 8 and k < 63: g.append(T(exp2(ne))); ne += 1
    assert not pre
    gaps[63] = [lambda: (e.wait_all(), e("s_barrier"), itstamp())]
    zo, zl = pv_mfmas(1, zero=True)
    mem = [f for p in zip(A, kreads(e, 0) + kreads(e, 1)) for f in p] + B[:4]
    ms = MS + [CV0]
    for k in range(64, 100):
        g = gaps[k] = []
        if (k % 2 == 0 or k >= 96) and mem: g.append(mem.pop(0))
        elif ne < 64: g.append(T(exp2(ne))); ne += 1
    gaps[99] += mem + [T(exp2(k)) for k in range(ne, 64)] + [T(t) for t in ms]
    run(e, qk2("F0") + zo + zl, gaps)
    e.need(lg=[("FR", 0)])
    top = [("FR", 1)]*4
    assert e.lgkm == top, e.lgkm
    e("s_branch L_special")
    e(".p2align 6")
    e.c("attention step: S = K Q^T (64) | O += V P of the previous tile (64+8) | one down-projection step (16)")
    e.label("L_body")
    def loop_body(first):
        e.lgkm = list(top)
        gaps = {k: [] for k in range(152)}
        rds = kreads(e, 2) + kreads(e, 3) + ([] if first else vreads(e, 0, 0) + vreads(e, 1, 1))
        for n, f in enumerate(rds): gaps[4*n].append(f)
        for n, f in enumerate(kreads(e, 0) + kreads(e, 1)): gaps[100 + 4*n].append(f)
        for n, f in enumerate(B[4:] + D): gaps[2 + 4*n].append(f)
        for n, f in enumerate(A + B[:4]): gaps[98 + 4*n].append(f)
        if not first:
            for n, f in enumerate(vreads(e, 2, 2) + vreads(e, 3, 3)): gaps[64 + 2*n].append(f)
            for c in range(1, 16):
                gaps[4*(c-1)].append(T(cvt2(c, 0)))
                gaps[1 + 2*((c - 1)//2)].append(T(cvt2(c, 1)))
        for k in range(64): gaps[17 + 2*k if k != 39 else 96].append(T(exp2(k)))
        gaps[58].append(lambda: e.vmem(poll_b.ld, "KV"))
        gaps[62].append(T(PREP0))
        for n, t in enumerate(PREP + [XRD + chr(10) + MS[0]] + MS[1:3]): gaps[80 + 2*n].append(T(t))
        for n, t in enumerate(MS[3:]): gaps[132 + 4*n].append(T(t))
        gaps[146].append(T(CV0)); gaps[150].append(T(f"s_cmp_eq_u32 s{S_N}, s{S_T2}"))
        gaps[95].insert(0, lambda: e.wait_all())
        gaps[95].append(lambda: (e("s_barrier"), itstamp(1)))
        o, s_ = pv2()
        if first:
            zo, zl = pv_mfmas(1, zero=True)
            o = [M("")]*32 + zo; s_ = zl + [M("")]*4
        e.defer = []
        run(e, qk2() + o + s_ + d_mfmas(), gaps, nxt=("FR", 0), skipw=95)
        assert not e.defer; e.defer = None
        assert e.lgkm == top, e.lgkm
        e("s_cbranch_scc0 L_body")
    loop_body(False)
    e.label("L_special")
    e(f"""s_cmp_lt_u32 s{S_N}, 3
    s_cselect_b32 s{S_T2}, 3, 17
    s_min_u32 s{S_T2}, s{S_T2}, s{S_TRANS}
    s_cmp_eq_u32 s{S_N}, 3
    s_cbranch_scc0 L_late""")
    e(poll_b.test())
    e("s_cbranch_scc0 L_spin_b")
    e.label("L_ok_b")
    e(f"s_mov_b32 s{S_DSRD+2}, {WS_END}\ns_mov_b32 s{S_DINC}, 4096")
    e.label("L_late")
    e(f"s_cmp_eq_u32 s{S_N}, s{S_D2}\ns_cbranch_scc1 L_first")
    e(f"s_cmp_eq_u32 s{S_N}, s{S_TRANS}\ns_cbranch_scc0 L_body")
    e(f"s_cmp_eq_u32 s{S_N}, 17\ns_cbranch_scc0 L_trans")
    LRD = [f"v_accvgpr_read_b32 v{LR[0]}, a{A_L}\nv_accvgpr_read_b32 v{LR[1]}, a{A_L+4}", f"v_accvgpr_read_b32 v{LR[2]}, a{A_L+8}\nv_accvgpr_read_b32 v{LR[3]}, a{A_L+12}"]
    def cold():
        e.label("L_trans")
        e.lgkm = list(top); e.vm = ["KV"]*13
        qr = [lambda j=j: e.ds(f"ds_read_b128 {ar(A_Q + j*4)}, v{V_QA} offset:{j*1024}", "QS") for j in range(16)]
        rcp = [f"v_rcp_f32 v{LR[qb]}, v{LR[qb]}" for qb in range(4)]
        drain_head(e, (0, 1, 2, 3))
        o, s_ = pv2()
        gaps = {k: [f] for k, f in enumerate(B[4:] + D + [lambda: e.vmem(poll_b.ld, "KV")])}
        for k, t in enumerate(LRD + check_lines(0, S_QT) + rcp): gaps[13 + k] = [T(t)]
        items = norm_items(e, range(8), S_CTXLO)
        XB = f"v_xor_b32 v{V_RD}, {32768 + 65536}, v{V_RD}"
        def fill(g, k, left):
            while items and items[0][1] <= left and 8 + 8*(items[0][2] + 1) - 1 + 5 <= k:
                f, c, _ = items.pop(0); g.append(f); left -= c
        gaps[24] = [T(XB)]
        for k in range(25, 72):
            gaps[k] = []; fill(gaps[k], k, 8)
        run(e, s_ + o, gaps)
        def post():
            e(PREP0)
            for t in PREP: e(t.replace(f"s{S_T0}", f"s{S_T5}"))
            e.need(vm=["KV"])
            e("s_barrier")
            itstamp()
            mem = A + B[:4]; lds = qr + kreads(e, 0) + kreads(e, 1)
            gaps = {k: [mem.pop(0)] if k % 4 == 0 else [lds.pop(0), lds.pop(0)] for k in range(16)}
            run(e, d_mfmas(), gaps)
            extra = []
            for f in mem: extra += [f, NOP]
            emit_items(items, extra) if items else [(f(), e("s_nop 0")) for f in mem]
            del items[:]
            for t in MS: e(t)
            e(f"s_mov_b32 s{S_TRANS}, 17")
            e.need(lg=[("FR", 0)])
            assert e.lgkm == top, e.lgkm
            e("s_branch L_special")
        post()
        e.label("L_first")
        e(f"s_cmp_eq_u32 s{S_N}, 17\ns_cbranch_scc1 L_fzero")
        loop_body(True)
        e("s_branch L_special")
        e.label("L_fzero")
        for r in list(range(V_O, V_O + 128)) + list(range(V_S[0], V_S[0] + 64)) + [Preg(0, 0), Preg(0, 0) + 1]: e(f"v_mov_b32 v{r}, 0")
        for r in range(16): e(f"v_accvgpr_write_b32 a{A_L + r}, 0")
        e("s_branch L_final")
        e.label("L_ret0")
        e.lgkm = []; e.vm = []
        for t in rcp: e(t)
        e(XB)
        emit_items(norm_items(e, range(8), S_CTXLO))
        post()
    e.cold = cold
    e.c("last P V, merge of the two key ranges of the hi rows, range check of the row sums, ctx store")
    e.label("L_final")
    stamp(e, 8)
    tw, trd, tl, tlr = V_TMP[0:4]
    e(f"""s_lshl_b32 s{S_T0}, s{w}, 17
    s_lshl_b32 s{S_AC}, s{h}, 19
    s_add_u32 s{S_AC}, s{S_AC}, s{S_T0}
    s_add_u32 s{S_AC}, s{S_AC}, {WS_CTX}
    s_lshl_b32 s{S_WOo}, s{i}, 19
    s_add_u32 s{S_WOo}, s{S_WOo}, s{S_T0}
    s_add_u32 s{S_WOo}, s{S_WOo}, {WS_WOF}
    s_mov_b32 s{S_AROW}, s{S_WOo}
    s_mov_b32 s{S_KVST}, s{S_AC}
    s_mul_i32 s{S_T0}, s2, {OPT.get("drot", 0)*4096}
    s_and_b32 s{S_T0}, s{S_T0}, {0x1ffff if OPT.get("drot", 0) % 4 == 0 else 8*OPT.get("drot", 0)*4096 - 1}
    s_add_u32 s{S_WOo}, s{S_WOo}, s{S_T0}
    s_add_u32 s{S_AC}, s{S_AC}, s{S_T0}
    s_and_b32 s{S_T0}, s{w}, 1
    s_lshl_b32 s{S_T0}, s{S_T0}, 14
    s_lshr_b32 s{S_T1}, s{w}, 1
    s_lshl_b32 s{S_T1}, s{S_T1}, 16
    s_add_u32 s{S_T0}, s{S_T0}, s{S_T1}
    v_add_u32 v{tw}, s{S_T0}, v{V_L16}
    v_xor_b32 v{trd}, {65536 + 16384}, v{tw}
    s_add_u32 s{S_T0}, s{S_WL}, {144*1024}
    v_add_u32 v{tl}, s{S_T0}, v{V_L16}
    v_xor_b32 v{tlr}, 3072, v{tl}
    s_cmp_ge_u32 s{w}, 2
    s_cbranch_scc1 L_mergeB""")
    for role in range(2):
        keep = list(range(4)) if role == 0 else list(range(4, 8))
        send = list(range(4, 8)) if role == 0 else list(range(4))
        if role == 1: e.label("L_mergeB")
        e.lgkm = list(top); e.vm = ["KV"]*13
        order = (2, 3, 0, 1) if role == 0 else (0, 1, 2, 3)
        drain_head(e, order)
        o, s_ = pv2(order)
        gaps = {2*k: [lambda k=k: wo_load(e, k // 4, k % 4)] for k in range(8)}
        for k in range(8): gaps[45 + 3*k] = [lambda k=k: wo_load(e, 2 + k // 4, k % 4)]
        gaps[17] = [T(LRD[0])]; gaps[18] = [T(LRD[1])]
        gaps[19] = [lambda: e.ds(f"ds_write_b128 v{tl}, {vr(LR[0])}")]
        for n in range(16): gaps[23 + 3*n] = [lambda n=n: e.ds(f"ds_write_b128 v{tw}, {vr(V_O + send[0]*16 + n*4)} offset:{n*1024}")]
        if OPT.get("fst"): stamp(e, 14)
        run(e, s_ + o, gaps)
        if OPT.get("fst"): stamp(e, 15)
        e.wait_all(vm=False)
        e("s_barrier")
        if OPT.get("fst"): stamp(e, 16)
        e.ds(f"ds_read_b128 {vr(V_TMP[4])}, v{tlr}", "ML")
        for n in range(16):
            e.ds(f"ds_read_b128 {vr(V_S[0] + n*4)}, v{trd} offset:{n*1024}", ("MO", n // 4))
            if n % 2: wo_load(e, 4 + n // 8, (n // 2) % 4)
        e.need(lg=["ML"])
        for qb in range(4): e(f"v_add_f32 v{LR[qb]}, v{LR[qb]}, v{V_TMP[4] + qb}")
        for t in check_lines(1 + role, S_QTHI): e(t)
        for n in range(16):
            e.need(lg=[("MO", n // 4)])
            for r in (0, 2):
                o = V_O + keep[0]*16 + n*4 + r
                e(f"v_pk_add_f32 {vr(o, 2)}, {vr(o, 2)}, {vr(V_S[0] + n*4 + r, 2)}")
        e.label(f"L_ret{1 + role}")
        for q in range(4): wo_load(e, 6, q)
        if OPT.get("fst"): stamp(e, 17)
        for qb in range(4): e(f"v_rcp_f32 v{LR[qb]}, v{LR[qb]}")
        emit_items(norm_items(e, keep, S_CTXHI, pk=True))
        if role == 0: e("s_branch L_attdone")
    e.c("phase D")
    e.label("L_attdone")
    stamp(e, 9)

def slow_path(e):
    M = V_P[1]; AL = V_P[1] + 4; T = V_P[1] + 8; QI = V_P[1] + 12; NI = V_P[1] + 13
    u, nu, ko, vo = S_T0, S_T1, S_T3, S_T5
    e.c("fallback: exact online softmax with the true running max for the 64 rows of this wave")
    e.label("L_slow")
    e.lgkm = []; e.vm = []
    e("s_waitcnt vmcnt(0) lgkmcnt(0)")
    e(f"""s_lshl_b32 s{nu}, s{S_CNT}, 1
    s_add_u32 s{nu}, s{nu}, 2
    s_lshl_b32 s{ko}, s{S_HEAD}, 19
    s_add_u32 s{vo}, s{ko}, {WS_V}
    s_add_u32 s{ko}, s{ko}, {WS_K}
    s_lshl_b32 s{S_CNT}, s{S_CNT}, 6
    v_lshrrev_b32 v{T}, 4, v{V_LANE}
    v_lshlrev_b32 v{T}, 2, v{T}
    v_and_b32 v{QI}, 15, v{V_LANE}
    v_sub_u32 v{QI}, v{QI}, v{T}
    v_add_u32 v{QI}, s{S_CNT}, v{QI}
    v_mov_b32 v{NI}, {NEGINF:#x}
    s_mov_b32 s{u}, 0""")
    for r in range(128): e(f"v_mov_b32 v{V_O + r}, 0")
    for qb in range(4): e(f"v_mov_b32 v{M+qb}, v{NI}\nv_mov_b32 v{LR[qb]}, 0")
    e.label("L_slowl")
    def ld8(so):
        for j in range(8):
            if j == 4: e(f"s_add_u32 s{so}, s{so}, 4096")
            e.vmem(f"buffer_load_dwordx4 {ar(A_FB[1] + j*4)}, v{V_L16}, {srd(S_WS)}, s{so} offen offset:{(j%4)*1024}{SC}", "SL")
        e(f"s_add_u32 s{so}, s{so}, 4096")
    ld8(ko)
    e.wait_all()
    for kb2 in range(2):
        for dg in range(4):
            for qb in range(4):
                d = vr(Sreg(0, kb2, qb))
                e(mf(d, ar(A_FB[1] + (kb2*4+dg)*4), ar(A_Q + (qb*4+dg)*4), d if dg else "0"))
    e("s_nop 7")
    ld8(vo)
    for kb2 in range(2):
        for qb in range(4):
            for r in range(4):
                s = Sreg(0, kb2, qb) + r
                e(f"v_cmp_gt_i32 vcc, {16*kb2 + r - 16*qb}, v{QI}\ns_nop 1\nv_cndmask_b32 v{s}, v{s}, v{NI}, vcc")
    e(f"v_subrev_u32 v{QI}, 32, v{QI}")
    for qb in range(4):
        a, b = Sreg(0, 0, qb), Sreg(0, 1, qb)
        e(f"""v_max3_f32 v{T}, v{a}, v{a+1}, v{a+2}
        v_max3_f32 v{T}, v{T}, v{a+3}, v{b}
        v_max3_f32 v{T}, v{T}, v{b+1}, v{b+2}
        v_max3_f32 v{T}, v{T}, v{b+3}, v{M+qb}
        v_mov_b32 v{T+1}, v{T}
        s_nop 1
        v_permlane32_swap_b32 v{T}, v{T+1}
        v_max_f32 v{T}, v{T}, v{T+1}
        v_mov_b32 v{T+1}, v{T}
        s_nop 1
        v_permlane16_swap_b32 v{T}, v{T+1}
        v_max_f32 v{T}, v{T}, v{T+1}
        v_sub_f32 v{AL+qb}, v{M+qb}, v{T}
        v_mov_b32 v{M+qb}, v{T}
        v_exp_f32 v{AL+qb}, v{AL+qb}""")
        for s in list(range(a, a+4)) + list(range(b, b+4)):
            e(f"v_sub_f32 v{s}, v{s}, v{T}")
        for s in list(range(a, a+4)) + list(range(b, b+4)):
            e(f"v_exp_f32 v{s}, v{s}")
        e(f"v_mul_f32 v{LR[qb]}, v{LR[qb]}, v{AL+qb}")
        for s in list(range(a, a+4)) + list(range(b, b+4)):
            e(f"v_add_f32 v{LR[qb]}, v{LR[qb]}, v{s}")
        p = Preg(0, qb)
        e(f"v_cvt_pk_bf16_f32 v{p}, v{a}, v{a+1}\nv_cvt_pk_bf16_f32 v{p+1}, v{a+2}, v{a+3}\nv_cvt_pk_bf16_f32 v{p+2}, v{b}, v{b+1}\nv_cvt_pk_bf16_f32 v{p+3}, v{b+2}, v{b+3}")
        for db in range(8):
            for r in range(4): e(f"v_mul_f32 v{Oreg(db, qb)+r}, v{Oreg(db, qb)+r}, v{AL+qb}")
    e.wait_all()
    e("s_nop 1")
    for db in range(8):
        for qb in range(4):
            d = vr(Oreg(db, qb))
            e(mf(d, ar(A_FB[1] + db*4), vr(Preg(0, qb)), d))
    e(f"s_add_u32 s{u}, s{u}, 1\ns_cmp_lt_u32 s{u}, s{nu}\ns_nop 7\ns_cbranch_scc1 L_slowl")
    for qb in range(4):
        e(f"""v_mov_b32 v{T}, v{LR[qb]}
        s_nop 1
        v_permlane32_swap_b32 v{LR[qb]}, v{T}
        v_add_f32 v{LR[qb]}, v{LR[qb]}, v{T}
        v_mov_b32 v{T}, v{LR[qb]}
        s_nop 1
        v_permlane16_swap_b32 v{LR[qb]}, v{T}
        v_add_f32 v{LR[qb]}, v{LR[qb]}, v{T}""")
    e(f"s_cmp_eq_u32 s{S_RET}, 0\ns_cbranch_scc1 L_ret0\ns_cmp_eq_u32 s{S_RET}, 1\ns_cbranch_scc1 L_ret1\ns_branch L_ret2")


def phase_d(e, poll_c):
    qt, mt, w = S_HEAD, S_BLK, S_WAVE
    V_XO, V_X, V_G = 4, 8, 17
    CRS = [64, 80, 96, 112, 208, 224, 240][:OPT.get('ncr', 5)]; NCR = len(CRS)
    V_AS, V_AD = 128, 192
    t0, t1 = 24, 25
    S_XO, S_XO2 = S_XNB, S_HST
    V_WA = (V_TMP[0], V_TMP[2]); V_RA = (t0, V_TMP[3], V_G, V_TMP[4])
    e(f"""v_lshrrev_b32 v{t0}, 5, v{V_LANE}
    v_lshlrev_b32 v{t0}, 6, v{t0}
    v_xor_b32 v{V_WA[0]}, v{V_WA[0]}, v{t0}
    v_xor_b32 v{V_WA[1]}, 128, v{V_WA[0]}""")
    for j in range(16):
        e.ds(f"ds_write_b128 v{V_WA[(j // 4) % 2]}, {ar(A_DACC + j*4)} offset:{32768 + ((j%4)*4 + j//4)*1024}", "DW")
        if j < OPT.get("wpre", 6): wo_load(e, 7 + j // 4, j % 4)
    e(f"""v_lshrrev_b32 v{t0}, 3, v{V_LANE}
    v_and_b32 v{t1}, 7, v{V_LANE}
    v_lshlrev_b32 v{V_XO}, 10, v{t0}
    v_lshl_add_u32 v{V_XO}, v{t1}, 4, v{V_XO}
    v_lshlrev_b32 v{t0}, 4, v{t0}
    v_lshl_add_u32 v{t0}, v{t1}, 9, v{t0}
    s_lshl_b32 s{S_XO}, s{qt}, 16
    s_lshl_b32 s{S_T0}, s{w}, 14
    s_add_u32 s{S_XO}, s{S_XO}, s{S_T0}
    s_lshl_b32 s{S_T1}, s{mt}, 7
    s_add_u32 s{S_XO}, s{S_XO}, s{S_T1}
    s_add_u32 s{S_XO2}, s{S_XO}, 8192
    v_and_b32 v{t1}, 3, v{V_LANE}
    v_lshlrev_b32 v{t1}, 6, v{t1}
    v_xor_b32 v{t0}, v{t0}, v{t1}
    s_lshl_b32 s{S_T0}, s{w}, 12
    v_add_u32 v{V_RA[0]}, s{S_T0}, v{t0}
    v_xor_b32 v{V_RA[1]}, 128, v{V_RA[0]}
    v_add_u32 v{V_RA[2]}, 65536, v{V_RA[0]}
    v_add_u32 v{V_RA[3]}, 65536, v{V_RA[1]}""")
    if OPT.get("pollw", 1):
        v = poll_c.voff
        e(f"""s_lshr_b32 s{S_T0}, s{qt}, 1
        s_sub_u32 s{S_T1}, 15, s{S_T0}
        s_min_u32 s{S_T0}, s{S_T0}, s{S_T1}
        s_lshl_b32 s{S_T0}, s{S_T0}, 9
        s_lshl_b32 s{S_T1}, s{w}, 3
        s_add_u32 s{S_T0}, s{S_T0}, s{S_T1}
        s_add_u32 s{S_T0}, s{S_T0}, {WS_FC}
        v_and_b32 v{v}, 3, v{V_LANE}
        v_lshlrev_b32 v{v}, 7, v{v}
        v_and_or_b32 v{v}, v{V_LANE}, 4, v{v}
        v_add_u32 v{v}, s{S_T0}, v{v}""")
    else: poll32_addr(e, poll_c.voff, WS_FC)
    if OPT.get("fst"): stamp(e, 18)
    e.need(vm=["CST"]); e.wait_all(vm=False)
    if OPT.get("fst"): stamp(e, 19)
    e("s_barrier")
    if OPT.get("fst"): stamp(e, 20)
    signal(e, sig_lin(WS_FC), 26)
    for sw in range(4):
        for mb in range(4): e.ds(f"ds_read_b128 {vr(V_AD + (sw*4+mb)*4)}, v{V_RA[(sw // 2)*2 + mb // 2]} offset:{32768 + (sw % 2)*16384 + (mb % 2)*256}", ("R", sw))
    for it in range(2):
        e.vmem(f"buffer_load_dwordx4 {vr(V_X + 4*it)}, v{V_XO}, {srd(S_X)}, s{(S_XO, S_XO2)[it]} offen", "X")
    wl = [lambda n=n, q=q: wo_load(e, n, q) for n in range(7, NWS) for q in range(4)][OPT.get("wpre", 6):]
    cnt = [0]
    def V(t):
        e(t); cnt[0] += 1
        if cnt[0] % 6 == 0 and wl: wl.pop(0)()
    def rnd(base, pk):
        for j in range(8): V(f"v_cvt_pk_bf16_f32 v{pk+j}, v{base+2*j}, v{base+2*j+1}")
        for j in range(8): V(f"v_lshlrev_b32 v{base+2*j}, 16, v{pk+j}"); V(f"v_and_b32 v{base+2*j+1}, 0xffff0000, v{pk+j}")
    def red(base, tag):
        e.need(lg=[(tag, 1)])
        for r in range(0, 16, 2): V(f"v_pk_add_f32 {vr(base+r, 2)}, {vr(base+r, 2)}, {vr(base+16+r, 2)}")
        e.need(lg=[(tag, 2)])
        for r in range(0, 16, 2): V(f"v_pk_add_f32 {vr(base+r, 2)}, {vr(base+r, 2)}, {vr(base+32+r, 2)}")
        e.need(lg=[(tag, 3)])
        for r in range(0, 16, 2): V(f"v_pk_add_f32 {vr(base+r, 2)}, {vr(base+r, 2)}, {vr(base+48+r, 2)}")
    T = V_AD + 16; PK = V_AD + 32
    red(V_AD, "R"); rnd(V_AD, PK)
    for r in range(16): V(f"v_mul_f32 v{T+r}, 0xbfb8aa3b, v{V_AD+r}")
    for r in range(16): V(f"v_exp_f32 v{T+r}, v{T+r}")
    for r in range(16): V(f"v_add_f32 v{T+r}, 1.0, v{T+r}")
    for r in range(16): V(f"v_rcp_f32 v{T+r}, v{T+r}")
    for r in range(16): V(f"v_mul_f32 v{V_AD+r}, v{V_AD+r}, v{T+r}")
    rnd(V_AD, PK)
    while len(wl) > 8: wl.pop(0)()
    poll_c.issue()
    while wl: wl.pop(0)()
    stamp(e, 10); poll_c.check(); stamp(e, 11)
    def sw_(j): e.ds(f"ds_write_b128 v{V_WA[(j // 4) % 2]}, {vr(V_AS + j*4)} offset:{((j%4)*4 + j//4)*1024}", "SW")
    def c_load(n, q):
        e.vmem(f"buffer_load_dwordx4 {vr(CRS[n % NCR] + q*4)}, v{V_L16}, {srd(S_WS)}, s{S_AC} offen offset:{q*1024}{SC}", ("C", n))
        if q == 3: e(adv(S_AC, S_KVST))
    if OPT.get("dchain", 0):
        for n in range(2):
            for q in range(4): c_load(n, q)
        for n in range(0, 32, 2):
            ld = []
            for t in range(2):
                if n + 2 + t < 32: ld += [lambda q=q, t=t: c_load(n + 2 + t, q) for q in range(4)]
            for t in range(2):
                if n >= 2 and n + NWS - 2 + t < 32: ld += [lambda q=q, t=t: wo_load(e, n + NWS - 2 + t, q) for q in range(4)]
            for _ in range(min(4, len(ld))): ld.pop(0)()
            e.need(vm=[("C", n), ("C", n + 1), ("WO", n), ("WO", n + 1)])
            for k in range(32):
                c = k // 2; mb = c // 4; qb = c % 4 if mb % 2 == 0 else 3 - c % 4
                t = k % 2 if c % 2 == 0 else 1 - k % 2
                d = vr(V_AS + (mb*4 + qb)*4)
                e(mf(d, wreg(n + t, mb), vr(CRS[(n + t) % NCR] + qb*4), d if (n or k % 2) else "0"))
                if k % 2 == 0 and ld: ld.pop(0)()
    else:
        for n in range(NCR - 1):
            for q in range(4): c_load(n, q)
        for n in range(32):
            ld = []
            if n + NCR - 1 < 32: ld += [lambda q=q: c_load(n + NCR - 1, q) for q in range(4)]
            if n >= 1 and n + NWS - 1 < 32: ld += [lambda q=q: wo_load(e, n + NWS - 1, q) for q in range(4)]
            e.need(vm=[("C", n), ("WO", n)])
            for k in range(16):
                mb, qb = k // 4, k % 4
                d = vr(V_AS + k*4)
                e(mf(d, wreg(n, mb), vr(CRS[n % NCR] + qb*4), d if n else "0"))
                if k % 2 == 0 and ld: ld.pop(0)()
                if n == 31 and k >= 8: sw_(k - 8)
    stamp(e, 12)
    for j in range(8, 16):
        if j >= 12: e("s_nop 1")
        sw_(j)
    e.need(vm=["X"])
    for j in range(8): e(f"v_lshlrev_b32 v{T+2*j}, 16, v{V_X+j}"); e(f"v_and_b32 v{T+2*j+1}, 0xffff0000, v{V_X+j}")
    e.wait_all(vm=False)
    e("s_barrier")
    for sw in range(4):
        for mb in range(4): e.ds(f"ds_read_b128 {vr(V_AS + (sw*4+mb)*4)}, v{V_RA[(sw // 2)*2 + mb // 2]} offset:{(sw % 2)*16384 + (mb % 2)*256}", ("RS", sw))
    red(V_AS, "RS")
    for r in range(0, 16, 2): e(f"v_pk_fma_f32 {vr(V_AS+r, 2)}, {vr(V_AS+r, 2)}, {vr(V_AD+r, 2)}, {vr(T+r, 2)}")
    for j in range(8): e(f"v_cvt_pk_bf16_f32 v{PK+j}, v{V_AS+2*j}, v{V_AS+2*j+1}")
    for it in range(2):
        e.vmem(f"buffer_store_dwordx4 {vr(PK + 4*it)}, v{V_XO}, {srd(S_OUT)}, s{(S_XO, S_XO2)[it]} offen{OPT.get('outsc', SC)}", "OUT")
    e("s_cmp_lg_u32 s2, 0")
    e("s_cbranch_scc1 L_nobump")
    signal(e, f"s_mov_b32 s{S_CNT}, {WS_EP}", 26)
    e.label("L_nobump")
    stamp(e, 13)

HEADER = open("cdna_kernels/" + NAME + ".s.ref").read().split("; Override launch geometry")[0]
DOC = '''; ---------------------------------------------------------------------------------------------------------------
; [2^-80, 2^80] (NaN included) and any wave with a row outside recomputes its 64 rows in L_slow with the true running
; ---------------------------------------------------------------------------------------------------------------'''
def build():
    e = E(); body(e)
    n = 0
    def policy(roleB, trans, slow, spin):
        def d(lb, site, c):
            if lb == "L_body": return (c == 0) if site < 2 else True
            if lb == "L_first": return trans and c == 2
            if lb == "L_fzero": return trans == 2
            if lb == "L_late": return c != 1
            if lb == "L_trans": return trans and c == 0
            if lb == "L_mergeB": return roleB
            if lb == "L_slow": return slow
            if lb == "L_slowl": return c % 2 == 0
            if lb == "L_ret0": return trans and c == 0
            if lb == "L_ret1": return not roleB
            if lb.startswith("L_spin_"): return spin and c == 0
            if lb.startswith("L_ok_"): return c >= 1
            if lb.startswith("L_spinl_"): return True
            return False
        return d
    for cfg in ((0, 0, 0, 0), (1, 1, 0, 0), (0, 0, 1, 1), (1, 1, 1, 1), (1, 2, 0, 0)):
        tr = chk.trace(e.L, policy(*cfg))
        assert "s_endpgm" in tr[-1], cfg
        n += chk.check(tr, f"path{cfg}")
    if n: print(f"{n} hazards", file=sys.stderr)
    return "\n".join([HEADER.rstrip("\n"), "; @launch grid=(256,1,1) block=(256,1,1) lds=163840",
        DOC, '.amdgcn_target "amdgcn-amd-amdhsa--gfx950"\n.text', e.text(), '.section .rodata,"a"\n.p2align 6',
        f""".amdhsa_kernel {KN}
  .amdhsa_next_free_vgpr 512
  .amdhsa_next_free_sgpr 102
  .amdhsa_accum_offset 256
  .amdhsa_group_segment_fixed_size 0
  .amdhsa_kernarg_size 104
  .amdhsa_user_sgpr_count 2
  .amdhsa_user_sgpr_kernarg_segment_ptr 1
  .amdhsa_system_sgpr_workgroup_id_x 1
.end_amdhsa_kernel
"""])
if __name__ == "__main__":
    open(sys.argv[1], "w").write(build())
```

```python
import sys, math, os, struct
from emit import E, Filler
import check as chk

NAME = "recurrent_scan__compressed_kv_cla__glu_gated_geglu__prompt"
KN = NAME + "_kernel"
MB = 1 << 20
OPT = eval(os.environ.get("OPT", "{}"))
STAMPS = os.environ.get("STAMPS")
POLLALL = OPT.get("pollall", 0)
WS_XN, WS_H, WS_WDF, WS_WOF, WS_CTX, WS_K, WS_V, WS_END = 0, 2*MB, 9*MB, 12*MB, 16*MB, 32*MB, 48*MB, 64*MB
fb = lambda x: struct.unpack("<I", struct.pack("<f", x))[0]

S_X, S_CKV, S_WQ, S_WUK, S_WUV, S_WO, S_WG, S_WU, S_WD, S_OUT, S_DBG, S_WS = [8 + 4*i for i in range(12)]
S_HSRD, S_ASRD, S_BSRD = 56, 60, 64
S_WAVE, S_HEAD, S_BLK, S_ROT = 68, 69, 70, 71
S_T0, S_T1, S_T2, S_T3, S_T4, S_T5 = 72, 73, 74, 75, 76, 77
S_WL, S_WA = 78, 79
S_OFF0, S_OFFA, S_AROW, S_KVST, S_XNB, S_HST = 80, 81, 82, 83, 84, 85
S_CTXLO, S_CTXHI = 86, 87
S_SRCA, S_SRCB, S_LA, S_LB, S_VMAXB, S_VCLB = 88, 89, 90, 91, 92, 93
S_N, S_EVT, S_TRANS, S_N0 = 94, 95, 96, 97
S_QT, S_QTHI, S_RET, S_CNT = 98, 99, 100, 101
S_ROTB, S_DW, S_DH, S_DINC = 48, 49, 50, 51
S_OQ, S_OM = 0, 1
S_GJ = 7
S_GSRD = S_CKV
S_DSRD = S_HSRD
S_FL = 6
def srd(n): return f"s[{n}:{n+3}]"
def mf(d, a, b, c): return f"v_mfma_f32_16x16x32_bf16 {d}, {a}, {b}, {c}"
def vr(n, k=4): return f"v[{n}:{n+k-1}]"
def ar(n, k=4): return f"a[{n}:{n+k-1}]"

V_LANE, V_STAMP, V_L16 = 1, 2, 3
V_TR = (4, 5, 6, 7)
V_WOFF = (8, 9, 10, 11)
V_AOFF = (12, 13)
V_WOFG = (12, 13)
V_ARD = (14, 15)
V_TMP = list(range(16, 32))
V_POLL = 0
V_WF, V_PK, V_ACC = 32, 64, 128
def acc(db, rb): return V_ACC + (db*4 + rb)*4
def actf(ks, rb): return (ks*4 + rb)*4
V_RD = 4
V_TD, V_TN, V_LIM = 16, 20, 24
V_P, V_S, V_O = (32, 48), (64, 96), 128
A_Q, A_FB, A_DACC, A_L, A_ONE, A_DOP = 0, (64, 96), 128, 192, 208, 224
QSCALE = fb(math.log2(math.e) / math.sqrt(128.0))
NEGINF = 0xff800000
def Sreg(buf, kb2, qb): return V_S[buf] + (kb2*4 + qb)*4
def Preg(buf, qb): return V_P[buf] + qb*4
def Oreg(db, qb): return V_O + (db*4 + qb)*4
SC = " sc1"

def stamp(e, idx):
    if not STAMPS: return
    if OPT.get("padph") and idx not in OPT["padph"]: return
    if OPT.get("padat"):
        if idx == OPT["padat"][0]:
            e(f"s_nop 1\nv_readlane_b32 s5, v{V_STAMP}, 0\ns_add_u32 s{S_CNT}, s5, {OPT['padat'][1]*100}")
            e.label("L_padat")
            e(f"s_memrealtime s[4:5]\ns_waitcnt lgkmcnt(0)\ns_sub_u32 s5, s4, s{S_CNT}\ns_cmp_lt_i32 s5, 0\ns_cbranch_scc1 L_padat")
            e.lgkm = []
        return
    e(("s_memtime" if STAMPS == "2" else "s_memrealtime") + " s[4:5]")
    e.wait_all(vm=False)
    e(f"v_writelane_b32 v{V_STAMP}, s4, {idx}")
def stamp_flush(e):
    if not STAMPS: return
    if OPT.get("dbgst"):
        e(f"""s_load_dwordx2 s[8:9], s[0:1], 88
        s_mov_b32 s10, 256
        s_mov_b32 s11, 0x20000
        v_readlane_b32 s4, v{V_STAMP}, 0
        s_not_b32 s4, s4
        s_nop 3
        v_writelane_b32 v{V_STAMP}, s4, 14
        v_lshlrev_b32 v0, 2, v{V_LANE}
        v_cmp_gt_u32 vcc, 15, v{V_LANE}
        s_and_saveexec_b64 s[6:7], vcc
        s_waitcnt lgkmcnt(0)
        buffer_atomic_umax v{V_STAMP}, v0, s[8:11], 0 offen
        s_waitcnt vmcnt(0)""")
        return
    e(f"""s_lshl_b32 s4, s2, 2
    s_add_u32 s4, s4, s{S_WAVE}
    s_lshl_b32 s4, s4, 7
    s_add_u32 s4, s4, {64*MB}
    v_lshlrev_b32 v0, 2, v{V_LANE}
    v_cmp_gt_u32 vcc, 32, v{V_LANE}
    s_and_saveexec_b64 s[6:7], vcc
    buffer_store_dword v{V_STAMP}, v0, {srd(S_WS)}, s4 offen
    s_waitcnt vmcnt(0)""")

WS_EP = 11*MB
WS_FX, WS_FK, WS_FB, WS_FC = WS_EP + 4096, WS_EP + 8192, WS_EP + 12288, WS_EP + 16384
S_TAG = 3
def signal(e, soff_lines, tmp):
    e(soff_lines)
    e(f"""v_mov_b32 v{tmp}, s{S_TAG}
    v_add_u32 v{tmp+1}, s{S_WL}, v{V_LANE}
    v_min_u32 v{tmp+1}, 1, v{tmp+1}
    v_lshlrev_b32 v{tmp+1}, 30, v{tmp+1}""")
    e.vmem(f"buffer_store_dword v{tmp}, v{tmp+1}, {srd(S_WS)}, s{S_CNT} offen sc1", "SIG")
def sig_lin(base):
    return f"""s_lshr_b32 s{S_CNT}, s2, 3
    s_lshl_b32 s{S_CNT}, s{S_CNT}, 7
    s_and_b32 s{S_FL}, s2, 7
    s_lshl_b32 s{S_FL}, s{S_FL}, 2
    s_add_u32 s{S_CNT}, s{S_CNT}, s{S_FL}
    s_add_u32 s{S_CNT}, s{S_CNT}, {base}"""
SIG_KV = f"""s_and_b32 s{S_CNT}, s2, 31
    s_lshl_b32 s{S_CNT}, s{S_CNT}, 7
    s_lshl_b32 s{S_FL}, s{S_BLK}, 2
    s_add_u32 s{S_CNT}, s{S_CNT}, s{S_FL}
    s_add_u32 s{S_CNT}, s{S_CNT}, {WS_FK}"""
class Poll:
    def __init__(self, e, name, voff):
        self.e, self.name, self.voff = e, name, voff
    @property
    def ld(self):
        if self.name == "b" and POLLALL: return f"buffer_load_dwordx4 a[216:219], v{self.voff}, {srd(S_WS)}, 0 offen sc1"
        return f"buffer_load_dword v{V_POLL}, v{self.voff}, {srd(S_WS)}, 0 offen sc1"
    def issue(self): self.e.vmem(self.ld, ("POLL", self.name))
    def test(self):
        if self.name == "b" and POLLALL:
            return f"""v_accvgpr_read_b32 v5, a216
            v_accvgpr_read_b32 v6, a217
            v_accvgpr_read_b32 v7, a218
            v_accvgpr_read_b32 v{V_POLL}, a219
            v_xor_b32 v5, v5, v{V_POLL}
            v_xor_b32 v6, v6, v{V_POLL}
            v_xor_b32 v7, v7, v{V_POLL}
            v_or3_b32 v5, v5, v6, v7
            v_xor_b32 v{V_POLL}, s{S_TAG}, v{V_POLL}
            v_or_b32 v5, v5, v{V_POLL}
            v_cmp_eq_u32 vcc, 0, v5
            s_cmp_eq_u64 vcc, exec"""
        return f"v_cmp_eq_u32 vcc, s{S_TAG}, v{V_POLL}\ns_cmp_eq_u64 vcc, exec"
    def check(self):
        e = self.e
        e.need(vm=[("POLL", self.name)])
        e(self.test())
        e(f"s_cbranch_scc0 L_spin_{self.name}")
        e.label(f"L_ok_{self.name}")
    def spin(self):
        e = self.e
        e.label(f"L_spin_{self.name}")
        e(f"s_mov_b32 s{S_CNT}, 0x40000")
        e.label(f"L_spinl_{self.name}")
        e("s_sleep 2")
        e(self.ld)
        e("s_waitcnt vmcnt(0)")
        e(self.test())
        e(f"s_cbranch_scc1 L_ok_{self.name}")
        e(f"s_sub_u32 s{S_CNT}, s{S_CNT}, 1")
        e(f"s_cmp_lg_u32 s{S_CNT}, 0")
        e(f"s_cbranch_scc1 L_spinl_{self.name}")
        e(f"s_branch L_ok_{self.name}")
def poll32_addr(e, v, base):
    e(f"""s_lshr_b32 s{S_T0}, s{S_HEAD}, 1
    s_sub_u32 s{S_T1}, 15, s{S_T0}
    s_min_u32 s{S_T0}, s{S_T0}, s{S_T1}
    s_lshl_b32 s{S_T0}, s{S_T0}, 9
    s_add_u32 s{S_T0}, s{S_T0}, {base}
    v_bfe_u32 v{v}, v{V_LANE}, 3, 2
    v_lshlrev_b32 v{v}, 5, v{v}
    v_and_or_b32 v{v}, v{V_LANE}, 7, v{v}
    v_lshlrev_b32 v{v}, 2, v{v}
    v_add_u32 v{v}, s{S_T0}, v{v}""")

def kernel_head(e):
    e(f".globl {KN}\n.p2align 8\n.type {KN},@function")
    e.label(KN)
    e("s_cmp_ge_u32 s2, 256")
    e("s_cbranch_scc1 L_end")
    sizes = {S_X: (0, 2*MB), S_CKV: (8, 2*MB), S_WUK: (24, 4*MB), S_WS: (96, 65*MB if STAMPS else WS_END), S_WQ: (16, 4*MB), S_WUV: (32, 4*MB), S_WO: (40, 4*MB),
             S_WG: (56, 512*3584), S_WU: (64, 512*3584), S_WD: (72, 1792*1024), S_OUT: (80, 2*MB)}
    first = (S_X, S_CKV, S_WUK, S_WS)
    if OPT.get("st0") == 1: e("s_memrealtime s[6:7]\ns_waitcnt lgkmcnt(0)")
    for sr in first: e(f"s_load_dwordx2 s[{sr}:{sr+1}], s[0:1], {sizes[sr][0]}")
    if OPT.get("st0") == 2: e("s_waitcnt lgkmcnt(0)\ns_memrealtime s[6:7]")
    if STAMPS and not OPT.get("st0"): e(("s_memtime" if STAMPS == "2" else "s_memrealtime") + " s[6:7]")
    e(f"v_and_b32 v{V_LANE}, 63, v0")
    e("v_lshrrev_b32 v2, 6, v0")
    e(f"v_lshlrev_b32 v{V_L16}, 4, v{V_LANE}")
    e(f"v_readfirstlane_b32 s{S_WAVE}, v2")
    if OPT.get("pfcode", 1):
        e(f"""s_getpc_b64 s[4:5]
        s_lshr_b32 s{S_T0}, s2, 3
        s_lshl_b32 s{S_T0}, s{S_T0}, 11
        v_lshlrev_b32 v{V_TMP[0]}, 3, v2
        v_and_or_b32 v{V_TMP[0]}, v0, 7, v{V_TMP[0]}
        v_lshlrev_b32 v{V_TMP[0]}, 6, v{V_TMP[0]}
        v_add_u32 v{V_TMP[0]}, s{S_T0}, v{V_TMP[0]}
        v_min_u32 v{V_TMP[0]}, L_end-L_pcref, v{V_TMP[0]}""")
        e.label("L_pcref")
        e.vmem(f"global_load_dword v{V_TMP[12]}, v{V_TMP[0]}, s[4:5]", "PF")
    e(f"""s_and_b32 s{S_T0}, s2, 7
    s_lshl_b32 s{S_T0}, s{S_T0}, 2
    s_lshr_b32 s{S_T1}, s2, 3
    s_and_b32 s{S_T1}, s{S_T1}, 3
    s_add_u32 s{S_HEAD}, s{S_T0}, s{S_T1}
    s_lshr_b32 s{S_BLK}, s2, 5
    s_mul_i32 s{S_T0}, s{S_T1}, {OPT.get('rota', 4)}
    s_add_u32 s{S_ROT}, s{S_BLK}, s{S_T0}
    s_mul_i32 s{S_T0}, s2, {OPT.get('rotx', 1)}
    s_add_u32 s{S_ROT}, s{S_ROT}, s{S_T0}
    s_and_b32 s{S_ROT}, s{S_ROT}, 7
    s_mul_i32 s{S_T0}, s{S_T1}, {OPT.get('rotb', 0)}
    s_add_u32 s{S_ROTB}, s{S_BLK}, s{S_T0}
    s_mul_i32 s{S_T0}, s2, {OPT.get('rotbx', 1)}
    s_add_u32 s{S_ROTB}, s{S_ROTB}, s{S_T0}
    s_and_b32 s{S_ROTB}, s{S_ROTB}, 3
    s_lshl_b32 s{S_WL}, s{S_WAVE}, 10
    s_lshl_b32 s{S_WA}, s{S_WAVE}, 13
    s_add_u32 s{S_WA}, s{S_WA}, 65536""")
    if STAMPS: e("v_mov_b32 v2, -1")
    for sr in first: e(f"s_mov_b32 s{sr+2}, {sizes[sr][1]}\ns_mov_b32 s{sr+3}, 0x20000")
    setup_addrs(e)
    e(f"v_add_u32 v{V_ARD[0]}, s{S_WA}, v{V_ARD[0]}\nv_xor_b32 v{V_ARD[1]}, 64, v{V_ARD[0]}")
    scalar_setup(e)
    e(f"s_lshl_b32 s{S_T0}, s2, 13\ns_lshl_b32 s{S_T1}, s{S_WAVE}, 11\ns_add_u32 s{S_T0}, s{S_T0}, s{S_T1}")
    def late():
        for sr, (p, n) in sizes.items():
            if sr not in first: e(f"s_load_dwordx2 s[{sr}:{sr+1}], s[0:1], {p}\ns_mov_b32 s{sr+2}, {n}\ns_mov_b32 s{sr+3}, 0x20000")
        for sr in (S_HSRD, S_ASRD, S_BSRD): e(f"s_mov_b64 s[{sr}:{sr+1}], s[{S_WS}:{S_WS+1}]\ns_mov_b32 s{sr+2}, {WS_END}\ns_mov_b32 s{sr+3}, 0x20000")
        e(f"s_add_u32 s{S_FL}, s{S_WS}, {WS_EP}\ns_addc_u32 s{S_FL+1}, s{S_WS+1}, 0\ns_load_dword s{S_TAG}, s[{S_FL}:{S_FL+1}], 0")
    def go():
        e("s_waitcnt lgkmcnt(0)")
        if STAMPS: e("v_writelane_b32 v2, s6, 0")
        e.vmem(f"buffer_load_dwordx4 v[64:67], v{V_L16}, {srd(S_X)}, s{S_T0} offen", "X")
        e.vmem(f"buffer_load_dwordx4 v[68:71], v{V_L16}, {srd(S_X)}, s{S_T0} offen offset:1024", "X")
    return go, late

V_CPF = 31
V_KPERM = 31
V_UOFF = 30
def setup_addrs(e):
    t0, t1, t2, t3, t4 = V_TMP[:5]
    e(f"""v_lshrrev_b32 v{t0}, 2, v{V_LANE}
    v_lshlrev_b32 v{t0}, 7, v{t0}
    v_and_b32 v{t1}, 3, v{V_LANE}
    v_lshlrev_b32 v{t1}, 3, v{t1}
    v_add_u32 v{t0}, v{t0}, v{t1}
    v_bfe_u32 v{t1}, v{V_LANE}, 3, 2
    v_lshlrev_b32 v{t1}, 5, v{t1}
    v_add_u32 v{V_TR[0]}, v{t0}, v{t1}""")
    for c in (1, 2, 3): e(f"v_xor_b32 v{V_TR[c]}, {c*32}, v{V_TR[0]}")
    e(f"""v_lshrrev_b32 v{t0}, 3, v{V_LANE}
    v_and_b32 v{t1}, 7, v{V_LANE}
    v_and_b32 v{t2}, 6, v{t0}
    v_xor_b32 v{t1}, v{t1}, v{t2}
    v_lshlrev_b32 v{V_UOFF}, 4, v{t1}
    s_lshl_b32 s{S_T0}, s{S_WAVE}, 3
    v_add_u32 v{t2}, s{S_T0}, v{t0}
    v_bfe_u32 v{t3}, v{t2}, 2, 2
    v_lshlrev_b32 v{t3}, 3, v{t3}
    v_lshrrev_b32 v{t4}, 4, v{t2}
    v_lshl_add_u32 v{t3}, v{t4}, 2, v{t3}
    v_and_b32 v{t4}, 3, v{t2}
    v_add_u32 v{V_KPERM}, v{t3}, v{t4}
    v_lshl_add_u32 v{V_WOFF[0]}, v{V_KPERM}, 13, v{V_UOFF}
    v_add_u32 v{V_WOFF[1]}, 128, v{V_WOFF[0]}
    v_add_u32 v{V_WOFF[2]}, {32*8192}, v{V_WOFF[0]}
    v_add_u32 v{V_WOFF[3]}, {32*8192 + 128}, v{V_WOFF[0]}
    v_and_b32 v{t1}, 7, v{V_LANE}
    v_lshrrev_b32 v{t2}, 1, v{t0}
    v_xor_b32 v{t1}, v{t1}, v{t2}
    v_lshlrev_b32 v{t1}, 4, v{t1}
    v_lshl_add_u32 v{V_AOFF[0]}, v{t0}, 10, v{t1}
    v_xor_b32 v{V_AOFF[1]}, 64, v{V_AOFF[0]}
    v_add_u32 v{V_AOFF[1]}, 8192, v{V_AOFF[1]}
    v_and_b32 v{t0}, 15, v{V_LANE}
    v_lshrrev_b32 v{t1}, 4, v{V_LANE}
    v_lshrrev_b32 v{t2}, 1, v{t0}
    v_xor_b32 v{t1}, v{t1}, v{t2}
    v_lshlrev_b32 v{t1}, 4, v{t1}
    v_lshl_add_u32 v{V_ARD[0]}, v{t0}, 7, v{t1}""")

def scalar_setup(e):
    i, h, w = S_BLK, S_HEAD, S_WAVE
    e(f"""s_lshl_b32 s{S_T0}, s{i}, 2
    s_add_u32 s{S_T0}, s{S_T0}, s{w}
    s_lshl_b32 s{S_AROW}, s{S_T0}, 16
    s_lshl_b32 s{S_KVST}, s{h}, 19
    s_lshl_b32 s{S_T0}, s{S_T0}, 14
    s_add_u32 s{S_KVST}, s{S_KVST}, s{S_T0}""")
def scalar_setup2(e):
    i, h, w = S_BLK, S_HEAD, S_WAVE
    a, b, c, d = S_N, S_EVT, S_TRANS, S_RET
    GM = OPT.get("gm", 1)
    if GM == 1: OMAP = f"s_mov_b32 s{S_OQ}, s{h}\ns_mov_b32 s{S_OM}, s{i}"
    else:
        lg = {2: 1, 4: 2}[GM]
        OMAP = f"""s_and_b32 s{b}, s2, 7
        s_lshr_b32 s{S_OQ}, s{b}, {lg}
        s_lshl_b32 s{S_OQ}, s{S_OQ}, {2 + lg}
        s_bfe_u32 s{c}, s2, {hex(((2 + lg) << 16) | 3)}
        s_add_u32 s{S_OQ}, s{S_OQ}, s{c}
        s_and_b32 s{S_OM}, s{b}, {GM - 1}
        s_lshl_b32 s{S_OM}, s{S_OM}, {3 - lg}
        s_lshr_b32 s{c}, s2, {5 + lg}
        s_add_u32 s{S_OM}, s{S_OM}, s{c}"""
    IDLE = f"s{i}" if OPT.get("spread", 1) else "7"
    return f"""s_sub_u32 s{a}, 15, s{i}
    s_cmp_lt_u32 s{w}, 2 ! s_cselect_b32 s{b}, s{a}, s{i}
    s_lshl_b32 s{b}, s{b}, 1
    s_and_b32 s{c}, s{w}, 1
    s_add_u32 s{S_QT}, s{b}, s{c}
    s_lshl_b32 s{S_XNB}, s{S_QT}, 16
    s_mul_i32 s{S_HST}, s{S_QT}, {56*4096}
    s_add_u32 s{S_HST}, s{S_HST}, {WS_H}
    s_lshl_b32 s{d}, s{h}, 14
    s_add_u32 s{d}, s{d}, {WS_CTX}
    s_lshl_b32 s{S_CTXLO}, s{S_QT}, 19
    s_add_u32 s{S_CTXLO}, s{S_CTXLO}, s{d}
    s_lshr_b32 s{b}, s{w}, 1
    s_xor_b32 s{b}, s{b}, s{w}
    s_and_b32 s{b}, s{b}, 1
    s_lshl_b32 s{a}, s{a}, 1
    s_add_u32 s{S_QTHI}, s{a}, s{b}
    s_lshl_b32 s{S_CTXHI}, s{S_QTHI}, 19
    s_add_u32 s{S_CTXHI}, s{S_CTXHI}, s{d}
    s_lshr_b32 s{a}, s{h}, 2
    s_cmp_lg_u32 s{a}, {IDLE} ! s_cselect_b32 s{S_HSRD+2}, {WS_END}, 0
    s_cmp_gt_u32 s{a}, {IDLE} ! s_cselect_b32 s{a}, 4, 0
    s_sub_u32 s{S_GJ}, s{h}, s{a}
    s_lshl_b32 s{a}, s{h}, 19
    s_mov_b32 s{b}, {WS_V}
    s_cmp_lt_u32 s{w}, 2 ! s_cselect_b32 s{b}, {WS_K}, s{b}
    s_add_u32 s{b}, s{b}, s{a}
    s_add_u32 s{S_VCLB}, s{b}, {63*8192}
    s_and_b32 s{a}, s{w}, 1
    s_lshl_b32 s{a}, s{a}, 13
    s_add_u32 s{S_SRCA}, s{b}, s{a}
    s_lshl_b32 s{a}, s{w}, 13
    s_add_u32 s{S_VMAXB}, s{b}, s{a}
    s_add_u32 s{S_VMAXB}, s{S_VMAXB}, {64*8192}
    s_min_u32 s{S_SRCB}, s{S_VMAXB}, s{S_VCLB}
    s_lshl_b32 s{S_LB}, s{w}, 13
    s_add_u32 s{S_LA}, s{S_LB}, 65536
    s_xor_b32 s{S_LB}, s{S_LB}, 32768
    s_lshl_b32 s{S_N0}, s{i}, 1
    s_add_u32 s{S_N0}, s{S_N0}, 2
    s_mul_i32 s{a}, s{w}, {14*4096}
{OMAP}
    s_mul_i32 s{S_DH}, s{S_OQ}, {56*4096}
    s_add_u32 s{S_DH}, s{S_DH}, s{a}
    s_add_u32 s{S_DH}, s{S_DH}, {WS_H}
    s_mul_i32 s{S_DW}, s{S_OM}, {56*4096}
    s_add_u32 s{S_DW}, s{S_DW}, s{a}
    s_add_u32 s{S_DW}, s{S_DW}, {WS_WDF}
    s_mov_b32 s{S_DINC}, 0""".split("\n")

def layernorm_lines():
    L = []; e = L.append
    X = (72, 80); SUM = (88, 89); TMP = (90, 91); MEAN = (92, 93); VAR = (94, 95)
    SS = (S_T0, S_T1)
    for r in range(2):
        for j in range(4):
            e(f"v_lshlrev_b32 v{X[r]+2*j}, 16, v{64+4*r+j}")
            e(f"v_and_b32 v{X[r]+2*j+1}, 0xffff0000, v{64+4*r+j}")
    def reduce():
        for mod in ("quad_perm:[1,0,3,2] row_mask:0xf bank_mask:0xf", "quad_perm:[2,3,0,1] row_mask:0xf bank_mask:0xf",
                    "row_half_mirror row_mask:0xf bank_mask:0xf", "row_mirror row_mask:0xf bank_mask:0xf",
                    "row_bcast:15 row_mask:0xa bank_mask:0xf", "row_bcast:31 row_mask:0xc bank_mask:0xf"):
            e("s_nop 0")
            for r in range(2): e(f"v_add_f32_dpp v{SUM[r]}, v{SUM[r]}, v{SUM[r]} {mod}")
        e("s_nop 0")
        for r in range(2): e(f"v_readlane_b32 s{SS[r]}, v{SUM[r]}, 63")
        e("s_nop 1")
    P2 = lambda r: f"v[{r}:{r+1}]"
    AC = (96, 98); DD = (100, 108)
    for r in range(2): e(f"v_pk_add_f32 {P2(AC[r])}, {P2(X[r])}, {P2(X[r]+2)}")
    for j in (4, 6):
        for r in range(2): e(f"v_pk_add_f32 {P2(AC[r])}, {P2(AC[r])}, {P2(X[r]+j)}")
    for r in range(2): e(f"v_add_f32 v{SUM[r]}, v{AC[r]}, v{AC[r]+1}")
    reduce()
    for r in range(2): e(f"v_mov_b32 v{MEAN[r]}, s{SS[r]}")
    for r in range(2): e(f"v_mul_f32 v{MEAN[r]}, 0x3b000000, v{MEAN[r]}")
    NEGB = lambda r: bsel(r)[1] + " neg_lo:[0,1] neg_hi:[0,1]"
    for j in range(0, 8, 2):
        for r in range(2): e(f"v_pk_add_f32 {P2(DD[r]+j)}, {P2(X[r]+j)}, {bsel(MEAN[r])[0]} {NEGB(MEAN[r])}")
    for j in range(0, 8, 2):
        for r in range(2): e(f"v_pk_mul_f32 {P2(AC[r])}, {P2(DD[r])}, {P2(DD[r])}" if j == 0 else f"v_pk_fma_f32 {P2(AC[r])}, {P2(DD[r]+j)}, {P2(DD[r]+j)}, {P2(AC[r])}")
    for r in range(2): e(f"v_add_f32 v{SUM[r]}, v{AC[r]}, v{AC[r]+1}")
    reduce()
    def both(fmt):
        for r in range(2): e(fmt.format(v=VAR[r], m=MEAN[r], s=SS[r]))
    def rnd(x):
        both("v_cvt_pk_bf16_f32 v{%s}, v{%s}, v{%s}" % (x, x, x)); both("v_lshlrev_b32 v{%s}, 16, v{%s}" % (x, x))
    both("v_mov_b32 v{v}, s{s}"); both("v_mul_f32 v{v}, 0x3b000000, v{v}")
    rnd("v"); both("v_add_f32 v{v}, 0x3727c5ac, v{v}"); rnd("v")
    both("v_sqrt_f32 v{v}, v{v}"); rnd("m"); rnd("v"); both("v_rcp_f32 v{v}, v{v}")
    for r in range(2):
        for j in range(0, 8, 2): e(f"v_pk_add_f32 {P2(X[r]+j)}, {P2(X[r]+j)}, {bsel(MEAN[r])[0]} {NEGB(MEAN[r])}")
        for j in range(4): e(f"v_cvt_pk_bf16_f32 v{64+4*r+j}, v{X[r]+2*j}, v{X[r]+2*j+1}")
        for j in range(4):
            e(f"v_lshlrev_b32 v{X[r]+2*j}, 16, v{64+4*r+j}")
            e(f"v_and_b32 v{X[r]+2*j+1}, 0xffff0000, v{64+4*r+j}")
        for j in range(0, 8, 2): e(f"v_pk_mul_f32 {P2(X[r]+j)}, {P2(X[r]+j)}, {bsel(VAR[r])[0]} {bsel(VAR[r])[1]}")
        for j in range(4): e(f"v_cvt_pk_bf16_f32 v{64+4*r+j}, v{X[r]+2*j}, v{X[r]+2*j+1}")
    return L

class MemQ:
    def __init__(self, e): self.e = e; self.items = []
    def add(self, kind, lo, hi, *a): self.items.append([kind, lo, hi, a])
    def fillers(self):
        e = self.e; out = []
        dm = [k for k, it in enumerate(self.items) if it[0] == 'd']
        nxt = {dm[j]: dm[j+1] for j in range(len(dm) - 1)}
        self.first_m0 = self.items[dm[0]][3][0]
        for k, (kind, lo, hi, a) in enumerate(self.items):
            if kind == 's': out.append(Filler(lambda a=a: e(a[0].replace(" ! ", "\n")), 4, "salu", lo, hi))
            elif kind == 'l': out.append(Filler(lambda a=a: e.vmem(a[0], a[1]), 4, "mem", lo, hi))
            elif kind == 'f': out.append(Filler(a[0], a[1], a[2], lo, hi))
            else:
                def fn(k=k, a=a):
                    if len(a) > 3: e.need(lg=a[3])
                    if " m0," in e.L[-1]: e("s_nop 0")
                    e.vmem(a[1], a[2])
                    if k in nxt: e(self.items[nxt[k]][3][0])
                out.append(Filler(fn, 8, "mem", lo, hi))
        return out


def body(e):
    i, h, w = S_BLK, S_HEAD, S_WAVE
    go, late = kernel_head(e)
    NS = 32; BAR = 42; INF = 10**9; P = -10**6
    mq = MemQ(e)
    def S(lo, hi, *lines):
        for t in lines: mq.add('s', lo, hi, t)
    def VV(lo, hi, *lines):
        for t in lines: mq.add('f', lo, hi, lambda t=t: e(t), 4, "valu")
    V_GOFF = V_KPERM; V_TRH = V_AOFF + V_ARD
    S_GO = S_T1
    def area(gs):
        if gs < 16: return (gs % 4)*16384
        if gs < 24: return ((gs % 4)*32768 + 65536) % 131072
        return ((gs - 24)*16384 + 65536) % 131072
    def w_stage(gs, lo, step, hi):
        slot = gs % 4
        if gs < 16:
            s = gs % 8
            if s == 0: S(lo - 8, hi, f"s_lshl_b32 s{S_OFF0}, s{S_ROT}, 19", f"s_lshl_b32 s{S_T5}, s{h}, 8", f"s_add_u32 s{S_OFF0}, s{S_OFF0}, s{S_T5}")
            else: S(lo - 8, hi, f"s_add_u32 s{S_OFF0}, s{S_OFF0}, {1<<19}", f"s_and_b32 s{S_OFF0}, s{S_OFF0}, {4*MB-1}")
            for n in range(4):
                mq.add('d', lo + step*n, hi, f"s_add_u32 m0, s{S_WL}, {slot*16384 + n*4096}",
                       f"buffer_load_dwordx4 v{V_WOFF[n]}, {srd(S_WUK if gs < 8 else S_WUV)}, s{S_OFF0} offen lds", ("W", gs))
        elif gs >= 24:
            s = gs % 4; hf = (gs // 4) % 2
            S(lo - 10, hi, f"s_add_u32 s{S_OFF0}, s{S_ROTB}, {s}", f"s_and_b32 s{S_OFF0}, s{S_OFF0}, 3", f"s_lshl_b32 s{S_OFF0}, s{S_OFF0}, 20",
              f"s_lshl_b32 s{S_T5}, s{h}, 8", f"s_add_u32 s{S_OFF0}, s{S_OFF0}, s{S_T5}")
            if hf: S(lo - 10, hi, f"s_add_u32 s{S_OFF0}, s{S_OFF0}, 128")
            for n in range(4):
                if n: S(lo + step*n - 2, hi, f"s_add_u32 s{S_OFF0}, s{S_OFF0}, {32*8192}")
                mq.add('d', lo + step*n, hi, f"s_add_u32 m0, s{S_WL}, {area(gs) + n*4096}",
                       f"buffer_load_dwordx4 v{V_WOFF[0]}, {srd(S_WQ)}, s{S_OFF0} offen lds", ("W", gs))
    def g_stage(s, lo, step, hi):
        S(lo - 10, hi, f"s_add_u32 s{S_GO}, s{S_ROTB}, {s}", f"s_and_b32 s{S_GO}, s{S_GO}, 3", f"s_mul_i32 s{S_GO}, s{S_GO}, {128*3584}",
          f"s_lshl_b32 s{S_T5}, s{S_GJ}, 7", f"s_add_u32 s{S_GO}, s{S_GO}, s{S_T5}")
        for n in range(8):
            if n and n % 2 == 0: S(lo + step*n - 2, hi, f"s_add_u32 s{S_GO}, s{S_GO}, {32*3584}")
            mq.add('d', lo + step*n, hi, f"s_add_u32 m0, s{S_WL}, {area(16 + s) + n*4096}",
                   f"buffer_load_dwordx4 v{V_GOFF}, {srd((S_WG, S_WU)[n % 2])}, s{S_GO} offen lds", ("W", 16 + s))
    def a_stage(s, lo, step, hi):
        S(lo - 6, hi, f"s_add_u32 s{S_OFFA}, s{S_ROT}, {s}", f"s_and_b32 s{S_OFFA}, s{S_OFFA}, 7", f"s_lshl_b32 s{S_OFFA}, s{S_OFFA}, 7", f"s_add_u32 s{S_OFFA}, s{S_OFFA}, s{S_AROW}")
        for q in range(8):
            if q and q % 2 == 0: S(lo + step*q - 2, hi, f"s_add_u32 s{S_OFFA}, s{S_OFFA}, 16384")
            mq.add('d', lo + step*q, hi, f"s_add_u32 m0, s{S_WA}, {(s % 2)*32768 + q*1024}",
                   f"buffer_load_dwordx4 v{V_AOFF[q & 1]}, {srd(S_CKV)}, s{S_OFFA} offen lds", ("A", s), [("AF", s-2, 0), ("AF", s-2, 1)])
    def xn_stage(s, lo, step, hi):
        if s % 2 == 0: S(lo - 6, hi, f"s_add_u32 s{S_OFFA}, s{S_ROTB}, {s//2}", f"s_and_b32 s{S_OFFA}, s{S_OFFA}, 3", f"s_lshl_b32 s{S_OFFA}, s{S_OFFA}, 14", f"s_add_u32 s{S_OFFA}, s{S_OFFA}, s{S_XNB}")
        for ksub in range(2):
            if ksub or s % 2: S(lo + step*4*ksub - 2, hi, f"s_add_u32 s{S_OFFA}, s{S_OFFA}, 4096")
            for rb in range(4):
                mq.add('l', lo + step*(ksub*4 + rb), hi, f"buffer_load_dwordx4 {ar(actf(2*s+ksub, rb))}, v{V_L16}, {srd(S_WS)}, s{S_OFFA} offen offset:{rb*1024}{SC}", ("XN", 2*s+ksub))
    V_PO = V_TMP[13]
    poll_xn = Poll(e, "xn", V_PO); poll_kv = Poll(e, "kv", V_PO); poll_b = Poll(e, "b", V_TMP[15]); poll_c = Poll(e, "c", V_TMP[15])
    V_RT = V_TMP[8]; V_RTA = V_TMP[9:13]; V_PFD = V_TMP[1]
    RTL, RTS, RG = OPT.get("rtl", 17), OPT.get("rts", 20), OPT.get("rtgap", 32)
    S_RL = S_RET
    PRO = OPT.get("pro", 1); KVS = OPT.get("kvs", 29)
    w_stage(0, P, 0, INF); a_stage(0, P, 0, INF)
    n_pro0 = len(mq.items)
    S(P, INF, f"s_lshl_b32 s{S_T2}, s{w}, 8", f"s_add_u32 s{S_T2}, s{S_T2}, s2", f"s_lshr_b32 s{S_T3}, s{S_T2}, 3", f"s_add_u32 s{S_T4}, s{S_T2}, s{S_T3}", f"s_and_b32 s{S_T4}, s{S_T4}, 7",
      f"s_cmp_lt_u32 s{S_T2}, 448 ! s_cselect_b32 s{S_WD+2}, {1792*1024}, 0", f"s_cmp_lt_u32 s{S_T2}, 448 ! s_cselect_b32 s{S_BSRD+2}, {WS_END}, 0")
    VV(P, INF, f"v_lshrrev_b32 v{V_RT}, 3, v{V_LANE}", f"v_lshl_add_u32 v{V_RT}, v{V_RT}, 10, v{V_UOFF}", f"v_mul_u32_u24 v{V_GOFF}, 3584, v{V_KPERM}", f"v_add_u32 v{V_GOFF}, v{V_GOFF}, v{V_UOFF}")
    if PRO >= 1: w_stage(1, P, 0, INF)
    if PRO >= 2: a_stage(1, P, 0, INF)
    if PRO >= 3: w_stage(2, P, 0, INF)
    n_pro1 = len(mq.items)
    if PRO < 1: w_stage(1, 0, 1, 20)
    if PRO < 2: a_stage(1, 0, 1, 30)
    if PRO < 3: w_stage(2, 10, 1, 36)
    def rt_loads(E0, half):
        for q in range(2*half, 2*half + 2):
            if OPT.get("rtlin"): S(E0, INF, f"s_add_u32 s{S_RL}, s{S_RL}, 1024" if q else f"s_lshl_b32 s{S_RL}, s{S_T4}, 12 ! s_lshl_b32 s{S_T5}, s{S_T3}, 3 ! s_add_u32 s{S_RL}, s{S_RL}, s{S_T5}")
            else: S(E0, INF, f"s_add_u32 s{S_RL}, s{S_RL}, 8192" if q else f"s_lshl_b32 s{S_RL}, s{S_T4}, 7 ! s_lshl_b32 s{S_T5}, s{S_T3}, 3 ! s_add_u32 s{S_RL}, s{S_RL}, s{S_T5}")
            for t, sr in enumerate((S_WO, S_WD)):
                mq.add('d', E0 + ((4 + 14*(q % 2) + 7*t) if RTL > 5 else 36), E0 + (33 if RTL > 5 else 60), f"s_add_u32 m0, s{S_WA}, {65536 + t*4096 + q*1024}", f"buffer_load_dwordx4 v{V_L16 if OPT.get('rtlin') else V_RT}, {srd(sr)}, s{S_RL} offen lds", "RT")
    for gs in range(NS):
        b = gs * 64
        if gs + 2 < 8: a_stage(gs + 2, b + (6 if gs or PRO >= 3 else 22), (4 if gs or PRO >= 3 else 2), b + 41)
        PFS = OPT.get("pfs", {})
        if gs == 1:
            VV(b + 2, INF, f"v_lshrrev_b32 v{V_PO}, 2, v{V_LANE}", f"v_lshlrev_b32 v{V_PO}, 7, v{V_PO}", f"v_and_or_b32 v{V_PO}, v{V_LANE}, 3, v{V_PO}", f"v_lshlrev_b32 v{V_PO}, 6, v{V_PO}",
               f"v_lshlrev_b32 v{V_TMP[5]}, 6, v{V_LANE}", f"v_min_u32 v{V_TMP[4]}, 1728, v{V_TMP[5]}")
        for n_, c_ in enumerate(PFS.get(gs, "")):
            if c_ in "qv":
                S(b + 2, INF, f"s_lshl_b32 s{S_T1}, s{i}, 2", f"s_add_u32 s{S_T1}, s{S_T1}, s{w}", f"s_lshl_b32 s{S_T1}, s{S_T1}, 17", f"s_lshl_b32 s{S_T5}, s{h}, 8", f"s_add_u32 s{S_T1}, s{S_T1}, s{S_T5}")
                vo = V_PO
            else:
                S(b + 2, INF, f"s_lshl_b32 s{S_T1}, s2, 2", f"s_add_u32 s{S_T1}, s{S_T1}, s{w}", f"s_mul_i32 s{S_T1}, s{S_T1}, {4096 if c_ == 'o' else 1792}")
                vo = V_TMP[5] if c_ == "o" else V_TMP[4]
            mq.add('l', b + 8, INF, f"buffer_load_dword v{V_TMP['qgu'.find(c_) % 4]}, v{vo}, {srd(dict(q=S_WQ, v=S_WUV, g=S_WG, u=S_WU, o=S_WO, d=S_WD)[c_])}, s{S_T1} offen", "PF")
        if gs == 6: S(b + 10, INF, f"s_min_u32 s{S_WG+2}, s{S_WG+2}, s{S_HSRD+2}", f"s_mov_b32 s{S_WU+2}, s{S_WG+2}")
        GS = OPT.get("gs", (7, 8))
        if gs in GS: g_stage(GS.index(gs), b + 4, 3, b + 41)
        if gs == 8:
            t0, t1 = V_TMP[2:4]
            S(b + 4, b + 30, f"s_lshl_b32 s{S_T5}, s{S_QT}, 7", f"s_add_u32 s{S_T5}, s{S_T5}, {WS_FX}")
            VV(b + 4, b + 30, f"v_and_b32 v{V_PO}, 7, v{V_LANE}", f"v_lshlrev_b32 v{V_PO}, 2, v{V_PO}", f"v_add_u32 v{V_PO}, s{S_T5}, v{V_PO}")
            mq.add('f', b + 28, b + 36, poll_xn.issue, 4, "mem")
        if gs == 9: mq.add('f', b + 2, b + 6, poll_xn.check, 8, "valu")
        if 9 <= gs <= 16: xn_stage(gs - 9, b + 8, 4, b + 41)
        if gs == 10: VV(b + 20, INF, *[f"v_add_u32 v{V_TRH[c]}, 65536, v{V_TR[c]}" for c in range(4)])
        if gs in (RTL, RTL + 1) and not OPT.get("nortl"): rt_loads(b, gs - RTL)
        if gs == 27:
            S(b + 4, b + 30, f"s_and_b32 s{S_T5}, s2, 31", f"s_lshl_b32 s{S_T5}, s{S_T5}, 7", f"s_add_u32 s{S_T5}, s{S_T5}, {WS_FK}")
            VV(b + 4, b + 30, f"v_and_b32 v{V_PO}, 7, v{V_LANE}", f"v_lshlrev_b32 v{V_PO}, 2, v{V_PO}", f"v_add_u32 v{V_PO}, s{S_T5}, v{V_PO}")
        if gs == KVS - 1: mq.add('f', b + 26, b + 33, poll_kv.issue, 4, "mem")
        if gs + 3 < NS: w_stage(gs + 3, b + 44, 4, b + 64 + 5)
        if gs in (14, 16): g_stage(2 + (gs - 14)//2, b + 44, 3, b + 64 + 7)
    b = KVS*64
    mq.add('f', b + 4, b + 8, poll_kv.check, 8, "valu")
    for st in range(2):
        S(b, INF, f"s_mov_b32 s{S_ASRD+2}, {WS_END}" if st else f"s_cmp_lt_u32 s{w}, 2 ! s_cselect_b32 s{S_ASRD+2}, {WS_END}, 0")
        for j in range(8):
            if j == 4: S(b, INF, f"s_add_u32 s{S_T4}, s{S_SRCA}, 4096")
            mq.add('d', b + 8 + st*64 + 6*j, INF, f"s_add_u32 m0, s{S_LA}, {st*32768 + (j//4)*4096}",
                   f"buffer_load_dwordx4 v{V_L16}, {srd(S_ASRD)}, s{S_T4 if j >= 4 else S_SRCA} offen offset:{(j%4)*1024}{SC} lds", ("KV", st))
        if st == 0: S(b, INF, f"s_cmp_ge_u32 s{w}, 2 ! s_cselect_b32 s{S_T4}, 0, 2", f"s_lshl_b32 s{S_T4}, s{S_T4}, 13", f"s_add_u32 s{S_SRCA}, s{S_SRCA}, s{S_T4}")
        else: S(b, INF, f"s_add_u32 s{S_SRCA}, s{S_SRCA}, 16384")
    mfill = mq.fillers()
    e(mq.first_m0)
    started = False
    for f in mfill[:n_pro0]:
        if f.cost == 8 and not started: go(); started = True
        f.fn()
        if f.cost == 8: e("s_nop 0")
    late()
    if OPT.get("tlb", 0):
        a, b, c = S_N, S_EVT, S_TRANS
        e(f"""s_lshr_b32 s{a}, s2, 3
        s_and_b32 s{b}, s{a}, 7
        s_add_u32 s{b}, s{b}, 2
        s_cmp_eq_u32 s{w}, 2
        s_cselect_b32 s{b}, 10, s{b}
        s_and_b32 s{c}, s{w}, 1
        s_lshr_b32 s{S_T0}, s{w}, 1
        s_cmp_eq_u32 s{c}, s{S_T0}
        s_cselect_b32 s{b}, 12, s{b}
        s_lshl_b32 s{S_T1}, s{b}, 3
        s_load_dwordx2 s[{S_ASRD}:{S_ASRD+1}], s[0:1], s{S_T1}
        s_cmp_lt_u32 s{b}, 6
        s_mov_b32 s{S_ASRD+2}, {1792*1024}
        s_cselect_b32 s{S_ASRD+2}, {4*MB}, s{S_ASRD+2}
        s_lshr_b32 s{S_T1}, s{a}, 3
        s_lshl_b32 s{a}, s{a}, 1
        s_add_u32 s{a}, s{a}, s{c}
        s_cmp_eq_u32 s{b}, 12
        s_cselect_b32 s{S_ASRD+2}, {WS_END}, s{S_ASRD+2}
        s_cselect_b32 s{a}, s{a}, s{S_T1}
        s_lshl_b32 s{a}, s{a}, 20
        v_mov_b32 v{V_TMP[5]}, s{a}
        s_waitcnt lgkmcnt(0)""")
        e.vmem(f"buffer_load_dword v{V_TMP[1]}, v{V_TMP[5]}, {srd(S_ASRD)}, 0 offen sc1", "PF")
        e(f"s_mov_b64 s[{S_ASRD}:{S_ASRD+1}], s[{S_WS}:{S_WS+1}]\ns_mov_b32 s{S_ASRD+2}, {WS_END}")
    LNG = OPT.get("lng", 0)
    LNB = 131072 if LNG else 49152
    t0, t1, t2 = V_TMP[2:5]
    def ln_tail():
        e(f"""s_lshl_b32 s{S_T0}, s{w}, 5
    s_add_u32 s{S_T0}, s{S_T0}, {LNB}
    v_lshlrev_b32 v{t0}, 7, v{V_LANE}
    v_add_u32 v{t0}, s{S_T0}, v{t0}""")
        e.ds(f"ds_write_b128 v{t0}, v[64:67]", "LNW"); e.ds(f"ds_write_b128 v{t0}, v[68:71] offset:16", "LNW")
        e(f"""s_lshl_b32 s{S_T0}, s{w}, 11
    s_add_u32 s{S_T0}, s{S_T0}, {LNB}
    v_add_u32 v{t0}, s{S_T0}, v{V_L16}
    v_lshrrev_b32 v{t1}, 5, v{V_LANE}
    v_lshlrev_b32 v{t1}, 12, v{t1}
    v_bfe_u32 v{t2}, v{V_LANE}, 3, 2
    v_lshl_add_u32 v{t1}, v{t2}, 8, v{t1}
    v_and_b32 v{t2}, 7, v{V_LANE}
    v_lshl_add_u32 v{t1}, v{t2}, 4, v{t1}
    s_lshr_b32 s{S_T0}, s2, 3
    s_lshl_b32 s{S_T0}, s{S_T0}, 16
    s_bfe_u32 s{S_T1}, s2, 0x20001
    s_lshl_b32 s{S_T1}, s{S_T1}, 10
    s_add_u32 s{S_T0}, s{S_T0}, s{S_T1}
    s_and_b32 s{S_T1}, s2, 1
    s_lshl_b32 s{S_T1}, s{S_T1}, 7
    s_add_u32 s{S_T0}, s{S_T0}, s{S_T1}
    s_lshl_b32 s{S_T1}, s{w}, 14
    s_add_u32 s{S_T0}, s{S_T0}, s{S_T1}
    s_add_u32 s{S_T1}, s{S_T0}, 8192""")
    if LNG:
        for f in mfill[n_pro0:n_pro1]: f.fn()
    else:
        e.need(vm=["X"])
        ln = layernorm_lines()
        rest = mfill[n_pro0:n_pro1]
        per = len(ln) // (sum(f.cost == 8 for f in rest) + 1) + 1
        while ln or rest:
            for t in ln[:per]: e(t)
            ln = ln[per:]
            while rest:
                f = rest.pop(0); f.fn()
                if f.cost == 8: break
        ln_tail()
    mfill = mfill[n_pro1:]
    P0 = (LNG - 1)*64 + 44 if LNG else 0
    misc = []
    misc.append(Filler(lambda: (e.ds(f"ds_read_b128 v[64:67], v{t0}", "LN"), e.ds(f"ds_read_b128 v[68:71], v{t0} offset:1024", "LN")), 8, "mem", P0 + 2, P0 + 30))
    misc.append(Filler(lambda: (e.need(lg=["LN"]), e.vmem(f"buffer_store_dwordx4 v[64:67], v{t1}, {srd(S_WS)}, s{S_T0} offen{SC}", "XNST")), 8, "mem", P0 + 14, P0 + 40))
    misc.append(Filler(lambda: e.vmem(f"buffer_store_dwordx4 v[68:71], v{t1}, {srd(S_WS)}, s{S_T1} offen{SC}", "XNST"), 8, "mem", P0 + 16, P0 + 41))
    for t in scalar_setup2(e): misc.append(Filler(lambda t=t: e(t.replace(" ! ", "\n")), 4, "salu", 44, 160 + P0))
    S_RA, S_RB = S_N, S_EVT
    rts = [Filler(lambda: e(f"s_add_u32 s{S_RA}, s{S_WA}, 65536"), 4, "salu", 160 + P0)]
    for c in range(4): rts.append(Filler(lambda c=c: e(f"v_add_u32 v{V_RTA[c]}, s{S_RA}, v{V_TR[c]}"), 4, "valu", 160 + P0))
    for t in (f"s_lshl_b32 s{S_RA}, s{S_T4}, 19", f"s_lshl_b32 s{S_T3}, s{S_T3}, 12", f"s_add_u32 s{S_RA}, s{S_RA}, s{S_T3}", f"s_add_u32 s{S_RA}, s{S_RA}, {WS_WOF}",
              f"s_mul_i32 s{S_RB}, s{S_T4}, {56*4096}", f"s_add_u32 s{S_RB}, s{S_RB}, s{S_T3}", f"s_add_u32 s{S_RB}, s{S_RB}, {WS_WDF}"):
        rts.append(Filler(lambda t=t: e(t), 4, "salu", 160 + P0, 190 + P0))
    SIGKV = OPT.get("sigkv", 27)
    for n in range(8):
        t, c = n // 4, n % 4
        d0 = V_PK + (n % 2)*4
        def fr(t=t, c=c, d0=d0, n=n):
            e.need(vm=["RT"])
            for rr in range(2): e.ds(f"ds_read_b64_tr_b16 v[{d0+rr*2}:{d0+rr*2+1}], v{V_RTA[c]} offset:{t*4096 + rr*2048}", ("RTF", n))
        def fs(t=t, c=c, d0=d0, n=n):
            e.need(lg=[("RTF", n)])
            e.vmem(f"buffer_store_dwordx4 {vr(d0)}, v{V_L16}, {srd((S_WS, S_BSRD)[t])}, s{(S_RA, S_RB)[t]} offen offset:{c*1024}{SC}", "RTST")
        if not OPT.get("norts"): rts.append(Filler(fr, 8, "mem", RTS*64 + 40 + RG*n)); rts.append(Filler(fs, 4, "mem", RTS*64 + 40 + RG*n + 12, 30*64 + 30 if POLLALL else (SIGKV - 1)*64))
    mfmas = []; rd = []
    sig_at = {3 + LNG: (["XNST"], sig_lin(WS_FX)), SIGKV: (["KST", "VST"] + ([] if POLLALL else ["RTST"]), SIG_KV)}
    def stage_gate(gs):
        def fn():
            tags = [("W", gs)]
            if gs < 8: tags.append(("A", gs))
            if gs in sig_at: tags += sig_at[gs][0]
            if gs == LNG:
                e("s_nop 7")
                for t in layernorm_lines(): e(t)
                ln_tail()
            f3 = OPT.get("fine3")
            if f3 is not None and 0 <= gs - f3 < 6: stamp(e, 14 + 3*(gs - f3))
            e.need(vm=tags, lg=["LNW"])
            if f3 is not None and 0 <= gs - f3 < 6: stamp(e, 15 + 3*(gs - f3))
            e("s_barrier")
            if f3 is not None and 0 <= gs - f3 < 6: stamp(e, 16 + 3*(gs - f3))
            if gs in sig_at: signal(e, sig_at[gs][1], V_TMP[6])
            if gs % 8 == 0: stamp(e, 2 + gs // 8)
            if OPT.get("fine") is not None and 0 <= gs - OPT["fine"] < 18: stamp(e, 14 + gs - OPT["fine"])
        return fn
    def actread(s, ksub, rb):
        return lambda: e.ds(f"ds_read_b128 {ar(actf(2*s+ksub, rb))}, v{V_ARD[ksub]} offset:{(s % 2)*32768 + rb*2048}", ("AF", s, ksub))
    for gs in range(NS):
        base = gs * 64
        if gs > 0 and gs not in OPT.get("nogate", (20, 21)): rd.append(Filler(stage_gate(gs), 8, "mem", base - 64 + BAR, base - 64 + BAR + 1))
        pend = [Filler(actread(gs, ksub, rb), 4, "mem", base - 64 + BAR, base - 3) for rb in range(4) for ksub in range(2)] if gs < 8 else []
        CH = 2 if gs < 16 else 4
        for g in range(16 // CH):
            g0 = base + g*4*CH
            db = g if gs < 16 else 4*((gs // 4) % 2) + g
            first = gs % (16 // CH) == 0
            for k in range(CH):
                slot = (g*CH + k) % 8
                if gs < 16: c_, off = g % 4, (k*2 + g // 4)*4096
                elif gs < 24: c_, off = 2*((gs // 4) % 2) + g % 2, (k*2 + g // 2)*4096
                else: c_, off = g, k*4096
                off += area(gs)
                for rr in range(2):
                    ad = V_TRH[c_] if off >= 65536 else V_TR[c_]
                    d = V_WF + slot*4 + rr*2
                    n_ = k*2 + rr
                    lo = (g0 - 22 + 2*n_) if CH == 2 else (g0 - 16 + n_)
                    if gs == 16 and g == 1: lo = max(lo, base)
                    rd.append(Filler(lambda d=d, ad=ad, o=(off + rr*2048) % 65536, t=(gs, g): e.ds(f"ds_read_b64_tr_b16 v[{d}:{d+1}], v{ad} offset:{o}", ("F", t)),
                                     4, "mem", max(lo, base - 64 + BAR), g0 - 3))
                    for _ in range(1 if g else 2):
                        if pend: rd.append(pend.pop(0))
            for rb in range(4):
                for kk in range(CH):
                    k = kk if rb % 2 == 0 else CH - 1 - kk
                    kslot = CH*(gs % (16 // CH)) + k
                    def needs(gs=gs, g=g, CH=CH):
                        return e.need(lg=[("F", (gs, g))] + ([("AF", gs, 0), ("AF", gs, 1)] if gs < 8 else []),
                                      vm=[("XN", 4*(gs % 4) + q) for q in range(4)] if 16 <= gs < 20 else ())
                    def m(gs=gs, slot=(g*CH + k) % 8, kslot=kslot, db=db, rb=rb, z=(first and kk == 0), needs=needs):
                        needs()
                        wv = vr(V_WF + slot*4); a = ar(actf(kslot, rb)); d = vr(acc(db, rb))
                        e(mf(d, a, wv, "0" if z else d) if 8 <= gs < 16 else mf(d, wv, a, "0" if z else d))
                    m.pre = needs
                    mfmas.append(m)
    def cvts(base, dst, dl):
        out = []
        for db in range(8):
            for rb in range(4):
                for hh in range(2):
                    d = dst(db, rb, hh); s = acc(db, rb) + 2*hh
                    out.append(Filler(lambda d=d, s=s: e(f"v_cvt_pk_bf16_f32 v{d}, v{s}, v{s+1}"), 4, "valu", base + 448 + 8*db + 2*rb + 1 + 8, dl(db, rb)))
        return out
    cv = cvts(0, lambda db, rb, hh: V_PK + (rb*4 + db//2)*4 + (db & 1)*2 + hh, lambda db, rb: min(512 + 8*db + 2*rb, 512 + 30))
    VH = OPT.get("vh", 1150)
    cvv = cvts(512, lambda db, rb, hh: V_PK + ((db//4)*8 + (rb//2)*4 + db % 4)*4 + (rb & 1)*2 + hh, lambda db, rb: min(1024 + 16*db + 4*rb, 1024 + 16) if db < 4 else min(VH + 39, 1278))
    for f in cvv[32:]: f.earliest = VH
    cv += cvv
    st = []
    G2 = OPT.get("sgap", 34)
    NKV = OPT.get("nkv", 14)
    sched = [(WS_K + n*1024, n, "KST", 512 + 36 + (444 // NKV)*n, 512 + 454 if n < 8 else 1024) for n in range(NKV)]
    sched += [(WS_K + n*1024, n, "KST", 1024 + 4 + G2*(n - NKV), VH - 2) for n in range(NKV, 16)]
    sched += [(WS_V + ((n % 8)//4)*8192 + ((n // 8)*4 + n % 4)*1024, n, "VST", max(1024 + 20 + G2*(n + 16 - NKV), VH + 40 if n >= 8 else 0), (SIGKV - 1)*64 + 20) for n in range(16)]
    for off, n, tag, lo, dl in sched:
        if n % 4 == 0: st.append(Filler(lambda off=off: e(f"s_add_u32 s{S_T2}, s{S_KVST}, {off}"), 4, "salu", lo - 4))
        st.append(Filler(lambda n=n, tag=tag: e.vmem(f"buffer_store_dwordx4 {vr(V_PK + n*4)}, v{V_L16}, {srd(S_WS)}, s{S_T2} offen offset:{(n%4)*1024}{SC}", tag), 4, "mem", lo, dl))
    C0 = -2.0 * math.sqrt(2.0 / math.pi) * math.log2(math.e)
    V_C1 = V_TMP[4]; V_QW = V_TMP[5]
    ge = [Filler(lambda: e(f"v_mov_b32 v{V_C1}, {fb(C0*0.044715):#x}"), 4, "valu", 1100)]
    for hf in range(2):
        lo = 1024 + 256*(hf + 1) - 16 + 11; dl = 1024 + 256*(hf + 2)
        def RW(txt):
            i_ = chk.parse(txt); return (set(i_.r), set(i_.w))
        def V(txt, cost=4): ge.append(Filler(lambda: e(txt), cost, "valu", lo, dl, RW(txt) if OPT.get("ooo", 1) else None))
        for t in [f"s_lshl_b32 s{S_T0}, s{S_GJ}, 13", f"s_add_u32 s{S_T0}, s{S_T0}, {hf*4096}", f"s_add_u32 s{S_T0}, s{S_T0}, s{S_HST}"]:
            ge.append(Filler(lambda t=t: e(t), 4, "salu", lo, dl))
        for rb in range(4):
            lo = 1024 + 256*(hf + 1) - 16 + 4*rb + 11
            for c in range(2):
                G, U = acc(4*hf + c, rb), acc(4*hf + 2 + c, rb); T = V_TMP[0:4]
                for r in range(4): V(f"v_mul_f32 v{T[r]}, v{G+r}, v{G+r}")
                for r in range(4): V(f"v_mul_f32 v{U+r}, v{G+r}, v{U+r}")
                for r in range(4): V(f"v_fmaak_f32 v{T[r]}, v{T[r]}, v{V_C1}, {fb(C0):#x}")
                for r in range(4): V(f"v_mul_f32 v{G+r}, v{G+r}, v{T[r]}")
                for r in range(4): V(f"v_exp_f32 v{G+r}, v{G+r}", 8)
                for r in range(4): V(f"v_add_f32 v{G+r}, 1.0, v{G+r}")
                for r in range(4): V(f"v_rcp_f32 v{G+r}, v{G+r}", 8)
                for r in range(4): V(f"v_mul_f32 v{U+r}, v{U+r}, v{G+r}")
                D = acc(4*hf, rb) + 2*c
                V(f"v_cvt_pk_bf16_f32 v{D}, v{U}, v{U+1}"); V(f"v_cvt_pk_bf16_f32 v{D+1}, v{U+2}, v{U+3}")
            st_ = f"buffer_store_dwordx4 {vr(acc(4*hf, rb))}, v{V_L16}, {srd(S_HSRD)}, s{S_T0} offen offset:{rb*1024}{SC}"
            ge.append(Filler(lambda st_=st_: e.vmem(st_, "HST"), 4, "mem", lo, dl, RW(st_) if OPT.get("ooo", 1) else None))
    ge.append(Filler(lambda: e(f"s_lshl_b32 s{S_T0}, s{w}, 14"), 4, "salu", 1792))
    ge.append(Filler(lambda: e(f"s_add_u32 s{S_T0}, s{S_T0}, 131072"), 4, "salu", 1792))
    ge.append(Filler(lambda: e(f"v_add_u32 v{V_QW}, s{S_T0}, v{V_L16}"), 4, "valu", 1792))
    zero_hi = []
    for hf in range(2):
        for dg in (2*hf, 2*hf + 1):
            for qb in range(4):
                lo = 1536 + 256*hf + 192 + 32*(dg % 2) + 16 + 4*qb + 3 + 8
                def V(txt, cost=4, kind="valu", lo=lo): ge.append(Filler(lambda: e(txt), cost, kind, lo))
                o0, o1 = acc(2*dg, qb), acc(2*dg+1, qb)
                for r in range(4): V(f"v_mul_f32 v{o0+r}, {QSCALE:#x}, v{o0+r}"); V(f"v_mul_f32 v{o1+r}, {QSCALE:#x}, v{o1+r}")
                for d, s_ in ((o0, o0), (o0+1, o0+2), (o0+2, o1), (o0+3, o1+2)): V(f"v_cvt_pk_bf16_f32 v{d}, v{s_}, v{s_+1}")
                ge.append(Filler(lambda o0=o0, qb=qb, dg=dg: e.ds(f"ds_write_b128 v{V_QW}, {vr(o0)} offset:{(qb*4+dg)*1024}", "QW"), 4, "mem", lo))
        for dg in (2*hf, 2*hf + 1):
            for qb in range(4):
                o0 = acc(2*dg, qb)
                for r in range(4): ge.append(Filler(lambda r=r, o0=o0, qb=qb, dg=dg: e(f"v_accvgpr_write_b32 a{A_Q + (qb*4+dg)*4 + r}, v{o0+r}"), 4, "valu", 29*64 + 4))
        if hf == 0:
            for r in range(64): ge.append(Filler(lambda r=r: e(f"v_accvgpr_write_b32 a{A_DACC + r}, 0"), 4, "valu", 31*64 + 4))
    stamp(e, 1)
    e.need(vm=[("W", 0), ("A", 0)]); e.wait_all(vm=False); e("s_barrier")
    e(f"s_mul_i32 s{S_TAG}, s{S_TAG}, 0x9e3779b1\ns_add_u32 s{S_TAG}, s{S_TAG}, 0x7f4a7c15")
    stamp(e, 2)
    k = 0
    while rd[k].earliest < 0: rd[k].fn(); k += 1
    e.maxmem = OPT.get("maxmem", 1)
    rest = e.schedule(mfmas, [rd[k:], mfill, cv, misc, rts, st, att_setup_fillers(e, poll_b), ge], flush=False)
    e("s_nop 7")
    e.c(f"left over fillers: {[len(r) for r in rest]}")
    for r in rest:
        for f in r: f.fn()
    stamp(e, 6)
    attention(e, poll_b, poll_c, zero_hi)
    phase_d(e, poll_c)
    if OPT.get("padto"):
        if "padb" in OPT: e(f"s_lshr_b32 s6, s2, 3\ns_cmp_lg_u32 s6, {OPT['padb']}\ns_cbranch_scc1 L_end")
        if "padx" in OPT: e(f"s_and_b32 s6, s2, 7\ns_cmp_lg_u32 s6, {OPT['padx']}\ns_cbranch_scc1 L_end")
        e(f"s_nop 1\nv_readlane_b32 s6, v{V_STAMP}, 0\ns_add_u32 s6, s6, {OPT['padto']*100}")
        if OPT.get("padph"):
            e(f"v_readlane_b32 s4, v{V_STAMP}, {OPT['padph'][0]}\nv_readlane_b32 s5, v{V_STAMP}, {OPT['padph'][1]}\ns_sub_u32 s5, s5, s4\ns_add_u32 s6, s6, s5")
        e.label("L_pad")
        e("s_memrealtime s[4:5]\ns_waitcnt lgkmcnt(0)\ns_sub_u32 s7, s4, s6\ns_cmp_lt_i32 s7, 0\ns_cbranch_scc1 L_pad")
    else: stamp_flush(e)
    e("s_branch L_end")
    e.cold()
    for p in (poll_xn, poll_kv, poll_b, poll_c): p.spin()
    slow_path(e)
    e.label("L_end")
    e("s_endpgm")

A_Z = 212
S_FIRST = 20
def att_dma(e, which, j):
    if " m0," in e.L[-1]: e("s_nop 0")
    sr, src, ld = ((S_ASRD, S_SRCA, S_LA), (S_BSRD, S_SRCB, S_LB))[which]
    e.vmem(f"buffer_load_dwordx4 v{V_L16}, {srd(sr)}, s{S_T4 if j >= 4 else src} offen offset:{(j%4)*1024}{OPT.get('kvsc', SC)} lds", "KV")
    if which == 1 and OPT.get("boob"): ld = S_FIRST + 3
    ex = ()
    if j == 3: ex = (f"s_add_u32 m0, s{ld}, 4096", f"s_add_u32 s{S_T4}, s{src}, 4096")
    if j == 7: ex = (f"s_mov_b32 m0, s{S_LB}", f"s_add_u32 s{S_SRCA}, s{S_SRCA}, 16384") if which == 0 else (f"s_sub_u32 s{S_VMAXB}, s{S_VMAXB}, 16384", f"s_min_u32 s{S_SRCB}, s{S_VMAXB}, s{S_VCLB}")
    if ex:
        e(ex[0])
        if getattr(e, "defer", None) is not None: e.defer.append(ex[1])
        else: e(ex[1])
def d_load(e, j):
    so = S_DW if j < 4 else S_DH
    e.vmem(f"buffer_load_dwordx4 {ar(A_DOP + j*4)}, v{V_L16}, {srd(S_DSRD)}, s{so} offen offset:{(j%4)*1024}{OPT.get('kvsc', SC)}", "KV")
    if j % 4 == 3: e(f"s_add_u32 s{so}, s{so}, s{S_DINC}")
class M:
    def __init__(self, txt, tag=None): self.txt, self.tag = txt, tag
def d_mfmas():
    return [M(mf(ar(A_DACC + (mb*4+qb)*4), ar(A_DOP + mb*4), ar(A_DOP + 16 + qb*4), ar(A_DACC + (mb*4+qb)*4))) for mb in range(4) for qb in (range(4) if mb % 2 == 0 else range(3, -1, -1))]
def sm_half(e, buf, kb2):
    ex = []; cv = []
    for p in range(8):
        qb, hh = p // 2, p % 2
        r = Sreg(buf, kb2, qb) + 2*hh
        if OPT.get("noexp"): ex += [NOP, NOP]
        else: ex.append(lambda r=r: e(f"v_exp_f32 v{r}, v{r}")); ex.append(lambda r=r: e(f"v_exp_f32 v{r+1}, v{r+1}"))
        d = Preg(buf, qb) + 2*kb2 + hh
        cv.append(lambda r=r, d=d: e(f"v_perm_b32 v{d}, v{r+1}, v{r}, s{S_WUV}" if OPT.get("perm") else f"v_cvt_pk_bf16_f32 v{d}, v{r}, v{r+1}"))
    return ex, cv
def qk_mfmas(buf, half, tag="FR"):
    out = []
    for kb2 in range(2):
        kb = half*2 + kb2
        for qb in range(4):
            for kk in range(4):
                dg = kk if qb % 2 == 0 else 3 - kk
                d = vr(Sreg(buf, kb2, qb))
                c = d if kk else ("0" if kb < qb else vr(V_TD) if kb == qb else vr(V_TN))
                out.append(M(mf(d, ar(A_FB[0] + (kb2*4+dg)*4), ar(A_Q + (qb*4+dg)*4), c), (tag, 0, kb2*4)))
    return out
def pv_mfmas(buf, zero=False, order=range(8)):
    o = []
    for n_, db in enumerate(order):
        for qb in (range(4) if n_ % 2 == 0 else range(3, -1, -1)):
            d = vr(Oreg(db, qb))
            o.append(M(mf(d, ar(A_Z), ar(A_Z), "0")) if zero else M(mf(d, ar(A_FB[1] + db*4), vr(Preg(buf, qb)), d), ("FR", 1, (db // 4)*4)))
    s_ = []
    for qb in range(4):
        d = ar(A_L + qb*4)
        s_.append(M(mf(d, ar(A_Z), ar(A_Z), "0")) if zero else M(mf(d, ar(A_ONE), vr(Preg(buf, qb)), d)))
    if OPT.get("nosum"): s_ = [M("s_nop 0")]*4
    return o, s_
def frag_reads(e, fb_, off, order=range(8), tag="FR"):
    return [lambda j=j: e.ds(f"ds_read_b128 {ar(A_FB[fb_] + j*4)}, v{V_RD} offset:{off + j*1024}", (tag, fb_, (j // 4)*4)) for j in order]
NOP = lambda: None
def run(e, mfmas, gaps, nxt=None, skipw=-1):
    if mfmas[0].tag: e.need(lg=[mfmas[0].tag])
    for i, m in enumerate(mfmas):
        if m.txt: e(m.txt)
        t = mfmas[i+1].tag if i + 1 < len(mfmas) else nxt
        w_ = e.need(lg=[t]) if t and i != skipw else False
        if getattr(e, "defer", None) and not w_: e(e.defer.pop(0))
        for f in gaps.get(i, ()): f()
def section(e, mfmas, reads, ex, cv, carry, g2, nxt=None, tail=None):
    gaps = {}
    for q in range(8):
        gaps[4*q] = [reads[q], (carry or NOP) if q == 0 else cv[q-1]]
        gaps[4*q+1] = [ex[2*q]]; gaps[4*q+2] = [g2[q]]; gaps[4*q+3] = [ex[2*q+1]]
    if len(mfmas) > 32: gaps[32] = [cv[7]]
    for k, f in (tail or {}).items(): gaps.setdefault(k, []).insert(0, f)
    run(e, mfmas, gaps, nxt)
    return cv[7] if len(mfmas) == 32 else None
S_LIM = S_WUV + 1
PREP = [f"s_cmp_le_u32 s{S_N}, 15\ns_cselect_b32 s{S_T0}, 32768, s{S_T1}", f"s_cmp_le_u32 s{S_N}, s{S_LIM}\ns_cselect_b32 s{S_ASRD+2}, {WS_END}, 0", f"s_add_u32 s{S_T3}, s{S_N}, 2\ns_xor_b32 s{S_LB}, s{S_LB}, s{S_T0}",
        f"s_cmp_ge_u32 s{S_T3}, s{S_N0}\ns_cselect_b32 s{S_BSRD+2}, s{S_ASRD+2}, 0" + (f"\ns_cselect_b32 s{S_FIRST+3}, s{S_LB}, s{S_T1}" if OPT.get("boob") else ""), f"s_xor_b32 s{S_LA}, s{S_LA}, s{S_T0}\ns_mov_b32 m0, s{S_LA}"]
PREP0 = f"s_mov_b32 s{S_T1}, 0x30000"
LR = V_TMP[10:14]
def check_lines(ret, qt):
    return [f"v_min3_f32 v{V_LIM+1}, v{LR[0]}, v{LR[1]}, v{LR[2]}\nv_add_f32 v{V_LIM}, v{LR[0]}, v{LR[1]}",
            f"v_add_f32 v{V_LIM}, v{V_LIM}, v{LR[2]}\nv_min_f32 v{V_LIM+1}, v{V_LIM+1}, v{LR[3]}",
            f"s_mov_b32 s{S_RET}, {ret}\nv_add_f32 v{V_LIM}, v{V_LIM}, v{LR[3]}\nv_cmp_nle_f32 vcc, 0x17800000, v{V_LIM+1}",
            f"s_mov_b64 s[{S_FL}:{S_FL+1}], vcc\ns_mov_b32 s{S_CNT}, s{qt}\nv_cmp_nge_f32 vcc, {OPT.get('lhi', 0x67800000):#x}, v{V_LIM}",
            f"s_or_b64 vcc, vcc, s[{S_FL}:{S_FL+1}]\n" + ("s_nop 0" if OPT.get("noslow") else "s_cbranch_vccnz L_slow")]
def bsel(r):
    return (f"v[{r & ~1}:{(r & ~1) + 1}]", "op_sel:[0,1] op_sel_hi:[1,1]" if r & 1 else "op_sel_hi:[1,0]")
def norm_items(e, dbs, sbase, pk=False):
    it = []
    for dg in sorted({d // 2 for d in dbs}):
        it.append((lambda dg=dg: e(f"s_add_u32 s{S_T0}, s{sbase}, {dg*4096}"), 0, 2*dg+1))
        for qb in range(4):
            o0, o1 = Oreg(2*dg, qb), Oreg(2*dg+1, qb)
            for r in range(4):
                for o in (o0, o1):
                    if not pk: it.append((lambda o=o, r=r, qb=qb: e(f"v_mul_f32 v{o+r}, v{o+r}, v{LR[qb]}"), 4, 2*dg+1))
                    elif r % 2 == 0: it.append((lambda o=o, r=r, qb=qb: e(f"v_pk_mul_f32 {vr(o+r, 2)}, {vr(o+r, 2)}, {bsel(LR[qb])[0]} {bsel(LR[qb])[1]}"), 4, 2*dg+1))
            for d, s_ in ((o0, o0), (o0+1, o0+2), (o0+2, o1), (o0+3, o1+2)): it.append((lambda d=d, s_=s_: e(f"v_cvt_pk_bf16_f32 v{d}, v{s_}, v{s_+1}"), 4, 2*dg+1))
            it.append((lambda o0=o0, qb=qb: e.vmem(f"buffer_store_dwordx4 {vr(o0)}, v{V_L16}, {srd(S_WS)}, s{S_T0} offen offset:{qb*1024}{SC}", "CST"), 8, 2*dg+1))
    return it
def emit_items(items, extra=()):
    extra = list(extra)
    for f, c, _ in items:
        f()
        if c == 8:
            for _ in range(2):
                if extra: extra.pop(0)()
    for f in extra: f()
def sm_tail(e, order=range(8)):
    ex, cv = sm_half(e, 1, 1)
    for f in frag_reads(e, 1, 16384, order): f()
    for p in range(8):
        ex[2*p](); ex[2*p+1]()
        if p: cv[p-1]()
    e("s_nop 0"); cv[7]()

S_WOo, S_AC = S_OFF0, S_OFFA
WSLOT = [14, 15, 4, 5, 13, 12, 6, 7, 0, 1, 2, 3, -2, -3, 8, 9, 10, 11]
NWS = len(WSLOT)
def adv(so, base):
    if not OPT.get("drot", 0): return f"s_add_u32 s{so}, s{so}, 4096"
    return f"s_add_u32 s{so}, s{so}, 4096\ns_and_b32 s{so}, s{so}, 0x1ffff\ns_or_b32 s{so}, s{so}, s{base}"
def wreg(n, q):
    s_ = WSLOT[n % NWS]
    return ar(s_*16 + q*4) if s_ >= 0 else vr(-s_*16 + q*4)
def wo_load(e, n, q):
    e.vmem(f"buffer_load_dwordx4 {wreg(n, q)}, v{V_L16}, {srd(S_WS)}, s{S_WOo} offen offset:{q*1024}{SC}", ("WO", n))
    if q == 3: e(adv(S_WOo, S_AROW))

V_TRI = (9, 10, 11, 30)
V_SIG, V_TAGV, V_QA, V_ONE = 12, 13, 14, 15
S_D1, S_D2, S_M = S_FIRST + 2, S_FIRST, S_FIRST + 1
def att_setup_fillers(e, poll_b):
    i, h, w = S_BLK, S_HEAD, S_WAVE
    out = []
    def add(lo, hi, txt):
        for t in txt.split("\n"):
            t = t.strip()
            out.append(Filler(lambda t=t: e(t.replace(" ! ", "\n")), 4, "salu" if t.startswith("s_") else "valu", lo, hi))
    a, b, c, d = V_TRI; pv = poll_b.voff; t = S_M
    lo, hi = 17*64 + 10, 20*64
    add(lo, hi, f"""v_lshrrev_b32 v{d}, 4, v{V_LANE}
    v_lshlrev_b32 v{d}, 2, v{d}
    v_and_b32 v{a}, 15, v{V_LANE}
    v_sub_u32 v{a}, v{a}, v{d}
    v_subrev_u32 v{b}, 1, v{a}
    v_subrev_u32 v{c}, 2, v{a}
    v_subrev_u32 v{d}, 3, v{a}""")
    for r in V_TRI: add(lo, hi, f"v_ashrrev_i32 v{r}, 31, v{r}\nv_and_b32 v{r}, {NEGINF:#x}, v{r}")
    add(lo, hi, f"""s_lshr_b32 s{t}, s{S_OQ}, 1
    s_sub_u32 s{S_D1}, 15, s{t}
    s_min_u32 s{t}, s{t}, s{S_D1}
    s_lshl_b32 s{t}, s{t}, 9
    s_add_u32 s{t}, s{t}, {WS_FB}
    v_bfe_u32 v{pv}, v{V_LANE}, 3, 2
    v_lshlrev_b32 v{pv}, 5, v{pv}
    v_and_or_b32 v{pv}, v{V_LANE}, 7, v{pv}
    v_lshlrev_b32 v{pv}, 2, v{pv}
    v_add_u32 v{pv}, s{t}, v{pv}
    s_lshl_b32 s{S_TRANS}, s{i}, 1
    s_add_u32 s{S_TRANS}, s{S_TRANS}, s{w}
    s_sub_u32 s{S_TRANS}, s{S_TRANS}, 1
    s_sub_u32 s{S_D1}, s{S_TRANS}, 1
    s_add_u32 s{S_D2}, s{S_TRANS}, 1
    s_cmp_eq_u32 s{i}, 7 ! s_cselect_b32 s{t}, 16, 99
    s_cmp_eq_u32 s{w}, 0 ! s_cselect_b32 s{t}, s{t}, 99
    s_cmp_lt_u32 s{w}, 2 ! s_cselect_b32 s{S_D1}, s{t}, s{S_D1}
    s_cmp_lt_u32 s{w}, 2 ! s_cselect_b32 s{S_D2}, 99, s{S_D2}
    s_cmp_lt_u32 s{w}, 2 ! s_cselect_b32 s{S_TRANS}, 17, s{S_TRANS}
    s_sub_u32 s{S_VMAXB}, s{S_VMAXB}, 16384
    s_min_u32 s{S_SRCB}, s{S_VMAXB}, s{S_VCLB}
    s_lshr_b32 s{t}, s2, 3
    s_lshl_b32 s{t}, s{t}, 5
    s_and_b32 s{S_FIRST+3}, s2, 7
    s_add_u32 s{t}, s{t}, s{S_FIRST+3}
    s_lshl_b32 s{t}, s{t}, 2
    s_add_u32 s{t}, s{t}, {WS_FB}
    s_sub_u32 s{S_FIRST+3}, 3, s{w}
    s_lshl_b32 s{S_FIRST+3}, s{S_FIRST+3}, 14
    s_add_u32 s{S_FIRST+3}, s{S_FIRST+3}, 131072""")
    lo, hi = 28*64, 31*64
    add(lo, hi, f"""v_mov_b32 v{V_TAGV}, s{S_TAG}
    v_add_u32 v{V_SIG}, s{S_WL}, v{V_LANE}
    v_min_u32 v{V_SIG}, 1, v{V_SIG}
    v_lshlrev_b32 v{V_SIG}, 30, v{V_SIG}
    v_add_u32 v{V_SIG}, s{t}, v{V_SIG}
    v_add_u32 v{V_QA}, s{S_FIRST+3}, v{V_L16}
    v_and_b32 v{V_ONE}, 3, v{V_LANE}
    v_subrev_u32 v{V_ONE}, 1, v{V_ONE}
    v_ashrrev_i32 v{V_ONE}, 31, v{V_ONE}
    v_and_b32 v{V_ONE}, 0x3f803f80, v{V_ONE}
    s_mov_b32 s{S_T2}, 1
    s_lshr_b32 s{S_LIM}, s{w}, 1
    s_add_u32 s{S_N0}, s{S_N0}, s{S_LIM}
    s_add_u32 s{S_LIM}, s{S_LIM}, 14
    s_mov_b32 s{S_N}, -1
    s_mov_b32 s{S_DSRD+2}, 0""")
    return out

def Sq(c): return V_S[0] + c*4
def ring(g, j): return A_FB[0] + (g % 4)*16 + j*4
def qk2(tag="FR"):
    out = []
    for c in range(16):
        kb, qb = c // 4, c % 4
        for kk in range(4):
            dg = kk if c % 2 == 0 else 3 - kk
            d = vr(Sq(c))
            cc = d if kk else ("0" if kb < qb else vr(V_TD) if kb == qb else vr(V_TN))
            out.append(M(mf(d, ar(ring(kb, dg)), ar(A_Q + (qb*4+dg)*4), cc), (tag, kb)))
    return out
def pv2(order=(0, 1, 2, 3)):
    o = []; c = 0
    for n, p in enumerate(order):
        for x in range(2):
            for qb in (range(4) if x == 0 else range(3, -1, -1)):
                d = vr(Oreg(2*p + x, qb))
                for kg in ((0, 1) if c % 2 == 0 else (1, 0)):
                    o.append(M(mf(d, ar(ring(n, x*2 + kg)), vr(Preg(kg, qb)), d), ("FR", 4 + n)))
                c += 1
    s_ = [M(mf(ar(A_L + qb*4), ar(A_ONE), vr(Preg(kg, qb)), ar(A_L + qb*4))) for qb in range(4) for kg in range(2)]
    return o, s_
def kreads(e, g, tag="FR"): return [lambda j=j: e.ds(f"ds_read_b128 {ar(ring(g, j))}, v{V_RD} offset:{g*4096 + j*1024}", (tag, g)) for j in range(4)]
def vreads(e, n, p): return [lambda j=j: e.ds(f"ds_read_b128 {ar(ring(n, j))}, v{V_RD} offset:{16384 + (j % 2)*8192 + (2*p + j // 2)*1024}", ("FR", 4 + n)) for j in range(4)]
def cvt2(c, hh): return f"v_cvt_pk_bf16_f32 v{Preg(c // 8, c % 4) + 2*((c // 4) % 2) + hh}, v{Sq(c) + 2*hh}, v{Sq(c) + 2*hh + 1}"
def exp2(k): return f"v_exp_f32 v{V_S[0] + k}, v{V_S[0] + k}"
def drain_head(e, order):
    e.need(lg=[("FR", 1)])
    rd_ = [f for n, p in enumerate(order) for f in vreads(e, n, p)]
    for f in rd_[:8]: f()
    for c in range(1, 16):
        e(cvt2(c, 0)); e(cvt2(c, 1))
    for f in rd_[8:]: f()

def attention(e, poll_b, poll_c, zero_hi):
    i, h, w = S_BLK, S_HEAD, S_WAVE
    T = lambda t: (lambda: e(t))
    A = [lambda j=j: att_dma(e, 0, j) for j in range(8)]; B = [lambda j=j: att_dma(e, 1, j) for j in range(8)]; D = [lambda j=j: d_load(e, j) for j in range(8)]
    e(f"v_add_u32 v{V_RD}, 65536, v{V_L16}")
    e.need(vm=[("KV", 0), "HST", "RTST"], lg=["QW"])
    e("s_barrier")
    for g in range(2):
        for f in kreads(e, g, "F0"): f()
    e.vmem(f"buffer_store_dword v{V_TAGV}, v{V_SIG}, {srd(S_WS)}, 0 offen sc1", "SIG")
    MS = [f"s_add_u32 s{S_N}, s{S_N}, 1", f"s_cmp_eq_u32 s{S_N}, s{S_D1}\ns_cselect_b32 s{S_M}, -1, 0", f"s_cmp_eq_u32 s{S_N}, s{S_D2}\ns_cselect_b32 s{S_M}, -1, s{S_M}",
          f"v_and_b32 v{V_TD}, s{S_M}, v{V_TRI[0]}\nv_and_b32 v{V_TD+1}, s{S_M}, v{V_TRI[1]}", f"v_and_b32 v{V_TD+2}, s{S_M}, v{V_TRI[2]}\nv_and_b32 v{V_TD+3}, s{S_M}, v{V_TRI[3]}",
          f"s_and_b32 s{S_M}, s{S_M}, {NEGINF:#x}\nv_mov_b32 v{V_TN}, s{S_M}\nv_mov_b32 v{V_TN+1}, s{S_M}", f"v_mov_b32 v{V_TN+2}, s{S_M}\nv_mov_b32 v{V_TN+3}, s{S_M}"]
    for t in MS: e(t)
    e(f"s_xor_b32 s{S_LA}, s{S_LA}, 32768")
    XRD = f"v_xor_b32 v{V_RD}, 32768, v{V_RD}"
    CV0 = cvt2(0, 0) + "\n" + cvt2(0, 1)
    def itstamp(dn=0):
        if OPT.get("itst"):
            e(f"s_memtime s[4:5]\nv_subrev_u32 v5, {14 - dn}, v{V_LANE}\nv_cmp_eq_u32 vcc, s{S_N}, v5\ns_waitcnt lgkmcnt(0)\nv_mov_b32 v5, s4\nv_cndmask_b32 v{V_STAMP}, v{V_STAMP}, v5, vcc")
    stamp(e, 7)
    init = [f"v_accvgpr_write_b32 a{A_Z + r}, 0\nv_accvgpr_write_b32 a{A_ONE + r}, v{V_ONE}" for r in range(4)]
    gaps = {}; ne = 0
    kr = kreads(e, 2, "F0") + kreads(e, 3, "F0")
    pre = [PREP0] + PREP + [XRD]
    for k in range(64):
        g = gaps[k] = []
        if k % 2 == 0 and kr: g.append(kr.pop(0))
        elif init: g.append(T(init.pop()))
        elif k >= 16 and k % 6 == 0 and pre: g.append(T(pre.pop(0)))
        elif k >= 4*(ne // 4) + 8 and k < 63: g.append(T(exp2(ne))); ne += 1
    assert not pre
    gaps[63] = [lambda: (e.wait_all(), e("s_barrier"), itstamp())]
    zo, zl = pv_mfmas(1, zero=True)
    mem = [f for p in zip(A, kreads(e, 0) + kreads(e, 1)) for f in p] + B[:4]
    ms = MS + [CV0]
    for k in range(64, 100):
        g = gaps[k] = []
        if (k % 2 == 0 or k >= 96) and mem: g.append(mem.pop(0))
        elif ne < 64: g.append(T(exp2(ne))); ne += 1
    gaps[99] += mem + [T(exp2(k)) for k in range(ne, 64)] + [T(t) for t in ms]
    run(e, qk2("F0") + zo + zl, gaps)
    e.need(lg=[("FR", 0)])
    top = [("FR", 1)]*4
    assert e.lgkm == top, e.lgkm
    e("s_branch L_special")
    e(".p2align 6")
    e.c("attention step: S = K Q^T (64) | O += V P of the previous tile (64+8) | one down-projection step (16)")
    e.label("L_body")
    def loop_body(first):
        e.lgkm = list(top)
        gaps = {k: [] for k in range(152)}
        rds = kreads(e, 2) + kreads(e, 3) + ([] if first else vreads(e, 0, 0) + vreads(e, 1, 1))
        for n, f in enumerate(rds): gaps[4*n].append(f)
        for n, f in enumerate(kreads(e, 0) + kreads(e, 1)): gaps[100 + 4*n].append(f)
        for n, f in enumerate(B[4:] + D): gaps[2 + 4*n].append(f)
        for n, f in enumerate(A + B[:4]): gaps[98 + 4*n].append(f)
        if not first:
            for n, f in enumerate(vreads(e, 2, 2) + vreads(e, 3, 3)): gaps[64 + 2*n].append(f)
            for c in range(1, 16):
                gaps[4*(c-1)].append(T(cvt2(c, 0)))
                gaps[1 + 2*((c - 1)//2)].append(T(cvt2(c, 1)))
        for k in range(64): gaps[17 + 2*k if k != 39 else 96].append(T(exp2(k)))
        gaps[58].append(lambda: e.vmem(poll_b.ld, "KV"))
        gaps[62].append(T(PREP0))
        for n, t in enumerate(PREP + [XRD + chr(10) + MS[0]] + MS[1:3]): gaps[80 + 2*n].append(T(t))
        for n, t in enumerate(MS[3:]): gaps[132 + 4*n].append(T(t))
        gaps[146].append(T(CV0)); gaps[150].append(T(f"s_cmp_eq_u32 s{S_N}, s{S_T2}"))
        gaps[95].insert(0, lambda: e.wait_all())
        gaps[95].append(lambda: (e("s_barrier"), itstamp(1)))
        o, s_ = pv2()
        if first:
            zo, zl = pv_mfmas(1, zero=True)
            o = [M("")]*32 + zo; s_ = zl + [M("")]*4
        e.defer = []
        run(e, qk2() + o + s_ + d_mfmas(), gaps, nxt=("FR", 0), skipw=95)
        assert not e.defer; e.defer = None
        assert e.lgkm == top, e.lgkm
        e("s_cbranch_scc0 L_body")
    loop_body(False)
    e.label("L_special")
    e(f"""s_cmp_lt_u32 s{S_N}, 3
    s_cselect_b32 s{S_T2}, 3, 17
    s_min_u32 s{S_T2}, s{S_T2}, s{S_TRANS}
    s_cmp_eq_u32 s{S_N}, 3
    s_cbranch_scc0 L_late""")
    e(poll_b.test())
    e("s_cbranch_scc0 L_spin_b")
    e.label("L_ok_b")
    e(f"s_mov_b32 s{S_DSRD+2}, {WS_END}\ns_mov_b32 s{S_DINC}, 4096")
    e.label("L_late")
    e(f"s_cmp_eq_u32 s{S_N}, s{S_D2}\ns_cbranch_scc1 L_first")
    e(f"s_cmp_eq_u32 s{S_N}, s{S_TRANS}\ns_cbranch_scc0 L_body")
    e(f"s_cmp_eq_u32 s{S_N}, 17\ns_cbranch_scc0 L_trans")
    LRD = [f"v_accvgpr_read_b32 v{LR[0]}, a{A_L}\nv_accvgpr_read_b32 v{LR[1]}, a{A_L+4}", f"v_accvgpr_read_b32 v{LR[2]}, a{A_L+8}\nv_accvgpr_read_b32 v{LR[3]}, a{A_L+12}"]
    def cold():
        e.label("L_trans")
        e.lgkm = list(top); e.vm = ["KV"]*13
        qr = [lambda j=j: e.ds(f"ds_read_b128 {ar(A_Q + j*4)}, v{V_QA} offset:{j*1024}", "QS") for j in range(16)]
        rcp = [f"v_rcp_f32 v{LR[qb]}, v{LR[qb]}" for qb in range(4)]
        drain_head(e, (0, 1, 2, 3))
        o, s_ = pv2()
        gaps = {k: [f] for k, f in enumerate(B[4:] + D + [lambda: e.vmem(poll_b.ld, "KV")])}
        for k, t in enumerate(LRD + check_lines(0, S_QT) + rcp): gaps[13 + k] = [T(t)]
        items = norm_items(e, range(8), S_CTXLO)
        XB = f"v_xor_b32 v{V_RD}, {32768 + 65536}, v{V_RD}"
        def fill(g, k, left):
            while items and items[0][1] <= left and 8 + 8*(items[0][2] + 1) - 1 + 5 <= k:
                f, c, _ = items.pop(0); g.append(f); left -= c
        gaps[24] = [T(XB)]
        for k in range(25, 72):
            gaps[k] = []; fill(gaps[k], k, 8)
        run(e, s_ + o, gaps)
        def post():
            e(PREP0)
            for t in PREP: e(t.replace(f"s{S_T0}", f"s{S_T5}"))
            e.need(vm=["KV"])
            e("s_barrier")
            itstamp()
            mem = A + B[:4]; lds = qr + kreads(e, 0) + kreads(e, 1)
            gaps = {k: [mem.pop(0)] if k % 4 == 0 else [lds.pop(0), lds.pop(0)] for k in range(16)}
            run(e, d_mfmas(), gaps)
            extra = []
            for f in mem: extra += [f, NOP]
            emit_items(items, extra) if items else [(f(), e("s_nop 0")) for f in mem]
            del items[:]
            for t in MS: e(t)
            e(f"s_mov_b32 s{S_TRANS}, 17")
            e.need(lg=[("FR", 0)])
            assert e.lgkm == top, e.lgkm
            e("s_branch L_special")
        post()
        e.label("L_first")
        e(f"s_cmp_eq_u32 s{S_N}, 17\ns_cbranch_scc1 L_fzero")
        loop_body(True)
        e("s_branch L_special")
        e.label("L_fzero")
        for r in list(range(V_O, V_O + 128)) + list(range(V_S[0], V_S[0] + 64)) + [Preg(0, 0), Preg(0, 0) + 1]: e(f"v_mov_b32 v{r}, 0")
        for r in range(16): e(f"v_accvgpr_write_b32 a{A_L + r}, 0")
        e("s_branch L_final")
        e.label("L_ret0")
        e.lgkm = []; e.vm = []
        for t in rcp: e(t)
        e(XB)
        emit_items(norm_items(e, range(8), S_CTXLO))
        post()
    e.cold = cold
    e.c("last P V, merge of the two key ranges of the hi rows, range check of the row sums, ctx store")
    e.label("L_final")
    stamp(e, 8)
    tw, trd, tl, tlr = V_TMP[0:4]
    e(f"""s_lshl_b32 s{S_T0}, s{w}, 17
    s_lshl_b32 s{S_AC}, s{S_OQ}, 19
    s_add_u32 s{S_AC}, s{S_AC}, s{S_T0}
    s_add_u32 s{S_AC}, s{S_AC}, {WS_CTX}
    s_lshl_b32 s{S_WOo}, s{S_OM}, 19
    s_add_u32 s{S_WOo}, s{S_WOo}, s{S_T0}
    s_add_u32 s{S_WOo}, s{S_WOo}, {WS_WOF}
    s_mov_b32 s{S_AROW}, s{S_WOo}
    s_mov_b32 s{S_KVST}, s{S_AC}
    s_mul_i32 s{S_T0}, s2, {OPT.get("drot", 0)*4096}
    s_and_b32 s{S_T0}, s{S_T0}, {0x1ffff if OPT.get("drot", 0) % 4 == 0 else 8*OPT.get("drot", 0)*4096 - 1}
    s_add_u32 s{S_WOo}, s{S_WOo}, s{S_T0}
    s_add_u32 s{S_AC}, s{S_AC}, s{S_T0}
    s_and_b32 s{S_T0}, s{w}, 1
    s_lshl_b32 s{S_T0}, s{S_T0}, 14
    s_lshr_b32 s{S_T1}, s{w}, 1
    s_lshl_b32 s{S_T1}, s{S_T1}, 16
    s_add_u32 s{S_T0}, s{S_T0}, s{S_T1}
    v_add_u32 v{tw}, s{S_T0}, v{V_L16}
    v_xor_b32 v{trd}, {65536 + 16384}, v{tw}
    s_add_u32 s{S_T0}, s{S_WL}, {144*1024}
    v_add_u32 v{tl}, s{S_T0}, v{V_L16}
    v_xor_b32 v{tlr}, 3072, v{tl}
    s_cmp_ge_u32 s{w}, 2
    s_cbranch_scc1 L_mergeB""")
    for role in range(2):
        keep = list(range(4)) if role == 0 else list(range(4, 8))
        send = list(range(4, 8)) if role == 0 else list(range(4))
        if role == 1: e.label("L_mergeB")
        e.lgkm = list(top); e.vm = ["KV"]*13
        order = (2, 3, 0, 1) if role == 0 else (0, 1, 2, 3)
        drain_head(e, order)
        o, s_ = pv2(order)
        gaps = {2*k: [lambda k=k: wo_load(e, k // 4, k % 4)] for k in range(8)}
        for k in range(8): gaps[45 + 3*k] = [lambda k=k: wo_load(e, 2 + k // 4, k % 4)]
        gaps[17] = [T(LRD[0])]; gaps[18] = [T(LRD[1])]
        gaps[19] = [lambda: e.ds(f"ds_write_b128 v{tl}, {vr(LR[0])}")]
        for n in range(16): gaps[23 + 3*n] = [lambda n=n: e.ds(f"ds_write_b128 v{tw}, {vr(V_O + send[0]*16 + n*4)} offset:{n*1024}")]
        if OPT.get("fst"): stamp(e, 14)
        run(e, s_ + o, gaps)
        if OPT.get("fst"): stamp(e, 15)
        e.wait_all(vm=False)
        e("s_barrier")
        if OPT.get("fst"): stamp(e, 16)
        e.ds(f"ds_read_b128 {vr(V_TMP[4])}, v{tlr}", "ML")
        for n in range(16):
            e.ds(f"ds_read_b128 {vr(V_S[0] + n*4)}, v{trd} offset:{n*1024}", ("MO", n // 4))
            if n % 2: wo_load(e, 4 + n // 8, (n // 2) % 4)
        e.need(lg=["ML"])
        for qb in range(4): e(f"v_add_f32 v{LR[qb]}, v{LR[qb]}, v{V_TMP[4] + qb}")
        for t in check_lines(1 + role, S_QTHI): e(t)
        for n in range(16):
            e.need(lg=[("MO", n // 4)])
            for r in (0, 2):
                o = V_O + keep[0]*16 + n*4 + r
                e(f"v_pk_add_f32 {vr(o, 2)}, {vr(o, 2)}, {vr(V_S[0] + n*4 + r, 2)}")
        e.label(f"L_ret{1 + role}")
        for q in range(4): wo_load(e, 6, q)
        if OPT.get("fst"): stamp(e, 17)
        for qb in range(4): e(f"v_rcp_f32 v{LR[qb]}, v{LR[qb]}")
        emit_items(norm_items(e, keep, S_CTXHI, pk=True))
        if role == 0: e("s_branch L_attdone")
    e.c("phase D")
    e.label("L_attdone")
    stamp(e, 9)

def slow_path(e):
    M = V_P[1]; AL = V_P[1] + 4; T = V_P[1] + 8; QI = V_P[1] + 12; NI = V_P[1] + 13
    u, nu, ko, vo = S_T0, S_T1, S_T3, S_T5
    e.c("fallback: exact online softmax with the true running max for the 64 rows of this wave")
    e.label("L_slow")
    e.lgkm = []; e.vm = []
    e("s_waitcnt vmcnt(0) lgkmcnt(0)")
    e(f"""s_lshl_b32 s{nu}, s{S_CNT}, 1
    s_add_u32 s{nu}, s{nu}, 2
    s_lshl_b32 s{ko}, s{S_HEAD}, 19
    s_add_u32 s{vo}, s{ko}, {WS_V}
    s_add_u32 s{ko}, s{ko}, {WS_K}
    s_lshl_b32 s{S_CNT}, s{S_CNT}, 6
    v_lshrrev_b32 v{T}, 4, v{V_LANE}
    v_lshlrev_b32 v{T}, 2, v{T}
    v_and_b32 v{QI}, 15, v{V_LANE}
    v_sub_u32 v{QI}, v{QI}, v{T}
    v_add_u32 v{QI}, s{S_CNT}, v{QI}
    v_mov_b32 v{NI}, {NEGINF:#x}
    s_mov_b32 s{u}, 0""")
    for r in range(128): e(f"v_mov_b32 v{V_O + r}, 0")
    for qb in range(4): e(f"v_mov_b32 v{M+qb}, v{NI}\nv_mov_b32 v{LR[qb]}, 0")
    e.label("L_slowl")
    def ld8(so):
        for j in range(8):
            if j == 4: e(f"s_add_u32 s{so}, s{so}, 4096")
            e.vmem(f"buffer_load_dwordx4 {ar(A_FB[1] + j*4)}, v{V_L16}, {srd(S_WS)}, s{so} offen offset:{(j%4)*1024}{SC}", "SL")
        e(f"s_add_u32 s{so}, s{so}, 4096")
    ld8(ko)
    e.wait_all()
    for kb2 in range(2):
        for dg in range(4):
            for qb in range(4):
                d = vr(Sreg(0, kb2, qb))
                e(mf(d, ar(A_FB[1] + (kb2*4+dg)*4), ar(A_Q + (qb*4+dg)*4), d if dg else "0"))
    e("s_nop 7")
    ld8(vo)
    for kb2 in range(2):
        for qb in range(4):
            for r in range(4):
                s = Sreg(0, kb2, qb) + r
                e(f"v_cmp_gt_i32 vcc, {16*kb2 + r - 16*qb}, v{QI}\ns_nop 1\nv_cndmask_b32 v{s}, v{s}, v{NI}, vcc")
    e(f"v_subrev_u32 v{QI}, 32, v{QI}")
    for qb in range(4):
        a, b = Sreg(0, 0, qb), Sreg(0, 1, qb)
        e(f"""v_max3_f32 v{T}, v{a}, v{a+1}, v{a+2}
        v_max3_f32 v{T}, v{T}, v{a+3}, v{b}
        v_max3_f32 v{T}, v{T}, v{b+1}, v{b+2}
        v_max3_f32 v{T}, v{T}, v{b+3}, v{M+qb}
        v_mov_b32 v{T+1}, v{T}
        s_nop 1
        v_permlane32_swap_b32 v{T}, v{T+1}
        v_max_f32 v{T}, v{T}, v{T+1}
        v_mov_b32 v{T+1}, v{T}
        s_nop 1
        v_permlane16_swap_b32 v{T}, v{T+1}
        v_max_f32 v{T}, v{T}, v{T+1}
        v_sub_f32 v{AL+qb}, v{M+qb}, v{T}
        v_mov_b32 v{M+qb}, v{T}
        v_exp_f32 v{AL+qb}, v{AL+qb}""")
        for s in list(range(a, a+4)) + list(range(b, b+4)):
            e(f"v_sub_f32 v{s}, v{s}, v{T}")
        for s in list(range(a, a+4)) + list(range(b, b+4)):
            e(f"v_exp_f32 v{s}, v{s}")
        e(f"v_mul_f32 v{LR[qb]}, v{LR[qb]}, v{AL+qb}")
        for s in list(range(a, a+4)) + list(range(b, b+4)):
            e(f"v_add_f32 v{LR[qb]}, v{LR[qb]}, v{s}")
        p = Preg(0, qb)
        e(f"v_cvt_pk_bf16_f32 v{p}, v{a}, v{a+1}\nv_cvt_pk_bf16_f32 v{p+1}, v{a+2}, v{a+3}\nv_cvt_pk_bf16_f32 v{p+2}, v{b}, v{b+1}\nv_cvt_pk_bf16_f32 v{p+3}, v{b+2}, v{b+3}")
        for db in range(8):
            for r in range(4): e(f"v_mul_f32 v{Oreg(db, qb)+r}, v{Oreg(db, qb)+r}, v{AL+qb}")
    e.wait_all()
    e("s_nop 1")
    for db in range(8):
        for qb in range(4):
            d = vr(Oreg(db, qb))
            e(mf(d, ar(A_FB[1] + db*4), vr(Preg(0, qb)), d))
    e(f"s_add_u32 s{u}, s{u}, 1\ns_cmp_lt_u32 s{u}, s{nu}\ns_nop 7\ns_cbranch_scc1 L_slowl")
    for qb in range(4):
        e(f"""v_mov_b32 v{T}, v{LR[qb]}
        s_nop 1
        v_permlane32_swap_b32 v{LR[qb]}, v{T}
        v_add_f32 v{LR[qb]}, v{LR[qb]}, v{T}
        v_mov_b32 v{T}, v{LR[qb]}
        s_nop 1
        v_permlane16_swap_b32 v{LR[qb]}, v{T}
        v_add_f32 v{LR[qb]}, v{LR[qb]}, v{T}""")
    e(f"s_cmp_eq_u32 s{S_RET}, 0\ns_cbranch_scc1 L_ret0\ns_cmp_eq_u32 s{S_RET}, 1\ns_cbranch_scc1 L_ret1\ns_branch L_ret2")


def phase_d(e, poll_c):
    qt, mt, w = S_OQ, S_OM, S_WAVE
    V_XO, V_X, V_G = 4, 8, 17
    CRS = [64, 80, 96, 112, 208, 224, 240][:OPT.get('ncr', 5)]; NCR = len(CRS)
    V_AS, V_AD = 128, 192
    t0, t1 = 24, 25
    S_XO, S_XO2 = S_XNB, S_HST
    V_WA = (V_TMP[0], V_TMP[2]); V_RA = (t0, V_TMP[3], V_G, V_TMP[4])
    e(f"""v_lshrrev_b32 v{t0}, 5, v{V_LANE}
    v_lshlrev_b32 v{t0}, 6, v{t0}
    v_xor_b32 v{V_WA[0]}, v{V_WA[0]}, v{t0}
    v_xor_b32 v{V_WA[1]}, 128, v{V_WA[0]}""")
    for j in range(16):
        e.ds(f"ds_write_b128 v{V_WA[(j // 4) % 2]}, {ar(A_DACC + j*4)} offset:{32768 + ((j%4)*4 + j//4)*1024}", "DW")
        if j < OPT.get("wpre", 6): wo_load(e, 7 + j // 4, j % 4)
    e(f"""v_lshrrev_b32 v{t0}, 3, v{V_LANE}
    v_and_b32 v{t1}, 7, v{V_LANE}
    v_lshlrev_b32 v{V_XO}, 10, v{t0}
    v_lshl_add_u32 v{V_XO}, v{t1}, 4, v{V_XO}
    v_lshlrev_b32 v{t0}, 4, v{t0}
    v_lshl_add_u32 v{t0}, v{t1}, 9, v{t0}
    s_lshl_b32 s{S_XO}, s{qt}, 16
    s_lshl_b32 s{S_T0}, s{w}, 14
    s_add_u32 s{S_XO}, s{S_XO}, s{S_T0}
    s_lshl_b32 s{S_T1}, s{mt}, 7
    s_add_u32 s{S_XO}, s{S_XO}, s{S_T1}
    s_add_u32 s{S_XO2}, s{S_XO}, 8192
    v_and_b32 v{t1}, 3, v{V_LANE}
    v_lshlrev_b32 v{t1}, 6, v{t1}
    v_xor_b32 v{t0}, v{t0}, v{t1}
    s_lshl_b32 s{S_T0}, s{w}, 12
    v_add_u32 v{V_RA[0]}, s{S_T0}, v{t0}
    v_xor_b32 v{V_RA[1]}, 128, v{V_RA[0]}
    v_add_u32 v{V_RA[2]}, 65536, v{V_RA[0]}
    v_add_u32 v{V_RA[3]}, 65536, v{V_RA[1]}""")
    if OPT.get("pollw", 1):
        v = poll_c.voff
        e(f"""s_lshr_b32 s{S_T0}, s{qt}, 1
        s_sub_u32 s{S_T1}, 15, s{S_T0}
        s_min_u32 s{S_T0}, s{S_T0}, s{S_T1}
        s_lshl_b32 s{S_T0}, s{S_T0}, 9
        s_lshl_b32 s{S_T1}, s{w}, 3
        s_add_u32 s{S_T0}, s{S_T0}, s{S_T1}
        s_add_u32 s{S_T0}, s{S_T0}, {WS_FC}
        v_and_b32 v{v}, 3, v{V_LANE}
        v_lshlrev_b32 v{v}, 7, v{v}
        v_and_or_b32 v{v}, v{V_LANE}, 4, v{v}
        v_add_u32 v{v}, s{S_T0}, v{v}""")
    else: poll32_addr(e, poll_c.voff, WS_FC)
    if OPT.get("fst"): stamp(e, 18)
    e.need(vm=["CST"]); e.wait_all(vm=False)
    if OPT.get("fst"): stamp(e, 19)
    e("s_barrier")
    if OPT.get("fst"): stamp(e, 20)
    signal(e, sig_lin(WS_FC), 26)
    for sw in range(4):
        for mb in range(4): e.ds(f"ds_read_b128 {vr(V_AD + (sw*4+mb)*4)}, v{V_RA[(sw // 2)*2 + mb // 2]} offset:{32768 + (sw % 2)*16384 + (mb % 2)*256}", ("R", sw))
    for it in range(2):
        e.vmem(f"buffer_load_dwordx4 {vr(V_X + 4*it)}, v{V_XO}, {srd(S_X)}, s{(S_XO, S_XO2)[it]} offen", "X")
    wl = [lambda n=n, q=q: wo_load(e, n, q) for n in range(7, NWS) for q in range(4)][OPT.get("wpre", 6):]
    cnt = [0]
    def V(t):
        e(t); cnt[0] += 1
        if cnt[0] % 6 == 0 and wl: wl.pop(0)()
    def rnd(base, pk):
        for j in range(8): V(f"v_cvt_pk_bf16_f32 v{pk+j}, v{base+2*j}, v{base+2*j+1}")
        for j in range(8): V(f"v_lshlrev_b32 v{base+2*j}, 16, v{pk+j}"); V(f"v_and_b32 v{base+2*j+1}, 0xffff0000, v{pk+j}")
    def red(base, tag):
        e.need(lg=[(tag, 1)])
        for r in range(0, 16, 2): V(f"v_pk_add_f32 {vr(base+r, 2)}, {vr(base+r, 2)}, {vr(base+16+r, 2)}")
        e.need(lg=[(tag, 2)])
        for r in range(0, 16, 2): V(f"v_pk_add_f32 {vr(base+r, 2)}, {vr(base+r, 2)}, {vr(base+32+r, 2)}")
        e.need(lg=[(tag, 3)])
        for r in range(0, 16, 2): V(f"v_pk_add_f32 {vr(base+r, 2)}, {vr(base+r, 2)}, {vr(base+48+r, 2)}")
    T = V_AD + 16; PK = V_AD + 32
    red(V_AD, "R"); rnd(V_AD, PK)
    for r in range(16): V(f"v_mul_f32 v{T+r}, 0xbfb8aa3b, v{V_AD+r}")
    for r in range(16): V(f"v_exp_f32 v{T+r}, v{T+r}")
    for r in range(16): V(f"v_add_f32 v{T+r}, 1.0, v{T+r}")
    for r in range(16): V(f"v_rcp_f32 v{T+r}, v{T+r}")
    for r in range(16): V(f"v_mul_f32 v{V_AD+r}, v{V_AD+r}, v{T+r}")
    rnd(V_AD, PK)
    while len(wl) > 8: wl.pop(0)()
    poll_c.issue()
    while wl: wl.pop(0)()
    stamp(e, 10); poll_c.check(); stamp(e, 11)
    def sw_(j): e.ds(f"ds_write_b128 v{V_WA[(j // 4) % 2]}, {vr(V_AS + j*4)} offset:{((j%4)*4 + j//4)*1024}", "SW")
    def c_load(n, q):
        e.vmem(f"buffer_load_dwordx4 {vr(CRS[n % NCR] + q*4)}, v{V_L16}, {srd(S_WS)}, s{S_AC} offen offset:{q*1024}{SC}", ("C", n))
        if q == 3: e(adv(S_AC, S_KVST))
    if OPT.get("dchain", 0):
        for n in range(2):
            for q in range(4): c_load(n, q)
        for n in range(0, 32, 2):
            ld = []
            for t in range(2):
                if n + 2 + t < 32: ld += [lambda q=q, t=t: c_load(n + 2 + t, q) for q in range(4)]
            for t in range(2):
                if n >= 2 and n + NWS - 2 + t < 32: ld += [lambda q=q, t=t: wo_load(e, n + NWS - 2 + t, q) for q in range(4)]
            for _ in range(min(4, len(ld))): ld.pop(0)()
            e.need(vm=[("C", n), ("C", n + 1), ("WO", n), ("WO", n + 1)])
            for k in range(32):
                c = k // 2; mb = c // 4; qb = c % 4 if mb % 2 == 0 else 3 - c % 4
                t = k % 2 if c % 2 == 0 else 1 - k % 2
                d = vr(V_AS + (mb*4 + qb)*4)
                e(mf(d, wreg(n + t, mb), vr(CRS[(n + t) % NCR] + qb*4), d if (n or k % 2) else "0"))
                if k % 2 == 0 and ld: ld.pop(0)()
    else:
        for n in range(NCR - 1):
            for q in range(4): c_load(n, q)
        for n in range(32):
            ld = []
            if n + NCR - 1 < 32: ld += [lambda q=q: c_load(n + NCR - 1, q) for q in range(4)]
            if n >= 1 and n + NWS - 1 < 32: ld += [lambda q=q: wo_load(e, n + NWS - 1, q) for q in range(4)]
            e.need(vm=[("C", n), ("WO", n)])
            for k in range(16):
                mb, qb = k // 4, k % 4
                d = vr(V_AS + k*4)
                e(mf(d, wreg(n, mb), vr(CRS[n % NCR] + qb*4), d if n else "0"))
                if k % 2 == 0 and ld: ld.pop(0)()
                if n == 31 and k >= 8: sw_(k - 8)
    stamp(e, 12)
    for j in range(8, 16):
        if j >= 12: e("s_nop 1")
        sw_(j)
    e.need(vm=["X"])
    for j in range(8): e(f"v_lshlrev_b32 v{T+2*j}, 16, v{V_X+j}"); e(f"v_and_b32 v{T+2*j+1}, 0xffff0000, v{V_X+j}")
    e.wait_all(vm=False)
    e("s_barrier")
    for sw in range(4):
        for mb in range(4): e.ds(f"ds_read_b128 {vr(V_AS + (sw*4+mb)*4)}, v{V_RA[(sw // 2)*2 + mb // 2]} offset:{(sw % 2)*16384 + (mb % 2)*256}", ("RS", sw))
    red(V_AS, "RS")
    for r in range(0, 16, 2): e(f"v_pk_fma_f32 {vr(V_AS+r, 2)}, {vr(V_AS+r, 2)}, {vr(V_AD+r, 2)}, {vr(T+r, 2)}")
    for j in range(8): e(f"v_cvt_pk_bf16_f32 v{PK+j}, v{V_AS+2*j}, v{V_AS+2*j+1}")
    for it in range(2):
        e.vmem(f"buffer_store_dwordx4 {vr(PK + 4*it)}, v{V_XO}, {srd(S_OUT)}, s{(S_XO, S_XO2)[it]} offen{OPT.get('outsc', SC)}", "OUT")
    e("s_cmp_lg_u32 s2, 0")
    e("s_cbranch_scc1 L_nobump")
    signal(e, f"s_mov_b32 s{S_CNT}, {WS_EP}", 26)
    e.label("L_nobump")
    stamp(e, 13)

HEADER = open("cdna_kernels/" + NAME + ".s.ref").read().split("; Override launch geometry")[0]
DOC = '''; ---------------------------------------------------------------------------------------------------------------
; [2^-80, 2^80] (NaN included) and any wave with a row outside recomputes its 64 rows in L_slow with the true running
; ---------------------------------------------------------------------------------------------------------------'''
def build():
    e = E(); body(e)
    n = 0
    def policy(roleB, trans, slow, spin):
        def d(lb, site, c):
            if lb == "L_body": return (c == 0) if site < 2 else True
            if lb == "L_first": return trans and c == 2
            if lb == "L_fzero": return trans == 2
            if lb == "L_late": return c != 1
            if lb == "L_trans": return trans and c == 0
            if lb == "L_mergeB": return roleB
            if lb == "L_slow": return slow
            if lb == "L_slowl": return c % 2 == 0
            if lb == "L_ret0": return trans and c == 0
            if lb == "L_ret1": return not roleB
            if lb.startswith("L_spin_"): return spin and c == 0
            if lb.startswith("L_ok_"): return c >= 1
            if lb.startswith("L_spinl_"): return True
            return False
        return d
    for cfg in ((0, 0, 0, 0), (1, 1, 0, 0), (0, 0, 1, 1), (1, 1, 1, 1), (1, 2, 0, 0)):
        tr = chk.trace(e.L, policy(*cfg))
        assert "s_endpgm" in tr[-1], cfg
        n += chk.check(tr, f"path{cfg}")
    if n: print(f"{n} hazards", file=sys.stderr)
    return "\n".join([HEADER.rstrip("\n"), "; @launch grid=(256,1,1) block=(256,1,1) lds=163840",
        DOC, '.amdgcn_target "amdgcn-amd-amdhsa--gfx950"\n.text', e.text(), '.section .rodata,"a"\n.p2align 6',
        f""".amdhsa_kernel {KN}
  .amdhsa_next_free_vgpr 512
  .amdhsa_next_free_sgpr 102
  .amdhsa_accum_offset 256
  .amdhsa_group_segment_fixed_size 0
  .amdhsa_kernarg_size 104
  .amdhsa_user_sgpr_count 2
  .amdhsa_user_sgpr_kernarg_segment_ptr 1
  .amdhsa_system_sgpr_workgroup_id_x 1
.end_amdhsa_kernel
"""])
if __name__ == "__main__":
    open(sys.argv[1], "w").write(build())
```
